```python
import torch

def _softmax(x, axis=-1):
    return torch.softmax(x, dim=axis)
def _gelu(x):
    return torch.nn.functional.gelu(x, approximate="tanh")
def _silu(x):
    return torch.nn.functional.silu(x)
def _sigmoid(x):
    return torch.sigmoid(x)
def _layernorm(x, axis=-1, eps=1e-5):
    m = x.mean(dim=axis, keepdim=True)
    v = x.var(dim=axis, keepdim=True, unbiased=False)
    return (x - m) / torch.sqrt(v + eps)
def _scatter_add(tgt, idx, src, axis=0):
    return tgt.clone().index_add_(axis, idx, src)
def _segment_sum(src, seg, n):
    out = torch.zeros((n,) + src.shape[1:], dtype=src.dtype)
    return out.index_add_(0, seg, src)
def _pad(x, pw):
    flat = tuple(v for pair in reversed(pw) for v in pair)
    return torch.nn.functional.pad(x, flat)

kernel_name = 'concat_heads__mha_block_cached__mha_block_cached__near_ridge'

def setup_inputs():

    _w = (lambda a: (lambda t: t.to(torch.bfloat16) if t.is_floating_point() else t)(torch.as_tensor(a)))
    def _A_setup():
        B, Sq, D = 16, 192, 640
        H, Sk, Dh = 32, 512, 128
        return {
            "x": _w((lambda *s: torch.randn(*s, dtype=torch.bfloat16) * 0.8)(B, Sq, D)),
            "k_cache": _w((lambda *s: torch.randn(*s, dtype=torch.bfloat16) * 0.8)(B, H, Sk, Dh)),
            "v_cache": _w((lambda *s: torch.randn(*s, dtype=torch.bfloat16) * 0.05)(B, H, Sk, Dh)),
            "wq": _w((lambda *s: torch.randn(*s, dtype=torch.bfloat16) * 0.8)(D, H * Dh) * (D ** -0.5)),
            "wo": _w((lambda *s: torch.randn(*s, dtype=torch.bfloat16) * 0.05)(H * Dh, D) * ((H * Dh) ** -0.5)),
        }
    _A_in = _A_setup()

    def _B_setup():
        B, Sq, D = 16, 192, 640
        H, Sk, Dh = 32, 512, 128
        return {
            "x": _w((lambda *s: torch.randn(*s, dtype=torch.bfloat16) * 0.8)(B, Sq, D)),
            "k_cache": _w((lambda *s: torch.randn(*s, dtype=torch.bfloat16) * 0.8)(B, H, Sk, Dh)),
            "v_cache": _w((lambda *s: torch.randn(*s, dtype=torch.bfloat16) * 0.05)(B, H, Sk, Dh)),
            "wq": _w((lambda *s: torch.randn(*s, dtype=torch.bfloat16) * 0.8)(D, H * Dh) * (D ** -0.5)),
            "wo": _w((lambda *s: torch.randn(*s, dtype=torch.bfloat16) * 0.05)(H * Dh, D) * ((H * Dh) ** -0.5)),
        }
    _B_in = _B_setup()

    return {
        "A_x": _A_in["x"],
        "A_k_cache": _A_in["k_cache"],
        "A_v_cache": _A_in["v_cache"],
        "A_wq": _A_in["wq"],
        "A_wo": _A_in["wo"],
        "B_x": _B_in["x"],
        "B_k_cache": _B_in["k_cache"],
        "B_v_cache": _B_in["v_cache"],
        "B_wq": _B_in["wq"],
        "B_wo": _B_in["wo"],
    }

def reference(A_x, A_k_cache, A_v_cache, A_wq, A_wo, B_x, B_k_cache, B_v_cache, B_wq, B_wo):
    def _A_ref(x, k_cache, v_cache, wq, wo):
        B, Sq, D = x.shape
        H, Dh = 32, 128
        q = (lambda x, *d: x.permute(*d))((x @ wq).reshape(B, Sq, H, Dh), 0, 2, 1, 3)
        scores = torch.einsum("bhqd,bhkd->bhqk", q, k_cache) * (Dh ** -0.5)
        p = _softmax(scores, axis=-1)
        o = torch.einsum("bhqk,bhkd->bhqd", p, v_cache)
        return (lambda x, *d: x.permute(*d))(o, 0, 2, 1, 3).reshape(B, Sq, H * Dh) @ wo

    def _B_ref(x, k_cache, v_cache, wq, wo):
        B, Sq, D = x.shape
        H, Dh = 32, 128
        q = (lambda x, *d: x.permute(*d))((x @ wq).reshape(B, Sq, H, Dh), 0, 2, 1, 3)
        scores = torch.einsum("bhqd,bhkd->bhqk", q, k_cache) * (Dh ** -0.5)
        p = _softmax(scores, axis=-1)
        o = torch.einsum("bhqk,bhkd->bhqd", p, v_cache)
        return (lambda x, *d: x.permute(*d))(o, 0, 2, 1, 3).reshape(B, Sq, H * Dh) @ wo

    a = _A_ref(A_x, A_k_cache, A_v_cache, A_wq, A_wo)
    b = _B_ref(B_x, B_k_cache, B_v_cache, B_wq, B_wo)
    return torch.concatenate([a, b], axis=-1)
```

```python
import itertools

_uid = itertools.count()


def regs(f, base, n=1):
    return [f"{f}{base + i}" for i in range(n)]


def fmt(f, base, n=1):
    return f"{f}{base}" if n == 1 else f"{f}[{base}:{base + n - 1}]"


class Ins:
    def __init__(self, text, kind, rd=(), wr=(), units=1, tag=None, passes=0, srcc=(), ab=()):
        self.text = text
        self.kind = kind
        self.rd = set(rd)
        self.wr = set(wr)
        self.units = units
        self.tag = tag
        self.passes = passes
        self.srcc = set(srcc)
        self.ab = set(ab)
        self.id = next(_uid)

    def __repr__(self):
        return f"<{self.text}>"


def mfma(shape, D, A, B, C):
    nd = 16 if shape == 32 else 4
    op = "v_mfma_f32_32x32x16_bf16" if shape == 32 else "v_mfma_f32_16x16x32_bf16"
    ct = "0" if C is None else fmt(C[0], C[1], nd)
    t = f"{op} {fmt(D[0], D[1], nd)}, {fmt(A[0], A[1], 4)}, {fmt(B[0], B[1], 4)}, {ct}"
    ab = regs(A[0], A[1], 4) + regs(B[0], B[1], 4)
    c = [] if C is None else regs(C[0], C[1], nd)
    return Ins(t, "mfma", rd=ab + c, wr=regs(D[0], D[1], nd), passes=8 if shape == 32 else 4, srcc=c, ab=ab)


def _opregs(o):
    o = o.strip()
    if o.startswith("-"):
        o = o[1:]
    if o in ("vcc",):
        return ["vcc"]
    if o in ("m0", "exec", "scc"):
        return [o]
    if len(o) > 1 and o[0] in "vas" and (o[1].isdigit() or o[1] == "["):
        if o[1] == "[":
            a, b = o[2:-1].split(":")
            return regs(o[0], int(a), int(b) - int(a) + 1)
        return [o]
    return []


def valu(op, dst, *srcs, kind=None, rw_dst=False, extra_rd=(), extra_wr=()):
    k = kind
    if k is None:
        k = "trans" if op.startswith(("v_exp", "v_rcp", "v_log", "v_rsq", "v_sqrt")) else "valu"
    rd = []
    for s in srcs:
        rd += _opregs(str(s))
    wr = _opregs(dst)
    if rw_dst:
        rd += wr
    t = f"{op} {dst}, " + ", ".join(str(s) for s in srcs)
    return Ins(t, k, rd=rd + list(extra_rd), wr=wr + list(extra_wr), units=2 if k == "trans" else 1)


def perm(op, a, b):
    return Ins(f"{op} {a}, {b}", "perm", rd=[a, b], wr=[a, b])


def salu(op, dst, *srcs, scc=True):
    rd = []
    for s in srcs:
        rd += _opregs(str(s))
    wr = _opregs(dst)
    if op in ("s_addc_u32", "s_cselect_b32", "s_cselect_b64", "s_subb_u32"):
        rd.append("scc")
    if scc and op not in ("s_mov_b32", "s_mov_b64", "s_mul_i32", "s_cselect_b32", "s_cselect_b64", "s_movk_i32"):
        wr.append("scc")
    t = f"{op} {dst}, " + ", ".join(str(s) for s in srcs)
    return Ins(t, "salu", rd=rd, wr=wr)


def scmp(op, a, b):
    return Ins(f"{op} {a}, {b}", "salu", rd=_opregs(str(a)) + _opregs(str(b)), wr=["scc"])


def ds_read(op, dst, n, addr, off):
    assert 0 <= off < 65536, off
    t = f"{op} {fmt(dst[0], dst[1], n)}, {addr}" + (f" offset:{off}" if off else "")
    return Ins(t, "lds_rd", rd=[addr], wr=regs(dst[0], dst[1], n))


def ds_write(op, addr, src, n, off):
    assert 0 <= off < 65536, off
    t = f"{op} {addr}, {fmt(src[0], src[1], n)}" + (f" offset:{off}" if off else "")
    return Ins(t, "lds_wr", rd=[addr] + regs(src[0], src[1], n))


def dma(voff, srd, soff, imm, tag, flags=""):
    assert 0 <= imm < 4096
    t = f"buffer_load_dwordx4 {voff}, s[{srd}:{srd + 3}], {soff} offen" + (f" offset:{imm}" if imm else "") + flags + " lds"
    return Ins(t, "dma", rd=[voff, "m0"] + regs("s", srd, 4) + _opregs(str(soff)), tag=tag)


def vload(dst, n, voff, srd, soff, imm, tag=None, flags="", op=None, rw=False):
    assert 0 <= imm < 4096
    op = op or {1: "buffer_load_dword", 2: "buffer_load_dwordx2", 4: "buffer_load_dwordx4"}[n]
    t = f"{op} {fmt(dst[0], dst[1], n)}, {voff}, s[{srd}:{srd + 3}], {soff} offen" + (f" offset:{imm}" if imm else "") + flags
    w = regs(dst[0], dst[1], n)
    return Ins(t, "vld", rd=[voff] + regs("s", srd, 4) + _opregs(str(soff)) + (w if rw else []), wr=w, tag=tag)


def vstore(src, n, voff, srd, soff, imm, tag=None, flags=""):
    assert 0 <= imm < 4096
    op = {1: "buffer_store_dword", 2: "buffer_store_dwordx2", 4: "buffer_store_dwordx4"}[n]
    t = f"{op} {fmt(src[0], src[1], n)}, {voff}, s[{srd}:{srd + 3}], {soff} offen" + (f" offset:{imm}" if imm else "") + flags
    return Ins(t, "vst", rd=[voff] + regs(src[0], src[1], n) + regs("s", srd, 4) + _opregs(str(soff)), tag=tag)


def needvm(tags):
    i = Ins("", "needvm", units=0)
    i.tag = set(tags)
    return i


def needlgkm0():
    return Ins("", "needlgkm0", units=0)


def drain():
    return Ins("s_waitcnt vmcnt(0) lgkmcnt(0)", "drain")


def barrier():
    return Ins("s_barrier", "bar")


def label(name):
    return Ins(f"{name}:", "label", units=0)


def raw(text, kind="other", rd=(), wr=()):
    return Ins(text, kind, rd=rd, wr=wr)


def nop(n):
    i = Ins(f"s_nop {n - 1}", "nop")
    i.states = n
    return i


VM_KINDS = ("dma", "vld", "vst", "atomic")
LG_KINDS = ("lds_rd", "lds_wr")


def compute_waits(paths, eager_cycles=140):
    waits = {}
    changed = True
    it = 0
    while changed:
        changed = False
        it += 1
        assert it < 20
        for seq in paths:
            vmq = []
            lgq = []
            t = 0
            last_m = -100
            last_d = 0
            for ins in seq:
                if ins.kind == "mfma":
                    t = max(t + 4, last_m + last_d)
                    last_m = t
                    last_d = ins.passes * 4
                elif ins.units:
                    t += 4 * ins.units
                need_vm = None
                need_lg = None
                touched = ins.rd | ins.wr
                if ins.kind == "drain":
                    vmq = []
                    lgq = []
                    continue
                if ins.kind == "drainlg":
                    lgq = []
                    continue
                if ins.kind == "needvm":
                    for k in range(len(vmq) - 1, -1, -1):
                        if vmq[k][0].tag in ins.tag:
                            need_vm = len(vmq) - 1 - k
                            break
                elif ins.kind == "needlgkm0":
                    if lgq:
                        need_lg = 0
                else:
                    for k in range(len(vmq) - 1, -1, -1):
                        if vmq[k][0].wr & touched:
                            need_vm = len(vmq) - 1 - k
                            break
                    for k in range(len(lgq) - 1, -1, -1):
                        if lgq[k][0].wr & touched:
                            need_lg = len(lgq) - 1 - k
                            kk = k
                            while kk + 1 < len(lgq) and t - lgq[kk + 1][1] >= eager_cycles:
                                kk += 1
                            need_lg = len(lgq) - 1 - kk
                            break
                cur = waits.get(ins.id, (None, None))
                nv, nl = cur
                if need_vm is not None:
                    need_vm = min(need_vm, 63)
                    nv = need_vm if nv is None else min(nv, need_vm)
                if need_lg is not None:
                    need_lg = min(need_lg, 15)
                    nl = need_lg if nl is None else min(nl, need_lg)
                if (nv, nl) != cur:
                    waits[ins.id] = (nv, nl)
                    changed = True
                if nv is not None:
                    vmq = vmq[len(vmq) - nv:] if nv < len(vmq) else vmq
                    if nv == 0:
                        vmq = []
                if nl is not None:
                    lgq = lgq[len(lgq) - nl:] if nl < len(lgq) else lgq
                    if nl == 0:
                        lgq = []
                if ins.kind in VM_KINDS:
                    vmq.append((ins, t))
                elif ins.kind in LG_KINDS:
                    lgq.append((ins, t))
    return waits


def apply_waits(seq, waits, done=None):
    out = []
    for ins in seq:
        w = waits.get(ins.id)
        if w is not None and w != (None, None):
            parts = []
            if w[0] is not None:
                parts.append(f"vmcnt({w[0]})")
            if w[1] is not None:
                parts.append(f"lgkmcnt({w[1]})")
            key = ("w", ins.id)
            if done is not None and key in done:
                wi = done[key]
            else:
                wi = Ins("s_waitcnt " + " ".join(parts), "wait")
                if done is not None:
                    done[key] = wi
            out.append(wi)
        if ins.kind in ("needvm", "needlgkm0"):
            continue
        out.append(ins)
    return out


VALU_KINDS = ("valu", "trans", "perm")


def _required(prod, cons):
    n = 0
    pk, ck = prod.kind, cons.kind
    if pk in VALU_KINDS:
        vw = {r for r in prod.wr if r[0] in "va" and r != "vcc"}
        sw = {r for r in prod.wr if r[0] == "s" or r == "vcc"}
        if ck == "mfma" and vw & cons.rd:
            n = max(n, 2)
        if ck == "perm" and vw & cons.rd:
            n = max(n, 2)
        if pk == "trans" and ck in ("valu", "perm") and vw & cons.rd:
            n = max(n, 1)
        if cons.text.startswith(("v_readfirstlane", "v_readlane")) and vw & cons.rd:
            n = max(n, 1)
        if sw:
            if ck in VALU_KINDS and sw & cons.rd:
                n = max(n, 2)
            if ck in VM_KINDS and sw & cons.rd:
                n = max(n, 5)
            if ck in ("salu", "branch") and sw & cons.rd:
                n = max(n, 4)
    if pk == "mfma":
        big = 12 if prod.passes == 8 else 8
        if ck == "mfma":
            if prod.wr & cons.ab:
                n = max(n, big)
            if prod.wr & cons.srcc:
                if not (prod.wr == cons.srcc and prod.passes == cons.passes):
                    n = max(n, 10 if prod.passes == 8 else 6)
            elif prod.wr & cons.wr and prod.passes != cons.passes:
                n = max(n, big)
        elif ck in VALU_KINDS or ck in VM_KINDS or ck in LG_KINDS:
            if prod.wr & (cons.rd | cons.wr):
                n = max(n, big)
            if ck in VALU_KINDS and prod.srcc & cons.wr:
                n = max(n, 7 if prod.passes == 8 else 3)
    if pk == "salu" and "m0" in prod.wr and ck == "dma":
        n = max(n, 1)
    if pk == "vst" and ck in VALU_KINDS:
        data = {r for r in prod.rd if r[0] in "va"}
        if data & cons.wr:
            n = max(n, 2)
    return n


def pad_hazards(paths, verbose=True):
    pads = {}
    changed = True
    while changed:
        changed = False
        for seq in paths:
            hist = []
            t = 0
            last_m = -100
            last_p = 0
            for ins in seq:
                if ins.kind == "label":
                    continue
                t += 1 + pads.get(ins.id, 0)
                if ins.kind == "mfma":
                    t = max(t, last_m + last_p)
                short = 0
                for p, tp in hist[-40:]:
                    req = _required(p, ins)
                    if req and t - tp - 1 < req:
                        short = max(short, req - (t - tp - 1))
                        why = p
                if short:
                    pads[ins.id] = pads.get(ins.id, 0) + short
                    t += short
                    changed = True
                    if verbose:
                        print(f"; hazard pad {short} before {ins.text}  (after {why.text})")
                if ins.kind == "mfma":
                    last_m = t
                    last_p = ins.passes
                if ins.kind == "nop":
                    t += ins.states - 1
                hist.append((ins, t))
    return pads


def emit(seq, pads):
    lines = []
    for ins in seq:
        p = pads.get(ins.id, 0)
        while p > 0:
            k = min(p, 16)
            lines.append(f"    s_nop {k - 1}")
            p -= k
        if ins.kind == "label":
            lines.append(ins.text)
        else:
            lines.append("    " + ins.text)
    return "\n".join(lines) + "\n"


class Sched:
    def __init__(self):
        self.m = []
        self.fixed = {}
        self.streams = []

    def add(self, ins):
        self.m.append(ins)
        return len(self.m) - 1

    def n(self):
        return len(self.m)

    def put(self, g, *ins):
        self.fixed.setdefault(g, []).extend(ins)

    def stream(self, items):
        self.streams.append(list(items))

    def build(self, cap32=5, cap16=2, report=False):
        out = []
        pos = [0] * len(self.streams)
        over = 0
        for g in range(-1, len(self.m)):
            if g >= 0:
                out.append(self.m[g])
            fx = self.fixed.get(g, [])
            out.extend(fx)
            used = sum(i.units for i in fx)
            is32 = g >= 0 and self.m[g].passes == 8
            cap = cap32 if is32 else cap16
            if g == -1:
                cap = 0
            if not is32 and any(i.kind in ("dma", "vld", "vst", "bar") for i in fx):
                cap = used
            if any(i.kind == "bar" for i in fx):
                cap = used
            last = g == len(self.m) - 1
            progress = True
            while progress:
                progress = False
                for si, st in enumerate(self.streams):
                    if pos[si] >= len(st):
                        continue
                    ins, e, d = st[pos[si]]
                    forced = last or any(dd is not None and dd <= g for (_, _, dd) in st[pos[si]:pos[si] + 400])
                    if e > g and not last:
                        assert not forced, f"stream item {ins} earliest {e} > gap {g} but forced"
                        continue
                    memk = ins.kind in ("vst", "vld", "dma", "lds_rd", "lds_wr")
                    fits = used + ins.units <= cap
                    if memk and not is32 and used > 0:
                        fits = False
                    if fits or forced:
                        out.append(ins)
                        used += ins.units
                        if memk and not is32 and ins.kind != "lds_rd":
                            cap = used
                        pos[si] += 1
                        progress = True
                        break
            if used > cap + 1:
                over += used - cap
                if report:
                    print(f"; gap {g}: used {used} cap {cap}")
        if report:
            print("; total overflow units", over)
        return out
```

```python
import sys, math, struct
from fw import *

NAME = "concat_heads__mha_block_cached__mha_block_cached__near_ridge"
OPT = dict(overlap_epi=True, prof=False, kvnt=False, cap32=5, warm=True)
for a in sys.argv[2:]:
    k, v = a.split("=")
    OPT[k] = type(OPT[k])(int(v)) if not isinstance(OPT[k], str) else v

KB = 1024
WS_O = 0
O_GRP = 2 * 786432
WS_WOT = 50331648
WOT_BLK = 5242880
WS_PROF = 64 * 1024 * 1024
WS_BYTES = 297271296

S_K, S_V, S_X, S_WQ, S_OST, S_WO, S_WOT = 8, 12, 16, 20, 24, 28, 32
sKV, sWQ, sX, sW4K, sW6K, sO, sIT, sT0, sT1, sC, sWAVE = ["s%d" % i for i in range(36, 47)]
sWOS, sWOD, sWOX, sW5K, sHI, sLO = ["s%d" % i for i in range(47, 53)]
sPROF = "s53"
S_PROF = 72
vK = ["v%d" % i for i in range(192, 196)]
vV = "v196"
vW = ["v%d" % i for i in range(197, 201)]
vX = ["v%d" % i for i in range(201, 205)]
kA = ["v%d" % i for i in range(205, 213)]
vA = ["v%d" % i for i in range(213, 217)]
wA = ["v%d" % i for i in range(217, 221)]
xA = ["v%d" % i for i in range(221, 223)]
vO = "v223"
vL = ["v224", "v225", "v226"]
vR = ["v227", "v228", "v229"]
vT = ["v230", "v231"]
EPI = [232, 240]
vJ = ["v248", "v249"]
vL16 = "v250"
vWARM = "v251"
vP = ["v252", "v253", "v254", "v255"]

D = [i * 16 * KB for i in range(10)]
XS = [96 * KB, 120 * KB]
WOJ_ADDR = 96 * KB


def qacc(dt, qt):
    return 64 * (qt >> 1) + 8 * dt + 4 * (qt & 1)


def qf(T, ks):
    return 64 * T + 4 * ks


def sreg(T):
    return 64 * T + 32


ABUF = [192, 248]


def bx(qt, ks):
    return 200 + 8 * qt + 4 * ks


def kf(j):
    return 192 + 4 * j


def vf(f):
    return 224 + 4 * f


def oacc(T, dt):
    return 64 * T + 16 * dt


def build_units():
    U = {}
    for i in range(10):
        U[("X", i)] = dict(addr=XS[i % 2], size=24 * KB, N=i, I=i - 1)
        for u in range(2):
            U[("W", i, u)] = dict(addr=D[2 * (i % 3) + u], size=16 * KB, N=i, I=i - 2)
    U[("X", 0)]["I"] = -3
    U[("W", 0, 0)]["I"] = -3
    U[("W", 0, 1)]["I"] = -3
    U[("W", 1, 0)]["I"] = -1
    U[("W", 1, 1)]["I"] = -1
    pages = [9, 2, 3, 4, 5, 0, 1, 6, 7, 8, 9, 2, 3, 4, 5, 0, 1, 6, 7, 8, 9, 2, 3, 4, 5, 0, 1, 9, 8, 2, 3, 5]
    issue = [6, 8, 8, 9, 9, 10, 10, 9, 11, 11, 12, 12, 13, 13, 14, 14, 15, 15, 16, 16, 17, 17, 18, 18, 19, 19, 20, 21, 21, 22, 22, 23]
    for u in range(32):
        if u % 2 == 0:
            key = ("K", u // 2)
            N = 10 + u // 2
        else:
            key = ("V", u // 2)
            N = 11 + u // 2
        U[key] = dict(addr=D[pages[u]], size=16 * KB, N=N, I=issue[u])
    U[("J",)] = dict(addr=WOJ_ADDR, size=20 * KB, N=23, I=21)
    allu = []
    for rep in range(3):
        for k, u in U.items():
            allu.append((k, rep, u["addr"], u["addr"] + u["size"], u["N"] + 27 * rep, u["I"] + 27 * rep))
    for a in allu:
        assert a[5] < a[4], a
        for b in allu:
            if a is b:
                continue
            if a[2] < b[3] and b[2] < a[3]:
                assert a[4] < b[5] or b[4] < a[5], (a, b)
    return U


U = build_units()


def unit_dmas(key, nxt):
    u = U[key]
    tag = key
    kind = key[0]
    kvf = " nt" if OPT["kvnt"] else ""
    st = unit_dmas.alt
    unit_dmas.alt ^= 1
    sT = [sT0, sT1][st]
    if kind in "KV":
        pre = [salu("s_add_u32", sT, sKV, key[1] * 8192), salu("s_add_u32", "m0", sW4K, u["addr"])]
        if kind == "K":
            return [(pre, [dma(vK[m], S_K, sT, 1024 * m, tag, kvf) for m in range(4)])]
        return [(pre, [dma(vV, S_V, sT, 1024 * m, tag, kvf) for m in range(4)])]
    if kind == "W":
        pre = [salu("s_add_u32", sT, sWQ, key[1] * 524288 + key[2] * 128), salu("s_add_u32", "m0", sW4K, u["addr"])]
        return [(pre, [dma(vW[m], S_WQ, sT, 1024 * m, tag) for m in range(4)])]
    if kind == "X":
        pre = [salu("s_add_u32", sT, sX, key[1] * 128), salu("s_add_u32", "m0", sW6K, u["addr"])]
        g0 = (pre, [dma(vX[m], S_X, sT, 1024 * m, tag) for m in range(4)])
        st = unit_dmas.alt
        unit_dmas.alt ^= 1
        sT2 = [sT0, sT1][st]
        pre2 = [salu("s_add_u32", sT2, sX, key[1] * 128 + 40960), salu("s_add_u32", "m0", sW6K, u["addr"] + 4096)]
        g1 = (pre2, [dma(vX[m], S_X, sT2, 1024 * m, tag) for m in range(2)])
        return [g0, g1]
    if kind == "J":
        gs = []
        for jj in range(5):
            st = unit_dmas.alt
            unit_dmas.alt ^= 1
            sTj = [sT0, sT1][st]
            pre = [salu("s_add_u32", sTj, sWOS, jj * 128), salu("s_add_u32", "m0", sW5K, u["addr"] + jj * 1024)]
            gs.append((pre, [dma(vX[0], S_WO, sTj, 0, tag)]))
        return gs


unit_dmas.alt = 0


class Win:
    def __init__(self, rs, init, span):
        self.rs = rs
        self.cur = init
        self.init = init
        self.span = span

    def fits(self, addr):
        return 0 <= addr - self.cur and addr - self.cur + self.span < 65536

    def move(self, new):
        d = (new - self.cur) & 0xffffffff
        self.cur = new
        return [valu("v_add_u32", r, "0x%x" % d, r) for r in self.rs]


def prof_stamp(idx):
    if not OPT["prof"]:
        return []
    return [raw("s_memtime s[76:77]", "other", wr=["s76", "s77"]),
            raw("s_waitcnt lgkmcnt(0)", "drainlg"),
            valu("v_mov_b32", vP[0], "s76"),
            valu("v_mov_b32", vP[1], sPROF),
            vstore(("v", 252), 1, vP[1], S_PROF, 0, 4 * idx)]


def first_reads(Wn, key_w, key_x):
    aw = U[key_w]["addr"] - Wn["w"].cur
    ax = U[key_x]["addr"] - Wn["x"].cur

    def A(ks, t):
        return ds_read("ds_read_b64_tr_b16", ("a", ABUF[0] + 4 * ks + 2 * t), 2, wA[0], aw + ks * 4096 + t * 512)

    def B(qt, ks):
        return ds_read("ds_read_b128", ("a", bx(qt, ks)), 4, xA[ks], ax + qt * 2048)
    return [A(0, 0), A(0, 1), B(0, 0), A(1, 0), A(1, 1), B(0, 1)] + [B(qt, ks) for qt in range(1, 6) for ks in range(2)]


def epilogue_items(flags=""):
    groups = []
    n = 0
    for T in range(3):
        for dt in range(4):
            for o in range(2):
                tb = EPI[n % 2]
                src = oacc(T, dt) + 8 * o
                rd = [valu("v_accvgpr_read_b32", f"v{tb + i}", f"a{src + i}") for i in range(8)]
                mu = [valu("v_mul_f32", f"v{tb + i}", vR[T], f"v{tb + i}") for i in range(8)]
                cv = [valu("v_cvt_pk_bf16_f32", f"v{tb + i}", f"v{tb + 2 * i}", f"v{tb + 2 * i + 1}") for i in range(4)]
                pre = []
                if dt % 2 == 0 and o == 0:
                    pre = [salu("s_add_u32", "s54", sO, (dt >> 1) * 12288 + T * 4096)]
                st = vstore(("v", tb), 4, vO, S_OST, "s54", (dt & 1) * 1024 + o * 512, tag="ost", flags=flags)
                groups.append(rd + mu + cv + pre + [st])
                n += 1
    out = []
    for g in groups:
        out += g
    return out


def lcheck_items():
    out = []
    for T in range(3):
        out += [valu("v_mov_b32", vT[T % 2], vL[T])]
        out += [perm("v_permlane32_swap_b32", vT[T % 2], vL[T])]
        out += [valu("v_add_f32", vL[T], vL[T], vT[T % 2])]
    out += [valu("v_add_f32", vT[0], vL[0], vL[1]), valu("v_min3_f32", vT[1], vL[0], vL[1], vL[2]),
            valu("v_add_f32", vT[0], vT[0], vL[2]),
            valu("v_cmp_nlt_f32", "s[56:57]", sLO, vT[1]),
            valu("v_cmp_ngt_f32", "vcc", sHI, vT[0]),
            salu("s_or_b64", "vcc", "vcc", "s[56:57]")]
    return out


def item_body():
    S = Sched()
    Wn = dict(k=Win(kA, 48 * KB, 0), v=Win(vA, 32 * KB, 4096 + 2048), w=Win(wA, 0, 4096 + 512), x=Win(xA, XS[0], 5 * 2048))
    bar_gap = {}

    def place_barrier(n, g):
        tags = [k for k, u in U.items() if (u["N"] - (n + 1)) % 27 == 0]
        S.put(g, needlgkm0(), needvm(tags), barrier())
        bar_gap[n] = g

    def ensure(wn, addr, g_after, want=None):
        w = Wn[wn]
        if not w.fits(addr):
            new = want if want is not None else addr
            mv = w.move(new)
            for i, m in enumerate(mv):
                S.put(g_after + i // 2, m)
            assert w.fits(addr)

    conv = [[], [], []]
    for i in range(10):
        q0 = S.n()
        for dt in range(8):
            for qt in range(6):
                for ks in range(2):
                    acc = ("v", qacc(dt, qt))
                    S.add(mfma(16, acc, ("a", ABUF[dt % 2] + 4 * ks), ("a", bx(qt, ks)), None if (i == 0 and ks == 0) else acc))
        for dt in range(1, 8):
            key = ("W", i, dt // 4)
            if dt == 4:
                ensure("w", U[key]["addr"], q0 + 12 * 2 + 7)
            a0 = U[key]["addr"] - Wn["w"].cur
            gaps = [4, 5, 6, 7] if dt == 1 else [0, 2, 4, 6]
            for n, (ks, t) in enumerate([(0, 0), (0, 1), (1, 0), (1, 1)]):
                S.put(q0 + 12 * (dt - 1) + gaps[n],
                      ds_read("ds_read_b64_tr_b16", ("a", ABUF[dt % 2] + 4 * ks + 2 * t), 2, wA[dt % 4], a0 + ks * 4096 + t * 512))
        place_barrier(i, q0 + 83)
        if i < 9:
            ensure("w", U[("W", i + 1, 0)]["addr"], q0 + 79)
            assert Wn["x"].fits(U[("X", i + 1)]["addr"])
            for n, r in enumerate(first_reads(Wn, ("W", i + 1, 0), ("X", i + 1))):
                S.put(q0 + 84 + n, r)
        else:
            ensure("k", U[("K", 0)]["addr"], q0 + 74, want=112 * KB)
            a0 = U[("K", 0)]["addr"] - Wn["k"].cur
            for j in range(8):
                S.put(q0 + 84 + j, ds_read("ds_read_b128", ("a", kf(j)), 4, kA[j], a0))
            for T in range(3):
                for dt in range(8):
                    R = 64 * T + 8 * dt
                    Dd = 64 * T + 4 * dt
                    e = q0 + 12 * dt + 4 * T + 3 + 2
                    its = [valu("v_mul_f32", f"v{R + x}", sC, f"v{R + x}") for x in range(8)]
                    its += [valu("v_cvt_pk_bf16_f32", f"v{Dd + x}", f"v{R + 2 * x}", f"v{R + 2 * x + 1}") for x in range(4)]
                    conv[T] += [(x, min(e, q0 + 95), None) for x in its]
                    conv[T] += [(perm("v_permlane16_swap_b32", f"v{Dd}", f"v{Dd + 2}"), min(e, q0 + 95), None),
                                (perm("v_permlane16_swap_b32", f"v{Dd + 1}", f"v{Dd + 3}"), min(e, q0 + 95), None)]
    qk = [[0] * 3 for _ in range(16)]
    pv = [[0] * 3 for _ in range(16)]

    def QK(t, T):
        qk[t][T] = S.n()
        s = ("v", sreg(T))
        for j in range(8):
            S.add(mfma(32, s, ("a", kf(j)), ("v", qf(T, j)), None if j == 0 else s))

    def PV(t, T):
        pv[t][T] = S.n()
        for f in range(8):
            o = ("a", oacc(T, f >> 1))
            S.add(mfma(32, o, ("a", vf(f)), ("v", sreg(T) + 4 * (f & 1)), None if (t == 0 and f & 1 == 0) else o))

    for t in range(16):
        QK(t, 0)
        if t:
            PV(t - 1, 1)
        QK(t, 1)
        if t:
            PV(t - 1, 2)
        QK(t, 2)
        PV(t, 0)
    PV(15, 1)
    PV(15, 2)
    for T in range(3):
        c = conv[T]
        c[-1] = (c[-1][0], c[-1][1], qk[0][T] - 1)
    kwant = {D[9]: 112 * KB, D[7]: 112 * KB, D[8]: 112 * KB, D[3]: 48 * KB, D[5]: 48 * KB, D[1]: 0}
    vwant = {D[2]: 32 * KB, D[4]: 32 * KB, D[0]: 0, D[6]: 96 * KB, D[8]: 96 * KB, D[9]: 96 * KB, D[5]: 32 * KB}
    for t in range(16):
        g0 = pv[t - 1][2] if t else qk[0][1]
        place_barrier(10 + t, g0 - 1)
        va = U[("V", t)]["addr"]
        ensure("v", va, g0 - 6, want=vwant[va])
        a0 = va - Wn["v"].cur
        for f in range(8):
            dt, s = f >> 1, f & 1
            for tt in range(2):
                S.put(g0 + 2 * f + tt if t else g0 + 2 * f + tt,
                      ds_read("ds_read_b64_tr_b16", ("a", vf(f) + 2 * tt), 2, vA[dt], a0 + s * 4096 + tt * 2048))
        if t < 15:
            ka = U[("K", t + 1)]["addr"]
            ensure("k", ka, qk[t][0] + 1, want=kwant[ka])
            a0 = ka - Wn["k"].cur
            for j in range(8):
                S.put(qk[t][2] + [0, 2, 4, 6, 8, 9, 10, 11][j], ds_read("ds_read_b128", ("a", kf(j)), 4, kA[j], a0))
    place_barrier(26, pv[15][1] - 1)
    for wn in ("w", "x"):
        w = Wn[wn]
        if w.cur != w.init:
            for i2, m in enumerate(w.move(w.init)):
                S.put(qk[2][0] + 1 + i2 // 2, m)
    fr = first_reads(Wn, ("W", 0, 0), ("X", 0))
    for n, r in enumerate(fr[:10]):
        S.put(pv[15][1] + [0, 1, 2, 3, 4, 5, 6, 6, 7, 7][n], r)
    for n, r in enumerate(fr[10:]):
        S.put(pv[15][2] + n, r)
    for wn in ("k", "v"):
        w = Wn[wn]
        if w.cur != w.init:
            for i2, m in enumerate(w.move(w.init)):
                S.put(pv[15][0] + 1 + i2 // 2, m)
    sm = []
    for t in range(16):
        for T in range(3):
            s = sreg(T)
            e = qk[t][T] + 7 + 2
            ex = [valu("v_exp_f32", f"v{s + r}", f"v{s + r}") for r in range(16)]
            ad = [valu("v_add_f32", vL[T], vL[T], f"v{s + r}") for r in range(16)]
            if t == 0:
                ad[0] = valu("v_mov_b32", vL[T], f"v{s}")
            cv = [valu("v_cvt_pk_bf16_f32", f"v{s + r}", f"v{s + 2 * r}", f"v{s + 2 * r + 1}") for r in range(8)]
            seq = [ex[0], ex[1]]
            for r in range(16):
                seq.append(ad[r])
                if r + 2 < 16:
                    seq.append(ex[r + 2])
                if r % 2 == 1:
                    seq.append(cv[r // 2])
            for x in seq:
                d = None
                if x is cv[3]:
                    d = pv[t][T] - 1
                if x is cv[7]:
                    d = pv[t][T]
                sm.append((x, e, d))
    sm += [(x, 0, None) for x in lcheck_items()]
    byI = {}
    for k, u in U.items():
        byI.setdefault(u["I"] % 27, []).append(k)
    order = {"X": 0, "W": 1, "K": 2, "V": 2, "J": 3}
    for n in range(27):
        keys = sorted(byI.get(n, []), key=lambda k: ((U[k]["N"] - U[k]["I"]), order[k[0]], k))
        groups = []
        for k in keys:
            groups += unit_dmas(k, None)
        nd = sum(len(g[1]) for g in groups)
        if n <= 9:
            cand = [96 * n + 9 + 4 * x for x in range(18)]
        elif n == 10:
            cand = [96 * 9 + 93] + [qk[0][0] + x for x in range(7)]
        elif n == 11:
            cand = [qk[0][1] + 2 + 3 * x for x in range(8)] + [qk[1][0] + 2 + 3 * x for x in range(7)]
        elif n == 26:
            a, b = bar_gap[25] + 2, bar_gap[26] - 1
            cand = [a + (b - a) * x // 8 for x in range(8)]
        else:
            t = n - 10
            a, b = (qk[t][0] + 1 if nd <= 8 else pv[t - 1][0] - 6), bar_gap[n] - 1
            cand = [a + (b - a) * x // max(nd, 1) for x in range(nd)]
        assert nd <= len(cand), (n, nd, len(cand))
        ci = 0
        for pre, ds in groups:
            g = cand[ci]
            if n <= 9:
                S.put(g - 2, pre[0])
                S.put(g - 1, pre[1])
            else:
                S.put(g - 1, pre[0], pre[1])
            for d in ds:
                S.put(cand[ci], d)
                ci += 1
    S.put(qk[3][0] + 2, salu("s_add_u32", sWQ, sWQ, 512))
    S.put(qk[3][0] + 3, scmp("s_cmp_eq_u32", sIT, 0), salu("s_cselect_b32", f"s{S_X + 2}", f"s{S_X + 2}", 0),
          salu("s_cselect_b32", f"s{S_WQ + 2}", f"s{S_WQ + 2}", 0))
    S.put(pv[15][0] + 2, salu("s_add_u32", sKV, sKV, 262144))
    g0 = bar_gap[22] + 26
    JD = [48, 52, 56, 60, 112]
    for jj in range(5):
        for tt in range(2):
            S.put(g0 + 2 * jj + tt, ds_read("ds_read_b64_tr_b16", ("v", JD[jj] + 2 * tt), 2, vJ[tt], jj * 1024))
    assert g0 + 10 < bar_gap[23]
    g1 = bar_gap[23] + 26
    for jj in range(5):
        c = 2 * jj * 4096 if jj < 2 else (2 * jj - 5) * 4096 + 1310720
        if jj == 2:
            S.put(g1 + 3 * jj - 1, salu("s_add_u32", "s55", sWOX, 4 * 4096))
        else:
            S.put(g1 + 3 * jj - 1, salu("s_add_u32", "s55", sWOD, c))
        S.put(g1 + 3 * jj, vstore(("v", JD[jj]), 4, vL16, S_WOT, "s55", 0, tag="jst"))
    S.put(g1 + 16, salu("s_add_u32", sWOS, sWOS, 640), salu("s_add_u32", sWOD, sWOD, 2 * 1310720),
          salu("s_add_u32", sWOX, sWOX, 2 * 1310720))
    if OPT["warm"]:
        S.put(qk[12][0] + 3, vload(("v", 255), 1, vWARM, S_X, 0, 0, tag="warm"))
    if OPT["overlap_epi"]:
        ep = epilogue_items()
        S.stream([(x, 0, 96 * 9 - 1 if x is ep[-1] else None) for x in ep])
        S.put(96 * 9 + 2, salu("s_mul_i32", "s54", sIT, 49152), salu("s_add_u32", sO, sO, "s54"))
        S.put(96 * 9 + 3, salu("s_mov_b32", f"s{S_OST + 2}", WS_WOT))
    for T in range(3):
        S.stream(conv[T])
    S.stream(sm)
    if OPT["prof"]:
        S.put(-1, *prof_stamp(0))
        S.put(959, *prof_stamp(1))
        S.put(qk[1][0] - 1, *prof_stamp(2))
        S.put(qk[8][0] - 1, *prof_stamp(3))
        S.put(pv[15][1] - 1, *prof_stamp(4))
    seq = S.build(cap32=OPT["cap32"], report=OPT.get("report", False))
    return seq, Wn


def slow_path():
    o = [label("L_slow"), drain(), nop(16)]
    KF = [48, 52, 56, 60, 112, 116, 120, 124]
    VFR = [176, 180, 184, 188]
    vM = ["v232", "v233", "v234"]
    vKo, vVo, vt = "v235", "v236", "v237"
    o += [valu("v_lshrrev_b32", vt, 4, vL16),
          valu("v_and_b32", vKo, 31, vt), valu("v_lshlrev_b32", vKo, 8, vKo),
          valu("v_lshrrev_b32", vVo, 5, vt), valu("v_lshl_add_u32", vKo, vVo, 4, vKo),
          valu("v_lshlrev_b32", vVo, 10, vVo),
          valu("v_and_b32", "v238", 19, vt), valu("v_and_b32", "v239", 4, vt), valu("v_lshlrev_b32", "v239", 1, "v239"),
          valu("v_or_b32", "v238", "v238", "v239"), valu("v_and_b32", "v239", 8, vt), valu("v_lshrrev_b32", "v239", 1, "v239"),
          valu("v_or_b32", "v238", "v238", "v239"), valu("v_lshl_add_u32", vVo, "v238", 1, vVo)]
    o += [salu("s_and_b32", "s58", sKV, "0xfffe0000"), salu("s_sub_u32", "s58", "s58", 262144)]
    for T in range(3):
        o += [valu("v_mov_b32", vM[T], "0xff800000")]

    def scores(T):
        s = ("v", sreg(T))
        r = []
        for j in range(8):
            r.append(mfma(32, s, ("v", KF[j]), ("v", qf(T, j)), None if j == 0 else s))
        return r

    def loadk():
        return [vload(("v", KF[j]), 4, vKo, S_K, "s59", 32 * j) for j in range(8)] + [drain()]
    o += [salu("s_mov_b32", "s59", "s58"), salu("s_mov_b32", "s60", 16), label("L_slow1")]
    o += loadk()
    for T in range(3):
        o += scores(T) + [nop(16)]
        for r in range(0, 16, 2):
            o += [valu("v_max3_f32", vM[T], vM[T], f"v{sreg(T) + r}", f"v{sreg(T) + r + 1}")]
    o += [salu("s_add_u32", "s59", "s59", 8192), salu("s_sub_u32", "s60", "s60", 1), scmp("s_cmp_lg_u32", "s60", 0),
          raw("s_cbranch_scc1 L_slow1", "branch", rd=["scc"])]
    for T in range(3):
        o += [valu("v_mov_b32", vt, vM[T]), nop(2), perm("v_permlane32_swap_b32", vt, vM[T]), valu("v_max_f32", vM[T], vM[T], vt),
              valu("v_mov_b32", vL[T], 0)]
    for r in range(192):
        o += [valu("v_accvgpr_write_b32", f"a{r}", 0)]
    o += [salu("s_mov_b32", "s59", "s58"), salu("s_mov_b32", "s60", 16), label("L_slow2")]
    o += loadk()
    for T in range(3):
        s = sreg(T)
        o += scores(T) + [nop(16)]
        o += [valu("v_sub_f32", f"v{s + r}", f"v{s + r}", vM[T]) for r in range(16)]
        o += [valu("v_exp_f32", f"v{s + r}", f"v{s + r}") for r in range(16)]
        o += [valu("v_add_f32", vL[T], vL[T], f"v{s + r}") for r in range(16)]
        o += [valu("v_cvt_pk_bf16_f32", f"v{s + r}", f"v{s + 2 * r}", f"v{s + 2 * r + 1}") for r in range(8)]
    for half in range(2):
        for ff in range(4):
            f = 4 * half + ff
            dt, sx = f >> 1, f & 1
            if sx == 0 or ff == 0 or True:
                o += [salu("s_add_u32", "s61", "s59", sx * 4096 + dt * 64)]
            for j in range(8):
                key = (j & 3) + 8 * (j >> 2)
                op = "buffer_load_short_d16_hi" if j & 1 else "buffer_load_short_d16"
                o += [vload(("v", VFR[ff] + j // 2), 1, vVo, S_V, "s61", key * 256, op=op, rw=True)]
                if j & 1 == 0:
                    o += [drain()]
        o += [drain()]
        for T in range(3):
            for ff in range(4):
                f = 4 * half + ff
                a = ("a", oacc(T, f >> 1))
                o += [mfma(32, a, ("v", VFR[ff]), ("v", sreg(T) + 4 * (f & 1)), a)]
        o += [nop(16)]
    o += [salu("s_add_u32", "s59", "s59", 8192), salu("s_sub_u32", "s60", "s60", 1), scmp("s_cmp_lg_u32", "s60", 0),
          raw("s_cbranch_scc1 L_slow2", "branch", rd=["scc"])]
    for T in range(3):
        o += [valu("v_mov_b32", vt, vL[T]), nop(2), perm("v_permlane32_swap_b32", vt, vL[T]), valu("v_add_f32", vL[T], vL[T], vt)]
    o += [nop(16), drain(), raw("s_branch L_back", "branch")]
    return o


def srd(base, lo, hi, nbytes):
    return [salu("s_mov_b32", f"s{base}", lo), salu("s_and_b32", f"s{base + 1}", hi, "0xffff"),
            salu("s_mov_b32", f"s{base + 2}", nbytes), salu("s_mov_b32", f"s{base + 3}", "0x20000")]


def decode_wg():
    return [salu("s_and_b32", "s3", "s2", 7), salu("s_lshr_b32", "s4", "s2", 6), salu("s_lshl_b32", "s3", "s3", 2),
            salu("s_add_u32", "s3", "s3", "s4"), salu("s_lshr_b32", "s4", "s2", 3), salu("s_and_b32", "s4", "s4", 7),
            salu("s_lshr_b32", "s5", "s3", 4), salu("s_and_b32", "s6", "s3", 15)]


def k1_prologue():
    o = [scmp("s_cmp_ge_u32", "s2", 256), raw("s_cbranch_scc1 L_end1", "branch", rd=["scc"])]
    o += decode_wg()
    o += [salu("s_mul_i32", "s7", "s5", 40), salu("s_add_u32", "s68", "s0", "s7"), salu("s_addc_u32", "s69", "s1", 0),
          raw("s_load_dwordx8 s[56:63], s[68:69], 0", wr=regs("s", 56, 8)),
          raw("s_load_dwordx2 s[64:65], s[68:69], 32", wr=["s64", "s65"]),
          raw("s_load_dwordx2 s[66:67], s[0:1], 96", wr=["s66", "s67"])]
    i, a, b, c = "v1", "v2", "v3", "v4"
    o += [valu("v_lshrrev_b32", a, 6, "v0"), valu("v_and_b32", i, 63, "v0"),
          valu("v_readfirstlane_b32", sWAVE, a), valu("v_lshlrev_b32", vL16, 4, i)]
    o += [valu("v_lshrrev_b32", a, 4, i), valu("v_and_b32", b, 15, i),
          valu("v_xor_b32", c, a, b), valu("v_lshlrev_b32", c, 4, c), valu("v_lshl_add_u32", vK[0], a, 8, c)]
    o += [valu("v_xor_b32", vK[m], m << 6, vK[0]) for m in range(1, 4)]
    o += [valu("v_lshlrev_b32", c, 2, a), valu("v_xor_b32", c, c, b), valu("v_lshlrev_b32", c, 4, c),
          valu("v_lshl_add_u32", vV, a, 8, c)]
    o += [valu("v_and_b32", b, 7, i), valu("v_lshrrev_b32", "v5", 3, i),
          valu("v_and_b32", c, 1, a), valu("v_lshlrev_b32", c, 1, c), valu("v_xor_b32", c, c, b), valu("v_lshlrev_b32", c, 4, c),
          valu("v_lshl_add_u32", vW[0], "v5", 13, c),
          valu("v_xor_b32", vW[1], 64, vW[0]), valu("v_add_u32", vW[1], 64512, vW[1]),
          valu("v_add_u32", vW[2], 2 * 64512, vW[0]), valu("v_add_u32", vW[3], 2 * 64512, vW[1])]
    o += [valu("v_xor_b32", c, a, b), valu("v_lshlrev_b32", c, 4, c), valu("v_mul_u32_u24", "v6", 1280, "v5"),
          valu("v_add_u32", vX[0], "v6", c),
          valu("v_xor_b32", vX[1], 64, vX[0]), valu("v_add_u32", vX[1], 9216, vX[1]),
          valu("v_add_u32", vX[2], 2 * 9216, vX[0]), valu("v_add_u32", vX[3], 2 * 9216, vX[1])]
    o += [raw("s_waitcnt lgkmcnt(0)", "drainlg")]
    o += srd(S_X, "s56", "s57", 3932160) + srd(S_WQ, "s62", "s63", 5242880)
    o += [salu("s_lshr_b32", "s70", sWAVE, 1), salu("s_and_b32", "s71", sWAVE, 1),
          salu("s_lshl_b32", sW4K, sWAVE, 12), salu("s_mul_i32", sW6K, sWAVE, 6144), salu("s_mul_i32", sW5K, sWAVE, 5120),
          salu("s_lshl_b32", "s7", "s4", 2), salu("s_add_u32", "s7", "s7", "s70"),
          salu("s_lshl_b32", sWQ, "s71", 18), salu("s_lshl_b32", sT0, "s7", 8), salu("s_add_u32", sWQ, sWQ, sT0),
          salu("s_mul_i32", sX, "s6", 245760), salu("s_mul_i32", sT0, sWAVE, 61440), salu("s_add_u32", sX, sX, sT0)]
    pre_units = sorted([k for k, u in U.items() if u["I"] < 0], key=lambda k: (U[k]["N"], k[0] != "W", k))
    for k in pre_units:
        for pre, ds in unit_dmas(k, None):
            o += pre + ds
    o += srd(S_K, "s58", "s59", 67108864) + srd(S_V, "s60", "s61", 67108864) + srd(S_WO, "s64", "s65", 5242880)
    o += srd(S_OST, "s66", "s67", 0 if OPT["overlap_epi"] else WS_WOT)
    o += [salu("s_add_u32", "s68", "s66", WS_WOT), salu("s_addc_u32", "s69", "s67", 0)] + srd(S_WOT, "s68", "s69", 2 * WOT_BLK)
    if OPT["prof"]:
        o += [salu("s_add_u32", "s68", "s66", WS_PROF), salu("s_addc_u32", "s69", "s67", 0)] + srd(S_PROF, "s68", "s69", 1 << 20)
        o += [salu("s_lshl_b32", sPROF, "s2", 2), salu("s_add_u32", sPROF, sPROF, sWAVE), salu("s_lshl_b32", sPROF, sPROF, 8)]
    o += [salu("s_lshl_b32", sKV, "s6", 5), salu("s_add_u32", sKV, sKV, "s7"), salu("s_lshl_b32", sKV, sKV, 17),
          salu("s_lshl_b32", sT0, "s71", 12), salu("s_add_u32", sKV, sKV, sT0),
          salu("s_mul_i32", sO, "s3", O_GRP), salu("s_mul_i32", sT0, "s71", 786432), salu("s_add_u32", sO, sO, sT0),
          salu("s_mul_i32", sT0, "s7", 24576), salu("s_add_u32", sO, sO, sT0)]
    o += [salu("s_lshl_b32", "s68", "s6", 3), salu("s_add_u32", "s68", "s68", "s4"),
          salu("s_mul_i32", sWOS, "s68", 40960), salu("s_mul_i32", sT0, sWAVE, 10240), salu("s_add_u32", sWOS, sWOS, sT0),
          salu("s_lshr_b32", sT0, "s68", 1), salu("s_mul_i32", sWOD, sT0, 20480),
          salu("s_and_b32", sT0, "s68", 1), salu("s_lshl_b32", sT0, sT0, 11), salu("s_add_u32", sWOD, sWOD, sT0),
          salu("s_mul_i32", sT0, "s5", WOT_BLK), salu("s_add_u32", sWOD, sWOD, sT0),
          salu("s_lshl_b32", sT0, "s70", 12), salu("s_add_u32", sWOD, sWOD, sT0),
          salu("s_lshl_b32", sT0, "s71", 10), salu("s_add_u32", sWOD, sWOD, sT0),
          salu("s_mul_i32", sT0, "s70", 1310720 - 20480), salu("s_add_u32", sWOX, sWOD, sT0)]
    cbits = struct.unpack("<I", struct.pack("<f", math.log2(math.e) / math.sqrt(128.0)))[0]
    o += [salu("s_mov_b32", sC, "0x%x" % cbits), salu("s_mov_b32", sHI, "0x4e800000"), salu("s_mov_b32", sLO, "0x30800000"),
          salu("s_mov_b32", sIT, 0)]
    hpo = "s70"
    o += [salu("s_lshl_b32", "s69", "s70", 13), salu("s_mul_i32", "s68", "s71", 12288), salu("s_add_u32", "s68", "s68", XS[0])]
    o += [valu("v_and_b32", a, 31, i), valu("v_lshrrev_b32", b, 5, i), valu("v_and_b32", c, 15, i),
          valu("v_xor_b32", c, c, b), valu("v_lshlrev_b32", c, 4, c), valu("v_lshl_add_u32", c, a, 8, c),
          valu("v_add_u32", c, 48 * KB, c), valu("v_add_u32", kA[0], "s69", c)]
    o += [valu("v_xor_b32", kA[j], j << 5, kA[0]) for j in range(1, 8)]
    o += [valu("v_lshrrev_b32", c, 4, a), valu("v_lshlrev_b32", c, 11, c), valu("v_lshl_add_u32", c, b, 8, c),
          valu("v_and_b32", "v5", 15, i), valu("v_lshl_add_u32", vO, "v5", 4, c)]
    o += [valu("v_lshrrev_b32", "v7", 4, i), valu("v_bfe_u32", "v8", i, 2, 2), valu("v_and_b32", "v9", 3, i)]
    o += [valu("v_lshl_add_u32", c, b, 2, "v8"), valu("v_lshlrev_b32", c, 8, c), valu("v_lshl_add_u32", c, "v8", 6, c),
          valu("v_and_b32", a, 1, "v7"), valu("v_lshl_add_u32", c, a, 5, c),
          valu("v_and_b32", "v5", 1, "v9"), valu("v_lshl_add_u32", c, "v5", 4, c),
          valu("v_lshrrev_b32", "v5", 1, "v9"), valu("v_lshl_add_u32", c, "v5", 3, c), valu("v_add_u32", c, 32 * KB, c), valu("v_add_u32", vA[0], "s69", c)]
    o += [valu("v_xor_b32", vA[d], d << 6, vA[0]) for d in range(1, 4)]
    o += [valu("v_lshl_add_u32", c, "v7", 3, "v8"), valu("v_lshlrev_b32", c, 7, c),
          valu("v_lshrrev_b32", "v5", 1, "v8"), valu("v_lshl_add_u32", c, "v5", 5, c), valu("v_lshl_add_u32", c, a, 6, c),
          valu("v_lshl_add_u32", c, "v9", 3, c), valu("v_add_u32", wA[0], "s69", c)]
    o += [valu("v_xor_b32", wA[d], d << 5, wA[0]) for d in range(1, 4)]
    o += [valu("v_and_b32", a, 15, i), valu("v_lshrrev_b32", "v5", 1, a), valu("v_xor_b32", "v5", "v5", "v7"),
          valu("v_lshlrev_b32", "v5", 4, "v5"), valu("v_lshl_add_u32", c, a, 7, "v5"),
          valu("v_xor_b32", "v5", 64, c), valu("v_add_u32", xA[0], "s68", c), valu("v_add_u32", xA[1], "s68", "v5")]
    o += [salu("s_lshl_b32", "s68", "s70", 2), salu("s_lshl_b32", "s69", "s71", 3), salu("s_add_u32", "s69", "s69", WOJ_ADDR),
          valu("v_mul_u32_u24", c, 5120, "v7"), valu("v_lshl_add_u32", c, "v8", 7, c), valu("v_add_u32", c, "s69", c),
          valu("v_add_u32", a, "s68", "v9"), valu("v_lshrrev_b32", "v5", 1, "v8"), valu("v_xor_b32", a, a, "v5"),
          valu("v_lshl_add_u32", vJ[0], a, 4, c),
          valu("v_xor_b32", a, 2, a), valu("v_lshl_add_u32", vJ[1], a, 4, c), valu("v_add_u32", vJ[1], 512, vJ[1])]
    if OPT["warm"]:
        o += [salu("s_mul_i32", "s68", "s6", 245760), salu("s_mul_i32", "s69", "s4", 30720), salu("s_add_u32", "s68", "s68", "s69"),
              salu("s_mul_i32", "s69", sWAVE, 7680), salu("s_add_u32", "s68", "s68", "s69"),
              valu("v_min_u32", a, 59, i), valu("v_lshlrev_b32", a, 7, a), valu("v_add_u32", vWARM, "s68", a),
              vload(("v", 255), 1, vWARM, S_X, 0, 0, tag="warm")]
    return o


def kernel1():
    body, Wn = item_body()
    pro = k1_prologue()
    W0 = dict(w=Win(wA, 0, 0), x=Win(xA, XS[0], 0))
    pro += [needvm([k for k, u in U.items() if u["N"] == 0]), barrier()] + first_reads(W0, ("W", 0, 0), ("X", 0))
    top = [label("L_item")]
    tail = [raw("s_cbranch_vccnz L_slow", "branch", rd=["vcc"]), label("L_back")]
    tail += [valu("v_rcp_f32", vR[T], vL[T]) for T in range(3)]
    if not OPT["overlap_epi"]:
        tail += epilogue_items() + [salu("s_add_u32", sO, sO, 49152)]
    tail += prof_stamp(5)
    if OPT["prof"]:
        tail += [salu("s_add_u32", sPROF, sPROF, 32)]
    tail += [salu("s_add_u32", sIT, sIT, 1), scmp("s_cmp_lt_u32", sIT, 2), raw("s_cbranch_scc1 L_item", "branch", rd=["scc"])]
    fin = []
    if OPT["overlap_epi"]:
        fin += epilogue_items()
    fin += prof_stamp(0)
    fin += [label("L_end1"), raw("s_endpgm")]
    slow = slow_path()
    loop = top + body + tail
    path = pro + loop + loop + fin
    waits = compute_waits([path, slow])
    done = {}
    pro2, loop2, fin2, slow2 = [apply_waits(x, waits, done) for x in (pro, loop, fin, slow)]
    pads = pad_hazards([pro2 + loop2 + loop2 + fin2, slow2])
    return emit(pro2, pads) + ".p2align 6\n" + emit(loop2 + fin2 + slow2, pads)


def acc2(pi, xy, qi):
    return ((pi * 6 + qi) * 2 + xy) * 4


def a2(st, pi, ks, xy):
    return 80 * st + 16 * pi + 8 * ks + 4 * xy


def b2(st, qi, ks):
    return 160 + 48 * st + 8 * qi + 4 * ks


V2A = ["v%d" % i for i in range(240, 245)]
V2B = ["v%d" % i for i in range(245, 251)]
V2W, V2R, V2R2, V2O = "v251", "v252", "v253", "v254"
S2A, S2B, S2OUT = 8, 12, 16


def k2_loads_A(st, pi, soff):
    return [vload(("a", a2(st, pi, ks, xy)), 4, V2A[pi], S2A, soff, ks * 2048 + xy * 1024) for xy in range(2) for ks in range(2)]


def k2_loads_B(st, qi, soff):
    return [vload(("a", b2(st, qi, ks)), 4, V2B[qi], S2B, soff, ks * 1024) for ks in range(2)]


def k2_steps(S, first, loadA, loadB, pend):
    for st in range(2):
        q0 = S.n()
        for pi in range(5):
            for xy in range(2):
                for qi in range(6):
                    for ks in range(2):
                        acc = ("v", acc2(pi, xy, qi))
                        S.add(mfma(16, acc, ("a", a2(st, pi, ks, xy)), ("a", b2(st, qi, ks)),
                                   None if (first and st == 0 and ks == 0) else acc))
        pos = [int(0.5 + 3.75 * n) for n in range(32)]
        if pend[st]:
            ls = k2_loads_A(1 - st, 4, "s20")
            S.put(q0 + pos[0], ls[2])
            S.put(q0 + pos[1], ls[3])
            S.put(q0 + pos[1] + 1, salu("s_add_u32", "s20", "s20", 20480))
        if loadB[st]:
            ls = []
            for qi in range(6):
                ls += k2_loads_B(1 - st, qi, "s21")
            for n, l in enumerate(ls):
                S.put(q0 + pos[2 + n], l)
            S.put(q0 + pos[13] + 1, salu("s_add_u32", "s21", "s21", 12288))
        if loadA[st]:
            n = 14
            for pi in range(5):
                ls = k2_loads_A(st, pi, "s20")
                for x, l in enumerate(ls if pi < 4 else ls[:2]):
                    assert pos[n] >= 24 * pi + 11 + 12 * (x >> 1), (pi, x, pos[n])
                    S.put(q0 + pos[n], l)
                    n += 1


def kernel2():
    o = [scmp("s_cmp_ge_u32", "s2", 256), raw("s_cbranch_scc1 L_end2", "branch", rd=["scc"])]
    o += decode_wg()
    o += [raw("s_load_dwordx2 s[56:57], s[0:1], 80", wr=["s56", "s57"]), raw("s_load_dwordx2 s[58:59], s[0:1], 96", wr=["s58", "s59"])]
    i, a = "v1", "v2"
    o += [valu("v_lshrrev_b32", a, 6, "v0"), valu("v_and_b32", i, 63, "v0"), valu("v_readfirstlane_b32", sWAVE, a),
          valu("v_lshlrev_b32", "v3", 4, i)]
    o += [salu("s_lshr_b32", "s30", "s4", 2), salu("s_and_b32", "s31", "s4", 3), salu("s_and_b32", "s32", sWAVE, 1),
          salu("s_lshr_b32", "s33", sWAVE, 1)]
    for pi in range(5):
        o += [scmp("s_cmp_eq_u32", "s33", 0), salu("s_cselect_b32", f"s{36 + pi}", pi, 4 - pi)]
    for q in range(3):
        o += [scmp("s_cmp_eq_u32", "s33", 0), salu("s_cselect_b32", f"s{47 + q}", q, 2 - q)]
    o += [salu("s_mul_i32", "s34", "s32", 3), salu("s_sub_u32", "s35", 3, "s34")]
    for q in range(3):
        o += [salu("s_add_u32", f"s{50 + q}", f"s{47 + q}", "s35"), salu("s_add_u32", f"s{47 + q}", f"s{47 + q}", "s34")]
    for pi in range(5):
        o += [salu("s_lshl_b32", "s7", f"s{36 + pi}", 12), valu("v_add_u32", V2A[pi], "s7", "v3")]
    for qi in range(6):
        o += [salu("s_lshl_b32", "s7", f"s{47 + qi}", 11), valu("v_add_u32", V2B[qi], "s7", "v3")]
    o += [raw("s_waitcnt lgkmcnt(0)", "drainlg")]
    o += [salu("s_mul_i32", "s7", "s5", WOT_BLK), salu("s_mul_i32", "s22", "s31", 1310720), salu("s_add_u32", "s7", "s7", "s22"),
          salu("s_add_u32", "s7", "s7", WS_WOT), salu("s_add_u32", "s60", "s58", "s7"), salu("s_addc_u32", "s61", "s59", 0)]
    o += srd(S2A, "s60", "s61", 1310720)
    o += [salu("s_mul_i32", "s7", "s3", O_GRP), salu("s_mul_i32", "s22", "s30", 786432), salu("s_add_u32", "s7", "s7", "s22"),
          salu("s_add_u32", "s60", "s58", "s7"), salu("s_addc_u32", "s61", "s59", 0)]
    o += srd(S2B, "s60", "s61", 786432)
    o += [salu("s_mul_i32", "s20", sWAVE, 16 * 20480), salu("s_mul_i32", "s21", sWAVE, 16 * 12288)]
    for pi in range(5):
        o += k2_loads_A(0, pi, "s20")[:2]
        if pi == 0:
            for qi in range(6):
                o += k2_loads_B(0, qi, "s21")
        o += k2_loads_A(0, pi, "s20")[2:]
    o += [salu("s_add_u32", "s20", "s20", 20480), salu("s_add_u32", "s21", "s21", 12288)]
    for pi in range(5):
        o += k2_loads_A(1, pi, "s20")
    o += [salu("s_add_u32", "s20", "s20", 20480)]
    o += srd(S2OUT, "s56", "s57", 7864320)
    o += [salu("s_mul_i32", "s7", sWAVE, 30720), valu("v_add_u32", V2W, "s7", "v3"),
          salu("s_xor_b32", "s22", sWAVE, 1), salu("s_mul_i32", "s7", "s22", 30720), valu("v_add_u32", V2R, "s7", "v3"),
          salu("s_xor_b32", "s22", sWAVE, 3), salu("s_mul_i32", "s7", "s22", 30720), valu("v_add_u32", V2R2, "s7", "v3"),
          valu("v_and_b32", a, 15, i), valu("v_mul_u32_u24", a, 2560, a), valu("v_lshrrev_b32", "v4", 4, i),
          valu("v_lshl_add_u32", V2O, "v4", 4, a)]
    o += [salu("s_mul_i32", "s23", "s6", 192 * 2560), salu("s_mul_i32", "s7", "s30", 96 * 2560), salu("s_add_u32", "s23", "s23", "s7"),
          salu("s_mul_i32", "s7", "s5", 1280), salu("s_add_u32", "s23", "s23", "s7"),
          salu("s_mul_i32", "s7", "s31", 320), salu("s_add_u32", "s23", "s23", "s7"), salu("s_mov_b32", "s24", 6)]
    S0 = Sched()
    k2_steps(S0, True, [True, True], [True, True], [False, True])
    first = S0.build()
    S1 = Sched()
    k2_steps(S1, False, [True, True], [True, True], [True, True])
    loop = [label("L_k2")] + S1.build() + [salu("s_sub_u32", "s24", "s24", 1), scmp("s_cmp_lg_u32", "s24", 0),
                                           raw("s_cbranch_scc1 L_k2", "branch", rd=["scc"])]
    S2 = Sched()
    k2_steps(S2, False, [False, False], [True, False], [True, False])
    last = S2.build()
    e = []
    sent = [(pi, xy, qi) for pi in range(5) for qi in range(3, 6) for xy in range(2)]
    for n, (pi, xy, qi) in enumerate(sent):
        e += [ds_write("ds_write_b128", V2W, ("v", acc2(pi, xy, qi)), 4, n * 1024)]
    e += [needlgkm0(), barrier()]
    for n, (pi, xy, qi) in enumerate(sent):
        e += [ds_read("ds_read_b128", ("v", acc2(pi, xy, qi)), 4, V2R, n * 1024)]
    order = list(range(7, 15)) + list(range(7))
    for s in order:
        pi, q = divmod(s, 3)
        for xy in range(2):
            d, t = acc2(pi, xy, q), acc2(pi, xy, q + 3)
            e += [valu("v_add_f32", f"v{d + r}", f"v{d + r}", f"v{t + r}") for r in range(4)]
        if s == 14:
            e += [needlgkm0()]
            for s2 in range(7, 15):
                p2, q2 = divmod(s2, 3)
                for xy in range(2):
                    e += [ds_write("ds_write_b128", V2R, ("v", acc2(p2, xy, q2)), 4, ((s2 - 7) * 2 + xy) * 1024)]
    e += [needlgkm0(), barrier()]
    for s in range(8):
        pi, q = divmod(s, 3)
        for xy in range(2):
            e += [ds_read("ds_read_b128", ("v", acc2(pi, xy, q + 3)), 4, V2R2, ((14 - s - 7) * 2 + xy) * 1024)]
    for s in range(8):
        pi, q = divmod(s, 3)
        d0 = acc2(pi, 0, q)
        t0 = acc2(pi, 0, q + 3)
        e += [valu("v_add_f32", f"v{d0 + r}", f"v{d0 + r}", f"v{t0 + r}") for r in range(8)]
        e += [valu("v_cvt_pk_bf16_f32", f"v{d0 + r}", f"v{d0 + 2 * r}", f"v{d0 + 2 * r + 1}") for r in range(4)]
        e += [salu("s_mul_i32", "s7", f"s{47 + q}", 40960), salu("s_lshl_b32", "s22", f"s{36 + pi}", 6),
              salu("s_add_u32", "s7", "s7", "s22"), salu("s_add_u32", "s25", "s7", "s23"),
              vstore(("v", d0), 4, V2O, S2OUT, "s25", 0)]
    e += [label("L_end2"), raw("s_endpgm")]
    path = o + first + loop + loop + loop + last + e
    waits = compute_waits([path])
    done = {}
    parts = [apply_waits(x, waits, done) for x in (o, first, loop, last, e)]
    pads = pad_hazards([parts[0] + parts[1] + parts[2] + parts[2] + parts[3] + parts[4]])
    return emit(parts[0] + parts[1], pads) + ".p2align 6\n" + emit(parts[2] + parts[3] + parts[4], pads)


def kd(name, vgpr=512):
    return f""".amdhsa_kernel {name}
  .amdhsa_next_free_vgpr {vgpr}
  .amdhsa_next_free_sgpr 102
  .amdhsa_accum_offset 256
  .amdhsa_group_segment_fixed_size 0
  .amdhsa_kernarg_size 104
  .amdhsa_user_sgpr_count 2
  .amdhsa_user_sgpr_kernarg_segment_ptr 1
  .amdhsa_system_sgpr_workgroup_id_x 1
.end_amdhsa_kernel
"""


def main():
    k1n = "qattn_kernel"
    k2n = "oproj_kernel"
    hdr = open("cdna_kernels/" + NAME + ".s.ref").read().split("; Override launch")[0]
    s = hdr
    s += f"; @launch kernel={k1n} grid=(256,1,1) block=(256,1,1) lds=163840\n"
    s += f"; @launch kernel={k2n} grid=(256,1,1) block=(256,1,1) lds=122880\n"
    s += '.amdgcn_target "amdgcn-amd-amdhsa--gfx950"\n.text\n'
    s += f".globl {k1n}\n.p2align 8\n.type {k1n},@function\n{k1n}:\n" + kernel1()
    s += f".globl {k2n}\n.p2align 8\n.type {k2n},@function\n{k2n}:\n" + kernel2()
    s += '.section .rodata,"a"\n.p2align 6\n' + kd(k1n) + ".p2align 6\n" + kd(k2n)
    open(sys.argv[1], "w").write(s)


main()
```

```python
import sys, math, struct
from fw import *

NAME = "concat_heads__mha_block_cached__mha_block_cached__near_ridge"
OPT = dict(overlap_epi=True, prof=False, kvnt=False, cap32=5, warm=True, dbg=False, nempty=0, rot=False, jnt=False, spread=True, map=0, pf='', pft=3, ostf=' sc1', report=False, stg=67)
for a in sys.argv[2:]:
    k, v = a.split("=")
    OPT[k] = type(OPT[k])(int(v)) if not isinstance(OPT[k], str) else v

KB = 1024
WS_O = 0
O_GRP = 2 * 786432
WS_WOT = 50331648
WOT_BLK = 5242880
WS_PROF = 64 * 1024 * 1024
WS_BYTES = 297271296

S_K, S_V, S_X, S_WQ, S_OST, S_WO, S_WOT = 8, 12, 16, 20, 24, 28, 32
sKV, sWQ, sX, sW4K, sW6K, sO, sIT, sT0, sT1, sC, sWAVE = ["s%d" % i for i in range(36, 47)]
sWOS, sWOD, sWOX, sW5K, sHI, sLO = ["s%d" % i for i in range(47, 53)]
sPROF = "s53"
sROT = "s62"
sPFB = "s64"
S_PF = 84
S_FLG = 80
sFG, sFB = "s65", "s66"
S_PROF = 72
vK = ["v%d" % i for i in range(192, 196)]
vV = "v196"
vW = ["v%d" % i for i in range(197, 201)]
vX = ["v%d" % i for i in range(201, 205)]
kA = ["v%d" % i for i in range(205, 213)]
vA = ["v%d" % i for i in range(213, 217)]
wA = ["v%d" % i for i in range(217, 221)]
xA = ["v%d" % i for i in range(221, 223)]
vO = "v223"
vL = ["v224", "v225", "v226"]
vR = ["v227", "v228", "v229"]
vT = ["v230", "v231"]
EPI = [232, 240]
vJ = ["v248", "v249"]
vL16 = "v250"
vWARM = "v251"
vFLG = "v252"
vP = ["v253", "v253", "v254", "v255"]

D = [i * 16 * KB for i in range(10)]
XS = [96 * KB, 120 * KB]
WOJ_ADDR = 96 * KB


def qacc(dt, qt):
    return 64 * (qt >> 1) + 8 * dt + 4 * (qt & 1)


def qf(T, ks):
    return 64 * T + 4 * ks


def sreg(T):
    return 64 * T + 32


ABUF = [192, 248]


def bx(qt, ks):
    return 200 + 8 * qt + 4 * ks


def kf(j):
    return 192 + 4 * j


def vf(f):
    return 224 + 4 * f


def oacc(T, dt):
    return 64 * T + 16 * dt


def build_units():
    U = {}
    for i in range(10):
        U[("X", i)] = dict(addr=XS[i % 2], size=24 * KB, N=i, I=i - 2)
        for u in range(2):
            U[("W", i, u)] = dict(addr=D[2 * (i % 3) + u], size=16 * KB, N=i, I=i - 2)
    U[("X", 0)]["I"] = -3
    U[("X", 1)]["I"] = -2
    U[("W", 0, 0)]["I"] = -3
    U[("W", 0, 1)]["I"] = -3
    U[("W", 1, 0)]["I"] = -1
    U[("W", 1, 1)]["I"] = -1
    pages = [9, 3, 2, 4, 5, 8, 1, 9, 0, 2, 3, 4, 6, 1, 5, 9, 0, 7, 3, 8, 2, 5, 1, 4, 0, 7, 3, 2, 8, 5, 9, 4]
    for u in range(32):
        if u % 2 == 0:
            key = ("K", u // 2)
            N = 10 + u // 2
        else:
            key = ("V", u // 2)
            N = 11 + u // 2
        U[key] = dict(addr=D[pages[u]], size=16 * KB, N=N, I=N - 3)
    U[("J",)] = dict(addr=WOJ_ADDR, size=20 * KB, N=12, I=9)
    allu = []
    for rep in range(3):
        for k, u in U.items():
            allu.append((k, rep, u["addr"], u["addr"] + u["size"], u["N"] + 27 * rep, u["I"] + 27 * rep))
    for a in allu:
        assert a[5] < a[4], a
        for b in allu:
            if a is b:
                continue
            if a[2] < b[3] and b[2] < a[3]:
                ra = a[4] - (a[0][0] == "X" and a[0][1] <= 7)
                rb = b[4] - (b[0][0] == "X" and b[0][1] <= 7)
                assert ra < b[5] or rb < a[5], (a, b)
    return U


U = build_units()


def unit_dmas(key, nxt):
    u = U[key]
    tag = key
    kind = key[0]
    kvf = " nt" if OPT["kvnt"] else ""
    st = unit_dmas.alt
    unit_dmas.alt ^= 1
    sT = [sT0, sT1][st]
    if kind in "KV":
        pre = [salu("s_add_u32", sT, sKV, key[1] * 8192), salu("s_add_u32", "m0", sW4K, u["addr"])]
        if OPT["rot"]:
            pre = [salu("s_add_u32", sT, sROT, key[1] * 8192), salu("s_and_b32", sT, sT, "0x1ffff"), salu("s_add_u32", sT, sT, sKV),
                   salu("s_add_u32", "m0", sW4K, u["addr"])]
        if kind == "K":
            return [(pre, [dma(vK[m], S_K, sT, 1024 * m, tag, kvf) for m in range(4)])]
        return [(pre, [dma(vV, S_V, sT, 1024 * m, tag, kvf) for m in range(4)])]
    if kind == "W":
        pre = [salu("s_add_u32", sT, sWQ, key[1] * 524288 + key[2] * 128), salu("s_add_u32", "m0", sW4K, u["addr"])]
        return [(pre, [dma(vW[m], S_WQ, sT, 1024 * m, tag) for m in range(4)])]
    if kind == "X":
        pre = [salu("s_add_u32", sT, sX, key[1] * 128), salu("s_add_u32", "m0", sW6K, u["addr"])]
        g0 = (pre, [dma(vX[m], S_X, sT, 1024 * m, tag) for m in range(4)])
        st = unit_dmas.alt
        unit_dmas.alt ^= 1
        sT2 = [sT0, sT1][st]
        pre2 = [salu("s_add_u32", sT2, sX, key[1] * 128 + 40960), salu("s_add_u32", "m0", sW6K, u["addr"] + 4096)]
        g1 = (pre2, [dma(vX[m], S_X, sT2, 1024 * m, tag) for m in range(2)])
        return [g0, g1]
    if kind == "J":
        gs = []
        for jj in range(5):
            st = unit_dmas.alt
            unit_dmas.alt ^= 1
            sTj = [sT0, sT1][st]
            pre = [salu("s_add_u32", sTj, sWOS, jj * 128), salu("s_add_u32", "m0", sW5K, u["addr"] + jj * 1024)]
            gs.append((pre, [dma(vX[0], S_WO, sTj, 0, tag, " nt" if OPT["jnt"] else "")]))
        return gs


unit_dmas.alt = 0


def atomic_add(vdata, soff):
    return Ins(f"buffer_atomic_add {vdata}, {vFLG}, s[{S_FLG}:{S_FLG + 3}], {soff} offen sc1", "atomic",
               rd=[vdata, vFLG, soff] + regs("s", S_FLG, 4), tag="flag")


def poll_load(vdst, soff):
    return Ins(f"buffer_load_dword {vdst}, off, s[{S_FLG}:{S_FLG + 3}], {soff} sc1", "vld", rd=[soff] + regs("s", S_FLG, 4), wr=[vdst])


class Win:
    def __init__(self, rs, init, span):
        self.rs = rs
        self.cur = init
        self.init = init
        self.span = span

    def fits(self, addr):
        return 0 <= addr - self.cur and addr - self.cur + self.span < 65536

    def move(self, new):
        d = (new - self.cur) & 0xffffffff
        self.cur = new
        return [valu("v_add_u32", r, "0x%x" % d, r) for r in self.rs]


def plan_windows(addrs, span):
    want = []
    i = 0
    while i < len(addrs):
        lo = hi = addrs[i]
        j = i + 1
        while j < len(addrs) and max(hi, addrs[j]) - min(lo, addrs[j]) + span < 65536:
            lo, hi = min(lo, addrs[j]), max(hi, addrs[j])
            j += 1
        want += [lo] * (j - i)
        i = j
    return want[-1], want


KINIT, KWANT = plan_windows([U[("K", t)]["addr"] for t in range(16)], 0)
VINIT, VWANT = plan_windows([U[("V", t)]["addr"] for t in range(16)], 6144)


def prof_stamp(idx, v0=230):
    if not OPT["prof"]:
        return []
    return [raw("s_memtime s[76:77]", "other", wr=["s76", "s77"]),
            raw("s_memrealtime s[78:79]", "other", wr=["s78", "s79"]),
            raw("s_waitcnt lgkmcnt(0)", "drainlg"),
            valu("v_mov_b32", f"v{v0}", "s76"),
            valu("v_mov_b32", f"v{v0 + 1}", "s78"),
            valu("v_mov_b32", "v253", sPROF),
            vstore(("v", v0), 2, "v253", S_PROF, 0, 8 * idx)]


def prof_setup(lo, hi, extra):
    if not OPT["prof"]:
        return []
    o = [salu("s_add_u32", "s68", lo, WS_PROF), salu("s_addc_u32", "s69", hi, 0)] + srd(S_PROF, "s68", "s69", 1 << 20)
    o += [salu("s_lshl_b32", sPROF, "s2", 2), salu("s_add_u32", sPROF, sPROF, sWAVE), salu("s_lshl_b32", sPROF, sPROF, 10),
          salu("s_add_u32", sPROF, sPROF, extra)]
    return o


def first_reads(Wn, key_w, key_x):
    aw = U[key_w]["addr"] - Wn["w"].cur
    ax = U[key_x]["addr"] - Wn["x"].cur

    def A(ks, t):
        return ds_read("ds_read_b64_tr_b16", ("a", ABUF[0] + 4 * ks + 2 * t), 2, wA[0], aw + ks * 4096 + t * 512)

    def B(qt, ks):
        return ds_read("ds_read_b128", ("a", bx(qt, ks)), 4, xA[ks], ax + qt * 2048)
    return [A(0, 0), A(0, 1), B(0, 0), A(1, 0), A(1, 1), B(0, 1)] + [B(qt, ks) for qt in range(1, 6) for ks in range(2)]


def epilogue_groups(tmp):
    groups = []
    n = 0
    for T in range(3):
        for dt in range(4):
            for o in range(2):
                tb = tmp + 4 * (n % 3)
                src = oacc(T, dt) + 8 * o
                rd = [valu("v_accvgpr_read_b32", f"v{tb + i}", f"a{src + i}") for i in range(8)]
                mu = [valu("v_mul_f32", f"v{tb + i}", vR[T], f"v{tb + i}") for i in range(8)]
                cv = [valu("v_cvt_pk_bf16_f32", f"v{tb + i}", f"v{tb + 2 * i}", f"v{tb + 2 * i + 1}") for i in range(4)]
                pre = []
                if dt % 2 == 0 and o == 0:
                    pre = [salu("s_add_u32", "s54", sO, (dt >> 1) * 12288 + T * 4096)]
                st = vstore(("v", tb), 4, vO, S_OST, "s54", (dt & 1) * 1024 + o * 512, tag="ost", flags=OPT["ostf"])
                groups.append((rd + mu + cv, pre + [st]))
                n += 1
    return groups


def epilogue_items(tmp=232):
    out = []
    for v, st in epilogue_groups(tmp):
        out += v + st
    return out


def lcheck_items():
    out = []
    for T in range(3):
        out += [valu("v_mov_b32", vT[T % 2], vL[T])]
        out += [perm("v_permlane32_swap_b32", vT[T % 2], vL[T])]
        out += [valu("v_add_f32", vL[T], vL[T], vT[T % 2])]
    out += [valu("v_add_f32", vT[0], vL[0], vL[1]), valu("v_min3_f32", vT[1], vL[0], vL[1], vL[2]),
            valu("v_add_f32", vT[0], vT[0], vL[2]),
            valu("v_cmp_nlt_f32", "s[56:57]", sLO, vT[1]),
            valu("v_cmp_ngt_f32", "vcc", sHI, vT[0]),
            salu("s_or_b64", "vcc", "vcc", "s[56:57]")]
    return out


FLAG_BAR = 17


def item_body():
    S = Sched()
    Wn = dict(k=Win(kA, KINIT, 0), v=Win(vA, VINIT, 4096 + 2048), w=Win(wA, 0, 4096 + 512), x=Win(xA, XS[0], 5 * 2048))
    bar_gap = {}

    def place_barrier(n, g):
        tags = [k for k, u in U.items() if (u["N"] - (n + 1)) % 27 == 0]
        if n == FLAG_BAR:
            tags += ["ost", "jst"]
        S.put(g, needlgkm0(), needvm(tags), barrier())
        bar_gap[n] = g

    def ensure(wn, addr, g_after, want=None):
        w = Wn[wn]
        if not w.fits(addr) or (want is not None and want != w.cur):
            new = want if want is not None else addr
            mv = w.move(new)
            for i, m in enumerate(mv):
                S.put(g_after + i // 2, m)
            assert w.fits(addr)

    conv = [[], [], []]
    for i in range(10):
        q0 = S.n()
        for dt in range(8):
            for qt in range(6):
                for ks in range(2):
                    acc = ("v", qacc(dt, qt))
                    S.add(mfma(16, acc, ("a", ABUF[dt % 2] + 4 * ks), ("a", bx(qt, ks)), None if (i == 0 and ks == 0) else acc))
        for dt in range(1, 8):
            key = ("W", i, dt // 4)
            if dt == 4:
                ensure("w", U[key]["addr"], q0 + 12 * 2 + 7)
            a0 = U[key]["addr"] - Wn["w"].cur
            gaps = [4, 5, 6, 7] if dt == 1 else [0, 2, 4, 6]
            for n, (ks, t) in enumerate([(0, 0), (0, 1), (1, 0), (1, 1)]):
                S.put(q0 + 12 * (dt - 1) + gaps[n],
                      ds_read("ds_read_b64_tr_b16", ("a", ABUF[dt % 2] + 4 * ks + 2 * t), 2, wA[dt % 4], a0 + ks * 4096 + t * 512))
        place_barrier(i, q0 + 83)
        if i <= 7:
            S.put(q0 + 11, needlgkm0(), barrier())
        if i < 9:
            ensure("w", U[("W", i + 1, 0)]["addr"], q0 + 79)
            assert Wn["x"].fits(U[("X", i + 1)]["addr"])
            for n, r in enumerate(first_reads(Wn, ("W", i + 1, 0), ("X", i + 1))):
                S.put(q0 + 84 + n, r)
        else:
            ensure("k", U[("K", 0)]["addr"], q0 + 74, want=KWANT[0])
            a0 = U[("K", 0)]["addr"] - Wn["k"].cur
            for j in range(8):
                S.put(q0 + 84 + j, ds_read("ds_read_b128", ("a", kf(j)), 4, kA[j], a0))
            for T in range(3):
                pend = []
                for dt in range(8):
                    R = 64 * T + 8 * dt
                    Dd = 64 * T + 4 * dt
                    e = min(q0 + 12 * dt + 4 * T + 3 + 2, q0 + 95)
                    mu = [valu("v_mul_f32", f"v{R + x}", sC, f"v{R + x}") for x in range(8)]
                    cv = [valu("v_cvt_pk_bf16_f32", f"v{Dd + x}", f"v{R + 2 * x}", f"v{R + 2 * x + 1}") for x in range(4)]
                    conv[T] += [(x, e, None) for x in mu[:2] + pend + mu[2:] + (cv if dt == 0 else [cv[0], cv[2], cv[1], cv[3]])]
                    pend = [perm("v_permlane16_swap_b32", f"v{Dd}", f"v{Dd + 2}"), perm("v_permlane16_swap_b32", f"v{Dd + 1}", f"v{Dd + 3}")]
                conv[T] += [(x, e, None) for x in pend]
    qk = [[0] * 3 for _ in range(16)]
    pv = [[0] * 3 for _ in range(16)]

    def QK(t, T):
        qk[t][T] = S.n()
        s = ("v", sreg(T))
        for j in range(8):
            S.add(mfma(32, s, ("a", kf(j)), ("v", qf(T, j)), None if j == 0 else s))

    def PV(t, T):
        pv[t][T] = S.n()
        for f in range(8):
            o = ("a", oacc(T, f >> 1))
            S.add(mfma(32, o, ("a", vf(f)), ("v", sreg(T) + 4 * (f & 1)), None if (t == 0 and f & 1 == 0) else o))

    for t in range(16):
        QK(t, 0)
        if t:
            PV(t - 1, 1)
        QK(t, 1)
        if t:
            PV(t - 1, 2)
        QK(t, 2)
        PV(t, 0)
    PV(15, 1)
    PV(15, 2)
    for T in range(3):
        c = conv[T]
        c[-1] = (c[-1][0], c[-1][1], qk[0][T] - 1)
    for t in range(16):
        g0 = pv[t - 1][2] if t else qk[0][1]
        place_barrier(10 + t, g0 - 1)
        va = U[("V", t)]["addr"]
        ensure("v", va, g0 - 6, want=VWANT[t])
        a0 = va - Wn["v"].cur
        for f in range(8):
            dt, s = f >> 1, f & 1
            for tt in range(2):
                S.put(g0 + 2 * f + tt if t else g0 + 2 * f + tt,
                      ds_read("ds_read_b64_tr_b16", ("a", vf(f) + 2 * tt), 2, vA[dt], a0 + s * 4096 + tt * 2048))
        if t < 15:
            ka = U[("K", t + 1)]["addr"]
            ensure("k", ka, qk[t][0] + 1, want=KWANT[t + 1])
            a0 = ka - Wn["k"].cur
            for j in range(8):
                S.put(qk[t][2] + [0, 2, 4, 6, 8, 9, 10, 11][j], ds_read("ds_read_b128", ("a", kf(j)), 4, kA[j], a0))
    place_barrier(26, pv[15][1] - 1)
    for wn in ("w", "x"):
        w = Wn[wn]
        if w.cur != w.init:
            for i2, m in enumerate(w.move(w.init)):
                S.put(qk[2][0] + 1 + i2 // 2, m)
    fr = first_reads(Wn, ("W", 0, 0), ("X", 0))
    for n, r in enumerate(fr[:10]):
        S.put(pv[15][1] + [0, 1, 2, 3, 4, 5, 6, 6, 7, 7][n], r)
    for n, r in enumerate(fr[10:]):
        S.put(pv[15][2] + n, r)
    for wn in ("k", "v"):
        w = Wn[wn]
        if w.cur != w.init:
            for i2, m in enumerate(w.move(w.init)):
                S.put(pv[15][0] + 1 + i2 // 2, m)
    sm = []
    for t in range(16):
        for T in range(3):
            s = sreg(T)
            e = qk[t][T] + 7 + 2
            ex = [valu("v_exp_f32", f"v{s + r}", f"v{s + r}") for r in range(16)]
            ad = [valu("v_add_f32", vL[T], vL[T], f"v{s + r}") for r in range(16)]
            if t == 0:
                ad[0] = valu("v_mov_b32", vL[T], f"v{s}")
            cv = [valu("v_cvt_pk_bf16_f32", f"v{s + r}", f"v{s + 2 * r}", f"v{s + 2 * r + 1}") for r in range(8)]
            seq = [ex[0], ex[1]]
            for r in range(16):
                seq.append(ad[r])
                if r + 2 < 16:
                    seq.append(ex[r + 2])
                if r % 2 == 1:
                    seq.append(cv[r // 2])
            for x in seq:
                d = None
                if x is cv[3]:
                    d = pv[t][T] - 1
                if x is cv[7]:
                    d = pv[t][T]
                sm.append((x, e, d))
    sm += [(x, 0, None) for x in lcheck_items()]
    byI = {}
    for k, u in U.items():
        byI.setdefault(u["I"] % 27, []).append(k)
    order = {"X": 0, "W": 1, "K": 2, "V": 2, "J": 3}
    for n in range(27):
        keys = sorted(byI.get(n, []), key=lambda k: ((U[k]["N"] - U[k]["I"]), order[k[0]], k))
        groups = []
        for k in keys:
            groups += unit_dmas(k, None)
        nd = sum(len(g[1]) for g in groups)
        if n <= 9:
            cand = [96 * n + 13 + 4 * x for x in range(18)]
        elif n == 10:
            cand = [96 * 9 + 93] + [qk[0][0] + x for x in range(7)]
        elif n == 11:
            cand = [qk[0][1] + 2 + 3 * x for x in range(8)] + [qk[1][0] + 2 + 3 * x for x in range(7)]
        elif n == 26:
            a, b = bar_gap[25] + 2, bar_gap[26] - 1
            cand = [a + (b - a) * x // 8 for x in range(8)]
        else:
            t = n - 10
            a, b = (qk[t][0] + 1 if nd <= 8 else pv[t - 1][0] - 6), bar_gap[n] - 1
            cand = [a + (b - a) * x // max(nd, 1) for x in range(nd)]
        assert nd <= len(cand), (n, nd, len(cand))
        ci = 0
        for pre, ds in groups:
            g = cand[ci]
            if n <= 9:
                S.put(g - 2, *pre[:-1])
                S.put(g - 1, pre[-1])
            else:
                S.put(g - 1, *pre)
            for d in ds:
                S.put(cand[ci], d)
                ci += 1
    S.put(qk[3][0] + 2, salu("s_add_u32", sWQ, sWQ, 512))
    S.put(qk[3][0] + 3, scmp("s_cmp_eq_u32", sIT, 0), salu("s_cselect_b32", f"s{S_X + 2}", f"s{S_X + 2}", 0),
          salu("s_cselect_b32", f"s{S_WQ + 2}", f"s{S_WQ + 2}", 0))
    S.put(pv[15][0] + 2, salu("s_add_u32", sKV, sKV, 262144))
    g0 = bar_gap[11] + 26
    JD = [48, 52, 56, 60, 112]
    for jj in range(5):
        for tt in range(2):
            S.put(g0 + 2 * jj + tt, ds_read("ds_read_b64_tr_b16", ("v", JD[jj] + 2 * tt), 2, vJ[tt], jj * 1024))
    assert g0 + 10 < bar_gap[12]
    g1 = bar_gap[12] + 2
    for jj in range(5):
        c = 2 * jj * 4096 if jj < 2 else (2 * jj - 5) * 4096 + 1310720
        if jj == 2:
            S.put(g1 + 3 * jj - 1, salu("s_add_u32", "s55", sWOX, 4 * 4096))
        else:
            S.put(g1 + 3 * jj - 1, salu("s_add_u32", "s55", sWOD, c))
        S.put(g1 + 3 * jj, vstore(("v", JD[jj]), 4, vL16, S_WOT, "s55", 0, tag="jst", flags=OPT["ostf"]))
    S.put(g1 + 16, salu("s_add_u32", sWOS, sWOS, 640), salu("s_add_u32", sWOD, sWOD, 2 * 1310720),
          salu("s_add_u32", sWOX, sWOX, 2 * 1310720))
    if OPT["warm"]:
        S.put(qk[12][0] + 3, vload(("v", 255), 1, vWARM, S_X, 0, 0, tag="warm"))
    if OPT["pf"]:
        amounts = [int(c) for c in OPT["pf"]]
        off = OPT["pft"] * 8192
        for i, kb in enumerate(amounts):
            if not kb:
                continue
            sh = {2: 1, 4: 2, 8: 3}[kb]
            g = 96 * i + 79
            S.put(g - 4, valu("v_lshlrev_b32", vP[2], sh, vL16))
            S.put(g - 1, salu("s_add_u32", "s63", sPFB, off), salu("s_and_b32", "s63", "s63", "0x1ffff"), salu("s_add_u32", "s63", "s63", sKV))
            ld = vload(("v", 255), 1, vP[2], S_PF, "s63", 0, tag="pf")
            ld.wr = set()
            S.put(g, ld)
            off += kb * 1024
    eg = epilogue_groups(232)
    ep = []
    for i in range(8):
        for v, _ in eg[3 * i:3 * i + 3]:
            ep += [(x, 96 * i, None) for x in v]
        for _, st in eg[3 * i:3 * i + 3]:
            ep += [(x, 96 * i + OPT["stg"], None) for x in st]
    ep[-1] = (ep[-1][0], ep[-1][1], 96 * 9 - 1)
    S.stream(ep)
    S.put(96 * 9 + 2, salu("s_mul_i32", "s54", sIT, 98304), salu("s_add_u32", sO, sO, "s54"))
    S.put(96 * 9 + 3, salu("s_mov_b32", f"s{S_OST + 2}", WS_WOT))
    g = bar_gap[FLAG_BAR] + 1
    S.put(g, valu("v_mov_b32", "v246", 1), valu("v_mov_b32", "v247", sIT))
    S.put(g + 2, atomic_add("v246", sFB))
    S.put(g + 4, atomic_add("v247", sFG))
    S.put(qk[15][1] + 1, poll_load("v244", sFG))
    S.put(qk[15][1] + 3, poll_load("v245", sFB))
    for T in range(3):
        S.stream(conv[T])
    S.stream(sm)
    if OPT["prof"]:
        S.put(-1, *prof_stamp(1))
        for n in range(27):
            S.put(bar_gap[n], *prof_stamp(2 + n))
    seq = S.build(cap32=OPT["cap32"], report=OPT.get("report", False))
    return seq, Wn


def slow_path():
    o = [label("L_slow"), drain(), nop(16)]
    KF = [48, 52, 56, 60, 112, 116, 120, 124]
    VFR = [176, 180, 184, 188]
    vM = ["v232", "v233", "v234"]
    vKo, vVo, vt = "v235", "v236", "v237"
    o += [valu("v_lshrrev_b32", vt, 4, vL16),
          valu("v_and_b32", vKo, 31, vt), valu("v_lshlrev_b32", vKo, 8, vKo),
          valu("v_lshrrev_b32", vVo, 5, vt), valu("v_lshl_add_u32", vKo, vVo, 4, vKo),
          valu("v_lshlrev_b32", vVo, 10, vVo),
          valu("v_and_b32", "v238", 19, vt), valu("v_and_b32", "v239", 4, vt), valu("v_lshlrev_b32", "v239", 1, "v239"),
          valu("v_or_b32", "v238", "v238", "v239"), valu("v_and_b32", "v239", 8, vt), valu("v_lshrrev_b32", "v239", 1, "v239"),
          valu("v_or_b32", "v238", "v238", "v239"), valu("v_lshl_add_u32", vVo, "v238", 1, vVo)]
    o += [salu("s_and_b32", "s58", sKV, "0xfffe0000"), salu("s_sub_u32", "s58", "s58", 262144)]
    for T in range(3):
        o += [valu("v_mov_b32", vM[T], "0xff800000")]

    def scores(T):
        s = ("v", sreg(T))
        r = []
        for j in range(8):
            r.append(mfma(32, s, ("v", KF[j]), ("v", qf(T, j)), None if j == 0 else s))
        return r

    def loadk():
        return [vload(("v", KF[j]), 4, vKo, S_K, "s59", 32 * j) for j in range(8)] + [drain()]
    o += [salu("s_mov_b32", "s59", "s58"), salu("s_mov_b32", "s60", 16), label("L_slow1")]
    o += loadk()
    for T in range(3):
        o += scores(T) + [nop(16)]
        for r in range(0, 16, 2):
            o += [valu("v_max3_f32", vM[T], vM[T], f"v{sreg(T) + r}", f"v{sreg(T) + r + 1}")]
    o += [salu("s_add_u32", "s59", "s59", 8192), salu("s_sub_u32", "s60", "s60", 1), scmp("s_cmp_lg_u32", "s60", 0),
          raw("s_cbranch_scc1 L_slow1", "branch", rd=["scc"])]
    for T in range(3):
        o += [valu("v_mov_b32", vt, vM[T]), nop(2), perm("v_permlane32_swap_b32", vt, vM[T]), valu("v_max_f32", vM[T], vM[T], vt),
              valu("v_mov_b32", vL[T], 0)]
    for r in range(192):
        o += [valu("v_accvgpr_write_b32", f"a{r}", 0)]
    o += [salu("s_mov_b32", "s59", "s58"), salu("s_mov_b32", "s60", 16), label("L_slow2")]
    o += loadk()
    for T in range(3):
        s = sreg(T)
        o += scores(T) + [nop(16)]
        o += [valu("v_sub_f32", f"v{s + r}", f"v{s + r}", vM[T]) for r in range(16)]
        o += [valu("v_exp_f32", f"v{s + r}", f"v{s + r}") for r in range(16)]
        o += [valu("v_add_f32", vL[T], vL[T], f"v{s + r}") for r in range(16)]
        o += [valu("v_cvt_pk_bf16_f32", f"v{s + r}", f"v{s + 2 * r}", f"v{s + 2 * r + 1}") for r in range(8)]
    for half in range(2):
        for ff in range(4):
            f = 4 * half + ff
            dt, sx = f >> 1, f & 1
            if sx == 0 or ff == 0 or True:
                o += [salu("s_add_u32", "s61", "s59", sx * 4096 + dt * 64)]
            for j in range(8):
                key = (j & 3) + 8 * (j >> 2)
                op = "buffer_load_short_d16_hi" if j & 1 else "buffer_load_short_d16"
                o += [vload(("v", VFR[ff] + j // 2), 1, vVo, S_V, "s61", key * 256, op=op, rw=True)]
                if j & 1 == 0:
                    o += [drain()]
        o += [drain()]
        for T in range(3):
            for ff in range(4):
                f = 4 * half + ff
                a = ("a", oacc(T, f >> 1))
                o += [mfma(32, a, ("v", VFR[ff]), ("v", sreg(T) + 4 * (f & 1)), a)]
        o += [nop(16)]
    o += [salu("s_add_u32", "s59", "s59", 8192), salu("s_sub_u32", "s60", "s60", 1), scmp("s_cmp_lg_u32", "s60", 0),
          raw("s_cbranch_scc1 L_slow2", "branch", rd=["scc"])]
    for T in range(3):
        o += [valu("v_mov_b32", vt, vL[T]), nop(2), perm("v_permlane32_swap_b32", vt, vL[T]), valu("v_add_f32", vL[T], vL[T], vt)]
    o += [nop(16), drain(), raw("s_branch L_back", "branch")]
    return o


def srd(base, lo, hi, nbytes):
    return [salu("s_mov_b32", f"s{base}", lo), salu("s_and_b32", f"s{base + 1}", hi, "0xffff"),
            salu("s_mov_b32", f"s{base + 2}", nbytes), salu("s_mov_b32", f"s{base + 3}", "0x20000")]


def decode_wg():
    if OPT["map"] == 1:
        return [salu("s_lshr_b32", "s3", "s2", 3), salu("s_and_b32", "s4", "s2", 7),
                salu("s_lshr_b32", "s5", "s3", 4), salu("s_and_b32", "s6", "s3", 15)]
    return [salu("s_and_b32", "s3", "s2", 7), salu("s_lshr_b32", "s4", "s2", 6), salu("s_lshl_b32", "s3", "s3", 2),
            salu("s_add_u32", "s3", "s3", "s4"), salu("s_lshr_b32", "s4", "s2", 3), salu("s_and_b32", "s4", "s4", 7),
            salu("s_lshr_b32", "s5", "s3", 4), salu("s_and_b32", "s6", "s3", 15)]


def k1_prologue():
    o = [scmp("s_cmp_ge_u32", "s2", 256), raw("s_cbranch_scc1 L_end1", "branch", rd=["scc"])]
    if OPT["dbg"]:
        o += [raw("s_memrealtime s[80:81]", wr=["s80", "s81"]), raw("s_memtime s[82:83]", wr=["s82", "s83"]),
              raw("s_load_dwordx2 s[84:85], s[0:1], 88", wr=["s84", "s85"])]
    o += decode_wg()
    o += [salu("s_mul_i32", "s7", "s5", 40), salu("s_add_u32", "s68", "s0", "s7"), salu("s_addc_u32", "s69", "s1", 0),
          raw("s_load_dwordx8 s[56:63], s[68:69], 0", wr=regs("s", 56, 8)),
          raw("s_load_dwordx2 s[64:65], s[68:69], 32", wr=["s64", "s65"]),
          raw("s_load_dwordx4 s[88:91], s[0:1], 88", wr=regs("s", 88, 4)),
          raw("s_load_dwordx2 s[92:93], s[0:1], 80", wr=["s92", "s93"])]
    i, a, b, c = "v1", "v2", "v3", "v4"
    o += [valu("v_lshrrev_b32", a, 6, "v0"), valu("v_and_b32", i, 63, "v0"),
          valu("v_readfirstlane_b32", sWAVE, a), valu("v_lshlrev_b32", vL16, 4, i)]
    o += [valu("v_lshrrev_b32", a, 4, i), valu("v_and_b32", b, 15, i),
          valu("v_xor_b32", c, a, b), valu("v_lshlrev_b32", c, 4, c), valu("v_lshl_add_u32", vK[0], a, 8, c)]
    o += [valu("v_xor_b32", vK[m], m << 6, vK[0]) for m in range(1, 4)]
    o += [valu("v_lshlrev_b32", c, 2, a), valu("v_xor_b32", c, c, b), valu("v_lshlrev_b32", c, 4, c),
          valu("v_lshl_add_u32", vV, a, 8, c)]
    o += [valu("v_and_b32", b, 7, i), valu("v_lshrrev_b32", "v5", 3, i),
          valu("v_and_b32", c, 1, a), valu("v_lshlrev_b32", c, 1, c), valu("v_xor_b32", c, c, b), valu("v_lshlrev_b32", c, 4, c),
          valu("v_lshl_add_u32", vW[0], "v5", 13, c),
          valu("v_xor_b32", vW[1], 64, vW[0]), valu("v_add_u32", vW[1], 64512, vW[1]),
          valu("v_add_u32", vW[2], 2 * 64512, vW[0]), valu("v_add_u32", vW[3], 2 * 64512, vW[1])]
    o += [valu("v_xor_b32", c, a, b), valu("v_lshlrev_b32", c, 4, c), valu("v_mul_u32_u24", "v6", 1280, "v5"),
          valu("v_add_u32", vX[0], "v6", c),
          valu("v_xor_b32", vX[1], 64, vX[0]), valu("v_add_u32", vX[1], 9216, vX[1]),
          valu("v_add_u32", vX[2], 2 * 9216, vX[0]), valu("v_add_u32", vX[3], 2 * 9216, vX[1])]
    o += [raw("s_waitcnt lgkmcnt(0)", "drainlg")]
    o += srd(S_X, "s56", "s57", 3932160) + srd(S_WQ, "s62", "s63", 5242880)
    o += [salu("s_lshr_b32", "s70", sWAVE, 1), salu("s_and_b32", "s71", sWAVE, 1),
          salu("s_lshl_b32", sW4K, sWAVE, 12), salu("s_mul_i32", sW6K, sWAVE, 6144), salu("s_mul_i32", sW5K, sWAVE, 5120),
          salu("s_lshl_b32", "s7", "s4", 2), salu("s_add_u32", "s7", "s7", "s70"),
          salu("s_lshl_b32", sWQ, "s71", 18), salu("s_lshl_b32", sT0, "s7", 8), salu("s_add_u32", sWQ, sWQ, sT0),
          salu("s_mul_i32", sX, "s6", 245760), salu("s_mul_i32", sT0, sWAVE, 61440), salu("s_add_u32", sX, sX, sT0)]
    pre_units = sorted([k for k, u in U.items() if u["I"] < 0], key=lambda k: (U[k]["N"], k[0] != "W", k))
    for k in pre_units:
        for pre, ds in unit_dmas(k, None):
            o += pre + ds
    o += srd(S_K, "s58", "s59", 67108864) + srd(S_V, "s60", "s61", 67108864) + srd(S_WO, "s64", "s65", 5242880)
    o += srd(S_OST, "s90", "s91", 0) + srd(S_FLG, "s88", "s89", 256)
    o += [salu("s_add_u32", "s68", "s90", WS_WOT), salu("s_addc_u32", "s69", "s91", 0)] + srd(S_WOT, "s68", "s69", 2 * WOT_BLK)
    o += [salu("s_lshl_b32", sFG, "s3", 2), salu("s_lshl_b32", sFB, "s5", 6), salu("s_add_u32", sFB, sFB, 128),
          valu("v_cmp_eq_u32", "vcc", 0, "v0"), valu("v_mov_b32", "v10", "0x1000"),
          valu("v_cndmask_b32", vFLG, "v10", 0, "vcc")]
    o += prof_setup("s90", "s91", 0) + prof_stamp(0)
    o += [salu("s_lshl_b32", sKV, "s6", 5), salu("s_add_u32", sKV, sKV, "s7"), salu("s_lshl_b32", sKV, sKV, 17),
          salu("s_lshl_b32", sT0, "s71", 12)]
    if OPT["rot"]:
        o += [salu("s_lshr_b32", sROT, "s2", 3), salu("s_lshl_b32", sT1, "s2", 1), salu("s_add_u32", sROT, sROT, sT1),
              salu("s_and_b32", sROT, sROT, 15), salu("s_lshl_b32", sROT, sROT, 13), salu("s_add_u32", sROT, sROT, sT0)]
    else:
        o += [salu("s_add_u32", sKV, sKV, sT0)]
    if OPT["pf"]:
        assert OPT["rot"]
        o += [scmp("s_cmp_eq_u32", "s71", 0), salu("s_cselect_b32", "s68", "s58", "s60"), salu("s_cselect_b32", "s69", "s59", "s61")]
        o += srd(S_PF, "s68", "s69", 67108864)
        o += [salu("s_and_b32", sPFB, sROT, "0x1e000")]
    o += [salu("s_mul_i32", sO, "s3", O_GRP), salu("s_mul_i32", sT0, "s71", 786432), salu("s_add_u32", sO, sO, sT0),
          salu("s_lshr_b32", sT0, "s4", 1), salu("s_mul_i32", sT0, sT0, 16 * 12288), salu("s_add_u32", sO, sO, sT0),
          salu("s_and_b32", sT0, "s4", 1), salu("s_mul_i32", sT0, sT0, 4 * 12288), salu("s_add_u32", sO, sO, sT0),
          salu("s_mul_i32", sT0, "s70", 2 * 12288), salu("s_add_u32", sO, sO, sT0)]
    o += [salu("s_lshl_b32", "s68", "s6", 3), salu("s_add_u32", "s68", "s68", "s4"),
          salu("s_mul_i32", sWOS, "s68", 40960), salu("s_mul_i32", sT0, sWAVE, 10240), salu("s_add_u32", sWOS, sWOS, sT0),
          salu("s_lshr_b32", sT0, "s68", 1), salu("s_and_b32", sT1, sT0, "0x33"),
          salu("s_and_b32", "s69", sT0, 4), salu("s_lshl_b32", "s69", "s69", 1), salu("s_or_b32", sT1, sT1, "s69"),
          salu("s_and_b32", "s69", sT0, 8), salu("s_lshr_b32", "s69", "s69", 1), salu("s_or_b32", sT1, sT1, "s69"),
          salu("s_mul_i32", sWOD, sT1, 20480),
          salu("s_and_b32", sT0, "s68", 1), salu("s_lshl_b32", sT0, sT0, 11), salu("s_add_u32", sWOD, sWOD, sT0),
          salu("s_mul_i32", sT0, "s5", WOT_BLK), salu("s_add_u32", sWOD, sWOD, sT0),
          salu("s_lshl_b32", sT0, "s70", 12), salu("s_add_u32", sWOD, sWOD, sT0),
          salu("s_lshl_b32", sT0, "s71", 10), salu("s_add_u32", sWOD, sWOD, sT0),
          salu("s_mul_i32", sT0, "s70", 1310720 - 20480), salu("s_add_u32", sWOX, sWOD, sT0)]
    cbits = struct.unpack("<I", struct.pack("<f", math.log2(math.e) / math.sqrt(128.0)))[0]
    o += [salu("s_mov_b32", sC, "0x%x" % cbits), salu("s_mov_b32", sHI, "0x4e800000"), salu("s_mov_b32", sLO, "0x30800000"),
          salu("s_mov_b32", sIT, 0)]
    hpo = "s70"
    o += [salu("s_lshl_b32", "s69", "s70", 13), salu("s_mul_i32", "s68", "s71", 12288), salu("s_add_u32", "s68", "s68", XS[0])]
    o += [valu("v_and_b32", a, 31, i), valu("v_lshrrev_b32", b, 5, i), valu("v_and_b32", c, 15, i),
          valu("v_xor_b32", c, c, b), valu("v_lshlrev_b32", c, 4, c), valu("v_lshl_add_u32", c, a, 8, c),
          valu("v_add_u32", c, KINIT, c), valu("v_add_u32", kA[0], "s69", c)]
    o += [valu("v_xor_b32", kA[j], j << 5, kA[0]) for j in range(1, 8)]
    o += [valu("v_lshrrev_b32", c, 4, a), valu("v_lshlrev_b32", c, 11, c), valu("v_lshl_add_u32", c, b, 8, c),
          valu("v_and_b32", "v5", 15, i), valu("v_lshl_add_u32", vO, "v5", 4, c)]
    o += [valu("v_lshrrev_b32", "v7", 4, i), valu("v_bfe_u32", "v8", i, 2, 2), valu("v_and_b32", "v9", 3, i)]
    o += [valu("v_lshl_add_u32", c, b, 2, "v8"), valu("v_lshlrev_b32", c, 8, c), valu("v_lshl_add_u32", c, "v8", 6, c),
          valu("v_and_b32", a, 1, "v7"), valu("v_lshl_add_u32", c, a, 5, c),
          valu("v_and_b32", "v5", 1, "v9"), valu("v_lshl_add_u32", c, "v5", 4, c),
          valu("v_lshrrev_b32", "v5", 1, "v9"), valu("v_lshl_add_u32", c, "v5", 3, c), valu("v_add_u32", c, VINIT, c), valu("v_add_u32", vA[0], "s69", c)]
    o += [valu("v_xor_b32", vA[d], d << 6, vA[0]) for d in range(1, 4)]
    o += [valu("v_lshl_add_u32", c, "v7", 3, "v8"), valu("v_lshlrev_b32", c, 7, c),
          valu("v_lshrrev_b32", "v5", 1, "v8"), valu("v_lshl_add_u32", c, "v5", 5, c), valu("v_lshl_add_u32", c, a, 6, c),
          valu("v_lshl_add_u32", c, "v9", 3, c), valu("v_add_u32", wA[0], "s69", c)]
    o += [valu("v_xor_b32", wA[d], d << 5, wA[0]) for d in range(1, 4)]
    o += [valu("v_and_b32", a, 15, i), valu("v_lshrrev_b32", "v5", 1, a), valu("v_xor_b32", "v5", "v5", "v7"),
          valu("v_lshlrev_b32", "v5", 4, "v5"), valu("v_lshl_add_u32", c, a, 7, "v5"),
          valu("v_xor_b32", "v5", 64, c), valu("v_add_u32", xA[0], "s68", c), valu("v_add_u32", xA[1], "s68", "v5")]
    o += [salu("s_lshl_b32", "s68", "s70", 2), salu("s_lshl_b32", "s69", "s71", 3), salu("s_add_u32", "s69", "s69", WOJ_ADDR),
          valu("v_mul_u32_u24", c, 5120, "v7"), valu("v_lshl_add_u32", c, "v8", 7, c), valu("v_add_u32", c, "s69", c),
          valu("v_add_u32", a, "s68", "v9"), valu("v_lshrrev_b32", "v5", 1, "v8"), valu("v_xor_b32", a, a, "v5"),
          valu("v_lshl_add_u32", vJ[0], a, 4, c),
          valu("v_xor_b32", a, 2, a), valu("v_lshl_add_u32", vJ[1], a, 4, c), valu("v_add_u32", vJ[1], 512, vJ[1])]
    if OPT["warm"]:
        o += [salu("s_mul_i32", "s68", "s6", 245760), salu("s_mul_i32", "s69", "s4", 30720), salu("s_add_u32", "s68", "s68", "s69"),
              salu("s_mul_i32", "s69", sWAVE, 7680), salu("s_add_u32", "s68", "s68", "s69"),
              valu("v_min_u32", a, 59, i), valu("v_lshlrev_b32", a, 7, a), valu("v_add_u32", vWARM, "s68", a),
              vload(("v", 255), 1, vWARM, S_X, 0, 0, tag="warm")]
    return o


def acc2(pi, xy, qi):
    return ((pi * 6 + qi) * 2 + xy) * 4


def a2(st, pi, ks, xy):
    if st == 0:
        base = 240 if pi == 0 else 16 * (pi - 1)
    else:
        base = 64 + 16 * pi
    return base + 8 * ks + 4 * xy


def b2(st, qi, ks):
    return (192 if st == 0 else 144) + 8 * qi + 4 * ks


V2A = ["v%d" % i for i in range(240, 245)]
V2B = ["v%d" % i for i in range(245, 251)]
V2W, V2R, V2R2, V2O, V2P = "v251", "v16", "v17", "v254", "v255"
S2A, S2B, S2OUT = 8, 12, 16
LDF = " sc1"


def k2_loads_A(st, pi, soff):
    return [vload(("a", a2(st, pi, ks, xy)), 4, V2A[pi], S2A, soff, ks * 2048 + xy * 1024, flags=LDF) for xy in range(2) for ks in range(2)]


def k2_loads_B(st, qi, soff):
    return [vload(("a", b2(st, qi, ks)), 4, V2B[qi], S2B, soff, ks * 1024, flags=LDF) for ks in range(2)]


def k2_steps(S, first, loadA, loadB, pend, check=False):
    for st in range(2):
        q0 = S.n()
        for pi in range(5):
            for xy in range(2):
                for qi in range(6):
                    for ks in range(2):
                        acc = ("v", acc2(pi, xy, qi))
                        S.add(mfma(16, acc, ("a", a2(st, pi, ks, xy)), ("a", b2(st, qi, ks)),
                                   None if (first and st == 0 and ks == 0) else acc))
        pos = [int(0.5 + 3.75 * n) for n in range(32)]
        if pend[st]:
            ls = k2_loads_A(1 - st, 4, "s20")
            S.put(q0 + pos[0], ls[2])
            S.put(q0 + pos[1], ls[3])
            S.put(q0 + pos[1] + 1, salu("s_add_u32", "s20", "s20", 20480))
        if loadB[st]:
            ls = []
            for qi in range(6):
                ls += k2_loads_B(1 - st, qi, "s21")
            for n, l in enumerate(ls):
                S.put(q0 + pos[2 + n], l)
            S.put(q0 + pos[13] + 1, salu("s_add_u32", "s21", "s21", 12288))
        if loadA[st]:
            n = 14
            for pi in range(5):
                ls = k2_loads_A(st, pi, "s20")
                for x, l in enumerate(ls if pi < 4 else ls[:2]):
                    assert pos[n] >= 24 * pi + 11 + 12 * (x >> 1), (pi, x, pos[n])
                    S.put(q0 + pos[n], l)
                    n += 1
        if first and st == 1:
            S.put(q0 + 2, needvm(["ost"]), barrier())
            S.put(q0 + 5, valu("v_mov_b32", V2P, "0x100"))
            S.put(q0 + 6, atomic_add(V2P, sFG))
        if check and st == 0:
            S.put(q0 + 2, poll_load(V2P, sFG))
        if check and st == 1:
            S.put(q0 + 2, valu("v_readfirstlane_b32", "s69", V2P))
            S.put(q0 + 5, salu("s_lshr_b32", "s69", "s69", "s70"), scmp("s_cmp_lt_u32", "s69", "s71"),
                  raw("s_cbranch_scc1 L_spin2", "branch", rd=["scc"]), label("L_spin2_back"))


def spin(name, back, soffs, conds):
    o = [label(name), salu("s_mov_b32", "s94", 0), label(name + "_loop"), raw("s_sleep 8")]
    for n, so in enumerate(soffs):
        o += [poll_load(f"v{22 + n}" if name == "L_spin1" else V2P, so)]
    o += [drain(), salu("s_add_u32", "s94", "s94", 1), scmp("s_cmp_gt_u32", "s94", "0x20000"),
          raw(f"s_cbranch_scc1 {back}", "branch", rd=["scc"])]
    for n, (sh, msk, want) in enumerate(conds):
        o += [valu("v_readfirstlane_b32", "s69", f"v{22 + n}" if name == "L_spin1" else V2P), nop(4)]
        if sh:
            o += [salu("s_lshr_b32", "s69", "s69", sh)]
        if msk:
            o += [salu("s_and_b32", "s69", "s69", msk)]
        o += [scmp("s_cmp_lt_u32", "s69", want), raw(f"s_cbranch_scc1 {name}_loop", "branch", rd=["scc"])]
    o += [raw(f"s_branch {back}", "branch")]
    return o


def phase2():
    o = [valu("v_readfirstlane_b32", "s69", "v244"), valu("v_readfirstlane_b32", "s70", "v245"),
         valu("v_mov_b32", "v19", vL16),
         salu("s_and_b32", "s69", "s69", "0xff"), salu("s_lshl_b32", "s69", "s69", 5), salu("s_min_u32", "s69", "s69", "s70"),
         scmp("s_cmp_lt_u32", "s69", 256), raw("s_cbranch_scc1 L_spin1", "branch", rd=["scc"]), label("L_spin1_back")]
    l16, i, a = "v19", "v20", "v21"
    o += [salu("s_lshr_b32", "s30", "s4", 2), salu("s_and_b32", "s31", "s4", 3), salu("s_and_b32", "s32", sWAVE, 1),
          salu("s_lshr_b32", "s33", sWAVE, 1)]
    o += [salu("s_mul_i32", "s7", "s5", WOT_BLK), salu("s_mul_i32", "s22", "s31", 1310720), salu("s_add_u32", "s7", "s7", "s22"),
          salu("s_add_u32", "s7", "s7", WS_WOT), salu("s_add_u32", "s60", "s90", "s7"), salu("s_addc_u32", "s61", "s91", 0)]
    o += srd(S2A, "s60", "s61", 1310720)
    o += [salu("s_mul_i32", "s7", "s3", O_GRP), salu("s_mul_i32", "s22", "s30", 786432), salu("s_add_u32", "s7", "s7", "s22"),
          salu("s_add_u32", "s60", "s90", "s7"), salu("s_addc_u32", "s61", "s91", 0)]
    o += srd(S2B, "s60", "s61", 786432)
    o += [salu("s_mul_i32", "s20", sWAVE, 16 * 20480), salu("s_mul_i32", "s21", sWAVE, 16 * 12288)]
    o += [scmp("s_cmp_eq_u32", "s33", 0)]
    o += [salu("s_cselect_b32", f"s{36 + pi}", pi, 4 - pi) for pi in range(5)]
    o += [salu("s_cselect_b32", f"s{47 + q}", q, 2 - q) for q in range(3)]
    o += [salu("s_mul_i32", "s34", "s32", 3), salu("s_sub_u32", "s35", 3, "s34")]
    for q in range(3):
        o += [salu("s_add_u32", f"s{50 + q}", f"s{47 + q}", "s35"), salu("s_add_u32", f"s{47 + q}", f"s{47 + q}", "s34")]
    for qi in range(6):
        o += [valu("v_lshl_add_u32", V2B[qi], f"s{47 + qi}", 11, l16) if False else salu("s_lshl_b32", "s7", f"s{47 + qi}", 11),
              valu("v_add_u32", V2B[qi], "s7", l16)]
    for pi in range(5):
        o += [salu("s_lshl_b32", "s7", f"s{36 + pi}", 12), valu("v_add_u32", V2A[pi], "s7", l16)]
    o += k2_loads_A(0, 0, "s20")[:2]
    for qi in range(6):
        o += k2_loads_B(0, qi, "s21")
    o += k2_loads_A(0, 0, "s20")[2:]
    o += [salu("s_add_u32", "s21", "s21", 12288), salu("s_add_u32", "s22", "s20", 20480)]
    eg = epilogue_groups(0)
    later = {1: [l for pi in range(1, 5) for l in k2_loads_A(0, pi, "s20")],
             2: [l for pi in range(0, 4) for l in k2_loads_A(1, pi, "s22")]}
    for n, (v, st) in enumerate(eg):
        T = n // 8
        ls = later.get(T, [])[2 * (n % 8):2 * (n % 8) + 2]
        o += v[:8] + ls[:1] + v[8:16] + ls[1:] + v[16:] + st
    o += k2_loads_A(1, 4, "s22")
    o += [salu("s_add_u32", "s20", "s20", 2 * 20480)]
    o += prof_stamp(1)
    o += srd(S2OUT, "s92", "s93", 7864320)
    o += [salu("s_mul_i32", "s7", sWAVE, 30720), valu("v_add_u32", V2W, "s7", l16),
          valu("v_lshrrev_b32", i, 4, l16),
          valu("v_and_b32", a, 15, i), valu("v_mul_u32_u24", a, 2560, a), valu("v_lshrrev_b32", i, 4, i),
          valu("v_lshl_add_u32", V2O, i, 4, a)]
    o += [salu("s_mul_i32", "s23", "s6", 192 * 2560), salu("s_mul_i32", "s7", "s30", 96 * 2560), salu("s_add_u32", "s23", "s23", "s7"),
          salu("s_mul_i32", "s7", "s5", 1280), salu("s_add_u32", "s23", "s23", "s7"),
          salu("s_mul_i32", "s7", "s31", 320), salu("s_add_u32", "s23", "s23", "s7"), salu("s_mov_b32", "s67", 6),
          salu("s_mov_b32", "s70", 8), salu("s_mov_b32", "s71", 0)]
    S0 = Sched()
    k2_steps(S0, True, [True, True], [True, True], [False, True])
    first = S0.build()
    S1 = Sched()
    k2_steps(S1, False, [True, True], [True, True], [True, True], check=True)
    S1.put(0, scmp("s_cmp_eq_u32", "s67", 4), salu("s_cselect_b32", "s71", 8, 0))
    loop = [label("L_k2")] + S1.build() + [salu("s_sub_u32", "s67", "s67", 1), scmp("s_cmp_lg_u32", "s67", 0),
                                           raw("s_cbranch_scc1 L_k2", "branch", rd=["scc"])]
    S2 = Sched()
    k2_steps(S2, False, [False, False], [True, False], [True, False])
    last = S2.build()
    e = []
    sent = [(pi, xy, qi) for pi in range(5) for qi in range(3, 6) for xy in range(2)]
    for n, (pi, xy, qi) in enumerate(sent):
        e += [ds_write("ds_write_b128", V2W, ("v", acc2(pi, xy, qi)), 4, n * 1024)]
    R1, R2 = V2A[0], V2A[1]
    e += [salu("s_xor_b32", "s22", sWAVE, 1), salu("s_sub_u32", "s22", "s22", sWAVE), salu("s_mul_i32", "s7", "s22", 30720),
          valu("v_add_u32", R1, "s7", V2W),
          salu("s_xor_b32", "s22", sWAVE, 3), salu("s_sub_u32", "s22", "s22", sWAVE), salu("s_mul_i32", "s7", "s22", 30720),
          valu("v_add_u32", R2, "s7", V2W)]
    e += [needlgkm0(), barrier()] + prof_stamp(2, 236)
    for n, (pi, xy, qi) in enumerate(sent):
        e += [ds_read("ds_read_b128", ("v", acc2(pi, xy, qi)), 4, R1, n * 1024)]
    order = list(range(7, 15)) + list(range(7))
    for s in order:
        pi, q = divmod(s, 3)
        for xy in range(2):
            d, t = acc2(pi, xy, q), acc2(pi, xy, q + 3)
            e += [valu("v_add_f32", f"v{d + r}", f"v{d + r}", f"v{t + r}") for r in range(4)]
        if s == 14:
            e += [needlgkm0()]
            for s2 in range(7, 15):
                p2, q2 = divmod(s2, 3)
                for xy in range(2):
                    e += [ds_write("ds_write_b128", R1, ("v", acc2(p2, xy, q2)), 4, ((s2 - 7) * 2 + xy) * 1024)]
    e += [needlgkm0(), barrier()]
    for s in range(8):
        pi, q = divmod(s, 3)
        for xy in range(2):
            e += [ds_read("ds_read_b128", ("v", acc2(pi, xy, q + 3)), 4, R2, ((14 - s - 7) * 2 + xy) * 1024)]
    for s in range(8):
        pi, q = divmod(s, 3)
        d0 = acc2(pi, 0, q)
        t0 = acc2(pi, 0, q + 3)
        e += [valu("v_add_f32", f"v{d0 + r}", f"v{d0 + r}", f"v{t0 + r}") for r in range(8)]
        e += [valu("v_cvt_pk_bf16_f32", f"v{d0 + r}", f"v{d0 + 2 * r}", f"v{d0 + 2 * r + 1}") for r in range(4)]
        e += [salu("s_mul_i32", "s7", f"s{47 + q}", 40960), salu("s_lshl_b32", "s22", f"s{36 + pi}", 6),
              salu("s_add_u32", "s7", "s7", "s22"), salu("s_add_u32", "s68", "s7", "s23"),
              vstore(("v", d0), 4, V2O, S2OUT, "s68", 0)]
    e += prof_stamp(3, 236) + [label("L_end1"), raw("s_endpgm")]
    sp1 = spin("L_spin1", "L_spin1_back", [sFG, sFB], [(0, "0xff", 8), (0, 0, 256)])
    sp2 = spin("L_spin2", "L_spin2_back", [sFG], [(8, 0, 8)])
    return o, first, loop, last, e, sp1, sp2


def kernel():
    body, Wn = item_body()
    pro = k1_prologue()
    W0 = dict(w=Win(wA, 0, 0), x=Win(xA, XS[0], 0))
    pro += [needvm([k for k, u in U.items() if u["N"] == 0]), barrier()] + first_reads(W0, ("W", 0, 0), ("X", 0))
    top = [label("L_item")]
    tail = [raw("s_cbranch_vccnz L_slow", "branch", rd=["vcc"]), label("L_back")]
    tail += [valu("v_rcp_f32", vR[T], vL[T]) for T in range(3)]
    tail += prof_stamp(29)
    if OPT["prof"]:
        tail += [salu("s_add_u32", sPROF, sPROF, 240)]
    tail += [salu("s_add_u32", sIT, sIT, 1), scmp("s_cmp_lt_u32", sIT, 2), raw("s_cbranch_scc1 L_item", "branch", rd=["scc"])]
    slow = slow_path()
    loop = top + body + tail
    o, first, loop2, last, e, sp1, sp2 = phase2()
    parts = [pro, loop, o, first, loop2, last, e, slow, sp1, sp2]
    waits = compute_waits([pro + loop + loop + o + first + loop2 + loop2 + loop2 + last + e, slow, sp1, sp2])
    done = {}
    P = [apply_waits(x, waits, done) for x in parts]
    pads = pad_hazards([P[0] + P[1] + P[1] + P[2] + P[3] + P[4] + P[4] + P[5] + P[6], P[7], P[8], P[9]])
    return (emit(P[0], pads) + ".p2align 6\n" + emit(P[1] + P[2] + P[3], pads) + ".p2align 6\n" +
            emit(P[4] + P[5] + P[6] + P[7] + P[8] + P[9], pads))


def kd(name, vgpr=512):
    return f""".amdhsa_kernel {name}
  .amdhsa_next_free_vgpr {vgpr}
  .amdhsa_next_free_sgpr 102
  .amdhsa_accum_offset 256
  .amdhsa_group_segment_fixed_size 0
  .amdhsa_kernarg_size 104
  .amdhsa_user_sgpr_count 2
  .amdhsa_user_sgpr_kernarg_segment_ptr 1
  .amdhsa_system_sgpr_workgroup_id_x 1
.end_amdhsa_kernel
"""


def main():
    kn = NAME + "_kernel"
    hdr = open("cdna_kernels/" + NAME + ".s.ref").read().split("; Override launch")[0]
    s = hdr
    s += "; @launch grid=(256,1,1) block=(256,1,1) lds=163840\n"
    s += '.amdgcn_target "amdgcn-amd-amdhsa--gfx950"\n.text\n'
    s += f".globl {kn}\n.p2align 8\n.type {kn},@function\n{kn}:\n" + kernel()
    s += '.section .rodata,"a"\n.p2align 6\n' + kd(kn)
    open(sys.argv[1], "w").write(s)


main()
```

```python
import itertools

_uid = itertools.count()


def regs(f, base, n=1):
    return [f"{f}{base + i}" for i in range(n)]


def fmt(f, base, n=1):
    return f"{f}{base}" if n == 1 else f"{f}[{base}:{base + n - 1}]"


class Ins:
    def __init__(self, text, kind, rd=(), wr=(), units=1, tag=None, passes=0, srcc=(), ab=()):
        self.text = text
        self.kind = kind
        self.rd = set(rd)
        self.wr = set(wr)
        self.units = units
        self.tag = tag
        self.passes = passes
        self.srcc = set(srcc)
        self.ab = set(ab)
        self.id = next(_uid)

    def __repr__(self):
        return f"<{self.text}>"


def mfma(shape, D, A, B, C):
    nd = 16 if shape == 32 else 4
    op = "v_mfma_f32_32x32x16_bf16" if shape == 32 else "v_mfma_f32_16x16x32_bf16"
    ct = "0" if C is None else fmt(C[0], C[1], nd)
    t = f"{op} {fmt(D[0], D[1], nd)}, {fmt(A[0], A[1], 4)}, {fmt(B[0], B[1], 4)}, {ct}"
    ab = regs(A[0], A[1], 4) + regs(B[0], B[1], 4)
    c = [] if C is None else regs(C[0], C[1], nd)
    return Ins(t, "mfma", rd=ab + c, wr=regs(D[0], D[1], nd), passes=8 if shape == 32 else 4, srcc=c, ab=ab)


def _opregs(o):
    o = o.strip()
    if o.startswith("-"):
        o = o[1:]
    if o in ("vcc",):
        return ["vcc"]
    if o in ("m0", "exec", "scc"):
        return [o]
    if len(o) > 1 and o[0] in "vas" and (o[1].isdigit() or o[1] == "["):
        if o[1] == "[":
            a, b = o[2:-1].split(":")
            return regs(o[0], int(a), int(b) - int(a) + 1)
        return [o]
    return []


def valu(op, dst, *srcs, kind=None, rw_dst=False, extra_rd=(), extra_wr=()):
    k = kind
    if k is None:
        k = "trans" if op.startswith(("v_exp", "v_rcp", "v_log", "v_rsq", "v_sqrt")) else "valu"
    rd = []
    for s in srcs:
        rd += _opregs(str(s))
    wr = _opregs(dst)
    if rw_dst:
        rd += wr
    t = f"{op} {dst}, " + ", ".join(str(s) for s in srcs)
    return Ins(t, k, rd=rd + list(extra_rd), wr=wr + list(extra_wr), units=2 if k == "trans" else 1)


def perm(op, a, b):
    return Ins(f"{op} {a}, {b}", "perm", rd=[a, b], wr=[a, b])


def salu(op, dst, *srcs, scc=True):
    rd = []
    for s in srcs:
        rd += _opregs(str(s))
    wr = _opregs(dst)
    if op in ("s_addc_u32", "s_cselect_b32", "s_cselect_b64", "s_subb_u32"):
        rd.append("scc")
    if scc and op not in ("s_mov_b32", "s_mov_b64", "s_mul_i32", "s_cselect_b32", "s_cselect_b64", "s_movk_i32"):
        wr.append("scc")
    t = f"{op} {dst}, " + ", ".join(str(s) for s in srcs)
    return Ins(t, "salu", rd=rd, wr=wr)


def scmp(op, a, b):
    return Ins(f"{op} {a}, {b}", "salu", rd=_opregs(str(a)) + _opregs(str(b)), wr=["scc"])


def ds_read(op, dst, n, addr, off):
    assert 0 <= off < 65536, off
    t = f"{op} {fmt(dst[0], dst[1], n)}, {addr}" + (f" offset:{off}" if off else "")
    return Ins(t, "lds_rd", rd=[addr], wr=regs(dst[0], dst[1], n))


def ds_write(op, addr, src, n, off):
    assert 0 <= off < 65536, off
    t = f"{op} {addr}, {fmt(src[0], src[1], n)}" + (f" offset:{off}" if off else "")
    return Ins(t, "lds_wr", rd=[addr] + regs(src[0], src[1], n))


def dma(voff, srd, soff, imm, tag, flags=""):
    assert 0 <= imm < 4096
    t = f"buffer_load_dwordx4 {voff}, s[{srd}:{srd + 3}], {soff} offen" + (f" offset:{imm}" if imm else "") + flags + " lds"
    return Ins(t, "dma", rd=[voff, "m0"] + regs("s", srd, 4) + _opregs(str(soff)), tag=tag)


def vload(dst, n, voff, srd, soff, imm, tag=None, flags="", op=None, rw=False):
    assert 0 <= imm < 4096
    op = op or {1: "buffer_load_dword", 2: "buffer_load_dwordx2", 4: "buffer_load_dwordx4"}[n]
    t = f"{op} {fmt(dst[0], dst[1], n)}, {voff}, s[{srd}:{srd + 3}], {soff} offen" + (f" offset:{imm}" if imm else "") + flags
    w = regs(dst[0], dst[1], n)
    return Ins(t, "vld", rd=[voff] + regs("s", srd, 4) + _opregs(str(soff)) + (w if rw else []), wr=w, tag=tag)


def vstore(src, n, voff, srd, soff, imm, tag=None, flags=""):
    assert 0 <= imm < 4096
    op = {1: "buffer_store_dword", 2: "buffer_store_dwordx2", 4: "buffer_store_dwordx4"}[n]
    t = f"{op} {fmt(src[0], src[1], n)}, {voff}, s[{srd}:{srd + 3}], {soff} offen" + (f" offset:{imm}" if imm else "") + flags
    return Ins(t, "vst", rd=[voff] + regs(src[0], src[1], n) + regs("s", srd, 4) + _opregs(str(soff)), tag=tag)


def needvm(tags):
    i = Ins("", "needvm", units=0)
    i.tag = set(tags)
    return i


def needlgkm0():
    return Ins("", "needlgkm0", units=0)


def needboth(tags):
    i = Ins("", "needboth", units=0)
    i.tag = set(tags)
    return i


def prewait(m):
    i = Ins("", "prewait", rd=m.rd, wr=m.wr, units=0)
    i.of = m
    return i


def drain():
    return Ins("s_waitcnt vmcnt(0) lgkmcnt(0)", "drain")


def barrier():
    return Ins("s_barrier", "bar")


def label(name):
    return Ins(f"{name}:", "label", units=0)


def raw(text, kind="other", rd=(), wr=()):
    return Ins(text, kind, rd=rd, wr=wr)


def nop(n):
    i = Ins(f"s_nop {n - 1}", "nop")
    i.states = n
    return i


VM_KINDS = ("dma", "vld", "vst", "atomic")
LG_KINDS = ("lds_rd", "lds_wr")


def compute_waits(paths, eager_cycles=110):
    waits = {}
    changed = True
    it = 0
    while changed:
        changed = False
        it += 1
        assert it < 20
        for seq in paths:
            vmq = []
            lgq = []
            t = 0
            last_m = -100
            last_d = 0
            for ins in seq:
                if ins.kind == "mfma":
                    t = max(t + 4, last_m + last_d)
                    last_m = t
                    last_d = ins.passes * 4
                elif ins.units:
                    t += 4 * ins.units
                need_vm = None
                need_lg = None
                touched = ins.rd | ins.wr
                if ins.kind == "drain":
                    vmq = []
                    lgq = []
                    continue
                if ins.kind == "drainlg":
                    lgq = []
                    continue
                if ins.kind in ("needvm", "needboth"):
                    for k in range(len(vmq) - 1, -1, -1):
                        if vmq[k][0].tag in ins.tag:
                            need_vm = len(vmq) - 1 - k
                            break
                    if ins.kind == "needboth" and lgq:
                        need_lg = 0
                elif ins.kind == "needlgkm0":
                    if lgq:
                        need_lg = 0
                else:
                    for k in range(len(vmq) - 1, -1, -1):
                        if vmq[k][0].wr & touched:
                            need_vm = len(vmq) - 1 - k
                            break
                    for k in range(len(lgq) - 1, -1, -1):
                        if lgq[k][0].wr & touched:
                            need_lg = len(lgq) - 1 - k
                            kk = k
                            while kk + 1 < len(lgq) and t - lgq[kk + 1][1] >= eager_cycles:
                                kk += 1
                            need_lg = len(lgq) - 1 - kk
                            break
                cur = waits.get(ins.id, (None, None))
                nv, nl = cur
                if need_vm is not None:
                    need_vm = min(need_vm, 63)
                    nv = need_vm if nv is None else min(nv, need_vm)
                if need_lg is not None:
                    need_lg = min(need_lg, 15)
                    nl = need_lg if nl is None else min(nl, need_lg)
                if (nv, nl) != cur:
                    waits[ins.id] = (nv, nl)
                    changed = True
                if nv is not None:
                    vmq = vmq[len(vmq) - nv:] if nv < len(vmq) else vmq
                    if nv == 0:
                        vmq = []
                if nl is not None:
                    lgq = lgq[len(lgq) - nl:] if nl < len(lgq) else lgq
                    if nl == 0:
                        lgq = []
                if ins.kind in VM_KINDS:
                    vmq.append((ins, t))
                elif ins.kind in LG_KINDS:
                    lgq.append((ins, t))
    return waits


def apply_waits(seq, waits, done=None):
    out = []
    for ins in seq:
        w = waits.get(ins.id)
        if w is not None and w != (None, None):
            parts = []
            if w[0] is not None:
                parts.append(f"vmcnt({w[0]})")
            if w[1] is not None:
                parts.append(f"lgkmcnt({w[1]})")
            key = ("w", ins.id)
            if done is not None and key in done:
                wi = done[key]
            else:
                wi = Ins("s_waitcnt " + " ".join(parts), "wait")
                if done is not None:
                    done[key] = wi
            out.append(wi)
        if ins.kind in ("needvm", "needlgkm0", "needboth", "prewait"):
            continue
        out.append(ins)
    return out


VALU_KINDS = ("valu", "trans", "perm")


def _required(prod, cons):
    n = 0
    pk, ck = prod.kind, cons.kind
    if pk in VALU_KINDS:
        vw = {r for r in prod.wr if r[0] in "va" and r != "vcc"}
        sw = {r for r in prod.wr if r[0] == "s" or r == "vcc"}
        if ck == "mfma" and vw & cons.rd:
            n = max(n, 2)
        if ck == "perm" and vw & cons.rd:
            n = max(n, 2)
        if pk == "trans" and ck in ("valu", "perm") and vw & cons.rd:
            n = max(n, 1)
        if cons.text.startswith(("v_readfirstlane", "v_readlane")) and vw & cons.rd:
            n = max(n, 1)
        if sw:
            if ck in VALU_KINDS and sw & cons.rd:
                n = max(n, 2)
            if ck in VM_KINDS and sw & cons.rd:
                n = max(n, 5)
            if ck in ("salu", "branch") and sw & cons.rd:
                n = max(n, 4)
    if pk == "mfma":
        big = 12 if prod.passes == 8 else 8
        if ck == "mfma":
            if prod.wr & cons.ab:
                n = max(n, big)
            if prod.wr & cons.srcc:
                if not (prod.wr == cons.srcc and prod.passes == cons.passes):
                    n = max(n, 10 if prod.passes == 8 else 6)
            elif prod.wr & cons.wr and prod.passes != cons.passes:
                n = max(n, big)
        elif ck in VALU_KINDS or ck in VM_KINDS or ck in LG_KINDS:
            if prod.wr & (cons.rd | cons.wr):
                n = max(n, big)
            if ck in VALU_KINDS and prod.srcc & cons.wr:
                n = max(n, 7 if prod.passes == 8 else 3)
    if pk == "salu" and "m0" in prod.wr and ck == "dma":
        n = max(n, 1)
    if pk == "vst" and ck in VALU_KINDS:
        data = {r for r in prod.rd if r[0] in "va"}
        if data & cons.wr:
            n = max(n, 2)
    return n


def pad_hazards(paths, verbose=True):
    pads = {}
    changed = True
    while changed:
        changed = False
        for seq in paths:
            hist = []
            t = 0
            last_m = -100
            last_p = 0
            for ins in seq:
                if ins.kind == "label":
                    continue
                t += 1 + pads.get(ins.id, 0)
                if ins.kind == "mfma":
                    t = max(t, last_m + last_p)
                short = 0
                for p, tp in hist[-40:]:
                    req = _required(p, ins)
                    if req and t - tp - 1 < req:
                        short = max(short, req - (t - tp - 1))
                        why = p
                if short:
                    pads[ins.id] = pads.get(ins.id, 0) + short
                    t += short
                    changed = True
                    if verbose:
                        print(f"; hazard pad {short} before {ins.text}  (after {why.text})")
                if ins.kind == "mfma":
                    last_m = t
                    last_p = ins.passes
                if ins.kind == "nop":
                    t += ins.states - 1
                hist.append((ins, t))
    return pads


def emit(seq, pads):
    lines = []
    for ins in seq:
        p = pads.get(ins.id, 0)
        while p > 0:
            k = min(p, 16)
            lines.append(f"    s_nop {k - 1}")
            p -= k
        if ins.kind == "label":
            lines.append(ins.text)
        else:
            lines.append("    " + ins.text)
    return "\n".join(lines) + "\n"


MEMK = ("vst", "vld", "dma", "lds_rd", "lds_wr", "atomic")


class Sched:
    def __init__(self):
        self.m = []
        self.fixed = {}
        self.streams = []
        self.packers = []
        self.pre = {}

    def add(self, ins):
        self.m.append(ins)
        return len(self.m) - 1

    def n(self):
        return len(self.m)

    def put(self, g, *ins):
        self.fixed.setdefault(g, []).extend(ins)

    def stream(self, items):
        self.streams.append(list(items))

    def used(self, g, waited):
        fx = self.fixed.get(g, [])
        if any(i.kind in ("bar", "dma", "vld", "vst", "atomic", "branch") for i in fx):
            return 2
        u = sum(i.units for i in fx)
        if not waited and fx and fx[0].kind == "salu":
            u -= 1
        return u

    def order_fixed(self):
        for g, fx in self.fixed.items():
            if any(i.kind in ("bar", "branch", "label", "other", "drainlg") or "scc" in i.rd for i in fx):
                continue
            mem = [i for i in fx if i.kind in MEMK]
            out = []
            sal = [i for i in fx if i.kind == "salu" and not any(i.wr & m.rd for m in mem if fx.index(m) < fx.index(i))]
            if sal and fx.index(sal[0]) == min(fx.index(s) for s in fx if s.kind == "salu"):
                out.append(sal[0])
            for i in fx:
                if i.kind in MEMK and not any(j.wr & i.rd for j in fx[:fx.index(i)] if j not in out):
                    out.append(i)
            out += [i for i in fx if i not in out]
            self.fixed[g] = out

    def build(self, waited=None, streams=True, report=False):
        waited = waited or set()
        out = []
        pos = [0] * len(self.streams)
        over = 0
        for p in self.packers:
            p.reset()
        for g in range(-1, len(self.m)):
            if g >= 0:
                out.append(self.m[g])
                if g + 1 < len(self.m):
                    if g + 1 not in self.pre:
                        self.pre[g + 1] = prewait(self.m[g + 1])
                    out.append(self.pre[g + 1])
            fx = self.fixed.get(g, [])
            out.extend(fx)
            if not streams:
                continue
            used = self.used(g, g in waited)
            cap = 2 if g >= 0 else 0
            last = g == len(self.m) - 1
            slot0 = g in waited or bool(fx)
            progress = True
            while progress:
                progress = False
                for si, st in enumerate(self.streams):
                    if pos[si] >= len(st):
                        continue
                    ins, e, d = st[pos[si]]
                    forced = last or any(dd is not None and dd <= g for (_, _, dd) in st[pos[si]:pos[si] + 400])
                    if e > g and not last:
                        assert not forced, f"stream item {ins} earliest {e} > gap {g} but forced"
                        continue
                    cost = ins.units
                    if ins.kind == "salu" and not slot0:
                        cost = 0
                    if ins.kind in MEMK:
                        cost = 2
                    fits = used + cost <= cap and not (ins.kind in MEMK and used > 0)
                    if fits or forced:
                        out.append(ins)
                        used += cost
                        slot0 = True
                        pos[si] += 1
                        progress = True
                        break
            for p in self.packers:
                got = p.fill(g, cap - used, last)
                out.extend(got)
                used += sum(i.units for i in got)
            if used > cap:
                over += used - cap
                if report:
                    print(f"; gap {g}: used {used}")
        if report:
            print("; total overflow units", over)
        return out

    def finish(self, lead=(), report=False):
        self.order_fixed()
        seq = self.build(streams=False)
        w = compute_waits([list(lead) + seq + seq])
        waited = {g - 1 for g, p in self.pre.items() if w.get(p.id, (None, None)) != (None, None)}
        return self.build(waited, report=report)


class SoftmaxPacker:
    def __init__(self, units):
        self.units = units

    def reset(self):
        self.ui = 0
        self.ei = 0
        self.cq = [(u, c) for u in range(len(self.units)) for c in range(len(self.units[u]["cvts"]))]
        self.ci = 0
        self.done = [0] * len(self.units)

    def _exp(self):
        u = self.units[self.ui]
        ins = u["exps"][self.ei]
        self.ei += 1
        self.new.append(self.ui)
        if self.ei == len(u["exps"]):
            self.ui += 1
            self.ei = 0
        return ins

    def fill(self, g, free, last):
        out = []
        self.new = []
        while self.ci < len(self.cq):
            u, c = self.cq[self.ci]
            due = [k for k in range(self.ci, min(self.ci + 16, len(self.cq))) if self.units[self.cq[k][0]]["cvts"][self.cq[k][1]][2] <= g]
            if not due and not last:
                break
            ins, need, d = self.units[u]["cvts"][c]
            while self.done[u] + self.new.count(u) < need:
                assert self.units[self.ui]["e"] <= g or last
                out.append(self._exp())
                free -= 2
            out.append(ins)
            free -= 1
            self.ci += 1
        if free >= 2 and self.ui < len(self.units) and self.units[self.ui]["e"] <= g:
            out.append(self._exp())
            free -= 2
        while free >= 1 and self.ci < len(self.cq):
            u, c = self.cq[self.ci]
            ins, need, d = self.units[u]["cvts"][c]
            if self.done[u] < need:
                break
            out.append(ins)
            free -= 1
            self.ci += 1
        for u in self.new:
            self.done[u] += 1
        return out
```

```python
import sys, math, struct
from fw3 import *

NAME = "concat_heads__mha_block_cached__mha_block_cached__near_ridge"
OPT = dict(prof=False, report=False, stg=67, warmw=True, codepf=True, codepf2=14, flagbar=17, map=0)
for a in sys.argv[2:]:
    k, v = a.split("=")
    OPT[k] = type(OPT[k])(int(v)) if not isinstance(OPT[k], str) else v

KB = 1024
SC1 = " sc1"
O_GRP = 2 * 786432
WS_WOT = 50331648
WOT_BLK = 5242880
WS_PROF = 64 * 1024 * 1024

S_K, S_V, S_X, S_WQ, S_OST, S_WO, S_WOT = 8, 12, 16, 20, 24, 28, 32
sKV, sWQ, sX, sW4K, sW6K, sO, sIT, sT0, sT1, sC, sWAVE = ["s%d" % i for i in range(36, 47)]
sWOS, sWOD, sWOX, sW5K, sHI, sLO = ["s%d" % i for i in range(47, 53)]
sPROF, sE, sJ = "s53", "s54", "s55"
sROT, sFG, sFB, sCP = "s62", "s65", "s66", "s64"
S_PROF, S_FLG = 72, 80
vK = ["v%d" % i for i in range(192, 196)]
vV = ["v196", "v197"]
vW = ["v%d" % i for i in range(198, 202)]
vX = ["v%d" % i for i in range(202, 206)]
kA = ["v%d" % i for i in range(206, 210)]
vA = ["v%d" % i for i in range(210, 218)]
wA = ["v218", "v219"]
xA = ["v220", "v221"]
vJ, vL16 = "v222", "v223"
ONES = 224
EPI = 228
vR = ["v%d" % i for i in range(244, 250)]
vFLG = "v250"
vT = ["v252", "v253"]
vPOLL = ["v254", "v255"]

D = [i * 16 * KB for i in range(10)]
XS = [96 * KB, 120 * KB]
WOJ_ADDR = 96 * KB


def qacc(p, xy, qt):
    return 64 * (qt >> 1) + (2 * p + (qt & 1)) * 8 + 4 * xy


def qf(qt, p):
    return 64 * (qt >> 1) + (2 * p + (qt & 1)) * 4


def sreg(qt):
    return 64 * (qt >> 1) + 32 + 8 * (qt & 1)


def lacc(qt):
    return 64 * (qt >> 1) + 48 + 4 * (qt & 1)


ABUF = [192, 248]


def bx(qt, ks):
    return 200 + 8 * qt + 4 * ks


def kf(kt, ks):
    return 192 + 16 * kt + 4 * ks


def vf(dt):
    return 224 + 4 * dt


def oacc(qt, dt):
    return 32 * qt + 4 * dt


def build_units():
    U = {}
    for i in range(10):
        U[("X", i)] = dict(addr=XS[i % 2], size=24 * KB, N=i, I=i - 2)
        for u in range(2):
            U[("W", i, u)] = dict(addr=D[2 * (i % 3) + u], size=16 * KB, N=i, I=i - 2)
    U[("X", 0)]["I"] = -3
    U[("W", 0, 0)]["I"] = -3
    U[("W", 0, 1)]["I"] = -3
    U[("W", 1, 0)]["I"] = -1
    U[("W", 1, 1)]["I"] = -1
    pages = [9, 3, 2, 4, 5, 8, 1, 9, 0, 2, 3, 4, 6, 1, 5, 9, 0, 7, 3, 8, 2, 5, 1, 4, 0, 7, 3, 2, 8, 5, 9, 4]
    for u in range(32):
        key = ("K", u // 2) if u % 2 == 0 else ("V", u // 2)
        N = 10 + u // 2 + u % 2
        U[key] = dict(addr=D[pages[u]], size=16 * KB, N=N, I=N - 3)
    U[("J",)] = dict(addr=WOJ_ADDR, size=20 * KB, N=12, I=9)
    allu = [(k, u["addr"], u["addr"] + u["size"], u["N"] + 27 * r, u["I"] + 27 * r) for r in range(3) for k, u in U.items()]
    for a in allu:
        assert a[4] < a[3], a
        for b in allu:
            if a is not b and a[1] < b[2] and b[1] < a[2]:
                ra = a[3] - (a[0][0] == "X" and a[0][1] <= 7)
                rb = b[3] - (b[0][0] == "X" and b[0][1] <= 7)
                assert ra < b[4] or rb < a[4], (a, b)
    return U


U = build_units()
_alt = [0]


def next_st():
    _alt[0] ^= 1
    return [sT0, sT1][_alt[0]]


def unit_dmas(key):
    u = U[key]
    kind = key[0]
    sT = next_st()
    if kind in "KV":
        pre = [salu("s_add_u32", sT, sROT, key[1] * 8192), salu("s_and_b32", sT, sT, "0x1ffff"), salu("s_add_u32", sT, sT, sKV),
               salu("s_add_u32", "m0", sW4K, u["addr"])]
        if kind == "K":
            return [(pre, [dma(vK[m], S_K, sT, 1024 * m, key, " nt") for m in range(4)])]
        return [(pre, [dma(vV[m & 1], S_V, sT, 1024 * m, key, " nt") for m in range(4)])]
    if kind == "W":
        pre = [salu("s_add_u32", sT, sWQ, key[1] * 524288 + key[2] * 128), salu("s_add_u32", "m0", sW4K, u["addr"])]
        return [(pre, [dma(vW[m], S_WQ, sT, 1024 * m, key) for m in range(4)])]
    if kind == "X":
        pre = [salu("s_add_u32", sT, sX, key[1] * 128), salu("s_add_u32", "m0", sW6K, u["addr"])]
        g0 = (pre, [dma(vX[m], S_X, sT, 1024 * m, key) for m in range(4)])
        sT2 = next_st()
        pre2 = [salu("s_add_u32", sT2, sX, key[1] * 128 + 40960), salu("s_add_u32", "m0", sW6K, u["addr"] + 4096)]
        return [g0, (pre2, [dma(vX[m], S_X, sT2, 1024 * m, key) for m in range(2)])]
    gs = []
    for jj in range(5):
        sTj = next_st()
        pre = [salu("s_add_u32", sTj, sWOS, jj * 128), salu("s_add_u32", "m0", sW5K, u["addr"] + jj * 1024)]
        gs.append((pre, [dma(vX[0], S_WO, sTj, 0, key, " nt")]))
    return gs


def epoch_groups(n):
    order = {"W": 0, "X": 1, "K": 2, "V": 2, "J": 3}
    keys = sorted([k for k, u in U.items() if u["I"] % 27 == n], key=lambda k: (U[k]["N"] - U[k]["I"], order[k[0]], k))
    return [g for k in keys for g in unit_dmas(k)]


def place_dmas(S, groups, cand, lo):
    ci = 0
    for pre, ds in groups:
        g = cand[ci]
        for n, p in enumerate(pre):
            S.put(max(lo, g - len(pre) + n), p)
        for d in ds:
            S.put(cand[ci], d)
            ci += 1


def tags_for(n):
    t = [k for k, u in U.items() if (u["N"] - (n + 1)) % 27 == 0]
    if n == OPT["flagbar"]:
        t += ["ost", "jst"]
    return t


def atomic_add(vdata, soff):
    return Ins(f"buffer_atomic_add {vdata}, {vFLG}, s[{S_FLG}:{S_FLG + 3}], {soff} offen sc1", "atomic",
               rd=[vdata, vFLG, soff] + regs("s", S_FLG, 4), tag="flag")


def poll_load(vdst, soff):
    return Ins(f"buffer_load_dword {vdst}, off, s[{S_FLG}:{S_FLG + 3}], {soff} sc1", "vld", rd=[soff] + regs("s", S_FLG, 4), wr=[vdst])


class Win:
    def __init__(self, rs, init):
        self.rs = rs
        self.cur = init

    def move(self, new):
        d = (new - self.cur) & 0xffffffff
        self.cur = new
        return [valu("v_add_u32", r, "0x%x" % d, r) for r in self.rs] if d else []


def plan_windows(addrs, span):
    want = []
    i = 0
    while i < len(addrs):
        lo = hi = addrs[i]
        j = i + 1
        while j < len(addrs) and max(hi, addrs[j]) - min(lo, addrs[j]) + span < 65536:
            lo, hi = min(lo, addrs[j]), max(hi, addrs[j])
            j += 1
        want += [lo] * (j - i)
        i = j
    return want


KWANT = plan_windows([U[("K", t)]["addr"] for t in range(16)], 4096)
VWANT = plan_windows([U[("V", t)]["addr"] for t in range(16)], 4096)
WWANT = plan_windows([U[("W", i, 1)]["addr"] for i in range(10)], 4096 + 520)
WWANT = [0 if w < 64 * KB else 64 * KB for w in [U[("W", i, 0)]["addr"] for i in range(10)]]


def prof_stamp(idx, v0=252):
    if not OPT["prof"]:
        return []
    return [raw("s_memtime s[76:77]", "other", wr=["s76", "s77"]),
            raw("s_memrealtime s[78:79]", "other", wr=["s78", "s79"]),
            raw("s_waitcnt lgkmcnt(0)", "drainlg"),
            valu("v_mov_b32", f"v{v0}", "s76"),
            valu("v_mov_b32", f"v{v0 + 1}", "s78"),
            valu("v_mov_b32", "v251", sPROF),
            vstore(("v", v0), 2, "v251", S_PROF, 0, 8 * idx)]


def a_read(i, dt, ks, t, win):
    p, xy = dt >> 1, dt & 1
    off = U[("W", i, p >> 1)]["addr"] - win + ks * 4096 + t * 512 + xy * 8
    return ds_read("ds_read_b64_tr_b16", ("a", ABUF[dt % 2] + 4 * ks + 2 * t), 2, wA[p & 1], off)


def first_reads(i):
    ax = U[("X", i)]["addr"] - XS[0]

    def A(ks, t):
        return a_read(i, 0, ks, t, WWANT[i])

    def B(qt, ks):
        return ds_read("ds_read_b128", ("a", bx(qt, ks)), 4, xA[ks], ax + qt * 2048)
    return [A(0, 0), A(0, 1), B(0, 0), A(1, 0), A(1, 1), B(0, 1)] + [B(qt, ks) for qt in range(1, 6) for ks in range(2)]


def k_read(t, j):
    kt, ks = j >> 2, j & 3
    return ds_read("ds_read_b128", ("a", kf(kt, ks)), 4, kA[ks], U[("K", t)]["addr"] - KWANT[t] + kt * 4096)


def epilogue_groups(tmp, dst=None):
    groups = []
    n = 0
    for T in range(3):
        for ph in range(2):
            for qs in range(2):
                for pl in range(2):
                    qt = 2 * T + qs
                    tb = tmp + 4 * (n % 3)
                    src = oacc(qt, 4 * ph + 2 * pl)
                    db = tb if dst is None or dst(n) is None else dst(n)
                    rd = [valu("v_accvgpr_read_b32", f"v{tb + i}", f"a{src + i}") for i in range(8)]
                    mu = [valu("v_mul_f32", f"v{tb + i}", vR[qt], f"v{tb + i}") for i in range(8)]
                    cv = [valu("v_cvt_pk_bf16_f32", f"v{db + i}", f"v{tb + 2 * i}", f"v{tb + 2 * i + 1}") for i in range(4)]
                    pre = [salu("s_add_u32", sE, sO, ph * 12288 + T * 4096)] if qs == 0 and pl == 0 else []
                    imm = qs * 2048 + pl * 1024
                    groups.append((rd + mu + cv, pre, vstore(("v", db), 4, vL16, S_OST, sE, imm, tag="ost", flags=SC1), imm))
                    n += 1
    return groups


def conv_items(T, ps):
    out = []
    for p in ps:
        for qs in range(2):
            R, Dd = qacc(p, 0, 2 * T + qs), qf(2 * T + qs, p)
            out += [(p, qs, valu("v_mul_f32", f"v{R + x}", sC, f"v{R + x}")) for x in range(8)]
            out += [(p, qs, valu("v_cvt_pk_bf16_f32", f"v{Dd + x}", f"v{R + 2 * x}", f"v{R + 2 * x + 1}")) for x in range(4)]
    return out


def q_phase(second):
    S = Sched()
    ww = Win(wA, 0)
    for i in range(10):
        q0 = S.n()
        for dt in range(8):
            for qt in range(6):
                for ks in range(2):
                    acc = ("v", qacc(dt >> 1, dt & 1, qt))
                    S.add(mfma(16, acc, ("a", ABUF[dt % 2] + 4 * ks), ("a", bx(qt, ks)), None if (i == 0 and ks == 0) else acc))
        for dt in range(1, 8):
            gaps = [4, 5, 6, 7] if dt == 1 else [0, 2, 3, 4]
            for n, (ks, t) in enumerate([(0, 0), (0, 1), (1, 0), (1, 1)]):
                S.put(q0 + 12 * (dt - 1) + gaps[n], a_read(i, dt, ks, t, WWANT[i]))
        if i <= 7:
            S.put(q0 + 11, needlgkm0(), barrier())
        S.put(q0 + 83, needboth(tags_for(i)), barrier())
        S.put(q0 + 83, *prof_stamp(2 + i))
        if i < 9:
            S.put(q0 + 79, *ww.move(WWANT[i + 1]))
            for n, r in enumerate(first_reads(i + 1)):
                S.put(q0 + 84 + n, r)
        else:
            S.put(q0 + 79, *ww.move(0))
            kw = Win(kA, KWANT[15])
            mv = kw.move(KWANT[0])
            S.put(q0 + 80, *mv[:2])
            S.put(q0 + 82, *mv[2:])
            for j in range(8):
                S.put(q0 + 84 + j, k_read(0, j))
        place_dmas(S, epoch_groups(i), [q0 + 13 + 4 * x for x in range(18)], q0 + 11)
    if second:
        eg = epilogue_groups(EPI)
        ep = []
        for i in range(8):
            for g in eg[3 * i:3 * i + 3]:
                ep += [(x, 96 * i, None) for x in g[0]]
            for g in eg[3 * i:3 * i + 3]:
                ep += [(x, 96 * i + OPT["stg"], None) for x in g[1] + [g[2]]]
        ep[-1] = (ep[-1][0], ep[-1][1], 96 * 9 - 1)
        S.stream(ep)
        S.put(96 * 9 + 2, salu("s_add_u32", sO, sO, 8 * 12288))
    q0 = 96 * 9
    S.stream([(x, min(q0 + 12 * (2 * p + 1) + 2 * qs + 1 + 2, q0 + 95), None) for p, qs, x in conv_items(0, range(4))])
    S.put(-1, *prof_stamp(1))
    return S.finish(lead=first_reads(0), report=OPT["report"])


def lcheck():
    l = [f"v{lacc(qt)}" for qt in range(6)]
    return [valu("v_add_f32", vT[0], l[0], l[1]), valu("v_min3_f32", vT[1], l[0], l[1], l[2]),
            valu("v_add_f32", vT[0], vT[0], l[2]), valu("v_min3_f32", vT[1], vT[1], l[3], l[4]),
            valu("v_add_f32", vT[0], vT[0], l[3]), valu("v_add_f32", vT[0], vT[0], l[4]),
            valu("v_min_f32", vT[1], vT[1], l[5]), valu("v_add_f32", vT[0], vT[0], l[5]),
            valu("v_cmp_nlt_f32", "s[56:57]", sLO, vT[1]),
            valu("v_cmp_ngt_f32", "vcc", sHI, vT[0]),
            salu("s_or_b64", "vcc", "vcc", "s[56:57]")]


def a_phase():
    S = Sched()
    qk = [[0] * 3 for _ in range(16)]
    pv = [[0] * 3 for _ in range(16)]

    def QK(t, T):
        qk[t][T] = S.n()
        for qs in range(2):
            for kt in range(2):
                s = ("v", sreg(2 * T + qs) + 4 * kt)
                for ks in range(4):
                    S.add(mfma(16, s, ("a", kf(kt, ks)), ("v", qf(2 * T + qs, ks)), None if ks == 0 else s))

    def PV(t, T):
        pv[t][T] = S.n()
        sums = []
        for qs in range(2):
            l = ("v", lacc(2 * T + qs))
            sums.append(mfma(16, l, ("v", ONES), ("v", sreg(2 * T + qs)), None if t == 0 else l))
        if t == 15:
            for m in sums:
                S.add(m)
        for dt in range(8):
            for qs in range(2):
                o = ("a", oacc(2 * T + qs, dt))
                S.add(mfma(16, o, ("a", vf(dt)), ("v", sreg(2 * T + qs)), None if t == 0 else o))
        if t < 15:
            for m in sums:
                S.add(m)

    for t in range(16):
        QK(t, 0)
        if t:
            PV(t - 1, 1)
        QK(t, 1)
        if t:
            PV(t - 1, 2)
        QK(t, 2)
        PV(t, 0)
    PV(15, 1)
    PV(15, 2)
    bar = {}
    kw, vw = Win(kA, KWANT[0]), Win(vA, VWANT[15])
    for t in range(16):
        g0 = pv[t - 1][2] if t else qk[0][1]
        bar[10 + t] = g0 - 1
        S.put(g0 - 1, needboth(tags_for(10 + t)), barrier())
        S.put(g0 - 1, *prof_stamp(12 + t))
        for n, m in enumerate(vw.move(VWANT[t])):
            S.put(g0 - 14 + 3 * (n // 2), m)
        for dt in range(8):
            for tt in range(2):
                S.put(g0 + 4 * dt + 1 + 2 * tt,
                      ds_read("ds_read_b64_tr_b16", ("a", vf(dt) + 2 * tt), 2, vA[dt], U[("V", t)]["addr"] - VWANT[t] + tt * 4096))
        if t < 15:
            for n, m in enumerate(kw.move(KWANT[t + 1])):
                S.put(qk[t][0] + 9 + 3 * (n // 2), m)
            for j in range(8):
                S.put(qk[t][2] + [8, 10, 12, 14, 17, 19, 21, 23][j], k_read(t + 1, j))
    bar[26] = pv[15][1] - 1
    S.put(bar[26], needboth(tags_for(26)), barrier())
    S.put(bar[26], *prof_stamp(28))
    fr = first_reads(0)
    for n, r in enumerate(fr[:10]):
        S.put(pv[15][1] + [1, 3, 5, 7, 9, 11, 13, 15, 16, 17][n], r)
    for n, r in enumerate(fr[10:]):
        S.put(pv[15][2] + 3 + 2 * n, r)
    for n in range(10, 27):
        groups = epoch_groups(n)
        nd = sum(len(g[1]) for g in groups)
        if n == 10:
            cand = [2 * x for x in range(8)]
            lo = -1
        else:
            lo = bar[n - 1] + 1
            if n == 11 or n == 26:
                a = lo + 5
            else:
                a = qk[n - 10][0] + 1 if nd <= 8 else pv[n - 11][0] + 6
            b = bar[n] - 1
            cand = []
            for x in range(nd):
                g = a + (b - a) * x // nd
                while any(i.kind in MEMK for i in S.fixed.get(g, [])) or g in cand:
                    g += 1
                cand.append(g)
            assert not cand or cand[-1] < bar[n]
        place_dmas(S, groups, cand, lo)
    S.put(qk[3][0], salu("s_add_u32", sWQ, sWQ, 512))
    S.put(qk[4][0] - 3, scmp("s_cmp_eq_u32", sIT, 0), salu("s_cselect_b32", f"s{S_X + 2}", f"s{S_X + 2}", 0),
          salu("s_cselect_b32", f"s{S_WQ + 2}", f"s{S_WQ + 2}", 0))
    S.put(pv[15][0] + 2, salu("s_add_u32", sKV, sKV, 262144))
    JD = [56, 60, 120, 124, 184]
    g = qk[2][0] + 1
    for jj in range(5):
        for tt in range(2):
            while S.used(g, False) > 0:
                g += 1
            S.put(g, ds_read("ds_read_b64_tr_b16", ("v", JD[jj] + 2 * tt), 2, vJ, jj * 1024 + tt * 10240))
            g += 2
    assert g < bar[12]
    g = pv[2][0] + 8
    for jj in range(5):
        c = 2 * jj * 4096 if jj < 2 else (2 * jj - 5) * 4096 + 1310720
        while S.used(g, False) > 0 or S.fixed.get(g - 1):
            g += 1
        S.put(g - 1, salu("s_add_u32", sJ, sWOX, 4 * 4096) if jj == 2 else salu("s_add_u32", sJ, sWOD, c))
        S.put(g, vstore(("v", JD[jj]), 4, vL16, S_WOT, sJ, 0, tag="jst", flags=SC1))
        g += 5
    for n, (r, d) in enumerate(((sWOS, 640), (sWOD, 2 * 1310720), (sWOX, 2 * 1310720))):
        S.put(qk[5][0] + 2 * n - 8, salu("s_add_u32", r, r, d))
    g = bar[OPT["flagbar"]] + 2
    S.put(g, valu("v_mov_b32", f"v{EPI}", 1), valu("v_mov_b32", f"v{EPI + 1}", sIT))
    S.put(g + 4, atomic_add(f"v{EPI}", sFB))
    S.put(g + 8, atomic_add(f"v{EPI + 1}", sFG))
    g = qk[15][1]
    S.put(g + 1, scmp("s_cmp_eq_u32", sIT, 1), salu("s_cselect_b32", sT0, sFG, "0x1000"), salu("s_cselect_b32", sT1, sFB, "0x1000"))
    S.put(g + 3, poll_load(vPOLL[0], sT0))
    S.put(g + 6, poll_load(vPOLL[1], sT1))
    if OPT["codepf2"]:
        g = qk[OPT["codepf2"]][0] - 6
        S.put(g - 2, salu("s_mul_i32", sJ, sIT, "L_out-L_q2"))
        S.put(g - 1, salu("s_add_u32", sJ, sJ, "L_q2-L_pc"))
        S.put(g, salu("s_add_u32", sJ, sJ, sCP))
        S.put(g + 1, salu("s_min_u32", sJ, sJ, "L_endcode-L_pc-256"))
        S.put(g + 2, valu("v_and_b32", f"v{EPI + 2}", 16, vL16), valu("v_lshlrev_b32", f"v{EPI + 2}", 3, f"v{EPI + 2}"))
        S.put(g + 3, valu("v_add_u32", f"v{EPI + 2}", sJ, f"v{EPI + 2}"))
        S.put(g + 5, Ins(f"global_load_dword v{EPI + 3}, v{EPI + 2}, s[96:97]", "vld", rd=[f"v{EPI + 2}", "s96", "s97"], wr=[f"v{EPI + 3}"]))
    for T in (1, 2):
        c = [(x, -1, None) for p, qs, x in conv_items(T, range(4))]
        c[-1] = (c[-1][0], -1, qk[0][T] - 1)
        S.stream(c)
    S.stream([(x, pv[15][2] + 4, None) for x in lcheck()])
    units = []
    for t in range(16):
        for qt in range(6):
            s = sreg(qt)
            T, qs = qt >> 1, qt & 1
            dl = pv[t][T] + qs - 2
            units.append(dict(e=qk[t][T] + 8 * qs + 7 + 2,
                              exps=[valu("v_exp_f32", f"v{s + r}", f"v{s + r}") for r in range(8)],
                              cvts=[(valu("v_cvt_pk_bf16_f32", f"v{s + r}", f"v{s + 2 * r}", f"v{s + 2 * r + 1}"), 2 * r + 2, dl) for r in range(4)]))
    S.packers.append(SoftmaxPacker(units))
    return S.finish(lead=[k_read(0, j) for j in range(8)], report=OPT["report"])


def slow_path():
    o = [label("L_slow"), drain(), nop(16)]
    KF = [EPI + 4 * k for k in range(4)]
    VFR = 56
    vM = [f"v{120 + q}" for q in range(6)]
    vKo, vVo, vt, vu = "v60", "v61", "v62", "v63"
    o += [valu("v_lshrrev_b32", vt, 4, vL16), valu("v_and_b32", vu, 15, vt), valu("v_lshrrev_b32", vt, 4, vt),
          valu("v_lshlrev_b32", vKo, 8, vu), valu("v_lshl_add_u32", vKo, vt, 4, vKo),
          valu("v_lshlrev_b32", vVo, 10, vt), valu("v_lshl_add_u32", vVo, vu, 1, vVo)]
    o += [salu("s_sub_u32", "s58", sKV, 262144)]
    o += [valu("v_mov_b32", m, "0xff800000") for m in vM]

    def scores():
        r = []
        for kt in range(2):
            r += [salu("s_add_u32", "s61", "s59", kt * 4096)]
            r += [vload(("v", KF[ks]), 4, vKo, S_K, "s61", 64 * ks) for ks in range(4)] + [drain()]
            for qt in range(6):
                s = ("v", sreg(qt) + 4 * kt)
                r += [mfma(16, s, ("v", KF[ks]), ("v", qf(qt, ks)), None if ks == 0 else s) for ks in range(4)]
            r += [nop(16)]
        return r
    o += [salu("s_mov_b32", "s59", "s58"), salu("s_mov_b32", "s60", 16), label("L_slow1")] + scores()
    for qt in range(6):
        o += [valu("v_max3_f32", vM[qt], vM[qt], f"v{sreg(qt) + r}", f"v{sreg(qt) + r + 1}") for r in range(0, 8, 2)]
    o += [salu("s_add_u32", "s59", "s59", 8192), salu("s_sub_u32", "s60", "s60", 1), scmp("s_cmp_lg_u32", "s60", 0),
          raw("s_cbranch_scc1 L_slow1", "branch", rd=["scc"])]
    for qt in range(6):
        for op in ("v_permlane32_swap_b32", "v_permlane16_swap_b32"):
            o += [valu("v_mov_b32", vt, vM[qt]), nop(2), perm(op, vt, vM[qt]), valu("v_max_f32", vM[qt], vM[qt], vt)]
        o += [valu("v_mov_b32", f"v{lacc(qt) + r}", 0) for r in range(4)]
    o += [valu("v_accvgpr_write_b32", f"a{r}", 0) for r in range(192)]
    o += [salu("s_mov_b32", "s59", "s58"), salu("s_mov_b32", "s60", 16), label("L_slow2")] + scores()
    for qt in range(6):
        s = sreg(qt)
        o += [valu("v_sub_f32", f"v{s + r}", f"v{s + r}", vM[qt]) for r in range(8)]
        o += [valu("v_exp_f32", f"v{s + r}", f"v{s + r}") for r in range(8)]
        o += [valu("v_cvt_pk_bf16_f32", f"v{s + r}", f"v{s + 2 * r}", f"v{s + 2 * r + 1}") for r in range(4)]
    o += [salu("s_add_u32", "s63", "s59", 4096)]
    for dt in range(8):
        for j in range(8):
            o += [vload(("v", 184 + j), 1, vVo, S_V, "s63" if j >= 4 else "s59", (j & 3) * 256 + 32 * dt, op="buffer_load_ushort")]
        o += [drain()]
        o += [valu("v_lshl_or_b32", f"v{VFR + r}", f"v{185 + 2 * r}", 16, f"v{184 + 2 * r}") for r in range(4)]
        o += [mfma(16, ("a", oacc(qt, dt)), ("v", VFR), ("v", sreg(qt)), ("a", oacc(qt, dt))) for qt in range(6)]
        o += [nop(8)]
    o += [mfma(16, ("v", lacc(qt)), ("v", ONES), ("v", sreg(qt)), ("v", lacc(qt))) for qt in range(6)] + [nop(16)]
    o += [salu("s_add_u32", "s59", "s59", 8192), salu("s_sub_u32", "s60", "s60", 1), scmp("s_cmp_lg_u32", "s60", 0),
          raw("s_cbranch_scc1 L_slow2", "branch", rd=["scc"])]
    o += [nop(16), drain(), raw("s_branch L_back", "branch")]
    return o


def srd(base, lo, hi, nbytes):
    return [salu("s_mov_b32", f"s{base}", lo), salu("s_and_b32", f"s{base + 1}", hi, "0xffff"),
            salu("s_mov_b32", f"s{base + 2}", nbytes), salu("s_mov_b32", f"s{base + 3}", "0x20000")]


def decode_wg():
    return [salu("s_and_b32", "s3", "s2", 7), salu("s_lshr_b32", "s4", "s2", 6), salu("s_lshl_b32", "s3", "s3", 2),
            salu("s_add_u32", "s3", "s3", "s4"), salu("s_lshr_b32", "s4", "s2", 3), salu("s_and_b32", "s4", "s4", 7),
            salu("s_lshr_b32", "s5", "s3", 4), salu("s_and_b32", "s6", "s3", 15)]


def prologue():
    o = [scmp("s_cmp_ge_u32", "s2", 256), raw("s_cbranch_scc1 L_end", "branch", rd=["scc"])]
    o += decode_wg()
    o += [salu("s_mul_i32", "s7", "s5", 40), salu("s_add_u32", "s68", "s0", "s7"), salu("s_addc_u32", "s69", "s1", 0),
          raw("s_load_dwordx8 s[56:63], s[68:69], 0", wr=regs("s", 56, 8)),
          raw("s_load_dwordx2 s[94:95], s[68:69], 32", wr=["s94", "s95"]),
          raw("s_load_dwordx4 s[88:91], s[0:1], 88", wr=regs("s", 88, 4)),
          raw("s_load_dwordx2 s[92:93], s[0:1], 80", wr=["s92", "s93"])]
    i, a, b, c = "v1", "v2", "v3", "v4"
    o += [valu("v_lshrrev_b32", a, 6, "v0"), valu("v_and_b32", i, 63, "v0"),
          valu("v_readfirstlane_b32", sWAVE, a), valu("v_lshlrev_b32", vL16, 4, i)]
    o += [valu("v_lshrrev_b32", a, 4, i), valu("v_and_b32", b, 7, i), valu("v_lshrrev_b32", "v5", 3, i),
          valu("v_and_b32", c, 1, a), valu("v_lshlrev_b32", c, 1, c), valu("v_xor_b32", c, c, b), valu("v_lshlrev_b32", c, 4, c),
          valu("v_lshl_add_u32", vW[0], "v5", 13, c),
          valu("v_xor_b32", vW[1], 64, vW[0]), valu("v_add_u32", vW[1], 64512, vW[1]),
          valu("v_add_u32", vW[2], 2 * 64512, vW[0]), valu("v_add_u32", vW[3], 2 * 64512, vW[1])]
    o += [valu("v_xor_b32", c, a, b), valu("v_lshlrev_b32", c, 4, c), valu("v_mul_u32_u24", "v6", 1280, "v5"),
          valu("v_add_u32", vX[0], "v6", c),
          valu("v_xor_b32", vX[1], 64, vX[0]), valu("v_add_u32", vX[1], 9216, vX[1]),
          valu("v_add_u32", vX[2], 2 * 9216, vX[0]), valu("v_add_u32", vX[3], 2 * 9216, vX[1])]
    o += [salu("s_lshr_b32", "s70", sWAVE, 1), salu("s_and_b32", "s71", sWAVE, 1),
          salu("s_lshl_b32", sW4K, sWAVE, 12), salu("s_mul_i32", sW6K, sWAVE, 6144), salu("s_mul_i32", sW5K, sWAVE, 5120),
          salu("s_lshl_b32", "s7", "s4", 2), salu("s_add_u32", "s7", "s7", "s70"),
          salu("s_lshl_b32", sWQ, "s71", 18), salu("s_lshl_b32", sT0, "s7", 8), salu("s_add_u32", sWQ, sWQ, sT0),
          salu("s_mul_i32", sX, "s6", 245760), salu("s_mul_i32", sT0, sWAVE, 61440), salu("s_add_u32", sX, sX, sT0)]
    o += [raw("s_waitcnt lgkmcnt(0)", "drainlg")]
    o += srd(S_X, "s56", "s57", 3932160) + srd(S_WQ, "s62", "s63", 5242880)
    for k in sorted([k for k, u in U.items() if u["I"] < 0], key=lambda k: (U[k]["N"], k[0] != "W", k)):
        for pre, ds in unit_dmas(k):
            o += pre[::-1] + ds
    if OPT["warmw"]:
        o += [salu("s_mul_i32", "s68", "s6", 40 * 8192), salu("s_lshl_b32", "s69", "s4", 10), salu("s_add_u32", "s68", "s68", "s69"),
              salu("s_mul_i32", "s69", sWAVE, 10 * 8192), salu("s_add_u32", "s68", "s68", "s69"),
              valu("v_lshlrev_b32", b, 7, b), valu("v_lshl_add_u32", "v6", "v5", 13, b), valu("v_and_b32", c, 1, "v5"),
              valu("v_lshl_add_u32", c, c, 13, b), salu("s_add_u32", "s69", "s68", 8 * 8192)]
        o += [vload(("v", 254), 1, "v6", S_WQ, "s68", 0), vload(("v", 255), 1, c, S_WQ, "s69", 0)]
    if OPT["codepf"]:
        o += [raw("s_getpc_b64 s[96:97]", wr=["s96", "s97"]), label("L_pc"), salu("s_lshr_b32", "s68", "s2", 3), salu("s_lshl_b32", "s68", "s68", 2),
              salu("s_add_u32", "s68", "s68", sWAVE), salu("s_lshl_b32", sCP, "s68", 8), salu("s_lshl_b32", "s68", "s68", 9),
              valu("v_and_b32", c, 3, i), valu("v_lshlrev_b32", c, 7, c), valu("v_add_u32", c, "s68", c),
              Ins("global_load_dword v253, v4, s[96:97]", "vld", rd=["v4", "s96", "s97"], wr=["v253"])]
    o += srd(S_K, "s58", "s59", 67108864) + srd(S_V, "s60", "s61", 67108864) + srd(S_WO, "s94", "s95", 5242880)
    o += srd(S_OST, "s90", "s91", WS_WOT) + srd(S_FLG, "s88", "s89", 256)
    o += [salu("s_add_u32", "s68", "s90", WS_WOT), salu("s_addc_u32", "s69", "s91", 0)] + srd(S_WOT, "s68", "s69", 2 * WOT_BLK)
    o += [salu("s_lshl_b32", sFG, "s3", 2), salu("s_lshl_b32", sFB, "s5", 6), salu("s_add_u32", sFB, sFB, 128),
          valu("v_cmp_eq_u32", "vcc", 0, "v0"), valu("v_mov_b32", "v10", "0x1000"), valu("v_mov_b32", f"v{ONES}", "0x3f803f80"),
          valu("v_cndmask_b32", vFLG, "v10", 0, "vcc")]
    o += [valu("v_mov_b32", f"v{ONES + r}", f"v{ONES}") for r in range(1, 4)]
    if OPT["prof"]:
        o += [salu("s_add_u32", "s68", "s90", WS_PROF), salu("s_addc_u32", "s69", "s91", 0)] + srd(S_PROF, "s68", "s69", 1 << 20)
        o += [salu("s_lshl_b32", sPROF, "s2", 2), salu("s_add_u32", sPROF, sPROF, sWAVE), salu("s_lshl_b32", sPROF, sPROF, 10)]
        o += prof_stamp(0, 8)
    o += [salu("s_lshl_b32", sKV, "s6", 5), salu("s_add_u32", sKV, sKV, "s7"), salu("s_lshl_b32", sKV, sKV, 17),
          salu("s_lshl_b32", sT0, "s71", 12),
          salu("s_lshr_b32", sROT, "s2", 3), salu("s_lshl_b32", sT1, "s2", 1), salu("s_add_u32", sROT, sROT, sT1),
          salu("s_and_b32", sROT, sROT, 15), salu("s_lshl_b32", sROT, sROT, 13), salu("s_add_u32", sROT, sROT, sT0)]
    o += [salu("s_mul_i32", sO, "s3", O_GRP), salu("s_mul_i32", sT0, "s71", 786432), salu("s_add_u32", sO, sO, sT0),
          salu("s_lshr_b32", sT0, "s4", 1), salu("s_mul_i32", sT0, sT0, 16 * 12288), salu("s_add_u32", sO, sO, sT0),
          salu("s_and_b32", sT0, "s4", 1), salu("s_mul_i32", sT0, sT0, 4 * 12288), salu("s_add_u32", sO, sO, sT0),
          salu("s_mul_i32", sT0, "s70", 2 * 12288), salu("s_add_u32", sO, sO, sT0)]
    o += [salu("s_lshl_b32", "s68", "s6", 3), salu("s_add_u32", "s68", "s68", "s4"),
          salu("s_mul_i32", sWOS, "s68", 40960), salu("s_mul_i32", sT0, sWAVE, 10240), salu("s_add_u32", sWOS, sWOS, sT0),
          salu("s_lshr_b32", sT0, "s68", 1), salu("s_and_b32", sT1, sT0, "0x33"),
          salu("s_and_b32", "s69", sT0, 4), salu("s_lshl_b32", "s69", "s69", 1), salu("s_or_b32", sT1, sT1, "s69"),
          salu("s_and_b32", "s69", sT0, 8), salu("s_lshr_b32", "s69", "s69", 1), salu("s_or_b32", sT1, sT1, "s69"),
          salu("s_mul_i32", sWOD, sT1, 20480),
          salu("s_and_b32", sT0, "s68", 1), salu("s_lshl_b32", sT0, sT0, 11), salu("s_add_u32", sWOD, sWOD, sT0),
          salu("s_mul_i32", sT0, "s5", WOT_BLK), salu("s_add_u32", sWOD, sWOD, sT0),
          salu("s_lshl_b32", sT0, "s70", 12), salu("s_add_u32", sWOD, sWOD, sT0),
          salu("s_lshl_b32", sT0, "s71", 10), salu("s_add_u32", sWOD, sWOD, sT0),
          salu("s_mul_i32", sT0, "s70", 1310720 - 20480), salu("s_add_u32", sWOX, sWOD, sT0)]
    cbits = struct.unpack("<I", struct.pack("<f", math.log2(math.e) / math.sqrt(128.0)))[0]
    o += [salu("s_mov_b32", sC, "0x%x" % cbits), salu("s_mov_b32", sHI, "0x4e800000"), salu("s_mov_b32", sLO, "0x30800000"),
          salu("s_mov_b32", sIT, 0)]
    o += [valu("v_lshrrev_b32", a, 4, i), valu("v_and_b32", b, 15, i),
          valu("v_xor_b32", c, a, b), valu("v_lshlrev_b32", c, 4, c), valu("v_lshl_add_u32", vK[0], a, 8, c)]
    o += [valu("v_xor_b32", vK[m], m << 6, vK[0]) for m in range(1, 4)]
    o += [valu("v_lshlrev_b32", "v5", 1, a), valu("v_xor_b32", "v5", "v5", b), valu("v_lshlrev_b32", "v5", 4, "v5"),
          valu("v_lshl_add_u32", vV[0], a, 8, "v5"), valu("v_xor_b32", vV[1], 128, vV[0])]
    o += [salu("s_lshl_b32", "s69", "s70", 13), salu("s_mul_i32", "s68", "s71", 12288), salu("s_add_u32", "s68", "s68", XS[0]),
          valu("v_bfe_u32", "v8", i, 2, 2), valu("v_and_b32", "v9", 3, i)]
    o += [valu("v_lshl_add_u32", c, b, 8, c), valu("v_add_u32", c, KWANT[15], c), valu("v_add_u32", kA[0], "s69", c)]
    o += [valu("v_xor_b32", kA[j], j << 6, kA[0]) for j in range(1, 4)]
    o += [valu("v_lshl_add_u32", "v5", a, 2, "v8"), valu("v_lshlrev_b32", c, 8, "v5"), valu("v_and_b32", "v6", 7, "v5"),
          valu("v_lshl_add_u32", c, "v6", 5, c), valu("v_lshl_add_u32", c, "v9", 3, c),
          valu("v_add_u32", c, VWANT[15], c), valu("v_add_u32", vA[0], "s69", c)]
    o += [valu("v_xor_b32", vA[d], d << 5, vA[0]) for d in range(1, 8)]
    o += [valu("v_lshl_add_u32", c, a, 3, "v8"), valu("v_lshlrev_b32", c, 7, c),
          valu("v_and_b32", "v5", 2, "v8"), valu("v_and_b32", "v7", 1, a), valu("v_lshl_add_u32", "v5", "v7", 2, "v5"),
          valu("v_xor_b32", "v5", "v5", "v9"), valu("v_lshl_add_u32", c, "v5", 4, c), valu("v_add_u32", wA[0], "s69", c),
          valu("v_xor_b32", wA[1], 64, wA[0])]
    o += [valu("v_lshrrev_b32", "v5", 1, b), valu("v_xor_b32", "v5", "v5", a),
          valu("v_lshlrev_b32", "v5", 4, "v5"), valu("v_lshl_add_u32", c, b, 7, "v5"),
          valu("v_xor_b32", "v5", 64, c), valu("v_add_u32", xA[0], "s68", c), valu("v_add_u32", xA[1], "s68", "v5")]
    o += [salu("s_lshl_b32", "s68", "s70", 2), salu("s_lshl_b32", "s69", "s71", 3), salu("s_add_u32", "s69", "s69", WOJ_ADDR),
          valu("v_lshrrev_b32", c, 1, a), valu("v_mul_u32_u24", c, 5120, c), valu("v_lshl_add_u32", c, "v6", 7, c),
          valu("v_add_u32", c, "s69", c), valu("v_add_u32", "v5", "s68", "v9"), valu("v_lshrrev_b32", "v6", 1, "v6"),
          valu("v_xor_b32", "v5", "v5", "v6"), valu("v_lshl_add_u32", vJ, "v5", 4, c)]
    o += [needvm([k for k, u in U.items() if u["N"] == 0]), barrier()] + first_reads(0)
    return o


def acc2(pi, xy, qi):
    return ((pi * 6 + qi) * 2 + xy) * 4


def a2(pi, ks, xy):
    return (240 if pi == 0 else 16 * (pi - 1)) + 8 * ks + 4 * xy


def b2(st, qi, ks):
    if st == 0:
        return 192 + 8 * qi + 4 * ks
    return (96 + 8 * qi if qi < 4 else 160 + 8 * (qi - 4)) + 4 * ks


def held(n):
    return (64 if n < 16 else 128) + 4 * (n % 8)


V2A = ["v%d" % i for i in range(240, 245)]
V2B = ["v245", "v246", "v247", "v248", "v249", "v253"]
V2L, V2W, V2P = "v252", "v254", "v255"
S2A, S2B, S2OUT = 8, 12, 16
sA2, sB2, sPL, sOB, sCNT, sSO, sQ, sSH, sWANT, sSPIN = "s20", "s21", "s22", "s23", "s67", "s68", "s69", "s70", "s71", "s94"


def k2_loads_A(pi):
    return [vload(("a", a2(pi, ks, xy)), 4, V2A[pi], S2A, sA2, ks * 2048 + xy * 1024, flags=SC1) for xy in range(2) for ks in range(2)]


def k2_loads_B(st, qi):
    return [vload(("a", b2(st, qi, ks)), 4, V2B[qi], S2B, sB2, ks * 1024, flags=SC1) for ks in range(2)]


def k2_steps(S, first, loadA, loadB, pend, check=False, stores=(), publish=None):
    for st in range(2):
        q0 = S.n()
        for pi in range(5):
            for xy in range(2):
                for qi in range(6):
                    for ks in range(2):
                        acc = ("v", acc2(pi, xy, qi))
                        S.add(mfma(16, acc, ("a", a2(pi, ks, xy)), ("a", b2(st, qi, ks)),
                                   None if (first and st == 0 and ks == 0) else acc))
        items = []
        if pend[st]:
            ls = k2_loads_A(4)
            items += [(ls[2], 0, 10), (ls[3], 0, 11)]
        if loadB[st]:
            for qi in range(6):
                items += [(l, 0, 120 + 2 * qi + ks) for ks, l in enumerate(k2_loads_B(1 - st, qi))]
        if loadA[st]:
            for pi in range(5):
                ls = k2_loads_A(pi)
                for x, l in enumerate(ls if pi < 4 else ls[:2]):
                    items.append((l, 24 * pi + 11 + 12 * (x >> 1), 120 + 24 * pi + 12 * (x >> 1) + (x & 1)))
        sts = list(stores[st]) if stores else []
        nslot = max(len(items) + len(sts), 32)
        pos = [int(0.5 + 119.0 / nslot * n) for n in range(nslot)]
        items.sort(key=lambda i: i[2])
        lastB = None
        for n, p in enumerate(pos):
            if sts and n % 6 == 4:
                pre, st_ins = sts.pop(0)
                S.put(q0 + p - 1, *pre)
                S.put(q0 + p, st_ins)
                continue
            c = [i for i in items if i[1] <= p]
            if not c:
                continue
            i = c[0]
            items.remove(i)
            S.put(q0 + p, i[0])
            if i[2] == 11:
                S.put(q0 + p + 1, salu("s_add_u32", sA2, sA2, 20480))
            if sB2 in i[0].rd:
                lastB = p
        assert not items and not sts, (items, sts)
        if lastB is not None:
            S.put(q0 + lastB + 1, salu("s_add_u32", sB2, sB2, 12288))
        if publish == st:
            S.put(q0 + 113, needvm(["ost"]), barrier())
            S.put(q0 + 114, valu("v_mov_b32", V2P, "0x100"))
            S.put(q0 + 117, atomic_add(V2P, sFG))
        if check and st == 0:
            S.put(q0 + 1, scmp("s_cmp_eq_u32", sCNT, 4), salu("s_cselect_b32", sWANT, 8, 0), salu("s_cselect_b32", sPL, sFG, "0x1000"))
            S.put(q0 + 2, poll_load(V2P, sPL))
        if check and st == 1:
            S.put(q0 + 1, valu("v_readfirstlane_b32", sQ, V2P))
            S.put(q0 + 5, salu("s_lshr_b32", sQ, sQ, 8), scmp("s_cmp_lt_u32", sQ, sWANT),
                  raw("s_cbranch_scc1 L_spin2", "branch", rd=["scc"]), label("L_spin2_back"))


def spin(name, back, dsts, soffs, conds):
    o = [label(name), salu("s_mov_b32", sSPIN, 0), label(name + "_loop"), raw("s_sleep 8")]
    o += [poll_load(d, so) for d, so in zip(dsts, soffs)]
    o += [drain(), salu("s_add_u32", sSPIN, sSPIN, 1), scmp("s_cmp_gt_u32", sSPIN, "0x20000"),
          raw(f"s_cbranch_scc1 {back}", "branch", rd=["scc"])]
    for d, (sh, msk, want) in zip(dsts, conds):
        o += [valu("v_readfirstlane_b32", sQ, d), nop(4)]
        if sh:
            o += [salu("s_lshr_b32", sQ, sQ, sh)]
        if msk:
            o += [salu("s_and_b32", sQ, sQ, msk)]
        o += [scmp("s_cmp_lt_u32", sQ, want), raw(f"s_cbranch_scc1 {name}_loop", "branch", rd=["scc"])]
    o += [raw(f"s_branch {back}", "branch")]
    return o


def phase2():
    o = [valu("v_readfirstlane_b32", sQ, vPOLL[0]), valu("v_readfirstlane_b32", sSH, vPOLL[1]),
         valu("v_mov_b32", V2L, vL16),
         salu("s_and_b32", sQ, sQ, "0xff"), salu("s_lshl_b32", sQ, sQ, 5), salu("s_min_u32", sQ, sQ, sSH),
         scmp("s_cmp_lt_u32", sQ, 256), raw("s_cbranch_scc1 L_spin1", "branch", rd=["scc"]), label("L_spin1_back")]
    o += [salu("s_lshr_b32", "s30", "s4", 2), salu("s_and_b32", "s31", "s4", 3), salu("s_and_b32", "s32", sWAVE, 1),
          salu("s_lshr_b32", "s33", sWAVE, 1)]
    o += [salu("s_mul_i32", "s7", "s5", WOT_BLK), salu("s_mul_i32", sPL, "s31", 1310720), salu("s_add_u32", "s7", "s7", sPL),
          salu("s_add_u32", "s7", "s7", WS_WOT), salu("s_add_u32", "s60", "s90", "s7"), salu("s_addc_u32", "s61", "s91", 0)]
    o += srd(S2A, "s60", "s61", 1310720)
    o += [salu("s_mul_i32", "s7", "s3", O_GRP), salu("s_mul_i32", sPL, "s30", 786432), salu("s_add_u32", "s7", "s7", sPL),
          salu("s_add_u32", "s60", "s90", "s7"), salu("s_addc_u32", "s61", "s91", 0)]
    o += srd(S2B, "s60", "s61", 786432)
    o += [salu("s_mul_i32", sA2, sWAVE, 16 * 20480), salu("s_mul_i32", sB2, sWAVE, 16 * 12288)]
    o += [scmp("s_cmp_eq_u32", "s33", 0)]
    o += [salu("s_cselect_b32", f"s{36 + pi}", pi, 4 - pi) for pi in range(5)]
    o += [salu("s_cselect_b32", f"s{47 + q}", q, 2 - q) for q in range(3)]
    o += [salu("s_mul_i32", "s34", "s32", 3), salu("s_sub_u32", "s35", 3, "s34")]
    for q in range(3):
        o += [salu("s_add_u32", f"s{50 + q}", f"s{47 + q}", "s35"), salu("s_add_u32", f"s{47 + q}", f"s{47 + q}", "s34")]
    o += [valu("v_mov_b32", f"v{16 + q}", vR[q]) for q in range(6)]
    for qi in range(6):
        o += [salu("s_lshl_b32", "s7", f"s{47 + qi}", 11), valu("v_add_u32", V2B[qi], "s7", V2L)]
    for pi in range(5):
        o += [salu("s_lshl_b32", "s7", f"s{36 + pi}", 12), valu("v_add_u32", V2A[pi], "s7", V2L)]
    o += k2_loads_A(0)[:2]
    for qi in range(6):
        o += k2_loads_B(0, qi)
    o += k2_loads_A(0)[2:]
    o += [salu("s_add_u32", sB2, sB2, 12288)]
    save = list(vR)
    vR[:] = [f"v{16 + q}" for q in range(6)]
    eg = epilogue_groups(0, lambda n: 96 + 4 * n if n < 8 else None)
    vR[:] = save
    later = [l for pi in range(1, 5) for l in k2_loads_A(pi)]
    parked = []
    for n, (v, pre, st, imm) in enumerate(eg):
        if n < 8:
            o += v
            continue
        tb = 4 * (n % 3)
        if n < 16:
            ls = later[2 * (n - 8):2 * (n - 8) + 2]
            o += v[:8] + ls[:1] + v[8:16] + ls[1:] + v[16:]
        else:
            o += v[:8] + eg[n - 16][1] + [eg[n - 16][2]] + v[8:]
        o += [valu("v_accvgpr_write_b32", f"a{held(n) + r}", f"v{tb + r}") for r in range(4)]
        parked.append((pre, vstore(("a", held(n)), 4, V2L, S_OST, sE, imm, tag="ost", flags=SC1)))
    o += [salu("s_add_u32", sA2, sA2, 20480)]
    o += prof_stamp(1, 30)
    o += srd(S2OUT, "s92", "s93", 7864320)
    o += [salu("s_mul_i32", sOB, "s6", 192 * 2560), salu("s_mul_i32", "s7", "s30", 96 * 2560), salu("s_add_u32", sOB, sOB, "s7"),
          salu("s_mul_i32", "s7", "s5", 1280), salu("s_add_u32", sOB, sOB, "s7"),
          salu("s_mul_i32", "s7", "s31", 320), salu("s_add_u32", sOB, sOB, "s7"), salu("s_mov_b32", sCNT, 5)]
    S0 = Sched()
    k2_steps(S0, True, [True, True], [True, True], [False, True], stores=[parked[0:5], parked[5:11]])
    k2_steps(S0, False, [True, True], [True, True], [True, True], stores=[parked[11:16], []], publish=1)
    S0.order_fixed()
    first = S0.build()
    S1 = Sched()
    k2_steps(S1, False, [True, True], [True, True], [True, True], check=True)
    if OPT["prof"]:
        S1.put(3, raw("s_memrealtime s[76:77]", wr=["s76", "s77"]), raw("s_waitcnt lgkmcnt(0)", "drainlg"),
               salu("s_mov_b32", "s100", "s99"), salu("s_mov_b32", "s99", "s98"),
               salu("s_mov_b32", "s98", "s97"), salu("s_mov_b32", "s97", "s96"), salu("s_mov_b32", "s96", "s76"))
    S1.put(237, salu("s_sub_u32", sCNT, sCNT, 1))
    S1.order_fixed()
    loop = [label("L_k2")] + S1.build() + [scmp("s_cmp_lg_u32", sCNT, 0), raw("s_cbranch_scc1 L_k2", "branch", rd=["scc"])]
    S2 = Sched()
    k2_steps(S2, False, [True, False], [True, False], [True, True])
    S2.order_fixed()
    last = S2.build()
    R1, R2, i, a, V2O = V2A[0], V2A[1], V2A[2], V2A[3], V2A[4]
    e = [salu("s_mul_i32", "s7", sWAVE, 30720), valu("v_add_u32", V2W, "s7", V2L), valu("v_lshrrev_b32", i, 4, V2L),
         valu("v_and_b32", a, 15, i), valu("v_mul_u32_u24", a, 2560, a), valu("v_lshrrev_b32", i, 4, i),
         valu("v_lshl_add_u32", V2O, i, 4, a)]
    sent = [(pi, xy, qi) for pi in range(5) for qi in range(3, 6) for xy in range(2)]
    for n, (pi, xy, qi) in enumerate(sent):
        e += [ds_write("ds_write_b128", V2W, ("v", acc2(pi, xy, qi)), 4, n * 1024)]
    e += [salu("s_xor_b32", sPL, sWAVE, 1), salu("s_sub_u32", sPL, sPL, sWAVE), salu("s_mul_i32", "s7", sPL, 30720),
          valu("v_add_u32", R1, "s7", V2W),
          salu("s_xor_b32", sPL, sWAVE, 3), salu("s_sub_u32", sPL, sPL, sWAVE), salu("s_mul_i32", "s7", sPL, 30720),
          valu("v_add_u32", R2, "s7", V2W)]
    e += [needlgkm0(), barrier()] + prof_stamp(8, 236)
    for n, (pi, xy, qi) in enumerate(sent):
        e += [ds_read("ds_read_b128", ("v", acc2(pi, xy, qi)), 4, R1, n * 1024)]
    for s in list(range(7, 15)) + list(range(7)):
        pi, q = divmod(s, 3)
        d, t = acc2(pi, 0, q), acc2(pi, 0, q + 3)
        e += [valu("v_add_f32", f"v{d + r}", f"v{d + r}", f"v{t + r}") for r in range(8)]
        if s == 14:
            e += [needlgkm0()]
            for s2 in range(7, 15):
                p2, q2 = divmod(s2, 3)
                for xy in range(2):
                    e += [ds_write("ds_write_b128", R1, ("v", acc2(p2, xy, q2)), 4, ((s2 - 7) * 2 + xy) * 1024)]
    e += [needlgkm0(), barrier()]
    for s in range(8):
        pi, q = divmod(s, 3)
        for xy in range(2):
            e += [ds_read("ds_read_b128", ("v", acc2(pi, xy, q + 3)), 4, R2, ((14 - s - 7) * 2 + xy) * 1024)]
    for s in range(8):
        pi, q = divmod(s, 3)
        d0, t0 = acc2(pi, 0, q), acc2(pi, 0, q + 3)
        e += [valu("v_add_f32", f"v{d0 + r}", f"v{d0 + r}", f"v{t0 + r}") for r in range(8)]
        e += [valu("v_cvt_pk_bf16_f32", f"v{d0 + r}", f"v{d0 + 2 * r}", f"v{d0 + 2 * r + 1}") for r in range(4)]
        e += [salu("s_mul_i32", "s7", f"s{47 + q}", 40960), salu("s_lshl_b32", sPL, f"s{36 + pi}", 6),
              salu("s_add_u32", "s7", "s7", sPL), salu("s_add_u32", sSO, "s7", sOB),
              vstore(("v", d0), 4, V2O, S2OUT, sSO, 0)]
    e += prof_stamp(9, 236)
    if OPT["prof"]:
        for n in range(5):
            e += [valu("v_mov_b32", "v236", 1), valu("v_mov_b32", "v237", f"s{100 - n}"), vstore(("v", 236), 2, "v251", S_PROF, 0, 8 * (3 + n)), nop(4)]
    e += [label("L_end"), raw("s_endpgm")]
    sp1 = spin("L_spin1", "L_spin1_back", vPOLL, [sFG, sFB], [(0, "0xff", 8), (0, 0, 256)])
    sp2 = spin("L_spin2", "L_spin2_back", [V2P], [sFG], [(8, 0, 8)])
    return o, first, loop, last, e, sp1, sp2


def kernel():
    pro = prologue()
    q1 = q_phase(False)
    att = [label("L_att")] + a_phase()
    att += [raw("s_cbranch_vccnz L_slow", "branch", rd=["vcc"]), label("L_back")]
    att += [valu("v_rcp_f32", vR[qt], f"v{lacc(qt)}") for qt in range(6)]
    att += prof_stamp(29)
    if OPT["prof"]:
        att += [salu("s_add_u32", sPROF, sPROF, 240)]
    att += [scmp("s_cmp_eq_u32", sIT, 1), raw("s_cbranch_scc1 L_out", "branch", rd=["scc"]), salu("s_mov_b32", sIT, 1)]
    q2 = [label("L_q2")] + q_phase(True) + [raw("s_branch L_att", "branch")]
    o, first, loop2, last, e, sp1, sp2 = phase2()
    o = [label("L_out")] + o
    slow = slow_path()
    parts = [pro, q1, att, q2, o, first, loop2, last, e, slow, sp1, sp2]
    waits = compute_waits([pro + q1 + att + q2 + att + o + first + loop2 + loop2 + loop2 + last + e, slow, sp1, sp2])
    done = {}
    P = [apply_waits(x, waits, done) for x in parts]
    pads = pad_hazards([P[0] + P[1] + P[2] + P[3] + P[2] + P[4] + P[5] + P[6] + P[6] + P[7] + P[8], P[9], P[10], P[11]])
    al = ".p2align 3\n"
    return (emit(P[0] + P[1], pads) + al + emit(P[2] + P[3], pads) + al + emit(P[4] + P[5], pads) + al +
            emit(P[6] + P[7] + P[8] + P[9] + P[10] + P[11], pads) + "L_endcode:\n")


def main():
    kn = NAME + "_kernel"
    s = open("cdna_kernels/" + NAME + ".s.ref").read().split("; Override launch")[0]
    s += "; @launch grid=(256,1,1) block=(256,1,1) lds=163840\n"
    s += '.amdgcn_target "amdgcn-amd-amdhsa--gfx950"\n.text\n'
    s += f".globl {kn}\n.p2align 8\n.type {kn},@function\n{kn}:\n" + kernel()
    s += f""".section .rodata,"a"
.p2align 6
.amdhsa_kernel {kn}
  .amdhsa_next_free_vgpr 512
  .amdhsa_next_free_sgpr 102
  .amdhsa_accum_offset 256
  .amdhsa_group_segment_fixed_size 0
  .amdhsa_kernarg_size 104
  .amdhsa_user_sgpr_count 2
  .amdhsa_user_sgpr_kernarg_segment_ptr 1
  .amdhsa_system_sgpr_workgroup_id_x 1
.end_amdhsa_kernel
"""
    open(sys.argv[1], "w").write(s)


main()
```

```python
import sys, math, struct
from fw3 import *

NAME = "concat_heads__mha_block_cached__mha_block_cached__near_ridge"
OPT = dict(outf='', early=1, uni=0, prof=0, report=False, stg=67, warmw=True, codepf=True, codepf2=14, pf='', pf0=1, pfn=3, flagbar=12, map=0)
for a in sys.argv[2:]:
    k, v = a.split("=")
    OPT[k] = type(OPT[k])(int(v)) if not isinstance(OPT[k], str) else v

KB = 1024
SC1 = " sc1"
O_GRP = 2 * 786432
WS_WOT = 50331648
WOT_BLK = 5242880
WS_PROF = 64 * 1024 * 1024

S_K, S_V, S_X, S_WQ, S_OST, S_WO, S_WOT = 8, 12, 16, 20, 24, 28, 32
sKV, sWQ, sX, sW4K, sW6K, sO, sIT, sT0, sT1, sC, sWAVE = ["s%d" % i for i in range(36, 47)]
sWOS, sWOD, sWOX, sW5K, sHI, sLO = ["s%d" % i for i in range(47, 53)]
sPROF, sE, sJ = "s53", "s54", "s55"
sROT, sFG, sFB, sCP = "s62", "s65", "s66", "s64"
sA2, sB2, sPL, sOB, sCNT, sSO, sQ, sSH, sWANT, sSPIN = "s28", "s29", "s30", "s31", "s67", "s68", "s69", "s70", "s71", "s94"
S_PROF, S_FLG = 72, 80
sPF = {("W", 0, 0): ["s84"], ("W", 0, 1): ["s85"], ("X", 0): ["s86", "s87"], ("X", 1): ["s98", "s99"], ("W", 1, 0): ["s100"], ("W", 1, 1): ["s101"]}
PF2 = {"s84": (0, 0, 0), "s85": (0, 1, 0), "s86": (0, 2, 0), "s98": (0, 3, 0), "s100": (0, 4, 0), "s101": (1, 0, 0),
       "s87": (1, 1, 0), "s99": (1, 1, 2048)}
vK = ["v%d" % i for i in range(192, 196)]
vV = ["v196", "v197"]
vW = ["v%d" % i for i in range(198, 202)]
vX = ["v%d" % i for i in range(202, 206)]
kA = ["v%d" % i for i in range(206, 210)]
vA = ["v%d" % i for i in range(210, 218)]
wA = ["v218", "v219"]
xA = ["v220", "v221"]
vJ, vL16 = "v222", "v223"
ONES = 224
EPI = 228
vR = ["v%d" % i for i in range(244, 250)]
vFLG = "v250"
vT = ["v252", "v253"]
vPOLL = ["v254", "v255"]

D = [i * 16 * KB for i in range(10)]
XS = [96 * KB, 120 * KB]
WOJ_ADDR = D[9]


def qacc(p, xy, qt):
    return 64 * (qt >> 1) + (2 * p + (qt & 1)) * 8 + 4 * xy


def qf(qt, p):
    return 64 * (qt >> 1) + (2 * p + (qt & 1)) * 4


def sreg(qt):
    return 64 * (qt >> 1) + 32 + 8 * (qt & 1)


def lacc(qt):
    return 64 * (qt >> 1) + 48 + 4 * (qt & 1)


ABUF = [192, 248]


def bx(qt, ks):
    return 200 + 8 * qt + 4 * ks


def kf(kt, ks):
    return 192 + 16 * kt + 4 * ks


def vf(dt):
    return 224 + 4 * dt


def oacc(qt, dt):
    return 32 * qt + 4 * dt


def build_units():
    U = {}
    for i in range(10):
        U[("X", i)] = dict(addr=XS[i % 2], size=24 * KB, N=i, I=i - 2)
        for u in range(2):
            U[("W", i, u)] = dict(addr=D[2 * (i % 3) + u], size=16 * KB, N=i, I=i - 2)
    U[("X", 0)]["I"] = -3
    U[("W", 0, 0)]["I"] = -3
    U[("W", 0, 1)]["I"] = -3
    U[("W", 1, 0)]["I"] = -1
    U[("W", 1, 1)]["I"] = -1
    pages = [9, 3, 2, 4, 5, 8, 1, 9, 0, 2, 3, 4, 6, 1, 5, 9, 0, 7, 3, 8, 2, 5, 1, 4, 0, 7, 3, 2, 8, 5, 9, 4]
    for u in range(32):
        key = ("K", u // 2) if u % 2 == 0 else ("V", u // 2)
        N = 10 + u // 2 + u % 2
        U[key] = dict(addr=D[pages[u]], size=16 * KB, N=N, I=N - 3)
    U[("J", 0)] = dict(addr=WOJ_ADDR, size=16 * KB, N=1, I=0)
    U[("J", 1)] = dict(addr=WOJ_ADDR, size=16 * KB, N=4, I=2)
    allu = [(k, u["addr"], u["addr"] + u["size"], u["N"] + 27 * r, u["I"] + 27 * r) for r in range(3) for k, u in U.items()]
    for a in allu:
        assert a[4] < a[3], a
        for b in allu:
            if a is not b and a[1] < b[2] and b[1] < a[2]:
                ra = a[3] - (a[0][0] == "X" and a[0][1] <= 7)
                rb = b[3] - (b[0][0] == "X" and b[0][1] <= 7)
                assert ra < b[4] or rb < a[4], (a, b)
    return U


U = build_units()
_alt = [0]


def next_st():
    _alt[0] ^= 1
    return [sT0, sT1][_alt[0]]


def jblocks(r, second):
    if second:
        return [8, 9] if r == 1 else []
    return range(4 * r, 4 * r + 4)


def unit_dmas(key, second=False):
    u = U[key]
    kind = key[0]
    if key in sPF:
        if kind == "W":
            return [([salu("s_add_u32", "m0", sW4K, u["addr"])], [dma(vW[m], S_WQ, sPF[key][0], 1024 * m, key, SC1) for m in range(4)])]
        return [([salu("s_add_u32", "m0", sW6K, u["addr"])], [dma(vX[m], S_X, sPF[key][0], 1024 * m, key, SC1) for m in range(4)]),
                ([salu("s_add_u32", "m0", sW6K, u["addr"] + 4096)], [dma(vX[m], S_X, sPF[key][1], 1024 * m, key, SC1) for m in range(2)])]
    sT = next_st()
    if kind in "KV":
        pre = [salu("s_add_u32", sT, sROT, key[1] * 8192), salu("s_and_b32", sT, sT, "0x1ffff"), salu("s_add_u32", sT, sT, sKV),
               salu("s_add_u32", "m0", sW4K, u["addr"])]
        if kind == "K":
            return [(pre, [dma(vK[m], S_K, sT, 1024 * m, key, " nt") for m in range(4)])]
        return [(pre, [dma(vV[m & 1], S_V, sT, 1024 * m, key, " nt") for m in range(4)])]
    if kind == "W":
        pre = [salu("s_add_u32", sT, sWQ, key[1] * 524288 + key[2] * 128), salu("s_add_u32", "m0", sW4K, u["addr"])]
        return [(pre, [dma(vW[m], S_WQ, sT, 1024 * m, key) for m in range(4)])]
    if kind == "X":
        pre = [salu("s_add_u32", sT, sX, key[1] * 128), salu("s_add_u32", "m0", sW6K, u["addr"])]
        g0 = (pre, [dma(vX[m], S_X, sT, 1024 * m, key) for m in range(4)])
        sT2 = next_st()
        pre2 = [salu("s_add_u32", sT2, sX, key[1] * 128 + 40960), salu("s_add_u32", "m0", sW6K, u["addr"] + 4096)]
        return [g0, (pre2, [dma(vX[m], S_X, sT2, 1024 * m, key) for m in range(2)])]
    gs = []
    for jj in jblocks(key[1], second):
        sTj = next_st()
        pre = [salu("s_add_u32", sTj, sWOS, jj * 128), salu("s_add_u32", "m0", sW4K, u["addr"] + (jj & 3) * 1024)]
        gs.append((pre, [dma(vX[0], S_WO, sTj, 0, key, " nt")]))
    return gs


def set_pf_proj():
    o = []
    for key, rs in sPF.items():
        if key[0] == "W":
            o += [salu("s_add_u32", rs[0], sWQ, key[1] * 524288 + key[2] * 128)]
        else:
            o += [salu("s_add_u32", rs[0], sX, key[1] * 128), salu("s_add_u32", rs[1], sX, key[1] * 128 + 40960)]
    return o


def set_pf_out():
    o = [salu("s_and_b32", "s68", "s4", 3), salu("s_mul_i32", "s68", "s68", 1310720), salu("s_mul_i32", "s69", "s5", WOT_BLK),
         salu("s_add_u32", "s68", "s68", "s69"), salu("s_add_u32", "s68", "s68", WS_WOT)]
    o += [[salu("s_add_u32", f"s{S_WQ}", "s90", "s68"), salu("s_addc_u32", "s69", "s91", 0)]]
    o += [salu("s_and_b32", f"s{S_WQ + 1}", "s69", "0xffff"), salu("s_mov_b32", f"s{S_WQ + 2}", 1310720),
          salu("s_mov_b32", f"s{S_X}", f"s{S_WQ}"), salu("s_mov_b32", f"s{S_X + 1}", f"s{S_WQ + 1}"), salu("s_mov_b32", f"s{S_X + 2}", 1310720)]
    o += [salu("s_lshr_b32", "s70", sWAVE, 1), salu("s_mul_i32", "s68", sWAVE, 16 * 20480), salu("s_lshl_b32", "s69", "s70", 14),
          salu("s_add_u32", "s68", "s68", "s69"), salu("s_lshl_b32", "s69", "s70", 13), salu("s_sub_u32", "s69", 4096, "s69")]
    for r, (st, pi, off) in PF2.items():
        o += [salu("s_mul_i32", r, "s69", pi), salu("s_add_u32", r, r, "s68")]
        if st or off:
            o += [salu("s_add_u32", r, r, st * 20480 + off)]
    return o


def epoch_groups(n, second=False):
    order = {"W": 0, "X": 1, "K": 2, "V": 2, "J": 3}
    keys = sorted([k for k, u in U.items() if u["I"] % 27 == n and k != ("J", 0)], key=lambda k: (U[k]["N"] - U[k]["I"], order[k[0]], k))
    return [g for k in keys for g in unit_dmas(k, second)]


def place_dmas(S, groups, cand, lo):
    ci = 0
    for pre, ds in groups:
        g = cand[ci]
        for n, p in enumerate(pre):
            S.put(max(lo, g - len(pre) + n), p)
        for d in ds:
            S.put(cand[ci], d)
            ci += 1


def tags_for(n):
    t = [k for k, u in U.items() if (u["N"] - (n + 1)) % 27 == 0]
    if n == OPT["flagbar"]:
        t += ["ost", "jst"]
    return t


def atomic_add(vdata, soff):
    return Ins(f"buffer_atomic_add {vdata}, {vFLG}, s[{S_FLG}:{S_FLG + 3}], {soff} offen sc1", "atomic",
               rd=[vdata, vFLG, soff] + regs("s", S_FLG, 4), tag="flag")


def poll_load(vdst, soff):
    return Ins(f"buffer_load_dword {vdst}, off, s[{S_FLG}:{S_FLG + 3}], {soff} sc1", "vld", rd=[soff] + regs("s", S_FLG, 4), wr=[vdst])


class Win:
    def __init__(self, rs, init):
        self.rs = rs
        self.cur = init

    def move(self, new):
        d = (new - self.cur) & 0xffffffff
        self.cur = new
        return [valu("v_add_u32", r, "0x%x" % d, r) for r in self.rs] if d else []


def plan_windows(addrs, span):
    want = []
    i = 0
    while i < len(addrs):
        lo = hi = addrs[i]
        j = i + 1
        while j < len(addrs) and max(hi, addrs[j]) - min(lo, addrs[j]) + span < 65536:
            lo, hi = min(lo, addrs[j]), max(hi, addrs[j])
            j += 1
        want += [lo] * (j - i)
        i = j
    return want


KWANT = plan_windows([U[("K", t)]["addr"] for t in range(16)], 4096)
VWANT = plan_windows([U[("V", t)]["addr"] for t in range(16)], 4096)
WWANT = plan_windows([U[("W", i, 1)]["addr"] for i in range(10)], 4096 + 520)
WWANT = [0 if w < 64 * KB else 64 * KB for w in [U[("W", i, 0)]["addr"] for i in range(10)]]


def prof_stamp(idx, v0=252):
    if not OPT["prof"]:
        return []
    return [raw("s_memtime s[76:77]", "other", wr=["s76", "s77"]),
            raw("s_memrealtime s[78:79]", "other", wr=["s78", "s79"]),
            raw("s_waitcnt lgkmcnt(0)", "drainlg"),
            valu("v_mov_b32", f"v{v0}", "s76"),
            valu("v_mov_b32", f"v{v0 + 1}", "s78"),
            valu("v_mov_b32", "v251", sPROF),
            vstore(("v", v0), 2, "v251", S_PROF, 0, 8 * idx)]


def bar_seq(tags, idx):
    if OPT["prof"] < 2:
        return [needboth(tags), barrier()] + prof_stamp(idx)
    return [raw("s_memtime s[58:59]", "other", wr=["s58", "s59"]), raw("s_waitcnt lgkmcnt(0)", "drainlg"),
            needboth(tags), barrier(),
            raw("s_memtime s[76:77]", "other", wr=["s76", "s77"]),
            raw("s_memrealtime s[78:79]", "other", wr=["s78", "s79"]),
            raw("s_waitcnt lgkmcnt(0)", "drainlg"), salu("s_sub_u32", "s76", "s76", "s58"),
            valu("v_mov_b32", "v252", "s76"), valu("v_mov_b32", "v253", "s78"), valu("v_mov_b32", "v251", sPROF),
            vstore(("v", 252), 2, "v251", S_PROF, 0, 8 * idx)]


def a_read(i, dt, ks, t, win):
    p, xy = dt >> 1, dt & 1
    off = U[("W", i, p >> 1)]["addr"] - win + ks * 4096 + t * 512 + xy * 8
    return ds_read("ds_read_b64_tr_b16", ("a", ABUF[dt % 2] + 4 * ks + 2 * t), 2, wA[p & 1], off)


def first_reads(i):
    ax = U[("X", i)]["addr"] - XS[0]

    def A(ks, t):
        return a_read(i, 0, ks, t, WWANT[i])

    def B(qt, ks):
        return ds_read("ds_read_b128", ("a", bx(qt, ks)), 4, xA[ks], ax + qt * 2048)
    return [A(0, 0), A(0, 1), B(0, 0), A(1, 0), A(1, 1), B(0, 1)] + [B(qt, ks) for qt in range(1, 6) for ks in range(2)]


def k_read(t, j):
    kt, ks = j >> 2, j & 3
    return ds_read("ds_read_b128", ("a", kf(kt, ks)), 4, kA[ks], U[("K", t)]["addr"] - KWANT[t] + kt * 4096)


def epilogue_groups(tmp, dst=None):
    groups = []
    n = 0
    for T in range(3):
        for ph in range(2):
            for qs in range(2):
                for pl in range(2):
                    qt = 2 * T + qs
                    tb = tmp + 4 * (n % 3)
                    src = oacc(qt, 4 * ph + 2 * pl)
                    db = tb if dst is None or dst(n) is None else dst(n)
                    rd = [valu("v_accvgpr_read_b32", f"v{tb + i}", f"a{src + i}") for i in range(8)]
                    mu = [valu("v_mul_f32", f"v{tb + i}", vR[qt], f"v{tb + i}") for i in range(8)]
                    cv = [valu("v_cvt_pk_bf16_f32", f"v{db + i}", f"v{tb + 2 * i}", f"v{tb + 2 * i + 1}") for i in range(4)]
                    pre = [salu("s_add_u32", sE, sO, ph * 12288 + T * 4096)] if qs == 0 and pl == 0 else []
                    imm = qs * 2048 + pl * 1024
                    groups.append((rd + mu + cv, pre, vstore(("v", db), 4, vL16, S_OST, sE, imm, tag="ost", flags=SC1), imm))
                    n += 1
    return groups


def conv_items(T, ps):
    out = []
    for p in ps:
        for qs in range(2):
            R, Dd = qacc(p, 0, 2 * T + qs), qf(2 * T + qs, p)
            out += [(p, qs, valu("v_mul_f32", f"v{R + x}", sC, f"v{R + x}")) for x in range(8)]
            out += [(p, qs, valu("v_cvt_pk_bf16_f32", f"v{Dd + x}", f"v{R + 2 * x}", f"v{R + 2 * x + 1}")) for x in range(4)]
    return out


def q_phase(second):
    S = Sched()
    ww = Win(wA, 0)
    for i in range(10):
        q0 = S.n()
        for dt in range(8):
            for qt in range(6):
                for ks in range(2):
                    acc = ("v", qacc(dt >> 1, dt & 1, qt))
                    S.add(mfma(16, acc, ("a", ABUF[dt % 2] + 4 * ks), ("a", bx(qt, ks)), None if (i == 0 and ks == 0) else acc))
        for dt in range(1, 8):
            gaps = [4, 5, 6, 7] if dt == 1 else [0, 2, 3, 4]
            for n, (ks, t) in enumerate([(0, 0), (0, 1), (1, 0), (1, 1)]):
                S.put(q0 + 12 * (dt - 1) + gaps[n], a_read(i, dt, ks, t, WWANT[i]))
        if i <= 7:
            S.put(q0 + 11, needboth([("W", 0, 1)] if i == 0 else []), barrier())
        S.put(q0 + 83, *bar_seq(tags_for(i), 2 + i))
        if i < 9:
            S.put(q0 + 79, *ww.move(WWANT[i + 1]))
            for n, r in enumerate(first_reads(i + 1)):
                S.put(q0 + 84 + n, r)
        else:
            S.put(q0 + 79, *ww.move(0))
            kw = Win(kA, KWANT[15])
            mv = kw.move(KWANT[0])
            S.put(q0 + 80, *mv[:2])
            S.put(q0 + 82, *mv[2:])
            for j in range(8):
                S.put(q0 + 84 + j, k_read(0, j))
        place_dmas(S, epoch_groups(i, second), [q0 + 13 + 4 * x for x in range(18)], q0 + 11)
    for r in range(2):
        q0 = 96 * U[("J", r)]["N"]
        for jj in jblocks(r, second):
            k = jj & 3
            for tt in range(2):
                S.put(q0 + 18 + 12 * k + 2 * tt, ds_read("ds_read_b64_tr_b16", ("a", 4 * k + 2 * tt), 2, vJ, k * 1024 + tt * 8192))
            nq, pair = divmod(2 * jj, 5)
            g = q0 + 69 + 4 * k
            S.put(g - 1, salu("s_add_u32", sJ, sWOX if pair == 4 else sWOD, nq * 1310720 + pair * 4096))
            S.put(g, vstore(("a", 4 * k), 4, vL16, S_WOT, sJ, 0, tag="jst", flags=SC1))
    if OPT["pf"]:
        lds = []
        for name in OPT["pf"].split(","):
            kind, t = name[0], int(name[1:])
            pre = [salu("s_add_u32", sJ, sROT, t * 8192), salu("s_and_b32", sJ, sJ, "0x1ffff"), salu("s_add_u32", sJ, sJ, sKV)]
            for m in range(4):
                l = vload(("v", 252), 4, vL16, S_K if kind == "K" else S_V, sJ, 1024 * m, tag="pf")
                l.wr = set()
                lds.append((pre if m == 0 else [], l))
        i, k = OPT["pf0"], 0
        for pre, l in lds:
            g = 96 * i + [69, 73, 77, 81][k]
            while S.fixed.get(g) or (second and False):
                g += 1
            for n, p in enumerate(pre):
                S.put(g - 3 + n, p)
            S.put(g, l)
            k += 1
            if k == OPT["pfn"]:
                k = 0
                i += 1
        assert i <= 10
    if second:
        eg = epilogue_groups(EPI)
        ep = []
        for i in range(8):
            for g in eg[3 * i:3 * i + 3]:
                ep += [(x, 96 * i, None) for x in g[0]]
            for g in eg[3 * i:3 * i + 3]:
                ep += [(x, 96 * i + OPT["stg"], None) for x in g[1] + [g[2]]]
        ep[-1] = (ep[-1][0], ep[-1][1], 96 * 9 - 1)
        S.stream(ep)
        S.put(96 * 9 + 2, salu("s_add_u32", sO, sO, 8 * 12288))
    q0 = 96 * 9
    g = q0 + 66
    for x in ([salu("s_add_u32", sWQ, sWQ, 512)] + set_pf_proj() if not second else set_pf_out()):
        S.put(g, *(x if isinstance(x, list) else [x]))
        g += 1 if g < q0 + 94 else 0
        if g == q0 + 83:
            g += 1
    if second:
        S.stream([(valu("v_mov_b32", r, vL16), q0 + 66, None) for r in vW + vX])
    S.stream([(x, min(q0 + 12 * (2 * p + 1) + 2 * qs + 1 + 2, q0 + 95), None) for p, qs, x in conv_items(0, range(4))])
    S.put(-1, *prof_stamp(1))
    return S.finish(lead=first_reads(0), report=OPT["report"])


def lcheck():
    l = [f"v{lacc(qt)}" for qt in range(6)]
    return [valu("v_add_f32", vT[0], l[0], l[1]), valu("v_min3_f32", vT[1], l[0], l[1], l[2]),
            valu("v_add_f32", vT[0], vT[0], l[2]), valu("v_min3_f32", vT[1], vT[1], l[3], l[4]),
            valu("v_add_f32", vT[0], vT[0], l[3]), valu("v_add_f32", vT[0], vT[0], l[4]),
            valu("v_min_f32", vT[1], vT[1], l[5]), valu("v_add_f32", vT[0], vT[0], l[5]),
            valu("v_cmp_nlt_f32", "s[56:57]", sLO, vT[1]),
            valu("v_cmp_ngt_f32", "vcc", sHI, vT[0]),
            salu("s_or_b64", "vcc", "vcc", "s[56:57]")]


def a_phase():
    S = Sched()
    qk = [[0] * 3 for _ in range(16)]
    pv = [[0] * 3 for _ in range(16)]

    def QK(t, T):
        qk[t][T] = S.n()
        for qs in range(2):
            for kt in range(2):
                s = ("v", sreg(2 * T + qs) + 4 * kt)
                for ks in range(4):
                    S.add(mfma(16, s, ("a", kf(kt, ks)), ("v", qf(2 * T + qs, ks)), None if ks == 0 else s))

    def PV(t, T):
        pv[t][T] = S.n()
        sums = []
        for qs in range(2):
            l = ("v", lacc(2 * T + qs))
            sums.append(mfma(16, l, ("v", ONES), ("v", sreg(2 * T + qs)), None if t == 0 else l))
        if t == 15:
            for m in sums:
                S.add(m)
        for dt in range(8):
            for qs in range(2):
                o = ("a", oacc(2 * T + qs, dt))
                S.add(mfma(16, o, ("a", vf(dt)), ("v", sreg(2 * T + qs)), None if t == 0 else o))
        if t < 15:
            for m in sums:
                S.add(m)

    for t in range(16):
        QK(t, 0)
        if t:
            PV(t - 1, 1)
        QK(t, 1)
        if t:
            PV(t - 1, 2)
        QK(t, 2)
        PV(t, 0)
    PV(15, 1)
    PV(15, 2)
    bar = {}
    kw, vw = Win(kA, KWANT[0]), Win(vA, VWANT[15])
    for t in range(16):
        g0 = pv[t - 1][2] if t else qk[0][1]
        bar[10 + t] = g0 - 1
        S.put(g0 - 1, *bar_seq(tags_for(10 + t), 12 + t))
        for n, m in enumerate(vw.move(VWANT[t])):
            S.put(g0 - 14 + 3 * (n // 2), m)
        for dt in range(8):
            for tt in range(2):
                S.put(g0 + 4 * dt + 1 + 2 * tt,
                      ds_read("ds_read_b64_tr_b16", ("a", vf(dt) + 2 * tt), 2, vA[dt], U[("V", t)]["addr"] - VWANT[t] + tt * 4096))
        if t < 15:
            for n, m in enumerate(kw.move(KWANT[t + 1])):
                S.put(qk[t][0] + 9 + 3 * (n // 2), m)
            for j in range(8):
                S.put(qk[t][2] + [8, 10, 12, 14, 17, 19, 21, 23][j], k_read(t + 1, j))
    bar[26] = pv[15][1] - 1
    S.put(bar[26], *bar_seq(tags_for(26), 28))
    fr = first_reads(0)
    for n, r in enumerate(fr[:10]):
        S.put(pv[15][1] + [1, 3, 5, 7, 9, 11, 13, 15, 16, 17][n], r)
    for n, r in enumerate(fr[10:]):
        S.put(pv[15][2] + 3 + 2 * n, r)
    for n in range(10, 27):
        groups = epoch_groups(n)
        nd = sum(len(g[1]) for g in groups)
        if n == 10:
            cand = [2 * x for x in range(8)]
            lo = -1
        else:
            lo = bar[n - 1] + 1
            if n == 11 or n == 26 or OPT["uni"]:
                a = lo + 5
            else:
                a = qk[n - 10][0] + 1 if nd <= 8 else pv[n - 11][0] + 6
            b = bar[n] - 1
            cand = []
            for x in range(nd):
                g = a + (b - a) * x // nd
                while any(i.kind in MEMK for i in S.fixed.get(g, [])) or g in cand:
                    g += 1
                cand.append(g)
            assert not cand or cand[-1] < bar[n]
        place_dmas(S, groups, cand, lo)
    S.put(pv[15][0] + 2, salu("s_add_u32", sKV, sKV, 262144))
    g = bar[OPT["flagbar"]] + 2
    S.put(g, valu("v_mov_b32", f"v{EPI}", 1), valu("v_mov_b32", f"v{EPI + 1}", sIT))
    S.put(g + 4, atomic_add(f"v{EPI}", sFB))
    S.put(g + 8, atomic_add(f"v{EPI + 1}", sFG))
    g = qk[12][0]
    S.put(g + 1, scmp("s_cmp_eq_u32", sIT, 1), salu("s_cselect_b32", sE, sFB, "0x1000"))
    S.put(g + 3, poll_load(vPOLL[1], sE))
    g = qk[13][0]
    S.put(g + 1, salu("s_lshl_b32", sWANT, sIT, 8), valu("v_readfirstlane_b32", sQ, vPOLL[1]))
    S.put(g + 4, scmp("s_cmp_lt_u32", sQ, sWANT), raw("s_cbranch_scc1 L_spin3", "branch", rd=["scc"]), label("L_spin3_back"))
    g = qk[15][1]
    S.put(g + 1, scmp("s_cmp_eq_u32", sIT, 1), salu("s_cselect_b32", sE, sFG, "0x1000"))
    S.put(g + 3, poll_load(vPOLL[0], sE))
    if OPT["codepf2"]:
        g = qk[OPT["codepf2"]][0] - 6
        S.put(g - 2, salu("s_mul_i32", sJ, sIT, "L_out-L_q2"))
        S.put(g - 1, salu("s_add_u32", sJ, sJ, "L_q2-L_pc"))
        S.put(g, salu("s_add_u32", sJ, sJ, sCP))
        S.put(g + 1, salu("s_min_u32", sJ, sJ, "L_endcode-L_pc-256"))
        S.put(g + 2, valu("v_and_b32", f"v{EPI + 2}", 16, vL16), valu("v_lshlrev_b32", f"v{EPI + 2}", 3, f"v{EPI + 2}"))
        S.put(g + 3, valu("v_add_u32", f"v{EPI + 2}", sJ, f"v{EPI + 2}"))
        S.put(g + 5, Ins(f"global_load_dword v{EPI + 3}, v{EPI + 2}, s[96:97]", "vld", rd=[f"v{EPI + 2}", "s96", "s97"], wr=[f"v{EPI + 3}"]))
    for T in (1, 2):
        c = [(x, -1, None) for p, qs, x in conv_items(T, range(4))]
        c[-1] = (c[-1][0], -1, qk[0][T] - 1)
        S.stream(c)
    S.stream([(x, pv[15][2] + 4, None) for x in lcheck()])
    units = []
    for t in range(16):
        for qt in range(6):
            s = sreg(qt)
            T, qs = qt >> 1, qt & 1
            dl = pv[t][T] + qs - 2
            units.append(dict(e=qk[t][T] + 8 * qs + 7 + 2,
                              exps=[valu("v_exp_f32", f"v{s + r}", f"v{s + r}") for r in range(8)],
                              cvts=[(valu("v_cvt_pk_bf16_f32", f"v{s + r}", f"v{s + 2 * r}", f"v{s + 2 * r + 1}"), 2 * r + 2, dl) for r in range(4)]))
    S.packers.append(SoftmaxPacker(units))
    return S.finish(lead=[k_read(0, j) for j in range(8)], report=OPT["report"])


def slow_path():
    o = [label("L_slow"), drain(), nop(16)]
    KF = [EPI + 4 * k for k in range(4)]
    VFR = 56
    vM = [f"v{120 + q}" for q in range(6)]
    vKo, vVo, vt, vu = "v60", "v61", "v62", "v63"
    o += [valu("v_lshrrev_b32", vt, 4, vL16), valu("v_and_b32", vu, 15, vt), valu("v_lshrrev_b32", vt, 4, vt),
          valu("v_lshlrev_b32", vKo, 8, vu), valu("v_lshl_add_u32", vKo, vt, 4, vKo),
          valu("v_lshlrev_b32", vVo, 10, vt), valu("v_lshl_add_u32", vVo, vu, 1, vVo)]
    o += [salu("s_sub_u32", "s58", sKV, 262144)]
    o += [valu("v_mov_b32", m, "0xff800000") for m in vM]

    def scores():
        r = []
        for kt in range(2):
            r += [salu("s_add_u32", "s61", "s59", kt * 4096)]
            r += [vload(("v", KF[ks]), 4, vKo, S_K, "s61", 64 * ks) for ks in range(4)] + [drain()]
            for qt in range(6):
                s = ("v", sreg(qt) + 4 * kt)
                r += [mfma(16, s, ("v", KF[ks]), ("v", qf(qt, ks)), None if ks == 0 else s) for ks in range(4)]
            r += [nop(16)]
        return r
    o += [salu("s_mov_b32", "s59", "s58"), salu("s_mov_b32", "s60", 16), label("L_slow1")] + scores()
    for qt in range(6):
        o += [valu("v_max3_f32", vM[qt], vM[qt], f"v{sreg(qt) + r}", f"v{sreg(qt) + r + 1}") for r in range(0, 8, 2)]
    o += [salu("s_add_u32", "s59", "s59", 8192), salu("s_sub_u32", "s60", "s60", 1), scmp("s_cmp_lg_u32", "s60", 0),
          raw("s_cbranch_scc1 L_slow1", "branch", rd=["scc"])]
    for qt in range(6):
        for op in ("v_permlane32_swap_b32", "v_permlane16_swap_b32"):
            o += [valu("v_mov_b32", vt, vM[qt]), nop(2), perm(op, vt, vM[qt]), valu("v_max_f32", vM[qt], vM[qt], vt)]
        o += [valu("v_mov_b32", f"v{lacc(qt) + r}", 0) for r in range(4)]
    o += [valu("v_accvgpr_write_b32", f"a{r}", 0) for r in range(192)]
    o += [salu("s_mov_b32", "s59", "s58"), salu("s_mov_b32", "s60", 16), label("L_slow2")] + scores()
    for qt in range(6):
        s = sreg(qt)
        o += [valu("v_sub_f32", f"v{s + r}", f"v{s + r}", vM[qt]) for r in range(8)]
        o += [valu("v_exp_f32", f"v{s + r}", f"v{s + r}") for r in range(8)]
        o += [valu("v_cvt_pk_bf16_f32", f"v{s + r}", f"v{s + 2 * r}", f"v{s + 2 * r + 1}") for r in range(4)]
    o += [salu("s_add_u32", "s63", "s59", 4096)]
    for dt in range(8):
        for j in range(8):
            o += [vload(("v", 184 + j), 1, vVo, S_V, "s63" if j >= 4 else "s59", (j & 3) * 256 + 32 * dt, op="buffer_load_ushort")]
        o += [drain()]
        o += [valu("v_lshl_or_b32", f"v{VFR + r}", f"v{185 + 2 * r}", 16, f"v{184 + 2 * r}") for r in range(4)]
        o += [mfma(16, ("a", oacc(qt, dt)), ("v", VFR), ("v", sreg(qt)), ("a", oacc(qt, dt))) for qt in range(6)]
        o += [nop(8)]
    o += [mfma(16, ("v", lacc(qt)), ("v", ONES), ("v", sreg(qt)), ("v", lacc(qt))) for qt in range(6)] + [nop(16)]
    o += [salu("s_add_u32", "s59", "s59", 8192), salu("s_sub_u32", "s60", "s60", 1), scmp("s_cmp_lg_u32", "s60", 0),
          raw("s_cbranch_scc1 L_slow2", "branch", rd=["scc"])]
    o += [nop(16), drain(), raw("s_branch L_back", "branch")]
    return o


def srd(base, lo, hi, nbytes):
    return [salu("s_mov_b32", f"s{base}", lo), salu("s_and_b32", f"s{base + 1}", hi, "0xffff"),
            salu("s_mov_b32", f"s{base + 2}", nbytes), salu("s_mov_b32", f"s{base + 3}", "0x20000")]


def decode_wg():
    return [salu("s_and_b32", "s3", "s2", 7), salu("s_lshr_b32", "s4", "s2", 6), salu("s_lshl_b32", "s3", "s3", 2),
            salu("s_add_u32", "s3", "s3", "s4"), salu("s_lshr_b32", "s4", "s2", 3), salu("s_and_b32", "s4", "s4", 7),
            salu("s_lshr_b32", "s5", "s3", 4), salu("s_and_b32", "s6", "s3", 15)]


def prologue():
    o = [scmp("s_cmp_ge_u32", "s2", 256), raw("s_cbranch_scc1 L_end", "branch", rd=["scc"])]
    o += decode_wg()
    o += [salu("s_mul_i32", "s7", "s5", 40), salu("s_add_u32", "s68", "s0", "s7"), salu("s_addc_u32", "s69", "s1", 0),
          raw("s_load_dwordx8 s[56:63], s[68:69], 0", wr=regs("s", 56, 8)),
          raw("s_load_dwordx2 s[94:95], s[68:69], 32", wr=["s94", "s95"]),
          raw("s_load_dwordx4 s[88:91], s[0:1], 88", wr=regs("s", 88, 4)),
          raw("s_load_dwordx2 s[92:93], s[0:1], 80", wr=["s92", "s93"])]
    i, a, b, c = "v1", "v2", "v3", "v4"
    o += [valu("v_lshrrev_b32", a, 6, "v0"), valu("v_and_b32", i, 63, "v0"),
          valu("v_readfirstlane_b32", sWAVE, a), valu("v_lshlrev_b32", vL16, 4, i)]
    o += [valu("v_lshrrev_b32", a, 4, i), valu("v_and_b32", b, 7, i), valu("v_lshrrev_b32", "v5", 3, i),
          valu("v_and_b32", c, 1, a), valu("v_lshlrev_b32", c, 1, c), valu("v_xor_b32", c, c, b), valu("v_lshlrev_b32", c, 4, c),
          valu("v_lshl_add_u32", vW[0], "v5", 13, c),
          valu("v_xor_b32", vW[1], 64, vW[0]), valu("v_add_u32", vW[1], 64512, vW[1]),
          valu("v_add_u32", vW[2], 2 * 64512, vW[0]), valu("v_add_u32", vW[3], 2 * 64512, vW[1])]
    o += [valu("v_xor_b32", c, a, b), valu("v_lshlrev_b32", c, 4, c), valu("v_mul_u32_u24", "v6", 1280, "v5"),
          valu("v_add_u32", vX[0], "v6", c),
          valu("v_xor_b32", vX[1], 64, vX[0]), valu("v_add_u32", vX[1], 9216, vX[1]),
          valu("v_add_u32", vX[2], 2 * 9216, vX[0]), valu("v_add_u32", vX[3], 2 * 9216, vX[1])]
    o += [salu("s_lshr_b32", "s70", sWAVE, 1), salu("s_and_b32", "s71", sWAVE, 1),
          salu("s_lshl_b32", sW4K, sWAVE, 12), salu("s_mul_i32", sW6K, sWAVE, 6144),
          salu("s_lshl_b32", "s7", "s4", 2), salu("s_add_u32", "s7", "s7", "s70"),
          salu("s_lshl_b32", sWQ, "s71", 18), salu("s_lshl_b32", sT0, "s7", 8), salu("s_add_u32", sWQ, sWQ, sT0),
          salu("s_mul_i32", sX, "s6", 245760), salu("s_mul_i32", sT0, sWAVE, 61440), salu("s_add_u32", sX, sX, sT0)]
    o += [raw("s_waitcnt lgkmcnt(0)", "drainlg")]
    o += srd(S_X, "s56", "s57", 3932160) + srd(S_WQ, "s62", "s63", 5242880)
    o += set_pf_proj()
    for k in [("W", 0, 0), ("X", 0), ("W", 0, 1), ("W", 1, 0), ("X", 1), ("W", 1, 1)]:
        for pre, ds in unit_dmas(k):
            o += pre[::-1] + ds
    if OPT["warmw"]:
        o += [salu("s_mul_i32", "s68", "s6", 40 * 8192), salu("s_lshl_b32", "s69", "s4", 10), salu("s_add_u32", "s68", "s68", "s69"),
              salu("s_mul_i32", "s69", sWAVE, 10 * 8192), salu("s_add_u32", "s68", "s68", "s69"),
              valu("v_lshlrev_b32", b, 7, b), valu("v_lshl_add_u32", "v6", "v5", 13, b), valu("v_and_b32", c, 1, "v5"),
              valu("v_lshl_add_u32", c, c, 13, b), salu("s_add_u32", "s69", "s68", 8 * 8192)]
        o += [vload(("v", 254), 1, "v6", S_WQ, "s68", 0), vload(("v", 255), 1, c, S_WQ, "s69", 0)]
    if OPT["codepf"]:
        o += [raw("s_getpc_b64 s[96:97]", wr=["s96", "s97"]), label("L_pc"), salu("s_lshr_b32", "s68", "s2", 3), salu("s_lshl_b32", "s68", "s68", 2),
              salu("s_add_u32", "s68", "s68", sWAVE), salu("s_lshl_b32", sCP, "s68", 8), salu("s_lshl_b32", "s68", "s68", 9),
              valu("v_and_b32", c, 3, i), valu("v_lshlrev_b32", c, 7, c), valu("v_add_u32", c, "s68", c),
              Ins("global_load_dword v253, v4, s[96:97]", "vld", rd=["v4", "s96", "s97"], wr=["v253"])]
    o += srd(S_WO, "s94", "s95", 5242880)
    o += [salu("s_lshl_b32", "s68", "s6", 3), salu("s_add_u32", "s68", "s68", "s4"),
          salu("s_mul_i32", sWOS, "s68", 40960), salu("s_mul_i32", sT0, sWAVE, 10240), salu("s_add_u32", sWOS, sWOS, sT0)]
    for pre, ds in unit_dmas(("J", 0)):
        o += pre[::-1] + ds
    o += srd(S_K, "s58", "s59", 67108864) + srd(S_V, "s60", "s61", 67108864)
    o += srd(S_OST, "s90", "s91", WS_WOT) + srd(S_FLG, "s88", "s89", 256)
    o += [salu("s_add_u32", "s68", "s90", WS_WOT), salu("s_addc_u32", "s69", "s91", 0)] + srd(S_WOT, "s68", "s69", 2 * WOT_BLK)
    o += [salu("s_lshl_b32", sFG, "s3", 2), salu("s_lshl_b32", sFB, "s5", 6), salu("s_add_u32", sFB, sFB, 128),
          valu("v_cmp_eq_u32", "vcc", 0, "v0"), valu("v_mov_b32", "v10", "0x1000"), valu("v_mov_b32", f"v{ONES}", "0x3f803f80"),
          valu("v_cndmask_b32", vFLG, "v10", 0, "vcc")]
    o += [valu("v_mov_b32", f"v{ONES + r}", f"v{ONES}") for r in range(1, 4)]
    if OPT["prof"]:
        o += [salu("s_add_u32", "s68", "s90", WS_PROF), salu("s_addc_u32", "s69", "s91", 0)] + srd(S_PROF, "s68", "s69", 1 << 20)
        o += [salu("s_lshl_b32", sPROF, "s2", 2), salu("s_add_u32", sPROF, sPROF, sWAVE), salu("s_lshl_b32", sPROF, sPROF, 10)]
        o += prof_stamp(0, 8)
    o += [salu("s_lshl_b32", sKV, "s6", 5), salu("s_add_u32", sKV, sKV, "s7"), salu("s_lshl_b32", sKV, sKV, 17),
          salu("s_lshl_b32", sT0, "s71", 12),
          salu("s_lshr_b32", sROT, "s2", 3), salu("s_lshl_b32", sT1, "s2", 1), salu("s_add_u32", sROT, sROT, sT1),
          salu("s_and_b32", sROT, sROT, 15), salu("s_lshl_b32", sROT, sROT, 13), salu("s_add_u32", sROT, sROT, sT0)]
    o += [salu("s_mul_i32", sO, "s3", O_GRP), salu("s_mul_i32", sT0, "s71", 786432), salu("s_add_u32", sO, sO, sT0),
          salu("s_lshr_b32", sT0, "s4", 1), salu("s_mul_i32", sT0, sT0, 16 * 12288), salu("s_add_u32", sO, sO, sT0),
          salu("s_and_b32", sT0, "s4", 1), salu("s_mul_i32", sT0, sT0, 4 * 12288), salu("s_add_u32", sO, sO, sT0),
          salu("s_mul_i32", sT0, "s70", 2 * 12288), salu("s_add_u32", sO, sO, sT0)]
    o += [salu("s_lshl_b32", "s68", "s6", 3), salu("s_add_u32", "s68", "s68", "s4"),
          salu("s_lshr_b32", sT0, "s68", 1), salu("s_and_b32", sT1, sT0, "0x33"),
          salu("s_and_b32", "s69", sT0, 4), salu("s_lshl_b32", "s69", "s69", 1), salu("s_or_b32", sT1, sT1, "s69"),
          salu("s_and_b32", "s69", sT0, 8), salu("s_lshr_b32", "s69", "s69", 1), salu("s_or_b32", sT1, sT1, "s69"),
          salu("s_mul_i32", sWOD, sT1, 20480),
          salu("s_and_b32", sT0, "s68", 1), salu("s_lshl_b32", sT0, sT0, 11), salu("s_add_u32", sWOD, sWOD, sT0),
          salu("s_mul_i32", sT0, "s5", WOT_BLK), salu("s_add_u32", sWOD, sWOD, sT0),
          salu("s_lshl_b32", sT0, "s70", 12), salu("s_add_u32", sWOD, sWOD, sT0),
          salu("s_lshl_b32", sT0, "s71", 10), salu("s_add_u32", sWOD, sWOD, sT0),
          salu("s_mul_i32", sT0, "s70", 1310720 - 20480), salu("s_add_u32", sWOX, sWOD, sT0)]
    cbits = struct.unpack("<I", struct.pack("<f", math.log2(math.e) / math.sqrt(128.0)))[0]
    o += [salu("s_mov_b32", sC, "0x%x" % cbits), salu("s_mov_b32", sHI, "0x4e800000"), salu("s_mov_b32", sLO, "0x30800000"),
          salu("s_mov_b32", sIT, 0)]
    o += [valu("v_lshrrev_b32", a, 4, i), valu("v_and_b32", b, 15, i),
          valu("v_xor_b32", c, a, b), valu("v_lshlrev_b32", c, 4, c), valu("v_lshl_add_u32", vK[0], a, 8, c)]
    o += [valu("v_xor_b32", vK[m], m << 6, vK[0]) for m in range(1, 4)]
    o += [valu("v_lshlrev_b32", "v5", 1, a), valu("v_xor_b32", "v5", "v5", b), valu("v_lshlrev_b32", "v5", 4, "v5"),
          valu("v_lshl_add_u32", vV[0], a, 8, "v5"), valu("v_xor_b32", vV[1], 128, vV[0])]
    o += [salu("s_lshl_b32", "s69", "s70", 13), salu("s_mul_i32", "s68", "s71", 12288), salu("s_add_u32", "s68", "s68", XS[0]),
          valu("v_bfe_u32", "v8", i, 2, 2), valu("v_and_b32", "v9", 3, i)]
    o += [valu("v_lshl_add_u32", c, b, 8, c), valu("v_add_u32", c, KWANT[15], c), valu("v_add_u32", kA[0], "s69", c)]
    o += [valu("v_xor_b32", kA[j], j << 6, kA[0]) for j in range(1, 4)]
    o += [valu("v_lshl_add_u32", "v5", a, 2, "v8"), valu("v_lshlrev_b32", c, 8, "v5"), valu("v_and_b32", "v6", 7, "v5"),
          valu("v_lshl_add_u32", c, "v6", 5, c), valu("v_lshl_add_u32", c, "v9", 3, c),
          valu("v_add_u32", c, VWANT[15], c), valu("v_add_u32", vA[0], "s69", c)]
    o += [valu("v_xor_b32", vA[d], d << 5, vA[0]) for d in range(1, 8)]
    o += [valu("v_lshl_add_u32", c, a, 3, "v8"), valu("v_lshlrev_b32", c, 7, c),
          valu("v_and_b32", "v5", 2, "v8"), valu("v_and_b32", "v7", 1, a), valu("v_lshl_add_u32", "v5", "v7", 2, "v5"),
          valu("v_xor_b32", "v5", "v5", "v9"), valu("v_lshl_add_u32", c, "v5", 4, c), valu("v_add_u32", wA[0], "s69", c),
          valu("v_xor_b32", wA[1], 64, wA[0])]
    o += [valu("v_lshrrev_b32", "v5", 1, b), valu("v_xor_b32", "v5", "v5", a),
          valu("v_lshlrev_b32", "v5", 4, "v5"), valu("v_lshl_add_u32", c, b, 7, "v5"),
          valu("v_xor_b32", "v5", 64, c), valu("v_add_u32", xA[0], "s68", c), valu("v_add_u32", xA[1], "s68", "v5")]
    o += [salu("s_lshl_b32", "s68", "s70", 2), salu("s_lshl_b32", "s69", "s71", 3), salu("s_add_u32", "s69", "s69", WOJ_ADDR),
          valu("v_lshrrev_b32", c, 1, a), valu("v_lshlrev_b32", c, 12, c), valu("v_lshl_add_u32", c, "v6", 7, c),
          valu("v_add_u32", c, "s69", c), valu("v_add_u32", "v5", "s68", "v9"), valu("v_lshrrev_b32", "v6", 1, "v6"),
          valu("v_xor_b32", "v5", "v5", "v6"), valu("v_lshl_add_u32", vJ, "v5", 4, c)]
    o += [needvm([("W", 0, 0), ("X", 0)] if OPT["early"] else [k for k, u in U.items() if u["N"] == 0]), barrier()] + first_reads(0)
    return o


def acc2(pi, xy, qi):
    return ((pi * 6 + qi) * 2 + xy) * 4


def a2(st, pi, ks, xy):
    if st == 0:
        return (240 if pi == 0 else 48 + 16 * pi) + 8 * ks + 4 * xy
    return (48 if pi == 0 else 112 + 16 * pi) + 8 * ks + 4 * xy


def b2(st, qi, ks):
    return (192 if st == 0 else 0) + 8 * qi + 4 * ks


V2A = ["v%d" % i for i in range(240, 245)]
V2B = ["v245", "v246", "v247", "v248", "v249", "v253"]
V2L, V2W, V2P, V2X = "v252", "v254", "v255", "v251"
S2A, S2B, S2OUT = S_WQ, 12, 8


def k2_loads_A(st, pi, soff=None):
    return [vload(("a", a2(st, pi, ks, xy)), 4, V2A[pi], S2A, soff or sA2, ks * 2048 + xy * 1024, flags=SC1) for xy in range(2) for ks in range(2)]


def k2_loads_B(st, qi):
    return [vload(("a", b2(st, qi, ks)), 4, V2B[qi], S2B, sB2, ks * 1024, flags=SC1) for ks in range(2)]


def k2_lds_A(st, pi):
    out = []
    for xy in range(2):
        for ks in range(2):
            r = [r for r, (s_, p_, off) in PF2.items() if (s_, p_) == (st, pi) and (r not in ("s87", "s99") or off == 2048 * ks)][0]
            key = [k for k, rs in sPF.items() if r in rs][0]
            if key[0] == "W":
                out.append(ds_read("ds_read_b128", ("a", a2(st, pi, ks, xy)), 4, V2W, U[key]["addr"] + ks * 2048 + xy * 1024))
            elif r == sPF[key][0]:
                out.append(ds_read("ds_read_b128", ("a", a2(st, pi, ks, xy)), 4, V2X, U[key]["addr"] - XS[0] + ks * 2048 + xy * 1024))
            else:
                out.append(ds_read("ds_read_b128", ("a", a2(st, pi, ks, xy)), 4, V2X, U[key]["addr"] - XS[0] + 4096 + xy * 1024))
    return out


def k2_steps(S, first, loadA, loadB, pend, check=False):
    for st in range(2):
        q0 = S.n()
        for pi in range(5):
            for xy in range(2):
                for qi in range(6):
                    for ks in range(2):
                        acc = ("v", acc2(pi, xy, qi))
                        S.add(mfma(16, acc, ("a", a2(st, pi, ks, xy)), ("a", b2(st, qi, ks)),
                                   None if (first and st == 0 and ks == 0) else acc))
        pos = [int(0.5 + 3.75 * n) for n in range(32)]
        if pend[st]:
            ls = k2_loads_A(1 - st, 4)
            S.put(q0 + pos[0], ls[2])
            S.put(q0 + pos[1], ls[3])
            S.put(q0 + pos[1] + 1, salu("s_add_u32", sA2, sA2, 20480))
        if first and st == 0:
            for n, l in enumerate([l for pi in range(2, 5) for l in k2_loads_A(1, pi, sPL)]):
                S.put(q0 + pos[n], l)
            for n, r in enumerate(k2_lds_A(1, 0) + k2_lds_A(1, 1)):
                S.put(q0 + pos[n] + 2, r)
        elif loadB[st]:
            for n, l in enumerate([l for qi in range(6) for l in k2_loads_B(1 - st, qi)]):
                S.put(q0 + pos[2 + n], l)
            S.put(q0 + pos[13] + 1, salu("s_add_u32", sB2, sB2, 12288))
        if loadA[st]:
            n = 14
            for pi in range(5):
                ls = k2_loads_A(st, pi)
                for x, l in enumerate(ls if pi < 4 else ls[:2]):
                    assert pos[n] >= 24 * pi + 11 + 12 * (x >> 1), (pi, x, pos[n])
                    S.put(q0 + pos[n], l)
                    n += 1
        if first and st == 1:
            S.put(q0 + 54, needvm(["ost"]), barrier())
            S.put(q0 + 55, valu("v_mov_b32", V2P, "0x100"))
            S.put(q0 + 58, atomic_add(V2P, sFG))
        if check and st == 0:
            S.put(q0 + 1, scmp("s_cmp_eq_u32", sCNT, 4), salu("s_cselect_b32", sWANT, 8, 0), salu("s_cselect_b32", sPL, sFG, "0x1000"))
            S.put(q0 + 2, poll_load(V2P, sPL))
        if check and st == 1:
            S.put(q0 + 1, valu("v_readfirstlane_b32", sQ, V2P))
            S.put(q0 + 5, salu("s_lshr_b32", sQ, sQ, 8), scmp("s_cmp_lt_u32", sQ, sWANT),
                  raw("s_cbranch_scc1 L_spin2", "branch", rd=["scc"]), label("L_spin2_back"))


def spin(name, back, dsts, soffs, conds):
    o = [label(name), salu("s_mov_b32", sSPIN, 0), label(name + "_loop"), raw("s_sleep 8")]
    o += [poll_load(d, so) for d, so in zip(dsts, soffs)]
    o += [drain(), salu("s_add_u32", sSPIN, sSPIN, 1), scmp("s_cmp_gt_u32", sSPIN, "0x20000"),
          raw(f"s_cbranch_scc1 {back}", "branch", rd=["scc"])]
    for d, (sh, msk, want) in zip(dsts, conds):
        o += [valu("v_readfirstlane_b32", sQ, d), nop(4)]
        if sh:
            o += [salu("s_lshr_b32", sQ, sQ, sh)]
        if msk:
            o += [salu("s_and_b32", sQ, sQ, msk)]
        o += [scmp("s_cmp_lt_u32", sQ, want), raw(f"s_cbranch_scc1 {name}_loop", "branch", rd=["scc"])]
    o += [raw(f"s_branch {back}", "branch")]
    return o


def phase2():
    o = [valu("v_readfirstlane_b32", sQ, vPOLL[0]), valu("v_mov_b32", V2L, vL16),
         salu("s_lshr_b32", "s60", "s4", 2), salu("s_mul_i32", "s7", "s3", O_GRP), salu("s_mul_i32", sPL, "s60", 786432),
         salu("s_add_u32", "s7", "s7", sPL),
         salu("s_and_b32", sQ, sQ, "0xff"),
         scmp("s_cmp_lt_u32", sQ, 8), raw("s_cbranch_scc1 L_spin1", "branch", rd=["scc"]), label("L_spin1_back")]
    o += [salu("s_add_u32", "s58", "s90", "s7"), salu("s_addc_u32", "s59", "s91", 0)] + srd(S2B, "s58", "s59", 786432)
    o += [salu("s_and_b32", "s61", "s4", 3), salu("s_and_b32", "s32", sWAVE, 1), salu("s_lshr_b32", "s33", sWAVE, 1),
          salu("s_mul_i32", sB2, sWAVE, 16 * 12288)]
    o += [valu("v_add_u32", V2W, sW4K, V2L), salu("s_add_u32", "s7", sW6K, XS[0]), valu("v_add_u32", "v22", "s7", V2L)]
    o += [scmp("s_cmp_eq_u32", "s33", 0)]
    o += [salu("s_cselect_b32", f"s{47 + q}", q, 2 - q) for q in range(3)]
    o += [salu("s_cselect_b32", f"s{36 + pi}", pi, 4 - pi) for pi in range(5)]
    o += [salu("s_mul_i32", "s34", "s32", 3), salu("s_sub_u32", "s35", 3, "s34")]
    for q in range(3):
        o += [salu("s_add_u32", f"s{50 + q}", f"s{47 + q}", "s35"), salu("s_add_u32", f"s{47 + q}", f"s{47 + q}", "s34")]
    o += [valu("v_mov_b32", f"v{16 + q}", vR[q]) for q in range(6)]
    for qi in range(6):
        o += [salu("s_lshl_b32", "s7", f"s{47 + qi}", 11), valu("v_add_u32", V2B[qi], "s7", V2L)]
    for qi in range(6):
        o += k2_loads_B(0, qi)
    o += [salu("s_add_u32", sB2, sB2, 12288)]
    save = list(vR)
    vR[:] = [f"v{16 + q}" for q in range(6)]
    eg = epilogue_groups(0, lambda n: 96 + 4 * n if n < 8 else None)
    vR[:] = save
    b1 = [l for qi in range(6) for l in k2_loads_B(1, qi)]
    mem = {8: b1[0:3], 9: b1[3:6], 10: b1[6:9], 11: b1[9:12]}
    sts = [g[1] + [g[2]] for g in eg]
    for n in range(12, 16):
        mem[n] = sts[2 * (n - 12)] + sts[2 * (n - 12) + 1]
    for n, (v, pre, st, imm) in enumerate(eg):
        m = mem.get(n, [])
        k = (len(m) + 2) // 3
        o += v[:6] + m[:k] + v[6:12] + m[k:2 * k] + v[12:18] + m[2 * k:] + v[18:]
        if n >= 8 and not 12 <= n < 16:
            o += ([salu("s_add_u32", sJ, sO, ((n >> 2) & 1) * 12288 + (n >> 3) * 4096)] if pre else []) + \
                 [vstore(("v", 4 * (n % 3)), 4, vL16, S_OST, sJ, imm, tag="ost", flags=SC1)]
        elif n >= 8:
            o += ([salu("s_add_u32", sJ, sO, ((n >> 2) & 1) * 12288 + (n >> 3) * 4096)] if pre else []) + \
                 [vstore(("v", 4 * (n % 3)), 4, vL16, S_OST, sJ, imm, tag="ost", flags=SC1)]
        if n == 15:
            o += [needvm(list(sPF)), valu("v_mov_b32", V2X, "v22")]
        if 16 <= n < 21:
            o += k2_lds_A(0, n - 16)
    o += [salu("s_add_u32", sB2, sB2, 12288)]
    o += prof_stamp(1, 30)
    if OPT["prof"]:
        o += [valu("v_mov_b32", V2X, "v22")]
    for pi in range(5):
        o += [salu("s_lshl_b32", "s7", f"s{36 + pi}", 12), valu("v_add_u32", V2A[pi], "s7", V2L)]
    o += [salu("s_mul_i32", sA2, sWAVE, 16 * 20480), salu("s_add_u32", sPL, sA2, 20480), salu("s_add_u32", sA2, sA2, 2 * 20480)]
    o += srd(S2OUT, "s92", "s93", 7864320)
    o += [salu("s_mul_i32", sOB, "s6", 192 * 2560), salu("s_mul_i32", "s7", "s60", 96 * 2560), salu("s_add_u32", sOB, sOB, "s7"),
          salu("s_mul_i32", "s7", "s5", 1280), salu("s_add_u32", sOB, sOB, "s7"),
          salu("s_mul_i32", "s7", "s61", 320), salu("s_add_u32", sOB, sOB, "s7"), salu("s_mov_b32", sCNT, 6)]
    S0 = Sched()
    k2_steps(S0, True, [True, True], [True, True], [False, True])
    S0.order_fixed()
    first = S0.build()
    S1 = Sched()
    k2_steps(S1, False, [True, True], [True, True], [True, True], check=True)
    if OPT["prof"]:
        S1.put(3, raw("s_memrealtime s[76:77]", wr=["s76", "s77"]), raw("s_waitcnt lgkmcnt(0)", "drainlg"),
               salu("s_mov_b32", "s101", "s100"), salu("s_mov_b32", "s100", "s99"), salu("s_mov_b32", "s99", "s98"),
               salu("s_mov_b32", "s98", "s97"), salu("s_mov_b32", "s97", "s96"), salu("s_mov_b32", "s96", "s76"))
    S1.put(237, salu("s_sub_u32", sCNT, sCNT, 1))
    S1.order_fixed()
    loop = [label("L_k2")] + S1.build() + [scmp("s_cmp_lg_u32", sCNT, 0), raw("s_cbranch_scc1 L_k2", "branch", rd=["scc"])]
    S2 = Sched()
    k2_steps(S2, False, [False, False], [True, False], [True, False])
    S2.order_fixed()
    last = S2.build()
    R1, R2, i, a, V2O = V2A[0], V2A[1], V2A[2], V2A[3], V2A[4]
    e = [salu("s_mul_i32", "s7", sWAVE, 30720), valu("v_add_u32", V2W, "s7", V2L), valu("v_lshrrev_b32", i, 4, V2L),
         valu("v_and_b32", a, 15, i), valu("v_mul_u32_u24", a, 2560, a), valu("v_lshrrev_b32", i, 4, i),
         valu("v_lshl_add_u32", V2O, i, 4, a)]
    sent = [(pi, xy, qi) for pi in range(5) for qi in range(3, 6) for xy in range(2)]
    for n, (pi, xy, qi) in enumerate(sent):
        e += [ds_write("ds_write_b128", V2W, ("v", acc2(pi, xy, qi)), 4, n * 1024)]
    e += [salu("s_xor_b32", sPL, sWAVE, 1), salu("s_sub_u32", sPL, sPL, sWAVE), salu("s_mul_i32", "s7", sPL, 30720),
          valu("v_add_u32", R1, "s7", V2W),
          salu("s_xor_b32", sPL, sWAVE, 3), salu("s_sub_u32", sPL, sPL, sWAVE), salu("s_mul_i32", "s7", sPL, 30720),
          valu("v_add_u32", R2, "s7", V2W)]
    e += [needlgkm0(), barrier()] + prof_stamp(8, 236)
    for n, (pi, xy, qi) in enumerate(sent):
        e += [ds_read("ds_read_b128", ("v", acc2(pi, xy, qi)), 4, R1, n * 1024)]
    for s in list(range(7, 15)) + list(range(7)):
        pi, q = divmod(s, 3)
        d, t = acc2(pi, 0, q), acc2(pi, 0, q + 3)
        e += [valu("v_add_f32", f"v{d + r}", f"v{d + r}", f"v{t + r}") for r in range(8)]
        if s == 14:
            e += [needlgkm0()]
            for s2 in range(7, 15):
                p2, q2 = divmod(s2, 3)
                for xy in range(2):
                    e += [ds_write("ds_write_b128", R1, ("v", acc2(p2, xy, q2)), 4, ((s2 - 7) * 2 + xy) * 1024)]
    e += [needlgkm0(), barrier()]
    for s in range(8):
        pi, q = divmod(s, 3)
        for xy in range(2):
            e += [ds_read("ds_read_b128", ("v", acc2(pi, xy, q + 3)), 4, R2, ((14 - s - 7) * 2 + xy) * 1024)]
    for s in range(8):
        pi, q = divmod(s, 3)
        d0, t0 = acc2(pi, 0, q), acc2(pi, 0, q + 3)
        e += [valu("v_add_f32", f"v{d0 + r}", f"v{d0 + r}", f"v{t0 + r}") for r in range(8)]
        e += [valu("v_cvt_pk_bf16_f32", f"v{d0 + r}", f"v{d0 + 2 * r}", f"v{d0 + 2 * r + 1}") for r in range(4)]
        e += [salu("s_mul_i32", "s7", f"s{47 + q}", 40960), salu("s_lshl_b32", sPL, f"s{36 + pi}", 6),
              salu("s_add_u32", "s7", "s7", sPL), salu("s_add_u32", sSO, "s7", sOB),
              vstore(("v", d0), 4, V2O, S2OUT, sSO, 0, flags=OPT["outf"])]
    e += prof_stamp(9, 236)
    if OPT["prof"]:
        for n in range(6):
            e += [valu("v_mov_b32", "v236", 1), valu("v_mov_b32", "v237", f"s{101 - n}"), vstore(("v", 236), 2, "v251", S_PROF, 0, 8 * (2 + n)), nop(4)]
    e += [label("L_end"), raw("s_endpgm")]
    sp1 = spin("L_spin1", "L_spin1_back", vPOLL[:1], [sFG], [(0, "0xff", 8)]) + spin("L_spin3", "L_spin3_back", vPOLL[1:], [sFB], [(0, 0, 256)])
    sp2 = spin("L_spin2", "L_spin2_back", [V2P], [sFG], [(8, 0, 8)])
    return o, first, loop, last, e, sp1, sp2


def kernel():
    pro = prologue()
    q1 = q_phase(False)
    att = [label("L_att")] + a_phase()
    att += [raw("s_cbranch_vccnz L_slow", "branch", rd=["vcc"]), label("L_back")]
    att += [valu("v_rcp_f32", vR[qt], f"v{lacc(qt)}") for qt in range(6)]
    att += prof_stamp(29)
    if OPT["prof"]:
        att += [salu("s_add_u32", sPROF, sPROF, 240)]
    att += [scmp("s_cmp_eq_u32", sIT, 1), raw("s_cbranch_scc1 L_out", "branch", rd=["scc"]), salu("s_mov_b32", sIT, 1)]
    q2 = [label("L_q2")] + q_phase(True) + [raw("s_branch L_att", "branch")]
    o, first, loop2, last, e, sp1, sp2 = phase2()
    o = [label("L_out")] + o
    slow = slow_path()
    parts = [pro, q1, att, q2, o, first, loop2, last, e, slow, sp1, sp2]
    waits = compute_waits([pro + q1 + att + q2 + att + o + first + loop2 + loop2 + loop2 + last + e, slow, sp1, sp2])
    done = {}
    P = [apply_waits(x, waits, done) for x in parts]
    pads = pad_hazards([P[0] + P[1] + P[2] + P[3] + P[2] + P[4] + P[5] + P[6] + P[6] + P[7] + P[8], P[9], P[10], P[11]])
    al = ".p2align 3\n"
    return (emit(P[0] + P[1], pads) + al + emit(P[2] + P[3], pads) + al + emit(P[4] + P[5], pads) + al +
            emit(P[6] + P[7] + P[8] + P[9] + P[10] + P[11], pads) + "L_endcode:\n")


def main():
    kn = NAME + "_kernel"
    s = open("cdna_kernels/" + NAME + ".s.ref").read().split("; Override launch")[0]
    s += "; @launch grid=(256,1,1) block=(256,1,1) lds=163840\n"
    s += '.amdgcn_target "amdgcn-amd-amdhsa--gfx950"\n.text\n'
    s += f".globl {kn}\n.p2align 8\n.type {kn},@function\n{kn}:\n" + kernel()
    s += f""".section .rodata,"a"
.p2align 6
.amdhsa_kernel {kn}
  .amdhsa_next_free_vgpr 512
  .amdhsa_next_free_sgpr 102
  .amdhsa_accum_offset 256
  .amdhsa_group_segment_fixed_size 0
  .amdhsa_kernarg_size 104
  .amdhsa_user_sgpr_count 2
  .amdhsa_user_sgpr_kernarg_segment_ptr 1
  .amdhsa_system_sgpr_workgroup_id_x 1
.end_amdhsa_kernel
"""
    open(sys.argv[1], "w").write(s)


main()
```

```python
import sys, math, struct
from fw3 import *

NAME = "concat_heads__mha_block_cached__mha_block_cached__near_ridge"
OPT = dict(outf=' sc1', redov=1, one1=1, warmj=0, early=1, uni=0, prof=0, report=False, stg=67, warmw=True, codepf=True, codepf2=14, pf='', pf0=1, pfn=3, flagbar=12, map=0)
for a in sys.argv[2:]:
    k, v = a.split("=")
    OPT[k] = type(OPT[k])(int(v)) if not isinstance(OPT[k], str) else v

KB = 1024
SC1 = " sc1"
O_GRP = 2 * 786432
WS_WOT = 50331648
WOT_BLK = 5242880
WS_PROF = 64 * 1024 * 1024

S_K, S_V, S_X, S_WQ, S_OST, S_WO, S_WOT = 8, 12, 16, 20, 24, 28, 32
sKV, sWQ, sX, sW4K, sW6K, sO, sIT, sT0, sT1, sC, sWAVE = ["s%d" % i for i in range(36, 47)]
sWOS, sWOD, sWOX, sW5K, sHI, sLO = ["s%d" % i for i in range(47, 53)]
sPROF, sE, sJ = "s53", "s54", "s55"
sROT, sFG, sFB, sCP = "s62", "s65", "s66", "s64"
sA2, sB2, sPL, sOB, sCNT, sSO, sQ, sSH, sWANT, sSPIN = "s28", "s29", "s30", "s31", "s67", "s68", "s69", "s70", "s71", "s94"
S_PROF, S_FLG = 72, 80
sPF = {("W", 0, 0): ["s84"], ("W", 0, 1): ["s85"], ("X", 0): ["s86", "s87"], ("X", 1): ["s98", "s99"], ("W", 1, 0): ["s100"], ("W", 1, 1): ["s101"]}
PF2 = {"s84": (0, 0, 0), "s85": (0, 1, 0), "s86": (0, 2, 0), "s98": (0, 3, 0), "s100": (0, 4, 0), "s101": (1, 0, 0),
       "s87": (1, 1, 0), "s99": (1, 1, 2048)}
vK = ["v%d" % i for i in range(192, 196)]
vV = ["v196", "v197"]
vW = ["v%d" % i for i in range(198, 202)]
vX = ["v%d" % i for i in range(202, 206)]
kA = ["v%d" % i for i in range(206, 210)]
vA = ["v%d" % i for i in range(210, 218)]
wA = ["v218", "v219"]
xA = ["v220", "v221"]
vJ, vL16 = "v222", "v223"
ONES = 224
EPI = 228
vR = ["v%d" % i for i in range(244, 250)]
vFLG = "v250"
vT = ["v252", "v253"]
vPOLL = ["v254", "v255"]

D = [i * 16 * KB for i in range(10)]
XS = [96 * KB, 120 * KB]
WOJ_ADDR = D[9]


def qacc(p, xy, qt):
    return 64 * (qt >> 1) + (2 * p + (qt & 1)) * 8 + 4 * xy


def qf(qt, p):
    return 64 * (qt >> 1) + (2 * p + (qt & 1)) * 4


def sreg(qt):
    return 64 * (qt >> 1) + 32 + 8 * (qt & 1)


def lacc(qt):
    return 64 * (qt >> 1) + 48 + 4 * (qt & 1)


ABUF = [192, 248]


def bx(qt, ks):
    return 200 + 8 * qt + 4 * ks


def kf(kt, ks):
    return 192 + 16 * kt + 4 * ks


def vf(dt):
    return 224 + 4 * dt


def oacc(qt, dt):
    return 32 * qt + 4 * dt


def build_units():
    U = {}
    for i in range(10):
        U[("X", i)] = dict(addr=XS[i % 2], size=24 * KB, N=i, I=i - 2)
        for u in range(2):
            U[("W", i, u)] = dict(addr=D[2 * (i % 3) + u], size=16 * KB, N=i, I=i - 2)
    U[("X", 0)]["I"] = -3
    U[("W", 0, 0)]["I"] = -3
    U[("W", 0, 1)]["I"] = -3
    U[("W", 1, 0)]["I"] = -1
    U[("W", 1, 1)]["I"] = -1
    pages = [9, 3, 2, 4, 5, 8, 1, 9, 0, 2, 3, 4, 6, 1, 5, 9, 0, 7, 3, 8, 2, 5, 1, 4, 0, 7, 3, 2, 8, 5, 9, 4]
    for u in range(32):
        key = ("K", u // 2) if u % 2 == 0 else ("V", u // 2)
        N = 10 + u // 2 + u % 2
        U[key] = dict(addr=D[pages[u]], size=16 * KB, N=N, I=N - 3)
    U[("J", 0)] = dict(addr=WOJ_ADDR, size=16 * KB, N=1, I=0)
    U[("J", 1)] = dict(addr=WOJ_ADDR, size=16 * KB, N=4, I=2)
    allu = [(k, u["addr"], u["addr"] + u["size"], u["N"] + 27 * r, u["I"] + 27 * r) for r in range(3) for k, u in U.items()]
    for a in allu:
        assert a[4] < a[3], a
        for b in allu:
            if a is not b and a[1] < b[2] and b[1] < a[2]:
                ra = a[3] - (a[0][0] == "X" and a[0][1] <= 7)
                rb = b[3] - (b[0][0] == "X" and b[0][1] <= 7)
                assert ra < b[4] or rb < a[4], (a, b)
    return U


U = build_units()
_alt = [0]


def next_st():
    _alt[0] ^= 1
    return [sT0, sT1][_alt[0]]


def jblocks(r, second):
    if second:
        return [8, 9] if r == 1 else []
    return range(4 * r, 4 * r + 4)


def unit_dmas(key, second=False):
    u = U[key]
    kind = key[0]
    if key in sPF:
        if kind == "W":
            return [([salu("s_add_u32", "m0", sW4K, u["addr"])], [dma(vW[m], S_WQ, sPF[key][0], 1024 * m, key, SC1) for m in range(4)])]
        return [([salu("s_add_u32", "m0", sW6K, u["addr"])], [dma(vX[m], S_X, sPF[key][0], 1024 * m, key, SC1) for m in range(4)]),
                ([salu("s_add_u32", "m0", sW6K, u["addr"] + 4096)], [dma(vX[m], S_X, sPF[key][1], 1024 * m, key, SC1) for m in range(2)])]
    sT = next_st()
    if kind in "KV":
        pre = [salu("s_add_u32", sT, sROT, key[1] * 8192), salu("s_and_b32", sT, sT, "0x1ffff"), salu("s_add_u32", sT, sT, sKV),
               salu("s_add_u32", "m0", sW4K, u["addr"])]
        if kind == "K":
            return [(pre, [dma(vK[m], S_K, sT, 1024 * m, key, " nt") for m in range(4)])]
        return [(pre, [dma(vV[m & 1], S_V, sT, 1024 * m, key, " nt") for m in range(4)])]
    if kind == "W":
        pre = [salu("s_add_u32", sT, sWQ, key[1] * 524288 + key[2] * 128), salu("s_add_u32", "m0", sW4K, u["addr"])]
        return [(pre, [dma(vW[m], S_WQ, sT, 1024 * m, key) for m in range(4)])]
    if kind == "X":
        pre = [salu("s_add_u32", sT, sX, key[1] * 128), salu("s_add_u32", "m0", sW6K, u["addr"])]
        g0 = (pre, [dma(vX[m], S_X, sT, 1024 * m, key) for m in range(4)])
        sT2 = next_st()
        pre2 = [salu("s_add_u32", sT2, sX, key[1] * 128 + 40960), salu("s_add_u32", "m0", sW6K, u["addr"] + 4096)]
        return [g0, (pre2, [dma(vX[m], S_X, sT2, 1024 * m, key) for m in range(2)])]
    gs = []
    for jj in jblocks(key[1], second):
        sTj = next_st()
        pre = [salu("s_add_u32", sTj, sWOS, jj * 128), salu("s_add_u32", "m0", sW4K, u["addr"] + (jj & 3) * 1024)]
        gs.append((pre, [dma(vX[0], S_WO, sTj, 0, key, " nt")]))
    return gs


def set_pf_proj():
    o = []
    for key, rs in sPF.items():
        if key[0] == "W":
            o += [salu("s_add_u32", rs[0], sWQ, key[1] * 524288 + key[2] * 128)]
        else:
            o += [salu("s_add_u32", rs[0], sX, key[1] * 128), salu("s_add_u32", rs[1], sX, key[1] * 128 + 40960)]
    return o


def set_pf_out():
    o = [salu("s_and_b32", "s68", "s4", 3), salu("s_mul_i32", "s68", "s68", 1310720), salu("s_mul_i32", "s69", "s5", WOT_BLK),
         salu("s_add_u32", "s68", "s68", "s69"), salu("s_add_u32", "s68", "s68", WS_WOT)]
    o += [[salu("s_add_u32", f"s{S_WQ}", "s90", "s68"), salu("s_addc_u32", "s69", "s91", 0)]]
    o += [salu("s_and_b32", f"s{S_WQ + 1}", "s69", "0xffff"), salu("s_mov_b32", f"s{S_WQ + 2}", 1310720),
          salu("s_mov_b32", f"s{S_X}", f"s{S_WQ}"), salu("s_mov_b32", f"s{S_X + 1}", f"s{S_WQ + 1}"), salu("s_mov_b32", f"s{S_X + 2}", 1310720)]
    o += [salu("s_lshr_b32", "s70", sWAVE, 1), salu("s_mul_i32", "s68", sWAVE, 16 * 20480), salu("s_lshl_b32", "s69", "s70", 14),
          salu("s_add_u32", "s68", "s68", "s69"), salu("s_lshl_b32", "s69", "s70", 13), salu("s_sub_u32", "s69", 4096, "s69")]
    for r, (st, pi, off) in PF2.items():
        o += [salu("s_mul_i32", r, "s69", pi), salu("s_add_u32", r, r, "s68")]
        if st or off:
            o += [salu("s_add_u32", r, r, st * 20480 + off)]
    return o


def epoch_groups(n, second=False):
    order = {"W": 0, "X": 1, "K": 2, "V": 2, "J": 3}
    keys = sorted([k for k, u in U.items() if u["I"] % 27 == n and k != ("J", 0)], key=lambda k: (U[k]["N"] - U[k]["I"], order[k[0]], k))
    return [g for k in keys for g in unit_dmas(k, second)]


def place_dmas(S, groups, cand, lo):
    ci = 0
    for pre, ds in groups:
        g = cand[ci]
        for n, p in enumerate(pre):
            S.put(max(lo, g - len(pre) + n), p)
        for d in ds:
            S.put(cand[ci], d)
            ci += 1


def tags_for(n):
    t = [k for k, u in U.items() if (u["N"] - (n + 1)) % 27 == 0]
    if n == OPT["flagbar"]:
        t += ["ost", "jst"]
    return t


def atomic_add(vdata, soff):
    return Ins(f"buffer_atomic_add {vdata}, {vFLG}, s[{S_FLG}:{S_FLG + 3}], {soff} offen sc1", "atomic",
               rd=[vdata, vFLG, soff] + regs("s", S_FLG, 4), tag="flag")


def poll_load(vdst, soff):
    return Ins(f"buffer_load_dword {vdst}, off, s[{S_FLG}:{S_FLG + 3}], {soff} sc1", "vld", rd=[soff] + regs("s", S_FLG, 4), wr=[vdst])


class Win:
    def __init__(self, rs, init):
        self.rs = rs
        self.cur = init

    def move(self, new):
        d = (new - self.cur) & 0xffffffff
        self.cur = new
        return [valu("v_add_u32", r, "0x%x" % d, r) for r in self.rs] if d else []


def plan_windows(addrs, span):
    want = []
    i = 0
    while i < len(addrs):
        lo = hi = addrs[i]
        j = i + 1
        while j < len(addrs) and max(hi, addrs[j]) - min(lo, addrs[j]) + span < 65536:
            lo, hi = min(lo, addrs[j]), max(hi, addrs[j])
            j += 1
        want += [lo] * (j - i)
        i = j
    return want


KWANT = plan_windows([U[("K", t)]["addr"] for t in range(16)], 4096)
VWANT = plan_windows([U[("V", t)]["addr"] for t in range(16)], 4096)
WWANT = plan_windows([U[("W", i, 1)]["addr"] for i in range(10)], 4096 + 520)
WWANT = [0 if w < 64 * KB else 64 * KB for w in [U[("W", i, 0)]["addr"] for i in range(10)]]


def prof_stamp(idx, v0=252):
    if not OPT["prof"]:
        return []
    return [raw("s_memtime s[76:77]", "other", wr=["s76", "s77"]),
            raw("s_memrealtime s[78:79]", "other", wr=["s78", "s79"]),
            raw("s_waitcnt lgkmcnt(0)", "drainlg"),
            valu("v_mov_b32", f"v{v0}", "s76"),
            valu("v_mov_b32", f"v{v0 + 1}", "s78"),
            valu("v_mov_b32", "v251", sPROF),
            vstore(("v", v0), 2, "v251", S_PROF, 0, 8 * idx)]


def bar_seq(tags, idx):
    if OPT["prof"] < 2:
        return [needboth(tags), barrier()] + prof_stamp(idx)
    return [raw("s_memtime s[58:59]", "other", wr=["s58", "s59"]), raw("s_waitcnt lgkmcnt(0)", "drainlg"),
            needboth(tags), barrier(),
            raw("s_memtime s[76:77]", "other", wr=["s76", "s77"]),
            raw("s_memrealtime s[78:79]", "other", wr=["s78", "s79"]),
            raw("s_waitcnt lgkmcnt(0)", "drainlg"), salu("s_sub_u32", "s76", "s76", "s58"),
            valu("v_mov_b32", "v252", "s76"), valu("v_mov_b32", "v253", "s78"), valu("v_mov_b32", "v251", sPROF),
            vstore(("v", 252), 2, "v251", S_PROF, 0, 8 * idx)]


def a_read(i, dt, ks, t, win):
    p, xy = dt >> 1, dt & 1
    off = U[("W", i, p >> 1)]["addr"] - win + ks * 4096 + t * 512 + xy * 8
    return ds_read("ds_read_b64_tr_b16", ("a", ABUF[dt % 2] + 4 * ks + 2 * t), 2, wA[p & 1], off)


def first_reads(i):
    ax = U[("X", i)]["addr"] - XS[0]

    def A(ks, t):
        return a_read(i, 0, ks, t, WWANT[i])

    def B(qt, ks):
        return ds_read("ds_read_b128", ("a", bx(qt, ks)), 4, xA[ks], ax + qt * 2048)
    return [A(0, 0), A(0, 1), B(0, 0), A(1, 0), A(1, 1), B(0, 1)] + [B(qt, ks) for qt in range(1, 6) for ks in range(2)]


def k_read(t, j):
    kt, ks = j >> 2, j & 3
    return ds_read("ds_read_b128", ("a", kf(kt, ks)), 4, kA[ks], U[("K", t)]["addr"] - KWANT[t] + kt * 4096)


def epilogue_groups(tmp, dst=None):
    groups = []
    n = 0
    for T in range(3):
        for ph in range(2):
            for qs in range(2):
                for pl in range(2):
                    qt = 2 * T + qs
                    tb = tmp + 4 * (n % 3)
                    src = oacc(qt, 4 * ph + 2 * pl)
                    db = tb if dst is None or dst(n) is None else dst(n)
                    rd = [valu("v_accvgpr_read_b32", f"v{tb + i}", f"a{src + i}") for i in range(8)]
                    mu = [valu("v_mul_f32", f"v{tb + i}", vR[qt], f"v{tb + i}") for i in range(8)]
                    cv = [valu("v_cvt_pk_bf16_f32", f"v{db + i}", f"v{tb + 2 * i}", f"v{tb + 2 * i + 1}") for i in range(4)]
                    pre = [salu("s_add_u32", sE, sO, ph * 12288 + T * 4096)] if qs == 0 and pl == 0 else []
                    imm = qs * 2048 + pl * 1024
                    groups.append((rd + mu + cv, pre, vstore(("v", db), 4, vL16, S_OST, sE, imm, tag="ost", flags=SC1), imm))
                    n += 1
    return groups


def conv_items(T, ps):
    out = []
    for p in ps:
        for qs in range(2):
            R, Dd = qacc(p, 0, 2 * T + qs), qf(2 * T + qs, p)
            out += [(p, qs, valu("v_mul_f32", f"v{R + x}", sC, f"v{R + x}")) for x in range(8)]
            out += [(p, qs, valu("v_cvt_pk_bf16_f32", f"v{Dd + x}", f"v{R + 2 * x}", f"v{R + 2 * x + 1}")) for x in range(4)]
    return out


def q_phase(second):
    S = Sched()
    ww = Win(wA, 0)
    for i in range(10):
        q0 = S.n()
        for dt in range(8):
            for qt in range(6):
                for ks in range(2):
                    acc = ("v", qacc(dt >> 1, dt & 1, qt))
                    S.add(mfma(16, acc, ("a", ABUF[dt % 2] + 4 * ks), ("a", bx(qt, ks)), None if (i == 0 and ks == 0) else acc))
        for dt in range(1, 8):
            gaps = [4, 5, 6, 7] if dt == 1 else [0, 2, 3, 4]
            for n, (ks, t) in enumerate([(0, 0), (0, 1), (1, 0), (1, 1)]):
                S.put(q0 + 12 * (dt - 1) + gaps[n], a_read(i, dt, ks, t, WWANT[i]))
        if i <= 7:
            S.put(q0 + 11, needboth([("W", 0, 1)] if i == 0 else []), barrier())
        S.put(q0 + 83, *bar_seq(tags_for(i), 2 + i))
        if i < 9:
            S.put(q0 + 79, *ww.move(WWANT[i + 1]))
            for n, r in enumerate(first_reads(i + 1)):
                S.put(q0 + 84 + n, r)
        else:
            S.put(q0 + 79, *ww.move(0))
            kw = Win(kA, KWANT[15])
            mv = kw.move(KWANT[0])
            S.put(q0 + 80, *mv[:2])
            S.put(q0 + 82, *mv[2:])
            for j in range(8):
                S.put(q0 + 84 + j, k_read(0, j))
        place_dmas(S, epoch_groups(i, second), [q0 + 13 + 4 * x for x in range(18)], q0 + 11)
    for r in range(2):
        q0 = 96 * U[("J", r)]["N"]
        for jj in jblocks(r, second):
            k = jj & 3
            for tt in range(2):
                S.put(q0 + 18 + 12 * k + 2 * tt, ds_read("ds_read_b64_tr_b16", ("a", 4 * k + 2 * tt), 2, vJ, k * 1024 + tt * 8192))
            nq, pair = divmod(2 * jj, 5)
            g = q0 + 69 + 4 * k
            S.put(g - 1, salu("s_add_u32", sJ, sWOX if pair == 4 else sWOD, nq * 1310720 + pair * 4096))
            S.put(g, vstore(("a", 4 * k), 4, vL16, S_WOT, sJ, 0, tag="jst", flags=SC1))
    if OPT["pf"]:
        lds = []
        for name in OPT["pf"].split(","):
            kind, t = name[0], int(name[1:])
            pre = [salu("s_add_u32", sJ, sROT, t * 8192), salu("s_and_b32", sJ, sJ, "0x1ffff"), salu("s_add_u32", sJ, sJ, sKV)]
            for m in range(4):
                l = vload(("v", 252), 4, vL16, S_K if kind == "K" else S_V, sJ, 1024 * m, tag="pf")
                l.wr = set()
                lds.append((pre if m == 0 else [], l))
        i, k = OPT["pf0"], 0
        for pre, l in lds:
            g = 96 * i + [69, 73, 77, 81][k]
            while S.fixed.get(g) or (second and False):
                g += 1
            for n, p in enumerate(pre):
                S.put(g - 3 + n, p)
            S.put(g, l)
            k += 1
            if k == OPT["pfn"]:
                k = 0
                i += 1
        assert i <= 10
    if second:
        eg = epilogue_groups(EPI)
        ep = []
        for i in range(8):
            for g in eg[3 * i:3 * i + 3]:
                ep += [(x, 96 * i, None) for x in g[0]]
            for g in eg[3 * i:3 * i + 3]:
                ep += [(x, 96 * i + OPT["stg"], None) for x in g[1] + [g[2]]]
        ep[-1] = (ep[-1][0], ep[-1][1], 96 * 9 - 1)
        S.stream(ep)
        S.put(96 * 9 + 2, salu("s_add_u32", sO, sO, 8 * 12288))
    q0 = 96 * 9
    g = q0 + 66
    for x in ([salu("s_add_u32", sWQ, sWQ, 512)] + set_pf_proj() if not second else set_pf_out()):
        S.put(g, *(x if isinstance(x, list) else [x]))
        g += 1 if g < q0 + 94 else 0
        if g == q0 + 83:
            g += 1
    if second:
        S.stream([(valu("v_mov_b32", r, vL16), q0 + 66, None) for r in vW + vX])
    S.stream([(x, min(q0 + 12 * (2 * p + 1) + 2 * qs + 1 + 2, q0 + 95), None) for p, qs, x in conv_items(0, range(4))])
    S.put(-1, *prof_stamp(1))
    return S.finish(lead=first_reads(0), report=OPT["report"])


def lspread(qt, tmp):
    l = f"v{lacc(qt)}"
    return [valu("v_mov_b32", tmp, l), perm("v_permlane32_swap_b32", tmp, l), valu("v_add_f32", l, l, tmp),
            valu("v_mov_b32", tmp, l), perm("v_permlane16_swap_b32", tmp, l), valu("v_add_f32", l, l, tmp)]


def interleave(a, b):
    return [x for p in zip(a, b) for x in p]


def lcheck():
    l = [f"v{lacc(qt)}" for qt in range(6)]
    return [valu("v_add_f32", vT[0], l[0], l[1]), valu("v_min3_f32", vT[1], l[0], l[1], l[2]),
            valu("v_add_f32", vT[0], vT[0], l[2]), valu("v_min3_f32", vT[1], vT[1], l[3], l[4]),
            valu("v_add_f32", vT[0], vT[0], l[3]), valu("v_add_f32", vT[0], vT[0], l[4]),
            valu("v_min_f32", vT[1], vT[1], l[5]), valu("v_add_f32", vT[0], vT[0], l[5]),
            valu("v_cmp_nlt_f32", "s[56:57]", sLO, vT[1]),
            valu("v_cmp_ngt_f32", "vcc", sHI, vT[0]),
            salu("s_or_b64", "vcc", "vcc", "s[56:57]")]


def a_phase():
    S = Sched()
    qk = [[0] * 3 for _ in range(16)]
    pv = [[0] * 3 for _ in range(16)]

    def QK(t, T):
        qk[t][T] = S.n()
        for qs in range(2):
            for kt in range(2):
                s = ("v", sreg(2 * T + qs) + 4 * kt)
                for ks in range(4):
                    S.add(mfma(16, s, ("a", kf(kt, ks)), ("v", qf(2 * T + qs, ks)), None if ks == 0 else s))

    def PV(t, T):
        pv[t][T] = S.n()
        sums = []
        for qs in range(2):
            l = ("v", lacc(2 * T + qs))
            sums.append(mfma(16, l, ("v", ONES), ("v", sreg(2 * T + qs)), None if t == 0 else l))
        if t == 15:
            for m in sums:
                S.add(m)
        for dt in range(8):
            for qs in range(2):
                o = ("a", oacc(2 * T + qs, dt))
                S.add(mfma(16, o, ("a", vf(dt)), ("v", sreg(2 * T + qs)), None if t == 0 else o))
        if t < 15:
            for m in sums:
                S.add(m)

    for t in range(16):
        QK(t, 0)
        if t:
            PV(t - 1, 1)
        QK(t, 1)
        if t:
            PV(t - 1, 2)
        QK(t, 2)
        PV(t, 0)
    PV(15, 1)
    PV(15, 2)
    bar = {}
    kw, vw = Win(kA, KWANT[0]), Win(vA, VWANT[15])
    for t in range(16):
        g0 = pv[t - 1][2] if t else qk[0][1]
        bar[10 + t] = g0 - 1
        S.put(g0 - 1, *bar_seq(tags_for(10 + t), 12 + t))
        for n, m in enumerate(vw.move(VWANT[t])):
            S.put(g0 - 14 + 3 * (n // 2), m)
        for dt in range(8):
            for tt in range(2):
                S.put(g0 + 4 * dt + 1 + 2 * tt,
                      ds_read("ds_read_b64_tr_b16", ("a", vf(dt) + 2 * tt), 2, vA[dt], U[("V", t)]["addr"] - VWANT[t] + tt * 4096))
        if t < 15:
            for n, m in enumerate(kw.move(KWANT[t + 1])):
                S.put(qk[t][0] + 9 + 3 * (n // 2), m)
            for j in range(8):
                S.put(qk[t][2] + [8, 10, 12, 14, 17, 19, 21, 23][j], k_read(t + 1, j))
    bar[26] = pv[15][1] - 1
    S.put(bar[26], *bar_seq(tags_for(26), 28))
    fr = first_reads(0)
    for n, r in enumerate(fr[:10]):
        S.put(pv[15][1] + [1, 3, 5, 7, 9, 11, 13, 15, 16, 17][n], r)
    for n, r in enumerate(fr[10:]):
        S.put(pv[15][2] + 3 + 2 * n, r)
    for n in range(10, 27):
        groups = epoch_groups(n)
        nd = sum(len(g[1]) for g in groups)
        if n == 10:
            cand = [2 * x for x in range(8)]
            lo = -1
        else:
            lo = bar[n - 1] + 1
            if n == 11 or n == 26 or OPT["uni"]:
                a = lo + 5
            else:
                a = qk[n - 10][0] + 1 if nd <= 8 else pv[n - 11][0] + 6
            b = bar[n] - 1
            cand = []
            for x in range(nd):
                g = a + (b - a) * x // nd
                while any(i.kind in MEMK for i in S.fixed.get(g, [])) or g in cand:
                    g += 1
                cand.append(g)
            assert not cand or cand[-1] < bar[n]
        place_dmas(S, groups, cand, lo)
    S.put(pv[15][0] + 2, salu("s_add_u32", sKV, sKV, 262144))
    g = bar[OPT["flagbar"]] + 2
    S.put(g, valu("v_mov_b32", f"v{EPI}", 1), valu("v_mov_b32", f"v{EPI + 1}", sIT))
    S.put(g + 4, atomic_add(f"v{EPI}", sFB))
    S.put(g + 8, atomic_add(f"v{EPI + 1}", sFG))
    g = qk[12][0]
    S.put(g + 1, scmp("s_cmp_eq_u32", sIT, 1), salu("s_cselect_b32", sE, sFB, "0x1000"))
    S.put(g + 3, poll_load(vPOLL[1], sE))
    g = qk[13][0]
    S.put(g + 1, salu("s_lshl_b32", sWANT, sIT, 8), valu("v_readfirstlane_b32", sQ, vPOLL[1]))
    S.put(g + 4, scmp("s_cmp_lt_u32", sQ, sWANT), raw("s_cbranch_scc1 L_spin3", "branch", rd=["scc"]), label("L_spin3_back"))
    g = qk[15][1]
    S.put(g + 1, scmp("s_cmp_eq_u32", sIT, 1), salu("s_cselect_b32", sE, sFG, "0x1000"))
    S.put(g + 3, poll_load(vPOLL[0], sE))
    if OPT["codepf2"]:
        g = qk[OPT["codepf2"]][0] - 6
        S.put(g - 2, salu("s_mul_i32", sJ, sIT, "L_out-L_q2"))
        S.put(g - 1, salu("s_add_u32", sJ, sJ, "L_q2-L_pc"))
        S.put(g, salu("s_add_u32", sJ, sJ, sCP))
        S.put(g + 1, salu("s_min_u32", sJ, sJ, "L_endcode-L_pc-256"))
        S.put(g + 2, valu("v_and_b32", f"v{EPI + 2}", 16, vL16), valu("v_lshlrev_b32", f"v{EPI + 2}", 3, f"v{EPI + 2}"))
        S.put(g + 3, valu("v_add_u32", f"v{EPI + 2}", sJ, f"v{EPI + 2}"))
        S.put(g + 5, Ins(f"global_load_dword v{EPI + 3}, v{EPI + 2}, s[96:97]", "vld", rd=[f"v{EPI + 2}", "s96", "s97"], wr=[f"v{EPI + 3}"]))
    for T in (1, 2):
        c = [(x, -1, None) for p, qs, x in conv_items(T, range(4))]
        c[-1] = (c[-1][0], -1, qk[0][T] - 1)
        S.stream(c)
    fin = []
    if OPT["one1"]:
        for T in range(3):
            fin += [(x, [pv[15][1] + 12, pv[15][2], pv[15][2] + 4][T], None) for x in interleave(lspread(2 * T, f"v{lacc(2 * T) + 1}"), lspread(2 * T + 1, f"v{lacc(2 * T + 1) + 1}"))]
    S.stream(fin + [(x, pv[15][2] + 4, None) for x in lcheck()])
    units = []
    for t in range(16):
        for qt in range(6):
            s = sreg(qt)
            T, qs = qt >> 1, qt & 1
            dl = pv[t][T] + qs - 2
            units.append(dict(e=qk[t][T] + 8 * qs + 7 + 2,
                              exps=[valu("v_exp_f32", f"v{s + r}", f"v{s + r}") for r in range(8)],
                              cvts=[(valu("v_cvt_pk_bf16_f32", f"v{s + r}", f"v{s + 2 * r}", f"v{s + 2 * r + 1}"), 2 * r + 2, dl) for r in range(4)]))
    S.packers.append(SoftmaxPacker(units))
    return S.finish(lead=[k_read(0, j) for j in range(8)], report=OPT["report"])


def slow_path():
    o = [label("L_slow"), drain(), nop(16)]
    KF = [EPI + 4 * k for k in range(4)]
    VFR = 56
    vM = [f"v{120 + q}" for q in range(6)]
    vKo, vVo, vt, vu = "v60", "v61", "v62", "v63"
    o += [valu("v_lshrrev_b32", vt, 4, vL16), valu("v_and_b32", vu, 15, vt), valu("v_lshrrev_b32", vt, 4, vt),
          valu("v_lshlrev_b32", vKo, 8, vu), valu("v_lshl_add_u32", vKo, vt, 4, vKo),
          valu("v_lshlrev_b32", vVo, 10, vt), valu("v_lshl_add_u32", vVo, vu, 1, vVo)]
    o += [salu("s_sub_u32", "s58", sKV, 262144)]
    o += [valu("v_mov_b32", m, "0xff800000") for m in vM]

    def scores():
        r = []
        for kt in range(2):
            r += [salu("s_add_u32", "s61", "s59", kt * 4096)]
            r += [vload(("v", KF[ks]), 4, vKo, S_K, "s61", 64 * ks) for ks in range(4)] + [drain()]
            for qt in range(6):
                s = ("v", sreg(qt) + 4 * kt)
                r += [mfma(16, s, ("v", KF[ks]), ("v", qf(qt, ks)), None if ks == 0 else s) for ks in range(4)]
            r += [nop(16)]
        return r
    o += [salu("s_mov_b32", "s59", "s58"), salu("s_mov_b32", "s60", 16), label("L_slow1")] + scores()
    for qt in range(6):
        o += [valu("v_max3_f32", vM[qt], vM[qt], f"v{sreg(qt) + r}", f"v{sreg(qt) + r + 1}") for r in range(0, 8, 2)]
    o += [salu("s_add_u32", "s59", "s59", 8192), salu("s_sub_u32", "s60", "s60", 1), scmp("s_cmp_lg_u32", "s60", 0),
          raw("s_cbranch_scc1 L_slow1", "branch", rd=["scc"])]
    for qt in range(6):
        for op in ("v_permlane32_swap_b32", "v_permlane16_swap_b32"):
            o += [valu("v_mov_b32", vt, vM[qt]), nop(2), perm(op, vt, vM[qt]), valu("v_max_f32", vM[qt], vM[qt], vt)]
        o += [valu("v_mov_b32", f"v{lacc(qt) + r}", 0) for r in range(4)]
    o += [valu("v_accvgpr_write_b32", f"a{r}", 0) for r in range(192)]
    o += [salu("s_mov_b32", "s59", "s58"), salu("s_mov_b32", "s60", 16), label("L_slow2")] + scores()
    for qt in range(6):
        s = sreg(qt)
        o += [valu("v_sub_f32", f"v{s + r}", f"v{s + r}", vM[qt]) for r in range(8)]
        o += [valu("v_exp_f32", f"v{s + r}", f"v{s + r}") for r in range(8)]
        o += [valu("v_cvt_pk_bf16_f32", f"v{s + r}", f"v{s + 2 * r}", f"v{s + 2 * r + 1}") for r in range(4)]
    o += [salu("s_add_u32", "s63", "s59", 4096)]
    for dt in range(8):
        for j in range(8):
            o += [vload(("v", 184 + j), 1, vVo, S_V, "s63" if j >= 4 else "s59", (j & 3) * 256 + 32 * dt, op="buffer_load_ushort")]
        o += [drain()]
        o += [valu("v_lshl_or_b32", f"v{VFR + r}", f"v{185 + 2 * r}", 16, f"v{184 + 2 * r}") for r in range(4)]
        o += [mfma(16, ("a", oacc(qt, dt)), ("v", VFR), ("v", sreg(qt)), ("a", oacc(qt, dt))) for qt in range(6)]
        o += [nop(8)]
    o += [mfma(16, ("v", lacc(qt)), ("v", ONES), ("v", sreg(qt)), ("v", lacc(qt))) for qt in range(6)] + [nop(16)]
    o += [salu("s_add_u32", "s59", "s59", 8192), salu("s_sub_u32", "s60", "s60", 1), scmp("s_cmp_lg_u32", "s60", 0),
          raw("s_cbranch_scc1 L_slow2", "branch", rd=["scc"])]
    o += [nop(16)]
    if OPT["one1"]:
        for qt in range(6):
            o += lspread(qt, vt)
    o += [drain(), raw("s_branch L_back", "branch")]
    return o


def srd(base, lo, hi, nbytes):
    return [salu("s_mov_b32", f"s{base}", lo), salu("s_and_b32", f"s{base + 1}", hi, "0xffff"),
            salu("s_mov_b32", f"s{base + 2}", nbytes), salu("s_mov_b32", f"s{base + 3}", "0x20000")]


def decode_wg():
    return [salu("s_and_b32", "s3", "s2", 7), salu("s_lshr_b32", "s4", "s2", 6), salu("s_lshl_b32", "s3", "s3", 2),
            salu("s_add_u32", "s3", "s3", "s4"), salu("s_lshr_b32", "s4", "s2", 3), salu("s_and_b32", "s4", "s4", 7),
            salu("s_lshr_b32", "s5", "s3", 4), salu("s_and_b32", "s6", "s3", 15)]


def prologue():
    o = [scmp("s_cmp_ge_u32", "s2", 256), raw("s_cbranch_scc1 L_end", "branch", rd=["scc"])]
    o += decode_wg()
    o += [salu("s_mul_i32", "s7", "s5", 40), salu("s_add_u32", "s68", "s0", "s7"), salu("s_addc_u32", "s69", "s1", 0),
          raw("s_load_dwordx8 s[56:63], s[68:69], 0", wr=regs("s", 56, 8)),
          raw("s_load_dwordx2 s[94:95], s[68:69], 32", wr=["s94", "s95"]),
          raw("s_load_dwordx4 s[88:91], s[0:1], 88", wr=regs("s", 88, 4)),
          raw("s_load_dwordx2 s[92:93], s[0:1], 80", wr=["s92", "s93"])]
    i, a, b, c = "v1", "v2", "v3", "v4"
    o += [valu("v_lshrrev_b32", a, 6, "v0"), valu("v_and_b32", i, 63, "v0"),
          valu("v_readfirstlane_b32", sWAVE, a), valu("v_lshlrev_b32", vL16, 4, i)]
    o += [valu("v_lshrrev_b32", a, 4, i), valu("v_and_b32", b, 7, i), valu("v_lshrrev_b32", "v5", 3, i),
          valu("v_and_b32", c, 1, a), valu("v_lshlrev_b32", c, 1, c), valu("v_xor_b32", c, c, b), valu("v_lshlrev_b32", c, 4, c),
          valu("v_lshl_add_u32", vW[0], "v5", 13, c),
          valu("v_xor_b32", vW[1], 64, vW[0]), valu("v_add_u32", vW[1], 64512, vW[1]),
          valu("v_add_u32", vW[2], 2 * 64512, vW[0]), valu("v_add_u32", vW[3], 2 * 64512, vW[1])]
    o += [valu("v_xor_b32", c, a, b), valu("v_lshlrev_b32", c, 4, c), valu("v_mul_u32_u24", "v6", 1280, "v5"),
          valu("v_add_u32", vX[0], "v6", c),
          valu("v_xor_b32", vX[1], 64, vX[0]), valu("v_add_u32", vX[1], 9216, vX[1]),
          valu("v_add_u32", vX[2], 2 * 9216, vX[0]), valu("v_add_u32", vX[3], 2 * 9216, vX[1])]
    o += [salu("s_lshr_b32", "s70", sWAVE, 1), salu("s_and_b32", "s71", sWAVE, 1),
          salu("s_lshl_b32", sW4K, sWAVE, 12), salu("s_mul_i32", sW6K, sWAVE, 6144),
          salu("s_lshl_b32", "s7", "s4", 2), salu("s_add_u32", "s7", "s7", "s70"),
          salu("s_lshl_b32", sWQ, "s71", 18), salu("s_lshl_b32", sT0, "s7", 8), salu("s_add_u32", sWQ, sWQ, sT0),
          salu("s_mul_i32", sX, "s6", 245760), salu("s_mul_i32", sT0, sWAVE, 61440), salu("s_add_u32", sX, sX, sT0)]
    o += [raw("s_waitcnt lgkmcnt(0)", "drainlg")]
    o += srd(S_X, "s56", "s57", 3932160) + srd(S_WQ, "s62", "s63", 5242880)
    o += set_pf_proj()
    for k in [("W", 0, 0), ("X", 0), ("W", 0, 1), ("W", 1, 0), ("X", 1), ("W", 1, 1)]:
        for pre, ds in unit_dmas(k):
            o += pre[::-1] + ds
    if OPT["warmw"]:
        o += [salu("s_mul_i32", "s68", "s6", 40 * 8192), salu("s_lshl_b32", "s69", "s4", 10), salu("s_add_u32", "s68", "s68", "s69"),
              salu("s_mul_i32", "s69", sWAVE, 10 * 8192), salu("s_add_u32", "s68", "s68", "s69"),
              valu("v_lshlrev_b32", b, 7, b), valu("v_lshl_add_u32", "v6", "v5", 13, b), valu("v_and_b32", c, 1, "v5"),
              valu("v_lshl_add_u32", c, c, 13, b), salu("s_add_u32", "s69", "s68", 8 * 8192)]
        o += [vload(("v", 254), 1, "v6", S_WQ, "s68", 0), vload(("v", 255), 1, c, S_WQ, "s69", 0)]
    if OPT["codepf"]:
        o += [raw("s_getpc_b64 s[96:97]", wr=["s96", "s97"]), label("L_pc"), salu("s_lshr_b32", "s68", "s2", 3), salu("s_lshl_b32", "s68", "s68", 2),
              salu("s_add_u32", "s68", "s68", sWAVE), salu("s_lshl_b32", sCP, "s68", 8), salu("s_lshl_b32", "s68", "s68", 9),
              valu("v_and_b32", c, 3, i), valu("v_lshlrev_b32", c, 7, c), valu("v_add_u32", c, "s68", c),
              Ins("global_load_dword v253, v4, s[96:97]", "vld", rd=["v4", "s96", "s97"], wr=["v253"])]
    o += srd(S_WO, "s94", "s95", 5242880)
    o += [salu("s_lshl_b32", "s68", "s6", 3), salu("s_add_u32", "s68", "s68", "s4"),
          salu("s_mul_i32", sWOS, "s68", 40960), salu("s_mul_i32", sT0, sWAVE, 10240), salu("s_add_u32", sWOS, sWOS, sT0)]
    for pre, ds in unit_dmas(("J", 0)):
        o += pre[::-1] + ds
    if OPT["warmj"]:
        o += [valu("v_lshrrev_b32", c, 3, i), valu("v_mul_u32_u24", c, 1280, c), valu("v_and_b32", "v6", 7, i), valu("v_min_u32", "v6", 5, "v6"),
              valu("v_lshl_add_u32", c, "v6", 7, c), vload(("v", 252), 1, c, S_WO, sWOS, 512)]
    o += srd(S_K, "s58", "s59", 67108864) + srd(S_V, "s60", "s61", 67108864)
    o += srd(S_OST, "s90", "s91", WS_WOT) + srd(S_FLG, "s88", "s89", 256)
    o += [salu("s_add_u32", "s68", "s90", WS_WOT), salu("s_addc_u32", "s69", "s91", 0)] + srd(S_WOT, "s68", "s69", 2 * WOT_BLK)
    o += [salu("s_lshl_b32", sFG, "s3", 2), salu("s_lshl_b32", sFB, "s5", 6), salu("s_add_u32", sFB, sFB, 128),
          valu("v_cmp_eq_u32", "vcc", 0, "v0"), valu("v_mov_b32", "v10", "0x1000"), valu("v_mov_b32", f"v{ONES}", "0x3f803f80"),
          valu("v_cndmask_b32", vFLG, "v10", 0, "vcc")]
    if OPT["one1"]:
        o += [valu("v_and_b32", "v10", 15, "v0"), valu("v_cmp_eq_u32", "vcc", 0, "v10"), valu("v_cndmask_b32", f"v{ONES}", 0, f"v{ONES}", "vcc")]
    o += [valu("v_mov_b32", f"v{ONES + r}", f"v{ONES}") for r in range(1, 4)]
    if OPT["prof"]:
        o += [salu("s_add_u32", "s68", "s90", WS_PROF), salu("s_addc_u32", "s69", "s91", 0)] + srd(S_PROF, "s68", "s69", 1 << 20)
        o += [salu("s_lshl_b32", sPROF, "s2", 2), salu("s_add_u32", sPROF, sPROF, sWAVE), salu("s_lshl_b32", sPROF, sPROF, 10)]
        o += prof_stamp(0, 8)
    o += [salu("s_lshl_b32", sKV, "s6", 5), salu("s_add_u32", sKV, sKV, "s7"), salu("s_lshl_b32", sKV, sKV, 17),
          salu("s_lshl_b32", sT0, "s71", 12),
          salu("s_lshr_b32", sROT, "s2", 3), salu("s_lshl_b32", sT1, "s2", 1), salu("s_add_u32", sROT, sROT, sT1),
          salu("s_and_b32", sROT, sROT, 15), salu("s_lshl_b32", sROT, sROT, 13), salu("s_add_u32", sROT, sROT, sT0)]
    o += [salu("s_mul_i32", sO, "s3", O_GRP), salu("s_mul_i32", sT0, "s71", 786432), salu("s_add_u32", sO, sO, sT0),
          salu("s_lshr_b32", sT0, "s4", 1), salu("s_mul_i32", sT0, sT0, 16 * 12288), salu("s_add_u32", sO, sO, sT0),
          salu("s_and_b32", sT0, "s4", 1), salu("s_mul_i32", sT0, sT0, 4 * 12288), salu("s_add_u32", sO, sO, sT0),
          salu("s_mul_i32", sT0, "s70", 2 * 12288), salu("s_add_u32", sO, sO, sT0)]
    o += [salu("s_lshl_b32", "s68", "s6", 3), salu("s_add_u32", "s68", "s68", "s4"),
          salu("s_lshr_b32", sT0, "s68", 1), salu("s_and_b32", sT1, sT0, "0x33"),
          salu("s_and_b32", "s69", sT0, 4), salu("s_lshl_b32", "s69", "s69", 1), salu("s_or_b32", sT1, sT1, "s69"),
          salu("s_and_b32", "s69", sT0, 8), salu("s_lshr_b32", "s69", "s69", 1), salu("s_or_b32", sT1, sT1, "s69"),
          salu("s_mul_i32", sWOD, sT1, 20480),
          salu("s_and_b32", sT0, "s68", 1), salu("s_lshl_b32", sT0, sT0, 11), salu("s_add_u32", sWOD, sWOD, sT0),
          salu("s_mul_i32", sT0, "s5", WOT_BLK), salu("s_add_u32", sWOD, sWOD, sT0),
          salu("s_lshl_b32", sT0, "s70", 12), salu("s_add_u32", sWOD, sWOD, sT0),
          salu("s_lshl_b32", sT0, "s71", 10), salu("s_add_u32", sWOD, sWOD, sT0),
          salu("s_mul_i32", sT0, "s70", 1310720 - 20480), salu("s_add_u32", sWOX, sWOD, sT0)]
    cbits = struct.unpack("<I", struct.pack("<f", math.log2(math.e) / math.sqrt(128.0)))[0]
    o += [salu("s_mov_b32", sC, "0x%x" % cbits), salu("s_mov_b32", sHI, "0x4e800000"), salu("s_mov_b32", sLO, "0x30800000"),
          salu("s_mov_b32", sIT, 0)]
    o += [valu("v_lshrrev_b32", a, 4, i), valu("v_and_b32", b, 15, i),
          valu("v_xor_b32", c, a, b), valu("v_lshlrev_b32", c, 4, c), valu("v_lshl_add_u32", vK[0], a, 8, c)]
    o += [valu("v_xor_b32", vK[m], m << 6, vK[0]) for m in range(1, 4)]
    o += [valu("v_lshlrev_b32", "v5", 1, a), valu("v_xor_b32", "v5", "v5", b), valu("v_lshlrev_b32", "v5", 4, "v5"),
          valu("v_lshl_add_u32", vV[0], a, 8, "v5"), valu("v_xor_b32", vV[1], 128, vV[0])]
    o += [salu("s_lshl_b32", "s69", "s70", 13), salu("s_mul_i32", "s68", "s71", 12288), salu("s_add_u32", "s68", "s68", XS[0]),
          valu("v_bfe_u32", "v8", i, 2, 2), valu("v_and_b32", "v9", 3, i)]
    o += [valu("v_lshl_add_u32", c, b, 8, c), valu("v_add_u32", c, KWANT[15], c), valu("v_add_u32", kA[0], "s69", c)]
    o += [valu("v_xor_b32", kA[j], j << 6, kA[0]) for j in range(1, 4)]
    o += [valu("v_lshl_add_u32", "v5", a, 2, "v8"), valu("v_lshlrev_b32", c, 8, "v5"), valu("v_and_b32", "v6", 7, "v5"),
          valu("v_lshl_add_u32", c, "v6", 5, c), valu("v_lshl_add_u32", c, "v9", 3, c),
          valu("v_add_u32", c, VWANT[15], c), valu("v_add_u32", vA[0], "s69", c)]
    o += [valu("v_xor_b32", vA[d], d << 5, vA[0]) for d in range(1, 8)]
    o += [valu("v_lshl_add_u32", c, a, 3, "v8"), valu("v_lshlrev_b32", c, 7, c),
          valu("v_and_b32", "v5", 2, "v8"), valu("v_and_b32", "v7", 1, a), valu("v_lshl_add_u32", "v5", "v7", 2, "v5"),
          valu("v_xor_b32", "v5", "v5", "v9"), valu("v_lshl_add_u32", c, "v5", 4, c), valu("v_add_u32", wA[0], "s69", c),
          valu("v_xor_b32", wA[1], 64, wA[0])]
    o += [valu("v_lshrrev_b32", "v5", 1, b), valu("v_xor_b32", "v5", "v5", a),
          valu("v_lshlrev_b32", "v5", 4, "v5"), valu("v_lshl_add_u32", c, b, 7, "v5"),
          valu("v_xor_b32", "v5", 64, c), valu("v_add_u32", xA[0], "s68", c), valu("v_add_u32", xA[1], "s68", "v5")]
    o += [salu("s_lshl_b32", "s68", "s70", 2), salu("s_lshl_b32", "s69", "s71", 3), salu("s_add_u32", "s69", "s69", WOJ_ADDR),
          valu("v_lshrrev_b32", c, 1, a), valu("v_lshlrev_b32", c, 12, c), valu("v_lshl_add_u32", c, "v6", 7, c),
          valu("v_add_u32", c, "s69", c), valu("v_add_u32", "v5", "s68", "v9"), valu("v_lshrrev_b32", "v6", 1, "v6"),
          valu("v_xor_b32", "v5", "v5", "v6"), valu("v_lshl_add_u32", vJ, "v5", 4, c)]
    o += [needvm([("W", 0, 0), ("X", 0)] if OPT["early"] else [k for k, u in U.items() if u["N"] == 0]), barrier()] + first_reads(0)
    return o


def acc2(pi, xy, qi):
    return ((pi * 6 + qi) * 2 + xy) * 4


def a2(st, pi, ks, xy):
    if st == 0:
        return (240 if pi == 0 else 48 + 16 * pi) + 8 * ks + 4 * xy
    return (48 if pi == 0 else 112 + 16 * pi) + 8 * ks + 4 * xy


def b2(st, qi, ks):
    return (192 if st == 0 else 0) + 8 * qi + 4 * ks


V2A = ["v%d" % i for i in range(240, 245)]
V2B = ["v245", "v246", "v247", "v248", "v249", "v253"]
V2L, V2W, V2P, V2X = "v252", "v254", "v255", "v251"
S2A, S2B, S2OUT = S_WQ, 12, 8


def k2_loads_A(st, pi, soff=None):
    return [vload(("a", a2(st, pi, ks, xy)), 4, V2A[pi], S2A, soff or sA2, ks * 2048 + xy * 1024, flags=SC1) for xy in range(2) for ks in range(2)]


def k2_loads_B(st, qi):
    return [vload(("a", b2(st, qi, ks)), 4, V2B[qi], S2B, sB2, ks * 1024, flags=SC1) for ks in range(2)]


def k2_lds_A(st, pi):
    out = []
    for xy in range(2):
        for ks in range(2):
            r = [r for r, (s_, p_, off) in PF2.items() if (s_, p_) == (st, pi) and (r not in ("s87", "s99") or off == 2048 * ks)][0]
            key = [k for k, rs in sPF.items() if r in rs][0]
            if key[0] == "W":
                out.append(ds_read("ds_read_b128", ("a", a2(st, pi, ks, xy)), 4, V2W, U[key]["addr"] + ks * 2048 + xy * 1024))
            elif r == sPF[key][0]:
                out.append(ds_read("ds_read_b128", ("a", a2(st, pi, ks, xy)), 4, V2X, U[key]["addr"] - XS[0] + ks * 2048 + xy * 1024))
            else:
                out.append(ds_read("ds_read_b128", ("a", a2(st, pi, ks, xy)), 4, V2X, U[key]["addr"] - XS[0] + 4096 + xy * 1024))
    return out


def k2_steps(S, first, loadA, loadB, pend, check=False, late=(), final=None):
    for st in range(2):
        q0 = S.n()
        tiles = [(pi, xy, qi) for pi in range(5) for xy in range(2) for qi in range(6)]
        if final is not None and st == 1:
            tiles = [t for t in tiles if t[2] >= 3] + [t for t in tiles if t[2] < 3]
            for n, x in enumerate(final[0]):
                S.put(q0 + 2 + n, x)
            for n, x in enumerate(final[1]):
                S.put(q0 + 61 + 2 * n, x)
        for pi, xy, qi in tiles:
            for ks in range(2):
                acc = ("v", acc2(pi, xy, qi))
                S.add(mfma(16, acc, ("a", a2(st, pi, ks, xy)), ("a", b2(st, qi, ks)),
                           None if (first and st == 0 and ks == 0) else acc))
        pos = [int(0.5 + 3.75 * n) for n in range(32)]
        if pend[st]:
            ls = k2_loads_A(1 - st, 4)
            S.put(q0 + pos[0], ls[2])
            S.put(q0 + pos[1], ls[3])
            S.put(q0 + pos[1] + 1, salu("s_add_u32", sA2, sA2, 20480))
        if first and st == 0:
            for n, (pre, l) in enumerate(late):
                S.put(q0 + 6 * n + 2, *pre)
                S.put(q0 + 6 * n + 3, l)
            for n, r in enumerate(k2_lds_A(1, 0) + k2_lds_A(1, 1)):
                S.put(q0 + 6 * n + 5, r)
        elif loadB[st]:
            for n, l in enumerate([l for qi in range(6) for l in k2_loads_B(1 - st, qi)]):
                S.put(q0 + pos[2 + n], l)
            S.put(q0 + pos[13] + 1, salu("s_add_u32", sB2, sB2, 12288))
        if loadA[st]:
            n = 14
            for pi in range(5):
                ls = k2_loads_A(st, pi)
                for x, l in enumerate(ls if pi < 4 else ls[:2]):
                    assert pos[n] >= 24 * pi + 11 + 12 * (x >> 1), (pi, x, pos[n])
                    S.put(q0 + pos[n], l)
                    n += 1
        if first and st == 1:
            S.put(q0 + 110, needvm(["ost"]), barrier())
            S.put(q0 + 111, valu("v_mov_b32", V2P, "0x100"))
            S.put(q0 + 114, atomic_add(V2P, sFG))
        if check and st == 0:
            S.put(q0 + 1, scmp("s_cmp_eq_u32", sCNT, 4), salu("s_cselect_b32", sWANT, 8, 0), salu("s_cselect_b32", sPL, sFG, "0x1000"))
            S.put(q0 + 2, poll_load(V2P, sPL))
        if check and st == 1:
            S.put(q0 + 1, valu("v_readfirstlane_b32", sQ, V2P))
            S.put(q0 + 5, salu("s_lshr_b32", sQ, sQ, 8), scmp("s_cmp_lt_u32", sQ, sWANT),
                  raw("s_cbranch_scc1 L_spin2", "branch", rd=["scc"]), label("L_spin2_back"))


def spin(name, back, dsts, soffs, conds):
    o = [label(name), salu("s_mov_b32", sSPIN, 0), label(name + "_loop"), raw("s_sleep 8")]
    o += [poll_load(d, so) for d, so in zip(dsts, soffs)]
    o += [drain(), salu("s_add_u32", sSPIN, sSPIN, 1), scmp("s_cmp_gt_u32", sSPIN, "0x20000"),
          raw(f"s_cbranch_scc1 {back}", "branch", rd=["scc"])]
    for d, (sh, msk, want) in zip(dsts, conds):
        o += [valu("v_readfirstlane_b32", sQ, d), nop(4)]
        if sh:
            o += [salu("s_lshr_b32", sQ, sQ, sh)]
        if msk:
            o += [salu("s_and_b32", sQ, sQ, msk)]
        o += [scmp("s_cmp_lt_u32", sQ, want), raw(f"s_cbranch_scc1 {name}_loop", "branch", rd=["scc"])]
    o += [raw(f"s_branch {back}", "branch")]
    return o


def phase2():
    o = [valu("v_readfirstlane_b32", sQ, vPOLL[0]), valu("v_mov_b32", V2L, vL16),
         salu("s_lshr_b32", "s60", "s4", 2), salu("s_mul_i32", "s7", "s3", O_GRP), salu("s_mul_i32", sPL, "s60", 786432),
         salu("s_add_u32", "s7", "s7", sPL),
         salu("s_and_b32", sQ, sQ, "0xff"),
         scmp("s_cmp_lt_u32", sQ, 8), raw("s_cbranch_scc1 L_spin1", "branch", rd=["scc"]), label("L_spin1_back")]
    o += [salu("s_add_u32", "s58", "s90", "s7"), salu("s_addc_u32", "s59", "s91", 0)] + srd(S2B, "s58", "s59", 786432)
    o += [salu("s_and_b32", "s61", "s4", 3), salu("s_and_b32", "s32", sWAVE, 1), salu("s_lshr_b32", "s33", sWAVE, 1),
          salu("s_mul_i32", sB2, sWAVE, 16 * 12288)]
    o += [valu("v_add_u32", V2W, sW4K, V2L), salu("s_add_u32", "s7", sW6K, XS[0]), valu("v_add_u32", "v22", "s7", V2L)]
    o += [scmp("s_cmp_eq_u32", "s33", 0)]
    o += [salu("s_cselect_b32", f"s{47 + q}", q, 2 - q) for q in range(3)]
    o += [salu("s_cselect_b32", f"s{36 + pi}", pi, 4 - pi) for pi in range(5)]
    o += [salu("s_mul_i32", "s34", "s32", 3), salu("s_sub_u32", "s35", 3, "s34")]
    for q in range(3):
        o += [salu("s_add_u32", f"s{50 + q}", f"s{47 + q}", "s35"), salu("s_add_u32", f"s{47 + q}", f"s{47 + q}", "s34")]
    o += [valu("v_mov_b32", f"v{16 + q}", vR[q]) for q in range(6)]
    for qi in range(6):
        o += [salu("s_lshl_b32", "s7", f"s{47 + qi}", 11), valu("v_add_u32", V2B[qi], "s7", V2L)]
    for qi in range(6):
        o += k2_loads_B(0, qi)
    o += [salu("s_add_u32", sB2, sB2, 12288)]
    save = list(vR)
    vR[:] = [f"v{16 + q}" for q in range(6)]
    eg = epilogue_groups(0, lambda n: 192 + 4 * (n - 16) if n >= 16 else None)
    vR[:] = save
    b1 = [l for qi in range(6) for l in k2_loads_B(1, qi)]
    for n, (v, pre, st, imm) in enumerate(eg):
        m = b1[2 * (n - 8):2 * (n - 8) + 2] if 8 <= n < 14 else []
        o += v[:8] + m[:1] + v[8:16] + m[1:] + v[16:]
        if n < 16:
            o += pre + [st]
        if n == 15:
            o += [needvm(list(sPF)), valu("v_mov_b32", V2X, "v22")]
            for pi in range(5):
                o += [salu("s_lshl_b32", "s7", f"s{36 + pi}", 12), valu("v_add_u32", V2A[pi], "s7", V2L)]
            o += [salu("s_mul_i32", sA2, sWAVE, 16 * 20480), salu("s_add_u32", sPL, sA2, 20480), salu("s_add_u32", sA2, sA2, 2 * 20480)]
        if 16 <= n < 21:
            o += k2_lds_A(0, n - 16)
    late = [(g[1], vstore(("v", 192 + 4 * n), 4, V2L, S_OST, sE, g[3], tag="ost", flags=SC1)) for n, g in enumerate(eg[16:])]
    o += [l for pi in range(2, 5) for l in k2_loads_A(1, pi, sPL)]
    o += [salu("s_add_u32", sB2, sB2, 12288)]
    o += prof_stamp(1, 30)
    if OPT["prof"]:
        o += [valu("v_mov_b32", V2X, "v22")]
    o += srd(S2OUT, "s92", "s93", 7864320)
    o += [salu("s_mul_i32", sOB, "s6", 192 * 2560), salu("s_mul_i32", "s7", "s60", 96 * 2560), salu("s_add_u32", sOB, sOB, "s7"),
          salu("s_mul_i32", "s7", "s5", 1280), salu("s_add_u32", sOB, sOB, "s7"),
          salu("s_mul_i32", "s7", "s61", 320), salu("s_add_u32", sOB, sOB, "s7"), salu("s_mov_b32", sCNT, 6)]
    S0 = Sched()
    k2_steps(S0, True, [True, True], [True, True], [False, True], late=late)
    S0.order_fixed()
    first = S0.build()
    S1 = Sched()
    k2_steps(S1, False, [True, True], [True, True], [True, True], check=True)
    if OPT["prof"]:
        S1.put(3, raw("s_memrealtime s[76:77]", wr=["s76", "s77"]), raw("s_waitcnt lgkmcnt(0)", "drainlg"),
               salu("s_mov_b32", "s101", "s100"), salu("s_mov_b32", "s100", "s99"), salu("s_mov_b32", "s99", "s98"),
               salu("s_mov_b32", "s98", "s97"), salu("s_mov_b32", "s97", "s96"), salu("s_mov_b32", "s96", "s76"))
    S1.put(237, salu("s_sub_u32", sCNT, sCNT, 1))
    S1.order_fixed()
    loop = [label("L_k2")] + S1.build() + [scmp("s_cmp_lg_u32", sCNT, 0), raw("s_cbranch_scc1 L_k2", "branch", rd=["scc"])]
    R1, R2, i, a, V2O = V2A[0], V2A[1], V2A[2], V2A[3], V2A[4]
    setup = [salu("s_mul_i32", "s7", sWAVE, 30720), valu("v_add_u32", V2W, "s7", V2L), valu("v_lshrrev_b32", i, 4, V2L),
             valu("v_and_b32", a, 15, i), valu("v_mul_u32_u24", a, 2560, a), valu("v_lshrrev_b32", i, 4, i),
             valu("v_lshl_add_u32", V2O, i, 4, a),
             salu("s_xor_b32", sPL, sWAVE, 1), salu("s_sub_u32", sPL, sPL, sWAVE), salu("s_mul_i32", "s7", sPL, 30720),
             valu("v_add_u32", R1, "s7", V2W),
             salu("s_xor_b32", sPL, sWAVE, 3), salu("s_sub_u32", sPL, sPL, sWAVE), salu("s_mul_i32", "s7", sPL, 30720),
             valu("v_add_u32", R2, "s7", V2W)]
    sent = [(pi, xy, qi) for pi in range(5) for qi in range(3, 6) for xy in range(2)]
    wr = {t: ds_write("ds_write_b128", V2W, ("v", acc2(*t)), 4, n * 1024) for n, t in enumerate(sent)}
    S2 = Sched()
    e = []
    if OPT["redov"]:
        order = [wr[(pi, xy, qi)] for pi in range(5) for xy in range(2) for qi in range(3, 6)]
        k2_steps(S2, False, [False, False], [True, False], [True, False], final=(setup, order[:29]))
        e = order[29:]
    else:
        k2_steps(S2, False, [False, False], [True, False], [True, False])
        e = setup + list(wr.values())
    S2.order_fixed()
    last = S2.build()
    e += [needlgkm0(), barrier()] + prof_stamp(8, 236)
    for n, (pi, xy, qi) in enumerate(sent):
        e += [ds_read("ds_read_b128", ("v", acc2(pi, xy, qi)), 4, R1, n * 1024)]
    for s in list(range(7, 15)) + list(range(7)):
        pi, q = divmod(s, 3)
        d, t = acc2(pi, 0, q), acc2(pi, 0, q + 3)
        e += [valu("v_add_f32", f"v{d + r}", f"v{d + r}", f"v{t + r}") for r in range(8)]
        if s == 14:
            e += [needlgkm0()]
            for s2 in range(7, 15):
                p2, q2 = divmod(s2, 3)
                for xy in range(2):
                    e += [ds_write("ds_write_b128", R1, ("v", acc2(p2, xy, q2)), 4, ((s2 - 7) * 2 + xy) * 1024)]
    e += [needlgkm0(), barrier()]
    for s in range(8):
        pi, q = divmod(s, 3)
        for xy in range(2):
            e += [ds_read("ds_read_b128", ("v", acc2(pi, xy, q + 3)), 4, R2, ((14 - s - 7) * 2 + xy) * 1024)]
    for s in range(8):
        pi, q = divmod(s, 3)
        d0, t0 = acc2(pi, 0, q), acc2(pi, 0, q + 3)
        e += [valu("v_add_f32", f"v{d0 + r}", f"v{d0 + r}", f"v{t0 + r}") for r in range(8)]
        e += [valu("v_cvt_pk_bf16_f32", f"v{d0 + r}", f"v{d0 + 2 * r}", f"v{d0 + 2 * r + 1}") for r in range(4)]
        e += [salu("s_mul_i32", "s7", f"s{47 + q}", 40960), salu("s_lshl_b32", sPL, f"s{36 + pi}", 6),
              salu("s_add_u32", "s7", "s7", sPL), salu("s_add_u32", sSO, "s7", sOB),
              vstore(("v", d0), 4, V2O, S2OUT, sSO, 0, flags=OPT["outf"])]
    e += prof_stamp(9, 236)
    if OPT["prof"]:
        for n in range(6):
            e += [valu("v_mov_b32", "v236", 1), valu("v_mov_b32", "v237", f"s{101 - n}"), vstore(("v", 236), 2, "v251", S_PROF, 0, 8 * (2 + n)), nop(4)]
    e += [label("L_end"), raw("s_endpgm")]
    sp1 = spin("L_spin1", "L_spin1_back", vPOLL[:1], [sFG], [(0, "0xff", 8)]) + spin("L_spin3", "L_spin3_back", vPOLL[1:], [sFB], [(0, 0, 256)])
    sp2 = spin("L_spin2", "L_spin2_back", [V2P], [sFG], [(8, 0, 8)])
    return o, first, loop, last, e, sp1, sp2


def kernel():
    pro = prologue()
    q1 = q_phase(False)
    att = [label("L_att")] + a_phase()
    att += [raw("s_cbranch_vccnz L_slow", "branch", rd=["vcc"]), label("L_back")]
    att += [valu("v_rcp_f32", vR[qt], f"v{lacc(qt)}") for qt in range(6)]
    att += prof_stamp(29)
    if OPT["prof"]:
        att += [salu("s_add_u32", sPROF, sPROF, 240)]
    att += [scmp("s_cmp_eq_u32", sIT, 1), raw("s_cbranch_scc1 L_out", "branch", rd=["scc"]), salu("s_mov_b32", sIT, 1)]
    q2 = [label("L_q2")] + q_phase(True) + [raw("s_branch L_att", "branch")]
    o, first, loop2, last, e, sp1, sp2 = phase2()
    o = [label("L_out")] + o
    slow = slow_path()
    parts = [pro, q1, att, q2, o, first, loop2, last, e, slow, sp1, sp2]
    waits = compute_waits([pro + q1 + att + q2 + att + o + first + loop2 + loop2 + loop2 + last + e, slow, sp1, sp2])
    done = {}
    P = [apply_waits(x, waits, done) for x in parts]
    pads = pad_hazards([P[0] + P[1] + P[2] + P[3] + P[2] + P[4] + P[5] + P[6] + P[6] + P[7] + P[8], P[9], P[10], P[11]])
    al = ".p2align 3\n"
    return (emit(P[0] + P[1], pads) + al + emit(P[2] + P[3], pads) + al + emit(P[4] + P[5], pads) + al +
            emit(P[6] + P[7] + P[8] + P[9] + P[10] + P[11], pads) + "L_endcode:\n")


def main():
    kn = NAME + "_kernel"
    s = open("cdna_kernels/" + NAME + ".s.ref").read().split("; Override launch")[0]
    s += "; @launch grid=(256,1,1) block=(256,1,1) lds=163840\n"
    s += '.amdgcn_target "amdgcn-amd-amdhsa--gfx950"\n.text\n'
    s += f".globl {kn}\n.p2align 8\n.type {kn},@function\n{kn}:\n" + kernel()
    s += f""".section .rodata,"a"
.p2align 6
.amdhsa_kernel {kn}
  .amdhsa_next_free_vgpr 512
  .amdhsa_next_free_sgpr 102
  .amdhsa_accum_offset 256
  .amdhsa_group_segment_fixed_size 0
  .amdhsa_kernarg_size 104
  .amdhsa_user_sgpr_count 2
  .amdhsa_user_sgpr_kernarg_segment_ptr 1
  .amdhsa_system_sgpr_workgroup_id_x 1
.end_amdhsa_kernel
"""
    open(sys.argv[1], "w").write(s)


main()
```

```python
def orders(n, R=4, half=None, first2=0, newper=None):
    done = [set() for _ in range(R)]
    order = [[] for _ in range(R)]
    lead = [[] for _ in range(R)]
    avail = {}
    nxt = 0
    cnt = [0] * R
    for tau in range(n):
        k = newper[tau] if tau < len(newper) else 1
        news = []
        while len(news) < k and nxt < n and (half is None or nxt < half or tau >= first2):
            news.append(nxt); nxt += 1
        old = [sorted(x for x in avail if x not in done[r]) for r in range(R)]
        needy = [r for r in range(R) if not old[r]]
        if needy and not news:
            news.append(nxt); nxt += 1
        rest = sorted([r for r in range(R) if r not in needy], key=lambda r: (cnt[r], len(old[r]), r))
        leaders = needy + rest[:max(0, len(news) - len(needy))]
        for i, r in enumerate(leaders):
            s = news[i % len(news)] if len(leaders) <= len(news) or True else None
            if len(leaders) > len(news):
                s = news[i * len(news) // len(leaders)]
            done[r].add(s); order[r].append(s); lead[r].append(1); cnt[r] += 1
        for r in range(R):
            if r not in leaders:
                s = old[r][0]
                done[r].add(s); order[r].append(s); lead[r].append(0)
        for s in news: avail[s] = tau
    for r in range(R): assert sorted(order[r]) == list(range(n)), order
    return order, lead
if __name__ == "__main__":
    for np_ in ([4], [1,1,2,2,2,0,0], [1,2,2,2,1,0,0], [2,1,2,2,1,0,0], [2,2,2,1,1,0,0]):
        o, l = orders(16, 4, 8, 7, np_)
        print(np_, sum(map(sum, l)))
        for x, y in zip(o, l): print(x, y)
```

```python
import sys, math, struct
from fw3 import *
from orders import orders

NAME = "concat_heads__mha_block_cached__mha_block_cached__near_ridge"
OPT = dict(outf=' sc1', redov=1, one1=1, warmj=0, pk=1, pfq1=1, rot2=2, gate=0, pace=1, gstep=2, rotq=3, early=1, uni=0, prof=0, report=False, stg=67, warmw=True, codepf=True, codepf2=14, pf='', pf0=1, pfn=3, flagbar=12, map=0)
for a in sys.argv[2:]:
    k, v = a.split("=")
    OPT[k] = type(OPT[k])(int(v)) if not isinstance(OPT[k], str) else v

KB = 1024
SC1 = " sc1"
O_GRP = 2 * 786432
WS_WOT = 50331648
WOT_BLK = 5242880
WS_PROF = 64 * 1024 * 1024

S_K, S_V, S_X, S_WQ, S_OST, S_WO, S_WOT = 8, 12, 16, 20, 24, 28, 32
sKV, sWQ, sX, sW4K, sW6K, sO, sIT, sT0, sT1, sC, sWAVE = ["s%d" % i for i in range(36, 47)]
sWOS, sWOD, sWOX, sW5K, sHI, sLO = ["s%d" % i for i in range(47, 53)]
sPROF, sE, sJ = "s53", "s54", "s55"
sQT, sWS, sXS = "s50", "s67", "s95"
sROT, sFG, sFB, sCP = "s62", "s65", "s66", "s64"
sA2, sB2, sPL, sOB, sCNT, sSO, sQ, sSH, sWANT, sSPIN = "s28", "s29", "s30", "s31", "s67", "s68", "s69", "s70", "s71", "s94"
S_PROF, S_FLG = 72, 80
sPF = {("W", 0, 0): ["s84"], ("W", 0, 1): ["s85"], ("X", 0): ["s86", "s87"], ("X", 1): ["s98", "s99"], ("W", 1, 0): ["s100"], ("W", 1, 1): ["s101"],
       ("P", 0): ["s60"], ("P", 1): ["s61"]}
PF2 = {"s84": (0, 0, 0), "s85": (0, 1, 0), "s86": (0, 2, 0), "s98": (0, 3, 0), "s100": (0, 4, 0), "s101": (1, 0, 0),
       "s87": (1, 1, 0), "s99": (1, 1, 2048), "s60": (1, 2, 0), "s61": (1, 3, 0)}
vK = ["v%d" % i for i in range(192, 196)]
vV = ["v196", "v197"]
vW = ["v%d" % i for i in range(198, 202)]
vX = ["v%d" % i for i in range(202, 206)]
kA = ["v%d" % i for i in range(206, 210)]
vA = ["v%d" % i for i in range(210, 218)]
wA = ["v218", "v219"]
xA = ["v220", "v221"]
vJ, vL16 = "v222", "v223"
ONES = 224
EPI = 228
vR = ["v%d" % i for i in range(244, 250)]
vFLG = "v250"
vPUB = "v251"
vT = ["v252", "v253"]
vC2 = "v[242:243]"
vPOLL = ["v254", "v255"]

D = [i * 16 * KB for i in range(10)]
XS = [96 * KB, 120 * KB]
WOJ_ADDR = D[9]


def qacc(p, xy, qt):
    return 64 * (qt >> 1) + (2 * p + (qt & 1)) * 8 + 4 * xy


def qf(qt, p):
    return 64 * (qt >> 1) + (2 * p + (qt & 1)) * 4


def sreg(qt):
    return 64 * (qt >> 1) + 32 + 8 * (qt & 1)


def lacc(qt):
    return 64 * (qt >> 1) + 48 + 4 * (qt & 1)


ABUF = [192, 248]


def bx(qt, ks):
    return 200 + 8 * qt + 4 * ks


def kf(kt, ks):
    return 192 + 16 * kt + 4 * ks


def vf(dt):
    return 224 + 4 * dt


def oacc(qt, dt):
    return 32 * qt + 4 * dt


def build_units():
    U = {}
    for i in range(10):
        U[("X", i)] = dict(addr=XS[i % 2], size=24 * KB, N=i, I=i - 2)
        for u in range(2):
            U[("W", i, u)] = dict(addr=D[2 * (i % 3) + u], size=16 * KB, N=i, I=i - 2)
    U[("X", 0)]["I"] = -3
    U[("W", 0, 0)]["I"] = -3
    U[("W", 0, 1)]["I"] = -3
    U[("W", 1, 0)]["I"] = -2
    U[("W", 1, 1)]["I"] = -2
    pages = [9, 3, 2, 4, 5, 8, 1, 9, 0, 2, 3, 4, 6, 1, 5, 9, 0, 7, 3, 8, 2, 5, 1, 4, 0, 7, 3, 2, 8, 5, 9, 4]
    for u in range(32):
        key = ("K", u // 2) if u % 2 == 0 else ("V", u // 2)
        N = 10 + u // 2 + u % 2
        U[key] = dict(addr=D[pages[u]], size=16 * KB, N=N, I=N - 3)
    U[("J", 0)] = dict(addr=WOJ_ADDR, size=16 * KB, N=1, I=0)
    U[("J", 1)] = dict(addr=WOJ_ADDR, size=16 * KB, N=4, I=2)
    U[("P", 0)] = dict(addr=D[5], size=16 * KB, N=-0.5, I=-1)
    U[("P", 1)] = dict(addr=D[9], size=16 * KB, N=-0.5, I=-1)
    allu = [(k, u["addr"], u["addr"] + u["size"], u["N"] + 27 * r, u["I"] + 27 * r) for r in range(3) for k, u in U.items()]
    for a in allu:
        assert a[4] < a[3], a
        for b in allu:
            if a is not b and a[1] < b[2] and b[1] < a[2]:
                ra = a[3] - (a[0][0] == "X" and a[0][1] <= 7)
                rb = b[3] - (b[0][0] == "X" and b[0][1] <= 7)
                assert ra < b[4] or rb < a[4], (a, b)
    return U


U = build_units()
_alt = [0]


def next_st():
    _alt[0] ^= 1
    return [sT0, sT1][_alt[0]]


def jblocks(r, second):
    if second:
        return [8, 9] if r == 1 else []
    return range(4 * r, 4 * r + 4)


def unit_dmas(key, second=False):
    u = U[key]
    kind = key[0]
    if key in sPF:
        if kind in "WP":
            return [([salu("s_add_u32", "m0", sW4K, u["addr"])], [dma(vW[m], S_WQ, sPF[key][0], 1024 * m, key, SC1) for m in range(4)])]
        return [([salu("s_add_u32", "m0", sW6K, u["addr"])], [dma(vX[m], S_X, sPF[key][0], 1024 * m, key, SC1) for m in range(4)]),
                ([salu("s_add_u32", "m0", sW6K, u["addr"] + 4096)], [dma(vX[m], S_X, sPF[key][1], 1024 * m, key, SC1) for m in range(2)])]
    sT = next_st()
    if kind in "KV":
        pre = [salu("s_add_u32", sT, sROT, key[1] * 8192), salu("s_and_b32", sT, sT, "0x1ffff"), salu("s_add_u32", sT, sT, sKV),
               salu("s_add_u32", "m0", sW4K, u["addr"])]
        if kind == "K":
            return [(pre, [dma(vK[m], S_K, sT, 1024 * m, key, " nt") for m in range(4)])]
        return [(pre, [dma(vV[m & 1], S_V, sT, 1024 * m, key, " nt") for m in range(4)])]
    if kind == "W":
        if key[2] == 0:
            return [([salu("s_add_u32", "m0", sW4K, u["addr"])], [dma(vW[m], S_WQ, sWS, 1024 * m, key) for m in range(4)])]
        pre = [salu("s_add_u32", sT, sWS, 128), salu("s_add_u32", "m0", sW4K, u["addr"])]
        return [(pre, [dma(vW[m], S_WQ, sT, 1024 * m, key) for m in range(4)])]
    if kind == "X":
        g0 = ([salu("s_add_u32", "m0", sW6K, u["addr"])], [dma(vX[m], S_X, sXS, 1024 * m, key) for m in range(4)])
        pre2 = [salu("s_add_u32", sT, sXS, 40960), salu("s_add_u32", "m0", sW6K, u["addr"] + 4096)]
        return [g0, (pre2, [dma(vX[m], S_X, sT, 1024 * m, key) for m in range(2)])]
    gs = []
    for jj in jblocks(key[1], second):
        sTj = next_st()
        pre = [salu("s_add_u32", sTj, sWOS, jj * 128), salu("s_add_u32", "m0", sW4K, u["addr"] + (jj & 3) * 1024)]
        gs.append((pre, [dma(vX[0], S_WO, sTj, 0, key, " nt")]))
    return gs


def set_pf_proj(tail=False):
    o = []
    for key, rs in sPF.items():
        if key[0] == "P":
            o += [salu("s_mov_b32", rs[0], "0x10000000")] if tail else []
        elif key[0] == "W":
            o += [salu("s_add_u32", rs[0], sWQ, key[1] * 524288 + key[2] * 128)]
        else:
            o += [salu("s_add_u32", rs[0], sX, key[1] * 128), salu("s_add_u32", rs[1], sX, key[1] * 128 + 40960)]
    return o


ORD2 = orders(16, 4, 8, 7, {1: [4], 2: [1, 1, 2, 2, 2, 0, 0], 3: [1, 2, 2, 2, 1, 0, 0], 4: [2, 1, 2, 2, 1, 0, 0]}[OPT["rot2"]])[0] if OPT["rot2"] else [list(range(16))] * 4
ORDQ = orders(10, 4, None, 0, {1: [1, 1, 2, 2, 2, 1, 1], 2: [1, 1, 4], 3: [1, 1, 2, 2, 1, 1, 1, 1]}[OPT["rotq"]])[0] if OPT["rotq"] else [list(range(10))] * 4
assert all(o[:2] == [0, 1] for o in ORDQ)
TBLQ = [sum(x << (4 * n) for n, x in enumerate(o[2:])) for o in ORDQ]
TBL2 = [sum(x << (4 * n) for n, x in enumerate(o)) for o in ORD2]


def next_off(dst, tbl, base, stride):
    return [salu("s_and_b32", dst, f"s{tbl}", 15), salu("s_lshr_b64", f"s[{tbl}:{tbl + 1}]", f"s[{tbl}:{tbl + 1}]", 4),
            salu("s_mul_i32", dst, dst, stride), salu("s_add_u32", dst, dst, base)]


def set_pf_out():
    o = [salu("s_and_b32", "s68", "s4", 3), salu("s_mul_i32", "s68", "s68", 1310720), salu("s_mul_i32", "s69", "s5", WOT_BLK),
         salu("s_add_u32", "s68", "s68", "s69"), salu("s_add_u32", "s68", "s68", WS_WOT)]
    o += [[salu("s_add_u32", f"s{S_WQ}", "s90", "s68"), salu("s_addc_u32", "s69", "s91", 0)]]
    o += [salu("s_and_b32", f"s{S_WQ + 1}", "s69", "0xffff"), salu("s_mov_b32", f"s{S_WQ + 2}", 1310720),
          salu("s_mov_b32", f"s{S_X}", f"s{S_WQ}"), salu("s_mov_b32", f"s{S_X + 1}", f"s{S_WQ + 1}"), salu("s_mov_b32", f"s{S_X + 2}", 1310720)]
    o += [salu("s_lshr_b32", "s70", sWAVE, 1), salu("s_mul_i32", "s68", sWAVE, 16 * 20480), salu("s_lshl_b32", "s69", "s70", 14),
          salu("s_add_u32", "s68", "s68", "s69"), salu("s_lshl_b32", "s69", "s70", 13), salu("s_sub_u32", "s69", 4096, "s69")]
    o += [salu("s_add_u32", "s70", "s3", "s4"), salu("s_and_b32", "s70", "s70", 3),
          salu("s_mov_b32", "s34", "0x%x" % (TBL2[0] & 0xffffffff)), salu("s_mov_b32", "s35", "0x%x" % (TBL2[0] >> 32))]
    for r in range(1, 4):
        o += [[scmp("s_cmp_eq_u32", "s70", r), salu("s_cselect_b32", "s34", "0x%x" % (TBL2[r] & 0xffffffff), "s34"),
               salu("s_cselect_b32", "s35", "0x%x" % (TBL2[r] >> 32), "s35")]]
    o += [salu("s_and_b32", "s70", "s34", 15), salu("s_mul_i32", "s70", "s70", 20480), salu("s_add_u32", "s70", "s70", "s68"),
          salu("s_bfe_u32", "s71", "s34", "0x40004"), salu("s_mul_i32", "s71", "s71", 20480), salu("s_add_u32", "s71", "s71", "s68")]
    for r, (st, pi, off) in PF2.items():
        o += [salu("s_mul_i32", r, "s69", pi), salu("s_add_u32", r, r, "s71" if st else "s70")]
        if off:
            o += [salu("s_add_u32", r, r, off)]
    return o


def epoch_groups(n, second=False):
    order = {"W": 0, "X": 1, "K": 2, "V": 2, "J": 3, "P": 4}
    keys = sorted([k for k, u in U.items() if u["I"] % 27 == n and k != ("J", 0)], key=lambda k: (k[0] == "P", U[k]["N"] - U[k]["I"], order[k[0]], k))
    return [g for k in keys for g in unit_dmas(k, second)]


def place_dmas(S, groups, cand, lo):
    ci = 0
    for pre, ds in groups:
        g = cand[ci]
        for n, p in enumerate(pre):
            S.put(max(lo, g - len(pre) + n), p)
        for d in ds:
            S.put(cand[ci], d)
            ci += 1


def tags_for(n):
    t = [k for k, u in U.items() if (u["N"] - (n + 1)) % 27 == 0]
    if n == OPT["flagbar"]:
        t += ["ost", "jst"]
    return t


def atomic_add(vdata, soff):
    return Ins(f"buffer_atomic_add {vdata}, {vFLG}, s[{S_FLG}:{S_FLG + 3}], {soff} offen sc1", "atomic",
               rd=[vdata, vFLG, soff] + regs("s", S_FLG, 4), tag="flag")


def poll_load(vdst, soff):
    return Ins(f"buffer_load_dword {vdst}, off, s[{S_FLG}:{S_FLG + 3}], {soff} sc1", "vld", rd=[soff] + regs("s", S_FLG, 4), wr=[vdst])


class Win:
    def __init__(self, rs, init):
        self.rs = rs
        self.cur = init

    def move(self, new):
        d = (new - self.cur) & 0xffffffff
        self.cur = new
        return [valu("v_add_u32", r, "0x%x" % d, r) for r in self.rs] if d else []


def plan_windows(addrs, span):
    want = []
    i = 0
    while i < len(addrs):
        lo = hi = addrs[i]
        j = i + 1
        while j < len(addrs) and max(hi, addrs[j]) - min(lo, addrs[j]) + span < 65536:
            lo, hi = min(lo, addrs[j]), max(hi, addrs[j])
            j += 1
        want += [lo] * (j - i)
        i = j
    return want


KWANT = plan_windows([U[("K", t)]["addr"] for t in range(16)], 4096)
VWANT = plan_windows([U[("V", t)]["addr"] for t in range(16)], 4096)
WWANT = plan_windows([U[("W", i, 1)]["addr"] for i in range(10)], 4096 + 520)
WWANT = [0 if w < 64 * KB else 64 * KB for w in [U[("W", i, 0)]["addr"] for i in range(10)]]


def pstore(v0, idx):
    return Ins(f"buffer_store_dwordx2 v[{v0}:{v0 + 1}], off, s[{S_PROF}:{S_PROF + 3}], {sPROF} offset:{8 * idx}", "vst",
               rd=[f"v{v0}", f"v{v0 + 1}", sPROF] + regs("s", S_PROF, 4))


def prof_stamp(idx, v0=252):
    if not OPT["prof"]:
        return []
    return [raw("s_memtime s[76:77]", "other", wr=["s76", "s77"]),
            raw("s_memrealtime s[78:79]", "other", wr=["s78", "s79"]),
            raw("s_waitcnt lgkmcnt(0)", "drainlg"),
            valu("v_mov_b32", f"v{v0}", "s76"),
            valu("v_mov_b32", f"v{v0 + 1}", "s78"),
            pstore(v0, idx)]


def bar_seq(tags, idx):
    if OPT["prof"] < 2:
        return [needboth(tags), barrier()] + prof_stamp(idx)
    return [raw("s_memtime s[58:59]", "other", wr=["s58", "s59"]), raw("s_waitcnt lgkmcnt(0)", "drainlg"),
            needboth(tags), barrier(),
            raw("s_memtime s[76:77]", "other", wr=["s76", "s77"]),
            raw("s_memrealtime s[78:79]", "other", wr=["s78", "s79"]),
            raw("s_waitcnt lgkmcnt(0)", "drainlg"), salu("s_sub_u32", "s76", "s76", "s58"),
            valu("v_mov_b32", "v252", "s76"), valu("v_mov_b32", "v253", "s78"), pstore(252, idx)]


def a_read(i, dt, ks, t, win):
    p, xy = dt >> 1, dt & 1
    off = U[("W", i, p >> 1)]["addr"] - win + ks * 4096 + t * 512 + xy * 8
    return ds_read("ds_read_b64_tr_b16", ("a", ABUF[dt % 2] + 4 * ks + 2 * t), 2, wA[p & 1], off)


def first_reads(i):
    ax = U[("X", i)]["addr"] - XS[0]

    def A(ks, t):
        return a_read(i, 0, ks, t, WWANT[i])

    def B(qt, ks):
        return ds_read("ds_read_b128", ("a", bx(qt, ks)), 4, xA[ks], ax + qt * 2048)
    return [A(0, 0), A(0, 1), B(0, 0), A(1, 0), A(1, 1), B(0, 1)] + [B(qt, ks) for qt in range(1, 6) for ks in range(2)]


def k_read(t, j):
    kt, ks = j >> 2, j & 3
    return ds_read("ds_read_b128", ("a", kf(kt, ks)), 4, kA[ks], U[("K", t)]["addr"] - KWANT[t] + kt * 4096)


def epilogue_groups(tmp, dst=None, vaddr=None):
    groups = []
    n = 0
    for T in range(3):
        for ph in range(2):
            for qs in range(2):
                for pl in range(2):
                    qt = 2 * T + qs
                    tb = tmp + 4 * (n % 3)
                    src = oacc(qt, 4 * ph + 2 * pl)
                    db = tb if dst is None or dst(n) is None else dst(n)
                    rd = [valu("v_accvgpr_read_b32", f"v{tb + i}", f"a{src + i}") for i in range(8)]
                    mu = [valu("v_mul_f32", f"v{tb + i}", vR[qt], f"v{tb + i}") for i in range(8)]
                    cv = [valu("v_cvt_pk_bf16_f32", f"v{db + i}", f"v{tb + 2 * i}", f"v{tb + 2 * i + 1}") for i in range(4)]
                    pre = [salu("s_add_u32", sE, sO, ph * 12288 + T * 4096)] if qs == 0 and pl == 0 else []
                    imm = qs * 2048 + pl * 1024
                    groups.append((rd + mu + cv, pre, vstore(("v", db), 4, vaddr or vL16, S_OST, sE, imm, tag="ost", flags=SC1), imm))
                    n += 1
    return groups


def conv_items(T, ps, packed=()):
    out = []
    for p in ps:
        for qs in range(2):
            R, Dd = qacc(p, 0, 2 * T + qs), qf(2 * T + qs, p)
            if p in packed:
                out += [(p, qs, valu("v_pk_mul_f32", f"v[{R + x}:{R + x + 1}]", f"v[{R + x}:{R + x + 1}]", "s[86:87]" if False else vC2)) for x in range(0, 8, 2)]
            else:
                out += [(p, qs, valu("v_mul_f32", f"v{R + x}", sC, f"v{R + x}")) for x in range(8)]
            out += [(p, qs, valu("v_cvt_pk_bf16_f32", f"v{Dd + x}", f"v{R + 2 * x}", f"v{R + 2 * x + 1}")) for x in range(4)]
    return out


def q_phase(second):
    S = Sched()
    ww = Win(wA, 0)
    for i in range(10):
        q0 = S.n()
        for dt in range(8):
            for qt in range(6):
                for ks in range(2):
                    acc = ("v", qacc(dt >> 1, dt & 1, qt))
                    S.add(mfma(16, acc, ("a", ABUF[dt % 2] + 4 * ks), ("a", bx(qt, ks)), None if (i == 0 and ks == 0) else acc))
        for dt in range(1, 8):
            gaps = [4, 5, 6, 7] if dt == 1 else [0, 2, 3, 4]
            for n, (ks, t) in enumerate([(0, 0), (0, 1), (1, 0), (1, 1)]):
                S.put(q0 + 12 * (dt - 1) + gaps[n], a_read(i, dt, ks, t, WWANT[i]))
        if i <= 7:
            S.put(q0 + 11, needboth([("W", 0, 1)] if i == 0 else []), barrier())
        S.put(q0 + 83, *bar_seq(tags_for(i), 2 + i))
        if i < 9:
            S.put(q0 + 79, *ww.move(WWANT[i + 1]))
            for n, r in enumerate(first_reads(i + 1)):
                S.put(q0 + 84 + n, r)
        else:
            S.put(q0 + 79, *ww.move(0))
            kw = Win(kA, KWANT[15])
            mv = kw.move(KWANT[0])
            S.put(q0 + 80, *mv[:2])
            S.put(q0 + 82, *mv[2:])
            for j in range(8):
                S.put(q0 + 84 + j, k_read(0, j))
        if i <= 7:
            for n, x in enumerate([salu("s_bfe_u32", sXS, sQT, "0x%x" % (0x40000 + 4 * i)), salu("s_lshl_b32", sWS, sXS, 19),
                                   salu("s_add_u32", sWS, sWS, sWQ), salu("s_lshl_b32", sXS, sXS, 7), salu("s_add_u32", sXS, sXS, sX)]):
                S.put(q0 + 5 + n, x)
        place_dmas(S, epoch_groups(i, second), [q0 + 13 + 4 * x for x in range(18)], q0 + 11)
    for r in range(2):
        q0 = 96 * U[("J", r)]["N"]
        for jj in jblocks(r, second):
            k = jj & 3
            for tt in range(2):
                S.put(q0 + 18 + 12 * k + 2 * tt, ds_read("ds_read_b64_tr_b16", ("a", 4 * k + 2 * tt), 2, vJ, k * 1024 + tt * 8192))
            nq, pair = divmod(2 * jj, 5)
            g = q0 + 69 + 4 * k
            S.put(g - 1, salu("s_add_u32", sJ, sWOX if pair == 4 else sWOD, nq * 1310720 + pair * 4096))
            S.put(g, vstore(("a", 4 * k), 4, vL16, S_WOT, sJ, 0, tag="jst", flags=SC1))
    if OPT["pf"] and not (second and OPT["pfq1"]):
        lds = []
        for name in OPT["pf"].split(","):
            kind, t = name[0], int(name[1:])
            pre = [salu("s_add_u32", sJ, sROT, t * 8192), salu("s_and_b32", sJ, sJ, "0x1ffff"), salu("s_add_u32", sJ, sJ, sKV)]
            for m in range(4):
                l = vload(("v", 252), 4, vL16, S_K if kind == "K" else S_V, sJ, 1024 * m, tag="pf")
                l.wr = set()
                lds.append((pre if m == 0 else [], l))
        i, k = OPT["pf0"], 0
        for pre, l in lds:
            g = 96 * i + ([69, 73, 77, 81] if OPT['pfn'] <= 4 else [19, 31, 43, 55, 67, 71, 75, 79])[k]
            while S.fixed.get(g) or (second and False):
                g += 1
            for n, p in enumerate(pre):
                S.put(g - 3 + n, p)
            S.put(g, l)
            k += 1
            if k == OPT["pfn"]:
                k = 0
                i += 1
        assert i <= 10
    if second:
        eg = epilogue_groups(EPI)
        ep = []
        for i in range(8):
            for g in eg[3 * i:3 * i + 3]:
                ep += [(x, 96 * i, None) for x in g[0]]
            for g in eg[3 * i:3 * i + 3]:
                ep += [(x, 96 * i + OPT["stg"], None) for x in g[1] + [g[2]]]
        ep[-1] = (ep[-1][0], ep[-1][1], 96 * 9 - 1)
        S.stream(ep)
        S.put(96 * 9 + 2, salu("s_add_u32", sO, sO, 8 * 12288))
    q0 = 96 * 9
    g = q0 + 43
    for x in ([salu("s_add_u32", sWQ, sWQ, 512)] + set_pf_proj(True) if not second else set_pf_out()):
        S.put(g, *(x if isinstance(x, list) else [x]))
        g += 1 if g < q0 + 94 else 0
        if g == q0 + 83:
            g += 1
    if second:
        S.stream([(valu("v_mov_b32", r, vL16), q0 + 43, None) for r in vW + vX])
    S.put(q0 + 7, valu("v_mov_b32", "v242", sC), valu("v_mov_b32", "v243", sC))
    if OPT["gate"]:
        if second:
            S.put(2, salu("s_mov_b32", sPG, 32))
        for i in (3, 5, 7, 9):
            p = publish(i + 1)
            p[0] = salu("s_add_u32", sJ, sPG, i + 1)
            p[1] = valu("v_mov_b32", vPT, sJ)
            S.put(96 * i + 79, p[0], p[1])
            S.put(96 * i + 82, p[2])
    S.stream([(x, min(q0 + 12 * (2 * p + 1) + 2 * qs + 1 + 2, q0 + 95), None) for p, qs, x in conv_items(0, range(4))])
    S.put(-1, *prof_stamp(1))
    return S.finish(lead=first_reads(0), report=OPT["report"])


vPA, vPV, vPT = "v239", "v240", "v254"
sPG, sGT = "s63", "s67"
GATE_SPINS = []


def publish(n):
    return [salu("s_add_u32", sGT, sPG, n), valu("v_mov_b32", vPT, sGT),
            Ins(f"buffer_store_dword {vPT}, {vPUB}, s[{S_FLG}:{S_FLG + 3}], 0 offen sc1", "vst", rd=[vPT, vPUB] + regs("s", S_FLG, 4), tag="pub")]


def gate_poll():
    return Ins(f"buffer_load_dword {vPV}, {vPA}, s[{S_FLG}:{S_FLG + 3}], 0 offen offset:128 sc1", "vld", rd=[vPA] + regs("s", S_FLG, 4), wr=[vPV])


def gate(n):
    name = f"L_gate{n}"
    GATE_SPINS.extend([label(name), salu("s_mov_b32", sSPIN, 0), label(name + "_loop"), raw("s_sleep 2"), gate_poll(), drain(),
                       salu("s_add_u32", sSPIN, sSPIN, 1), scmp("s_cmp_gt_u32", sSPIN, "0x20000"),
                       raw(f"s_cbranch_scc1 {name}_back", "branch", rd=["scc"]),
                       valu("v_cmp_gt_u32", "vcc", sGT, vPV), nop(4), raw(f"s_cbranch_vccnz {name}_loop", "branch", rd=["vcc"]),
                       raw(f"s_branch {name}_back", "branch")])
    return ([salu("s_add_u32", sGT, sPG, n), valu("v_cmp_gt_u32", "vcc", sGT, vPV)],
            [raw(f"s_cbranch_vccnz {name}", "branch", rd=["vcc"]), label(name + "_back")])


def lspread(qt, tmp):
    l = f"v{lacc(qt)}"
    return [valu("v_mov_b32", tmp, l), perm("v_permlane32_swap_b32", tmp, l), valu("v_add_f32", l, l, tmp),
            valu("v_mov_b32", tmp, l), perm("v_permlane16_swap_b32", tmp, l), valu("v_add_f32", l, l, tmp)]


def interleave(a, b):
    return [x for p in zip(a, b) for x in p]


def lcheck():
    l = [f"v{lacc(qt)}" for qt in range(6)]
    return [valu("v_add_f32", vT[0], l[0], l[1]), valu("v_min3_f32", vT[1], l[0], l[1], l[2]),
            valu("v_add_f32", vT[0], vT[0], l[2]), valu("v_min3_f32", vT[1], vT[1], l[3], l[4]),
            valu("v_add_f32", vT[0], vT[0], l[3]), valu("v_add_f32", vT[0], vT[0], l[4]),
            valu("v_min_f32", vT[1], vT[1], l[5]), valu("v_add_f32", vT[0], vT[0], l[5]),
            valu("v_cmp_nlt_f32", "s[56:57]", sLO, vT[1]),
            valu("v_cmp_ngt_f32", "vcc", sHI, vT[0]),
            salu("s_or_b64", "vcc", "vcc", "s[56:57]")]


def a_phase():
    S = Sched()
    qk = [[0] * 3 for _ in range(16)]
    pv = [[0] * 3 for _ in range(16)]

    def QK(t, T):
        qk[t][T] = S.n()
        for qs in range(2):
            for kt in range(2):
                s = ("v", sreg(2 * T + qs) + 4 * kt)
                for ks in range(4):
                    S.add(mfma(16, s, ("a", kf(kt, ks)), ("v", qf(2 * T + qs, ks)), None if ks == 0 else s))

    def PV(t, T):
        pv[t][T] = S.n()
        sums = []
        for qs in range(2):
            l = ("v", lacc(2 * T + qs))
            sums.append(mfma(16, l, ("v", ONES), ("v", sreg(2 * T + qs)), None if t == 0 else l))
        if t == 15:
            for m in sums:
                S.add(m)
        for dt in range(8):
            for qs in range(2):
                o = ("a", oacc(2 * T + qs, dt))
                S.add(mfma(16, o, ("a", vf(dt)), ("v", sreg(2 * T + qs)), None if t == 0 else o))
        if t < 15:
            for m in sums:
                S.add(m)

    for t in range(16):
        QK(t, 0)
        if t:
            PV(t - 1, 1)
        QK(t, 1)
        if t:
            PV(t - 1, 2)
        QK(t, 2)
        PV(t, 0)
    PV(15, 1)
    PV(15, 2)
    bar = {}
    kw, vw = Win(kA, KWANT[0]), Win(vA, VWANT[0])
    for t in range(16):
        g0 = pv[t - 1][2] if t else qk[0][1]
        bar[10 + t] = g0 - 1
        S.put(g0 - 1, *bar_seq(tags_for(10 + t), 12 + t))
        for n, m in enumerate(vw.move(VWANT[t])):
            S.put(g0 - 14 + 3 * (n // 2), m)
        for dt in range(8):
            for tt in range(2):
                S.put(g0 + 4 * dt + 1 + 2 * tt,
                      ds_read("ds_read_b64_tr_b16", ("a", vf(dt) + 2 * tt), 2, vA[dt], U[("V", t)]["addr"] - VWANT[t] + tt * 4096))
        if t < 15:
            for n, m in enumerate(kw.move(KWANT[t + 1])):
                S.put((qk[t][0] + 9 if t else qk[0][2] + 2) + (3 if t else 2) * (n // 2), m)
            for j in range(8):
                S.put(qk[t][2] + [8, 10, 12, 14, 17, 19, 21, 23][j], k_read(t + 1, j))
    S.stream([(m, pv[15][0], None) for m in vw.move(VWANT[0])])
    bar[26] = pv[15][1] - 1
    S.put(bar[26], *bar_seq(tags_for(26), 28))
    fr = first_reads(0)
    for n, r in enumerate(fr[:10]):
        S.put(pv[15][1] + [1, 3, 5, 7, 9, 11, 13, 15, 16, 17][n], r)
    for n, r in enumerate(fr[10:]):
        S.put(pv[15][2] + 3 + 2 * n, r)
    for n in range(10, 27):
        groups = epoch_groups(n)
        nd = sum(len(g[1]) for g in groups)
        if n == 10:
            cand = [2 * x for x in range(8)]
            lo = -1
        else:
            lo = bar[n - 1] + 1
            if n == 11 or n == 26 or OPT["uni"]:
                a = lo + 5
            else:
                a = qk[n - 10][0] + 1 if nd <= 8 else pv[n - 11][0] + 6
            b = bar[n] - 1
            cand = []
            for x in range(nd):
                g = a + (b - a) * x // nd
                while any(i.kind in MEMK for i in S.fixed.get(g, [])) or g in cand:
                    g += 1
                cand.append(g)
            assert not cand or cand[-1] < bar[n]
        place_dmas(S, groups, cand, lo)
    S.put(pv[15][0] + 2, salu("s_add_u32", sKV, sKV, 262144))
    g = bar[OPT["flagbar"]] + 2
    S.put(g, valu("v_mov_b32", f"v{EPI}", "0x10000"), valu("v_mov_b32", f"v{EPI + 1}", sIT))
    S.put(g + 4, atomic_add(f"v{EPI}", sFB))
    S.put(g + 8, atomic_add(f"v{EPI + 1}", sFG))
    g = qk[12][0]
    S.put(g + 1, scmp("s_cmp_eq_u32", sIT, 1), salu("s_cselect_b32", sE, sFB, "0x1000"))
    S.put(g + 3, poll_load(vPOLL[1], sE))
    g = qk[13][0]
    S.put(g + 1, salu("s_lshl_b32", sWANT, sIT, 24), valu("v_readfirstlane_b32", sQ, vPOLL[1]))
    S.put(g + 4, scmp("s_cmp_lt_u32", sQ, sWANT), raw("s_cbranch_scc1 L_spin3", "branch", rd=["scc"]), label("L_spin3_back"))
    g = qk[15][1]
    S.put(g + 1, scmp("s_cmp_eq_u32", sIT, 1), salu("s_cselect_b32", sE, sFG, "0x1000"))
    S.put(g + 3, poll_load(vPOLL[0], sE))
    if OPT["codepf2"]:
        g = qk[OPT["codepf2"]][0] - 6
        S.put(g - 2, salu("s_mul_i32", sJ, sIT, "L_out-L_q2"))
        S.put(g - 1, salu("s_add_u32", sJ, sJ, "L_q2-L_pc"))
        S.put(g, salu("s_add_u32", sJ, sJ, sCP))
        S.put(g + 1, salu("s_min_u32", sJ, sJ, "L_endcode-L_pc-256"))
        S.put(g + 2, valu("v_and_b32", f"v{EPI + 2}", 16, vL16), valu("v_lshlrev_b32", f"v{EPI + 2}", 3, f"v{EPI + 2}"))
        S.put(g + 3, valu("v_add_u32", f"v{EPI + 2}", sJ, f"v{EPI + 2}"))
        S.put(g + 5, Ins(f"global_load_dword v{EPI + 3}, v{EPI + 2}, s[96:97]", "vld", rd=[f"v{EPI + 2}", "s96", "s97"], wr=[f"v{EPI + 3}"]))
    if OPT["gate"]:
        def free(g):
            while S.fixed.get(g) or S.fixed.get(g - 1):
                g += 1
            return g
        S.put(qk[0][2] + 1, valu("v_lshrrev_b32", vPA, 2, vL16), valu("v_and_b32", vPA, 28, vPA))
        for n in range(11, 24, OPT["gstep"]):
            p = publish(n)
            g = free(bar[n] + 2)
            S.put(g - 1, p[0], p[1])
            S.put(free(g + 2), p[2])
            S.put(free(bar[n] + 60), gate_poll())
            a, b = gate(n + 1 - OPT["gate"])
            g = free(bar[n + 1] + 20)
            S.put(g, *a)
            S.put(g + 2, *b)
    for T in (1, 2):
        if OPT["pk"]:
            nfree = 1 if T == 1 else 0
            S.stream([(x, -1, None) for p, qs, x in conv_items(T, range(nfree))] +
                     [(x, qk[0][T] - 1, qk[0][T] - 1) for p, qs, x in conv_items(T, range(nfree, 4), packed=range(4))])
        else:
            c = [(x, -1, None) for p, qs, x in conv_items(T, range(4))]
            c[-1] = (c[-1][0], -1, qk[0][T] - 1)
            S.stream(c)
    fin = []
    if OPT["one1"]:
        for T in range(3):
            fin += [(x, [pv[15][1] + 12, pv[15][2], pv[15][2] + 4][T], None) for x in interleave(lspread(2 * T, f"v{lacc(2 * T) + 1}"), lspread(2 * T + 1, f"v{lacc(2 * T + 1) + 1}"))]
    S.stream(fin + [(x, pv[15][2] + 4, None) for x in lcheck()])
    units = []
    for t in range(16):
        for qt in range(6):
            s = sreg(qt)
            T, qs = qt >> 1, qt & 1
            dl = pv[t][T] + qs - 2
            units.append(dict(e=qk[t][T] + 8 * qs + 7 + 2,
                              exps=[valu("v_exp_f32", f"v{s + r}", f"v{s + r}") for r in range(8)],
                              cvts=[(valu("v_cvt_pk_bf16_f32", f"v{s + r}", f"v{s + 2 * r}", f"v{s + 2 * r + 1}"), 2 * r + 2, dl) for r in range(4)]))
    S.packers.append(SoftmaxPacker(units))
    return S.finish(lead=[k_read(0, j) for j in range(8)], report=OPT["report"])


def slow_path():
    o = [label("L_slow"), drain(), nop(16)]
    KF = [EPI + 4 * k for k in range(4)]
    VFR = 56
    vM = [f"v{120 + q}" for q in range(6)]
    vKo, vVo, vt, vu = "v60", "v61", "v62", "v63"
    o += [valu("v_lshrrev_b32", vt, 4, vL16), valu("v_and_b32", vu, 15, vt), valu("v_lshrrev_b32", vt, 4, vt),
          valu("v_lshlrev_b32", vKo, 8, vu), valu("v_lshl_add_u32", vKo, vt, 4, vKo),
          valu("v_lshlrev_b32", vVo, 10, vt), valu("v_lshl_add_u32", vVo, vu, 1, vVo)]
    o += [salu("s_sub_u32", "s58", sKV, 262144)]
    o += [valu("v_mov_b32", m, "0xff800000") for m in vM]

    def scores():
        r = []
        for kt in range(2):
            r += [salu("s_add_u32", "s61", "s59", kt * 4096)]
            r += [vload(("v", KF[ks]), 4, vKo, S_K, "s61", 64 * ks) for ks in range(4)] + [drain()]
            for qt in range(6):
                s = ("v", sreg(qt) + 4 * kt)
                r += [mfma(16, s, ("v", KF[ks]), ("v", qf(qt, ks)), None if ks == 0 else s) for ks in range(4)]
            r += [nop(16)]
        return r
    o += [salu("s_mov_b32", "s59", "s58"), salu("s_mov_b32", "s60", 16), label("L_slow1")] + scores()
    for qt in range(6):
        o += [valu("v_max3_f32", vM[qt], vM[qt], f"v{sreg(qt) + r}", f"v{sreg(qt) + r + 1}") for r in range(0, 8, 2)]
    o += [salu("s_add_u32", "s59", "s59", 8192), salu("s_sub_u32", "s60", "s60", 1), scmp("s_cmp_lg_u32", "s60", 0),
          raw("s_cbranch_scc1 L_slow1", "branch", rd=["scc"])]
    for qt in range(6):
        for op in ("v_permlane32_swap_b32", "v_permlane16_swap_b32"):
            o += [valu("v_mov_b32", vt, vM[qt]), nop(2), perm(op, vt, vM[qt]), valu("v_max_f32", vM[qt], vM[qt], vt)]
        o += [valu("v_mov_b32", f"v{lacc(qt) + r}", 0) for r in range(4)]
    o += [valu("v_accvgpr_write_b32", f"a{r}", 0) for r in range(192)]
    o += [salu("s_mov_b32", "s59", "s58"), salu("s_mov_b32", "s60", 16), label("L_slow2")] + scores()
    for qt in range(6):
        s = sreg(qt)
        o += [valu("v_sub_f32", f"v{s + r}", f"v{s + r}", vM[qt]) for r in range(8)]
        o += [valu("v_exp_f32", f"v{s + r}", f"v{s + r}") for r in range(8)]
        o += [valu("v_cvt_pk_bf16_f32", f"v{s + r}", f"v{s + 2 * r}", f"v{s + 2 * r + 1}") for r in range(4)]
    o += [salu("s_add_u32", "s57", "s59", 4096)]
    for dt in range(8):
        for j in range(8):
            o += [vload(("v", 184 + j), 1, vVo, S_V, "s57" if j >= 4 else "s59", (j & 3) * 256 + 32 * dt, op="buffer_load_ushort")]
        o += [drain()]
        o += [valu("v_lshl_or_b32", f"v{VFR + r}", f"v{185 + 2 * r}", 16, f"v{184 + 2 * r}") for r in range(4)]
        o += [mfma(16, ("a", oacc(qt, dt)), ("v", VFR), ("v", sreg(qt)), ("a", oacc(qt, dt))) for qt in range(6)]
        o += [nop(8)]
    o += [mfma(16, ("v", lacc(qt)), ("v", ONES), ("v", sreg(qt)), ("v", lacc(qt))) for qt in range(6)] + [nop(16)]
    o += [salu("s_add_u32", "s59", "s59", 8192), salu("s_sub_u32", "s60", "s60", 1), scmp("s_cmp_lg_u32", "s60", 0),
          raw("s_cbranch_scc1 L_slow2", "branch", rd=["scc"])]
    o += [nop(16)]
    if OPT["one1"]:
        for qt in range(6):
            o += lspread(qt, vt)
    o += [drain(), raw("s_branch L_back", "branch")]
    return o


def srd(base, lo, hi, nbytes):
    return [salu("s_mov_b32", f"s{base}", lo), salu("s_and_b32", f"s{base + 1}", hi, "0xffff"),
            salu("s_mov_b32", f"s{base + 2}", nbytes), salu("s_mov_b32", f"s{base + 3}", "0x20000")]


def decode_wg():
    return [salu("s_and_b32", "s3", "s2", 7), salu("s_lshr_b32", "s4", "s2", 6), salu("s_lshl_b32", "s3", "s3", 2),
            salu("s_add_u32", "s3", "s3", "s4"), salu("s_lshr_b32", "s4", "s2", 3), salu("s_and_b32", "s4", "s4", 7),
            salu("s_lshr_b32", "s5", "s3", 4), salu("s_and_b32", "s6", "s3", 15)]


def prologue():
    o = [scmp("s_cmp_ge_u32", "s2", 256), raw("s_cbranch_scc1 L_end", "branch", rd=["scc"])]
    o += decode_wg()
    o += [salu("s_mul_i32", "s7", "s5", 40), salu("s_add_u32", "s68", "s0", "s7"), salu("s_addc_u32", "s69", "s1", 0),
          raw("s_load_dwordx8 s[56:63], s[68:69], 0", wr=regs("s", 56, 8)),
          raw("s_load_dwordx2 s[94:95], s[68:69], 32", wr=["s94", "s95"]),
          raw("s_load_dwordx4 s[88:91], s[0:1], 88", wr=regs("s", 88, 4)),
          raw("s_load_dwordx2 s[92:93], s[0:1], 80", wr=["s92", "s93"])]
    i, a, b, c = "v1", "v2", "v3", "v4"
    o += [valu("v_lshrrev_b32", a, 6, "v0"), valu("v_and_b32", i, 63, "v0"),
          valu("v_readfirstlane_b32", sWAVE, a), valu("v_lshlrev_b32", vL16, 4, i)]
    o += [valu("v_lshrrev_b32", a, 4, i), valu("v_and_b32", b, 7, i), valu("v_lshrrev_b32", "v5", 3, i),
          valu("v_and_b32", c, 1, a), valu("v_lshlrev_b32", c, 1, c), valu("v_xor_b32", c, c, b), valu("v_lshlrev_b32", c, 4, c),
          valu("v_lshl_add_u32", vW[0], "v5", 13, c),
          valu("v_xor_b32", vW[1], 64, vW[0]), valu("v_add_u32", vW[1], 64512, vW[1]),
          valu("v_add_u32", vW[2], 2 * 64512, vW[0]), valu("v_add_u32", vW[3], 2 * 64512, vW[1])]
    o += [valu("v_xor_b32", c, a, b), valu("v_lshlrev_b32", c, 4, c), valu("v_mul_u32_u24", "v6", 1280, "v5"),
          valu("v_add_u32", vX[0], "v6", c),
          valu("v_xor_b32", vX[1], 64, vX[0]), valu("v_add_u32", vX[1], 9216, vX[1]),
          valu("v_add_u32", vX[2], 2 * 9216, vX[0]), valu("v_add_u32", vX[3], 2 * 9216, vX[1])]
    o += [salu("s_lshr_b32", "s70", sWAVE, 1), salu("s_and_b32", "s71", sWAVE, 1),
          salu("s_lshl_b32", sW4K, sWAVE, 12), salu("s_mul_i32", sW6K, sWAVE, 6144),
          salu("s_lshl_b32", "s7", "s4", 2), salu("s_add_u32", "s7", "s7", "s70"),
          salu("s_lshl_b32", sWQ, "s71", 18), salu("s_lshl_b32", sT0, "s7", 8), salu("s_add_u32", sWQ, sWQ, sT0),
          salu("s_mul_i32", sX, "s6", 245760), salu("s_mul_i32", sT0, sWAVE, 61440), salu("s_add_u32", sX, sX, sT0)]
    o += [raw("s_waitcnt lgkmcnt(0)", "drainlg")]
    o += srd(S_X, "s56", "s57", 3932160) + srd(S_WQ, "s62", "s63", 5242880)
    o += set_pf_proj()
    for k in [("W", 0, 0), ("X", 0), ("W", 0, 1), ("W", 1, 0), ("X", 1), ("W", 1, 1)]:
        for pre, ds in unit_dmas(k):
            o += pre[::-1] + ds
    if OPT["warmw"]:
        o += [salu("s_mul_i32", "s68", "s6", 40 * 8192), salu("s_lshl_b32", "s69", "s4", 10), salu("s_add_u32", "s68", "s68", "s69"),
              salu("s_mul_i32", "s69", sWAVE, 10 * 8192), salu("s_add_u32", "s68", "s68", "s69"),
              valu("v_lshlrev_b32", b, 7, b), valu("v_lshl_add_u32", "v6", "v5", 13, b), valu("v_and_b32", c, 1, "v5"),
              valu("v_lshl_add_u32", c, c, 13, b), salu("s_add_u32", "s69", "s68", 8 * 8192)]
        o += [vload(("v", 254), 1, "v6", S_WQ, "s68", 0), vload(("v", 255), 1, c, S_WQ, "s69", 0)]
    if OPT["codepf"]:
        o += [raw("s_getpc_b64 s[96:97]", wr=["s96", "s97"]), label("L_pc"), salu("s_lshr_b32", "s68", "s2", 3), salu("s_lshl_b32", "s68", "s68", 2),
              salu("s_add_u32", "s68", "s68", sWAVE), salu("s_lshl_b32", sCP, "s68", 8), salu("s_lshl_b32", "s68", "s68", 9),
              valu("v_and_b32", c, 3, i), valu("v_lshlrev_b32", c, 7, c), valu("v_add_u32", c, "s68", c),
              Ins("global_load_dword v253, v4, s[96:97]", "vld", rd=["v4", "s96", "s97"], wr=["v253"])]
    o += srd(S_WO, "s94", "s95", 5242880)
    o += [salu("s_lshl_b32", "s68", "s6", 3), salu("s_add_u32", "s68", "s68", "s4"),
          salu("s_mul_i32", sWOS, "s68", 40960), salu("s_mul_i32", sT0, sWAVE, 10240), salu("s_add_u32", sWOS, sWOS, sT0)]
    for pre, ds in unit_dmas(("J", 0)):
        o += pre[::-1] + ds
    if OPT["warmj"]:
        o += [valu("v_lshrrev_b32", c, 3, i), valu("v_mul_u32_u24", c, 1280, c), valu("v_and_b32", "v6", 7, i), valu("v_min_u32", "v6", 5, "v6"),
              valu("v_lshl_add_u32", c, "v6", 7, c), vload(("v", 252), 1, c, S_WO, sWOS, 512)]
    o += srd(S_K, "s58", "s59", 67108864) + srd(S_V, "s60", "s61", 67108864)
    o += srd(S_OST, "s90", "s91", WS_WOT) + srd(S_FLG, "s88", "s89", 256)
    o += [salu("s_add_u32", "s68", "s90", WS_WOT), salu("s_addc_u32", "s69", "s91", 0)] + srd(S_WOT, "s68", "s69", 2 * WOT_BLK)
    o += [salu("s_lshl_b32", sFG, "s3", 2), salu("s_lshl_b32", sFB, "s5", 6),
          valu("v_cmp_eq_u32", "vcc", 0, "v0"), valu("v_mov_b32", "v10", "0x1000"), valu("v_mov_b32", f"v{ONES}", "0x3f803f80"),
          valu("v_cndmask_b32", vFLG, "v10", 0, "vcc"),
          salu("s_and_b32", "s68", "s2", 7), salu("s_lshl_b32", "s68", "s68", 2), salu("s_add_u32", "s68", "s68", 128),
          scmp("s_cmp_lt_u32", "s2", 8), salu("s_cselect_b32", "s68", "s68", "0x1000"), valu("v_add_u32", vPUB, "s68", vFLG),
          salu("s_mov_b32", sPG, 0)]
    if OPT["one1"]:
        o += [valu("v_and_b32", "v10", 15, "v0"), valu("v_cmp_eq_u32", "vcc", 0, "v10"), valu("v_cndmask_b32", f"v{ONES}", 0, f"v{ONES}", "vcc")]
    o += [valu("v_mov_b32", f"v{ONES + r}", f"v{ONES}") for r in range(1, 4)]
    if OPT["prof"]:
        o += [salu("s_add_u32", "s68", "s90", WS_PROF), salu("s_addc_u32", "s69", "s91", 0)] + srd(S_PROF, "s68", "s69", 1 << 20)
        o += [salu("s_lshl_b32", sPROF, "s2", 2), salu("s_add_u32", sPROF, sPROF, sWAVE), salu("s_lshl_b32", sPROF, sPROF, 10)]
        o += prof_stamp(0, 8)
    o += [salu("s_lshl_b32", sKV, "s6", 5), salu("s_add_u32", sKV, sKV, "s7"), salu("s_lshl_b32", sKV, sKV, 17),
          salu("s_lshl_b32", sT0, "s71", 12),
          salu("s_lshr_b32", sROT, "s2", 3), salu("s_lshl_b32", sT1, "s2", 1), salu("s_add_u32", sROT, sROT, sT1),
          salu("s_and_b32", sROT, sROT, 15), salu("s_lshl_b32", sROT, sROT, 13), salu("s_add_u32", sROT, sROT, sT0)]
    o += [salu("s_mul_i32", sO, "s3", O_GRP), salu("s_mul_i32", sT0, "s71", 786432), salu("s_add_u32", sO, sO, sT0),
          salu("s_lshr_b32", sT0, "s4", 1), salu("s_mul_i32", sT0, sT0, 16 * 12288), salu("s_add_u32", sO, sO, sT0),
          salu("s_and_b32", sT0, "s4", 1), salu("s_mul_i32", sT0, sT0, 4 * 12288), salu("s_add_u32", sO, sO, sT0),
          salu("s_mul_i32", sT0, "s70", 2 * 12288), salu("s_add_u32", sO, sO, sT0)]
    o += [salu("s_lshl_b32", "s68", "s6", 3), salu("s_add_u32", "s68", "s68", "s4"),
          salu("s_lshr_b32", sT0, "s68", 1), salu("s_and_b32", sT1, sT0, "0x33"),
          salu("s_and_b32", "s69", sT0, 4), salu("s_lshl_b32", "s69", "s69", 1), salu("s_or_b32", sT1, sT1, "s69"),
          salu("s_and_b32", "s69", sT0, 8), salu("s_lshr_b32", "s69", "s69", 1), salu("s_or_b32", sT1, sT1, "s69"),
          salu("s_mul_i32", sWOD, sT1, 20480),
          salu("s_and_b32", sT0, "s68", 1), salu("s_lshl_b32", sT0, sT0, 11), salu("s_add_u32", sWOD, sWOD, sT0),
          salu("s_mul_i32", sT0, "s5", WOT_BLK), salu("s_add_u32", sWOD, sWOD, sT0),
          salu("s_lshl_b32", sT0, "s70", 12), salu("s_add_u32", sWOD, sWOD, sT0),
          salu("s_lshl_b32", sT0, "s71", 10), salu("s_add_u32", sWOD, sWOD, sT0),
          salu("s_mul_i32", sT0, "s70", 1310720 - 20480), salu("s_add_u32", sWOX, sWOD, sT0)]
    o += [salu("s_add_u32", "s68", "s3", "s4"), salu("s_and_b32", "s68", "s68", 3), salu("s_mov_b32", sQT, "0x%x" % TBLQ[0])]
    for r in range(1, 4):
        o += [scmp("s_cmp_eq_u32", "s68", r), salu("s_cselect_b32", sQT, "0x%x" % TBLQ[r], sQT)]
    cbits = struct.unpack("<I", struct.pack("<f", math.log2(math.e) / math.sqrt(128.0)))[0]
    o += [salu("s_mov_b32", sC, "0x%x" % cbits), salu("s_mov_b32", sHI, "0x4e800000"), salu("s_mov_b32", sLO, "0x30800000"),
          salu("s_mov_b32", sIT, 0)]
    o += [valu("v_lshrrev_b32", a, 4, i), valu("v_and_b32", b, 15, i),
          valu("v_xor_b32", c, a, b), valu("v_lshlrev_b32", c, 4, c), valu("v_lshl_add_u32", vK[0], a, 8, c)]
    o += [valu("v_xor_b32", vK[m], m << 6, vK[0]) for m in range(1, 4)]
    o += [valu("v_lshlrev_b32", "v5", 1, a), valu("v_xor_b32", "v5", "v5", b), valu("v_lshlrev_b32", "v5", 4, "v5"),
          valu("v_lshl_add_u32", vV[0], a, 8, "v5"), valu("v_xor_b32", vV[1], 128, vV[0])]
    o += [salu("s_lshl_b32", "s69", "s70", 13), salu("s_mul_i32", "s68", "s71", 12288), salu("s_add_u32", "s68", "s68", XS[0]),
          valu("v_bfe_u32", "v8", i, 2, 2), valu("v_and_b32", "v9", 3, i)]
    o += [valu("v_lshl_add_u32", c, b, 8, c), valu("v_add_u32", c, KWANT[15], c), valu("v_add_u32", kA[0], "s69", c)]
    o += [valu("v_xor_b32", kA[j], j << 6, kA[0]) for j in range(1, 4)]
    o += [valu("v_lshl_add_u32", "v5", a, 2, "v8"), valu("v_lshlrev_b32", c, 8, "v5"), valu("v_and_b32", "v6", 7, "v5"),
          valu("v_lshl_add_u32", c, "v6", 5, c), valu("v_lshl_add_u32", c, "v9", 3, c),
          valu("v_add_u32", c, VWANT[0], c), valu("v_add_u32", vA[0], "s69", c)]
    o += [valu("v_xor_b32", vA[d], d << 5, vA[0]) for d in range(1, 8)]
    o += [valu("v_lshl_add_u32", c, a, 3, "v8"), valu("v_lshlrev_b32", c, 7, c),
          valu("v_and_b32", "v5", 2, "v8"), valu("v_and_b32", "v7", 1, a), valu("v_lshl_add_u32", "v5", "v7", 2, "v5"),
          valu("v_xor_b32", "v5", "v5", "v9"), valu("v_lshl_add_u32", c, "v5", 4, c), valu("v_add_u32", wA[0], "s69", c),
          valu("v_xor_b32", wA[1], 64, wA[0])]
    o += [valu("v_lshrrev_b32", "v5", 1, b), valu("v_xor_b32", "v5", "v5", a),
          valu("v_lshlrev_b32", "v5", 4, "v5"), valu("v_lshl_add_u32", c, b, 7, "v5"),
          valu("v_xor_b32", "v5", 64, c), valu("v_add_u32", xA[0], "s68", c), valu("v_add_u32", xA[1], "s68", "v5")]
    o += [salu("s_lshl_b32", "s68", "s70", 2), salu("s_lshl_b32", "s69", "s71", 3), salu("s_add_u32", "s69", "s69", WOJ_ADDR),
          valu("v_lshrrev_b32", c, 1, a), valu("v_lshlrev_b32", c, 12, c), valu("v_lshl_add_u32", c, "v6", 7, c),
          valu("v_add_u32", c, "s69", c), valu("v_add_u32", "v5", "s68", "v9"), valu("v_lshrrev_b32", "v6", 1, "v6"),
          valu("v_xor_b32", "v5", "v5", "v6"), valu("v_lshl_add_u32", vJ, "v5", 4, c)]
    o += [needvm([("W", 0, 0), ("X", 0)] if OPT["early"] else [k for k, u in U.items() if u["N"] == 0]), barrier()] + first_reads(0)
    return o


def acc2(pi, xy, qi):
    return ((pi * 6 + qi) * 2 + xy) * 4


def a2(st, pi, ks, xy):
    if st == 0:
        return (240 if pi == 0 else 48 + 16 * pi) + 8 * ks + 4 * xy
    return (48 if pi == 0 else 112 + 16 * pi) + 8 * ks + 4 * xy


def b2(st, qi, ks):
    return (192 if st == 0 else 0) + 8 * qi + 4 * ks


V2A = ["v%d" % i for i in range(240, 245)]
V2B = ["v245", "v246", "v247", "v248", "v249", "v253"]
V2L, V2W, V2P, V2X = "v252", "v254", "v255", "v251"
S2A, S2B, S2OUT = S_WQ, 12, 8
TA, TB, sAB, sBB = 56, 62, "s43", "s44"


def k2_loads_A(st, pi, soff=None):
    return [vload(("a", a2(st, pi, ks, xy)), 4, V2A[pi], S2A, soff or sA2, ks * 2048 + xy * 1024, flags=SC1) for xy in range(2) for ks in range(2)]


def k2_loads_B(st, qi):
    return [vload(("a", b2(st, qi, ks)), 4, V2B[qi], S2B, sB2, ks * 1024, flags=SC1) for ks in range(2)]


def k2_lds_A(st, pi):
    out = []
    for xy in range(2):
        for ks in range(2):
            r = [r for r, (s_, p_, off) in PF2.items() if (s_, p_) == (st, pi) and (r not in ("s87", "s99") or off == 2048 * ks)][0]
            key = [k for k, rs in sPF.items() if r in rs][0]
            if key[0] == "W":
                out.append(ds_read("ds_read_b128", ("a", a2(st, pi, ks, xy)), 4, V2W, U[key]["addr"] + ks * 2048 + xy * 1024))
            elif key[0] == "P":
                out.append(ds_read("ds_read_b128", ("a", a2(st, pi, ks, xy)), 4, V2P, ks * 2048 + xy * 1024))
            elif r == sPF[key][0]:
                out.append(ds_read("ds_read_b128", ("a", a2(st, pi, ks, xy)), 4, V2X, U[key]["addr"] - XS[0] + ks * 2048 + xy * 1024))
            else:
                out.append(ds_read("ds_read_b128", ("a", a2(st, pi, ks, xy)), 4, V2X, U[key]["addr"] - XS[0] + 4096 + xy * 1024))
    return out


def k2_steps(S, first, loadA, loadB, pend, check=False, late=(), final=None):
    for st in range(2):
        q0 = S.n()
        tiles = [(pi, xy, qi) for pi in range(5) for xy in range(2) for qi in range(6)]
        if final is not None and st == 1:
            tiles = [t for t in tiles if t[2] >= 3] + [t for t in tiles if t[2] < 3]
            for n, x in enumerate(final[0]):
                S.put(q0 + 2 + n, x)
            for n, x in enumerate(final[1]):
                S.put(q0 + 61 + 2 * n, x)
        for pi, xy, qi in tiles:
            for ks in range(2):
                acc = ("v", acc2(pi, xy, qi))
                S.add(mfma(16, acc, ("a", a2(st, pi, ks, xy)), ("a", b2(st, qi, ks)),
                           None if (first and st == 0 and ks == 0) else acc))
        pos = [int(0.5 + 3.75 * n) for n in range(32)]
        if pend[st]:
            ls = k2_loads_A(1 - st, 4)
            S.put(q0 + pos[0], ls[2])
            S.put(q0 + pos[1], ls[3])
            for n, x in enumerate(next_off(sA2, TA, sAB, 20480)):
                S.put(q0 + pos[1] + 1 + n, x)
        if first and st == 0:
            for n, (pre, l) in enumerate(late):
                S.put(q0 + 6 * n + 2, *pre)
                S.put(q0 + 6 * n + 3, l)
            for n, r in enumerate(k2_lds_A(1, 0) + k2_lds_A(1, 1) + k2_lds_A(1, 2)):
                S.put(q0 + 6 * n + 5 if n < 8 else q0 + 54 + 4 * (n - 8), r)
            S.put(q0 + 70, valu("v_add_u32", V2P, D[9] - D[5], V2P))
            for n, r in enumerate(k2_lds_A(1, 3)):
                S.put(q0 + 73 + 4 * n, r)
        elif loadB[st]:
            for n, l in enumerate([l for qi in range(6) for l in k2_loads_B(1 - st, qi)]):
                S.put(q0 + pos[2 + n], l)
            for n, x in enumerate(next_off(sB2, TB, sBB, 12288)):
                S.put(q0 + pos[13] + 1 + n, x)
        if loadA[st]:
            n = 14
            for pi in range(5):
                ls = k2_loads_A(st, pi)
                for x, l in enumerate(ls if pi < 4 else ls[:2]):
                    assert pos[n] >= 24 * pi + 11 + 12 * (x >> 1), (pi, x, pos[n])
                    S.put(q0 + pos[n], l)
                    n += 1
        if first and st == 1:
            S.put(q0 + 110, needvm(["ost"]), barrier())
            S.put(q0 + 111, valu("v_mov_b32", V2P, "0x100"))
            S.put(q0 + 114, atomic_add(V2P, sFG))
        if check and st == 1:
            S.put(q0 + 1, scmp("s_cmp_eq_u32", sCNT, 5), salu("s_cselect_b32", sWANT, 8, 0), salu("s_cselect_b32", sPL, sFG, "0x1000"))
            S.put(q0 + 2, poll_load(V2P, sPL))
        if check and st == 0:
            S.put(q0 + 1, valu("v_readfirstlane_b32", sQ, V2P))
            S.put(q0 + 6, salu("s_bfe_u32", sQ, sQ, "0x80008"), scmp("s_cmp_lt_u32", sQ, sWANT),
                  raw("s_cbranch_scc1 L_spin2", "branch", rd=["scc"]), label("L_spin2_back"))


def k2_first(S, late):
    seq = [(0, p) for p in range(4)] + [(1, p) for p in range(3)] + [(0, 4), (1, 3), (1, 4)]
    at = {}
    for st, pi in seq:
        at[(st, pi)] = S.n()
        for xy in range(2):
            for qi in range(6):
                for ks in range(2):
                    acc = ("v", acc2(pi, xy, qi))
                    S.add(mfma(16, acc, ("a", a2(st, pi, ks, xy)), ("a", b2(st, qi, ks)), None if (st == 0 and ks == 0) else acc))
    for n, (pre, l) in enumerate(late):
        S.put(13 * n + 2, *pre)
        S.put(13 * n + 3, l)
    assert 13 * len(late) < at[(0, 4)]
    g = 5
    for pi in range(4):
        if pi == 3:
            S.put(g, valu("v_add_u32", V2P, D[9] - D[5], V2P))
            g += 2
        for r in k2_lds_A(1, pi):
            while S.fixed.get(g):
                g += 1
            S.put(g, r)
            g += 4
    items = []
    for pi in range(5):
        for x, l in enumerate(k2_loads_A(0, pi, sSO)):
            items.append((l, at[(0, pi)] + 11 + 12 * (x >> 1), 240 + 24 * pi + 12 * (x >> 1)))
        for x, l in enumerate(k2_loads_A(1, pi)[:4 if pi < 4 else 2]):
            items.append((l, at[(1, pi)] + 11 + 12 * (x >> 1), 360 + 24 * pi + 12 * (x >> 1)))
    for qi in range(6):
        for ks, l in enumerate(k2_loads_B(0, qi)):
            items.append((l, at[(0, 4)] + 12 + 2 * qi + ks, 200 + 2 * qi + ks))
    items.sort(key=lambda i: i[2])
    g, lastB = 11, 0
    while items:
        c = [i for i in items if i[1] <= g]
        if c and not any(S.fixed.get(k) and any(j.kind in ("vld", "vst") for j in S.fixed[k]) for k in ((g - 2, g - 1, g + 1) if g < 180 else (g - 1, g + 1))) and not S.fixed.get(g):
            S.put(g, c[0][0])
            if sB2 in c[0][0].rd:
                lastB = g
            items.remove(c[0])
        g += 1
        assert g < 240, items
    for n, x in enumerate(next_off(sB2, TB, sBB, 12288)):
        S.put(lastB + 1 + n, x)
    g = 226
    while S.fixed.get(g) or S.fixed.get(g + 1) or S.fixed.get(g + 3):
        g += 1
    S.put(g, needvm(["ost"]), barrier())
    S.put(g + 1, valu("v_mov_b32", V2P, "0x100"))
    S.put(g + 3, atomic_add(V2P, sFG))


def spin(name, back, dsts, soffs, conds):
    o = [label(name), salu("s_mov_b32", sSPIN, 0), label(name + "_loop"), raw("s_sleep 8")]
    o += [poll_load(d, so) for d, so in zip(dsts, soffs)]
    o += [drain(), salu("s_add_u32", sSPIN, sSPIN, 1), scmp("s_cmp_gt_u32", sSPIN, "0x20000"),
          raw(f"s_cbranch_scc1 {back}", "branch", rd=["scc"])]
    for d, (sh, msk, want) in zip(dsts, conds):
        o += [valu("v_readfirstlane_b32", sQ, d), nop(4)]
        if sh:
            o += [salu("s_lshr_b32", sQ, sQ, sh)]
        if msk:
            o += [salu("s_and_b32", sQ, sQ, msk)]
        o += [scmp("s_cmp_lt_u32", sQ, want), raw(f"s_cbranch_scc1 {name}_loop", "branch", rd=["scc"])]
    o += [raw(f"s_branch {back}", "branch")]
    return o


def phase2():
    o = [valu("v_readfirstlane_b32", sQ, vPOLL[0]), valu("v_mov_b32", V2L, vL16),
         salu("s_lshr_b32", "s84", "s4", 2), salu("s_mul_i32", "s7", "s3", O_GRP), salu("s_mul_i32", sPL, "s84", 786432),
         salu("s_add_u32", "s7", "s7", sPL),
         salu("s_and_b32", sQ, sQ, "0xff"),
         scmp("s_cmp_lt_u32", sQ, 8), raw("s_cbranch_scc1 L_spin1", "branch", rd=["scc"]), label("L_spin1_back")]
    o += [salu("s_add_u32", "s58", "s90", "s7"), salu("s_addc_u32", "s59", "s91", 0)] + srd(S2B, "s58", "s59", 786432)
    o += [salu("s_and_b32", "s85", "s4", 3), salu("s_and_b32", "s32", sWAVE, 1), salu("s_lshr_b32", "s33", sWAVE, 1),
          salu("s_mul_i32", sBB, sWAVE, 16 * 12288), salu("s_mul_i32", sAB, sWAVE, 16 * 20480),
          salu("s_mov_b64", f"s[{TB}:{TB + 1}]", "s[34:35]"), salu("s_lshr_b64", f"s[{TA}:{TA + 1}]", "s[34:35]", 4)]
    o += next_off(sB2, TB, sBB, 12288)
    o += [valu("v_add_u32", V2W, sW4K, V2L), salu("s_add_u32", "s7", sW6K, XS[0]), valu("v_add_u32", "v22", "s7", V2L)]
    o += [scmp("s_cmp_eq_u32", "s33", 0)]
    o += [salu("s_cselect_b32", f"s{47 + q}", q, 2 - q) for q in range(3)]
    o += [salu("s_cselect_b32", f"s{36 + pi}", pi, 4 - pi) for pi in range(5)]
    o += [salu("s_mul_i32", "s34", "s32", 3), salu("s_sub_u32", "s35", 3, "s34")]
    for q in range(3):
        o += [salu("s_add_u32", f"s{50 + q}", f"s{47 + q}", "s35"), salu("s_add_u32", f"s{47 + q}", f"s{47 + q}", "s34")]
    o += [valu("v_mov_b32", f"v{16 + q}", vR[q]) for q in range(6)]
    for qi in range(6):
        o += [salu("s_lshl_b32", "s7", f"s{47 + qi}", 11), valu("v_add_u32", V2B[qi], "s7", V2L)]
    for qi in range(6):
        o += k2_loads_B(0, qi)
    o += next_off(sB2, TB, sBB, 12288)
    save = list(vR)
    vR[:] = [f"v{16 + q}" for q in range(6)]
    nl = 12 if OPT["pace"] else 8
    eg = epilogue_groups(0, lambda n: 240 - 4 * (24 - n) - (0 if OPT["pace"] else 16) if n >= 24 - nl else 32 + 4 * n, V2L)
    vR[:] = save
    b1 = [l for qi in range(6) for l in k2_loads_B(1, qi)]
    for n, (v, pre, st, imm) in enumerate(eg):
        m = b1[2 * (n - 8):2 * (n - 8) + 2] if 8 <= n < 14 else []
        o += v[:8] + m[:1] + v[8:16] + m[1:] + v[16:]
        if OPT["pace"]:
            if n % 2 == 0:
                o += eg[n // 2][1] + [eg[n // 2][2]]
        elif n < 16:
            o += pre + [st]
        if n == 15:
            o += [needvm(list(sPF)), valu("v_mov_b32", V2X, "v22")]
            for pi in range(5):
                o += [salu("s_lshl_b32", "s7", f"s{36 + pi}", 12), valu("v_add_u32", V2A[pi], "s7", V2L)]
            o += next_off(sPL, TA, sAB, 20480)
            if OPT["pace"]:
                o += next_off(sSO, TA, sAB, 20480)
            o += next_off(sA2, TA, sAB, 20480)
        if 16 <= n < 21:
            o += k2_lds_A(0, n - 16)
    late = []
    for n, g in enumerate(eg[24 - nl:]):
        st = vstore(("v", 240 - 4 * (nl - n) - (0 if OPT["pace"] else 16)), 4, V2L, S_OST, sE, g[3], tag="ost", flags=SC1)
        late.append((g[1], st))
    o += k2_loads_A(1, 4, sPL) + [valu("v_add_u32", V2P, D[5], V2W)]
    o += next_off(sB2, TB, sBB, 12288) + [salu("s_mov_b32", sWANT, 0)]
    o += prof_stamp(1, 30)
    o += srd(S2OUT, "s92", "s93", 7864320)
    o += [salu("s_mul_i32", sOB, "s6", 192 * 2560), salu("s_mul_i32", "s7", "s84", 96 * 2560), salu("s_add_u32", sOB, sOB, "s7"),
          salu("s_mul_i32", "s7", "s5", 1280), salu("s_add_u32", sOB, sOB, "s7"),
          salu("s_mul_i32", "s7", "s85", 320), salu("s_add_u32", sOB, sOB, "s7"), salu("s_mov_b32", sCNT, 6)]
    S0 = Sched()
    if OPT["pace"]:
        k2_first(S0, late)
    else:
        k2_steps(S0, True, [True, True], [True, True], [False, True], late=late)
    S0.order_fixed()
    first = S0.build()
    S1 = Sched()
    k2_steps(S1, False, [True, True], [True, True], [True, True], check=True)
    if OPT["prof"]:
        S1.put(3, raw("s_memrealtime s[76:77]", wr=["s76", "s77"]), raw("s_waitcnt lgkmcnt(0)", "drainlg"),
               salu("s_mov_b32", "s101", "s100"), salu("s_mov_b32", "s100", "s99"), salu("s_mov_b32", "s99", "s98"),
               salu("s_mov_b32", "s98", "s97"), salu("s_mov_b32", "s97", "s96"), salu("s_mov_b32", "s96", "s76"))
    S1.put(237, salu("s_sub_u32", sCNT, sCNT, 1))
    S1.order_fixed()
    loop = [label("L_k2")] + S1.build() + [scmp("s_cmp_lg_u32", sCNT, 0), raw("s_cbranch_scc1 L_k2", "branch", rd=["scc"])]
    R1, R2, i, a, V2O = V2A[0], V2A[1], V2A[2], V2A[3], V2A[4]
    setup = [salu("s_mul_i32", "s7", sWAVE, 30720), valu("v_add_u32", V2W, "s7", V2L), valu("v_lshrrev_b32", i, 4, V2L),
             valu("v_and_b32", a, 15, i), valu("v_mul_u32_u24", a, 2560, a), valu("v_lshrrev_b32", i, 4, i),
             valu("v_lshl_add_u32", V2O, i, 4, a),
             salu("s_xor_b32", sPL, sWAVE, 1), salu("s_sub_u32", sPL, sPL, sWAVE), salu("s_mul_i32", "s7", sPL, 30720),
             valu("v_add_u32", R1, "s7", V2W),
             salu("s_xor_b32", sPL, sWAVE, 3), salu("s_sub_u32", sPL, sPL, sWAVE), salu("s_mul_i32", "s7", sPL, 30720),
             valu("v_add_u32", R2, "s7", V2W)]
    sent = [(pi, xy, qi) for pi in range(5) for qi in range(3, 6) for xy in range(2)]
    wr = {t: ds_write("ds_write_b128", V2W, ("v", acc2(*t)), 4, n * 1024) for n, t in enumerate(sent)}
    S2 = Sched()
    e = []
    if OPT["redov"]:
        order = [wr[(pi, xy, qi)] for pi in range(5) for xy in range(2) for qi in range(3, 6)]
        k2_steps(S2, False, [False, False], [True, False], [True, False], final=(setup, order[:29]))
        e = order[29:]
    else:
        k2_steps(S2, False, [False, False], [True, False], [True, False])
        e = setup + list(wr.values())
    S2.order_fixed()
    last = S2.build()
    e += [needlgkm0(), barrier()] + prof_stamp(8, 234)
    for s in list(range(7, 15)) + list(range(7)):
        pi, q = divmod(s, 3)
        e += [ds_read("ds_read_b128", ("v", acc2(pi, xy, q + 3)), 4, R1, (2 * s + xy) * 1024) for xy in range(2)]
    for s in list(range(7, 15)) + list(range(7)):
        pi, q = divmod(s, 3)
        d, t = acc2(pi, 0, q), acc2(pi, 0, q + 3)
        e += [valu("v_add_f32", f"v{d + r}", f"v{d + r}", f"v{t + r}") for r in range(8)]
        if s >= 7:
            e += [ds_write("ds_write_b128", R1, ("v", acc2(pi, xy, q)), 4, (2 * s + xy) * 1024) for xy in range(2)]
    e += [needlgkm0(), barrier()]
    for s in range(8):
        pi, q = divmod(s, 3)
        for xy in range(2):
            e += [ds_read("ds_read_b128", ("v", acc2(pi, xy, q + 3)), 4, R2, (2 * (14 - s) + xy) * 1024)]
    for s in range(8):
        pi, q = divmod(s, 3)
        d0, t0 = acc2(pi, 0, q), acc2(pi, 0, q + 3)
        e += [valu("v_add_f32", f"v{d0 + r}", f"v{d0 + r}", f"v{t0 + r}") for r in range(8)]
        e += [valu("v_cvt_pk_bf16_f32", f"v{d0 + r}", f"v{d0 + 2 * r}", f"v{d0 + 2 * r + 1}") for r in range(4)]
        e += [salu("s_mul_i32", "s7", f"s{47 + q}", 40960), salu("s_lshl_b32", sPL, f"s{36 + pi}", 6),
              salu("s_add_u32", "s7", "s7", sPL), salu("s_add_u32", sSO, "s7", sOB),
              vstore(("v", d0), 4, V2O, S2OUT, sSO, 0, flags=OPT["outf"])]
    e += prof_stamp(9, 234)
    if OPT["prof"]:
        for n in range(6):
            e += [valu("v_mov_b32", "v234", 1), valu("v_mov_b32", "v235", f"s{101 - n}"), pstore(234, 2 + n), nop(4)]
    e += [label("L_end"), raw("s_endpgm")]
    sp1 = spin("L_spin1", "L_spin1_back", vPOLL[:1], [sFG], [(0, "0xff", 8)]) + spin("L_spin3", "L_spin3_back", vPOLL[1:], [sFB], [(16, 0, 256)])
    sp2 = spin("L_spin2", "L_spin2_back", [V2P], [sFG], [(8, "0xff", 8)])
    sp2 += GATE_SPINS
    return o, first, loop, last, e, sp1, sp2


def kernel():
    pro = prologue()
    q1 = q_phase(False)
    att = [label("L_att")] + a_phase()
    att += [raw("s_cbranch_vccnz L_slow", "branch", rd=["vcc"]), label("L_back")]
    att += [valu("v_rcp_f32", vR[qt], f"v{lacc(qt)}") for qt in range(6)]
    att += prof_stamp(29)
    if OPT["prof"]:
        att += [salu("s_add_u32", sPROF, sPROF, 240)]
    att += [scmp("s_cmp_eq_u32", sIT, 1), raw("s_cbranch_scc1 L_out", "branch", rd=["scc"]), salu("s_mov_b32", sIT, 1)]
    q2 = [label("L_q2")] + q_phase(True) + [raw("s_branch L_att", "branch")]
    o, first, loop2, last, e, sp1, sp2 = phase2()
    o = [label("L_out")] + o
    slow = slow_path()
    parts = [pro, q1, att, q2, o, first, loop2, last, e, slow, sp1, sp2]
    waits = compute_waits([pro + q1 + att + q2 + att + o + first + loop2 + loop2 + loop2 + last + e, slow, sp1, sp2])
    done = {}
    P = [apply_waits(x, waits, done) for x in parts]
    pads = pad_hazards([P[0] + P[1] + P[2] + P[3] + P[2] + P[4] + P[5] + P[6] + P[6] + P[7] + P[8], P[9], P[10], P[11]])
    al = ".p2align 3\n"
    return (emit(P[0] + P[1], pads) + al + emit(P[2] + P[3], pads) + al + emit(P[4] + P[5], pads) + al +
            emit(P[6] + P[7] + P[8] + P[9] + P[10] + P[11], pads) + "L_endcode:\n")


def main():
    kn = NAME + "_kernel"
    s = open("cdna_kernels/" + NAME + ".s.ref").read().split("; Override launch")[0]
    s += "; @launch grid=(256,1,1) block=(256,1,1) lds=163840\n"
    s += '.amdgcn_target "amdgcn-amd-amdhsa--gfx950"\n.text\n'
    s += f".globl {kn}\n.p2align 8\n.type {kn},@function\n{kn}:\n" + kernel()
    s += f""".section .rodata,"a"
.p2align 6
.amdhsa_kernel {kn}
  .amdhsa_next_free_vgpr 512
  .amdhsa_next_free_sgpr 102
  .amdhsa_accum_offset 256
  .amdhsa_group_segment_fixed_size 0
  .amdhsa_kernarg_size 104
  .amdhsa_user_sgpr_count 2
  .amdhsa_user_sgpr_kernarg_segment_ptr 1
  .amdhsa_system_sgpr_workgroup_id_x 1
.end_amdhsa_kernel
"""
    open(sys.argv[1], "w").write(s)


main()
```

```python
import sys, math, struct
from fw3 import *
from orders import orders

NAME = "concat_heads__mha_block_cached__mha_block_cached__near_ridge"
OPT = dict(outf=' sc1', redov=1, one1=1, warmj=0, pk=1, pfq1=1, rot2=2, gate=0, pace=1, lead=3, gstep=2, rotq=3, early=1, uni=0, prof=0, report=False, stg=67, warmw=True, codepf=2, codepf2=14, pf='', pf0=1, pfn=3, flagbar=12, map=0)
for a in sys.argv[2:]:
    k, v = a.split("=")
    OPT[k] = type(OPT[k])(int(v)) if not isinstance(OPT[k], str) else v

KB = 1024
SC1 = " sc1"
O_GRP = 2 * 786432
WS_WOT = 50331648
WOT_BLK = 5242880
WS_PROF = 64 * 1024 * 1024

S_K, S_V, S_X, S_WQ, S_OST, S_WO, S_WOT = 8, 12, 16, 20, 24, 28, 32
sKV, sWQ, sX, sW4K, sW6K, sO, sIT, sT0, sT1, sC, sWAVE = ["s%d" % i for i in range(36, 47)]
sWOS, sWOD, sWOX, sW5K, sHI, sLO = ["s%d" % i for i in range(47, 53)]
sPROF, sE, sJ = "s53", "s54", "s55"
sQT, sWS, sXS = "s50", "s67", "s95"
sROT, sFG, sFB, sCP = "s62", "s65", "s66", "s64"
sA2, sB2, sPL, sOB, sCNT, sSO, sQ, sSH, sWANT, sSPIN = "s28", "s29", "s30", "s31", "s67", "s68", "s69", "s70", "s71", "s94"
S_PROF, S_FLG = 72, 80
sPF = {("W", 0, 0): ["s84"], ("W", 0, 1): ["s85"], ("X", 0): ["s86", "s87"], ("X", 1): ["s98", "s99"], ("W", 1, 0): ["s100"], ("W", 1, 1): ["s101"],
       ("P", 0): ["s60"], ("P", 1): ["s61"]}
PF2 = {"s84": (0, 0, 0), "s85": (0, 1, 0), "s86": (0, 2, 0), "s98": (0, 3, 0), "s100": (0, 4, 0), "s101": (1, 0, 0),
       "s87": (1, 1, 0), "s99": (1, 1, 2048), "s60": (1, 2, 0), "s61": (1, 3, 0)}
vK = ["v%d" % i for i in range(192, 196)]
vV = ["v196", "v197"]
vW = ["v%d" % i for i in range(198, 202)]
vX = ["v%d" % i for i in range(202, 206)]
kA = ["v%d" % i for i in range(206, 210)]
vA = ["v%d" % i for i in range(210, 218)]
wA = ["v218", "v219"]
xA = ["v220", "v221"]
vJ, vL16 = "v222", "v223"
ONES = 224
EPI = 228
vR = ["v%d" % i for i in range(244, 250)]
vFLG = "v250"
vPUB = "v251"
vT = ["v252", "v253"]
vC2 = "v[242:243]"
vPOLL = ["v254", "v255"]

D = [i * 16 * KB for i in range(10)]
XS = [96 * KB, 120 * KB]
WOJ_ADDR = D[9]


def qacc(p, xy, qt):
    return 64 * (qt >> 1) + (2 * p + (qt & 1)) * 8 + 4 * xy


def qf(qt, p):
    return 64 * (qt >> 1) + (2 * p + (qt & 1)) * 4


def sreg(qt):
    return 64 * (qt >> 1) + 32 + 8 * (qt & 1)


def lacc(qt):
    return 64 * (qt >> 1) + 48 + 4 * (qt & 1)


ABUF = [192, 248]


def bx(qt, ks):
    return 200 + 8 * qt + 4 * ks


def kf(kt, ks):
    return 192 + 16 * kt + 4 * ks


def vf(dt):
    return 224 + 4 * dt


def oacc(qt, dt):
    return 32 * qt + 4 * dt


def build_units():
    U = {}
    for i in range(10):
        U[("X", i)] = dict(addr=XS[i % 2], size=24 * KB, N=i, I=i - 2)
        for u in range(2):
            U[("W", i, u)] = dict(addr=D[2 * (i % 3) + u], size=16 * KB, N=i, I=i - 2)
    U[("X", 0)]["I"] = -3
    U[("W", 0, 0)]["I"] = -3
    U[("W", 0, 1)]["I"] = -3
    U[("W", 1, 0)]["I"] = -2
    U[("W", 1, 1)]["I"] = -2
    pages = [9, 3, 2, 4, 5, 8, 1, 9, 0, 2, 3, 4, 6, 1, 5, 9, 0, 7, 3, 8, 2, 5, 1, 4, 0, 7, 3, 2, 8, 5, 9, 4]
    for u in range(32):
        key = ("K", u // 2) if u % 2 == 0 else ("V", u // 2)
        N = 10 + u // 2 + u % 2
        U[key] = dict(addr=D[pages[u]], size=16 * KB, N=N, I=N - (3 if u < 5 else OPT["lead"]))
    U[("J", 0)] = dict(addr=WOJ_ADDR, size=16 * KB, N=1, I=0)
    U[("J", 1)] = dict(addr=WOJ_ADDR, size=16 * KB, N=4, I=2)
    U[("P", 0)] = dict(addr=D[5], size=16 * KB, N=-0.5, I=-1)
    U[("P", 1)] = dict(addr=D[9], size=16 * KB, N=-0.5, I=-1)
    allu = [(k, u["addr"], u["addr"] + u["size"], u["N"] + 27 * r, u["I"] + 27 * r) for r in range(3) for k, u in U.items()]
    for a in allu:
        assert a[4] < a[3], a
        for b in allu:
            if a is not b and a[1] < b[2] and b[1] < a[2]:
                ra = a[3] - (a[0][0] == "X" and a[0][1] <= 7)
                rb = b[3] - (b[0][0] == "X" and b[0][1] <= 7)
                assert ra < b[4] or rb < a[4], (a, b)
    return U


U = build_units()
_alt = [0]


def next_st():
    _alt[0] ^= 1
    return [sT0, sT1][_alt[0]]


def jblocks(r, second):
    if second:
        return [8, 9] if r == 1 else []
    return range(4 * r, 4 * r + 4)


def unit_dmas(key, second=False):
    u = U[key]
    kind = key[0]
    if key in sPF:
        if kind in "WP":
            return [([salu("s_add_u32", "m0", sW4K, u["addr"])], [dma(vW[m], S_WQ, sPF[key][0], 1024 * m, key, SC1) for m in range(4)])]
        return [([salu("s_add_u32", "m0", sW6K, u["addr"])], [dma(vX[m], S_X, sPF[key][0], 1024 * m, key, SC1) for m in range(4)]),
                ([salu("s_add_u32", "m0", sW6K, u["addr"] + 4096)], [dma(vX[m], S_X, sPF[key][1], 1024 * m, key, SC1) for m in range(2)])]
    sT = next_st()
    if kind in "KV":
        pre = [salu("s_add_u32", sT, sROT, key[1] * 8192), salu("s_and_b32", sT, sT, "0x1ffff"), salu("s_add_u32", sT, sT, sKV),
               salu("s_add_u32", "m0", sW4K, u["addr"])]
        if kind == "K":
            return [(pre, [dma(vK[m], S_K, sT, 1024 * m, key, " nt") for m in range(4)])]
        return [(pre, [dma(vV[m & 1], S_V, sT, 1024 * m, key, " nt") for m in range(4)])]
    if kind == "W":
        if key[2] == 0:
            return [([salu("s_add_u32", "m0", sW4K, u["addr"])], [dma(vW[m], S_WQ, sWS, 1024 * m, key) for m in range(4)])]
        pre = [salu("s_add_u32", sT, sWS, 128), salu("s_add_u32", "m0", sW4K, u["addr"])]
        return [(pre, [dma(vW[m], S_WQ, sT, 1024 * m, key) for m in range(4)])]
    if kind == "X":
        g0 = ([salu("s_add_u32", "m0", sW6K, u["addr"])], [dma(vX[m], S_X, sXS, 1024 * m, key) for m in range(4)])
        pre2 = [salu("s_add_u32", sT, sXS, 40960), salu("s_add_u32", "m0", sW6K, u["addr"] + 4096)]
        return [g0, (pre2, [dma(vX[m], S_X, sT, 1024 * m, key) for m in range(2)])]
    gs = []
    for jj in jblocks(key[1], second):
        sTj = next_st()
        pre = [salu("s_add_u32", sTj, sWOS, jj * 128), salu("s_add_u32", "m0", sW4K, u["addr"] + (jj & 3) * 1024)]
        gs.append((pre, [dma(vX[0], S_WO, sTj, 0, key, " nt")]))
    return gs


def set_pf_proj(tail=False):
    o = []
    for key, rs in sPF.items():
        if key[0] == "P":
            o += [salu("s_mov_b32", rs[0], "0x10000000")] if tail else []
        elif key[0] == "W":
            o += [salu("s_add_u32", rs[0], sWQ, key[1] * 524288 + key[2] * 128)]
        else:
            o += [salu("s_add_u32", rs[0], sX, key[1] * 128), salu("s_add_u32", rs[1], sX, key[1] * 128 + 40960)]
    return o


ORD2 = orders(16, 4, 8, 7, {1: [4], 2: [1, 1, 2, 2, 2, 0, 0], 3: [1, 2, 2, 2, 1, 0, 0], 4: [2, 1, 2, 2, 1, 0, 0]}[OPT["rot2"]])[0] if OPT["rot2"] else [list(range(16))] * 4
ORDQ = orders(10, 4, None, 0, {1: [1, 1, 2, 2, 2, 1, 1], 2: [1, 1, 4], 3: [1, 1, 2, 2, 1, 1, 1, 1]}[OPT["rotq"]])[0] if OPT["rotq"] else [list(range(10))] * 4
assert all(o[:2] == [0, 1] for o in ORDQ)
TBLQ = [sum(x << (4 * n) for n, x in enumerate(o[2:])) for o in ORDQ]
TBL2 = [sum(x << (4 * n) for n, x in enumerate(o)) for o in ORD2]


def next_off(dst, tbl, base, stride):
    return [salu("s_and_b32", dst, f"s{tbl}", 15), salu("s_lshr_b64", f"s[{tbl}:{tbl + 1}]", f"s[{tbl}:{tbl + 1}]", 4),
            salu("s_mul_i32", dst, dst, stride), salu("s_add_u32", dst, dst, base)]


def set_pf_out():
    o = [salu("s_and_b32", "s68", "s4", 3), salu("s_mul_i32", "s68", "s68", 1310720), salu("s_mul_i32", "s69", "s5", WOT_BLK),
         salu("s_add_u32", "s68", "s68", "s69"), salu("s_add_u32", "s68", "s68", WS_WOT)]
    o += [[salu("s_add_u32", f"s{S_WQ}", "s90", "s68"), salu("s_addc_u32", "s69", "s91", 0)]]
    o += [salu("s_and_b32", f"s{S_WQ + 1}", "s69", "0xffff"), salu("s_mov_b32", f"s{S_WQ + 2}", 1310720),
          salu("s_mov_b32", f"s{S_X}", f"s{S_WQ}"), salu("s_mov_b32", f"s{S_X + 1}", f"s{S_WQ + 1}"), salu("s_mov_b32", f"s{S_X + 2}", 1310720)]
    o += [salu("s_lshr_b32", "s70", sWAVE, 1), salu("s_mul_i32", "s68", sWAVE, 16 * 20480), salu("s_lshl_b32", "s69", "s70", 14),
          salu("s_add_u32", "s68", "s68", "s69"), salu("s_lshl_b32", "s69", "s70", 13), salu("s_sub_u32", "s69", 4096, "s69")]
    o += [salu("s_add_u32", "s70", "s3", "s4"), salu("s_and_b32", "s70", "s70", 3),
          salu("s_mov_b32", "s34", "0x%x" % (TBL2[0] & 0xffffffff)), salu("s_mov_b32", "s35", "0x%x" % (TBL2[0] >> 32))]
    for r in range(1, 4):
        o += [[scmp("s_cmp_eq_u32", "s70", r), salu("s_cselect_b32", "s34", "0x%x" % (TBL2[r] & 0xffffffff), "s34"),
               salu("s_cselect_b32", "s35", "0x%x" % (TBL2[r] >> 32), "s35")]]
    o += [salu("s_and_b32", "s70", "s34", 15), salu("s_mul_i32", "s70", "s70", 20480), salu("s_add_u32", "s70", "s70", "s68"),
          salu("s_bfe_u32", "s71", "s34", "0x40004"), salu("s_mul_i32", "s71", "s71", 20480), salu("s_add_u32", "s71", "s71", "s68")]
    for r, (st, pi, off) in PF2.items():
        o += [salu("s_mul_i32", r, "s69", pi), salu("s_add_u32", r, r, "s71" if st else "s70")]
        if off:
            o += [salu("s_add_u32", r, r, off)]
    return o


def epoch_groups(n, second=False):
    order = {"W": 0, "X": 1, "K": 2, "V": 2, "J": 3, "P": 4}
    keys = sorted([k for k, u in U.items() if u["I"] % 27 == n and k != ("J", 0)], key=lambda k: (k[0] == "P", U[k]["N"] - U[k]["I"], order[k[0]], k))
    return [g for k in keys for g in unit_dmas(k, second)]


def place_dmas(S, groups, cand, lo):
    ci = 0
    for pre, ds in groups:
        g = cand[ci]
        for n, p in enumerate(pre):
            S.put(max(lo, g - len(pre) + n), p)
        for d in ds:
            S.put(cand[ci], d)
            ci += 1


def tags_for(n):
    t = [k for k, u in U.items() if (u["N"] - (n + 1)) % 27 == 0]
    if n == OPT["flagbar"]:
        t += ["ost", "jst"]
    return t


def atomic_add(vdata, soff):
    return Ins(f"buffer_atomic_add {vdata}, {vFLG}, s[{S_FLG}:{S_FLG + 3}], {soff} offen sc1", "atomic",
               rd=[vdata, vFLG, soff] + regs("s", S_FLG, 4), tag="flag")


def poll_load(vdst, soff):
    return Ins(f"buffer_load_dword {vdst}, off, s[{S_FLG}:{S_FLG + 3}], {soff} sc1", "vld", rd=[soff] + regs("s", S_FLG, 4), wr=[vdst])


class Win:
    def __init__(self, rs, init):
        self.rs = rs
        self.cur = init

    def move(self, new):
        d = (new - self.cur) & 0xffffffff
        self.cur = new
        return [valu("v_add_u32", r, "0x%x" % d, r) for r in self.rs] if d else []


def plan_windows(addrs, span):
    want = []
    i = 0
    while i < len(addrs):
        lo = hi = addrs[i]
        j = i + 1
        while j < len(addrs) and max(hi, addrs[j]) - min(lo, addrs[j]) + span < 65536:
            lo, hi = min(lo, addrs[j]), max(hi, addrs[j])
            j += 1
        want += [lo] * (j - i)
        i = j
    return want


KWANT = plan_windows([U[("K", t)]["addr"] for t in range(16)], 4096)
VWANT = plan_windows([U[("V", t)]["addr"] for t in range(16)], 4096)
WWANT = plan_windows([U[("W", i, 1)]["addr"] for i in range(10)], 4096 + 520)
WWANT = [0 if w < 64 * KB else 64 * KB for w in [U[("W", i, 0)]["addr"] for i in range(10)]]


def pstore(v0, idx):
    return Ins(f"buffer_store_dwordx2 v[{v0}:{v0 + 1}], off, s[{S_PROF}:{S_PROF + 3}], {sPROF} offset:{8 * idx}", "vst",
               rd=[f"v{v0}", f"v{v0 + 1}", sPROF] + regs("s", S_PROF, 4))


def prof_stamp(idx, v0=252):
    if not OPT["prof"]:
        return []
    return [raw("s_memtime s[76:77]", "other", wr=["s76", "s77"]),
            raw("s_memrealtime s[78:79]", "other", wr=["s78", "s79"]),
            raw("s_waitcnt lgkmcnt(0)", "drainlg"),
            valu("v_mov_b32", f"v{v0}", "s76"),
            valu("v_mov_b32", f"v{v0 + 1}", "s78"),
            pstore(v0, idx)]


def bar_seq(tags, idx):
    if OPT["prof"] < 2:
        return [needboth(tags), barrier()] + prof_stamp(idx)
    return [raw("s_memtime s[58:59]", "other", wr=["s58", "s59"]), raw("s_waitcnt lgkmcnt(0)", "drainlg"),
            needboth(tags), barrier(),
            raw("s_memtime s[76:77]", "other", wr=["s76", "s77"]),
            raw("s_memrealtime s[78:79]", "other", wr=["s78", "s79"]),
            raw("s_waitcnt lgkmcnt(0)", "drainlg"), salu("s_sub_u32", "s76", "s76", "s58"),
            valu("v_mov_b32", "v252", "s76"), valu("v_mov_b32", "v253", "s78"), pstore(252, idx)]


def a_read(i, dt, ks, t, win):
    p, xy = dt >> 1, dt & 1
    off = U[("W", i, p >> 1)]["addr"] - win + ks * 4096 + t * 512 + xy * 8
    return ds_read("ds_read_b64_tr_b16", ("a", ABUF[dt % 2] + 4 * ks + 2 * t), 2, wA[p & 1], off)


def first_reads(i):
    ax = U[("X", i)]["addr"] - XS[0]

    def A(ks, t):
        return a_read(i, 0, ks, t, WWANT[i])

    def B(qt, ks):
        return ds_read("ds_read_b128", ("a", bx(qt, ks)), 4, xA[ks], ax + qt * 2048)
    return [A(0, 0), A(0, 1), B(0, 0), A(1, 0), A(1, 1), B(0, 1)] + [B(qt, ks) for qt in range(1, 6) for ks in range(2)]


def k_read(t, j):
    kt, ks = j >> 2, j & 3
    return ds_read("ds_read_b128", ("a", kf(kt, ks)), 4, kA[ks], U[("K", t)]["addr"] - KWANT[t] + kt * 4096)


def epilogue_groups(tmp, dst=None, vaddr=None):
    groups = []
    n = 0
    for T in range(3):
        for ph in range(2):
            for qs in range(2):
                for pl in range(2):
                    qt = 2 * T + qs
                    tb = tmp + 4 * (n % 3)
                    src = oacc(qt, 4 * ph + 2 * pl)
                    db = tb if dst is None or dst(n) is None else dst(n)
                    rd = [valu("v_accvgpr_read_b32", f"v{tb + i}", f"a{src + i}") for i in range(8)]
                    mu = [valu("v_mul_f32", f"v{tb + i}", vR[qt], f"v{tb + i}") for i in range(8)]
                    cv = [valu("v_cvt_pk_bf16_f32", f"v{db + i}", f"v{tb + 2 * i}", f"v{tb + 2 * i + 1}") for i in range(4)]
                    pre = [salu("s_add_u32", sE, sO, ph * 12288 + T * 4096)] if qs == 0 and pl == 0 else []
                    imm = qs * 2048 + pl * 1024
                    groups.append((rd + mu + cv, pre, vstore(("v", db), 4, vaddr or vL16, S_OST, sE, imm, tag="ost", flags=SC1), imm))
                    n += 1
    return groups


def conv_items(T, ps, packed=()):
    out = []
    for p in ps:
        for qs in range(2):
            R, Dd = qacc(p, 0, 2 * T + qs), qf(2 * T + qs, p)
            if p in packed:
                out += [(p, qs, valu("v_pk_mul_f32", f"v[{R + x}:{R + x + 1}]", f"v[{R + x}:{R + x + 1}]", "s[86:87]" if False else vC2)) for x in range(0, 8, 2)]
            else:
                out += [(p, qs, valu("v_mul_f32", f"v{R + x}", sC, f"v{R + x}")) for x in range(8)]
            out += [(p, qs, valu("v_cvt_pk_bf16_f32", f"v{Dd + x}", f"v{R + 2 * x}", f"v{R + 2 * x + 1}")) for x in range(4)]
    return out


def q_phase(second):
    S = Sched()
    ww = Win(wA, 0)
    for i in range(10):
        q0 = S.n()
        for dt in range(8):
            for qt in range(6):
                for ks in range(2):
                    acc = ("v", qacc(dt >> 1, dt & 1, qt))
                    S.add(mfma(16, acc, ("a", ABUF[dt % 2] + 4 * ks), ("a", bx(qt, ks)), None if (i == 0 and ks == 0) else acc))
        for dt in range(1, 8):
            gaps = [4, 5, 6, 7] if dt == 1 else [0, 2, 3, 4]
            for n, (ks, t) in enumerate([(0, 0), (0, 1), (1, 0), (1, 1)]):
                S.put(q0 + 12 * (dt - 1) + gaps[n], a_read(i, dt, ks, t, WWANT[i]))
        if i <= 7:
            S.put(q0 + 11, needboth([("W", 0, 1)] if i == 0 else []), barrier())
        S.put(q0 + 83, *bar_seq(tags_for(i), 2 + i))
        if i < 9:
            S.put(q0 + 79, *ww.move(WWANT[i + 1]))
            for n, r in enumerate(first_reads(i + 1)):
                S.put(q0 + 84 + n, r)
        else:
            S.put(q0 + 79, *ww.move(0))
            kw = Win(kA, KWANT[15])
            mv = kw.move(KWANT[0])
            S.put(q0 + 80, *mv[:2])
            S.put(q0 + 82, *mv[2:])
            for j in range(8):
                S.put(q0 + 84 + j, k_read(0, j))
        if i <= 7:
            for n, x in enumerate([salu("s_bfe_u32", sXS, sQT, "0x%x" % (0x40000 + 4 * i)), salu("s_lshl_b32", sWS, sXS, 19),
                                   salu("s_add_u32", sWS, sWS, sWQ), salu("s_lshl_b32", sXS, sXS, 7), salu("s_add_u32", sXS, sXS, sX)]):
                S.put(q0 + 5 + n, x)
        place_dmas(S, epoch_groups(i, second), [q0 + 13 + 4 * x for x in range(18)], q0 + 11)
    for r in range(2):
        q0 = 96 * U[("J", r)]["N"]
        for jj in jblocks(r, second):
            k = jj & 3
            for tt in range(2):
                S.put(q0 + 18 + 12 * k + 2 * tt, ds_read("ds_read_b64_tr_b16", ("a", 4 * k + 2 * tt), 2, vJ, k * 1024 + tt * 8192))
            nq, pair = divmod(2 * jj, 5)
            g = q0 + 69 + 4 * k
            S.put(g - 1, salu("s_add_u32", sJ, sWOX if pair == 4 else sWOD, nq * 1310720 + pair * 4096))
            S.put(g, vstore(("a", 4 * k), 4, vL16, S_WOT, sJ, 0, tag="jst", flags=SC1))
    if OPT["pf"] and not (second and OPT["pfq1"]):
        lds = []
        for name in OPT["pf"].split(","):
            kind, t = name[0], int(name[1:])
            pre = [salu("s_add_u32", sJ, sROT, t * 8192), salu("s_and_b32", sJ, sJ, "0x1ffff"), salu("s_add_u32", sJ, sJ, sKV)]
            for m in range(4):
                l = vload(("v", 252), 4, vL16, S_K if kind == "K" else S_V, sJ, 1024 * m, tag="pf")
                l.wr = set()
                lds.append((pre if m == 0 else [], l))
        i, k = OPT["pf0"], 0
        for pre, l in lds:
            g = 96 * i + ([69, 73, 77, 81] if OPT['pfn'] <= 4 else [19, 31, 43, 55, 67, 71, 75, 79])[k]
            while S.fixed.get(g) or (second and False):
                g += 1
            for n, p in enumerate(pre):
                S.put(g - 3 + n, p)
            S.put(g, l)
            k += 1
            if k == OPT["pfn"]:
                k = 0
                i += 1
        assert i <= 10
    if second:
        eg = epilogue_groups(EPI)
        ep = []
        for i in range(8):
            for g in eg[3 * i:3 * i + 3]:
                ep += [(x, 96 * i, None) for x in g[0]]
            for g in eg[3 * i:3 * i + 3]:
                ep += [(x, 96 * i + OPT["stg"], None) for x in g[1] + [g[2]]]
        ep[-1] = (ep[-1][0], ep[-1][1], 96 * 9 - 1)
        S.stream(ep)
        S.put(96 * 9 + 2, salu("s_add_u32", sO, sO, 8 * 12288))
    q0 = 96 * 9
    g = q0 + 43
    for x in ([salu("s_add_u32", sWQ, sWQ, 512)] + set_pf_proj(True) if not second else set_pf_out()):
        S.put(g, *(x if isinstance(x, list) else [x]))
        g += 1 if g < q0 + 94 else 0
        if g == q0 + 83:
            g += 1
    if second:
        S.stream([(valu("v_mov_b32", r, vL16), q0 + 43, None) for r in vW + vX])
    S.put(q0 + 7, valu("v_mov_b32", "v242", sC), valu("v_mov_b32", "v243", sC))
    if OPT["gate"]:
        if second:
            S.put(2, salu("s_mov_b32", sPG, 32))
        for i in (3, 5, 7, 9):
            p = publish(i + 1)
            p[0] = salu("s_add_u32", sJ, sPG, i + 1)
            p[1] = valu("v_mov_b32", vPT, sJ)
            S.put(96 * i + 79, p[0], p[1])
            S.put(96 * i + 82, p[2])
    S.stream([(x, min(q0 + 12 * (2 * p + 1) + 2 * qs + 1 + 2, q0 + 95), None) for p, qs, x in conv_items(0, range(4))])
    S.put(-1, *prof_stamp(1))
    return S.finish(lead=first_reads(0), report=OPT["report"])


vPA, vPV, vPT = "v239", "v240", "v254"
sPG, sGT = "s63", "s67"
GATE_SPINS = []


def publish(n):
    return [salu("s_add_u32", sGT, sPG, n), valu("v_mov_b32", vPT, sGT),
            Ins(f"buffer_store_dword {vPT}, {vPUB}, s[{S_FLG}:{S_FLG + 3}], 0 offen sc1", "vst", rd=[vPT, vPUB] + regs("s", S_FLG, 4), tag="pub")]


def gate_poll():
    return Ins(f"buffer_load_dword {vPV}, {vPA}, s[{S_FLG}:{S_FLG + 3}], 0 offen offset:128 sc1", "vld", rd=[vPA] + regs("s", S_FLG, 4), wr=[vPV])


def gate(n):
    name = f"L_gate{n}"
    GATE_SPINS.extend([label(name), salu("s_mov_b32", sSPIN, 0), label(name + "_loop"), raw("s_sleep 2"), gate_poll(), drain(),
                       salu("s_add_u32", sSPIN, sSPIN, 1), scmp("s_cmp_gt_u32", sSPIN, "0x20000"),
                       raw(f"s_cbranch_scc1 {name}_back", "branch", rd=["scc"]),
                       valu("v_cmp_gt_u32", "vcc", sGT, vPV), nop(4), raw(f"s_cbranch_vccnz {name}_loop", "branch", rd=["vcc"]),
                       raw(f"s_branch {name}_back", "branch")])
    return ([salu("s_add_u32", sGT, sPG, n), valu("v_cmp_gt_u32", "vcc", sGT, vPV)],
            [raw(f"s_cbranch_vccnz {name}", "branch", rd=["vcc"]), label(name + "_back")])


def lspread(qt, tmp):
    l = f"v{lacc(qt)}"
    return [valu("v_mov_b32", tmp, l), perm("v_permlane32_swap_b32", tmp, l), valu("v_add_f32", l, l, tmp),
            valu("v_mov_b32", tmp, l), perm("v_permlane16_swap_b32", tmp, l), valu("v_add_f32", l, l, tmp)]


def interleave(a, b):
    return [x for p in zip(a, b) for x in p]


def lcheck():
    l = [f"v{lacc(qt)}" for qt in range(6)]
    return [valu("v_add_f32", vT[0], l[0], l[1]), valu("v_min3_f32", vT[1], l[0], l[1], l[2]),
            valu("v_add_f32", vT[0], vT[0], l[2]), valu("v_min3_f32", vT[1], vT[1], l[3], l[4]),
            valu("v_add_f32", vT[0], vT[0], l[3]), valu("v_add_f32", vT[0], vT[0], l[4]),
            valu("v_min_f32", vT[1], vT[1], l[5]), valu("v_add_f32", vT[0], vT[0], l[5]),
            valu("v_cmp_nlt_f32", "s[56:57]", sLO, vT[1]),
            valu("v_cmp_ngt_f32", "vcc", sHI, vT[0]),
            salu("s_or_b64", "vcc", "vcc", "s[56:57]")]


def a_phase():
    S = Sched()
    qk = [[0] * 3 for _ in range(16)]
    pv = [[0] * 3 for _ in range(16)]

    def QK(t, T):
        qk[t][T] = S.n()
        for qs in range(2):
            for kt in range(2):
                s = ("v", sreg(2 * T + qs) + 4 * kt)
                for ks in range(4):
                    S.add(mfma(16, s, ("a", kf(kt, ks)), ("v", qf(2 * T + qs, ks)), None if ks == 0 else s))

    def PV(t, T):
        pv[t][T] = S.n()
        sums = []
        for qs in range(2):
            l = ("v", lacc(2 * T + qs))
            sums.append(mfma(16, l, ("v", ONES), ("v", sreg(2 * T + qs)), None if t == 0 else l))
        if t == 15:
            for m in sums:
                S.add(m)
        for dt in range(8):
            for qs in range(2):
                o = ("a", oacc(2 * T + qs, dt))
                S.add(mfma(16, o, ("a", vf(dt)), ("v", sreg(2 * T + qs)), None if t == 0 else o))
        if t < 15:
            for m in sums:
                S.add(m)

    for t in range(16):
        QK(t, 0)
        if t:
            PV(t - 1, 1)
        QK(t, 1)
        if t:
            PV(t - 1, 2)
        QK(t, 2)
        PV(t, 0)
    PV(15, 1)
    PV(15, 2)
    bar = {}
    kw, vw = Win(kA, KWANT[0]), Win(vA, VWANT[0])
    for t in range(16):
        g0 = pv[t - 1][2] if t else qk[0][1]
        bar[10 + t] = g0 - 1
        S.put(g0 - 1, *bar_seq(tags_for(10 + t), 12 + t))
        for n, m in enumerate(vw.move(VWANT[t])):
            S.put(g0 - 14 + 3 * (n // 2), m)
        for dt in range(8):
            for tt in range(2):
                S.put(g0 + 4 * dt + 1 + 2 * tt,
                      ds_read("ds_read_b64_tr_b16", ("a", vf(dt) + 2 * tt), 2, vA[dt], U[("V", t)]["addr"] - VWANT[t] + tt * 4096))
        if t < 15:
            for n, m in enumerate(kw.move(KWANT[t + 1])):
                S.put((qk[t][0] + 9 if t else qk[0][2] + 2) + (3 if t else 2) * (n // 2), m)
            for j in range(8):
                S.put(qk[t][2] + [8, 10, 12, 14, 17, 19, 21, 23][j], k_read(t + 1, j))
    S.stream([(m, pv[15][0], None) for m in vw.move(VWANT[0])])
    bar[26] = pv[15][1] - 1
    S.put(bar[26], *bar_seq(tags_for(26), 28))
    fr = first_reads(0)
    for n, r in enumerate(fr[:10]):
        S.put(pv[15][1] + [1, 3, 5, 7, 9, 11, 13, 15, 16, 17][n], r)
    for n, r in enumerate(fr[10:]):
        S.put(pv[15][2] + 3 + 2 * n, r)
    for n in range(10, 27):
        groups = epoch_groups(n)
        nd = sum(len(g[1]) for g in groups)
        if n == 10:
            cand = [2 * x for x in range(8)]
            lo = -1
        else:
            lo = bar[n - 1] + 1
            if n == 11 or n == 26 or OPT["uni"]:
                a = lo + 5
            else:
                a = qk[n - 10][0] + 1 if nd <= 8 else pv[n - 11][0] + 6
            b = bar[n] - 1
            cand = []
            for x in range(nd):
                g = a + (b - a) * x // nd
                while any(i.kind in MEMK for i in S.fixed.get(g, [])) or g in cand:
                    g += 1
                cand.append(g)
            assert not cand or cand[-1] < bar[n]
        place_dmas(S, groups, cand, lo)
    S.put(pv[15][0] + 2, salu("s_add_u32", sKV, sKV, 262144))
    g = bar[OPT["flagbar"]] + 2
    S.put(g, valu("v_mov_b32", f"v{EPI}", "0x10000"), valu("v_mov_b32", f"v{EPI + 1}", sIT))
    S.put(g + 4, atomic_add(f"v{EPI}", sFB))
    S.put(g + 8, atomic_add(f"v{EPI + 1}", sFG))
    g = qk[12][0]
    S.put(g + 1, scmp("s_cmp_eq_u32", sIT, 1), salu("s_cselect_b32", sE, sFB, "0x1000"))
    S.put(g + 3, poll_load(vPOLL[1], sE))
    g = qk[13][0]
    S.put(g + 1, salu("s_lshl_b32", sWANT, sIT, 24), valu("v_readfirstlane_b32", sQ, vPOLL[1]))
    S.put(g + 4, scmp("s_cmp_lt_u32", sQ, sWANT), raw("s_cbranch_scc1 L_spin3", "branch", rd=["scc"]), label("L_spin3_back"))
    g = qk[15][1]
    S.put(g + 1, scmp("s_cmp_eq_u32", sIT, 1), salu("s_cselect_b32", sE, sFG, "0x1000"))
    S.put(g + 3, poll_load(vPOLL[0], sE))
    if OPT["codepf2"]:
        g = qk[OPT["codepf2"]][0] - 6
        S.put(g - 2, salu("s_mul_i32", sJ, sIT, "L_out-L_q2"))
        S.put(g - 1, salu("s_add_u32", sJ, sJ, "L_q2-L_pc"))
        S.put(g, salu("s_add_u32", sJ, sJ, sCP))
        S.put(g + 1, salu("s_min_u32", sJ, sJ, "L_endcode-L_pc-256"))
        S.put(g + 2, valu("v_and_b32", f"v{EPI + 2}", 16, vL16), valu("v_lshlrev_b32", f"v{EPI + 2}", 3, f"v{EPI + 2}"))
        S.put(g + 3, valu("v_add_u32", f"v{EPI + 2}", sJ, f"v{EPI + 2}"))
        S.put(g + 5, Ins(f"global_load_dword v{EPI + 3}, v{EPI + 2}, s[96:97]", "vld", rd=[f"v{EPI + 2}", "s96", "s97"], wr=[f"v{EPI + 3}"]))
    if OPT["gate"]:
        def free(g):
            while S.fixed.get(g) or S.fixed.get(g - 1):
                g += 1
            return g
        S.put(qk[0][2] + 1, valu("v_lshrrev_b32", vPA, 2, vL16), valu("v_and_b32", vPA, 28, vPA))
        for n in range(11, 24, OPT["gstep"]):
            p = publish(n)
            g = free(bar[n] + 2)
            S.put(g - 1, p[0], p[1])
            S.put(free(g + 2), p[2])
            S.put(free(bar[n] + 60), gate_poll())
            a, b = gate(n + 1 - OPT["gate"])
            g = free(bar[n + 1] + 20)
            S.put(g, *a)
            S.put(g + 2, *b)
    for T in (1, 2):
        if OPT["pk"]:
            nfree = 1 if T == 1 else 0
            S.stream([(x, -1, None) for p, qs, x in conv_items(T, range(nfree))] +
                     [(x, qk[0][T] - 1, qk[0][T] - 1) for p, qs, x in conv_items(T, range(nfree, 4), packed=range(4))])
        else:
            c = [(x, -1, None) for p, qs, x in conv_items(T, range(4))]
            c[-1] = (c[-1][0], -1, qk[0][T] - 1)
            S.stream(c)
    fin = []
    if OPT["one1"]:
        for T in range(3):
            fin += [(x, [pv[15][1] + 12, pv[15][2], pv[15][2] + 4][T], None) for x in interleave(lspread(2 * T, f"v{lacc(2 * T) + 1}"), lspread(2 * T + 1, f"v{lacc(2 * T + 1) + 1}"))]
    S.stream(fin + [(x, pv[15][2] + 4, None) for x in lcheck()])
    units = []
    for t in range(16):
        for qt in range(6):
            s = sreg(qt)
            T, qs = qt >> 1, qt & 1
            dl = pv[t][T] + qs - 2
            units.append(dict(e=qk[t][T] + 8 * qs + 7 + 2,
                              exps=[valu("v_exp_f32", f"v{s + r}", f"v{s + r}") for r in range(8)],
                              cvts=[(valu("v_cvt_pk_bf16_f32", f"v{s + r}", f"v{s + 2 * r}", f"v{s + 2 * r + 1}"), 2 * r + 2, dl) for r in range(4)]))
    S.packers.append(SoftmaxPacker(units))
    return S.finish(lead=[k_read(0, j) for j in range(8)], report=OPT["report"])


def slow_path():
    o = [label("L_slow"), drain(), nop(16)]
    KF = [EPI + 4 * k for k in range(4)]
    VFR = 56
    vM = [f"v{120 + q}" for q in range(6)]
    vKo, vVo, vt, vu = "v60", "v61", "v62", "v63"
    o += [valu("v_lshrrev_b32", vt, 4, vL16), valu("v_and_b32", vu, 15, vt), valu("v_lshrrev_b32", vt, 4, vt),
          valu("v_lshlrev_b32", vKo, 8, vu), valu("v_lshl_add_u32", vKo, vt, 4, vKo),
          valu("v_lshlrev_b32", vVo, 10, vt), valu("v_lshl_add_u32", vVo, vu, 1, vVo)]
    o += [salu("s_sub_u32", "s58", sKV, 262144)]
    o += [valu("v_mov_b32", m, "0xff800000") for m in vM]

    def scores():
        r = []
        for kt in range(2):
            r += [salu("s_add_u32", "s61", "s59", kt * 4096)]
            r += [vload(("v", KF[ks]), 4, vKo, S_K, "s61", 64 * ks) for ks in range(4)] + [drain()]
            for qt in range(6):
                s = ("v", sreg(qt) + 4 * kt)
                r += [mfma(16, s, ("v", KF[ks]), ("v", qf(qt, ks)), None if ks == 0 else s) for ks in range(4)]
            r += [nop(16)]
        return r
    o += [salu("s_mov_b32", "s59", "s58"), salu("s_mov_b32", "s60", 16), label("L_slow1")] + scores()
    for qt in range(6):
        o += [valu("v_max3_f32", vM[qt], vM[qt], f"v{sreg(qt) + r}", f"v{sreg(qt) + r + 1}") for r in range(0, 8, 2)]
    o += [salu("s_add_u32", "s59", "s59", 8192), salu("s_sub_u32", "s60", "s60", 1), scmp("s_cmp_lg_u32", "s60", 0),
          raw("s_cbranch_scc1 L_slow1", "branch", rd=["scc"])]
    for qt in range(6):
        for op in ("v_permlane32_swap_b32", "v_permlane16_swap_b32"):
            o += [valu("v_mov_b32", vt, vM[qt]), nop(2), perm(op, vt, vM[qt]), valu("v_max_f32", vM[qt], vM[qt], vt)]
        o += [valu("v_mov_b32", f"v{lacc(qt) + r}", 0) for r in range(4)]
    o += [valu("v_accvgpr_write_b32", f"a{r}", 0) for r in range(192)]
    o += [salu("s_mov_b32", "s59", "s58"), salu("s_mov_b32", "s60", 16), label("L_slow2")] + scores()
    for qt in range(6):
        s = sreg(qt)
        o += [valu("v_sub_f32", f"v{s + r}", f"v{s + r}", vM[qt]) for r in range(8)]
        o += [valu("v_exp_f32", f"v{s + r}", f"v{s + r}") for r in range(8)]
        o += [valu("v_cvt_pk_bf16_f32", f"v{s + r}", f"v{s + 2 * r}", f"v{s + 2 * r + 1}") for r in range(4)]
    o += [salu("s_add_u32", "s57", "s59", 4096)]
    for dt in range(8):
        for j in range(8):
            o += [vload(("v", 184 + j), 1, vVo, S_V, "s57" if j >= 4 else "s59", (j & 3) * 256 + 32 * dt, op="buffer_load_ushort")]
        o += [drain()]
        o += [valu("v_lshl_or_b32", f"v{VFR + r}", f"v{185 + 2 * r}", 16, f"v{184 + 2 * r}") for r in range(4)]
        o += [mfma(16, ("a", oacc(qt, dt)), ("v", VFR), ("v", sreg(qt)), ("a", oacc(qt, dt))) for qt in range(6)]
        o += [nop(8)]
    o += [mfma(16, ("v", lacc(qt)), ("v", ONES), ("v", sreg(qt)), ("v", lacc(qt))) for qt in range(6)] + [nop(16)]
    o += [salu("s_add_u32", "s59", "s59", 8192), salu("s_sub_u32", "s60", "s60", 1), scmp("s_cmp_lg_u32", "s60", 0),
          raw("s_cbranch_scc1 L_slow2", "branch", rd=["scc"])]
    o += [nop(16)]
    if OPT["one1"]:
        for qt in range(6):
            o += lspread(qt, vt)
    o += [drain(), raw("s_branch L_back", "branch")]
    return o


def srd(base, lo, hi, nbytes):
    return [salu("s_mov_b32", f"s{base}", lo), salu("s_and_b32", f"s{base + 1}", hi, "0xffff"),
            salu("s_mov_b32", f"s{base + 2}", nbytes), salu("s_mov_b32", f"s{base + 3}", "0x20000")]


def decode_wg():
    return [salu("s_and_b32", "s3", "s2", 7), salu("s_lshr_b32", "s4", "s2", 6), salu("s_lshl_b32", "s3", "s3", 2),
            salu("s_add_u32", "s3", "s3", "s4"), salu("s_lshr_b32", "s4", "s2", 3), salu("s_and_b32", "s4", "s4", 7),
            salu("s_lshr_b32", "s5", "s3", 4), salu("s_and_b32", "s6", "s3", 15)]


def code_touch():
    return [salu("s_lshr_b32", "s68", "s2", 3), salu("s_lshl_b32", "s68", "s68", 11),
            valu("v_lshrrev_b32", "v11", 6, "v0"), valu("v_and_b32", "v12", 3, "v0"), valu("v_lshlrev_b32", "v11", 9, "v11"),
            valu("v_lshl_add_u32", "v11", "v12", 7, "v11"), valu("v_add_u32", "v11", "s68", "v11"),
            Ins("global_load_dword v253, v11, s[96:97]", "vld", rd=["v11", "s96", "s97"], wr=["v253"])]


def prologue():
    o = [scmp("s_cmp_ge_u32", "s2", 256), raw("s_cbranch_scc1 L_end", "branch", rd=["scc"])]
    o += [raw("s_getpc_b64 s[96:97]", wr=["s96", "s97"]), label("L_pc")]
    if OPT["codepf"] == 2:
        o += code_touch()
    o += decode_wg()
    o += [salu("s_mul_i32", "s7", "s5", 40), salu("s_add_u32", "s68", "s0", "s7"), salu("s_addc_u32", "s69", "s1", 0),
          raw("s_load_dwordx8 s[56:63], s[68:69], 0", wr=regs("s", 56, 8)),
          raw("s_load_dwordx2 s[94:95], s[68:69], 32", wr=["s94", "s95"]),
          raw("s_load_dwordx4 s[88:91], s[0:1], 88", wr=regs("s", 88, 4)),
          raw("s_load_dwordx2 s[92:93], s[0:1], 80", wr=["s92", "s93"])]
    i, a, b, c = "v1", "v2", "v3", "v4"
    o += [valu("v_lshrrev_b32", a, 6, "v0"), valu("v_and_b32", i, 63, "v0"),
          valu("v_readfirstlane_b32", sWAVE, a), valu("v_lshlrev_b32", vL16, 4, i)]
    o += [valu("v_lshrrev_b32", a, 4, i), valu("v_and_b32", b, 7, i), valu("v_lshrrev_b32", "v5", 3, i),
          valu("v_and_b32", c, 1, a), valu("v_lshlrev_b32", c, 1, c), valu("v_xor_b32", c, c, b), valu("v_lshlrev_b32", c, 4, c),
          valu("v_lshl_add_u32", vW[0], "v5", 13, c),
          valu("v_xor_b32", vW[1], 64, vW[0]), valu("v_add_u32", vW[1], 64512, vW[1]),
          valu("v_add_u32", vW[2], 2 * 64512, vW[0]), valu("v_add_u32", vW[3], 2 * 64512, vW[1])]
    o += [valu("v_xor_b32", c, a, b), valu("v_lshlrev_b32", c, 4, c), valu("v_mul_u32_u24", "v6", 1280, "v5"),
          valu("v_add_u32", vX[0], "v6", c),
          valu("v_xor_b32", vX[1], 64, vX[0]), valu("v_add_u32", vX[1], 9216, vX[1]),
          valu("v_add_u32", vX[2], 2 * 9216, vX[0]), valu("v_add_u32", vX[3], 2 * 9216, vX[1])]
    o += [salu("s_lshr_b32", "s70", sWAVE, 1), salu("s_and_b32", "s71", sWAVE, 1),
          salu("s_lshl_b32", sW4K, sWAVE, 12), salu("s_mul_i32", sW6K, sWAVE, 6144),
          salu("s_lshl_b32", "s7", "s4", 2), salu("s_add_u32", "s7", "s7", "s70"),
          salu("s_lshl_b32", sWQ, "s71", 18), salu("s_lshl_b32", sT0, "s7", 8), salu("s_add_u32", sWQ, sWQ, sT0),
          salu("s_mul_i32", sX, "s6", 245760), salu("s_mul_i32", sT0, sWAVE, 61440), salu("s_add_u32", sX, sX, sT0)]
    o += [raw("s_waitcnt lgkmcnt(0)", "drainlg")]
    o += srd(S_X, "s56", "s57", 3932160) + srd(S_WQ, "s62", "s63", 5242880)
    o += set_pf_proj()
    for k in [("W", 0, 0), ("X", 0), ("W", 0, 1), ("W", 1, 0), ("X", 1), ("W", 1, 1)]:
        for pre, ds in unit_dmas(k):
            o += pre[::-1] + ds
    if OPT["warmw"]:
        o += [salu("s_mul_i32", "s68", "s6", 40 * 8192), salu("s_lshl_b32", "s69", "s4", 10), salu("s_add_u32", "s68", "s68", "s69"),
              salu("s_mul_i32", "s69", sWAVE, 10 * 8192), salu("s_add_u32", "s68", "s68", "s69"),
              valu("v_lshlrev_b32", b, 7, b), valu("v_lshl_add_u32", "v6", "v5", 13, b), valu("v_and_b32", c, 1, "v5"),
              valu("v_lshl_add_u32", c, c, 13, b), salu("s_add_u32", "s69", "s68", 8 * 8192)]
        o += [vload(("v", 254), 1, "v6", S_WQ, "s68", 0), vload(("v", 255), 1, c, S_WQ, "s69", 0)]
    o += [salu("s_lshr_b32", "s68", "s2", 3), salu("s_lshl_b32", "s68", "s68", 2), salu("s_add_u32", "s68", "s68", sWAVE), salu("s_lshl_b32", sCP, "s68", 8)]
    if OPT["codepf"] == 1:
        o += code_touch()
    o += srd(S_WO, "s94", "s95", 5242880)
    o += [salu("s_lshl_b32", "s68", "s6", 3), salu("s_add_u32", "s68", "s68", "s4"),
          salu("s_mul_i32", sWOS, "s68", 40960), salu("s_mul_i32", sT0, sWAVE, 10240), salu("s_add_u32", sWOS, sWOS, sT0)]
    for pre, ds in unit_dmas(("J", 0)):
        o += pre[::-1] + ds
    if OPT["warmj"]:
        o += [valu("v_lshrrev_b32", c, 3, i), valu("v_mul_u32_u24", c, 1280, c), valu("v_and_b32", "v6", 7, i), valu("v_min_u32", "v6", 5, "v6"),
              valu("v_lshl_add_u32", c, "v6", 7, c), vload(("v", 252), 1, c, S_WO, sWOS, 512)]
    o += srd(S_K, "s58", "s59", 67108864) + srd(S_V, "s60", "s61", 67108864)
    o += srd(S_OST, "s90", "s91", WS_WOT) + srd(S_FLG, "s88", "s89", 256)
    o += [salu("s_add_u32", "s68", "s90", WS_WOT), salu("s_addc_u32", "s69", "s91", 0)] + srd(S_WOT, "s68", "s69", 2 * WOT_BLK)
    o += [salu("s_lshl_b32", sFG, "s3", 2), salu("s_lshl_b32", sFB, "s5", 6),
          valu("v_cmp_eq_u32", "vcc", 0, "v0"), valu("v_mov_b32", "v10", "0x1000"), valu("v_mov_b32", f"v{ONES}", "0x3f803f80"),
          valu("v_cndmask_b32", vFLG, "v10", 0, "vcc"),
          salu("s_and_b32", "s68", "s2", 7), salu("s_lshl_b32", "s68", "s68", 2), salu("s_add_u32", "s68", "s68", 128),
          scmp("s_cmp_lt_u32", "s2", 8), salu("s_cselect_b32", "s68", "s68", "0x1000"), valu("v_add_u32", vPUB, "s68", vFLG),
          salu("s_mov_b32", sPG, 0)]
    if OPT["one1"]:
        o += [valu("v_and_b32", "v10", 15, "v0"), valu("v_cmp_eq_u32", "vcc", 0, "v10"), valu("v_cndmask_b32", f"v{ONES}", 0, f"v{ONES}", "vcc")]
    o += [valu("v_mov_b32", f"v{ONES + r}", f"v{ONES}") for r in range(1, 4)]
    if OPT["prof"]:
        o += [salu("s_add_u32", "s68", "s90", WS_PROF), salu("s_addc_u32", "s69", "s91", 0)] + srd(S_PROF, "s68", "s69", 1 << 20)
        o += [salu("s_lshl_b32", sPROF, "s2", 2), salu("s_add_u32", sPROF, sPROF, sWAVE), salu("s_lshl_b32", sPROF, sPROF, 10)]
        o += prof_stamp(0, 8)
    o += [salu("s_lshl_b32", sKV, "s6", 5), salu("s_add_u32", sKV, sKV, "s7"), salu("s_lshl_b32", sKV, sKV, 17),
          salu("s_lshl_b32", sT0, "s71", 12),
          salu("s_lshr_b32", sROT, "s2", 3), salu("s_lshl_b32", sT1, "s2", 1), salu("s_add_u32", sROT, sROT, sT1),
          salu("s_and_b32", sROT, sROT, 15), salu("s_lshl_b32", sROT, sROT, 13), salu("s_add_u32", sROT, sROT, sT0)]
    o += [salu("s_mul_i32", sO, "s3", O_GRP), salu("s_mul_i32", sT0, "s71", 786432), salu("s_add_u32", sO, sO, sT0),
          salu("s_lshr_b32", sT0, "s4", 1), salu("s_mul_i32", sT0, sT0, 16 * 12288), salu("s_add_u32", sO, sO, sT0),
          salu("s_and_b32", sT0, "s4", 1), salu("s_mul_i32", sT0, sT0, 4 * 12288), salu("s_add_u32", sO, sO, sT0),
          salu("s_mul_i32", sT0, "s70", 2 * 12288), salu("s_add_u32", sO, sO, sT0)]
    o += [salu("s_lshl_b32", "s68", "s6", 3), salu("s_add_u32", "s68", "s68", "s4"),
          salu("s_lshr_b32", sT0, "s68", 1), salu("s_and_b32", sT1, sT0, "0x33"),
          salu("s_and_b32", "s69", sT0, 4), salu("s_lshl_b32", "s69", "s69", 1), salu("s_or_b32", sT1, sT1, "s69"),
          salu("s_and_b32", "s69", sT0, 8), salu("s_lshr_b32", "s69", "s69", 1), salu("s_or_b32", sT1, sT1, "s69"),
          salu("s_mul_i32", sWOD, sT1, 20480),
          salu("s_and_b32", sT0, "s68", 1), salu("s_lshl_b32", sT0, sT0, 11), salu("s_add_u32", sWOD, sWOD, sT0),
          salu("s_mul_i32", sT0, "s5", WOT_BLK), salu("s_add_u32", sWOD, sWOD, sT0),
          salu("s_lshl_b32", sT0, "s70", 12), salu("s_add_u32", sWOD, sWOD, sT0),
          salu("s_lshl_b32", sT0, "s71", 10), salu("s_add_u32", sWOD, sWOD, sT0),
          salu("s_mul_i32", sT0, "s70", 1310720 - 20480), salu("s_add_u32", sWOX, sWOD, sT0)]
    o += [salu("s_add_u32", "s68", "s3", "s4"), salu("s_and_b32", "s68", "s68", 3), salu("s_mov_b32", sQT, "0x%x" % TBLQ[0])]
    for r in range(1, 4):
        o += [scmp("s_cmp_eq_u32", "s68", r), salu("s_cselect_b32", sQT, "0x%x" % TBLQ[r], sQT)]
    cbits = struct.unpack("<I", struct.pack("<f", math.log2(math.e) / math.sqrt(128.0)))[0]
    o += [salu("s_mov_b32", sC, "0x%x" % cbits), salu("s_mov_b32", sHI, "0x4e800000"), salu("s_mov_b32", sLO, "0x30800000"),
          salu("s_mov_b32", sIT, 0)]
    o += [valu("v_lshrrev_b32", a, 4, i), valu("v_and_b32", b, 15, i),
          valu("v_xor_b32", c, a, b), valu("v_lshlrev_b32", c, 4, c), valu("v_lshl_add_u32", vK[0], a, 8, c)]
    o += [valu("v_xor_b32", vK[m], m << 6, vK[0]) for m in range(1, 4)]
    o += [valu("v_lshlrev_b32", "v5", 1, a), valu("v_xor_b32", "v5", "v5", b), valu("v_lshlrev_b32", "v5", 4, "v5"),
          valu("v_lshl_add_u32", vV[0], a, 8, "v5"), valu("v_xor_b32", vV[1], 128, vV[0])]
    o += [salu("s_lshl_b32", "s69", "s70", 13), salu("s_mul_i32", "s68", "s71", 12288), salu("s_add_u32", "s68", "s68", XS[0]),
          valu("v_bfe_u32", "v8", i, 2, 2), valu("v_and_b32", "v9", 3, i)]
    o += [valu("v_lshl_add_u32", c, b, 8, c), valu("v_add_u32", c, KWANT[15], c), valu("v_add_u32", kA[0], "s69", c)]
    o += [valu("v_xor_b32", kA[j], j << 6, kA[0]) for j in range(1, 4)]
    o += [valu("v_lshl_add_u32", "v5", a, 2, "v8"), valu("v_lshlrev_b32", c, 8, "v5"), valu("v_and_b32", "v6", 7, "v5"),
          valu("v_lshl_add_u32", c, "v6", 5, c), valu("v_lshl_add_u32", c, "v9", 3, c),
          valu("v_add_u32", c, VWANT[0], c), valu("v_add_u32", vA[0], "s69", c)]
    o += [valu("v_xor_b32", vA[d], d << 5, vA[0]) for d in range(1, 8)]
    o += [valu("v_lshl_add_u32", c, a, 3, "v8"), valu("v_lshlrev_b32", c, 7, c),
          valu("v_and_b32", "v5", 2, "v8"), valu("v_and_b32", "v7", 1, a), valu("v_lshl_add_u32", "v5", "v7", 2, "v5"),
          valu("v_xor_b32", "v5", "v5", "v9"), valu("v_lshl_add_u32", c, "v5", 4, c), valu("v_add_u32", wA[0], "s69", c),
          valu("v_xor_b32", wA[1], 64, wA[0])]
    o += [valu("v_lshrrev_b32", "v5", 1, b), valu("v_xor_b32", "v5", "v5", a),
          valu("v_lshlrev_b32", "v5", 4, "v5"), valu("v_lshl_add_u32", c, b, 7, "v5"),
          valu("v_xor_b32", "v5", 64, c), valu("v_add_u32", xA[0], "s68", c), valu("v_add_u32", xA[1], "s68", "v5")]
    o += [salu("s_lshl_b32", "s68", "s70", 2), salu("s_lshl_b32", "s69", "s71", 3), salu("s_add_u32", "s69", "s69", WOJ_ADDR),
          valu("v_lshrrev_b32", c, 1, a), valu("v_lshlrev_b32", c, 12, c), valu("v_lshl_add_u32", c, "v6", 7, c),
          valu("v_add_u32", c, "s69", c), valu("v_add_u32", "v5", "s68", "v9"), valu("v_lshrrev_b32", "v6", 1, "v6"),
          valu("v_xor_b32", "v5", "v5", "v6"), valu("v_lshl_add_u32", vJ, "v5", 4, c)]
    o += [needvm([("W", 0, 0), ("X", 0)] if OPT["early"] else [k for k, u in U.items() if u["N"] == 0]), barrier()] + first_reads(0)
    return o


def acc2(pi, xy, qi):
    return ((pi * 6 + qi) * 2 + xy) * 4


def a2(st, pi, ks, xy):
    if st == 0:
        return (240 if pi == 0 else 48 + 16 * pi) + 8 * ks + 4 * xy
    return (48 if pi == 0 else 112 + 16 * pi) + 8 * ks + 4 * xy


def b2(st, qi, ks):
    return (192 if st == 0 else 0) + 8 * qi + 4 * ks


V2A = ["v%d" % i for i in range(240, 245)]
V2B = ["v245", "v246", "v247", "v248", "v249", "v253"]
V2L, V2W, V2P, V2X = "v252", "v254", "v255", "v251"
S2A, S2B, S2OUT = S_WQ, 12, 8
TA, TB, sAB, sBB = 56, 62, "s43", "s44"


def k2_loads_A(st, pi, soff=None):
    return [vload(("a", a2(st, pi, ks, xy)), 4, V2A[pi], S2A, soff or sA2, ks * 2048 + xy * 1024, flags=SC1) for xy in range(2) for ks in range(2)]


def k2_loads_B(st, qi):
    return [vload(("a", b2(st, qi, ks)), 4, V2B[qi], S2B, sB2, ks * 1024, flags=SC1) for ks in range(2)]


def k2_lds_A(st, pi):
    out = []
    for xy in range(2):
        for ks in range(2):
            r = [r for r, (s_, p_, off) in PF2.items() if (s_, p_) == (st, pi) and (r not in ("s87", "s99") or off == 2048 * ks)][0]
            key = [k for k, rs in sPF.items() if r in rs][0]
            if key[0] == "W":
                out.append(ds_read("ds_read_b128", ("a", a2(st, pi, ks, xy)), 4, V2W, U[key]["addr"] + ks * 2048 + xy * 1024))
            elif key[0] == "P":
                out.append(ds_read("ds_read_b128", ("a", a2(st, pi, ks, xy)), 4, V2P, ks * 2048 + xy * 1024))
            elif r == sPF[key][0]:
                out.append(ds_read("ds_read_b128", ("a", a2(st, pi, ks, xy)), 4, V2X, U[key]["addr"] - XS[0] + ks * 2048 + xy * 1024))
            else:
                out.append(ds_read("ds_read_b128", ("a", a2(st, pi, ks, xy)), 4, V2X, U[key]["addr"] - XS[0] + 4096 + xy * 1024))
    return out


def k2_steps(S, first, loadA, loadB, pend, check=False, late=(), final=None):
    for st in range(2):
        q0 = S.n()
        tiles = [(pi, xy, qi) for pi in range(5) for xy in range(2) for qi in range(6)]
        if final is not None and st == 1:
            tiles = [t for t in tiles if t[2] >= 3] + [t for t in tiles if t[2] < 3]
            for n, x in enumerate(final[0]):
                S.put(q0 + 2 + n, x)
            for n, x in enumerate(final[1]):
                S.put(q0 + 61 + 2 * n, x)
        for pi, xy, qi in tiles:
            for ks in range(2):
                acc = ("v", acc2(pi, xy, qi))
                S.add(mfma(16, acc, ("a", a2(st, pi, ks, xy)), ("a", b2(st, qi, ks)),
                           None if (first and st == 0 and ks == 0) else acc))
        pos = [int(0.5 + 3.75 * n) for n in range(32)]
        if pend[st]:
            ls = k2_loads_A(1 - st, 4)
            S.put(q0 + pos[0], ls[2])
            S.put(q0 + pos[1], ls[3])
            for n, x in enumerate(next_off(sA2, TA, sAB, 20480)):
                S.put(q0 + pos[1] + 1 + n, x)
        if first and st == 0:
            for n, (pre, l) in enumerate(late):
                S.put(q0 + 6 * n + 2, *pre)
                S.put(q0 + 6 * n + 3, l)
            for n, r in enumerate(k2_lds_A(1, 0) + k2_lds_A(1, 1) + k2_lds_A(1, 2)):
                S.put(q0 + 6 * n + 5 if n < 8 else q0 + 54 + 4 * (n - 8), r)
            S.put(q0 + 70, valu("v_add_u32", V2P, D[9] - D[5], V2P))
            for n, r in enumerate(k2_lds_A(1, 3)):
                S.put(q0 + 73 + 4 * n, r)
        elif loadB[st]:
            for n, l in enumerate([l for qi in range(6) for l in k2_loads_B(1 - st, qi)]):
                S.put(q0 + pos[2 + n], l)
            for n, x in enumerate(next_off(sB2, TB, sBB, 12288)):
                S.put(q0 + pos[13] + 1 + n, x)
        if loadA[st]:
            n = 14
            for pi in range(5):
                ls = k2_loads_A(st, pi)
                for x, l in enumerate(ls if pi < 4 else ls[:2]):
                    assert pos[n] >= 24 * pi + 11 + 12 * (x >> 1), (pi, x, pos[n])
                    S.put(q0 + pos[n], l)
                    n += 1
        if first and st == 1:
            S.put(q0 + 110, needvm(["ost"]), barrier())
            S.put(q0 + 111, valu("v_mov_b32", V2P, "0x100"))
            S.put(q0 + 114, atomic_add(V2P, sFG))
        if check and st == 1:
            S.put(q0 + 1, scmp("s_cmp_eq_u32", sCNT, 5), salu("s_cselect_b32", sWANT, 8, 0), salu("s_cselect_b32", sPL, sFG, "0x1000"))
            S.put(q0 + 2, poll_load(V2P, sPL))
        if check and st == 0:
            S.put(q0 + 1, valu("v_readfirstlane_b32", sQ, V2P))
            S.put(q0 + 6, salu("s_bfe_u32", sQ, sQ, "0x80008"), scmp("s_cmp_lt_u32", sQ, sWANT),
                  raw("s_cbranch_scc1 L_spin2", "branch", rd=["scc"]), label("L_spin2_back"))


def k2_first(S, late):
    seq = [(0, p) for p in range(4)] + [(1, p) for p in range(3)] + [(0, 4), (1, 3), (1, 4)]
    at = {}
    for st, pi in seq:
        at[(st, pi)] = S.n()
        for xy in range(2):
            for qi in range(6):
                for ks in range(2):
                    acc = ("v", acc2(pi, xy, qi))
                    S.add(mfma(16, acc, ("a", a2(st, pi, ks, xy)), ("a", b2(st, qi, ks)), None if (st == 0 and ks == 0) else acc))
    for n, (pre, l) in enumerate(late):
        S.put(13 * n + 2, *pre)
        S.put(13 * n + 3, l)
    assert 13 * len(late) < at[(0, 4)]
    g = 5
    for pi in range(4):
        if pi == 3:
            S.put(g, valu("v_add_u32", V2P, D[9] - D[5], V2P))
            g += 2
        for r in k2_lds_A(1, pi):
            while S.fixed.get(g):
                g += 1
            S.put(g, r)
            g += 4
    items = []
    for pi in range(5):
        for x, l in enumerate(k2_loads_A(0, pi, sSO)):
            items.append((l, at[(0, pi)] + 11 + 12 * (x >> 1), 240 + 24 * pi + 12 * (x >> 1)))
        for x, l in enumerate(k2_loads_A(1, pi)[:4 if pi < 4 else 2]):
            items.append((l, at[(1, pi)] + 11 + 12 * (x >> 1), 360 + 24 * pi + 12 * (x >> 1)))
    for qi in range(6):
        for ks, l in enumerate(k2_loads_B(0, qi)):
            items.append((l, at[(0, 4)] + 12 + 2 * qi + ks, 200 + 2 * qi + ks))
    items.sort(key=lambda i: i[2])
    g, lastB = 11, 0
    while items:
        c = [i for i in items if i[1] <= g]
        if c and not any(S.fixed.get(k) and any(j.kind in ("vld", "vst") for j in S.fixed[k]) for k in ((g - 2, g - 1, g + 1) if g < 180 else (g - 1, g + 1))) and not S.fixed.get(g):
            S.put(g, c[0][0])
            if sB2 in c[0][0].rd:
                lastB = g
            items.remove(c[0])
        g += 1
        assert g < 240, items
    for n, x in enumerate(next_off(sB2, TB, sBB, 12288)):
        S.put(lastB + 1 + n, x)
    g = 226
    while S.fixed.get(g) or S.fixed.get(g + 1) or S.fixed.get(g + 3):
        g += 1
    S.put(g, needvm(["ost"]), barrier())
    S.put(g + 1, valu("v_mov_b32", V2P, "0x100"))
    S.put(g + 3, atomic_add(V2P, sFG))


def spin(name, back, dsts, soffs, conds):
    o = [label(name), salu("s_mov_b32", sSPIN, 0), label(name + "_loop"), raw("s_sleep 8")]
    o += [poll_load(d, so) for d, so in zip(dsts, soffs)]
    o += [drain(), salu("s_add_u32", sSPIN, sSPIN, 1), scmp("s_cmp_gt_u32", sSPIN, "0x20000"),
          raw(f"s_cbranch_scc1 {back}", "branch", rd=["scc"])]
    for d, (sh, msk, want) in zip(dsts, conds):
        o += [valu("v_readfirstlane_b32", sQ, d), nop(4)]
        if sh:
            o += [salu("s_lshr_b32", sQ, sQ, sh)]
        if msk:
            o += [salu("s_and_b32", sQ, sQ, msk)]
        o += [scmp("s_cmp_lt_u32", sQ, want), raw(f"s_cbranch_scc1 {name}_loop", "branch", rd=["scc"])]
    o += [raw(f"s_branch {back}", "branch")]
    return o


def phase2():
    o = [valu("v_readfirstlane_b32", sQ, vPOLL[0]), valu("v_mov_b32", V2L, vL16),
         salu("s_lshr_b32", "s84", "s4", 2), salu("s_mul_i32", "s7", "s3", O_GRP), salu("s_mul_i32", sPL, "s84", 786432),
         salu("s_add_u32", "s7", "s7", sPL),
         salu("s_and_b32", sQ, sQ, "0xff"),
         scmp("s_cmp_lt_u32", sQ, 8), raw("s_cbranch_scc1 L_spin1", "branch", rd=["scc"]), label("L_spin1_back")]
    o += [salu("s_add_u32", "s58", "s90", "s7"), salu("s_addc_u32", "s59", "s91", 0)] + srd(S2B, "s58", "s59", 786432)
    o += [salu("s_and_b32", "s85", "s4", 3), salu("s_and_b32", "s32", sWAVE, 1), salu("s_lshr_b32", "s33", sWAVE, 1),
          salu("s_mul_i32", sBB, sWAVE, 16 * 12288), salu("s_mul_i32", sAB, sWAVE, 16 * 20480),
          salu("s_mov_b64", f"s[{TB}:{TB + 1}]", "s[34:35]"), salu("s_lshr_b64", f"s[{TA}:{TA + 1}]", "s[34:35]", 4)]
    o += next_off(sB2, TB, sBB, 12288)
    o += [valu("v_add_u32", V2W, sW4K, V2L), salu("s_add_u32", "s7", sW6K, XS[0]), valu("v_add_u32", "v22", "s7", V2L)]
    o += [scmp("s_cmp_eq_u32", "s33", 0)]
    o += [salu("s_cselect_b32", f"s{47 + q}", q, 2 - q) for q in range(3)]
    o += [salu("s_cselect_b32", f"s{36 + pi}", pi, 4 - pi) for pi in range(5)]
    o += [salu("s_mul_i32", "s34", "s32", 3), salu("s_sub_u32", "s35", 3, "s34")]
    for q in range(3):
        o += [salu("s_add_u32", f"s{50 + q}", f"s{47 + q}", "s35"), salu("s_add_u32", f"s{47 + q}", f"s{47 + q}", "s34")]
    o += [valu("v_mov_b32", f"v{16 + q}", vR[q]) for q in range(6)]
    for qi in range(6):
        o += [salu("s_lshl_b32", "s7", f"s{47 + qi}", 11), valu("v_add_u32", V2B[qi], "s7", V2L)]
    for qi in range(6):
        o += k2_loads_B(0, qi)
    o += next_off(sB2, TB, sBB, 12288)
    save = list(vR)
    vR[:] = [f"v{16 + q}" for q in range(6)]
    nl = 12 if OPT["pace"] else 8
    eg = epilogue_groups(0, lambda n: 240 - 4 * (24 - n) - (0 if OPT["pace"] else 16) if n >= 24 - nl else 32 + 4 * n, V2L)
    vR[:] = save
    b1 = [l for qi in range(6) for l in k2_loads_B(1, qi)]
    for n, (v, pre, st, imm) in enumerate(eg):
        m = b1[2 * (n - 8):2 * (n - 8) + 2] if 8 <= n < 14 else []
        o += v[:8] + m[:1] + v[8:16] + m[1:] + v[16:]
        if OPT["pace"]:
            if n % 2 == 0:
                o += eg[n // 2][1] + [eg[n // 2][2]]
        elif n < 16:
            o += pre + [st]
        if n == 15:
            o += [needvm(list(sPF)), valu("v_mov_b32", V2X, "v22")]
            for pi in range(5):
                o += [salu("s_lshl_b32", "s7", f"s{36 + pi}", 12), valu("v_add_u32", V2A[pi], "s7", V2L)]
            o += next_off(sPL, TA, sAB, 20480)
            if OPT["pace"]:
                o += next_off(sSO, TA, sAB, 20480)
            o += next_off(sA2, TA, sAB, 20480)
        if 16 <= n < 21:
            o += k2_lds_A(0, n - 16)
    late = []
    for n, g in enumerate(eg[24 - nl:]):
        st = vstore(("v", 240 - 4 * (nl - n) - (0 if OPT["pace"] else 16)), 4, V2L, S_OST, sE, g[3], tag="ost", flags=SC1)
        late.append((g[1], st))
    o += k2_loads_A(1, 4, sPL) + [valu("v_add_u32", V2P, D[5], V2W)]
    o += next_off(sB2, TB, sBB, 12288) + [salu("s_mov_b32", sWANT, 0)]
    o += prof_stamp(1, 30)
    o += srd(S2OUT, "s92", "s93", 7864320)
    o += [salu("s_mul_i32", sOB, "s6", 192 * 2560), salu("s_mul_i32", "s7", "s84", 96 * 2560), salu("s_add_u32", sOB, sOB, "s7"),
          salu("s_mul_i32", "s7", "s5", 1280), salu("s_add_u32", sOB, sOB, "s7"),
          salu("s_mul_i32", "s7", "s85", 320), salu("s_add_u32", sOB, sOB, "s7"), salu("s_mov_b32", sCNT, 6)]
    S0 = Sched()
    if OPT["pace"]:
        k2_first(S0, late)
    else:
        k2_steps(S0, True, [True, True], [True, True], [False, True], late=late)
    S0.order_fixed()
    first = S0.build()
    S1 = Sched()
    k2_steps(S1, False, [True, True], [True, True], [True, True], check=True)
    if OPT["prof"]:
        S1.put(3, raw("s_memrealtime s[76:77]", wr=["s76", "s77"]), raw("s_waitcnt lgkmcnt(0)", "drainlg"),
               salu("s_mov_b32", "s101", "s100"), salu("s_mov_b32", "s100", "s99"), salu("s_mov_b32", "s99", "s98"),
               salu("s_mov_b32", "s98", "s97"), salu("s_mov_b32", "s97", "s96"), salu("s_mov_b32", "s96", "s76"))
    S1.put(237, salu("s_sub_u32", sCNT, sCNT, 1))
    S1.order_fixed()
    loop = [label("L_k2")] + S1.build() + [scmp("s_cmp_lg_u32", sCNT, 0), raw("s_cbranch_scc1 L_k2", "branch", rd=["scc"])]
    R1, R2, i, a, V2O = V2A[0], V2A[1], V2A[2], V2A[3], V2A[4]
    setup = [salu("s_mul_i32", "s7", sWAVE, 30720), valu("v_add_u32", V2W, "s7", V2L), valu("v_lshrrev_b32", i, 4, V2L),
             valu("v_and_b32", a, 15, i), valu("v_mul_u32_u24", a, 2560, a), valu("v_lshrrev_b32", i, 4, i),
             valu("v_lshl_add_u32", V2O, i, 4, a),
             salu("s_xor_b32", sPL, sWAVE, 1), salu("s_sub_u32", sPL, sPL, sWAVE), salu("s_mul_i32", "s7", sPL, 30720),
             valu("v_add_u32", R1, "s7", V2W),
             salu("s_xor_b32", sPL, sWAVE, 3), salu("s_sub_u32", sPL, sPL, sWAVE), salu("s_mul_i32", "s7", sPL, 30720),
             valu("v_add_u32", R2, "s7", V2W)]
    sent = [(pi, xy, qi) for pi in range(5) for qi in range(3, 6) for xy in range(2)]
    wr = {t: ds_write("ds_write_b128", V2W, ("v", acc2(*t)), 4, n * 1024) for n, t in enumerate(sent)}
    S2 = Sched()
    e = []
    if OPT["redov"]:
        order = [wr[(pi, xy, qi)] for pi in range(5) for xy in range(2) for qi in range(3, 6)]
        k2_steps(S2, False, [False, False], [True, False], [True, False], final=(setup, order[:29]))
        e = order[29:]
    else:
        k2_steps(S2, False, [False, False], [True, False], [True, False])
        e = setup + list(wr.values())
    S2.order_fixed()
    last = S2.build()
    e += [needlgkm0(), barrier()] + prof_stamp(8, 234)
    for s in list(range(7, 15)) + list(range(7)):
        pi, q = divmod(s, 3)
        e += [ds_read("ds_read_b128", ("v", acc2(pi, xy, q + 3)), 4, R1, (2 * s + xy) * 1024) for xy in range(2)]
    for s in list(range(7, 15)) + list(range(7)):
        pi, q = divmod(s, 3)
        d, t = acc2(pi, 0, q), acc2(pi, 0, q + 3)
        e += [valu("v_add_f32", f"v{d + r}", f"v{d + r}", f"v{t + r}") for r in range(8)]
        if s >= 7:
            e += [ds_write("ds_write_b128", R1, ("v", acc2(pi, xy, q)), 4, (2 * s + xy) * 1024) for xy in range(2)]
    e += [needlgkm0(), barrier()]
    for s in range(8):
        pi, q = divmod(s, 3)
        for xy in range(2):
            e += [ds_read("ds_read_b128", ("v", acc2(pi, xy, q + 3)), 4, R2, (2 * (14 - s) + xy) * 1024)]
    for s in range(8):
        pi, q = divmod(s, 3)
        d0, t0 = acc2(pi, 0, q), acc2(pi, 0, q + 3)
        e += [valu("v_add_f32", f"v{d0 + r}", f"v{d0 + r}", f"v{t0 + r}") for r in range(8)]
        e += [valu("v_cvt_pk_bf16_f32", f"v{d0 + r}", f"v{d0 + 2 * r}", f"v{d0 + 2 * r + 1}") for r in range(4)]
        e += [salu("s_mul_i32", "s7", f"s{47 + q}", 40960), salu("s_lshl_b32", sPL, f"s{36 + pi}", 6),
              salu("s_add_u32", "s7", "s7", sPL), salu("s_add_u32", sSO, "s7", sOB),
              vstore(("v", d0), 4, V2O, S2OUT, sSO, 0, flags=OPT["outf"])]
    e += prof_stamp(9, 234)
    if OPT["prof"]:
        for n in range(6):
            e += [valu("v_mov_b32", "v234", 1), valu("v_mov_b32", "v235", f"s{101 - n}"), pstore(234, 2 + n), nop(4)]
    e += [label("L_end"), raw("s_endpgm")]
    sp1 = spin("L_spin1", "L_spin1_back", vPOLL[:1], [sFG], [(0, "0xff", 8)]) + spin("L_spin3", "L_spin3_back", vPOLL[1:], [sFB], [(16, 0, 256)])
    sp2 = spin("L_spin2", "L_spin2_back", [V2P], [sFG], [(8, "0xff", 8)])
    sp2 += GATE_SPINS
    return o, first, loop, last, e, sp1, sp2


def kernel():
    pro = prologue()
    q1 = q_phase(False)
    att = [label("L_att")] + a_phase()
    att += [raw("s_cbranch_vccnz L_slow", "branch", rd=["vcc"]), label("L_back")]
    att += [valu("v_rcp_f32", vR[qt], f"v{lacc(qt)}") for qt in range(6)]
    att += prof_stamp(29)
    if OPT["prof"]:
        att += [salu("s_add_u32", sPROF, sPROF, 240)]
    att += [scmp("s_cmp_eq_u32", sIT, 1), raw("s_cbranch_scc1 L_out", "branch", rd=["scc"]), salu("s_mov_b32", sIT, 1)]
    q2 = [label("L_q2")] + q_phase(True) + [raw("s_branch L_att", "branch")]
    o, first, loop2, last, e, sp1, sp2 = phase2()
    o = [label("L_out")] + o
    slow = slow_path()
    parts = [pro, q1, att, q2, o, first, loop2, last, e, slow, sp1, sp2]
    waits = compute_waits([pro + q1 + att + q2 + att + o + first + loop2 + loop2 + loop2 + last + e, slow, sp1, sp2])
    done = {}
    P = [apply_waits(x, waits, done) for x in parts]
    pads = pad_hazards([P[0] + P[1] + P[2] + P[3] + P[2] + P[4] + P[5] + P[6] + P[6] + P[7] + P[8], P[9], P[10], P[11]])
    al = ".p2align 3\n"
    return (emit(P[0] + P[1], pads) + al + emit(P[2] + P[3], pads) + al + emit(P[4] + P[5], pads) + al +
            emit(P[6] + P[7] + P[8] + P[9] + P[10] + P[11], pads) + "L_endcode:\n")


def main():
    kn = NAME + "_kernel"
    s = open("cdna_kernels/" + NAME + ".s.ref").read().split("; Override launch")[0]
    s += "; @launch grid=(256,1,1) block=(256,1,1) lds=163840\n"
    s += '.amdgcn_target "amdgcn-amd-amdhsa--gfx950"\n.text\n'
    s += f".globl {kn}\n.p2align 8\n.type {kn},@function\n{kn}:\n" + kernel()
    s += f""".section .rodata,"a"
.p2align 6
.amdhsa_kernel {kn}
  .amdhsa_next_free_vgpr 512
  .amdhsa_next_free_sgpr 102
  .amdhsa_accum_offset 256
  .amdhsa_group_segment_fixed_size 0
  .amdhsa_kernarg_size 104
  .amdhsa_user_sgpr_count 2
  .amdhsa_user_sgpr_kernarg_segment_ptr 1
  .amdhsa_system_sgpr_workgroup_id_x 1
.end_amdhsa_kernel
"""
    open(sys.argv[1], "w").write(s)


main()
```

```python
import sys, math, struct
from fw3 import *
from orders import orders

NAME = "concat_heads__mha_block_cached__mha_block_cached__near_ridge"
OPT = dict(outf=' sc1', redov=1, one1=1, warmj=0, pk=1, pfq1=1, rot2=2, gate=0, pace=1, lead=3, xpace=0, gstep=2, rotq=3, early=1, uni=0, prof=0, report=False, stg=67, warmw=True, codepf=2, codepf2=14, pf='', pf0=1, pfn=3, flagbar=12, map=0)
for a in sys.argv[2:]:
    k, v = a.split("=")
    OPT[k] = type(OPT[k])(int(v)) if not isinstance(OPT[k], str) else v

KB = 1024
SC1 = " sc1"
O_GRP = 2 * 786432
WS_WOT = 50331648
WOT_BLK = 5242880
WS_PROF = 64 * 1024 * 1024

S_K, S_V, S_X, S_WQ, S_OST, S_WO, S_WOT = 8, 12, 16, 20, 24, 28, 32
sKV, sWQ, sX, sW4K, sW6K, sO, sIT, sT0, sT1, sC, sWAVE = ["s%d" % i for i in range(36, 47)]
sWOS, sWOD, sWOX, sW5K, sHI, sLO = ["s%d" % i for i in range(47, 53)]
sPROF, sE, sJ = "s53", "s54", "s55"
sQT, sWS, sXS = "s50", "s67", "s95"
sROT, sFG, sFB, sCP = "s62", "s65", "s66", "s64"
sA2, sB2, sPL, sOB, sCNT, sSO, sQ, sSH, sWANT, sSPIN = "s28", "s29", "s30", "s31", "s67", "s68", "s69", "s70", "s71", "s94"
S_PROF, S_FLG = 72, 80
sPF = {("W", 0, 0): ["s84"], ("W", 0, 1): ["s85"], ("X", 0): ["s86", "s87"], ("X", 1): ["s98", "s99"], ("W", 1, 0): ["s100"], ("W", 1, 1): ["s101"],
       ("P", 0): ["s60"], ("P", 1): ["s61"]}
PF2 = {"s84": (0, 0, 0), "s85": (0, 1, 0), "s86": (0, 2, 0), "s98": (0, 3, 0), "s100": (0, 4, 0), "s101": (1, 0, 0),
       "s87": (1, 1, 0), "s99": (1, 1, 2048), "s60": (1, 2, 0), "s61": (1, 3, 0)}
vK = ["v%d" % i for i in range(192, 196)]
vV = ["v196", "v197"]
vW = ["v%d" % i for i in range(198, 202)]
vX = ["v%d" % i for i in range(202, 206)]
kA = ["v%d" % i for i in range(206, 210)]
vA = ["v%d" % i for i in range(210, 218)]
wA = ["v218", "v219"]
xA = ["v220", "v221"]
vJ, vL16 = "v222", "v223"
ONES = 224
EPI = 228
vR = ["v%d" % i for i in range(244, 250)]
vFLG = "v250"
vPUB = "v251"
vT = ["v252", "v253"]
vC2 = "v[242:243]"
vPOLL = ["v254", "v255"]

D = [i * 16 * KB for i in range(10)]
XS = [96 * KB, 120 * KB]
WOJ_ADDR = D[9]


def qacc(p, xy, qt):
    return 64 * (qt >> 1) + (2 * p + (qt & 1)) * 8 + 4 * xy


def qf(qt, p):
    return 64 * (qt >> 1) + (2 * p + (qt & 1)) * 4


def sreg(qt):
    return 64 * (qt >> 1) + 32 + 8 * (qt & 1)


def lacc(qt):
    return 64 * (qt >> 1) + 48 + 4 * (qt & 1)


ABUF = [192, 248]


def bx(qt, ks):
    return 200 + 8 * qt + 4 * ks


def kf(kt, ks):
    return 192 + 16 * kt + 4 * ks


def vf(dt):
    return 224 + 4 * dt


def oacc(qt, dt):
    return 32 * qt + 4 * dt


def build_units():
    U = {}
    for i in range(10):
        U[("X", i)] = dict(addr=XS[i % 2], size=24 * KB, N=i, I=i - 2)
        for u in range(2):
            U[("W", i, u)] = dict(addr=D[2 * (i % 3) + u], size=16 * KB, N=i, I=i - 2)
    U[("X", 0)]["I"] = -3
    U[("W", 0, 0)]["I"] = -3
    U[("W", 0, 1)]["I"] = -3
    U[("W", 1, 0)]["I"] = -2
    U[("W", 1, 1)]["I"] = -2
    pages = [9, 3, 2, 4, 5, 8, 1, 9, 0, 2, 3, 4, 6, 1, 5, 9, 0, 7, 3, 8, 2, 5, 1, 4, 0, 7, 3, 2, 8, 5, 9, 4]
    for u in range(32):
        key = ("K", u // 2) if u % 2 == 0 else ("V", u // 2)
        N = 10 + u // 2 + u % 2
        U[key] = dict(addr=D[pages[u]], size=16 * KB, N=N, I=N - (3 if u < 5 else OPT["lead"]))
    U[("J", 0)] = dict(addr=WOJ_ADDR, size=16 * KB, N=1, I=0)
    U[("J", 1)] = dict(addr=WOJ_ADDR, size=16 * KB, N=4, I=2)
    U[("P", 0)] = dict(addr=D[5], size=16 * KB, N=-0.5, I=-1)
    U[("P", 1)] = dict(addr=D[9], size=16 * KB, N=-0.5, I=-1)
    allu = [(k, u["addr"], u["addr"] + u["size"], u["N"] + 27 * r, u["I"] + 27 * r) for r in range(3) for k, u in U.items()]
    for a in allu:
        assert a[4] < a[3], a
        for b in allu:
            if a is not b and a[1] < b[2] and b[1] < a[2]:
                ra = a[3] - (a[0][0] == "X" and a[0][1] <= 7)
                rb = b[3] - (b[0][0] == "X" and b[0][1] <= 7)
                assert ra < b[4] or rb < a[4], (a, b)
    return U


U = build_units()
_alt = [0]


def next_st():
    _alt[0] ^= 1
    return [sT0, sT1][_alt[0]]


def jblocks(r, second):
    if second:
        return [8, 9] if r == 1 else []
    return range(4 * r, 4 * r + 4)


def unit_dmas(key, second=False):
    u = U[key]
    kind = key[0]
    if key in sPF:
        if kind in "WP":
            return [([salu("s_add_u32", "m0", sW4K, u["addr"])], [dma(vW[m], S_WQ, sPF[key][0], 1024 * m, key, SC1) for m in range(4)])]
        return [([salu("s_add_u32", "m0", sW6K, u["addr"])], [dma(vX[m], S_X, sPF[key][0], 1024 * m, key, SC1) for m in range(4)]),
                ([salu("s_add_u32", "m0", sW6K, u["addr"] + 4096)], [dma(vX[m], S_X, sPF[key][1], 1024 * m, key, SC1) for m in range(2)])]
    sT = next_st()
    if kind in "KV":
        pre = [salu("s_add_u32", sT, sROT, key[1] * 8192), salu("s_and_b32", sT, sT, "0x1ffff"), salu("s_add_u32", sT, sT, sKV),
               salu("s_add_u32", "m0", sW4K, u["addr"])]
        if kind == "K":
            return [(pre, [dma(vK[m], S_K, sT, 1024 * m, key, " nt") for m in range(4)])]
        return [(pre, [dma(vV[m & 1], S_V, sT, 1024 * m, key, " nt") for m in range(4)])]
    if kind == "W":
        if key[2] == 0:
            return [([salu("s_add_u32", "m0", sW4K, u["addr"])], [dma(vW[m], S_WQ, sWS, 1024 * m, key) for m in range(4)])]
        pre = [salu("s_add_u32", sT, sWS, 128), salu("s_add_u32", "m0", sW4K, u["addr"])]
        return [(pre, [dma(vW[m], S_WQ, sT, 1024 * m, key) for m in range(4)])]
    if kind == "X":
        g0 = ([salu("s_add_u32", "m0", sW6K, u["addr"])], [dma(vX[m], S_X, sXS, 1024 * m, key) for m in range(4)])
        pre2 = [salu("s_add_u32", sT, sXS, 40960), salu("s_add_u32", "m0", sW6K, u["addr"] + 4096)]
        return [g0, (pre2, [dma(vX[m], S_X, sT, 1024 * m, key) for m in range(2)])]
    gs = []
    for jj in jblocks(key[1], second):
        sTj = next_st()
        pre = [salu("s_add_u32", sTj, sWOS, jj * 128), salu("s_add_u32", "m0", sW4K, u["addr"] + (jj & 3) * 1024)]
        gs.append((pre, [dma(vX[0], S_WO, sTj, 0, key, " nt")]))
    return gs


def set_pf_proj(tail=False):
    o = []
    for key, rs in sPF.items():
        if key[0] == "P":
            o += [salu("s_mov_b32", rs[0], "0x10000000")] if tail else []
        elif key[0] == "W":
            o += [salu("s_add_u32", rs[0], sWQ, key[1] * 524288 + key[2] * 128)]
        else:
            o += [salu("s_add_u32", rs[0], sX, key[1] * 128), salu("s_add_u32", rs[1], sX, key[1] * 128 + 40960)]
    return o


ORD2 = orders(16, 4, 8, 7, {1: [4], 2: [1, 1, 2, 2, 2, 0, 0], 3: [1, 2, 2, 2, 1, 0, 0], 4: [2, 1, 2, 2, 1, 0, 0]}[OPT["rot2"]])[0] if OPT["rot2"] else [list(range(16))] * 4
ORDQ = orders(10, 4, None, 0, {1: [1, 1, 2, 2, 2, 1, 1], 2: [1, 1, 4], 3: [1, 1, 2, 2, 1, 1, 1, 1]}[OPT["rotq"]])[0] if OPT["rotq"] else [list(range(10))] * 4
assert all(o[:2] == [0, 1] for o in ORDQ)
TBLQ = [sum(x << (4 * n) for n, x in enumerate(o[2:])) for o in ORDQ]
TBL2 = [sum(x << (4 * n) for n, x in enumerate(o)) for o in ORD2]


def next_off(dst, tbl, base, stride):
    return [salu("s_and_b32", dst, f"s{tbl}", 15), salu("s_lshr_b64", f"s[{tbl}:{tbl + 1}]", f"s[{tbl}:{tbl + 1}]", 4),
            salu("s_mul_i32", dst, dst, stride), salu("s_add_u32", dst, dst, base)]


def set_pf_out():
    o = [salu("s_and_b32", "s68", "s4", 3), salu("s_mul_i32", "s68", "s68", 1310720), salu("s_mul_i32", "s69", "s5", WOT_BLK),
         salu("s_add_u32", "s68", "s68", "s69"), salu("s_add_u32", "s68", "s68", WS_WOT)]
    o += [[salu("s_add_u32", f"s{S_WQ}", "s90", "s68"), salu("s_addc_u32", "s69", "s91", 0)]]
    o += [salu("s_and_b32", f"s{S_WQ + 1}", "s69", "0xffff"), salu("s_mov_b32", f"s{S_WQ + 2}", 1310720),
          salu("s_mov_b32", f"s{S_X}", f"s{S_WQ}"), salu("s_mov_b32", f"s{S_X + 1}", f"s{S_WQ + 1}"), salu("s_mov_b32", f"s{S_X + 2}", 1310720)]
    o += [salu("s_lshr_b32", "s70", sWAVE, 1), salu("s_mul_i32", "s68", sWAVE, 16 * 20480), salu("s_lshl_b32", "s69", "s70", 14),
          salu("s_add_u32", "s68", "s68", "s69"), salu("s_lshl_b32", "s69", "s70", 13), salu("s_sub_u32", "s69", 4096, "s69")]
    o += [salu("s_add_u32", "s70", "s3", "s4"), salu("s_and_b32", "s70", "s70", 3),
          salu("s_mov_b32", "s34", "0x%x" % (TBL2[0] & 0xffffffff)), salu("s_mov_b32", "s35", "0x%x" % (TBL2[0] >> 32))]
    for r in range(1, 4):
        o += [[scmp("s_cmp_eq_u32", "s70", r), salu("s_cselect_b32", "s34", "0x%x" % (TBL2[r] & 0xffffffff), "s34"),
               salu("s_cselect_b32", "s35", "0x%x" % (TBL2[r] >> 32), "s35")]]
    o += [salu("s_and_b32", "s70", "s34", 15), salu("s_mul_i32", "s70", "s70", 20480), salu("s_add_u32", "s70", "s70", "s68"),
          salu("s_bfe_u32", "s71", "s34", "0x40004"), salu("s_mul_i32", "s71", "s71", 20480), salu("s_add_u32", "s71", "s71", "s68")]
    for r, (st, pi, off) in PF2.items():
        o += [salu("s_mul_i32", r, "s69", pi), salu("s_add_u32", r, r, "s71" if st else "s70")]
        if off:
            o += [salu("s_add_u32", r, r, off)]
    return o


def epoch_groups(n, second=False):
    order = {"W": 0, "X": 1, "K": 2, "V": 2, "J": 3, "P": 4}
    keys = sorted([k for k, u in U.items() if u["I"] % 27 == n and k != ("J", 0)], key=lambda k: (k[0] == "P", U[k]["N"] - U[k]["I"], order[k[0]], k))
    return [g for k in keys for g in unit_dmas(k, second)]


def place_dmas(S, groups, cand, lo):
    ci = 0
    for pre, ds in groups:
        g = cand[ci]
        for n, p in enumerate(pre):
            S.put(max(lo, g - len(pre) + n), p)
        for d in ds:
            S.put(cand[ci], d)
            ci += 1


def tags_for(n):
    t = [k for k, u in U.items() if (u["N"] - (n + 1)) % 27 == 0]
    if n == OPT["flagbar"]:
        t += ["ost", "jst"]
    return t


def atomic_add(vdata, soff):
    return Ins(f"buffer_atomic_add {vdata}, {vFLG}, s[{S_FLG}:{S_FLG + 3}], {soff} offen sc1", "atomic",
               rd=[vdata, vFLG, soff] + regs("s", S_FLG, 4), tag="flag")


def poll_load(vdst, soff):
    return Ins(f"buffer_load_dword {vdst}, off, s[{S_FLG}:{S_FLG + 3}], {soff} sc1", "vld", rd=[soff] + regs("s", S_FLG, 4), wr=[vdst])


class Win:
    def __init__(self, rs, init):
        self.rs = rs
        self.cur = init

    def move(self, new):
        d = (new - self.cur) & 0xffffffff
        self.cur = new
        return [valu("v_add_u32", r, "0x%x" % d, r) for r in self.rs] if d else []


def plan_windows(addrs, span):
    want = []
    i = 0
    while i < len(addrs):
        lo = hi = addrs[i]
        j = i + 1
        while j < len(addrs) and max(hi, addrs[j]) - min(lo, addrs[j]) + span < 65536:
            lo, hi = min(lo, addrs[j]), max(hi, addrs[j])
            j += 1
        want += [lo] * (j - i)
        i = j
    return want


KWANT = plan_windows([U[("K", t)]["addr"] for t in range(16)], 4096)
VWANT = plan_windows([U[("V", t)]["addr"] for t in range(16)], 4096)
WWANT = plan_windows([U[("W", i, 1)]["addr"] for i in range(10)], 4096 + 520)
WWANT = [0 if w < 64 * KB else 64 * KB for w in [U[("W", i, 0)]["addr"] for i in range(10)]]


def pstore(v0, idx):
    return Ins(f"buffer_store_dwordx2 v[{v0}:{v0 + 1}], off, s[{S_PROF}:{S_PROF + 3}], {sPROF} offset:{8 * idx}", "vst",
               rd=[f"v{v0}", f"v{v0 + 1}", sPROF] + regs("s", S_PROF, 4))


def prof_stamp(idx, v0=252):
    if not OPT["prof"]:
        return []
    return [raw("s_memtime s[76:77]", "other", wr=["s76", "s77"]),
            raw("s_memrealtime s[78:79]", "other", wr=["s78", "s79"]),
            raw("s_waitcnt lgkmcnt(0)", "drainlg"),
            valu("v_mov_b32", f"v{v0}", "s76"),
            valu("v_mov_b32", f"v{v0 + 1}", "s78"),
            pstore(v0, idx)]


def bar_seq(tags, idx):
    if OPT["prof"] < 2:
        return [needboth(tags), barrier()] + prof_stamp(idx)
    return [raw("s_memtime s[58:59]", "other", wr=["s58", "s59"]), raw("s_waitcnt lgkmcnt(0)", "drainlg"),
            needboth(tags), barrier(),
            raw("s_memtime s[76:77]", "other", wr=["s76", "s77"]),
            raw("s_memrealtime s[78:79]", "other", wr=["s78", "s79"]),
            raw("s_waitcnt lgkmcnt(0)", "drainlg"), salu("s_sub_u32", "s76", "s76", "s58"),
            valu("v_mov_b32", "v252", "s76"), valu("v_mov_b32", "v253", "s78"), pstore(252, idx)]


def a_read(i, dt, ks, t, win):
    p, xy = dt >> 1, dt & 1
    off = U[("W", i, p >> 1)]["addr"] - win + ks * 4096 + t * 512 + xy * 8
    return ds_read("ds_read_b64_tr_b16", ("a", ABUF[dt % 2] + 4 * ks + 2 * t), 2, wA[p & 1], off)


def first_reads(i):
    ax = U[("X", i)]["addr"] - XS[0]

    def A(ks, t):
        return a_read(i, 0, ks, t, WWANT[i])

    def B(qt, ks):
        return ds_read("ds_read_b128", ("a", bx(qt, ks)), 4, xA[ks], ax + qt * 2048)
    return [A(0, 0), A(0, 1), B(0, 0), A(1, 0), A(1, 1), B(0, 1)] + [B(qt, ks) for qt in range(1, 6) for ks in range(2)]


def k_read(t, j):
    kt, ks = j >> 2, j & 3
    return ds_read("ds_read_b128", ("a", kf(kt, ks)), 4, kA[ks], U[("K", t)]["addr"] - KWANT[t] + kt * 4096)


def epilogue_groups(tmp, dst=None, vaddr=None):
    groups = []
    n = 0
    for T in range(3):
        for ph in range(2):
            for qs in range(2):
                for pl in range(2):
                    qt = 2 * T + qs
                    tb = tmp + 4 * (n % 3)
                    src = oacc(qt, 4 * ph + 2 * pl)
                    db = tb if dst is None or dst(n) is None else dst(n)
                    rd = [valu("v_accvgpr_read_b32", f"v{tb + i}", f"a{src + i}") for i in range(8)]
                    mu = [valu("v_mul_f32", f"v{tb + i}", vR[qt], f"v{tb + i}") for i in range(8)]
                    cv = [valu("v_cvt_pk_bf16_f32", f"v{db + i}", f"v{tb + 2 * i}", f"v{tb + 2 * i + 1}") for i in range(4)]
                    pre = [salu("s_add_u32", sE, sO, ph * 12288 + T * 4096)] if qs == 0 and pl == 0 else []
                    imm = qs * 2048 + pl * 1024
                    groups.append((rd + mu + cv, pre, vstore(("v", db), 4, vaddr or vL16, S_OST, sE, imm, tag="ost", flags=SC1), imm))
                    n += 1
    return groups


def conv_items(T, ps, packed=()):
    out = []
    for p in ps:
        for qs in range(2):
            R, Dd = qacc(p, 0, 2 * T + qs), qf(2 * T + qs, p)
            if p in packed:
                out += [(p, qs, valu("v_pk_mul_f32", f"v[{R + x}:{R + x + 1}]", f"v[{R + x}:{R + x + 1}]", "s[86:87]" if False else vC2)) for x in range(0, 8, 2)]
            else:
                out += [(p, qs, valu("v_mul_f32", f"v{R + x}", sC, f"v{R + x}")) for x in range(8)]
            out += [(p, qs, valu("v_cvt_pk_bf16_f32", f"v{Dd + x}", f"v{R + 2 * x}", f"v{R + 2 * x + 1}")) for x in range(4)]
    return out


def q_phase(second):
    S = Sched()
    ww = Win(wA, 0)
    for i in range(10):
        q0 = S.n()
        for dt in range(8):
            for qt in range(6):
                for ks in range(2):
                    acc = ("v", qacc(dt >> 1, dt & 1, qt))
                    S.add(mfma(16, acc, ("a", ABUF[dt % 2] + 4 * ks), ("a", bx(qt, ks)), None if (i == 0 and ks == 0) else acc))
        for dt in range(1, 8):
            gaps = [4, 5, 6, 7] if dt == 1 else [0, 2, 3, 4]
            for n, (ks, t) in enumerate([(0, 0), (0, 1), (1, 0), (1, 1)]):
                S.put(q0 + 12 * (dt - 1) + gaps[n], a_read(i, dt, ks, t, WWANT[i]))
        if i <= 7:
            S.put(q0 + 11, needboth([("W", 0, 1)] if i == 0 else []), barrier())
        S.put(q0 + 83, *bar_seq(tags_for(i), 2 + i))
        if i < 9:
            S.put(q0 + 79, *ww.move(WWANT[i + 1]))
            for n, r in enumerate(first_reads(i + 1)):
                S.put(q0 + 84 + n, r)
        else:
            S.put(q0 + 79, *ww.move(0))
            kw = Win(kA, KWANT[15])
            mv = kw.move(KWANT[0])
            S.put(q0 + 80, *mv[:2])
            S.put(q0 + 82, *mv[2:])
            for j in range(8):
                S.put(q0 + 84 + j, k_read(0, j))
        if i <= 7:
            for n, x in enumerate([salu("s_bfe_u32", sXS, sQT, "0x%x" % (0x40000 + 4 * i)), salu("s_lshl_b32", sWS, sXS, 19),
                                   salu("s_add_u32", sWS, sWS, sWQ), salu("s_lshl_b32", sXS, sXS, 7), salu("s_add_u32", sXS, sXS, sX)]):
                S.put(q0 + 5 + n, x)
        place_dmas(S, epoch_groups(i, second), [q0 + 13 + 4 * x for x in range(18)], q0 + 11)
    for r in range(2):
        q0 = 96 * U[("J", r)]["N"]
        for jj in jblocks(r, second):
            k = jj & 3
            for tt in range(2):
                S.put(q0 + 18 + 12 * k + 2 * tt, ds_read("ds_read_b64_tr_b16", ("a", 4 * k + 2 * tt), 2, vJ, k * 1024 + tt * 8192))
            nq, pair = divmod(2 * jj, 5)
            g = q0 + 69 + 4 * k
            S.put(g - 1, salu("s_add_u32", sJ, sWOX if pair == 4 else sWOD, nq * 1310720 + pair * 4096))
            S.put(g, vstore(("a", 4 * k), 4, vL16, S_WOT, sJ, 0, tag="jst", flags=SC1))
    if OPT["pf"] and not (second and OPT["pfq1"]):
        lds = []
        for name in OPT["pf"].split(","):
            kind, t = name[0], int(name[1:])
            pre = [salu("s_add_u32", sJ, sROT, t * 8192), salu("s_and_b32", sJ, sJ, "0x1ffff"), salu("s_add_u32", sJ, sJ, sKV)]
            for m in range(4):
                l = vload(("v", 252), 4, vL16, S_K if kind == "K" else S_V, sJ, 1024 * m, tag="pf")
                l.wr = set()
                lds.append((pre if m == 0 else [], l))
        i, k = OPT["pf0"], 0
        for pre, l in lds:
            g = 96 * i + ([69, 73, 77, 81] if OPT['pfn'] <= 4 else [19, 31, 43, 55, 67, 71, 75, 79])[k]
            while S.fixed.get(g) or (second and False):
                g += 1
            for n, p in enumerate(pre):
                S.put(g - 3 + n, p)
            S.put(g, l)
            k += 1
            if k == OPT["pfn"]:
                k = 0
                i += 1
        assert i <= 10
    if second:
        eg = epilogue_groups(EPI)
        ep = []
        for i in range(8):
            for g in eg[3 * i:3 * i + 3]:
                ep += [(x, 96 * i, None) for x in g[0]]
            for g in eg[3 * i:3 * i + 3]:
                ep += [(x, 96 * i + OPT["stg"], None) for x in g[1] + [g[2]]]
        ep[-1] = (ep[-1][0], ep[-1][1], 96 * 9 - 1)
        S.stream(ep)
        S.put(96 * 9 + 2, salu("s_add_u32", sO, sO, 8 * 12288))
    q0 = 96 * 9
    g = q0 + 43
    for x in ([salu("s_add_u32", sWQ, sWQ, 512)] + set_pf_proj(True) if not second else set_pf_out()):
        S.put(g, *(x if isinstance(x, list) else [x]))
        g += 1 if g < q0 + 94 else 0
        if g == q0 + 83:
            g += 1
    if second:
        S.stream([(valu("v_mov_b32", r, vL16), q0 + 43, None) for r in vW + vX])
    S.put(q0 + 7, valu("v_mov_b32", "v242", sC), valu("v_mov_b32", "v243", sC))
    if OPT["gate"]:
        if second:
            S.put(2, salu("s_mov_b32", sPG, 32))
        for i in (3, 5, 7, 9):
            p = publish(i + 1)
            p[0] = salu("s_add_u32", sJ, sPG, i + 1)
            p[1] = valu("v_mov_b32", vPT, sJ)
            S.put(96 * i + 79, p[0], p[1])
            S.put(96 * i + 82, p[2])
    S.stream([(x, min(q0 + 12 * (2 * p + 1) + 2 * qs + 1 + 2, q0 + 95), None) for p, qs, x in conv_items(0, range(4))])
    S.put(-1, *prof_stamp(1))
    return S.finish(lead=first_reads(0), report=OPT["report"])


vPA, vPV, vPT = "v239", "v240", "v254"
sPG, sGT = "s63", "s67"
GATE_SPINS = []


def publish(n):
    return [salu("s_add_u32", sGT, sPG, n), valu("v_mov_b32", vPT, sGT),
            Ins(f"buffer_store_dword {vPT}, {vPUB}, s[{S_FLG}:{S_FLG + 3}], 0 offen sc1", "vst", rd=[vPT, vPUB] + regs("s", S_FLG, 4), tag="pub")]


def gate_poll():
    return Ins(f"buffer_load_dword {vPV}, {vPA}, s[{S_FLG}:{S_FLG + 3}], 0 offen offset:128 sc1", "vld", rd=[vPA] + regs("s", S_FLG, 4), wr=[vPV])


def gate(n):
    name = f"L_gate{n}"
    GATE_SPINS.extend([label(name), salu("s_mov_b32", sSPIN, 0), label(name + "_loop"), raw("s_sleep 2"), gate_poll(), drain(),
                       salu("s_add_u32", sSPIN, sSPIN, 1), scmp("s_cmp_gt_u32", sSPIN, "0x20000"),
                       raw(f"s_cbranch_scc1 {name}_back", "branch", rd=["scc"]),
                       valu("v_cmp_gt_u32", "vcc", sGT, vPV), nop(4), raw(f"s_cbranch_vccnz {name}_loop", "branch", rd=["vcc"]),
                       raw(f"s_branch {name}_back", "branch")])
    return ([salu("s_add_u32", sGT, sPG, n), valu("v_cmp_gt_u32", "vcc", sGT, vPV)],
            [raw(f"s_cbranch_vccnz {name}", "branch", rd=["vcc"]), label(name + "_back")])


def lspread(qt, tmp):
    l = f"v{lacc(qt)}"
    return [valu("v_mov_b32", tmp, l), perm("v_permlane32_swap_b32", tmp, l), valu("v_add_f32", l, l, tmp),
            valu("v_mov_b32", tmp, l), perm("v_permlane16_swap_b32", tmp, l), valu("v_add_f32", l, l, tmp)]


def interleave(a, b):
    return [x for p in zip(a, b) for x in p]


def lcheck():
    l = [f"v{lacc(qt)}" for qt in range(6)]
    return [valu("v_add_f32", vT[0], l[0], l[1]), valu("v_min3_f32", vT[1], l[0], l[1], l[2]),
            valu("v_add_f32", vT[0], vT[0], l[2]), valu("v_min3_f32", vT[1], vT[1], l[3], l[4]),
            valu("v_add_f32", vT[0], vT[0], l[3]), valu("v_add_f32", vT[0], vT[0], l[4]),
            valu("v_min_f32", vT[1], vT[1], l[5]), valu("v_add_f32", vT[0], vT[0], l[5]),
            valu("v_cmp_nlt_f32", "s[56:57]", sLO, vT[1]),
            valu("v_cmp_ngt_f32", "vcc", sHI, vT[0]),
            salu("s_or_b64", "vcc", "vcc", "s[56:57]")]


def a_phase():
    S = Sched()
    qk = [[0] * 3 for _ in range(16)]
    pv = [[0] * 3 for _ in range(16)]

    def QK(t, T):
        qk[t][T] = S.n()
        for qs in range(2):
            for kt in range(2):
                s = ("v", sreg(2 * T + qs) + 4 * kt)
                for ks in range(4):
                    S.add(mfma(16, s, ("a", kf(kt, ks)), ("v", qf(2 * T + qs, ks)), None if ks == 0 else s))

    def PV(t, T):
        pv[t][T] = S.n()
        sums = []
        for qs in range(2):
            l = ("v", lacc(2 * T + qs))
            sums.append(mfma(16, l, ("v", ONES), ("v", sreg(2 * T + qs)), None if t == 0 else l))
        if t == 15:
            for m in sums:
                S.add(m)
        for dt in range(8):
            for qs in range(2):
                o = ("a", oacc(2 * T + qs, dt))
                S.add(mfma(16, o, ("a", vf(dt)), ("v", sreg(2 * T + qs)), None if t == 0 else o))
        if t < 15:
            for m in sums:
                S.add(m)

    for t in range(16):
        QK(t, 0)
        if t:
            PV(t - 1, 1)
        QK(t, 1)
        if t:
            PV(t - 1, 2)
        QK(t, 2)
        PV(t, 0)
    PV(15, 1)
    PV(15, 2)
    bar = {}
    kw, vw = Win(kA, KWANT[0]), Win(vA, VWANT[0])
    for t in range(16):
        g0 = pv[t - 1][2] if t else qk[0][1]
        bar[10 + t] = g0 - 1
        S.put(g0 - 1, *bar_seq(tags_for(10 + t), 12 + t))
        for n, m in enumerate(vw.move(VWANT[t])):
            S.put(g0 - 14 + 3 * (n // 2), m)
        for dt in range(8):
            for tt in range(2):
                S.put(g0 + 4 * dt + 1 + 2 * tt,
                      ds_read("ds_read_b64_tr_b16", ("a", vf(dt) + 2 * tt), 2, vA[dt], U[("V", t)]["addr"] - VWANT[t] + tt * 4096))
        if t < 15:
            for n, m in enumerate(kw.move(KWANT[t + 1])):
                S.put((qk[t][0] + 9 if t else qk[0][2] + 2) + (3 if t else 2) * (n // 2), m)
            for j in range(8):
                S.put(qk[t][2] + [8, 10, 12, 14, 17, 19, 21, 23][j], k_read(t + 1, j))
    S.stream([(m, pv[15][0], None) for m in vw.move(VWANT[0])])
    bar[26] = pv[15][1] - 1
    S.put(bar[26], *bar_seq(tags_for(26), 28))
    fr = first_reads(0)
    for n, r in enumerate(fr[:10]):
        S.put(pv[15][1] + [1, 3, 5, 7, 9, 11, 13, 15, 16, 17][n], r)
    for n, r in enumerate(fr[10:]):
        S.put(pv[15][2] + 3 + 2 * n, r)
    for n in range(10, 27):
        groups = epoch_groups(n)
        nd = sum(len(g[1]) for g in groups)
        if n == 10:
            cand = [2 * x for x in range(8)]
            lo = -1
        else:
            lo = bar[n - 1] + 1
            if n == 11 or n == 26 or OPT["uni"]:
                a = lo + 5
            else:
                a = qk[n - 10][0] + 1 if nd <= 8 else pv[n - 11][0] + 6
            b = bar[n] - 1
            cand = []
            for x in range(nd):
                g = a + (b - a) * x // nd
                while any(i.kind in MEMK for i in S.fixed.get(g, [])) or g in cand:
                    g += 1
                cand.append(g)
            assert not cand or cand[-1] < bar[n]
        place_dmas(S, groups, cand, lo)
    if OPT["xpace"]:
        for t in range(1, 14):
            for T in range(3):
                S.put(pv[t][T] + 17, nop(OPT["xpace"]))
                S.put(qk[t][T] + 15, nop(OPT["xpace"]))
    S.put(pv[15][0] + 2, salu("s_add_u32", sKV, sKV, 262144))
    g = bar[OPT["flagbar"]] + 2
    S.put(g, valu("v_mov_b32", f"v{EPI}", "0x10000"), valu("v_mov_b32", f"v{EPI + 1}", sIT))
    S.put(g + 4, atomic_add(f"v{EPI}", sFB))
    S.put(g + 8, atomic_add(f"v{EPI + 1}", sFG))
    g = qk[12][0]
    S.put(g + 1, scmp("s_cmp_eq_u32", sIT, 1), salu("s_cselect_b32", sE, sFB, "0x1000"))
    S.put(g + 3, poll_load(vPOLL[1], sE))
    g = qk[13][0]
    S.put(g + 1, salu("s_lshl_b32", sWANT, sIT, 24), valu("v_readfirstlane_b32", sQ, vPOLL[1]))
    S.put(g + 4, scmp("s_cmp_lt_u32", sQ, sWANT), raw("s_cbranch_scc1 L_spin3", "branch", rd=["scc"]), label("L_spin3_back"))
    g = qk[15][1]
    S.put(g + 1, scmp("s_cmp_eq_u32", sIT, 1), salu("s_cselect_b32", sE, sFG, "0x1000"))
    S.put(g + 3, poll_load(vPOLL[0], sE))
    if OPT["codepf2"]:
        g = qk[OPT["codepf2"]][0] - 6
        S.put(g - 2, salu("s_mul_i32", sJ, sIT, "L_out-L_q2"))
        S.put(g - 1, salu("s_add_u32", sJ, sJ, "L_q2-L_pc"))
        S.put(g, salu("s_add_u32", sJ, sJ, sCP))
        S.put(g + 1, salu("s_min_u32", sJ, sJ, "L_endcode-L_pc-256"))
        S.put(g + 2, valu("v_and_b32", f"v{EPI + 2}", 16, vL16), valu("v_lshlrev_b32", f"v{EPI + 2}", 3, f"v{EPI + 2}"))
        S.put(g + 3, valu("v_add_u32", f"v{EPI + 2}", sJ, f"v{EPI + 2}"))
        S.put(g + 5, Ins(f"global_load_dword v{EPI + 3}, v{EPI + 2}, s[96:97]", "vld", rd=[f"v{EPI + 2}", "s96", "s97"], wr=[f"v{EPI + 3}"]))
    if OPT["gate"]:
        def free(g):
            while S.fixed.get(g) or S.fixed.get(g - 1):
                g += 1
            return g
        S.put(qk[0][2] + 1, valu("v_lshrrev_b32", vPA, 2, vL16), valu("v_and_b32", vPA, 28, vPA))
        for n in range(11, 24, OPT["gstep"]):
            p = publish(n)
            g = free(bar[n] + 2)
            S.put(g - 1, p[0], p[1])
            S.put(free(g + 2), p[2])
            S.put(free(bar[n] + 60), gate_poll())
            a, b = gate(n + 1 - OPT["gate"])
            g = free(bar[n + 1] + 20)
            S.put(g, *a)
            S.put(g + 2, *b)
    for T in (1, 2):
        if OPT["pk"]:
            nfree = 1 if T == 1 else 0
            S.stream([(x, -1, None) for p, qs, x in conv_items(T, range(nfree))] +
                     [(x, qk[0][T] - 1, qk[0][T] - 1) for p, qs, x in conv_items(T, range(nfree, 4), packed=range(4))])
        else:
            c = [(x, -1, None) for p, qs, x in conv_items(T, range(4))]
            c[-1] = (c[-1][0], -1, qk[0][T] - 1)
            S.stream(c)
    fin = []
    if OPT["one1"]:
        for T in range(3):
            fin += [(x, [pv[15][1] + 12, pv[15][2], pv[15][2] + 4][T], None) for x in interleave(lspread(2 * T, f"v{lacc(2 * T) + 1}"), lspread(2 * T + 1, f"v{lacc(2 * T + 1) + 1}"))]
    S.stream(fin + [(x, pv[15][2] + 4, None) for x in lcheck()])
    units = []
    for t in range(16):
        for qt in range(6):
            s = sreg(qt)
            T, qs = qt >> 1, qt & 1
            dl = pv[t][T] + qs - 2
            units.append(dict(e=qk[t][T] + 8 * qs + 7 + 2,
                              exps=[valu("v_exp_f32", f"v{s + r}", f"v{s + r}") for r in range(8)],
                              cvts=[(valu("v_cvt_pk_bf16_f32", f"v{s + r}", f"v{s + 2 * r}", f"v{s + 2 * r + 1}"), 2 * r + 2, dl) for r in range(4)]))
    S.packers.append(SoftmaxPacker(units))
    return S.finish(lead=[k_read(0, j) for j in range(8)], report=OPT["report"])


def slow_path():
    o = [label("L_slow"), drain(), nop(16)]
    KF = [EPI + 4 * k for k in range(4)]
    VFR = 56
    vM = [f"v{120 + q}" for q in range(6)]
    vKo, vVo, vt, vu = "v60", "v61", "v62", "v63"
    o += [valu("v_lshrrev_b32", vt, 4, vL16), valu("v_and_b32", vu, 15, vt), valu("v_lshrrev_b32", vt, 4, vt),
          valu("v_lshlrev_b32", vKo, 8, vu), valu("v_lshl_add_u32", vKo, vt, 4, vKo),
          valu("v_lshlrev_b32", vVo, 10, vt), valu("v_lshl_add_u32", vVo, vu, 1, vVo)]
    o += [salu("s_sub_u32", "s58", sKV, 262144)]
    o += [valu("v_mov_b32", m, "0xff800000") for m in vM]

    def scores():
        r = []
        for kt in range(2):
            r += [salu("s_add_u32", "s61", "s59", kt * 4096)]
            r += [vload(("v", KF[ks]), 4, vKo, S_K, "s61", 64 * ks) for ks in range(4)] + [drain()]
            for qt in range(6):
                s = ("v", sreg(qt) + 4 * kt)
                r += [mfma(16, s, ("v", KF[ks]), ("v", qf(qt, ks)), None if ks == 0 else s) for ks in range(4)]
            r += [nop(16)]
        return r
    o += [salu("s_mov_b32", "s59", "s58"), salu("s_mov_b32", "s60", 16), label("L_slow1")] + scores()
    for qt in range(6):
        o += [valu("v_max3_f32", vM[qt], vM[qt], f"v{sreg(qt) + r}", f"v{sreg(qt) + r + 1}") for r in range(0, 8, 2)]
    o += [salu("s_add_u32", "s59", "s59", 8192), salu("s_sub_u32", "s60", "s60", 1), scmp("s_cmp_lg_u32", "s60", 0),
          raw("s_cbranch_scc1 L_slow1", "branch", rd=["scc"])]
    for qt in range(6):
        for op in ("v_permlane32_swap_b32", "v_permlane16_swap_b32"):
            o += [valu("v_mov_b32", vt, vM[qt]), nop(2), perm(op, vt, vM[qt]), valu("v_max_f32", vM[qt], vM[qt], vt)]
        o += [valu("v_mov_b32", f"v{lacc(qt) + r}", 0) for r in range(4)]
    o += [valu("v_accvgpr_write_b32", f"a{r}", 0) for r in range(192)]
    o += [salu("s_mov_b32", "s59", "s58"), salu("s_mov_b32", "s60", 16), label("L_slow2")] + scores()
    for qt in range(6):
        s = sreg(qt)
        o += [valu("v_sub_f32", f"v{s + r}", f"v{s + r}", vM[qt]) for r in range(8)]
        o += [valu("v_exp_f32", f"v{s + r}", f"v{s + r}") for r in range(8)]
        o += [valu("v_cvt_pk_bf16_f32", f"v{s + r}", f"v{s + 2 * r}", f"v{s + 2 * r + 1}") for r in range(4)]
    o += [salu("s_add_u32", "s57", "s59", 4096)]
    for dt in range(8):
        for j in range(8):
            o += [vload(("v", 184 + j), 1, vVo, S_V, "s57" if j >= 4 else "s59", (j & 3) * 256 + 32 * dt, op="buffer_load_ushort")]
        o += [drain()]
        o += [valu("v_lshl_or_b32", f"v{VFR + r}", f"v{185 + 2 * r}", 16, f"v{184 + 2 * r}") for r in range(4)]
        o += [mfma(16, ("a", oacc(qt, dt)), ("v", VFR), ("v", sreg(qt)), ("a", oacc(qt, dt))) for qt in range(6)]
        o += [nop(8)]
    o += [mfma(16, ("v", lacc(qt)), ("v", ONES), ("v", sreg(qt)), ("v", lacc(qt))) for qt in range(6)] + [nop(16)]
    o += [salu("s_add_u32", "s59", "s59", 8192), salu("s_sub_u32", "s60", "s60", 1), scmp("s_cmp_lg_u32", "s60", 0),
          raw("s_cbranch_scc1 L_slow2", "branch", rd=["scc"])]
    o += [nop(16)]
    if OPT["one1"]:
        for qt in range(6):
            o += lspread(qt, vt)
    o += [drain(), raw("s_branch L_back", "branch")]
    return o


def srd(base, lo, hi, nbytes):
    return [salu("s_mov_b32", f"s{base}", lo), salu("s_and_b32", f"s{base + 1}", hi, "0xffff"),
            salu("s_mov_b32", f"s{base + 2}", nbytes), salu("s_mov_b32", f"s{base + 3}", "0x20000")]


def decode_wg():
    return [salu("s_and_b32", "s3", "s2", 7), salu("s_lshr_b32", "s4", "s2", 6), salu("s_lshl_b32", "s3", "s3", 2),
            salu("s_add_u32", "s3", "s3", "s4"), salu("s_lshr_b32", "s4", "s2", 3), salu("s_and_b32", "s4", "s4", 7),
            salu("s_lshr_b32", "s5", "s3", 4), salu("s_and_b32", "s6", "s3", 15)]


def code_touch():
    return [salu("s_lshr_b32", "s68", "s2", 3), salu("s_lshl_b32", "s68", "s68", 11),
            valu("v_lshrrev_b32", "v11", 6, "v0"), valu("v_and_b32", "v12", 3, "v0"), valu("v_lshlrev_b32", "v11", 9, "v11"),
            valu("v_lshl_add_u32", "v11", "v12", 7, "v11"), valu("v_add_u32", "v11", "s68", "v11"),
            Ins("global_load_dword v253, v11, s[96:97]", "vld", rd=["v11", "s96", "s97"], wr=["v253"])]


def prologue():
    o = [scmp("s_cmp_ge_u32", "s2", 256), raw("s_cbranch_scc1 L_end", "branch", rd=["scc"])]
    o += [raw("s_getpc_b64 s[96:97]", wr=["s96", "s97"]), label("L_pc")]
    if OPT["codepf"] == 2:
        o += code_touch()
    o += decode_wg()
    o += [salu("s_mul_i32", "s7", "s5", 40), salu("s_add_u32", "s68", "s0", "s7"), salu("s_addc_u32", "s69", "s1", 0),
          raw("s_load_dwordx8 s[56:63], s[68:69], 0", wr=regs("s", 56, 8)),
          raw("s_load_dwordx2 s[94:95], s[68:69], 32", wr=["s94", "s95"]),
          raw("s_load_dwordx4 s[88:91], s[0:1], 88", wr=regs("s", 88, 4)),
          raw("s_load_dwordx2 s[92:93], s[0:1], 80", wr=["s92", "s93"])]
    i, a, b, c = "v1", "v2", "v3", "v4"
    o += [valu("v_lshrrev_b32", a, 6, "v0"), valu("v_and_b32", i, 63, "v0"),
          valu("v_readfirstlane_b32", sWAVE, a), valu("v_lshlrev_b32", vL16, 4, i)]
    o += [valu("v_lshrrev_b32", a, 4, i), valu("v_and_b32", b, 7, i), valu("v_lshrrev_b32", "v5", 3, i),
          valu("v_and_b32", c, 1, a), valu("v_lshlrev_b32", c, 1, c), valu("v_xor_b32", c, c, b), valu("v_lshlrev_b32", c, 4, c),
          valu("v_lshl_add_u32", vW[0], "v5", 13, c),
          valu("v_xor_b32", vW[1], 64, vW[0]), valu("v_add_u32", vW[1], 64512, vW[1]),
          valu("v_add_u32", vW[2], 2 * 64512, vW[0]), valu("v_add_u32", vW[3], 2 * 64512, vW[1])]
    o += [valu("v_xor_b32", c, a, b), valu("v_lshlrev_b32", c, 4, c), valu("v_mul_u32_u24", "v6", 1280, "v5"),
          valu("v_add_u32", vX[0], "v6", c),
          valu("v_xor_b32", vX[1], 64, vX[0]), valu("v_add_u32", vX[1], 9216, vX[1]),
          valu("v_add_u32", vX[2], 2 * 9216, vX[0]), valu("v_add_u32", vX[3], 2 * 9216, vX[1])]
    o += [salu("s_lshr_b32", "s70", sWAVE, 1), salu("s_and_b32", "s71", sWAVE, 1),
          salu("s_lshl_b32", sW4K, sWAVE, 12), salu("s_mul_i32", sW6K, sWAVE, 6144),
          salu("s_lshl_b32", "s7", "s4", 2), salu("s_add_u32", "s7", "s7", "s70"),
          salu("s_lshl_b32", sWQ, "s71", 18), salu("s_lshl_b32", sT0, "s7", 8), salu("s_add_u32", sWQ, sWQ, sT0),
          salu("s_mul_i32", sX, "s6", 245760), salu("s_mul_i32", sT0, sWAVE, 61440), salu("s_add_u32", sX, sX, sT0)]
    o += [raw("s_waitcnt lgkmcnt(0)", "drainlg")]
    o += srd(S_X, "s56", "s57", 3932160) + srd(S_WQ, "s62", "s63", 5242880)
    o += set_pf_proj()
    for k in [("W", 0, 0), ("X", 0), ("W", 0, 1), ("W", 1, 0), ("X", 1), ("W", 1, 1)]:
        for pre, ds in unit_dmas(k):
            o += pre[::-1] + ds
    if OPT["warmw"]:
        o += [salu("s_mul_i32", "s68", "s6", 40 * 8192), salu("s_lshl_b32", "s69", "s4", 10), salu("s_add_u32", "s68", "s68", "s69"),
              salu("s_mul_i32", "s69", sWAVE, 10 * 8192), salu("s_add_u32", "s68", "s68", "s69"),
              valu("v_lshlrev_b32", b, 7, b), valu("v_lshl_add_u32", "v6", "v5", 13, b), valu("v_and_b32", c, 1, "v5"),
              valu("v_lshl_add_u32", c, c, 13, b), salu("s_add_u32", "s69", "s68", 8 * 8192)]
        o += [vload(("v", 254), 1, "v6", S_WQ, "s68", 0), vload(("v", 255), 1, c, S_WQ, "s69", 0)]
    o += [salu("s_lshr_b32", "s68", "s2", 3), salu("s_lshl_b32", "s68", "s68", 2), salu("s_add_u32", "s68", "s68", sWAVE), salu("s_lshl_b32", sCP, "s68", 8)]
    if OPT["codepf"] == 1:
        o += code_touch()
    o += srd(S_WO, "s94", "s95", 5242880)
    o += [salu("s_lshl_b32", "s68", "s6", 3), salu("s_add_u32", "s68", "s68", "s4"),
          salu("s_mul_i32", sWOS, "s68", 40960), salu("s_mul_i32", sT0, sWAVE, 10240), salu("s_add_u32", sWOS, sWOS, sT0)]
    for pre, ds in unit_dmas(("J", 0)):
        o += pre[::-1] + ds
    if OPT["warmj"]:
        o += [valu("v_lshrrev_b32", c, 3, i), valu("v_mul_u32_u24", c, 1280, c), valu("v_and_b32", "v6", 7, i), valu("v_min_u32", "v6", 5, "v6"),
              valu("v_lshl_add_u32", c, "v6", 7, c), vload(("v", 252), 1, c, S_WO, sWOS, 512)]
    o += srd(S_K, "s58", "s59", 67108864) + srd(S_V, "s60", "s61", 67108864)
    o += srd(S_OST, "s90", "s91", WS_WOT) + srd(S_FLG, "s88", "s89", 256)
    o += [salu("s_add_u32", "s68", "s90", WS_WOT), salu("s_addc_u32", "s69", "s91", 0)] + srd(S_WOT, "s68", "s69", 2 * WOT_BLK)
    o += [salu("s_lshl_b32", sFG, "s3", 2), salu("s_lshl_b32", sFB, "s5", 6),
          valu("v_cmp_eq_u32", "vcc", 0, "v0"), valu("v_mov_b32", "v10", "0x1000"), valu("v_mov_b32", f"v{ONES}", "0x3f803f80"),
          valu("v_cndmask_b32", vFLG, "v10", 0, "vcc"),
          salu("s_and_b32", "s68", "s2", 7), salu("s_lshl_b32", "s68", "s68", 2), salu("s_add_u32", "s68", "s68", 128),
          scmp("s_cmp_lt_u32", "s2", 8), salu("s_cselect_b32", "s68", "s68", "0x1000"), valu("v_add_u32", vPUB, "s68", vFLG),
          salu("s_mov_b32", sPG, 0)]
    if OPT["one1"]:
        o += [valu("v_and_b32", "v10", 15, "v0"), valu("v_cmp_eq_u32", "vcc", 0, "v10"), valu("v_cndmask_b32", f"v{ONES}", 0, f"v{ONES}", "vcc")]
    o += [valu("v_mov_b32", f"v{ONES + r}", f"v{ONES}") for r in range(1, 4)]
    if OPT["prof"]:
        o += [salu("s_add_u32", "s68", "s90", WS_PROF), salu("s_addc_u32", "s69", "s91", 0)] + srd(S_PROF, "s68", "s69", 1 << 20)
        o += [salu("s_lshl_b32", sPROF, "s2", 2), salu("s_add_u32", sPROF, sPROF, sWAVE), salu("s_lshl_b32", sPROF, sPROF, 10)]
        o += prof_stamp(0, 8)
    o += [salu("s_lshl_b32", sKV, "s6", 5), salu("s_add_u32", sKV, sKV, "s7"), salu("s_lshl_b32", sKV, sKV, 17),
          salu("s_lshl_b32", sT0, "s71", 12),
          salu("s_lshr_b32", sROT, "s2", 3), salu("s_lshl_b32", sT1, "s2", 1), salu("s_add_u32", sROT, sROT, sT1),
          salu("s_and_b32", sROT, sROT, 15), salu("s_lshl_b32", sROT, sROT, 13), salu("s_add_u32", sROT, sROT, sT0)]
    o += [salu("s_mul_i32", sO, "s3", O_GRP), salu("s_mul_i32", sT0, "s71", 786432), salu("s_add_u32", sO, sO, sT0),
          salu("s_lshr_b32", sT0, "s4", 1), salu("s_mul_i32", sT0, sT0, 16 * 12288), salu("s_add_u32", sO, sO, sT0),
          salu("s_and_b32", sT0, "s4", 1), salu("s_mul_i32", sT0, sT0, 4 * 12288), salu("s_add_u32", sO, sO, sT0),
          salu("s_mul_i32", sT0, "s70", 2 * 12288), salu("s_add_u32", sO, sO, sT0)]
    o += [salu("s_lshl_b32", "s68", "s6", 3), salu("s_add_u32", "s68", "s68", "s4"),
          salu("s_lshr_b32", sT0, "s68", 1), salu("s_and_b32", sT1, sT0, "0x33"),
          salu("s_and_b32", "s69", sT0, 4), salu("s_lshl_b32", "s69", "s69", 1), salu("s_or_b32", sT1, sT1, "s69"),
          salu("s_and_b32", "s69", sT0, 8), salu("s_lshr_b32", "s69", "s69", 1), salu("s_or_b32", sT1, sT1, "s69"),
          salu("s_mul_i32", sWOD, sT1, 20480),
          salu("s_and_b32", sT0, "s68", 1), salu("s_lshl_b32", sT0, sT0, 11), salu("s_add_u32", sWOD, sWOD, sT0),
          salu("s_mul_i32", sT0, "s5", WOT_BLK), salu("s_add_u32", sWOD, sWOD, sT0),
          salu("s_lshl_b32", sT0, "s70", 12), salu("s_add_u32", sWOD, sWOD, sT0),
          salu("s_lshl_b32", sT0, "s71", 10), salu("s_add_u32", sWOD, sWOD, sT0),
          salu("s_mul_i32", sT0, "s70", 1310720 - 20480), salu("s_add_u32", sWOX, sWOD, sT0)]
    o += [salu("s_add_u32", "s68", "s3", "s4"), salu("s_and_b32", "s68", "s68", 3), salu("s_mov_b32", sQT, "0x%x" % TBLQ[0])]
    for r in range(1, 4):
        o += [scmp("s_cmp_eq_u32", "s68", r), salu("s_cselect_b32", sQT, "0x%x" % TBLQ[r], sQT)]
    cbits = struct.unpack("<I", struct.pack("<f", math.log2(math.e) / math.sqrt(128.0)))[0]
    o += [salu("s_mov_b32", sC, "0x%x" % cbits), salu("s_mov_b32", sHI, "0x4e800000"), salu("s_mov_b32", sLO, "0x30800000"),
          salu("s_mov_b32", sIT, 0)]
    o += [valu("v_lshrrev_b32", a, 4, i), valu("v_and_b32", b, 15, i),
          valu("v_xor_b32", c, a, b), valu("v_lshlrev_b32", c, 4, c), valu("v_lshl_add_u32", vK[0], a, 8, c)]
    o += [valu("v_xor_b32", vK[m], m << 6, vK[0]) for m in range(1, 4)]
    o += [valu("v_lshlrev_b32", "v5", 1, a), valu("v_xor_b32", "v5", "v5", b), valu("v_lshlrev_b32", "v5", 4, "v5"),
          valu("v_lshl_add_u32", vV[0], a, 8, "v5"), valu("v_xor_b32", vV[1], 128, vV[0])]
    o += [salu("s_lshl_b32", "s69", "s70", 13), salu("s_mul_i32", "s68", "s71", 12288), salu("s_add_u32", "s68", "s68", XS[0]),
          valu("v_bfe_u32", "v8", i, 2, 2), valu("v_and_b32", "v9", 3, i)]
    o += [valu("v_lshl_add_u32", c, b, 8, c), valu("v_add_u32", c, KWANT[15], c), valu("v_add_u32", kA[0], "s69", c)]
    o += [valu("v_xor_b32", kA[j], j << 6, kA[0]) for j in range(1, 4)]
    o += [valu("v_lshl_add_u32", "v5", a, 2, "v8"), valu("v_lshlrev_b32", c, 8, "v5"), valu("v_and_b32", "v6", 7, "v5"),
          valu("v_lshl_add_u32", c, "v6", 5, c), valu("v_lshl_add_u32", c, "v9", 3, c),
          valu("v_add_u32", c, VWANT[0], c), valu("v_add_u32", vA[0], "s69", c)]
    o += [valu("v_xor_b32", vA[d], d << 5, vA[0]) for d in range(1, 8)]
    o += [valu("v_lshl_add_u32", c, a, 3, "v8"), valu("v_lshlrev_b32", c, 7, c),
          valu("v_and_b32", "v5", 2, "v8"), valu("v_and_b32", "v7", 1, a), valu("v_lshl_add_u32", "v5", "v7", 2, "v5"),
          valu("v_xor_b32", "v5", "v5", "v9"), valu("v_lshl_add_u32", c, "v5", 4, c), valu("v_add_u32", wA[0], "s69", c),
          valu("v_xor_b32", wA[1], 64, wA[0])]
    o += [valu("v_lshrrev_b32", "v5", 1, b), valu("v_xor_b32", "v5", "v5", a),
          valu("v_lshlrev_b32", "v5", 4, "v5"), valu("v_lshl_add_u32", c, b, 7, "v5"),
          valu("v_xor_b32", "v5", 64, c), valu("v_add_u32", xA[0], "s68", c), valu("v_add_u32", xA[1], "s68", "v5")]
    o += [salu("s_lshl_b32", "s68", "s70", 2), salu("s_lshl_b32", "s69", "s71", 3), salu("s_add_u32", "s69", "s69", WOJ_ADDR),
          valu("v_lshrrev_b32", c, 1, a), valu("v_lshlrev_b32", c, 12, c), valu("v_lshl_add_u32", c, "v6", 7, c),
          valu("v_add_u32", c, "s69", c), valu("v_add_u32", "v5", "s68", "v9"), valu("v_lshrrev_b32", "v6", 1, "v6"),
          valu("v_xor_b32", "v5", "v5", "v6"), valu("v_lshl_add_u32", vJ, "v5", 4, c)]
    o += [needvm([("W", 0, 0), ("X", 0)] if OPT["early"] else [k for k, u in U.items() if u["N"] == 0]), barrier()] + first_reads(0)
    return o


def acc2(pi, xy, qi):
    return ((pi * 6 + qi) * 2 + xy) * 4


def a2(st, pi, ks, xy):
    if st == 0:
        return (240 if pi == 0 else 48 + 16 * pi) + 8 * ks + 4 * xy
    return (48 if pi == 0 else 112 + 16 * pi) + 8 * ks + 4 * xy


def b2(st, qi, ks):
    return (192 if st == 0 else 0) + 8 * qi + 4 * ks


V2A = ["v%d" % i for i in range(240, 245)]
V2B = ["v245", "v246", "v247", "v248", "v249", "v253"]
V2L, V2W, V2P, V2X = "v252", "v254", "v255", "v251"
S2A, S2B, S2OUT = S_WQ, 12, 8
TA, TB, sAB, sBB = 56, 62, "s43", "s44"


def k2_loads_A(st, pi, soff=None):
    return [vload(("a", a2(st, pi, ks, xy)), 4, V2A[pi], S2A, soff or sA2, ks * 2048 + xy * 1024, flags=SC1) for xy in range(2) for ks in range(2)]


def k2_loads_B(st, qi):
    return [vload(("a", b2(st, qi, ks)), 4, V2B[qi], S2B, sB2, ks * 1024, flags=SC1) for ks in range(2)]


def k2_lds_A(st, pi):
    out = []
    for xy in range(2):
        for ks in range(2):
            r = [r for r, (s_, p_, off) in PF2.items() if (s_, p_) == (st, pi) and (r not in ("s87", "s99") or off == 2048 * ks)][0]
            key = [k for k, rs in sPF.items() if r in rs][0]
            if key[0] == "W":
                out.append(ds_read("ds_read_b128", ("a", a2(st, pi, ks, xy)), 4, V2W, U[key]["addr"] + ks * 2048 + xy * 1024))
            elif key[0] == "P":
                out.append(ds_read("ds_read_b128", ("a", a2(st, pi, ks, xy)), 4, V2P, ks * 2048 + xy * 1024))
            elif r == sPF[key][0]:
                out.append(ds_read("ds_read_b128", ("a", a2(st, pi, ks, xy)), 4, V2X, U[key]["addr"] - XS[0] + ks * 2048 + xy * 1024))
            else:
                out.append(ds_read("ds_read_b128", ("a", a2(st, pi, ks, xy)), 4, V2X, U[key]["addr"] - XS[0] + 4096 + xy * 1024))
    return out


def k2_steps(S, first, loadA, loadB, pend, check=False, late=(), final=None):
    for st in range(2):
        q0 = S.n()
        tiles = [(pi, xy, qi) for pi in range(5) for xy in range(2) for qi in range(6)]
        if final is not None and st == 1:
            tiles = [t for t in tiles if t[2] >= 3] + [t for t in tiles if t[2] < 3]
            for n, x in enumerate(final[0]):
                S.put(q0 + 2 + n, x)
            for n, x in enumerate(final[1]):
                S.put(q0 + 61 + 2 * n, x)
        for pi, xy, qi in tiles:
            for ks in range(2):
                acc = ("v", acc2(pi, xy, qi))
                S.add(mfma(16, acc, ("a", a2(st, pi, ks, xy)), ("a", b2(st, qi, ks)),
                           None if (first and st == 0 and ks == 0) else acc))
        pos = [int(0.5 + 3.75 * n) for n in range(32)]
        if pend[st]:
            ls = k2_loads_A(1 - st, 4)
            S.put(q0 + pos[0], ls[2])
            S.put(q0 + pos[1], ls[3])
            for n, x in enumerate(next_off(sA2, TA, sAB, 20480)):
                S.put(q0 + pos[1] + 1 + n, x)
        if first and st == 0:
            for n, (pre, l) in enumerate(late):
                S.put(q0 + 6 * n + 2, *pre)
                S.put(q0 + 6 * n + 3, l)
            for n, r in enumerate(k2_lds_A(1, 0) + k2_lds_A(1, 1) + k2_lds_A(1, 2)):
                S.put(q0 + 6 * n + 5 if n < 8 else q0 + 54 + 4 * (n - 8), r)
            S.put(q0 + 70, valu("v_add_u32", V2P, D[9] - D[5], V2P))
            for n, r in enumerate(k2_lds_A(1, 3)):
                S.put(q0 + 73 + 4 * n, r)
        elif loadB[st]:
            for n, l in enumerate([l for qi in range(6) for l in k2_loads_B(1 - st, qi)]):
                S.put(q0 + pos[2 + n], l)
            for n, x in enumerate(next_off(sB2, TB, sBB, 12288)):
                S.put(q0 + pos[13] + 1 + n, x)
        if loadA[st]:
            n = 14
            for pi in range(5):
                ls = k2_loads_A(st, pi)
                for x, l in enumerate(ls if pi < 4 else ls[:2]):
                    assert pos[n] >= 24 * pi + 11 + 12 * (x >> 1), (pi, x, pos[n])
                    S.put(q0 + pos[n], l)
                    n += 1
        if first and st == 1:
            S.put(q0 + 110, needvm(["ost"]), barrier())
            S.put(q0 + 111, valu("v_mov_b32", V2P, "0x100"))
            S.put(q0 + 114, atomic_add(V2P, sFG))
        if check and st == 1:
            S.put(q0 + 1, scmp("s_cmp_eq_u32", sCNT, 5), salu("s_cselect_b32", sWANT, 8, 0), salu("s_cselect_b32", sPL, sFG, "0x1000"))
            S.put(q0 + 2, poll_load(V2P, sPL))
        if check and st == 0:
            S.put(q0 + 1, valu("v_readfirstlane_b32", sQ, V2P))
            S.put(q0 + 6, salu("s_bfe_u32", sQ, sQ, "0x80008"), scmp("s_cmp_lt_u32", sQ, sWANT),
                  raw("s_cbranch_scc1 L_spin2", "branch", rd=["scc"]), label("L_spin2_back"))


def k2_first(S, late):
    seq = [(0, p) for p in range(4)] + [(1, p) for p in range(3)] + [(0, 4), (1, 3), (1, 4)]
    at = {}
    for st, pi in seq:
        at[(st, pi)] = S.n()
        for xy in range(2):
            for qi in range(6):
                for ks in range(2):
                    acc = ("v", acc2(pi, xy, qi))
                    S.add(mfma(16, acc, ("a", a2(st, pi, ks, xy)), ("a", b2(st, qi, ks)), None if (st == 0 and ks == 0) else acc))
    for n, (pre, l) in enumerate(late):
        S.put(13 * n + 2, *pre)
        S.put(13 * n + 3, l)
    assert 13 * len(late) < at[(0, 4)]
    g = 5
    for pi in range(4):
        if pi == 3:
            S.put(g, valu("v_add_u32", V2P, D[9] - D[5], V2P))
            g += 2
        for r in k2_lds_A(1, pi):
            while S.fixed.get(g):
                g += 1
            S.put(g, r)
            g += 4
    items = []
    for pi in range(5):
        for x, l in enumerate(k2_loads_A(0, pi, sSO)):
            items.append((l, at[(0, pi)] + 11 + 12 * (x >> 1), 240 + 24 * pi + 12 * (x >> 1)))
        for x, l in enumerate(k2_loads_A(1, pi)[:4 if pi < 4 else 2]):
            items.append((l, at[(1, pi)] + 11 + 12 * (x >> 1), 360 + 24 * pi + 12 * (x >> 1)))
    for qi in range(6):
        for ks, l in enumerate(k2_loads_B(0, qi)):
            items.append((l, at[(0, 4)] + 12 + 2 * qi + ks, 200 + 2 * qi + ks))
    items.sort(key=lambda i: i[2])
    g, lastB = 11, 0
    while items:
        c = [i for i in items if i[1] <= g]
        if c and not any(S.fixed.get(k) and any(j.kind in ("vld", "vst") for j in S.fixed[k]) for k in ((g - 2, g - 1, g + 1) if g < 180 else (g - 1, g + 1))) and not S.fixed.get(g):
            S.put(g, c[0][0])
            if sB2 in c[0][0].rd:
                lastB = g
            items.remove(c[0])
        g += 1
        assert g < 240, items
    for n, x in enumerate(next_off(sB2, TB, sBB, 12288)):
        S.put(lastB + 1 + n, x)
    g = 226
    while S.fixed.get(g) or S.fixed.get(g + 1) or S.fixed.get(g + 3):
        g += 1
    S.put(g, needvm(["ost"]), barrier())
    S.put(g + 1, valu("v_mov_b32", V2P, "0x100"))
    S.put(g + 3, atomic_add(V2P, sFG))


def spin(name, back, dsts, soffs, conds):
    o = [label(name), salu("s_mov_b32", sSPIN, 0), label(name + "_loop"), raw("s_sleep 8")]
    o += [poll_load(d, so) for d, so in zip(dsts, soffs)]
    o += [drain(), salu("s_add_u32", sSPIN, sSPIN, 1), scmp("s_cmp_gt_u32", sSPIN, "0x20000"),
          raw(f"s_cbranch_scc1 {back}", "branch", rd=["scc"])]
    for d, (sh, msk, want) in zip(dsts, conds):
        o += [valu("v_readfirstlane_b32", sQ, d), nop(4)]
        if sh:
            o += [salu("s_lshr_b32", sQ, sQ, sh)]
        if msk:
            o += [salu("s_and_b32", sQ, sQ, msk)]
        o += [scmp("s_cmp_lt_u32", sQ, want), raw(f"s_cbranch_scc1 {name}_loop", "branch", rd=["scc"])]
    o += [raw(f"s_branch {back}", "branch")]
    return o


def phase2():
    o = [valu("v_readfirstlane_b32", sQ, vPOLL[0]), valu("v_mov_b32", V2L, vL16),
         salu("s_lshr_b32", "s84", "s4", 2), salu("s_mul_i32", "s7", "s3", O_GRP), salu("s_mul_i32", sPL, "s84", 786432),
         salu("s_add_u32", "s7", "s7", sPL),
         salu("s_and_b32", sQ, sQ, "0xff"),
         scmp("s_cmp_lt_u32", sQ, 8), raw("s_cbranch_scc1 L_spin1", "branch", rd=["scc"]), label("L_spin1_back")]
    o += [salu("s_add_u32", "s58", "s90", "s7"), salu("s_addc_u32", "s59", "s91", 0)] + srd(S2B, "s58", "s59", 786432)
    o += [salu("s_and_b32", "s85", "s4", 3), salu("s_and_b32", "s32", sWAVE, 1), salu("s_lshr_b32", "s33", sWAVE, 1),
          salu("s_mul_i32", sBB, sWAVE, 16 * 12288), salu("s_mul_i32", sAB, sWAVE, 16 * 20480),
          salu("s_mov_b64", f"s[{TB}:{TB + 1}]", "s[34:35]"), salu("s_lshr_b64", f"s[{TA}:{TA + 1}]", "s[34:35]", 4)]
    o += next_off(sB2, TB, sBB, 12288)
    o += [valu("v_add_u32", V2W, sW4K, V2L), salu("s_add_u32", "s7", sW6K, XS[0]), valu("v_add_u32", "v22", "s7", V2L)]
    o += [scmp("s_cmp_eq_u32", "s33", 0)]
    o += [salu("s_cselect_b32", f"s{47 + q}", q, 2 - q) for q in range(3)]
    o += [salu("s_cselect_b32", f"s{36 + pi}", pi, 4 - pi) for pi in range(5)]
    o += [salu("s_mul_i32", "s34", "s32", 3), salu("s_sub_u32", "s35", 3, "s34")]
    for q in range(3):
        o += [salu("s_add_u32", f"s{50 + q}", f"s{47 + q}", "s35"), salu("s_add_u32", f"s{47 + q}", f"s{47 + q}", "s34")]
    o += [valu("v_mov_b32", f"v{16 + q}", vR[q]) for q in range(6)]
    for qi in range(6):
        o += [salu("s_lshl_b32", "s7", f"s{47 + qi}", 11), valu("v_add_u32", V2B[qi], "s7", V2L)]
    for qi in range(6):
        o += k2_loads_B(0, qi)
    o += next_off(sB2, TB, sBB, 12288)
    save = list(vR)
    vR[:] = [f"v{16 + q}" for q in range(6)]
    nl = 12 if OPT["pace"] else 8
    eg = epilogue_groups(0, lambda n: 240 - 4 * (24 - n) - (0 if OPT["pace"] else 16) if n >= 24 - nl else 32 + 4 * n, V2L)
    vR[:] = save
    b1 = [l for qi in range(6) for l in k2_loads_B(1, qi)]
    for n, (v, pre, st, imm) in enumerate(eg):
        m = b1[2 * (n - 8):2 * (n - 8) + 2] if 8 <= n < 14 else []
        o += v[:8] + m[:1] + v[8:16] + m[1:] + v[16:]
        if OPT["pace"]:
            if n % 2 == 0:
                o += eg[n // 2][1] + [eg[n // 2][2]]
        elif n < 16:
            o += pre + [st]
        if n == 15:
            o += [needvm(list(sPF)), valu("v_mov_b32", V2X, "v22")]
            for pi in range(5):
                o += [salu("s_lshl_b32", "s7", f"s{36 + pi}", 12), valu("v_add_u32", V2A[pi], "s7", V2L)]
            o += next_off(sPL, TA, sAB, 20480)
            if OPT["pace"]:
                o += next_off(sSO, TA, sAB, 20480)
            o += next_off(sA2, TA, sAB, 20480)
        if 16 <= n < 21:
            o += k2_lds_A(0, n - 16)
    late = []
    for n, g in enumerate(eg[24 - nl:]):
        st = vstore(("v", 240 - 4 * (nl - n) - (0 if OPT["pace"] else 16)), 4, V2L, S_OST, sE, g[3], tag="ost", flags=SC1)
        late.append((g[1], st))
    o += k2_loads_A(1, 4, sPL) + [valu("v_add_u32", V2P, D[5], V2W)]
    o += next_off(sB2, TB, sBB, 12288) + [salu("s_mov_b32", sWANT, 0)]
    o += prof_stamp(1, 30)
    o += srd(S2OUT, "s92", "s93", 7864320)
    o += [salu("s_mul_i32", sOB, "s6", 192 * 2560), salu("s_mul_i32", "s7", "s84", 96 * 2560), salu("s_add_u32", sOB, sOB, "s7"),
          salu("s_mul_i32", "s7", "s5", 1280), salu("s_add_u32", sOB, sOB, "s7"),
          salu("s_mul_i32", "s7", "s85", 320), salu("s_add_u32", sOB, sOB, "s7"), salu("s_mov_b32", sCNT, 6)]
    S0 = Sched()
    if OPT["pace"]:
        k2_first(S0, late)
    else:
        k2_steps(S0, True, [True, True], [True, True], [False, True], late=late)
    S0.order_fixed()
    first = S0.build()
    S1 = Sched()
    k2_steps(S1, False, [True, True], [True, True], [True, True], check=True)
    if OPT["prof"]:
        S1.put(3, raw("s_memrealtime s[76:77]", wr=["s76", "s77"]), raw("s_waitcnt lgkmcnt(0)", "drainlg"),
               salu("s_mov_b32", "s101", "s100"), salu("s_mov_b32", "s100", "s99"), salu("s_mov_b32", "s99", "s98"),
               salu("s_mov_b32", "s98", "s97"), salu("s_mov_b32", "s97", "s96"), salu("s_mov_b32", "s96", "s76"))
    S1.put(237, salu("s_sub_u32", sCNT, sCNT, 1))
    S1.order_fixed()
    loop = [label("L_k2")] + S1.build() + [scmp("s_cmp_lg_u32", sCNT, 0), raw("s_cbranch_scc1 L_k2", "branch", rd=["scc"])]
    R1, R2, i, a, V2O = V2A[0], V2A[1], V2A[2], V2A[3], V2A[4]
    setup = [salu("s_mul_i32", "s7", sWAVE, 30720), valu("v_add_u32", V2W, "s7", V2L), valu("v_lshrrev_b32", i, 4, V2L),
             valu("v_and_b32", a, 15, i), valu("v_mul_u32_u24", a, 2560, a), valu("v_lshrrev_b32", i, 4, i),
             valu("v_lshl_add_u32", V2O, i, 4, a),
             salu("s_xor_b32", sPL, sWAVE, 1), salu("s_sub_u32", sPL, sPL, sWAVE), salu("s_mul_i32", "s7", sPL, 30720),
             valu("v_add_u32", R1, "s7", V2W),
             salu("s_xor_b32", sPL, sWAVE, 3), salu("s_sub_u32", sPL, sPL, sWAVE), salu("s_mul_i32", "s7", sPL, 30720),
             valu("v_add_u32", R2, "s7", V2W)]
    sent = [(pi, xy, qi) for pi in range(5) for qi in range(3, 6) for xy in range(2)]
    wr = {t: ds_write("ds_write_b128", V2W, ("v", acc2(*t)), 4, n * 1024) for n, t in enumerate(sent)}
    S2 = Sched()
    e = []
    if OPT["redov"]:
        order = [wr[(pi, xy, qi)] for pi in range(5) for xy in range(2) for qi in range(3, 6)]
        k2_steps(S2, False, [False, False], [True, False], [True, False], final=(setup, order[:29]))
        e = order[29:]
    else:
        k2_steps(S2, False, [False, False], [True, False], [True, False])
        e = setup + list(wr.values())
    S2.order_fixed()
    last = S2.build()
    e += [needlgkm0(), barrier()] + prof_stamp(8, 234)
    for s in list(range(7, 15)) + list(range(7)):
        pi, q = divmod(s, 3)
        e += [ds_read("ds_read_b128", ("v", acc2(pi, xy, q + 3)), 4, R1, (2 * s + xy) * 1024) for xy in range(2)]
    for s in list(range(7, 15)) + list(range(7)):
        pi, q = divmod(s, 3)
        d, t = acc2(pi, 0, q), acc2(pi, 0, q + 3)
        e += [valu("v_add_f32", f"v{d + r}", f"v{d + r}", f"v{t + r}") for r in range(8)]
        if s >= 7:
            e += [ds_write("ds_write_b128", R1, ("v", acc2(pi, xy, q)), 4, (2 * s + xy) * 1024) for xy in range(2)]
    e += [needlgkm0(), barrier()]
    for s in range(8):
        pi, q = divmod(s, 3)
        for xy in range(2):
            e += [ds_read("ds_read_b128", ("v", acc2(pi, xy, q + 3)), 4, R2, (2 * (14 - s) + xy) * 1024)]
    for s in range(8):
        pi, q = divmod(s, 3)
        d0, t0 = acc2(pi, 0, q), acc2(pi, 0, q + 3)
        e += [valu("v_add_f32", f"v{d0 + r}", f"v{d0 + r}", f"v{t0 + r}") for r in range(8)]
        e += [valu("v_cvt_pk_bf16_f32", f"v{d0 + r}", f"v{d0 + 2 * r}", f"v{d0 + 2 * r + 1}") for r in range(4)]
        e += [salu("s_mul_i32", "s7", f"s{47 + q}", 40960), salu("s_lshl_b32", sPL, f"s{36 + pi}", 6),
              salu("s_add_u32", "s7", "s7", sPL), salu("s_add_u32", sSO, "s7", sOB),
              vstore(("v", d0), 4, V2O, S2OUT, sSO, 0, flags=OPT["outf"])]
    e += prof_stamp(9, 234)
    if OPT["prof"]:
        for n in range(6):
            e += [valu("v_mov_b32", "v234", 1), valu("v_mov_b32", "v235", f"s{101 - n}"), pstore(234, 2 + n), nop(4)]
    e += [label("L_end"), raw("s_endpgm")]
    sp1 = spin("L_spin1", "L_spin1_back", vPOLL[:1], [sFG], [(0, "0xff", 8)]) + spin("L_spin3", "L_spin3_back", vPOLL[1:], [sFB], [(16, 0, 256)])
    sp2 = spin("L_spin2", "L_spin2_back", [V2P], [sFG], [(8, "0xff", 8)])
    sp2 += GATE_SPINS
    return o, first, loop, last, e, sp1, sp2


def kernel():
    pro = prologue()
    q1 = q_phase(False)
    att = [label("L_att")] + a_phase()
    att += [raw("s_cbranch_vccnz L_slow", "branch", rd=["vcc"]), label("L_back")]
    att += [valu("v_rcp_f32", vR[qt], f"v{lacc(qt)}") for qt in range(6)]
    att += prof_stamp(29)
    if OPT["prof"]:
        att += [salu("s_add_u32", sPROF, sPROF, 240)]
    att += [scmp("s_cmp_eq_u32", sIT, 1), raw("s_cbranch_scc1 L_out", "branch", rd=["scc"]), salu("s_mov_b32", sIT, 1)]
    q2 = [label("L_q2")] + q_phase(True) + [raw("s_branch L_att", "branch")]
    o, first, loop2, last, e, sp1, sp2 = phase2()
    o = [label("L_out")] + o
    slow = slow_path()
    parts = [pro, q1, att, q2, o, first, loop2, last, e, slow, sp1, sp2]
    waits = compute_waits([pro + q1 + att + q2 + att + o + first + loop2 + loop2 + loop2 + last + e, slow, sp1, sp2])
    done = {}
    P = [apply_waits(x, waits, done) for x in parts]
    pads = pad_hazards([P[0] + P[1] + P[2] + P[3] + P[2] + P[4] + P[5] + P[6] + P[6] + P[7] + P[8], P[9], P[10], P[11]])
    al = ".p2align 3\n"
    return (emit(P[0] + P[1], pads) + al + emit(P[2] + P[3], pads) + al + emit(P[4] + P[5], pads) + al +
            emit(P[6] + P[7] + P[8] + P[9] + P[10] + P[11], pads) + "L_endcode:\n")


def main():
    kn = NAME + "_kernel"
    s = open("cdna_kernels/" + NAME + ".s.ref").read().split("; Override launch")[0]
    s += "; @launch grid=(256,1,1) block=(256,1,1) lds=163840\n"
    s += '.amdgcn_target "amdgcn-amd-amdhsa--gfx950"\n.text\n'
    s += f".globl {kn}\n.p2align 8\n.type {kn},@function\n{kn}:\n" + kernel()
    s += f""".section .rodata,"a"
.p2align 6
.amdhsa_kernel {kn}
  .amdhsa_next_free_vgpr 512
  .amdhsa_next_free_sgpr 102
  .amdhsa_accum_offset 256
  .amdhsa_group_segment_fixed_size 0
  .amdhsa_kernarg_size 104
  .amdhsa_user_sgpr_count 2
  .amdhsa_user_sgpr_kernarg_segment_ptr 1
  .amdhsa_system_sgpr_workgroup_id_x 1
.end_amdhsa_kernel
"""
    open(sys.argv[1], "w").write(s)


main()
```

```python
import sys, math, struct
from fw3 import *
from orders import orders

NAME = "concat_heads__mha_block_cached__mha_block_cached__near_ridge"
OPT = dict(outf=' sc1', redov=1, one1=1, warmj=0, pk=1, pfq1=1, rot2=2, gate=0, pace=1, lead=3, xpace=0, kvf=' nt', norot=0, k0=7, v2e=0, gstep=2, rotq=3, early=1, uni=0, prof=0, report=False, stg=67, warmw=True, codepf=2, codepf2=14, pf='', pf0=1, pfn=3, pff='', flagbar=12, map=0)
for a in sys.argv[2:]:
    k, v = a.split("=")
    OPT[k] = type(OPT[k])(int(v)) if not isinstance(OPT[k], str) else v

KB = 1024
SC1 = " sc1"
O_GRP = 2 * 786432
WS_WOT = 50331648
WOT_BLK = 5242880
WS_PROF = 64 * 1024 * 1024

S_K, S_V, S_X, S_WQ, S_OST, S_WO, S_WOT = 8, 12, 16, 20, 24, 28, 32
sKV, sWQ, sX, sW4K, sW6K, sO, sIT, sT0, sT1, sC, sWAVE = ["s%d" % i for i in range(36, 47)]
sWOS, sWOD, sWOX, sW5K, sHI, sLO = ["s%d" % i for i in range(47, 53)]
sPROF, sE, sJ = "s53", "s54", "s55"
sQT, sWS, sXS = "s50", "s67", "s95"
sROT, sFG, sFB, sCP = "s62", "s65", "s66", "s64"
sA2, sB2, sPL, sOB, sCNT, sSO, sQ, sSH, sWANT, sSPIN = "s28", "s29", "s30", "s31", "s67", "s68", "s69", "s70", "s71", "s94"
S_PROF, S_FLG = 72, 80
sPF = {("W", 0, 0): ["s84"], ("W", 0, 1): ["s85"], ("X", 0): ["s86", "s87"], ("X", 1): ["s98", "s99"], ("W", 1, 0): ["s100"], ("W", 1, 1): ["s101"],
       ("P", 0): ["s60"], ("P", 1): ["s61"]}
PF2 = {"s84": (0, 0, 0), "s85": (0, 1, 0), "s86": (0, 2, 0), "s98": (0, 3, 0), "s100": (0, 4, 0), "s101": (1, 0, 0),
       "s87": (1, 1, 0), "s99": (1, 1, 2048), "s60": (1, 2, 0), "s61": (1, 3, 0)}
vK = ["v%d" % i for i in range(192, 196)]
vV = ["v196", "v197"]
vW = ["v%d" % i for i in range(198, 202)]
vX = ["v%d" % i for i in range(202, 206)]
kA = ["v%d" % i for i in range(206, 210)]
vA = ["v%d" % i for i in range(210, 218)]
wA = ["v218", "v219"]
xA = ["v220", "v221"]
vJ, vL16 = "v222", "v223"
ONES = 224
EPI = 228
vR = ["v%d" % i for i in range(244, 250)]
vFLG = "v250"
vPUB = "v251"
vT = ["v252", "v253"]
vC2 = "v[242:243]"
vPOLL = ["v254", "v255"]

D = [i * 16 * KB for i in range(10)]
XS = [96 * KB, 120 * KB]
WOJ_ADDR = D[9]


def qacc(p, xy, qt):
    return 64 * (qt >> 1) + (2 * p + (qt & 1)) * 8 + 4 * xy


def qf(qt, p):
    return 64 * (qt >> 1) + (2 * p + (qt & 1)) * 4


def sreg(qt):
    return 64 * (qt >> 1) + 32 + 8 * (qt & 1)


def lacc(qt):
    return 64 * (qt >> 1) + 48 + 4 * (qt & 1)


ABUF = [192, 248]


def bx(qt, ks):
    return 200 + 8 * qt + 4 * ks


def kf(kt, ks):
    return 192 + 16 * kt + 4 * ks


def vf(dt):
    return 224 + 4 * dt


def oacc(qt, dt):
    return 32 * qt + 4 * dt


def build_units():
    U = {}
    for i in range(10):
        U[("X", i)] = dict(addr=XS[i % 2], size=24 * KB, N=i, I=i - 2)
        for u in range(2):
            U[("W", i, u)] = dict(addr=D[2 * (i % 3) + u], size=16 * KB, N=i, I=i - 2)
    U[("X", 0)]["I"] = -3
    U[("W", 0, 0)]["I"] = -3
    U[("W", 0, 1)]["I"] = -3
    U[("W", 1, 0)]["I"] = -2
    U[("W", 1, 1)]["I"] = -2
    pages = [9, 3, 2, 4, 5, 8, 1, 9, 0, 2, 3, 4, 6, 1, 5, 9, 0, 7, 3, 8, 2, 5, 1, 4, 0, 7, 3, 2, 8, 5, 9, 4]
    for u in range(32):
        key = ("K", u // 2) if u % 2 == 0 else ("V", u // 2)
        N = 10 + u // 2 + u % 2
        U[key] = dict(addr=D[pages[u]], size=16 * KB, N=N, I=N - (3 if u < 5 else OPT["lead"]))
    U[("K", 0)]["I"] = OPT["k0"]
    if OPT["v2e"]:
        U[("V", 2)].update(addr=D[6], I=9)
    U[("J", 0)] = dict(addr=WOJ_ADDR, size=16 * KB, N=1, I=0)
    U[("J", 1)] = dict(addr=WOJ_ADDR, size=16 * KB, N=4, I=2)
    U[("P", 0)] = dict(addr=D[5], size=16 * KB, N=-0.5, I=-1)
    U[("P", 1)] = dict(addr=D[9], size=16 * KB, N=-0.5, I=-1)
    allu = [(k, u["addr"], u["addr"] + u["size"], u["N"] + 27 * r, u["I"] + 27 * r) for r in range(3) for k, u in U.items()]
    for a in allu:
        assert a[4] < a[3], a
        for b in allu:
            if a is not b and a[1] < b[2] and b[1] < a[2]:
                ra = a[3] - (a[0][0] == "X" and a[0][1] <= 7)
                rb = b[3] - (b[0][0] == "X" and b[0][1] <= 7)
                assert ra < b[4] or rb < a[4], (a, b)
    return U


U = build_units()
_alt = [0]


def next_st():
    _alt[0] ^= 1
    return [sT0, sT1][_alt[0]]


def jblocks(r, second):
    if second:
        return [8, 9] if r == 1 else []
    return range(4 * r, 4 * r + 4)


def unit_dmas(key, second=False):
    u = U[key]
    kind = key[0]
    if key in sPF:
        if kind in "WP":
            return [([salu("s_add_u32", "m0", sW4K, u["addr"])], [dma(vW[m], S_WQ, sPF[key][0], 1024 * m, key, SC1) for m in range(4)])]
        return [([salu("s_add_u32", "m0", sW6K, u["addr"])], [dma(vX[m], S_X, sPF[key][0], 1024 * m, key, SC1) for m in range(4)]),
                ([salu("s_add_u32", "m0", sW6K, u["addr"] + 4096)], [dma(vX[m], S_X, sPF[key][1], 1024 * m, key, SC1) for m in range(2)])]
    sT = next_st()
    if kind in "KV":
        pre = [salu("s_add_u32", sT, sROT, key[1] * 8192), salu("s_and_b32", sT, sT, "0x1ffff"), salu("s_add_u32", sT, sT, sKV),
               salu("s_add_u32", "m0", sW4K, u["addr"])]
        if kind == "K":
            return [(pre, [dma(vK[m], S_K, sT, 1024 * m, key, OPT["kvf"]) for m in range(4)])]
        return [(pre, [dma(vV[m & 1], S_V, sT, 1024 * m, key, OPT["kvf"]) for m in range(4)])]
    if kind == "W":
        if key[2] == 0:
            return [([salu("s_add_u32", "m0", sW4K, u["addr"])], [dma(vW[m], S_WQ, sWS, 1024 * m, key) for m in range(4)])]
        pre = [salu("s_add_u32", sT, sWS, 128), salu("s_add_u32", "m0", sW4K, u["addr"])]
        return [(pre, [dma(vW[m], S_WQ, sT, 1024 * m, key) for m in range(4)])]
    if kind == "X":
        g0 = ([salu("s_add_u32", "m0", sW6K, u["addr"])], [dma(vX[m], S_X, sXS, 1024 * m, key) for m in range(4)])
        pre2 = [salu("s_add_u32", sT, sXS, 40960), salu("s_add_u32", "m0", sW6K, u["addr"] + 4096)]
        return [g0, (pre2, [dma(vX[m], S_X, sT, 1024 * m, key) for m in range(2)])]
    gs = []
    for jj in jblocks(key[1], second):
        sTj = next_st()
        pre = [salu("s_add_u32", sTj, sWOS, jj * 128), salu("s_add_u32", "m0", sW4K, u["addr"] + (jj & 3) * 1024)]
        gs.append((pre, [dma(vX[0], S_WO, sTj, 0, key, " nt")]))
    return gs


def set_pf_proj(tail=False):
    o = []
    for key, rs in sPF.items():
        if key[0] == "P":
            o += [salu("s_mov_b32", rs[0], "0x10000000")] if tail else []
        elif key[0] == "W":
            o += [salu("s_add_u32", rs[0], sWQ, key[1] * 524288 + key[2] * 128)]
        else:
            o += [salu("s_add_u32", rs[0], sX, key[1] * 128), salu("s_add_u32", rs[1], sX, key[1] * 128 + 40960)]
    return o


ORD2 = orders(16, 4, 8, 7, {1: [4], 2: [1, 1, 2, 2, 2, 0, 0], 3: [1, 2, 2, 2, 1, 0, 0], 4: [2, 1, 2, 2, 1, 0, 0]}[OPT["rot2"]])[0] if OPT["rot2"] else [list(range(16))] * 4
ORDQ = orders(10, 4, None, 0, {1: [1, 1, 2, 2, 2, 1, 1], 2: [1, 1, 4], 3: [1, 1, 2, 2, 1, 1, 1, 1]}[OPT["rotq"]])[0] if OPT["rotq"] else [list(range(10))] * 4
assert all(o[:2] == [0, 1] for o in ORDQ)
TBLQ = [sum(x << (4 * n) for n, x in enumerate(o[2:])) for o in ORDQ]
TBL2 = [sum(x << (4 * n) for n, x in enumerate(o)) for o in ORD2]


def next_off(dst, tbl, base, stride):
    return [salu("s_and_b32", dst, f"s{tbl}", 15), salu("s_lshr_b64", f"s[{tbl}:{tbl + 1}]", f"s[{tbl}:{tbl + 1}]", 4),
            salu("s_mul_i32", dst, dst, stride), salu("s_add_u32", dst, dst, base)]


def set_pf_out():
    o = [salu("s_and_b32", "s68", "s4", 3), salu("s_mul_i32", "s68", "s68", 1310720), salu("s_mul_i32", "s69", "s5", WOT_BLK),
         salu("s_add_u32", "s68", "s68", "s69"), salu("s_add_u32", "s68", "s68", WS_WOT)]
    o += [[salu("s_add_u32", f"s{S_WQ}", "s90", "s68"), salu("s_addc_u32", "s69", "s91", 0)]]
    o += [salu("s_and_b32", f"s{S_WQ + 1}", "s69", "0xffff"), salu("s_mov_b32", f"s{S_WQ + 2}", 1310720),
          salu("s_mov_b32", f"s{S_X}", f"s{S_WQ}"), salu("s_mov_b32", f"s{S_X + 1}", f"s{S_WQ + 1}"), salu("s_mov_b32", f"s{S_X + 2}", 1310720)]
    o += [salu("s_lshr_b32", "s70", sWAVE, 1), salu("s_mul_i32", "s68", sWAVE, 16 * 20480), salu("s_lshl_b32", "s69", "s70", 14),
          salu("s_add_u32", "s68", "s68", "s69"), salu("s_lshl_b32", "s69", "s70", 13), salu("s_sub_u32", "s69", 4096, "s69")]
    o += [salu("s_add_u32", "s70", "s3", "s4"), salu("s_and_b32", "s70", "s70", 3),
          salu("s_mov_b32", "s34", "0x%x" % (TBL2[0] & 0xffffffff)), salu("s_mov_b32", "s35", "0x%x" % (TBL2[0] >> 32))]
    for r in range(1, 4):
        o += [[scmp("s_cmp_eq_u32", "s70", r), salu("s_cselect_b32", "s34", "0x%x" % (TBL2[r] & 0xffffffff), "s34"),
               salu("s_cselect_b32", "s35", "0x%x" % (TBL2[r] >> 32), "s35")]]
    o += [salu("s_and_b32", "s70", "s34", 15), salu("s_mul_i32", "s70", "s70", 20480), salu("s_add_u32", "s70", "s70", "s68"),
          salu("s_bfe_u32", "s71", "s34", "0x40004"), salu("s_mul_i32", "s71", "s71", 20480), salu("s_add_u32", "s71", "s71", "s68")]
    for r, (st, pi, off) in PF2.items():
        o += [salu("s_mul_i32", r, "s69", pi), salu("s_add_u32", r, r, "s71" if st else "s70")]
        if off:
            o += [salu("s_add_u32", r, r, off)]
    return o


def epoch_groups(n, second=False):
    order = {"W": 0, "X": 1, "K": 2, "V": 2, "J": 3, "P": 4}
    keys = sorted([k for k, u in U.items() if u["I"] % 27 == n and k != ("J", 0)], key=lambda k: (k[0] == "P", U[k]["N"] - U[k]["I"], order[k[0]], k))
    return [g for k in keys for g in unit_dmas(k, second)]


def place_dmas(S, groups, cand, lo):
    ci = 0
    for pre, ds in groups:
        g = cand[ci]
        for n, p in enumerate(pre):
            S.put(max(lo, g - len(pre) + n), p)
        for d in ds:
            S.put(cand[ci], d)
            ci += 1


def tags_for(n):
    t = [k for k, u in U.items() if (u["N"] - (n + 1)) % 27 == 0]
    if n == OPT["flagbar"]:
        t += ["ost", "jst"]
    return t


def atomic_add(vdata, soff):
    return Ins(f"buffer_atomic_add {vdata}, {vFLG}, s[{S_FLG}:{S_FLG + 3}], {soff} offen sc1", "atomic",
               rd=[vdata, vFLG, soff] + regs("s", S_FLG, 4), tag="flag")


def poll_load(vdst, soff):
    return Ins(f"buffer_load_dword {vdst}, off, s[{S_FLG}:{S_FLG + 3}], {soff} sc1", "vld", rd=[soff] + regs("s", S_FLG, 4), wr=[vdst])


class Win:
    def __init__(self, rs, init):
        self.rs = rs
        self.cur = init

    def move(self, new):
        d = (new - self.cur) & 0xffffffff
        self.cur = new
        return [valu("v_add_u32", r, "0x%x" % d, r) for r in self.rs] if d else []


def plan_windows(addrs, span):
    want = []
    i = 0
    while i < len(addrs):
        lo = hi = addrs[i]
        j = i + 1
        while j < len(addrs) and max(hi, addrs[j]) - min(lo, addrs[j]) + span < 65536:
            lo, hi = min(lo, addrs[j]), max(hi, addrs[j])
            j += 1
        want += [lo] * (j - i)
        i = j
    return want


KWANT = plan_windows([U[("K", t)]["addr"] for t in range(16)], 4096)
VWANT = plan_windows([U[("V", t)]["addr"] for t in range(16)], 4096)
WWANT = plan_windows([U[("W", i, 1)]["addr"] for i in range(10)], 4096 + 520)
WWANT = [0 if w < 64 * KB else 64 * KB for w in [U[("W", i, 0)]["addr"] for i in range(10)]]


def pstore(v0, idx):
    return Ins(f"buffer_store_dwordx2 v[{v0}:{v0 + 1}], off, s[{S_PROF}:{S_PROF + 3}], {sPROF} offset:{8 * idx}", "vst",
               rd=[f"v{v0}", f"v{v0 + 1}", sPROF] + regs("s", S_PROF, 4))


def prof_stamp(idx, v0=252):
    if not OPT["prof"]:
        return []
    return [raw("s_memtime s[76:77]", "other", wr=["s76", "s77"]),
            raw("s_memrealtime s[78:79]", "other", wr=["s78", "s79"]),
            raw("s_waitcnt lgkmcnt(0)", "drainlg"),
            valu("v_mov_b32", f"v{v0}", "s76"),
            valu("v_mov_b32", f"v{v0 + 1}", "s78"),
            pstore(v0, idx)]


def bar_seq(tags, idx):
    if OPT["prof"] < 2:
        return [needboth(tags), barrier()] + prof_stamp(idx)
    return [raw("s_memtime s[58:59]", "other", wr=["s58", "s59"]), raw("s_waitcnt lgkmcnt(0)", "drainlg"),
            needboth(tags), barrier(),
            raw("s_memtime s[76:77]", "other", wr=["s76", "s77"]),
            raw("s_memrealtime s[78:79]", "other", wr=["s78", "s79"]),
            raw("s_waitcnt lgkmcnt(0)", "drainlg"), salu("s_sub_u32", "s76", "s76", "s58"),
            valu("v_mov_b32", "v252", "s76"), valu("v_mov_b32", "v253", "s78"), pstore(252, idx)]


def a_read(i, dt, ks, t, win):
    p, xy = dt >> 1, dt & 1
    off = U[("W", i, p >> 1)]["addr"] - win + ks * 4096 + t * 512 + xy * 8
    return ds_read("ds_read_b64_tr_b16", ("a", ABUF[dt % 2] + 4 * ks + 2 * t), 2, wA[p & 1], off)


def first_reads(i):
    ax = U[("X", i)]["addr"] - XS[0]

    def A(ks, t):
        return a_read(i, 0, ks, t, WWANT[i])

    def B(qt, ks):
        return ds_read("ds_read_b128", ("a", bx(qt, ks)), 4, xA[ks], ax + qt * 2048)
    return [A(0, 0), A(0, 1), B(0, 0), A(1, 0), A(1, 1), B(0, 1)] + [B(qt, ks) for qt in range(1, 6) for ks in range(2)]


def k_read(t, j):
    kt, ks = j >> 2, j & 3
    return ds_read("ds_read_b128", ("a", kf(kt, ks)), 4, kA[ks], U[("K", t)]["addr"] - KWANT[t] + kt * 4096)


def epilogue_groups(tmp, dst=None, vaddr=None):
    groups = []
    n = 0
    for T in range(3):
        for ph in range(2):
            for qs in range(2):
                for pl in range(2):
                    qt = 2 * T + qs
                    tb = tmp + 4 * (n % 3)
                    src = oacc(qt, 4 * ph + 2 * pl)
                    db = tb if dst is None or dst(n) is None else dst(n)
                    rd = [valu("v_accvgpr_read_b32", f"v{tb + i}", f"a{src + i}") for i in range(8)]
                    mu = [valu("v_mul_f32", f"v{tb + i}", vR[qt], f"v{tb + i}") for i in range(8)]
                    cv = [valu("v_cvt_pk_bf16_f32", f"v{db + i}", f"v{tb + 2 * i}", f"v{tb + 2 * i + 1}") for i in range(4)]
                    pre = [salu("s_add_u32", sE, sO, ph * 12288 + T * 4096)] if qs == 0 and pl == 0 else []
                    imm = qs * 2048 + pl * 1024
                    groups.append((rd + mu + cv, pre, vstore(("v", db), 4, vaddr or vL16, S_OST, sE, imm, tag="ost", flags=SC1), imm))
                    n += 1
    return groups


def conv_items(T, ps, packed=()):
    out = []
    for p in ps:
        for qs in range(2):
            R, Dd = qacc(p, 0, 2 * T + qs), qf(2 * T + qs, p)
            if p in packed:
                out += [(p, qs, valu("v_pk_mul_f32", f"v[{R + x}:{R + x + 1}]", f"v[{R + x}:{R + x + 1}]", "s[86:87]" if False else vC2)) for x in range(0, 8, 2)]
            else:
                out += [(p, qs, valu("v_mul_f32", f"v{R + x}", sC, f"v{R + x}")) for x in range(8)]
            out += [(p, qs, valu("v_cvt_pk_bf16_f32", f"v{Dd + x}", f"v{R + 2 * x}", f"v{R + 2 * x + 1}")) for x in range(4)]
    return out


def q_phase(second):
    S = Sched()
    ww = Win(wA, 0)
    for i in range(10):
        q0 = S.n()
        for dt in range(8):
            for qt in range(6):
                for ks in range(2):
                    acc = ("v", qacc(dt >> 1, dt & 1, qt))
                    S.add(mfma(16, acc, ("a", ABUF[dt % 2] + 4 * ks), ("a", bx(qt, ks)), None if (i == 0 and ks == 0) else acc))
        for dt in range(1, 8):
            gaps = [4, 5, 6, 7] if dt == 1 else [0, 2, 3, 4]
            for n, (ks, t) in enumerate([(0, 0), (0, 1), (1, 0), (1, 1)]):
                S.put(q0 + 12 * (dt - 1) + gaps[n], a_read(i, dt, ks, t, WWANT[i]))
        if i <= 7:
            S.put(q0 + 11, needboth([("W", 0, 1)] if i == 0 else []), barrier())
        S.put(q0 + 83, *bar_seq(tags_for(i), 2 + i))
        if i < 9:
            S.put(q0 + 79, *ww.move(WWANT[i + 1]))
            for n, r in enumerate(first_reads(i + 1)):
                S.put(q0 + 84 + n, r)
        else:
            S.put(q0 + 79, *ww.move(0))
            kw = Win(kA, KWANT[15])
            mv = kw.move(KWANT[0])
            S.put(q0 + 80, *mv[:2])
            S.put(q0 + 82, *mv[2:])
            for j in range(8):
                S.put(q0 + 84 + j, k_read(0, j))
        if i <= 7:
            for n, x in enumerate([salu("s_bfe_u32", sXS, sQT, "0x%x" % (0x40000 + 4 * i)), salu("s_lshl_b32", sWS, sXS, 19),
                                   salu("s_add_u32", sWS, sWS, sWQ), salu("s_lshl_b32", sXS, sXS, 7), salu("s_add_u32", sXS, sXS, sX)]):
                S.put(q0 + 5 + n, x)
        place_dmas(S, epoch_groups(i, second), [q0 + 13 + 4 * x for x in range(18)], q0 + 11)
    for r in range(2):
        q0 = 96 * U[("J", r)]["N"]
        for jj in jblocks(r, second):
            k = jj & 3
            for tt in range(2):
                S.put(q0 + 18 + 12 * k + 2 * tt, ds_read("ds_read_b64_tr_b16", ("a", 4 * k + 2 * tt), 2, vJ, k * 1024 + tt * 8192))
            nq, pair = divmod(2 * jj, 5)
            g = q0 + 69 + 4 * k
            S.put(g - 1, salu("s_add_u32", sJ, sWOX if pair == 4 else sWOD, nq * 1310720 + pair * 4096))
            S.put(g, vstore(("a", 4 * k), 4, vL16, S_WOT, sJ, 0, tag="jst", flags=SC1))
    if OPT["pf"] and not (second and OPT["pfq1"]):
        lds = []
        for name in OPT["pf"].split(","):
            kind, t = name[0], int(name[1:])
            pre = [salu("s_add_u32", "s63", sROT, t * 8192), salu("s_and_b32", "s63", "s63", "0x1ffff"), salu("s_add_u32", "s63", "s63", sKV)]
            for m in range(4):
                l = vload(("v", 252), 4, vL16, S_K if kind == "K" else S_V, "s63", 1024 * m, tag="pf", flags=OPT["pff"])
                l.wr = set()
                lds.append((pre if m == 0 else [], l))
        i, k = OPT["pf0"], 0
        for pre, l in lds:
            g = 96 * i + ([69, 73, 77, 81] if OPT['pfn'] <= 4 else [19, 31, 43, 55, 67, 71, 75, 79])[k]
            while S.fixed.get(g) or (second and False):
                g += 1
            for n, p in enumerate(pre):
                S.put(g - 3 + n, p)
            S.put(g, l)
            k += 1
            if k == OPT["pfn"]:
                k = 0
                i += 1
        assert i <= 10
    if second:
        eg = epilogue_groups(EPI)
        ep = []
        for i in range(8):
            for g in eg[3 * i:3 * i + 3]:
                ep += [(x, 96 * i, None) for x in g[0]]
            for g in eg[3 * i:3 * i + 3]:
                ep += [(x, 96 * i + OPT["stg"], None) for x in g[1] + [g[2]]]
        ep[-1] = (ep[-1][0], ep[-1][1], 96 * 9 - 1)
        S.stream(ep)
        S.put(96 * 9 + 2, salu("s_add_u32", sO, sO, 8 * 12288))
    q0 = 96 * 9
    g = q0 + 43
    for x in ([salu("s_add_u32", sWQ, sWQ, 512)] + set_pf_proj(True) if not second else set_pf_out()):
        S.put(g, *(x if isinstance(x, list) else [x]))
        g += 1 if g < q0 + 94 else 0
        if g == q0 + 83:
            g += 1
    if second:
        S.stream([(valu("v_mov_b32", r, vL16), q0 + 43, None) for r in vW + vX])
    S.put(q0 + 7, valu("v_mov_b32", "v242", sC), valu("v_mov_b32", "v243", sC))
    if OPT["gate"]:
        if second:
            S.put(2, salu("s_mov_b32", sPG, 32))
        for i in (3, 5, 7, 9):
            p = publish(i + 1)
            p[0] = salu("s_add_u32", sJ, sPG, i + 1)
            p[1] = valu("v_mov_b32", vPT, sJ)
            S.put(96 * i + 79, p[0], p[1])
            S.put(96 * i + 82, p[2])
    S.stream([(x, min(q0 + 12 * (2 * p + 1) + 2 * qs + 1 + 2, q0 + 95), None) for p, qs, x in conv_items(0, range(4))])
    S.put(-1, *prof_stamp(1))
    return S.finish(lead=first_reads(0), report=OPT["report"])


vPA, vPV, vPT = "v239", "v240", "v254"
sPG, sGT = "s63", "s67"
GATE_SPINS = []


def publish(n):
    return [salu("s_add_u32", sGT, sPG, n), valu("v_mov_b32", vPT, sGT),
            Ins(f"buffer_store_dword {vPT}, {vPUB}, s[{S_FLG}:{S_FLG + 3}], 0 offen sc1", "vst", rd=[vPT, vPUB] + regs("s", S_FLG, 4), tag="pub")]


def gate_poll():
    return Ins(f"buffer_load_dword {vPV}, {vPA}, s[{S_FLG}:{S_FLG + 3}], 0 offen offset:128 sc1", "vld", rd=[vPA] + regs("s", S_FLG, 4), wr=[vPV])


def gate(n):
    name = f"L_gate{n}"
    GATE_SPINS.extend([label(name), salu("s_mov_b32", sSPIN, 0), label(name + "_loop"), raw("s_sleep 2"), gate_poll(), drain(),
                       salu("s_add_u32", sSPIN, sSPIN, 1), scmp("s_cmp_gt_u32", sSPIN, "0x20000"),
                       raw(f"s_cbranch_scc1 {name}_back", "branch", rd=["scc"]),
                       valu("v_cmp_gt_u32", "vcc", sGT, vPV), nop(4), raw(f"s_cbranch_vccnz {name}_loop", "branch", rd=["vcc"]),
                       raw(f"s_branch {name}_back", "branch")])
    return ([salu("s_add_u32", sGT, sPG, n), valu("v_cmp_gt_u32", "vcc", sGT, vPV)],
            [raw(f"s_cbranch_vccnz {name}", "branch", rd=["vcc"]), label(name + "_back")])


def lspread(qt, tmp):
    l = f"v{lacc(qt)}"
    return [valu("v_mov_b32", tmp, l), perm("v_permlane32_swap_b32", tmp, l), valu("v_add_f32", l, l, tmp),
            valu("v_mov_b32", tmp, l), perm("v_permlane16_swap_b32", tmp, l), valu("v_add_f32", l, l, tmp)]


def interleave(a, b):
    return [x for p in zip(a, b) for x in p]


def lcheck():
    l = [f"v{lacc(qt)}" for qt in range(6)]
    return [valu("v_add_f32", vT[0], l[0], l[1]), valu("v_min3_f32", vT[1], l[0], l[1], l[2]),
            valu("v_add_f32", vT[0], vT[0], l[2]), valu("v_min3_f32", vT[1], vT[1], l[3], l[4]),
            valu("v_add_f32", vT[0], vT[0], l[3]), valu("v_add_f32", vT[0], vT[0], l[4]),
            valu("v_min_f32", vT[1], vT[1], l[5]), valu("v_add_f32", vT[0], vT[0], l[5]),
            valu("v_cmp_nlt_f32", "s[56:57]", sLO, vT[1]),
            valu("v_cmp_ngt_f32", "vcc", sHI, vT[0]),
            salu("s_or_b64", "vcc", "vcc", "s[56:57]")]


def a_phase():
    S = Sched()
    qk = [[0] * 3 for _ in range(16)]
    pv = [[0] * 3 for _ in range(16)]

    def QK(t, T):
        qk[t][T] = S.n()
        for qs in range(2):
            for kt in range(2):
                s = ("v", sreg(2 * T + qs) + 4 * kt)
                for ks in range(4):
                    S.add(mfma(16, s, ("a", kf(kt, ks)), ("v", qf(2 * T + qs, ks)), None if ks == 0 else s))

    def PV(t, T):
        pv[t][T] = S.n()
        sums = []
        for qs in range(2):
            l = ("v", lacc(2 * T + qs))
            sums.append(mfma(16, l, ("v", ONES), ("v", sreg(2 * T + qs)), None if t == 0 else l))
        if t == 15:
            for m in sums:
                S.add(m)
        for dt in range(8):
            for qs in range(2):
                o = ("a", oacc(2 * T + qs, dt))
                S.add(mfma(16, o, ("a", vf(dt)), ("v", sreg(2 * T + qs)), None if t == 0 else o))
        if t < 15:
            for m in sums:
                S.add(m)

    for t in range(16):
        QK(t, 0)
        if t:
            PV(t - 1, 1)
        QK(t, 1)
        if t:
            PV(t - 1, 2)
        QK(t, 2)
        PV(t, 0)
    PV(15, 1)
    PV(15, 2)
    bar = {}
    kw, vw = Win(kA, KWANT[0]), Win(vA, VWANT[0])
    for t in range(16):
        g0 = pv[t - 1][2] if t else qk[0][1]
        bar[10 + t] = g0 - 1
        S.put(g0 - 1, *bar_seq(tags_for(10 + t), 12 + t))
        for n, m in enumerate(vw.move(VWANT[t])):
            S.put(g0 - 14 + 3 * (n // 2), m)
        for dt in range(8):
            for tt in range(2):
                S.put(g0 + 4 * dt + 1 + 2 * tt,
                      ds_read("ds_read_b64_tr_b16", ("a", vf(dt) + 2 * tt), 2, vA[dt], U[("V", t)]["addr"] - VWANT[t] + tt * 4096))
        if t < 15:
            for n, m in enumerate(kw.move(KWANT[t + 1])):
                S.put((qk[t][0] + 9 if t else qk[0][2] + 2) + (3 if t else 2) * (n // 2), m)
            for j in range(8):
                S.put(qk[t][2] + [8, 10, 12, 14, 17, 19, 21, 23][j], k_read(t + 1, j))
    S.stream([(m, pv[15][0], None) for m in vw.move(VWANT[0])])
    bar[26] = pv[15][1] - 1
    S.put(bar[26], *bar_seq(tags_for(26), 28))
    fr = first_reads(0)
    for n, r in enumerate(fr[:10]):
        S.put(pv[15][1] + [1, 3, 5, 7, 9, 11, 13, 15, 16, 17][n], r)
    for n, r in enumerate(fr[10:]):
        S.put(pv[15][2] + 3 + 2 * n, r)
    for n in range(10, 27):
        groups = epoch_groups(n)
        nd = sum(len(g[1]) for g in groups)
        if n == 10:
            cand = [2 * x for x in range(8)]
            lo = -1
        else:
            lo = bar[n - 1] + 1
            if n == 11 or n == 26 or OPT["uni"]:
                a = lo + 5
            else:
                a = qk[n - 10][0] + 1 if nd <= 8 else pv[n - 11][0] + 6
            b = bar[n] - 1
            cand = []
            for x in range(nd):
                g = a + (b - a) * x // nd
                while any(i.kind in MEMK for i in S.fixed.get(g, [])) or g in cand:
                    g += 1
                cand.append(g)
            assert not cand or cand[-1] < bar[n]
        place_dmas(S, groups, cand, lo)
    if OPT["xpace"]:
        for t in range(1, 14):
            for T in range(3):
                S.put(pv[t][T] + 17, nop(OPT["xpace"]))
                S.put(qk[t][T] + 15, nop(OPT["xpace"]))
    S.put(pv[15][0] + 2, salu("s_add_u32", sKV, sKV, 262144))
    g = bar[OPT["flagbar"]] + 2
    S.put(g, valu("v_mov_b32", f"v{EPI}", "0x10000"), valu("v_mov_b32", f"v{EPI + 1}", sIT))
    S.put(g + 4, atomic_add(f"v{EPI}", sFB))
    S.put(g + 8, atomic_add(f"v{EPI + 1}", sFG))
    g = qk[12][0]
    S.put(g + 1, scmp("s_cmp_eq_u32", sIT, 1), salu("s_cselect_b32", sE, sFB, "0x1000"))
    S.put(g + 3, poll_load(vPOLL[1], sE))
    g = qk[13][0]
    S.put(g + 1, salu("s_lshl_b32", sWANT, sIT, 24), valu("v_readfirstlane_b32", sQ, vPOLL[1]))
    S.put(g + 4, scmp("s_cmp_lt_u32", sQ, sWANT), raw("s_cbranch_scc1 L_spin3", "branch", rd=["scc"]), label("L_spin3_back"))
    g = qk[15][1]
    S.put(g + 1, scmp("s_cmp_eq_u32", sIT, 1), salu("s_cselect_b32", sE, sFG, "0x1000"))
    S.put(g + 3, poll_load(vPOLL[0], sE))
    if OPT["codepf2"]:
        g = qk[OPT["codepf2"]][0] - 6
        S.put(g - 2, salu("s_mul_i32", sJ, sIT, "L_out-L_q2"))
        S.put(g - 1, salu("s_add_u32", sJ, sJ, "L_q2-L_pc"))
        S.put(g, salu("s_add_u32", sJ, sJ, sCP))
        S.put(g + 1, salu("s_min_u32", sJ, sJ, "L_endcode-L_pc-256"))
        S.put(g + 2, valu("v_and_b32", f"v{EPI + 2}", 16, vL16), valu("v_lshlrev_b32", f"v{EPI + 2}", 3, f"v{EPI + 2}"))
        S.put(g + 3, valu("v_add_u32", f"v{EPI + 2}", sJ, f"v{EPI + 2}"))
        S.put(g + 5, Ins(f"global_load_dword v{EPI + 3}, v{EPI + 2}, s[96:97]", "vld", rd=[f"v{EPI + 2}", "s96", "s97"], wr=[f"v{EPI + 3}"]))
    if OPT["gate"]:
        def free(g):
            while S.fixed.get(g) or S.fixed.get(g - 1):
                g += 1
            return g
        S.put(qk[0][2] + 1, valu("v_lshrrev_b32", vPA, 2, vL16), valu("v_and_b32", vPA, 28, vPA))
        for n in range(11, 24, OPT["gstep"]):
            p = publish(n)
            g = free(bar[n] + 2)
            S.put(g - 1, p[0], p[1])
            S.put(free(g + 2), p[2])
            S.put(free(bar[n] + 60), gate_poll())
            a, b = gate(n + 1 - OPT["gate"])
            g = free(bar[n + 1] + 20)
            S.put(g, *a)
            S.put(g + 2, *b)
    for T in (1, 2):
        if OPT["pk"]:
            nfree = 1 if T == 1 else 0
            S.stream([(x, -1, None) for p, qs, x in conv_items(T, range(nfree))] +
                     [(x, qk[0][T] - 1, qk[0][T] - 1) for p, qs, x in conv_items(T, range(nfree, 4), packed=range(4))])
        else:
            c = [(x, -1, None) for p, qs, x in conv_items(T, range(4))]
            c[-1] = (c[-1][0], -1, qk[0][T] - 1)
            S.stream(c)
    fin = []
    if OPT["one1"]:
        for T in range(3):
            fin += [(x, [pv[15][1] + 12, pv[15][2], pv[15][2] + 4][T], None) for x in interleave(lspread(2 * T, f"v{lacc(2 * T) + 1}"), lspread(2 * T + 1, f"v{lacc(2 * T + 1) + 1}"))]
    S.stream(fin + [(x, pv[15][2] + 4, None) for x in lcheck()])
    units = []
    for t in range(16):
        for qt in range(6):
            s = sreg(qt)
            T, qs = qt >> 1, qt & 1
            dl = pv[t][T] + qs - 2
            units.append(dict(e=qk[t][T] + 8 * qs + 7 + 2,
                              exps=[valu("v_exp_f32", f"v{s + r}", f"v{s + r}") for r in range(8)],
                              cvts=[(valu("v_cvt_pk_bf16_f32", f"v{s + r}", f"v{s + 2 * r}", f"v{s + 2 * r + 1}"), 2 * r + 2, dl) for r in range(4)]))
    S.packers.append(SoftmaxPacker(units))
    return S.finish(lead=[k_read(0, j) for j in range(8)], report=OPT["report"])


def slow_path():
    o = [label("L_slow"), drain(), nop(16)]
    KF = [EPI + 4 * k for k in range(4)]
    VFR = 56
    vM = [f"v{120 + q}" for q in range(6)]
    vKo, vVo, vt, vu = "v60", "v61", "v62", "v63"
    o += [valu("v_lshrrev_b32", vt, 4, vL16), valu("v_and_b32", vu, 15, vt), valu("v_lshrrev_b32", vt, 4, vt),
          valu("v_lshlrev_b32", vKo, 8, vu), valu("v_lshl_add_u32", vKo, vt, 4, vKo),
          valu("v_lshlrev_b32", vVo, 10, vt), valu("v_lshl_add_u32", vVo, vu, 1, vVo)]
    o += [salu("s_sub_u32", "s58", sKV, 262144)]
    o += [valu("v_mov_b32", m, "0xff800000") for m in vM]

    def scores():
        r = []
        for kt in range(2):
            r += [salu("s_add_u32", "s61", "s59", kt * 4096)]
            r += [vload(("v", KF[ks]), 4, vKo, S_K, "s61", 64 * ks) for ks in range(4)] + [drain()]
            for qt in range(6):
                s = ("v", sreg(qt) + 4 * kt)
                r += [mfma(16, s, ("v", KF[ks]), ("v", qf(qt, ks)), None if ks == 0 else s) for ks in range(4)]
            r += [nop(16)]
        return r
    o += [salu("s_mov_b32", "s59", "s58"), salu("s_mov_b32", "s60", 16), label("L_slow1")] + scores()
    for qt in range(6):
        o += [valu("v_max3_f32", vM[qt], vM[qt], f"v{sreg(qt) + r}", f"v{sreg(qt) + r + 1}") for r in range(0, 8, 2)]
    o += [salu("s_add_u32", "s59", "s59", 8192), salu("s_sub_u32", "s60", "s60", 1), scmp("s_cmp_lg_u32", "s60", 0),
          raw("s_cbranch_scc1 L_slow1", "branch", rd=["scc"])]
    for qt in range(6):
        for op in ("v_permlane32_swap_b32", "v_permlane16_swap_b32"):
            o += [valu("v_mov_b32", vt, vM[qt]), nop(2), perm(op, vt, vM[qt]), valu("v_max_f32", vM[qt], vM[qt], vt)]
        o += [valu("v_mov_b32", f"v{lacc(qt) + r}", 0) for r in range(4)]
    o += [valu("v_accvgpr_write_b32", f"a{r}", 0) for r in range(192)]
    o += [salu("s_mov_b32", "s59", "s58"), salu("s_mov_b32", "s60", 16), label("L_slow2")] + scores()
    for qt in range(6):
        s = sreg(qt)
        o += [valu("v_sub_f32", f"v{s + r}", f"v{s + r}", vM[qt]) for r in range(8)]
        o += [valu("v_exp_f32", f"v{s + r}", f"v{s + r}") for r in range(8)]
        o += [valu("v_cvt_pk_bf16_f32", f"v{s + r}", f"v{s + 2 * r}", f"v{s + 2 * r + 1}") for r in range(4)]
    o += [salu("s_add_u32", "s57", "s59", 4096)]
    for dt in range(8):
        for j in range(8):
            o += [vload(("v", 184 + j), 1, vVo, S_V, "s57" if j >= 4 else "s59", (j & 3) * 256 + 32 * dt, op="buffer_load_ushort")]
        o += [drain()]
        o += [valu("v_lshl_or_b32", f"v{VFR + r}", f"v{185 + 2 * r}", 16, f"v{184 + 2 * r}") for r in range(4)]
        o += [mfma(16, ("a", oacc(qt, dt)), ("v", VFR), ("v", sreg(qt)), ("a", oacc(qt, dt))) for qt in range(6)]
        o += [nop(8)]
    o += [mfma(16, ("v", lacc(qt)), ("v", ONES), ("v", sreg(qt)), ("v", lacc(qt))) for qt in range(6)] + [nop(16)]
    o += [salu("s_add_u32", "s59", "s59", 8192), salu("s_sub_u32", "s60", "s60", 1), scmp("s_cmp_lg_u32", "s60", 0),
          raw("s_cbranch_scc1 L_slow2", "branch", rd=["scc"])]
    o += [nop(16)]
    if OPT["one1"]:
        for qt in range(6):
            o += lspread(qt, vt)
    o += [drain(), raw("s_branch L_back", "branch")]
    return o


def srd(base, lo, hi, nbytes):
    return [salu("s_mov_b32", f"s{base}", lo), salu("s_and_b32", f"s{base + 1}", hi, "0xffff"),
            salu("s_mov_b32", f"s{base + 2}", nbytes), salu("s_mov_b32", f"s{base + 3}", "0x20000")]


def decode_wg():
    return [salu("s_and_b32", "s3", "s2", 7), salu("s_lshr_b32", "s4", "s2", 6), salu("s_lshl_b32", "s3", "s3", 2),
            salu("s_add_u32", "s3", "s3", "s4"), salu("s_lshr_b32", "s4", "s2", 3), salu("s_and_b32", "s4", "s4", 7),
            salu("s_lshr_b32", "s5", "s3", 4), salu("s_and_b32", "s6", "s3", 15)]


def code_touch():
    return [salu("s_lshr_b32", "s68", "s2", 3), salu("s_lshl_b32", "s68", "s68", 11),
            valu("v_lshrrev_b32", "v11", 6, "v0"), valu("v_and_b32", "v12", 3, "v0"), valu("v_lshlrev_b32", "v11", 9, "v11"),
            valu("v_lshl_add_u32", "v11", "v12", 7, "v11"), valu("v_add_u32", "v11", "s68", "v11"),
            Ins("global_load_dword v253, v11, s[96:97]", "vld", rd=["v11", "s96", "s97"], wr=["v253"])]


def prologue():
    o = [scmp("s_cmp_ge_u32", "s2", 256), raw("s_cbranch_scc1 L_end", "branch", rd=["scc"])]
    o += [raw("s_getpc_b64 s[96:97]", wr=["s96", "s97"]), label("L_pc")]
    if OPT["codepf"] == 2:
        o += code_touch()
    o += decode_wg()
    o += [salu("s_mul_i32", "s7", "s5", 40), salu("s_add_u32", "s68", "s0", "s7"), salu("s_addc_u32", "s69", "s1", 0),
          raw("s_load_dwordx8 s[56:63], s[68:69], 0", wr=regs("s", 56, 8)),
          raw("s_load_dwordx2 s[94:95], s[68:69], 32", wr=["s94", "s95"]),
          raw("s_load_dwordx4 s[88:91], s[0:1], 88", wr=regs("s", 88, 4)),
          raw("s_load_dwordx2 s[92:93], s[0:1], 80", wr=["s92", "s93"])]
    i, a, b, c = "v1", "v2", "v3", "v4"
    o += [valu("v_lshrrev_b32", a, 6, "v0"), valu("v_and_b32", i, 63, "v0"),
          valu("v_readfirstlane_b32", sWAVE, a), valu("v_lshlrev_b32", vL16, 4, i)]
    o += [valu("v_lshrrev_b32", a, 4, i), valu("v_and_b32", b, 7, i), valu("v_lshrrev_b32", "v5", 3, i),
          valu("v_and_b32", c, 1, a), valu("v_lshlrev_b32", c, 1, c), valu("v_xor_b32", c, c, b), valu("v_lshlrev_b32", c, 4, c),
          valu("v_lshl_add_u32", vW[0], "v5", 13, c),
          valu("v_xor_b32", vW[1], 64, vW[0]), valu("v_add_u32", vW[1], 64512, vW[1]),
          valu("v_add_u32", vW[2], 2 * 64512, vW[0]), valu("v_add_u32", vW[3], 2 * 64512, vW[1])]
    o += [valu("v_xor_b32", c, a, b), valu("v_lshlrev_b32", c, 4, c), valu("v_mul_u32_u24", "v6", 1280, "v5"),
          valu("v_add_u32", vX[0], "v6", c),
          valu("v_xor_b32", vX[1], 64, vX[0]), valu("v_add_u32", vX[1], 9216, vX[1]),
          valu("v_add_u32", vX[2], 2 * 9216, vX[0]), valu("v_add_u32", vX[3], 2 * 9216, vX[1])]
    o += [salu("s_lshr_b32", "s70", sWAVE, 1), salu("s_and_b32", "s71", sWAVE, 1),
          salu("s_lshl_b32", sW4K, sWAVE, 12), salu("s_mul_i32", sW6K, sWAVE, 6144),
          salu("s_lshl_b32", "s7", "s4", 2), salu("s_add_u32", "s7", "s7", "s70"),
          salu("s_lshl_b32", sWQ, "s71", 18), salu("s_lshl_b32", sT0, "s7", 8), salu("s_add_u32", sWQ, sWQ, sT0),
          salu("s_mul_i32", sX, "s6", 245760), salu("s_mul_i32", sT0, sWAVE, 61440), salu("s_add_u32", sX, sX, sT0)]
    o += [raw("s_waitcnt lgkmcnt(0)", "drainlg")]
    o += srd(S_X, "s56", "s57", 3932160) + srd(S_WQ, "s62", "s63", 5242880)
    o += set_pf_proj()
    for k in [("W", 0, 0), ("X", 0), ("W", 0, 1), ("W", 1, 0), ("X", 1), ("W", 1, 1)]:
        for pre, ds in unit_dmas(k):
            o += pre[::-1] + ds
    if OPT["warmw"]:
        o += [salu("s_mul_i32", "s68", "s6", 40 * 8192), salu("s_lshl_b32", "s69", "s4", 10), salu("s_add_u32", "s68", "s68", "s69"),
              salu("s_mul_i32", "s69", sWAVE, 10 * 8192), salu("s_add_u32", "s68", "s68", "s69"),
              valu("v_lshlrev_b32", b, 7, b), valu("v_lshl_add_u32", "v6", "v5", 13, b), valu("v_and_b32", c, 1, "v5"),
              valu("v_lshl_add_u32", c, c, 13, b), salu("s_add_u32", "s69", "s68", 8 * 8192)]
        o += [vload(("v", 254), 1, "v6", S_WQ, "s68", 0), vload(("v", 255), 1, c, S_WQ, "s69", 0)]
    o += [salu("s_lshr_b32", "s68", "s2", 3), salu("s_lshl_b32", "s68", "s68", 2), salu("s_add_u32", "s68", "s68", sWAVE), salu("s_lshl_b32", sCP, "s68", 8)]
    if OPT["codepf"] == 1:
        o += code_touch()
    o += srd(S_WO, "s94", "s95", 5242880)
    o += [salu("s_lshl_b32", "s68", "s6", 3), salu("s_add_u32", "s68", "s68", "s4"),
          salu("s_mul_i32", sWOS, "s68", 40960), salu("s_mul_i32", sT0, sWAVE, 10240), salu("s_add_u32", sWOS, sWOS, sT0)]
    for pre, ds in unit_dmas(("J", 0)):
        o += pre[::-1] + ds
    if OPT["warmj"]:
        o += [valu("v_lshrrev_b32", c, 3, i), valu("v_mul_u32_u24", c, 1280, c), valu("v_and_b32", "v6", 7, i), valu("v_min_u32", "v6", 5, "v6"),
              valu("v_lshl_add_u32", c, "v6", 7, c), vload(("v", 252), 1, c, S_WO, sWOS, 512)]
    o += srd(S_K, "s58", "s59", 67108864) + srd(S_V, "s60", "s61", 67108864)
    o += srd(S_OST, "s90", "s91", WS_WOT) + srd(S_FLG, "s88", "s89", 256)
    o += [salu("s_add_u32", "s68", "s90", WS_WOT), salu("s_addc_u32", "s69", "s91", 0)] + srd(S_WOT, "s68", "s69", 2 * WOT_BLK)
    o += [salu("s_lshl_b32", sFG, "s3", 2), salu("s_lshl_b32", sFB, "s5", 6),
          valu("v_cmp_eq_u32", "vcc", 0, "v0"), valu("v_mov_b32", "v10", "0x1000"), valu("v_mov_b32", f"v{ONES}", "0x3f803f80"),
          valu("v_cndmask_b32", vFLG, "v10", 0, "vcc"),
          salu("s_and_b32", "s68", "s2", 7), salu("s_lshl_b32", "s68", "s68", 2), salu("s_add_u32", "s68", "s68", 128),
          scmp("s_cmp_lt_u32", "s2", 8), salu("s_cselect_b32", "s68", "s68", "0x1000"), valu("v_add_u32", vPUB, "s68", vFLG),
          salu("s_mov_b32", sPG, 0)]
    if OPT["one1"]:
        o += [valu("v_and_b32", "v10", 15, "v0"), valu("v_cmp_eq_u32", "vcc", 0, "v10"), valu("v_cndmask_b32", f"v{ONES}", 0, f"v{ONES}", "vcc")]
    o += [valu("v_mov_b32", f"v{ONES + r}", f"v{ONES}") for r in range(1, 4)]
    if OPT["prof"]:
        o += [salu("s_add_u32", "s68", "s90", WS_PROF), salu("s_addc_u32", "s69", "s91", 0)] + srd(S_PROF, "s68", "s69", 1 << 20)
        o += [salu("s_lshl_b32", sPROF, "s2", 2), salu("s_add_u32", sPROF, sPROF, sWAVE), salu("s_lshl_b32", sPROF, sPROF, 10)]
        o += prof_stamp(0, 8)
    o += [salu("s_lshl_b32", sKV, "s6", 5), salu("s_add_u32", sKV, sKV, "s7"), salu("s_lshl_b32", sKV, sKV, 17),
          salu("s_lshl_b32", sT0, "s71", 12),
          salu("s_lshr_b32", sROT, "s2", 3), salu("s_lshl_b32", sT1, "s2", 1), salu("s_add_u32", sROT, sROT, sT1),
          salu("s_and_b32", sROT, sROT, 0 if OPT["norot"] else 15), salu("s_lshl_b32", sROT, sROT, 13), salu("s_add_u32", sROT, sROT, sT0)]
    o += [salu("s_mul_i32", sO, "s3", O_GRP), salu("s_mul_i32", sT0, "s71", 786432), salu("s_add_u32", sO, sO, sT0),
          salu("s_lshr_b32", sT0, "s4", 1), salu("s_mul_i32", sT0, sT0, 16 * 12288), salu("s_add_u32", sO, sO, sT0),
          salu("s_and_b32", sT0, "s4", 1), salu("s_mul_i32", sT0, sT0, 4 * 12288), salu("s_add_u32", sO, sO, sT0),
          salu("s_mul_i32", sT0, "s70", 2 * 12288), salu("s_add_u32", sO, sO, sT0)]
    o += [salu("s_lshl_b32", "s68", "s6", 3), salu("s_add_u32", "s68", "s68", "s4"),
          salu("s_lshr_b32", sT0, "s68", 1), salu("s_and_b32", sT1, sT0, "0x33"),
          salu("s_and_b32", "s69", sT0, 4), salu("s_lshl_b32", "s69", "s69", 1), salu("s_or_b32", sT1, sT1, "s69"),
          salu("s_and_b32", "s69", sT0, 8), salu("s_lshr_b32", "s69", "s69", 1), salu("s_or_b32", sT1, sT1, "s69"),
          salu("s_mul_i32", sWOD, sT1, 20480),
          salu("s_and_b32", sT0, "s68", 1), salu("s_lshl_b32", sT0, sT0, 11), salu("s_add_u32", sWOD, sWOD, sT0),
          salu("s_mul_i32", sT0, "s5", WOT_BLK), salu("s_add_u32", sWOD, sWOD, sT0),
          salu("s_lshl_b32", sT0, "s70", 12), salu("s_add_u32", sWOD, sWOD, sT0),
          salu("s_lshl_b32", sT0, "s71", 10), salu("s_add_u32", sWOD, sWOD, sT0),
          salu("s_mul_i32", sT0, "s70", 1310720 - 20480), salu("s_add_u32", sWOX, sWOD, sT0)]
    o += [salu("s_add_u32", "s68", "s3", "s4"), salu("s_and_b32", "s68", "s68", 3), salu("s_mov_b32", sQT, "0x%x" % TBLQ[0])]
    for r in range(1, 4):
        o += [scmp("s_cmp_eq_u32", "s68", r), salu("s_cselect_b32", sQT, "0x%x" % TBLQ[r], sQT)]
    cbits = struct.unpack("<I", struct.pack("<f", math.log2(math.e) / math.sqrt(128.0)))[0]
    o += [salu("s_mov_b32", sC, "0x%x" % cbits), salu("s_mov_b32", sHI, "0x4e800000"), salu("s_mov_b32", sLO, "0x30800000"),
          salu("s_mov_b32", sIT, 0)]
    o += [valu("v_lshrrev_b32", a, 4, i), valu("v_and_b32", b, 15, i),
          valu("v_xor_b32", c, a, b), valu("v_lshlrev_b32", c, 4, c), valu("v_lshl_add_u32", vK[0], a, 8, c)]
    o += [valu("v_xor_b32", vK[m], m << 6, vK[0]) for m in range(1, 4)]
    o += [valu("v_lshlrev_b32", "v5", 1, a), valu("v_xor_b32", "v5", "v5", b), valu("v_lshlrev_b32", "v5", 4, "v5"),
          valu("v_lshl_add_u32", vV[0], a, 8, "v5"), valu("v_xor_b32", vV[1], 128, vV[0])]
    o += [salu("s_lshl_b32", "s69", "s70", 13), salu("s_mul_i32", "s68", "s71", 12288), salu("s_add_u32", "s68", "s68", XS[0]),
          valu("v_bfe_u32", "v8", i, 2, 2), valu("v_and_b32", "v9", 3, i)]
    o += [valu("v_lshl_add_u32", c, b, 8, c), valu("v_add_u32", c, KWANT[15], c), valu("v_add_u32", kA[0], "s69", c)]
    o += [valu("v_xor_b32", kA[j], j << 6, kA[0]) for j in range(1, 4)]
    o += [valu("v_lshl_add_u32", "v5", a, 2, "v8"), valu("v_lshlrev_b32", c, 8, "v5"), valu("v_and_b32", "v6", 7, "v5"),
          valu("v_lshl_add_u32", c, "v6", 5, c), valu("v_lshl_add_u32", c, "v9", 3, c),
          valu("v_add_u32", c, VWANT[0], c), valu("v_add_u32", vA[0], "s69", c)]
    o += [valu("v_xor_b32", vA[d], d << 5, vA[0]) for d in range(1, 8)]
    o += [valu("v_lshl_add_u32", c, a, 3, "v8"), valu("v_lshlrev_b32", c, 7, c),
          valu("v_and_b32", "v5", 2, "v8"), valu("v_and_b32", "v7", 1, a), valu("v_lshl_add_u32", "v5", "v7", 2, "v5"),
          valu("v_xor_b32", "v5", "v5", "v9"), valu("v_lshl_add_u32", c, "v5", 4, c), valu("v_add_u32", wA[0], "s69", c),
          valu("v_xor_b32", wA[1], 64, wA[0])]
    o += [valu("v_lshrrev_b32", "v5", 1, b), valu("v_xor_b32", "v5", "v5", a),
          valu("v_lshlrev_b32", "v5", 4, "v5"), valu("v_lshl_add_u32", c, b, 7, "v5"),
          valu("v_xor_b32", "v5", 64, c), valu("v_add_u32", xA[0], "s68", c), valu("v_add_u32", xA[1], "s68", "v5")]
    o += [salu("s_lshl_b32", "s68", "s70", 2), salu("s_lshl_b32", "s69", "s71", 3), salu("s_add_u32", "s69", "s69", WOJ_ADDR),
          valu("v_lshrrev_b32", c, 1, a), valu("v_lshlrev_b32", c, 12, c), valu("v_lshl_add_u32", c, "v6", 7, c),
          valu("v_add_u32", c, "s69", c), valu("v_add_u32", "v5", "s68", "v9"), valu("v_lshrrev_b32", "v6", 1, "v6"),
          valu("v_xor_b32", "v5", "v5", "v6"), valu("v_lshl_add_u32", vJ, "v5", 4, c)]
    o += [needvm([("W", 0, 0), ("X", 0)] if OPT["early"] else [k for k, u in U.items() if u["N"] == 0]), barrier()] + first_reads(0)
    return o


def acc2(pi, xy, qi):
    return ((pi * 6 + qi) * 2 + xy) * 4


def a2(st, pi, ks, xy):
    if st == 0:
        return (240 if pi == 0 else 48 + 16 * pi) + 8 * ks + 4 * xy
    return (48 if pi == 0 else 112 + 16 * pi) + 8 * ks + 4 * xy


def b2(st, qi, ks):
    return (192 if st == 0 else 0) + 8 * qi + 4 * ks


V2A = ["v%d" % i for i in range(240, 245)]
V2B = ["v245", "v246", "v247", "v248", "v249", "v253"]
V2L, V2W, V2P, V2X = "v252", "v254", "v255", "v251"
S2A, S2B, S2OUT = S_WQ, 12, 8
TA, TB, sAB, sBB = 56, 62, "s43", "s44"


def k2_loads_A(st, pi, soff=None):
    return [vload(("a", a2(st, pi, ks, xy)), 4, V2A[pi], S2A, soff or sA2, ks * 2048 + xy * 1024, flags=SC1) for xy in range(2) for ks in range(2)]


def k2_loads_B(st, qi):
    return [vload(("a", b2(st, qi, ks)), 4, V2B[qi], S2B, sB2, ks * 1024, flags=SC1) for ks in range(2)]


def k2_lds_A(st, pi):
    out = []
    for xy in range(2):
        for ks in range(2):
            r = [r for r, (s_, p_, off) in PF2.items() if (s_, p_) == (st, pi) and (r not in ("s87", "s99") or off == 2048 * ks)][0]
            key = [k for k, rs in sPF.items() if r in rs][0]
            if key[0] == "W":
                out.append(ds_read("ds_read_b128", ("a", a2(st, pi, ks, xy)), 4, V2W, U[key]["addr"] + ks * 2048 + xy * 1024))
            elif key[0] == "P":
                out.append(ds_read("ds_read_b128", ("a", a2(st, pi, ks, xy)), 4, V2P, ks * 2048 + xy * 1024))
            elif r == sPF[key][0]:
                out.append(ds_read("ds_read_b128", ("a", a2(st, pi, ks, xy)), 4, V2X, U[key]["addr"] - XS[0] + ks * 2048 + xy * 1024))
            else:
                out.append(ds_read("ds_read_b128", ("a", a2(st, pi, ks, xy)), 4, V2X, U[key]["addr"] - XS[0] + 4096 + xy * 1024))
    return out


def k2_steps(S, first, loadA, loadB, pend, check=False, late=(), final=None):
    for st in range(2):
        q0 = S.n()
        tiles = [(pi, xy, qi) for pi in range(5) for xy in range(2) for qi in range(6)]
        if final is not None and st == 1:
            tiles = [t for t in tiles if t[2] >= 3] + [t for t in tiles if t[2] < 3]
            for n, x in enumerate(final[0]):
                S.put(q0 + 2 + n, x)
            for n, x in enumerate(final[1]):
                S.put(q0 + 61 + 2 * n, x)
        for pi, xy, qi in tiles:
            for ks in range(2):
                acc = ("v", acc2(pi, xy, qi))
                S.add(mfma(16, acc, ("a", a2(st, pi, ks, xy)), ("a", b2(st, qi, ks)),
                           None if (first and st == 0 and ks == 0) else acc))
        pos = [int(0.5 + 3.75 * n) for n in range(32)]
        if pend[st]:
            ls = k2_loads_A(1 - st, 4)
            S.put(q0 + pos[0], ls[2])
            S.put(q0 + pos[1], ls[3])
            for n, x in enumerate(next_off(sA2, TA, sAB, 20480)):
                S.put(q0 + pos[1] + 1 + n, x)
        if first and st == 0:
            for n, (pre, l) in enumerate(late):
                S.put(q0 + 6 * n + 2, *pre)
                S.put(q0 + 6 * n + 3, l)
            for n, r in enumerate(k2_lds_A(1, 0) + k2_lds_A(1, 1) + k2_lds_A(1, 2)):
                S.put(q0 + 6 * n + 5 if n < 8 else q0 + 54 + 4 * (n - 8), r)
            S.put(q0 + 70, valu("v_add_u32", V2P, D[9] - D[5], V2P))
            for n, r in enumerate(k2_lds_A(1, 3)):
                S.put(q0 + 73 + 4 * n, r)
        elif loadB[st]:
            for n, l in enumerate([l for qi in range(6) for l in k2_loads_B(1 - st, qi)]):
                S.put(q0 + pos[2 + n], l)
            for n, x in enumerate(next_off(sB2, TB, sBB, 12288)):
                S.put(q0 + pos[13] + 1 + n, x)
        if loadA[st]:
            n = 14
            for pi in range(5):
                ls = k2_loads_A(st, pi)
                for x, l in enumerate(ls if pi < 4 else ls[:2]):
                    assert pos[n] >= 24 * pi + 11 + 12 * (x >> 1), (pi, x, pos[n])
                    S.put(q0 + pos[n], l)
                    n += 1
        if first and st == 1:
            S.put(q0 + 110, needvm(["ost"]), barrier())
            S.put(q0 + 111, valu("v_mov_b32", V2P, "0x100"))
            S.put(q0 + 114, atomic_add(V2P, sFG))
        if check and st == 1:
            S.put(q0 + 1, scmp("s_cmp_eq_u32", sCNT, 5), salu("s_cselect_b32", sWANT, 8, 0), salu("s_cselect_b32", sPL, sFG, "0x1000"))
            S.put(q0 + 2, poll_load(V2P, sPL))
        if check and st == 0:
            S.put(q0 + 1, valu("v_readfirstlane_b32", sQ, V2P))
            S.put(q0 + 6, salu("s_bfe_u32", sQ, sQ, "0x80008"), scmp("s_cmp_lt_u32", sQ, sWANT),
                  raw("s_cbranch_scc1 L_spin2", "branch", rd=["scc"]), label("L_spin2_back"))


def k2_first(S, late):
    seq = [(0, p) for p in range(4)] + [(1, p) for p in range(3)] + [(0, 4), (1, 3), (1, 4)]
    at = {}
    for st, pi in seq:
        at[(st, pi)] = S.n()
        for xy in range(2):
            for qi in range(6):
                for ks in range(2):
                    acc = ("v", acc2(pi, xy, qi))
                    S.add(mfma(16, acc, ("a", a2(st, pi, ks, xy)), ("a", b2(st, qi, ks)), None if (st == 0 and ks == 0) else acc))
    for n, (pre, l) in enumerate(late):
        S.put(13 * n + 2, *pre)
        S.put(13 * n + 3, l)
    assert 13 * len(late) < at[(0, 4)]
    g = 5
    for pi in range(4):
        if pi == 3:
            S.put(g, valu("v_add_u32", V2P, D[9] - D[5], V2P))
            g += 2
        for r in k2_lds_A(1, pi):
            while S.fixed.get(g):
                g += 1
            S.put(g, r)
            g += 4
    items = []
    for pi in range(5):
        for x, l in enumerate(k2_loads_A(0, pi, sSO)):
            items.append((l, at[(0, pi)] + 11 + 12 * (x >> 1), 240 + 24 * pi + 12 * (x >> 1)))
        for x, l in enumerate(k2_loads_A(1, pi)[:4 if pi < 4 else 2]):
            items.append((l, at[(1, pi)] + 11 + 12 * (x >> 1), 360 + 24 * pi + 12 * (x >> 1)))
    for qi in range(6):
        for ks, l in enumerate(k2_loads_B(0, qi)):
            items.append((l, at[(0, 4)] + 12 + 2 * qi + ks, 200 + 2 * qi + ks))
    items.sort(key=lambda i: i[2])
    g, lastB = 11, 0
    while items:
        c = [i for i in items if i[1] <= g]
        if c and not any(S.fixed.get(k) and any(j.kind in ("vld", "vst") for j in S.fixed[k]) for k in ((g - 2, g - 1, g + 1) if g < 180 else (g - 1, g + 1))) and not S.fixed.get(g):
            S.put(g, c[0][0])
            if sB2 in c[0][0].rd:
                lastB = g
            items.remove(c[0])
        g += 1
        assert g < 240, items
    for n, x in enumerate(next_off(sB2, TB, sBB, 12288)):
        S.put(lastB + 1 + n, x)
    g = 226
    while S.fixed.get(g) or S.fixed.get(g + 1) or S.fixed.get(g + 3):
        g += 1
    S.put(g, needvm(["ost"]), barrier())
    S.put(g + 1, valu("v_mov_b32", V2P, "0x100"))
    S.put(g + 3, atomic_add(V2P, sFG))


def spin(name, back, dsts, soffs, conds):
    o = [label(name), salu("s_mov_b32", sSPIN, 0), label(name + "_loop"), raw("s_sleep 8")]
    o += [poll_load(d, so) for d, so in zip(dsts, soffs)]
    o += [drain(), salu("s_add_u32", sSPIN, sSPIN, 1), scmp("s_cmp_gt_u32", sSPIN, "0x20000"),
          raw(f"s_cbranch_scc1 {back}", "branch", rd=["scc"])]
    for d, (sh, msk, want) in zip(dsts, conds):
        o += [valu("v_readfirstlane_b32", sQ, d), nop(4)]
        if sh:
            o += [salu("s_lshr_b32", sQ, sQ, sh)]
        if msk:
            o += [salu("s_and_b32", sQ, sQ, msk)]
        o += [scmp("s_cmp_lt_u32", sQ, want), raw(f"s_cbranch_scc1 {name}_loop", "branch", rd=["scc"])]
    o += [raw(f"s_branch {back}", "branch")]
    return o


def phase2():
    o = [valu("v_readfirstlane_b32", sQ, vPOLL[0]), valu("v_mov_b32", V2L, vL16),
         salu("s_lshr_b32", "s84", "s4", 2), salu("s_mul_i32", "s7", "s3", O_GRP), salu("s_mul_i32", sPL, "s84", 786432),
         salu("s_add_u32", "s7", "s7", sPL),
         salu("s_and_b32", sQ, sQ, "0xff"),
         scmp("s_cmp_lt_u32", sQ, 8), raw("s_cbranch_scc1 L_spin1", "branch", rd=["scc"]), label("L_spin1_back")]
    o += [salu("s_add_u32", "s58", "s90", "s7"), salu("s_addc_u32", "s59", "s91", 0)] + srd(S2B, "s58", "s59", 786432)
    o += [salu("s_and_b32", "s85", "s4", 3), salu("s_and_b32", "s32", sWAVE, 1), salu("s_lshr_b32", "s33", sWAVE, 1),
          salu("s_mul_i32", sBB, sWAVE, 16 * 12288), salu("s_mul_i32", sAB, sWAVE, 16 * 20480),
          salu("s_mov_b64", f"s[{TB}:{TB + 1}]", "s[34:35]"), salu("s_lshr_b64", f"s[{TA}:{TA + 1}]", "s[34:35]", 4)]
    o += next_off(sB2, TB, sBB, 12288)
    o += [valu("v_add_u32", V2W, sW4K, V2L), salu("s_add_u32", "s7", sW6K, XS[0]), valu("v_add_u32", "v22", "s7", V2L)]
    o += [scmp("s_cmp_eq_u32", "s33", 0)]
    o += [salu("s_cselect_b32", f"s{47 + q}", q, 2 - q) for q in range(3)]
    o += [salu("s_cselect_b32", f"s{36 + pi}", pi, 4 - pi) for pi in range(5)]
    o += [salu("s_mul_i32", "s34", "s32", 3), salu("s_sub_u32", "s35", 3, "s34")]
    for q in range(3):
        o += [salu("s_add_u32", f"s{50 + q}", f"s{47 + q}", "s35"), salu("s_add_u32", f"s{47 + q}", f"s{47 + q}", "s34")]
    o += [valu("v_mov_b32", f"v{16 + q}", vR[q]) for q in range(6)]
    for qi in range(6):
        o += [salu("s_lshl_b32", "s7", f"s{47 + qi}", 11), valu("v_add_u32", V2B[qi], "s7", V2L)]
    for qi in range(6):
        o += k2_loads_B(0, qi)
    o += next_off(sB2, TB, sBB, 12288)
    save = list(vR)
    vR[:] = [f"v{16 + q}" for q in range(6)]
    nl = 12 if OPT["pace"] else 8
    eg = epilogue_groups(0, lambda n: 240 - 4 * (24 - n) - (0 if OPT["pace"] else 16) if n >= 24 - nl else 32 + 4 * n, V2L)
    vR[:] = save
    b1 = [l for qi in range(6) for l in k2_loads_B(1, qi)]
    for n, (v, pre, st, imm) in enumerate(eg):
        m = b1[2 * (n - 8):2 * (n - 8) + 2] if 8 <= n < 14 else []
        o += v[:8] + m[:1] + v[8:16] + m[1:] + v[16:]
        if OPT["pace"]:
            if n % 2 == 0:
                o += eg[n // 2][1] + [eg[n // 2][2]]
        elif n < 16:
            o += pre + [st]
        if n == 15:
            o += [needvm(list(sPF)), valu("v_mov_b32", V2X, "v22")]
            for pi in range(5):
                o += [salu("s_lshl_b32", "s7", f"s{36 + pi}", 12), valu("v_add_u32", V2A[pi], "s7", V2L)]
            o += next_off(sPL, TA, sAB, 20480)
            if OPT["pace"]:
                o += next_off(sSO, TA, sAB, 20480)
            o += next_off(sA2, TA, sAB, 20480)
        if 16 <= n < 21:
            o += k2_lds_A(0, n - 16)
    late = []
    for n, g in enumerate(eg[24 - nl:]):
        st = vstore(("v", 240 - 4 * (nl - n) - (0 if OPT["pace"] else 16)), 4, V2L, S_OST, sE, g[3], tag="ost", flags=SC1)
        late.append((g[1], st))
    o += k2_loads_A(1, 4, sPL) + [valu("v_add_u32", V2P, D[5], V2W)]
    o += next_off(sB2, TB, sBB, 12288) + [salu("s_mov_b32", sWANT, 0)]
    o += prof_stamp(1, 30)
    o += srd(S2OUT, "s92", "s93", 7864320)
    o += [salu("s_mul_i32", sOB, "s6", 192 * 2560), salu("s_mul_i32", "s7", "s84", 96 * 2560), salu("s_add_u32", sOB, sOB, "s7"),
          salu("s_mul_i32", "s7", "s5", 1280), salu("s_add_u32", sOB, sOB, "s7"),
          salu("s_mul_i32", "s7", "s85", 320), salu("s_add_u32", sOB, sOB, "s7"), salu("s_mov_b32", sCNT, 6)]
    S0 = Sched()
    if OPT["pace"]:
        k2_first(S0, late)
    else:
        k2_steps(S0, True, [True, True], [True, True], [False, True], late=late)
    S0.order_fixed()
    first = S0.build()
    S1 = Sched()
    k2_steps(S1, False, [True, True], [True, True], [True, True], check=True)
    if OPT["prof"]:
        S1.put(3, raw("s_memrealtime s[76:77]", wr=["s76", "s77"]), raw("s_waitcnt lgkmcnt(0)", "drainlg"),
               salu("s_mov_b32", "s101", "s100"), salu("s_mov_b32", "s100", "s99"), salu("s_mov_b32", "s99", "s98"),
               salu("s_mov_b32", "s98", "s97"), salu("s_mov_b32", "s97", "s96"), salu("s_mov_b32", "s96", "s76"))
    S1.put(237, salu("s_sub_u32", sCNT, sCNT, 1))
    S1.order_fixed()
    loop = [label("L_k2")] + S1.build() + [scmp("s_cmp_lg_u32", sCNT, 0), raw("s_cbranch_scc1 L_k2", "branch", rd=["scc"])]
    R1, R2, i, a, V2O = V2A[0], V2A[1], V2A[2], V2A[3], V2A[4]
    setup = [salu("s_mul_i32", "s7", sWAVE, 30720), valu("v_add_u32", V2W, "s7", V2L), valu("v_lshrrev_b32", i, 4, V2L),
             valu("v_and_b32", a, 15, i), valu("v_mul_u32_u24", a, 2560, a), valu("v_lshrrev_b32", i, 4, i),
             valu("v_lshl_add_u32", V2O, i, 4, a),
             salu("s_xor_b32", sPL, sWAVE, 1), salu("s_sub_u32", sPL, sPL, sWAVE), salu("s_mul_i32", "s7", sPL, 30720),
             valu("v_add_u32", R1, "s7", V2W),
             salu("s_xor_b32", sPL, sWAVE, 3), salu("s_sub_u32", sPL, sPL, sWAVE), salu("s_mul_i32", "s7", sPL, 30720),
             valu("v_add_u32", R2, "s7", V2W)]
    sent = [(pi, xy, qi) for pi in range(5) for qi in range(3, 6) for xy in range(2)]
    wr = {t: ds_write("ds_write_b128", V2W, ("v", acc2(*t)), 4, n * 1024) for n, t in enumerate(sent)}
    S2 = Sched()
    e = []
    if OPT["redov"]:
        order = [wr[(pi, xy, qi)] for pi in range(5) for xy in range(2) for qi in range(3, 6)]
        k2_steps(S2, False, [False, False], [True, False], [True, False], final=(setup, order[:29]))
        e = order[29:]
    else:
        k2_steps(S2, False, [False, False], [True, False], [True, False])
        e = setup + list(wr.values())
    S2.order_fixed()
    last = S2.build()
    e += [needlgkm0(), barrier()] + prof_stamp(8, 234)
    for s in list(range(7, 15)) + list(range(7)):
        pi, q = divmod(s, 3)
        e += [ds_read("ds_read_b128", ("v", acc2(pi, xy, q + 3)), 4, R1, (2 * s + xy) * 1024) for xy in range(2)]
    for s in list(range(7, 15)) + list(range(7)):
        pi, q = divmod(s, 3)
        d, t = acc2(pi, 0, q), acc2(pi, 0, q + 3)
        e += [valu("v_add_f32", f"v{d + r}", f"v{d + r}", f"v{t + r}") for r in range(8)]
        if s >= 7:
            e += [ds_write("ds_write_b128", R1, ("v", acc2(pi, xy, q)), 4, (2 * s + xy) * 1024) for xy in range(2)]
    e += [needlgkm0(), barrier()]
    for s in range(8):
        pi, q = divmod(s, 3)
        for xy in range(2):
            e += [ds_read("ds_read_b128", ("v", acc2(pi, xy, q + 3)), 4, R2, (2 * (14 - s) + xy) * 1024)]
    for s in range(8):
        pi, q = divmod(s, 3)
        d0, t0 = acc2(pi, 0, q), acc2(pi, 0, q + 3)
        e += [valu("v_add_f32", f"v{d0 + r}", f"v{d0 + r}", f"v{t0 + r}") for r in range(8)]
        e += [valu("v_cvt_pk_bf16_f32", f"v{d0 + r}", f"v{d0 + 2 * r}", f"v{d0 + 2 * r + 1}") for r in range(4)]
        e += [salu("s_mul_i32", "s7", f"s{47 + q}", 40960), salu("s_lshl_b32", sPL, f"s{36 + pi}", 6),
              salu("s_add_u32", "s7", "s7", sPL), salu("s_add_u32", sSO, "s7", sOB),
              vstore(("v", d0), 4, V2O, S2OUT, sSO, 0, flags=OPT["outf"])]
    e += prof_stamp(9, 234)
    if OPT["prof"]:
        for n in range(6):
            e += [valu("v_mov_b32", "v234", 1), valu("v_mov_b32", "v235", f"s{101 - n}"), pstore(234, 2 + n), nop(4)]
    e += [label("L_end"), raw("s_endpgm")]
    sp1 = spin("L_spin1", "L_spin1_back", vPOLL[:1], [sFG], [(0, "0xff", 8)]) + spin("L_spin3", "L_spin3_back", vPOLL[1:], [sFB], [(16, 0, 256)])
    sp2 = spin("L_spin2", "L_spin2_back", [V2P], [sFG], [(8, "0xff", 8)])
    sp2 += GATE_SPINS
    return o, first, loop, last, e, sp1, sp2


def kernel():
    pro = prologue()
    q1 = q_phase(False)
    att = [label("L_att")] + a_phase()
    att += [raw("s_cbranch_vccnz L_slow", "branch", rd=["vcc"]), label("L_back")]
    att += [valu("v_rcp_f32", vR[qt], f"v{lacc(qt)}") for qt in range(6)]
    att += prof_stamp(29)
    if OPT["prof"]:
        att += [salu("s_add_u32", sPROF, sPROF, 240)]
    att += [scmp("s_cmp_eq_u32", sIT, 1), raw("s_cbranch_scc1 L_out", "branch", rd=["scc"]), salu("s_mov_b32", sIT, 1)]
    q2 = [label("L_q2")] + q_phase(True) + [raw("s_branch L_att", "branch")]
    o, first, loop2, last, e, sp1, sp2 = phase2()
    o = [label("L_out")] + o
    slow = slow_path()
    parts = [pro, q1, att, q2, o, first, loop2, last, e, slow, sp1, sp2]
    waits = compute_waits([pro + q1 + att + q2 + att + o + first + loop2 + loop2 + loop2 + last + e, slow, sp1, sp2])
    done = {}
    P = [apply_waits(x, waits, done) for x in parts]
    pads = pad_hazards([P[0] + P[1] + P[2] + P[3] + P[2] + P[4] + P[5] + P[6] + P[6] + P[7] + P[8], P[9], P[10], P[11]])
    al = ".p2align 3\n"
    return (emit(P[0] + P[1], pads) + al + emit(P[2] + P[3], pads) + al + emit(P[4] + P[5], pads) + al +
            emit(P[6] + P[7] + P[8] + P[9] + P[10] + P[11], pads) + "L_endcode:\n")


def main():
    kn = NAME + "_kernel"
    s = open("cdna_kernels/" + NAME + ".s.ref").read().split("; Override launch")[0]
    s += "; @launch grid=(256,1,1) block=(256,1,1) lds=163840\n"
    s += '.amdgcn_target "amdgcn-amd-amdhsa--gfx950"\n.text\n'
    s += f".globl {kn}\n.p2align 8\n.type {kn},@function\n{kn}:\n" + kernel()
    s += f""".section .rodata,"a"
.p2align 6
.amdhsa_kernel {kn}
  .amdhsa_next_free_vgpr 512
  .amdhsa_next_free_sgpr 102
  .amdhsa_accum_offset 256
  .amdhsa_group_segment_fixed_size 0
  .amdhsa_kernarg_size 104
  .amdhsa_user_sgpr_count 2
  .amdhsa_user_sgpr_kernarg_segment_ptr 1
  .amdhsa_system_sgpr_workgroup_id_x 1
.end_amdhsa_kernel
"""
    open(sys.argv[1], "w").write(s)


main()
```

```python
import sys, math, struct
from fw3 import *
from orders import orders

NAME = "concat_heads__mha_block_cached__mha_block_cached__near_ridge"
OPT = dict(outf=' sc1', redov=1, one1=1, warmj=0, pk=1, pfq1=1, rot2=2, gate=0, pace=1, lead=3, xpace=0, kvf=' nt', norot=0, tlbw=0, kpro=0, kplan=0, jlate=1, gstep=2, rotq=3, early=1, uni=0, prof=0, report=False, stg=67, warmw=True, codepf=2, codepf2=14, pf='', pf0=1, pfn=3, pff='', flagbar=12, map=0)
for a in sys.argv[2:]:
    k, v = a.split("=")
    OPT[k] = type(OPT[k])(int(v)) if not isinstance(OPT[k], str) else v

KB = 1024
SC1 = " sc1"
O_GRP = 2 * 786432
WS_WOT = 50331648
WOT_BLK = 5242880
WS_PROF = 64 * 1024 * 1024

S_K, S_V, S_X, S_WQ, S_OST, S_WO, S_WOT = 8, 12, 16, 20, 24, 28, 32
sKV, sWQ, sX, sW4K, sW6K, sO, sIT, sT0, sT1, sC, sWAVE = ["s%d" % i for i in range(36, 47)]
sWOS, sWOD, sWOX, sW5K, sHI, sLO = ["s%d" % i for i in range(47, 53)]
sPROF, sE, sJ = "s53", "s54", "s55"
sQT, sWS, sXS, sW1 = "s50", "s67", "s95", "s63"
sROT, sFG, sFB, sCP = "s62", "s65", "s66", "s64"
sA2, sB2, sPL, sOB, sCNT, sSO, sQ, sSH, sWANT, sSPIN = "s28", "s29", "s30", "s31", "s67", "s68", "s69", "s70", "s71", "s94"
S_PROF, S_FLG = 72, 80
sPF = {("W", 0, 0): ["s84"], ("W", 0, 1): ["s85"], ("X", 0): ["s86", "s87"], ("X", 1): ["s98", "s99"], ("W", 1, 0): ["s100"], ("W", 1, 1): ["s101"],
       ("P", 0): ["s60"], ("P", 1): ["s61"]}
PF2 = {"s84": (0, 0, 0), "s85": (0, 1, 0), "s86": (0, 2, 0), "s98": (0, 3, 0), "s100": (0, 4, 0), "s101": (1, 0, 0),
       "s87": (1, 1, 0), "s99": (1, 1, 2048), "s60": (1, 2, 0), "s61": (1, 3, 0)}
vK = ["v%d" % i for i in range(192, 196)]
vV = ["v196", "v197"]
vW = ["v%d" % i for i in range(198, 202)]
vX = ["v%d" % i for i in range(202, 206)]
kA = ["v%d" % i for i in range(206, 210)]
vA = ["v%d" % i for i in range(210, 218)]
wA = ["v218", "v219"]
xA = ["v220", "v221"]
vJ, vL16 = "v222", "v223"
ONES = 224
EPI = 228
vR = ["v%d" % i for i in range(244, 250)]
vFLG = "v250"
vT = ["v252", "v253"]
vC2 = "v[242:243]"
vPOLL = ["v254", "v255"]

D = [i * 16 * KB for i in range(10)]
XS = [96 * KB, 120 * KB]
WOJ_ADDR = D[4]


def qacc(p, xy, qt):
    return 64 * (qt >> 1) + (2 * p + (qt & 1)) * 8 + 4 * xy


def qf(qt, p):
    return 64 * (qt >> 1) + (2 * p + (qt & 1)) * 4


def sreg(qt):
    return 64 * (qt >> 1) + 32 + 8 * (qt & 1)


def lacc(qt):
    return 64 * (qt >> 1) + 48 + 4 * (qt & 1)


ABUF = [192, 248]


def bx(qt, ks):
    return 200 + 8 * qt + 4 * ks


def kf(kt, ks):
    return 192 + 16 * kt + 4 * ks


def vf(dt):
    return 224 + 4 * dt


def oacc(qt, dt):
    return 32 * qt + 4 * dt


def build_units():
    U = {}
    for i in range(10):
        U[("X", i)] = dict(addr=XS[i % 2], size=24 * KB, iss=i - 2.5, land=i - 1, rel=i - 0.5)
        U[("W", i, 0)] = dict(addr=D[2 * (i % 2)], size=16 * KB, iss=i - 2.5, land=i - 1, rel=i - 0.5)
        U[("W", i, 1)] = dict(addr=D[2 * (i % 2) + 1], size=16 * KB, iss=i - 2, land=i - 0.5, rel=i)
    for k, e in ((("X", 0), -4), (("W", 0, 0), -4), (("W", 0, 1), -4), (("X", 1), -3), (("W", 1, 0), -3), (("W", 1, 1), -3)):
        U[k]["iss"] = e
    pages = [9, 5, 4, 6, 0, 7, 1, 8, 2, 3, 9, 4, 5, 6, 0, 1, 7, 2, 8, 3, 9, 4, 5, 6, 0, 7, 1, 8, 2, 9, 5, 4]
    for u in range(32):
        key = ("K", u // 2) if u % 2 == 0 else ("V", u // 2)
        N = 10 + u // 2 + u % 2
        U[key] = dict(addr=D[pages[u]], size=16 * KB, iss=N - 5 + (u == 30), land=N - 1, rel=N)
    U[("V", 1)]["iss"] = U[("K", 2)]["iss"] = 7.5
    U[("V", 2)]["iss"] = 8.5
    return U


def check_units(second):
    V = {k: dict(u) for k, u in U.items()}
    if second:
        V[("K", 0)]["iss"] = V[("V", 0)]["iss"] = -2
        V[("K", 1)]["iss"] = -1
    else:
        V[("J",)] = dict(addr=D[4], size=32 * KB, iss=-1, land=2, rel=3)
        V[("J", 2)] = dict(addr=D[9], size=16 * KB, iss=0, land=2, rel=3)
        V[("K", 0)]["iss"], V[("V", 0)]["iss"], V[("K", 1)]["iss"] = 3, 4, 5
    allu = [(k, u["addr"], u["addr"] + u["size"], u["iss"], u["rel"]) for k, u in V.items()]
    assert all(u["iss"] < u["land"] <= u["rel"] for u in V.values())
    if second:
        allu += [(k, u["addr"], u["addr"] + u["size"], u["iss"] - 27, u["rel"] - 27) for k, u in U.items() if k[0] in "KV" and k[1] > 2]
        allu += [(("P", n), D[p], D[p] + 16 * KB, 25, 27) for n, p in enumerate((5, 9))]
        allu += [(k, u["addr"], u["addr"] + u["size"], u["iss"] + 27, 40) for k, u in U.items() if u["iss"] is not None and u["iss"] < -2.6]
    for a in allu:
        for b in allu:
            if a is not b and a[1] < b[2] and b[1] < a[2]:
                assert a[4] <= b[3] or b[4] <= a[3], (a, b)


U = build_units()
U[("K", 0)]["iss"] = U[("V", 0)]["iss"] = U[("K", 1)]["iss"] = None
PADDR = {("P", 0): D[5], ("P", 1): D[9]}
_alt = [0]


def next_st():
    _alt[0] ^= 1
    return [sT0, sT1][_alt[0]]


def unit_dmas(key, tmp=None):
    kind = key[0]
    if kind == "P":
        return [([salu("s_add_u32", "m0", sW4K, PADDR[key])], [dma(vW[m], S_WQ, sPF[key][0], 1024 * m, key, SC1) for m in range(4)])]
    if kind == "J":
        jj = key[1]
        sT = tmp
        pre = [salu("s_add_u32", sT, sWOS, jj * 128), salu("s_add_u32", "m0", sW4K, D[(4, 5, 9)[jj >> 2]] + (jj & 3) * 1024)]
        return [(pre, [dma(vX[0], S_WO, sT, 0, "J", " nt")])]
    u = U[key]
    if key in sPF:
        if kind == "W":
            return [([salu("s_add_u32", "m0", sW4K, u["addr"])], [dma(vW[m], S_WQ, sPF[key][0], 1024 * m, key, SC1) for m in range(4)])]
        return [([salu("s_add_u32", "m0", sW6K, u["addr"])], [dma(vX[m], S_X, sPF[key][0], 1024 * m, key, SC1) for m in range(4)]),
                ([salu("s_add_u32", "m0", sW6K, u["addr"] + 4096)], [dma(vX[m], S_X, sPF[key][1], 1024 * m, key, SC1) for m in range(2)])]
    sT = tmp or next_st()
    if kind in "KV":
        pre = [salu("s_add_u32", sT, sROT, key[1] * 8192), salu("s_and_b32", sT, sT, "0x1ffff"), salu("s_add_u32", sT, sT, sKV),
               salu("s_add_u32", "m0", sW4K, u["addr"])]
        if kind == "K":
            return [(pre, [dma(vK[m], S_K, sT, 1024 * m, key, OPT["kvf"]) for m in range(4)])]
        return [(pre, [dma(vV[m & 1], S_V, sT, 1024 * m, key, OPT["kvf"]) for m in range(4)])]
    if kind == "W":
        return [([salu("s_add_u32", "m0", sW4K, u["addr"])], [dma(vW[m], S_WQ, sW1 if key[2] else sWS, 1024 * m, key) for m in range(4)])]
    g0 = ([salu("s_add_u32", "m0", sW6K, u["addr"])], [dma(vX[m], S_X, sXS, 1024 * m, key) for m in range(4)])
    pre2 = [salu("s_add_u32", sT, sXS, 40960), salu("s_add_u32", "m0", sW6K, u["addr"] + 4096)]
    return [g0, (pre2, [dma(vX[m], S_X, sT, 1024 * m, key) for m in range(2)])]


def set_pf_proj(tail=False):
    o = []
    for key, rs in sPF.items():
        if key[0] == "P":
            continue
        if key[0] == "W":
            o += [salu("s_add_u32", rs[0], sWQ, key[1] * 524288 + key[2] * 128)]
        else:
            o += [salu("s_add_u32", rs[0], sX, key[1] * 128), salu("s_add_u32", rs[1], sX, key[1] * 128 + 40960)]
    return o


ORD2 = orders(16, 4, 8, 7, {1: [4], 2: [1, 1, 2, 2, 2, 0, 0], 3: [1, 2, 2, 2, 1, 0, 0], 4: [2, 1, 2, 2, 1, 0, 0]}[OPT["rot2"]])[0] if OPT["rot2"] else [list(range(16))] * 4
ORDQ = orders(10, 4, None, 0, {1: [1, 1, 2, 2, 2, 1, 1], 2: [1, 1, 4], 3: [1, 1, 2, 2, 1, 1, 1, 1]}[OPT["rotq"]])[0] if OPT["rotq"] else [list(range(10))] * 4
assert all(o[:2] == [0, 1] for o in ORDQ)
TBLQ = [sum(x << (4 * n) for n, x in enumerate(o[2:])) for o in ORDQ]
TBL2 = [sum(x << (4 * n) for n, x in enumerate(o)) for o in ORD2]


def next_off(dst, tbl, base, stride):
    return [salu("s_and_b32", dst, f"s{tbl}", 15), salu("s_lshr_b64", f"s[{tbl}:{tbl + 1}]", f"s[{tbl}:{tbl + 1}]", 4),
            salu("s_mul_i32", dst, dst, stride), salu("s_add_u32", dst, dst, base)]


def set_pf_out():
    o = [salu("s_and_b32", "s68", "s4", 3), salu("s_mul_i32", "s68", "s68", 1310720), salu("s_mul_i32", "s69", "s5", WOT_BLK),
         salu("s_add_u32", "s68", "s68", "s69"), salu("s_add_u32", "s68", "s68", WS_WOT)]
    o += [[salu("s_add_u32", f"s{S_WQ}", "s90", "s68"), salu("s_addc_u32", "s69", "s91", 0)]]
    o += [salu("s_and_b32", f"s{S_WQ + 1}", "s69", "0xffff"), salu("s_mov_b32", f"s{S_WQ + 2}", 1310720),
          salu("s_mov_b32", f"s{S_X}", f"s{S_WQ}"), salu("s_mov_b32", f"s{S_X + 1}", f"s{S_WQ + 1}"), salu("s_mov_b32", f"s{S_X + 2}", 1310720)]
    o += [salu("s_lshr_b32", "s70", sWAVE, 1), salu("s_mul_i32", "s68", sWAVE, 16 * 20480), salu("s_lshl_b32", "s69", "s70", 14),
          salu("s_add_u32", "s68", "s68", "s69"), salu("s_lshl_b32", "s69", "s70", 13), salu("s_sub_u32", "s69", 4096, "s69")]
    o += [salu("s_add_u32", "s70", "s3", "s4"), salu("s_and_b32", "s70", "s70", 3),
          salu("s_mov_b32", "s34", "0x%x" % (TBL2[0] & 0xffffffff)), salu("s_mov_b32", "s35", "0x%x" % (TBL2[0] >> 32))]
    for r in range(1, 4):
        o += [[scmp("s_cmp_eq_u32", "s70", r), salu("s_cselect_b32", "s34", "0x%x" % (TBL2[r] & 0xffffffff), "s34"),
               salu("s_cselect_b32", "s35", "0x%x" % (TBL2[r] >> 32), "s35")]]
    o += [salu("s_and_b32", "s70", "s34", 15), salu("s_mul_i32", "s70", "s70", 20480), salu("s_add_u32", "s70", "s70", "s68"),
          salu("s_bfe_u32", "s71", "s34", "0x40004"), salu("s_mul_i32", "s71", "s71", 20480), salu("s_add_u32", "s71", "s71", "s68")]
    for r, (st, pi, off) in PF2.items():
        o += [salu("s_mul_i32", r, "s69", pi), salu("s_add_u32", r, r, "s71" if st else "s70")]
        if off:
            o += [salu("s_add_u32", r, r, off)]
    return o


def groups_at(iss):
    order = {"W": 0, "X": 1, "K": 2, "V": 2}
    keys = sorted([k for k, u in U.items() if u["iss"] is not None and u["iss"] % 27 == iss % 27],
                  key=lambda k: (U[k]["land"] - U[k]["iss"], order[k[0]], k))
    return [g for k in keys for g in unit_dmas(k)]


def place_dmas(S, groups, cand, lo):
    ci = 0
    for pre, ds in groups:
        g = cand[ci]
        for n, p in enumerate(pre):
            S.put(max(lo, g - len(pre) + n), p)
        for d in ds:
            S.put(cand[ci], d)
            ci += 1


def tags_for(n):
    t = [k for k, u in U.items() if (u["land"] - n) % 27 == 0]
    if n == OPT["flagbar"]:
        t += ["ost", "jst"]
    if n == 2:
        t += ["J"]
    return t


def atomic_add(vdata, soff):
    return Ins(f"buffer_atomic_add {vdata}, {vFLG}, s[{S_FLG}:{S_FLG + 3}], {soff} offen sc1", "atomic",
               rd=[vdata, vFLG, soff] + regs("s", S_FLG, 4), tag="flag")


def poll_load(vdst, soff):
    return Ins(f"buffer_load_dword {vdst}, off, s[{S_FLG}:{S_FLG + 3}], {soff} sc1", "vld", rd=[soff] + regs("s", S_FLG, 4), wr=[vdst])


class Win:
    def __init__(self, rs, init):
        self.rs = rs
        self.cur = init

    def move(self, new):
        d = (new - self.cur) & 0xffffffff
        self.cur = new
        return [valu("v_add_u32", r, "0x%x" % d, r) for r in self.rs] if d else []


def plan_windows(addrs, span):
    want = []
    i = 0
    while i < len(addrs):
        lo = hi = addrs[i]
        j = i + 1
        while j < len(addrs) and max(hi, addrs[j]) - min(lo, addrs[j]) + span < 65536:
            lo, hi = min(lo, addrs[j]), max(hi, addrs[j])
            j += 1
        want += [lo] * (j - i)
        i = j
    return want


KWANT = plan_windows([U[("K", t)]["addr"] for t in range(16)], 4096)
VWANT = plan_windows([U[("V", t)]["addr"] for t in range(16)], 4096)
check_units(False)
check_units(True)


def pstore(v0, idx):
    return Ins(f"buffer_store_dwordx2 v[{v0}:{v0 + 1}], off, s[{S_PROF}:{S_PROF + 3}], {sPROF} offset:{8 * idx}", "vst",
               rd=[f"v{v0}", f"v{v0 + 1}", sPROF] + regs("s", S_PROF, 4))


def prof_stamp(idx, v0=252):
    if not OPT["prof"]:
        return []
    return [raw("s_memtime s[76:77]", "other", wr=["s76", "s77"]),
            raw("s_memrealtime s[78:79]", "other", wr=["s78", "s79"]),
            raw("s_waitcnt lgkmcnt(0)", "drainlg"),
            valu("v_mov_b32", f"v{v0}", "s76"),
            valu("v_mov_b32", f"v{v0 + 1}", "s78"),
            pstore(v0, idx)]


def bar_seq(tags, idx):
    if OPT["prof"] < 2:
        return [needboth(tags), barrier()] + prof_stamp(idx)
    return [raw("s_memtime s[58:59]", "other", wr=["s58", "s59"]), raw("s_waitcnt lgkmcnt(0)", "drainlg"),
            needboth(tags), barrier(),
            raw("s_memtime s[76:77]", "other", wr=["s76", "s77"]),
            raw("s_memrealtime s[78:79]", "other", wr=["s78", "s79"]),
            raw("s_waitcnt lgkmcnt(0)", "drainlg"), salu("s_sub_u32", "s76", "s76", "s58"),
            valu("v_mov_b32", "v252", "s76"), valu("v_mov_b32", "v253", "s78"), pstore(252, idx)]


def a_read(i, dt, ks, t):
    p, xy = dt >> 1, dt & 1
    off = U[("W", i, p >> 1)]["addr"] + ks * 4096 + t * 512 + xy * 8
    return ds_read("ds_read_b64_tr_b16", ("a", ABUF[dt % 2] + 4 * ks + 2 * t), 2, wA[p & 1], off)


def first_reads(i):
    ax = U[("X", i)]["addr"] - XS[0]

    def A(ks, t):
        return a_read(i, 0, ks, t)

    def B(qt, ks):
        return ds_read("ds_read_b128", ("a", bx(qt, ks)), 4, xA[ks], ax + qt * 2048)
    return [A(0, 0), A(0, 1), B(0, 0), A(1, 0), A(1, 1), B(0, 1)] + [B(qt, ks) for qt in range(1, 6) for ks in range(2)]


def k_read(t, j):
    kt, ks = j >> 2, j & 3
    return ds_read("ds_read_b128", ("a", kf(kt, ks)), 4, kA[ks], U[("K", t)]["addr"] - KWANT[t] + kt * 4096)


def epilogue_groups(tmp, dst=None, vaddr=None):
    groups = []
    n = 0
    for T in range(3):
        for ph in range(2):
            for qs in range(2):
                for pl in range(2):
                    qt = 2 * T + qs
                    tb = tmp + 4 * (n % 3)
                    src = oacc(qt, 4 * ph + 2 * pl)
                    db = tb if dst is None or dst(n) is None else dst(n)
                    rd = [valu("v_accvgpr_read_b32", f"v{tb + i}", f"a{src + i}") for i in range(8)]
                    mu = [valu("v_mul_f32", f"v{tb + i}", vR[qt], f"v{tb + i}") for i in range(8)]
                    cv = [valu("v_cvt_pk_bf16_f32", f"v{db + i}", f"v{tb + 2 * i}", f"v{tb + 2 * i + 1}") for i in range(4)]
                    pre = [salu("s_add_u32", sE, sO, ph * 12288 + T * 4096)] if qs == 0 and pl == 0 else []
                    imm = qs * 2048 + pl * 1024
                    groups.append((rd + mu + cv, pre, vstore(("v", db), 4, vaddr or vL16, S_OST, sE, imm, tag="ost", flags=SC1), imm))
                    n += 1
    return groups


def conv_items(T, ps, packed=()):
    out = []
    for p in ps:
        for qs in range(2):
            R, Dd = qacc(p, 0, 2 * T + qs), qf(2 * T + qs, p)
            if p in packed:
                out += [(p, qs, valu("v_pk_mul_f32", f"v[{R + x}:{R + x + 1}]", f"v[{R + x}:{R + x + 1}]", "s[86:87]" if False else vC2)) for x in range(0, 8, 2)]
            else:
                out += [(p, qs, valu("v_mul_f32", f"v{R + x}", sC, f"v{R + x}")) for x in range(8)]
            out += [(p, qs, valu("v_cvt_pk_bf16_f32", f"v{Dd + x}", f"v{R + 2 * x}", f"v{R + 2 * x + 1}")) for x in range(4)]
    return out


def q_phase(second):
    S = Sched()
    extra, mid = {}, {}
    if second:
        extra[0] = unit_dmas(("K", 1), sJ)
    else:
        extra[0] = [g for jj in range(5) for g in unit_dmas(("J", jj), sE)]
        extra[1] = [g for jj in range(5, 10) for g in unit_dmas(("J", jj), sE)]
        kv = [unit_dmas(k, sE) for k in [("K", 0), ("V", 0), ("K", 1)]]
        if OPT["kplan"] == 0:
            extra[4], extra[5], extra[6] = kv
        elif OPT["kplan"] == 1:
            extra[7], mid[8] = kv[0], kv[1]
            extra[8] = kv[2]
        elif OPT["kplan"] == 2:
            extra[4], extra[7], mid[8] = kv
        elif OPT["kplan"] == 3:
            extra[5], extra[7], mid[8] = kv
    for i in range(10):
        q0 = S.n()
        for dt in range(8):
            for qt in range(6):
                for ks in range(2):
                    acc = ("v", qacc(dt >> 1, dt & 1, qt))
                    S.add(mfma(16, acc, ("a", ABUF[dt % 2] + 4 * ks), ("a", bx(qt, ks)), None if (i == 0 and ks == 0) else acc))
        for dt in range(1, 8):
            gaps = [4, 5, 6, 7] if dt == 1 else [0, 2, 3, 4]
            for n, (ks, t) in enumerate([(0, 0), (0, 1), (1, 0), (1, 1)]):
                S.put(q0 + 12 * (dt - 1) + gaps[n], a_read(i, dt, ks, t))
        S.put(q0 + 35, needboth(tags_for(i - 0.5)), barrier())
        S.put(q0 + 83, *bar_seq(tags_for(i), 2 + i))
        if i < 9:
            for n, r in enumerate(first_reads(i + 1)):
                S.put(q0 + 84 + n, r)
        else:
            kw = Win(kA, KWANT[15])
            mv = kw.move(KWANT[0])
            S.put(q0 + 80, *mv[:2])
            S.put(q0 + 82, *mv[2:])
            for j in range(8):
                S.put(q0 + 84 + j, k_read(0, j))
        if i <= 7:
            for n, x in enumerate([salu("s_bfe_u32", sXS, sQT, "0x%x" % (0x40000 + 4 * i)), salu("s_lshl_b32", sWS, sXS, 19),
                                   salu("s_add_u32", sWS, sWS, sWQ), salu("s_lshl_b32", sXS, sXS, 7), salu("s_add_u32", sXS, sXS, sX),
                                   salu("s_add_u32", sW1, sWS, 128)]):
                S.put(q0 + 26 + n, x)
        early = groups_at(i - 1) if i else []
        place_dmas(S, early + mid.get(i, []), [q0 + g for g in (9, 13, 17, 21, 25, 29, 31, 33)], q0)
        late = groups_at(i - 0.5) + extra.get(i, [])
        if i == 8 and 8 in extra:
            late = extra[8] + groups_at(i - 0.5)
        cand = [q0 + 37 + 4 * x for x in range(12)]
        nd = sum(len(g[1]) for g in late)
        if nd > 12:
            cand = sorted(cand + [q0 + 67, q0 + 71, q0 + 75, q0 + 79][:nd - 12])
        place_dmas(S, late, cand, q0 + 35)
    if not second:
        for jj in range(10):
            q0 = 96 * 3
            if jj == 8:
                S.put(q0 + 65, valu("v_add_u32", vJ, D[9] - D[4] - 2 * 16384, vJ))
            for tt in range(2):
                g = q0 + [10, 11, 18, 19, 22, 23, 30, 31, 34, 42, 43, 46, 47, 54, 55, 58, 66, 67, 70, 71][2 * jj + tt]
                S.put(g, ds_read("ds_read_b64_tr_b16", ("a", 4 * jj + 2 * tt), 2, vJ, (jj >> 2) * 16384 + (jj & 3) * 1024 + tt * 8192))
            nq, pair = divmod(2 * jj, 5)
            g = 96 * (4 + jj // 3) + [19, 25, 31][jj % 3]
            if OPT["jlate"]:
                g = 96 * (3 + jj // 2) + ([79, 82] if (3 + jj // 2) in extra else [77, 81])[jj % 2]
            S.put(g - 1, salu("s_add_u32", sJ, sWOX if pair == 4 else sWOD, nq * 1310720 + pair * 4096))
            S.put(g, vstore(("a", 4 * jj), 4, vL16, S_WOT, sJ, 0, tag="jst", flags=SC1))
    if second:
        eg = epilogue_groups(EPI)
        ep = []
        for i in range(8):
            for g in eg[3 * i:3 * i + 3]:
                ep += [(x, 96 * i, None) for x in g[0]]
            for g in eg[3 * i:3 * i + 3]:
                ep += [(x, 96 * i + OPT["stg"], None) for x in g[1] + [g[2]]]
        ep[-1] = (ep[-1][0], ep[-1][1], 96 * 9 - 1)
        S.stream(ep)
        S.put(96 * 9 + 2, salu("s_add_u32", sO, sO, 8 * 12288))
    q0 = 96 * 9
    g = q0 + 2
    for x in ([salu("s_add_u32", sWQ, sWQ, 512)] + set_pf_proj(True) if not second else set_pf_out()):
        S.put(g, *(x if isinstance(x, list) else [x]))
        g += 1 if g < q0 + 94 else 0
        while g in (q0 + 35, q0 + 83) or any(x.kind == "salu" for x in S.fixed.get(g, [])):
            g += 1
    if second:
        S.stream([(valu("v_mov_b32", r, vL16), q0 + 2, None) for r in vW + vX])
    S.put(q0 + 7, valu("v_mov_b32", "v242", sC), valu("v_mov_b32", "v243", sC))
    S.stream([(x, min(q0 + 12 * (2 * p + 1) + 2 * qs + 1 + 2, q0 + 95), None) for p, qs, x in conv_items(0, range(4))])
    S.put(-1, *prof_stamp(1))
    return S.finish(lead=first_reads(0), report=OPT["report"])


def lspread(qt, tmp):
    l = f"v{lacc(qt)}"
    return [valu("v_mov_b32", tmp, l), perm("v_permlane32_swap_b32", tmp, l), valu("v_add_f32", l, l, tmp),
            valu("v_mov_b32", tmp, l), perm("v_permlane16_swap_b32", tmp, l), valu("v_add_f32", l, l, tmp)]


def interleave(a, b):
    return [x for p in zip(a, b) for x in p]


def lcheck():
    l = [f"v{lacc(qt)}" for qt in range(6)]
    return [valu("v_add_f32", vT[0], l[0], l[1]), valu("v_min3_f32", vT[1], l[0], l[1], l[2]),
            valu("v_add_f32", vT[0], vT[0], l[2]), valu("v_min3_f32", vT[1], vT[1], l[3], l[4]),
            valu("v_add_f32", vT[0], vT[0], l[3]), valu("v_add_f32", vT[0], vT[0], l[4]),
            valu("v_min_f32", vT[1], vT[1], l[5]), valu("v_add_f32", vT[0], vT[0], l[5]),
            valu("v_cmp_nlt_f32", "s[56:57]", sLO, vT[1]),
            valu("v_cmp_ngt_f32", "vcc", sHI, vT[0]),
            salu("s_or_b64", "vcc", "vcc", "s[56:57]")]


def a_phase(last):
    S = Sched()
    qk = [[0] * 3 for _ in range(16)]
    pv = [[0] * 3 for _ in range(16)]

    def QK(t, T):
        qk[t][T] = S.n()
        for qs in range(2):
            for kt in range(2):
                s = ("v", sreg(2 * T + qs) + 4 * kt)
                for ks in range(4):
                    S.add(mfma(16, s, ("a", kf(kt, ks)), ("v", qf(2 * T + qs, ks)), None if ks == 0 else s))

    def PV(t, T):
        pv[t][T] = S.n()
        sums = []
        for qs in range(2):
            l = ("v", lacc(2 * T + qs))
            sums.append(mfma(16, l, ("v", ONES), ("v", sreg(2 * T + qs)), None if t == 0 else l))
        if t == 15:
            for m in sums:
                S.add(m)
        for dt in range(8):
            for qs in range(2):
                o = ("a", oacc(2 * T + qs, dt))
                S.add(mfma(16, o, ("a", vf(dt)), ("v", sreg(2 * T + qs)), None if t == 0 else o))
        if t < 15:
            for m in sums:
                S.add(m)

    for t in range(16):
        QK(t, 0)
        if t:
            PV(t - 1, 1)
        QK(t, 1)
        if t:
            PV(t - 1, 2)
        QK(t, 2)
        PV(t, 0)
    PV(15, 1)
    PV(15, 2)
    bar = {}
    kw, vw = Win(kA, KWANT[0]), Win(vA, VWANT[0])
    for t in range(16):
        g0 = pv[t - 1][2] if t else qk[0][1]
        bar[10 + t] = g0 - 1
        S.put(g0 - 1, *bar_seq(tags_for(10 + t), 12 + t))
        if t == 15:
            S.put(g0 - 1, scmp("s_cmp_eq_u32", sIT, 1), raw("s_cbranch_scc1 L_tail2", "branch", rd=["scc"]), label("L_CUT"))
        for n, m in enumerate(vw.move(VWANT[t])):
            S.put(g0 - 14 + 3 * (n // 2), m)
        for dt in range(8):
            for tt in range(2):
                S.put(g0 + 4 * dt + 1 + 2 * tt,
                      ds_read("ds_read_b64_tr_b16", ("a", vf(dt) + 2 * tt), 2, vA[dt], U[("V", t)]["addr"] - VWANT[t] + tt * 4096))
        if t < 15:
            for n, m in enumerate(kw.move(KWANT[t + 1])):
                S.put((qk[t][0] + 9 if t else qk[0][2] + 2) + (3 if t else 2) * (n // 2), m)
            for j in range(8):
                S.put(qk[t][2] + [8, 10, 12, 14, 17, 19, 21, 23][j], k_read(t + 1, j))
    S.stream([(m, pv[15][0], None) for m in vw.move(VWANT[0])])
    bar[26] = pv[15][1] - 1
    S.put(bar[26], *bar_seq(tags_for(26), 28))
    fr = [] if last else first_reads(0)
    for n, r in enumerate(fr[:10]):
        S.put(pv[15][1] + [1, 3, 5, 7, 9, 11, 13, 15, 16, 17][n], r)
    for n, r in enumerate(fr[10:]):
        S.put(pv[15][2] + 3 + 2 * n, r)
    for n in range(10, 27):
        groups = groups_at(n - 1)
        if n == 26:
            groups = [g for k in ([("P", 0), ("P", 1)] if last else [("K", 0), ("V", 0)]) for g in unit_dmas(k)]
        nd = sum(len(g[1]) for g in groups)
        if n == 10:
            cand = [2 * x for x in range(8)]
            lo = -1
        else:
            lo = bar[n - 1] + 1
            if n == 11 or n == 26 or OPT["uni"]:
                a = lo + 5
            else:
                a = qk[n - 10][0] + 1 if nd <= 8 else pv[n - 11][0] + 6
            b = bar[n] - 1
            cand = []
            for x in range(nd):
                g = a + (b - a) * x // nd
                while any(i.kind in MEMK for i in S.fixed.get(g, [])) or g in cand:
                    g += 1
                cand.append(g)
            assert not cand or cand[-1] < bar[n]
        place_dmas(S, groups, cand, lo)
    if OPT["xpace"]:
        for t in range(1, 14):
            for T in range(3):
                S.put(pv[t][T] + 17, nop(OPT["xpace"]))
                S.put(qk[t][T] + 15, nop(OPT["xpace"]))
    S.put(qk[14][0] - 3, salu("s_add_u32", sKV, sKV, 262144))
    g = bar[OPT["flagbar"]] + 2
    S.put(g - 1, scmp("s_cmp_eq_u32", sIT, 0), salu("s_cselect_b32", sE, sFB, sFG), salu("s_cselect_b32", sJ, "0x10000", 1))
    S.put(g + 1, valu("v_mov_b32", f"v{EPI}", sJ))
    S.put(g + 4, atomic_add(f"v{EPI}", sE))
    g = qk[12][0]
    S.put(g + 1, scmp("s_cmp_eq_u32", sIT, 1), salu("s_cselect_b32", sE, sFB, "0x1000"))
    S.put(g + 3, poll_load(vPOLL[1], sE))
    g = qk[13][0]
    S.put(g + 1, salu("s_lshl_b32", sWANT, sIT, 23), valu("v_readfirstlane_b32", sQ, vPOLL[1]))
    S.put(g + 4, scmp("s_cmp_lt_u32", sQ, sWANT), raw("s_cbranch_scc1 L_spin3", "branch", rd=["scc"]), label("L_spin3_back"))
    if last:
        S.put(qk[15][2] + 2, poll_load(vPOLL[0], sFG))
    if OPT["codepf2"]:
        g = qk[OPT["codepf2"]][0] - 6
        S.put(g - 2, salu("s_mul_i32", sJ, sIT, "L_tail2-L_q2"))
        S.put(g - 1, salu("s_add_u32", sJ, sJ, "L_q2-L_pc"))
        S.put(g, salu("s_add_u32", sJ, sJ, sCP))
        S.put(g + 1, salu("s_min_u32", sJ, sJ, "L_endcode-L_pc-256"))
        S.put(g + 2, valu("v_and_b32", f"v{EPI + 2}", 16, vL16), valu("v_lshlrev_b32", f"v{EPI + 2}", 3, f"v{EPI + 2}"))
        S.put(g + 3, valu("v_add_u32", f"v{EPI + 2}", sJ, f"v{EPI + 2}"))
        S.put(g + 5, Ins(f"global_load_dword v{EPI + 3}, v{EPI + 2}, s[96:97]", "vld", rd=[f"v{EPI + 2}", "s96", "s97"], wr=[f"v{EPI + 3}"]))
    for T in (1, 2):
        if OPT["pk"]:
            nfree = 1 if T == 1 else 0
            S.stream([(x, -1, None) for p, qs, x in conv_items(T, range(nfree))] +
                     [(x, qk[0][T] - 1, qk[0][T] - 1) for p, qs, x in conv_items(T, range(nfree, 4), packed=range(4))])
        else:
            c = [(x, -1, None) for p, qs, x in conv_items(T, range(4))]
            c[-1] = (c[-1][0], -1, qk[0][T] - 1)
            S.stream(c)
    fin = []
    if OPT["one1"]:
        for T in range(3):
            fin += [(x, [pv[15][1] + 12, pv[15][2], pv[15][2] + 4][T], None) for x in interleave(lspread(2 * T, f"v{lacc(2 * T) + 1}"), lspread(2 * T + 1, f"v{lacc(2 * T + 1) + 1}"))]
    S.stream(fin + [(x, pv[15][2] + 4, None) for x in lcheck()])
    units = []
    for t in range(16):
        for qt in range(6):
            s = sreg(qt)
            T, qs = qt >> 1, qt & 1
            dl = pv[t][T] + qs - 2
            units.append(dict(e=qk[t][T] + 8 * qs + 7 + 2,
                              exps=[valu("v_exp_f32", f"v{s + r}", f"v{s + r}") for r in range(8)],
                              cvts=[(valu("v_cvt_pk_bf16_f32", f"v{s + r}", f"v{s + 2 * r}", f"v{s + 2 * r + 1}"), 2 * r + 2, dl) for r in range(4)]))
    S.packers.append(SoftmaxPacker(units))
    return S.finish(lead=[k_read(0, j) for j in range(8)], report=OPT["report"])


def slow_path():
    o = [label("L_slow"), drain(), nop(16)]
    KF = [EPI + 4 * k for k in range(4)]
    VFR = 56
    vM = [f"v{120 + q}" for q in range(6)]
    vKo, vVo, vt, vu = "v60", "v61", "v62", "v63"
    o += [valu("v_lshrrev_b32", vt, 4, vL16), valu("v_and_b32", vu, 15, vt), valu("v_lshrrev_b32", vt, 4, vt),
          valu("v_lshlrev_b32", vKo, 8, vu), valu("v_lshl_add_u32", vKo, vt, 4, vKo),
          valu("v_lshlrev_b32", vVo, 10, vt), valu("v_lshl_add_u32", vVo, vu, 1, vVo)]
    o += [salu("s_sub_u32", "s58", sKV, 262144)]
    o += [valu("v_mov_b32", m, "0xff800000") for m in vM]

    def scores():
        r = []
        for kt in range(2):
            r += [salu("s_add_u32", "s61", "s59", kt * 4096)]
            r += [vload(("v", KF[ks]), 4, vKo, S_K, "s61", 64 * ks) for ks in range(4)] + [drain()]
            for qt in range(6):
                s = ("v", sreg(qt) + 4 * kt)
                r += [mfma(16, s, ("v", KF[ks]), ("v", qf(qt, ks)), None if ks == 0 else s) for ks in range(4)]
            r += [nop(16)]
        return r
    o += [salu("s_mov_b32", "s59", "s58"), salu("s_mov_b32", "s60", 16), label("L_slow1")] + scores()
    for qt in range(6):
        o += [valu("v_max3_f32", vM[qt], vM[qt], f"v{sreg(qt) + r}", f"v{sreg(qt) + r + 1}") for r in range(0, 8, 2)]
    o += [salu("s_add_u32", "s59", "s59", 8192), salu("s_sub_u32", "s60", "s60", 1), scmp("s_cmp_lg_u32", "s60", 0),
          raw("s_cbranch_scc1 L_slow1", "branch", rd=["scc"])]
    for qt in range(6):
        for op in ("v_permlane32_swap_b32", "v_permlane16_swap_b32"):
            o += [valu("v_mov_b32", vt, vM[qt]), nop(2), perm(op, vt, vM[qt]), valu("v_max_f32", vM[qt], vM[qt], vt)]
        o += [valu("v_mov_b32", f"v{lacc(qt) + r}", 0) for r in range(4)]
    o += [valu("v_accvgpr_write_b32", f"a{r}", 0) for r in range(192)]
    o += [salu("s_mov_b32", "s59", "s58"), salu("s_mov_b32", "s60", 16), label("L_slow2")] + scores()
    for qt in range(6):
        s = sreg(qt)
        o += [valu("v_sub_f32", f"v{s + r}", f"v{s + r}", vM[qt]) for r in range(8)]
        o += [valu("v_exp_f32", f"v{s + r}", f"v{s + r}") for r in range(8)]
        o += [valu("v_cvt_pk_bf16_f32", f"v{s + r}", f"v{s + 2 * r}", f"v{s + 2 * r + 1}") for r in range(4)]
    o += [salu("s_add_u32", "s57", "s59", 4096)]
    for dt in range(8):
        for j in range(8):
            o += [vload(("v", 184 + j), 1, vVo, S_V, "s57" if j >= 4 else "s59", (j & 3) * 256 + 32 * dt, op="buffer_load_ushort")]
        o += [drain()]
        o += [valu("v_lshl_or_b32", f"v{VFR + r}", f"v{185 + 2 * r}", 16, f"v{184 + 2 * r}") for r in range(4)]
        o += [mfma(16, ("a", oacc(qt, dt)), ("v", VFR), ("v", sreg(qt)), ("a", oacc(qt, dt))) for qt in range(6)]
        o += [nop(8)]
    o += [mfma(16, ("v", lacc(qt)), ("v", ONES), ("v", sreg(qt)), ("v", lacc(qt))) for qt in range(6)] + [nop(16)]
    o += [salu("s_add_u32", "s59", "s59", 8192), salu("s_sub_u32", "s60", "s60", 1), scmp("s_cmp_lg_u32", "s60", 0),
          raw("s_cbranch_scc1 L_slow2", "branch", rd=["scc"])]
    o += [nop(16)]
    if OPT["one1"]:
        for qt in range(6):
            o += lspread(qt, vt)
    o += [drain(), scmp("s_cmp_eq_u32", sIT, 1), raw("s_cbranch_scc1 L_back2", "branch", rd=["scc"]), raw("s_branch L_back1", "branch")]
    return o


def srd(base, lo, hi, nbytes):
    return [salu("s_mov_b32", f"s{base}", lo), salu("s_and_b32", f"s{base + 1}", hi, "0xffff"),
            salu("s_mov_b32", f"s{base + 2}", nbytes), salu("s_mov_b32", f"s{base + 3}", "0x20000")]


def decode_wg():
    return [salu("s_and_b32", "s3", "s2", 7), salu("s_lshr_b32", "s4", "s2", 6), salu("s_lshl_b32", "s3", "s3", 2),
            salu("s_add_u32", "s3", "s3", "s4"), salu("s_lshr_b32", "s4", "s2", 3), salu("s_and_b32", "s4", "s4", 7),
            salu("s_lshr_b32", "s5", "s3", 4), salu("s_and_b32", "s6", "s3", 15)]


def code_touch():
    return [salu("s_lshr_b32", "s68", "s2", 3), salu("s_lshl_b32", "s68", "s68", 11),
            valu("v_lshrrev_b32", "v11", 6, "v0"), valu("v_and_b32", "v12", 3, "v0"), valu("v_lshlrev_b32", "v11", 9, "v11"),
            valu("v_lshl_add_u32", "v11", "v12", 7, "v11"), valu("v_add_u32", "v11", "s68", "v11"),
            Ins("global_load_dword v253, v11, s[96:97]", "vld", rd=["v11", "s96", "s97"], wr=["v253"])]


def kv_patterns():
    i, a, b, c = "v1", "v2", "v3", "v4"
    o = [valu("v_lshrrev_b32", a, 4, i), valu("v_and_b32", b, 15, i),
         valu("v_xor_b32", c, a, b), valu("v_lshlrev_b32", c, 4, c), valu("v_lshl_add_u32", vK[0], a, 8, c)]
    o += [valu("v_xor_b32", vK[m], m << 6, vK[0]) for m in range(1, 4)]
    o += [valu("v_lshlrev_b32", "v5", 1, a), valu("v_xor_b32", "v5", "v5", b), valu("v_lshlrev_b32", "v5", 4, "v5"),
          valu("v_lshl_add_u32", vV[0], a, 8, "v5"), valu("v_xor_b32", vV[1], 128, vV[0])]
    return o


def prologue():
    o = [scmp("s_cmp_ge_u32", "s2", 256), raw("s_cbranch_scc1 L_end", "branch", rd=["scc"])]
    o += [raw("s_getpc_b64 s[96:97]", wr=["s96", "s97"]), label("L_pc")]
    if OPT["codepf"] == 2:
        o += code_touch()
    o += decode_wg()
    o += [salu("s_mul_i32", "s7", "s5", 40), salu("s_add_u32", "s68", "s0", "s7"), salu("s_addc_u32", "s69", "s1", 0),
          raw("s_load_dwordx8 s[56:63], s[68:69], 0", wr=regs("s", 56, 8)),
          raw("s_load_dwordx2 s[94:95], s[68:69], 32", wr=["s94", "s95"]),
          raw("s_load_dwordx4 s[88:91], s[0:1], 88", wr=regs("s", 88, 4)),
          raw("s_load_dwordx2 s[92:93], s[0:1], 80", wr=["s92", "s93"])]
    i, a, b, c = "v1", "v2", "v3", "v4"
    o += [valu("v_lshrrev_b32", a, 6, "v0"), valu("v_and_b32", i, 63, "v0"),
          valu("v_readfirstlane_b32", sWAVE, a), valu("v_lshlrev_b32", vL16, 4, i)]
    o += [valu("v_lshrrev_b32", a, 4, i), valu("v_and_b32", b, 7, i), valu("v_lshrrev_b32", "v5", 3, i),
          valu("v_and_b32", c, 1, a), valu("v_lshlrev_b32", c, 1, c), valu("v_xor_b32", c, c, b), valu("v_lshlrev_b32", c, 4, c),
          valu("v_lshl_add_u32", vW[0], "v5", 13, c),
          valu("v_xor_b32", vW[1], 64, vW[0]), valu("v_add_u32", vW[1], 64512, vW[1]),
          valu("v_add_u32", vW[2], 2 * 64512, vW[0]), valu("v_add_u32", vW[3], 2 * 64512, vW[1])]
    o += [valu("v_xor_b32", c, a, b), valu("v_lshlrev_b32", c, 4, c), valu("v_mul_u32_u24", "v6", 1280, "v5"),
          valu("v_add_u32", vX[0], "v6", c),
          valu("v_xor_b32", vX[1], 64, vX[0]), valu("v_add_u32", vX[1], 9216, vX[1]),
          valu("v_add_u32", vX[2], 2 * 9216, vX[0]), valu("v_add_u32", vX[3], 2 * 9216, vX[1])]
    o += [salu("s_lshr_b32", "s70", sWAVE, 1), salu("s_and_b32", "s71", sWAVE, 1),
          salu("s_lshl_b32", sW4K, sWAVE, 12), salu("s_mul_i32", sW6K, sWAVE, 6144),
          salu("s_lshl_b32", "s7", "s4", 2), salu("s_add_u32", "s7", "s7", "s70"),
          salu("s_lshl_b32", sWQ, "s71", 18), salu("s_lshl_b32", sT0, "s7", 8), salu("s_add_u32", sWQ, sWQ, sT0),
          salu("s_mul_i32", sX, "s6", 245760), salu("s_mul_i32", sT0, sWAVE, 61440), salu("s_add_u32", sX, sX, sT0)]
    o += [raw("s_waitcnt lgkmcnt(0)", "drainlg")]
    o += srd(S_X, "s56", "s57", 3932160) + srd(S_WQ, "s62", "s63", 5242880)
    o += set_pf_proj()
    for k in [("W", 0, 0), ("X", 0), ("W", 0, 1), ("W", 1, 0), ("X", 1), ("W", 1, 1)]:
        for pre, ds in unit_dmas(k):
            o += pre[::-1] + ds
    if OPT["warmw"]:
        o += [salu("s_mul_i32", "s68", "s6", 40 * 8192), salu("s_lshl_b32", "s69", "s4", 10), salu("s_add_u32", "s68", "s68", "s69"),
              salu("s_mul_i32", "s69", sWAVE, 10 * 8192), salu("s_add_u32", "s68", "s68", "s69"),
              valu("v_lshlrev_b32", b, 7, b), valu("v_lshl_add_u32", "v6", "v5", 13, b), valu("v_and_b32", c, 1, "v5"),
              valu("v_lshl_add_u32", c, c, 13, b), salu("s_add_u32", "s69", "s68", 8 * 8192)]
        o += [vload(("v", 254), 1, "v6", S_WQ, "s68", 0), vload(("v", 255), 1, c, S_WQ, "s69", 0)]
    o += [salu("s_lshr_b32", "s68", "s2", 3), salu("s_lshl_b32", "s68", "s68", 2), salu("s_add_u32", "s68", "s68", sWAVE), salu("s_lshl_b32", sCP, "s68", 8)]
    if OPT["codepf"] == 1:
        o += code_touch()
    o += srd(S_WO, "s94", "s95", 5242880)
    o += [salu("s_lshl_b32", "s68", "s6", 3), salu("s_add_u32", "s68", "s68", "s4"),
          salu("s_mul_i32", sWOS, "s68", 40960), salu("s_mul_i32", sT0, sWAVE, 10240), salu("s_add_u32", sWOS, sWOS, sT0)]
    o += srd(S_K, "s58", "s59", 67108864) + srd(S_V, "s60", "s61", 67108864)
    o += srd(S_OST, "s90", "s91", WS_WOT) + srd(S_FLG, "s88", "s89", 256)
    o += [salu("s_add_u32", "s68", "s90", WS_WOT), salu("s_addc_u32", "s69", "s91", 0)] + srd(S_WOT, "s68", "s69", 2 * WOT_BLK)
    o += [salu("s_lshl_b32", sFG, "s3", 2), salu("s_lshl_b32", sFB, "s5", 6),
          valu("v_cmp_eq_u32", "vcc", 0, "v0"), valu("v_mov_b32", "v10", "0x1000"), valu("v_mov_b32", f"v{ONES}", "0x3f803f80"),
          valu("v_cndmask_b32", vFLG, "v10", 0, "vcc"),
          ]
    if OPT["one1"]:
        o += [valu("v_and_b32", "v10", 15, "v0"), valu("v_cmp_eq_u32", "vcc", 0, "v10"), valu("v_cndmask_b32", f"v{ONES}", 0, f"v{ONES}", "vcc")]
    o += [valu("v_mov_b32", f"v{ONES + r}", f"v{ONES}") for r in range(1, 4)]
    if OPT["prof"]:
        o += [salu("s_add_u32", "s68", "s90", WS_PROF), salu("s_addc_u32", "s69", "s91", 0)] + srd(S_PROF, "s68", "s69", 1 << 20)
        o += [salu("s_lshl_b32", sPROF, "s2", 2), salu("s_add_u32", sPROF, sPROF, sWAVE), salu("s_lshl_b32", sPROF, sPROF, 10)]
        o += prof_stamp(0, 8)
    o += [salu("s_lshl_b32", sKV, "s6", 5), salu("s_add_u32", sKV, sKV, "s7"), salu("s_lshl_b32", sKV, sKV, 17),
          salu("s_lshl_b32", sT0, "s71", 12),
          salu("s_lshr_b32", sROT, "s2", 3), salu("s_lshl_b32", sT1, "s2", 1), salu("s_add_u32", sROT, sROT, sT1),
          salu("s_and_b32", sROT, sROT, 0 if OPT["norot"] else 15), salu("s_lshl_b32", sROT, sROT, 13), salu("s_add_u32", sROT, sROT, sT0)]
    if OPT["tlbw"]:
        for n, (r, so) in enumerate(((S_K, sKV), (S_V, sKV), (S_WO, sWOS))):
            o += [Ins(f"buffer_load_dword v{244 + n}, off, s[{r}:{r + 3}], {so} nt", "vld", rd=[so] + regs("s", r, 4))]
    if OPT["kpro"]:
        o += kv_patterns()
        for k in [("K", 0), ("V", 0), ("K", 1)][:OPT["kpro"]]:
            for pre, ds in unit_dmas(k, sE):
                o += pre + [nop(1)] + ds
    o += [salu("s_mul_i32", sO, "s3", O_GRP), salu("s_mul_i32", sT0, "s71", 786432), salu("s_add_u32", sO, sO, sT0),
          salu("s_lshr_b32", sT0, "s4", 1), salu("s_mul_i32", sT0, sT0, 16 * 12288), salu("s_add_u32", sO, sO, sT0),
          salu("s_and_b32", sT0, "s4", 1), salu("s_mul_i32", sT0, sT0, 4 * 12288), salu("s_add_u32", sO, sO, sT0),
          salu("s_mul_i32", sT0, "s70", 2 * 12288), salu("s_add_u32", sO, sO, sT0)]
    o += [salu("s_lshl_b32", "s68", "s6", 3), salu("s_add_u32", "s68", "s68", "s4"),
          salu("s_lshr_b32", sT0, "s68", 1), salu("s_and_b32", sT1, sT0, "0x33"),
          salu("s_and_b32", "s69", sT0, 4), salu("s_lshl_b32", "s69", "s69", 1), salu("s_or_b32", sT1, sT1, "s69"),
          salu("s_and_b32", "s69", sT0, 8), salu("s_lshr_b32", "s69", "s69", 1), salu("s_or_b32", sT1, sT1, "s69"),
          salu("s_mul_i32", sWOD, sT1, 20480),
          salu("s_and_b32", sT0, "s68", 1), salu("s_lshl_b32", sT0, sT0, 11), salu("s_add_u32", sWOD, sWOD, sT0),
          salu("s_mul_i32", sT0, "s5", WOT_BLK), salu("s_add_u32", sWOD, sWOD, sT0),
          salu("s_lshl_b32", sT0, "s70", 12), salu("s_add_u32", sWOD, sWOD, sT0),
          salu("s_lshl_b32", sT0, "s71", 10), salu("s_add_u32", sWOD, sWOD, sT0),
          salu("s_mul_i32", sT0, "s70", 1310720 - 20480), salu("s_add_u32", sWOX, sWOD, sT0)]
    o += [salu("s_add_u32", "s68", "s3", "s4"), salu("s_and_b32", "s68", "s68", 3), salu("s_mov_b32", sQT, "0x%x" % TBLQ[0])]
    for r in range(1, 4):
        o += [scmp("s_cmp_eq_u32", "s68", r), salu("s_cselect_b32", sQT, "0x%x" % TBLQ[r], sQT)]
    cbits = struct.unpack("<I", struct.pack("<f", math.log2(math.e) / math.sqrt(128.0)))[0]
    o += [salu("s_mov_b32", sC, "0x%x" % cbits), salu("s_mov_b32", sHI, "0x4e800000"), salu("s_mov_b32", sLO, "0x30800000"),
          salu("s_mov_b32", sIT, 0)]
    if not OPT["kpro"]:
        o += kv_patterns()
    o += [salu("s_lshl_b32", "s69", "s70", 13), salu("s_mul_i32", "s68", "s71", 12288), salu("s_add_u32", "s68", "s68", XS[0]),
          valu("v_bfe_u32", "v8", i, 2, 2), valu("v_and_b32", "v9", 3, i)]
    o += [valu("v_lshl_add_u32", c, b, 8, c), valu("v_add_u32", c, KWANT[15], c), valu("v_add_u32", kA[0], "s69", c)]
    o += [valu("v_xor_b32", kA[j], j << 6, kA[0]) for j in range(1, 4)]
    o += [valu("v_lshl_add_u32", "v5", a, 2, "v8"), valu("v_lshlrev_b32", c, 8, "v5"), valu("v_and_b32", "v6", 7, "v5"),
          valu("v_lshl_add_u32", c, "v6", 5, c), valu("v_lshl_add_u32", c, "v9", 3, c),
          valu("v_add_u32", c, VWANT[0], c), valu("v_add_u32", vA[0], "s69", c)]
    o += [valu("v_xor_b32", vA[d], d << 5, vA[0]) for d in range(1, 8)]
    o += [valu("v_lshl_add_u32", c, a, 3, "v8"), valu("v_lshlrev_b32", c, 7, c),
          valu("v_and_b32", "v5", 2, "v8"), valu("v_and_b32", "v7", 1, a), valu("v_lshl_add_u32", "v5", "v7", 2, "v5"),
          valu("v_xor_b32", "v5", "v5", "v9"), valu("v_lshl_add_u32", c, "v5", 4, c), valu("v_add_u32", wA[0], "s69", c),
          valu("v_xor_b32", wA[1], 64, wA[0])]
    o += [valu("v_lshrrev_b32", "v5", 1, b), valu("v_xor_b32", "v5", "v5", a),
          valu("v_lshlrev_b32", "v5", 4, "v5"), valu("v_lshl_add_u32", c, b, 7, "v5"),
          valu("v_xor_b32", "v5", 64, c), valu("v_add_u32", xA[0], "s68", c), valu("v_add_u32", xA[1], "s68", "v5")]
    o += [salu("s_lshl_b32", "s68", "s70", 2), salu("s_lshl_b32", "s69", "s71", 3), salu("s_add_u32", "s69", "s69", WOJ_ADDR),
          valu("v_lshrrev_b32", c, 1, a), valu("v_lshlrev_b32", c, 12, c), valu("v_lshl_add_u32", c, "v6", 7, c),
          valu("v_add_u32", c, "s69", c), valu("v_add_u32", "v5", "s68", "v9"), valu("v_lshrrev_b32", "v6", 1, "v6"),
          valu("v_xor_b32", "v5", "v5", "v6"), valu("v_lshl_add_u32", vJ, "v5", 4, c)]
    o += [needvm([("W", 0, 0), ("X", 0)]), barrier()] + first_reads(0)
    return o


def acc2(pi, xy, qi):
    return ((pi * 6 + qi) * 2 + xy) * 4


def a2(st, pi, ks, xy):
    if st == 0:
        return (240 if pi == 0 else 48 + 16 * pi) + 8 * ks + 4 * xy
    return (48 if pi == 0 else 112 + 16 * pi) + 8 * ks + 4 * xy


def b2(st, qi, ks):
    return (192 if st == 0 else 0) + 8 * qi + 4 * ks


V2A = ["v%d" % i for i in range(240, 245)]
V2B = ["v245", "v246", "v247", "v248", "v249", "v253"]
V2L, V2W, V2P, V2X = "v252", "v254", "v255", "v251"
S2A, S2B, S2OUT = S_WQ, 12, 8
TA, TB, sAB, sBB = 56, 62, "s43", "s44"


def k2_loads_A(st, pi, soff=None):
    return [vload(("a", a2(st, pi, ks, xy)), 4, V2A[pi], S2A, soff or sA2, ks * 2048 + xy * 1024, flags=SC1) for xy in range(2) for ks in range(2)]


def k2_loads_B(st, qi):
    return [vload(("a", b2(st, qi, ks)), 4, V2B[qi], S2B, sB2, ks * 1024, flags=SC1) for ks in range(2)]


def k2_lds_A(st, pi):
    out = []
    for xy in range(2):
        for ks in range(2):
            r = [r for r, (s_, p_, off) in PF2.items() if (s_, p_) == (st, pi) and (r not in ("s87", "s99") or off == 2048 * ks)][0]
            key = [k for k, rs in sPF.items() if r in rs][0]
            if key[0] == "W":
                out.append(ds_read("ds_read_b128", ("a", a2(st, pi, ks, xy)), 4, V2W, U[key]["addr"] + ks * 2048 + xy * 1024))
            elif key[0] == "P":
                out.append(ds_read("ds_read_b128", ("a", a2(st, pi, ks, xy)), 4, V2P, ks * 2048 + xy * 1024))
            elif r == sPF[key][0]:
                out.append(ds_read("ds_read_b128", ("a", a2(st, pi, ks, xy)), 4, V2X, U[key]["addr"] - XS[0] + ks * 2048 + xy * 1024))
            else:
                out.append(ds_read("ds_read_b128", ("a", a2(st, pi, ks, xy)), 4, V2X, U[key]["addr"] - XS[0] + 4096 + xy * 1024))
    return out


def k2_steps(S, first, loadA, loadB, pend, check=False, late=(), final=None):
    for st in range(2):
        q0 = S.n()
        tiles = [(pi, xy, qi) for pi in range(5) for xy in range(2) for qi in range(6)]
        if final is not None and st == 1:
            tiles = [t for t in tiles if t[2] >= 3] + [t for t in tiles if t[2] < 3]
            for n, x in enumerate(final[0]):
                S.put(q0 + 2 + n, x)
            for n, x in enumerate(final[1]):
                S.put(q0 + 61 + 2 * n, x)
        for pi, xy, qi in tiles:
            for ks in range(2):
                acc = ("v", acc2(pi, xy, qi))
                S.add(mfma(16, acc, ("a", a2(st, pi, ks, xy)), ("a", b2(st, qi, ks)),
                           None if (first and st == 0 and ks == 0) else acc))
        pos = [int(0.5 + 3.75 * n) for n in range(32)]
        if pend[st]:
            ls = k2_loads_A(1 - st, 4)
            S.put(q0 + pos[0], ls[2])
            S.put(q0 + pos[1], ls[3])
            for n, x in enumerate(next_off(sA2, TA, sAB, 20480)):
                S.put(q0 + pos[1] + 1 + n, x)
        if first and st == 0:
            for n, (pre, l) in enumerate(late):
                S.put(q0 + 6 * n + 2, *pre)
                S.put(q0 + 6 * n + 3, l)
            for n, r in enumerate(k2_lds_A(1, 0) + k2_lds_A(1, 1) + k2_lds_A(1, 2)):
                S.put(q0 + 6 * n + 5 if n < 8 else q0 + 54 + 4 * (n - 8), r)
            S.put(q0 + 70, valu("v_add_u32", V2P, D[9] - D[5], V2P))
            for n, r in enumerate(k2_lds_A(1, 3)):
                S.put(q0 + 73 + 4 * n, r)
        elif loadB[st]:
            for n, l in enumerate([l for qi in range(6) for l in k2_loads_B(1 - st, qi)]):
                S.put(q0 + pos[2 + n], l)
            for n, x in enumerate(next_off(sB2, TB, sBB, 12288)):
                S.put(q0 + pos[13] + 1 + n, x)
        if loadA[st]:
            n = 14
            for pi in range(5):
                ls = k2_loads_A(st, pi)
                for x, l in enumerate(ls if pi < 4 else ls[:2]):
                    assert pos[n] >= 24 * pi + 11 + 12 * (x >> 1), (pi, x, pos[n])
                    S.put(q0 + pos[n], l)
                    n += 1
        if first and st == 1:
            S.put(q0 + 110, needvm(["ost"]), barrier())
            S.put(q0 + 111, valu("v_mov_b32", V2P, "0x100"))
            S.put(q0 + 114, atomic_add(V2P, sFG))
        if check and st == 1:
            S.put(q0 + 1, scmp("s_cmp_eq_u32", sCNT, 5), salu("s_cselect_b32", sWANT, 8, 0), salu("s_cselect_b32", sPL, sFG, "0x1000"))
            S.put(q0 + 2, poll_load(V2P, sPL))
        if check and st == 0:
            S.put(q0 + 1, valu("v_readfirstlane_b32", sQ, V2P))
            S.put(q0 + 6, salu("s_bfe_u32", sQ, sQ, "0x80008"), scmp("s_cmp_lt_u32", sQ, sWANT),
                  raw("s_cbranch_scc1 L_spin2", "branch", rd=["scc"]), label("L_spin2_back"))


def k2_first(S, late):
    seq = [(0, p) for p in range(4)] + [(1, p) for p in range(3)] + [(0, 4), (1, 3), (1, 4)]
    at = {}
    for st, pi in seq:
        at[(st, pi)] = S.n()
        for xy in range(2):
            for qi in range(6):
                for ks in range(2):
                    acc = ("v", acc2(pi, xy, qi))
                    S.add(mfma(16, acc, ("a", a2(st, pi, ks, xy)), ("a", b2(st, qi, ks)), None if (st == 0 and ks == 0) else acc))
    for n, (pre, l) in enumerate(late):
        S.put(13 * n + 2, *pre)
        S.put(13 * n + 3, l)
    assert 13 * len(late) < at[(0, 4)]
    g = 5
    for pi in range(4):
        if pi == 3:
            S.put(g, valu("v_add_u32", V2P, D[9] - D[5], V2P))
            g += 2
        for r in k2_lds_A(1, pi):
            while S.fixed.get(g):
                g += 1
            S.put(g, r)
            g += 4
    items = []
    for pi in range(5):
        for x, l in enumerate(k2_loads_A(0, pi, sSO)):
            items.append((l, at[(0, pi)] + 11 + 12 * (x >> 1), 240 + 24 * pi + 12 * (x >> 1)))
        for x, l in enumerate(k2_loads_A(1, pi)[:4 if pi < 4 else 2]):
            items.append((l, at[(1, pi)] + 11 + 12 * (x >> 1), 360 + 24 * pi + 12 * (x >> 1)))
    for qi in range(6):
        for ks, l in enumerate(k2_loads_B(0, qi)):
            items.append((l, at[(0, 4)] + 12 + 2 * qi + ks, 200 + 2 * qi + ks))
    items.sort(key=lambda i: i[2])
    g, lastB = 11, 0
    while items:
        c = [i for i in items if i[1] <= g]
        if c and not any(S.fixed.get(k) and any(j.kind in ("vld", "vst") for j in S.fixed[k]) for k in ((g - 2, g - 1, g + 1) if g < 180 else (g - 1, g + 1))) and not S.fixed.get(g):
            S.put(g, c[0][0])
            if sB2 in c[0][0].rd:
                lastB = g
            items.remove(c[0])
        g += 1
        assert g < 240, items
    for n, x in enumerate(next_off(sB2, TB, sBB, 12288)):
        S.put(lastB + 1 + n, x)
    g = 226
    while S.fixed.get(g) or S.fixed.get(g + 1) or S.fixed.get(g + 3):
        g += 1
    S.put(g, needvm(["ost"]), barrier())
    S.put(g + 1, valu("v_mov_b32", V2P, "0x100"))
    S.put(g + 3, atomic_add(V2P, sFG))


def spin(name, back, dsts, soffs, conds):
    o = [label(name), salu("s_mov_b32", sSPIN, 0), label(name + "_loop"), raw("s_sleep 8")]
    o += [poll_load(d, so) for d, so in zip(dsts, soffs)]
    o += [drain(), salu("s_add_u32", sSPIN, sSPIN, 1), scmp("s_cmp_gt_u32", sSPIN, "0x20000"),
          raw(f"s_cbranch_scc1 {back}", "branch", rd=["scc"])]
    for d, (sh, msk, want) in zip(dsts, conds):
        o += [valu("v_readfirstlane_b32", sQ, d), nop(4)]
        if sh:
            o += [salu("s_lshr_b32", sQ, sQ, sh)]
        if msk:
            o += [salu("s_and_b32", sQ, sQ, msk)]
        o += [scmp("s_cmp_lt_u32", sQ, want), raw(f"s_cbranch_scc1 {name}_loop", "branch", rd=["scc"])]
    o += [raw(f"s_branch {back}", "branch")]
    return o


def phase2():
    o = [valu("v_readfirstlane_b32", sQ, vPOLL[0]), valu("v_mov_b32", V2L, vL16),
         salu("s_lshr_b32", "s84", "s4", 2), salu("s_mul_i32", "s7", "s3", O_GRP), salu("s_mul_i32", sPL, "s84", 786432),
         salu("s_add_u32", "s7", "s7", sPL),
         salu("s_and_b32", sQ, sQ, "0xff"),
         scmp("s_cmp_lt_u32", sQ, 8), raw("s_cbranch_scc1 L_spin1", "branch", rd=["scc"]), label("L_spin1_back")]
    o += [salu("s_add_u32", "s58", "s90", "s7"), salu("s_addc_u32", "s59", "s91", 0)] + srd(S2B, "s58", "s59", 786432)
    o += [salu("s_and_b32", "s85", "s4", 3), salu("s_and_b32", "s32", sWAVE, 1), salu("s_lshr_b32", "s33", sWAVE, 1),
          salu("s_mul_i32", sBB, sWAVE, 16 * 12288), salu("s_mul_i32", sAB, sWAVE, 16 * 20480),
          salu("s_mov_b64", f"s[{TB}:{TB + 1}]", "s[34:35]"), salu("s_lshr_b64", f"s[{TA}:{TA + 1}]", "s[34:35]", 4)]
    o += next_off(sB2, TB, sBB, 12288)
    o += [valu("v_add_u32", V2W, sW4K, V2L), salu("s_add_u32", "s7", sW6K, XS[0]), valu("v_add_u32", "v22", "s7", V2L)]
    o += [scmp("s_cmp_eq_u32", "s33", 0)]
    o += [salu("s_cselect_b32", f"s{47 + q}", q, 2 - q) for q in range(3)]
    o += [salu("s_cselect_b32", f"s{36 + pi}", pi, 4 - pi) for pi in range(5)]
    o += [salu("s_mul_i32", "s34", "s32", 3), salu("s_sub_u32", "s35", 3, "s34")]
    for q in range(3):
        o += [salu("s_add_u32", f"s{50 + q}", f"s{47 + q}", "s35"), salu("s_add_u32", f"s{47 + q}", f"s{47 + q}", "s34")]
    o += [valu("v_mov_b32", f"v{16 + q}", vR[q]) for q in range(6)]
    for qi in range(6):
        o += [salu("s_lshl_b32", "s7", f"s{47 + qi}", 11), valu("v_add_u32", V2B[qi], "s7", V2L)]
    for qi in range(6):
        o += k2_loads_B(0, qi)
    o += next_off(sB2, TB, sBB, 12288)
    save = list(vR)
    vR[:] = [f"v{16 + q}" for q in range(6)]
    nl = 12 if OPT["pace"] else 8
    eg = epilogue_groups(0, lambda n: 240 - 4 * (24 - n) - (0 if OPT["pace"] else 16) if n >= 24 - nl else 32 + 4 * n, V2L)
    vR[:] = save
    b1 = [l for qi in range(6) for l in k2_loads_B(1, qi)]
    for n, (v, pre, st, imm) in enumerate(eg):
        m = b1[2 * (n - 8):2 * (n - 8) + 2] if 8 <= n < 14 else []
        o += v[:8] + m[:1] + v[8:16] + m[1:] + v[16:]
        if OPT["pace"]:
            if n % 2 == 0:
                o += eg[n // 2][1] + [eg[n // 2][2]]
        elif n < 16:
            o += pre + [st]
        if n == 15:
            o += [needvm(list(sPF)), valu("v_mov_b32", V2X, "v22")]
            for pi in range(5):
                o += [salu("s_lshl_b32", "s7", f"s{36 + pi}", 12), valu("v_add_u32", V2A[pi], "s7", V2L)]
            o += next_off(sPL, TA, sAB, 20480)
            if OPT["pace"]:
                o += next_off(sSO, TA, sAB, 20480)
            o += next_off(sA2, TA, sAB, 20480)
        if 16 <= n < 21:
            o += k2_lds_A(0, n - 16)
    late = []
    for n, g in enumerate(eg[24 - nl:]):
        st = vstore(("v", 240 - 4 * (nl - n) - (0 if OPT["pace"] else 16)), 4, V2L, S_OST, sE, g[3], tag="ost", flags=SC1)
        late.append((g[1], st))
    o += k2_loads_A(1, 4, sPL) + [valu("v_add_u32", V2P, D[5], V2W)]
    o += next_off(sB2, TB, sBB, 12288) + [salu("s_mov_b32", sWANT, 0)]
    o += prof_stamp(1, 30)
    o += srd(S2OUT, "s92", "s93", 7864320)
    o += [salu("s_mul_i32", sOB, "s6", 192 * 2560), salu("s_mul_i32", "s7", "s84", 96 * 2560), salu("s_add_u32", sOB, sOB, "s7"),
          salu("s_mul_i32", "s7", "s5", 1280), salu("s_add_u32", sOB, sOB, "s7"),
          salu("s_mul_i32", "s7", "s85", 320), salu("s_add_u32", sOB, sOB, "s7"), salu("s_mov_b32", sCNT, 6)]
    S0 = Sched()
    if OPT["pace"]:
        k2_first(S0, late)
    else:
        k2_steps(S0, True, [True, True], [True, True], [False, True], late=late)
    S0.order_fixed()
    first = S0.build()
    S1 = Sched()
    k2_steps(S1, False, [True, True], [True, True], [True, True], check=True)
    if OPT["prof"]:
        S1.put(3, raw("s_memrealtime s[76:77]", wr=["s76", "s77"]), raw("s_waitcnt lgkmcnt(0)", "drainlg"),
               salu("s_mov_b32", "s101", "s100"), salu("s_mov_b32", "s100", "s99"), salu("s_mov_b32", "s99", "s98"),
               salu("s_mov_b32", "s98", "s97"), salu("s_mov_b32", "s97", "s96"), salu("s_mov_b32", "s96", "s76"))
    S1.put(237, salu("s_sub_u32", sCNT, sCNT, 1))
    S1.order_fixed()
    loop = [label("L_k2")] + S1.build() + [scmp("s_cmp_lg_u32", sCNT, 0), raw("s_cbranch_scc1 L_k2", "branch", rd=["scc"])]
    R1, R2, i, a, V2O = V2A[0], V2A[1], V2A[2], V2A[3], V2A[4]
    setup = [salu("s_mul_i32", "s7", sWAVE, 30720), valu("v_add_u32", V2W, "s7", V2L), valu("v_lshrrev_b32", i, 4, V2L),
             valu("v_and_b32", a, 15, i), valu("v_mul_u32_u24", a, 2560, a), valu("v_lshrrev_b32", i, 4, i),
             valu("v_lshl_add_u32", V2O, i, 4, a),
             salu("s_xor_b32", sPL, sWAVE, 1), salu("s_sub_u32", sPL, sPL, sWAVE), salu("s_mul_i32", "s7", sPL, 30720),
             valu("v_add_u32", R1, "s7", V2W),
             salu("s_xor_b32", sPL, sWAVE, 3), salu("s_sub_u32", sPL, sPL, sWAVE), salu("s_mul_i32", "s7", sPL, 30720),
             valu("v_add_u32", R2, "s7", V2W)]
    sent = [(pi, xy, qi) for pi in range(5) for qi in range(3, 6) for xy in range(2)]
    wr = {t: ds_write("ds_write_b128", V2W, ("v", acc2(*t)), 4, n * 1024) for n, t in enumerate(sent)}
    S2 = Sched()
    e = []
    if OPT["redov"]:
        order = [wr[(pi, xy, qi)] for pi in range(5) for xy in range(2) for qi in range(3, 6)]
        k2_steps(S2, False, [False, False], [True, False], [True, False], final=(setup, order[:29]))
        e = order[29:]
    else:
        k2_steps(S2, False, [False, False], [True, False], [True, False])
        e = setup + list(wr.values())
    S2.order_fixed()
    last = S2.build()
    e += [needlgkm0(), barrier()] + prof_stamp(8, 234)
    for s in list(range(7, 15)) + list(range(7)):
        pi, q = divmod(s, 3)
        e += [ds_read("ds_read_b128", ("v", acc2(pi, xy, q + 3)), 4, R1, (2 * s + xy) * 1024) for xy in range(2)]
    for s in list(range(7, 15)) + list(range(7)):
        pi, q = divmod(s, 3)
        d, t = acc2(pi, 0, q), acc2(pi, 0, q + 3)
        e += [valu("v_add_f32", f"v{d + r}", f"v{d + r}", f"v{t + r}") for r in range(8)]
        if s >= 7:
            e += [ds_write("ds_write_b128", R1, ("v", acc2(pi, xy, q)), 4, (2 * s + xy) * 1024) for xy in range(2)]
    e += [needlgkm0(), barrier()]
    for s in range(8):
        pi, q = divmod(s, 3)
        for xy in range(2):
            e += [ds_read("ds_read_b128", ("v", acc2(pi, xy, q + 3)), 4, R2, (2 * (14 - s) + xy) * 1024)]
    for s in range(8):
        pi, q = divmod(s, 3)
        d0, t0 = acc2(pi, 0, q), acc2(pi, 0, q + 3)
        e += [valu("v_add_f32", f"v{d0 + r}", f"v{d0 + r}", f"v{t0 + r}") for r in range(8)]
        e += [valu("v_cvt_pk_bf16_f32", f"v{d0 + r}", f"v{d0 + 2 * r}", f"v{d0 + 2 * r + 1}") for r in range(4)]
        e += [salu("s_mul_i32", "s7", f"s{47 + q}", 40960), salu("s_lshl_b32", sPL, f"s{36 + pi}", 6),
              salu("s_add_u32", "s7", "s7", sPL), salu("s_add_u32", sSO, "s7", sOB),
              vstore(("v", d0), 4, V2O, S2OUT, sSO, 0, flags=OPT["outf"])]
    e += prof_stamp(9, 234)
    if OPT["prof"]:
        for n in range(6):
            e += [valu("v_mov_b32", "v234", 1), valu("v_mov_b32", "v235", f"s{101 - n}"), pstore(234, 2 + n), nop(4)]
    e += [label("L_end"), raw("s_endpgm")]
    sp1 = spin("L_spin1", "L_spin1_back", vPOLL[:1], [sFG], [(0, "0xff", 8)]) + spin("L_spin3", "L_spin3_back", vPOLL[1:], [sFB], [(16, 0, 128)])
    sp2 = spin("L_spin2", "L_spin2_back", [V2P], [sFG], [(8, "0xff", 8)])
    return o, first, loop, last, e, sp1, sp2


def kernel():
    pro = prologue()
    q1 = q_phase(False)
    full = []
    for last in (False, True):
        _alt[0] = 0
        full.append(a_phase(last))
    cut = [[n for n, x in enumerate(f) if x.text == "L_CUT:"][0] for f in full]
    assert [x.text for x in full[0][:cut[0]]] == [x.text for x in full[1][:cut[1]]]
    att = [label("L_att")] + full[0][:cut[0]]
    tails = []
    for v in range(2):
        t = ([label("L_tail2")] if v else []) + full[v][cut[v] + 1:]
        t += [raw("s_cbranch_vccnz L_slow", "branch", rd=["vcc"]), label(f"L_back{v + 1}")]
        t += [valu("v_rcp_f32", vR[qt], f"v{lacc(qt)}") for qt in range(6)]
        t += prof_stamp(29)
        if OPT["prof"]:
            t += [salu("s_add_u32", sPROF, sPROF, 240)]
        tails.append(t)
    q2 = [salu("s_mov_b32", sIT, 1), label("L_q2")] + q_phase(True) + [raw("s_branch L_att", "branch")]
    o, first, loop2, last, e, sp1, sp2 = phase2()
    slow = slow_path()
    parts = [pro, q1, att, tails[0], q2, tails[1], o, first, loop2, last, e, slow, sp1, sp2]
    waits = compute_waits([pro + q1 + att + tails[0] + q2 + att + tails[1] + o + first + loop2 + loop2 + loop2 + last + e, slow, sp1, sp2])
    done = {}
    P = [apply_waits(x, waits, done) for x in parts]
    pads = pad_hazards([P[0] + P[1] + P[2] + P[3] + P[4] + P[2] + P[5] + P[6] + P[7] + P[8] + P[8] + P[9] + P[10], P[11], P[12], P[13]])
    al = ".p2align 3\n"
    return (emit(P[0] + P[1], pads) + al + emit(P[2] + P[3] + P[4], pads) + al + emit(P[5] + P[6] + P[7], pads) + al +
            emit(P[8] + P[9] + P[10] + P[11] + P[12] + P[13], pads) + "L_endcode:\n")


def main():
    kn = NAME + "_kernel"
    s = open("cdna_kernels/" + NAME + ".s.ref").read().split("; Override launch")[0]
    s += "; @launch grid=(256,1,1) block=(256,1,1) lds=163840\n"
    s += '.amdgcn_target "amdgcn-amd-amdhsa--gfx950"\n.text\n'
    s += f".globl {kn}\n.p2align 8\n.type {kn},@function\n{kn}:\n" + kernel()
    s += f""".section .rodata,"a"
.p2align 6
.amdhsa_kernel {kn}
  .amdhsa_next_free_vgpr 512
  .amdhsa_next_free_sgpr 102
  .amdhsa_accum_offset 256
  .amdhsa_group_segment_fixed_size 0
  .amdhsa_kernarg_size 104
  .amdhsa_user_sgpr_count 2
  .amdhsa_user_sgpr_kernarg_segment_ptr 1
  .amdhsa_system_sgpr_workgroup_id_x 1
.end_amdhsa_kernel
"""
    open(sys.argv[1], "w").write(s)


main()
```

```python
import sys, math, struct
from fw3 import *
from orders import orders

NAME = "concat_heads__mha_block_cached__mha_block_cached__near_ridge"
OPT = dict(outf=' sc1', redov=1, one1=1, warmj=0, pk=1, pfq1=1, rot2=2, gate=0, pace=1, lead=3, xpace=0, kvf=' nt', norot=0, tlbw=0, kpro=0, kplan=0, jlate=1, dbgt=0, gstep=2, rotq=3, early=1, uni=0, prof=0, report=False, stg=67, warmw=True, codepf=2, codepf2=14, pf='', pf0=1, pfn=3, pff='', flagbar=12, map=0)
for a in sys.argv[2:]:
    k, v = a.split("=")
    OPT[k] = type(OPT[k])(int(v)) if not isinstance(OPT[k], str) else v

KB = 1024
SC1 = " sc1"
O_GRP = 2 * 786432
WS_WOT = 50331648
WOT_BLK = 5242880
WS_PROF = 64 * 1024 * 1024

S_K, S_V, S_X, S_WQ, S_OST, S_WO, S_WOT = 8, 12, 16, 20, 24, 28, 32
sKV, sWQ, sX, sW4K, sW6K, sO, sIT, sT0, sT1, sC, sWAVE = ["s%d" % i for i in range(36, 47)]
sWOS, sWOD, sWOX, sW5K, sHI, sLO = ["s%d" % i for i in range(47, 53)]
sPROF, sE, sJ = "s53", "s54", "s55"
sQT, sWS, sXS, sW1 = "s50", "s67", "s95", "s63"
sROT, sFG, sFB, sCP = "s62", "s65", "s66", "s64"
sA2, sB2, sPL, sOB, sCNT, sSO, sQ, sSH, sWANT, sSPIN = "s28", "s29", "s30", "s31", "s67", "s68", "s69", "s70", "s71", "s94"
S_PROF, S_FLG = 72, 80
sPF = {("W", 0, 0): ["s84"], ("W", 0, 1): ["s85"], ("X", 0): ["s86", "s87"], ("X", 1): ["s98", "s99"], ("W", 1, 0): ["s100"], ("W", 1, 1): ["s101"],
       ("P", 0): ["s60"], ("P", 1): ["s61"]}
PF2 = {"s84": (0, 0, 0), "s85": (0, 1, 0), "s86": (0, 2, 0), "s98": (0, 3, 0), "s100": (0, 4, 0), "s101": (1, 0, 0),
       "s87": (1, 1, 0), "s99": (1, 1, 2048), "s60": (1, 2, 0), "s61": (1, 3, 0)}
vK = ["v%d" % i for i in range(192, 196)]
vV = ["v196", "v197"]
vW = ["v%d" % i for i in range(198, 202)]
vX = ["v%d" % i for i in range(202, 206)]
kA = ["v%d" % i for i in range(206, 210)]
vA = ["v%d" % i for i in range(210, 218)]
wA = ["v218", "v219"]
xA = ["v220", "v221"]
vJ, vL16 = "v222", "v223"
ONES = 224
EPI = 228
vR = ["v%d" % i for i in range(244, 250)]
vFLG = "v250"
vT = ["v252", "v253"]
vC2 = "v[242:243]"
vPOLL = ["v254", "v255"]

D = [i * 16 * KB for i in range(10)]
XS = [96 * KB, 120 * KB]
WOJ_ADDR = D[4]


def qacc(p, xy, qt):
    return 64 * (qt >> 1) + (2 * p + (qt & 1)) * 8 + 4 * xy


def qf(qt, p):
    return 64 * (qt >> 1) + (2 * p + (qt & 1)) * 4


def sreg(qt):
    return 64 * (qt >> 1) + 32 + 8 * (qt & 1)


def lacc(qt):
    return 64 * (qt >> 1) + 48 + 4 * (qt & 1)


ABUF = [192, 248]


def bx(qt, ks):
    return 200 + 8 * qt + 4 * ks


def kf(kt, ks):
    return 192 + 16 * kt + 4 * ks


def vf(dt):
    return 224 + 4 * dt


def oacc(qt, dt):
    return 32 * qt + 4 * dt


def build_units():
    U = {}
    for i in range(10):
        U[("X", i)] = dict(addr=XS[i % 2], size=24 * KB, iss=i - 2.5, land=i - 1, rel=i - 0.5)
        U[("W", i, 0)] = dict(addr=D[2 * (i % 2)], size=16 * KB, iss=i - 2.5, land=i - 1, rel=i - 0.5)
        U[("W", i, 1)] = dict(addr=D[2 * (i % 2) + 1], size=16 * KB, iss=i - 2, land=i - 0.5, rel=i)
    for k, e in ((("X", 0), -4), (("W", 0, 0), -4), (("W", 0, 1), -4), (("X", 1), -3), (("W", 1, 0), -3), (("W", 1, 1), -3)):
        U[k]["iss"] = e
    pages = [9, 5, 4, 6, 0, 7, 1, 8, 2, 3, 9, 4, 5, 6, 0, 1, 7, 2, 8, 3, 9, 4, 5, 6, 0, 7, 1, 8, 2, 9, 5, 4]
    for u in range(32):
        key = ("K", u // 2) if u % 2 == 0 else ("V", u // 2)
        N = 10 + u // 2 + u % 2
        U[key] = dict(addr=D[pages[u]], size=16 * KB, iss=N - 5 + (u == 30), land=N - 1, rel=N)
    U[("V", 1)]["iss"] = U[("K", 2)]["iss"] = 7.5
    U[("V", 2)]["iss"] = 8.5
    return U


def check_units(second):
    V = {k: dict(u) for k, u in U.items()}
    if second:
        V[("K", 0)]["iss"] = V[("V", 0)]["iss"] = -2
        V[("K", 1)]["iss"] = -1
    else:
        V[("J",)] = dict(addr=D[4], size=32 * KB, iss=-1, land=2, rel=3)
        V[("J", 2)] = dict(addr=D[9], size=16 * KB, iss=0, land=2, rel=3)
        V[("K", 0)]["iss"], V[("V", 0)]["iss"], V[("K", 1)]["iss"] = 3, 4, 5
    allu = [(k, u["addr"], u["addr"] + u["size"], u["iss"], u["rel"]) for k, u in V.items()]
    assert all(u["iss"] < u["land"] <= u["rel"] for u in V.values())
    if second:
        allu += [(k, u["addr"], u["addr"] + u["size"], u["iss"] - 27, u["rel"] - 27) for k, u in U.items() if k[0] in "KV" and k[1] > 2]
        allu += [(("P", n), D[p], D[p] + 16 * KB, 25, 27) for n, p in enumerate((5, 9))]
        allu += [(k, u["addr"], u["addr"] + u["size"], u["iss"] + 27, 40) for k, u in U.items() if u["iss"] is not None and u["iss"] < -2.6]
    for a in allu:
        for b in allu:
            if a is not b and a[1] < b[2] and b[1] < a[2]:
                assert a[4] <= b[3] or b[4] <= a[3], (a, b)


U = build_units()
U[("K", 0)]["iss"] = U[("V", 0)]["iss"] = U[("K", 1)]["iss"] = None
PADDR = {("P", 0): D[5], ("P", 1): D[9]}
_alt = [0]


def next_st():
    _alt[0] ^= 1
    return [sT0, sT1][_alt[0]]


def unit_dmas(key, tmp=None):
    kind = key[0]
    if kind == "P":
        return [([salu("s_add_u32", "m0", sW4K, PADDR[key])], [dma(vW[m], S_WQ, sPF[key][0], 1024 * m, key, SC1) for m in range(4)])]
    if kind == "J":
        jj = key[1]
        sT = tmp
        pre = [salu("s_add_u32", sT, sWOS, jj * 128), salu("s_add_u32", "m0", sW4K, D[(4, 5, 9)[jj >> 2]] + (jj & 3) * 1024)]
        return [(pre, [dma(vX[0], S_WO, sT, 0, "J", " nt")])]
    u = U[key]
    if key in sPF:
        if kind == "W":
            return [([salu("s_add_u32", "m0", sW4K, u["addr"])], [dma(vW[m], S_WQ, sPF[key][0], 1024 * m, key, SC1) for m in range(4)])]
        return [([salu("s_add_u32", "m0", sW6K, u["addr"])], [dma(vX[m], S_X, sPF[key][0], 1024 * m, key, SC1) for m in range(4)]),
                ([salu("s_add_u32", "m0", sW6K, u["addr"] + 4096)], [dma(vX[m], S_X, sPF[key][1], 1024 * m, key, SC1) for m in range(2)])]
    sT = tmp or next_st()
    if kind in "KV":
        pre = [salu("s_add_u32", sT, sROT, key[1] * 8192), salu("s_and_b32", sT, sT, "0x1ffff"), salu("s_add_u32", sT, sT, sKV),
               salu("s_add_u32", "m0", sW4K, u["addr"])]
        if kind == "K":
            return [(pre, [dma(vK[m], S_K, sT, 1024 * m, key, OPT["kvf"]) for m in range(4)])]
        return [(pre, [dma(vV[m & 1], S_V, sT, 1024 * m, key, OPT["kvf"]) for m in range(4)])]
    if kind == "W":
        return [([salu("s_add_u32", "m0", sW4K, u["addr"])], [dma(vW[m], S_WQ, sW1 if key[2] else sWS, 1024 * m, key) for m in range(4)])]
    g0 = ([salu("s_add_u32", "m0", sW6K, u["addr"])], [dma(vX[m], S_X, sXS, 1024 * m, key) for m in range(4)])
    pre2 = [salu("s_add_u32", sT, sXS, 40960), salu("s_add_u32", "m0", sW6K, u["addr"] + 4096)]
    return [g0, (pre2, [dma(vX[m], S_X, sT, 1024 * m, key) for m in range(2)])]


def set_pf_proj(tail=False):
    o = []
    for key, rs in sPF.items():
        if key[0] == "P":
            continue
        if key[0] == "W":
            o += [salu("s_add_u32", rs[0], sWQ, key[1] * 524288 + key[2] * 128)]
        else:
            o += [salu("s_add_u32", rs[0], sX, key[1] * 128), salu("s_add_u32", rs[1], sX, key[1] * 128 + 40960)]
    return o


ORD2 = orders(16, 4, 8, 7, {1: [4], 2: [1, 1, 2, 2, 2, 0, 0], 3: [1, 2, 2, 2, 1, 0, 0], 4: [2, 1, 2, 2, 1, 0, 0]}[OPT["rot2"]])[0] if OPT["rot2"] else [list(range(16))] * 4
ORDQ = orders(10, 4, None, 0, {1: [1, 1, 2, 2, 2, 1, 1], 2: [1, 1, 4], 3: [1, 1, 2, 2, 1, 1, 1, 1]}[OPT["rotq"]])[0] if OPT["rotq"] else [list(range(10))] * 4
assert all(o[:2] == [0, 1] for o in ORDQ)
TBLQ = [sum(x << (4 * n) for n, x in enumerate(o[2:])) for o in ORDQ]
TBL2 = [sum(x << (4 * n) for n, x in enumerate(o)) for o in ORD2]


def next_off(dst, tbl, base, stride):
    return [salu("s_and_b32", dst, f"s{tbl}", 15), salu("s_lshr_b64", f"s[{tbl}:{tbl + 1}]", f"s[{tbl}:{tbl + 1}]", 4),
            salu("s_mul_i32", dst, dst, stride), salu("s_add_u32", dst, dst, base)]


def set_pf_out():
    o = [salu("s_and_b32", "s68", "s4", 3), salu("s_mul_i32", "s68", "s68", 1310720), salu("s_mul_i32", "s69", "s5", WOT_BLK),
         salu("s_add_u32", "s68", "s68", "s69"), salu("s_add_u32", "s68", "s68", WS_WOT)]
    o += [[salu("s_add_u32", f"s{S_WQ}", "s90", "s68"), salu("s_addc_u32", "s69", "s91", 0)]]
    o += [salu("s_and_b32", f"s{S_WQ + 1}", "s69", "0xffff"), salu("s_mov_b32", f"s{S_WQ + 2}", 1310720),
          salu("s_mov_b32", f"s{S_X}", f"s{S_WQ}"), salu("s_mov_b32", f"s{S_X + 1}", f"s{S_WQ + 1}"), salu("s_mov_b32", f"s{S_X + 2}", 1310720)]
    o += [salu("s_lshr_b32", "s70", sWAVE, 1), salu("s_mul_i32", "s68", sWAVE, 16 * 20480), salu("s_lshl_b32", "s69", "s70", 14),
          salu("s_add_u32", "s68", "s68", "s69"), salu("s_lshl_b32", "s69", "s70", 13), salu("s_sub_u32", "s69", 4096, "s69")]
    o += [salu("s_add_u32", "s70", "s3", "s4"), salu("s_and_b32", "s70", "s70", 3),
          salu("s_mov_b32", "s34", "0x%x" % (TBL2[0] & 0xffffffff)), salu("s_mov_b32", "s35", "0x%x" % (TBL2[0] >> 32))]
    for r in range(1, 4):
        o += [[scmp("s_cmp_eq_u32", "s70", r), salu("s_cselect_b32", "s34", "0x%x" % (TBL2[r] & 0xffffffff), "s34"),
               salu("s_cselect_b32", "s35", "0x%x" % (TBL2[r] >> 32), "s35")]]
    o += [salu("s_and_b32", "s70", "s34", 15), salu("s_mul_i32", "s70", "s70", 20480), salu("s_add_u32", "s70", "s70", "s68"),
          salu("s_bfe_u32", "s71", "s34", "0x40004"), salu("s_mul_i32", "s71", "s71", 20480), salu("s_add_u32", "s71", "s71", "s68")]
    for r, (st, pi, off) in PF2.items():
        o += [salu("s_mul_i32", r, "s69", pi), salu("s_add_u32", r, r, "s71" if st else "s70")]
        if off:
            o += [salu("s_add_u32", r, r, off)]
    return o


def groups_at(iss):
    order = {"W": 0, "X": 1, "K": 2, "V": 2}
    keys = sorted([k for k, u in U.items() if u["iss"] is not None and u["iss"] % 27 == iss % 27],
                  key=lambda k: (U[k]["land"] - U[k]["iss"], order[k[0]], k))
    return [g for k in keys for g in unit_dmas(k)]


def place_dmas(S, groups, cand, lo):
    ci = 0
    for pre, ds in groups:
        g = cand[ci]
        for n, p in enumerate(pre):
            S.put(max(lo, g - len(pre) + n), p)
        for d in ds:
            S.put(cand[ci], d)
            ci += 1


def tags_for(n):
    t = [k for k, u in U.items() if (u["land"] - n) % 27 == 0]
    if n == OPT["flagbar"]:
        t += ["ost", "jst"]
    if n == 2:
        t += ["J"]
    return t


def atomic_add(vdata, soff):
    return Ins(f"buffer_atomic_add {vdata}, {vFLG}, s[{S_FLG}:{S_FLG + 3}], {soff} offen sc1", "atomic",
               rd=[vdata, vFLG, soff] + regs("s", S_FLG, 4), tag="flag")


def poll_load(vdst, soff):
    return Ins(f"buffer_load_dword {vdst}, off, s[{S_FLG}:{S_FLG + 3}], {soff} sc1", "vld", rd=[soff] + regs("s", S_FLG, 4), wr=[vdst])


class Win:
    def __init__(self, rs, init):
        self.rs = rs
        self.cur = init

    def move(self, new):
        d = (new - self.cur) & 0xffffffff
        self.cur = new
        return [valu("v_add_u32", r, "0x%x" % d, r) for r in self.rs] if d else []


def plan_windows(addrs, span):
    want = []
    i = 0
    while i < len(addrs):
        lo = hi = addrs[i]
        j = i + 1
        while j < len(addrs) and max(hi, addrs[j]) - min(lo, addrs[j]) + span < 65536:
            lo, hi = min(lo, addrs[j]), max(hi, addrs[j])
            j += 1
        want += [lo] * (j - i)
        i = j
    return want


KWANT = plan_windows([U[("K", t)]["addr"] for t in range(16)], 4096)
VWANT = plan_windows([U[("V", t)]["addr"] for t in range(16)], 4096)
check_units(False)
check_units(True)


def pstore(v0, idx):
    return Ins(f"buffer_store_dwordx2 v[{v0}:{v0 + 1}], off, s[{S_PROF}:{S_PROF + 3}], {sPROF} offset:{8 * idx}", "vst",
               rd=[f"v{v0}", f"v{v0 + 1}", sPROF] + regs("s", S_PROF, 4))


def prof_stamp(idx, v0=252):
    if not OPT["prof"]:
        return []
    return [raw("s_memtime s[76:77]", "other", wr=["s76", "s77"]),
            raw("s_memrealtime s[78:79]", "other", wr=["s78", "s79"]),
            raw("s_waitcnt lgkmcnt(0)", "drainlg"),
            valu("v_mov_b32", f"v{v0}", "s76"),
            valu("v_mov_b32", f"v{v0 + 1}", "s78"),
            pstore(v0, idx)]


def bar_seq(tags, idx):
    if OPT["prof"] < 2:
        return [needboth(tags), barrier()] + prof_stamp(idx)
    return [raw("s_memtime s[58:59]", "other", wr=["s58", "s59"]), raw("s_waitcnt lgkmcnt(0)", "drainlg"),
            needboth(tags), barrier(),
            raw("s_memtime s[76:77]", "other", wr=["s76", "s77"]),
            raw("s_memrealtime s[78:79]", "other", wr=["s78", "s79"]),
            raw("s_waitcnt lgkmcnt(0)", "drainlg"), salu("s_sub_u32", "s76", "s76", "s58"),
            valu("v_mov_b32", "v252", "s76"), valu("v_mov_b32", "v253", "s78"), pstore(252, idx)]


def a_read(i, dt, ks, t):
    p, xy = dt >> 1, dt & 1
    off = U[("W", i, p >> 1)]["addr"] + ks * 4096 + t * 512 + xy * 8
    return ds_read("ds_read_b64_tr_b16", ("a", ABUF[dt % 2] + 4 * ks + 2 * t), 2, wA[p & 1], off)


def first_reads(i):
    ax = U[("X", i)]["addr"] - XS[0]

    def A(ks, t):
        return a_read(i, 0, ks, t)

    def B(qt, ks):
        return ds_read("ds_read_b128", ("a", bx(qt, ks)), 4, xA[ks], ax + qt * 2048)
    return [A(0, 0), A(0, 1), B(0, 0), A(1, 0), A(1, 1), B(0, 1)] + [B(qt, ks) for qt in range(1, 6) for ks in range(2)]


def k_read(t, j):
    kt, ks = j >> 2, j & 3
    return ds_read("ds_read_b128", ("a", kf(kt, ks)), 4, kA[ks], U[("K", t)]["addr"] - KWANT[t] + kt * 4096)


def epilogue_groups(tmp, dst=None, vaddr=None):
    groups = []
    n = 0
    for T in range(3):
        for ph in range(2):
            for qs in range(2):
                for pl in range(2):
                    qt = 2 * T + qs
                    tb = tmp + 4 * (n % 3)
                    src = oacc(qt, 4 * ph + 2 * pl)
                    db = tb if dst is None or dst(n) is None else dst(n)
                    rd = [valu("v_accvgpr_read_b32", f"v{tb + i}", f"a{src + i}") for i in range(8)]
                    mu = [valu("v_mul_f32", f"v{tb + i}", vR[qt], f"v{tb + i}") for i in range(8)]
                    cv = [valu("v_cvt_pk_bf16_f32", f"v{db + i}", f"v{tb + 2 * i}", f"v{tb + 2 * i + 1}") for i in range(4)]
                    pre = [salu("s_add_u32", sE, sO, ph * 12288 + T * 4096)] if qs == 0 and pl == 0 else []
                    imm = qs * 2048 + pl * 1024
                    groups.append((rd + mu + cv, pre, vstore(("v", db), 4, vaddr or vL16, S_OST, sE, imm, tag="ost", flags=SC1), imm))
                    n += 1
    return groups


def conv_items(T, ps, packed=()):
    out = []
    for p in ps:
        for qs in range(2):
            R, Dd = qacc(p, 0, 2 * T + qs), qf(2 * T + qs, p)
            if p in packed:
                out += [(p, qs, valu("v_pk_mul_f32", f"v[{R + x}:{R + x + 1}]", f"v[{R + x}:{R + x + 1}]", "s[86:87]" if False else vC2)) for x in range(0, 8, 2)]
            else:
                out += [(p, qs, valu("v_mul_f32", f"v{R + x}", sC, f"v{R + x}")) for x in range(8)]
            out += [(p, qs, valu("v_cvt_pk_bf16_f32", f"v{Dd + x}", f"v{R + 2 * x}", f"v{R + 2 * x + 1}")) for x in range(4)]
    return out


def q_phase(second):
    S = Sched()
    extra, mid = {}, {}
    if second:
        extra[0] = unit_dmas(("K", 1), sJ)
    else:
        extra[0] = [g for jj in range(5) for g in unit_dmas(("J", jj), sE)]
        extra[1] = [g for jj in range(5, 10) for g in unit_dmas(("J", jj), sE)]
        kv = [unit_dmas(k, sE) for k in [("K", 0), ("V", 0), ("K", 1)]]
        if OPT["kplan"] == 0:
            extra[4], extra[5], extra[6] = kv
        elif OPT["kplan"] == 1:
            extra[7], mid[8] = kv[0], kv[1]
            extra[8] = kv[2]
        elif OPT["kplan"] == 2:
            extra[4], extra[7], mid[8] = kv
        elif OPT["kplan"] == 3:
            extra[5], extra[7], mid[8] = kv
    for i in range(10):
        q0 = S.n()
        for dt in range(8):
            for qt in range(6):
                for ks in range(2):
                    acc = ("v", qacc(dt >> 1, dt & 1, qt))
                    S.add(mfma(16, acc, ("a", ABUF[dt % 2] + 4 * ks), ("a", bx(qt, ks)), None if (i == 0 and ks == 0) else acc))
        for dt in range(1, 8):
            gaps = [4, 5, 6, 7] if dt == 1 else [0, 2, 3, 4]
            for n, (ks, t) in enumerate([(0, 0), (0, 1), (1, 0), (1, 1)]):
                S.put(q0 + 12 * (dt - 1) + gaps[n], a_read(i, dt, ks, t))
        S.put(q0 + 35, needboth(tags_for(i - 0.5)), barrier())
        S.put(q0 + 83, *bar_seq(tags_for(i), 2 + i))
        if i < 9:
            for n, r in enumerate(first_reads(i + 1)):
                S.put(q0 + 84 + n, r)
        else:
            kw = Win(kA, KWANT[15])
            mv = kw.move(KWANT[0])
            S.put(q0 + 80, *mv[:2])
            S.put(q0 + 82, *mv[2:])
            for j in range(8):
                S.put(q0 + 84 + j, k_read(0, j))
        if i <= 7:
            for n, x in enumerate([salu("s_bfe_u32", sXS, sQT, "0x%x" % (0x40000 + 4 * i)), salu("s_lshl_b32", sWS, sXS, 19),
                                   salu("s_add_u32", sWS, sWS, sWQ), salu("s_lshl_b32", sXS, sXS, 7), salu("s_add_u32", sXS, sXS, sX),
                                   salu("s_add_u32", sW1, sWS, 128)]):
                S.put(q0 + 26 + n, x)
        early = groups_at(i - 1) if i else []
        place_dmas(S, early + mid.get(i, []), [q0 + g for g in (9, 13, 17, 21, 25, 29, 31, 33)], q0)
        late = groups_at(i - 0.5) + extra.get(i, [])
        if i == 8 and 8 in extra:
            late = extra[8] + groups_at(i - 0.5)
        cand = [q0 + 37 + 4 * x for x in range(12)]
        nd = sum(len(g[1]) for g in late)
        if nd > 12:
            cand = sorted(cand + [q0 + 67, q0 + 71, q0 + 75, q0 + 79][:nd - 12])
        place_dmas(S, late, cand, q0 + 35)
    if not second:
        for jj in range(10):
            q0 = 96 * 3
            if jj == 8:
                S.put(q0 + 65, valu("v_add_u32", vJ, D[9] - D[4] - 2 * 16384, vJ))
            for tt in range(2):
                g = q0 + [10, 11, 18, 19, 22, 23, 30, 31, 34, 42, 43, 46, 47, 54, 55, 58, 66, 67, 70, 71][2 * jj + tt]
                S.put(g, ds_read("ds_read_b64_tr_b16", ("a", 4 * jj + 2 * tt), 2, vJ, (jj >> 2) * 16384 + (jj & 3) * 1024 + tt * 8192))
            nq, pair = divmod(2 * jj, 5)
            g = 96 * (4 + jj // 3) + [19, 25, 31][jj % 3]
            if OPT["jlate"]:
                g = 96 * (3 + jj // 2) + ([79, 82] if (3 + jj // 2) in extra else [77, 81])[jj % 2]
            S.put(g - 1, salu("s_add_u32", sJ, sWOX if pair == 4 else sWOD, nq * 1310720 + pair * 4096))
            S.put(g, vstore(("a", 4 * jj), 4, vL16, S_WOT, sJ, 0, tag="jst", flags=SC1))
    if second:
        eg = epilogue_groups(EPI)
        ep = []
        for i in range(8):
            for g in eg[3 * i:3 * i + 3]:
                ep += [(x, 96 * i, None) for x in g[0]]
            for g in eg[3 * i:3 * i + 3]:
                ep += [(x, 96 * i + OPT["stg"], None) for x in g[1] + [g[2]]]
        ep[-1] = (ep[-1][0], ep[-1][1], 96 * 9 - 1)
        S.stream(ep)
        S.put(96 * 9 + 2, salu("s_add_u32", sO, sO, 8 * 12288))
    q0 = 96 * 9
    g = q0 + 2
    for x in ([salu("s_add_u32", sWQ, sWQ, 512)] + set_pf_proj(True) if not second else set_pf_out()):
        S.put(g, *(x if isinstance(x, list) else [x]))
        g += 1 if g < q0 + 94 else 0
        while g in (q0 + 35, q0 + 83) or any(x.kind == "salu" for x in S.fixed.get(g, [])):
            g += 1
    if second:
        S.stream([(valu("v_mov_b32", r, vL16), q0 + 2, None) for r in vW + vX])
    S.put(q0 + 7, valu("v_mov_b32", "v242", sC), valu("v_mov_b32", "v243", sC))
    S.stream([(x, min(q0 + 12 * (2 * p + 1) + 2 * qs + 1 + 2, q0 + 95), None) for p, qs, x in conv_items(0, range(4))])
    S.put(-1, *prof_stamp(1))
    return S.finish(lead=first_reads(0), report=OPT["report"])


def lspread(qt, tmp):
    l = f"v{lacc(qt)}"
    return [valu("v_mov_b32", tmp, l), perm("v_permlane32_swap_b32", tmp, l), valu("v_add_f32", l, l, tmp),
            valu("v_mov_b32", tmp, l), perm("v_permlane16_swap_b32", tmp, l), valu("v_add_f32", l, l, tmp)]


def interleave(a, b):
    return [x for p in zip(a, b) for x in p]


def lcheck():
    l = [f"v{lacc(qt)}" for qt in range(6)]
    return [valu("v_add_f32", vT[0], l[0], l[1]), valu("v_min3_f32", vT[1], l[0], l[1], l[2]),
            valu("v_add_f32", vT[0], vT[0], l[2]), valu("v_min3_f32", vT[1], vT[1], l[3], l[4]),
            valu("v_add_f32", vT[0], vT[0], l[3]), valu("v_add_f32", vT[0], vT[0], l[4]),
            valu("v_min_f32", vT[1], vT[1], l[5]), valu("v_add_f32", vT[0], vT[0], l[5]),
            valu("v_cmp_nlt_f32", "s[56:57]", sLO, vT[1]),
            valu("v_cmp_ngt_f32", "vcc", sHI, vT[0]),
            salu("s_or_b64", "vcc", "vcc", "s[56:57]")]


def a_phase(last):
    S = Sched()
    qk = [[0] * 3 for _ in range(16)]
    pv = [[0] * 3 for _ in range(16)]

    def QK(t, T):
        qk[t][T] = S.n()
        for qs in range(2):
            for kt in range(2):
                s = ("v", sreg(2 * T + qs) + 4 * kt)
                for ks in range(4):
                    S.add(mfma(16, s, ("a", kf(kt, ks)), ("v", qf(2 * T + qs, ks)), None if ks == 0 else s))

    def PV(t, T):
        pv[t][T] = S.n()
        sums = []
        for qs in range(2):
            l = ("v", lacc(2 * T + qs))
            sums.append(mfma(16, l, ("v", ONES), ("v", sreg(2 * T + qs)), None if t == 0 else l))
        if t == 15:
            for m in sums:
                S.add(m)
        for dt in range(8):
            for qs in range(2):
                o = ("a", oacc(2 * T + qs, dt))
                S.add(mfma(16, o, ("a", vf(dt)), ("v", sreg(2 * T + qs)), None if t == 0 else o))
        if t < 15:
            for m in sums:
                S.add(m)

    for t in range(16):
        QK(t, 0)
        if t:
            PV(t - 1, 1)
        QK(t, 1)
        if t:
            PV(t - 1, 2)
        QK(t, 2)
        PV(t, 0)
    PV(15, 1)
    PV(15, 2)
    bar = {}
    kw, vw = Win(kA, KWANT[0]), Win(vA, VWANT[0])
    for t in range(16):
        g0 = pv[t - 1][2] if t else qk[0][1]
        bar[10 + t] = g0 - 1
        S.put(g0 - 1, *bar_seq(tags_for(10 + t), 12 + t))
        if t == 15:
            S.put(g0 - 1, scmp("s_cmp_eq_u32", sIT, 1), raw("s_cbranch_scc1 L_tail2", "branch", rd=["scc"]), label("L_CUT"))
        for n, m in enumerate(vw.move(VWANT[t])):
            S.put(g0 - 14 + 3 * (n // 2), m)
        for dt in range(8):
            for tt in range(2):
                S.put(g0 + 4 * dt + 1 + 2 * tt,
                      ds_read("ds_read_b64_tr_b16", ("a", vf(dt) + 2 * tt), 2, vA[dt], U[("V", t)]["addr"] - VWANT[t] + tt * 4096))
        if t < 15:
            for n, m in enumerate(kw.move(KWANT[t + 1])):
                S.put((qk[t][0] + 9 if t else qk[0][2] + 2) + (3 if t else 2) * (n // 2), m)
            for j in range(8):
                S.put(qk[t][2] + [8, 10, 12, 14, 17, 19, 21, 23][j], k_read(t + 1, j))
    S.stream([(m, pv[15][0], None) for m in vw.move(VWANT[0])])
    bar[26] = pv[15][1] - 1
    S.put(bar[26], *bar_seq(tags_for(26), 28))
    fr = [] if last else first_reads(0)
    for n, r in enumerate(fr[:10]):
        S.put(pv[15][1] + [1, 3, 5, 7, 9, 11, 13, 15, 16, 17][n], r)
    for n, r in enumerate(fr[10:]):
        S.put(pv[15][2] + 3 + 2 * n, r)
    for n in range(10, 27):
        groups = groups_at(n - 1)
        if n == 26:
            groups = [g for k in ([("P", 0), ("P", 1)] if last else [("K", 0), ("V", 0)]) for g in unit_dmas(k)]
        nd = sum(len(g[1]) for g in groups)
        if n == 10:
            cand = [2 * x for x in range(8)]
            lo = -1
        else:
            lo = bar[n - 1] + 1
            if n == 11 or n == 26 or OPT["uni"]:
                a = lo + 5
            else:
                a = qk[n - 10][0] + 1 if nd <= 8 else pv[n - 11][0] + 6
            b = bar[n] - 1
            cand = []
            for x in range(nd):
                g = a + (b - a) * x // nd
                while any(i.kind in MEMK for i in S.fixed.get(g, [])) or g in cand:
                    g += 1
                cand.append(g)
            assert not cand or cand[-1] < bar[n]
        place_dmas(S, groups, cand, lo)
    if OPT["xpace"]:
        for t in range(1, 14):
            for T in range(3):
                S.put(pv[t][T] + 17, nop(OPT["xpace"]))
                S.put(qk[t][T] + 15, nop(OPT["xpace"]))
    S.put(qk[14][0] - 3, salu("s_add_u32", sKV, sKV, 262144))
    g = bar[OPT["flagbar"]] + 2
    S.put(g - 1, scmp("s_cmp_eq_u32", sIT, 0), salu("s_cselect_b32", sE, sFB, sFG), salu("s_cselect_b32", sJ, "0x10000", 1))
    S.put(g + 1, valu("v_mov_b32", f"v{EPI}", sJ))
    S.put(g + 4, atomic_add(f"v{EPI}", sE))
    g = qk[12][0]
    S.put(g + 1, scmp("s_cmp_eq_u32", sIT, 1), salu("s_cselect_b32", sE, sFB, "0x1000"))
    S.put(g + 3, poll_load(vPOLL[1], sE))
    g = qk[13][0]
    S.put(g + 1, salu("s_lshl_b32", sWANT, sIT, 23), valu("v_readfirstlane_b32", sQ, vPOLL[1]))
    S.put(g + 4, scmp("s_cmp_lt_u32", sQ, sWANT), raw("s_cbranch_scc1 L_spin3", "branch", rd=["scc"]), label("L_spin3_back"))
    if last:
        S.put(qk[15][2] + 2, poll_load(vPOLL[0], sFG))
    if OPT["codepf2"]:
        g = qk[OPT["codepf2"]][0] - 6
        S.put(g - 2, salu("s_mul_i32", sJ, sIT, "L_tail2-L_q2"))
        S.put(g - 1, salu("s_add_u32", sJ, sJ, "L_q2-L_pc"))
        S.put(g, salu("s_add_u32", sJ, sJ, sCP))
        S.put(g + 1, salu("s_min_u32", sJ, sJ, "L_endcode-L_pc-256"))
        S.put(g + 2, valu("v_and_b32", f"v{EPI + 2}", 16, vL16), valu("v_lshlrev_b32", f"v{EPI + 2}", 3, f"v{EPI + 2}"))
        S.put(g + 3, valu("v_add_u32", f"v{EPI + 2}", sJ, f"v{EPI + 2}"))
        S.put(g + 5, Ins(f"global_load_dword v{EPI + 3}, v{EPI + 2}, s[96:97]", "vld", rd=[f"v{EPI + 2}", "s96", "s97"], wr=[f"v{EPI + 3}"]))
    for T in (1, 2):
        if OPT["pk"]:
            nfree = 1 if T == 1 else 0
            S.stream([(x, -1, None) for p, qs, x in conv_items(T, range(nfree))] +
                     [(x, qk[0][T] - 1, qk[0][T] - 1) for p, qs, x in conv_items(T, range(nfree, 4), packed=range(4))])
        else:
            c = [(x, -1, None) for p, qs, x in conv_items(T, range(4))]
            c[-1] = (c[-1][0], -1, qk[0][T] - 1)
            S.stream(c)
    fin = []
    if OPT["one1"]:
        for T in range(3):
            fin += [(x, [pv[15][1] + 12, pv[15][2], pv[15][2] + 4][T], None) for x in interleave(lspread(2 * T, f"v{lacc(2 * T) + 1}"), lspread(2 * T + 1, f"v{lacc(2 * T + 1) + 1}"))]
    S.stream(fin + [(x, pv[15][2] + 4, None) for x in lcheck()])
    units = []
    for t in range(16):
        for qt in range(6):
            s = sreg(qt)
            T, qs = qt >> 1, qt & 1
            dl = pv[t][T] + qs - 2
            units.append(dict(e=qk[t][T] + 8 * qs + 7 + 2,
                              exps=[valu("v_exp_f32", f"v{s + r}", f"v{s + r}") for r in range(8)],
                              cvts=[(valu("v_cvt_pk_bf16_f32", f"v{s + r}", f"v{s + 2 * r}", f"v{s + 2 * r + 1}"), 2 * r + 2, dl) for r in range(4)]))
    S.packers.append(SoftmaxPacker(units))
    return S.finish(lead=[k_read(0, j) for j in range(8)], report=OPT["report"])


def slow_path():
    o = [label("L_slow"), drain(), nop(16)]
    KF = [EPI + 4 * k for k in range(4)]
    VFR = 56
    vM = [f"v{120 + q}" for q in range(6)]
    vKo, vVo, vt, vu = "v60", "v61", "v62", "v63"
    o += [valu("v_lshrrev_b32", vt, 4, vL16), valu("v_and_b32", vu, 15, vt), valu("v_lshrrev_b32", vt, 4, vt),
          valu("v_lshlrev_b32", vKo, 8, vu), valu("v_lshl_add_u32", vKo, vt, 4, vKo),
          valu("v_lshlrev_b32", vVo, 10, vt), valu("v_lshl_add_u32", vVo, vu, 1, vVo)]
    o += [salu("s_sub_u32", "s58", sKV, 262144)]
    o += [valu("v_mov_b32", m, "0xff800000") for m in vM]

    def scores():
        r = []
        for kt in range(2):
            r += [salu("s_add_u32", "s61", "s59", kt * 4096)]
            r += [vload(("v", KF[ks]), 4, vKo, S_K, "s61", 64 * ks) for ks in range(4)] + [drain()]
            for qt in range(6):
                s = ("v", sreg(qt) + 4 * kt)
                r += [mfma(16, s, ("v", KF[ks]), ("v", qf(qt, ks)), None if ks == 0 else s) for ks in range(4)]
            r += [nop(16)]
        return r
    o += [salu("s_mov_b32", "s59", "s58"), salu("s_mov_b32", "s60", 16), label("L_slow1")] + scores()
    for qt in range(6):
        o += [valu("v_max3_f32", vM[qt], vM[qt], f"v{sreg(qt) + r}", f"v{sreg(qt) + r + 1}") for r in range(0, 8, 2)]
    o += [salu("s_add_u32", "s59", "s59", 8192), salu("s_sub_u32", "s60", "s60", 1), scmp("s_cmp_lg_u32", "s60", 0),
          raw("s_cbranch_scc1 L_slow1", "branch", rd=["scc"])]
    for qt in range(6):
        for op in ("v_permlane32_swap_b32", "v_permlane16_swap_b32"):
            o += [valu("v_mov_b32", vt, vM[qt]), nop(2), perm(op, vt, vM[qt]), valu("v_max_f32", vM[qt], vM[qt], vt)]
        o += [valu("v_mov_b32", f"v{lacc(qt) + r}", 0) for r in range(4)]
    o += [valu("v_accvgpr_write_b32", f"a{r}", 0) for r in range(192)]
    o += [salu("s_mov_b32", "s59", "s58"), salu("s_mov_b32", "s60", 16), label("L_slow2")] + scores()
    for qt in range(6):
        s = sreg(qt)
        o += [valu("v_sub_f32", f"v{s + r}", f"v{s + r}", vM[qt]) for r in range(8)]
        o += [valu("v_exp_f32", f"v{s + r}", f"v{s + r}") for r in range(8)]
        o += [valu("v_cvt_pk_bf16_f32", f"v{s + r}", f"v{s + 2 * r}", f"v{s + 2 * r + 1}") for r in range(4)]
    o += [salu("s_add_u32", "s57", "s59", 4096)]
    for dt in range(8):
        for j in range(8):
            o += [vload(("v", 184 + j), 1, vVo, S_V, "s57" if j >= 4 else "s59", (j & 3) * 256 + 32 * dt, op="buffer_load_ushort")]
        o += [drain()]
        o += [valu("v_lshl_or_b32", f"v{VFR + r}", f"v{185 + 2 * r}", 16, f"v{184 + 2 * r}") for r in range(4)]
        o += [mfma(16, ("a", oacc(qt, dt)), ("v", VFR), ("v", sreg(qt)), ("a", oacc(qt, dt))) for qt in range(6)]
        o += [nop(8)]
    o += [mfma(16, ("v", lacc(qt)), ("v", ONES), ("v", sreg(qt)), ("v", lacc(qt))) for qt in range(6)] + [nop(16)]
    o += [salu("s_add_u32", "s59", "s59", 8192), salu("s_sub_u32", "s60", "s60", 1), scmp("s_cmp_lg_u32", "s60", 0),
          raw("s_cbranch_scc1 L_slow2", "branch", rd=["scc"])]
    o += [nop(16)]
    if OPT["one1"]:
        for qt in range(6):
            o += lspread(qt, vt)
    o += [drain(), scmp("s_cmp_eq_u32", sIT, 1), raw("s_cbranch_scc1 L_back2", "branch", rd=["scc"]), raw("s_branch L_back1", "branch")]
    return o


def srd(base, lo, hi, nbytes):
    return [salu("s_mov_b32", f"s{base}", lo), salu("s_and_b32", f"s{base + 1}", hi, "0xffff"),
            salu("s_mov_b32", f"s{base + 2}", nbytes), salu("s_mov_b32", f"s{base + 3}", "0x20000")]


def decode_wg():
    return [salu("s_and_b32", "s3", "s2", 7), salu("s_lshr_b32", "s4", "s2", 6), salu("s_lshl_b32", "s3", "s3", 2),
            salu("s_add_u32", "s3", "s3", "s4"), salu("s_lshr_b32", "s4", "s2", 3), salu("s_and_b32", "s4", "s4", 7),
            salu("s_lshr_b32", "s5", "s3", 4), salu("s_and_b32", "s6", "s3", 15)]


def code_touch():
    return [salu("s_lshr_b32", "s68", "s2", 3), salu("s_lshl_b32", "s68", "s68", 11),
            valu("v_lshrrev_b32", "v11", 6, "v0"), valu("v_and_b32", "v12", 3, "v0"), valu("v_lshlrev_b32", "v11", 9, "v11"),
            valu("v_lshl_add_u32", "v11", "v12", 7, "v11"), valu("v_add_u32", "v11", "s68", "v11"),
            Ins("global_load_dword v253, v11, s[96:97]", "vld", rd=["v11", "s96", "s97"], wr=["v253"])]


def kv_patterns():
    i, a, b, c = "v1", "v2", "v3", "v4"
    o = [valu("v_lshrrev_b32", a, 4, i), valu("v_and_b32", b, 15, i),
         valu("v_xor_b32", c, a, b), valu("v_lshlrev_b32", c, 4, c), valu("v_lshl_add_u32", vK[0], a, 8, c)]
    o += [valu("v_xor_b32", vK[m], m << 6, vK[0]) for m in range(1, 4)]
    o += [valu("v_lshlrev_b32", "v5", 1, a), valu("v_xor_b32", "v5", "v5", b), valu("v_lshlrev_b32", "v5", 4, "v5"),
          valu("v_lshl_add_u32", vV[0], a, 8, "v5"), valu("v_xor_b32", vV[1], 128, vV[0])]
    return o


def prologue():
    o = [scmp("s_cmp_ge_u32", "s2", 256), raw("s_cbranch_scc1 L_end", "branch", rd=["scc"])]
    o += [raw("s_getpc_b64 s[96:97]", wr=["s96", "s97"]), label("L_pc")]
    if OPT["dbgt"]:
        o += [raw("s_memrealtime s[72:73]", wr=["s72", "s73"])]
    if OPT["codepf"] == 2:
        o += code_touch()
    o += decode_wg()
    o += [salu("s_mul_i32", "s7", "s5", 40), salu("s_add_u32", "s68", "s0", "s7"), salu("s_addc_u32", "s69", "s1", 0),
          raw("s_load_dwordx8 s[56:63], s[68:69], 0", wr=regs("s", 56, 8)),
          raw("s_load_dwordx2 s[94:95], s[68:69], 32", wr=["s94", "s95"]),
          raw("s_load_dwordx4 s[88:91], s[0:1], 88", wr=regs("s", 88, 4)),
          raw("s_load_dwordx2 s[92:93], s[0:1], 80", wr=["s92", "s93"])]
    i, a, b, c = "v1", "v2", "v3", "v4"
    o += [valu("v_lshrrev_b32", a, 6, "v0"), valu("v_and_b32", i, 63, "v0"),
          valu("v_readfirstlane_b32", sWAVE, a), valu("v_lshlrev_b32", vL16, 4, i)]
    o += [valu("v_lshrrev_b32", a, 4, i), valu("v_and_b32", b, 7, i), valu("v_lshrrev_b32", "v5", 3, i),
          valu("v_and_b32", c, 1, a), valu("v_lshlrev_b32", c, 1, c), valu("v_xor_b32", c, c, b), valu("v_lshlrev_b32", c, 4, c),
          valu("v_lshl_add_u32", vW[0], "v5", 13, c),
          valu("v_xor_b32", vW[1], 64, vW[0]), valu("v_add_u32", vW[1], 64512, vW[1]),
          valu("v_add_u32", vW[2], 2 * 64512, vW[0]), valu("v_add_u32", vW[3], 2 * 64512, vW[1])]
    o += [valu("v_xor_b32", c, a, b), valu("v_lshlrev_b32", c, 4, c), valu("v_mul_u32_u24", "v6", 1280, "v5"),
          valu("v_add_u32", vX[0], "v6", c),
          valu("v_xor_b32", vX[1], 64, vX[0]), valu("v_add_u32", vX[1], 9216, vX[1]),
          valu("v_add_u32", vX[2], 2 * 9216, vX[0]), valu("v_add_u32", vX[3], 2 * 9216, vX[1])]
    o += [salu("s_lshr_b32", "s70", sWAVE, 1), salu("s_and_b32", "s71", sWAVE, 1),
          salu("s_lshl_b32", sW4K, sWAVE, 12), salu("s_mul_i32", sW6K, sWAVE, 6144),
          salu("s_lshl_b32", "s7", "s4", 2), salu("s_add_u32", "s7", "s7", "s70"),
          salu("s_lshl_b32", sWQ, "s71", 18), salu("s_lshl_b32", sT0, "s7", 8), salu("s_add_u32", sWQ, sWQ, sT0),
          salu("s_mul_i32", sX, "s6", 245760), salu("s_mul_i32", sT0, sWAVE, 61440), salu("s_add_u32", sX, sX, sT0)]
    o += [raw("s_waitcnt lgkmcnt(0)", "drainlg")]
    o += srd(S_X, "s56", "s57", 3932160) + srd(S_WQ, "s62", "s63", 5242880)
    o += set_pf_proj()
    for k in [("W", 0, 0), ("X", 0), ("W", 0, 1), ("W", 1, 0), ("X", 1), ("W", 1, 1)]:
        for pre, ds in unit_dmas(k):
            o += pre[::-1] + ds
    if OPT["warmw"]:
        o += [salu("s_mul_i32", "s68", "s6", 40 * 8192), salu("s_lshl_b32", "s69", "s4", 10), salu("s_add_u32", "s68", "s68", "s69"),
              salu("s_mul_i32", "s69", sWAVE, 10 * 8192), salu("s_add_u32", "s68", "s68", "s69"),
              valu("v_lshlrev_b32", b, 7, b), valu("v_lshl_add_u32", "v6", "v5", 13, b), valu("v_and_b32", c, 1, "v5"),
              valu("v_lshl_add_u32", c, c, 13, b), salu("s_add_u32", "s69", "s68", 8 * 8192)]
        o += [vload(("v", 254), 1, "v6", S_WQ, "s68", 0), vload(("v", 255), 1, c, S_WQ, "s69", 0)]
    o += [salu("s_lshr_b32", "s68", "s2", 3), salu("s_lshl_b32", "s68", "s68", 2), salu("s_add_u32", "s68", "s68", sWAVE), salu("s_lshl_b32", sCP, "s68", 8)]
    if OPT["codepf"] == 1:
        o += code_touch()
    o += srd(S_WO, "s94", "s95", 5242880)
    o += [salu("s_lshl_b32", "s68", "s6", 3), salu("s_add_u32", "s68", "s68", "s4"),
          salu("s_mul_i32", sWOS, "s68", 40960), salu("s_mul_i32", sT0, sWAVE, 10240), salu("s_add_u32", sWOS, sWOS, sT0)]
    o += srd(S_K, "s58", "s59", 67108864) + srd(S_V, "s60", "s61", 67108864)
    o += srd(S_OST, "s90", "s91", WS_WOT) + srd(S_FLG, "s88", "s89", 256)
    o += [salu("s_add_u32", "s68", "s90", WS_WOT), salu("s_addc_u32", "s69", "s91", 0)] + srd(S_WOT, "s68", "s69", 2 * WOT_BLK)
    o += [salu("s_lshl_b32", sFG, "s3", 2), salu("s_lshl_b32", sFB, "s5", 6)]
    if OPT["dbgt"]:
        o += [salu("s_add_u32", sFG, sFG, 128), salu("s_add_u32", sFB, sFB, 128)]
    o += [
          valu("v_cmp_eq_u32", "vcc", 0, "v0"), valu("v_mov_b32", "v10", "0x1000"), valu("v_mov_b32", f"v{ONES}", "0x3f803f80"),
          valu("v_cndmask_b32", vFLG, "v10", 0, "vcc"),
          ]
    if OPT["one1"]:
        o += [valu("v_and_b32", "v10", 15, "v0"), valu("v_cmp_eq_u32", "vcc", 0, "v10"), valu("v_cndmask_b32", f"v{ONES}", 0, f"v{ONES}", "vcc")]
    o += [valu("v_mov_b32", f"v{ONES + r}", f"v{ONES}") for r in range(1, 4)]
    if OPT["prof"]:
        o += [salu("s_add_u32", "s68", "s90", WS_PROF), salu("s_addc_u32", "s69", "s91", 0)] + srd(S_PROF, "s68", "s69", 1 << 20)
        o += [salu("s_lshl_b32", sPROF, "s2", 2), salu("s_add_u32", sPROF, sPROF, sWAVE), salu("s_lshl_b32", sPROF, sPROF, 10)]
        o += prof_stamp(0, 8)
    o += [salu("s_lshl_b32", sKV, "s6", 5), salu("s_add_u32", sKV, sKV, "s7"), salu("s_lshl_b32", sKV, sKV, 17),
          salu("s_lshl_b32", sT0, "s71", 12),
          salu("s_lshr_b32", sROT, "s2", 3), salu("s_lshl_b32", sT1, "s2", 1), salu("s_add_u32", sROT, sROT, sT1),
          salu("s_and_b32", sROT, sROT, 0 if OPT["norot"] else 15), salu("s_lshl_b32", sROT, sROT, 13), salu("s_add_u32", sROT, sROT, sT0)]
    if OPT["tlbw"]:
        for n, (r, so) in enumerate(((S_K, sKV), (S_V, sKV), (S_WO, sWOS))):
            o += [Ins(f"buffer_load_dword v{244 + n}, off, s[{r}:{r + 3}], {so} nt", "vld", rd=[so] + regs("s", r, 4))]
    if OPT["kpro"]:
        o += kv_patterns()
        for k in [("K", 0), ("V", 0), ("K", 1)][:OPT["kpro"]]:
            for pre, ds in unit_dmas(k, sE):
                o += pre + [nop(1)] + ds
    o += [salu("s_mul_i32", sO, "s3", O_GRP), salu("s_mul_i32", sT0, "s71", 786432), salu("s_add_u32", sO, sO, sT0),
          salu("s_lshr_b32", sT0, "s4", 1), salu("s_mul_i32", sT0, sT0, 16 * 12288), salu("s_add_u32", sO, sO, sT0),
          salu("s_and_b32", sT0, "s4", 1), salu("s_mul_i32", sT0, sT0, 4 * 12288), salu("s_add_u32", sO, sO, sT0),
          salu("s_mul_i32", sT0, "s70", 2 * 12288), salu("s_add_u32", sO, sO, sT0)]
    o += [salu("s_lshl_b32", "s68", "s6", 3), salu("s_add_u32", "s68", "s68", "s4"),
          salu("s_lshr_b32", sT0, "s68", 1), salu("s_and_b32", sT1, sT0, "0x33"),
          salu("s_and_b32", "s69", sT0, 4), salu("s_lshl_b32", "s69", "s69", 1), salu("s_or_b32", sT1, sT1, "s69"),
          salu("s_and_b32", "s69", sT0, 8), salu("s_lshr_b32", "s69", "s69", 1), salu("s_or_b32", sT1, sT1, "s69"),
          salu("s_mul_i32", sWOD, sT1, 20480),
          salu("s_and_b32", sT0, "s68", 1), salu("s_lshl_b32", sT0, sT0, 11), salu("s_add_u32", sWOD, sWOD, sT0),
          salu("s_mul_i32", sT0, "s5", WOT_BLK), salu("s_add_u32", sWOD, sWOD, sT0),
          salu("s_lshl_b32", sT0, "s70", 12), salu("s_add_u32", sWOD, sWOD, sT0),
          salu("s_lshl_b32", sT0, "s71", 10), salu("s_add_u32", sWOD, sWOD, sT0),
          salu("s_mul_i32", sT0, "s70", 1310720 - 20480), salu("s_add_u32", sWOX, sWOD, sT0)]
    o += [salu("s_add_u32", "s68", "s3", "s4"), salu("s_and_b32", "s68", "s68", 3), salu("s_mov_b32", sQT, "0x%x" % TBLQ[0])]
    for r in range(1, 4):
        o += [scmp("s_cmp_eq_u32", "s68", r), salu("s_cselect_b32", sQT, "0x%x" % TBLQ[r], sQT)]
    cbits = struct.unpack("<I", struct.pack("<f", math.log2(math.e) / math.sqrt(128.0)))[0]
    o += [salu("s_mov_b32", sC, "0x%x" % cbits), salu("s_mov_b32", sHI, "0x4e800000"), salu("s_mov_b32", sLO, "0x30800000"),
          salu("s_mov_b32", sIT, 0)]
    if not OPT["kpro"]:
        o += kv_patterns()
    o += [salu("s_lshl_b32", "s69", "s70", 13), salu("s_mul_i32", "s68", "s71", 12288), salu("s_add_u32", "s68", "s68", XS[0]),
          valu("v_bfe_u32", "v8", i, 2, 2), valu("v_and_b32", "v9", 3, i)]
    o += [valu("v_lshl_add_u32", c, b, 8, c), valu("v_add_u32", c, KWANT[15], c), valu("v_add_u32", kA[0], "s69", c)]
    o += [valu("v_xor_b32", kA[j], j << 6, kA[0]) for j in range(1, 4)]
    o += [valu("v_lshl_add_u32", "v5", a, 2, "v8"), valu("v_lshlrev_b32", c, 8, "v5"), valu("v_and_b32", "v6", 7, "v5"),
          valu("v_lshl_add_u32", c, "v6", 5, c), valu("v_lshl_add_u32", c, "v9", 3, c),
          valu("v_add_u32", c, VWANT[0], c), valu("v_add_u32", vA[0], "s69", c)]
    o += [valu("v_xor_b32", vA[d], d << 5, vA[0]) for d in range(1, 8)]
    o += [valu("v_lshl_add_u32", c, a, 3, "v8"), valu("v_lshlrev_b32", c, 7, c),
          valu("v_and_b32", "v5", 2, "v8"), valu("v_and_b32", "v7", 1, a), valu("v_lshl_add_u32", "v5", "v7", 2, "v5"),
          valu("v_xor_b32", "v5", "v5", "v9"), valu("v_lshl_add_u32", c, "v5", 4, c), valu("v_add_u32", wA[0], "s69", c),
          valu("v_xor_b32", wA[1], 64, wA[0])]
    o += [valu("v_lshrrev_b32", "v5", 1, b), valu("v_xor_b32", "v5", "v5", a),
          valu("v_lshlrev_b32", "v5", 4, "v5"), valu("v_lshl_add_u32", c, b, 7, "v5"),
          valu("v_xor_b32", "v5", 64, c), valu("v_add_u32", xA[0], "s68", c), valu("v_add_u32", xA[1], "s68", "v5")]
    o += [salu("s_lshl_b32", "s68", "s70", 2), salu("s_lshl_b32", "s69", "s71", 3), salu("s_add_u32", "s69", "s69", WOJ_ADDR),
          valu("v_lshrrev_b32", c, 1, a), valu("v_lshlrev_b32", c, 12, c), valu("v_lshl_add_u32", c, "v6", 7, c),
          valu("v_add_u32", c, "s69", c), valu("v_add_u32", "v5", "s68", "v9"), valu("v_lshrrev_b32", "v6", 1, "v6"),
          valu("v_xor_b32", "v5", "v5", "v6"), valu("v_lshl_add_u32", vJ, "v5", 4, c)]
    o += [needvm([("W", 0, 0), ("X", 0)]), barrier()] + first_reads(0)
    return o


def acc2(pi, xy, qi):
    return ((pi * 6 + qi) * 2 + xy) * 4


def a2(st, pi, ks, xy):
    if st == 0:
        return (240 if pi == 0 else 48 + 16 * pi) + 8 * ks + 4 * xy
    return (48 if pi == 0 else 112 + 16 * pi) + 8 * ks + 4 * xy


def b2(st, qi, ks):
    return (192 if st == 0 else 0) + 8 * qi + 4 * ks


V2A = ["v%d" % i for i in range(240, 245)]
V2B = ["v245", "v246", "v247", "v248", "v249", "v253"]
V2L, V2W, V2P, V2X = "v252", "v254", "v255", "v251"
S2A, S2B, S2OUT = S_WQ, 12, 8
TA, TB, sAB, sBB = 56, 62, "s43", "s44"


def k2_loads_A(st, pi, soff=None):
    return [vload(("a", a2(st, pi, ks, xy)), 4, V2A[pi], S2A, soff or sA2, ks * 2048 + xy * 1024, flags=SC1) for xy in range(2) for ks in range(2)]


def k2_loads_B(st, qi):
    return [vload(("a", b2(st, qi, ks)), 4, V2B[qi], S2B, sB2, ks * 1024, flags=SC1) for ks in range(2)]


def k2_lds_A(st, pi):
    out = []
    for xy in range(2):
        for ks in range(2):
            r = [r for r, (s_, p_, off) in PF2.items() if (s_, p_) == (st, pi) and (r not in ("s87", "s99") or off == 2048 * ks)][0]
            key = [k for k, rs in sPF.items() if r in rs][0]
            if key[0] == "W":
                out.append(ds_read("ds_read_b128", ("a", a2(st, pi, ks, xy)), 4, V2W, U[key]["addr"] + ks * 2048 + xy * 1024))
            elif key[0] == "P":
                out.append(ds_read("ds_read_b128", ("a", a2(st, pi, ks, xy)), 4, V2P, ks * 2048 + xy * 1024))
            elif r == sPF[key][0]:
                out.append(ds_read("ds_read_b128", ("a", a2(st, pi, ks, xy)), 4, V2X, U[key]["addr"] - XS[0] + ks * 2048 + xy * 1024))
            else:
                out.append(ds_read("ds_read_b128", ("a", a2(st, pi, ks, xy)), 4, V2X, U[key]["addr"] - XS[0] + 4096 + xy * 1024))
    return out


def k2_steps(S, first, loadA, loadB, pend, check=False, late=(), final=None):
    for st in range(2):
        q0 = S.n()
        tiles = [(pi, xy, qi) for pi in range(5) for xy in range(2) for qi in range(6)]
        if final is not None and st == 1:
            tiles = [t for t in tiles if t[2] >= 3] + [t for t in tiles if t[2] < 3]
            for n, x in enumerate(final[0]):
                S.put(q0 + 2 + n, x)
            for n, x in enumerate(final[1]):
                S.put(q0 + 61 + 2 * n, x)
        for pi, xy, qi in tiles:
            for ks in range(2):
                acc = ("v", acc2(pi, xy, qi))
                S.add(mfma(16, acc, ("a", a2(st, pi, ks, xy)), ("a", b2(st, qi, ks)),
                           None if (first and st == 0 and ks == 0) else acc))
        pos = [int(0.5 + 3.75 * n) for n in range(32)]
        if pend[st]:
            ls = k2_loads_A(1 - st, 4)
            S.put(q0 + pos[0], ls[2])
            S.put(q0 + pos[1], ls[3])
            for n, x in enumerate(next_off(sA2, TA, sAB, 20480)):
                S.put(q0 + pos[1] + 1 + n, x)
        if first and st == 0:
            for n, (pre, l) in enumerate(late):
                S.put(q0 + 6 * n + 2, *pre)
                S.put(q0 + 6 * n + 3, l)
            for n, r in enumerate(k2_lds_A(1, 0) + k2_lds_A(1, 1) + k2_lds_A(1, 2)):
                S.put(q0 + 6 * n + 5 if n < 8 else q0 + 54 + 4 * (n - 8), r)
            S.put(q0 + 70, valu("v_add_u32", V2P, D[9] - D[5], V2P))
            for n, r in enumerate(k2_lds_A(1, 3)):
                S.put(q0 + 73 + 4 * n, r)
        elif loadB[st]:
            for n, l in enumerate([l for qi in range(6) for l in k2_loads_B(1 - st, qi)]):
                S.put(q0 + pos[2 + n], l)
            for n, x in enumerate(next_off(sB2, TB, sBB, 12288)):
                S.put(q0 + pos[13] + 1 + n, x)
        if loadA[st]:
            n = 14
            for pi in range(5):
                ls = k2_loads_A(st, pi)
                for x, l in enumerate(ls if pi < 4 else ls[:2]):
                    assert pos[n] >= 24 * pi + 11 + 12 * (x >> 1), (pi, x, pos[n])
                    S.put(q0 + pos[n], l)
                    n += 1
        if first and st == 1:
            S.put(q0 + 110, needvm(["ost"]), barrier())
            S.put(q0 + 111, valu("v_mov_b32", V2P, "0x100"))
            S.put(q0 + 114, atomic_add(V2P, sFG))
        if check and st == 1:
            S.put(q0 + 1, scmp("s_cmp_eq_u32", sCNT, 5), salu("s_cselect_b32", sWANT, 8, 0), salu("s_cselect_b32", sPL, sFG, "0x1000"))
            S.put(q0 + 2, poll_load(V2P, sPL))
        if check and st == 0:
            S.put(q0 + 1, valu("v_readfirstlane_b32", sQ, V2P))
            S.put(q0 + 6, salu("s_bfe_u32", sQ, sQ, "0x80008"), scmp("s_cmp_lt_u32", sQ, sWANT),
                  raw("s_cbranch_scc1 L_spin2", "branch", rd=["scc"]), label("L_spin2_back"))


def k2_first(S, late):
    seq = [(0, p) for p in range(4)] + [(1, p) for p in range(3)] + [(0, 4), (1, 3), (1, 4)]
    at = {}
    for st, pi in seq:
        at[(st, pi)] = S.n()
        for xy in range(2):
            for qi in range(6):
                for ks in range(2):
                    acc = ("v", acc2(pi, xy, qi))
                    S.add(mfma(16, acc, ("a", a2(st, pi, ks, xy)), ("a", b2(st, qi, ks)), None if (st == 0 and ks == 0) else acc))
    for n, (pre, l) in enumerate(late):
        S.put(13 * n + 2, *pre)
        S.put(13 * n + 3, l)
    assert 13 * len(late) < at[(0, 4)]
    g = 5
    for pi in range(4):
        if pi == 3:
            S.put(g, valu("v_add_u32", V2P, D[9] - D[5], V2P))
            g += 2
        for r in k2_lds_A(1, pi):
            while S.fixed.get(g):
                g += 1
            S.put(g, r)
            g += 4
    items = []
    for pi in range(5):
        for x, l in enumerate(k2_loads_A(0, pi, sSO)):
            items.append((l, at[(0, pi)] + 11 + 12 * (x >> 1), 240 + 24 * pi + 12 * (x >> 1)))
        for x, l in enumerate(k2_loads_A(1, pi)[:4 if pi < 4 else 2]):
            items.append((l, at[(1, pi)] + 11 + 12 * (x >> 1), 360 + 24 * pi + 12 * (x >> 1)))
    for qi in range(6):
        for ks, l in enumerate(k2_loads_B(0, qi)):
            items.append((l, at[(0, 4)] + 12 + 2 * qi + ks, 200 + 2 * qi + ks))
    items.sort(key=lambda i: i[2])
    g, lastB = 11, 0
    while items:
        c = [i for i in items if i[1] <= g]
        if c and not any(S.fixed.get(k) and any(j.kind in ("vld", "vst") for j in S.fixed[k]) for k in ((g - 2, g - 1, g + 1) if g < 180 else (g - 1, g + 1))) and not S.fixed.get(g):
            S.put(g, c[0][0])
            if sB2 in c[0][0].rd:
                lastB = g
            items.remove(c[0])
        g += 1
        assert g < 240, items
    for n, x in enumerate(next_off(sB2, TB, sBB, 12288)):
        S.put(lastB + 1 + n, x)
    g = 226
    while S.fixed.get(g) or S.fixed.get(g + 1) or S.fixed.get(g + 3):
        g += 1
    S.put(g, needvm(["ost"]), barrier())
    S.put(g + 1, valu("v_mov_b32", V2P, "0x100"))
    S.put(g + 3, atomic_add(V2P, sFG))


def spin(name, back, dsts, soffs, conds):
    o = [label(name), salu("s_mov_b32", sSPIN, 0), label(name + "_loop"), raw("s_sleep 8")]
    o += [poll_load(d, so) for d, so in zip(dsts, soffs)]
    o += [drain(), salu("s_add_u32", sSPIN, sSPIN, 1), scmp("s_cmp_gt_u32", sSPIN, "0x20000"),
          raw(f"s_cbranch_scc1 {back}", "branch", rd=["scc"])]
    for d, (sh, msk, want) in zip(dsts, conds):
        o += [valu("v_readfirstlane_b32", sQ, d), nop(4)]
        if sh:
            o += [salu("s_lshr_b32", sQ, sQ, sh)]
        if msk:
            o += [salu("s_and_b32", sQ, sQ, msk)]
        o += [scmp("s_cmp_lt_u32", sQ, want), raw(f"s_cbranch_scc1 {name}_loop", "branch", rd=["scc"])]
    o += [raw(f"s_branch {back}", "branch")]
    return o


def phase2():
    o = [valu("v_readfirstlane_b32", sQ, vPOLL[0]), valu("v_mov_b32", V2L, vL16),
         salu("s_lshr_b32", "s84", "s4", 2), salu("s_mul_i32", "s7", "s3", O_GRP), salu("s_mul_i32", sPL, "s84", 786432),
         salu("s_add_u32", "s7", "s7", sPL),
         salu("s_and_b32", sQ, sQ, "0xff"),
         scmp("s_cmp_lt_u32", sQ, 8), raw("s_cbranch_scc1 L_spin1", "branch", rd=["scc"]), label("L_spin1_back")]
    o += [salu("s_add_u32", "s58", "s90", "s7"), salu("s_addc_u32", "s59", "s91", 0)] + srd(S2B, "s58", "s59", 786432)
    o += [salu("s_and_b32", "s85", "s4", 3), salu("s_and_b32", "s32", sWAVE, 1), salu("s_lshr_b32", "s33", sWAVE, 1),
          salu("s_mul_i32", sBB, sWAVE, 16 * 12288), salu("s_mul_i32", sAB, sWAVE, 16 * 20480),
          salu("s_mov_b64", f"s[{TB}:{TB + 1}]", "s[34:35]"), salu("s_lshr_b64", f"s[{TA}:{TA + 1}]", "s[34:35]", 4)]
    o += next_off(sB2, TB, sBB, 12288)
    o += [valu("v_add_u32", V2W, sW4K, V2L), salu("s_add_u32", "s7", sW6K, XS[0]), valu("v_add_u32", "v22", "s7", V2L)]
    o += [scmp("s_cmp_eq_u32", "s33", 0)]
    o += [salu("s_cselect_b32", f"s{47 + q}", q, 2 - q) for q in range(3)]
    o += [salu("s_cselect_b32", f"s{36 + pi}", pi, 4 - pi) for pi in range(5)]
    o += [salu("s_mul_i32", "s34", "s32", 3), salu("s_sub_u32", "s35", 3, "s34")]
    for q in range(3):
        o += [salu("s_add_u32", f"s{50 + q}", f"s{47 + q}", "s35"), salu("s_add_u32", f"s{47 + q}", f"s{47 + q}", "s34")]
    o += [valu("v_mov_b32", f"v{16 + q}", vR[q]) for q in range(6)]
    for qi in range(6):
        o += [salu("s_lshl_b32", "s7", f"s{47 + qi}", 11), valu("v_add_u32", V2B[qi], "s7", V2L)]
    for qi in range(6):
        o += k2_loads_B(0, qi)
    o += next_off(sB2, TB, sBB, 12288)
    save = list(vR)
    vR[:] = [f"v{16 + q}" for q in range(6)]
    nl = 12 if OPT["pace"] else 8
    eg = epilogue_groups(0, lambda n: 240 - 4 * (24 - n) - (0 if OPT["pace"] else 16) if n >= 24 - nl else 32 + 4 * n, V2L)
    vR[:] = save
    b1 = [l for qi in range(6) for l in k2_loads_B(1, qi)]
    for n, (v, pre, st, imm) in enumerate(eg):
        m = b1[2 * (n - 8):2 * (n - 8) + 2] if 8 <= n < 14 else []
        o += v[:8] + m[:1] + v[8:16] + m[1:] + v[16:]
        if OPT["pace"]:
            if n % 2 == 0:
                o += eg[n // 2][1] + [eg[n // 2][2]]
        elif n < 16:
            o += pre + [st]
        if n == 15:
            o += [needvm(list(sPF)), valu("v_mov_b32", V2X, "v22")]
            for pi in range(5):
                o += [salu("s_lshl_b32", "s7", f"s{36 + pi}", 12), valu("v_add_u32", V2A[pi], "s7", V2L)]
            o += next_off(sPL, TA, sAB, 20480)
            if OPT["pace"]:
                o += next_off(sSO, TA, sAB, 20480)
            o += next_off(sA2, TA, sAB, 20480)
        if 16 <= n < 21:
            o += k2_lds_A(0, n - 16)
    late = []
    for n, g in enumerate(eg[24 - nl:]):
        st = vstore(("v", 240 - 4 * (nl - n) - (0 if OPT["pace"] else 16)), 4, V2L, S_OST, sE, g[3], tag="ost", flags=SC1)
        late.append((g[1], st))
    o += k2_loads_A(1, 4, sPL) + [valu("v_add_u32", V2P, D[5], V2W)]
    o += next_off(sB2, TB, sBB, 12288) + [salu("s_mov_b32", sWANT, 0)]
    o += prof_stamp(1, 30)
    o += srd(S2OUT, "s92", "s93", 7864320)
    o += [salu("s_mul_i32", sOB, "s6", 192 * 2560), salu("s_mul_i32", "s7", "s84", 96 * 2560), salu("s_add_u32", sOB, sOB, "s7"),
          salu("s_mul_i32", "s7", "s5", 1280), salu("s_add_u32", sOB, sOB, "s7"),
          salu("s_mul_i32", "s7", "s85", 320), salu("s_add_u32", sOB, sOB, "s7"), salu("s_mov_b32", sCNT, 6)]
    S0 = Sched()
    if OPT["pace"]:
        k2_first(S0, late)
    else:
        k2_steps(S0, True, [True, True], [True, True], [False, True], late=late)
    S0.order_fixed()
    first = S0.build()
    S1 = Sched()
    k2_steps(S1, False, [True, True], [True, True], [True, True], check=True)
    if OPT["prof"]:
        S1.put(3, raw("s_memrealtime s[76:77]", wr=["s76", "s77"]), raw("s_waitcnt lgkmcnt(0)", "drainlg"),
               salu("s_mov_b32", "s101", "s100"), salu("s_mov_b32", "s100", "s99"), salu("s_mov_b32", "s99", "s98"),
               salu("s_mov_b32", "s98", "s97"), salu("s_mov_b32", "s97", "s96"), salu("s_mov_b32", "s96", "s76"))
    S1.put(237, salu("s_sub_u32", sCNT, sCNT, 1))
    S1.order_fixed()
    loop = [label("L_k2")] + S1.build() + [scmp("s_cmp_lg_u32", sCNT, 0), raw("s_cbranch_scc1 L_k2", "branch", rd=["scc"])]
    R1, R2, i, a, V2O = V2A[0], V2A[1], V2A[2], V2A[3], V2A[4]
    setup = [salu("s_mul_i32", "s7", sWAVE, 30720), valu("v_add_u32", V2W, "s7", V2L), valu("v_lshrrev_b32", i, 4, V2L),
             valu("v_and_b32", a, 15, i), valu("v_mul_u32_u24", a, 2560, a), valu("v_lshrrev_b32", i, 4, i),
             valu("v_lshl_add_u32", V2O, i, 4, a),
             salu("s_xor_b32", sPL, sWAVE, 1), salu("s_sub_u32", sPL, sPL, sWAVE), salu("s_mul_i32", "s7", sPL, 30720),
             valu("v_add_u32", R1, "s7", V2W),
             salu("s_xor_b32", sPL, sWAVE, 3), salu("s_sub_u32", sPL, sPL, sWAVE), salu("s_mul_i32", "s7", sPL, 30720),
             valu("v_add_u32", R2, "s7", V2W)]
    sent = [(pi, xy, qi) for pi in range(5) for qi in range(3, 6) for xy in range(2)]
    wr = {t: ds_write("ds_write_b128", V2W, ("v", acc2(*t)), 4, n * 1024) for n, t in enumerate(sent)}
    S2 = Sched()
    e = []
    if OPT["redov"]:
        order = [wr[(pi, xy, qi)] for pi in range(5) for xy in range(2) for qi in range(3, 6)]
        k2_steps(S2, False, [False, False], [True, False], [True, False], final=(setup, order[:29]))
        e = order[29:]
    else:
        k2_steps(S2, False, [False, False], [True, False], [True, False])
        e = setup + list(wr.values())
    S2.order_fixed()
    last = S2.build()
    e += [needlgkm0(), barrier()] + prof_stamp(8, 234)
    for s in list(range(7, 15)) + list(range(7)):
        pi, q = divmod(s, 3)
        e += [ds_read("ds_read_b128", ("v", acc2(pi, xy, q + 3)), 4, R1, (2 * s + xy) * 1024) for xy in range(2)]
    for s in list(range(7, 15)) + list(range(7)):
        pi, q = divmod(s, 3)
        d, t = acc2(pi, 0, q), acc2(pi, 0, q + 3)
        e += [valu("v_add_f32", f"v{d + r}", f"v{d + r}", f"v{t + r}") for r in range(8)]
        if s >= 7:
            e += [ds_write("ds_write_b128", R1, ("v", acc2(pi, xy, q)), 4, (2 * s + xy) * 1024) for xy in range(2)]
    e += [needlgkm0(), barrier()]
    for s in range(8):
        pi, q = divmod(s, 3)
        for xy in range(2):
            e += [ds_read("ds_read_b128", ("v", acc2(pi, xy, q + 3)), 4, R2, (2 * (14 - s) + xy) * 1024)]
    for s in range(8):
        pi, q = divmod(s, 3)
        d0, t0 = acc2(pi, 0, q), acc2(pi, 0, q + 3)
        e += [valu("v_add_f32", f"v{d0 + r}", f"v{d0 + r}", f"v{t0 + r}") for r in range(8)]
        e += [valu("v_cvt_pk_bf16_f32", f"v{d0 + r}", f"v{d0 + 2 * r}", f"v{d0 + 2 * r + 1}") for r in range(4)]
        e += [salu("s_mul_i32", "s7", f"s{47 + q}", 40960), salu("s_lshl_b32", sPL, f"s{36 + pi}", 6),
              salu("s_add_u32", "s7", "s7", sPL), salu("s_add_u32", sSO, "s7", sOB),
              vstore(("v", d0), 4, V2O, S2OUT, sSO, 0, flags=OPT["outf"])]
    e += prof_stamp(9, 234)
    if OPT["prof"]:
        for n in range(6):
            e += [valu("v_mov_b32", "v234", 1), valu("v_mov_b32", "v235", f"s{101 - n}"), pstore(234, 2 + n), nop(4)]
    if OPT["dbgt"]:
        a, b = {1: ("s76", "s78"), 2: ("s74", "s76")}[OPT["dbgt"]]
        e += [drain(), raw("s_memrealtime s[78:79]", wr=["s78", "s79"]), raw("s_waitcnt lgkmcnt(0)", "drainlg"),
              salu("s_sub_u32", a, a, "s72"), salu("s_sub_u32", b, b, "s72"),
              scmp("s_cmp_lt_u32", "s2", 8), salu("s_cselect_b32", "s7", "s2", "0x1000"), salu("s_lshl_b32", "s7", "s7", 2),
              valu("v_mov_b32", "v0", a), valu("v_mov_b32", "v1", b),
              Ins(f"buffer_store_dword v0, {vFLG}, s[{S_FLG}:{S_FLG + 3}], s7 offen", "vst", rd=["v0", vFLG, "s7"]),
              Ins(f"buffer_store_dword v1, {vFLG}, s[{S_FLG}:{S_FLG + 3}], s7 offen offset:32", "vst", rd=["v1", vFLG, "s7"])]
    e += [label("L_end"), raw("s_endpgm")]
    sp1 = spin("L_spin1", "L_spin1_back", vPOLL[:1], [sFG], [(0, "0xff", 8)]) + spin("L_spin3", "L_spin3_back", vPOLL[1:], [sFB], [(16, 0, 128)])
    sp2 = spin("L_spin2", "L_spin2_back", [V2P], [sFG], [(8, "0xff", 8)])
    return o, first, loop, last, e, sp1, sp2


def kernel():
    pro = prologue()
    q1 = q_phase(False)
    full = []
    for last in (False, True):
        _alt[0] = 0
        full.append(a_phase(last))
    cut = [[n for n, x in enumerate(f) if x.text == "L_CUT:"][0] for f in full]
    assert [x.text for x in full[0][:cut[0]]] == [x.text for x in full[1][:cut[1]]]
    att = [label("L_att")] + full[0][:cut[0]]
    tails = []
    for v in range(2):
        t = ([label("L_tail2")] if v else []) + full[v][cut[v] + 1:]
        t += [raw("s_cbranch_vccnz L_slow", "branch", rd=["vcc"]), label(f"L_back{v + 1}")]
        t += [valu("v_rcp_f32", vR[qt], f"v{lacc(qt)}") for qt in range(6)]
        if OPT["dbgt"]:
            t += [raw(f"s_memrealtime s[{74 + 2 * v}:{75 + 2 * v}]", wr=[f"s{74 + 2 * v}", f"s{75 + 2 * v}"]), raw("s_waitcnt lgkmcnt(0)", "drainlg")]
        t += prof_stamp(29)
        if OPT["prof"]:
            t += [salu("s_add_u32", sPROF, sPROF, 240)]
        tails.append(t)
    q2 = [salu("s_mov_b32", sIT, 1), label("L_q2")] + q_phase(True) + [raw("s_branch L_att", "branch")]
    o, first, loop2, last, e, sp1, sp2 = phase2()
    slow = slow_path()
    parts = [pro, q1, att, tails[0], q2, tails[1], o, first, loop2, last, e, slow, sp1, sp2]
    waits = compute_waits([pro + q1 + att + tails[0] + q2 + att + tails[1] + o + first + loop2 + loop2 + loop2 + last + e, slow, sp1, sp2])
    done = {}
    P = [apply_waits(x, waits, done) for x in parts]
    pads = pad_hazards([P[0] + P[1] + P[2] + P[3] + P[4] + P[2] + P[5] + P[6] + P[7] + P[8] + P[8] + P[9] + P[10], P[11], P[12], P[13]])
    al = ".p2align 3\n"
    return (emit(P[0] + P[1], pads) + al + emit(P[2] + P[3] + P[4], pads) + al + emit(P[5] + P[6] + P[7], pads) + al +
            emit(P[8] + P[9] + P[10] + P[11] + P[12] + P[13], pads) + "L_endcode:\n")


def main():
    kn = NAME + "_kernel"
    s = open("cdna_kernels/" + NAME + ".s.ref").read().split("; Override launch")[0]
    s += "; @launch grid=(256,1,1) block=(256,1,1) lds=163840\n"
    s += '.amdgcn_target "amdgcn-amd-amdhsa--gfx950"\n.text\n'
    s += f".globl {kn}\n.p2align 8\n.type {kn},@function\n{kn}:\n" + kernel()
    s += f""".section .rodata,"a"
.p2align 6
.amdhsa_kernel {kn}
  .amdhsa_next_free_vgpr 512
  .amdhsa_next_free_sgpr 102
  .amdhsa_accum_offset 256
  .amdhsa_group_segment_fixed_size 0
  .amdhsa_kernarg_size 104
  .amdhsa_user_sgpr_count 2
  .amdhsa_user_sgpr_kernarg_segment_ptr 1
  .amdhsa_system_sgpr_workgroup_id_x 1
.end_amdhsa_kernel
"""
    open(sys.argv[1], "w").write(s)


main()
```

```python
import sys, math, struct
from fw3 import *
from orders import orders

NAME = "concat_heads__mha_block_cached__mha_block_cached__near_ridge"
OPT = dict(outf=' sc1', redov=1, one1=1, warmj=0, pk=1, pfq1=1, rot2=2, gate=0, pace=1, lead=3, xpace=0, kvf=' nt', norot=0, tlbw=0, kpro=0, kplan=0, jlate=1, dbgt=0, jpro=0, k1s=0, b0e=1, gstep=2, rotq=3, early=1, uni=0, prof=0, report=False, stg=67, warmw=True, codepf=2, codepf2=14, pf='', pf0=1, pfn=3, pff='', flagbar=12, map=0)
for a in sys.argv[2:]:
    k, v = a.split("=")
    OPT[k] = type(OPT[k])(int(v)) if not isinstance(OPT[k], str) else v

KB = 1024
SC1 = " sc1"
O_GRP = 2 * 786432
WS_WOT = 50331648
WOT_BLK = 5242880
WS_PROF = 64 * 1024 * 1024

S_K, S_V, S_X, S_WQ, S_OST, S_WO, S_WOT = 8, 12, 16, 20, 24, 28, 32
sKV, sWQ, sX, sW4K, sW6K, sO, sIT, sT0, sT1, sC, sWAVE = ["s%d" % i for i in range(36, 47)]
sWOS, sWOD, sWOX, sW5K, sHI, sLO = ["s%d" % i for i in range(47, 53)]
sPROF, sE, sJ = "s53", "s54", "s55"
sQT, sWS, sXS, sW1 = "s50", "s67", "s95", "s63"
sROT, sFG, sFB, sCP = "s62", "s65", "s66", "s64"
sA2, sB2, sPL, sOB, sCNT, sSO, sQ, sSH, sWANT, sSPIN = "s28", "s29", "s30", "s31", "s67", "s68", "s69", "s70", "s71", "s94"
S_PROF, S_FLG = 72, 80
sPF = {("W", 0, 0): ["s84"], ("W", 0, 1): ["s85"], ("X", 0): ["s86", "s87"], ("X", 1): ["s98", "s99"], ("W", 1, 0): ["s100"], ("W", 1, 1): ["s101"],
       ("P", 0): ["s60"], ("P", 1): ["s61"]}
PF2 = {"s84": (0, 0, 0), "s85": (0, 1, 0), "s86": (0, 2, 0), "s98": (0, 3, 0), "s100": (0, 4, 0), "s101": (1, 0, 0),
       "s87": (1, 1, 0), "s99": (1, 1, 2048), "s60": (1, 2, 0), "s61": (1, 3, 0)}
vK = ["v%d" % i for i in range(192, 196)]
vV = ["v196", "v197"]
vW = ["v%d" % i for i in range(198, 202)]
vX = ["v%d" % i for i in range(202, 206)]
kA = ["v%d" % i for i in range(206, 210)]
vA = ["v%d" % i for i in range(210, 218)]
wA = ["v218", "v219"]
xA = ["v220", "v221"]
vJ, vL16 = "v222", "v223"
ONES = 224
EPI = 228
vR = ["v%d" % i for i in range(244, 250)]
vFLG = "v250"
vT = ["v252", "v253"]
vC2 = "v[242:243]"
vPOLL = ["v254", "v255"]

V2B = ["v245", "v246", "v247", "v248", "v249", "v251"]
V2L, V2W, V2P, V2X = "v252", "v254", "v255", "v253"
S2A, S2B, S2OUT = S_WQ, S_X, 8
TA, TB, sAB, sBB = 56, 62, "s43", "s44"

D = [i * 16 * KB for i in range(10)]
XS = [96 * KB, 120 * KB]
WOJ_ADDR = D[4]


def qacc(p, xy, qt):
    return 64 * (qt >> 1) + (2 * p + (qt & 1)) * 8 + 4 * xy


def qf(qt, p):
    return 64 * (qt >> 1) + (2 * p + (qt & 1)) * 4


def sreg(qt):
    return 64 * (qt >> 1) + 32 + 8 * (qt & 1)


def lacc(qt):
    return 64 * (qt >> 1) + 48 + 4 * (qt & 1)


ABUF = [192, 248]


def bx(qt, ks):
    return 200 + 8 * qt + 4 * ks


def kf(kt, ks):
    return 192 + 16 * kt + 4 * ks


def vf(dt):
    return 224 + 4 * dt


def oacc(qt, dt):
    return 32 * qt + 4 * dt


def build_units():
    U = {}
    for i in range(10):
        U[("X", i)] = dict(addr=XS[i % 2], size=24 * KB, iss=i - 2.5, land=i - 1, rel=i - 0.5)
        U[("W", i, 0)] = dict(addr=D[2 * (i % 2)], size=16 * KB, iss=i - 2.5, land=i - 1, rel=i - 0.5)
        U[("W", i, 1)] = dict(addr=D[2 * (i % 2) + 1], size=16 * KB, iss=i - 2, land=i - 0.5, rel=i)
    for k, e in ((("X", 0), -4), (("W", 0, 0), -4), (("W", 0, 1), -4), (("X", 1), -3), (("W", 1, 0), -3), (("W", 1, 1), -3)):
        U[k]["iss"] = e
    pages = [9, 5, 4, 6, 0, 7, 1, 8, 2, 3, 9, 4, 5, 6, 0, 1, 7, 2, 8, 3, 9, 4, 5, 6, 0, 7, 1, 8, 2, 9, 5, 4]
    for u in range(32):
        key = ("K", u // 2) if u % 2 == 0 else ("V", u // 2)
        N = 10 + u // 2 + u % 2
        U[key] = dict(addr=D[pages[u]], size=16 * KB, iss=N - 5 + (u == 30), land=N - 1, rel=N)
    U[("V", 1)]["iss"] = U[("K", 2)]["iss"] = 7.5
    U[("V", 2)]["iss"] = 8.5
    return U


def check_units(second):
    V = {k: dict(u) for k, u in U.items()}
    if second:
        V[("K", 0)]["iss"] = V[("V", 0)]["iss"] = -2
        V[("K", 1)]["iss"] = -1
    else:
        V[("J",)] = dict(addr=D[4], size=32 * KB, iss=-1, land=2, rel=3)
        V[("J", 2)] = dict(addr=D[9], size=16 * KB, iss=0, land=2, rel=3)
        V[("K", 0)]["iss"], V[("V", 0)]["iss"], V[("K", 1)]["iss"] = 3, 4, 5
    allu = [(k, u["addr"], u["addr"] + u["size"], u["iss"], u["rel"]) for k, u in V.items()]
    assert all(u["iss"] < u["land"] <= u["rel"] for u in V.values())
    if second:
        allu += [(k, u["addr"], u["addr"] + u["size"], u["iss"] - 27, u["rel"] - 27) for k, u in U.items() if k[0] in "KV" and k[1] > 2]
        allu += [(("P", n), D[p], D[p] + 16 * KB, 25, 27) for n, p in enumerate((5, 9))]
        allu += [(k, u["addr"], u["addr"] + u["size"], u["iss"] + 27, 40) for k, u in U.items() if u["iss"] is not None and u["iss"] < -2.6]
    for a in allu:
        for b in allu:
            if a is not b and a[1] < b[2] and b[1] < a[2]:
                assert a[4] <= b[3] or b[4] <= a[3], (a, b)


U = build_units()
U[("K", 0)]["iss"] = U[("V", 0)]["iss"] = U[("K", 1)]["iss"] = None
PADDR = {("P", 0): D[5], ("P", 1): D[9]}
_alt = [0]


def next_st():
    _alt[0] ^= 1
    return [sT0, sT1][_alt[0]]


def unit_dmas(key, tmp=None):
    kind = key[0]
    if kind == "P":
        return [([salu("s_add_u32", "m0", sW4K, PADDR[key])], [dma(vW[m], S_WQ, sPF[key][0], 1024 * m, key, SC1) for m in range(4)])]
    if kind == "J":
        jj = key[1]
        sT = tmp
        pre = [salu("s_add_u32", sT, sWOS, jj * 128), salu("s_add_u32", "m0", sW4K, D[(4, 5, 9)[jj >> 2]] + (jj & 3) * 1024)]
        return [(pre, [dma(vX[0], S_WO, sT, 0, "J", " nt")])]
    u = U[key]
    if key in sPF:
        if kind == "W":
            return [([salu("s_add_u32", "m0", sW4K, u["addr"])], [dma(vW[m], S_WQ, sPF[key][0], 1024 * m, key, SC1) for m in range(4)])]
        return [([salu("s_add_u32", "m0", sW6K, u["addr"])], [dma(vX[m], S_X, sPF[key][0], 1024 * m, key, SC1) for m in range(4)]),
                ([salu("s_add_u32", "m0", sW6K, u["addr"] + 4096)], [dma(vX[m], S_X, sPF[key][1], 1024 * m, key, SC1) for m in range(2)])]
    sT = tmp or next_st()
    if kind in "KV":
        pre = [salu("s_add_u32", sT, sROT, key[1] * 8192), salu("s_and_b32", sT, sT, "0x1ffff"), salu("s_add_u32", sT, sT, sKV),
               salu("s_add_u32", "m0", sW4K, u["addr"])]
        if kind == "K":
            return [(pre, [dma(vK[m], S_K, sT, 1024 * m, key, OPT["kvf"]) for m in range(4)])]
        return [(pre, [dma(vV[m & 1], S_V, sT, 1024 * m, key, OPT["kvf"]) for m in range(4)])]
    if kind == "W":
        return [([salu("s_add_u32", "m0", sW4K, u["addr"])], [dma(vW[m], S_WQ, sW1 if key[2] else sWS, 1024 * m, key) for m in range(4)])]
    g0 = ([salu("s_add_u32", "m0", sW6K, u["addr"])], [dma(vX[m], S_X, sXS, 1024 * m, key) for m in range(4)])
    pre2 = [salu("s_add_u32", sT, sXS, 40960), salu("s_add_u32", "m0", sW6K, u["addr"] + 4096)]
    return [g0, (pre2, [dma(vX[m], S_X, sT, 1024 * m, key) for m in range(2)])]


def set_pf_proj(tail=False):
    o = []
    for key, rs in sPF.items():
        if key[0] == "P":
            continue
        if key[0] == "W":
            o += [salu("s_add_u32", rs[0], sWQ, key[1] * 524288 + key[2] * 128)]
        else:
            o += [salu("s_add_u32", rs[0], sX, key[1] * 128), salu("s_add_u32", rs[1], sX, key[1] * 128 + 40960)]
    return o


ORD2 = orders(16, 4, 8, 7, {1: [4], 2: [1, 1, 2, 2, 2, 0, 0], 3: [1, 2, 2, 2, 1, 0, 0], 4: [2, 1, 2, 2, 1, 0, 0]}[OPT["rot2"]])[0] if OPT["rot2"] else [list(range(16))] * 4
ORDQ = orders(10, 4, None, 0, {1: [1, 1, 2, 2, 2, 1, 1], 2: [1, 1, 4], 3: [1, 1, 2, 2, 1, 1, 1, 1]}[OPT["rotq"]])[0] if OPT["rotq"] else [list(range(10))] * 4
assert all(o[:2] == [0, 1] for o in ORDQ)
TBLQ = [sum(x << (4 * n) for n, x in enumerate(o[2:])) for o in ORDQ]
TBL2 = [sum(x << (4 * n) for n, x in enumerate(o)) for o in ORD2]


def next_off(dst, tbl, base, stride):
    return [salu("s_and_b32", dst, f"s{tbl}", 15), salu("s_lshr_b64", f"s[{tbl}:{tbl + 1}]", f"s[{tbl}:{tbl + 1}]", 4),
            salu("s_mul_i32", dst, dst, stride), salu("s_add_u32", dst, dst, base)]


def set_pf_out():
    o = [salu("s_and_b32", "s68", "s4", 3), salu("s_mul_i32", "s68", "s68", 1310720), salu("s_mul_i32", "s69", "s5", WOT_BLK),
         salu("s_add_u32", "s68", "s68", "s69"), salu("s_add_u32", "s68", "s68", WS_WOT)]
    o += [[salu("s_add_u32", f"s{S_WQ}", "s90", "s68"), salu("s_addc_u32", "s69", "s91", 0)]]
    o += [salu("s_and_b32", f"s{S_WQ + 1}", "s69", "0xffff"), salu("s_mov_b32", f"s{S_WQ + 2}", 1310720),
          salu("s_mov_b32", f"s{S_X}", f"s{S_WQ}"), salu("s_mov_b32", f"s{S_X + 1}", f"s{S_WQ + 1}"), salu("s_mov_b32", f"s{S_X + 2}", 1310720)]
    o += [salu("s_lshr_b32", "s70", sWAVE, 1), salu("s_mul_i32", "s68", sWAVE, 16 * 20480), salu("s_lshl_b32", "s69", "s70", 14),
          salu("s_add_u32", "s68", "s68", "s69"), salu("s_lshl_b32", "s69", "s70", 13), salu("s_sub_u32", "s69", 4096, "s69")]
    o += [salu("s_add_u32", "s70", "s3", "s4"), salu("s_and_b32", "s70", "s70", 3),
          salu("s_mov_b32", "s34", "0x%x" % (TBL2[0] & 0xffffffff)), salu("s_mov_b32", "s35", "0x%x" % (TBL2[0] >> 32))]
    for r in range(1, 4):
        o += [[scmp("s_cmp_eq_u32", "s70", r), salu("s_cselect_b32", "s34", "0x%x" % (TBL2[r] & 0xffffffff), "s34"),
               salu("s_cselect_b32", "s35", "0x%x" % (TBL2[r] >> 32), "s35")]]
    o += [salu("s_and_b32", "s70", "s34", 15), salu("s_mul_i32", "s70", "s70", 20480), salu("s_add_u32", "s70", "s70", "s68"),
          salu("s_bfe_u32", "s71", "s34", "0x40004"), salu("s_mul_i32", "s71", "s71", 20480), salu("s_add_u32", "s71", "s71", "s68")]
    for r, (st, pi, off) in PF2.items():
        o += [salu("s_mul_i32", r, "s69", pi), salu("s_add_u32", r, r, "s71" if st else "s70")]
        if off:
            o += [salu("s_add_u32", r, r, off)]
    return o


def groups_at(iss):
    order = {"W": 0, "X": 1, "K": 2, "V": 2}
    keys = sorted([k for k, u in U.items() if u["iss"] is not None and u["iss"] % 27 == iss % 27],
                  key=lambda k: (U[k]["land"] - U[k]["iss"], order[k[0]], k))
    return [g for k in keys for g in unit_dmas(k)]


def place_dmas(S, groups, cand, lo):
    ci = 0
    for pre, ds in groups:
        g = cand[ci]
        for n, p in enumerate(pre):
            S.put(max(lo, g - len(pre) + n), p)
        for d in ds:
            S.put(cand[ci], d)
            ci += 1


def tags_for(n):
    t = [k for k, u in U.items() if (u["land"] - n) % 27 == 0]
    if n == OPT["flagbar"]:
        t += ["ost", "jst"]
    if n == 2:
        t += ["J"]
    return t


def atomic_add(vdata, soff):
    return Ins(f"buffer_atomic_add {vdata}, {vFLG}, s[{S_FLG}:{S_FLG + 3}], {soff} offen sc1", "atomic",
               rd=[vdata, vFLG, soff] + regs("s", S_FLG, 4), tag="flag")


def poll_load(vdst, soff):
    return Ins(f"buffer_load_dword {vdst}, off, s[{S_FLG}:{S_FLG + 3}], {soff} sc1", "vld", rd=[soff] + regs("s", S_FLG, 4), wr=[vdst])


class Win:
    def __init__(self, rs, init):
        self.rs = rs
        self.cur = init

    def move(self, new):
        d = (new - self.cur) & 0xffffffff
        self.cur = new
        return [valu("v_add_u32", r, "0x%x" % d, r) for r in self.rs] if d else []


def plan_windows(addrs, span):
    want = []
    i = 0
    while i < len(addrs):
        lo = hi = addrs[i]
        j = i + 1
        while j < len(addrs) and max(hi, addrs[j]) - min(lo, addrs[j]) + span < 65536:
            lo, hi = min(lo, addrs[j]), max(hi, addrs[j])
            j += 1
        want += [lo] * (j - i)
        i = j
    return want


KWANT = plan_windows([U[("K", t)]["addr"] for t in range(16)], 4096)
VWANT = plan_windows([U[("V", t)]["addr"] for t in range(16)], 4096)
check_units(False)
check_units(True)


def pstore(v0, idx):
    return Ins(f"buffer_store_dwordx2 v[{v0}:{v0 + 1}], off, s[{S_PROF}:{S_PROF + 3}], {sPROF} offset:{8 * idx}", "vst",
               rd=[f"v{v0}", f"v{v0 + 1}", sPROF] + regs("s", S_PROF, 4))


def prof_stamp(idx, v0=252):
    if not OPT["prof"]:
        return []
    return [raw("s_memtime s[76:77]", "other", wr=["s76", "s77"]),
            raw("s_memrealtime s[78:79]", "other", wr=["s78", "s79"]),
            raw("s_waitcnt lgkmcnt(0)", "drainlg"),
            valu("v_mov_b32", f"v{v0}", "s76"),
            valu("v_mov_b32", f"v{v0 + 1}", "s78"),
            pstore(v0, idx)]


def bar_seq(tags, idx):
    if OPT["prof"] < 2:
        return [needboth(tags), barrier()] + prof_stamp(idx)
    return [raw("s_memtime s[58:59]", "other", wr=["s58", "s59"]), raw("s_waitcnt lgkmcnt(0)", "drainlg"),
            needboth(tags), barrier(),
            raw("s_memtime s[76:77]", "other", wr=["s76", "s77"]),
            raw("s_memrealtime s[78:79]", "other", wr=["s78", "s79"]),
            raw("s_waitcnt lgkmcnt(0)", "drainlg"), salu("s_sub_u32", "s76", "s76", "s58"),
            valu("v_mov_b32", "v252", "s76"), valu("v_mov_b32", "v253", "s78"), pstore(252, idx)]


def a_read(i, dt, ks, t):
    p, xy = dt >> 1, dt & 1
    off = U[("W", i, p >> 1)]["addr"] + ks * 4096 + t * 512 + xy * 8
    return ds_read("ds_read_b64_tr_b16", ("a", ABUF[dt % 2] + 4 * ks + 2 * t), 2, wA[p & 1], off)


def first_reads(i):
    ax = U[("X", i)]["addr"] - XS[0]

    def A(ks, t):
        return a_read(i, 0, ks, t)

    def B(qt, ks):
        return ds_read("ds_read_b128", ("a", bx(qt, ks)), 4, xA[ks], ax + qt * 2048)
    return [A(0, 0), A(0, 1), B(0, 0), A(1, 0), A(1, 1), B(0, 1)] + [B(qt, ks) for qt in range(1, 6) for ks in range(2)]


def k_read(t, j):
    kt, ks = j >> 2, j & 3
    return ds_read("ds_read_b128", ("a", kf(kt, ks)), 4, kA[ks], U[("K", t)]["addr"] - KWANT[t] + kt * 4096)


def epilogue_groups(tmp, dst=None, vaddr=None):
    groups = []
    n = 0
    for T in range(3):
        for ph in range(2):
            for qs in range(2):
                for pl in range(2):
                    qt = 2 * T + qs
                    tb = tmp + 4 * (n % 3)
                    src = oacc(qt, 4 * ph + 2 * pl)
                    db = tb if dst is None or dst(n) is None else dst(n)
                    rd = [valu("v_accvgpr_read_b32", f"v{tb + i}", f"a{src + i}") for i in range(8)]
                    mu = [valu("v_mul_f32", f"v{tb + i}", vR[qt], f"v{tb + i}") for i in range(8)]
                    cv = [valu("v_cvt_pk_bf16_f32", f"v{db + i}", f"v{tb + 2 * i}", f"v{tb + 2 * i + 1}") for i in range(4)]
                    pre = [salu("s_add_u32", sE, sO, ph * 12288 + T * 4096)] if qs == 0 and pl == 0 else []
                    imm = qs * 2048 + pl * 1024
                    groups.append((rd + mu + cv, pre, vstore(("v", db), 4, vaddr or vL16, S_OST, sE, imm, tag="ost", flags=SC1), imm))
                    n += 1
    return groups


def conv_items(T, ps, packed=()):
    out = []
    for p in ps:
        for qs in range(2):
            R, Dd = qacc(p, 0, 2 * T + qs), qf(2 * T + qs, p)
            if p in packed:
                out += [(p, qs, valu("v_pk_mul_f32", f"v[{R + x}:{R + x + 1}]", f"v[{R + x}:{R + x + 1}]", "s[86:87]" if False else vC2)) for x in range(0, 8, 2)]
            else:
                out += [(p, qs, valu("v_mul_f32", f"v{R + x}", sC, f"v{R + x}")) for x in range(8)]
            out += [(p, qs, valu("v_cvt_pk_bf16_f32", f"v{Dd + x}", f"v{R + 2 * x}", f"v{R + 2 * x + 1}")) for x in range(4)]
    return out


def q_phase(second):
    S = Sched()
    extra, mid = {}, {}
    if second:
        extra[OPT["k1s"]] = unit_dmas(("K", 1), sJ)
    else:
        jp = OPT["jpro"]
        if jp == 0:
            extra[0] = [g for jj in range(5) for g in unit_dmas(("J", jj), sE)]
            extra[1] = [g for jj in range(5, 10) for g in unit_dmas(("J", jj), sE)]
        elif jp < 10:
            extra[1] = [g for jj in range(jp, 10) for g in unit_dmas(("J", jj), sE)]
        kv = [unit_dmas(k, sE) for k in [("K", 0), ("V", 0), ("K", 1)]]
        if OPT["kplan"] == 0:
            extra[4], extra[5], extra[6] = kv
        elif OPT["kplan"] == 1:
            extra[7], mid[8] = kv[0], kv[1]
            extra[8] = kv[2]
        elif OPT["kplan"] == 2:
            extra[4], extra[7], mid[8] = kv
        elif OPT["kplan"] == 4:
            extra[5], extra[6], extra[7] = kv
        elif OPT["kplan"] == 5:
            extra[4], extra[6], extra[7] = kv
        elif OPT["kplan"] == 3:
            extra[5], extra[7], mid[8] = kv
    for i in range(10):
        q0 = S.n()
        for dt in range(8):
            for qt in range(6):
                for ks in range(2):
                    acc = ("v", qacc(dt >> 1, dt & 1, qt))
                    S.add(mfma(16, acc, ("a", ABUF[dt % 2] + 4 * ks), ("a", bx(qt, ks)), None if (i == 0 and ks == 0) else acc))
        for dt in range(1, 8):
            gaps = [4, 5, 6, 7] if dt == 1 else [0, 2, 3, 4]
            for n, (ks, t) in enumerate([(0, 0), (0, 1), (1, 0), (1, 1)]):
                S.put(q0 + 12 * (dt - 1) + gaps[n], a_read(i, dt, ks, t))
        S.put(q0 + 35, needboth(tags_for(i - 0.5)), barrier())
        S.put(q0 + 83, *bar_seq(tags_for(i), 2 + i))
        if i < 9:
            for n, r in enumerate(first_reads(i + 1)):
                S.put(q0 + 84 + n, r)
        else:
            kw = Win(kA, KWANT[15])
            mv = kw.move(KWANT[0])
            S.put(q0 + 80, *mv[:2])
            S.put(q0 + 82, *mv[2:])
            for j in range(8):
                S.put(q0 + 84 + j, k_read(0, j))
        if i <= 7:
            for n, x in enumerate([salu("s_bfe_u32", sXS, sQT, "0x%x" % (0x40000 + 4 * i)), salu("s_lshl_b32", sWS, sXS, 19),
                                   salu("s_add_u32", sWS, sWS, sWQ), salu("s_lshl_b32", sXS, sXS, 7), salu("s_add_u32", sXS, sXS, sX),
                                   salu("s_add_u32", sW1, sWS, 128)]):
                S.put(q0 + 26 + n, x)
        early = groups_at(i - 1) if i else []
        place_dmas(S, early + mid.get(i, []), [q0 + g for g in (9, 13, 17, 21, 25, 29, 31, 33)], q0)
        late = groups_at(i - 0.5) + extra.get(i, [])
        if i == 8 and 8 in extra:
            late = extra[8] + groups_at(i - 0.5)
        cand = [q0 + 37 + 4 * x for x in range(12)]
        nd = sum(len(g[1]) for g in late)
        if nd > 12:
            cand = sorted(cand + [q0 + 67, q0 + 71, q0 + 75, q0 + 79][:nd - 12])
        place_dmas(S, late, cand, q0 + 35)
    if not second:
        for jj in range(10):
            q0 = 96 * 3
            if jj == 8:
                S.put(q0 + 65, valu("v_add_u32", vJ, D[9] - D[4] - 2 * 16384, vJ))
            for tt in range(2):
                g = q0 + [10, 11, 18, 19, 22, 23, 30, 31, 34, 42, 43, 46, 47, 54, 55, 58, 66, 67, 70, 71][2 * jj + tt]
                S.put(g, ds_read("ds_read_b64_tr_b16", ("a", 4 * jj + 2 * tt), 2, vJ, (jj >> 2) * 16384 + (jj & 3) * 1024 + tt * 8192))
            nq, pair = divmod(2 * jj, 5)
            g = 96 * (4 + jj // 3) + [19, 25, 31][jj % 3]
            if OPT["jlate"]:
                g = 96 * (3 + jj // 2) + ([79, 82] if (3 + jj // 2) in extra else [77, 81])[jj % 2]
            S.put(g - 1, salu("s_add_u32", sJ, sWOX if pair == 4 else sWOD, nq * 1310720 + pair * 4096))
            S.put(g, vstore(("a", 4 * jj), 4, vL16, S_WOT, sJ, 0, tag="jst", flags=SC1))
    if second:
        eg = epilogue_groups(EPI)
        ep = []
        for i in range(8):
            for g in eg[3 * i:3 * i + 3]:
                ep += [(x, 96 * i, None) for x in g[0]]
            for g in eg[3 * i:3 * i + 3]:
                ep += [(x, 96 * i + OPT["stg"], None) for x in g[1] + [g[2]]]
        ep[-1] = (ep[-1][0], ep[-1][1], 96 * 9 - 1)
        S.stream(ep)
        S.put(96 * 9 + 2, salu("s_add_u32", sO, sO, 8 * 12288))
    q0 = 96 * 9
    g = q0 + 2
    for x in ([salu("s_add_u32", sWQ, sWQ, 512)] + set_pf_proj(True) if not second else set_pf_out()):
        S.put(g, *(x if isinstance(x, list) else [x]))
        g += 1 if g < q0 + 94 else 0
        while g in (q0 + 35, q0 + 83) or any(x.kind == "salu" for x in S.fixed.get(g, [])):
            g += 1
    if second:
        S.stream([(valu("v_mov_b32", r, vL16), q0 + 2, None) for r in vW + vX])
    S.put(q0 + 7, valu("v_mov_b32", "v242", sC), valu("v_mov_b32", "v243", sC))
    S.stream([(x, min(q0 + 12 * (2 * p + 1) + 2 * qs + 1 + 2, q0 + 95), None) for p, qs, x in conv_items(0, range(4))])
    S.put(-1, *prof_stamp(1))
    return S.finish(lead=first_reads(0), report=OPT["report"])


def lspread(qt, tmp):
    l = f"v{lacc(qt)}"
    return [valu("v_mov_b32", tmp, l), perm("v_permlane32_swap_b32", tmp, l), valu("v_add_f32", l, l, tmp),
            valu("v_mov_b32", tmp, l), perm("v_permlane16_swap_b32", tmp, l), valu("v_add_f32", l, l, tmp)]


def interleave(a, b):
    return [x for p in zip(a, b) for x in p]


def lcheck():
    l = [f"v{lacc(qt)}" for qt in range(6)]
    return [valu("v_add_f32", vT[0], l[0], l[1]), valu("v_min3_f32", vT[1], l[0], l[1], l[2]),
            valu("v_add_f32", vT[0], vT[0], l[2]), valu("v_min3_f32", vT[1], vT[1], l[3], l[4]),
            valu("v_add_f32", vT[0], vT[0], l[3]), valu("v_add_f32", vT[0], vT[0], l[4]),
            valu("v_min_f32", vT[1], vT[1], l[5]), valu("v_add_f32", vT[0], vT[0], l[5]),
            valu("v_cmp_nlt_f32", "s[56:57]", sLO, vT[1]),
            valu("v_cmp_ngt_f32", "vcc", sHI, vT[0]),
            salu("s_or_b64", "vcc", "vcc", "s[56:57]")]


def a_phase(last):
    S = Sched()
    qk = [[0] * 3 for _ in range(16)]
    pv = [[0] * 3 for _ in range(16)]

    def QK(t, T):
        qk[t][T] = S.n()
        for qs in range(2):
            for kt in range(2):
                s = ("v", sreg(2 * T + qs) + 4 * kt)
                for ks in range(4):
                    S.add(mfma(16, s, ("a", kf(kt, ks)), ("v", qf(2 * T + qs, ks)), None if ks == 0 else s))

    def PV(t, T):
        pv[t][T] = S.n()
        sums = []
        for qs in range(2):
            l = ("v", lacc(2 * T + qs))
            sums.append(mfma(16, l, ("v", ONES), ("v", sreg(2 * T + qs)), None if t == 0 else l))
        if t == 15:
            for m in sums:
                S.add(m)
        for dt in range(8):
            for qs in range(2):
                o = ("a", oacc(2 * T + qs, dt))
                S.add(mfma(16, o, ("a", vf(dt)), ("v", sreg(2 * T + qs)), None if t == 0 else o))
        if t < 15:
            for m in sums:
                S.add(m)

    for t in range(16):
        QK(t, 0)
        if t:
            PV(t - 1, 1)
        QK(t, 1)
        if t:
            PV(t - 1, 2)
        QK(t, 2)
        PV(t, 0)
    PV(15, 1)
    PV(15, 2)
    bar = {}
    kw, vw = Win(kA, KWANT[0]), Win(vA, VWANT[0])
    for t in range(16):
        g0 = pv[t - 1][2] if t else qk[0][1]
        bar[10 + t] = g0 - 1
        S.put(g0 - 1, *bar_seq(tags_for(10 + t), 12 + t))
        if t == 15:
            S.put(g0 - 1, scmp("s_cmp_eq_u32", sIT, 1), raw("s_cbranch_scc1 L_tail2", "branch", rd=["scc"]), label("L_CUT"))
        for n, m in enumerate(vw.move(VWANT[t])):
            S.put(g0 - 14 + 3 * (n // 2), m)
        for dt in range(8):
            for tt in range(2):
                S.put(g0 + 4 * dt + 1 + 2 * tt,
                      ds_read("ds_read_b64_tr_b16", ("a", vf(dt) + 2 * tt), 2, vA[dt], U[("V", t)]["addr"] - VWANT[t] + tt * 4096))
        if t < 15:
            for n, m in enumerate(kw.move(KWANT[t + 1])):
                S.put((qk[t][0] + 9 if t else qk[0][2] + 2) + (3 if t else 2) * (n // 2), m)
            for j in range(8):
                S.put(qk[t][2] + [8, 10, 12, 14, 17, 19, 21, 23][j], k_read(t + 1, j))
    if not last:
        S.stream([(m, pv[15][0], None) for m in vw.move(VWANT[0])])
    bar[26] = pv[15][1] - 1
    S.put(bar[26], *(prof_stamp(28) if last else bar_seq(tags_for(26), 28)))
    fr = [] if last else first_reads(0)
    for n, r in enumerate(fr[:10]):
        S.put(pv[15][1] + [1, 3, 5, 7, 9, 11, 13, 15, 16, 17][n], r)
    for n, r in enumerate(fr[10:]):
        S.put(pv[15][2] + 3 + 2 * n, r)
    for n in range(10, 27):
        groups = groups_at(n - 1)
        if n == 26:
            groups = [g for k in ([("P", 0), ("P", 1)] if last else [("K", 0), ("V", 0)]) for g in unit_dmas(k)]
        nd = sum(len(g[1]) for g in groups)
        if n == 10:
            cand = [2 * x for x in range(8)]
            lo = -1
        else:
            lo = bar[n - 1] + 1
            if n == 11 or n == 26 or OPT["uni"]:
                a = lo + 5
            else:
                a = qk[n - 10][0] + 1 if nd <= 8 else pv[n - 11][0] + 6
            b = bar[n] - 1
            cand = []
            for x in range(nd):
                g = a + (b - a) * x // nd
                while any(i.kind in MEMK for i in S.fixed.get(g, [])) or g in cand:
                    g += 1
                cand.append(g)
            assert not cand or cand[-1] < bar[n]
        place_dmas(S, groups, cand, lo)
    if OPT["xpace"]:
        for t in range(1, 14):
            for T in range(3):
                S.put(pv[t][T] + 17, nop(OPT["xpace"]))
                S.put(qk[t][T] + 15, nop(OPT["xpace"]))
    S.put(qk[14][0] - 3, salu("s_add_u32", sKV, sKV, 262144))
    g = bar[OPT["flagbar"]] + 2
    S.put(g - 1, scmp("s_cmp_eq_u32", sIT, 0), salu("s_cselect_b32", sE, sFB, sFG), salu("s_cselect_b32", sJ, "0x10000", 1))
    S.put(g + 1, valu("v_mov_b32", f"v{EPI}", sJ))
    S.put(g + 4, atomic_add(f"v{EPI}", sE))
    g = qk[12][0]
    S.put(g + 1, scmp("s_cmp_eq_u32", sIT, 1), salu("s_cselect_b32", sE, sFB, "0x1000"))
    S.put(g + 3, poll_load(vPOLL[1], sE))
    g = qk[13][0]
    S.put(g + 1, salu("s_lshl_b32", sWANT, sIT, 23), valu("v_readfirstlane_b32", sQ, vPOLL[1]))
    S.put(g + 4, scmp("s_cmp_lt_u32", sQ, sWANT), raw("s_cbranch_scc1 L_spin3", "branch", rd=["scc"]), label("L_spin3_back"))
    if last:
        g = bar[25] + 2
        S.put(g, poll_load(vPOLL[0], sFG))
        su = [salu("s_lshr_b32", "s84", "s4", 2), salu("s_mul_i32", "s7", "s3", O_GRP), salu("s_mul_i32", "s58", "s84", 786432),
              salu("s_add_u32", "s7", "s7", "s58"), [salu("s_add_u32", f"s{S2B}", "s90", "s7"), salu("s_addc_u32", "s59", "s91", 0)],
              salu("s_and_b32", f"s{S2B + 1}", "s59", "0xffff"), salu("s_mov_b32", f"s{S2B + 2}", 786432),
              salu("s_mul_i32", sBB, sWAVE, 16 * 12288), salu("s_mov_b64", f"s[{TB}:{TB + 1}]", "s[34:35]")] + next_off(sB2, TB, sBB, 12288)
        su += [salu("s_and_b32", "s58", sWAVE, 1), salu("s_mul_i32", "s58", "s58", 3 * 2048), salu("s_sub_u32", "s59", 3 * 2048, "s58"),
               salu("s_lshr_b32", "s85", sWAVE, 1), salu("s_lshl_b32", "s85", "s85", 12), salu("s_add_u32", "s58", "s58", "s85"),
               salu("s_add_u32", "s59", "s59", "s85"), salu("s_sub_u32", "s85", 2048, "s85")]
        g += 1
        for x in su:
            while any(i.kind == "salu" for i in S.fixed.get(g, [])):
                g += 1
            S.put(g, *(x if isinstance(x, list) else [x]))
            g += 1
        va = [valu("v_add_u32", V2B[0], "s58", vL16), valu("v_add_u32", V2B[3], "s59", vL16)]
        for q in (1, 2):
            va += [valu("v_add_u32", V2B[q], "s85", V2B[q - 1]), valu("v_add_u32", V2B[3 + q], "s85", V2B[2 + q])]
        S.stream([(x, g, pv[15][1] - 3) for x in va])
        g = pv[15][0] + 12
        S.put(g, valu("v_readfirstlane_b32", sQ, vPOLL[0]))
        S.put(g + 3, salu("s_and_b32", sQ, sQ, "0xff"), scmp("s_cmp_lt_u32", sQ, 8),
              raw("s_cbranch_scc1 L_spin1", "branch", rd=["scc"]), label("L_spin1_back"))
        for n, l in enumerate([l for qi in range(6) for l in k2_loads_B(0, qi)]):
            S.put(pv[15][1] + 1 + 2 * n if n < 8 else pv[15][2] + 3 + 3 * (n - 8), l)
    if OPT["codepf2"]:
        g = qk[OPT["codepf2"]][0] - 6
        S.put(g - 2, salu("s_mul_i32", sJ, sIT, "L_tail2-L_q2"))
        S.put(g - 1, salu("s_add_u32", sJ, sJ, "L_q2-L_pc"))
        S.put(g, salu("s_add_u32", sJ, sJ, sCP))
        S.put(g + 1, salu("s_min_u32", sJ, sJ, "L_endcode-L_pc-256"))
        S.put(g + 2, valu("v_and_b32", f"v{EPI + 2}", 16, vL16), valu("v_lshlrev_b32", f"v{EPI + 2}", 3, f"v{EPI + 2}"))
        S.put(g + 3, valu("v_add_u32", f"v{EPI + 2}", sJ, f"v{EPI + 2}"))
        S.put(g + 5, Ins(f"global_load_dword v{EPI + 3}, v{EPI + 2}, s[96:97]", "vld", rd=[f"v{EPI + 2}", "s96", "s97"], wr=[f"v{EPI + 3}"]))
    for T in (1, 2):
        if OPT["pk"]:
            nfree = 1 if T == 1 else 0
            S.stream([(x, -1, None) for p, qs, x in conv_items(T, range(nfree))] +
                     [(x, qk[0][T] - 1, qk[0][T] - 1) for p, qs, x in conv_items(T, range(nfree, 4), packed=range(4))])
        else:
            c = [(x, -1, None) for p, qs, x in conv_items(T, range(4))]
            c[-1] = (c[-1][0], -1, qk[0][T] - 1)
            S.stream(c)
    fin = []
    if OPT["one1"]:
        for T in range(3):
            fin += [(x, [pv[15][1] + 12, pv[15][2], pv[15][2] + 4][T], None) for x in interleave(lspread(2 * T, f"v{lacc(2 * T) + 1}"), lspread(2 * T + 1, f"v{lacc(2 * T + 1) + 1}"))]
    S.stream(fin + [(x, pv[15][2] + 4, None) for x in lcheck()])
    units = []
    for t in range(16):
        for qt in range(6):
            s = sreg(qt)
            T, qs = qt >> 1, qt & 1
            dl = pv[t][T] + qs - 2
            units.append(dict(e=qk[t][T] + 8 * qs + 7 + 2,
                              exps=[valu("v_exp_f32", f"v{s + r}", f"v{s + r}") for r in range(8)],
                              cvts=[(valu("v_cvt_pk_bf16_f32", f"v{s + r}", f"v{s + 2 * r}", f"v{s + 2 * r + 1}"), 2 * r + 2, dl) for r in range(4)]))
    S.packers.append(SoftmaxPacker(units))
    return S.finish(lead=[k_read(0, j) for j in range(8)], report=OPT["report"])


def slow_path():
    o = [label("L_slow"), drain(), nop(16)]
    KF = [EPI + 4 * k for k in range(4)]
    VFR = 56
    vM = [f"v{120 + q}" for q in range(6)]
    vKo, vVo, vt, vu = "v60", "v61", "v62", "v63"
    o += [valu("v_lshrrev_b32", vt, 4, vL16), valu("v_and_b32", vu, 15, vt), valu("v_lshrrev_b32", vt, 4, vt),
          valu("v_lshlrev_b32", vKo, 8, vu), valu("v_lshl_add_u32", vKo, vt, 4, vKo),
          valu("v_lshlrev_b32", vVo, 10, vt), valu("v_lshl_add_u32", vVo, vu, 1, vVo)]
    o += [salu("s_sub_u32", "s58", sKV, 262144)]
    o += [valu("v_mov_b32", m, "0xff800000") for m in vM]

    def scores():
        r = []
        for kt in range(2):
            r += [salu("s_add_u32", "s61", "s59", kt * 4096)]
            r += [vload(("v", KF[ks]), 4, vKo, S_K, "s61", 64 * ks) for ks in range(4)] + [drain()]
            for qt in range(6):
                s = ("v", sreg(qt) + 4 * kt)
                r += [mfma(16, s, ("v", KF[ks]), ("v", qf(qt, ks)), None if ks == 0 else s) for ks in range(4)]
            r += [nop(16)]
        return r
    o += [salu("s_mov_b32", "s59", "s58"), salu("s_mov_b32", "s60", 16), label("L_slow1")] + scores()
    for qt in range(6):
        o += [valu("v_max3_f32", vM[qt], vM[qt], f"v{sreg(qt) + r}", f"v{sreg(qt) + r + 1}") for r in range(0, 8, 2)]
    o += [salu("s_add_u32", "s59", "s59", 8192), salu("s_sub_u32", "s60", "s60", 1), scmp("s_cmp_lg_u32", "s60", 0),
          raw("s_cbranch_scc1 L_slow1", "branch", rd=["scc"])]
    for qt in range(6):
        for op in ("v_permlane32_swap_b32", "v_permlane16_swap_b32"):
            o += [valu("v_mov_b32", vt, vM[qt]), nop(2), perm(op, vt, vM[qt]), valu("v_max_f32", vM[qt], vM[qt], vt)]
        o += [valu("v_mov_b32", f"v{lacc(qt) + r}", 0) for r in range(4)]
    o += [valu("v_accvgpr_write_b32", f"a{r}", 0) for r in range(192)]
    o += [salu("s_mov_b32", "s59", "s58"), salu("s_mov_b32", "s60", 16), label("L_slow2")] + scores()
    for qt in range(6):
        s = sreg(qt)
        o += [valu("v_sub_f32", f"v{s + r}", f"v{s + r}", vM[qt]) for r in range(8)]
        o += [valu("v_exp_f32", f"v{s + r}", f"v{s + r}") for r in range(8)]
        o += [valu("v_cvt_pk_bf16_f32", f"v{s + r}", f"v{s + 2 * r}", f"v{s + 2 * r + 1}") for r in range(4)]
    o += [salu("s_add_u32", "s57", "s59", 4096)]
    for dt in range(8):
        for j in range(8):
            o += [vload(("v", 184 + j), 1, vVo, S_V, "s57" if j >= 4 else "s59", (j & 3) * 256 + 32 * dt, op="buffer_load_ushort")]
        o += [drain()]
        o += [valu("v_lshl_or_b32", f"v{VFR + r}", f"v{185 + 2 * r}", 16, f"v{184 + 2 * r}") for r in range(4)]
        o += [mfma(16, ("a", oacc(qt, dt)), ("v", VFR), ("v", sreg(qt)), ("a", oacc(qt, dt))) for qt in range(6)]
        o += [nop(8)]
    o += [mfma(16, ("v", lacc(qt)), ("v", ONES), ("v", sreg(qt)), ("v", lacc(qt))) for qt in range(6)] + [nop(16)]
    o += [salu("s_add_u32", "s59", "s59", 8192), salu("s_sub_u32", "s60", "s60", 1), scmp("s_cmp_lg_u32", "s60", 0),
          raw("s_cbranch_scc1 L_slow2", "branch", rd=["scc"])]
    o += [nop(16)]
    if OPT["one1"]:
        for qt in range(6):
            o += lspread(qt, vt)
    o += [drain(), scmp("s_cmp_eq_u32", sIT, 1), raw("s_cbranch_scc1 L_back2", "branch", rd=["scc"]), raw("s_branch L_back1", "branch")]
    return o


def srd(base, lo, hi, nbytes):
    return [salu("s_mov_b32", f"s{base}", lo), salu("s_and_b32", f"s{base + 1}", hi, "0xffff"),
            salu("s_mov_b32", f"s{base + 2}", nbytes), salu("s_mov_b32", f"s{base + 3}", "0x20000")]


def decode_wg():
    return [salu("s_and_b32", "s3", "s2", 7), salu("s_lshr_b32", "s4", "s2", 6), salu("s_lshl_b32", "s3", "s3", 2),
            salu("s_add_u32", "s3", "s3", "s4"), salu("s_lshr_b32", "s4", "s2", 3), salu("s_and_b32", "s4", "s4", 7),
            salu("s_lshr_b32", "s5", "s3", 4), salu("s_and_b32", "s6", "s3", 15)]


def code_touch():
    return [salu("s_lshr_b32", "s68", "s2", 3), salu("s_lshl_b32", "s68", "s68", 11),
            valu("v_lshrrev_b32", "v11", 6, "v0"), valu("v_and_b32", "v12", 3, "v0"), valu("v_lshlrev_b32", "v11", 9, "v11"),
            valu("v_lshl_add_u32", "v11", "v12", 7, "v11"), valu("v_add_u32", "v11", "s68", "v11"),
            Ins("global_load_dword v253, v11, s[96:97]", "vld", rd=["v11", "s96", "s97"], wr=["v253"])]


def kv_patterns():
    i, a, b, c = "v1", "v2", "v3", "v4"
    o = [valu("v_lshrrev_b32", a, 4, i), valu("v_and_b32", b, 15, i),
         valu("v_xor_b32", c, a, b), valu("v_lshlrev_b32", c, 4, c), valu("v_lshl_add_u32", vK[0], a, 8, c)]
    o += [valu("v_xor_b32", vK[m], m << 6, vK[0]) for m in range(1, 4)]
    o += [valu("v_lshlrev_b32", "v5", 1, a), valu("v_xor_b32", "v5", "v5", b), valu("v_lshlrev_b32", "v5", 4, "v5"),
          valu("v_lshl_add_u32", vV[0], a, 8, "v5"), valu("v_xor_b32", vV[1], 128, vV[0])]
    return o


def prologue():
    o = [scmp("s_cmp_ge_u32", "s2", 256), raw("s_cbranch_scc1 L_end", "branch", rd=["scc"])]
    o += [raw("s_getpc_b64 s[96:97]", wr=["s96", "s97"]), label("L_pc")]
    if OPT["dbgt"]:
        o += [raw("s_memrealtime s[72:73]", wr=["s72", "s73"])]
    if OPT["codepf"] == 2:
        o += code_touch()
    o += decode_wg()
    o += [salu("s_mul_i32", "s7", "s5", 40), salu("s_add_u32", "s68", "s0", "s7"), salu("s_addc_u32", "s69", "s1", 0),
          raw("s_load_dwordx8 s[56:63], s[68:69], 0", wr=regs("s", 56, 8)),
          raw("s_load_dwordx2 s[94:95], s[68:69], 32", wr=["s94", "s95"]),
          raw("s_load_dwordx4 s[88:91], s[0:1], 88", wr=regs("s", 88, 4)),
          raw("s_load_dwordx2 s[92:93], s[0:1], 80", wr=["s92", "s93"])]
    i, a, b, c = "v1", "v2", "v3", "v4"
    o += [valu("v_lshrrev_b32", a, 6, "v0"), valu("v_and_b32", i, 63, "v0"),
          valu("v_readfirstlane_b32", sWAVE, a), valu("v_lshlrev_b32", vL16, 4, i)]
    o += [valu("v_lshrrev_b32", a, 4, i), valu("v_and_b32", b, 7, i), valu("v_lshrrev_b32", "v5", 3, i),
          valu("v_and_b32", c, 1, a), valu("v_lshlrev_b32", c, 1, c), valu("v_xor_b32", c, c, b), valu("v_lshlrev_b32", c, 4, c),
          valu("v_lshl_add_u32", vW[0], "v5", 13, c),
          valu("v_xor_b32", vW[1], 64, vW[0]), valu("v_add_u32", vW[1], 64512, vW[1]),
          valu("v_add_u32", vW[2], 2 * 64512, vW[0]), valu("v_add_u32", vW[3], 2 * 64512, vW[1])]
    o += [valu("v_xor_b32", c, a, b), valu("v_lshlrev_b32", c, 4, c), valu("v_mul_u32_u24", "v6", 1280, "v5"),
          valu("v_add_u32", vX[0], "v6", c),
          valu("v_xor_b32", vX[1], 64, vX[0]), valu("v_add_u32", vX[1], 9216, vX[1]),
          valu("v_add_u32", vX[2], 2 * 9216, vX[0]), valu("v_add_u32", vX[3], 2 * 9216, vX[1])]
    o += [salu("s_lshr_b32", "s70", sWAVE, 1), salu("s_and_b32", "s71", sWAVE, 1),
          salu("s_lshl_b32", sW4K, sWAVE, 12), salu("s_mul_i32", sW6K, sWAVE, 6144),
          salu("s_lshl_b32", "s7", "s4", 2), salu("s_add_u32", "s7", "s7", "s70"),
          salu("s_lshl_b32", sWQ, "s71", 18), salu("s_lshl_b32", sT0, "s7", 8), salu("s_add_u32", sWQ, sWQ, sT0),
          salu("s_mul_i32", sX, "s6", 245760), salu("s_mul_i32", sT0, sWAVE, 61440), salu("s_add_u32", sX, sX, sT0)]
    o += [raw("s_waitcnt lgkmcnt(0)", "drainlg")]
    o += srd(S_X, "s56", "s57", 3932160) + srd(S_WQ, "s62", "s63", 5242880)
    o += set_pf_proj()
    for k in [("W", 0, 0), ("X", 0), ("W", 0, 1), ("W", 1, 0), ("X", 1), ("W", 1, 1)]:
        for pre, ds in unit_dmas(k):
            o += pre[::-1] + ds
    if OPT["warmw"]:
        o += [salu("s_mul_i32", "s68", "s6", 40 * 8192), salu("s_lshl_b32", "s69", "s4", 10), salu("s_add_u32", "s68", "s68", "s69"),
              salu("s_mul_i32", "s69", sWAVE, 10 * 8192), salu("s_add_u32", "s68", "s68", "s69"),
              valu("v_lshlrev_b32", b, 7, b), valu("v_lshl_add_u32", "v6", "v5", 13, b), valu("v_and_b32", c, 1, "v5"),
              valu("v_lshl_add_u32", c, c, 13, b), salu("s_add_u32", "s69", "s68", 8 * 8192)]
        o += [vload(("v", 254), 1, "v6", S_WQ, "s68", 0), vload(("v", 255), 1, c, S_WQ, "s69", 0)]
    o += [salu("s_lshr_b32", "s68", "s2", 3), salu("s_lshl_b32", "s68", "s68", 2), salu("s_add_u32", "s68", "s68", sWAVE), salu("s_lshl_b32", sCP, "s68", 8)]
    if OPT["codepf"] == 1:
        o += code_touch()
    o += srd(S_WO, "s94", "s95", 5242880)
    o += [salu("s_lshl_b32", "s68", "s6", 3), salu("s_add_u32", "s68", "s68", "s4"),
          salu("s_mul_i32", sWOS, "s68", 40960), salu("s_mul_i32", sT0, sWAVE, 10240), salu("s_add_u32", sWOS, sWOS, sT0)]
    for jj in range(OPT["jpro"]):
        for pre, ds in unit_dmas(("J", jj), sE):
            o += pre[::-1] + ds
    o += srd(S_K, "s58", "s59", 67108864) + srd(S_V, "s60", "s61", 67108864)
    o += srd(S_OST, "s90", "s91", WS_WOT) + srd(S_FLG, "s88", "s89", 256)
    o += [salu("s_add_u32", "s68", "s90", WS_WOT), salu("s_addc_u32", "s69", "s91", 0)] + srd(S_WOT, "s68", "s69", 2 * WOT_BLK)
    o += [salu("s_lshl_b32", sFG, "s3", 2), salu("s_lshl_b32", sFB, "s5", 6)]
    if OPT["dbgt"]:
        o += [salu("s_add_u32", sFG, sFG, 128), salu("s_add_u32", sFB, sFB, 128)]
    o += [
          valu("v_cmp_eq_u32", "vcc", 0, "v0"), valu("v_mov_b32", "v10", "0x1000"), valu("v_mov_b32", f"v{ONES}", "0x3f803f80"),
          valu("v_cndmask_b32", vFLG, "v10", 0, "vcc"),
          ]
    if OPT["one1"]:
        o += [valu("v_and_b32", "v10", 15, "v0"), valu("v_cmp_eq_u32", "vcc", 0, "v10"), valu("v_cndmask_b32", f"v{ONES}", 0, f"v{ONES}", "vcc")]
    o += [valu("v_mov_b32", f"v{ONES + r}", f"v{ONES}") for r in range(1, 4)]
    if OPT["prof"]:
        o += [salu("s_add_u32", "s68", "s90", WS_PROF), salu("s_addc_u32", "s69", "s91", 0)] + srd(S_PROF, "s68", "s69", 1 << 20)
        o += [salu("s_lshl_b32", sPROF, "s2", 2), salu("s_add_u32", sPROF, sPROF, sWAVE), salu("s_lshl_b32", sPROF, sPROF, 10)]
        o += prof_stamp(0, 8)
    o += [salu("s_lshl_b32", sKV, "s6", 5), salu("s_add_u32", sKV, sKV, "s7"), salu("s_lshl_b32", sKV, sKV, 17),
          salu("s_lshl_b32", sT0, "s71", 12),
          salu("s_lshr_b32", sROT, "s2", 3), salu("s_lshl_b32", sT1, "s2", 1), salu("s_add_u32", sROT, sROT, sT1),
          salu("s_and_b32", sROT, sROT, 0 if OPT["norot"] else 15), salu("s_lshl_b32", sROT, sROT, 13), salu("s_add_u32", sROT, sROT, sT0)]
    if OPT["tlbw"]:
        for n, (r, so) in enumerate(((S_K, sKV), (S_V, sKV), (S_WO, sWOS))):
            o += [Ins(f"buffer_load_dword v{244 + n}, off, s[{r}:{r + 3}], {so} nt", "vld", rd=[so] + regs("s", r, 4))]
    if OPT["kpro"]:
        o += kv_patterns()
        for k in [("K", 0), ("V", 0), ("K", 1)][:OPT["kpro"]]:
            for pre, ds in unit_dmas(k, sE):
                o += pre + [nop(1)] + ds
    o += [salu("s_mul_i32", sO, "s3", O_GRP), salu("s_mul_i32", sT0, "s71", 786432), salu("s_add_u32", sO, sO, sT0),
          salu("s_lshr_b32", sT0, "s4", 1), salu("s_mul_i32", sT0, sT0, 16 * 12288), salu("s_add_u32", sO, sO, sT0),
          salu("s_and_b32", sT0, "s4", 1), salu("s_mul_i32", sT0, sT0, 4 * 12288), salu("s_add_u32", sO, sO, sT0),
          salu("s_mul_i32", sT0, "s70", 2 * 12288), salu("s_add_u32", sO, sO, sT0)]
    o += [salu("s_lshl_b32", "s68", "s6", 3), salu("s_add_u32", "s68", "s68", "s4"),
          salu("s_lshr_b32", sT0, "s68", 1), salu("s_and_b32", sT1, sT0, "0x33"),
          salu("s_and_b32", "s69", sT0, 4), salu("s_lshl_b32", "s69", "s69", 1), salu("s_or_b32", sT1, sT1, "s69"),
          salu("s_and_b32", "s69", sT0, 8), salu("s_lshr_b32", "s69", "s69", 1), salu("s_or_b32", sT1, sT1, "s69"),
          salu("s_mul_i32", sWOD, sT1, 20480),
          salu("s_and_b32", sT0, "s68", 1), salu("s_lshl_b32", sT0, sT0, 11), salu("s_add_u32", sWOD, sWOD, sT0),
          salu("s_mul_i32", sT0, "s5", WOT_BLK), salu("s_add_u32", sWOD, sWOD, sT0),
          salu("s_lshl_b32", sT0, "s70", 12), salu("s_add_u32", sWOD, sWOD, sT0),
          salu("s_lshl_b32", sT0, "s71", 10), salu("s_add_u32", sWOD, sWOD, sT0),
          salu("s_mul_i32", sT0, "s70", 1310720 - 20480), salu("s_add_u32", sWOX, sWOD, sT0)]
    o += [salu("s_add_u32", "s68", "s3", "s4"), salu("s_and_b32", "s68", "s68", 3), salu("s_mov_b32", sQT, "0x%x" % TBLQ[0])]
    for r in range(1, 4):
        o += [scmp("s_cmp_eq_u32", "s68", r), salu("s_cselect_b32", sQT, "0x%x" % TBLQ[r], sQT)]
    cbits = struct.unpack("<I", struct.pack("<f", math.log2(math.e) / math.sqrt(128.0)))[0]
    o += [salu("s_mov_b32", sC, "0x%x" % cbits), salu("s_mov_b32", sHI, "0x4e800000"), salu("s_mov_b32", sLO, "0x30800000"),
          salu("s_mov_b32", sIT, 0)]
    if not OPT["kpro"]:
        o += kv_patterns()
    o += [salu("s_lshl_b32", "s69", "s70", 13), salu("s_mul_i32", "s68", "s71", 12288), salu("s_add_u32", "s68", "s68", XS[0]),
          valu("v_bfe_u32", "v8", i, 2, 2), valu("v_and_b32", "v9", 3, i)]
    o += [valu("v_lshl_add_u32", c, b, 8, c), valu("v_add_u32", c, KWANT[15], c), valu("v_add_u32", kA[0], "s69", c)]
    o += [valu("v_xor_b32", kA[j], j << 6, kA[0]) for j in range(1, 4)]
    o += [valu("v_lshl_add_u32", "v5", a, 2, "v8"), valu("v_lshlrev_b32", c, 8, "v5"), valu("v_and_b32", "v6", 7, "v5"),
          valu("v_lshl_add_u32", c, "v6", 5, c), valu("v_lshl_add_u32", c, "v9", 3, c),
          valu("v_add_u32", c, VWANT[0], c), valu("v_add_u32", vA[0], "s69", c)]
    o += [valu("v_xor_b32", vA[d], d << 5, vA[0]) for d in range(1, 8)]
    o += [valu("v_lshl_add_u32", c, a, 3, "v8"), valu("v_lshlrev_b32", c, 7, c),
          valu("v_and_b32", "v5", 2, "v8"), valu("v_and_b32", "v7", 1, a), valu("v_lshl_add_u32", "v5", "v7", 2, "v5"),
          valu("v_xor_b32", "v5", "v5", "v9"), valu("v_lshl_add_u32", c, "v5", 4, c), valu("v_add_u32", wA[0], "s69", c),
          valu("v_xor_b32", wA[1], 64, wA[0])]
    o += [valu("v_lshrrev_b32", "v5", 1, b), valu("v_xor_b32", "v5", "v5", a),
          valu("v_lshlrev_b32", "v5", 4, "v5"), valu("v_lshl_add_u32", c, b, 7, "v5"),
          valu("v_xor_b32", "v5", 64, c), valu("v_add_u32", xA[0], "s68", c), valu("v_add_u32", xA[1], "s68", "v5")]
    o += [salu("s_lshl_b32", "s68", "s70", 2), salu("s_lshl_b32", "s69", "s71", 3), salu("s_add_u32", "s69", "s69", WOJ_ADDR),
          valu("v_lshrrev_b32", c, 1, a), valu("v_lshlrev_b32", c, 12, c), valu("v_lshl_add_u32", c, "v6", 7, c),
          valu("v_add_u32", c, "s69", c), valu("v_add_u32", "v5", "s68", "v9"), valu("v_lshrrev_b32", "v6", 1, "v6"),
          valu("v_xor_b32", "v5", "v5", "v6"), valu("v_lshl_add_u32", vJ, "v5", 4, c)]
    o += [needvm([("W", 0, 0), ("X", 0)]), barrier()] + first_reads(0)
    return o


def acc2(pi, xy, qi):
    return ((pi * 6 + qi) * 2 + xy) * 4


def a2(st, pi, ks, xy):
    if st == 0:
        return (240 if pi == 0 else 48 + 16 * pi) + 8 * ks + 4 * xy
    return (48 if pi == 0 else 112 + 16 * pi) + 8 * ks + 4 * xy


def b2(st, qi, ks):
    return (192 if st == 0 else 0) + 8 * qi + 4 * ks


V2A = ["v%d" % i for i in range(240, 245)]


def k2_loads_A(st, pi, soff=None):
    return [vload(("a", a2(st, pi, ks, xy)), 4, V2A[pi], S2A, soff or sA2, ks * 2048 + xy * 1024, flags=SC1) for xy in range(2) for ks in range(2)]


def k2_loads_B(st, qi):
    return [vload(("a", b2(st, qi, ks)), 4, V2B[qi], S2B, sB2, ks * 1024, flags=SC1) for ks in range(2)]


def k2_lds_A(st, pi):
    out = []
    for xy in range(2):
        for ks in range(2):
            r = [r for r, (s_, p_, off) in PF2.items() if (s_, p_) == (st, pi) and (r not in ("s87", "s99") or off == 2048 * ks)][0]
            key = [k for k, rs in sPF.items() if r in rs][0]
            if key[0] == "W":
                out.append(ds_read("ds_read_b128", ("a", a2(st, pi, ks, xy)), 4, V2W, U[key]["addr"] + ks * 2048 + xy * 1024))
            elif key[0] == "P":
                out.append(ds_read("ds_read_b128", ("a", a2(st, pi, ks, xy)), 4, V2P, ks * 2048 + xy * 1024))
            elif r == sPF[key][0]:
                out.append(ds_read("ds_read_b128", ("a", a2(st, pi, ks, xy)), 4, V2X, U[key]["addr"] - XS[0] + ks * 2048 + xy * 1024))
            else:
                out.append(ds_read("ds_read_b128", ("a", a2(st, pi, ks, xy)), 4, V2X, U[key]["addr"] - XS[0] + 4096 + xy * 1024))
    return out


def k2_steps(S, first, loadA, loadB, pend, check=False, late=(), final=None):
    for st in range(2):
        q0 = S.n()
        tiles = [(pi, xy, qi) for pi in range(5) for xy in range(2) for qi in range(6)]
        if final is not None and st == 1:
            tiles = [t for t in tiles if t[2] >= 3] + [t for t in tiles if t[2] < 3]
            for n, x in enumerate(final[0]):
                S.put(q0 + 2 + n, x)
            for n, x in enumerate(final[1]):
                S.put(q0 + 61 + 2 * n, x)
        for pi, xy, qi in tiles:
            for ks in range(2):
                acc = ("v", acc2(pi, xy, qi))
                S.add(mfma(16, acc, ("a", a2(st, pi, ks, xy)), ("a", b2(st, qi, ks)),
                           None if (first and st == 0 and ks == 0) else acc))
        pos = [int(0.5 + 3.75 * n) for n in range(32)]
        if pend[st]:
            ls = k2_loads_A(1 - st, 4)
            S.put(q0 + pos[0], ls[2])
            S.put(q0 + pos[1], ls[3])
            for n, x in enumerate(next_off(sA2, TA, sAB, 20480)):
                S.put(q0 + pos[1] + 1 + n, x)
        if first and st == 0:
            for n, (pre, l) in enumerate(late):
                S.put(q0 + 6 * n + 2, *pre)
                S.put(q0 + 6 * n + 3, l)
            for n, r in enumerate(k2_lds_A(1, 0) + k2_lds_A(1, 1) + k2_lds_A(1, 2)):
                S.put(q0 + 6 * n + 5 if n < 8 else q0 + 54 + 4 * (n - 8), r)
            S.put(q0 + 70, valu("v_add_u32", V2P, D[9] - D[5], V2P))
            for n, r in enumerate(k2_lds_A(1, 3)):
                S.put(q0 + 73 + 4 * n, r)
        elif loadB[st]:
            for n, l in enumerate([l for qi in range(6) for l in k2_loads_B(1 - st, qi)]):
                S.put(q0 + pos[2 + n], l)
            for n, x in enumerate(next_off(sB2, TB, sBB, 12288)):
                S.put(q0 + pos[13] + 1 + n, x)
        if loadA[st]:
            n = 14
            for pi in range(5):
                ls = k2_loads_A(st, pi)
                for x, l in enumerate(ls if pi < 4 else ls[:2]):
                    assert pos[n] >= 24 * pi + 11 + 12 * (x >> 1), (pi, x, pos[n])
                    S.put(q0 + pos[n], l)
                    n += 1
        if first and st == 1:
            S.put(q0 + 110, needvm(["ost"]), barrier())
            S.put(q0 + 111, valu("v_mov_b32", V2P, "0x100"))
            S.put(q0 + 114, atomic_add(V2P, sFG))
        if check and st == 1:
            S.put(q0 + 1, scmp("s_cmp_eq_u32", sCNT, 5), salu("s_cselect_b32", sWANT, 8, 0), salu("s_cselect_b32", sPL, sFG, "0x1000"))
            S.put(q0 + 2, poll_load(V2P, sPL))
        if check and st == 0:
            S.put(q0 + 1, valu("v_readfirstlane_b32", sQ, V2P))
            S.put(q0 + 6, salu("s_bfe_u32", sQ, sQ, "0x80008"), scmp("s_cmp_lt_u32", sQ, sWANT),
                  raw("s_cbranch_scc1 L_spin2", "branch", rd=["scc"]), label("L_spin2_back"))


def k2_first(S, late):
    seq = [(0, p) for p in range(4)] + [(1, p) for p in range(3)] + [(0, 4), (1, 3), (1, 4)]
    at = {}
    for st, pi in seq:
        at[(st, pi)] = S.n()
        for xy in range(2):
            for qi in range(6):
                for ks in range(2):
                    acc = ("v", acc2(pi, xy, qi))
                    S.add(mfma(16, acc, ("a", a2(st, pi, ks, xy)), ("a", b2(st, qi, ks)), None if (st == 0 and ks == 0) else acc))
    for n, (pre, l) in enumerate(late):
        S.put(13 * n + 2, *pre)
        S.put(13 * n + 3, l)
    assert 13 * len(late) < at[(0, 4)]
    g = 5
    for pi in range(4):
        if pi == 3:
            S.put(g, valu("v_add_u32", V2P, D[9] - D[5], V2P))
            g += 2
        for r in k2_lds_A(1, pi):
            while S.fixed.get(g):
                g += 1
            S.put(g, r)
            g += 4
    items = []
    for pi in range(5):
        for x, l in enumerate(k2_loads_A(0, pi, sSO)):
            items.append((l, at[(0, pi)] + 11 + 12 * (x >> 1), 240 + 24 * pi + 12 * (x >> 1)))
        for x, l in enumerate(k2_loads_A(1, pi)[:4 if pi < 4 else 2]):
            items.append((l, at[(1, pi)] + 11 + 12 * (x >> 1), 360 + 24 * pi + 12 * (x >> 1)))
    for qi in range(6):
        for ks, l in enumerate(k2_loads_B(0, qi)):
            items.append((l, at[(0, 4)] + 12 + 2 * qi + ks, 200 + 2 * qi + ks))
    items.sort(key=lambda i: i[2])
    g, lastB = 11, 0
    while items:
        c = [i for i in items if i[1] <= g]
        if c and not any(S.fixed.get(k) and any(j.kind in ("vld", "vst") for j in S.fixed[k]) for k in ((g - 2, g - 1, g + 1) if g < 180 else (g - 1, g + 1))) and not S.fixed.get(g):
            S.put(g, c[0][0])
            if sB2 in c[0][0].rd:
                lastB = g
            items.remove(c[0])
        g += 1
        assert g < 240, items
    for n, x in enumerate(next_off(sB2, TB, sBB, 12288)):
        S.put(lastB + 1 + n, x)
    g = 226
    while S.fixed.get(g) or S.fixed.get(g + 1) or S.fixed.get(g + 3):
        g += 1
    S.put(g, needvm(["ost"]), barrier())
    S.put(g + 1, valu("v_mov_b32", V2P, "0x100"))
    S.put(g + 3, atomic_add(V2P, sFG))


def spin(name, back, dsts, soffs, conds):
    o = [label(name), salu("s_mov_b32", sSPIN, 0), label(name + "_loop"), raw("s_sleep 8")]
    o += [poll_load(d, so) for d, so in zip(dsts, soffs)]
    o += [drain(), salu("s_add_u32", sSPIN, sSPIN, 1), scmp("s_cmp_gt_u32", sSPIN, "0x20000"),
          raw(f"s_cbranch_scc1 {back}", "branch", rd=["scc"])]
    for d, (sh, msk, want) in zip(dsts, conds):
        o += [valu("v_readfirstlane_b32", sQ, d), nop(4)]
        if sh:
            o += [salu("s_lshr_b32", sQ, sQ, sh)]
        if msk:
            o += [salu("s_and_b32", sQ, sQ, msk)]
        o += [scmp("s_cmp_lt_u32", sQ, want), raw(f"s_cbranch_scc1 {name}_loop", "branch", rd=["scc"])]
    o += [raw(f"s_branch {back}", "branch")]
    return o


def phase2():
    o = [valu("v_mov_b32", V2L, vL16), salu("s_and_b32", "s85", "s4", 3), salu("s_and_b32", "s32", sWAVE, 1), salu("s_lshr_b32", "s33", sWAVE, 1),
         salu("s_mul_i32", sAB, sWAVE, 16 * 20480), salu("s_lshr_b64", f"s[{TA}:{TA + 1}]", "s[34:35]", 4)]
    o += next_off(sB2, TB, sBB, 12288)
    o += [valu("v_add_u32", V2W, sW4K, V2L), salu("s_add_u32", "s7", sW6K, XS[0]), valu("v_add_u32", V2X, "s7", V2L)]
    o += [scmp("s_cmp_eq_u32", "s33", 0)]
    o += [salu("s_cselect_b32", f"s{47 + q}", q, 2 - q) for q in range(3)]
    o += [salu("s_cselect_b32", f"s{36 + pi}", pi, 4 - pi) for pi in range(5)]
    o += [salu("s_mul_i32", "s34", "s32", 3)]
    o += [salu("s_add_u32", f"s{47 + q}", f"s{47 + q}", "s34") for q in range(3)]
    save = list(vR)
    vR[:] = [f"v{16 + q}" for q in range(6)]
    nl = 12 if OPT["pace"] else 8
    eg = epilogue_groups(0, lambda n: 240 - 4 * (24 - n) - (0 if OPT["pace"] else 16) if n >= 24 - nl else 32 + 4 * n, V2L)
    vR[:] = save
    b1 = [l for qi in range(6) for l in k2_loads_B(1, qi)]
    for n, (v, pre, st, imm) in enumerate(eg):
        m = b1[2 * (n - 8):2 * (n - 8) + 2] if 8 <= n < 14 else []
        o += v[:8] + m[:1] + v[8:16] + m[1:] + v[16:]
        if OPT["pace"]:
            if n % 2 == 0:
                o += eg[n // 2][1] + [eg[n // 2][2]]
        elif n < 16:
            o += pre + [st]
        if n == 15:
            o += [needvm(list(sPF))]
            for pi in range(5):
                o += [salu("s_lshl_b32", "s7", f"s{36 + pi}", 12), valu("v_add_u32", V2A[pi], "s7", V2L)]
            o += next_off(sPL, TA, sAB, 20480)
            if OPT["pace"]:
                o += next_off(sSO, TA, sAB, 20480)
            o += next_off(sA2, TA, sAB, 20480)
        if 16 <= n < 21:
            o += k2_lds_A(0, n - 16)
    late = []
    for n, g in enumerate(eg[24 - nl:]):
        st = vstore(("v", 240 - 4 * (nl - n) - (0 if OPT["pace"] else 16)), 4, V2L, S_OST, sE, g[3], tag="ost", flags=SC1)
        late.append((g[1], st))
    o += k2_loads_A(1, 4, sPL) + [valu("v_add_u32", V2P, D[5], V2W)]
    o += next_off(sB2, TB, sBB, 12288) + [salu("s_mov_b32", sWANT, 0)]
    o += prof_stamp(1, 30)
    o += srd(S2OUT, "s92", "s93", 7864320)
    o += [salu("s_mul_i32", sOB, "s6", 192 * 2560), salu("s_mul_i32", "s7", "s84", 96 * 2560), salu("s_add_u32", sOB, sOB, "s7"),
          salu("s_mul_i32", "s7", "s5", 1280), salu("s_add_u32", sOB, sOB, "s7"),
          salu("s_mul_i32", "s7", "s85", 320), salu("s_add_u32", sOB, sOB, "s7"), salu("s_mov_b32", sCNT, 6)]
    S0 = Sched()
    if OPT["pace"]:
        k2_first(S0, late)
    else:
        k2_steps(S0, True, [True, True], [True, True], [False, True], late=late)
    S0.order_fixed()
    first = S0.build()
    S1 = Sched()
    k2_steps(S1, False, [True, True], [True, True], [True, True], check=True)
    if OPT["prof"]:
        S1.put(3, raw("s_memrealtime s[76:77]", wr=["s76", "s77"]), raw("s_waitcnt lgkmcnt(0)", "drainlg"),
               salu("s_mov_b32", "s101", "s100"), salu("s_mov_b32", "s100", "s99"), salu("s_mov_b32", "s99", "s98"),
               salu("s_mov_b32", "s98", "s97"), salu("s_mov_b32", "s97", "s96"), salu("s_mov_b32", "s96", "s76"))
    S1.put(237, salu("s_sub_u32", sCNT, sCNT, 1))
    S1.order_fixed()
    loop = [label("L_k2")] + S1.build() + [scmp("s_cmp_lg_u32", sCNT, 0), raw("s_cbranch_scc1 L_k2", "branch", rd=["scc"])]
    R1, R2, i, a, V2O = V2A[0], V2A[1], V2A[2], V2A[3], V2A[4]
    setup = [salu("s_mul_i32", "s7", sWAVE, 30720), valu("v_add_u32", V2W, "s7", V2L), valu("v_lshrrev_b32", i, 4, V2L),
             valu("v_and_b32", a, 15, i), valu("v_mul_u32_u24", a, 2560, a), valu("v_lshrrev_b32", i, 4, i),
             valu("v_lshl_add_u32", V2O, i, 4, a),
             salu("s_xor_b32", sPL, sWAVE, 1), salu("s_sub_u32", sPL, sPL, sWAVE), salu("s_mul_i32", "s7", sPL, 30720),
             valu("v_add_u32", R1, "s7", V2W),
             salu("s_xor_b32", sPL, sWAVE, 3), salu("s_sub_u32", sPL, sPL, sWAVE), salu("s_mul_i32", "s7", sPL, 30720),
             valu("v_add_u32", R2, "s7", V2W)]
    sent = [(pi, xy, qi) for pi in range(5) for qi in range(3, 6) for xy in range(2)]
    wr = {t: ds_write("ds_write_b128", V2W, ("v", acc2(*t)), 4, n * 1024) for n, t in enumerate(sent)}
    S2 = Sched()
    e = []
    if OPT["redov"]:
        order = [wr[(pi, xy, qi)] for pi in range(5) for xy in range(2) for qi in range(3, 6)]
        k2_steps(S2, False, [False, False], [True, False], [True, False], final=(setup, order[:29]))
        e = order[29:]
    else:
        k2_steps(S2, False, [False, False], [True, False], [True, False])
        e = setup + list(wr.values())
    S2.order_fixed()
    last = S2.build()
    e += [needlgkm0(), barrier()] + prof_stamp(8, 234)
    for s in list(range(7, 15)) + list(range(7)):
        pi, q = divmod(s, 3)
        e += [ds_read("ds_read_b128", ("v", acc2(pi, xy, q + 3)), 4, R1, (2 * s + xy) * 1024) for xy in range(2)]
    for s in list(range(7, 15)) + list(range(7)):
        pi, q = divmod(s, 3)
        d, t = acc2(pi, 0, q), acc2(pi, 0, q + 3)
        e += [valu("v_add_f32", f"v{d + r}", f"v{d + r}", f"v{t + r}") for r in range(8)]
        if s >= 7:
            e += [ds_write("ds_write_b128", R1, ("v", acc2(pi, xy, q)), 4, (2 * s + xy) * 1024) for xy in range(2)]
    e += [needlgkm0(), barrier()]
    for s in range(8):
        pi, q = divmod(s, 3)
        for xy in range(2):
            e += [ds_read("ds_read_b128", ("v", acc2(pi, xy, q + 3)), 4, R2, (2 * (14 - s) + xy) * 1024)]
    for s in range(8):
        pi, q = divmod(s, 3)
        d0, t0 = acc2(pi, 0, q), acc2(pi, 0, q + 3)
        e += [valu("v_add_f32", f"v{d0 + r}", f"v{d0 + r}", f"v{t0 + r}") for r in range(8)]
        e += [valu("v_cvt_pk_bf16_f32", f"v{d0 + r}", f"v{d0 + 2 * r}", f"v{d0 + 2 * r + 1}") for r in range(4)]
        e += [salu("s_mul_i32", "s7", f"s{47 + q}", 40960), salu("s_lshl_b32", sPL, f"s{36 + pi}", 6),
              salu("s_add_u32", "s7", "s7", sPL), salu("s_add_u32", sSO, "s7", sOB),
              vstore(("v", d0), 4, V2O, S2OUT, sSO, 0, flags=OPT["outf"])]
    e += prof_stamp(9, 234)
    if OPT["prof"]:
        for n in range(6):
            e += [valu("v_mov_b32", "v234", 1), valu("v_mov_b32", "v235", f"s{101 - n}"), pstore(234, 2 + n), nop(4)]
    if OPT["dbgt"]:
        a, b = {1: ("s76", "s78"), 2: ("s74", "s76")}[OPT["dbgt"]]
        e += [drain(), raw("s_memrealtime s[78:79]", wr=["s78", "s79"]), raw("s_waitcnt lgkmcnt(0)", "drainlg"),
              salu("s_sub_u32", a, a, "s72"), salu("s_sub_u32", b, b, "s72"),
              scmp("s_cmp_lt_u32", "s2", 8), salu("s_cselect_b32", "s7", "s2", "0x1000"), salu("s_lshl_b32", "s7", "s7", 2),
              valu("v_mov_b32", "v0", a), valu("v_mov_b32", "v1", b),
              Ins(f"buffer_store_dword v0, {vFLG}, s[{S_FLG}:{S_FLG + 3}], s7 offen", "vst", rd=["v0", vFLG, "s7"]),
              Ins(f"buffer_store_dword v1, {vFLG}, s[{S_FLG}:{S_FLG + 3}], s7 offen offset:32", "vst", rd=["v1", vFLG, "s7"])]
    e += [label("L_end"), raw("s_endpgm")]
    sp1 = spin("L_spin1", "L_spin1_back", vPOLL[:1], [sFG], [(0, "0xff", 8)]) + spin("L_spin3", "L_spin3_back", vPOLL[1:], [sFB], [(16, 0, 128)])
    sp2 = spin("L_spin2", "L_spin2_back", [V2P], [sFG], [(8, "0xff", 8)])
    return o, first, loop, last, e, sp1, sp2


def kernel():
    pro = prologue()
    q1 = q_phase(False)
    full = []
    for last in (False, True):
        _alt[0] = 0
        full.append(a_phase(last))
    cut = [[n for n, x in enumerate(f) if x.text == "L_CUT:"][0] for f in full]
    assert [x.text for x in full[0][:cut[0]]] == [x.text for x in full[1][:cut[1]]]
    att = [label("L_att")] + full[0][:cut[0]]
    tails = []
    for v in range(2):
        t = ([label("L_tail2")] if v else []) + full[v][cut[v] + 1:]
        t += [raw("s_cbranch_vccnz L_slow", "branch", rd=["vcc"]), label(f"L_back{v + 1}")]
        t += [valu("v_rcp_f32", f"v{16 + qt}" if v else vR[qt], f"v{lacc(qt)}") for qt in range(6)]
        if OPT["dbgt"]:
            t += [raw(f"s_memrealtime s[{74 + 2 * v}:{75 + 2 * v}]", wr=[f"s{74 + 2 * v}", f"s{75 + 2 * v}"]), raw("s_waitcnt lgkmcnt(0)", "drainlg")]
        t += prof_stamp(29)
        if OPT["prof"]:
            t += [salu("s_add_u32", sPROF, sPROF, 240)]
        tails.append(t)
    q2 = [salu("s_mov_b32", sIT, 1), label("L_q2")] + q_phase(True) + [raw("s_branch L_att", "branch")]
    o, first, loop2, last, e, sp1, sp2 = phase2()
    slow = slow_path()
    parts = [pro, q1, att, tails[0], q2, tails[1], o, first, loop2, last, e, slow, sp1, sp2]
    waits = compute_waits([pro + q1 + att + tails[0] + q2 + att + tails[1] + o + first + loop2 + loop2 + loop2 + last + e, slow, sp1, sp2])
    done = {}
    P = [apply_waits(x, waits, done) for x in parts]
    pads = pad_hazards([P[0] + P[1] + P[2] + P[3] + P[4] + P[2] + P[5] + P[6] + P[7] + P[8] + P[8] + P[9] + P[10], P[11], P[12], P[13]])
    al = ".p2align 3\n"
    return (emit(P[0] + P[1], pads) + al + emit(P[2] + P[3] + P[4], pads) + al + emit(P[5] + P[6] + P[7], pads) + al +
            emit(P[8] + P[9] + P[10] + P[11] + P[12] + P[13], pads) + "L_endcode:\n")


def main():
    kn = NAME + "_kernel"
    s = open("cdna_kernels/" + NAME + ".s.ref").read().split("; Override launch")[0]
    s += "; @launch grid=(256,1,1) block=(256,1,1) lds=163840\n"
    s += '.amdgcn_target "amdgcn-amd-amdhsa--gfx950"\n.text\n'
    s += f".globl {kn}\n.p2align 8\n.type {kn},@function\n{kn}:\n" + kernel()
    s += f""".section .rodata,"a"
.p2align 6
.amdhsa_kernel {kn}
  .amdhsa_next_free_vgpr 512
  .amdhsa_next_free_sgpr 102
  .amdhsa_accum_offset 256
  .amdhsa_group_segment_fixed_size 0
  .amdhsa_kernarg_size 104
  .amdhsa_user_sgpr_count 2
  .amdhsa_user_sgpr_kernarg_segment_ptr 1
  .amdhsa_system_sgpr_workgroup_id_x 1
.end_amdhsa_kernel
"""
    open(sys.argv[1], "w").write(s)


main()
```

```python
import sys, math, struct
from fw3 import *
from orders import orders

NAME = "concat_heads__mha_block_cached__mha_block_cached__near_ridge"
OPT = dict(outf=' sc1', redov=1, one1=1, warmj=0, pk=1, pfq1=1, rot2=2, gate=0, pace=1, lead=3, xpace=0, kvf=' nt', norot=0, tlbw=0, kpro=0, kplan=0, jlate=1, dbgt=0, jpro=0, k1s=0, e10=2, t23=0, nfree=1, gstep=2, rotq=3, early=1, uni=0, prof=0, report=False, stg=67, warmw=True, codepf=2, codepf2=14, pf='', pf0=1, pfn=3, pff='', flagbar=12, map=0)
for a in sys.argv[2:]:
    k, v = a.split("=")
    OPT[k] = type(OPT[k])(int(v)) if not isinstance(OPT[k], str) else v

KB = 1024
SC1 = " sc1"
O_GRP = 2 * 786432
WS_WOT = 50331648
WOT_BLK = 5242880
WS_PROF = 64 * 1024 * 1024

S_K, S_V, S_X, S_WQ, S_OST, S_WO, S_WOT = 8, 12, 16, 20, 24, 28, 32
sKV, sWQ, sX, sW4K, sW6K, sO, sIT, sT0, sT1, sC, sWAVE = ["s%d" % i for i in range(36, 47)]
sWOS, sWOD, sWOX, sW5K, sHI, sLO = ["s%d" % i for i in range(47, 53)]
sPROF, sE, sJ = "s53", "s54", "s55"
sQT, sWS, sXS, sW1 = "s50", "s67", "s95", "s63"
sROT, sFG, sFB, sCP = "s62", "s65", "s66", "s64"
sA2, sB2, sPL, sOB, sCNT, sSO, sQ, sSH, sWANT, sSPIN = "s28", "s29", "s30", "s31", "s67", "s68", "s69", "s70", "s71", "s94"
S_PROF, S_FLG = 72, 80
sPF = {("W", 0, 0): ["s84"], ("W", 0, 1): ["s85"], ("X", 0): ["s86", "s87"], ("X", 1): ["s98", "s99"], ("W", 1, 0): ["s100"], ("W", 1, 1): ["s101"],
       ("P", 0): ["s60"], ("P", 1): ["s61"]}
PF2 = {"s84": (0, 0, 0), "s85": (0, 1, 0), "s86": (0, 2, 0), "s98": (0, 3, 0), "s100": (0, 4, 0), "s101": (1, 0, 0),
       "s87": (1, 1, 0), "s99": (1, 1, 2048), "s60": (1, 2, 0), "s61": (1, 3, 0)}
vK = ["v%d" % i for i in range(192, 196)]
vV = ["v196", "v197"]
vW = ["v%d" % i for i in range(198, 202)]
vX = ["v%d" % i for i in range(202, 206)]
kA = ["v%d" % i for i in range(206, 210)]
vA = ["v%d" % i for i in range(210, 218)]
wA = ["v218", "v219"]
xA = ["v220", "v221"]
vJ, vL16 = "v222", "v223"
ONES = 224
EPI = 228
vR = ["v%d" % i for i in range(244, 250)]
vFLG = "v250"
vT = ["v252", "v253"]
vC2 = "v[242:243]"
vPOLL = ["v254", "v255"]

V2B = ["v245", "v246", "v247", "v248", "v249", "v251"]
V2L, V2W, V2P, V2X = "v252", "v254", "v255", "v253"
S2A, S2B, S2OUT = S_WQ, S_X, 8
TA, TB, sAB, sBB = 56, 62, "s43", "s44"

D = [i * 16 * KB for i in range(10)]
XS = [96 * KB, 120 * KB]
WOJ_ADDR = D[4]


def qacc(p, xy, qt):
    return 64 * (qt >> 1) + (2 * p + (qt & 1)) * 8 + 4 * xy


def qf(qt, p):
    return 64 * (qt >> 1) + (2 * p + (qt & 1)) * 4


def sreg(qt):
    return 64 * (qt >> 1) + 32 + 8 * (qt & 1)


def lacc(qt):
    return 64 * (qt >> 1) + 48 + 4 * (qt & 1)


ABUF = [192, 248]


def bx(qt, ks):
    return 200 + 8 * qt + 4 * ks


def kf(kt, ks):
    return 192 + 16 * kt + 4 * ks


def vf(dt):
    return 224 + 4 * dt


def oacc(qt, dt):
    return 32 * qt + 4 * dt


def build_units():
    U = {}
    for i in range(10):
        U[("X", i)] = dict(addr=XS[i % 2], size=24 * KB, iss=i - 2.5, land=i - 1, rel=i - 0.5)
        U[("W", i, 0)] = dict(addr=D[2 * (i % 2)], size=16 * KB, iss=i - 2.5, land=i - 1, rel=i - 0.5)
        U[("W", i, 1)] = dict(addr=D[2 * (i % 2) + 1], size=16 * KB, iss=i - 2, land=i - 0.5, rel=i)
    for k, e in ((("X", 0), -4), (("W", 0, 0), -4), (("W", 0, 1), -4), (("X", 1), -3), (("W", 1, 0), -3), (("W", 1, 1), -3)):
        U[k]["iss"] = e
    pages = [9, 5, 4, 6, 0, 7, 1, 8, 2, 3, 9, 4, 5, 6, 0, 1, 7, 2, 8, 3, 9, 4, 5, 6, 0, 7, 1, 8, 2, 9, 5, 4]
    for u in range(32):
        key = ("K", u // 2) if u % 2 == 0 else ("V", u // 2)
        N = 10 + u // 2 + u % 2
        U[key] = dict(addr=D[pages[u]], size=16 * KB, iss=N - 5 + (u == 30), land=N - 1, rel=N)
    U[("V", 1)]["iss"] = U[("K", 2)]["iss"] = 7.5
    U[("V", 2)]["iss"] = 8.5
    if OPT["e10"] < 2:
        U[("K", 4)]["iss"] = 10
    if OPT["e10"] < 1:
        U[("V", 3)]["iss"] = 10
    if OPT["t23"]:
        U[("W", 0, 0)]["iss"] = U[("W", 1, 1)]["iss"] = -5
    return U


def check_units(second):
    V = {k: dict(u) for k, u in U.items()}
    if second:
        V[("K", 0)]["iss"] = V[("V", 0)]["iss"] = -2
        V[("K", 1)]["iss"] = -1
    else:
        V[("J",)] = dict(addr=D[4], size=32 * KB, iss=-1, land=2, rel=3)
        V[("J", 2)] = dict(addr=D[9], size=16 * KB, iss=0, land=2, rel=3)
        V[("K", 0)]["iss"], V[("V", 0)]["iss"], V[("K", 1)]["iss"] = 3, 4, 5
    allu = [(k, u["addr"], u["addr"] + u["size"], u["iss"], u["rel"]) for k, u in V.items()]
    assert all(u["iss"] < u["land"] <= u["rel"] for u in V.values())
    if second:
        allu += [(k, u["addr"], u["addr"] + u["size"], u["iss"] - 27, u["rel"] - 27) for k, u in U.items() if k[0] in "KV" and k[1] > 2]
        allu += [(("P", n), D[p], D[p] + 16 * KB, 25, 27) for n, p in enumerate((5, 9))]
        allu += [(k, u["addr"], u["addr"] + u["size"], u["iss"] + 27, 40) for k, u in U.items() if u["iss"] is not None and u["iss"] < -2.6]
    for a in allu:
        for b in allu:
            if a is not b and a[1] < b[2] and b[1] < a[2]:
                assert a[4] <= b[3] or b[4] <= a[3], (a, b)


U = build_units()
U[("K", 0)]["iss"] = U[("V", 0)]["iss"] = U[("K", 1)]["iss"] = None
PADDR = {("P", 0): D[5], ("P", 1): D[9]}
_alt = [0]


def next_st():
    _alt[0] ^= 1
    return [sT0, sT1][_alt[0]]


def unit_dmas(key, tmp=None):
    kind = key[0]
    if kind == "P":
        return [([salu("s_add_u32", "m0", sW4K, PADDR[key])], [dma(vW[m], S_WQ, sPF[key][0], 1024 * m, key, SC1) for m in range(4)])]
    if kind == "J":
        jj = key[1]
        sT = tmp
        pre = [salu("s_add_u32", sT, sWOS, jj * 128), salu("s_add_u32", "m0", sW4K, D[(4, 5, 9)[jj >> 2]] + (jj & 3) * 1024)]
        return [(pre, [dma(vX[0], S_WO, sT, 0, "J", " nt")])]
    u = U[key]
    if key in sPF:
        if kind == "W":
            return [([salu("s_add_u32", "m0", sW4K, u["addr"])], [dma(vW[m], S_WQ, sPF[key][0], 1024 * m, key, SC1) for m in range(4)])]
        return [([salu("s_add_u32", "m0", sW6K, u["addr"])], [dma(vX[m], S_X, sPF[key][0], 1024 * m, key, SC1) for m in range(4)]),
                ([salu("s_add_u32", "m0", sW6K, u["addr"] + 4096)], [dma(vX[m], S_X, sPF[key][1], 1024 * m, key, SC1) for m in range(2)])]
    sT = tmp or next_st()
    if kind in "KV":
        pre = [salu("s_add_u32", sT, sROT, key[1] * 8192), salu("s_and_b32", sT, sT, "0x1ffff"), salu("s_add_u32", sT, sT, sKV),
               salu("s_add_u32", "m0", sW4K, u["addr"])]
        if kind == "K":
            return [(pre, [dma(vK[m], S_K, sT, 1024 * m, key, OPT["kvf"]) for m in range(4)])]
        return [(pre, [dma(vV[m & 1], S_V, sT, 1024 * m, key, OPT["kvf"]) for m in range(4)])]
    if kind == "W":
        return [([salu("s_add_u32", "m0", sW4K, u["addr"])], [dma(vW[m], S_WQ, sW1 if key[2] else sWS, 1024 * m, key) for m in range(4)])]
    g0 = ([salu("s_add_u32", "m0", sW6K, u["addr"])], [dma(vX[m], S_X, sXS, 1024 * m, key) for m in range(4)])
    pre2 = [salu("s_add_u32", sT, sXS, 40960), salu("s_add_u32", "m0", sW6K, u["addr"] + 4096)]
    return [g0, (pre2, [dma(vX[m], S_X, sT, 1024 * m, key) for m in range(2)])]


def set_pf_proj(tail=False):
    o = []
    for key, rs in sPF.items():
        if key[0] == "P":
            continue
        if key[0] == "W":
            o += [salu("s_add_u32", rs[0], sWQ, key[1] * 524288 + key[2] * 128)]
        else:
            o += [salu("s_add_u32", rs[0], sX, key[1] * 128), salu("s_add_u32", rs[1], sX, key[1] * 128 + 40960)]
    return o


ORD2 = orders(16, 4, 8, 7, {1: [4], 2: [1, 1, 2, 2, 2, 0, 0], 3: [1, 2, 2, 2, 1, 0, 0], 4: [2, 1, 2, 2, 1, 0, 0]}[OPT["rot2"]])[0] if OPT["rot2"] else [list(range(16))] * 4
ORDQ = orders(10, 4, None, 0, {1: [1, 1, 2, 2, 2, 1, 1], 2: [1, 1, 4], 3: [1, 1, 2, 2, 1, 1, 1, 1]}[OPT["rotq"]])[0] if OPT["rotq"] else [list(range(10))] * 4
assert all(o[:2] == [0, 1] for o in ORDQ)
TBLQ = [sum(x << (4 * n) for n, x in enumerate(o[2:])) for o in ORDQ]
TBL2 = [sum(x << (4 * n) for n, x in enumerate(o)) for o in ORD2]


def next_off(dst, tbl, base, stride):
    return [salu("s_and_b32", dst, f"s{tbl}", 15), salu("s_lshr_b64", f"s[{tbl}:{tbl + 1}]", f"s[{tbl}:{tbl + 1}]", 4),
            salu("s_mul_i32", dst, dst, stride), salu("s_add_u32", dst, dst, base)]


def set_pf_out():
    o = [salu("s_and_b32", "s68", "s4", 3), salu("s_mul_i32", "s68", "s68", 1310720), salu("s_mul_i32", "s69", "s5", WOT_BLK),
         salu("s_add_u32", "s68", "s68", "s69"), salu("s_add_u32", "s68", "s68", WS_WOT)]
    o += [[salu("s_add_u32", f"s{S_WQ}", "s90", "s68"), salu("s_addc_u32", "s69", "s91", 0)]]
    o += [salu("s_and_b32", f"s{S_WQ + 1}", "s69", "0xffff"), salu("s_mov_b32", f"s{S_WQ + 2}", 1310720),
          salu("s_mov_b32", f"s{S_X}", f"s{S_WQ}"), salu("s_mov_b32", f"s{S_X + 1}", f"s{S_WQ + 1}"), salu("s_mov_b32", f"s{S_X + 2}", 1310720)]
    o += [salu("s_lshr_b32", "s70", sWAVE, 1), salu("s_mul_i32", "s68", sWAVE, 16 * 20480), salu("s_lshl_b32", "s69", "s70", 14),
          salu("s_add_u32", "s68", "s68", "s69"), salu("s_lshl_b32", "s69", "s70", 13), salu("s_sub_u32", "s69", 4096, "s69")]
    o += [salu("s_add_u32", "s70", "s3", "s4"), salu("s_and_b32", "s70", "s70", 3),
          salu("s_mov_b32", "s34", "0x%x" % (TBL2[0] & 0xffffffff)), salu("s_mov_b32", "s35", "0x%x" % (TBL2[0] >> 32))]
    for r in range(1, 4):
        o += [[scmp("s_cmp_eq_u32", "s70", r), salu("s_cselect_b32", "s34", "0x%x" % (TBL2[r] & 0xffffffff), "s34"),
               salu("s_cselect_b32", "s35", "0x%x" % (TBL2[r] >> 32), "s35")]]
    o += [salu("s_and_b32", "s70", "s34", 15), salu("s_mul_i32", "s70", "s70", 20480), salu("s_add_u32", "s70", "s70", "s68"),
          salu("s_bfe_u32", "s71", "s34", "0x40004"), salu("s_mul_i32", "s71", "s71", 20480), salu("s_add_u32", "s71", "s71", "s68")]
    for r, (st, pi, off) in PF2.items():
        o += [salu("s_mul_i32", r, "s69", pi), salu("s_add_u32", r, r, "s71" if st else "s70")]
        if off:
            o += [salu("s_add_u32", r, r, off)]
    return o


def groups_at(iss):
    order = {"W": 0, "X": 1, "K": 2, "V": 2}
    keys = sorted([k for k, u in U.items() if u["iss"] is not None and u["iss"] % 27 == iss % 27],
                  key=lambda k: (U[k]["land"] - U[k]["iss"], order[k[0]], k))
    return [g for k in keys for g in unit_dmas(k)]


def place_dmas(S, groups, cand, lo):
    ci = 0
    for pre, ds in groups:
        g = cand[ci]
        for n, p in enumerate(pre):
            S.put(max(lo, g - len(pre) + n), p)
        for d in ds:
            S.put(cand[ci], d)
            ci += 1


def tags_for(n):
    t = [k for k, u in U.items() if (u["land"] - n) % 27 == 0]
    if n == OPT["flagbar"]:
        t += ["ost", "jst"]
    if n == 2:
        t += ["J"]
    return t


def atomic_add(vdata, soff):
    return Ins(f"buffer_atomic_add {vdata}, {vFLG}, s[{S_FLG}:{S_FLG + 3}], {soff} offen sc1", "atomic",
               rd=[vdata, vFLG, soff] + regs("s", S_FLG, 4), tag="flag")


def poll_load(vdst, soff):
    return Ins(f"buffer_load_dword {vdst}, off, s[{S_FLG}:{S_FLG + 3}], {soff} sc1", "vld", rd=[soff] + regs("s", S_FLG, 4), wr=[vdst])


class Win:
    def __init__(self, rs, init):
        self.rs = rs
        self.cur = init

    def move(self, new):
        d = (new - self.cur) & 0xffffffff
        self.cur = new
        return [valu("v_add_u32", r, "0x%x" % d, r) for r in self.rs] if d else []


def plan_windows(addrs, span):
    want = []
    i = 0
    while i < len(addrs):
        lo = hi = addrs[i]
        j = i + 1
        while j < len(addrs) and max(hi, addrs[j]) - min(lo, addrs[j]) + span < 65536:
            lo, hi = min(lo, addrs[j]), max(hi, addrs[j])
            j += 1
        want += [lo] * (j - i)
        i = j
    return want


KWANT = plan_windows([U[("K", t)]["addr"] for t in range(16)], 4096)
VWANT = plan_windows([U[("V", t)]["addr"] for t in range(16)], 4096)
check_units(False)
check_units(True)


def pstore(v0, idx):
    return Ins(f"buffer_store_dwordx2 v[{v0}:{v0 + 1}], off, s[{S_PROF}:{S_PROF + 3}], {sPROF} offset:{8 * idx}", "vst",
               rd=[f"v{v0}", f"v{v0 + 1}", sPROF] + regs("s", S_PROF, 4))


def prof_stamp(idx, v0=252):
    if not OPT["prof"]:
        return []
    return [raw("s_memtime s[76:77]", "other", wr=["s76", "s77"]),
            raw("s_memrealtime s[78:79]", "other", wr=["s78", "s79"]),
            raw("s_waitcnt lgkmcnt(0)", "drainlg"),
            valu("v_mov_b32", f"v{v0}", "s76"),
            valu("v_mov_b32", f"v{v0 + 1}", "s78"),
            pstore(v0, idx)]


def bar_seq(tags, idx):
    if OPT["prof"] < 2:
        return [needboth(tags), barrier()] + prof_stamp(idx)
    return [raw("s_memtime s[58:59]", "other", wr=["s58", "s59"]), raw("s_waitcnt lgkmcnt(0)", "drainlg"),
            needboth(tags), barrier(),
            raw("s_memtime s[76:77]", "other", wr=["s76", "s77"]),
            raw("s_memrealtime s[78:79]", "other", wr=["s78", "s79"]),
            raw("s_waitcnt lgkmcnt(0)", "drainlg"), salu("s_sub_u32", "s76", "s76", "s58"),
            valu("v_mov_b32", "v252", "s76"), valu("v_mov_b32", "v253", "s78"), pstore(252, idx)]


def a_read(i, dt, ks, t):
    p, xy = dt >> 1, dt & 1
    off = U[("W", i, p >> 1)]["addr"] + ks * 4096 + t * 512 + xy * 8
    return ds_read("ds_read_b64_tr_b16", ("a", ABUF[dt % 2] + 4 * ks + 2 * t), 2, wA[p & 1], off)


def first_reads(i):
    ax = U[("X", i)]["addr"] - XS[0]

    def A(ks, t):
        return a_read(i, 0, ks, t)

    def B(qt, ks):
        return ds_read("ds_read_b128", ("a", bx(qt, ks)), 4, xA[ks], ax + qt * 2048)
    return [A(0, 0), A(0, 1), B(0, 0), A(1, 0), A(1, 1), B(0, 1)] + [B(qt, ks) for qt in range(1, 6) for ks in range(2)]


def k_read(t, j):
    kt, ks = j >> 2, j & 3
    return ds_read("ds_read_b128", ("a", kf(kt, ks)), 4, kA[ks], U[("K", t)]["addr"] - KWANT[t] + kt * 4096)


def epilogue_groups(tmp, dst=None, vaddr=None):
    groups = []
    n = 0
    for T in range(3):
        for ph in range(2):
            for qs in range(2):
                for pl in range(2):
                    qt = 2 * T + qs
                    tb = tmp + 4 * (n % 3)
                    src = oacc(qt, 4 * ph + 2 * pl)
                    db = tb if dst is None or dst(n) is None else dst(n)
                    rd = [valu("v_accvgpr_read_b32", f"v{tb + i}", f"a{src + i}") for i in range(8)]
                    mu = [valu("v_mul_f32", f"v{tb + i}", vR[qt], f"v{tb + i}") for i in range(8)]
                    cv = [valu("v_cvt_pk_bf16_f32", f"v{db + i}", f"v{tb + 2 * i}", f"v{tb + 2 * i + 1}") for i in range(4)]
                    pre = [salu("s_add_u32", sE, sO, ph * 12288 + T * 4096)] if qs == 0 and pl == 0 else []
                    imm = qs * 2048 + pl * 1024
                    groups.append((rd + mu + cv, pre, vstore(("v", db), 4, vaddr or vL16, S_OST, sE, imm, tag="ost", flags=SC1), imm))
                    n += 1
    return groups


def conv_items(T, ps, packed=()):
    out = []
    for p in ps:
        for qs in range(2):
            R, Dd = qacc(p, 0, 2 * T + qs), qf(2 * T + qs, p)
            if p in packed:
                out += [(p, qs, valu("v_pk_mul_f32", f"v[{R + x}:{R + x + 1}]", f"v[{R + x}:{R + x + 1}]", "s[86:87]" if False else vC2)) for x in range(0, 8, 2)]
            else:
                out += [(p, qs, valu("v_mul_f32", f"v{R + x}", sC, f"v{R + x}")) for x in range(8)]
            out += [(p, qs, valu("v_cvt_pk_bf16_f32", f"v{Dd + x}", f"v{R + 2 * x}", f"v{R + 2 * x + 1}")) for x in range(4)]
    return out


def q_phase(second):
    S = Sched()
    extra, mid = {}, {}
    if second:
        extra[OPT["k1s"]] = unit_dmas(("K", 1), sJ)
    else:
        jp = OPT["jpro"]
        if jp == 0:
            extra[0] = [g for jj in range(5) for g in unit_dmas(("J", jj), sE)]
            extra[1] = [g for jj in range(5, 10) for g in unit_dmas(("J", jj), sE)]
        elif jp < 10:
            extra[1] = [g for jj in range(jp, 10) for g in unit_dmas(("J", jj), sE)]
        kv = [unit_dmas(k, sE) for k in [("K", 0), ("V", 0), ("K", 1)]]
        if OPT["kplan"] == 0:
            extra[4], extra[5], extra[6] = kv
        elif OPT["kplan"] == 1:
            extra[7], mid[8] = kv[0], kv[1]
            extra[8] = kv[2]
        elif OPT["kplan"] == 2:
            extra[4], extra[7], mid[8] = kv
        elif OPT["kplan"] == 4:
            extra[5], extra[6], extra[7] = kv
        elif OPT["kplan"] == 5:
            extra[4], extra[6], extra[7] = kv
        elif OPT["kplan"] == 3:
            extra[5], extra[7], mid[8] = kv
    for i in range(10):
        q0 = S.n()
        for dt in range(8):
            for qt in range(6):
                for ks in range(2):
                    acc = ("v", qacc(dt >> 1, dt & 1, qt))
                    S.add(mfma(16, acc, ("a", ABUF[dt % 2] + 4 * ks), ("a", bx(qt, ks)), None if (i == 0 and ks == 0) else acc))
        for dt in range(1, 8):
            gaps = [4, 5, 6, 7] if dt == 1 else [0, 2, 3, 4]
            for n, (ks, t) in enumerate([(0, 0), (0, 1), (1, 0), (1, 1)]):
                S.put(q0 + 12 * (dt - 1) + gaps[n], a_read(i, dt, ks, t))
        S.put(q0 + 35, needboth(tags_for(i - 0.5)), barrier())
        S.put(q0 + 83, *bar_seq(tags_for(i), 2 + i))
        if i < 9:
            for n, r in enumerate(first_reads(i + 1)):
                S.put(q0 + 84 + n, r)
        else:
            kw = Win(kA, KWANT[15])
            mv = kw.move(KWANT[0])
            S.put(q0 + 80, *mv[:2])
            S.put(q0 + 82, *mv[2:])
            for j in range(8):
                S.put(q0 + 84 + j, k_read(0, j))
        if i <= 7:
            for n, x in enumerate([salu("s_bfe_u32", sXS, sQT, "0x%x" % (0x40000 + 4 * i)), salu("s_lshl_b32", sWS, sXS, 19),
                                   salu("s_add_u32", sWS, sWS, sWQ), salu("s_lshl_b32", sXS, sXS, 7), salu("s_add_u32", sXS, sXS, sX),
                                   salu("s_add_u32", sW1, sWS, 128)]):
                S.put(q0 + 26 + n, x)
        early = groups_at(i - 1) if i else []
        place_dmas(S, early + mid.get(i, []), [q0 + g for g in (9, 13, 17, 21, 25, 29, 31, 33)], q0)
        late = groups_at(i - 0.5) + extra.get(i, [])
        if i == 8 and 8 in extra:
            late = extra[8] + groups_at(i - 0.5)
        cand = [q0 + 37 + 4 * x for x in range(12)]
        nd = sum(len(g[1]) for g in late)
        if nd > 12:
            cand = sorted(cand + [q0 + 67, q0 + 71, q0 + 75, q0 + 79][:nd - 12])
        place_dmas(S, late, cand, q0 + 35)
    if not second:
        for jj in range(10):
            q0 = 96 * 3
            if jj == 8:
                S.put(q0 + 65, valu("v_add_u32", vJ, D[9] - D[4] - 2 * 16384, vJ))
            for tt in range(2):
                g = q0 + [10, 11, 18, 19, 22, 23, 30, 31, 34, 42, 43, 46, 47, 54, 55, 58, 66, 67, 70, 71][2 * jj + tt]
                S.put(g, ds_read("ds_read_b64_tr_b16", ("a", 4 * jj + 2 * tt), 2, vJ, (jj >> 2) * 16384 + (jj & 3) * 1024 + tt * 8192))
            nq, pair = divmod(2 * jj, 5)
            g = 96 * (4 + jj // 3) + [19, 25, 31][jj % 3]
            if OPT["jlate"]:
                g = 96 * (3 + jj // 2) + ([79, 82] if (3 + jj // 2) in extra else [77, 81])[jj % 2]
            S.put(g - 1, salu("s_add_u32", sJ, sWOX if pair == 4 else sWOD, nq * 1310720 + pair * 4096))
            S.put(g, vstore(("a", 4 * jj), 4, vL16, S_WOT, sJ, 0, tag="jst", flags=SC1))
    if second:
        eg = epilogue_groups(EPI)
        ep = []
        for i in range(8):
            for g in eg[3 * i:3 * i + 3]:
                ep += [(x, 96 * i, None) for x in g[0]]
            for g in eg[3 * i:3 * i + 3]:
                ep += [(x, 96 * i + OPT["stg"], None) for x in g[1] + [g[2]]]
        ep[-1] = (ep[-1][0], ep[-1][1], 96 * 9 - 1)
        S.stream(ep)
        S.put(96 * 9 + 2, salu("s_add_u32", sO, sO, 8 * 12288))
    q0 = 96 * 9
    g = q0 + 2
    for x in ([salu("s_add_u32", sWQ, sWQ, 512)] + set_pf_proj(True) if not second else set_pf_out()):
        S.put(g, *(x if isinstance(x, list) else [x]))
        g += 1 if g < q0 + 94 else 0
        while g in (q0 + 35, q0 + 83) or any(x.kind == "salu" for x in S.fixed.get(g, [])):
            g += 1
    if second:
        S.stream([(valu("v_mov_b32", r, vL16), q0 + 2, None) for r in vW + vX])
    S.put(q0 + 7, valu("v_mov_b32", "v242", sC), valu("v_mov_b32", "v243", sC))
    S.stream([(x, min(q0 + 12 * (2 * p + 1) + 2 * qs + 1 + 2, q0 + 95), None) for p, qs, x in conv_items(0, range(4))])
    S.put(-1, *prof_stamp(1))
    return S.finish(lead=first_reads(0), report=OPT["report"])


def lspread(qt, tmp):
    l = f"v{lacc(qt)}"
    return [valu("v_mov_b32", tmp, l), perm("v_permlane32_swap_b32", tmp, l), valu("v_add_f32", l, l, tmp),
            valu("v_mov_b32", tmp, l), perm("v_permlane16_swap_b32", tmp, l), valu("v_add_f32", l, l, tmp)]


def interleave(a, b):
    return [x for p in zip(a, b) for x in p]


def lcheck():
    l = [f"v{lacc(qt)}" for qt in range(6)]
    return [valu("v_add_f32", vT[0], l[0], l[1]), valu("v_min3_f32", vT[1], l[0], l[1], l[2]),
            valu("v_add_f32", vT[0], vT[0], l[2]), valu("v_min3_f32", vT[1], vT[1], l[3], l[4]),
            valu("v_add_f32", vT[0], vT[0], l[3]), valu("v_add_f32", vT[0], vT[0], l[4]),
            valu("v_min_f32", vT[1], vT[1], l[5]), valu("v_add_f32", vT[0], vT[0], l[5]),
            valu("v_cmp_nlt_f32", "s[56:57]", sLO, vT[1]),
            valu("v_cmp_ngt_f32", "vcc", sHI, vT[0]),
            salu("s_or_b64", "vcc", "vcc", "s[56:57]")]


def a_phase(last):
    S = Sched()
    qk = [[0] * 3 for _ in range(16)]
    pv = [[0] * 3 for _ in range(16)]

    def QK(t, T):
        qk[t][T] = S.n()
        for qs in range(2):
            for kt in range(2):
                s = ("v", sreg(2 * T + qs) + 4 * kt)
                for ks in range(4):
                    S.add(mfma(16, s, ("a", kf(kt, ks)), ("v", qf(2 * T + qs, ks)), None if ks == 0 else s))

    def PV(t, T):
        pv[t][T] = S.n()
        sums = []
        for qs in range(2):
            l = ("v", lacc(2 * T + qs))
            sums.append(mfma(16, l, ("v", ONES), ("v", sreg(2 * T + qs)), None if t == 0 else l))
        if t == 15:
            for m in sums:
                S.add(m)
        for dt in range(8):
            for qs in range(2):
                o = ("a", oacc(2 * T + qs, dt))
                S.add(mfma(16, o, ("a", vf(dt)), ("v", sreg(2 * T + qs)), None if t == 0 else o))
        if t < 15:
            for m in sums:
                S.add(m)

    for t in range(16):
        QK(t, 0)
        if t:
            PV(t - 1, 1)
        QK(t, 1)
        if t:
            PV(t - 1, 2)
        QK(t, 2)
        PV(t, 0)
    PV(15, 1)
    PV(15, 2)
    bar = {}
    kw, vw = Win(kA, KWANT[0]), Win(vA, VWANT[0])
    for t in range(16):
        g0 = pv[t - 1][2] if t else qk[0][1]
        bar[10 + t] = g0 - 1
        S.put(g0 - 1, *bar_seq(tags_for(10 + t), 12 + t))
        if t == 15:
            S.put(g0 - 1, scmp("s_cmp_eq_u32", sIT, 1), raw("s_cbranch_scc1 L_tail2", "branch", rd=["scc"]), label("L_CUT"))
        for n, m in enumerate(vw.move(VWANT[t])):
            S.put(g0 - 14 + 3 * (n // 2), m)
        for dt in range(8):
            for tt in range(2):
                S.put(g0 + 4 * dt + 1 + 2 * tt,
                      ds_read("ds_read_b64_tr_b16", ("a", vf(dt) + 2 * tt), 2, vA[dt], U[("V", t)]["addr"] - VWANT[t] + tt * 4096))
        if t < 15:
            for n, m in enumerate(kw.move(KWANT[t + 1])):
                S.put((qk[t][0] + 9 if t else qk[0][2] + 2) + (3 if t else 2) * (n // 2), m)
            for j in range(8):
                S.put(qk[t][2] + [8, 10, 12, 14, 17, 19, 21, 23][j], k_read(t + 1, j))
    if not last:
        S.stream([(m, pv[15][0], None) for m in vw.move(VWANT[0])])
    bar[26] = pv[15][1] - 1
    S.put(bar[26], *(prof_stamp(28) if last else bar_seq(tags_for(26), 28)))
    fr = [] if last else first_reads(0)
    for n, r in enumerate(fr[:10]):
        S.put(pv[15][1] + [1, 3, 5, 7, 9, 11, 13, 15, 16, 17][n], r)
    for n, r in enumerate(fr[10:]):
        S.put(pv[15][2] + 3 + 2 * n, r)
    for n in range(10, 27):
        groups = groups_at(n - 1)
        if n == 26:
            groups = [g for k in ([("P", 0), ("P", 1)] if last else [("K", 0), ("V", 0)]) for g in unit_dmas(k)]
        nd = sum(len(g[1]) for g in groups)
        if n == 10:
            cand = [(16 // max(nd, 1)) * x for x in range(nd)]
            lo = -1
        else:
            lo = bar[n - 1] + 1
            if n == 11 or n == 26 or OPT["uni"]:
                a = lo + 5
            else:
                a = qk[n - 10][0] + 1 if nd <= 8 else pv[n - 11][0] + 6
            b = bar[n] - 1
            cand = []
            for x in range(nd):
                g = a + (b - a) * x // nd
                while any(i.kind in MEMK for i in S.fixed.get(g, [])) or g in cand:
                    g += 1
                cand.append(g)
            assert not cand or cand[-1] < bar[n]
        place_dmas(S, groups, cand, lo)
    if OPT["xpace"]:
        for t in range(1, 14):
            for T in range(3):
                S.put(pv[t][T] + 17, nop(OPT["xpace"]))
                S.put(qk[t][T] + 15, nop(OPT["xpace"]))
    S.put(qk[14][0] - 3, salu("s_add_u32", sKV, sKV, 262144))
    g = bar[OPT["flagbar"]] + 2
    S.put(g - 1, scmp("s_cmp_eq_u32", sIT, 0), salu("s_cselect_b32", sE, sFB, sFG), salu("s_cselect_b32", sJ, "0x10000", 1))
    S.put(g + 1, valu("v_mov_b32", f"v{EPI}", sJ))
    S.put(g + 4, atomic_add(f"v{EPI}", sE))
    g = qk[12 - OPT['t23']][0]
    S.put(g + 1, scmp("s_cmp_eq_u32", sIT, 1), salu("s_cselect_b32", sE, sFB, "0x1000"))
    S.put(g + 3, poll_load(vPOLL[1], sE))
    g = qk[13 - OPT['t23']][0]
    S.put(g + 1, salu("s_lshl_b32", sWANT, sIT, 23), valu("v_readfirstlane_b32", sQ, vPOLL[1]))
    S.put(g + 4, scmp("s_cmp_lt_u32", sQ, sWANT), raw("s_cbranch_scc1 L_spin3", "branch", rd=["scc"]), label("L_spin3_back"))
    if last:
        g = bar[25] + 2
        S.put(g, poll_load(vPOLL[0], sFG))
        su = [salu("s_lshr_b32", "s84", "s4", 2), salu("s_mul_i32", "s7", "s3", O_GRP), salu("s_mul_i32", "s58", "s84", 786432),
              salu("s_add_u32", "s7", "s7", "s58"), [salu("s_add_u32", f"s{S2B}", "s90", "s7"), salu("s_addc_u32", "s59", "s91", 0)],
              salu("s_and_b32", f"s{S2B + 1}", "s59", "0xffff"), salu("s_mov_b32", f"s{S2B + 2}", 786432),
              salu("s_mul_i32", sBB, sWAVE, 16 * 12288), salu("s_mov_b64", f"s[{TB}:{TB + 1}]", "s[34:35]")] + next_off(sB2, TB, sBB, 12288)
        su += [salu("s_and_b32", "s58", sWAVE, 1), salu("s_mul_i32", "s58", "s58", 3 * 2048), salu("s_sub_u32", "s59", 3 * 2048, "s58"),
               salu("s_lshr_b32", "s85", sWAVE, 1), salu("s_lshl_b32", "s85", "s85", 12), salu("s_add_u32", "s58", "s58", "s85"),
               salu("s_add_u32", "s59", "s59", "s85"), salu("s_sub_u32", "s85", 2048, "s85")]
        g += 1
        for x in su:
            while any(i.kind == "salu" for i in S.fixed.get(g, [])):
                g += 1
            S.put(g, *(x if isinstance(x, list) else [x]))
            g += 1
        va = [valu("v_add_u32", V2B[0], "s58", vL16), valu("v_add_u32", V2B[3], "s59", vL16)]
        for q in (1, 2):
            va += [valu("v_add_u32", V2B[q], "s85", V2B[q - 1]), valu("v_add_u32", V2B[3 + q], "s85", V2B[2 + q])]
        S.stream([(x, g, pv[15][1] - 3) for x in va])
        g = pv[15][0] + 12
        S.put(g, valu("v_readfirstlane_b32", sQ, vPOLL[0]))
        S.put(g + 3, salu("s_and_b32", sQ, sQ, "0xff"), scmp("s_cmp_lt_u32", sQ, 8),
              raw("s_cbranch_scc1 L_spin1", "branch", rd=["scc"]), label("L_spin1_back"))
        for n, l in enumerate([l for qi in range(6) for l in k2_loads_B(0, qi)]):
            S.put(pv[15][1] + 1 + 2 * n if n < 8 else pv[15][2] + 3 + 3 * (n - 8), l)
    if OPT["codepf2"]:
        g = qk[OPT["codepf2"]][0] - 6
        S.put(g - 2, salu("s_mul_i32", sJ, sIT, "L_tail2-L_q2"))
        S.put(g - 1, salu("s_add_u32", sJ, sJ, "L_q2-L_pc"))
        S.put(g, salu("s_add_u32", sJ, sJ, sCP))
        S.put(g + 1, salu("s_min_u32", sJ, sJ, "L_endcode-L_pc-256"))
        S.put(g + 2, valu("v_and_b32", f"v{EPI + 2}", 16, vL16), valu("v_lshlrev_b32", f"v{EPI + 2}", 3, f"v{EPI + 2}"))
        S.put(g + 3, valu("v_add_u32", f"v{EPI + 2}", sJ, f"v{EPI + 2}"))
        S.put(g + 5, Ins(f"global_load_dword v{EPI + 3}, v{EPI + 2}, s[96:97]", "vld", rd=[f"v{EPI + 2}", "s96", "s97"], wr=[f"v{EPI + 3}"]))
    for T in (1, 2):
        if OPT["pk"]:
            nfree = OPT["nfree"] if T == 1 else 0
            S.stream([(x, -1, None) for p, qs, x in conv_items(T, range(nfree))] +
                     [(x, qk[0][T] - 1, qk[0][T] - 1) for p, qs, x in conv_items(T, range(nfree, 4), packed=range(4))])
        else:
            c = [(x, -1, None) for p, qs, x in conv_items(T, range(4))]
            c[-1] = (c[-1][0], -1, qk[0][T] - 1)
            S.stream(c)
    fin = []
    if OPT["one1"]:
        for T in range(3):
            fin += [(x, [pv[15][1] + 12, pv[15][2], pv[15][2] + 4][T], None) for x in interleave(lspread(2 * T, f"v{lacc(2 * T) + 1}"), lspread(2 * T + 1, f"v{lacc(2 * T + 1) + 1}"))]
    S.stream(fin + [(x, pv[15][2] + 4, None) for x in lcheck()])
    units = []
    for t in range(16):
        for qt in range(6):
            s = sreg(qt)
            T, qs = qt >> 1, qt & 1
            dl = pv[t][T] + qs - 2
            units.append(dict(e=qk[t][T] + 8 * qs + 7 + 2,
                              exps=[valu("v_exp_f32", f"v{s + r}", f"v{s + r}") for r in range(8)],
                              cvts=[(valu("v_cvt_pk_bf16_f32", f"v{s + r}", f"v{s + 2 * r}", f"v{s + 2 * r + 1}"), 2 * r + 2, dl) for r in range(4)]))
    S.packers.append(SoftmaxPacker(units))
    return S.finish(lead=[k_read(0, j) for j in range(8)], report=OPT["report"])


def slow_path():
    o = [label("L_slow"), drain(), nop(16)]
    KF = [EPI + 4 * k for k in range(4)]
    VFR = 56
    vM = [f"v{120 + q}" for q in range(6)]
    vKo, vVo, vt, vu = "v60", "v61", "v62", "v63"
    o += [valu("v_lshrrev_b32", vt, 4, vL16), valu("v_and_b32", vu, 15, vt), valu("v_lshrrev_b32", vt, 4, vt),
          valu("v_lshlrev_b32", vKo, 8, vu), valu("v_lshl_add_u32", vKo, vt, 4, vKo),
          valu("v_lshlrev_b32", vVo, 10, vt), valu("v_lshl_add_u32", vVo, vu, 1, vVo)]
    o += [salu("s_sub_u32", "s58", sKV, 262144)]
    o += [valu("v_mov_b32", m, "0xff800000") for m in vM]

    def scores():
        r = []
        for kt in range(2):
            r += [salu("s_add_u32", "s61", "s59", kt * 4096)]
            r += [vload(("v", KF[ks]), 4, vKo, S_K, "s61", 64 * ks) for ks in range(4)] + [drain()]
            for qt in range(6):
                s = ("v", sreg(qt) + 4 * kt)
                r += [mfma(16, s, ("v", KF[ks]), ("v", qf(qt, ks)), None if ks == 0 else s) for ks in range(4)]
            r += [nop(16)]
        return r
    o += [salu("s_mov_b32", "s59", "s58"), salu("s_mov_b32", "s60", 16), label("L_slow1")] + scores()
    for qt in range(6):
        o += [valu("v_max3_f32", vM[qt], vM[qt], f"v{sreg(qt) + r}", f"v{sreg(qt) + r + 1}") for r in range(0, 8, 2)]
    o += [salu("s_add_u32", "s59", "s59", 8192), salu("s_sub_u32", "s60", "s60", 1), scmp("s_cmp_lg_u32", "s60", 0),
          raw("s_cbranch_scc1 L_slow1", "branch", rd=["scc"])]
    for qt in range(6):
        for op in ("v_permlane32_swap_b32", "v_permlane16_swap_b32"):
            o += [valu("v_mov_b32", vt, vM[qt]), nop(2), perm(op, vt, vM[qt]), valu("v_max_f32", vM[qt], vM[qt], vt)]
        o += [valu("v_mov_b32", f"v{lacc(qt) + r}", 0) for r in range(4)]
    o += [valu("v_accvgpr_write_b32", f"a{r}", 0) for r in range(192)]
    o += [salu("s_mov_b32", "s59", "s58"), salu("s_mov_b32", "s60", 16), label("L_slow2")] + scores()
    for qt in range(6):
        s = sreg(qt)
        o += [valu("v_sub_f32", f"v{s + r}", f"v{s + r}", vM[qt]) for r in range(8)]
        o += [valu("v_exp_f32", f"v{s + r}", f"v{s + r}") for r in range(8)]
        o += [valu("v_cvt_pk_bf16_f32", f"v{s + r}", f"v{s + 2 * r}", f"v{s + 2 * r + 1}") for r in range(4)]
    o += [salu("s_add_u32", "s57", "s59", 4096)]
    for dt in range(8):
        for j in range(8):
            o += [vload(("v", 184 + j), 1, vVo, S_V, "s57" if j >= 4 else "s59", (j & 3) * 256 + 32 * dt, op="buffer_load_ushort")]
        o += [drain()]
        o += [valu("v_lshl_or_b32", f"v{VFR + r}", f"v{185 + 2 * r}", 16, f"v{184 + 2 * r}") for r in range(4)]
        o += [mfma(16, ("a", oacc(qt, dt)), ("v", VFR), ("v", sreg(qt)), ("a", oacc(qt, dt))) for qt in range(6)]
        o += [nop(8)]
    o += [mfma(16, ("v", lacc(qt)), ("v", ONES), ("v", sreg(qt)), ("v", lacc(qt))) for qt in range(6)] + [nop(16)]
    o += [salu("s_add_u32", "s59", "s59", 8192), salu("s_sub_u32", "s60", "s60", 1), scmp("s_cmp_lg_u32", "s60", 0),
          raw("s_cbranch_scc1 L_slow2", "branch", rd=["scc"])]
    o += [nop(16)]
    if OPT["one1"]:
        for qt in range(6):
            o += lspread(qt, vt)
    o += [drain(), scmp("s_cmp_eq_u32", sIT, 1), raw("s_cbranch_scc1 L_back2", "branch", rd=["scc"]), raw("s_branch L_back1", "branch")]
    return o


def srd(base, lo, hi, nbytes):
    return [salu("s_mov_b32", f"s{base}", lo), salu("s_and_b32", f"s{base + 1}", hi, "0xffff"),
            salu("s_mov_b32", f"s{base + 2}", nbytes), salu("s_mov_b32", f"s{base + 3}", "0x20000")]


def decode_wg():
    return [salu("s_and_b32", "s3", "s2", 7), salu("s_lshr_b32", "s4", "s2", 6), salu("s_lshl_b32", "s3", "s3", 2),
            salu("s_add_u32", "s3", "s3", "s4"), salu("s_lshr_b32", "s4", "s2", 3), salu("s_and_b32", "s4", "s4", 7),
            salu("s_lshr_b32", "s5", "s3", 4), salu("s_and_b32", "s6", "s3", 15)]


def code_touch():
    return [salu("s_lshr_b32", "s68", "s2", 3), salu("s_lshl_b32", "s68", "s68", 11),
            valu("v_lshrrev_b32", "v11", 6, "v0"), valu("v_and_b32", "v12", 3, "v0"), valu("v_lshlrev_b32", "v11", 9, "v11"),
            valu("v_lshl_add_u32", "v11", "v12", 7, "v11"), valu("v_add_u32", "v11", "s68", "v11"),
            Ins("global_load_dword v253, v11, s[96:97]", "vld", rd=["v11", "s96", "s97"], wr=["v253"])]


def kv_patterns():
    i, a, b, c = "v1", "v2", "v3", "v4"
    o = [valu("v_lshrrev_b32", a, 4, i), valu("v_and_b32", b, 15, i),
         valu("v_xor_b32", c, a, b), valu("v_lshlrev_b32", c, 4, c), valu("v_lshl_add_u32", vK[0], a, 8, c)]
    o += [valu("v_xor_b32", vK[m], m << 6, vK[0]) for m in range(1, 4)]
    o += [valu("v_lshlrev_b32", "v5", 1, a), valu("v_xor_b32", "v5", "v5", b), valu("v_lshlrev_b32", "v5", 4, "v5"),
          valu("v_lshl_add_u32", vV[0], a, 8, "v5"), valu("v_xor_b32", vV[1], 128, vV[0])]
    return o


def prologue():
    o = [scmp("s_cmp_ge_u32", "s2", 256), raw("s_cbranch_scc1 L_end", "branch", rd=["scc"])]
    o += [raw("s_getpc_b64 s[96:97]", wr=["s96", "s97"]), label("L_pc")]
    if OPT["dbgt"]:
        o += [raw("s_memrealtime s[72:73]", wr=["s72", "s73"])]
    if OPT["codepf"] == 2:
        o += code_touch()
    o += decode_wg()
    o += [salu("s_mul_i32", "s7", "s5", 40), salu("s_add_u32", "s68", "s0", "s7"), salu("s_addc_u32", "s69", "s1", 0),
          raw("s_load_dwordx8 s[56:63], s[68:69], 0", wr=regs("s", 56, 8)),
          raw("s_load_dwordx2 s[94:95], s[68:69], 32", wr=["s94", "s95"]),
          raw("s_load_dwordx4 s[88:91], s[0:1], 88", wr=regs("s", 88, 4)),
          raw("s_load_dwordx2 s[92:93], s[0:1], 80", wr=["s92", "s93"])]
    i, a, b, c = "v1", "v2", "v3", "v4"
    o += [valu("v_lshrrev_b32", a, 6, "v0"), valu("v_and_b32", i, 63, "v0"),
          valu("v_readfirstlane_b32", sWAVE, a), valu("v_lshlrev_b32", vL16, 4, i)]
    o += [valu("v_lshrrev_b32", a, 4, i), valu("v_and_b32", b, 7, i), valu("v_lshrrev_b32", "v5", 3, i),
          valu("v_and_b32", c, 1, a), valu("v_lshlrev_b32", c, 1, c), valu("v_xor_b32", c, c, b), valu("v_lshlrev_b32", c, 4, c),
          valu("v_lshl_add_u32", vW[0], "v5", 13, c),
          valu("v_xor_b32", vW[1], 64, vW[0]), valu("v_add_u32", vW[1], 64512, vW[1]),
          valu("v_add_u32", vW[2], 2 * 64512, vW[0]), valu("v_add_u32", vW[3], 2 * 64512, vW[1])]
    o += [valu("v_xor_b32", c, a, b), valu("v_lshlrev_b32", c, 4, c), valu("v_mul_u32_u24", "v6", 1280, "v5"),
          valu("v_add_u32", vX[0], "v6", c),
          valu("v_xor_b32", vX[1], 64, vX[0]), valu("v_add_u32", vX[1], 9216, vX[1]),
          valu("v_add_u32", vX[2], 2 * 9216, vX[0]), valu("v_add_u32", vX[3], 2 * 9216, vX[1])]
    o += [salu("s_lshr_b32", "s70", sWAVE, 1), salu("s_and_b32", "s71", sWAVE, 1),
          salu("s_lshl_b32", sW4K, sWAVE, 12), salu("s_mul_i32", sW6K, sWAVE, 6144),
          salu("s_lshl_b32", "s7", "s4", 2), salu("s_add_u32", "s7", "s7", "s70"),
          salu("s_lshl_b32", sWQ, "s71", 18), salu("s_lshl_b32", sT0, "s7", 8), salu("s_add_u32", sWQ, sWQ, sT0),
          salu("s_mul_i32", sX, "s6", 245760), salu("s_mul_i32", sT0, sWAVE, 61440), salu("s_add_u32", sX, sX, sT0)]
    o += [raw("s_waitcnt lgkmcnt(0)", "drainlg")]
    o += srd(S_X, "s56", "s57", 3932160) + srd(S_WQ, "s62", "s63", 5242880)
    o += set_pf_proj()
    for k in [("W", 0, 0), ("X", 0), ("W", 0, 1), ("W", 1, 0), ("X", 1), ("W", 1, 1)]:
        for pre, ds in unit_dmas(k):
            o += pre[::-1] + ds
    if OPT["warmw"]:
        o += [salu("s_mul_i32", "s68", "s6", 40 * 8192), salu("s_lshl_b32", "s69", "s4", 10), salu("s_add_u32", "s68", "s68", "s69"),
              salu("s_mul_i32", "s69", sWAVE, 10 * 8192), salu("s_add_u32", "s68", "s68", "s69"),
              valu("v_lshlrev_b32", b, 7, b), valu("v_lshl_add_u32", "v6", "v5", 13, b), valu("v_and_b32", c, 1, "v5"),
              valu("v_lshl_add_u32", c, c, 13, b), salu("s_add_u32", "s69", "s68", 8 * 8192)]
        o += [vload(("v", 254), 1, "v6", S_WQ, "s68", 0), vload(("v", 255), 1, c, S_WQ, "s69", 0)]
    o += [salu("s_lshr_b32", "s68", "s2", 3), salu("s_lshl_b32", "s68", "s68", 2), salu("s_add_u32", "s68", "s68", sWAVE), salu("s_lshl_b32", sCP, "s68", 8)]
    if OPT["codepf"] == 1:
        o += code_touch()
    o += srd(S_WO, "s94", "s95", 5242880)
    o += [salu("s_lshl_b32", "s68", "s6", 3), salu("s_add_u32", "s68", "s68", "s4"),
          salu("s_mul_i32", sWOS, "s68", 40960), salu("s_mul_i32", sT0, sWAVE, 10240), salu("s_add_u32", sWOS, sWOS, sT0)]
    for jj in range(OPT["jpro"]):
        for pre, ds in unit_dmas(("J", jj), sE):
            o += pre[::-1] + ds
    o += srd(S_K, "s58", "s59", 67108864) + srd(S_V, "s60", "s61", 67108864)
    o += srd(S_OST, "s90", "s91", WS_WOT) + srd(S_FLG, "s88", "s89", 256)
    o += [salu("s_add_u32", "s68", "s90", WS_WOT), salu("s_addc_u32", "s69", "s91", 0)] + srd(S_WOT, "s68", "s69", 2 * WOT_BLK)
    o += [salu("s_lshl_b32", sFG, "s3", 2), salu("s_lshl_b32", sFB, "s5", 6)]
    if OPT["dbgt"]:
        o += [salu("s_add_u32", sFG, sFG, 128), salu("s_add_u32", sFB, sFB, 128)]
    o += [
          valu("v_cmp_eq_u32", "vcc", 0, "v0"), valu("v_mov_b32", "v10", "0x1000"), valu("v_mov_b32", f"v{ONES}", "0x3f803f80"),
          valu("v_cndmask_b32", vFLG, "v10", 0, "vcc"),
          ]
    if OPT["one1"]:
        o += [valu("v_and_b32", "v10", 15, "v0"), valu("v_cmp_eq_u32", "vcc", 0, "v10"), valu("v_cndmask_b32", f"v{ONES}", 0, f"v{ONES}", "vcc")]
    o += [valu("v_mov_b32", f"v{ONES + r}", f"v{ONES}") for r in range(1, 4)]
    if OPT["prof"]:
        o += [salu("s_add_u32", "s68", "s90", WS_PROF), salu("s_addc_u32", "s69", "s91", 0)] + srd(S_PROF, "s68", "s69", 1 << 20)
        o += [salu("s_lshl_b32", sPROF, "s2", 2), salu("s_add_u32", sPROF, sPROF, sWAVE), salu("s_lshl_b32", sPROF, sPROF, 10)]
        o += prof_stamp(0, 8)
    o += [salu("s_lshl_b32", sKV, "s6", 5), salu("s_add_u32", sKV, sKV, "s7"), salu("s_lshl_b32", sKV, sKV, 17),
          salu("s_lshl_b32", sT0, "s71", 12),
          salu("s_lshr_b32", sROT, "s2", 3), salu("s_lshl_b32", sT1, "s2", 1), salu("s_add_u32", sROT, sROT, sT1),
          salu("s_and_b32", sROT, sROT, 0 if OPT["norot"] else 15), salu("s_lshl_b32", sROT, sROT, 13), salu("s_add_u32", sROT, sROT, sT0)]
    if OPT["tlbw"]:
        for n, (r, so) in enumerate(((S_K, sKV), (S_V, sKV), (S_WO, sWOS))):
            o += [Ins(f"buffer_load_dword v{244 + n}, off, s[{r}:{r + 3}], {so} nt", "vld", rd=[so] + regs("s", r, 4))]
    if OPT["kpro"]:
        o += kv_patterns()
        for k in [("K", 0), ("V", 0), ("K", 1)][:OPT["kpro"]]:
            for pre, ds in unit_dmas(k, sE):
                o += pre + [nop(1)] + ds
    o += [salu("s_mul_i32", sO, "s3", O_GRP), salu("s_mul_i32", sT0, "s71", 786432), salu("s_add_u32", sO, sO, sT0),
          salu("s_lshr_b32", sT0, "s4", 1), salu("s_mul_i32", sT0, sT0, 16 * 12288), salu("s_add_u32", sO, sO, sT0),
          salu("s_and_b32", sT0, "s4", 1), salu("s_mul_i32", sT0, sT0, 4 * 12288), salu("s_add_u32", sO, sO, sT0),
          salu("s_mul_i32", sT0, "s70", 2 * 12288), salu("s_add_u32", sO, sO, sT0)]
    o += [salu("s_lshl_b32", "s68", "s6", 3), salu("s_add_u32", "s68", "s68", "s4"),
          salu("s_lshr_b32", sT0, "s68", 1), salu("s_and_b32", sT1, sT0, "0x33"),
          salu("s_and_b32", "s69", sT0, 4), salu("s_lshl_b32", "s69", "s69", 1), salu("s_or_b32", sT1, sT1, "s69"),
          salu("s_and_b32", "s69", sT0, 8), salu("s_lshr_b32", "s69", "s69", 1), salu("s_or_b32", sT1, sT1, "s69"),
          salu("s_mul_i32", sWOD, sT1, 20480),
          salu("s_and_b32", sT0, "s68", 1), salu("s_lshl_b32", sT0, sT0, 11), salu("s_add_u32", sWOD, sWOD, sT0),
          salu("s_mul_i32", sT0, "s5", WOT_BLK), salu("s_add_u32", sWOD, sWOD, sT0),
          salu("s_lshl_b32", sT0, "s70", 12), salu("s_add_u32", sWOD, sWOD, sT0),
          salu("s_lshl_b32", sT0, "s71", 10), salu("s_add_u32", sWOD, sWOD, sT0),
          salu("s_mul_i32", sT0, "s70", 1310720 - 20480), salu("s_add_u32", sWOX, sWOD, sT0)]
    o += [salu("s_add_u32", "s68", "s3", "s4"), salu("s_and_b32", "s68", "s68", 3), salu("s_mov_b32", sQT, "0x%x" % TBLQ[0])]
    for r in range(1, 4):
        o += [scmp("s_cmp_eq_u32", "s68", r), salu("s_cselect_b32", sQT, "0x%x" % TBLQ[r], sQT)]
    cbits = struct.unpack("<I", struct.pack("<f", math.log2(math.e) / math.sqrt(128.0)))[0]
    o += [salu("s_mov_b32", sC, "0x%x" % cbits), salu("s_mov_b32", sHI, "0x4e800000"), salu("s_mov_b32", sLO, "0x30800000"),
          salu("s_mov_b32", sIT, 0)]
    if not OPT["kpro"]:
        o += kv_patterns()
    o += [salu("s_lshl_b32", "s69", "s70", 13), salu("s_mul_i32", "s68", "s71", 12288), salu("s_add_u32", "s68", "s68", XS[0]),
          valu("v_bfe_u32", "v8", i, 2, 2), valu("v_and_b32", "v9", 3, i)]
    o += [valu("v_lshl_add_u32", c, b, 8, c), valu("v_add_u32", c, KWANT[15], c), valu("v_add_u32", kA[0], "s69", c)]
    o += [valu("v_xor_b32", kA[j], j << 6, kA[0]) for j in range(1, 4)]
    o += [valu("v_lshl_add_u32", "v5", a, 2, "v8"), valu("v_lshlrev_b32", c, 8, "v5"), valu("v_and_b32", "v6", 7, "v5"),
          valu("v_lshl_add_u32", c, "v6", 5, c), valu("v_lshl_add_u32", c, "v9", 3, c),
          valu("v_add_u32", c, VWANT[0], c), valu("v_add_u32", vA[0], "s69", c)]
    o += [valu("v_xor_b32", vA[d], d << 5, vA[0]) for d in range(1, 8)]
    o += [valu("v_lshl_add_u32", c, a, 3, "v8"), valu("v_lshlrev_b32", c, 7, c),
          valu("v_and_b32", "v5", 2, "v8"), valu("v_and_b32", "v7", 1, a), valu("v_lshl_add_u32", "v5", "v7", 2, "v5"),
          valu("v_xor_b32", "v5", "v5", "v9"), valu("v_lshl_add_u32", c, "v5", 4, c), valu("v_add_u32", wA[0], "s69", c),
          valu("v_xor_b32", wA[1], 64, wA[0])]
    o += [valu("v_lshrrev_b32", "v5", 1, b), valu("v_xor_b32", "v5", "v5", a),
          valu("v_lshlrev_b32", "v5", 4, "v5"), valu("v_lshl_add_u32", c, b, 7, "v5"),
          valu("v_xor_b32", "v5", 64, c), valu("v_add_u32", xA[0], "s68", c), valu("v_add_u32", xA[1], "s68", "v5")]
    o += [salu("s_lshl_b32", "s68", "s70", 2), salu("s_lshl_b32", "s69", "s71", 3), salu("s_add_u32", "s69", "s69", WOJ_ADDR),
          valu("v_lshrrev_b32", c, 1, a), valu("v_lshlrev_b32", c, 12, c), valu("v_lshl_add_u32", c, "v6", 7, c),
          valu("v_add_u32", c, "s69", c), valu("v_add_u32", "v5", "s68", "v9"), valu("v_lshrrev_b32", "v6", 1, "v6"),
          valu("v_xor_b32", "v5", "v5", "v6"), valu("v_lshl_add_u32", vJ, "v5", 4, c)]
    o += [needvm([("W", 0, 0), ("X", 0)]), barrier()] + first_reads(0)
    return o


def acc2(pi, xy, qi):
    return ((pi * 6 + qi) * 2 + xy) * 4


def a2(st, pi, ks, xy):
    if st == 0:
        return (240 if pi == 0 else 48 + 16 * pi) + 8 * ks + 4 * xy
    return (48 if pi == 0 else 112 + 16 * pi) + 8 * ks + 4 * xy


def b2(st, qi, ks):
    return (192 if st == 0 else 0) + 8 * qi + 4 * ks


V2A = ["v%d" % i for i in range(240, 245)]


def k2_loads_A(st, pi, soff=None):
    return [vload(("a", a2(st, pi, ks, xy)), 4, V2A[pi], S2A, soff or sA2, ks * 2048 + xy * 1024, flags=SC1) for xy in range(2) for ks in range(2)]


def k2_loads_B(st, qi):
    return [vload(("a", b2(st, qi, ks)), 4, V2B[qi], S2B, sB2, ks * 1024, flags=SC1) for ks in range(2)]


def k2_lds_A(st, pi):
    out = []
    for xy in range(2):
        for ks in range(2):
            r = [r for r, (s_, p_, off) in PF2.items() if (s_, p_) == (st, pi) and (r not in ("s87", "s99") or off == 2048 * ks)][0]
            key = [k for k, rs in sPF.items() if r in rs][0]
            if key[0] == "W":
                out.append(ds_read("ds_read_b128", ("a", a2(st, pi, ks, xy)), 4, V2W, U[key]["addr"] + ks * 2048 + xy * 1024))
            elif key[0] == "P":
                out.append(ds_read("ds_read_b128", ("a", a2(st, pi, ks, xy)), 4, V2P, ks * 2048 + xy * 1024))
            elif r == sPF[key][0]:
                out.append(ds_read("ds_read_b128", ("a", a2(st, pi, ks, xy)), 4, V2X, U[key]["addr"] - XS[0] + ks * 2048 + xy * 1024))
            else:
                out.append(ds_read("ds_read_b128", ("a", a2(st, pi, ks, xy)), 4, V2X, U[key]["addr"] - XS[0] + 4096 + xy * 1024))
    return out


def k2_steps(S, first, loadA, loadB, pend, check=False, late=(), final=None):
    for st in range(2):
        q0 = S.n()
        tiles = [(pi, xy, qi) for pi in range(5) for xy in range(2) for qi in range(6)]
        if final is not None and st == 1:
            tiles = [t for t in tiles if t[2] >= 3] + [t for t in tiles if t[2] < 3]
            for n, x in enumerate(final[0]):
                S.put(q0 + 2 + n, x)
            for n, x in enumerate(final[1]):
                S.put(q0 + 61 + 2 * n, x)
        for pi, xy, qi in tiles:
            for ks in range(2):
                acc = ("v", acc2(pi, xy, qi))
                S.add(mfma(16, acc, ("a", a2(st, pi, ks, xy)), ("a", b2(st, qi, ks)),
                           None if (first and st == 0 and ks == 0) else acc))
        pos = [int(0.5 + 3.75 * n) for n in range(32)]
        if pend[st]:
            ls = k2_loads_A(1 - st, 4)
            S.put(q0 + pos[0], ls[2])
            S.put(q0 + pos[1], ls[3])
            for n, x in enumerate(next_off(sA2, TA, sAB, 20480)):
                S.put(q0 + pos[1] + 1 + n, x)
        if first and st == 0:
            for n, (pre, l) in enumerate(late):
                S.put(q0 + 6 * n + 2, *pre)
                S.put(q0 + 6 * n + 3, l)
            for n, r in enumerate(k2_lds_A(1, 0) + k2_lds_A(1, 1) + k2_lds_A(1, 2)):
                S.put(q0 + 6 * n + 5 if n < 8 else q0 + 54 + 4 * (n - 8), r)
            S.put(q0 + 70, valu("v_add_u32", V2P, D[9] - D[5], V2P))
            for n, r in enumerate(k2_lds_A(1, 3)):
                S.put(q0 + 73 + 4 * n, r)
        elif loadB[st]:
            for n, l in enumerate([l for qi in range(6) for l in k2_loads_B(1 - st, qi)]):
                S.put(q0 + pos[2 + n], l)
            for n, x in enumerate(next_off(sB2, TB, sBB, 12288)):
                S.put(q0 + pos[13] + 1 + n, x)
        if loadA[st]:
            n = 14
            for pi in range(5):
                ls = k2_loads_A(st, pi)
                for x, l in enumerate(ls if pi < 4 else ls[:2]):
                    assert pos[n] >= 24 * pi + 11 + 12 * (x >> 1), (pi, x, pos[n])
                    S.put(q0 + pos[n], l)
                    n += 1
        if first and st == 1:
            S.put(q0 + 110, needvm(["ost"]), barrier())
            S.put(q0 + 111, valu("v_mov_b32", V2P, "0x100"))
            S.put(q0 + 114, atomic_add(V2P, sFG))
        if check and st == 1:
            S.put(q0 + 1, scmp("s_cmp_eq_u32", sCNT, 5), salu("s_cselect_b32", sWANT, 8, 0), salu("s_cselect_b32", sPL, sFG, "0x1000"))
            S.put(q0 + 2, poll_load(V2P, sPL))
        if check and st == 0:
            S.put(q0 + 1, valu("v_readfirstlane_b32", sQ, V2P))
            S.put(q0 + 6, salu("s_bfe_u32", sQ, sQ, "0x80008"), scmp("s_cmp_lt_u32", sQ, sWANT),
                  raw("s_cbranch_scc1 L_spin2", "branch", rd=["scc"]), label("L_spin2_back"))


def k2_first(S, late):
    seq = [(0, p) for p in range(4)] + [(1, p) for p in range(3)] + [(0, 4), (1, 3), (1, 4)]
    at = {}
    for st, pi in seq:
        at[(st, pi)] = S.n()
        for xy in range(2):
            for qi in range(6):
                for ks in range(2):
                    acc = ("v", acc2(pi, xy, qi))
                    S.add(mfma(16, acc, ("a", a2(st, pi, ks, xy)), ("a", b2(st, qi, ks)), None if (st == 0 and ks == 0) else acc))
    for n, (pre, l) in enumerate(late):
        S.put(13 * n + 2, *pre)
        S.put(13 * n + 3, l)
    assert 13 * len(late) < at[(0, 4)]
    g = 5
    for pi in range(4):
        if pi == 3:
            S.put(g, valu("v_add_u32", V2P, D[9] - D[5], V2P))
            g += 2
        for r in k2_lds_A(1, pi):
            while S.fixed.get(g):
                g += 1
            S.put(g, r)
            g += 4
    items = []
    for pi in range(5):
        for x, l in enumerate(k2_loads_A(0, pi, sSO)):
            items.append((l, at[(0, pi)] + 11 + 12 * (x >> 1), 240 + 24 * pi + 12 * (x >> 1)))
        for x, l in enumerate(k2_loads_A(1, pi)[:4 if pi < 4 else 2]):
            items.append((l, at[(1, pi)] + 11 + 12 * (x >> 1), 360 + 24 * pi + 12 * (x >> 1)))
    for qi in range(6):
        for ks, l in enumerate(k2_loads_B(0, qi)):
            items.append((l, at[(0, 4)] + 12 + 2 * qi + ks, 200 + 2 * qi + ks))
    items.sort(key=lambda i: i[2])
    g, lastB = 11, 0
    while items:
        c = [i for i in items if i[1] <= g]
        if c and not any(S.fixed.get(k) and any(j.kind in ("vld", "vst") for j in S.fixed[k]) for k in ((g - 2, g - 1, g + 1) if g < 180 else (g - 1, g + 1))) and not S.fixed.get(g):
            S.put(g, c[0][0])
            if sB2 in c[0][0].rd:
                lastB = g
            items.remove(c[0])
        g += 1
        assert g < 240, items
    for n, x in enumerate(next_off(sB2, TB, sBB, 12288)):
        S.put(lastB + 1 + n, x)
    g = 226
    while S.fixed.get(g) or S.fixed.get(g + 1) or S.fixed.get(g + 3):
        g += 1
    S.put(g, needvm(["ost"]), barrier())
    S.put(g + 1, valu("v_mov_b32", V2P, "0x100"))
    S.put(g + 3, atomic_add(V2P, sFG))


def spin(name, back, dsts, soffs, conds):
    o = [label(name), salu("s_mov_b32", sSPIN, 0), label(name + "_loop"), raw("s_sleep 8")]
    o += [poll_load(d, so) for d, so in zip(dsts, soffs)]
    o += [drain(), salu("s_add_u32", sSPIN, sSPIN, 1), scmp("s_cmp_gt_u32", sSPIN, "0x20000"),
          raw(f"s_cbranch_scc1 {back}", "branch", rd=["scc"])]
    for d, (sh, msk, want) in zip(dsts, conds):
        o += [valu("v_readfirstlane_b32", sQ, d), nop(4)]
        if sh:
            o += [salu("s_lshr_b32", sQ, sQ, sh)]
        if msk:
            o += [salu("s_and_b32", sQ, sQ, msk)]
        o += [scmp("s_cmp_lt_u32", sQ, want), raw(f"s_cbranch_scc1 {name}_loop", "branch", rd=["scc"])]
    o += [raw(f"s_branch {back}", "branch")]
    return o


def phase2():
    o = [valu("v_mov_b32", V2L, vL16), salu("s_and_b32", "s85", "s4", 3), salu("s_and_b32", "s32", sWAVE, 1), salu("s_lshr_b32", "s33", sWAVE, 1),
         salu("s_mul_i32", sAB, sWAVE, 16 * 20480), salu("s_lshr_b64", f"s[{TA}:{TA + 1}]", "s[34:35]", 4)]
    o += next_off(sB2, TB, sBB, 12288)
    o += [valu("v_add_u32", V2W, sW4K, V2L), salu("s_add_u32", "s7", sW6K, XS[0]), valu("v_add_u32", V2X, "s7", V2L)]
    o += [scmp("s_cmp_eq_u32", "s33", 0)]
    o += [salu("s_cselect_b32", f"s{47 + q}", q, 2 - q) for q in range(3)]
    o += [salu("s_cselect_b32", f"s{36 + pi}", pi, 4 - pi) for pi in range(5)]
    o += [salu("s_mul_i32", "s34", "s32", 3)]
    o += [salu("s_add_u32", f"s{47 + q}", f"s{47 + q}", "s34") for q in range(3)]
    save = list(vR)
    vR[:] = [f"v{16 + q}" for q in range(6)]
    nl = 12 if OPT["pace"] else 8
    eg = epilogue_groups(0, lambda n: 240 - 4 * (24 - n) - (0 if OPT["pace"] else 16) if n >= 24 - nl else 32 + 4 * n, V2L)
    vR[:] = save
    b1 = [l for qi in range(6) for l in k2_loads_B(1, qi)]
    for n, (v, pre, st, imm) in enumerate(eg):
        m = b1[2 * (n - 8):2 * (n - 8) + 2] if 8 <= n < 14 else []
        o += v[:8] + m[:1] + v[8:16] + m[1:] + v[16:]
        if OPT["pace"]:
            if n % 2 == 0:
                o += eg[n // 2][1] + [eg[n // 2][2]]
        elif n < 16:
            o += pre + [st]
        if n == 15:
            o += [needvm(list(sPF))]
            for pi in range(5):
                o += [salu("s_lshl_b32", "s7", f"s{36 + pi}", 12), valu("v_add_u32", V2A[pi], "s7", V2L)]
            o += next_off(sPL, TA, sAB, 20480)
            if OPT["pace"]:
                o += next_off(sSO, TA, sAB, 20480)
            o += next_off(sA2, TA, sAB, 20480)
        if 16 <= n < 21:
            o += k2_lds_A(0, n - 16)
    late = []
    for n, g in enumerate(eg[24 - nl:]):
        st = vstore(("v", 240 - 4 * (nl - n) - (0 if OPT["pace"] else 16)), 4, V2L, S_OST, sE, g[3], tag="ost", flags=SC1)
        late.append((g[1], st))
    o += k2_loads_A(1, 4, sPL) + [valu("v_add_u32", V2P, D[5], V2W)]
    o += next_off(sB2, TB, sBB, 12288) + [salu("s_mov_b32", sWANT, 0)]
    o += prof_stamp(1, 30)
    o += srd(S2OUT, "s92", "s93", 7864320)
    o += [salu("s_mul_i32", sOB, "s6", 192 * 2560), salu("s_mul_i32", "s7", "s84", 96 * 2560), salu("s_add_u32", sOB, sOB, "s7"),
          salu("s_mul_i32", "s7", "s5", 1280), salu("s_add_u32", sOB, sOB, "s7"),
          salu("s_mul_i32", "s7", "s85", 320), salu("s_add_u32", sOB, sOB, "s7"), salu("s_mov_b32", sCNT, 6)]
    S0 = Sched()
    if OPT["pace"]:
        k2_first(S0, late)
    else:
        k2_steps(S0, True, [True, True], [True, True], [False, True], late=late)
    S0.order_fixed()
    first = S0.build()
    S1 = Sched()
    k2_steps(S1, False, [True, True], [True, True], [True, True], check=True)
    if OPT["prof"]:
        S1.put(3, raw("s_memrealtime s[76:77]", wr=["s76", "s77"]), raw("s_waitcnt lgkmcnt(0)", "drainlg"),
               salu("s_mov_b32", "s101", "s100"), salu("s_mov_b32", "s100", "s99"), salu("s_mov_b32", "s99", "s98"),
               salu("s_mov_b32", "s98", "s97"), salu("s_mov_b32", "s97", "s96"), salu("s_mov_b32", "s96", "s76"))
    S1.put(237, salu("s_sub_u32", sCNT, sCNT, 1))
    S1.order_fixed()
    loop = [label("L_k2")] + S1.build() + [scmp("s_cmp_lg_u32", sCNT, 0), raw("s_cbranch_scc1 L_k2", "branch", rd=["scc"])]
    R1, R2, i, a, V2O = V2A[0], V2A[1], V2A[2], V2A[3], V2A[4]
    setup = [salu("s_mul_i32", "s7", sWAVE, 30720), valu("v_add_u32", V2W, "s7", V2L), valu("v_lshrrev_b32", i, 4, V2L),
             valu("v_and_b32", a, 15, i), valu("v_mul_u32_u24", a, 2560, a), valu("v_lshrrev_b32", i, 4, i),
             valu("v_lshl_add_u32", V2O, i, 4, a),
             salu("s_xor_b32", sPL, sWAVE, 1), salu("s_sub_u32", sPL, sPL, sWAVE), salu("s_mul_i32", "s7", sPL, 30720),
             valu("v_add_u32", R1, "s7", V2W),
             salu("s_xor_b32", sPL, sWAVE, 3), salu("s_sub_u32", sPL, sPL, sWAVE), salu("s_mul_i32", "s7", sPL, 30720),
             valu("v_add_u32", R2, "s7", V2W)]
    sent = [(pi, xy, qi) for pi in range(5) for qi in range(3, 6) for xy in range(2)]
    wr = {t: ds_write("ds_write_b128", V2W, ("v", acc2(*t)), 4, n * 1024) for n, t in enumerate(sent)}
    S2 = Sched()
    e = []
    if OPT["redov"]:
        order = [wr[(pi, xy, qi)] for pi in range(5) for xy in range(2) for qi in range(3, 6)]
        k2_steps(S2, False, [False, False], [True, False], [True, False], final=(setup, order[:29]))
        e = order[29:]
    else:
        k2_steps(S2, False, [False, False], [True, False], [True, False])
        e = setup + list(wr.values())
    S2.order_fixed()
    last = S2.build()
    e += [needlgkm0(), barrier()] + prof_stamp(8, 234)
    for s in list(range(7, 15)) + list(range(7)):
        pi, q = divmod(s, 3)
        e += [ds_read("ds_read_b128", ("v", acc2(pi, xy, q + 3)), 4, R1, (2 * s + xy) * 1024) for xy in range(2)]
    for s in list(range(7, 15)) + list(range(7)):
        pi, q = divmod(s, 3)
        d, t = acc2(pi, 0, q), acc2(pi, 0, q + 3)
        e += [valu("v_add_f32", f"v{d + r}", f"v{d + r}", f"v{t + r}") for r in range(8)]
        if s >= 7:
            e += [ds_write("ds_write_b128", R1, ("v", acc2(pi, xy, q)), 4, (2 * s + xy) * 1024) for xy in range(2)]
    e += [needlgkm0(), barrier()]
    for s in range(8):
        pi, q = divmod(s, 3)
        for xy in range(2):
            e += [ds_read("ds_read_b128", ("v", acc2(pi, xy, q + 3)), 4, R2, (2 * (14 - s) + xy) * 1024)]
    for s in range(8):
        pi, q = divmod(s, 3)
        d0, t0 = acc2(pi, 0, q), acc2(pi, 0, q + 3)
        e += [valu("v_add_f32", f"v{d0 + r}", f"v{d0 + r}", f"v{t0 + r}") for r in range(8)]
        e += [valu("v_cvt_pk_bf16_f32", f"v{d0 + r}", f"v{d0 + 2 * r}", f"v{d0 + 2 * r + 1}") for r in range(4)]
        e += [salu("s_mul_i32", "s7", f"s{47 + q}", 40960), salu("s_lshl_b32", sPL, f"s{36 + pi}", 6),
              salu("s_add_u32", "s7", "s7", sPL), salu("s_add_u32", sSO, "s7", sOB),
              vstore(("v", d0), 4, V2O, S2OUT, sSO, 0, flags=OPT["outf"])]
    e += prof_stamp(9, 234)
    if OPT["prof"]:
        for n in range(6):
            e += [valu("v_mov_b32", "v234", 1), valu("v_mov_b32", "v235", f"s{101 - n}"), pstore(234, 2 + n), nop(4)]
    if OPT["dbgt"]:
        a, b = {1: ("s76", "s78"), 2: ("s74", "s76")}[OPT["dbgt"]]
        e += [drain(), raw("s_memrealtime s[78:79]", wr=["s78", "s79"]), raw("s_waitcnt lgkmcnt(0)", "drainlg"),
              salu("s_sub_u32", a, a, "s72"), salu("s_sub_u32", b, b, "s72"),
              scmp("s_cmp_lt_u32", "s2", 8), salu("s_cselect_b32", "s7", "s2", "0x1000"), salu("s_lshl_b32", "s7", "s7", 2),
              valu("v_mov_b32", "v0", a), valu("v_mov_b32", "v1", b),
              Ins(f"buffer_store_dword v0, {vFLG}, s[{S_FLG}:{S_FLG + 3}], s7 offen", "vst", rd=["v0", vFLG, "s7"]),
              Ins(f"buffer_store_dword v1, {vFLG}, s[{S_FLG}:{S_FLG + 3}], s7 offen offset:32", "vst", rd=["v1", vFLG, "s7"])]
    e += [label("L_end"), raw("s_endpgm")]
    sp1 = spin("L_spin1", "L_spin1_back", vPOLL[:1], [sFG], [(0, "0xff", 8)]) + spin("L_spin3", "L_spin3_back", vPOLL[1:], [sFB], [(16, 0, 128)])
    sp2 = spin("L_spin2", "L_spin2_back", [V2P], [sFG], [(8, "0xff", 8)])
    return o, first, loop, last, e, sp1, sp2


def kernel():
    pro = prologue()
    q1 = q_phase(False)
    full = []
    for last in (False, True):
        _alt[0] = 0
        full.append(a_phase(last))
    cut = [[n for n, x in enumerate(f) if x.text == "L_CUT:"][0] for f in full]
    assert [x.text for x in full[0][:cut[0]]] == [x.text for x in full[1][:cut[1]]]
    att = [label("L_att")] + full[0][:cut[0]]
    tails = []
    for v in range(2):
        t = ([label("L_tail2")] if v else []) + full[v][cut[v] + 1:]
        t += [raw("s_cbranch_vccnz L_slow", "branch", rd=["vcc"]), label(f"L_back{v + 1}")]
        t += [valu("v_rcp_f32", f"v{16 + qt}" if v else vR[qt], f"v{lacc(qt)}") for qt in range(6)]
        if OPT["dbgt"]:
            t += [raw(f"s_memrealtime s[{74 + 2 * v}:{75 + 2 * v}]", wr=[f"s{74 + 2 * v}", f"s{75 + 2 * v}"]), raw("s_waitcnt lgkmcnt(0)", "drainlg")]
        t += prof_stamp(29)
        if OPT["prof"]:
            t += [salu("s_add_u32", sPROF, sPROF, 240)]
        tails.append(t)
    q2 = [salu("s_mov_b32", sIT, 1), label("L_q2")] + q_phase(True) + [raw("s_branch L_att", "branch")]
    o, first, loop2, last, e, sp1, sp2 = phase2()
    slow = slow_path()
    parts = [pro, q1, att, tails[0], q2, tails[1], o, first, loop2, last, e, slow, sp1, sp2]
    waits = compute_waits([pro + q1 + att + tails[0] + q2 + att + tails[1] + o + first + loop2 + loop2 + loop2 + last + e, slow, sp1, sp2])
    done = {}
    P = [apply_waits(x, waits, done) for x in parts]
    pads = pad_hazards([P[0] + P[1] + P[2] + P[3] + P[4] + P[2] + P[5] + P[6] + P[7] + P[8] + P[8] + P[9] + P[10], P[11], P[12], P[13]])
    al = ".p2align 3\n"
    return (emit(P[0] + P[1], pads) + al + emit(P[2] + P[3] + P[4], pads) + al + emit(P[5] + P[6] + P[7], pads) + al +
            emit(P[8] + P[9] + P[10] + P[11] + P[12] + P[13], pads) + "L_endcode:\n")


def main():
    kn = NAME + "_kernel"
    s = open("cdna_kernels/" + NAME + ".s.ref").read().split("; Override launch")[0]
    s += "; @launch grid=(256,1,1) block=(256,1,1) lds=163840\n"
    s += '.amdgcn_target "amdgcn-amd-amdhsa--gfx950"\n.text\n'
    s += f".globl {kn}\n.p2align 8\n.type {kn},@function\n{kn}:\n" + kernel()
    s += f""".section .rodata,"a"
.p2align 6
.amdhsa_kernel {kn}
  .amdhsa_next_free_vgpr 512
  .amdhsa_next_free_sgpr 102
  .amdhsa_accum_offset 256
  .amdhsa_group_segment_fixed_size 0
  .amdhsa_kernarg_size 104
  .amdhsa_user_sgpr_count 2
  .amdhsa_user_sgpr_kernarg_segment_ptr 1
  .amdhsa_system_sgpr_workgroup_id_x 1
.end_amdhsa_kernel
"""
    open(sys.argv[1], "w").write(s)


main()
```

```python
import random
def plan(step, first_u=7, start=2, seed=3, tries=60000, pos=None, head=(9, 5, 4, 6, 0, 7, 1, 8), lastN=None):
    pos = pos or (lambda k: start + step * k)
    bar = {9: -1, 10: 15}
    for n in range(11, 26): bar[n] = 115 + (n - 11) * 102
    iss = {}
    for u in range(first_u, 32):
        g = pos(4 * (u - first_u)) - 4
        iss[u] = max(n for n in bar if bar[n] < max(g, 0))
    random.seed(seed)
    lastN = lastN or {0: 23, 1: 23, 2: 24, 3: 24, 4: 26, 5: 25, 6: 23, 7: 23, 8: 24, 9: 25}
    best = None
    head = list(head)[:first_u]
    for _ in range(tries):
        rel = {p: 9 for p in range(10)}
        for u, p in enumerate(head): rel[p] = 10 + u // 2 + u % 2
        pages = list(head); ok = True
        for u in range(first_u, 32):
            N = 10 + u // 2 + u % 2
            c = [p for p in range(10) if rel[p] <= iss[u] and N <= lastN[p]]
            if not c: ok = False; break
            p = random.choice(c); pages.append(p); rel[p] = N
        if not ok: continue
        def moves(seq):
            m = 0; lo = hi = seq[0]
            for p in seq[1:] + seq[:1]:
                nlo, nhi = min(lo, p), max(hi, p)
                if nhi - nlo <= 3: lo, hi = nlo, nhi
                else: m += 1; lo = hi = p
            return m
        sc = 4 * moves(pages[0::2]) + 8 * moves(pages[1::2])
        if best is None or sc < best[0]: best = (sc, pages)
    leads = [(bar[9 + u // 2 + u % 2] - pos(4 * (u - first_u) + 3)) / 102 for u in range(first_u, 32)]
    return best, iss, leads
if __name__ == "__main__":
    for fu, st in ((7, 13.0), (7, 13.7), (7, 14.3), (8, 14.0), (8, 14.8)):
        b, iss, l = plan(st, fu)
        print(fu, st, b, [round(x, 1) for x in l])
```

```python
import sys, math, struct
from fw3 import *
from orders import orders
import alloc3

NAME = "concat_heads__mha_block_cached__mha_block_cached__near_ridge"
OPT = dict(outf=' sc1', redov=1, one1=1, warmj=0, pk=1, pfq1=1, rot2=2, gate=0, pace=1, lead=3, xpace=0, kvf=' nt', norot=0, tlbw=0, kpro=0, kplan=0, jlate=1, dbgt=0, jpro=0, k1s=0, e10=1, t23=0, nfree=1, kstep10=125, ks1=145, kn1=32, kfirst=6, k2late=0, gstep=2, rotq=3, early=1, uni=0, prof=0, report=False, stg=67, warmw=True, codepf=2, codepf2=14, pf='', pf0=1, pfn=3, pff='', flagbar=12, map=0)
for a in sys.argv[2:]:
    k, v = a.split("=")
    OPT[k] = type(OPT[k])(int(v)) if not isinstance(OPT[k], str) else v

KB = 1024
SC1 = " sc1"
O_GRP = 2 * 786432
WS_WOT = 50331648
WOT_BLK = 5242880
WS_PROF = 64 * 1024 * 1024

S_K, S_V, S_X, S_WQ, S_OST, S_WO, S_WOT = 8, 12, 16, 20, 24, 28, 32
sKV, sWQ, sX, sW4K, sW6K, sO, sIT, sT0, sT1, sC, sWAVE = ["s%d" % i for i in range(36, 47)]
sWOS, sWOD, sWOX, sW5K, sHI, sLO = ["s%d" % i for i in range(47, 53)]
sPROF, sE, sJ = "s53", "s54", "s55"
sQT, sWS, sXS, sW1 = "s50", "s67", "s95", "s63"
sROT, sFG, sFB, sCP = "s62", "s65", "s66", "s64"
sA2, sB2, sPL, sOB, sCNT, sSO, sQ, sSH, sWANT, sSPIN = "s28", "s29", "s30", "s31", "s67", "s68", "s69", "s70", "s71", "s94"
S_PROF, S_FLG = 72, 80
sPF = {("W", 0, 0): ["s84"], ("W", 0, 1): ["s85"], ("X", 0): ["s86", "s87"], ("X", 1): ["s98", "s99"], ("W", 1, 0): ["s100"], ("W", 1, 1): ["s101"],
       ("P", 0): ["s60"], ("P", 1): ["s61"]}
PF2 = {"s84": (0, 0, 0), "s85": (0, 1, 0), "s86": (0, 2, 0), "s98": (0, 3, 0), "s100": (0, 4, 0), "s101": (1, 0, 0),
       "s87": (1, 1, 0), "s99": (1, 1, 2048), "s60": (1, 2, 0), "s61": (1, 3, 0)}
vK = ["v%d" % i for i in range(192, 196)]
vV = ["v196", "v197"]
vW = ["v%d" % i for i in range(198, 202)]
vX = ["v%d" % i for i in range(202, 206)]
kA = ["v%d" % i for i in range(206, 210)]
vA = ["v%d" % i for i in range(210, 218)]
wA = ["v218", "v219"]
xA = ["v220", "v221"]
vJ, vL16 = "v222", "v223"
ONES = 224
EPI = 228
vR = ["v%d" % i for i in range(244, 250)]
vFLG = "v250"
vT = ["v252", "v253"]
vC2 = "v[242:243]"
vPOLL = ["v254", "v255"]

V2B = ["v245", "v246", "v247", "v248", "v249", "v251"]
V2L, V2W, V2P, V2X = "v252", "v254", "v255", "v253"
S2A, S2B, S2OUT = S_WQ, S_X, 8
TA, TB, sAB, sBB = 56, 62, "s43", "s44"

D = [i * 16 * KB for i in range(10)]
XS = [96 * KB, 120 * KB]
WOJ_ADDR = D[4]


def qacc(p, xy, qt):
    return 64 * (qt >> 1) + (2 * p + (qt & 1)) * 8 + 4 * xy


def qf(qt, p):
    return 64 * (qt >> 1) + (2 * p + (qt & 1)) * 4


def sreg(qt):
    return 64 * (qt >> 1) + 32 + 8 * (qt & 1)


def lacc(qt):
    return 64 * (qt >> 1) + 48 + 4 * (qt & 1)


ABUF = [192, 248]


def bx(qt, ks):
    return 200 + 8 * qt + 4 * ks


def kf(kt, ks):
    return 192 + 16 * kt + 4 * ks


def vf(dt):
    return 224 + 4 * dt


def oacc(qt, dt):
    return 32 * qt + 4 * dt


def kpos(k):
    n1 = OPT["kn1"]
    return 2 + OPT["ks1"] / 10.0 * min(k, n1) + OPT["kstep10"] / 10.0 * max(k - n1, 0)


def build_units():
    U = {}
    for i in range(10):
        U[("X", i)] = dict(addr=XS[i % 2], size=24 * KB, iss=i - 2.5, land=i - 1, rel=i - 0.5)
        U[("W", i, 0)] = dict(addr=D[2 * (i % 2)], size=16 * KB, iss=i - 2.5, land=i - 1, rel=i - 0.5)
        U[("W", i, 1)] = dict(addr=D[2 * (i % 2) + 1], size=16 * KB, iss=i - 2, land=i - 0.5, rel=i)
    for k, e in ((("X", 0), -4), (("W", 0, 0), -4), (("W", 0, 1), -4), (("X", 1), -3), (("W", 1, 0), -3), (("W", 1, 1), -3)):
        U[k]["iss"] = e
    pages = [9, 5, 4, 6, 0, 7, 1, 8, 2, 3, 9, 4, 5, 6, 0, 1, 7, 2, 8, 3, 9, 4, 5, 6, 0, 7, 1, 8, 2, 9, 5, 4]
    if OPT["kstep10"]:
        (_, pages), kiss, leads = alloc3.plan(0, OPT["kfirst"], pos=kpos, head=[9, 5, 4, 6, 1 if OPT["k2late"] else 0, 7, 1, 8])
        if OPT["report"]:
            print("; leads", [round(x, 1) for x in leads])
    for u in range(32):
        key = ("K", u // 2) if u % 2 == 0 else ("V", u // 2)
        N = 10 + u // 2 + u % 2
        U[key] = dict(addr=D[pages[u]], size=16 * KB, iss=N - 5 + (u == 30), land=N - 1, rel=N)
        if OPT["kstep10"] and u >= OPT["kfirst"]:
            U[key].update(iss=kiss[u], even=u - OPT["kfirst"])
    U[("V", 1)]["iss"] = U[("K", 2)]["iss"] = 7.5
    if "even" not in U[("V", 2)]:
        U[("V", 2)]["iss"] = 8.5
    if OPT["k2late"]:
        U[("K", 2)]["iss"] = 8
    if OPT["kstep10"]:
        if OPT["kfirst"] == 8:
            U[("V", 3)]["iss"] = 8.5
        return U
    if OPT["e10"] < 2:
        U[("K", 4)]["iss"] = 10
    if OPT["e10"] < 1:
        U[("V", 3)]["iss"] = 10
    if OPT["t23"]:
        U[("W", 0, 0)]["iss"] = U[("W", 1, 1)]["iss"] = -5
    return U


def check_units(second):
    V = {k: dict(u) for k, u in U.items()}
    if second:
        V[("K", 0)]["iss"] = V[("V", 0)]["iss"] = -2
        V[("K", 1)]["iss"] = -1
    else:
        V[("J",)] = dict(addr=D[4], size=32 * KB, iss=-1, land=2, rel=3)
        V[("J", 2)] = dict(addr=D[9], size=16 * KB, iss=0, land=2, rel=3)
        V[("K", 0)]["iss"], V[("V", 0)]["iss"], V[("K", 1)]["iss"] = 3, 4, 5
    allu = [(k, u["addr"], u["addr"] + u["size"], u["iss"], u["rel"]) for k, u in V.items()]
    assert all(u["iss"] < u["land"] <= u["rel"] for u in V.values())
    if second:
        allu += [(k, u["addr"], u["addr"] + u["size"], u["iss"] - 27, u["rel"] - 27) for k, u in U.items() if k[0] in "KV" and k[1] > 2]
        allu += [(("P", n), D[p], D[p] + 16 * KB, 25, 27) for n, p in enumerate((5, 9))]
        allu += [(k, u["addr"], u["addr"] + u["size"], u["iss"] + 27, 40) for k, u in U.items() if u["iss"] is not None and u["iss"] < -2.6]
    for a in allu:
        for b in allu:
            if a is not b and a[1] < b[2] and b[1] < a[2]:
                assert a[4] <= b[3] or b[4] <= a[3], (a, b)


U = build_units()
U[("K", 0)]["iss"] = U[("V", 0)]["iss"] = U[("K", 1)]["iss"] = None
PADDR = {("P", 0): D[5], ("P", 1): D[9]}
_alt = [0]


def next_st():
    _alt[0] ^= 1
    return [sT0, sT1][_alt[0]]


def unit_dmas(key, tmp=None):
    kind = key[0]
    if kind == "P":
        return [([salu("s_add_u32", "m0", sW4K, PADDR[key])], [dma(vW[m], S_WQ, sPF[key][0], 1024 * m, key, SC1) for m in range(4)])]
    if kind == "J":
        jj = key[1]
        sT = tmp
        pre = [salu("s_add_u32", sT, sWOS, jj * 128), salu("s_add_u32", "m0", sW4K, D[(4, 5, 9)[jj >> 2]] + (jj & 3) * 1024)]
        return [(pre, [dma(vX[0], S_WO, sT, 0, "J", " nt")])]
    u = U[key]
    if key in sPF:
        if kind == "W":
            return [([salu("s_add_u32", "m0", sW4K, u["addr"])], [dma(vW[m], S_WQ, sPF[key][0], 1024 * m, key, SC1) for m in range(4)])]
        return [([salu("s_add_u32", "m0", sW6K, u["addr"])], [dma(vX[m], S_X, sPF[key][0], 1024 * m, key, SC1) for m in range(4)]),
                ([salu("s_add_u32", "m0", sW6K, u["addr"] + 4096)], [dma(vX[m], S_X, sPF[key][1], 1024 * m, key, SC1) for m in range(2)])]
    sT = tmp or next_st()
    if kind in "KV":
        pre = [salu("s_add_u32", sT, sROT, key[1] * 8192), salu("s_and_b32", sT, sT, "0x1ffff"), salu("s_add_u32", sT, sT, sKV),
               salu("s_add_u32", "m0", sW4K, u["addr"])]
        if kind == "K":
            return [(pre, [dma(vK[m], S_K, sT, 1024 * m, key, OPT["kvf"]) for m in range(4)])]
        return [(pre, [dma(vV[m & 1], S_V, sT, 1024 * m, key, OPT["kvf"]) for m in range(4)])]
    if kind == "W":
        return [([salu("s_add_u32", "m0", sW4K, u["addr"])], [dma(vW[m], S_WQ, sW1 if key[2] else sWS, 1024 * m, key) for m in range(4)])]
    g0 = ([salu("s_add_u32", "m0", sW6K, u["addr"])], [dma(vX[m], S_X, sXS, 1024 * m, key) for m in range(4)])
    pre2 = [salu("s_add_u32", sT, sXS, 40960), salu("s_add_u32", "m0", sW6K, u["addr"] + 4096)]
    return [g0, (pre2, [dma(vX[m], S_X, sT, 1024 * m, key) for m in range(2)])]


def set_pf_proj(tail=False):
    o = []
    for key, rs in sPF.items():
        if key[0] == "P":
            continue
        if key[0] == "W":
            o += [salu("s_add_u32", rs[0], sWQ, key[1] * 524288 + key[2] * 128)]
        else:
            o += [salu("s_add_u32", rs[0], sX, key[1] * 128), salu("s_add_u32", rs[1], sX, key[1] * 128 + 40960)]
    return o


ORD2 = orders(16, 4, 8, 7, {1: [4], 2: [1, 1, 2, 2, 2, 0, 0], 3: [1, 2, 2, 2, 1, 0, 0], 4: [2, 1, 2, 2, 1, 0, 0]}[OPT["rot2"]])[0] if OPT["rot2"] else [list(range(16))] * 4
ORDQ = orders(10, 4, None, 0, {1: [1, 1, 2, 2, 2, 1, 1], 2: [1, 1, 4], 3: [1, 1, 2, 2, 1, 1, 1, 1]}[OPT["rotq"]])[0] if OPT["rotq"] else [list(range(10))] * 4
assert all(o[:2] == [0, 1] for o in ORDQ)
TBLQ = [sum(x << (4 * n) for n, x in enumerate(o[2:])) for o in ORDQ]
TBL2 = [sum(x << (4 * n) for n, x in enumerate(o)) for o in ORD2]


def next_off(dst, tbl, base, stride):
    return [salu("s_and_b32", dst, f"s{tbl}", 15), salu("s_lshr_b64", f"s[{tbl}:{tbl + 1}]", f"s[{tbl}:{tbl + 1}]", 4),
            salu("s_mul_i32", dst, dst, stride), salu("s_add_u32", dst, dst, base)]


def set_pf_out():
    o = [salu("s_and_b32", "s68", "s4", 3), salu("s_mul_i32", "s68", "s68", 1310720), salu("s_mul_i32", "s69", "s5", WOT_BLK),
         salu("s_add_u32", "s68", "s68", "s69"), salu("s_add_u32", "s68", "s68", WS_WOT)]
    o += [[salu("s_add_u32", f"s{S_WQ}", "s90", "s68"), salu("s_addc_u32", "s69", "s91", 0)]]
    o += [salu("s_and_b32", f"s{S_WQ + 1}", "s69", "0xffff"), salu("s_mov_b32", f"s{S_WQ + 2}", 1310720),
          salu("s_mov_b32", f"s{S_X}", f"s{S_WQ}"), salu("s_mov_b32", f"s{S_X + 1}", f"s{S_WQ + 1}"), salu("s_mov_b32", f"s{S_X + 2}", 1310720)]
    o += [salu("s_lshr_b32", "s70", sWAVE, 1), salu("s_mul_i32", "s68", sWAVE, 16 * 20480), salu("s_lshl_b32", "s69", "s70", 14),
          salu("s_add_u32", "s68", "s68", "s69"), salu("s_lshl_b32", "s69", "s70", 13), salu("s_sub_u32", "s69", 4096, "s69")]
    o += [salu("s_add_u32", "s70", "s3", "s4"), salu("s_and_b32", "s70", "s70", 3),
          salu("s_mov_b32", "s34", "0x%x" % (TBL2[0] & 0xffffffff)), salu("s_mov_b32", "s35", "0x%x" % (TBL2[0] >> 32))]
    for r in range(1, 4):
        o += [[scmp("s_cmp_eq_u32", "s70", r), salu("s_cselect_b32", "s34", "0x%x" % (TBL2[r] & 0xffffffff), "s34"),
               salu("s_cselect_b32", "s35", "0x%x" % (TBL2[r] >> 32), "s35")]]
    o += [salu("s_and_b32", "s70", "s34", 15), salu("s_mul_i32", "s70", "s70", 20480), salu("s_add_u32", "s70", "s70", "s68"),
          salu("s_bfe_u32", "s71", "s34", "0x40004"), salu("s_mul_i32", "s71", "s71", 20480), salu("s_add_u32", "s71", "s71", "s68")]
    for r, (st, pi, off) in PF2.items():
        o += [salu("s_mul_i32", r, "s69", pi), salu("s_add_u32", r, r, "s71" if st else "s70")]
        if off:
            o += [salu("s_add_u32", r, r, off)]
    return o


def groups_at(iss):
    order = {"W": 0, "X": 1, "K": 2, "V": 2}
    keys = sorted([k for k, u in U.items() if u["iss"] is not None and u["iss"] % 27 == iss % 27 and "even" not in u],
                  key=lambda k: (U[k]["land"] - U[k]["iss"], order[k[0]], k))
    return [g for k in keys for g in unit_dmas(k)]


def place_dmas(S, groups, cand, lo):
    ci = 0
    for pre, ds in groups:
        g = cand[ci]
        for n, p in enumerate(pre):
            S.put(max(lo, g - len(pre) + n), p)
        for d in ds:
            S.put(cand[ci], d)
            ci += 1


def tags_for(n):
    t = [k for k, u in U.items() if (u["land"] - n) % 27 == 0]
    if n == OPT["flagbar"]:
        t += ["ost", "jst"]
    if n == 2:
        t += ["J"]
    return t


def atomic_add(vdata, soff):
    return Ins(f"buffer_atomic_add {vdata}, {vFLG}, s[{S_FLG}:{S_FLG + 3}], {soff} offen sc1", "atomic",
               rd=[vdata, vFLG, soff] + regs("s", S_FLG, 4), tag="flag")


def poll_load(vdst, soff):
    return Ins(f"buffer_load_dword {vdst}, off, s[{S_FLG}:{S_FLG + 3}], {soff} sc1", "vld", rd=[soff] + regs("s", S_FLG, 4), wr=[vdst])


class Win:
    def __init__(self, rs, init):
        self.rs = rs
        self.cur = init

    def move(self, new):
        d = (new - self.cur) & 0xffffffff
        self.cur = new
        return [valu("v_add_u32", r, "0x%x" % d, r) for r in self.rs] if d else []


def plan_windows(addrs, span):
    want = []
    i = 0
    while i < len(addrs):
        lo = hi = addrs[i]
        j = i + 1
        while j < len(addrs) and max(hi, addrs[j]) - min(lo, addrs[j]) + span < 65536:
            lo, hi = min(lo, addrs[j]), max(hi, addrs[j])
            j += 1
        want += [lo] * (j - i)
        i = j
    return want


KWANT = plan_windows([U[("K", t)]["addr"] for t in range(16)], 4096)
VWANT = plan_windows([U[("V", t)]["addr"] for t in range(16)], 4096)
check_units(False)
check_units(True)


def pstore(v0, idx):
    return Ins(f"buffer_store_dwordx2 v[{v0}:{v0 + 1}], off, s[{S_PROF}:{S_PROF + 3}], {sPROF} offset:{8 * idx}", "vst",
               rd=[f"v{v0}", f"v{v0 + 1}", sPROF] + regs("s", S_PROF, 4))


def prof_stamp(idx, v0=252):
    if not OPT["prof"]:
        return []
    return [raw("s_memtime s[76:77]", "other", wr=["s76", "s77"]),
            raw("s_memrealtime s[78:79]", "other", wr=["s78", "s79"]),
            raw("s_waitcnt lgkmcnt(0)", "drainlg"),
            valu("v_mov_b32", f"v{v0}", "s76"),
            valu("v_mov_b32", f"v{v0 + 1}", "s78"),
            pstore(v0, idx)]


def bar_seq(tags, idx):
    if OPT["prof"] < 2:
        return [needboth(tags), barrier()] + prof_stamp(idx)
    return [raw("s_memtime s[58:59]", "other", wr=["s58", "s59"]), raw("s_waitcnt lgkmcnt(0)", "drainlg"),
            needboth(tags), barrier(),
            raw("s_memtime s[76:77]", "other", wr=["s76", "s77"]),
            raw("s_memrealtime s[78:79]", "other", wr=["s78", "s79"]),
            raw("s_waitcnt lgkmcnt(0)", "drainlg"), salu("s_sub_u32", "s76", "s76", "s58"),
            valu("v_mov_b32", "v252", "s76"), valu("v_mov_b32", "v253", "s78"), pstore(252, idx)]


def a_read(i, dt, ks, t):
    p, xy = dt >> 1, dt & 1
    off = U[("W", i, p >> 1)]["addr"] + ks * 4096 + t * 512 + xy * 8
    return ds_read("ds_read_b64_tr_b16", ("a", ABUF[dt % 2] + 4 * ks + 2 * t), 2, wA[p & 1], off)


def first_reads(i):
    ax = U[("X", i)]["addr"] - XS[0]

    def A(ks, t):
        return a_read(i, 0, ks, t)

    def B(qt, ks):
        return ds_read("ds_read_b128", ("a", bx(qt, ks)), 4, xA[ks], ax + qt * 2048)
    return [A(0, 0), A(0, 1), B(0, 0), A(1, 0), A(1, 1), B(0, 1)] + [B(qt, ks) for qt in range(1, 6) for ks in range(2)]


def k_read(t, j):
    kt, ks = j >> 2, j & 3
    return ds_read("ds_read_b128", ("a", kf(kt, ks)), 4, kA[ks], U[("K", t)]["addr"] - KWANT[t] + kt * 4096)


def epilogue_groups(tmp, dst=None, vaddr=None):
    groups = []
    n = 0
    for T in range(3):
        for ph in range(2):
            for qs in range(2):
                for pl in range(2):
                    qt = 2 * T + qs
                    tb = tmp + 4 * (n % 3)
                    src = oacc(qt, 4 * ph + 2 * pl)
                    db = tb if dst is None or dst(n) is None else dst(n)
                    rd = [valu("v_accvgpr_read_b32", f"v{tb + i}", f"a{src + i}") for i in range(8)]
                    mu = [valu("v_mul_f32", f"v{tb + i}", vR[qt], f"v{tb + i}") for i in range(8)]
                    cv = [valu("v_cvt_pk_bf16_f32", f"v{db + i}", f"v{tb + 2 * i}", f"v{tb + 2 * i + 1}") for i in range(4)]
                    pre = [salu("s_add_u32", sE, sO, ph * 12288 + T * 4096)] if qs == 0 and pl == 0 else []
                    imm = qs * 2048 + pl * 1024
                    groups.append((rd + mu + cv, pre, vstore(("v", db), 4, vaddr or vL16, S_OST, sE, imm, tag="ost", flags=SC1), imm))
                    n += 1
    return groups


def conv_items(T, ps, packed=()):
    out = []
    for p in ps:
        for qs in range(2):
            R, Dd = qacc(p, 0, 2 * T + qs), qf(2 * T + qs, p)
            if p in packed:
                out += [(p, qs, valu("v_pk_mul_f32", f"v[{R + x}:{R + x + 1}]", f"v[{R + x}:{R + x + 1}]", "s[86:87]" if False else vC2)) for x in range(0, 8, 2)]
            else:
                out += [(p, qs, valu("v_mul_f32", f"v{R + x}", sC, f"v{R + x}")) for x in range(8)]
            out += [(p, qs, valu("v_cvt_pk_bf16_f32", f"v{Dd + x}", f"v{R + 2 * x}", f"v{R + 2 * x + 1}")) for x in range(4)]
    return out


def q_phase(second):
    S = Sched()
    extra, mid = {}, {}
    if second:
        extra[OPT["k1s"]] = unit_dmas(("K", 1), sJ)
    else:
        jp = OPT["jpro"]
        if jp == 0:
            extra[0] = [g for jj in range(5) for g in unit_dmas(("J", jj), sE)]
            extra[1] = [g for jj in range(5, 10) for g in unit_dmas(("J", jj), sE)]
        elif jp < 10:
            extra[1] = [g for jj in range(jp, 10) for g in unit_dmas(("J", jj), sE)]
        kv = [unit_dmas(k, sE) for k in [("K", 0), ("V", 0), ("K", 1)]]
        if OPT["kplan"] == 0:
            extra[4], extra[5], extra[6] = kv
        elif OPT["kplan"] == 1:
            extra[7], mid[8] = kv[0], kv[1]
            extra[8] = kv[2]
        elif OPT["kplan"] == 2:
            extra[4], extra[7], mid[8] = kv
        elif OPT["kplan"] == 4:
            extra[5], extra[6], extra[7] = kv
        elif OPT["kplan"] == 5:
            extra[4], extra[6], extra[7] = kv
        elif OPT["kplan"] == 3:
            extra[5], extra[7], mid[8] = kv
    for i in range(10):
        q0 = S.n()
        for dt in range(8):
            for qt in range(6):
                for ks in range(2):
                    acc = ("v", qacc(dt >> 1, dt & 1, qt))
                    S.add(mfma(16, acc, ("a", ABUF[dt % 2] + 4 * ks), ("a", bx(qt, ks)), None if (i == 0 and ks == 0) else acc))
        for dt in range(1, 8):
            gaps = [4, 5, 6, 7] if dt == 1 else [0, 2, 3, 4]
            for n, (ks, t) in enumerate([(0, 0), (0, 1), (1, 0), (1, 1)]):
                S.put(q0 + 12 * (dt - 1) + gaps[n], a_read(i, dt, ks, t))
        S.put(q0 + 35, needboth(tags_for(i - 0.5)), barrier())
        S.put(q0 + 83, *bar_seq(tags_for(i), 2 + i))
        if i < 9:
            for n, r in enumerate(first_reads(i + 1)):
                S.put(q0 + 84 + n, r)
        else:
            kw = Win(kA, KWANT[15])
            mv = kw.move(KWANT[0])
            S.put(q0 + 80, *mv[:2])
            S.put(q0 + 82, *mv[2:])
            for j in range(8):
                S.put(q0 + 84 + j, k_read(0, j))
        if i <= 7:
            for n, x in enumerate([salu("s_bfe_u32", sXS, sQT, "0x%x" % (0x40000 + 4 * i)), salu("s_lshl_b32", sWS, sXS, 19),
                                   salu("s_add_u32", sWS, sWS, sWQ), salu("s_lshl_b32", sXS, sXS, 7), salu("s_add_u32", sXS, sXS, sX),
                                   salu("s_add_u32", sW1, sWS, 128)]):
                S.put(q0 + 26 + n, x)
        early = groups_at(i - 1) if i else []
        place_dmas(S, early + mid.get(i, []), [q0 + g for g in (9, 13, 17, 21, 25, 29, 31, 33)], q0)
        late = groups_at(i - 0.5) + extra.get(i, [])
        if i == 8 and 8 in extra:
            late = extra[8] + groups_at(i - 0.5)
        cand = [q0 + 37 + 4 * x for x in range(12)]
        nd = sum(len(g[1]) for g in late)
        if nd > 12:
            cand = sorted(cand + [q0 + 67, q0 + 71, q0 + 75, q0 + 79][:nd - 12])
        place_dmas(S, late, cand, q0 + 35)
    if not second:
        for jj in range(10):
            q0 = 96 * 3
            if jj == 8:
                S.put(q0 + 65, valu("v_add_u32", vJ, D[9] - D[4] - 2 * 16384, vJ))
            for tt in range(2):
                g = q0 + [10, 11, 18, 19, 22, 23, 30, 31, 34, 42, 43, 46, 47, 54, 55, 58, 66, 67, 70, 71][2 * jj + tt]
                S.put(g, ds_read("ds_read_b64_tr_b16", ("a", 4 * jj + 2 * tt), 2, vJ, (jj >> 2) * 16384 + (jj & 3) * 1024 + tt * 8192))
            nq, pair = divmod(2 * jj, 5)
            g = 96 * (4 + jj // 3) + [19, 25, 31][jj % 3]
            if OPT["jlate"]:
                g = 96 * (3 + jj // 2) + ([79, 82] if (3 + jj // 2) in extra else [77, 81])[jj % 2]
            S.put(g - 1, salu("s_add_u32", sJ, sWOX if pair == 4 else sWOD, nq * 1310720 + pair * 4096))
            S.put(g, vstore(("a", 4 * jj), 4, vL16, S_WOT, sJ, 0, tag="jst", flags=SC1))
    if second:
        eg = epilogue_groups(EPI)
        ep = []
        for i in range(8):
            for g in eg[3 * i:3 * i + 3]:
                ep += [(x, 96 * i, None) for x in g[0]]
            for g in eg[3 * i:3 * i + 3]:
                ep += [(x, 96 * i + OPT["stg"], None) for x in g[1] + [g[2]]]
        ep[-1] = (ep[-1][0], ep[-1][1], 96 * 9 - 1)
        S.stream(ep)
        S.put(96 * 9 + 2, salu("s_add_u32", sO, sO, 8 * 12288))
    q0 = 96 * 9
    g = q0 + 2
    for x in ([salu("s_add_u32", sWQ, sWQ, 512)] + set_pf_proj(True) if not second else set_pf_out()):
        S.put(g, *(x if isinstance(x, list) else [x]))
        g += 1 if g < q0 + 94 else 0
        while g in (q0 + 35, q0 + 83) or any(x.kind == "salu" for x in S.fixed.get(g, [])):
            g += 1
    if second:
        S.stream([(valu("v_mov_b32", r, vL16), q0 + 2, None) for r in vW + vX])
    S.put(q0 + 7, valu("v_mov_b32", "v242", sC), valu("v_mov_b32", "v243", sC))
    S.stream([(x, min(q0 + 12 * (2 * p + 1) + 2 * qs + 1 + 2, q0 + 95), None) for p, qs, x in conv_items(0, range(4))])
    S.put(-1, *prof_stamp(1))
    return S.finish(lead=first_reads(0), report=OPT["report"])


def lspread(qt, tmp):
    l = f"v{lacc(qt)}"
    return [valu("v_mov_b32", tmp, l), perm("v_permlane32_swap_b32", tmp, l), valu("v_add_f32", l, l, tmp),
            valu("v_mov_b32", tmp, l), perm("v_permlane16_swap_b32", tmp, l), valu("v_add_f32", l, l, tmp)]


def interleave(a, b):
    return [x for p in zip(a, b) for x in p]


def lcheck():
    l = [f"v{lacc(qt)}" for qt in range(6)]
    return [valu("v_add_f32", vT[0], l[0], l[1]), valu("v_min3_f32", vT[1], l[0], l[1], l[2]),
            valu("v_add_f32", vT[0], vT[0], l[2]), valu("v_min3_f32", vT[1], vT[1], l[3], l[4]),
            valu("v_add_f32", vT[0], vT[0], l[3]), valu("v_add_f32", vT[0], vT[0], l[4]),
            valu("v_min_f32", vT[1], vT[1], l[5]), valu("v_add_f32", vT[0], vT[0], l[5]),
            valu("v_cmp_nlt_f32", "s[56:57]", sLO, vT[1]),
            valu("v_cmp_ngt_f32", "vcc", sHI, vT[0]),
            salu("s_or_b64", "vcc", "vcc", "s[56:57]")]


def a_phase(last):
    S = Sched()
    qk = [[0] * 3 for _ in range(16)]
    pv = [[0] * 3 for _ in range(16)]

    def QK(t, T):
        qk[t][T] = S.n()
        for qs in range(2):
            for kt in range(2):
                s = ("v", sreg(2 * T + qs) + 4 * kt)
                for ks in range(4):
                    S.add(mfma(16, s, ("a", kf(kt, ks)), ("v", qf(2 * T + qs, ks)), None if ks == 0 else s))

    def PV(t, T):
        pv[t][T] = S.n()
        sums = []
        for qs in range(2):
            l = ("v", lacc(2 * T + qs))
            sums.append(mfma(16, l, ("v", ONES), ("v", sreg(2 * T + qs)), None if t == 0 else l))
        if t == 15:
            for m in sums:
                S.add(m)
        for dt in range(8):
            for qs in range(2):
                o = ("a", oacc(2 * T + qs, dt))
                S.add(mfma(16, o, ("a", vf(dt)), ("v", sreg(2 * T + qs)), None if t == 0 else o))
        if t < 15:
            for m in sums:
                S.add(m)

    for t in range(16):
        QK(t, 0)
        if t:
            PV(t - 1, 1)
        QK(t, 1)
        if t:
            PV(t - 1, 2)
        QK(t, 2)
        PV(t, 0)
    PV(15, 1)
    PV(15, 2)
    bar = {}
    kw, vw = Win(kA, KWANT[0]), Win(vA, VWANT[0])
    for t in range(16):
        g0 = pv[t - 1][2] if t else qk[0][1]
        bar[10 + t] = g0 - 1
        S.put(g0 - 1, *bar_seq(tags_for(10 + t), 12 + t))
        if t == 15:
            S.put(g0 - 1, scmp("s_cmp_eq_u32", sIT, 1), raw("s_cbranch_scc1 L_tail2", "branch", rd=["scc"]), label("L_CUT"))
        for n, m in enumerate(vw.move(VWANT[t])):
            S.put(g0 - 14 + 3 * (n // 2), m)
        for dt in range(8):
            for tt in range(2):
                S.put(g0 + 4 * dt + 1 + 2 * tt,
                      ds_read("ds_read_b64_tr_b16", ("a", vf(dt) + 2 * tt), 2, vA[dt], U[("V", t)]["addr"] - VWANT[t] + tt * 4096))
        if t < 15:
            for n, m in enumerate(kw.move(KWANT[t + 1])):
                S.put((qk[t][0] + 9 if t else qk[0][2] + 2) + (3 if t else 2) * (n // 2), m)
            for j in range(8):
                S.put(qk[t][2] + [8, 10, 12, 14, 17, 19, 21, 23][j], k_read(t + 1, j))
    if not last:
        S.stream([(m, pv[15][0], None) for m in vw.move(VWANT[0])])
    bar[26] = pv[15][1] - 1
    S.put(bar[26], *(prof_stamp(28) if last else bar_seq(tags_for(26), 28)))
    fr = [] if last else first_reads(0)
    for n, r in enumerate(fr[:10]):
        S.put(pv[15][1] + [1, 3, 5, 7, 9, 11, 13, 15, 16, 17][n], r)
    for n, r in enumerate(fr[10:]):
        S.put(pv[15][2] + 3 + 2 * n, r)
    lastkv = 0
    for key in sorted([k for k, u in U.items() if "even" in u], key=lambda k: U[k]["even"]):
        cand = []
        for m in range(4):
            g = int(kpos(4 * U[key]["even"] + m))
            while S.used(g, False) > 0 or g - 1 in bar.values():
                g += 1
            cand.append(g)
        lo = bar.get(U[key]["iss"], -2) + 1
        assert cand[0] > lo
        place_dmas(S, unit_dmas(key), cand, lo)
        lastkv = cand[-1]
    for n in range(10, 27):
        groups = groups_at(n - 1)
        if n == 26:
            groups = [g for k in ([("P", 0), ("P", 1)] if last else [("K", 0), ("V", 0)]) for g in unit_dmas(k)]
        nd = sum(len(g[1]) for g in groups)
        if n == 10:
            cand = [(16 // max(nd, 1)) * x for x in range(nd)]
            lo = -1
        else:
            lo = bar[n - 1] + 1
            if n == 11 or n == 26 or OPT["uni"]:
                a = lo + 5
            else:
                a = qk[n - 10][0] + 1 if nd <= 8 else pv[n - 11][0] + 6
            a = max(a, lastkv + 3)
            b = bar[n] - 1
            cand = []
            for x in range(nd):
                g = a + (b - a) * x // nd
                while any(i.kind in MEMK for i in S.fixed.get(g, [])) or g in cand:
                    g += 1
                cand.append(g)
            assert not cand or cand[-1] < bar[n]
        place_dmas(S, groups, cand, lo)
    if OPT["xpace"]:
        for t in range(1, 14):
            for T in range(3):
                S.put(pv[t][T] + 17, nop(OPT["xpace"]))
                S.put(qk[t][T] + 15, nop(OPT["xpace"]))
    S.put(qk[14][0] - 3, salu("s_add_u32", sKV, sKV, 262144))
    g = bar[OPT["flagbar"]] + 2
    S.put(g - 1, scmp("s_cmp_eq_u32", sIT, 0), salu("s_cselect_b32", sE, sFB, sFG), salu("s_cselect_b32", sJ, "0x10000", 1))
    S.put(g + 1, valu("v_mov_b32", f"v{EPI}", sJ))
    S.put(g + 4, atomic_add(f"v{EPI}", sE))
    g = qk[12 - OPT['t23']][0]
    S.put(g + 1, scmp("s_cmp_eq_u32", sIT, 1), salu("s_cselect_b32", sE, sFB, "0x1000"))
    S.put(g + 3, poll_load(vPOLL[1], sE))
    g = qk[13 - OPT['t23']][0]
    S.put(g + 1, salu("s_lshl_b32", sWANT, sIT, 23), valu("v_readfirstlane_b32", sQ, vPOLL[1]))
    S.put(g + 4, scmp("s_cmp_lt_u32", sQ, sWANT), raw("s_cbranch_scc1 L_spin3", "branch", rd=["scc"]), label("L_spin3_back"))
    if last:
        g = bar[25] + 2
        S.put(g, poll_load(vPOLL[0], sFG))
        su = [salu("s_lshr_b32", "s84", "s4", 2), salu("s_mul_i32", "s7", "s3", O_GRP), salu("s_mul_i32", "s58", "s84", 786432),
              salu("s_add_u32", "s7", "s7", "s58"), [salu("s_add_u32", f"s{S2B}", "s90", "s7"), salu("s_addc_u32", "s59", "s91", 0)],
              salu("s_and_b32", f"s{S2B + 1}", "s59", "0xffff"), salu("s_mov_b32", f"s{S2B + 2}", 786432),
              salu("s_mul_i32", sBB, sWAVE, 16 * 12288), salu("s_mov_b64", f"s[{TB}:{TB + 1}]", "s[34:35]")] + next_off(sB2, TB, sBB, 12288)
        su += [salu("s_and_b32", "s58", sWAVE, 1), salu("s_mul_i32", "s58", "s58", 3 * 2048), salu("s_sub_u32", "s59", 3 * 2048, "s58"),
               salu("s_lshr_b32", "s85", sWAVE, 1), salu("s_lshl_b32", "s85", "s85", 12), salu("s_add_u32", "s58", "s58", "s85"),
               salu("s_add_u32", "s59", "s59", "s85"), salu("s_sub_u32", "s85", 2048, "s85")]
        g += 1
        for x in su:
            while any(i.kind == "salu" for i in S.fixed.get(g, [])):
                g += 1
            S.put(g, *(x if isinstance(x, list) else [x]))
            g += 1
        va = [valu("v_add_u32", V2B[0], "s58", vL16), valu("v_add_u32", V2B[3], "s59", vL16)]
        for q in (1, 2):
            va += [valu("v_add_u32", V2B[q], "s85", V2B[q - 1]), valu("v_add_u32", V2B[3 + q], "s85", V2B[2 + q])]
        S.stream([(x, g, pv[15][1] - 3) for x in va])
        g = pv[15][0] + 12
        S.put(g, valu("v_readfirstlane_b32", sQ, vPOLL[0]))
        S.put(g + 3, salu("s_and_b32", sQ, sQ, "0xff"), scmp("s_cmp_lt_u32", sQ, 8),
              raw("s_cbranch_scc1 L_spin1", "branch", rd=["scc"]), label("L_spin1_back"))
        for n, l in enumerate([l for qi in range(6) for l in k2_loads_B(0, qi)]):
            S.put(pv[15][1] + 1 + 2 * n if n < 8 else pv[15][2] + 3 + 3 * (n - 8), l)
    if OPT["codepf2"]:
        g = qk[OPT["codepf2"]][0] - 6
        S.put(g - 2, salu("s_mul_i32", sJ, sIT, "L_tail2-L_q2"))
        S.put(g - 1, salu("s_add_u32", sJ, sJ, "L_q2-L_pc"))
        S.put(g, salu("s_add_u32", sJ, sJ, sCP))
        S.put(g + 1, salu("s_min_u32", sJ, sJ, "L_endcode-L_pc-256"))
        S.put(g + 2, valu("v_and_b32", f"v{EPI + 2}", 16, vL16), valu("v_lshlrev_b32", f"v{EPI + 2}", 3, f"v{EPI + 2}"))
        S.put(g + 3, valu("v_add_u32", f"v{EPI + 2}", sJ, f"v{EPI + 2}"))
        S.put(g + 5, Ins(f"global_load_dword v{EPI + 3}, v{EPI + 2}, s[96:97]", "vld", rd=[f"v{EPI + 2}", "s96", "s97"], wr=[f"v{EPI + 3}"]))
    for T in (1, 2):
        if OPT["pk"]:
            nfree = OPT["nfree"] if T == 1 else 0
            S.stream([(x, -1, None) for p, qs, x in conv_items(T, range(nfree))] +
                     [(x, qk[0][T] - 1, qk[0][T] - 1) for p, qs, x in conv_items(T, range(nfree, 4), packed=range(4))])
        else:
            c = [(x, -1, None) for p, qs, x in conv_items(T, range(4))]
            c[-1] = (c[-1][0], -1, qk[0][T] - 1)
            S.stream(c)
    fin = []
    if OPT["one1"]:
        for T in range(3):
            fin += [(x, [pv[15][1] + 12, pv[15][2], pv[15][2] + 4][T], None) for x in interleave(lspread(2 * T, f"v{lacc(2 * T) + 1}"), lspread(2 * T + 1, f"v{lacc(2 * T + 1) + 1}"))]
    S.stream(fin + [(x, pv[15][2] + 4, None) for x in lcheck()])
    units = []
    for t in range(16):
        for qt in range(6):
            s = sreg(qt)
            T, qs = qt >> 1, qt & 1
            dl = pv[t][T] + qs - 2
            units.append(dict(e=qk[t][T] + 8 * qs + 7 + 2,
                              exps=[valu("v_exp_f32", f"v{s + r}", f"v{s + r}") for r in range(8)],
                              cvts=[(valu("v_cvt_pk_bf16_f32", f"v{s + r}", f"v{s + 2 * r}", f"v{s + 2 * r + 1}"), 2 * r + 2, dl) for r in range(4)]))
    S.packers.append(SoftmaxPacker(units))
    return S.finish(lead=[k_read(0, j) for j in range(8)], report=OPT["report"])


def slow_path():
    o = [label("L_slow"), drain(), nop(16)]
    KF = [EPI + 4 * k for k in range(4)]
    VFR = 56
    vM = [f"v{120 + q}" for q in range(6)]
    vKo, vVo, vt, vu = "v60", "v61", "v62", "v63"
    o += [valu("v_lshrrev_b32", vt, 4, vL16), valu("v_and_b32", vu, 15, vt), valu("v_lshrrev_b32", vt, 4, vt),
          valu("v_lshlrev_b32", vKo, 8, vu), valu("v_lshl_add_u32", vKo, vt, 4, vKo),
          valu("v_lshlrev_b32", vVo, 10, vt), valu("v_lshl_add_u32", vVo, vu, 1, vVo)]
    o += [salu("s_sub_u32", "s58", sKV, 262144)]
    o += [valu("v_mov_b32", m, "0xff800000") for m in vM]

    def scores():
        r = []
        for kt in range(2):
            r += [salu("s_add_u32", "s61", "s59", kt * 4096)]
            r += [vload(("v", KF[ks]), 4, vKo, S_K, "s61", 64 * ks) for ks in range(4)] + [drain()]
            for qt in range(6):
                s = ("v", sreg(qt) + 4 * kt)
                r += [mfma(16, s, ("v", KF[ks]), ("v", qf(qt, ks)), None if ks == 0 else s) for ks in range(4)]
            r += [nop(16)]
        return r
    o += [salu("s_mov_b32", "s59", "s58"), salu("s_mov_b32", "s60", 16), label("L_slow1")] + scores()
    for qt in range(6):
        o += [valu("v_max3_f32", vM[qt], vM[qt], f"v{sreg(qt) + r}", f"v{sreg(qt) + r + 1}") for r in range(0, 8, 2)]
    o += [salu("s_add_u32", "s59", "s59", 8192), salu("s_sub_u32", "s60", "s60", 1), scmp("s_cmp_lg_u32", "s60", 0),
          raw("s_cbranch_scc1 L_slow1", "branch", rd=["scc"])]
    for qt in range(6):
        for op in ("v_permlane32_swap_b32", "v_permlane16_swap_b32"):
            o += [valu("v_mov_b32", vt, vM[qt]), nop(2), perm(op, vt, vM[qt]), valu("v_max_f32", vM[qt], vM[qt], vt)]
        o += [valu("v_mov_b32", f"v{lacc(qt) + r}", 0) for r in range(4)]
    o += [valu("v_accvgpr_write_b32", f"a{r}", 0) for r in range(192)]
    o += [salu("s_mov_b32", "s59", "s58"), salu("s_mov_b32", "s60", 16), label("L_slow2")] + scores()
    for qt in range(6):
        s = sreg(qt)
        o += [valu("v_sub_f32", f"v{s + r}", f"v{s + r}", vM[qt]) for r in range(8)]
        o += [valu("v_exp_f32", f"v{s + r}", f"v{s + r}") for r in range(8)]
        o += [valu("v_cvt_pk_bf16_f32", f"v{s + r}", f"v{s + 2 * r}", f"v{s + 2 * r + 1}") for r in range(4)]
    o += [salu("s_add_u32", "s57", "s59", 4096)]
    for dt in range(8):
        for j in range(8):
            o += [vload(("v", 184 + j), 1, vVo, S_V, "s57" if j >= 4 else "s59", (j & 3) * 256 + 32 * dt, op="buffer_load_ushort")]
        o += [drain()]
        o += [valu("v_lshl_or_b32", f"v{VFR + r}", f"v{185 + 2 * r}", 16, f"v{184 + 2 * r}") for r in range(4)]
        o += [mfma(16, ("a", oacc(qt, dt)), ("v", VFR), ("v", sreg(qt)), ("a", oacc(qt, dt))) for qt in range(6)]
        o += [nop(8)]
    o += [mfma(16, ("v", lacc(qt)), ("v", ONES), ("v", sreg(qt)), ("v", lacc(qt))) for qt in range(6)] + [nop(16)]
    o += [salu("s_add_u32", "s59", "s59", 8192), salu("s_sub_u32", "s60", "s60", 1), scmp("s_cmp_lg_u32", "s60", 0),
          raw("s_cbranch_scc1 L_slow2", "branch", rd=["scc"])]
    o += [nop(16)]
    if OPT["one1"]:
        for qt in range(6):
            o += lspread(qt, vt)
    o += [drain(), scmp("s_cmp_eq_u32", sIT, 1), raw("s_cbranch_scc1 L_back2", "branch", rd=["scc"]), raw("s_branch L_back1", "branch")]
    return o


def srd(base, lo, hi, nbytes):
    return [salu("s_mov_b32", f"s{base}", lo), salu("s_and_b32", f"s{base + 1}", hi, "0xffff"),
            salu("s_mov_b32", f"s{base + 2}", nbytes), salu("s_mov_b32", f"s{base + 3}", "0x20000")]


def decode_wg():
    return [salu("s_and_b32", "s3", "s2", 7), salu("s_lshr_b32", "s4", "s2", 6), salu("s_lshl_b32", "s3", "s3", 2),
            salu("s_add_u32", "s3", "s3", "s4"), salu("s_lshr_b32", "s4", "s2", 3), salu("s_and_b32", "s4", "s4", 7),
            salu("s_lshr_b32", "s5", "s3", 4), salu("s_and_b32", "s6", "s3", 15)]


def code_touch():
    return [salu("s_lshr_b32", "s68", "s2", 3), salu("s_lshl_b32", "s68", "s68", 11),
            valu("v_lshrrev_b32", "v11", 6, "v0"), valu("v_and_b32", "v12", 3, "v0"), valu("v_lshlrev_b32", "v11", 9, "v11"),
            valu("v_lshl_add_u32", "v11", "v12", 7, "v11"), valu("v_add_u32", "v11", "s68", "v11"),
            Ins("global_load_dword v253, v11, s[96:97]", "vld", rd=["v11", "s96", "s97"], wr=["v253"])]


def kv_patterns():
    i, a, b, c = "v1", "v2", "v3", "v4"
    o = [valu("v_lshrrev_b32", a, 4, i), valu("v_and_b32", b, 15, i),
         valu("v_xor_b32", c, a, b), valu("v_lshlrev_b32", c, 4, c), valu("v_lshl_add_u32", vK[0], a, 8, c)]
    o += [valu("v_xor_b32", vK[m], m << 6, vK[0]) for m in range(1, 4)]
    o += [valu("v_lshlrev_b32", "v5", 1, a), valu("v_xor_b32", "v5", "v5", b), valu("v_lshlrev_b32", "v5", 4, "v5"),
          valu("v_lshl_add_u32", vV[0], a, 8, "v5"), valu("v_xor_b32", vV[1], 128, vV[0])]
    return o


def prologue():
    o = [scmp("s_cmp_ge_u32", "s2", 256), raw("s_cbranch_scc1 L_end", "branch", rd=["scc"])]
    o += [raw("s_getpc_b64 s[96:97]", wr=["s96", "s97"]), label("L_pc")]
    if OPT["dbgt"]:
        o += [raw("s_memrealtime s[72:73]", wr=["s72", "s73"])]
    if OPT["codepf"] == 2:
        o += code_touch()
    o += decode_wg()
    o += [salu("s_mul_i32", "s7", "s5", 40), salu("s_add_u32", "s68", "s0", "s7"), salu("s_addc_u32", "s69", "s1", 0),
          raw("s_load_dwordx8 s[56:63], s[68:69], 0", wr=regs("s", 56, 8)),
          raw("s_load_dwordx2 s[94:95], s[68:69], 32", wr=["s94", "s95"]),
          raw("s_load_dwordx4 s[88:91], s[0:1], 88", wr=regs("s", 88, 4)),
          raw("s_load_dwordx2 s[92:93], s[0:1], 80", wr=["s92", "s93"])]
    i, a, b, c = "v1", "v2", "v3", "v4"
    o += [valu("v_lshrrev_b32", a, 6, "v0"), valu("v_and_b32", i, 63, "v0"),
          valu("v_readfirstlane_b32", sWAVE, a), valu("v_lshlrev_b32", vL16, 4, i)]
    o += [valu("v_lshrrev_b32", a, 4, i), valu("v_and_b32", b, 7, i), valu("v_lshrrev_b32", "v5", 3, i),
          valu("v_and_b32", c, 1, a), valu("v_lshlrev_b32", c, 1, c), valu("v_xor_b32", c, c, b), valu("v_lshlrev_b32", c, 4, c),
          valu("v_lshl_add_u32", vW[0], "v5", 13, c),
          valu("v_xor_b32", vW[1], 64, vW[0]), valu("v_add_u32", vW[1], 64512, vW[1]),
          valu("v_add_u32", vW[2], 2 * 64512, vW[0]), valu("v_add_u32", vW[3], 2 * 64512, vW[1])]
    o += [valu("v_xor_b32", c, a, b), valu("v_lshlrev_b32", c, 4, c), valu("v_mul_u32_u24", "v6", 1280, "v5"),
          valu("v_add_u32", vX[0], "v6", c),
          valu("v_xor_b32", vX[1], 64, vX[0]), valu("v_add_u32", vX[1], 9216, vX[1]),
          valu("v_add_u32", vX[2], 2 * 9216, vX[0]), valu("v_add_u32", vX[3], 2 * 9216, vX[1])]
    o += [salu("s_lshr_b32", "s70", sWAVE, 1), salu("s_and_b32", "s71", sWAVE, 1),
          salu("s_lshl_b32", sW4K, sWAVE, 12), salu("s_mul_i32", sW6K, sWAVE, 6144),
          salu("s_lshl_b32", "s7", "s4", 2), salu("s_add_u32", "s7", "s7", "s70"),
          salu("s_lshl_b32", sWQ, "s71", 18), salu("s_lshl_b32", sT0, "s7", 8), salu("s_add_u32", sWQ, sWQ, sT0),
          salu("s_mul_i32", sX, "s6", 245760), salu("s_mul_i32", sT0, sWAVE, 61440), salu("s_add_u32", sX, sX, sT0)]
    o += [raw("s_waitcnt lgkmcnt(0)", "drainlg")]
    o += srd(S_X, "s56", "s57", 3932160) + srd(S_WQ, "s62", "s63", 5242880)
    o += set_pf_proj()
    for k in [("W", 0, 0), ("X", 0), ("W", 0, 1), ("W", 1, 0), ("X", 1), ("W", 1, 1)]:
        for pre, ds in unit_dmas(k):
            o += pre[::-1] + ds
    if OPT["warmw"]:
        o += [salu("s_mul_i32", "s68", "s6", 40 * 8192), salu("s_lshl_b32", "s69", "s4", 10), salu("s_add_u32", "s68", "s68", "s69"),
              salu("s_mul_i32", "s69", sWAVE, 10 * 8192), salu("s_add_u32", "s68", "s68", "s69"),
              valu("v_lshlrev_b32", b, 7, b), valu("v_lshl_add_u32", "v6", "v5", 13, b), valu("v_and_b32", c, 1, "v5"),
              valu("v_lshl_add_u32", c, c, 13, b), salu("s_add_u32", "s69", "s68", 8 * 8192)]
        o += [vload(("v", 254), 1, "v6", S_WQ, "s68", 0), vload(("v", 255), 1, c, S_WQ, "s69", 0)]
    o += [salu("s_lshr_b32", "s68", "s2", 3), salu("s_lshl_b32", "s68", "s68", 2), salu("s_add_u32", "s68", "s68", sWAVE), salu("s_lshl_b32", sCP, "s68", 8)]
    if OPT["codepf"] == 1:
        o += code_touch()
    o += srd(S_WO, "s94", "s95", 5242880)
    o += [salu("s_lshl_b32", "s68", "s6", 3), salu("s_add_u32", "s68", "s68", "s4"),
          salu("s_mul_i32", sWOS, "s68", 40960), salu("s_mul_i32", sT0, sWAVE, 10240), salu("s_add_u32", sWOS, sWOS, sT0)]
    for jj in range(OPT["jpro"]):
        for pre, ds in unit_dmas(("J", jj), sE):
            o += pre[::-1] + ds
    o += srd(S_K, "s58", "s59", 67108864) + srd(S_V, "s60", "s61", 67108864)
    o += srd(S_OST, "s90", "s91", WS_WOT) + srd(S_FLG, "s88", "s89", 256)
    o += [salu("s_add_u32", "s68", "s90", WS_WOT), salu("s_addc_u32", "s69", "s91", 0)] + srd(S_WOT, "s68", "s69", 2 * WOT_BLK)
    o += [salu("s_lshl_b32", sFG, "s3", 2), salu("s_lshl_b32", sFB, "s5", 6)]
    if OPT["dbgt"]:
        o += [salu("s_add_u32", sFG, sFG, 128), salu("s_add_u32", sFB, sFB, 128)]
    o += [
          valu("v_cmp_eq_u32", "vcc", 0, "v0"), valu("v_mov_b32", "v10", "0x1000"), valu("v_mov_b32", f"v{ONES}", "0x3f803f80"),
          valu("v_cndmask_b32", vFLG, "v10", 0, "vcc"),
          ]
    if OPT["one1"]:
        o += [valu("v_and_b32", "v10", 15, "v0"), valu("v_cmp_eq_u32", "vcc", 0, "v10"), valu("v_cndmask_b32", f"v{ONES}", 0, f"v{ONES}", "vcc")]
    o += [valu("v_mov_b32", f"v{ONES + r}", f"v{ONES}") for r in range(1, 4)]
    if OPT["prof"]:
        o += [salu("s_add_u32", "s68", "s90", WS_PROF), salu("s_addc_u32", "s69", "s91", 0)] + srd(S_PROF, "s68", "s69", 1 << 20)
        o += [salu("s_lshl_b32", sPROF, "s2", 2), salu("s_add_u32", sPROF, sPROF, sWAVE), salu("s_lshl_b32", sPROF, sPROF, 10)]
        o += prof_stamp(0, 8)
    o += [salu("s_lshl_b32", sKV, "s6", 5), salu("s_add_u32", sKV, sKV, "s7"), salu("s_lshl_b32", sKV, sKV, 17),
          salu("s_lshl_b32", sT0, "s71", 12),
          salu("s_lshr_b32", sROT, "s2", 3), salu("s_lshl_b32", sT1, "s2", 1), salu("s_add_u32", sROT, sROT, sT1),
          salu("s_and_b32", sROT, sROT, 0 if OPT["norot"] else 15), salu("s_lshl_b32", sROT, sROT, 13), salu("s_add_u32", sROT, sROT, sT0)]
    if OPT["tlbw"]:
        for n, (r, so) in enumerate(((S_K, sKV), (S_V, sKV), (S_WO, sWOS))):
            o += [Ins(f"buffer_load_dword v{244 + n}, off, s[{r}:{r + 3}], {so} nt", "vld", rd=[so] + regs("s", r, 4))]
    if OPT["kpro"]:
        o += kv_patterns()
        for k in [("K", 0), ("V", 0), ("K", 1)][:OPT["kpro"]]:
            for pre, ds in unit_dmas(k, sE):
                o += pre + [nop(1)] + ds
    o += [salu("s_mul_i32", sO, "s3", O_GRP), salu("s_mul_i32", sT0, "s71", 786432), salu("s_add_u32", sO, sO, sT0),
          salu("s_lshr_b32", sT0, "s4", 1), salu("s_mul_i32", sT0, sT0, 16 * 12288), salu("s_add_u32", sO, sO, sT0),
          salu("s_and_b32", sT0, "s4", 1), salu("s_mul_i32", sT0, sT0, 4 * 12288), salu("s_add_u32", sO, sO, sT0),
          salu("s_mul_i32", sT0, "s70", 2 * 12288), salu("s_add_u32", sO, sO, sT0)]
    o += [salu("s_lshl_b32", "s68", "s6", 3), salu("s_add_u32", "s68", "s68", "s4"),
          salu("s_lshr_b32", sT0, "s68", 1), salu("s_and_b32", sT1, sT0, "0x33"),
          salu("s_and_b32", "s69", sT0, 4), salu("s_lshl_b32", "s69", "s69", 1), salu("s_or_b32", sT1, sT1, "s69"),
          salu("s_and_b32", "s69", sT0, 8), salu("s_lshr_b32", "s69", "s69", 1), salu("s_or_b32", sT1, sT1, "s69"),
          salu("s_mul_i32", sWOD, sT1, 20480),
          salu("s_and_b32", sT0, "s68", 1), salu("s_lshl_b32", sT0, sT0, 11), salu("s_add_u32", sWOD, sWOD, sT0),
          salu("s_mul_i32", sT0, "s5", WOT_BLK), salu("s_add_u32", sWOD, sWOD, sT0),
          salu("s_lshl_b32", sT0, "s70", 12), salu("s_add_u32", sWOD, sWOD, sT0),
          salu("s_lshl_b32", sT0, "s71", 10), salu("s_add_u32", sWOD, sWOD, sT0),
          salu("s_mul_i32", sT0, "s70", 1310720 - 20480), salu("s_add_u32", sWOX, sWOD, sT0)]
    o += [salu("s_add_u32", "s68", "s3", "s4"), salu("s_and_b32", "s68", "s68", 3), salu("s_mov_b32", sQT, "0x%x" % TBLQ[0])]
    for r in range(1, 4):
        o += [scmp("s_cmp_eq_u32", "s68", r), salu("s_cselect_b32", sQT, "0x%x" % TBLQ[r], sQT)]
    cbits = struct.unpack("<I", struct.pack("<f", math.log2(math.e) / math.sqrt(128.0)))[0]
    o += [salu("s_mov_b32", sC, "0x%x" % cbits), salu("s_mov_b32", sHI, "0x4e800000"), salu("s_mov_b32", sLO, "0x30800000"),
          salu("s_mov_b32", sIT, 0)]
    if not OPT["kpro"]:
        o += kv_patterns()
    o += [salu("s_lshl_b32", "s69", "s70", 13), salu("s_mul_i32", "s68", "s71", 12288), salu("s_add_u32", "s68", "s68", XS[0]),
          valu("v_bfe_u32", "v8", i, 2, 2), valu("v_and_b32", "v9", 3, i)]
    o += [valu("v_lshl_add_u32", c, b, 8, c), valu("v_add_u32", c, KWANT[15], c), valu("v_add_u32", kA[0], "s69", c)]
    o += [valu("v_xor_b32", kA[j], j << 6, kA[0]) for j in range(1, 4)]
    o += [valu("v_lshl_add_u32", "v5", a, 2, "v8"), valu("v_lshlrev_b32", c, 8, "v5"), valu("v_and_b32", "v6", 7, "v5"),
          valu("v_lshl_add_u32", c, "v6", 5, c), valu("v_lshl_add_u32", c, "v9", 3, c),
          valu("v_add_u32", c, VWANT[0], c), valu("v_add_u32", vA[0], "s69", c)]
    o += [valu("v_xor_b32", vA[d], d << 5, vA[0]) for d in range(1, 8)]
    o += [valu("v_lshl_add_u32", c, a, 3, "v8"), valu("v_lshlrev_b32", c, 7, c),
          valu("v_and_b32", "v5", 2, "v8"), valu("v_and_b32", "v7", 1, a), valu("v_lshl_add_u32", "v5", "v7", 2, "v5"),
          valu("v_xor_b32", "v5", "v5", "v9"), valu("v_lshl_add_u32", c, "v5", 4, c), valu("v_add_u32", wA[0], "s69", c),
          valu("v_xor_b32", wA[1], 64, wA[0])]
    o += [valu("v_lshrrev_b32", "v5", 1, b), valu("v_xor_b32", "v5", "v5", a),
          valu("v_lshlrev_b32", "v5", 4, "v5"), valu("v_lshl_add_u32", c, b, 7, "v5"),
          valu("v_xor_b32", "v5", 64, c), valu("v_add_u32", xA[0], "s68", c), valu("v_add_u32", xA[1], "s68", "v5")]
    o += [salu("s_lshl_b32", "s68", "s70", 2), salu("s_lshl_b32", "s69", "s71", 3), salu("s_add_u32", "s69", "s69", WOJ_ADDR),
          valu("v_lshrrev_b32", c, 1, a), valu("v_lshlrev_b32", c, 12, c), valu("v_lshl_add_u32", c, "v6", 7, c),
          valu("v_add_u32", c, "s69", c), valu("v_add_u32", "v5", "s68", "v9"), valu("v_lshrrev_b32", "v6", 1, "v6"),
          valu("v_xor_b32", "v5", "v5", "v6"), valu("v_lshl_add_u32", vJ, "v5", 4, c)]
    o += [needvm([("W", 0, 0), ("X", 0)]), barrier()] + first_reads(0)
    return o


def acc2(pi, xy, qi):
    return ((pi * 6 + qi) * 2 + xy) * 4


def a2(st, pi, ks, xy):
    if st == 0:
        return (240 if pi == 0 else 48 + 16 * pi) + 8 * ks + 4 * xy
    return (48 if pi == 0 else 112 + 16 * pi) + 8 * ks + 4 * xy


def b2(st, qi, ks):
    return (192 if st == 0 else 0) + 8 * qi + 4 * ks


V2A = ["v%d" % i for i in range(240, 245)]


def k2_loads_A(st, pi, soff=None):
    return [vload(("a", a2(st, pi, ks, xy)), 4, V2A[pi], S2A, soff or sA2, ks * 2048 + xy * 1024, flags=SC1) for xy in range(2) for ks in range(2)]


def k2_loads_B(st, qi):
    return [vload(("a", b2(st, qi, ks)), 4, V2B[qi], S2B, sB2, ks * 1024, flags=SC1) for ks in range(2)]


def k2_lds_A(st, pi):
    out = []
    for xy in range(2):
        for ks in range(2):
            r = [r for r, (s_, p_, off) in PF2.items() if (s_, p_) == (st, pi) and (r not in ("s87", "s99") or off == 2048 * ks)][0]
            key = [k for k, rs in sPF.items() if r in rs][0]
            if key[0] == "W":
                out.append(ds_read("ds_read_b128", ("a", a2(st, pi, ks, xy)), 4, V2W, U[key]["addr"] + ks * 2048 + xy * 1024))
            elif key[0] == "P":
                out.append(ds_read("ds_read_b128", ("a", a2(st, pi, ks, xy)), 4, V2P, ks * 2048 + xy * 1024))
            elif r == sPF[key][0]:
                out.append(ds_read("ds_read_b128", ("a", a2(st, pi, ks, xy)), 4, V2X, U[key]["addr"] - XS[0] + ks * 2048 + xy * 1024))
            else:
                out.append(ds_read("ds_read_b128", ("a", a2(st, pi, ks, xy)), 4, V2X, U[key]["addr"] - XS[0] + 4096 + xy * 1024))
    return out


def k2_steps(S, first, loadA, loadB, pend, check=False, late=(), final=None):
    for st in range(2):
        q0 = S.n()
        tiles = [(pi, xy, qi) for pi in range(5) for xy in range(2) for qi in range(6)]
        if final is not None and st == 1:
            tiles = [t for t in tiles if t[2] >= 3] + [t for t in tiles if t[2] < 3]
            for n, x in enumerate(final[0]):
                S.put(q0 + 2 + n, x)
            for n, x in enumerate(final[1]):
                S.put(q0 + 61 + 2 * n, x)
        for pi, xy, qi in tiles:
            for ks in range(2):
                acc = ("v", acc2(pi, xy, qi))
                S.add(mfma(16, acc, ("a", a2(st, pi, ks, xy)), ("a", b2(st, qi, ks)),
                           None if (first and st == 0 and ks == 0) else acc))
        pos = [int(0.5 + 3.75 * n) for n in range(32)]
        if pend[st]:
            ls = k2_loads_A(1 - st, 4)
            S.put(q0 + pos[0], ls[2])
            S.put(q0 + pos[1], ls[3])
            for n, x in enumerate(next_off(sA2, TA, sAB, 20480)):
                S.put(q0 + pos[1] + 1 + n, x)
        if first and st == 0:
            for n, (pre, l) in enumerate(late):
                S.put(q0 + 6 * n + 2, *pre)
                S.put(q0 + 6 * n + 3, l)
            for n, r in enumerate(k2_lds_A(1, 0) + k2_lds_A(1, 1) + k2_lds_A(1, 2)):
                S.put(q0 + 6 * n + 5 if n < 8 else q0 + 54 + 4 * (n - 8), r)
            S.put(q0 + 70, valu("v_add_u32", V2P, D[9] - D[5], V2P))
            for n, r in enumerate(k2_lds_A(1, 3)):
                S.put(q0 + 73 + 4 * n, r)
        elif loadB[st]:
            for n, l in enumerate([l for qi in range(6) for l in k2_loads_B(1 - st, qi)]):
                S.put(q0 + pos[2 + n], l)
            for n, x in enumerate(next_off(sB2, TB, sBB, 12288)):
                S.put(q0 + pos[13] + 1 + n, x)
        if loadA[st]:
            n = 14
            for pi in range(5):
                ls = k2_loads_A(st, pi)
                for x, l in enumerate(ls if pi < 4 else ls[:2]):
                    assert pos[n] >= 24 * pi + 11 + 12 * (x >> 1), (pi, x, pos[n])
                    S.put(q0 + pos[n], l)
                    n += 1
        if first and st == 1:
            S.put(q0 + 110, needvm(["ost"]), barrier())
            S.put(q0 + 111, valu("v_mov_b32", V2P, "0x100"))
            S.put(q0 + 114, atomic_add(V2P, sFG))
        if check and st == 1:
            S.put(q0 + 1, scmp("s_cmp_eq_u32", sCNT, 5), salu("s_cselect_b32", sWANT, 8, 0), salu("s_cselect_b32", sPL, sFG, "0x1000"))
            S.put(q0 + 2, poll_load(V2P, sPL))
        if check and st == 0:
            S.put(q0 + 1, valu("v_readfirstlane_b32", sQ, V2P))
            S.put(q0 + 6, salu("s_bfe_u32", sQ, sQ, "0x80008"), scmp("s_cmp_lt_u32", sQ, sWANT),
                  raw("s_cbranch_scc1 L_spin2", "branch", rd=["scc"]), label("L_spin2_back"))


def k2_first(S, late):
    seq = [(0, p) for p in range(4)] + [(1, p) for p in range(3)] + [(0, 4), (1, 3), (1, 4)]
    at = {}
    for st, pi in seq:
        at[(st, pi)] = S.n()
        for xy in range(2):
            for qi in range(6):
                for ks in range(2):
                    acc = ("v", acc2(pi, xy, qi))
                    S.add(mfma(16, acc, ("a", a2(st, pi, ks, xy)), ("a", b2(st, qi, ks)), None if (st == 0 and ks == 0) else acc))
    for n, (pre, l) in enumerate(late):
        S.put(13 * n + 2, *pre)
        S.put(13 * n + 3, l)
    assert 13 * len(late) < at[(0, 4)]
    g = 5
    for pi in range(4):
        if pi == 3:
            S.put(g, valu("v_add_u32", V2P, D[9] - D[5], V2P))
            g += 2
        for r in k2_lds_A(1, pi):
            while S.fixed.get(g):
                g += 1
            S.put(g, r)
            g += 4
    items = []
    for pi in range(5):
        for x, l in enumerate(k2_loads_A(0, pi, sSO)):
            items.append((l, at[(0, pi)] + 11 + 12 * (x >> 1), 240 + 24 * pi + 12 * (x >> 1)))
        for x, l in enumerate(k2_loads_A(1, pi)[:4 if pi < 4 else 2]):
            items.append((l, at[(1, pi)] + 11 + 12 * (x >> 1), 360 + 24 * pi + 12 * (x >> 1)))
    for qi in range(6):
        for ks, l in enumerate(k2_loads_B(0, qi)):
            items.append((l, at[(0, 4)] + 12 + 2 * qi + ks, 200 + 2 * qi + ks))
    items.sort(key=lambda i: i[2])
    g, lastB = 11, 0
    while items:
        c = [i for i in items if i[1] <= g]
        if c and not any(S.fixed.get(k) and any(j.kind in ("vld", "vst") for j in S.fixed[k]) for k in ((g - 2, g - 1, g + 1) if g < 180 else (g - 1, g + 1))) and not S.fixed.get(g):
            S.put(g, c[0][0])
            if sB2 in c[0][0].rd:
                lastB = g
            items.remove(c[0])
        g += 1
        assert g < 240, items
    for n, x in enumerate(next_off(sB2, TB, sBB, 12288)):
        S.put(lastB + 1 + n, x)
    g = 226
    while S.fixed.get(g) or S.fixed.get(g + 1) or S.fixed.get(g + 3):
        g += 1
    S.put(g, needvm(["ost"]), barrier())
    S.put(g + 1, valu("v_mov_b32", V2P, "0x100"))
    S.put(g + 3, atomic_add(V2P, sFG))


def spin(name, back, dsts, soffs, conds):
    o = [label(name), salu("s_mov_b32", sSPIN, 0), label(name + "_loop"), raw("s_sleep 8")]
    o += [poll_load(d, so) for d, so in zip(dsts, soffs)]
    o += [drain(), salu("s_add_u32", sSPIN, sSPIN, 1), scmp("s_cmp_gt_u32", sSPIN, "0x20000"),
          raw(f"s_cbranch_scc1 {back}", "branch", rd=["scc"])]
    for d, (sh, msk, want) in zip(dsts, conds):
        o += [valu("v_readfirstlane_b32", sQ, d), nop(4)]
        if sh:
            o += [salu("s_lshr_b32", sQ, sQ, sh)]
        if msk:
            o += [salu("s_and_b32", sQ, sQ, msk)]
        o += [scmp("s_cmp_lt_u32", sQ, want), raw(f"s_cbranch_scc1 {name}_loop", "branch", rd=["scc"])]
    o += [raw(f"s_branch {back}", "branch")]
    return o


def phase2():
    o = [valu("v_mov_b32", V2L, vL16), salu("s_and_b32", "s85", "s4", 3), salu("s_and_b32", "s32", sWAVE, 1), salu("s_lshr_b32", "s33", sWAVE, 1),
         salu("s_mul_i32", sAB, sWAVE, 16 * 20480), salu("s_lshr_b64", f"s[{TA}:{TA + 1}]", "s[34:35]", 4)]
    o += next_off(sB2, TB, sBB, 12288)
    o += [valu("v_add_u32", V2W, sW4K, V2L), salu("s_add_u32", "s7", sW6K, XS[0]), valu("v_add_u32", V2X, "s7", V2L)]
    o += [scmp("s_cmp_eq_u32", "s33", 0)]
    o += [salu("s_cselect_b32", f"s{47 + q}", q, 2 - q) for q in range(3)]
    o += [salu("s_cselect_b32", f"s{36 + pi}", pi, 4 - pi) for pi in range(5)]
    o += [salu("s_mul_i32", "s34", "s32", 3)]
    o += [salu("s_add_u32", f"s{47 + q}", f"s{47 + q}", "s34") for q in range(3)]
    save = list(vR)
    vR[:] = [f"v{16 + q}" for q in range(6)]
    nl = 12 if OPT["pace"] else 8
    eg = epilogue_groups(0, lambda n: 240 - 4 * (24 - n) - (0 if OPT["pace"] else 16) if n >= 24 - nl else 32 + 4 * n, V2L)
    vR[:] = save
    b1 = [l for qi in range(6) for l in k2_loads_B(1, qi)]
    for n, (v, pre, st, imm) in enumerate(eg):
        m = b1[2 * (n - 8):2 * (n - 8) + 2] if 8 <= n < 14 else []
        o += v[:8] + m[:1] + v[8:16] + m[1:] + v[16:]
        if OPT["pace"]:
            if n % 2 == 0:
                o += eg[n // 2][1] + [eg[n // 2][2]]
        elif n < 16:
            o += pre + [st]
        if n == 15:
            o += [needvm(list(sPF))]
            for pi in range(5):
                o += [salu("s_lshl_b32", "s7", f"s{36 + pi}", 12), valu("v_add_u32", V2A[pi], "s7", V2L)]
            o += next_off(sPL, TA, sAB, 20480)
            if OPT["pace"]:
                o += next_off(sSO, TA, sAB, 20480)
            o += next_off(sA2, TA, sAB, 20480)
        if 16 <= n < 21:
            o += k2_lds_A(0, n - 16)
    late = []
    for n, g in enumerate(eg[24 - nl:]):
        st = vstore(("v", 240 - 4 * (nl - n) - (0 if OPT["pace"] else 16)), 4, V2L, S_OST, sE, g[3], tag="ost", flags=SC1)
        late.append((g[1], st))
    o += k2_loads_A(1, 4, sPL) + [valu("v_add_u32", V2P, D[5], V2W)]
    o += next_off(sB2, TB, sBB, 12288) + [salu("s_mov_b32", sWANT, 0)]
    o += prof_stamp(1, 30)
    o += srd(S2OUT, "s92", "s93", 7864320)
    o += [salu("s_mul_i32", sOB, "s6", 192 * 2560), salu("s_mul_i32", "s7", "s84", 96 * 2560), salu("s_add_u32", sOB, sOB, "s7"),
          salu("s_mul_i32", "s7", "s5", 1280), salu("s_add_u32", sOB, sOB, "s7"),
          salu("s_mul_i32", "s7", "s85", 320), salu("s_add_u32", sOB, sOB, "s7"), salu("s_mov_b32", sCNT, 6)]
    S0 = Sched()
    if OPT["pace"]:
        k2_first(S0, late)
    else:
        k2_steps(S0, True, [True, True], [True, True], [False, True], late=late)
    S0.order_fixed()
    first = S0.build()
    S1 = Sched()
    k2_steps(S1, False, [True, True], [True, True], [True, True], check=True)
    if OPT["prof"]:
        S1.put(3, raw("s_memrealtime s[76:77]", wr=["s76", "s77"]), raw("s_waitcnt lgkmcnt(0)", "drainlg"),
               salu("s_mov_b32", "s101", "s100"), salu("s_mov_b32", "s100", "s99"), salu("s_mov_b32", "s99", "s98"),
               salu("s_mov_b32", "s98", "s97"), salu("s_mov_b32", "s97", "s96"), salu("s_mov_b32", "s96", "s76"))
    S1.put(237, salu("s_sub_u32", sCNT, sCNT, 1))
    S1.order_fixed()
    loop = [label("L_k2")] + S1.build() + [scmp("s_cmp_lg_u32", sCNT, 0), raw("s_cbranch_scc1 L_k2", "branch", rd=["scc"])]
    R1, R2, i, a, V2O = V2A[0], V2A[1], V2A[2], V2A[3], V2A[4]
    setup = [salu("s_mul_i32", "s7", sWAVE, 30720), valu("v_add_u32", V2W, "s7", V2L), valu("v_lshrrev_b32", i, 4, V2L),
             valu("v_and_b32", a, 15, i), valu("v_mul_u32_u24", a, 2560, a), valu("v_lshrrev_b32", i, 4, i),
             valu("v_lshl_add_u32", V2O, i, 4, a),
             salu("s_xor_b32", sPL, sWAVE, 1), salu("s_sub_u32", sPL, sPL, sWAVE), salu("s_mul_i32", "s7", sPL, 30720),
             valu("v_add_u32", R1, "s7", V2W),
             salu("s_xor_b32", sPL, sWAVE, 3), salu("s_sub_u32", sPL, sPL, sWAVE), salu("s_mul_i32", "s7", sPL, 30720),
             valu("v_add_u32", R2, "s7", V2W)]
    sent = [(pi, xy, qi) for pi in range(5) for qi in range(3, 6) for xy in range(2)]
    wr = {t: ds_write("ds_write_b128", V2W, ("v", acc2(*t)), 4, n * 1024) for n, t in enumerate(sent)}
    S2 = Sched()
    e = []
    if OPT["redov"]:
        order = [wr[(pi, xy, qi)] for pi in range(5) for xy in range(2) for qi in range(3, 6)]
        k2_steps(S2, False, [False, False], [True, False], [True, False], final=(setup, order[:29]))
        e = order[29:]
    else:
        k2_steps(S2, False, [False, False], [True, False], [True, False])
        e = setup + list(wr.values())
    S2.order_fixed()
    last = S2.build()
    e += [needlgkm0(), barrier()] + prof_stamp(8, 234)
    for s in list(range(7, 15)) + list(range(7)):
        pi, q = divmod(s, 3)
        e += [ds_read("ds_read_b128", ("v", acc2(pi, xy, q + 3)), 4, R1, (2 * s + xy) * 1024) for xy in range(2)]
    for s in list(range(7, 15)) + list(range(7)):
        pi, q = divmod(s, 3)
        d, t = acc2(pi, 0, q), acc2(pi, 0, q + 3)
        e += [valu("v_add_f32", f"v{d + r}", f"v{d + r}", f"v{t + r}") for r in range(8)]
        if s >= 7:
            e += [ds_write("ds_write_b128", R1, ("v", acc2(pi, xy, q)), 4, (2 * s + xy) * 1024) for xy in range(2)]
    e += [needlgkm0(), barrier()]
    for s in range(8):
        pi, q = divmod(s, 3)
        for xy in range(2):
            e += [ds_read("ds_read_b128", ("v", acc2(pi, xy, q + 3)), 4, R2, (2 * (14 - s) + xy) * 1024)]
    for s in range(8):
        pi, q = divmod(s, 3)
        d0, t0 = acc2(pi, 0, q), acc2(pi, 0, q + 3)
        e += [valu("v_add_f32", f"v{d0 + r}", f"v{d0 + r}", f"v{t0 + r}") for r in range(8)]
        e += [valu("v_cvt_pk_bf16_f32", f"v{d0 + r}", f"v{d0 + 2 * r}", f"v{d0 + 2 * r + 1}") for r in range(4)]
        e += [salu("s_mul_i32", "s7", f"s{47 + q}", 40960), salu("s_lshl_b32", sPL, f"s{36 + pi}", 6),
              salu("s_add_u32", "s7", "s7", sPL), salu("s_add_u32", sSO, "s7", sOB),
              vstore(("v", d0), 4, V2O, S2OUT, sSO, 0, flags=OPT["outf"])]
    e += prof_stamp(9, 234)
    if OPT["prof"]:
        for n in range(6):
            e += [valu("v_mov_b32", "v234", 1), valu("v_mov_b32", "v235", f"s{101 - n}"), pstore(234, 2 + n), nop(4)]
    if OPT["dbgt"]:
        a, b = {1: ("s76", "s78"), 2: ("s74", "s76")}[OPT["dbgt"]]
        e += [drain(), raw("s_memrealtime s[78:79]", wr=["s78", "s79"]), raw("s_waitcnt lgkmcnt(0)", "drainlg"),
              salu("s_sub_u32", a, a, "s72"), salu("s_sub_u32", b, b, "s72"),
              scmp("s_cmp_lt_u32", "s2", 8), salu("s_cselect_b32", "s7", "s2", "0x1000"), salu("s_lshl_b32", "s7", "s7", 2),
              valu("v_mov_b32", "v0", a), valu("v_mov_b32", "v1", b),
              Ins(f"buffer_store_dword v0, {vFLG}, s[{S_FLG}:{S_FLG + 3}], s7 offen", "vst", rd=["v0", vFLG, "s7"]),
              Ins(f"buffer_store_dword v1, {vFLG}, s[{S_FLG}:{S_FLG + 3}], s7 offen offset:32", "vst", rd=["v1", vFLG, "s7"])]
    e += [label("L_end"), raw("s_endpgm")]
    sp1 = spin("L_spin1", "L_spin1_back", vPOLL[:1], [sFG], [(0, "0xff", 8)]) + spin("L_spin3", "L_spin3_back", vPOLL[1:], [sFB], [(16, 0, 128)])
    sp2 = spin("L_spin2", "L_spin2_back", [V2P], [sFG], [(8, "0xff", 8)])
    return o, first, loop, last, e, sp1, sp2


def kernel():
    pro = prologue()
    q1 = q_phase(False)
    full = []
    for last in (False, True):
        _alt[0] = 0
        full.append(a_phase(last))
    cut = [[n for n, x in enumerate(f) if x.text == "L_CUT:"][0] for f in full]
    assert [x.text for x in full[0][:cut[0]]] == [x.text for x in full[1][:cut[1]]]
    att = [label("L_att")] + full[0][:cut[0]]
    tails = []
    for v in range(2):
        t = ([label("L_tail2")] if v else []) + full[v][cut[v] + 1:]
        t += [raw("s_cbranch_vccnz L_slow", "branch", rd=["vcc"]), label(f"L_back{v + 1}")]
        t += [valu("v_rcp_f32", f"v{16 + qt}" if v else vR[qt], f"v{lacc(qt)}") for qt in range(6)]
        if OPT["dbgt"]:
            t += [raw(f"s_memrealtime s[{74 + 2 * v}:{75 + 2 * v}]", wr=[f"s{74 + 2 * v}", f"s{75 + 2 * v}"]), raw("s_waitcnt lgkmcnt(0)", "drainlg")]
        t += prof_stamp(29)
        if OPT["prof"]:
            t += [salu("s_add_u32", sPROF, sPROF, 240)]
        tails.append(t)
    q2 = [salu("s_mov_b32", sIT, 1), label("L_q2")] + q_phase(True) + [raw("s_branch L_att", "branch")]
    o, first, loop2, last, e, sp1, sp2 = phase2()
    slow = slow_path()
    parts = [pro, q1, att, tails[0], q2, tails[1], o, first, loop2, last, e, slow, sp1, sp2]
    waits = compute_waits([pro + q1 + att + tails[0] + q2 + att + tails[1] + o + first + loop2 + loop2 + loop2 + last + e, slow, sp1, sp2])
    done = {}
    P = [apply_waits(x, waits, done) for x in parts]
    pads = pad_hazards([P[0] + P[1] + P[2] + P[3] + P[4] + P[2] + P[5] + P[6] + P[7] + P[8] + P[8] + P[9] + P[10], P[11], P[12], P[13]])
    al = ".p2align 3\n"
    return (emit(P[0] + P[1], pads) + al + emit(P[2] + P[3] + P[4], pads) + al + emit(P[5] + P[6] + P[7], pads) + al +
            emit(P[8] + P[9] + P[10] + P[11] + P[12] + P[13], pads) + "L_endcode:\n")


def main():
    kn = NAME + "_kernel"
    s = open("cdna_kernels/" + NAME + ".s.ref").read().split("; Override launch")[0]
    s += "; @launch grid=(256,1,1) block=(256,1,1) lds=163840\n"
    s += '.amdgcn_target "amdgcn-amd-amdhsa--gfx950"\n.text\n'
    s += f".globl {kn}\n.p2align 8\n.type {kn},@function\n{kn}:\n" + kernel()
    s += f""".section .rodata,"a"
.p2align 6
.amdhsa_kernel {kn}
  .amdhsa_next_free_vgpr 512
  .amdhsa_next_free_sgpr 102
  .amdhsa_accum_offset 256
  .amdhsa_group_segment_fixed_size 0
  .amdhsa_kernarg_size 104
  .amdhsa_user_sgpr_count 2
  .amdhsa_user_sgpr_kernarg_segment_ptr 1
  .amdhsa_system_sgpr_workgroup_id_x 1
.end_amdhsa_kernel
"""
    open(sys.argv[1], "w").write(s)


main()
```

```python
import sys, math, struct
from fw3 import *
from orders import orders
import alloc3

NAME = "concat_heads__mha_block_cached__mha_block_cached__near_ridge"
OPT = dict(outf=' sc1', redov=1, one1=1, warmj=0, pk=1, pfq1=1, rot2=4, gate=0, pace=1, lead=3, xpace=0, kvf=' nt', norot=0, tlbw=0, kpro=0, kplan=0, jlate=1, dbgt=0, jpro=0, k1s=0, e10=1, t23=0, nfree=1, kstep10=134, ks1=0, kn1=0, kfirst=6, k2late=0, qsp=1, rotq1=2, gstep=2, rotq=3, early=1, uni=0, prof=0, report=False, stg=67, warmw=True, codepf=2, codepf2=14, pf='', pf0=1, pfn=3, pff='', flagbar=12, map=0)
for a in sys.argv[2:]:
    k, v = a.split("=")
    OPT[k] = type(OPT[k])(int(v)) if not isinstance(OPT[k], str) else v

KB = 1024
SC1 = " sc1"
O_GRP = 2 * 786432
WS_WOT = 50331648
WOT_BLK = 5242880
WS_PROF = 64 * 1024 * 1024

S_K, S_V, S_X, S_WQ, S_OST, S_WO, S_WOT = 8, 12, 16, 20, 24, 28, 32
sKV, sWQ, sX, sW4K, sW6K, sO, sIT, sT0, sT1, sC, sWAVE = ["s%d" % i for i in range(36, 47)]
sWOS, sWOD, sWOX, sW5K, sHI, sLO = ["s%d" % i for i in range(47, 53)]
sPROF, sE, sJ = "s53", "s54", "s55"
sQT, sWS, sXS, sW1 = "s50", "s67", "s95", "s63"
sROT, sFG, sFB, sCP = "s62", "s65", "s66", "s64"
sA2, sB2, sPL, sOB, sCNT, sSO, sQ, sSH, sWANT, sSPIN = "s28", "s29", "s30", "s31", "s67", "s68", "s69", "s70", "s71", "s94"
S_PROF, S_FLG = 72, 80
sPF = {("W", 0, 0): ["s84"], ("W", 0, 1): ["s85"], ("X", 0): ["s86", "s87"], ("X", 1): ["s98", "s99"], ("W", 1, 0): ["s100"], ("W", 1, 1): ["s101"],
       ("P", 0): ["s60"], ("P", 1): ["s61"]}
PF2 = {"s84": (0, 0, 0), "s85": (0, 1, 0), "s86": (0, 2, 0), "s98": (0, 3, 0), "s100": (0, 4, 0), "s101": (1, 0, 0),
       "s87": (1, 1, 0), "s99": (1, 1, 2048), "s60": (1, 2, 0), "s61": (1, 3, 0)}
vK = ["v%d" % i for i in range(192, 196)]
vV = ["v196", "v197"]
vW = ["v%d" % i for i in range(198, 202)]
vX = ["v%d" % i for i in range(202, 206)]
kA = ["v%d" % i for i in range(206, 210)]
vA = ["v%d" % i for i in range(210, 218)]
wA = ["v218", "v219"]
xA = ["v220", "v221"]
vJ, vL16 = "v222", "v223"
ONES = 224
EPI = 228
vR = ["v%d" % i for i in range(244, 250)]
vFLG = "v250"
vT = ["v252", "v253"]
vC2 = "v[242:243]"
vPOLL = ["v254", "v255"]

V2B = ["v245", "v246", "v247", "v248", "v249", "v251"]
V2L, V2W, V2P, V2X = "v252", "v254", "v255", "v253"
S2A, S2B, S2OUT = S_WQ, S_X, 8
TA, TB, sAB, sBB = 56, 62, "s43", "s44"

D = [i * 16 * KB for i in range(10)]
XS = [96 * KB, 120 * KB]
WOJ_ADDR = D[4]


def qacc(p, xy, qt):
    return 64 * (qt >> 1) + (2 * p + (qt & 1)) * 8 + 4 * xy


def qf(qt, p):
    return 64 * (qt >> 1) + (2 * p + (qt & 1)) * 4


def sreg(qt):
    return 64 * (qt >> 1) + 32 + 8 * (qt & 1)


def lacc(qt):
    return 64 * (qt >> 1) + 48 + 4 * (qt & 1)


ABUF = [192, 248]


def bx(qt, ks):
    return 200 + 8 * qt + 4 * ks


def kf(kt, ks):
    return 192 + 16 * kt + 4 * ks


def vf(dt):
    return 224 + 4 * dt


def oacc(qt, dt):
    return 32 * qt + 4 * dt


def kpos(k):
    n1 = OPT["kn1"]
    return 2 + OPT["ks1"] / 10.0 * min(k, n1) + OPT["kstep10"] / 10.0 * max(k - n1, 0)


def build_units():
    U = {}
    for i in range(10):
        U[("X", i)] = dict(addr=XS[i % 2], size=24 * KB, iss=i - 2.5, land=i - 1, rel=i - 0.5)
        U[("W", i, 0)] = dict(addr=D[2 * (i % 2)], size=16 * KB, iss=i - 2.5, land=i - 1, rel=i - 0.5)
        U[("W", i, 1)] = dict(addr=D[2 * (i % 2) + 1], size=16 * KB, iss=i - 2, land=i - 0.5, rel=i)
    for k, e in ((("X", 0), -4), (("W", 0, 0), -4), (("W", 0, 1), -4), (("X", 1), -3), (("W", 1, 0), -3), (("W", 1, 1), -3)):
        U[k]["iss"] = e
    pages = [9, 5, 4, 6, 0, 7, 1, 8, 2, 3, 9, 4, 5, 6, 0, 1, 7, 2, 8, 3, 9, 4, 5, 6, 0, 7, 1, 8, 2, 9, 5, 4]
    if OPT["kstep10"]:
        (_, pages), kiss, leads = alloc3.plan(0, OPT["kfirst"], pos=kpos, head=[9, 5, 4, 6, 1 if OPT["k2late"] else 0, 7, 1, 8])
        if OPT["report"]:
            print("; leads", [round(x, 1) for x in leads])
    for u in range(32):
        key = ("K", u // 2) if u % 2 == 0 else ("V", u // 2)
        N = 10 + u // 2 + u % 2
        U[key] = dict(addr=D[pages[u]], size=16 * KB, iss=N - 5 + (u == 30), land=N - 1, rel=N)
        if OPT["kstep10"] and u >= OPT["kfirst"]:
            U[key].update(iss=kiss[u], even=u - OPT["kfirst"])
    U[("V", 1)]["iss"] = U[("K", 2)]["iss"] = 7.5
    if "even" not in U[("V", 2)]:
        U[("V", 2)]["iss"] = 8.5
    if OPT["k2late"]:
        U[("K", 2)]["iss"] = 8
    if OPT["kstep10"]:
        if OPT["kfirst"] == 8:
            U[("V", 3)]["iss"] = 8.5
        return U
    if OPT["e10"] < 2:
        U[("K", 4)]["iss"] = 10
    if OPT["e10"] < 1:
        U[("V", 3)]["iss"] = 10
    if OPT["t23"]:
        U[("W", 0, 0)]["iss"] = U[("W", 1, 1)]["iss"] = -5
    return U


def check_units(second):
    V = {k: dict(u) for k, u in U.items()}
    if second:
        V[("K", 0)]["iss"] = V[("V", 0)]["iss"] = -2
        V[("K", 1)]["iss"] = -1
    else:
        V[("J",)] = dict(addr=D[4], size=32 * KB, iss=-1, land=2, rel=3)
        V[("J", 2)] = dict(addr=D[9], size=16 * KB, iss=0, land=2, rel=3)
        V[("K", 0)]["iss"], V[("V", 0)]["iss"], V[("K", 1)]["iss"] = 3, 4, 5
    allu = [(k, u["addr"], u["addr"] + u["size"], u["iss"], u["rel"]) for k, u in V.items()]
    assert all(u["iss"] < u["land"] <= u["rel"] for u in V.values())
    if second:
        allu += [(k, u["addr"], u["addr"] + u["size"], u["iss"] - 27, u["rel"] - 27) for k, u in U.items() if k[0] in "KV" and k[1] > 2]
        allu += [(("P", n), D[p], D[p] + 16 * KB, 25, 27) for n, p in enumerate((5, 9))]
        allu += [(k, u["addr"], u["addr"] + u["size"], u["iss"] + 27, 40) for k, u in U.items() if u["iss"] is not None and u["iss"] < -2.6]
    for a in allu:
        for b in allu:
            if a is not b and a[1] < b[2] and b[1] < a[2]:
                assert a[4] <= b[3] or b[4] <= a[3], (a, b)


U = build_units()
U[("K", 0)]["iss"] = U[("V", 0)]["iss"] = U[("K", 1)]["iss"] = None
PADDR = {("P", 0): D[5], ("P", 1): D[9]}
_alt = [0]


def next_st():
    _alt[0] ^= 1
    return [sT0, sT1][_alt[0]]


def unit_dmas(key, tmp=None):
    kind = key[0]
    if kind == "P":
        return [([salu("s_add_u32", "m0", sW4K, PADDR[key])], [dma(vW[m], S_WQ, sPF[key][0], 1024 * m, key, SC1) for m in range(4)])]
    if kind == "J":
        jj = key[1]
        sT = tmp
        pre = [salu("s_add_u32", sT, sWOS, jj * 128), salu("s_add_u32", "m0", sW4K, D[(4, 5, 9)[jj >> 2]] + (jj & 3) * 1024)]
        return [(pre, [dma(vX[0], S_WO, sT, 0, "J", " nt")])]
    u = U[key]
    if key in sPF:
        if kind == "W":
            return [([salu("s_add_u32", "m0", sW4K, u["addr"])], [dma(vW[m], S_WQ, sPF[key][0], 1024 * m, key, SC1) for m in range(4)])]
        return [([salu("s_add_u32", "m0", sW6K, u["addr"])], [dma(vX[m], S_X, sPF[key][0], 1024 * m, key, SC1) for m in range(4)]),
                ([salu("s_add_u32", "m0", sW6K, u["addr"] + 4096)], [dma(vX[m], S_X, sPF[key][1], 1024 * m, key, SC1) for m in range(2)])]
    sT = tmp or next_st()
    if kind in "KV":
        pre = [salu("s_add_u32", sT, sROT, key[1] * 8192), salu("s_and_b32", sT, sT, "0x1ffff"), salu("s_add_u32", sT, sT, sKV),
               salu("s_add_u32", "m0", sW4K, u["addr"])]
        if kind == "K":
            return [(pre, [dma(vK[m], S_K, sT, 1024 * m, key, OPT["kvf"]) for m in range(4)])]
        return [(pre, [dma(vV[m & 1], S_V, sT, 1024 * m, key, OPT["kvf"]) for m in range(4)])]
    if kind == "W":
        return [([salu("s_add_u32", "m0", sW4K, u["addr"])], [dma(vW[m], S_WQ, sW1 if key[2] else sWS, 1024 * m, key) for m in range(4)])]
    g0 = ([salu("s_add_u32", "m0", sW6K, u["addr"])], [dma(vX[m], S_X, sXS, 1024 * m, key) for m in range(4)])
    pre2 = [salu("s_add_u32", sT, sXS, 40960), salu("s_add_u32", "m0", sW6K, u["addr"] + 4096)]
    return [g0, (pre2, [dma(vX[m], S_X, sT, 1024 * m, key) for m in range(2)])]


def set_pf_proj(tail=False):
    o = []
    for key, rs in sPF.items():
        if key[0] == "P":
            continue
        if key[0] == "W":
            o += [salu("s_add_u32", rs[0], sWQ, key[1] * 524288 + key[2] * 128)]
        else:
            o += [salu("s_add_u32", rs[0], sX, key[1] * 128), salu("s_add_u32", rs[1], sX, key[1] * 128 + 40960)]
    return o


ORD2 = orders(16, 4, 8, 7, {1: [4], 2: [1, 1, 2, 2, 2, 0, 0], 3: [1, 2, 2, 2, 1, 0, 0], 4: [2, 1, 2, 2, 1, 0, 0]}[OPT["rot2"]])[0] if OPT["rot2"] else [list(range(16))] * 4
ORDQ = orders(10, 4, None, 0, {1: [1, 1, 2, 2, 2, 1, 1], 2: [1, 1, 4], 3: [1, 1, 2, 2, 1, 1, 1, 1]}[OPT["rotq"]])[0] if OPT["rotq"] else [list(range(10))] * 4
assert all(o[:2] == [0, 1] for o in ORDQ)
TBLQ = [sum(x << (4 * n) for n, x in enumerate(o[2:])) for o in ORDQ]
ORDQ1 = {0: ORDQ, 1: orders(10, 4, None, 0, [4])[0], 2: orders(10, 4, None, 0, [2, 2, 2, 1, 1, 1, 1])[0], 3: orders(10, 4, None, 0, [4, 0, 1, 1, 1, 1, 1, 1])[0]}[OPT["rotq1"]]
TBLQ1 = [sum(x << (4 * n) for n, x in enumerate(o[2:])) for o in ORDQ1]
TBLQ0 = [o[0] | o[1] << 4 for o in ORDQ1]


def by_role(dst, role, consts):
    o = [salu("s_mov_b32", dst, "0x%x" % consts[0])]
    for r in range(1, 4):
        o += [[scmp("s_cmp_eq_u32", role, r), salu("s_cselect_b32", dst, "0x%x" % consts[r], dst)]]
    return o


TBL2 = [sum(x << (4 * n) for n, x in enumerate(o)) for o in ORD2]


def next_off(dst, tbl, base, stride):
    return [salu("s_and_b32", dst, f"s{tbl}", 15), salu("s_lshr_b64", f"s[{tbl}:{tbl + 1}]", f"s[{tbl}:{tbl + 1}]", 4),
            salu("s_mul_i32", dst, dst, stride), salu("s_add_u32", dst, dst, base)]


def set_pf_out():
    o = [salu("s_and_b32", "s68", "s4", 3), salu("s_mul_i32", "s68", "s68", 1310720), salu("s_mul_i32", "s69", "s5", WOT_BLK),
         salu("s_add_u32", "s68", "s68", "s69"), salu("s_add_u32", "s68", "s68", WS_WOT)]
    o += [[salu("s_add_u32", f"s{S_WQ}", "s90", "s68"), salu("s_addc_u32", "s69", "s91", 0)]]
    o += [salu("s_and_b32", f"s{S_WQ + 1}", "s69", "0xffff"), salu("s_mov_b32", f"s{S_WQ + 2}", 1310720),
          salu("s_mov_b32", f"s{S_X}", f"s{S_WQ}"), salu("s_mov_b32", f"s{S_X + 1}", f"s{S_WQ + 1}"), salu("s_mov_b32", f"s{S_X + 2}", 1310720)]
    o += [salu("s_lshr_b32", "s70", sWAVE, 1), salu("s_mul_i32", "s68", sWAVE, 16 * 20480), salu("s_lshl_b32", "s69", "s70", 14),
          salu("s_add_u32", "s68", "s68", "s69"), salu("s_lshl_b32", "s69", "s70", 13), salu("s_sub_u32", "s69", 4096, "s69")]
    o += [salu("s_add_u32", "s70", "s3", "s4"), salu("s_and_b32", "s70", "s70", 3),
          salu("s_mov_b32", "s34", "0x%x" % (TBL2[0] & 0xffffffff)), salu("s_mov_b32", "s35", "0x%x" % (TBL2[0] >> 32))]
    for r in range(1, 4):
        o += [[scmp("s_cmp_eq_u32", "s70", r), salu("s_cselect_b32", "s34", "0x%x" % (TBL2[r] & 0xffffffff), "s34"),
               salu("s_cselect_b32", "s35", "0x%x" % (TBL2[r] >> 32), "s35")]]
    o += [salu("s_and_b32", "s70", "s34", 15), salu("s_mul_i32", "s70", "s70", 20480), salu("s_add_u32", "s70", "s70", "s68"),
          salu("s_bfe_u32", "s71", "s34", "0x40004"), salu("s_mul_i32", "s71", "s71", 20480), salu("s_add_u32", "s71", "s71", "s68")]
    for r, (st, pi, off) in PF2.items():
        o += [salu("s_mul_i32", r, "s69", pi), salu("s_add_u32", r, r, "s71" if st else "s70")]
        if off:
            o += [salu("s_add_u32", r, r, off)]
    return o


def groups_at(iss):
    order = {"W": 0, "X": 1, "K": 2, "V": 2}
    keys = sorted([k for k, u in U.items() if u["iss"] is not None and u["iss"] % 27 == iss % 27 and "even" not in u],
                  key=lambda k: (U[k]["land"] - U[k]["iss"], order[k[0]], k))
    return [g for k in keys for g in unit_dmas(k)]


def place_dmas(S, groups, cand, lo):
    ci = 0
    for pre, ds in groups:
        g = cand[ci]
        for n, p in enumerate(pre):
            S.put(max(lo, g - len(pre) + n), p)
        for d in ds:
            S.put(cand[ci], d)
            ci += 1


def tags_for(n):
    t = [k for k, u in U.items() if (u["land"] - n) % 27 == 0]
    if n == OPT["flagbar"]:
        t += ["ost", "jst"]
    if n == 2:
        t += ["J"]
    return t


def atomic_add(vdata, soff):
    return Ins(f"buffer_atomic_add {vdata}, {vFLG}, s[{S_FLG}:{S_FLG + 3}], {soff} offen sc1", "atomic",
               rd=[vdata, vFLG, soff] + regs("s", S_FLG, 4), tag="flag")


def poll_load(vdst, soff):
    return Ins(f"buffer_load_dword {vdst}, off, s[{S_FLG}:{S_FLG + 3}], {soff} sc1", "vld", rd=[soff] + regs("s", S_FLG, 4), wr=[vdst])


class Win:
    def __init__(self, rs, init):
        self.rs = rs
        self.cur = init

    def move(self, new):
        d = (new - self.cur) & 0xffffffff
        self.cur = new
        return [valu("v_add_u32", r, "0x%x" % d, r) for r in self.rs] if d else []


def plan_windows(addrs, span):
    want = []
    i = 0
    while i < len(addrs):
        lo = hi = addrs[i]
        j = i + 1
        while j < len(addrs) and max(hi, addrs[j]) - min(lo, addrs[j]) + span < 65536:
            lo, hi = min(lo, addrs[j]), max(hi, addrs[j])
            j += 1
        want += [lo] * (j - i)
        i = j
    return want


KWANT = plan_windows([U[("K", t)]["addr"] for t in range(16)], 4096)
VWANT = plan_windows([U[("V", t)]["addr"] for t in range(16)], 4096)
check_units(False)
check_units(True)


def pstore(v0, idx):
    return Ins(f"buffer_store_dwordx2 v[{v0}:{v0 + 1}], off, s[{S_PROF}:{S_PROF + 3}], {sPROF} offset:{8 * idx}", "vst",
               rd=[f"v{v0}", f"v{v0 + 1}", sPROF] + regs("s", S_PROF, 4))


def prof_stamp(idx, v0=252):
    if not OPT["prof"]:
        return []
    return [raw("s_memtime s[76:77]", "other", wr=["s76", "s77"]),
            raw("s_memrealtime s[78:79]", "other", wr=["s78", "s79"]),
            raw("s_waitcnt lgkmcnt(0)", "drainlg"),
            valu("v_mov_b32", f"v{v0}", "s76"),
            valu("v_mov_b32", f"v{v0 + 1}", "s78"),
            pstore(v0, idx)]


def bar_seq(tags, idx):
    if OPT["prof"] < 2:
        return [needboth(tags), barrier()] + prof_stamp(idx)
    return [raw("s_memtime s[58:59]", "other", wr=["s58", "s59"]), raw("s_waitcnt lgkmcnt(0)", "drainlg"),
            needboth(tags), barrier(),
            raw("s_memtime s[76:77]", "other", wr=["s76", "s77"]),
            raw("s_memrealtime s[78:79]", "other", wr=["s78", "s79"]),
            raw("s_waitcnt lgkmcnt(0)", "drainlg"), salu("s_sub_u32", "s76", "s76", "s58"),
            valu("v_mov_b32", "v252", "s76"), valu("v_mov_b32", "v253", "s78"), pstore(252, idx)]


def a_read(i, dt, ks, t):
    p, xy = dt >> 1, dt & 1
    off = U[("W", i, p >> 1)]["addr"] + ks * 4096 + t * 512 + xy * 8
    return ds_read("ds_read_b64_tr_b16", ("a", ABUF[dt % 2] + 4 * ks + 2 * t), 2, wA[p & 1], off)


def first_reads(i):
    ax = U[("X", i)]["addr"] - XS[0]

    def A(ks, t):
        return a_read(i, 0, ks, t)

    def B(qt, ks):
        return ds_read("ds_read_b128", ("a", bx(qt, ks)), 4, xA[ks], ax + qt * 2048)
    return [A(0, 0), A(0, 1), B(0, 0), A(1, 0), A(1, 1), B(0, 1)] + [B(qt, ks) for qt in range(1, 6) for ks in range(2)]


def k_read(t, j):
    kt, ks = j >> 2, j & 3
    return ds_read("ds_read_b128", ("a", kf(kt, ks)), 4, kA[ks], U[("K", t)]["addr"] - KWANT[t] + kt * 4096)


def epilogue_groups(tmp, dst=None, vaddr=None):
    groups = []
    n = 0
    for T in range(3):
        for ph in range(2):
            for qs in range(2):
                for pl in range(2):
                    qt = 2 * T + qs
                    tb = tmp + 4 * (n % 3)
                    src = oacc(qt, 4 * ph + 2 * pl)
                    db = tb if dst is None or dst(n) is None else dst(n)
                    rd = [valu("v_accvgpr_read_b32", f"v{tb + i}", f"a{src + i}") for i in range(8)]
                    mu = [valu("v_mul_f32", f"v{tb + i}", vR[qt], f"v{tb + i}") for i in range(8)]
                    cv = [valu("v_cvt_pk_bf16_f32", f"v{db + i}", f"v{tb + 2 * i}", f"v{tb + 2 * i + 1}") for i in range(4)]
                    pre = [salu("s_add_u32", sE, sO, ph * 12288 + T * 4096)] if qs == 0 and pl == 0 else []
                    imm = qs * 2048 + pl * 1024
                    groups.append((rd + mu + cv, pre, vstore(("v", db), 4, vaddr or vL16, S_OST, sE, imm, tag="ost", flags=SC1), imm))
                    n += 1
    return groups


def conv_items(T, ps, packed=()):
    out = []
    for p in ps:
        for qs in range(2):
            R, Dd = qacc(p, 0, 2 * T + qs), qf(2 * T + qs, p)
            if p in packed:
                out += [(p, qs, valu("v_pk_mul_f32", f"v[{R + x}:{R + x + 1}]", f"v[{R + x}:{R + x + 1}]", "s[86:87]" if False else vC2)) for x in range(0, 8, 2)]
            else:
                out += [(p, qs, valu("v_mul_f32", f"v{R + x}", sC, f"v{R + x}")) for x in range(8)]
            out += [(p, qs, valu("v_cvt_pk_bf16_f32", f"v{Dd + x}", f"v{R + 2 * x}", f"v{R + 2 * x + 1}")) for x in range(4)]
    return out


def q_phase(second):
    S = Sched()
    extra, mid = {}, {}
    if second:
        extra[OPT["k1s"]] = unit_dmas(("K", 1), sJ)
    else:
        jp = OPT["jpro"]
        if jp == 0:
            extra[0] = [g for jj in range(5) for g in unit_dmas(("J", jj), sE)]
            extra[1] = [g for jj in range(5, 10) for g in unit_dmas(("J", jj), sE)]
        elif jp < 10:
            extra[1] = [g for jj in range(jp, 10) for g in unit_dmas(("J", jj), sE)]
        kv = [unit_dmas(k, sE) for k in [("K", 0), ("V", 0), ("K", 1)]]
        if OPT["kplan"] == 0:
            extra[4], extra[5], extra[6] = kv
        elif OPT["kplan"] == 1:
            extra[7], mid[8] = kv[0], kv[1]
            extra[8] = kv[2]
        elif OPT["kplan"] == 2:
            extra[4], extra[7], mid[8] = kv
        elif OPT["kplan"] == 4:
            extra[5], extra[6], extra[7] = kv
        elif OPT["kplan"] == 5:
            extra[4], extra[6], extra[7] = kv
        elif OPT["kplan"] == 3:
            extra[5], extra[7], mid[8] = kv
    for i in range(10):
        q0 = S.n()
        for dt in range(8):
            for qt in range(6):
                for ks in range(2):
                    acc = ("v", qacc(dt >> 1, dt & 1, qt))
                    S.add(mfma(16, acc, ("a", ABUF[dt % 2] + 4 * ks), ("a", bx(qt, ks)), None if (i == 0 and ks == 0) else acc))
        for dt in range(1, 8):
            gaps = [4, 5, 6, 7] if dt == 1 else [0, 2, 3, 4]
            for n, (ks, t) in enumerate([(0, 0), (0, 1), (1, 0), (1, 1)]):
                S.put(q0 + 12 * (dt - 1) + gaps[n], a_read(i, dt, ks, t))
        S.put(q0 + 35, needboth(tags_for(i - 0.5)), barrier())
        S.put(q0 + 83, *bar_seq(tags_for(i), 2 + i))
        if i < 9:
            for n, r in enumerate(first_reads(i + 1)):
                S.put(q0 + 84 + n, r)
        else:
            kw = Win(kA, KWANT[15])
            mv = kw.move(KWANT[0])
            S.put(q0 + 80, *mv[:2])
            S.put(q0 + 82, *mv[2:])
            for j in range(8):
                S.put(q0 + 84 + j, k_read(0, j))
        if i <= 7:
            for n, x in enumerate([salu("s_bfe_u32", sXS, sQT, "0x%x" % (0x40000 + 4 * i)), salu("s_lshl_b32", sWS, sXS, 19),
                                   salu("s_add_u32", sWS, sWS, sWQ), salu("s_lshl_b32", sXS, sXS, 7), salu("s_add_u32", sXS, sXS, sX),
                                   salu("s_add_u32", sW1, sWS, 128)]):
                S.put(q0 + 26 + n, x)
        early = groups_at(i - 1) if i else []
        place_dmas(S, early + mid.get(i, []), [q0 + g for g in ((9, 17, 25, 33) if OPT["qsp"] and i == 9 else (9, 13, 17, 21, 25, 29, 31, 33))], q0)
        late = groups_at(i - 0.5) + extra.get(i, [])
        if i == 8 and 8 in extra:
            late = extra[8] + groups_at(i - 0.5)
        cand = [q0 + 37 + 4 * x for x in range(12)]
        nd = sum(len(g[1]) for g in late)
        if nd > 12:
            cand = sorted(cand + [q0 + 67, q0 + 71, q0 + 75, q0 + 79][:nd - 12])
        if OPT["qsp"] and i >= 8 and nd:
            allowed = [37, 41, 43, 45, 47, 49, 53, 55, 57, 59, 61, 65, 67, 69, 71, 73, 77, 79, 81]
            cand = [q0 + allowed[round(x * (len(allowed) - 1) / max(nd - 1, 1))] for x in range(nd)]
        place_dmas(S, late, cand, q0 + 35)
    if not second:
        for jj in range(10):
            q0 = 96 * 3
            if jj == 8:
                S.put(q0 + 65, valu("v_add_u32", vJ, D[9] - D[4] - 2 * 16384, vJ))
            for tt in range(2):
                g = q0 + [10, 11, 18, 19, 22, 23, 30, 31, 34, 42, 43, 46, 47, 54, 55, 58, 66, 67, 70, 71][2 * jj + tt]
                S.put(g, ds_read("ds_read_b64_tr_b16", ("a", 4 * jj + 2 * tt), 2, vJ, (jj >> 2) * 16384 + (jj & 3) * 1024 + tt * 8192))
            nq, pair = divmod(2 * jj, 5)
            g = 96 * (4 + jj // 3) + [19, 25, 31][jj % 3]
            if OPT["jlate"]:
                g = 96 * (3 + jj // 2) + ([79, 82] if (3 + jj // 2) in extra else [77, 81])[jj % 2]
            S.put(g - 1, salu("s_add_u32", sJ, sWOX if pair == 4 else sWOD, nq * 1310720 + pair * 4096))
            S.put(g, vstore(("a", 4 * jj), 4, vL16, S_WOT, sJ, 0, tag="jst", flags=SC1))
    if second:
        eg = epilogue_groups(EPI)
        ep = []
        for i in range(8):
            for g in eg[3 * i:3 * i + 3]:
                ep += [(x, 96 * i, None) for x in g[0]]
            for g in eg[3 * i:3 * i + 3]:
                ep += [(x, 96 * i + OPT["stg"], None) for x in g[1] + [g[2]]]
        ep[-1] = (ep[-1][0], ep[-1][1], 96 * 9 - 1)
        S.stream(ep)
        S.put(96 * 9 + 2, salu("s_add_u32", sO, sO, 8 * 12288))
    q0 = 96 * 9
    g = q0 + 2
    for x in ([salu("s_add_u32", sWQ, sWQ, 512)] + set_pf_proj(True) + [salu("s_add_u32", "s68", "s3", "s4"), salu("s_and_b32", "s68", "s68", 3)] + by_role(sQT, "s68", TBLQ) if not second else set_pf_out()):
        S.put(g, *(x if isinstance(x, list) else [x]))
        g += 1 if g < q0 + 94 else 0
        while g in (q0 + 35, q0 + 83) or any(x.kind == "salu" for x in S.fixed.get(g, [])):
            g += 1
    if second:
        S.stream([(valu("v_mov_b32", r, vL16), q0 + 2, None) for r in vW + vX])
    S.put(q0 + 7, valu("v_mov_b32", "v242", sC), valu("v_mov_b32", "v243", sC))
    S.stream([(x, min(q0 + 12 * (2 * p + 1) + 2 * qs + 1 + 2, q0 + 95), None) for p, qs, x in conv_items(0, range(4))])
    S.put(-1, *prof_stamp(1))
    return S.finish(lead=first_reads(0), report=OPT["report"])


def lspread(qt, tmp):
    l = f"v{lacc(qt)}"
    return [valu("v_mov_b32", tmp, l), perm("v_permlane32_swap_b32", tmp, l), valu("v_add_f32", l, l, tmp),
            valu("v_mov_b32", tmp, l), perm("v_permlane16_swap_b32", tmp, l), valu("v_add_f32", l, l, tmp)]


def interleave(a, b):
    return [x for p in zip(a, b) for x in p]


def lcheck():
    l = [f"v{lacc(qt)}" for qt in range(6)]
    return [valu("v_add_f32", vT[0], l[0], l[1]), valu("v_min3_f32", vT[1], l[0], l[1], l[2]),
            valu("v_add_f32", vT[0], vT[0], l[2]), valu("v_min3_f32", vT[1], vT[1], l[3], l[4]),
            valu("v_add_f32", vT[0], vT[0], l[3]), valu("v_add_f32", vT[0], vT[0], l[4]),
            valu("v_min_f32", vT[1], vT[1], l[5]), valu("v_add_f32", vT[0], vT[0], l[5]),
            valu("v_cmp_nlt_f32", "s[56:57]", sLO, vT[1]),
            valu("v_cmp_ngt_f32", "vcc", sHI, vT[0]),
            salu("s_or_b64", "vcc", "vcc", "s[56:57]")]


def a_phase(last):
    S = Sched()
    qk = [[0] * 3 for _ in range(16)]
    pv = [[0] * 3 for _ in range(16)]

    def QK(t, T):
        qk[t][T] = S.n()
        for qs in range(2):
            for kt in range(2):
                s = ("v", sreg(2 * T + qs) + 4 * kt)
                for ks in range(4):
                    S.add(mfma(16, s, ("a", kf(kt, ks)), ("v", qf(2 * T + qs, ks)), None if ks == 0 else s))

    def PV(t, T):
        pv[t][T] = S.n()
        sums = []
        for qs in range(2):
            l = ("v", lacc(2 * T + qs))
            sums.append(mfma(16, l, ("v", ONES), ("v", sreg(2 * T + qs)), None if t == 0 else l))
        if t == 15:
            for m in sums:
                S.add(m)
        for dt in range(8):
            for qs in range(2):
                o = ("a", oacc(2 * T + qs, dt))
                S.add(mfma(16, o, ("a", vf(dt)), ("v", sreg(2 * T + qs)), None if t == 0 else o))
        if t < 15:
            for m in sums:
                S.add(m)

    for t in range(16):
        QK(t, 0)
        if t:
            PV(t - 1, 1)
        QK(t, 1)
        if t:
            PV(t - 1, 2)
        QK(t, 2)
        PV(t, 0)
    PV(15, 1)
    PV(15, 2)
    bar = {}
    kw, vw = Win(kA, KWANT[0]), Win(vA, VWANT[0])
    for t in range(16):
        g0 = pv[t - 1][2] if t else qk[0][1]
        bar[10 + t] = g0 - 1
        S.put(g0 - 1, *bar_seq(tags_for(10 + t), 12 + t))
        if t == 15:
            S.put(g0 - 1, scmp("s_cmp_eq_u32", sIT, 1), raw("s_cbranch_scc1 L_tail2", "branch", rd=["scc"]), label("L_CUT"))
        for n, m in enumerate(vw.move(VWANT[t])):
            S.put(g0 - 14 + 3 * (n // 2), m)
        for dt in range(8):
            for tt in range(2):
                S.put(g0 + 4 * dt + 1 + 2 * tt,
                      ds_read("ds_read_b64_tr_b16", ("a", vf(dt) + 2 * tt), 2, vA[dt], U[("V", t)]["addr"] - VWANT[t] + tt * 4096))
        if t < 15:
            for n, m in enumerate(kw.move(KWANT[t + 1])):
                S.put((qk[t][0] + 9 if t else qk[0][2] + 2) + (3 if t else 2) * (n // 2), m)
            for j in range(8):
                S.put(qk[t][2] + [8, 10, 12, 14, 17, 19, 21, 23][j], k_read(t + 1, j))
    if not last:
        S.stream([(m, pv[15][0], None) for m in vw.move(VWANT[0])])
    bar[26] = pv[15][1] - 1
    S.put(bar[26], *(prof_stamp(28) if last else bar_seq(tags_for(26), 28)))
    fr = [] if last else first_reads(0)
    for n, r in enumerate(fr[:10]):
        S.put(pv[15][1] + [1, 3, 5, 7, 9, 11, 13, 15, 16, 17][n], r)
    for n, r in enumerate(fr[10:]):
        S.put(pv[15][2] + 3 + 2 * n, r)
    lastkv = 0
    for key in sorted([k for k, u in U.items() if "even" in u], key=lambda k: U[k]["even"]):
        cand = []
        for m in range(4):
            g = int(kpos(4 * U[key]["even"] + m))
            while S.used(g, False) > 0 or g - 1 in bar.values():
                g += 1
            cand.append(g)
        lo = bar.get(U[key]["iss"], -2) + 1
        assert cand[0] > lo
        place_dmas(S, unit_dmas(key), cand, lo)
        lastkv = cand[-1]
    for n in range(10, 27):
        groups = groups_at(n - 1)
        if n == 26:
            groups = [g for k in ([("P", 0), ("P", 1)] if last else [("K", 0), ("V", 0)]) for g in unit_dmas(k)]
        nd = sum(len(g[1]) for g in groups)
        if n == 10:
            cand = [(16 // max(nd, 1)) * x for x in range(nd)]
            lo = -1
        else:
            lo = bar[n - 1] + 1
            if n == 11 or n == 26 or OPT["uni"]:
                a = lo + 5
            else:
                a = qk[n - 10][0] + 1 if nd <= 8 else pv[n - 11][0] + 6
            a = max(a, lastkv + 3)
            b = bar[n] - 1
            cand = []
            for x in range(nd):
                g = a + (b - a) * x // nd
                while any(i.kind in MEMK for i in S.fixed.get(g, [])) or g in cand:
                    g += 1
                cand.append(g)
            assert not cand or cand[-1] < bar[n]
        place_dmas(S, groups, cand, lo)
    if OPT["xpace"]:
        for t in range(1, 14):
            for T in range(3):
                S.put(pv[t][T] + 17, nop(OPT["xpace"]))
                S.put(qk[t][T] + 15, nop(OPT["xpace"]))
    S.put(qk[14][0] - 3, salu("s_add_u32", sKV, sKV, 262144))
    g = bar[OPT["flagbar"]] + 2
    S.put(g - 1, scmp("s_cmp_eq_u32", sIT, 0), salu("s_cselect_b32", sE, sFB, sFG), salu("s_cselect_b32", sJ, "0x10000", 1))
    S.put(g + 1, valu("v_mov_b32", f"v{EPI}", sJ))
    S.put(g + 4, atomic_add(f"v{EPI}", sE))
    g = qk[12 - OPT['t23']][0]
    S.put(g + 1, scmp("s_cmp_eq_u32", sIT, 1), salu("s_cselect_b32", sE, sFB, "0x1000"))
    S.put(g + 3, poll_load(vPOLL[1], sE))
    g = qk[13 - OPT['t23']][0]
    S.put(g + 1, salu("s_lshl_b32", sWANT, sIT, 23), valu("v_readfirstlane_b32", sQ, vPOLL[1]))
    S.put(g + 4, scmp("s_cmp_lt_u32", sQ, sWANT), raw("s_cbranch_scc1 L_spin3", "branch", rd=["scc"]), label("L_spin3_back"))
    if last:
        g = bar[25] + 2
        S.put(g, poll_load(vPOLL[0], sFG))
        su = [salu("s_lshr_b32", "s84", "s4", 2), salu("s_mul_i32", "s7", "s3", O_GRP), salu("s_mul_i32", "s58", "s84", 786432),
              salu("s_add_u32", "s7", "s7", "s58"), [salu("s_add_u32", f"s{S2B}", "s90", "s7"), salu("s_addc_u32", "s59", "s91", 0)],
              salu("s_and_b32", f"s{S2B + 1}", "s59", "0xffff"), salu("s_mov_b32", f"s{S2B + 2}", 786432),
              salu("s_mul_i32", sBB, sWAVE, 16 * 12288), salu("s_mov_b64", f"s[{TB}:{TB + 1}]", "s[34:35]")] + next_off(sB2, TB, sBB, 12288)
        su += [salu("s_and_b32", "s58", sWAVE, 1), salu("s_mul_i32", "s58", "s58", 3 * 2048), salu("s_sub_u32", "s59", 3 * 2048, "s58"),
               salu("s_lshr_b32", "s85", sWAVE, 1), salu("s_lshl_b32", "s85", "s85", 12), salu("s_add_u32", "s58", "s58", "s85"),
               salu("s_add_u32", "s59", "s59", "s85"), salu("s_sub_u32", "s85", 2048, "s85")]
        g += 1
        for x in su:
            while any(i.kind == "salu" for i in S.fixed.get(g, [])):
                g += 1
            S.put(g, *(x if isinstance(x, list) else [x]))
            g += 1
        va = [valu("v_add_u32", V2B[0], "s58", vL16), valu("v_add_u32", V2B[3], "s59", vL16)]
        for q in (1, 2):
            va += [valu("v_add_u32", V2B[q], "s85", V2B[q - 1]), valu("v_add_u32", V2B[3 + q], "s85", V2B[2 + q])]
        S.stream([(x, g, pv[15][1] - 3) for x in va])
        g = pv[15][0] + 12
        S.put(g, valu("v_readfirstlane_b32", sQ, vPOLL[0]))
        S.put(g + 3, salu("s_and_b32", sQ, sQ, "0xff"), scmp("s_cmp_lt_u32", sQ, 8),
              raw("s_cbranch_scc1 L_spin1", "branch", rd=["scc"]), label("L_spin1_back"))
        for n, l in enumerate([l for qi in range(6) for l in k2_loads_B(0, qi)]):
            S.put(pv[15][1] + 1 + 2 * n if n < 8 else pv[15][2] + 3 + 3 * (n - 8), l)
    if OPT["codepf2"]:
        g = qk[OPT["codepf2"]][0] - 6
        S.put(g - 2, salu("s_mul_i32", sJ, sIT, "L_tail2-L_q2"))
        S.put(g - 1, salu("s_add_u32", sJ, sJ, "L_q2-L_pc"))
        S.put(g, salu("s_add_u32", sJ, sJ, sCP))
        S.put(g + 1, salu("s_min_u32", sJ, sJ, "L_endcode-L_pc-256"))
        S.put(g + 2, valu("v_and_b32", f"v{EPI + 2}", 16, vL16), valu("v_lshlrev_b32", f"v{EPI + 2}", 3, f"v{EPI + 2}"))
        S.put(g + 3, valu("v_add_u32", f"v{EPI + 2}", sJ, f"v{EPI + 2}"))
        S.put(g + 5, Ins(f"global_load_dword v{EPI + 3}, v{EPI + 2}, s[96:97]", "vld", rd=[f"v{EPI + 2}", "s96", "s97"], wr=[f"v{EPI + 3}"]))
    for T in (1, 2):
        if OPT["pk"]:
            nfree = OPT["nfree"] if T == 1 else 0
            S.stream([(x, -1, None) for p, qs, x in conv_items(T, range(nfree))] +
                     [(x, qk[0][T] - 1, qk[0][T] - 1) for p, qs, x in conv_items(T, range(nfree, 4), packed=range(4))])
        else:
            c = [(x, -1, None) for p, qs, x in conv_items(T, range(4))]
            c[-1] = (c[-1][0], -1, qk[0][T] - 1)
            S.stream(c)
    fin = []
    if OPT["one1"]:
        for T in range(3):
            fin += [(x, [pv[15][1] + 12, pv[15][2], pv[15][2] + 4][T], None) for x in interleave(lspread(2 * T, f"v{lacc(2 * T) + 1}"), lspread(2 * T + 1, f"v{lacc(2 * T + 1) + 1}"))]
    S.stream(fin + [(x, pv[15][2] + 4, None) for x in lcheck()])
    units = []
    for t in range(16):
        for qt in range(6):
            s = sreg(qt)
            T, qs = qt >> 1, qt & 1
            dl = pv[t][T] + qs - 2
            units.append(dict(e=qk[t][T] + 8 * qs + 7 + 2,
                              exps=[valu("v_exp_f32", f"v{s + r}", f"v{s + r}") for r in range(8)],
                              cvts=[(valu("v_cvt_pk_bf16_f32", f"v{s + r}", f"v{s + 2 * r}", f"v{s + 2 * r + 1}"), 2 * r + 2, dl) for r in range(4)]))
    S.packers.append(SoftmaxPacker(units))
    return S.finish(lead=[k_read(0, j) for j in range(8)], report=OPT["report"])


def slow_path():
    o = [label("L_slow"), drain(), nop(16)]
    KF = [EPI + 4 * k for k in range(4)]
    VFR = 56
    vM = [f"v{120 + q}" for q in range(6)]
    vKo, vVo, vt, vu = "v60", "v61", "v62", "v63"
    o += [valu("v_lshrrev_b32", vt, 4, vL16), valu("v_and_b32", vu, 15, vt), valu("v_lshrrev_b32", vt, 4, vt),
          valu("v_lshlrev_b32", vKo, 8, vu), valu("v_lshl_add_u32", vKo, vt, 4, vKo),
          valu("v_lshlrev_b32", vVo, 10, vt), valu("v_lshl_add_u32", vVo, vu, 1, vVo)]
    o += [salu("s_sub_u32", "s58", sKV, 262144)]
    o += [valu("v_mov_b32", m, "0xff800000") for m in vM]

    def scores():
        r = []
        for kt in range(2):
            r += [salu("s_add_u32", "s61", "s59", kt * 4096)]
            r += [vload(("v", KF[ks]), 4, vKo, S_K, "s61", 64 * ks) for ks in range(4)] + [drain()]
            for qt in range(6):
                s = ("v", sreg(qt) + 4 * kt)
                r += [mfma(16, s, ("v", KF[ks]), ("v", qf(qt, ks)), None if ks == 0 else s) for ks in range(4)]
            r += [nop(16)]
        return r
    o += [salu("s_mov_b32", "s59", "s58"), salu("s_mov_b32", "s60", 16), label("L_slow1")] + scores()
    for qt in range(6):
        o += [valu("v_max3_f32", vM[qt], vM[qt], f"v{sreg(qt) + r}", f"v{sreg(qt) + r + 1}") for r in range(0, 8, 2)]
    o += [salu("s_add_u32", "s59", "s59", 8192), salu("s_sub_u32", "s60", "s60", 1), scmp("s_cmp_lg_u32", "s60", 0),
          raw("s_cbranch_scc1 L_slow1", "branch", rd=["scc"])]
    for qt in range(6):
        for op in ("v_permlane32_swap_b32", "v_permlane16_swap_b32"):
            o += [valu("v_mov_b32", vt, vM[qt]), nop(2), perm(op, vt, vM[qt]), valu("v_max_f32", vM[qt], vM[qt], vt)]
        o += [valu("v_mov_b32", f"v{lacc(qt) + r}", 0) for r in range(4)]
    o += [valu("v_accvgpr_write_b32", f"a{r}", 0) for r in range(192)]
    o += [salu("s_mov_b32", "s59", "s58"), salu("s_mov_b32", "s60", 16), label("L_slow2")] + scores()
    for qt in range(6):
        s = sreg(qt)
        o += [valu("v_sub_f32", f"v{s + r}", f"v{s + r}", vM[qt]) for r in range(8)]
        o += [valu("v_exp_f32", f"v{s + r}", f"v{s + r}") for r in range(8)]
        o += [valu("v_cvt_pk_bf16_f32", f"v{s + r}", f"v{s + 2 * r}", f"v{s + 2 * r + 1}") for r in range(4)]
    o += [salu("s_add_u32", "s57", "s59", 4096)]
    for dt in range(8):
        for j in range(8):
            o += [vload(("v", 184 + j), 1, vVo, S_V, "s57" if j >= 4 else "s59", (j & 3) * 256 + 32 * dt, op="buffer_load_ushort")]
        o += [drain()]
        o += [valu("v_lshl_or_b32", f"v{VFR + r}", f"v{185 + 2 * r}", 16, f"v{184 + 2 * r}") for r in range(4)]
        o += [mfma(16, ("a", oacc(qt, dt)), ("v", VFR), ("v", sreg(qt)), ("a", oacc(qt, dt))) for qt in range(6)]
        o += [nop(8)]
    o += [mfma(16, ("v", lacc(qt)), ("v", ONES), ("v", sreg(qt)), ("v", lacc(qt))) for qt in range(6)] + [nop(16)]
    o += [salu("s_add_u32", "s59", "s59", 8192), salu("s_sub_u32", "s60", "s60", 1), scmp("s_cmp_lg_u32", "s60", 0),
          raw("s_cbranch_scc1 L_slow2", "branch", rd=["scc"])]
    o += [nop(16)]
    if OPT["one1"]:
        for qt in range(6):
            o += lspread(qt, vt)
    o += [drain(), scmp("s_cmp_eq_u32", sIT, 1), raw("s_cbranch_scc1 L_back2", "branch", rd=["scc"]), raw("s_branch L_back1", "branch")]
    return o


def srd(base, lo, hi, nbytes):
    return [salu("s_mov_b32", f"s{base}", lo), salu("s_and_b32", f"s{base + 1}", hi, "0xffff"),
            salu("s_mov_b32", f"s{base + 2}", nbytes), salu("s_mov_b32", f"s{base + 3}", "0x20000")]


def decode_wg():
    return [salu("s_and_b32", "s3", "s2", 7), salu("s_lshr_b32", "s4", "s2", 6), salu("s_lshl_b32", "s3", "s3", 2),
            salu("s_add_u32", "s3", "s3", "s4"), salu("s_lshr_b32", "s4", "s2", 3), salu("s_and_b32", "s4", "s4", 7),
            salu("s_lshr_b32", "s5", "s3", 4), salu("s_and_b32", "s6", "s3", 15)]


def code_touch():
    return [salu("s_lshr_b32", "s68", "s2", 3), salu("s_lshl_b32", "s68", "s68", 11),
            valu("v_lshrrev_b32", "v11", 6, "v0"), valu("v_and_b32", "v12", 3, "v0"), valu("v_lshlrev_b32", "v11", 9, "v11"),
            valu("v_lshl_add_u32", "v11", "v12", 7, "v11"), valu("v_add_u32", "v11", "s68", "v11"),
            Ins("global_load_dword v253, v11, s[96:97]", "vld", rd=["v11", "s96", "s97"], wr=["v253"])]


def kv_patterns():
    i, a, b, c = "v1", "v2", "v3", "v4"
    o = [valu("v_lshrrev_b32", a, 4, i), valu("v_and_b32", b, 15, i),
         valu("v_xor_b32", c, a, b), valu("v_lshlrev_b32", c, 4, c), valu("v_lshl_add_u32", vK[0], a, 8, c)]
    o += [valu("v_xor_b32", vK[m], m << 6, vK[0]) for m in range(1, 4)]
    o += [valu("v_lshlrev_b32", "v5", 1, a), valu("v_xor_b32", "v5", "v5", b), valu("v_lshlrev_b32", "v5", 4, "v5"),
          valu("v_lshl_add_u32", vV[0], a, 8, "v5"), valu("v_xor_b32", vV[1], 128, vV[0])]
    return o


def prologue():
    o = [scmp("s_cmp_ge_u32", "s2", 256), raw("s_cbranch_scc1 L_end", "branch", rd=["scc"])]
    o += [raw("s_getpc_b64 s[96:97]", wr=["s96", "s97"]), label("L_pc")]
    if OPT["dbgt"]:
        o += [raw("s_memrealtime s[72:73]", wr=["s72", "s73"])]
    if OPT["codepf"] == 2:
        o += code_touch()
    o += decode_wg()
    o += [salu("s_mul_i32", "s7", "s5", 40), salu("s_add_u32", "s68", "s0", "s7"), salu("s_addc_u32", "s69", "s1", 0),
          raw("s_load_dwordx8 s[56:63], s[68:69], 0", wr=regs("s", 56, 8)),
          raw("s_load_dwordx2 s[94:95], s[68:69], 32", wr=["s94", "s95"]),
          raw("s_load_dwordx4 s[88:91], s[0:1], 88", wr=regs("s", 88, 4)),
          raw("s_load_dwordx2 s[92:93], s[0:1], 80", wr=["s92", "s93"])]
    i, a, b, c = "v1", "v2", "v3", "v4"
    o += [valu("v_lshrrev_b32", a, 6, "v0"), valu("v_and_b32", i, 63, "v0"),
          valu("v_readfirstlane_b32", sWAVE, a), valu("v_lshlrev_b32", vL16, 4, i)]
    o += [valu("v_lshrrev_b32", a, 4, i), valu("v_and_b32", b, 7, i), valu("v_lshrrev_b32", "v5", 3, i),
          valu("v_and_b32", c, 1, a), valu("v_lshlrev_b32", c, 1, c), valu("v_xor_b32", c, c, b), valu("v_lshlrev_b32", c, 4, c),
          valu("v_lshl_add_u32", vW[0], "v5", 13, c),
          valu("v_xor_b32", vW[1], 64, vW[0]), valu("v_add_u32", vW[1], 64512, vW[1]),
          valu("v_add_u32", vW[2], 2 * 64512, vW[0]), valu("v_add_u32", vW[3], 2 * 64512, vW[1])]
    o += [valu("v_xor_b32", c, a, b), valu("v_lshlrev_b32", c, 4, c), valu("v_mul_u32_u24", "v6", 1280, "v5"),
          valu("v_add_u32", vX[0], "v6", c),
          valu("v_xor_b32", vX[1], 64, vX[0]), valu("v_add_u32", vX[1], 9216, vX[1]),
          valu("v_add_u32", vX[2], 2 * 9216, vX[0]), valu("v_add_u32", vX[3], 2 * 9216, vX[1])]
    o += [salu("s_lshr_b32", "s70", sWAVE, 1), salu("s_and_b32", "s71", sWAVE, 1),
          salu("s_lshl_b32", sW4K, sWAVE, 12), salu("s_mul_i32", sW6K, sWAVE, 6144),
          salu("s_lshl_b32", "s7", "s4", 2), salu("s_add_u32", "s7", "s7", "s70"),
          salu("s_lshl_b32", sWQ, "s71", 18), salu("s_lshl_b32", sT0, "s7", 8), salu("s_add_u32", sWQ, sWQ, sT0),
          salu("s_mul_i32", sX, "s6", 245760), salu("s_mul_i32", sT0, sWAVE, 61440), salu("s_add_u32", sX, sX, sT0)]
    o += [raw("s_waitcnt lgkmcnt(0)", "drainlg")]
    o += srd(S_X, "s56", "s57", 3932160) + srd(S_WQ, "s62", "s63", 5242880)
    o += [salu("s_add_u32", "s68", "s3", "s4"), salu("s_and_b32", "s68", "s68", 3)]
    for x in by_role("s69", "s68", TBLQ0):
        o += x if isinstance(x, list) else [x]
    for st in range(2):
        o += [salu("s_bfe_u32", sT0, "s69", "0x%x" % (0x40000 + 4 * st)), salu("s_lshl_b32", sT1, sT0, 19), salu("s_lshl_b32", sT0, sT0, 7),
              salu("s_add_u32", sPF[("W", st, 0)][0], sT1, sWQ), salu("s_add_u32", sPF[("X", st)][0], sT0, sX),
              salu("s_add_u32", sPF[("W", st, 1)][0], sPF[("W", st, 0)][0], 128), salu("s_add_u32", sPF[("X", st)][1], sPF[("X", st)][0], 40960)]
    for k in [("W", 0, 0), ("X", 0), ("W", 0, 1), ("W", 1, 0), ("X", 1), ("W", 1, 1)]:
        for pre, ds in unit_dmas(k):
            o += pre[::-1] + ds
    if OPT["warmw"]:
        o += [salu("s_mul_i32", "s68", "s6", 40 * 8192), salu("s_lshl_b32", "s69", "s4", 10), salu("s_add_u32", "s68", "s68", "s69"),
              salu("s_mul_i32", "s69", sWAVE, 10 * 8192), salu("s_add_u32", "s68", "s68", "s69"),
              valu("v_lshlrev_b32", b, 7, b), valu("v_lshl_add_u32", "v6", "v5", 13, b), valu("v_and_b32", c, 1, "v5"),
              valu("v_lshl_add_u32", c, c, 13, b), salu("s_add_u32", "s69", "s68", 8 * 8192)]
        o += [vload(("v", 254), 1, "v6", S_WQ, "s68", 0), vload(("v", 255), 1, c, S_WQ, "s69", 0)]
    o += [salu("s_lshr_b32", "s68", "s2", 3), salu("s_lshl_b32", "s68", "s68", 2), salu("s_add_u32", "s68", "s68", sWAVE), salu("s_lshl_b32", sCP, "s68", 8)]
    if OPT["codepf"] == 1:
        o += code_touch()
    o += srd(S_WO, "s94", "s95", 5242880)
    o += [salu("s_lshl_b32", "s68", "s6", 3), salu("s_add_u32", "s68", "s68", "s4"),
          salu("s_mul_i32", sWOS, "s68", 40960), salu("s_mul_i32", sT0, sWAVE, 10240), salu("s_add_u32", sWOS, sWOS, sT0)]
    for jj in range(OPT["jpro"]):
        for pre, ds in unit_dmas(("J", jj), sE):
            o += pre[::-1] + ds
    o += srd(S_K, "s58", "s59", 67108864) + srd(S_V, "s60", "s61", 67108864)
    o += srd(S_OST, "s90", "s91", WS_WOT) + srd(S_FLG, "s88", "s89", 256)
    o += [salu("s_add_u32", "s68", "s90", WS_WOT), salu("s_addc_u32", "s69", "s91", 0)] + srd(S_WOT, "s68", "s69", 2 * WOT_BLK)
    o += [salu("s_lshl_b32", sFG, "s3", 2), salu("s_lshl_b32", sFB, "s5", 6)]
    if OPT["dbgt"]:
        o += [salu("s_add_u32", sFG, sFG, 128), salu("s_add_u32", sFB, sFB, 128)]
    o += [
          valu("v_cmp_eq_u32", "vcc", 0, "v0"), valu("v_mov_b32", "v10", "0x1000"), valu("v_mov_b32", f"v{ONES}", "0x3f803f80"),
          valu("v_cndmask_b32", vFLG, "v10", 0, "vcc"),
          ]
    if OPT["one1"]:
        o += [valu("v_and_b32", "v10", 15, "v0"), valu("v_cmp_eq_u32", "vcc", 0, "v10"), valu("v_cndmask_b32", f"v{ONES}", 0, f"v{ONES}", "vcc")]
    o += [valu("v_mov_b32", f"v{ONES + r}", f"v{ONES}") for r in range(1, 4)]
    if OPT["prof"]:
        o += [salu("s_add_u32", "s68", "s90", WS_PROF), salu("s_addc_u32", "s69", "s91", 0)] + srd(S_PROF, "s68", "s69", 1 << 20)
        o += [salu("s_lshl_b32", sPROF, "s2", 2), salu("s_add_u32", sPROF, sPROF, sWAVE), salu("s_lshl_b32", sPROF, sPROF, 10)]
        o += prof_stamp(0, 8)
    o += [salu("s_lshl_b32", sKV, "s6", 5), salu("s_add_u32", sKV, sKV, "s7"), salu("s_lshl_b32", sKV, sKV, 17),
          salu("s_lshl_b32", sT0, "s71", 12),
          salu("s_lshr_b32", sROT, "s2", 3), salu("s_lshl_b32", sT1, "s2", 1), salu("s_add_u32", sROT, sROT, sT1),
          salu("s_and_b32", sROT, sROT, 0 if OPT["norot"] else 15), salu("s_lshl_b32", sROT, sROT, 13), salu("s_add_u32", sROT, sROT, sT0)]
    if OPT["tlbw"]:
        for n, (r, so) in enumerate(((S_K, sKV), (S_V, sKV), (S_WO, sWOS))):
            o += [Ins(f"buffer_load_dword v{244 + n}, off, s[{r}:{r + 3}], {so} nt", "vld", rd=[so] + regs("s", r, 4))]
    if OPT["kpro"]:
        o += kv_patterns()
        for k in [("K", 0), ("V", 0), ("K", 1)][:OPT["kpro"]]:
            for pre, ds in unit_dmas(k, sE):
                o += pre + [nop(1)] + ds
    o += [salu("s_mul_i32", sO, "s3", O_GRP), salu("s_mul_i32", sT0, "s71", 786432), salu("s_add_u32", sO, sO, sT0),
          salu("s_lshr_b32", sT0, "s4", 1), salu("s_mul_i32", sT0, sT0, 16 * 12288), salu("s_add_u32", sO, sO, sT0),
          salu("s_and_b32", sT0, "s4", 1), salu("s_mul_i32", sT0, sT0, 4 * 12288), salu("s_add_u32", sO, sO, sT0),
          salu("s_mul_i32", sT0, "s70", 2 * 12288), salu("s_add_u32", sO, sO, sT0)]
    o += [salu("s_lshl_b32", "s68", "s6", 3), salu("s_add_u32", "s68", "s68", "s4"),
          salu("s_lshr_b32", sT0, "s68", 1), salu("s_and_b32", sT1, sT0, "0x33"),
          salu("s_and_b32", "s69", sT0, 4), salu("s_lshl_b32", "s69", "s69", 1), salu("s_or_b32", sT1, sT1, "s69"),
          salu("s_and_b32", "s69", sT0, 8), salu("s_lshr_b32", "s69", "s69", 1), salu("s_or_b32", sT1, sT1, "s69"),
          salu("s_mul_i32", sWOD, sT1, 20480),
          salu("s_and_b32", sT0, "s68", 1), salu("s_lshl_b32", sT0, sT0, 11), salu("s_add_u32", sWOD, sWOD, sT0),
          salu("s_mul_i32", sT0, "s5", WOT_BLK), salu("s_add_u32", sWOD, sWOD, sT0),
          salu("s_lshl_b32", sT0, "s70", 12), salu("s_add_u32", sWOD, sWOD, sT0),
          salu("s_lshl_b32", sT0, "s71", 10), salu("s_add_u32", sWOD, sWOD, sT0),
          salu("s_mul_i32", sT0, "s70", 1310720 - 20480), salu("s_add_u32", sWOX, sWOD, sT0)]
    o += [salu("s_add_u32", "s68", "s3", "s4"), salu("s_and_b32", "s68", "s68", 3)]
    for x in by_role(sQT, "s68", TBLQ1):
        o += x if isinstance(x, list) else [x]
    cbits = struct.unpack("<I", struct.pack("<f", math.log2(math.e) / math.sqrt(128.0)))[0]
    o += [salu("s_mov_b32", sC, "0x%x" % cbits), salu("s_mov_b32", sHI, "0x4e800000"), salu("s_mov_b32", sLO, "0x30800000"),
          salu("s_mov_b32", sIT, 0)]
    if not OPT["kpro"]:
        o += kv_patterns()
    o += [salu("s_lshl_b32", "s69", "s70", 13), salu("s_mul_i32", "s68", "s71", 12288), salu("s_add_u32", "s68", "s68", XS[0]),
          valu("v_bfe_u32", "v8", i, 2, 2), valu("v_and_b32", "v9", 3, i)]
    o += [valu("v_lshl_add_u32", c, b, 8, c), valu("v_add_u32", c, KWANT[15], c), valu("v_add_u32", kA[0], "s69", c)]
    o += [valu("v_xor_b32", kA[j], j << 6, kA[0]) for j in range(1, 4)]
    o += [valu("v_lshl_add_u32", "v5", a, 2, "v8"), valu("v_lshlrev_b32", c, 8, "v5"), valu("v_and_b32", "v6", 7, "v5"),
          valu("v_lshl_add_u32", c, "v6", 5, c), valu("v_lshl_add_u32", c, "v9", 3, c),
          valu("v_add_u32", c, VWANT[0], c), valu("v_add_u32", vA[0], "s69", c)]
    o += [valu("v_xor_b32", vA[d], d << 5, vA[0]) for d in range(1, 8)]
    o += [valu("v_lshl_add_u32", c, a, 3, "v8"), valu("v_lshlrev_b32", c, 7, c),
          valu("v_and_b32", "v5", 2, "v8"), valu("v_and_b32", "v7", 1, a), valu("v_lshl_add_u32", "v5", "v7", 2, "v5"),
          valu("v_xor_b32", "v5", "v5", "v9"), valu("v_lshl_add_u32", c, "v5", 4, c), valu("v_add_u32", wA[0], "s69", c),
          valu("v_xor_b32", wA[1], 64, wA[0])]
    o += [valu("v_lshrrev_b32", "v5", 1, b), valu("v_xor_b32", "v5", "v5", a),
          valu("v_lshlrev_b32", "v5", 4, "v5"), valu("v_lshl_add_u32", c, b, 7, "v5"),
          valu("v_xor_b32", "v5", 64, c), valu("v_add_u32", xA[0], "s68", c), valu("v_add_u32", xA[1], "s68", "v5")]
    o += [salu("s_lshl_b32", "s68", "s70", 2), salu("s_lshl_b32", "s69", "s71", 3), salu("s_add_u32", "s69", "s69", WOJ_ADDR),
          valu("v_lshrrev_b32", c, 1, a), valu("v_lshlrev_b32", c, 12, c), valu("v_lshl_add_u32", c, "v6", 7, c),
          valu("v_add_u32", c, "s69", c), valu("v_add_u32", "v5", "s68", "v9"), valu("v_lshrrev_b32", "v6", 1, "v6"),
          valu("v_xor_b32", "v5", "v5", "v6"), valu("v_lshl_add_u32", vJ, "v5", 4, c)]
    o += [needvm([("W", 0, 0), ("X", 0)]), barrier()] + first_reads(0)
    return o


def acc2(pi, xy, qi):
    return ((pi * 6 + qi) * 2 + xy) * 4


def a2(st, pi, ks, xy):
    if st == 0:
        return (240 if pi == 0 else 48 + 16 * pi) + 8 * ks + 4 * xy
    return (48 if pi == 0 else 112 + 16 * pi) + 8 * ks + 4 * xy


def b2(st, qi, ks):
    return (192 if st == 0 else 0) + 8 * qi + 4 * ks


V2A = ["v%d" % i for i in range(240, 245)]


def k2_loads_A(st, pi, soff=None):
    return [vload(("a", a2(st, pi, ks, xy)), 4, V2A[pi], S2A, soff or sA2, ks * 2048 + xy * 1024, flags=SC1) for xy in range(2) for ks in range(2)]


def k2_loads_B(st, qi):
    return [vload(("a", b2(st, qi, ks)), 4, V2B[qi], S2B, sB2, ks * 1024, flags=SC1) for ks in range(2)]


def k2_lds_A(st, pi):
    out = []
    for xy in range(2):
        for ks in range(2):
            r = [r for r, (s_, p_, off) in PF2.items() if (s_, p_) == (st, pi) and (r not in ("s87", "s99") or off == 2048 * ks)][0]
            key = [k for k, rs in sPF.items() if r in rs][0]
            if key[0] == "W":
                out.append(ds_read("ds_read_b128", ("a", a2(st, pi, ks, xy)), 4, V2W, U[key]["addr"] + ks * 2048 + xy * 1024))
            elif key[0] == "P":
                out.append(ds_read("ds_read_b128", ("a", a2(st, pi, ks, xy)), 4, V2P, ks * 2048 + xy * 1024))
            elif r == sPF[key][0]:
                out.append(ds_read("ds_read_b128", ("a", a2(st, pi, ks, xy)), 4, V2X, U[key]["addr"] - XS[0] + ks * 2048 + xy * 1024))
            else:
                out.append(ds_read("ds_read_b128", ("a", a2(st, pi, ks, xy)), 4, V2X, U[key]["addr"] - XS[0] + 4096 + xy * 1024))
    return out


def k2_steps(S, first, loadA, loadB, pend, check=False, late=(), final=None):
    for st in range(2):
        q0 = S.n()
        tiles = [(pi, xy, qi) for pi in range(5) for xy in range(2) for qi in range(6)]
        if final is not None and st == 1:
            tiles = [t for t in tiles if t[2] >= 3] + [t for t in tiles if t[2] < 3]
            for n, x in enumerate(final[0]):
                S.put(q0 + 2 + n, x)
            for n, x in enumerate(final[1]):
                S.put(q0 + 61 + 2 * n, x)
        for pi, xy, qi in tiles:
            for ks in range(2):
                acc = ("v", acc2(pi, xy, qi))
                S.add(mfma(16, acc, ("a", a2(st, pi, ks, xy)), ("a", b2(st, qi, ks)),
                           None if (first and st == 0 and ks == 0) else acc))
        pos = [int(0.5 + 3.75 * n) for n in range(32)]
        if pend[st]:
            ls = k2_loads_A(1 - st, 4)
            S.put(q0 + pos[0], ls[2])
            S.put(q0 + pos[1], ls[3])
            for n, x in enumerate(next_off(sA2, TA, sAB, 20480)):
                S.put(q0 + pos[1] + 1 + n, x)
        if first and st == 0:
            for n, (pre, l) in enumerate(late):
                S.put(q0 + 6 * n + 2, *pre)
                S.put(q0 + 6 * n + 3, l)
            for n, r in enumerate(k2_lds_A(1, 0) + k2_lds_A(1, 1) + k2_lds_A(1, 2)):
                S.put(q0 + 6 * n + 5 if n < 8 else q0 + 54 + 4 * (n - 8), r)
            S.put(q0 + 70, valu("v_add_u32", V2P, D[9] - D[5], V2P))
            for n, r in enumerate(k2_lds_A(1, 3)):
                S.put(q0 + 73 + 4 * n, r)
        elif loadB[st]:
            for n, l in enumerate([l for qi in range(6) for l in k2_loads_B(1 - st, qi)]):
                S.put(q0 + pos[2 + n], l)
            for n, x in enumerate(next_off(sB2, TB, sBB, 12288)):
                S.put(q0 + pos[13] + 1 + n, x)
        if loadA[st]:
            n = 14
            for pi in range(5):
                ls = k2_loads_A(st, pi)
                for x, l in enumerate(ls if pi < 4 else ls[:2]):
                    assert pos[n] >= 24 * pi + 11 + 12 * (x >> 1), (pi, x, pos[n])
                    S.put(q0 + pos[n], l)
                    n += 1
        if first and st == 1:
            S.put(q0 + 110, needvm(["ost"]), barrier())
            S.put(q0 + 111, valu("v_mov_b32", V2P, "0x100"))
            S.put(q0 + 114, atomic_add(V2P, sFG))
        if check and st == 1:
            S.put(q0 + 1, scmp("s_cmp_eq_u32", sCNT, 5), salu("s_cselect_b32", sWANT, 8, 0), salu("s_cselect_b32", sPL, sFG, "0x1000"))
            S.put(q0 + 2, poll_load(V2P, sPL))
        if check and st == 0:
            S.put(q0 + 1, valu("v_readfirstlane_b32", sQ, V2P))
            S.put(q0 + 6, salu("s_bfe_u32", sQ, sQ, "0x80008"), scmp("s_cmp_lt_u32", sQ, sWANT),
                  raw("s_cbranch_scc1 L_spin2", "branch", rd=["scc"]), label("L_spin2_back"))


def k2_first(S, late):
    seq = [(0, p) for p in range(4)] + [(1, p) for p in range(3)] + [(0, 4), (1, 3), (1, 4)]
    at = {}
    for st, pi in seq:
        at[(st, pi)] = S.n()
        for xy in range(2):
            for qi in range(6):
                for ks in range(2):
                    acc = ("v", acc2(pi, xy, qi))
                    S.add(mfma(16, acc, ("a", a2(st, pi, ks, xy)), ("a", b2(st, qi, ks)), None if (st == 0 and ks == 0) else acc))
    for n, (pre, l) in enumerate(late):
        S.put(13 * n + 2, *pre)
        S.put(13 * n + 3, l)
    assert 13 * len(late) < at[(0, 4)]
    g = 5
    for pi in range(4):
        if pi == 3:
            S.put(g, valu("v_add_u32", V2P, D[9] - D[5], V2P))
            g += 2
        for r in k2_lds_A(1, pi):
            while S.fixed.get(g):
                g += 1
            S.put(g, r)
            g += 4
    items = []
    for pi in range(5):
        for x, l in enumerate(k2_loads_A(0, pi, sSO)):
            items.append((l, at[(0, pi)] + 11 + 12 * (x >> 1), 240 + 24 * pi + 12 * (x >> 1)))
        for x, l in enumerate(k2_loads_A(1, pi)[:4 if pi < 4 else 2]):
            items.append((l, at[(1, pi)] + 11 + 12 * (x >> 1), 360 + 24 * pi + 12 * (x >> 1)))
    for qi in range(6):
        for ks, l in enumerate(k2_loads_B(0, qi)):
            items.append((l, at[(0, 4)] + 12 + 2 * qi + ks, 200 + 2 * qi + ks))
    items.sort(key=lambda i: i[2])
    g, lastB = 11, 0
    while items:
        c = [i for i in items if i[1] <= g]
        if c and not any(S.fixed.get(k) and any(j.kind in ("vld", "vst") for j in S.fixed[k]) for k in ((g - 2, g - 1, g + 1) if g < 180 else (g - 1, g + 1))) and not S.fixed.get(g):
            S.put(g, c[0][0])
            if sB2 in c[0][0].rd:
                lastB = g
            items.remove(c[0])
        g += 1
        assert g < 240, items
    for n, x in enumerate(next_off(sB2, TB, sBB, 12288)):
        S.put(lastB + 1 + n, x)
    g = 226
    while S.fixed.get(g) or S.fixed.get(g + 1) or S.fixed.get(g + 3):
        g += 1
    S.put(g, needvm(["ost"]), barrier())
    S.put(g + 1, valu("v_mov_b32", V2P, "0x100"))
    S.put(g + 3, atomic_add(V2P, sFG))


def spin(name, back, dsts, soffs, conds):
    o = [label(name), salu("s_mov_b32", sSPIN, 0), label(name + "_loop"), raw("s_sleep 8")]
    o += [poll_load(d, so) for d, so in zip(dsts, soffs)]
    o += [drain(), salu("s_add_u32", sSPIN, sSPIN, 1), scmp("s_cmp_gt_u32", sSPIN, "0x20000"),
          raw(f"s_cbranch_scc1 {back}", "branch", rd=["scc"])]
    for d, (sh, msk, want) in zip(dsts, conds):
        o += [valu("v_readfirstlane_b32", sQ, d), nop(4)]
        if sh:
            o += [salu("s_lshr_b32", sQ, sQ, sh)]
        if msk:
            o += [salu("s_and_b32", sQ, sQ, msk)]
        o += [scmp("s_cmp_lt_u32", sQ, want), raw(f"s_cbranch_scc1 {name}_loop", "branch", rd=["scc"])]
    o += [raw(f"s_branch {back}", "branch")]
    return o


def phase2():
    o = [valu("v_mov_b32", V2L, vL16), salu("s_and_b32", "s85", "s4", 3), salu("s_and_b32", "s32", sWAVE, 1), salu("s_lshr_b32", "s33", sWAVE, 1),
         salu("s_mul_i32", sAB, sWAVE, 16 * 20480), salu("s_lshr_b64", f"s[{TA}:{TA + 1}]", "s[34:35]", 4)]
    o += next_off(sB2, TB, sBB, 12288)
    o += [valu("v_add_u32", V2W, sW4K, V2L), salu("s_add_u32", "s7", sW6K, XS[0]), valu("v_add_u32", V2X, "s7", V2L)]
    o += [scmp("s_cmp_eq_u32", "s33", 0)]
    o += [salu("s_cselect_b32", f"s{47 + q}", q, 2 - q) for q in range(3)]
    o += [salu("s_cselect_b32", f"s{36 + pi}", pi, 4 - pi) for pi in range(5)]
    o += [salu("s_mul_i32", "s34", "s32", 3)]
    o += [salu("s_add_u32", f"s{47 + q}", f"s{47 + q}", "s34") for q in range(3)]
    save = list(vR)
    vR[:] = [f"v{16 + q}" for q in range(6)]
    nl = 12 if OPT["pace"] else 8
    eg = epilogue_groups(0, lambda n: 240 - 4 * (24 - n) - (0 if OPT["pace"] else 16) if n >= 24 - nl else 32 + 4 * n, V2L)
    vR[:] = save
    b1 = [l for qi in range(6) for l in k2_loads_B(1, qi)]
    for n, (v, pre, st, imm) in enumerate(eg):
        m = b1[2 * (n - 8):2 * (n - 8) + 2] if 8 <= n < 14 else []
        o += v[:8] + m[:1] + v[8:16] + m[1:] + v[16:]
        if OPT["pace"]:
            if n % 2 == 0:
                o += eg[n // 2][1] + [eg[n // 2][2]]
        elif n < 16:
            o += pre + [st]
        if n == 15:
            o += [needvm(list(sPF))]
            for pi in range(5):
                o += [salu("s_lshl_b32", "s7", f"s{36 + pi}", 12), valu("v_add_u32", V2A[pi], "s7", V2L)]
            o += next_off(sPL, TA, sAB, 20480)
            if OPT["pace"]:
                o += next_off(sSO, TA, sAB, 20480)
            o += next_off(sA2, TA, sAB, 20480)
        if 16 <= n < 21:
            o += k2_lds_A(0, n - 16)
    late = []
    for n, g in enumerate(eg[24 - nl:]):
        st = vstore(("v", 240 - 4 * (nl - n) - (0 if OPT["pace"] else 16)), 4, V2L, S_OST, sE, g[3], tag="ost", flags=SC1)
        late.append((g[1], st))
    o += k2_loads_A(1, 4, sPL) + [valu("v_add_u32", V2P, D[5], V2W)]
    o += next_off(sB2, TB, sBB, 12288) + [salu("s_mov_b32", sWANT, 0)]
    o += prof_stamp(1, 30)
    o += srd(S2OUT, "s92", "s93", 7864320)
    o += [salu("s_mul_i32", sOB, "s6", 192 * 2560), salu("s_mul_i32", "s7", "s84", 96 * 2560), salu("s_add_u32", sOB, sOB, "s7"),
          salu("s_mul_i32", "s7", "s5", 1280), salu("s_add_u32", sOB, sOB, "s7"),
          salu("s_mul_i32", "s7", "s85", 320), salu("s_add_u32", sOB, sOB, "s7"), salu("s_mov_b32", sCNT, 6)]
    S0 = Sched()
    if OPT["pace"]:
        k2_first(S0, late)
    else:
        k2_steps(S0, True, [True, True], [True, True], [False, True], late=late)
    S0.order_fixed()
    first = S0.build()
    S1 = Sched()
    k2_steps(S1, False, [True, True], [True, True], [True, True], check=True)
    if OPT["prof"]:
        S1.put(3, raw("s_memrealtime s[76:77]", wr=["s76", "s77"]), raw("s_waitcnt lgkmcnt(0)", "drainlg"),
               salu("s_mov_b32", "s101", "s100"), salu("s_mov_b32", "s100", "s99"), salu("s_mov_b32", "s99", "s98"),
               salu("s_mov_b32", "s98", "s97"), salu("s_mov_b32", "s97", "s96"), salu("s_mov_b32", "s96", "s76"))
    S1.put(237, salu("s_sub_u32", sCNT, sCNT, 1))
    S1.order_fixed()
    loop = [label("L_k2")] + S1.build() + [scmp("s_cmp_lg_u32", sCNT, 0), raw("s_cbranch_scc1 L_k2", "branch", rd=["scc"])]
    R1, R2, i, a, V2O = V2A[0], V2A[1], V2A[2], V2A[3], V2A[4]
    setup = [salu("s_mul_i32", "s7", sWAVE, 30720), valu("v_add_u32", V2W, "s7", V2L), valu("v_lshrrev_b32", i, 4, V2L),
             valu("v_and_b32", a, 15, i), valu("v_mul_u32_u24", a, 2560, a), valu("v_lshrrev_b32", i, 4, i),
             valu("v_lshl_add_u32", V2O, i, 4, a),
             salu("s_xor_b32", sPL, sWAVE, 1), salu("s_sub_u32", sPL, sPL, sWAVE), salu("s_mul_i32", "s7", sPL, 30720),
             valu("v_add_u32", R1, "s7", V2W),
             salu("s_xor_b32", sPL, sWAVE, 3), salu("s_sub_u32", sPL, sPL, sWAVE), salu("s_mul_i32", "s7", sPL, 30720),
             valu("v_add_u32", R2, "s7", V2W)]
    sent = [(pi, xy, qi) for pi in range(5) for qi in range(3, 6) for xy in range(2)]
    wr = {t: ds_write("ds_write_b128", V2W, ("v", acc2(*t)), 4, n * 1024) for n, t in enumerate(sent)}
    S2 = Sched()
    e = []
    if OPT["redov"]:
        order = [wr[(pi, xy, qi)] for pi in range(5) for xy in range(2) for qi in range(3, 6)]
        k2_steps(S2, False, [False, False], [True, False], [True, False], final=(setup, order[:29]))
        e = order[29:]
    else:
        k2_steps(S2, False, [False, False], [True, False], [True, False])
        e = setup + list(wr.values())
    S2.order_fixed()
    last = S2.build()
    e += [needlgkm0(), barrier()] + prof_stamp(8, 234)
    for s in list(range(7, 15)) + list(range(7)):
        pi, q = divmod(s, 3)
        e += [ds_read("ds_read_b128", ("v", acc2(pi, xy, q + 3)), 4, R1, (2 * s + xy) * 1024) for xy in range(2)]
    for s in list(range(7, 15)) + list(range(7)):
        pi, q = divmod(s, 3)
        d, t = acc2(pi, 0, q), acc2(pi, 0, q + 3)
        e += [valu("v_add_f32", f"v{d + r}", f"v{d + r}", f"v{t + r}") for r in range(8)]
        if s >= 7:
            e += [ds_write("ds_write_b128", R1, ("v", acc2(pi, xy, q)), 4, (2 * s + xy) * 1024) for xy in range(2)]
    e += [needlgkm0(), barrier()]
    for s in range(8):
        pi, q = divmod(s, 3)
        for xy in range(2):
            e += [ds_read("ds_read_b128", ("v", acc2(pi, xy, q + 3)), 4, R2, (2 * (14 - s) + xy) * 1024)]
    for s in range(8):
        pi, q = divmod(s, 3)
        d0, t0 = acc2(pi, 0, q), acc2(pi, 0, q + 3)
        e += [valu("v_add_f32", f"v{d0 + r}", f"v{d0 + r}", f"v{t0 + r}") for r in range(8)]
        e += [valu("v_cvt_pk_bf16_f32", f"v{d0 + r}", f"v{d0 + 2 * r}", f"v{d0 + 2 * r + 1}") for r in range(4)]
        e += [salu("s_mul_i32", "s7", f"s{47 + q}", 40960), salu("s_lshl_b32", sPL, f"s{36 + pi}", 6),
              salu("s_add_u32", "s7", "s7", sPL), salu("s_add_u32", sSO, "s7", sOB),
              vstore(("v", d0), 4, V2O, S2OUT, sSO, 0, flags=OPT["outf"])]
    e += prof_stamp(9, 234)
    if OPT["prof"]:
        for n in range(6):
            e += [valu("v_mov_b32", "v234", 1), valu("v_mov_b32", "v235", f"s{101 - n}"), pstore(234, 2 + n), nop(4)]
    if OPT["dbgt"]:
        a, b = {1: ("s76", "s78"), 2: ("s74", "s76")}[OPT["dbgt"]]
        e += [drain(), raw("s_memrealtime s[78:79]", wr=["s78", "s79"]), raw("s_waitcnt lgkmcnt(0)", "drainlg"),
              salu("s_sub_u32", a, a, "s72"), salu("s_sub_u32", b, b, "s72"),
              scmp("s_cmp_lt_u32", "s2", 8), salu("s_cselect_b32", "s7", "s2", "0x1000"), salu("s_lshl_b32", "s7", "s7", 2),
              valu("v_mov_b32", "v0", a), valu("v_mov_b32", "v1", b),
              Ins(f"buffer_store_dword v0, {vFLG}, s[{S_FLG}:{S_FLG + 3}], s7 offen", "vst", rd=["v0", vFLG, "s7"]),
              Ins(f"buffer_store_dword v1, {vFLG}, s[{S_FLG}:{S_FLG + 3}], s7 offen offset:32", "vst", rd=["v1", vFLG, "s7"])]
    e += [label("L_end"), raw("s_endpgm")]
    sp1 = spin("L_spin1", "L_spin1_back", vPOLL[:1], [sFG], [(0, "0xff", 8)]) + spin("L_spin3", "L_spin3_back", vPOLL[1:], [sFB], [(16, 0, 128)])
    sp2 = spin("L_spin2", "L_spin2_back", [V2P], [sFG], [(8, "0xff", 8)])
    return o, first, loop, last, e, sp1, sp2


def check_pointers(pro):
    ptr = set(regs("s", 56, 8) + regs("s", 88, 8))
    dirty = set()
    for x in pro:
        if x.text.startswith("s_load"):
            continue
        if x.text.startswith(("s_mov_b32", "s_and_b32", "s_add_u32", "s_addc_u32")) and x.rd & dirty and "0xffff" in x.text:
            raise AssertionError(x.text)
        dirty |= x.wr & ptr


def kernel():
    pro = prologue()
    check_pointers(pro)
    q1 = q_phase(False)
    full = []
    for last in (False, True):
        _alt[0] = 0
        full.append(a_phase(last))
    cut = [[n for n, x in enumerate(f) if x.text == "L_CUT:"][0] for f in full]
    assert [x.text for x in full[0][:cut[0]]] == [x.text for x in full[1][:cut[1]]]
    att = [label("L_att")] + full[0][:cut[0]]
    tails = []
    for v in range(2):
        t = ([label("L_tail2")] if v else []) + full[v][cut[v] + 1:]
        t += [raw("s_cbranch_vccnz L_slow", "branch", rd=["vcc"]), label(f"L_back{v + 1}")]
        t += [valu("v_rcp_f32", f"v{16 + qt}" if v else vR[qt], f"v{lacc(qt)}") for qt in range(6)]
        if OPT["dbgt"]:
            t += [raw(f"s_memrealtime s[{74 + 2 * v}:{75 + 2 * v}]", wr=[f"s{74 + 2 * v}", f"s{75 + 2 * v}"]), raw("s_waitcnt lgkmcnt(0)", "drainlg")]
        t += prof_stamp(29)
        if OPT["prof"]:
            t += [salu("s_add_u32", sPROF, sPROF, 240)]
        tails.append(t)
    q2 = [salu("s_mov_b32", sIT, 1), label("L_q2")] + q_phase(True) + [raw("s_branch L_att", "branch")]
    o, first, loop2, last, e, sp1, sp2 = phase2()
    slow = slow_path()
    parts = [pro, q1, att, tails[0], q2, tails[1], o, first, loop2, last, e, slow, sp1, sp2]
    waits = compute_waits([pro + q1 + att + tails[0] + q2 + att + tails[1] + o + first + loop2 + loop2 + loop2 + last + e, slow, sp1, sp2])
    done = {}
    P = [apply_waits(x, waits, done) for x in parts]
    pads = pad_hazards([P[0] + P[1] + P[2] + P[3] + P[4] + P[2] + P[5] + P[6] + P[7] + P[8] + P[8] + P[9] + P[10], P[11], P[12], P[13]])
    al = ".p2align 3\n"
    return (emit(P[0] + P[1], pads) + al + emit(P[2] + P[3] + P[4], pads) + al + emit(P[5] + P[6] + P[7], pads) + al +
            emit(P[8] + P[9] + P[10] + P[11] + P[12] + P[13], pads) + "L_endcode:\n")


def main():
    kn = NAME + "_kernel"
    s = open("cdna_kernels/" + NAME + ".s.ref").read().split("; Override launch")[0]
    s += "; @launch grid=(256,1,1) block=(256,1,1) lds=163840\n"
    s += '.amdgcn_target "amdgcn-amd-amdhsa--gfx950"\n.text\n'
    s += f".globl {kn}\n.p2align 8\n.type {kn},@function\n{kn}:\n" + kernel()
    s += f""".section .rodata,"a"
.p2align 6
.amdhsa_kernel {kn}
  .amdhsa_next_free_vgpr 512
  .amdhsa_next_free_sgpr 102
  .amdhsa_accum_offset 256
  .amdhsa_group_segment_fixed_size 0
  .amdhsa_kernarg_size 104
  .amdhsa_user_sgpr_count 2
  .amdhsa_user_sgpr_kernarg_segment_ptr 1
  .amdhsa_system_sgpr_workgroup_id_x 1
.end_amdhsa_kernel
"""
    open(sys.argv[1], "w").write(s)


main()
```

```python
import itertools

_uid = itertools.count()


def regs(f, base, n=1):
    return [f"{f}{base + i}" for i in range(n)]


def fmt(f, base, n=1):
    return f"{f}{base}" if n == 1 else f"{f}[{base}:{base + n - 1}]"


class Ins:
    def __init__(self, text, kind, rd=(), wr=(), units=1, tag=None, passes=0, srcc=(), ab=()):
        self.text = text
        self.kind = kind
        self.rd = set(rd)
        self.wr = set(wr)
        self.units = units
        self.tag = tag
        self.passes = passes
        self.srcc = set(srcc)
        self.ab = set(ab)
        self.id = next(_uid)

    def __repr__(self):
        return f"<{self.text}>"


def mfma(shape, D, A, B, C):
    nd = 16 if shape == 32 else 4
    op = "v_mfma_f32_32x32x16_bf16" if shape == 32 else "v_mfma_f32_16x16x32_bf16"
    ct = "0" if C is None else fmt(C[0], C[1], nd)
    t = f"{op} {fmt(D[0], D[1], nd)}, {fmt(A[0], A[1], 4)}, {fmt(B[0], B[1], 4)}, {ct}"
    ab = regs(A[0], A[1], 4) + regs(B[0], B[1], 4)
    c = [] if C is None else regs(C[0], C[1], nd)
    return Ins(t, "mfma", rd=ab + c, wr=regs(D[0], D[1], nd), passes=8 if shape == 32 else 4, srcc=c, ab=ab)


def _opregs(o):
    o = o.strip()
    if o.startswith("-"):
        o = o[1:]
    if o in ("vcc",):
        return ["vcc"]
    if o in ("m0", "exec", "scc"):
        return [o]
    if len(o) > 1 and o[0] in "vas" and (o[1].isdigit() or o[1] == "["):
        if o[1] == "[":
            a, b = o[2:-1].split(":")
            return regs(o[0], int(a), int(b) - int(a) + 1)
        return [o]
    return []


def valu(op, dst, *srcs, kind=None, rw_dst=False, extra_rd=(), extra_wr=()):
    k = kind
    if k is None:
        k = "trans" if op.startswith(("v_exp", "v_rcp", "v_log", "v_rsq", "v_sqrt")) else "valu"
    rd = []
    for s in srcs:
        rd += _opregs(str(s))
    wr = _opregs(dst)
    if rw_dst:
        rd += wr
    t = f"{op} {dst}, " + ", ".join(str(s) for s in srcs)
    return Ins(t, k, rd=rd + list(extra_rd), wr=wr + list(extra_wr), units=2 if k == "trans" else 1)


def perm(op, a, b):
    return Ins(f"{op} {a}, {b}", "perm", rd=[a, b], wr=[a, b])


def salu(op, dst, *srcs, scc=True):
    rd = []
    for s in srcs:
        rd += _opregs(str(s))
    wr = _opregs(dst)
    if op in ("s_addc_u32", "s_cselect_b32", "s_cselect_b64", "s_subb_u32"):
        rd.append("scc")
    if scc and op not in ("s_mov_b32", "s_mov_b64", "s_mul_i32", "s_cselect_b32", "s_cselect_b64", "s_movk_i32"):
        wr.append("scc")
    t = f"{op} {dst}, " + ", ".join(str(s) for s in srcs)
    return Ins(t, "salu", rd=rd, wr=wr)


def scmp(op, a, b):
    return Ins(f"{op} {a}, {b}", "salu", rd=_opregs(str(a)) + _opregs(str(b)), wr=["scc"])


def ds_read(op, dst, n, addr, off):
    assert 0 <= off < 65536, off
    t = f"{op} {fmt(dst[0], dst[1], n)}, {addr}" + (f" offset:{off}" if off else "")
    return Ins(t, "lds_rd", rd=[addr], wr=regs(dst[0], dst[1], n))


def ds_write(op, addr, src, n, off):
    assert 0 <= off < 65536, off
    t = f"{op} {addr}, {fmt(src[0], src[1], n)}" + (f" offset:{off}" if off else "")
    return Ins(t, "lds_wr", rd=[addr] + regs(src[0], src[1], n))


def dma(voff, srd, soff, imm, tag, flags=""):
    assert 0 <= imm < 4096
    t = f"buffer_load_dwordx4 {voff}, s[{srd}:{srd + 3}], {soff} offen" + (f" offset:{imm}" if imm else "") + flags + " lds"
    return Ins(t, "dma", rd=[voff, "m0"] + regs("s", srd, 4) + _opregs(str(soff)), tag=tag)


def vload(dst, n, voff, srd, soff, imm, tag=None, flags="", op=None, rw=False):
    assert 0 <= imm < 4096
    op = op or {1: "buffer_load_dword", 2: "buffer_load_dwordx2", 4: "buffer_load_dwordx4"}[n]
    t = f"{op} {fmt(dst[0], dst[1], n)}, {voff}, s[{srd}:{srd + 3}], {soff} offen" + (f" offset:{imm}" if imm else "") + flags
    w = regs(dst[0], dst[1], n)
    return Ins(t, "vld", rd=[voff] + regs("s", srd, 4) + _opregs(str(soff)) + (w if rw else []), wr=w, tag=tag)


def vstore(src, n, voff, srd, soff, imm, tag=None, flags=""):
    assert 0 <= imm < 4096
    op = {1: "buffer_store_dword", 2: "buffer_store_dwordx2", 4: "buffer_store_dwordx4"}[n]
    t = f"{op} {fmt(src[0], src[1], n)}, {voff}, s[{srd}:{srd + 3}], {soff} offen" + (f" offset:{imm}" if imm else "") + flags
    return Ins(t, "vst", rd=[voff] + regs(src[0], src[1], n) + regs("s", srd, 4) + _opregs(str(soff)), tag=tag)


def needvm(tags):
    i = Ins("", "needvm", units=0)
    i.tag = set(tags)
    return i


def needlgkm0():
    return Ins("", "needlgkm0", units=0)


def needboth(tags):
    i = Ins("", "needboth", units=0)
    i.tag = set(tags)
    return i


def prewait(m):
    i = Ins("", "prewait", rd=m.rd, wr=m.wr, units=0)
    i.of = m
    return i


def drain():
    return Ins("s_waitcnt vmcnt(0) lgkmcnt(0)", "drain")


def barrier():
    return Ins("s_barrier", "bar")


def label(name):
    return Ins(f"{name}:", "label", units=0)


def raw(text, kind="other", rd=(), wr=()):
    return Ins(text, kind, rd=rd, wr=wr)


def nop(n):
    i = Ins(f"s_nop {n - 1}", "nop")
    i.states = n
    return i


VM_KINDS = ("dma", "vld", "vst", "atomic")
LG_KINDS = ("lds_rd", "lds_wr")


def compute_waits(paths, eager_cycles=110):
    waits = {}
    changed = True
    it = 0
    while changed:
        changed = False
        it += 1
        assert it < 20
        for seq in paths:
            vmq = []
            lgq = []
            t = 0
            last_m = -100
            last_d = 0
            for ins in seq:
                if ins.kind == "mfma":
                    t = max(t + 4, last_m + last_d)
                    last_m = t
                    last_d = ins.passes * 4
                elif ins.units:
                    t += 4 * ins.units
                need_vm = None
                need_lg = None
                touched = ins.rd | ins.wr
                if ins.kind == "drain":
                    vmq = []
                    lgq = []
                    continue
                if ins.kind == "drainlg":
                    lgq = []
                    continue
                if ins.kind in ("needvm", "needboth"):
                    for k in range(len(vmq) - 1, -1, -1):
                        if vmq[k][0].tag in ins.tag:
                            need_vm = len(vmq) - 1 - k
                            break
                    if ins.kind == "needboth" and lgq:
                        need_lg = 0
                elif ins.kind == "needlgkm0":
                    if lgq:
                        need_lg = 0
                else:
                    for k in range(len(vmq) - 1, -1, -1):
                        if vmq[k][0].wr & touched:
                            need_vm = len(vmq) - 1 - k
                            break
                    for k in range(len(lgq) - 1, -1, -1):
                        if lgq[k][0].wr & touched:
                            need_lg = len(lgq) - 1 - k
                            kk = k
                            while kk + 1 < len(lgq) and t - lgq[kk + 1][1] >= eager_cycles:
                                kk += 1
                            need_lg = len(lgq) - 1 - kk
                            break
                cur = waits.get(ins.id, (None, None))
                nv, nl = cur
                if need_vm is not None:
                    need_vm = min(need_vm, 63)
                    nv = need_vm if nv is None else min(nv, need_vm)
                if need_lg is not None:
                    need_lg = min(need_lg, 15)
                    nl = need_lg if nl is None else min(nl, need_lg)
                if (nv, nl) != cur:
                    waits[ins.id] = (nv, nl)
                    changed = True
                if nv is not None:
                    vmq = vmq[len(vmq) - nv:] if nv < len(vmq) else vmq
                    if nv == 0:
                        vmq = []
                if nl is not None:
                    lgq = lgq[len(lgq) - nl:] if nl < len(lgq) else lgq
                    if nl == 0:
                        lgq = []
                if ins.kind in VM_KINDS:
                    vmq.append((ins, t))
                elif ins.kind in LG_KINDS:
                    lgq.append((ins, t))
    return waits


def apply_waits(seq, waits, done=None):
    out = []
    for ins in seq:
        w = waits.get(ins.id)
        if w is not None and w != (None, None):
            parts = []
            if w[0] is not None:
                parts.append(f"vmcnt({w[0]})")
            if w[1] is not None:
                parts.append(f"lgkmcnt({w[1]})")
            key = ("w", ins.id)
            if done is not None and key in done:
                wi = done[key]
            else:
                wi = Ins("s_waitcnt " + " ".join(parts), "wait")
                if done is not None:
                    done[key] = wi
            out.append(wi)
        if ins.kind in ("needvm", "needlgkm0", "needboth", "prewait"):
            continue
        out.append(ins)
    return out


VALU_KINDS = ("valu", "trans", "perm")


def _required(prod, cons):
    n = 0
    pk, ck = prod.kind, cons.kind
    if pk in VALU_KINDS:
        vw = {r for r in prod.wr if r[0] in "va" and r != "vcc"}
        sw = {r for r in prod.wr if r[0] == "s" or r == "vcc"}
        if ck == "mfma" and vw & cons.rd:
            n = max(n, 2)
        if ck == "perm" and vw & cons.rd:
            n = max(n, 2)
        if pk == "trans" and ck in ("valu", "perm") and vw & cons.rd:
            n = max(n, 1)
        if cons.text.startswith(("v_readfirstlane", "v_readlane")) and vw & cons.rd:
            n = max(n, 1)
        if sw:
            if ck in VALU_KINDS and sw & cons.rd:
                n = max(n, 2)
            if ck in VM_KINDS and sw & cons.rd:
                n = max(n, 5)
            if ck in ("salu", "branch") and sw & cons.rd:
                n = max(n, 4)
    if pk == "mfma":
        big = 12 if prod.passes == 8 else 8
        if ck == "mfma":
            if prod.wr & cons.ab:
                n = max(n, big)
            if prod.wr & cons.srcc:
                if not (prod.wr == cons.srcc and prod.passes == cons.passes):
                    n = max(n, 10 if prod.passes == 8 else 6)
            elif prod.wr & cons.wr and prod.passes != cons.passes:
                n = max(n, big)
        elif ck in VALU_KINDS or ck in VM_KINDS or ck in LG_KINDS:
            if prod.wr & (cons.rd | cons.wr):
                n = max(n, big)
            if ck in VALU_KINDS and prod.srcc & cons.wr:
                n = max(n, 7 if prod.passes == 8 else 3)
    if pk == "salu" and "m0" in prod.wr and ck == "dma":
        n = max(n, 1)
    if pk == "vst" and ck in VALU_KINDS:
        data = {r for r in prod.rd if r[0] in "va"}
        if data & cons.wr:
            n = max(n, 2)
    return n


def pad_hazards(paths, verbose=True):
    pads = {}
    changed = True
    while changed:
        changed = False
        for seq in paths:
            hist = []
            t = 0
            last_m = -100
            last_p = 0
            for ins in seq:
                if ins.kind == "label":
                    continue
                t += 1 + pads.get(ins.id, 0)
                if ins.kind == "mfma":
                    t = max(t, last_m + last_p)
                short = 0
                for p, tp in hist[-40:]:
                    req = _required(p, ins)
                    if req and t - tp - 1 < req:
                        short = max(short, req - (t - tp - 1))
                        why = p
                if short:
                    pads[ins.id] = pads.get(ins.id, 0) + short
                    t += short
                    changed = True
                    if verbose:
                        print(f"; hazard pad {short} before {ins.text}  (after {why.text})")
                if ins.kind == "mfma":
                    last_m = t
                    last_p = ins.passes
                if ins.kind == "nop":
                    t += ins.states - 1
                hist.append((ins, t))
    return pads


def emit(seq, pads):
    lines = []
    for ins in seq:
        p = pads.get(ins.id, 0)
        while p > 0:
            k = min(p, 16)
            lines.append(f"    s_nop {k - 1}")
            p -= k
        if ins.kind == "label":
            lines.append(ins.text)
        else:
            lines.append("    " + ins.text)
    return "\n".join(lines) + "\n"


MEMK = ("vst", "vld", "dma", "lds_rd", "lds_wr", "atomic")


class Sched:
    def __init__(self):
        self.m = []
        self.fixed = {}
        self.streams = []
        self.packers = []
        self.pre = {}

    def add(self, ins):
        self.m.append(ins)
        return len(self.m) - 1

    def n(self):
        return len(self.m)

    def put(self, g, *ins):
        self.fixed.setdefault(g, []).extend(ins)

    def stream(self, items):
        self.streams.append(list(items))

    def used(self, g, waited):
        fx = self.fixed.get(g, [])
        if any(i.kind in ("bar", "dma", "vld", "vst", "atomic", "branch") for i in fx):
            return 2
        u = sum(i.units for i in fx)
        if not waited and fx and fx[0].kind == "salu":
            u -= 1
        return u

    def order_fixed(self):
        for g, fx in self.fixed.items():
            if any(i.kind in ("bar", "branch", "label", "other", "drainlg") or "scc" in i.rd for i in fx):
                continue
            mem = [i for i in fx if i.kind in MEMK]
            out = []
            sal = [i for i in fx if i.kind == "salu" and not any(i.wr & m.rd for m in mem if fx.index(m) < fx.index(i))]
            if sal and fx.index(sal[0]) == min(fx.index(s) for s in fx if s.kind == "salu"):
                out.append(sal[0])
            for i in fx:
                if i.kind in MEMK and not any(j.wr & i.rd for j in fx[:fx.index(i)] if j not in out):
                    out.append(i)
            out += [i for i in fx if i not in out]
            self.fixed[g] = out

    def build(self, waited=None, streams=True, report=False):
        waited = waited or set()
        out = []
        pos = [0] * len(self.streams)
        over = 0
        for p in self.packers:
            p.reset()
        for g in range(-1, len(self.m)):
            if g >= 0:
                out.append(self.m[g])
                if g + 1 < len(self.m):
                    if g + 1 not in self.pre:
                        self.pre[g + 1] = prewait(self.m[g + 1])
                    out.append(self.pre[g + 1])
            fx = self.fixed.get(g, [])
            out.extend(fx)
            if not streams:
                continue
            used = self.used(g, g in waited)
            cap = 2 if g >= 0 else 0
            last = g == len(self.m) - 1
            slot0 = g in waited or bool(fx)
            progress = True
            while progress:
                progress = False
                for si, st in enumerate(self.streams):
                    if pos[si] >= len(st):
                        continue
                    ins, e, d = st[pos[si]]
                    forced = last or any(dd is not None and dd <= g for (_, _, dd) in st[pos[si]:pos[si] + 400])
                    if e > g and not last:
                        assert not forced, f"stream item {ins} earliest {e} > gap {g} but forced"
                        continue
                    cost = ins.units
                    if ins.kind == "salu" and not slot0:
                        cost = 0
                    if ins.kind in MEMK:
                        cost = 2
                    fits = used + cost <= cap and not (ins.kind in MEMK and used > 0)
                    if fits or forced:
                        out.append(ins)
                        used += cost
                        slot0 = True
                        pos[si] += 1
                        progress = True
                        break
            for p in self.packers:
                got = p.fill(g, cap - used, last)
                out.extend(got)
                used += sum(i.units for i in got)
            if used > cap:
                over += used - cap
                if report:
                    print(f"; gap {g}: used {used}")
        if report:
            print("; total overflow units", over)
        return out

    def finish(self, lead=(), report=False):
        self.order_fixed()
        seq = self.build(streams=False)
        w = compute_waits([list(lead) + seq + seq])
        waited = {g - 1 for g, p in self.pre.items() if w.get(p.id, (None, None)) != (None, None)}
        return self.build(waited, report=report)


class SoftmaxPacker:
    def __init__(self, units):
        self.units = units

    def reset(self):
        self.ui = 0
        self.ei = 0
        self.cq = [(u, c) for u in range(len(self.units)) for c in range(len(self.units[u]["cvts"]))]
        self.ci = 0
        self.done = [0] * len(self.units)

    def _exp(self):
        u = self.units[self.ui]
        ins = u["exps"][self.ei]
        self.ei += 1
        self.new.append(self.ui)
        if self.ei == len(u["exps"]):
            self.ui += 1
            self.ei = 0
        return ins

    def fill(self, g, free, last):
        out = []
        self.new = []
        while self.ci < len(self.cq):
            u, c = self.cq[self.ci]
            due = [k for k in range(self.ci, min(self.ci + 16, len(self.cq))) if self.units[self.cq[k][0]]["cvts"][self.cq[k][1]][2] <= g]
            if not due and not last:
                break
            ins, need, d = self.units[u]["cvts"][c]
            while self.done[u] + self.new.count(u) < need:
                assert self.units[self.ui]["e"] <= g or last
                out.append(self._exp())
                free -= 2
            out.append(ins)
            free -= 1
            self.ci += 1
        if free >= 2 and self.ui < len(self.units) and self.units[self.ui]["e"] <= g:
            out.append(self._exp())
            free -= 2
        while free >= 1 and self.ci < len(self.cq):
            u, c = self.cq[self.ci]
            ins, need, d = self.units[u]["cvts"][c]
            if self.done[u] < need:
                break
            out.append(ins)
            free -= 1
            self.ci += 1
        for u in self.new:
            self.done[u] += 1
        return out


class SoftmaxPacker2:
    def __init__(self, units, extra):
        self.units = units
        self.extra = extra

    def reset(self):
        self.P = [(u, i) for u, x in enumerate(self.units) for i in range(len(x["pre"]))]
        self.E = [(u, i) for u, x in enumerate(self.units) for i in range(len(x["exps"]))]
        self.C = [(u, i) for u, x in enumerate(self.units) for i in range(len(x["cvts"]))]
        self.pi = self.ei = self.ci = 0
        self.pd = [0] * len(self.units)
        self.ed = [0] * len(self.units)

    def fill(self, g, free, last):
        out = []
        newe = []
        free += self.extra(g)

        def pre():
            u, i = self.P[self.pi]
            assert self.units[u]["e"] <= g or last
            out.append(self.units[u]["pre"][i])
            self.pi += 1
            self.pd[u] += 1

        def exp():
            u, i = self.E[self.ei]
            while self.pd[u] < self.units[u]["exps"][i][1]:
                pre()
            out.append(self.units[u]["exps"][i][0])
            self.ei += 1
            newe.append(u)
        while self.ci < len(self.C):
            due = [k for k in range(self.ci, min(self.ci + 16, len(self.C))) if self.units[self.C[k][0]]["cvts"][self.C[k][1]][2] <= g]
            if not due and not last:
                break
            u, c = self.C[self.ci]
            ins, need, d = self.units[u]["cvts"][c]
            while self.ed[u] + newe.count(u) < need:
                exp()
            out.append(ins)
            self.ci += 1
        free -= sum(i.units for i in out)
        while free >= 1:
            if free >= 2 and self.ei < len(self.E) and not newe:
                u, i = self.E[self.ei]
                if self.pd[u] >= self.units[u]["exps"][i][1]:
                    exp()
                    free -= 2
                    continue
            if self.ci < len(self.C):
                u, c = self.C[self.ci]
                if self.ed[u] >= self.units[u]["cvts"][c][1]:
                    out.append(self.units[u]["cvts"][c][0])
                    self.ci += 1
                    free -= 1
                    continue
            if self.pi < len(self.P) and self.units[self.P[self.pi][0]]["e"] <= g:
                pre()
                free -= 1
                continue
            break
        for u in newe:
            self.ed[u] += 1
        return out
```

```python
import sys, math, struct
from fw3 import *
from orders import orders
import alloc3

NAME = "concat_heads__mha_block_cached__mha_block_cached__near_ridge"
OPT = dict(outf=' sc1', redov=1, one1=1, warmj=0, pk=1, pfq1=1, rot2=4, gate=0, pace=1, lead=3, xpace=0, kvf=' nt', norot=0, tlbw=0, kpro=0, kplan=0, jlate=1, dbgt=0, jpro=0, k1s=0, e10=1, t23=0, nfree=1, kstep10=134, ks1=0, kn1=0, kfirst=6, k2late=0, qsp=1, tmax=1, xnum=42, rotq1=2, gstep=2, rotq=3, early=1, uni=0, prof=0, report=False, stg=67, warmw=True, codepf=2, codepf2=14, pf='', pf0=1, pfn=3, pff='', flagbar=12, map=0)
for a in sys.argv[2:]:
    k, v = a.split("=")
    OPT[k] = type(OPT[k])(int(v)) if not isinstance(OPT[k], str) else v

KB = 1024
SC1 = " sc1"
O_GRP = 2 * 786432
WS_WOT = 50331648
WOT_BLK = 5242880
WS_PROF = 64 * 1024 * 1024

S_K, S_V, S_X, S_WQ, S_OST, S_WO, S_WOT = 8, 12, 16, 20, 24, 28, 32
sKV, sWQ, sX, sW4K, sW6K, sO, sIT, sT0, sT1, sC, sWAVE = ["s%d" % i for i in range(36, 47)]
sWOS, sWOD, sWOX, sW5K, sHI, sLO = ["s%d" % i for i in range(47, 53)]
sPROF, sE, sJ = "s53", "s54", "s55"
sQT, sWS, sXS, sW1, sNC = "s50", "s67", "s95", "s63", "s7"
sROT, sFG, sFB, sCP = "s62", "s65", "s66", "s64"
sA2, sB2, sPL, sOB, sCNT, sSO, sQ, sSH, sWANT, sSPIN = "s28", "s29", "s30", "s31", "s67", "s68", "s69", "s70", "s71", "s94"
S_PROF, S_FLG = 72, 80
sPF = {("W", 0, 0): ["s84"], ("W", 0, 1): ["s85"], ("X", 0): ["s86", "s87"], ("X", 1): ["s98", "s99"], ("W", 1, 0): ["s100"], ("W", 1, 1): ["s101"],
       ("P", 0): ["s60"], ("P", 1): ["s61"]}
PF2 = {"s84": (0, 0, 0), "s85": (0, 1, 0), "s86": (0, 2, 0), "s98": (0, 3, 0), "s100": (0, 4, 0), "s101": (1, 0, 0),
       "s87": (1, 1, 0), "s99": (1, 1, 2048), "s60": (1, 2, 0), "s61": (1, 3, 0)}
vK = ["v%d" % i for i in range(192, 196)]
vV = ["v196", "v197"]
vW = ["v%d" % i for i in range(198, 202)]
vX = ["v%d" % i for i in range(202, 206)]
kA = ["v%d" % i for i in range(206, 210)]
vA = ["v%d" % i for i in range(210, 218)]
wA = ["v218", "v219"]
xA = ["v220", "v221"]
vJ, vL16 = "v222", "v223"
ONES = 224
EPI = 228
vR = ["v%d" % i for i in range(244, 250)]
vFLG = "v250"
vT = ["v252", "v253"]
vC2 = "v[242:243]"
vPOLL = ["v254", "v255"]

V2B = ["v245", "v246", "v247", "v248", "v249", "v251"]
V2L, V2W, V2P, V2X = "v252", "v254", "v255", "v253"
S2A, S2B, S2OUT = S_WQ, S_X, 8
TA, TB, sAB, sBB = 56, 62, "s43", "s44"

D = [i * 16 * KB for i in range(10)]
XS = [96 * KB, 120 * KB]
WOJ_ADDR = D[4]


def qacc(p, xy, qt):
    return 64 * (qt >> 1) + (2 * p + (qt & 1)) * 8 + 4 * xy


def qf(qt, p):
    return 64 * (qt >> 1) + (2 * p + (qt & 1)) * 4


def sreg(qt):
    return 64 * (qt >> 1) + 32 + 8 * (qt & 1)


def mrun(qt):
    return 64 * (qt >> 1) + 56 + (qt & 1)


def mneg(qt):
    return 64 * (qt >> 1) + 58 + (qt & 1)


def lacc(qt):
    return 64 * (qt >> 1) + 48 + 4 * (qt & 1)


ABUF = [192, 248]


def bx(qt, ks):
    return 200 + 8 * qt + 4 * ks


def kf(kt, ks):
    return 192 + 16 * kt + 4 * ks


def vf(dt):
    return 224 + 4 * dt


def oacc(qt, dt):
    return 32 * qt + 4 * dt


def kpos(k):
    n1 = OPT["kn1"]
    return 2 + OPT["ks1"] / 10.0 * min(k, n1) + OPT["kstep10"] / 10.0 * max(k - n1, 0)


def build_units():
    U = {}
    for i in range(10):
        U[("X", i)] = dict(addr=XS[i % 2], size=24 * KB, iss=i - 2.5, land=i - 1, rel=i - 0.5)
        U[("W", i, 0)] = dict(addr=D[2 * (i % 2)], size=16 * KB, iss=i - 2.5, land=i - 1, rel=i - 0.5)
        U[("W", i, 1)] = dict(addr=D[2 * (i % 2) + 1], size=16 * KB, iss=i - 2, land=i - 0.5, rel=i)
    for k, e in ((("X", 0), -4), (("W", 0, 0), -4), (("W", 0, 1), -4), (("X", 1), -3), (("W", 1, 0), -3), (("W", 1, 1), -3)):
        U[k]["iss"] = e
    pages = [9, 5, 4, 6, 0, 7, 1, 8, 2, 3, 9, 4, 5, 6, 0, 1, 7, 2, 8, 3, 9, 4, 5, 6, 0, 7, 1, 8, 2, 9, 5, 4]
    if OPT["kstep10"]:
        (_, pages), kiss, leads = alloc3.plan(0, OPT["kfirst"], pos=kpos, head=[9, 5, 4, 6, 1 if OPT["k2late"] else 0, 7, 1, 8])
        if OPT["report"]:
            print("; leads", [round(x, 1) for x in leads])
    for u in range(32):
        key = ("K", u // 2) if u % 2 == 0 else ("V", u // 2)
        N = 10 + u // 2 + u % 2
        U[key] = dict(addr=D[pages[u]], size=16 * KB, iss=N - 5 + (u == 30), land=N - 1, rel=N)
        if OPT["kstep10"] and u >= OPT["kfirst"]:
            U[key].update(iss=kiss[u], even=u - OPT["kfirst"])
    U[("V", 1)]["iss"] = U[("K", 2)]["iss"] = 7.5
    if "even" not in U[("V", 2)]:
        U[("V", 2)]["iss"] = 8.5
    if OPT["k2late"]:
        U[("K", 2)]["iss"] = 8
    if OPT["kstep10"]:
        if OPT["kfirst"] == 8:
            U[("V", 3)]["iss"] = 8.5
        return U
    if OPT["e10"] < 2:
        U[("K", 4)]["iss"] = 10
    if OPT["e10"] < 1:
        U[("V", 3)]["iss"] = 10
    if OPT["t23"]:
        U[("W", 0, 0)]["iss"] = U[("W", 1, 1)]["iss"] = -5
    return U


def check_units(second):
    V = {k: dict(u) for k, u in U.items()}
    if second:
        V[("K", 0)]["iss"] = V[("V", 0)]["iss"] = -2
        V[("K", 1)]["iss"] = -1
    else:
        V[("J",)] = dict(addr=D[4], size=32 * KB, iss=-1, land=2, rel=3)
        V[("J", 2)] = dict(addr=D[9], size=16 * KB, iss=0, land=2, rel=3)
        V[("K", 0)]["iss"], V[("V", 0)]["iss"], V[("K", 1)]["iss"] = 3, 4, 5
    allu = [(k, u["addr"], u["addr"] + u["size"], u["iss"], u["rel"]) for k, u in V.items()]
    assert all(u["iss"] < u["land"] <= u["rel"] for u in V.values())
    if second:
        allu += [(k, u["addr"], u["addr"] + u["size"], u["iss"] - 27, u["rel"] - 27) for k, u in U.items() if k[0] in "KV" and k[1] > 2]
        allu += [(("P", n), D[p], D[p] + 16 * KB, 25, 27) for n, p in enumerate((5, 9))]
        allu += [(k, u["addr"], u["addr"] + u["size"], u["iss"] + 27, 40) for k, u in U.items() if u["iss"] is not None and u["iss"] < -2.6]
    for a in allu:
        for b in allu:
            if a is not b and a[1] < b[2] and b[1] < a[2]:
                assert a[4] <= b[3] or b[4] <= a[3], (a, b)


U = build_units()
U[("K", 0)]["iss"] = U[("V", 0)]["iss"] = U[("K", 1)]["iss"] = None
PADDR = {("P", 0): D[5], ("P", 1): D[9]}
_alt = [0]


def next_st():
    _alt[0] ^= 1
    return [sT0, sT1][_alt[0]]


def unit_dmas(key, tmp=None):
    kind = key[0]
    if kind == "P":
        return [([salu("s_add_u32", "m0", sW4K, PADDR[key])], [dma(vW[m], S_WQ, sPF[key][0], 1024 * m, key, SC1) for m in range(4)])]
    if kind == "J":
        jj = key[1]
        sT = tmp
        pre = [salu("s_add_u32", sT, sWOS, jj * 128), salu("s_add_u32", "m0", sW4K, D[(4, 5, 9)[jj >> 2]] + (jj & 3) * 1024)]
        return [(pre, [dma(vX[0], S_WO, sT, 0, "J", " nt")])]
    u = U[key]
    if key in sPF:
        if kind == "W":
            return [([salu("s_add_u32", "m0", sW4K, u["addr"])], [dma(vW[m], S_WQ, sPF[key][0], 1024 * m, key, SC1) for m in range(4)])]
        return [([salu("s_add_u32", "m0", sW6K, u["addr"])], [dma(vX[m], S_X, sPF[key][0], 1024 * m, key, SC1) for m in range(4)]),
                ([salu("s_add_u32", "m0", sW6K, u["addr"] + 4096)], [dma(vX[m], S_X, sPF[key][1], 1024 * m, key, SC1) for m in range(2)])]
    sT = tmp or next_st()
    if kind in "KV":
        pre = [salu("s_add_u32", sT, sROT, key[1] * 8192), salu("s_and_b32", sT, sT, "0x1ffff"), salu("s_add_u32", sT, sT, sKV),
               salu("s_add_u32", "m0", sW4K, u["addr"])]
        if kind == "K":
            return [(pre, [dma(vK[m], S_K, sT, 1024 * m, key, OPT["kvf"]) for m in range(4)])]
        return [(pre, [dma(vV[m & 1], S_V, sT, 1024 * m, key, OPT["kvf"]) for m in range(4)])]
    if kind == "W":
        return [([salu("s_add_u32", "m0", sW4K, u["addr"])], [dma(vW[m], S_WQ, sW1 if key[2] else sWS, 1024 * m, key) for m in range(4)])]
    g0 = ([salu("s_add_u32", "m0", sW6K, u["addr"])], [dma(vX[m], S_X, sXS, 1024 * m, key) for m in range(4)])
    pre2 = [salu("s_add_u32", sT, sXS, 40960), salu("s_add_u32", "m0", sW6K, u["addr"] + 4096)]
    return [g0, (pre2, [dma(vX[m], S_X, sT, 1024 * m, key) for m in range(2)])]


def set_pf_proj(tail=False):
    o = []
    for key, rs in sPF.items():
        if key[0] == "P":
            continue
        if key[0] == "W":
            o += [salu("s_add_u32", rs[0], sWQ, key[1] * 524288 + key[2] * 128)]
        else:
            o += [salu("s_add_u32", rs[0], sX, key[1] * 128), salu("s_add_u32", rs[1], sX, key[1] * 128 + 40960)]
    return o


ORD2 = orders(16, 4, 8, 7, {1: [4], 2: [1, 1, 2, 2, 2, 0, 0], 3: [1, 2, 2, 2, 1, 0, 0], 4: [2, 1, 2, 2, 1, 0, 0]}[OPT["rot2"]])[0] if OPT["rot2"] else [list(range(16))] * 4
ORDQ = orders(10, 4, None, 0, {1: [1, 1, 2, 2, 2, 1, 1], 2: [1, 1, 4], 3: [1, 1, 2, 2, 1, 1, 1, 1]}[OPT["rotq"]])[0] if OPT["rotq"] else [list(range(10))] * 4
assert all(o[:2] == [0, 1] for o in ORDQ)
TBLQ = [sum(x << (4 * n) for n, x in enumerate(o[2:])) for o in ORDQ]
ORDQ1 = {0: ORDQ, 1: orders(10, 4, None, 0, [4])[0], 2: orders(10, 4, None, 0, [2, 2, 2, 1, 1, 1, 1])[0], 3: orders(10, 4, None, 0, [4, 0, 1, 1, 1, 1, 1, 1])[0]}[OPT["rotq1"]]
TBLQ1 = [sum(x << (4 * n) for n, x in enumerate(o[2:])) for o in ORDQ1]
TBLQ0 = [o[0] | o[1] << 4 for o in ORDQ1]


def by_role(dst, role, consts):
    o = [salu("s_mov_b32", dst, "0x%x" % consts[0])]
    for r in range(1, 4):
        o += [[scmp("s_cmp_eq_u32", role, r), salu("s_cselect_b32", dst, "0x%x" % consts[r], dst)]]
    return o


TBL2 = [sum(x << (4 * n) for n, x in enumerate(o)) for o in ORD2]


def next_off(dst, tbl, base, stride):
    return [salu("s_and_b32", dst, f"s{tbl}", 15), salu("s_lshr_b64", f"s[{tbl}:{tbl + 1}]", f"s[{tbl}:{tbl + 1}]", 4),
            salu("s_mul_i32", dst, dst, stride), salu("s_add_u32", dst, dst, base)]


def set_pf_out():
    o = [salu("s_and_b32", "s68", "s4", 3), salu("s_mul_i32", "s68", "s68", 1310720), salu("s_mul_i32", "s69", "s5", WOT_BLK),
         salu("s_add_u32", "s68", "s68", "s69"), salu("s_add_u32", "s68", "s68", WS_WOT)]
    o += [[salu("s_add_u32", f"s{S_WQ}", "s90", "s68"), salu("s_addc_u32", "s69", "s91", 0)]]
    o += [salu("s_and_b32", f"s{S_WQ + 1}", "s69", "0xffff"), salu("s_mov_b32", f"s{S_WQ + 2}", 1310720),
          salu("s_mov_b32", f"s{S_X}", f"s{S_WQ}"), salu("s_mov_b32", f"s{S_X + 1}", f"s{S_WQ + 1}"), salu("s_mov_b32", f"s{S_X + 2}", 1310720)]
    o += [salu("s_lshr_b32", "s70", sWAVE, 1), salu("s_mul_i32", "s68", sWAVE, 16 * 20480), salu("s_lshl_b32", "s69", "s70", 14),
          salu("s_add_u32", "s68", "s68", "s69"), salu("s_lshl_b32", "s69", "s70", 13), salu("s_sub_u32", "s69", 4096, "s69")]
    o += [salu("s_add_u32", "s70", "s3", "s4"), salu("s_and_b32", "s70", "s70", 3),
          salu("s_mov_b32", "s34", "0x%x" % (TBL2[0] & 0xffffffff)), salu("s_mov_b32", "s35", "0x%x" % (TBL2[0] >> 32))]
    for r in range(1, 4):
        o += [[scmp("s_cmp_eq_u32", "s70", r), salu("s_cselect_b32", "s34", "0x%x" % (TBL2[r] & 0xffffffff), "s34"),
               salu("s_cselect_b32", "s35", "0x%x" % (TBL2[r] >> 32), "s35")]]
    o += [salu("s_and_b32", "s70", "s34", 15), salu("s_mul_i32", "s70", "s70", 20480), salu("s_add_u32", "s70", "s70", "s68"),
          salu("s_bfe_u32", "s71", "s34", "0x40004"), salu("s_mul_i32", "s71", "s71", 20480), salu("s_add_u32", "s71", "s71", "s68")]
    for r, (st, pi, off) in PF2.items():
        o += [salu("s_mul_i32", r, "s69", pi), salu("s_add_u32", r, r, "s71" if st else "s70")]
        if off:
            o += [salu("s_add_u32", r, r, off)]
    return o


def groups_at(iss):
    order = {"W": 0, "X": 1, "K": 2, "V": 2}
    keys = sorted([k for k, u in U.items() if u["iss"] is not None and u["iss"] % 27 == iss % 27 and "even" not in u],
                  key=lambda k: (U[k]["land"] - U[k]["iss"], order[k[0]], k))
    return [g for k in keys for g in unit_dmas(k)]


def place_dmas(S, groups, cand, lo):
    ci = 0
    for pre, ds in groups:
        g = cand[ci]
        for n, p in enumerate(pre):
            S.put(max(lo, g - len(pre) + n), p)
        for d in ds:
            S.put(cand[ci], d)
            ci += 1


def tags_for(n):
    t = [k for k, u in U.items() if (u["land"] - n) % 27 == 0]
    if n == OPT["flagbar"]:
        t += ["ost", "jst"]
    if n == 2:
        t += ["J"]
    return t


def atomic_add(vdata, soff):
    return Ins(f"buffer_atomic_add {vdata}, {vFLG}, s[{S_FLG}:{S_FLG + 3}], {soff} offen sc1", "atomic",
               rd=[vdata, vFLG, soff] + regs("s", S_FLG, 4), tag="flag")


def poll_load(vdst, soff):
    return Ins(f"buffer_load_dword {vdst}, off, s[{S_FLG}:{S_FLG + 3}], {soff} sc1", "vld", rd=[soff] + regs("s", S_FLG, 4), wr=[vdst])


class Win:
    def __init__(self, rs, init):
        self.rs = rs
        self.cur = init

    def move(self, new):
        d = (new - self.cur) & 0xffffffff
        self.cur = new
        return [valu("v_add_u32", r, "0x%x" % d, r) for r in self.rs] if d else []


def plan_windows(addrs, span):
    want = []
    i = 0
    while i < len(addrs):
        lo = hi = addrs[i]
        j = i + 1
        while j < len(addrs) and max(hi, addrs[j]) - min(lo, addrs[j]) + span < 65536:
            lo, hi = min(lo, addrs[j]), max(hi, addrs[j])
            j += 1
        want += [lo] * (j - i)
        i = j
    return want


KWANT = plan_windows([U[("K", t)]["addr"] for t in range(16)], 4096)
VWANT = plan_windows([U[("V", t)]["addr"] for t in range(16)], 4096)
check_units(False)
check_units(True)


def pstore(v0, idx):
    return Ins(f"buffer_store_dwordx2 v[{v0}:{v0 + 1}], off, s[{S_PROF}:{S_PROF + 3}], {sPROF} offset:{8 * idx}", "vst",
               rd=[f"v{v0}", f"v{v0 + 1}", sPROF] + regs("s", S_PROF, 4))


def prof_stamp(idx, v0=252):
    if not OPT["prof"]:
        return []
    return [raw("s_memtime s[76:77]", "other", wr=["s76", "s77"]),
            raw("s_memrealtime s[78:79]", "other", wr=["s78", "s79"]),
            raw("s_waitcnt lgkmcnt(0)", "drainlg"),
            valu("v_mov_b32", f"v{v0}", "s76"),
            valu("v_mov_b32", f"v{v0 + 1}", "s78"),
            pstore(v0, idx)]


def bar_seq(tags, idx):
    if OPT["prof"] < 2:
        return [needboth(tags), barrier()] + prof_stamp(idx)
    return [raw("s_memtime s[58:59]", "other", wr=["s58", "s59"]), raw("s_waitcnt lgkmcnt(0)", "drainlg"),
            needboth(tags), barrier(),
            raw("s_memtime s[76:77]", "other", wr=["s76", "s77"]),
            raw("s_memrealtime s[78:79]", "other", wr=["s78", "s79"]),
            raw("s_waitcnt lgkmcnt(0)", "drainlg"), salu("s_sub_u32", "s76", "s76", "s58"),
            valu("v_mov_b32", "v252", "s76"), valu("v_mov_b32", "v253", "s78"), pstore(252, idx)]


def a_read(i, dt, ks, t):
    p, xy = dt >> 1, dt & 1
    off = U[("W", i, p >> 1)]["addr"] + ks * 4096 + t * 512 + xy * 8
    return ds_read("ds_read_b64_tr_b16", ("a", ABUF[dt % 2] + 4 * ks + 2 * t), 2, wA[p & 1], off)


def first_reads(i):
    ax = U[("X", i)]["addr"] - XS[0]

    def A(ks, t):
        return a_read(i, 0, ks, t)

    def B(qt, ks):
        return ds_read("ds_read_b128", ("a", bx(qt, ks)), 4, xA[ks], ax + qt * 2048)
    return [A(0, 0), A(0, 1), B(0, 0), A(1, 0), A(1, 1), B(0, 1)] + [B(qt, ks) for qt in range(1, 6) for ks in range(2)]


def k_read(t, j):
    kt, ks = j >> 2, j & 3
    return ds_read("ds_read_b128", ("a", kf(kt, ks)), 4, kA[ks], U[("K", t)]["addr"] - KWANT[t] + kt * 4096)


def epilogue_groups(tmp, dst=None, vaddr=None):
    groups = []
    n = 0
    for T in range(3):
        for ph in range(2):
            for qs in range(2):
                for pl in range(2):
                    qt = 2 * T + qs
                    tb = tmp + 4 * (n % 3)
                    src = oacc(qt, 4 * ph + 2 * pl)
                    db = tb if dst is None or dst(n) is None else dst(n)
                    rd = [valu("v_accvgpr_read_b32", f"v{tb + i}", f"a{src + i}") for i in range(8)]
                    mu = [valu("v_mul_f32", f"v{tb + i}", vR[qt], f"v{tb + i}") for i in range(8)]
                    cv = [valu("v_cvt_pk_bf16_f32", f"v{db + i}", f"v{tb + 2 * i}", f"v{tb + 2 * i + 1}") for i in range(4)]
                    pre = [salu("s_add_u32", sE, sO, ph * 12288 + T * 4096)] if qs == 0 and pl == 0 else []
                    imm = qs * 2048 + pl * 1024
                    groups.append((rd + mu + cv, pre, vstore(("v", db), 4, vaddr or vL16, S_OST, sE, imm, tag="ost", flags=SC1), imm))
                    n += 1
    return groups


def conv_items(T, ps, packed=()):
    out = []
    for p in ps:
        for qs in range(2):
            R, Dd = qacc(p, 0, 2 * T + qs), qf(2 * T + qs, p)
            if OPT["tmax"]:
                pass
            elif p in packed:
                out += [(p, qs, valu("v_pk_mul_f32", f"v[{R + x}:{R + x + 1}]", f"v[{R + x}:{R + x + 1}]", "s[86:87]" if False else vC2)) for x in range(0, 8, 2)]
            else:
                out += [(p, qs, valu("v_mul_f32", f"v{R + x}", sC, f"v{R + x}")) for x in range(8)]
            out += [(p, qs, valu("v_cvt_pk_bf16_f32", f"v{Dd + x}", f"v{R + 2 * x}", f"v{R + 2 * x + 1}")) for x in range(4)]
    return out


def q_phase(second):
    S = Sched()
    extra, mid = {}, {}
    if second:
        extra[OPT["k1s"]] = unit_dmas(("K", 1), sJ)
    else:
        jp = OPT["jpro"]
        if jp == 0:
            extra[0] = [g for jj in range(5) for g in unit_dmas(("J", jj), sE)]
            extra[1] = [g for jj in range(5, 10) for g in unit_dmas(("J", jj), sE)]
        elif jp < 10:
            extra[1] = [g for jj in range(jp, 10) for g in unit_dmas(("J", jj), sE)]
        kv = [unit_dmas(k, sE) for k in [("K", 0), ("V", 0), ("K", 1)]]
        if OPT["kplan"] == 0:
            extra[4], extra[5], extra[6] = kv
        elif OPT["kplan"] == 1:
            extra[7], mid[8] = kv[0], kv[1]
            extra[8] = kv[2]
        elif OPT["kplan"] == 2:
            extra[4], extra[7], mid[8] = kv
        elif OPT["kplan"] == 4:
            extra[5], extra[6], extra[7] = kv
        elif OPT["kplan"] == 5:
            extra[4], extra[6], extra[7] = kv
        elif OPT["kplan"] == 3:
            extra[5], extra[7], mid[8] = kv
    for i in range(10):
        q0 = S.n()
        for dt in range(8):
            for qt in range(6):
                for ks in range(2):
                    acc = ("v", qacc(dt >> 1, dt & 1, qt))
                    S.add(mfma(16, acc, ("a", ABUF[dt % 2] + 4 * ks), ("a", bx(qt, ks)), None if (i == 0 and ks == 0) else acc))
        for dt in range(1, 8):
            gaps = [4, 5, 6, 7] if dt == 1 else [0, 2, 3, 4]
            for n, (ks, t) in enumerate([(0, 0), (0, 1), (1, 0), (1, 1)]):
                S.put(q0 + 12 * (dt - 1) + gaps[n], a_read(i, dt, ks, t))
        S.put(q0 + 35, needboth(tags_for(i - 0.5)), barrier())
        S.put(q0 + 83, *bar_seq(tags_for(i), 2 + i))
        if i < 9:
            for n, r in enumerate(first_reads(i + 1)):
                S.put(q0 + 84 + n, r)
        else:
            kw = Win(kA, KWANT[15])
            mv = kw.move(KWANT[0])
            S.put(q0 + 80, *mv[:2])
            S.put(q0 + 82, *mv[2:])
            for j in range(8):
                S.put(q0 + 84 + j, k_read(0, j))
        if i <= 7:
            for n, x in enumerate([salu("s_bfe_u32", sXS, sQT, "0x%x" % (0x40000 + 4 * i)), salu("s_lshl_b32", sWS, sXS, 19),
                                   salu("s_add_u32", sWS, sWS, sWQ), salu("s_lshl_b32", sXS, sXS, 7), salu("s_add_u32", sXS, sXS, sX),
                                   salu("s_add_u32", sW1, sWS, 128)]):
                S.put(q0 + 26 + n, x)
        early = groups_at(i - 1) if i else []
        place_dmas(S, early + mid.get(i, []), [q0 + g for g in ((9, 17, 25, 33) if OPT["qsp"] and i == 9 else (9, 13, 17, 21, 25, 29, 31, 33))], q0)
        late = groups_at(i - 0.5) + extra.get(i, [])
        if i == 8 and 8 in extra:
            late = extra[8] + groups_at(i - 0.5)
        cand = [q0 + 37 + 4 * x for x in range(12)]
        nd = sum(len(g[1]) for g in late)
        if nd > 12:
            cand = sorted(cand + [q0 + 67, q0 + 71, q0 + 75, q0 + 79][:nd - 12])
        if OPT["qsp"] and i >= 8 and nd:
            allowed = [37, 41, 43, 45, 47, 49, 53, 55, 57, 59, 61, 65, 67, 69, 71, 73, 77, 79, 81]
            cand = [q0 + allowed[round(x * (len(allowed) - 1) / max(nd - 1, 1))] for x in range(nd)]
        place_dmas(S, late, cand, q0 + 35)
    if not second:
        for jj in range(10):
            q0 = 96 * 3
            if jj == 8:
                S.put(q0 + 65, valu("v_add_u32", vJ, D[9] - D[4] - 2 * 16384, vJ))
            for tt in range(2):
                g = q0 + [10, 11, 18, 19, 22, 23, 30, 31, 34, 42, 43, 46, 47, 54, 55, 58, 66, 67, 70, 71][2 * jj + tt]
                S.put(g, ds_read("ds_read_b64_tr_b16", ("a", 4 * jj + 2 * tt), 2, vJ, (jj >> 2) * 16384 + (jj & 3) * 1024 + tt * 8192))
            nq, pair = divmod(2 * jj, 5)
            g = 96 * (4 + jj // 3) + [19, 25, 31][jj % 3]
            if OPT["jlate"]:
                g = 96 * (3 + jj // 2) + ([79, 82] if (3 + jj // 2) in extra else [77, 81])[jj % 2]
            S.put(g - 1, salu("s_add_u32", sJ, sWOX if pair == 4 else sWOD, nq * 1310720 + pair * 4096))
            S.put(g, vstore(("a", 4 * jj), 4, vL16, S_WOT, sJ, 0, tag="jst", flags=SC1))
    if second:
        eg = epilogue_groups(EPI)
        ep = []
        for i in range(8):
            for g in eg[3 * i:3 * i + 3]:
                ep += [(x, 96 * i, None) for x in g[0]]
            for g in eg[3 * i:3 * i + 3]:
                ep += [(x, 96 * i + OPT["stg"], None) for x in g[1] + [g[2]]]
        ep[-1] = (ep[-1][0], ep[-1][1], 96 * 9 - 1)
        S.stream(ep)
        S.put(96 * 9 + 2, salu("s_add_u32", sO, sO, 8 * 12288))
    q0 = 96 * 9
    g = q0 + 2
    for x in ([salu("s_add_u32", sWQ, sWQ, 512)] + set_pf_proj(True) + [salu("s_add_u32", "s68", "s3", "s4"), salu("s_and_b32", "s68", "s68", 3)] + by_role(sQT, "s68", TBLQ) if not second else set_pf_out()):
        S.put(g, *(x if isinstance(x, list) else [x]))
        g += 1 if g < q0 + 94 else 0
        while g in (q0 + 35, q0 + 83) or any(x.kind == "salu" for x in S.fixed.get(g, [])):
            g += 1
    if second:
        S.stream([(valu("v_mov_b32", r, vL16), q0 + 2, None) for r in vW + vX])
    if not OPT["tmax"]:
        S.put(q0 + 7, valu("v_mov_b32", "v242", sC), valu("v_mov_b32", "v243", sC))
    S.stream([(x, min(q0 + 12 * (2 * p + 1) + 2 * qs + 1 + 2, q0 + 95), None) for p, qs, x in conv_items(0, range(4))])
    if OPT["tmax"]:
        for T in (1, 2):
            S.stream([(x, q0 + 12 * (2 * p + 1) + 4 * T + 2 * qs + 1 + 2, None) for p, qs, x in conv_items(T, range(3))])
    S.put(-1, *prof_stamp(1))
    return S.finish(lead=first_reads(0), report=OPT["report"])


def lspread(qt, tmp):
    l = f"v{lacc(qt)}"
    return [valu("v_mov_b32", tmp, l), perm("v_permlane32_swap_b32", tmp, l), valu("v_add_f32", l, l, tmp),
            valu("v_mov_b32", tmp, l), perm("v_permlane16_swap_b32", tmp, l), valu("v_add_f32", l, l, tmp)]


def interleave(a, b):
    return [x for p in zip(a, b) for x in p]


def lcheck():
    l = [f"v{lacc(qt)}" for qt in range(6)]
    if OPT["tmax"] == 2:
        return [valu("v_add_f32", vT[0], l[0], l[1]), valu("v_add_f32", vT[1], l[2], l[3]), valu("v_add_f32", vT[0], vT[0], l[4]),
                valu("v_add_f32", vT[1], vT[1], l[5]), valu("v_add_f32", vT[0], vT[0], vT[1]), valu("v_cmp_ngt_f32", "vcc", sHI, vT[0])]
    if OPT["tmax"]:
        x = [f"v{mrun(qt)}" for qt in range(6)]
        return ([valu("v_fma_f32", x[q], x[q], sC, f"v{mneg(q)}") for q in range(6)] +
                [valu("v_add_f32", vT[0], l[0], l[1]), valu("v_max3_f32", vT[1], x[0], x[1], x[2]),
                 valu("v_add_f32", vT[0], vT[0], l[2]), valu("v_max3_f32", vT[1], vT[1], x[3], x[4]),
                 valu("v_add_f32", vT[0], vT[0], l[3]), valu("v_add_f32", vT[0], vT[0], l[4]),
                 valu("v_max_f32", vT[1], vT[1], x[5]), valu("v_add_f32", vT[0], vT[0], l[5]),
                 valu("v_cmp_ngt_f32", "s[56:57]", sLO, vT[1]),
                 valu("v_cmp_ngt_f32", "vcc", sHI, vT[0]),
                 salu("s_or_b64", "vcc", "vcc", "s[56:57]")])
    return [valu("v_add_f32", vT[0], l[0], l[1]), valu("v_min3_f32", vT[1], l[0], l[1], l[2]),
            valu("v_add_f32", vT[0], vT[0], l[2]), valu("v_min3_f32", vT[1], vT[1], l[3], l[4]),
            valu("v_add_f32", vT[0], vT[0], l[3]), valu("v_add_f32", vT[0], vT[0], l[4]),
            valu("v_min_f32", vT[1], vT[1], l[5]), valu("v_add_f32", vT[0], vT[0], l[5]),
            valu("v_cmp_nlt_f32", "s[56:57]", sLO, vT[1]),
            valu("v_cmp_ngt_f32", "vcc", sHI, vT[0]),
            salu("s_or_b64", "vcc", "vcc", "s[56:57]")]


def a_phase(last):
    S = Sched()
    qk = [[0] * 3 for _ in range(16)]
    pv = [[0] * 3 for _ in range(16)]

    def QK(t, T):
        qk[t][T] = S.n()
        for qs in range(2):
            for kt in range(2):
                s = ("v", sreg(2 * T + qs) + 4 * kt)
                for ks in range(4):
                    S.add(mfma(16, s, ("a", kf(kt, ks)), ("v", qf(2 * T + qs, ks)), None if ks == 0 else s))

    def PV(t, T):
        pv[t][T] = S.n()
        sums = []
        for qs in range(2):
            l = ("v", lacc(2 * T + qs))
            sums.append(mfma(16, l, ("v", ONES), ("v", sreg(2 * T + qs)), None if t == 0 else l))
        if t == 15:
            for m in sums:
                S.add(m)
        for dt in range(8):
            for qs in range(2):
                o = ("a", oacc(2 * T + qs, dt))
                S.add(mfma(16, o, ("a", vf(dt)), ("v", sreg(2 * T + qs)), None if t == 0 else o))
        if t < 15:
            for m in sums:
                S.add(m)

    for t in range(16):
        QK(t, 0)
        if t:
            PV(t - 1, 1)
        QK(t, 1)
        if t:
            PV(t - 1, 2)
        QK(t, 2)
        PV(t, 0)
    PV(15, 1)
    PV(15, 2)
    bar = {}
    kw, vw = Win(kA, KWANT[0]), Win(vA, VWANT[0])
    for t in range(16):
        g0 = pv[t - 1][2] if t else qk[0][1]
        bar[10 + t] = g0 - 1
        S.put(g0 - 1, *bar_seq(tags_for(10 + t), 12 + t))
        if t == 15:
            S.put(g0 - 1, scmp("s_cmp_eq_u32", sIT, 1), raw("s_cbranch_scc1 L_tail2", "branch", rd=["scc"]), label("L_CUT"))
        for n, m in enumerate(vw.move(VWANT[t])):
            S.put(g0 - 14 + 3 * (n // 2), m)
        for dt in range(8):
            for tt in range(2):
                S.put(g0 + 4 * dt + 1 + 2 * tt,
                      ds_read("ds_read_b64_tr_b16", ("a", vf(dt) + 2 * tt), 2, vA[dt], U[("V", t)]["addr"] - VWANT[t] + tt * 4096))
        if t < 15:
            for n, m in enumerate(kw.move(KWANT[t + 1])):
                S.put((qk[t][0] + 9 if t else qk[0][2] + 2) + (3 if t else 2) * (n // 2), m)
            for j in range(8):
                S.put(qk[t][2] + [8, 10, 12, 14, 17, 19, 21, 23][j], k_read(t + 1, j))
    if not last:
        S.stream([(m, pv[15][0], None) for m in vw.move(VWANT[0])])
    bar[26] = pv[15][1] - 1
    S.put(bar[26], *(prof_stamp(28) if last else bar_seq(tags_for(26), 28)))
    fr = [] if last else first_reads(0)
    for n, r in enumerate(fr[:10]):
        S.put(pv[15][1] + [1, 3, 5, 7, 9, 11, 13, 15, 16, 17][n], r)
    for n, r in enumerate(fr[10:]):
        S.put(pv[15][2] + 3 + 2 * n, r)
    lastkv = 0
    for key in sorted([k for k, u in U.items() if "even" in u], key=lambda k: U[k]["even"]):
        cand = []
        for m in range(4):
            g = int(kpos(4 * U[key]["even"] + m))
            while S.used(g, False) > 0 or g - 1 in bar.values():
                g += 1
            cand.append(g)
        lo = bar.get(U[key]["iss"], -2) + 1
        assert cand[0] > lo
        place_dmas(S, unit_dmas(key), cand, lo)
        lastkv = cand[-1]
    for n in range(10, 27):
        groups = groups_at(n - 1)
        if n == 26:
            groups = [g for k in ([("P", 0), ("P", 1)] if last else [("K", 0), ("V", 0)]) for g in unit_dmas(k)]
        nd = sum(len(g[1]) for g in groups)
        if n == 10:
            cand = [(16 // max(nd, 1)) * x for x in range(nd)]
            lo = -1
        else:
            lo = bar[n - 1] + 1
            if n == 11 or n == 26 or OPT["uni"]:
                a = lo + 5
            else:
                a = qk[n - 10][0] + 1 if nd <= 8 else pv[n - 11][0] + 6
            a = max(a, lastkv + 3)
            b = bar[n] - 1
            cand = []
            for x in range(nd):
                g = a + (b - a) * x // nd
                while any(i.kind in MEMK for i in S.fixed.get(g, [])) or g in cand:
                    g += 1
                cand.append(g)
            assert not cand or cand[-1] < bar[n]
        place_dmas(S, groups, cand, lo)
    if OPT["xpace"]:
        for t in range(1, 14):
            for T in range(3):
                S.put(pv[t][T] + 17, nop(OPT["xpace"]))
                S.put(qk[t][T] + 15, nop(OPT["xpace"]))
    S.put(qk[14][0] - 3, salu("s_add_u32", sKV, sKV, 262144))
    g = bar[OPT["flagbar"]] + 2
    S.put(g - 1, scmp("s_cmp_eq_u32", sIT, 0), salu("s_cselect_b32", sE, sFB, sFG), salu("s_cselect_b32", sJ, "0x10000", 1))
    S.put(g + 1, valu("v_mov_b32", f"v{EPI}", sJ))
    S.put(g + 4, atomic_add(f"v{EPI}", sE))
    g = qk[12 - OPT['t23']][0]
    S.put(g + 1, scmp("s_cmp_eq_u32", sIT, 1), salu("s_cselect_b32", sE, sFB, "0x1000"))
    S.put(g + 3, poll_load(vPOLL[1], sE))
    g = qk[13 - OPT['t23']][0]
    S.put(g + 1, salu("s_lshl_b32", sWANT, sIT, 23), valu("v_readfirstlane_b32", sQ, vPOLL[1]))
    S.put(g + 4, scmp("s_cmp_lt_u32", sQ, sWANT), raw("s_cbranch_scc1 L_spin3", "branch", rd=["scc"]), label("L_spin3_back"))
    if last:
        g = bar[25] + 2
        S.put(g, poll_load(vPOLL[0], sFG))
        su = [salu("s_lshr_b32", "s84", "s4", 2), salu("s_mul_i32", "s7", "s3", O_GRP), salu("s_mul_i32", "s58", "s84", 786432),
              salu("s_add_u32", "s7", "s7", "s58"), [salu("s_add_u32", f"s{S2B}", "s90", "s7"), salu("s_addc_u32", "s59", "s91", 0)],
              salu("s_and_b32", f"s{S2B + 1}", "s59", "0xffff"), salu("s_mov_b32", f"s{S2B + 2}", 786432),
              salu("s_mul_i32", sBB, sWAVE, 16 * 12288), salu("s_mov_b64", f"s[{TB}:{TB + 1}]", "s[34:35]")] + next_off(sB2, TB, sBB, 12288)
        su += [salu("s_and_b32", "s58", sWAVE, 1), salu("s_mul_i32", "s58", "s58", 3 * 2048), salu("s_sub_u32", "s59", 3 * 2048, "s58"),
               salu("s_lshr_b32", "s85", sWAVE, 1), salu("s_lshl_b32", "s85", "s85", 12), salu("s_add_u32", "s58", "s58", "s85"),
               salu("s_add_u32", "s59", "s59", "s85"), salu("s_sub_u32", "s85", 2048, "s85")]
        g += 1
        for x in su:
            while any(i.kind == "salu" for i in S.fixed.get(g, [])):
                g += 1
            S.put(g, *(x if isinstance(x, list) else [x]))
            g += 1
        va = [valu("v_add_u32", V2B[0], "s58", vL16), valu("v_add_u32", V2B[3], "s59", vL16)]
        for q in (1, 2):
            va += [valu("v_add_u32", V2B[q], "s85", V2B[q - 1]), valu("v_add_u32", V2B[3 + q], "s85", V2B[2 + q])]
        S.stream([(x, g, pv[15][1] - 3) for x in va])
        g = pv[15][0] + 12
        S.put(g, valu("v_readfirstlane_b32", sQ, vPOLL[0]))
        S.put(g + 3, salu("s_and_b32", sQ, sQ, "0xff"), scmp("s_cmp_lt_u32", sQ, 8),
              raw("s_cbranch_scc1 L_spin1", "branch", rd=["scc"]), label("L_spin1_back"))
        for n, l in enumerate([l for qi in range(6) for l in k2_loads_B(0, qi)]):
            S.put(pv[15][1] + 1 + 2 * n if n < 8 else pv[15][2] + 3 + 3 * (n - 8), l)
    if OPT["codepf2"]:
        g = qk[OPT["codepf2"]][0] - 6
        S.put(g - 2, salu("s_mul_i32", sJ, sIT, "L_tail2-L_q2"))
        S.put(g - 1, salu("s_add_u32", sJ, sJ, "L_q2-L_pc"))
        S.put(g, salu("s_add_u32", sJ, sJ, sCP))
        S.put(g + 1, salu("s_min_u32", sJ, sJ, "L_endcode-L_pc-256"))
        S.put(g + 2, valu("v_and_b32", f"v{EPI + 2}", 16, vL16), valu("v_lshlrev_b32", f"v{EPI + 2}", 3, f"v{EPI + 2}"))
        S.put(g + 3, valu("v_add_u32", f"v{EPI + 2}", sJ, f"v{EPI + 2}"))
        S.put(g + 5, Ins(f"global_load_dword v{EPI + 3}, v{EPI + 2}, s[96:97]", "vld", rd=[f"v{EPI + 2}", "s96", "s97"], wr=[f"v{EPI + 3}"]))
    for T in (1, 2):
        if OPT["pk"] and not OPT["tmax"]:
            nfree = OPT["nfree"] if T == 1 else 0
            S.stream([(x, -1, None) for p, qs, x in conv_items(T, range(nfree))] +
                     [(x, qk[0][T] - 1, qk[0][T] - 1) for p, qs, x in conv_items(T, range(nfree, 4), packed=range(4))])
        else:
            c = [(x, -1, None) for p, qs, x in conv_items(T, range(3 if OPT["tmax"] else 0, 4))]
            c[-1] = (c[-1][0], -1, qk[0][T] - 1)
            S.stream(c)
    fin = []
    if OPT["one1"]:
        for T in range(3):
            fin += [(x, [pv[15][1] + 12, pv[15][2], pv[15][2] + 4][T], None) for x in interleave(lspread(2 * T, f"v{lacc(2 * T) + 1}"), lspread(2 * T + 1, f"v{lacc(2 * T + 1) + 1}"))]
    S.stream(fin + [(x, pv[15][2] + 4, None) for x in lcheck()])
    units = []
    for t in range(16):
        for qt in range(6):
            s = sreg(qt)
            T, qs = qt >> 1, qt & 1
            dl = pv[t][T] + qs - 2
            units.append(dict(e=qk[t][T] + 8 * qs + 7 + 2,
                              exps=[valu("v_exp_f32", f"v{s + r}", f"v{s + r}") for r in range(8)],
                              cvts=[(valu("v_cvt_pk_bf16_f32", f"v{s + r}", f"v{s + 2 * r}", f"v{s + 2 * r + 1}"), 2 * r + 2, dl) for r in range(4)]))
    if OPT["tmax"]:
        for n, u in enumerate(units):
            t, qt = divmod(n, 6)
            s, m, mn = sreg(qt), f"v{mrun(qt)}", f"v{mneg(qt)}"
            fma = [valu("v_fma_f32", f"v{s + r}", f"v{s + r}", sC, mn) for r in range(8)]
            if t == 0:
                pre = [valu("v_max3_f32", m, f"v{s}", f"v{s + 1}", f"v{s + 2}"), valu("v_max3_f32", mn, f"v{s + 3}", f"v{s + 4}", f"v{s + 5}"),
                       valu("v_max3_f32", m, m, f"v{s + 6}", f"v{s + 7}"), valu("v_max_f32", m, m, mn)]
                for op in ("v_permlane32_swap_b32", "v_permlane16_swap_b32"):
                    pre += [valu("v_mov_b32", mn, m), perm(op, mn, m), valu("v_max_f32", m, m, mn)]
                pre += [valu("v_mul_f32", mn, sNC, m)] + fma
                need = [len(pre) - 7 + r for r in range(8)]
            else:
                pre, need = [], []
                for r in range(0, 8, 2):
                    if OPT["tmax"] == 1:
                        pre += [valu("v_max3_f32", m, m, f"v{s + r}", f"v{s + r + 1}")]
                    pre += [fma[r], fma[r + 1]]
                    need += [len(pre) - 1, len(pre)]
            u["pre"] = pre
            u["exps"] = list(zip(u["exps"], need))
        S.packers.append(SoftmaxPacker2(units,
                                        lambda g: 1 if S.used(g, False) < 2 and (g < qk[2][0] or g >= qk[13][0] or (g * OPT["xnum"]) % 100 < OPT["xnum"]) else 0))
    else:
        S.packers.append(SoftmaxPacker(units))
    return S.finish(lead=[k_read(0, j) for j in range(8)], report=OPT["report"])


def slow_path():
    o = [label("L_slow"), drain(), nop(16)]
    KF = [EPI + 4 * k for k in range(4)]
    VFR = 56
    vM = [f"v{120 + q}" for q in range(6)]
    vKo, vVo, vt, vu = "v60", "v61", "v62", "v63"
    o += [valu("v_lshrrev_b32", vt, 4, vL16), valu("v_and_b32", vu, 15, vt), valu("v_lshrrev_b32", vt, 4, vt),
          valu("v_lshlrev_b32", vKo, 8, vu), valu("v_lshl_add_u32", vKo, vt, 4, vKo),
          valu("v_lshlrev_b32", vVo, 10, vt), valu("v_lshl_add_u32", vVo, vu, 1, vVo)]
    o += [salu("s_sub_u32", "s58", sKV, 262144)]
    o += [valu("v_mov_b32", m, "0xff800000") for m in vM]

    def scores():
        r = []
        for kt in range(2):
            r += [salu("s_add_u32", "s61", "s59", kt * 4096)]
            r += [vload(("v", KF[ks]), 4, vKo, S_K, "s61", 64 * ks) for ks in range(4)] + [drain()]
            for qt in range(6):
                s = ("v", sreg(qt) + 4 * kt)
                r += [mfma(16, s, ("v", KF[ks]), ("v", qf(qt, ks)), None if ks == 0 else s) for ks in range(4)]
            r += [nop(16)]
        return r
    o += [salu("s_mov_b32", "s59", "s58"), salu("s_mov_b32", "s60", 16), label("L_slow1")] + scores()
    for qt in range(6):
        o += [valu("v_max3_f32", vM[qt], vM[qt], f"v{sreg(qt) + r}", f"v{sreg(qt) + r + 1}") for r in range(0, 8, 2)]
    o += [salu("s_add_u32", "s59", "s59", 8192), salu("s_sub_u32", "s60", "s60", 1), scmp("s_cmp_lg_u32", "s60", 0),
          raw("s_cbranch_scc1 L_slow1", "branch", rd=["scc"])]
    for qt in range(6):
        for op in ("v_permlane32_swap_b32", "v_permlane16_swap_b32"):
            o += [valu("v_mov_b32", vt, vM[qt]), nop(2), perm(op, vt, vM[qt]), valu("v_max_f32", vM[qt], vM[qt], vt)]
        o += [valu("v_mov_b32", f"v{lacc(qt) + r}", 0) for r in range(4)]
    o += [valu("v_accvgpr_write_b32", f"a{r}", 0) for r in range(192)]
    o += [salu("s_mov_b32", "s59", "s58"), salu("s_mov_b32", "s60", 16), label("L_slow2")] + scores()
    for qt in range(6):
        s = sreg(qt)
        o += [valu("v_sub_f32", f"v{s + r}", f"v{s + r}", vM[qt]) for r in range(8)]
        if OPT["tmax"]:
            o += [valu("v_mul_f32", f"v{s + r}", sC, f"v{s + r}") for r in range(8)]
        o += [valu("v_exp_f32", f"v{s + r}", f"v{s + r}") for r in range(8)]
        o += [valu("v_cvt_pk_bf16_f32", f"v{s + r}", f"v{s + 2 * r}", f"v{s + 2 * r + 1}") for r in range(4)]
    o += [salu("s_add_u32", "s57", "s59", 4096)]
    for dt in range(8):
        for j in range(8):
            o += [vload(("v", 184 + j), 1, vVo, S_V, "s57" if j >= 4 else "s59", (j & 3) * 256 + 32 * dt, op="buffer_load_ushort")]
        o += [drain()]
        o += [valu("v_lshl_or_b32", f"v{VFR + r}", f"v{185 + 2 * r}", 16, f"v{184 + 2 * r}") for r in range(4)]
        o += [mfma(16, ("a", oacc(qt, dt)), ("v", VFR), ("v", sreg(qt)), ("a", oacc(qt, dt))) for qt in range(6)]
        o += [nop(8)]
    o += [mfma(16, ("v", lacc(qt)), ("v", ONES), ("v", sreg(qt)), ("v", lacc(qt))) for qt in range(6)] + [nop(16)]
    o += [salu("s_add_u32", "s59", "s59", 8192), salu("s_sub_u32", "s60", "s60", 1), scmp("s_cmp_lg_u32", "s60", 0),
          raw("s_cbranch_scc1 L_slow2", "branch", rd=["scc"])]
    o += [nop(16)]
    if OPT["one1"]:
        for qt in range(6):
            o += lspread(qt, vt)
    o += [drain(), scmp("s_cmp_eq_u32", sIT, 1), raw("s_cbranch_scc1 L_back2", "branch", rd=["scc"]), raw("s_branch L_back1", "branch")]
    return o


def srd(base, lo, hi, nbytes):
    return [salu("s_mov_b32", f"s{base}", lo), salu("s_and_b32", f"s{base + 1}", hi, "0xffff"),
            salu("s_mov_b32", f"s{base + 2}", nbytes), salu("s_mov_b32", f"s{base + 3}", "0x20000")]


def decode_wg():
    return [salu("s_and_b32", "s3", "s2", 7), salu("s_lshr_b32", "s4", "s2", 6), salu("s_lshl_b32", "s3", "s3", 2),
            salu("s_add_u32", "s3", "s3", "s4"), salu("s_lshr_b32", "s4", "s2", 3), salu("s_and_b32", "s4", "s4", 7),
            salu("s_lshr_b32", "s5", "s3", 4), salu("s_and_b32", "s6", "s3", 15)]


def code_touch():
    return [salu("s_lshr_b32", "s68", "s2", 3), salu("s_lshl_b32", "s68", "s68", 11),
            valu("v_lshrrev_b32", "v11", 6, "v0"), valu("v_and_b32", "v12", 3, "v0"), valu("v_lshlrev_b32", "v11", 9, "v11"),
            valu("v_lshl_add_u32", "v11", "v12", 7, "v11"), valu("v_add_u32", "v11", "s68", "v11"),
            Ins("global_load_dword v253, v11, s[96:97]", "vld", rd=["v11", "s96", "s97"], wr=["v253"])]


def kv_patterns():
    i, a, b, c = "v1", "v2", "v3", "v4"
    o = [valu("v_lshrrev_b32", a, 4, i), valu("v_and_b32", b, 15, i),
         valu("v_xor_b32", c, a, b), valu("v_lshlrev_b32", c, 4, c), valu("v_lshl_add_u32", vK[0], a, 8, c)]
    o += [valu("v_xor_b32", vK[m], m << 6, vK[0]) for m in range(1, 4)]
    o += [valu("v_lshlrev_b32", "v5", 1, a), valu("v_xor_b32", "v5", "v5", b), valu("v_lshlrev_b32", "v5", 4, "v5"),
          valu("v_lshl_add_u32", vV[0], a, 8, "v5"), valu("v_xor_b32", vV[1], 128, vV[0])]
    return o


def prologue():
    o = [scmp("s_cmp_ge_u32", "s2", 256), raw("s_cbranch_scc1 L_end", "branch", rd=["scc"])]
    o += [raw("s_getpc_b64 s[96:97]", wr=["s96", "s97"]), label("L_pc")]
    if OPT["dbgt"]:
        o += [raw("s_memrealtime s[72:73]", wr=["s72", "s73"])]
    if OPT["codepf"] == 2:
        o += code_touch()
    o += decode_wg()
    o += [salu("s_mul_i32", "s7", "s5", 40), salu("s_add_u32", "s68", "s0", "s7"), salu("s_addc_u32", "s69", "s1", 0),
          raw("s_load_dwordx8 s[56:63], s[68:69], 0", wr=regs("s", 56, 8)),
          raw("s_load_dwordx2 s[94:95], s[68:69], 32", wr=["s94", "s95"]),
          raw("s_load_dwordx4 s[88:91], s[0:1], 88", wr=regs("s", 88, 4)),
          raw("s_load_dwordx2 s[92:93], s[0:1], 80", wr=["s92", "s93"])]
    i, a, b, c = "v1", "v2", "v3", "v4"
    o += [valu("v_lshrrev_b32", a, 6, "v0"), valu("v_and_b32", i, 63, "v0"),
          valu("v_readfirstlane_b32", sWAVE, a), valu("v_lshlrev_b32", vL16, 4, i)]
    o += [valu("v_lshrrev_b32", a, 4, i), valu("v_and_b32", b, 7, i), valu("v_lshrrev_b32", "v5", 3, i),
          valu("v_and_b32", c, 1, a), valu("v_lshlrev_b32", c, 1, c), valu("v_xor_b32", c, c, b), valu("v_lshlrev_b32", c, 4, c),
          valu("v_lshl_add_u32", vW[0], "v5", 13, c),
          valu("v_xor_b32", vW[1], 64, vW[0]), valu("v_add_u32", vW[1], 64512, vW[1]),
          valu("v_add_u32", vW[2], 2 * 64512, vW[0]), valu("v_add_u32", vW[3], 2 * 64512, vW[1])]
    o += [valu("v_xor_b32", c, a, b), valu("v_lshlrev_b32", c, 4, c), valu("v_mul_u32_u24", "v6", 1280, "v5"),
          valu("v_add_u32", vX[0], "v6", c),
          valu("v_xor_b32", vX[1], 64, vX[0]), valu("v_add_u32", vX[1], 9216, vX[1]),
          valu("v_add_u32", vX[2], 2 * 9216, vX[0]), valu("v_add_u32", vX[3], 2 * 9216, vX[1])]
    o += [salu("s_lshr_b32", "s70", sWAVE, 1), salu("s_and_b32", "s71", sWAVE, 1),
          salu("s_lshl_b32", sW4K, sWAVE, 12), salu("s_mul_i32", sW6K, sWAVE, 6144),
          salu("s_lshl_b32", "s7", "s4", 2), salu("s_add_u32", "s7", "s7", "s70"),
          salu("s_lshl_b32", sWQ, "s71", 18), salu("s_lshl_b32", sT0, "s7", 8), salu("s_add_u32", sWQ, sWQ, sT0),
          salu("s_mul_i32", sX, "s6", 245760), salu("s_mul_i32", sT0, sWAVE, 61440), salu("s_add_u32", sX, sX, sT0)]
    o += [raw("s_waitcnt lgkmcnt(0)", "drainlg")]
    o += srd(S_X, "s56", "s57", 3932160) + srd(S_WQ, "s62", "s63", 5242880)
    o += [salu("s_add_u32", "s68", "s3", "s4"), salu("s_and_b32", "s68", "s68", 3)]
    for x in by_role("s69", "s68", TBLQ0):
        o += x if isinstance(x, list) else [x]
    for st in range(2):
        o += [salu("s_bfe_u32", sT0, "s69", "0x%x" % (0x40000 + 4 * st)), salu("s_lshl_b32", sT1, sT0, 19), salu("s_lshl_b32", sT0, sT0, 7),
              salu("s_add_u32", sPF[("W", st, 0)][0], sT1, sWQ), salu("s_add_u32", sPF[("X", st)][0], sT0, sX),
              salu("s_add_u32", sPF[("W", st, 1)][0], sPF[("W", st, 0)][0], 128), salu("s_add_u32", sPF[("X", st)][1], sPF[("X", st)][0], 40960)]
    for k in [("W", 0, 0), ("X", 0), ("W", 0, 1), ("W", 1, 0), ("X", 1), ("W", 1, 1)]:
        for pre, ds in unit_dmas(k):
            o += pre[::-1] + ds
    if OPT["warmw"]:
        o += [salu("s_mul_i32", "s68", "s6", 40 * 8192), salu("s_lshl_b32", "s69", "s4", 10), salu("s_add_u32", "s68", "s68", "s69"),
              salu("s_mul_i32", "s69", sWAVE, 10 * 8192), salu("s_add_u32", "s68", "s68", "s69"),
              valu("v_lshlrev_b32", b, 7, b), valu("v_lshl_add_u32", "v6", "v5", 13, b), valu("v_and_b32", c, 1, "v5"),
              valu("v_lshl_add_u32", c, c, 13, b), salu("s_add_u32", "s69", "s68", 8 * 8192)]
        o += [vload(("v", 254), 1, "v6", S_WQ, "s68", 0), vload(("v", 255), 1, c, S_WQ, "s69", 0)]
    o += [salu("s_lshr_b32", "s68", "s2", 3), salu("s_lshl_b32", "s68", "s68", 2), salu("s_add_u32", "s68", "s68", sWAVE), salu("s_lshl_b32", sCP, "s68", 8)]
    if OPT["codepf"] == 1:
        o += code_touch()
    o += srd(S_WO, "s94", "s95", 5242880)
    o += [salu("s_lshl_b32", "s68", "s6", 3), salu("s_add_u32", "s68", "s68", "s4"),
          salu("s_mul_i32", sWOS, "s68", 40960), salu("s_mul_i32", sT0, sWAVE, 10240), salu("s_add_u32", sWOS, sWOS, sT0)]
    for jj in range(OPT["jpro"]):
        for pre, ds in unit_dmas(("J", jj), sE):
            o += pre[::-1] + ds
    o += srd(S_K, "s58", "s59", 67108864) + srd(S_V, "s60", "s61", 67108864)
    o += srd(S_OST, "s90", "s91", WS_WOT) + srd(S_FLG, "s88", "s89", 256)
    o += [salu("s_add_u32", "s68", "s90", WS_WOT), salu("s_addc_u32", "s69", "s91", 0)] + srd(S_WOT, "s68", "s69", 2 * WOT_BLK)
    o += [salu("s_lshl_b32", sFG, "s3", 2), salu("s_lshl_b32", sFB, "s5", 6)]
    if OPT["dbgt"]:
        o += [salu("s_add_u32", sFG, sFG, 128), salu("s_add_u32", sFB, sFB, 128)]
    o += [
          valu("v_cmp_eq_u32", "vcc", 0, "v0"), valu("v_mov_b32", "v10", "0x1000"), valu("v_mov_b32", f"v{ONES}", "0x3f803f80"),
          valu("v_cndmask_b32", vFLG, "v10", 0, "vcc"),
          ]
    if OPT["one1"]:
        o += [valu("v_and_b32", "v10", 15, "v0"), valu("v_cmp_eq_u32", "vcc", 0, "v10"), valu("v_cndmask_b32", f"v{ONES}", 0, f"v{ONES}", "vcc")]
    o += [valu("v_mov_b32", f"v{ONES + r}", f"v{ONES}") for r in range(1, 4)]
    if OPT["prof"]:
        o += [salu("s_add_u32", "s68", "s90", WS_PROF), salu("s_addc_u32", "s69", "s91", 0)] + srd(S_PROF, "s68", "s69", 1 << 20)
        o += [salu("s_lshl_b32", sPROF, "s2", 2), salu("s_add_u32", sPROF, sPROF, sWAVE), salu("s_lshl_b32", sPROF, sPROF, 10)]
        o += prof_stamp(0, 8)
    o += [salu("s_lshl_b32", sKV, "s6", 5), salu("s_add_u32", sKV, sKV, "s7"), salu("s_lshl_b32", sKV, sKV, 17),
          salu("s_lshl_b32", sT0, "s71", 12),
          salu("s_lshr_b32", sROT, "s2", 3), salu("s_lshl_b32", sT1, "s2", 1), salu("s_add_u32", sROT, sROT, sT1),
          salu("s_and_b32", sROT, sROT, 0 if OPT["norot"] else 15), salu("s_lshl_b32", sROT, sROT, 13), salu("s_add_u32", sROT, sROT, sT0)]
    if OPT["tlbw"]:
        for n, (r, so) in enumerate(((S_K, sKV), (S_V, sKV), (S_WO, sWOS))):
            o += [Ins(f"buffer_load_dword v{244 + n}, off, s[{r}:{r + 3}], {so} nt", "vld", rd=[so] + regs("s", r, 4))]
    if OPT["kpro"]:
        o += kv_patterns()
        for k in [("K", 0), ("V", 0), ("K", 1)][:OPT["kpro"]]:
            for pre, ds in unit_dmas(k, sE):
                o += pre + [nop(1)] + ds
    o += [salu("s_mul_i32", sO, "s3", O_GRP), salu("s_mul_i32", sT0, "s71", 786432), salu("s_add_u32", sO, sO, sT0),
          salu("s_lshr_b32", sT0, "s4", 1), salu("s_mul_i32", sT0, sT0, 16 * 12288), salu("s_add_u32", sO, sO, sT0),
          salu("s_and_b32", sT0, "s4", 1), salu("s_mul_i32", sT0, sT0, 4 * 12288), salu("s_add_u32", sO, sO, sT0),
          salu("s_mul_i32", sT0, "s70", 2 * 12288), salu("s_add_u32", sO, sO, sT0)]
    o += [salu("s_lshl_b32", "s68", "s6", 3), salu("s_add_u32", "s68", "s68", "s4"),
          salu("s_lshr_b32", sT0, "s68", 1), salu("s_and_b32", sT1, sT0, "0x33"),
          salu("s_and_b32", "s69", sT0, 4), salu("s_lshl_b32", "s69", "s69", 1), salu("s_or_b32", sT1, sT1, "s69"),
          salu("s_and_b32", "s69", sT0, 8), salu("s_lshr_b32", "s69", "s69", 1), salu("s_or_b32", sT1, sT1, "s69"),
          salu("s_mul_i32", sWOD, sT1, 20480),
          salu("s_and_b32", sT0, "s68", 1), salu("s_lshl_b32", sT0, sT0, 11), salu("s_add_u32", sWOD, sWOD, sT0),
          salu("s_mul_i32", sT0, "s5", WOT_BLK), salu("s_add_u32", sWOD, sWOD, sT0),
          salu("s_lshl_b32", sT0, "s70", 12), salu("s_add_u32", sWOD, sWOD, sT0),
          salu("s_lshl_b32", sT0, "s71", 10), salu("s_add_u32", sWOD, sWOD, sT0),
          salu("s_mul_i32", sT0, "s70", 1310720 - 20480), salu("s_add_u32", sWOX, sWOD, sT0)]
    o += [salu("s_add_u32", "s68", "s3", "s4"), salu("s_and_b32", "s68", "s68", 3)]
    for x in by_role(sQT, "s68", TBLQ1):
        o += x if isinstance(x, list) else [x]
    cbits = struct.unpack("<I", struct.pack("<f", math.log2(math.e) / math.sqrt(128.0)))[0]
    o += [salu("s_mov_b32", sC, "0x%x" % cbits), salu("s_mov_b32", sHI, "0x5d800000" if OPT["tmax"] == 1 else "0x53800000" if OPT["tmax"] else "0x4e800000"),
          salu("s_mov_b32", sLO, "0x42200000" if OPT["tmax"] else "0x30800000"), salu("s_mov_b32", sNC, "0x%x" % (cbits | 0x80000000)),
          salu("s_mov_b32", sIT, 0)]
    if not OPT["kpro"]:
        o += kv_patterns()
    o += [salu("s_lshl_b32", "s69", "s70", 13), salu("s_mul_i32", "s68", "s71", 12288), salu("s_add_u32", "s68", "s68", XS[0]),
          valu("v_bfe_u32", "v8", i, 2, 2), valu("v_and_b32", "v9", 3, i)]
    o += [valu("v_lshl_add_u32", c, b, 8, c), valu("v_add_u32", c, KWANT[15], c), valu("v_add_u32", kA[0], "s69", c)]
    o += [valu("v_xor_b32", kA[j], j << 6, kA[0]) for j in range(1, 4)]
    o += [valu("v_lshl_add_u32", "v5", a, 2, "v8"), valu("v_lshlrev_b32", c, 8, "v5"), valu("v_and_b32", "v6", 7, "v5"),
          valu("v_lshl_add_u32", c, "v6", 5, c), valu("v_lshl_add_u32", c, "v9", 3, c),
          valu("v_add_u32", c, VWANT[0], c), valu("v_add_u32", vA[0], "s69", c)]
    o += [valu("v_xor_b32", vA[d], d << 5, vA[0]) for d in range(1, 8)]
    o += [valu("v_lshl_add_u32", c, a, 3, "v8"), valu("v_lshlrev_b32", c, 7, c),
          valu("v_and_b32", "v5", 2, "v8"), valu("v_and_b32", "v7", 1, a), valu("v_lshl_add_u32", "v5", "v7", 2, "v5"),
          valu("v_xor_b32", "v5", "v5", "v9"), valu("v_lshl_add_u32", c, "v5", 4, c), valu("v_add_u32", wA[0], "s69", c),
          valu("v_xor_b32", wA[1], 64, wA[0])]
    o += [valu("v_lshrrev_b32", "v5", 1, b), valu("v_xor_b32", "v5", "v5", a),
          valu("v_lshlrev_b32", "v5", 4, "v5"), valu("v_lshl_add_u32", c, b, 7, "v5"),
          valu("v_xor_b32", "v5", 64, c), valu("v_add_u32", xA[0], "s68", c), valu("v_add_u32", xA[1], "s68", "v5")]
    o += [salu("s_lshl_b32", "s68", "s70", 2), salu("s_lshl_b32", "s69", "s71", 3), salu("s_add_u32", "s69", "s69", WOJ_ADDR),
          valu("v_lshrrev_b32", c, 1, a), valu("v_lshlrev_b32", c, 12, c), valu("v_lshl_add_u32", c, "v6", 7, c),
          valu("v_add_u32", c, "s69", c), valu("v_add_u32", "v5", "s68", "v9"), valu("v_lshrrev_b32", "v6", 1, "v6"),
          valu("v_xor_b32", "v5", "v5", "v6"), valu("v_lshl_add_u32", vJ, "v5", 4, c)]
    o += [needvm([("W", 0, 0), ("X", 0)]), barrier()] + first_reads(0)
    return o


def acc2(pi, xy, qi):
    return ((pi * 6 + qi) * 2 + xy) * 4


def a2(st, pi, ks, xy):
    if st == 0:
        return (240 if pi == 0 else 48 + 16 * pi) + 8 * ks + 4 * xy
    return (48 if pi == 0 else 112 + 16 * pi) + 8 * ks + 4 * xy


def b2(st, qi, ks):
    return (192 if st == 0 else 0) + 8 * qi + 4 * ks


V2A = ["v%d" % i for i in range(240, 245)]


def k2_loads_A(st, pi, soff=None):
    return [vload(("a", a2(st, pi, ks, xy)), 4, V2A[pi], S2A, soff or sA2, ks * 2048 + xy * 1024, flags=SC1) for xy in range(2) for ks in range(2)]


def k2_loads_B(st, qi):
    return [vload(("a", b2(st, qi, ks)), 4, V2B[qi], S2B, sB2, ks * 1024, flags=SC1) for ks in range(2)]


def k2_lds_A(st, pi):
    out = []
    for xy in range(2):
        for ks in range(2):
            r = [r for r, (s_, p_, off) in PF2.items() if (s_, p_) == (st, pi) and (r not in ("s87", "s99") or off == 2048 * ks)][0]
            key = [k for k, rs in sPF.items() if r in rs][0]
            if key[0] == "W":
                out.append(ds_read("ds_read_b128", ("a", a2(st, pi, ks, xy)), 4, V2W, U[key]["addr"] + ks * 2048 + xy * 1024))
            elif key[0] == "P":
                out.append(ds_read("ds_read_b128", ("a", a2(st, pi, ks, xy)), 4, V2P, ks * 2048 + xy * 1024))
            elif r == sPF[key][0]:
                out.append(ds_read("ds_read_b128", ("a", a2(st, pi, ks, xy)), 4, V2X, U[key]["addr"] - XS[0] + ks * 2048 + xy * 1024))
            else:
                out.append(ds_read("ds_read_b128", ("a", a2(st, pi, ks, xy)), 4, V2X, U[key]["addr"] - XS[0] + 4096 + xy * 1024))
    return out


def k2_steps(S, first, loadA, loadB, pend, check=False, late=(), final=None):
    for st in range(2):
        q0 = S.n()
        tiles = [(pi, xy, qi) for pi in range(5) for xy in range(2) for qi in range(6)]
        if final is not None and st == 1:
            tiles = [t for t in tiles if t[2] >= 3] + [t for t in tiles if t[2] < 3]
            for n, x in enumerate(final[0]):
                S.put(q0 + 2 + n, x)
            for n, x in enumerate(final[1]):
                S.put(q0 + 61 + 2 * n, x)
        for pi, xy, qi in tiles:
            for ks in range(2):
                acc = ("v", acc2(pi, xy, qi))
                S.add(mfma(16, acc, ("a", a2(st, pi, ks, xy)), ("a", b2(st, qi, ks)),
                           None if (first and st == 0 and ks == 0) else acc))
        pos = [int(0.5 + 3.75 * n) for n in range(32)]
        if pend[st]:
            ls = k2_loads_A(1 - st, 4)
            S.put(q0 + pos[0], ls[2])
            S.put(q0 + pos[1], ls[3])
            for n, x in enumerate(next_off(sA2, TA, sAB, 20480)):
                S.put(q0 + pos[1] + 1 + n, x)
        if first and st == 0:
            for n, (pre, l) in enumerate(late):
                S.put(q0 + 6 * n + 2, *pre)
                S.put(q0 + 6 * n + 3, l)
            for n, r in enumerate(k2_lds_A(1, 0) + k2_lds_A(1, 1) + k2_lds_A(1, 2)):
                S.put(q0 + 6 * n + 5 if n < 8 else q0 + 54 + 4 * (n - 8), r)
            S.put(q0 + 70, valu("v_add_u32", V2P, D[9] - D[5], V2P))
            for n, r in enumerate(k2_lds_A(1, 3)):
                S.put(q0 + 73 + 4 * n, r)
        elif loadB[st]:
            for n, l in enumerate([l for qi in range(6) for l in k2_loads_B(1 - st, qi)]):
                S.put(q0 + pos[2 + n], l)
            for n, x in enumerate(next_off(sB2, TB, sBB, 12288)):
                S.put(q0 + pos[13] + 1 + n, x)
        if loadA[st]:
            n = 14
            for pi in range(5):
                ls = k2_loads_A(st, pi)
                for x, l in enumerate(ls if pi < 4 else ls[:2]):
                    assert pos[n] >= 24 * pi + 11 + 12 * (x >> 1), (pi, x, pos[n])
                    S.put(q0 + pos[n], l)
                    n += 1
        if first and st == 1:
            S.put(q0 + 110, needvm(["ost"]), barrier())
            S.put(q0 + 111, valu("v_mov_b32", V2P, "0x100"))
            S.put(q0 + 114, atomic_add(V2P, sFG))
        if check and st == 1:
            S.put(q0 + 1, scmp("s_cmp_eq_u32", sCNT, 5), salu("s_cselect_b32", sWANT, 8, 0), salu("s_cselect_b32", sPL, sFG, "0x1000"))
            S.put(q0 + 2, poll_load(V2P, sPL))
        if check and st == 0:
            S.put(q0 + 1, valu("v_readfirstlane_b32", sQ, V2P))
            S.put(q0 + 6, salu("s_bfe_u32", sQ, sQ, "0x80008"), scmp("s_cmp_lt_u32", sQ, sWANT),
                  raw("s_cbranch_scc1 L_spin2", "branch", rd=["scc"]), label("L_spin2_back"))


def k2_first(S, late):
    seq = [(0, p) for p in range(4)] + [(1, p) for p in range(3)] + [(0, 4), (1, 3), (1, 4)]
    at = {}
    for st, pi in seq:
        at[(st, pi)] = S.n()
        for xy in range(2):
            for qi in range(6):
                for ks in range(2):
                    acc = ("v", acc2(pi, xy, qi))
                    S.add(mfma(16, acc, ("a", a2(st, pi, ks, xy)), ("a", b2(st, qi, ks)), None if (st == 0 and ks == 0) else acc))
    for n, (pre, l) in enumerate(late):
        S.put(13 * n + 2, *pre)
        S.put(13 * n + 3, l)
    assert 13 * len(late) < at[(0, 4)]
    g = 5
    for pi in range(4):
        if pi == 3:
            S.put(g, valu("v_add_u32", V2P, D[9] - D[5], V2P))
            g += 2
        for r in k2_lds_A(1, pi):
            while S.fixed.get(g):
                g += 1
            S.put(g, r)
            g += 4
    items = []
    for pi in range(5):
        for x, l in enumerate(k2_loads_A(0, pi, sSO)):
            items.append((l, at[(0, pi)] + 11 + 12 * (x >> 1), 240 + 24 * pi + 12 * (x >> 1)))
        for x, l in enumerate(k2_loads_A(1, pi)[:4 if pi < 4 else 2]):
            items.append((l, at[(1, pi)] + 11 + 12 * (x >> 1), 360 + 24 * pi + 12 * (x >> 1)))
    for qi in range(6):
        for ks, l in enumerate(k2_loads_B(0, qi)):
            items.append((l, at[(0, 4)] + 12 + 2 * qi + ks, 200 + 2 * qi + ks))
    items.sort(key=lambda i: i[2])
    g, lastB = 11, 0
    while items:
        c = [i for i in items if i[1] <= g]
        if c and not any(S.fixed.get(k) and any(j.kind in ("vld", "vst") for j in S.fixed[k]) for k in ((g - 2, g - 1, g + 1) if g < 180 else (g - 1, g + 1))) and not S.fixed.get(g):
            S.put(g, c[0][0])
            if sB2 in c[0][0].rd:
                lastB = g
            items.remove(c[0])
        g += 1
        assert g < 240, items
    for n, x in enumerate(next_off(sB2, TB, sBB, 12288)):
        S.put(lastB + 1 + n, x)
    g = 226
    while S.fixed.get(g) or S.fixed.get(g + 1) or S.fixed.get(g + 3):
        g += 1
    S.put(g, needvm(["ost"]), barrier())
    S.put(g + 1, valu("v_mov_b32", V2P, "0x100"))
    S.put(g + 3, atomic_add(V2P, sFG))


def spin(name, back, dsts, soffs, conds):
    o = [label(name), salu("s_mov_b32", sSPIN, 0), label(name + "_loop"), raw("s_sleep 8")]
    o += [poll_load(d, so) for d, so in zip(dsts, soffs)]
    o += [drain(), salu("s_add_u32", sSPIN, sSPIN, 1), scmp("s_cmp_gt_u32", sSPIN, "0x20000"),
          raw(f"s_cbranch_scc1 {back}", "branch", rd=["scc"])]
    for d, (sh, msk, want) in zip(dsts, conds):
        o += [valu("v_readfirstlane_b32", sQ, d), nop(4)]
        if sh:
            o += [salu("s_lshr_b32", sQ, sQ, sh)]
        if msk:
            o += [salu("s_and_b32", sQ, sQ, msk)]
        o += [scmp("s_cmp_lt_u32", sQ, want), raw(f"s_cbranch_scc1 {name}_loop", "branch", rd=["scc"])]
    o += [raw(f"s_branch {back}", "branch")]
    return o


def phase2():
    o = [valu("v_mov_b32", V2L, vL16), salu("s_and_b32", "s85", "s4", 3), salu("s_and_b32", "s32", sWAVE, 1), salu("s_lshr_b32", "s33", sWAVE, 1),
         salu("s_mul_i32", sAB, sWAVE, 16 * 20480), salu("s_lshr_b64", f"s[{TA}:{TA + 1}]", "s[34:35]", 4)]
    o += next_off(sB2, TB, sBB, 12288)
    o += [valu("v_add_u32", V2W, sW4K, V2L), salu("s_add_u32", "s7", sW6K, XS[0]), valu("v_add_u32", V2X, "s7", V2L)]
    o += [scmp("s_cmp_eq_u32", "s33", 0)]
    o += [salu("s_cselect_b32", f"s{47 + q}", q, 2 - q) for q in range(3)]
    o += [salu("s_cselect_b32", f"s{36 + pi}", pi, 4 - pi) for pi in range(5)]
    o += [salu("s_mul_i32", "s34", "s32", 3)]
    o += [salu("s_add_u32", f"s{47 + q}", f"s{47 + q}", "s34") for q in range(3)]
    save = list(vR)
    vR[:] = [f"v{16 + q}" for q in range(6)]
    nl = 12 if OPT["pace"] else 8
    eg = epilogue_groups(0, lambda n: 240 - 4 * (24 - n) - (0 if OPT["pace"] else 16) if n >= 24 - nl else 32 + 4 * n, V2L)
    vR[:] = save
    b1 = [l for qi in range(6) for l in k2_loads_B(1, qi)]
    for n, (v, pre, st, imm) in enumerate(eg):
        m = b1[2 * (n - 8):2 * (n - 8) + 2] if 8 <= n < 14 else []
        o += v[:8] + m[:1] + v[8:16] + m[1:] + v[16:]
        if OPT["pace"]:
            if n % 2 == 0:
                o += eg[n // 2][1] + [eg[n // 2][2]]
        elif n < 16:
            o += pre + [st]
        if n == 15:
            o += [needvm(list(sPF))]
            for pi in range(5):
                o += [salu("s_lshl_b32", "s7", f"s{36 + pi}", 12), valu("v_add_u32", V2A[pi], "s7", V2L)]
            o += next_off(sPL, TA, sAB, 20480)
            if OPT["pace"]:
                o += next_off(sSO, TA, sAB, 20480)
            o += next_off(sA2, TA, sAB, 20480)
        if 16 <= n < 21:
            o += k2_lds_A(0, n - 16)
    late = []
    for n, g in enumerate(eg[24 - nl:]):
        st = vstore(("v", 240 - 4 * (nl - n) - (0 if OPT["pace"] else 16)), 4, V2L, S_OST, sE, g[3], tag="ost", flags=SC1)
        late.append((g[1], st))
    o += k2_loads_A(1, 4, sPL) + [valu("v_add_u32", V2P, D[5], V2W)]
    o += next_off(sB2, TB, sBB, 12288) + [salu("s_mov_b32", sWANT, 0)]
    o += prof_stamp(1, 30)
    o += srd(S2OUT, "s92", "s93", 7864320)
    o += [salu("s_mul_i32", sOB, "s6", 192 * 2560), salu("s_mul_i32", "s7", "s84", 96 * 2560), salu("s_add_u32", sOB, sOB, "s7"),
          salu("s_mul_i32", "s7", "s5", 1280), salu("s_add_u32", sOB, sOB, "s7"),
          salu("s_mul_i32", "s7", "s85", 320), salu("s_add_u32", sOB, sOB, "s7"), salu("s_mov_b32", sCNT, 6)]
    S0 = Sched()
    if OPT["pace"]:
        k2_first(S0, late)
    else:
        k2_steps(S0, True, [True, True], [True, True], [False, True], late=late)
    S0.order_fixed()
    first = S0.build()
    S1 = Sched()
    k2_steps(S1, False, [True, True], [True, True], [True, True], check=True)
    if OPT["prof"]:
        S1.put(3, raw("s_memrealtime s[76:77]", wr=["s76", "s77"]), raw("s_waitcnt lgkmcnt(0)", "drainlg"),
               salu("s_mov_b32", "s101", "s100"), salu("s_mov_b32", "s100", "s99"), salu("s_mov_b32", "s99", "s98"),
               salu("s_mov_b32", "s98", "s97"), salu("s_mov_b32", "s97", "s96"), salu("s_mov_b32", "s96", "s76"))
    S1.put(237, salu("s_sub_u32", sCNT, sCNT, 1))
    S1.order_fixed()
    loop = [label("L_k2")] + S1.build() + [scmp("s_cmp_lg_u32", sCNT, 0), raw("s_cbranch_scc1 L_k2", "branch", rd=["scc"])]
    R1, R2, i, a, V2O = V2A[0], V2A[1], V2A[2], V2A[3], V2A[4]
    setup = [salu("s_mul_i32", "s7", sWAVE, 30720), valu("v_add_u32", V2W, "s7", V2L), valu("v_lshrrev_b32", i, 4, V2L),
             valu("v_and_b32", a, 15, i), valu("v_mul_u32_u24", a, 2560, a), valu("v_lshrrev_b32", i, 4, i),
             valu("v_lshl_add_u32", V2O, i, 4, a),
             salu("s_xor_b32", sPL, sWAVE, 1), salu("s_sub_u32", sPL, sPL, sWAVE), salu("s_mul_i32", "s7", sPL, 30720),
             valu("v_add_u32", R1, "s7", V2W),
             salu("s_xor_b32", sPL, sWAVE, 3), salu("s_sub_u32", sPL, sPL, sWAVE), salu("s_mul_i32", "s7", sPL, 30720),
             valu("v_add_u32", R2, "s7", V2W)]
    sent = [(pi, xy, qi) for pi in range(5) for qi in range(3, 6) for xy in range(2)]
    wr = {t: ds_write("ds_write_b128", V2W, ("v", acc2(*t)), 4, n * 1024) for n, t in enumerate(sent)}
    S2 = Sched()
    e = []
    if OPT["redov"]:
        order = [wr[(pi, xy, qi)] for pi in range(5) for xy in range(2) for qi in range(3, 6)]
        k2_steps(S2, False, [False, False], [True, False], [True, False], final=(setup, order[:29]))
        e = order[29:]
    else:
        k2_steps(S2, False, [False, False], [True, False], [True, False])
        e = setup + list(wr.values())
    S2.order_fixed()
    last = S2.build()
    e += [needlgkm0(), barrier()] + prof_stamp(8, 234)
    for s in list(range(7, 15)) + list(range(7)):
        pi, q = divmod(s, 3)
        e += [ds_read("ds_read_b128", ("v", acc2(pi, xy, q + 3)), 4, R1, (2 * s + xy) * 1024) for xy in range(2)]
    for s in list(range(7, 15)) + list(range(7)):
        pi, q = divmod(s, 3)
        d, t = acc2(pi, 0, q), acc2(pi, 0, q + 3)
        e += [valu("v_add_f32", f"v{d + r}", f"v{d + r}", f"v{t + r}") for r in range(8)]
        if s >= 7:
            e += [ds_write("ds_write_b128", R1, ("v", acc2(pi, xy, q)), 4, (2 * s + xy) * 1024) for xy in range(2)]
    e += [needlgkm0(), barrier()]
    for s in range(8):
        pi, q = divmod(s, 3)
        for xy in range(2):
            e += [ds_read("ds_read_b128", ("v", acc2(pi, xy, q + 3)), 4, R2, (2 * (14 - s) + xy) * 1024)]
    for s in range(8):
        pi, q = divmod(s, 3)
        d0, t0 = acc2(pi, 0, q), acc2(pi, 0, q + 3)
        e += [valu("v_add_f32", f"v{d0 + r}", f"v{d0 + r}", f"v{t0 + r}") for r in range(8)]
        e += [valu("v_cvt_pk_bf16_f32", f"v{d0 + r}", f"v{d0 + 2 * r}", f"v{d0 + 2 * r + 1}") for r in range(4)]
        e += [salu("s_mul_i32", "s7", f"s{47 + q}", 40960), salu("s_lshl_b32", sPL, f"s{36 + pi}", 6),
              salu("s_add_u32", "s7", "s7", sPL), salu("s_add_u32", sSO, "s7", sOB),
              vstore(("v", d0), 4, V2O, S2OUT, sSO, 0, flags=OPT["outf"])]
    e += prof_stamp(9, 234)
    if OPT["prof"]:
        for n in range(6):
            e += [valu("v_mov_b32", "v234", 1), valu("v_mov_b32", "v235", f"s{101 - n}"), pstore(234, 2 + n), nop(4)]
    if OPT["dbgt"]:
        a, b = {1: ("s76", "s78"), 2: ("s74", "s76")}[OPT["dbgt"]]
        e += [drain(), raw("s_memrealtime s[78:79]", wr=["s78", "s79"]), raw("s_waitcnt lgkmcnt(0)", "drainlg"),
              salu("s_sub_u32", a, a, "s72"), salu("s_sub_u32", b, b, "s72"),
              scmp("s_cmp_lt_u32", "s2", 8), salu("s_cselect_b32", "s7", "s2", "0x1000"), salu("s_lshl_b32", "s7", "s7", 2),
              valu("v_mov_b32", "v0", a), valu("v_mov_b32", "v1", b),
              Ins(f"buffer_store_dword v0, {vFLG}, s[{S_FLG}:{S_FLG + 3}], s7 offen", "vst", rd=["v0", vFLG, "s7"]),
              Ins(f"buffer_store_dword v1, {vFLG}, s[{S_FLG}:{S_FLG + 3}], s7 offen offset:32", "vst", rd=["v1", vFLG, "s7"])]
    e += [label("L_end"), raw("s_endpgm")]
    sp1 = spin("L_spin1", "L_spin1_back", vPOLL[:1], [sFG], [(0, "0xff", 8)]) + spin("L_spin3", "L_spin3_back", vPOLL[1:], [sFB], [(16, 0, 128)])
    sp2 = spin("L_spin2", "L_spin2_back", [V2P], [sFG], [(8, "0xff", 8)])
    return o, first, loop, last, e, sp1, sp2


def check_pointers(pro):
    ptr = set(regs("s", 56, 8) + regs("s", 88, 8))
    dirty = set()
    for x in pro:
        if x.text.startswith("s_load"):
            continue
        if x.text.startswith(("s_mov_b32", "s_and_b32", "s_add_u32", "s_addc_u32")) and x.rd & dirty and "0xffff" in x.text:
            raise AssertionError(x.text)
        dirty |= x.wr & ptr


def kernel():
    pro = prologue()
    check_pointers(pro)
    q1 = q_phase(False)
    full = []
    for last in (False, True):
        _alt[0] = 0
        full.append(a_phase(last))
    cut = [[n for n, x in enumerate(f) if x.text == "L_CUT:"][0] for f in full]
    assert [x.text for x in full[0][:cut[0]]] == [x.text for x in full[1][:cut[1]]]
    att = [label("L_att")] + full[0][:cut[0]]
    tails = []
    for v in range(2):
        t = ([label("L_tail2")] if v else []) + full[v][cut[v] + 1:]
        t += [raw("s_cbranch_vccnz L_slow", "branch", rd=["vcc"]), label(f"L_back{v + 1}")]
        t += [valu("v_rcp_f32", f"v{16 + qt}" if v else vR[qt], f"v{lacc(qt)}") for qt in range(6)]
        if OPT["dbgt"]:
            t += [raw(f"s_memrealtime s[{74 + 2 * v}:{75 + 2 * v}]", wr=[f"s{74 + 2 * v}", f"s{75 + 2 * v}"]), raw("s_waitcnt lgkmcnt(0)", "drainlg")]
        t += prof_stamp(29)
        if OPT["prof"]:
            t += [salu("s_add_u32", sPROF, sPROF, 240)]
        tails.append(t)
    q2 = [salu("s_mov_b32", sIT, 1), label("L_q2")] + q_phase(True) + [raw("s_branch L_att", "branch")]
    o, first, loop2, last, e, sp1, sp2 = phase2()
    slow = slow_path()
    parts = [pro, q1, att, tails[0], q2, tails[1], o, first, loop2, last, e, slow, sp1, sp2]
    waits = compute_waits([pro + q1 + att + tails[0] + q2 + att + tails[1] + o + first + loop2 + loop2 + loop2 + last + e, slow, sp1, sp2])
    done = {}
    P = [apply_waits(x, waits, done) for x in parts]
    pads = pad_hazards([P[0] + P[1] + P[2] + P[3] + P[4] + P[2] + P[5] + P[6] + P[7] + P[8] + P[8] + P[9] + P[10], P[11], P[12], P[13]])
    al = ".p2align 3\n"
    return (emit(P[0] + P[1], pads) + al + emit(P[2] + P[3] + P[4], pads) + al + emit(P[5] + P[6] + P[7], pads) + al +
            emit(P[8] + P[9] + P[10] + P[11] + P[12] + P[13], pads) + "L_endcode:\n")


def main():
    kn = NAME + "_kernel"
    s = open("cdna_kernels/" + NAME + ".s.ref").read().split("; Override launch")[0]
    s += "; @launch grid=(256,1,1) block=(256,1,1) lds=163840\n"
    s += '.amdgcn_target "amdgcn-amd-amdhsa--gfx950"\n.text\n'
    s += f".globl {kn}\n.p2align 8\n.type {kn},@function\n{kn}:\n" + kernel()
    s += f""".section .rodata,"a"
.p2align 6
.amdhsa_kernel {kn}
  .amdhsa_next_free_vgpr 512
  .amdhsa_next_free_sgpr 102
  .amdhsa_accum_offset 256
  .amdhsa_group_segment_fixed_size 0
  .amdhsa_kernarg_size 104
  .amdhsa_user_sgpr_count 2
  .amdhsa_user_sgpr_kernarg_segment_ptr 1
  .amdhsa_system_sgpr_workgroup_id_x 1
.end_amdhsa_kernel
"""
    open(sys.argv[1], "w").write(s)


main()
```

```python
import sys, math, struct
from fw3 import *
from orders import orders
import alloc3

NAME = "concat_heads__mha_block_cached__mha_block_cached__near_ridge"
OPT = dict(outf=' sc1', redov=1, one1=1, warmj=0, pk=1, pfq1=1, rot2=4, gate=0, pace=1, lead=3, xpace=0, kvf=' nt', norot=0, tlbw=0, kpro=0, kplan=0, jlate=1, dbgt=0, jpro=0, k1s=0, e10=1, t23=0, nfree=1, kstep10=134, ks1=0, kn1=0, kfirst=6, k2late=0, qsp=1, tmax=2, xnum=25, xhi=100, ctq=0, cplim=0, cta='', rotq1=2, gstep=2, rotq=3, early=1, uni=0, prof=0, report=False, stg=67, warmw=True, codepf=2, codepf2=12, pf='', pf0=1, pfn=3, pff='', flagbar=12, map=0)
for a in sys.argv[2:]:
    k, v = a.split("=")
    OPT[k] = type(OPT[k])(int(v)) if not isinstance(OPT[k], str) else v

KB = 1024
SC1 = " sc1"
O_GRP = 2 * 786432
WS_WOT = 50331648
WOT_BLK = 5242880
WS_PROF = 64 * 1024 * 1024

S_K, S_V, S_X, S_WQ, S_OST, S_WO, S_WOT = 8, 12, 16, 20, 24, 28, 32
sKV, sWQ, sX, sW4K, sW6K, sO, sIT, sT0, sT1, sC, sWAVE = ["s%d" % i for i in range(36, 47)]
sWOS, sWOD, sWOX, sW5K, sHI, sLO = ["s%d" % i for i in range(47, 53)]
sPROF, sE, sJ = "s53", "s54", "s55"
sQT, sWS, sXS, sW1, sNC = "s50", "s67", "s95", "s63", "s7"
sROT, sFG, sFB, sCP = "s62", "s65", "s66", "s64"
sA2, sB2, sPL, sOB, sCNT, sSO, sQ, sSH, sWANT, sSPIN = "s28", "s29", "s30", "s31", "s67", "s68", "s69", "s70", "s71", "s94"
S_PROF, S_FLG = 72, 80
sPF = {("W", 0, 0): ["s84"], ("W", 0, 1): ["s85"], ("X", 0): ["s86", "s87"], ("X", 1): ["s98", "s99"], ("W", 1, 0): ["s100"],
       ("P", 0): ["s60"], ("P", 1): ["s61"], ("P", 2): ["s101"]}
PF2 = {"s84": (0, 0, 0), "s86": (0, 1, 0), "s60": (0, 2, 0), "s101": (0, 3, 0), "s98": (0, 4, 0), "s61": (1, 0, 0),
       "s87": (1, 1, 0), "s99": (1, 1, 2048), "s85": (1, 2, 0), "s100": (1, 3, 0)}
vK = ["v%d" % i for i in range(192, 196)]
vV = ["v196", "v197"]
vW = ["v%d" % i for i in range(198, 202)]
vX = ["v%d" % i for i in range(202, 206)]
kA = ["v%d" % i for i in range(206, 210)]
vA = ["v%d" % i for i in range(210, 218)]
wA = ["v218", "v219"]
xA = ["v220", "v221"]
vJ, vL16 = "v222", "v223"
ONES = 224
EPI = 228
vR = ["v%d" % i for i in range(244, 250)]
vFLG = "v250"
vT = ["v252", "v253"]
vC2 = "v[242:243]"
vPOLL = ["v254", "v255"]

V2B = ["v245", "v246", "v247", "v248", "v249", "v251"]
V2L, V2W, V2P, V2X = "v252", "v254", "v255", "v253"
S2A, S2B, S2OUT = S_WQ, S_X, 8
TA, TB, sAB, sBB = 56, 62, "s43", "s44"

D = [i * 16 * KB for i in range(10)]
XS = [96 * KB, 120 * KB]
WOJ_ADDR = D[4]


def qacc(p, xy, qt):
    return 64 * (qt >> 1) + (2 * p + (qt & 1)) * 8 + 4 * xy


def qf(qt, p):
    return 64 * (qt >> 1) + (2 * p + (qt & 1)) * 4


def sreg(qt):
    return 64 * (qt >> 1) + 32 + 8 * (qt & 1)


def mrun(qt):
    return 64 * (qt >> 1) + 56 + (qt & 1)


def mneg(qt):
    return 64 * (qt >> 1) + 58 + (qt & 1)


def lacc(qt):
    return 64 * (qt >> 1) + 48 + 4 * (qt & 1)


ABUF = [192, 248]


def bx(qt, ks):
    return 200 + 8 * qt + 4 * ks


def kf(kt, ks):
    return 192 + 16 * kt + 4 * ks


def vf(dt):
    return 224 + 4 * dt


def oacc(qt, dt):
    return 32 * qt + 4 * dt


def kpos(k):
    n1 = OPT["kn1"]
    return 2 + OPT["ks1"] / 10.0 * min(k, n1) + OPT["kstep10"] / 10.0 * max(k - n1, 0)


def build_units():
    U = {}
    for i in range(10):
        U[("X", i)] = dict(addr=XS[i % 2], size=24 * KB, iss=i - 2.5, land=i - 1, rel=i - 0.5)
        U[("W", i, 0)] = dict(addr=D[2 * (i % 2)], size=16 * KB, iss=i - 2.5, land=i - 1, rel=i - 0.5)
        U[("W", i, 1)] = dict(addr=D[2 * (i % 2) + 1], size=16 * KB, iss=i - 2, land=i - 0.5, rel=i)
    for k, e in ((("X", 0), -4), (("W", 0, 0), -4), (("X", 1), -3), (("W", 0, 1), -2), (("W", 1, 0), -2)):
        U[k]["iss"] = e
    pages = [9, 5, 4, 6, 0, 7, 1, 8, 2, 3, 9, 4, 5, 6, 0, 1, 7, 2, 8, 3, 9, 4, 5, 6, 0, 7, 1, 8, 2, 9, 5, 4]
    if OPT["kstep10"]:
        (_, pages), kiss, leads = alloc3.plan(0, OPT["kfirst"], pos=kpos, head=[5, 9, 4, 6, 0, 7, 1, 8],
                                                 lastN={0: 23, 1: 25, 2: 25, 3: 26, 4: 24, 5: 23, 6: 23, 7: 23, 8: 24, 9: 24})
        if OPT["report"]:
            print("; leads", [round(x, 1) for x in leads])
    for u in range(32):
        key = ("K", u // 2) if u % 2 == 0 else ("V", u // 2)
        N = 10 + u // 2 + u % 2
        U[key] = dict(addr=D[pages[u]], size=16 * KB, iss=N - 5 + (u == 30), land=N - 1, rel=N)
        if OPT["kstep10"] and u >= OPT["kfirst"]:
            U[key].update(iss=kiss[u], even=u - OPT["kfirst"])
    U[("V", 1)]["iss"] = U[("K", 2)]["iss"] = 7.5
    if "even" not in U[("V", 2)]:
        U[("V", 2)]["iss"] = 8.5
    if OPT["k2late"]:
        U[("K", 2)]["iss"] = 8
    if OPT["kstep10"]:
        if OPT["kfirst"] == 8:
            U[("V", 3)]["iss"] = 8.5
        return U
    if OPT["e10"] < 2:
        U[("K", 4)]["iss"] = 10
    if OPT["e10"] < 1:
        U[("V", 3)]["iss"] = 10
    if OPT["t23"]:
        U[("W", 0, 0)]["iss"] = U[("W", 1, 1)]["iss"] = -5
    return U


def check_units(second):
    V = {k: dict(u) for k, u in U.items()}
    if second:
        V[("K", 0)]["iss"], V[("V", 0)]["iss"], V[("K", 1)]["iss"] = -4, -3, -3
    else:
        V[("J",)] = dict(addr=D[4], size=32 * KB, iss=-1, land=2, rel=3)
        V[("J", 2)] = dict(addr=D[9], size=16 * KB, iss=0, land=2, rel=3)
        V[("K", 0)]["iss"], V[("V", 0)]["iss"], V[("K", 1)]["iss"] = 3, 4, 5
    allu = [(k, u["addr"], u["addr"] + u["size"], u["iss"], u["rel"]) for k, u in V.items()]
    assert all(u["iss"] < u["land"] <= u["rel"] for u in V.values())
    if second:
        allu += [(k, u["addr"], u["addr"] + u["size"], u["iss"] - 27, u["rel"] - 27) for k, u in U.items() if k[0] in "KV" and k[1] > 2]
        allu += [(("P", n), D[p], D[p] + 16 * KB, (23, 24, 24)[n], 27) for n, p in enumerate((5, 9, 4))]
        allu += [(k, u["addr"], u["addr"] + u["size"], u["iss"] + 27, 40) for k, u in U.items() if k in sPF]
    for a in allu:
        for b in allu:
            if a is not b and a[1] < b[2] and b[1] < a[2]:
                assert a[4] <= b[3] or b[4] <= a[3], (a, b)


U = build_units()
U[("K", 0)]["iss"] = U[("V", 0)]["iss"] = U[("K", 1)]["iss"] = None
PADDR = {("P", 0): D[5], ("P", 1): D[9], ("P", 2): D[4]}
_alt = [0]


def next_st():
    _alt[0] ^= 1
    return [sT0, sT1][_alt[0]]


def unit_dmas(key, tmp=None):
    kind = key[0]
    if kind == "P":
        return [([salu("s_add_u32", "m0", sW4K, PADDR[key])], [dma(vW[m], S_WQ, sPF[key][0], 1024 * m, key, SC1) for m in range(4)])]
    if kind == "J":
        jj = key[1]
        sT = tmp
        pre = [salu("s_add_u32", sT, sWOS, jj * 128), salu("s_add_u32", "m0", sW4K, D[(4, 5, 9)[jj >> 2]] + (jj & 3) * 1024)]
        return [(pre, [dma(vX[0], S_WO, sT, 0, "J", " nt")])]
    u = U[key]
    if key in sPF:
        if kind == "W":
            return [([salu("s_add_u32", "m0", sW4K, u["addr"])], [dma(vW[m], S_WQ, sPF[key][0], 1024 * m, key, SC1) for m in range(4)])]
        return [([salu("s_add_u32", "m0", sW6K, u["addr"])], [dma(vX[m], S_X, sPF[key][0], 1024 * m, key, SC1) for m in range(4)]),
                ([salu("s_add_u32", "m0", sW6K, u["addr"] + 4096)], [dma(vX[m], S_X, sPF[key][1], 1024 * m, key, SC1) for m in range(2)])]
    sT = tmp or next_st()
    if kind in "KV":
        pre = [salu("s_add_u32", sT, sROT, key[1] * 8192), salu("s_and_b32", sT, sT, "0x1ffff"), salu("s_add_u32", sT, sT, sKV),
               salu("s_add_u32", "m0", sW4K, u["addr"])]
        if kind == "K":
            return [(pre, [dma(vK[m], S_K, sT, 1024 * m, key, OPT["kvf"]) for m in range(4)])]
        return [(pre, [dma(vV[m & 1], S_V, sT, 1024 * m, key, OPT["kvf"]) for m in range(4)])]
    if kind == "W":
        return [([salu("s_add_u32", "m0", sW4K, u["addr"])], [dma(vW[m], S_WQ, sW1 if key[2] else sWS, 1024 * m, key) for m in range(4)])]
    g0 = ([salu("s_add_u32", "m0", sW6K, u["addr"])], [dma(vX[m], S_X, sXS, 1024 * m, key) for m in range(4)])
    pre2 = [salu("s_add_u32", sT, sXS, 40960), salu("s_add_u32", "m0", sW6K, u["addr"] + 4096)]
    return [g0, (pre2, [dma(vX[m], S_X, sT, 1024 * m, key) for m in range(2)])]


def set_pf_proj(tail=False):
    o = [salu("s_add_u32", sW1, sWQ, 524288 + 128)]
    for key, rs in sPF.items():
        if key[0] == "P":
            continue
        if key[0] == "W":
            o += [salu("s_add_u32", rs[0], sWQ, key[1] * 524288 + key[2] * 128)]
        else:
            o += [salu("s_add_u32", rs[0], sX, key[1] * 128), salu("s_add_u32", rs[1], sX, key[1] * 128 + 40960)]
    return o


ORD2 = orders(16, 4, 8, 7, {1: [4], 2: [1, 1, 2, 2, 2, 0, 0], 3: [1, 2, 2, 2, 1, 0, 0], 4: [2, 1, 2, 2, 1, 0, 0]}[OPT["rot2"]])[0] if OPT["rot2"] else [list(range(16))] * 4
ORDQ = orders(10, 4, None, 0, {1: [1, 1, 2, 2, 2, 1, 1], 2: [1, 1, 4], 3: [1, 1, 2, 2, 1, 1, 1, 1]}[OPT["rotq"]])[0] if OPT["rotq"] else [list(range(10))] * 4
assert all(o[:2] == [0, 1] for o in ORDQ)
TBLQ = [sum(x << (4 * n) for n, x in enumerate(o[2:])) for o in ORDQ]
ORDQ1 = {0: ORDQ, 1: orders(10, 4, None, 0, [4])[0], 2: orders(10, 4, None, 0, [2, 2, 2, 1, 1, 1, 1])[0], 3: orders(10, 4, None, 0, [4, 0, 1, 1, 1, 1, 1, 1])[0]}[OPT["rotq1"]]
TBLQ1 = [sum(x << (4 * n) for n, x in enumerate(o[2:])) for o in ORDQ1]
TBLQ0 = [o[0] | o[1] << 4 for o in ORDQ1]


def by_role(dst, role, consts):
    o = [salu("s_mov_b32", dst, "0x%x" % consts[0])]
    for r in range(1, 4):
        o += [[scmp("s_cmp_eq_u32", role, r), salu("s_cselect_b32", dst, "0x%x" % consts[r], dst)]]
    return o


TBL2 = [sum(x << (4 * n) for n, x in enumerate(o)) for o in ORD2]


def next_off(dst, tbl, base, stride):
    return [salu("s_and_b32", dst, f"s{tbl}", 15), salu("s_lshr_b64", f"s[{tbl}:{tbl + 1}]", f"s[{tbl}:{tbl + 1}]", 4),
            salu("s_mul_i32", dst, dst, stride), salu("s_add_u32", dst, dst, base)]


def set_pf_out():
    o = [salu("s_and_b32", "s68", "s4", 3), salu("s_mul_i32", "s68", "s68", 1310720), salu("s_mul_i32", "s69", "s5", WOT_BLK),
         salu("s_add_u32", "s68", "s68", "s69"), salu("s_add_u32", "s68", "s68", WS_WOT)]
    o += [[salu("s_add_u32", f"s{S_WQ}", "s90", "s68"), salu("s_addc_u32", "s69", "s91", 0)]]
    o += [salu("s_and_b32", f"s{S_WQ + 1}", "s69", "0xffff"), salu("s_mov_b32", f"s{S_WQ + 2}", 1310720),
          salu("s_mov_b32", f"s{S_X}", f"s{S_WQ}"), salu("s_mov_b32", f"s{S_X + 1}", f"s{S_WQ + 1}"), salu("s_mov_b32", f"s{S_X + 2}", 1310720)]
    o += [salu("s_lshr_b32", "s70", sWAVE, 1), salu("s_mul_i32", "s68", sWAVE, 16 * 20480), salu("s_lshl_b32", "s69", "s70", 14),
          salu("s_add_u32", "s68", "s68", "s69"), salu("s_lshl_b32", "s69", "s70", 13), salu("s_sub_u32", "s69", 4096, "s69")]
    o += [salu("s_add_u32", "s70", "s3", "s4"), salu("s_and_b32", "s70", "s70", 3),
          salu("s_mov_b32", "s34", "0x%x" % (TBL2[0] & 0xffffffff)), salu("s_mov_b32", "s35", "0x%x" % (TBL2[0] >> 32))]
    for r in range(1, 4):
        o += [[scmp("s_cmp_eq_u32", "s70", r), salu("s_cselect_b32", "s34", "0x%x" % (TBL2[r] & 0xffffffff), "s34"),
               salu("s_cselect_b32", "s35", "0x%x" % (TBL2[r] >> 32), "s35")]]
    o += [salu("s_and_b32", "s70", "s34", 15), salu("s_mul_i32", "s70", "s70", 20480), salu("s_add_u32", "s70", "s70", "s68"),
          salu("s_bfe_u32", "s71", "s34", "0x40004"), salu("s_mul_i32", "s71", "s71", 20480), salu("s_add_u32", "s71", "s71", "s68")]
    for r, (st, pi, off) in PF2.items():
        o += [salu("s_mul_i32", r, "s69", pi), salu("s_add_u32", r, r, "s71" if st else "s70")]
        if off:
            o += [salu("s_add_u32", r, r, off)]
    return o


def groups_at(iss):
    order = {"W": 0, "X": 1, "K": 2, "V": 2}
    keys = sorted([k for k, u in U.items() if u["iss"] is not None and u["iss"] % 27 == iss % 27 and "even" not in u],
                  key=lambda k: (U[k]["land"] - U[k]["iss"], order[k[0]], k))
    return [g for k in keys for g in unit_dmas(k)]


def place_dmas(S, groups, cand, lo):
    ci = 0
    for pre, ds in groups:
        g = cand[ci]
        for n, p in enumerate(pre[:-1]):
            S.put(max(lo, g - len(pre) + n), p)
        for d in ds:
            d.m0 = pre[-1]
            S.put(cand[ci], d)
            ci += 1


def fix_m0(S):
    cur, prev = None, -2
    for g in sorted(S.fixed):
        for d in [x for x in S.fixed[g] if x.kind == "dma"]:
            if d.m0.text != cur:
                m = Ins(d.m0.text, "salu", rd=d.m0.rd, wr=d.m0.wr)
                if g - 1 > prev and not any(x.kind in ("bar", "branch") for x in S.fixed.get(g - 1, [])):
                    S.put(g - 1, m)
                else:
                    S.fixed[g].insert(S.fixed[g].index(d), m)
                cur = d.m0.text
            prev = g
        if any(x.kind == "label" for x in S.fixed[g]):
            cur = None


def tags_for(n):
    t = [k for k, u in U.items() if (u["land"] - n) % 27 == 0]
    if n == OPT["flagbar"]:
        t += ["ost", "jst"]
    if n == 2:
        t += ["J"]
    return t


def atomic_add(vdata, soff):
    return Ins(f"buffer_atomic_add {vdata}, {vFLG}, s[{S_FLG}:{S_FLG + 3}], {soff} offen sc1", "atomic",
               rd=[vdata, vFLG, soff] + regs("s", S_FLG, 4), tag="flag")


def poll_load(vdst, soff):
    return Ins(f"buffer_load_dword {vdst}, off, s[{S_FLG}:{S_FLG + 3}], {soff} sc1", "vld", rd=[soff] + regs("s", S_FLG, 4), wr=[vdst])


class Win:
    def __init__(self, rs, init):
        self.rs = rs
        self.cur = init

    def move(self, new):
        d = (new - self.cur) & 0xffffffff
        self.cur = new
        return [valu("v_add_u32", r, "0x%x" % d, r) for r in self.rs] if d else []


def plan_windows(addrs, span):
    want = []
    i = 0
    while i < len(addrs):
        lo = hi = addrs[i]
        j = i + 1
        while j < len(addrs) and max(hi, addrs[j]) - min(lo, addrs[j]) + span < 65536:
            lo, hi = min(lo, addrs[j]), max(hi, addrs[j])
            j += 1
        want += [lo] * (j - i)
        i = j
    return want


KWANT = plan_windows([U[("K", t)]["addr"] for t in range(16)], 4096)
VWANT = plan_windows([U[("V", t)]["addr"] for t in range(16)], 4096)
check_units(False)
check_units(True)


def pstore(v0, idx):
    return Ins(f"buffer_store_dwordx2 v[{v0}:{v0 + 1}], off, s[{S_PROF}:{S_PROF + 3}], {sPROF} offset:{8 * idx}", "vst",
               rd=[f"v{v0}", f"v{v0 + 1}", sPROF] + regs("s", S_PROF, 4))


def prof_stamp(idx, v0=252):
    if not OPT["prof"]:
        return []
    return [raw("s_memtime s[76:77]", "other", wr=["s76", "s77"]),
            raw("s_memrealtime s[78:79]", "other", wr=["s78", "s79"]),
            raw("s_waitcnt lgkmcnt(0)", "drainlg"),
            valu("v_mov_b32", f"v{v0}", "s76"),
            valu("v_mov_b32", f"v{v0 + 1}", "s78"),
            pstore(v0, idx)]


def bar_seq(tags, idx):
    if OPT["prof"] < 2:
        return [needboth(tags), barrier()] + prof_stamp(idx)
    return [raw("s_memtime s[58:59]", "other", wr=["s58", "s59"]), raw("s_waitcnt lgkmcnt(0)", "drainlg"),
            needboth(tags), barrier(),
            raw("s_memtime s[76:77]", "other", wr=["s76", "s77"]),
            raw("s_memrealtime s[78:79]", "other", wr=["s78", "s79"]),
            raw("s_waitcnt lgkmcnt(0)", "drainlg"), salu("s_sub_u32", "s76", "s76", "s58"),
            valu("v_mov_b32", "v252", "s76"), valu("v_mov_b32", "v253", "s78"), pstore(252, idx)]


def a_read(i, dt, ks, t):
    p, xy = dt >> 1, dt & 1
    off = U[("W", i, p >> 1)]["addr"] + ks * 4096 + t * 512 + xy * 8
    return ds_read("ds_read_b64_tr_b16", ("a", ABUF[dt % 2] + 4 * ks + 2 * t), 2, wA[p & 1], off)


def first_reads(i):
    ax = U[("X", i)]["addr"] - XS[0]

    def A(ks, t):
        return a_read(i, 0, ks, t)

    def B(qt, ks):
        return ds_read("ds_read_b128", ("a", bx(qt, ks)), 4, xA[ks], ax + qt * 2048)
    return [A(0, 0), A(0, 1), B(0, 0), A(1, 0), A(1, 1), B(0, 1)] + [B(qt, ks) for qt in range(1, 6) for ks in range(2)]


def k_read(t, j):
    kt, ks = j >> 2, j & 3
    return ds_read("ds_read_b128", ("a", kf(kt, ks)), 4, kA[ks], U[("K", t)]["addr"] - KWANT[t] + kt * 4096)


def epilogue_groups(tmp, dst=None, vaddr=None):
    groups = []
    n = 0
    for T in range(3):
        for ph in range(2):
            for qs in range(2):
                for pl in range(2):
                    qt = 2 * T + qs
                    tb = tmp + 4 * (n % 3)
                    src = oacc(qt, 4 * ph + 2 * pl)
                    db = tb if dst is None or dst(n) is None else dst(n)
                    rd = [valu("v_accvgpr_read_b32", f"v{tb + i}", f"a{src + i}") for i in range(8)]
                    mu = [valu("v_mul_f32", f"v{tb + i}", vR[qt], f"v{tb + i}") for i in range(8)]
                    cv = [valu("v_cvt_pk_bf16_f32", f"v{db + i}", f"v{tb + 2 * i}", f"v{tb + 2 * i + 1}") for i in range(4)]
                    pre = [salu("s_add_u32", sE, sO, ph * 12288 + T * 4096)] if qs == 0 and pl == 0 else []
                    imm = qs * 2048 + pl * 1024
                    groups.append((rd + mu + cv, pre, vstore(("v", db), 4, vaddr or vL16, S_OST, sE, imm, tag="ost", flags=SC1), imm))
                    n += 1
    return groups


def conv_items(T, ps, packed=()):
    out = []
    for p in ps:
        for qs in range(2):
            R, Dd = qacc(p, 0, 2 * T + qs), qf(2 * T + qs, p)
            if OPT["tmax"]:
                pass
            elif p in packed:
                out += [(p, qs, valu("v_pk_mul_f32", f"v[{R + x}:{R + x + 1}]", f"v[{R + x}:{R + x + 1}]", "s[86:87]" if False else vC2)) for x in range(0, 8, 2)]
            else:
                out += [(p, qs, valu("v_mul_f32", f"v{R + x}", sC, f"v{R + x}")) for x in range(8)]
            out += [(p, qs, valu("v_cvt_pk_bf16_f32", f"v{Dd + x}", f"v{R + 2 * x}", f"v{R + 2 * x + 1}")) for x in range(4)]
    return out


def touch_code(S, g, base, st, va, vd):
    S.put(g, salu("s_add_u32", st, sCP, base))
    S.put(g + 1, salu("s_min_u32", st, st, "L_endcode-L_pc-256"))
    S.put(g + 2, valu("v_and_b32", va, 16, vL16), valu("v_lshlrev_b32", va, 3, va))
    S.put(g + 3, valu("v_add_u32", va, st, va))
    return Ins(f"global_load_dword {vd}, {va}, s[96:97]", "vld", rd=[va, "s96", "s97"], wr=[vd])


def q_phase(second):
    S = Sched()
    extra, mid = {}, {}
    if not second:
        jp = OPT["jpro"]
        if jp == 0:
            extra[0] = [g for jj in range(5) for g in unit_dmas(("J", jj), sE)]
            extra[1] = [g for jj in range(5, 10) for g in unit_dmas(("J", jj), sE)]
        elif jp < 10:
            extra[1] = [g for jj in range(jp, 10) for g in unit_dmas(("J", jj), sE)]
        kv = [unit_dmas(k, sE) for k in [("K", 0), ("V", 0), ("K", 1)]]
        if OPT["kplan"] == 0:
            extra[4], extra[5], extra[6] = kv
        elif OPT["kplan"] == 1:
            extra[7], mid[8] = kv[0], kv[1]
            extra[8] = kv[2]
        elif OPT["kplan"] == 2:
            extra[4], extra[7], mid[8] = kv
        elif OPT["kplan"] == 4:
            extra[5], extra[6], extra[7] = kv
        elif OPT["kplan"] == 5:
            extra[4], extra[6], extra[7] = kv
        elif OPT["kplan"] == 3:
            extra[5], extra[7], mid[8] = kv
    for i in range(10):
        q0 = S.n()
        for dt in range(8):
            for qt in range(6):
                for ks in range(2):
                    acc = ("v", qacc(dt >> 1, dt & 1, qt))
                    S.add(mfma(16, acc, ("a", ABUF[dt % 2] + 4 * ks), ("a", bx(qt, ks)), None if (i == 0 and ks == 0) else acc))
        for dt in range(1, 8):
            gaps = [4, 5, 6, 7] if dt == 1 else [0, 2, 3, 4]
            for n, (ks, t) in enumerate([(0, 0), (0, 1), (1, 0), (1, 1)]):
                S.put(q0 + 12 * (dt - 1) + gaps[n], a_read(i, dt, ks, t))
        S.put(q0 + 35, needboth(tags_for(i - 0.5)), barrier())
        S.put(q0 + 83, *bar_seq(tags_for(i), 2 + i))
        if i < 9:
            for n, r in enumerate(first_reads(i + 1)):
                S.put(q0 + 84 + n, r)
        else:
            kw = Win(kA, KWANT[15])
            mv = kw.move(KWANT[0])
            S.put(q0 + 80, *mv[:2])
            S.put(q0 + 82, *mv[2:])
            for j in range(8):
                S.put(q0 + 84 + j, k_read(0, j))
        if i <= 7:
            for n, x in enumerate([salu("s_bfe_u32", sXS, sQT, "0x%x" % (0x40000 + 4 * i)), salu("s_lshl_b32", sWS, sXS, 19),
                                   salu("s_add_u32", sWS, sWS, sWQ), salu("s_lshl_b32", sXS, sXS, 7), salu("s_add_u32", sXS, sXS, sX),
                                   salu("s_add_u32", sW1, sWS, 128)]):
                S.put(q0 + 26 + n, x)
        early = groups_at(i - 1)
        place_dmas(S, early + mid.get(i, []), [q0 + g for g in ((9, 17, 25, 33) if OPT["qsp"] and i == 9 else (9, 13, 17, 21, 25, 29, 31, 33))], q0)
        late = groups_at(i - 0.5) + extra.get(i, [])
        if i == 8 and 8 in extra:
            late = extra[8] + groups_at(i - 0.5)
        cand = [q0 + 37 + 4 * x for x in range(12)]
        nd = sum(len(g[1]) for g in late)
        if nd > 12:
            cand = sorted(cand + [q0 + 67, q0 + 71, q0 + 75, q0 + 79][:nd - 12])
        if OPT["qsp"] and i >= 8 and nd:
            allowed = [37, 41, 43, 45, 47, 49, 53, 55, 57, 59, 61, 65, 67, 69, 71, 73, 77, 79, 81]
            cand = [q0 + allowed[round(x * (len(allowed) - 1) / max(nd - 1, 1))] for x in range(nd)]
        place_dmas(S, late, cand, q0 + 35)
    if not second:
        for jj in range(10):
            q0 = 96 * 3
            if jj == 8:
                S.put(q0 + 65, valu("v_add_u32", vJ, D[9] - D[4] - 2 * 16384, vJ))
            for tt in range(2):
                g = q0 + [10, 11, 18, 19, 22, 23, 30, 31, 34, 42, 43, 46, 47, 54, 55, 58, 66, 67, 70, 71][2 * jj + tt]
                S.put(g, ds_read("ds_read_b64_tr_b16", ("a", 4 * jj + 2 * tt), 2, vJ, (jj >> 2) * 16384 + (jj & 3) * 1024 + tt * 8192))
            nq, pair = divmod(2 * jj, 5)
            g = 96 * (4 + jj // 3) + [19, 25, 31][jj % 3]
            if OPT["jlate"]:
                g = 96 * (3 + jj // 2) + ([79, 82] if (3 + jj // 2) in extra else [77, 81])[jj % 2]
            S.put(g - 1, salu("s_add_u32", sJ, sWOX if pair == 4 else sWOD, nq * 1310720 + pair * 4096))
            S.put(g, vstore(("a", 4 * jj), 4, vL16, S_WOT, sJ, 0, tag="jst", flags=SC1))
    if not second and OPT["ctq"]:
        q0 = 96 * OPT["ctq"]
        S.put(q0 + 33, touch_code(S, q0 + 18, "L_att-L_pc", sJ, vT[0], vT[1]))
    if second:
        eg = epilogue_groups(EPI)
        ep = []
        for i in range(8):
            for g in eg[3 * i:3 * i + 3]:
                ep += [(x, 96 * i, None) for x in g[0]]
            for g in eg[3 * i:3 * i + 3]:
                ep += [(x, 96 * i + OPT["stg"], None) for x in g[1] + [g[2]]]
        ep[-1] = (ep[-1][0], ep[-1][1], 96 * 9 - 1)
        S.stream(ep)
        S.put(96 * 9 + 2, salu("s_add_u32", sO, sO, 8 * 12288))
    q0 = 96 * 9
    g = q0 + 2
    for x in ([salu("s_add_u32", sWQ, sWQ, 512)] + set_pf_proj(True) + [salu("s_add_u32", "s68", "s3", "s4"), salu("s_and_b32", "s68", "s68", 3)] + by_role(sQT, "s68", TBLQ) if not second else set_pf_out()):
        S.put(g, *(x if isinstance(x, list) else [x]))
        g += 1 if g < q0 + 94 else 0
        while g in (q0 + 35, q0 + 83) or any(x.kind == "salu" for x in S.fixed.get(g, [])):
            g += 1
    if second:
        S.stream([(valu("v_mov_b32", r, vL16), q0 + 2, None) for r in vW + vX])
    if not OPT["tmax"]:
        S.put(q0 + 7, valu("v_mov_b32", "v242", sC), valu("v_mov_b32", "v243", sC))
    S.stream([(x, min(q0 + 12 * (2 * p + 1) + 2 * qs + 1 + 2, q0 + 95), None) for p, qs, x in conv_items(0, range(4))])
    if OPT["tmax"]:
        for T in (1, 2):
            S.stream([(x, q0 + 12 * (2 * p + 1) + 4 * T + 2 * qs + 1 + 2, None) for p, qs, x in conv_items(T, range(3))])
    S.put(-1, *prof_stamp(1))
    fix_m0(S)
    return S.finish(lead=first_reads(0), report=OPT["report"])


def lspread(qt, tmp):
    l = f"v{lacc(qt)}"
    return [valu("v_mov_b32", tmp, l), perm("v_permlane32_swap_b32", tmp, l), valu("v_add_f32", l, l, tmp),
            valu("v_mov_b32", tmp, l), perm("v_permlane16_swap_b32", tmp, l), valu("v_add_f32", l, l, tmp)]


def interleave(a, b):
    return [x for p in zip(a, b) for x in p]


def lcheck():
    l = [f"v{lacc(qt)}" for qt in range(6)]
    if OPT["tmax"] == 2:
        return [valu("v_add_f32", vT[0], l[0], l[1]), valu("v_add_f32", vT[1], l[2], l[3]), valu("v_add_f32", vT[0], vT[0], l[4]),
                valu("v_add_f32", vT[1], vT[1], l[5]), valu("v_add_f32", vT[0], vT[0], vT[1]), valu("v_cmp_ngt_f32", "vcc", sHI, vT[0])]
    if OPT["tmax"]:
        x = [f"v{mrun(qt)}" for qt in range(6)]
        return ([valu("v_fma_f32", x[q], x[q], sC, f"v{mneg(q)}") for q in range(6)] +
                [valu("v_add_f32", vT[0], l[0], l[1]), valu("v_max3_f32", vT[1], x[0], x[1], x[2]),
                 valu("v_add_f32", vT[0], vT[0], l[2]), valu("v_max3_f32", vT[1], vT[1], x[3], x[4]),
                 valu("v_add_f32", vT[0], vT[0], l[3]), valu("v_add_f32", vT[0], vT[0], l[4]),
                 valu("v_max_f32", vT[1], vT[1], x[5]), valu("v_add_f32", vT[0], vT[0], l[5]),
                 valu("v_cmp_ngt_f32", "s[56:57]", sLO, vT[1]),
                 valu("v_cmp_ngt_f32", "vcc", sHI, vT[0]),
                 salu("s_or_b64", "vcc", "vcc", "s[56:57]")])
    return [valu("v_add_f32", vT[0], l[0], l[1]), valu("v_min3_f32", vT[1], l[0], l[1], l[2]),
            valu("v_add_f32", vT[0], vT[0], l[2]), valu("v_min3_f32", vT[1], vT[1], l[3], l[4]),
            valu("v_add_f32", vT[0], vT[0], l[3]), valu("v_add_f32", vT[0], vT[0], l[4]),
            valu("v_min_f32", vT[1], vT[1], l[5]), valu("v_add_f32", vT[0], vT[0], l[5]),
            valu("v_cmp_nlt_f32", "s[56:57]", sLO, vT[1]),
            valu("v_cmp_ngt_f32", "vcc", sHI, vT[0]),
            salu("s_or_b64", "vcc", "vcc", "s[56:57]")]


def a_phase(last):
    S = Sched()
    qk = [[0] * 3 for _ in range(16)]
    pv = [[0] * 3 for _ in range(16)]

    def QK(t, T):
        qk[t][T] = S.n()
        for qs in range(2):
            for kt in range(2):
                s = ("v", sreg(2 * T + qs) + 4 * kt)
                for ks in range(4):
                    S.add(mfma(16, s, ("a", kf(kt, ks)), ("v", qf(2 * T + qs, ks)), None if ks == 0 else s))

    def PV(t, T):
        pv[t][T] = S.n()
        sums = []
        for qs in range(2):
            l = ("v", lacc(2 * T + qs))
            sums.append(mfma(16, l, ("v", ONES), ("v", sreg(2 * T + qs)), None if t == 0 else l))
        if t == 15:
            for m in sums:
                S.add(m)
        for dt in range(8):
            for qs in range(2):
                o = ("a", oacc(2 * T + qs, dt))
                S.add(mfma(16, o, ("a", vf(dt)), ("v", sreg(2 * T + qs)), None if t == 0 else o))
        if t < 15:
            for m in sums:
                S.add(m)

    for t in range(16):
        QK(t, 0)
        if t:
            PV(t - 1, 1)
        QK(t, 1)
        if t:
            PV(t - 1, 2)
        QK(t, 2)
        PV(t, 0)
    PV(15, 1)
    PV(15, 2)
    bar = {}
    kw, vw = Win(kA, KWANT[0]), Win(vA, VWANT[0])
    for t in range(16):
        g0 = pv[t - 1][2] if t else qk[0][1]
        bar[10 + t] = g0 - 1
        S.put(g0 - 1, *bar_seq(tags_for(10 + t), 12 + t))
        if t == 13:
            S.put(g0 - 1, scmp("s_cmp_eq_u32", sIT, 1), raw("s_cbranch_scc1 L_tail2", "branch", rd=["scc"]), label("L_CUT"))
        for n, m in enumerate(vw.move(VWANT[t])):
            S.put(g0 - 14 + 3 * (n // 2), m)
        for dt in range(8):
            for tt in range(2):
                S.put(g0 + 4 * dt + 1 + 2 * tt,
                      ds_read("ds_read_b64_tr_b16", ("a", vf(dt) + 2 * tt), 2, vA[dt], U[("V", t)]["addr"] - VWANT[t] + tt * 4096))
        if t < 15:
            for n, m in enumerate(kw.move(KWANT[t + 1])):
                S.put((qk[t][0] + 9 if t else qk[0][2] + 2) + (3 if t else 2) * (n // 2), m)
            for j in range(8):
                S.put(qk[t][2] + [8, 10, 12, 14, 17, 19, 21, 23][j], k_read(t + 1, j))
    if not last:
        S.stream([(m, pv[15][0], None) for m in vw.move(VWANT[0])])
    bar[26] = pv[15][1] - 1
    S.put(bar[26], *(prof_stamp(28) if last else bar_seq(tags_for(26), 28)))
    fr = [] if last else first_reads(0)
    for n, r in enumerate(fr[:10]):
        S.put(pv[15][1] + [1, 3, 5, 7, 9, 11, 13, 15, 16, 17][n], r)
    for n, r in enumerate(fr[10:]):
        S.put(pv[15][2] + 3 + 2 * n, r)
    stream = sorted([k for k, u in U.items() if "even" in u], key=lambda k: U[k]["even"])
    nk = len(stream)
    stream += [("P", 0), ("P", 1), ("P", 2)] if last else [("K", 0), ("V", 0), ("K", 1)]
    for e, key in enumerate(stream):
        cand = []
        for m in range(4):
            g = int(kpos(4 * e + m))
            while S.used(g, False) > 0 or g - 1 in bar.values():
                g += 1
            cand.append(g)
        lo = bar.get(U[key]["iss"] if e < nk else (23, 24, 24)[e - nk], -2) + 1
        assert cand[0] > lo + (3 if e >= nk else 0), (key, cand, lo)
        if e == nk:
            S.put(cand[0] - 5, salu("s_add_u32", sKV, sKV, 262144))
        place_dmas(S, unit_dmas(key, sE if e >= nk else None), cand, lo)
    for n in range(24, 27):
        groups = groups_at(n - 1)
        nd = sum(len(g[1]) for g in groups)
        a, b = bar[n - 1] + 5, bar[n] - 1
        cand = []
        for x in range(nd):
            g = a + (b - a) * x // nd
            while any(i.kind in MEMK for k in (g - 1, g, g + 1) for i in S.fixed.get(k, []) if k == g or i.kind == "dma") or g in cand:
                g += 1
            cand.append(g)
        assert cand[-1] < bar[n]
        place_dmas(S, groups, cand, bar[n - 1] + 1)
    if OPT["xpace"]:
        for t in range(1, 14):
            for T in range(3):
                S.put(pv[t][T] + 17, nop(OPT["xpace"]))
                S.put(qk[t][T] + 15, nop(OPT["xpace"]))
    g = bar[OPT["flagbar"]] + 2
    S.put(g - 1, scmp("s_cmp_eq_u32", sIT, 0), salu("s_cselect_b32", sE, sFB, sFG), salu("s_cselect_b32", sJ, "0x10000", 1))
    S.put(g + 1, valu("v_mov_b32", f"v{EPI}", sJ))
    S.put(g + 4, atomic_add(f"v{EPI}", sE))
    g = qk[12 - OPT['t23']][0]
    S.put(g + 1, scmp("s_cmp_eq_u32", sIT, 1), salu("s_cselect_b32", sE, sFB, "0x1000"))
    S.put(g + 3, poll_load(vPOLL[1], sE))
    g = qk[13 - OPT['t23']][0]
    S.put(g + 1, salu("s_lshl_b32", sWANT, sIT, 23), valu("v_readfirstlane_b32", sQ, vPOLL[1]))
    S.put(g + 4, scmp("s_cmp_lt_u32", sQ, sWANT), raw("s_cbranch_scc1 L_spin3", "branch", rd=["scc"]), label("L_spin3_back"))
    if last:
        g = bar[25] + 2
        S.put(g, poll_load(vPOLL[0], sFG))
        su = [salu("s_lshr_b32", "s84", "s4", 2), salu("s_mul_i32", "s7", "s3", O_GRP), salu("s_mul_i32", "s58", "s84", 786432),
              salu("s_add_u32", "s7", "s7", "s58"), [salu("s_add_u32", f"s{S2B}", "s90", "s7"), salu("s_addc_u32", "s59", "s91", 0)],
              salu("s_and_b32", f"s{S2B + 1}", "s59", "0xffff"), salu("s_mov_b32", f"s{S2B + 2}", 786432),
              salu("s_mul_i32", sBB, sWAVE, 16 * 12288), salu("s_mov_b64", f"s[{TB}:{TB + 1}]", "s[34:35]")] + next_off(sB2, TB, sBB, 12288)
        su += [salu("s_and_b32", "s58", sWAVE, 1), salu("s_mul_i32", "s58", "s58", 3 * 2048), salu("s_sub_u32", "s59", 3 * 2048, "s58"),
               salu("s_lshr_b32", "s86", sWAVE, 1), salu("s_lshl_b32", "s86", "s86", 12), salu("s_add_u32", "s58", "s58", "s86"),
               salu("s_add_u32", "s59", "s59", "s86"), salu("s_sub_u32", "s86", 2048, "s86")]
        g += 1
        for x in su:
            while any(i.kind == "salu" for i in S.fixed.get(g, [])):
                g += 1
            S.put(g, *(x if isinstance(x, list) else [x]))
            g += 1
        va = [valu("v_add_u32", V2B[0], "s58", vL16), valu("v_add_u32", V2B[3], "s59", vL16)]
        for q in (1, 2):
            va += [valu("v_add_u32", V2B[q], "s86", V2B[q - 1]), valu("v_add_u32", V2B[3 + q], "s86", V2B[2 + q])]
        S.stream([(x, g, pv[15][1] - 3) for x in va])
        g = pv[15][0] + 12
        S.put(g, valu("v_readfirstlane_b32", sQ, vPOLL[0]))
        S.put(g + 3, salu("s_and_b32", sQ, sQ, "0xff"), scmp("s_cmp_lt_u32", sQ, 8),
              raw("s_cbranch_scc1 L_spin1", "branch", rd=["scc"]), label("L_spin1_back"))
        for n, l in enumerate([l for qi in range(6) for l in k2_loads_B(0, qi)]):
            S.put(pv[15][1] + 1 + 2 * n if n < 8 else pv[15][2] + 3 + 3 * (n - 8), l)
    for n, t in enumerate([int(x) for x in OPT["cta"].split(",") if x]):
        g = pv[t][0]
        while any(S.fixed.get(k) for k in range(g, g + 6)):
            g += 1
        S.put(g + 5, touch_code(S, g, f"L_att-L_pc+{(n + 1) * 12288}", sJ, f"v{EPI + 4}", f"v{EPI + 5}"))
    if OPT["codepf2"]:
        g = qk[OPT["codepf2"]][0] - 6
        S.put(g - 2, salu("s_mul_i32", sJ, sIT, "L_tail2-L_tail1"))
        S.put(g - 1, salu("s_add_u32", sJ, sJ, "L_tail1-L_pc"))
        S.put(g, salu("s_add_u32", sJ, sJ, sCP))
        S.put(g + 1, salu("s_min_u32", sJ, sJ, "L_endcode-L_pc-256"))
        S.put(g + 2, valu("v_and_b32", f"v{EPI + 2}", 16, vL16), valu("v_lshlrev_b32", f"v{EPI + 2}", 3, f"v{EPI + 2}"))
        S.put(g + 3, valu("v_add_u32", f"v{EPI + 2}", sJ, f"v{EPI + 2}"))
        S.put(g + 5, Ins(f"global_load_dword v{EPI + 3}, v{EPI + 2}, s[96:97]", "vld", rd=[f"v{EPI + 2}", "s96", "s97"], wr=[f"v{EPI + 3}"]))
    for T in (1, 2):
        if OPT["pk"] and not OPT["tmax"]:
            nfree = OPT["nfree"] if T == 1 else 0
            S.stream([(x, -1, None) for p, qs, x in conv_items(T, range(nfree))] +
                     [(x, qk[0][T] - 1, qk[0][T] - 1) for p, qs, x in conv_items(T, range(nfree, 4), packed=range(4))])
        else:
            c = [(x, -1, None) for p, qs, x in conv_items(T, range(3 if OPT["tmax"] else 0, 4))]
            c[-1] = (c[-1][0], -1, qk[0][T] - 1)
            S.stream(c)
    fin = []
    if OPT["one1"]:
        for T in range(3):
            fin += [(x, [pv[15][1] + 12, pv[15][2], pv[15][2] + 4][T], None) for x in interleave(lspread(2 * T, f"v{lacc(2 * T) + 1}"), lspread(2 * T + 1, f"v{lacc(2 * T + 1) + 1}"))]
    S.stream(fin + [(x, pv[15][2] + 4, None) for x in lcheck()])
    units = []
    for t in range(16):
        for qt in range(6):
            s = sreg(qt)
            T, qs = qt >> 1, qt & 1
            dl = pv[t][T] + qs - 2
            units.append(dict(e=qk[t][T] + 8 * qs + 7 + 2,
                              exps=[valu("v_exp_f32", f"v{s + r}", f"v{s + r}") for r in range(8)],
                              cvts=[(valu("v_cvt_pk_bf16_f32", f"v{s + r}", f"v{s + 2 * r}", f"v{s + 2 * r + 1}"), 2 * r + 2, dl) for r in range(4)]))
    if OPT["tmax"]:
        for n, u in enumerate(units):
            t, qt = divmod(n, 6)
            s, m, mn = sreg(qt), f"v{mrun(qt)}", f"v{mneg(qt)}"
            fma = [valu("v_fma_f32", f"v{s + r}", f"v{s + r}", sC, mn) for r in range(8)]
            if t == 0:
                pre = [valu("v_max3_f32", m, f"v{s}", f"v{s + 1}", f"v{s + 2}"), valu("v_max3_f32", mn, f"v{s + 3}", f"v{s + 4}", f"v{s + 5}"),
                       valu("v_max3_f32", m, m, f"v{s + 6}", f"v{s + 7}"), valu("v_max_f32", m, m, mn)]
                for op in ("v_permlane32_swap_b32", "v_permlane16_swap_b32"):
                    pre += [valu("v_mov_b32", mn, m), perm(op, mn, m), valu("v_max_f32", m, m, mn)]
                pre += [valu("v_mul_f32", mn, sNC, m)] + fma
                need = [len(pre) - 7 + r for r in range(8)]
            else:
                pre, need = [], []
                for r in range(0, 8, 2):
                    if OPT["tmax"] == 1:
                        pre += [valu("v_max3_f32", m, m, f"v{s + r}", f"v{s + r + 1}")]
                    pre += [fma[r], fma[r + 1]]
                    need += [len(pre) - 1, len(pre)]
            u["pre"] = pre
            u["exps"] = list(zip(u["exps"], need))
        def xok(g):
            n = OPT["xhi"] if g < qk[2][0] or g >= qk[13][0] else OPT["xnum"]
            return (g * n) % 100 < n
        S.packers.append(SoftmaxPacker2(units,
                                        lambda g: 1 if S.used(g, False) < 2 and xok(g) else 0))
    else:
        S.packers.append(SoftmaxPacker(units))
    fix_m0(S)
    return S.finish(lead=[k_read(0, j) for j in range(8)], report=OPT["report"])


def slow_path():
    o = [label("L_slow"), drain(), nop(16)]
    KF = [EPI + 4 * k for k in range(4)]
    VFR = 56
    vM = [f"v{120 + q}" for q in range(6)]
    vKo, vVo, vt, vu = "v60", "v61", "v62", "v63"
    o += [valu("v_lshrrev_b32", vt, 4, vL16), valu("v_and_b32", vu, 15, vt), valu("v_lshrrev_b32", vt, 4, vt),
          valu("v_lshlrev_b32", vKo, 8, vu), valu("v_lshl_add_u32", vKo, vt, 4, vKo),
          valu("v_lshlrev_b32", vVo, 10, vt), valu("v_lshl_add_u32", vVo, vu, 1, vVo)]
    o += [salu("s_sub_u32", "s58", sKV, 262144)]
    o += [valu("v_mov_b32", m, "0xff800000") for m in vM]

    def scores():
        r = []
        for kt in range(2):
            r += [salu("s_add_u32", "s61", "s59", kt * 4096)]
            r += [vload(("v", KF[ks]), 4, vKo, S_K, "s61", 64 * ks) for ks in range(4)] + [drain()]
            for qt in range(6):
                s = ("v", sreg(qt) + 4 * kt)
                r += [mfma(16, s, ("v", KF[ks]), ("v", qf(qt, ks)), None if ks == 0 else s) for ks in range(4)]
            r += [nop(16)]
        return r
    o += [salu("s_mov_b32", "s59", "s58"), salu("s_mov_b32", "s60", 16), label("L_slow1")] + scores()
    for qt in range(6):
        o += [valu("v_max3_f32", vM[qt], vM[qt], f"v{sreg(qt) + r}", f"v{sreg(qt) + r + 1}") for r in range(0, 8, 2)]
    o += [salu("s_add_u32", "s59", "s59", 8192), salu("s_sub_u32", "s60", "s60", 1), scmp("s_cmp_lg_u32", "s60", 0),
          raw("s_cbranch_scc1 L_slow1", "branch", rd=["scc"])]
    for qt in range(6):
        for op in ("v_permlane32_swap_b32", "v_permlane16_swap_b32"):
            o += [valu("v_mov_b32", vt, vM[qt]), nop(2), perm(op, vt, vM[qt]), valu("v_max_f32", vM[qt], vM[qt], vt)]
        o += [valu("v_mov_b32", f"v{lacc(qt) + r}", 0) for r in range(4)]
    o += [valu("v_accvgpr_write_b32", f"a{r}", 0) for r in range(192)]
    o += [salu("s_mov_b32", "s59", "s58"), salu("s_mov_b32", "s60", 16), label("L_slow2")] + scores()
    for qt in range(6):
        s = sreg(qt)
        o += [valu("v_sub_f32", f"v{s + r}", f"v{s + r}", vM[qt]) for r in range(8)]
        if OPT["tmax"]:
            o += [valu("v_mul_f32", f"v{s + r}", sC, f"v{s + r}") for r in range(8)]
        o += [valu("v_exp_f32", f"v{s + r}", f"v{s + r}") for r in range(8)]
        o += [valu("v_cvt_pk_bf16_f32", f"v{s + r}", f"v{s + 2 * r}", f"v{s + 2 * r + 1}") for r in range(4)]
    o += [salu("s_add_u32", "s57", "s59", 4096)]
    for dt in range(8):
        for j in range(8):
            o += [vload(("v", 184 + j), 1, vVo, S_V, "s57" if j >= 4 else "s59", (j & 3) * 256 + 32 * dt, op="buffer_load_ushort")]
        o += [drain()]
        o += [valu("v_lshl_or_b32", f"v{VFR + r}", f"v{185 + 2 * r}", 16, f"v{184 + 2 * r}") for r in range(4)]
        o += [mfma(16, ("a", oacc(qt, dt)), ("v", VFR), ("v", sreg(qt)), ("a", oacc(qt, dt))) for qt in range(6)]
        o += [nop(8)]
    o += [mfma(16, ("v", lacc(qt)), ("v", ONES), ("v", sreg(qt)), ("v", lacc(qt))) for qt in range(6)] + [nop(16)]
    o += [salu("s_add_u32", "s59", "s59", 8192), salu("s_sub_u32", "s60", "s60", 1), scmp("s_cmp_lg_u32", "s60", 0),
          raw("s_cbranch_scc1 L_slow2", "branch", rd=["scc"])]
    o += [nop(16)]
    if OPT["one1"]:
        for qt in range(6):
            o += lspread(qt, vt)
    o += [drain(), scmp("s_cmp_eq_u32", sIT, 1), raw("s_cbranch_scc1 L_back2", "branch", rd=["scc"]), raw("s_branch L_back1", "branch")]
    return o


def srd(base, lo, hi, nbytes):
    return [salu("s_mov_b32", f"s{base}", lo), salu("s_and_b32", f"s{base + 1}", hi, "0xffff"),
            salu("s_mov_b32", f"s{base + 2}", nbytes), salu("s_mov_b32", f"s{base + 3}", "0x20000")]


def decode_wg():
    return [salu("s_and_b32", "s3", "s2", 7), salu("s_lshr_b32", "s4", "s2", 6), salu("s_lshl_b32", "s3", "s3", 2),
            salu("s_add_u32", "s3", "s3", "s4"), salu("s_lshr_b32", "s4", "s2", 3), salu("s_and_b32", "s4", "s4", 7),
            salu("s_lshr_b32", "s5", "s3", 4), salu("s_and_b32", "s6", "s3", 15)]


def code_touch():
    return [salu("s_lshr_b32", "s68", "s2", 3), salu("s_lshl_b32", "s68", "s68", 11),
            valu("v_lshrrev_b32", "v11", 6, "v0"), valu("v_and_b32", "v12", 3, "v0"), valu("v_lshlrev_b32", "v11", 9, "v11"),
            valu("v_lshl_add_u32", "v11", "v12", 7, "v11"), valu("v_add_u32", "v11", "s68", "v11")] + (
            [valu("v_min_u32", "v11", "L_att-L_pc", "v11")] if OPT["cplim"] else []) + [
            Ins("global_load_dword v253, v11, s[96:97]", "vld", rd=["v11", "s96", "s97"], wr=["v253"])]


def kv_patterns():
    i, a, b, c = "v1", "v2", "v3", "v4"
    o = [valu("v_lshrrev_b32", a, 4, i), valu("v_and_b32", b, 15, i),
         valu("v_xor_b32", c, a, b), valu("v_lshlrev_b32", c, 4, c), valu("v_lshl_add_u32", vK[0], a, 8, c)]
    o += [valu("v_xor_b32", vK[m], m << 6, vK[0]) for m in range(1, 4)]
    o += [valu("v_lshlrev_b32", "v5", 1, a), valu("v_xor_b32", "v5", "v5", b), valu("v_lshlrev_b32", "v5", 4, "v5"),
          valu("v_lshl_add_u32", vV[0], a, 8, "v5"), valu("v_xor_b32", vV[1], 128, vV[0])]
    return o


sT2 = "s101"


def prologue():
    o = [scmp("s_cmp_ge_u32", "s2", 256), raw("s_cbranch_scc1 L_end", "branch", rd=["scc"])]
    o += [raw("s_getpc_b64 s[96:97]", wr=["s96", "s97"]), label("L_pc")]
    if OPT["dbgt"]:
        o += [raw("s_memrealtime s[72:73]", wr=["s72", "s73"])]
    if OPT["codepf"] == 2:
        o += code_touch()
    o += decode_wg()
    o += [salu("s_mul_i32", "s7", "s5", 40), salu("s_add_u32", "s68", "s0", "s7"), salu("s_addc_u32", "s69", "s1", 0),
          raw("s_load_dwordx8 s[56:63], s[68:69], 0", wr=regs("s", 56, 8)),
          raw("s_load_dwordx2 s[94:95], s[68:69], 32", wr=["s94", "s95"]),
          raw("s_load_dwordx4 s[88:91], s[0:1], 88", wr=regs("s", 88, 4)),
          raw("s_load_dwordx2 s[92:93], s[0:1], 80", wr=["s92", "s93"])]
    i, a, b, c = "v1", "v2", "v3", "v4"
    o += [valu("v_lshrrev_b32", a, 6, "v0"), valu("v_and_b32", i, 63, "v0"),
          valu("v_readfirstlane_b32", sWAVE, a), valu("v_lshlrev_b32", vL16, 4, i)]
    o += [valu("v_lshrrev_b32", a, 4, i), valu("v_and_b32", b, 7, i), valu("v_lshrrev_b32", "v5", 3, i),
          valu("v_and_b32", c, 1, a), valu("v_lshlrev_b32", c, 1, c), valu("v_xor_b32", c, c, b), valu("v_lshlrev_b32", c, 4, c),
          valu("v_lshl_add_u32", vW[0], "v5", 13, c),
          valu("v_xor_b32", vW[1], 64, vW[0]), valu("v_add_u32", vW[1], 64512, vW[1]),
          valu("v_add_u32", vW[2], 2 * 64512, vW[0]), valu("v_add_u32", vW[3], 2 * 64512, vW[1])]
    o += [valu("v_xor_b32", c, a, b), valu("v_lshlrev_b32", c, 4, c), valu("v_mul_u32_u24", "v6", 1280, "v5"),
          valu("v_add_u32", vX[0], "v6", c),
          valu("v_xor_b32", vX[1], 64, vX[0]), valu("v_add_u32", vX[1], 9216, vX[1]),
          valu("v_add_u32", vX[2], 2 * 9216, vX[0]), valu("v_add_u32", vX[3], 2 * 9216, vX[1])]
    o += [salu("s_lshr_b32", "s70", sWAVE, 1), salu("s_and_b32", "s71", sWAVE, 1),
          salu("s_lshl_b32", sW4K, sWAVE, 12), salu("s_mul_i32", sW6K, sWAVE, 6144),
          salu("s_lshl_b32", "s7", "s4", 2), salu("s_add_u32", "s7", "s7", "s70"),
          salu("s_lshl_b32", sWQ, "s71", 18), salu("s_lshl_b32", sT0, "s7", 8), salu("s_add_u32", sWQ, sWQ, sT0),
          salu("s_mul_i32", sX, "s6", 245760), salu("s_mul_i32", sT0, sWAVE, 61440), salu("s_add_u32", sX, sX, sT0)]
    o += [raw("s_waitcnt lgkmcnt(0)", "drainlg")]
    o += srd(S_X, "s56", "s57", 3932160) + srd(S_WQ, "s62", "s63", 5242880)
    o += [salu("s_add_u32", "s68", "s3", "s4"), salu("s_and_b32", "s68", "s68", 3)]
    for x in by_role("s69", "s68", TBLQ0):
        o += x if isinstance(x, list) else [x]
    for st in range(2):
        o += [salu("s_bfe_u32", sT0, "s69", "0x%x" % (0x40000 + 4 * st)), salu("s_lshl_b32", sT1, sT0, 19), salu("s_lshl_b32", sT0, sT0, 7),
              salu("s_add_u32", sPF[("W", st, 0)][0], sT1, sWQ), salu("s_add_u32", sPF[("X", st)][0], sT0, sX),
              salu("s_add_u32", sT2 if st else sPF[("W", st, 1)][0], sPF[("W", st, 0)][0], 128), salu("s_add_u32", sPF[("X", st)][1], sPF[("X", st)][0], 40960)]
    for k in [("W", 0, 0), ("X", 0), ("W", 0, 1), ("W", 1, 0), ("X", 1)]:
        for pre, ds in unit_dmas(k):
            o += pre[::-1] + ds
    if OPT["warmw"]:
        o += [salu("s_mul_i32", "s68", "s6", 40 * 8192), salu("s_lshl_b32", "s69", "s4", 10), salu("s_add_u32", "s68", "s68", "s69"),
              salu("s_mul_i32", "s69", sWAVE, 10 * 8192), salu("s_add_u32", "s68", "s68", "s69"),
              valu("v_lshlrev_b32", b, 7, b), valu("v_lshl_add_u32", "v6", "v5", 13, b), valu("v_and_b32", c, 1, "v5"),
              valu("v_lshl_add_u32", c, c, 13, b), salu("s_add_u32", "s69", "s68", 8 * 8192)]
        o += [vload(("v", 254), 1, "v6", S_WQ, "s68", 0), vload(("v", 255), 1, c, S_WQ, "s69", 0)]
    o += [salu("s_lshr_b32", "s68", "s2", 3), salu("s_lshl_b32", "s68", "s68", 2), salu("s_add_u32", "s68", "s68", sWAVE), salu("s_lshl_b32", sCP, "s68", 8)]
    if OPT["codepf"] == 1:
        o += code_touch()
    o += srd(S_WO, "s94", "s95", 5242880)
    o += [salu("s_lshl_b32", "s68", "s6", 3), salu("s_add_u32", "s68", "s68", "s4"),
          salu("s_mul_i32", sWOS, "s68", 40960), salu("s_mul_i32", sT0, sWAVE, 10240), salu("s_add_u32", sWOS, sWOS, sT0)]
    for jj in range(OPT["jpro"]):
        for pre, ds in unit_dmas(("J", jj), sE):
            o += pre[::-1] + ds
    o += srd(S_K, "s58", "s59", 67108864) + srd(S_V, "s60", "s61", 67108864) + [salu("s_mov_b32", sW1, sT2)]
    o += srd(S_OST, "s90", "s91", WS_WOT) + srd(S_FLG, "s88", "s89", 256)
    o += [salu("s_add_u32", "s68", "s90", WS_WOT), salu("s_addc_u32", "s69", "s91", 0)] + srd(S_WOT, "s68", "s69", 2 * WOT_BLK)
    o += [salu("s_lshl_b32", sFG, "s3", 2), salu("s_lshl_b32", sFB, "s5", 6)]
    if OPT["dbgt"]:
        o += [salu("s_add_u32", sFG, sFG, 128), salu("s_add_u32", sFB, sFB, 128)]
    o += [
          valu("v_cmp_eq_u32", "vcc", 0, "v0"), valu("v_mov_b32", "v10", "0x1000"), valu("v_mov_b32", f"v{ONES}", "0x3f803f80"),
          valu("v_cndmask_b32", vFLG, "v10", 0, "vcc"),
          ]
    if OPT["one1"]:
        o += [valu("v_and_b32", "v10", 15, "v0"), valu("v_cmp_eq_u32", "vcc", 0, "v10"), valu("v_cndmask_b32", f"v{ONES}", 0, f"v{ONES}", "vcc")]
    o += [valu("v_mov_b32", f"v{ONES + r}", f"v{ONES}") for r in range(1, 4)]
    if OPT["prof"]:
        o += [salu("s_add_u32", "s68", "s90", WS_PROF), salu("s_addc_u32", "s69", "s91", 0)] + srd(S_PROF, "s68", "s69", 1 << 20)
        o += [salu("s_lshl_b32", sPROF, "s2", 2), salu("s_add_u32", sPROF, sPROF, sWAVE), salu("s_lshl_b32", sPROF, sPROF, 10)]
        o += prof_stamp(0, 8)
    o += [salu("s_lshl_b32", sKV, "s6", 5), salu("s_add_u32", sKV, sKV, "s7"), salu("s_lshl_b32", sKV, sKV, 17),
          salu("s_lshl_b32", sT0, "s71", 12),
          salu("s_lshr_b32", sROT, "s2", 3), salu("s_lshl_b32", sT1, "s2", 1), salu("s_add_u32", sROT, sROT, sT1),
          salu("s_and_b32", sROT, sROT, 0 if OPT["norot"] else 15), salu("s_lshl_b32", sROT, sROT, 13), salu("s_add_u32", sROT, sROT, sT0)]
    if OPT["tlbw"]:
        for n, (r, so) in enumerate(((S_K, sKV), (S_V, sKV), (S_WO, sWOS))):
            o += [Ins(f"buffer_load_dword v{244 + n}, off, s[{r}:{r + 3}], {so} nt", "vld", rd=[so] + regs("s", r, 4))]
    if OPT["kpro"]:
        o += kv_patterns()
        for k in [("K", 0), ("V", 0), ("K", 1)][:OPT["kpro"]]:
            for pre, ds in unit_dmas(k, sE):
                o += pre + [nop(1)] + ds
    o += [salu("s_mul_i32", sO, "s3", O_GRP), salu("s_mul_i32", sT0, "s71", 786432), salu("s_add_u32", sO, sO, sT0),
          salu("s_lshr_b32", sT0, "s4", 1), salu("s_mul_i32", sT0, sT0, 16 * 12288), salu("s_add_u32", sO, sO, sT0),
          salu("s_and_b32", sT0, "s4", 1), salu("s_mul_i32", sT0, sT0, 4 * 12288), salu("s_add_u32", sO, sO, sT0),
          salu("s_mul_i32", sT0, "s70", 2 * 12288), salu("s_add_u32", sO, sO, sT0)]
    o += [salu("s_lshl_b32", "s68", "s6", 3), salu("s_add_u32", "s68", "s68", "s4"),
          salu("s_lshr_b32", sT0, "s68", 1), salu("s_and_b32", sT1, sT0, "0x33"),
          salu("s_and_b32", "s69", sT0, 4), salu("s_lshl_b32", "s69", "s69", 1), salu("s_or_b32", sT1, sT1, "s69"),
          salu("s_and_b32", "s69", sT0, 8), salu("s_lshr_b32", "s69", "s69", 1), salu("s_or_b32", sT1, sT1, "s69"),
          salu("s_mul_i32", sWOD, sT1, 20480),
          salu("s_and_b32", sT0, "s68", 1), salu("s_lshl_b32", sT0, sT0, 11), salu("s_add_u32", sWOD, sWOD, sT0),
          salu("s_mul_i32", sT0, "s5", WOT_BLK), salu("s_add_u32", sWOD, sWOD, sT0),
          salu("s_lshl_b32", sT0, "s70", 12), salu("s_add_u32", sWOD, sWOD, sT0),
          salu("s_lshl_b32", sT0, "s71", 10), salu("s_add_u32", sWOD, sWOD, sT0),
          salu("s_mul_i32", sT0, "s70", 1310720 - 20480), salu("s_add_u32", sWOX, sWOD, sT0)]
    o += [salu("s_add_u32", "s68", "s3", "s4"), salu("s_and_b32", "s68", "s68", 3)]
    for x in by_role(sQT, "s68", TBLQ1):
        o += x if isinstance(x, list) else [x]
    cbits = struct.unpack("<I", struct.pack("<f", math.log2(math.e) / math.sqrt(128.0)))[0]
    o += [salu("s_mov_b32", sC, "0x%x" % cbits), salu("s_mov_b32", sHI, "0x5d800000" if OPT["tmax"] == 1 else "0x53800000" if OPT["tmax"] else "0x4e800000"),
          salu("s_mov_b32", sLO, "0x42200000" if OPT["tmax"] else "0x30800000"), salu("s_mov_b32", sNC, "0x%x" % (cbits | 0x80000000)),
          salu("s_mov_b32", sIT, 0)]
    if not OPT["kpro"]:
        o += kv_patterns()
    o += [salu("s_lshl_b32", "s69", "s70", 13), salu("s_mul_i32", "s68", "s71", 12288), salu("s_add_u32", "s68", "s68", XS[0]),
          valu("v_bfe_u32", "v8", i, 2, 2), valu("v_and_b32", "v9", 3, i)]
    o += [valu("v_lshl_add_u32", c, b, 8, c), valu("v_add_u32", c, KWANT[15], c), valu("v_add_u32", kA[0], "s69", c)]
    o += [valu("v_xor_b32", kA[j], j << 6, kA[0]) for j in range(1, 4)]
    o += [valu("v_lshl_add_u32", "v5", a, 2, "v8"), valu("v_lshlrev_b32", c, 8, "v5"), valu("v_and_b32", "v6", 7, "v5"),
          valu("v_lshl_add_u32", c, "v6", 5, c), valu("v_lshl_add_u32", c, "v9", 3, c),
          valu("v_add_u32", c, VWANT[0], c), valu("v_add_u32", vA[0], "s69", c)]
    o += [valu("v_xor_b32", vA[d], d << 5, vA[0]) for d in range(1, 8)]
    o += [valu("v_lshl_add_u32", c, a, 3, "v8"), valu("v_lshlrev_b32", c, 7, c),
          valu("v_and_b32", "v5", 2, "v8"), valu("v_and_b32", "v7", 1, a), valu("v_lshl_add_u32", "v5", "v7", 2, "v5"),
          valu("v_xor_b32", "v5", "v5", "v9"), valu("v_lshl_add_u32", c, "v5", 4, c), valu("v_add_u32", wA[0], "s69", c),
          valu("v_xor_b32", wA[1], 64, wA[0])]
    o += [valu("v_lshrrev_b32", "v5", 1, b), valu("v_xor_b32", "v5", "v5", a),
          valu("v_lshlrev_b32", "v5", 4, "v5"), valu("v_lshl_add_u32", c, b, 7, "v5"),
          valu("v_xor_b32", "v5", 64, c), valu("v_add_u32", xA[0], "s68", c), valu("v_add_u32", xA[1], "s68", "v5")]
    o += [salu("s_lshl_b32", "s68", "s70", 2), salu("s_lshl_b32", "s69", "s71", 3), salu("s_add_u32", "s69", "s69", WOJ_ADDR),
          valu("v_lshrrev_b32", c, 1, a), valu("v_lshlrev_b32", c, 12, c), valu("v_lshl_add_u32", c, "v6", 7, c),
          valu("v_add_u32", c, "s69", c), valu("v_add_u32", "v5", "s68", "v9"), valu("v_lshrrev_b32", "v6", 1, "v6"),
          valu("v_xor_b32", "v5", "v5", "v6"), valu("v_lshl_add_u32", vJ, "v5", 4, c)]
    o += [needvm([("W", 0, 0), ("X", 0)]), barrier()] + first_reads(0)
    return o


def acc2(pi, xy, qi):
    return ((pi * 6 + qi) * 2 + xy) * 4


def a2(st, pi, ks, xy):
    if st == 0:
        return (240 if pi == 0 else 48 + 16 * pi) + 8 * ks + 4 * xy
    return (48 if pi == 0 else 112 + 16 * pi) + 8 * ks + 4 * xy


def b2(st, qi, ks):
    return (192 if st == 0 else 0) + 8 * qi + 4 * ks


V2A = ["v%d" % i for i in range(240, 245)]


def k2_loads_A(st, pi, soff=None):
    return [vload(("a", a2(st, pi, ks, xy)), 4, V2A[pi], S2A, soff or sA2, ks * 2048 + xy * 1024, flags=SC1) for xy in range(2) for ks in range(2)]


def k2_loads_B(st, qi):
    return [vload(("a", b2(st, qi, ks)), 4, V2B[qi], S2B, sB2, ks * 1024, flags=SC1) for ks in range(2)]


def k2_lds_A(st, pi):
    out = []
    for xy in range(2):
        for ks in range(2):
            r = [r for r, (s_, p_, off) in PF2.items() if (s_, p_) == (st, pi) and (r not in ("s87", "s99") or off == 2048 * ks)][0]
            key = [k for k, rs in sPF.items() if r in rs][0]
            if key[0] == "W":
                out.append(ds_read("ds_read_b128", ("a", a2(st, pi, ks, xy)), 4, V2W, U[key]["addr"] + ks * 2048 + xy * 1024))
            elif key[0] == "P":
                out.append(ds_read("ds_read_b128", ("a", a2(st, pi, ks, xy)), 4, V2P,
                                   (0 if key[1] == 1 else PADDR[key] - D[4]) + ks * 2048 + xy * 1024))
            elif r == sPF[key][0]:
                out.append(ds_read("ds_read_b128", ("a", a2(st, pi, ks, xy)), 4, V2X, U[key]["addr"] - XS[0] + ks * 2048 + xy * 1024))
            else:
                out.append(ds_read("ds_read_b128", ("a", a2(st, pi, ks, xy)), 4, V2X, U[key]["addr"] - XS[0] + 4096 + xy * 1024))
    return out


def k2_steps(S, first, loadA, loadB, pend, check=False, late=(), final=None):
    for st in range(2):
        q0 = S.n()
        tiles = [(pi, xy, qi) for pi in range(5) for xy in range(2) for qi in range(6)]
        if final is not None and st == 1:
            tiles = [t for t in tiles if t[2] >= 3] + [t for t in tiles if t[2] < 3]
            for n, x in enumerate(final[0]):
                S.put(q0 + 2 + n, x)
            for n, x in enumerate(final[1]):
                S.put(q0 + 61 + 2 * n, x)
        for pi, xy, qi in tiles:
            for ks in range(2):
                acc = ("v", acc2(pi, xy, qi))
                S.add(mfma(16, acc, ("a", a2(st, pi, ks, xy)), ("a", b2(st, qi, ks)),
                           None if (first and st == 0 and ks == 0) else acc))
        pos = [int(0.5 + 3.75 * n) for n in range(32)]
        if pend[st]:
            ls = k2_loads_A(1 - st, 4)
            S.put(q0 + pos[0], ls[2])
            S.put(q0 + pos[1], ls[3])
            for n, x in enumerate(next_off(sA2, TA, sAB, 20480)):
                S.put(q0 + pos[1] + 1 + n, x)
        if first and st == 0:
            for n, (pre, l) in enumerate(late):
                S.put(q0 + 6 * n + 2, *pre)
                S.put(q0 + 6 * n + 3, l)
            for n, r in enumerate(k2_lds_A(1, 0) + k2_lds_A(1, 1) + k2_lds_A(1, 2)):
                S.put(q0 + 6 * n + 5 if n < 8 else q0 + 54 + 4 * (n - 8), r)
            S.put(q0 + 70, valu("v_add_u32", V2P, D[9] - D[5], V2P))
            for n, r in enumerate(k2_lds_A(1, 3)):
                S.put(q0 + 73 + 4 * n, r)
        elif loadB[st]:
            for n, l in enumerate([l for qi in range(6) for l in k2_loads_B(1 - st, qi)]):
                S.put(q0 + pos[2 + n], l)
            for n, x in enumerate(next_off(sB2, TB, sBB, 12288)):
                S.put(q0 + pos[13] + 1 + n, x)
        if loadA[st]:
            n = 14
            for pi in range(5):
                ls = k2_loads_A(st, pi)
                for x, l in enumerate(ls if pi < 4 else ls[:2]):
                    assert pos[n] >= 24 * pi + 11 + 12 * (x >> 1), (pi, x, pos[n])
                    S.put(q0 + pos[n], l)
                    n += 1
        if first and st == 1:
            S.put(q0 + 110, needvm(["ost"]), barrier())
            S.put(q0 + 111, valu("v_mov_b32", V2P, "0x100"))
            S.put(q0 + 114, atomic_add(V2P, sFG))
        if check and st == 1:
            S.put(q0 + 1, scmp("s_cmp_eq_u32", sCNT, 5), salu("s_cselect_b32", sWANT, 8, 0), salu("s_cselect_b32", sPL, sFG, "0x1000"))
            S.put(q0 + 2, poll_load(V2P, sPL))
        if check and st == 0:
            S.put(q0 + 1, valu("v_readfirstlane_b32", sQ, V2P))
            S.put(q0 + 6, salu("s_bfe_u32", sQ, sQ, "0x80008"), scmp("s_cmp_lt_u32", sQ, sWANT),
                  raw("s_cbranch_scc1 L_spin2", "branch", rd=["scc"]), label("L_spin2_back"))


def k2_first(S, late):
    seq = [(0, p) for p in range(4)] + [(1, p) for p in range(3)] + [(0, 4), (1, 3), (1, 4)]
    at = {}
    for st, pi in seq:
        at[(st, pi)] = S.n()
        for xy in range(2):
            for qi in range(6):
                for ks in range(2):
                    acc = ("v", acc2(pi, xy, qi))
                    S.add(mfma(16, acc, ("a", a2(st, pi, ks, xy)), ("a", b2(st, qi, ks)), None if (st == 0 and ks == 0) else acc))
    for n, (pre, l) in enumerate(late):
        S.put(13 * n + 2, *pre)
        S.put(13 * n + 3, l)
    assert 13 * len(late) < at[(0, 4)]
    g = 5
    for pi in range(4):
        for r in k2_lds_A(1, pi):
            while S.fixed.get(g):
                g += 1
            S.put(g, r)
            g += 4
    items = []
    for pi in range(5):
        for x, l in enumerate(k2_loads_A(0, pi, sSO)):
            items.append((l, at[(0, pi)] + 11 + 12 * (x >> 1), 240 + 24 * pi + 12 * (x >> 1)))
        for x, l in enumerate(k2_loads_A(1, pi)[:4 if pi < 4 else 2]):
            items.append((l, at[(1, pi)] + 11 + 12 * (x >> 1), 360 + 24 * pi + 12 * (x >> 1)))
    for qi in range(6):
        for ks, l in enumerate(k2_loads_B(0, qi)):
            items.append((l, at[(0, 4)] + 12 + 2 * qi + ks, 200 + 2 * qi + ks))
    items.sort(key=lambda i: i[2])
    g, lastB = 11, 0
    while items:
        c = [i for i in items if i[1] <= g]
        if c and not any(S.fixed.get(k) and any(j.kind in ("vld", "vst") for j in S.fixed[k]) for k in ((g - 2, g - 1, g + 1) if g < 180 else (g - 1, g + 1))) and not S.fixed.get(g):
            S.put(g, c[0][0])
            if sB2 in c[0][0].rd:
                lastB = g
            items.remove(c[0])
        g += 1
        assert g < 240, items
    for n, x in enumerate(next_off(sB2, TB, sBB, 12288)):
        S.put(lastB + 1 + n, x)
    g = 226
    while S.fixed.get(g) or S.fixed.get(g + 1) or S.fixed.get(g + 3):
        g += 1
    S.put(g, needvm(["ost"]), barrier())
    S.put(g + 1, valu("v_mov_b32", V2P, "0x100"))
    S.put(g + 3, atomic_add(V2P, sFG))


def spin(name, back, dsts, soffs, conds):
    o = [label(name), salu("s_mov_b32", sSPIN, 0), label(name + "_loop"), raw("s_sleep 8")]
    o += [poll_load(d, so) for d, so in zip(dsts, soffs)]
    o += [drain(), salu("s_add_u32", sSPIN, sSPIN, 1), scmp("s_cmp_gt_u32", sSPIN, "0x20000"),
          raw(f"s_cbranch_scc1 {back}", "branch", rd=["scc"])]
    for d, (sh, msk, want) in zip(dsts, conds):
        o += [valu("v_readfirstlane_b32", sQ, d), nop(4)]
        if sh:
            o += [salu("s_lshr_b32", sQ, sQ, sh)]
        if msk:
            o += [salu("s_and_b32", sQ, sQ, msk)]
        o += [scmp("s_cmp_lt_u32", sQ, want), raw(f"s_cbranch_scc1 {name}_loop", "branch", rd=["scc"])]
    o += [raw(f"s_branch {back}", "branch")]
    return o


def phase2():
    o = [valu("v_mov_b32", V2L, vL16), salu("s_and_b32", "s85", "s4", 3), salu("s_and_b32", "s32", sWAVE, 1), salu("s_lshr_b32", "s33", sWAVE, 1),
         salu("s_mul_i32", sAB, sWAVE, 16 * 20480), salu("s_lshr_b64", f"s[{TA}:{TA + 1}]", "s[34:35]", 4)]
    o += next_off(sB2, TB, sBB, 12288)
    o += [valu("v_add_u32", V2W, sW4K, V2L), salu("s_add_u32", "s7", sW6K, XS[0]), valu("v_add_u32", V2X, "s7", V2L), valu("v_add_u32", V2P, D[4], V2W)]
    o += [scmp("s_cmp_eq_u32", "s33", 0)]
    o += [salu("s_cselect_b32", f"s{47 + q}", q, 2 - q) for q in range(3)]
    o += [salu("s_cselect_b32", f"s{36 + pi}", pi, 4 - pi) for pi in range(5)]
    o += [salu("s_mul_i32", "s34", "s32", 3)]
    o += [salu("s_add_u32", f"s{47 + q}", f"s{47 + q}", "s34") for q in range(3)]
    save = list(vR)
    vR[:] = [f"v{16 + q}" for q in range(6)]
    nl = 12 if OPT["pace"] else 8
    eg = epilogue_groups(0, lambda n: 240 - 4 * (24 - n) - (0 if OPT["pace"] else 16) if n >= 24 - nl else 32 + 4 * n, V2L)
    vR[:] = save
    b1 = [l for qi in range(6) for l in k2_loads_B(1, qi)]
    for n, (v, pre, st, imm) in enumerate(eg):
        m = b1[2 * (n - 8):2 * (n - 8) + 2] if 8 <= n < 14 else []
        o += v[:8] + m[:1] + v[8:16] + m[1:] + v[16:]
        if OPT["pace"]:
            if n % 2 == 0:
                o += eg[n // 2][1] + [eg[n // 2][2]]
        elif n < 16:
            o += pre + [st]
        if n == 15:
            o += [needvm(list(sPF))]
            for pi in range(5):
                o += [salu("s_lshl_b32", "s7", f"s{36 + pi}", 12), valu("v_add_u32", V2A[pi], "s7", V2L)]
            o += next_off(sPL, TA, sAB, 20480)
            if OPT["pace"]:
                o += next_off(sSO, TA, sAB, 20480)
            o += next_off(sA2, TA, sAB, 20480)
        if 16 <= n < 21:
            o += k2_lds_A(0, n - 16)
    late = []
    for n, g in enumerate(eg[24 - nl:]):
        st = vstore(("v", 240 - 4 * (nl - n) - (0 if OPT["pace"] else 16)), 4, V2L, S_OST, sE, g[3], tag="ost", flags=SC1)
        late.append((g[1], st))
    o += k2_loads_A(1, 4, sPL) + [valu("v_add_u32", V2P, D[9] - D[4], V2P)]
    o += next_off(sB2, TB, sBB, 12288) + [salu("s_mov_b32", sWANT, 0)]
    o += prof_stamp(1, 30)
    o += srd(S2OUT, "s92", "s93", 7864320)
    o += [salu("s_mul_i32", sOB, "s6", 192 * 2560), salu("s_mul_i32", "s7", "s84", 96 * 2560), salu("s_add_u32", sOB, sOB, "s7"),
          salu("s_mul_i32", "s7", "s5", 1280), salu("s_add_u32", sOB, sOB, "s7"),
          salu("s_mul_i32", "s7", "s85", 320), salu("s_add_u32", sOB, sOB, "s7"), salu("s_mov_b32", sCNT, 6)]
    S0 = Sched()
    if OPT["pace"]:
        k2_first(S0, late)
    else:
        k2_steps(S0, True, [True, True], [True, True], [False, True], late=late)
    S0.order_fixed()
    first = S0.build()
    S1 = Sched()
    k2_steps(S1, False, [True, True], [True, True], [True, True], check=True)
    if OPT["prof"]:
        S1.put(3, raw("s_memrealtime s[76:77]", wr=["s76", "s77"]), raw("s_waitcnt lgkmcnt(0)", "drainlg"),
               salu("s_mov_b32", "s101", "s100"), salu("s_mov_b32", "s100", "s99"), salu("s_mov_b32", "s99", "s98"),
               salu("s_mov_b32", "s98", "s97"), salu("s_mov_b32", "s97", "s96"), salu("s_mov_b32", "s96", "s76"))
    S1.put(237, salu("s_sub_u32", sCNT, sCNT, 1))
    S1.order_fixed()
    loop = [label("L_k2")] + S1.build() + [scmp("s_cmp_lg_u32", sCNT, 0), raw("s_cbranch_scc1 L_k2", "branch", rd=["scc"])]
    R1, R2, i, a, V2O = V2A[0], V2A[1], V2A[2], V2A[3], V2A[4]
    setup = [salu("s_mul_i32", "s7", sWAVE, 30720), valu("v_add_u32", V2W, "s7", V2L), valu("v_lshrrev_b32", i, 4, V2L),
             valu("v_and_b32", a, 15, i), valu("v_mul_u32_u24", a, 2560, a), valu("v_lshrrev_b32", i, 4, i),
             valu("v_lshl_add_u32", V2O, i, 4, a),
             salu("s_xor_b32", sPL, sWAVE, 1), salu("s_sub_u32", sPL, sPL, sWAVE), salu("s_mul_i32", "s7", sPL, 30720),
             valu("v_add_u32", R1, "s7", V2W),
             salu("s_xor_b32", sPL, sWAVE, 3), salu("s_sub_u32", sPL, sPL, sWAVE), salu("s_mul_i32", "s7", sPL, 30720),
             valu("v_add_u32", R2, "s7", V2W)]
    sent = [(pi, xy, qi) for pi in range(5) for qi in range(3, 6) for xy in range(2)]
    wr = {t: ds_write("ds_write_b128", V2W, ("v", acc2(*t)), 4, n * 1024) for n, t in enumerate(sent)}
    S2 = Sched()
    e = []
    if OPT["redov"]:
        order = [wr[(pi, xy, qi)] for pi in range(5) for xy in range(2) for qi in range(3, 6)]
        k2_steps(S2, False, [False, False], [True, False], [True, False], final=(setup, order[:29]))
        e = order[29:]
    else:
        k2_steps(S2, False, [False, False], [True, False], [True, False])
        e = setup + list(wr.values())
    S2.order_fixed()
    last = S2.build()
    e += [needlgkm0(), barrier()] + prof_stamp(8, 234)
    for s in list(range(7, 15)) + list(range(7)):
        pi, q = divmod(s, 3)
        e += [ds_read("ds_read_b128", ("v", acc2(pi, xy, q + 3)), 4, R1, (2 * s + xy) * 1024) for xy in range(2)]
    for s in list(range(7, 15)) + list(range(7)):
        pi, q = divmod(s, 3)
        d, t = acc2(pi, 0, q), acc2(pi, 0, q + 3)
        e += [valu("v_add_f32", f"v{d + r}", f"v{d + r}", f"v{t + r}") for r in range(8)]
        if s >= 7:
            e += [ds_write("ds_write_b128", R1, ("v", acc2(pi, xy, q)), 4, (2 * s + xy) * 1024) for xy in range(2)]
    e += [needlgkm0(), barrier()]
    for s in range(8):
        pi, q = divmod(s, 3)
        for xy in range(2):
            e += [ds_read("ds_read_b128", ("v", acc2(pi, xy, q + 3)), 4, R2, (2 * (14 - s) + xy) * 1024)]
    for s in range(8):
        pi, q = divmod(s, 3)
        d0, t0 = acc2(pi, 0, q), acc2(pi, 0, q + 3)
        e += [valu("v_add_f32", f"v{d0 + r}", f"v{d0 + r}", f"v{t0 + r}") for r in range(8)]
        e += [valu("v_cvt_pk_bf16_f32", f"v{d0 + r}", f"v{d0 + 2 * r}", f"v{d0 + 2 * r + 1}") for r in range(4)]
        e += [salu("s_mul_i32", "s7", f"s{47 + q}", 40960), salu("s_lshl_b32", sPL, f"s{36 + pi}", 6),
              salu("s_add_u32", "s7", "s7", sPL), salu("s_add_u32", sSO, "s7", sOB),
              vstore(("v", d0), 4, V2O, S2OUT, sSO, 0, flags=OPT["outf"])]
    e += prof_stamp(9, 234)
    if OPT["prof"]:
        for n in range(6):
            e += [valu("v_mov_b32", "v234", 1), valu("v_mov_b32", "v235", f"s{101 - n}"), pstore(234, 2 + n), nop(4)]
    if OPT["dbgt"]:
        a, b = {1: ("s76", "s78"), 2: ("s74", "s76")}[OPT["dbgt"]]
        e += [drain(), raw("s_memrealtime s[78:79]", wr=["s78", "s79"]), raw("s_waitcnt lgkmcnt(0)", "drainlg"),
              salu("s_sub_u32", a, a, "s72"), salu("s_sub_u32", b, b, "s72"),
              scmp("s_cmp_lt_u32", "s2", 8), salu("s_cselect_b32", "s7", "s2", "0x1000"), salu("s_lshl_b32", "s7", "s7", 2),
              valu("v_mov_b32", "v0", a), valu("v_mov_b32", "v1", b),
              Ins(f"buffer_store_dword v0, {vFLG}, s[{S_FLG}:{S_FLG + 3}], s7 offen", "vst", rd=["v0", vFLG, "s7"]),
              Ins(f"buffer_store_dword v1, {vFLG}, s[{S_FLG}:{S_FLG + 3}], s7 offen offset:32", "vst", rd=["v1", vFLG, "s7"])]
    e += [label("L_end"), raw("s_endpgm")]
    sp1 = spin("L_spin1", "L_spin1_back", vPOLL[:1], [sFG], [(0, "0xff", 8)]) + spin("L_spin3", "L_spin3_back", vPOLL[1:], [sFB], [(16, 0, 128)])
    sp2 = spin("L_spin2", "L_spin2_back", [V2P], [sFG], [(8, "0xff", 8)])
    return o, first, loop, last, e, sp1, sp2


def check_pointers(pro):
    ptr = set(regs("s", 56, 8) + regs("s", 88, 8))
    dirty = set()
    for x in pro:
        if x.text.startswith("s_load"):
            continue
        if x.text.startswith(("s_mov_b32", "s_and_b32", "s_add_u32", "s_addc_u32")) and x.rd & dirty and "0xffff" in x.text:
            raise AssertionError(x.text)
        dirty |= x.wr & ptr


def kernel():
    pro = prologue()
    check_pointers(pro)
    q1 = q_phase(False)
    full = []
    for last in (False, True):
        _alt[0] = 0
        full.append(a_phase(last))
    cut = [[n for n, x in enumerate(f) if x.text == "L_CUT:"][0] for f in full]
    assert [x.text for x in full[0][:cut[0]]] == [x.text for x in full[1][:cut[1]]]
    att = [label("L_att")] + full[0][:cut[0]]
    tails = []
    for v in range(2):
        t = [label(f"L_tail{v + 1}")] + full[v][cut[v] + 1:]
        t += [raw("s_cbranch_vccnz L_slow", "branch", rd=["vcc"]), label(f"L_back{v + 1}")]
        t += [valu("v_rcp_f32", f"v{16 + qt}" if v else vR[qt], f"v{lacc(qt)}") for qt in range(6)]
        if OPT["dbgt"]:
            t += [raw(f"s_memrealtime s[{74 + 2 * v}:{75 + 2 * v}]", wr=[f"s{74 + 2 * v}", f"s{75 + 2 * v}"]), raw("s_waitcnt lgkmcnt(0)", "drainlg")]
        t += prof_stamp(29)
        if OPT["prof"]:
            t += [salu("s_add_u32", sPROF, sPROF, 240)]
        tails.append(t)
    q2 = [salu("s_mov_b32", sIT, 1), label("L_q2")] + q_phase(True) + [raw("s_branch L_att", "branch")]
    o, first, loop2, last, e, sp1, sp2 = phase2()
    slow = slow_path()
    parts = [pro, q1, att, tails[0], q2, tails[1], o, first, loop2, last, e, slow, sp1, sp2]
    waits = compute_waits([pro + q1 + att + tails[0] + q2 + att + tails[1] + o + first + loop2 + loop2 + loop2 + last + e, slow, sp1, sp2])
    done = {}
    P = [apply_waits(x, waits, done) for x in parts]
    pads = pad_hazards([P[0] + P[1] + P[2] + P[3] + P[4] + P[2] + P[5] + P[6] + P[7] + P[8] + P[8] + P[9] + P[10], P[11], P[12], P[13]])
    al = ".p2align 3\n"
    return (emit(P[0] + P[1], pads) + al + emit(P[2] + P[3] + P[4], pads) + al + emit(P[5] + P[6] + P[7], pads) + al +
            emit(P[8] + P[9] + P[10] + P[11] + P[12] + P[13], pads) + "L_endcode:\n")


def main():
    kn = NAME + "_kernel"
    s = open("cdna_kernels/" + NAME + ".s.ref").read().split("; Override launch")[0]
    s += "; @launch grid=(256,1,1) block=(256,1,1) lds=163840\n"
    s += '.amdgcn_target "amdgcn-amd-amdhsa--gfx950"\n.text\n'
    s += f".globl {kn}\n.p2align 8\n.type {kn},@function\n{kn}:\n" + kernel()
    s += f""".section .rodata,"a"
.p2align 6
.amdhsa_kernel {kn}
  .amdhsa_next_free_vgpr 512
  .amdhsa_next_free_sgpr 102
  .amdhsa_accum_offset 256
  .amdhsa_group_segment_fixed_size 0
  .amdhsa_kernarg_size 104
  .amdhsa_user_sgpr_count 2
  .amdhsa_user_sgpr_kernarg_segment_ptr 1
  .amdhsa_system_sgpr_workgroup_id_x 1
.end_amdhsa_kernel
"""
    open(sys.argv[1], "w").write(s)


main()
```

```python
import sys, math, struct
from fw3 import *
from orders import orders
import alloc3

NAME = "concat_heads__mha_block_cached__mha_block_cached__near_ridge"
OPT = dict(outf=' sc1', redov=1, one1=1, warmj=0, pk=1, pfq1=1, rot2=2, gate=0, pace=1, lead=3, xpace=0, kvf=' nt', norot=0, tlbw=0, kpro=0, kplan=0, jlate=1, dbgt=0, jpro=0, k1s=0, e10=1, t23=0, nfree=1, kstep10=137, ks1=0, kn1=0, kfirst=6, k2late=0, qsp=1, tmax=2, xnum=25, xhi=100, ctq=0, cplim=1, p2st=0, cta='', rotq1=2, gstep=2, rotq=3, early=1, uni=0, prof=0, report=False, stg=67, warmw=True, codepf=2, codepf2=12, pf='', pf0=1, pfn=3, pff='', flagbar=12, map=0)
for a in sys.argv[2:]:
    k, v = a.split("=")
    OPT[k] = type(OPT[k])(int(v)) if not isinstance(OPT[k], str) else v

KB = 1024
SC1 = " sc1"
O_GRP = 2 * 786432
WS_WOT = 50331648
WOT_BLK = 5242880
WS_PROF = 64 * 1024 * 1024

S_K, S_V, S_X, S_WQ, S_OST, S_WO, S_WOT = 8, 12, 16, 20, 24, 28, 32
sKV, sWQ, sX, sW4K, sW6K, sO, sIT, sT0, sT1, sC, sWAVE = ["s%d" % i for i in range(36, 47)]
sWOS, sWOD, sWOX, sW5K, sHI, sLO = ["s%d" % i for i in range(47, 53)]
sPROF, sE, sJ = "s53", "s54", "s55"
sQT, sWS, sXS, sW1, sNC = "s50", "s67", "s95", "s63", "s7"
sROT, sFG, sFB, sCP = "s62", "s65", "s66", "s64"
sA2, sB2, sPL, sOB, sCNT, sSO, sQ, sSH, sWANT, sSPIN = "s28", "s29", "s30", "s31", "s67", "s68", "s69", "s70", "s71", "s94"
S_PROF, S_FLG = 72, 80
sPF = {("W", 0, 0): ["s84"], ("W", 0, 1): ["s85"], ("X", 0): ["s86", "s87"], ("X", 1): ["s98", "s99"], ("W", 1, 0): ["s100"],
       ("P", 0): ["s60"], ("P", 1): ["s61"], ("P", 2): ["s101"]}
PF2 = {"s84": (0, 0, 0), "s86": (0, 1, 0), "s60": (0, 2, 0), "s101": (0, 3, 0), "s98": (0, 4, 0), "s61": (1, 0, 0),
       "s87": (1, 1, 0), "s99": (1, 1, 2048), "s85": (1, 2, 0), "s100": (1, 3, 0)}
vK = ["v%d" % i for i in range(192, 196)]
vV = ["v196", "v197"]
vW = ["v%d" % i for i in range(198, 202)]
vX = ["v%d" % i for i in range(202, 206)]
kA = ["v%d" % i for i in range(206, 210)]
vA = ["v%d" % i for i in range(210, 218)]
wA = ["v218", "v219"]
xA = ["v220", "v221"]
vJ, vL16 = "v222", "v223"
ONES = 224
EPI = 228
vR = ["v%d" % i for i in range(244, 250)]
vFLG = "v250"
vT = ["v252", "v253"]
vC2 = "v[242:243]"
vPOLL = ["v254", "v255"]

V2B = ["v245", "v246", "v247", "v248", "v249", "v251"]
V2L, V2W, V2P, V2X = "v252", "v254", "v255", "v253"
S2A, S2B, S2OUT = S_WQ, S_X, 8
TA, TB, sAB, sBB = 56, 62, "s43", "s44"

D = [i * 16 * KB for i in range(10)]
XS = [96 * KB, 120 * KB]
WOJ_ADDR = D[4]


def qacc(p, xy, qt):
    return 64 * (qt >> 1) + (2 * p + (qt & 1)) * 8 + 4 * xy


def qf(qt, p):
    return 64 * (qt >> 1) + (2 * p + (qt & 1)) * 4


def sreg(qt):
    return 64 * (qt >> 1) + 32 + 8 * (qt & 1)


def mrun(qt):
    return 64 * (qt >> 1) + 56 + (qt & 1)


def mneg(qt):
    return 64 * (qt >> 1) + 58 + (qt & 1)


def lacc(qt):
    return 64 * (qt >> 1) + 48 + 4 * (qt & 1)


ABUF = [192, 248]


def bx(qt, ks):
    return 200 + 8 * qt + 4 * ks


def kf(kt, ks):
    return 192 + 16 * kt + 4 * ks


def vf(dt):
    return 224 + 4 * dt


def oacc(qt, dt):
    return 32 * qt + 4 * dt


def kpos(k):
    n1 = OPT["kn1"]
    return 2 + OPT["ks1"] / 10.0 * min(k, n1) + OPT["kstep10"] / 10.0 * max(k - n1, 0)


def build_units():
    U = {}
    for i in range(10):
        U[("X", i)] = dict(addr=XS[i % 2], size=24 * KB, iss=i - 2.5, land=i - 1, rel=i - 0.5)
        U[("W", i, 0)] = dict(addr=D[2 * (i % 2)], size=16 * KB, iss=i - 2.5, land=i - 1, rel=i - 0.5)
        U[("W", i, 1)] = dict(addr=D[2 * (i % 2) + 1], size=16 * KB, iss=i - 2, land=i - 0.5, rel=i)
    for k, e in ((("X", 0), -4), (("W", 0, 0), -4), (("X", 1), -3), (("W", 0, 1), -2), (("W", 1, 0), -2)):
        U[k]["iss"] = e
    pages = [9, 5, 4, 6, 0, 7, 1, 8, 2, 3, 9, 4, 5, 6, 0, 1, 7, 2, 8, 3, 9, 4, 5, 6, 0, 7, 1, 8, 2, 9, 5, 4]
    if OPT["kstep10"]:
        (_, pages), kiss, leads = alloc3.plan(0, OPT["kfirst"], pos=kpos, head=[5, 9, 4, 6, 1 if OPT["k2late"] else 0, 7, 1, 8],
                                                 lastN={0: 23, 1: 25, 2: 25, 3: 26, 4: 24, 5: 23, 6: 23, 7: 23, 8: 24, 9: 24})
        if OPT["report"]:
            print("; leads", [round(x, 1) for x in leads])
    for u in range(32):
        key = ("K", u // 2) if u % 2 == 0 else ("V", u // 2)
        N = 10 + u // 2 + u % 2
        U[key] = dict(addr=D[pages[u]], size=16 * KB, iss=N - 5 + (u == 30), land=N - 1, rel=N)
        if OPT["kstep10"] and u >= OPT["kfirst"]:
            U[key].update(iss=kiss[u], even=u - OPT["kfirst"])
    U[("V", 1)]["iss"] = U[("K", 2)]["iss"] = 7.5
    if "even" not in U[("V", 2)]:
        U[("V", 2)]["iss"] = 8.5
    if OPT["k2late"]:
        U[("K", 2)]["iss"] = 8
    if OPT["kstep10"]:
        if OPT["kfirst"] == 8:
            U[("V", 3)]["iss"] = 8.5
        return U
    if OPT["e10"] < 2:
        U[("K", 4)]["iss"] = 10
    if OPT["e10"] < 1:
        U[("V", 3)]["iss"] = 10
    if OPT["t23"]:
        U[("W", 0, 0)]["iss"] = U[("W", 1, 1)]["iss"] = -5
    return U


def check_units(second):
    V = {k: dict(u) for k, u in U.items()}
    if second:
        V[("K", 0)]["iss"], V[("V", 0)]["iss"], V[("K", 1)]["iss"] = -4, -3, -3
    else:
        V[("J",)] = dict(addr=D[4], size=32 * KB, iss=-1, land=2, rel=3)
        V[("J", 2)] = dict(addr=D[9], size=16 * KB, iss=0, land=2, rel=3)
        V[("K", 0)]["iss"], V[("V", 0)]["iss"], V[("K", 1)]["iss"] = 3, 4, 5
    allu = [(k, u["addr"], u["addr"] + u["size"], u["iss"], u["rel"]) for k, u in V.items()]
    assert all(u["iss"] < u["land"] <= u["rel"] for u in V.values())
    if second:
        allu += [(k, u["addr"], u["addr"] + u["size"], u["iss"] - 27, u["rel"] - 27) for k, u in U.items() if k[0] in "KV" and k[1] > 2]
        allu += [(("P", n), D[p], D[p] + 16 * KB, (23, 24, 24)[n], 27) for n, p in enumerate((5, 9, 4))]
        allu += [(k, u["addr"], u["addr"] + u["size"], u["iss"] + 27, 40) for k, u in U.items() if k in sPF]
    for a in allu:
        for b in allu:
            if a is not b and a[1] < b[2] and b[1] < a[2]:
                assert a[4] <= b[3] or b[4] <= a[3], (a, b)


U = build_units()
U[("K", 0)]["iss"] = U[("V", 0)]["iss"] = U[("K", 1)]["iss"] = None
PADDR = {("P", 0): D[5], ("P", 1): D[9], ("P", 2): D[4]}
_alt = [0]


def next_st():
    _alt[0] ^= 1
    return [sT0, sT1][_alt[0]]


def unit_dmas(key, tmp=None):
    kind = key[0]
    if kind == "P":
        return [([salu("s_add_u32", "m0", sW4K, PADDR[key])], [dma(vW[m], S_WQ, sPF[key][0], 1024 * m, key, SC1) for m in range(4)])]
    if kind == "J":
        jj = key[1]
        sT = tmp
        pre = [salu("s_add_u32", sT, sWOS, jj * 128), salu("s_add_u32", "m0", sW4K, D[(4, 5, 9)[jj >> 2]] + (jj & 3) * 1024)]
        return [(pre, [dma(vX[0], S_WO, sT, 0, "J", " nt")])]
    u = U[key]
    if key in sPF:
        if kind == "W":
            return [([salu("s_add_u32", "m0", sW4K, u["addr"])], [dma(vW[m], S_WQ, sPF[key][0], 1024 * m, key, SC1) for m in range(4)])]
        return [([salu("s_add_u32", "m0", sW6K, u["addr"])], [dma(vX[m], S_X, sPF[key][0], 1024 * m, key, SC1) for m in range(4)]),
                ([salu("s_add_u32", "m0", sW6K, u["addr"] + 4096)], [dma(vX[m], S_X, sPF[key][1], 1024 * m, key, SC1) for m in range(2)])]
    sT = tmp or next_st()
    if kind in "KV":
        pre = [salu("s_add_u32", sT, sROT, key[1] * 8192), salu("s_and_b32", sT, sT, "0x1ffff"), salu("s_add_u32", sT, sT, sKV),
               salu("s_add_u32", "m0", sW4K, u["addr"])]
        if kind == "K":
            return [(pre, [dma(vK[m], S_K, sT, 1024 * m, key, OPT["kvf"]) for m in range(4)])]
        return [(pre, [dma(vV[m & 1], S_V, sT, 1024 * m, key, OPT["kvf"]) for m in range(4)])]
    if kind == "W":
        return [([salu("s_add_u32", "m0", sW4K, u["addr"])], [dma(vW[m], S_WQ, sW1 if key[2] else sWS, 1024 * m, key) for m in range(4)])]
    g0 = ([salu("s_add_u32", "m0", sW6K, u["addr"])], [dma(vX[m], S_X, sXS, 1024 * m, key) for m in range(4)])
    pre2 = [salu("s_add_u32", sT, sXS, 40960), salu("s_add_u32", "m0", sW6K, u["addr"] + 4096)]
    return [g0, (pre2, [dma(vX[m], S_X, sT, 1024 * m, key) for m in range(2)])]


def set_pf_proj(tail=False):
    o = [salu("s_add_u32", sW1, sWQ, 524288 + 128)]
    for key, rs in sPF.items():
        if key[0] == "P":
            continue
        if key[0] == "W":
            o += [salu("s_add_u32", rs[0], sWQ, key[1] * 524288 + key[2] * 128)]
        else:
            o += [salu("s_add_u32", rs[0], sX, key[1] * 128), salu("s_add_u32", rs[1], sX, key[1] * 128 + 40960)]
    return o


ORD2 = orders(16, 4, 8, 7, {1: [4], 2: [1, 1, 2, 2, 2, 0, 0], 3: [1, 2, 2, 2, 1, 0, 0], 4: [2, 1, 2, 2, 1, 0, 0]}[OPT["rot2"]])[0] if OPT["rot2"] else [list(range(16))] * 4
ORDQ = orders(10, 4, None, 0, {1: [1, 1, 2, 2, 2, 1, 1], 2: [1, 1, 4], 3: [1, 1, 2, 2, 1, 1, 1, 1]}[OPT["rotq"]])[0] if OPT["rotq"] else [list(range(10))] * 4
assert all(o[:2] == [0, 1] for o in ORDQ)
TBLQ = [sum(x << (4 * n) for n, x in enumerate(o[2:])) for o in ORDQ]
ORDQ1 = {0: ORDQ, 1: orders(10, 4, None, 0, [4])[0], 2: orders(10, 4, None, 0, [2, 2, 2, 1, 1, 1, 1])[0], 3: orders(10, 4, None, 0, [4, 0, 1, 1, 1, 1, 1, 1])[0]}[OPT["rotq1"]]
TBLQ1 = [sum(x << (4 * n) for n, x in enumerate(o[2:])) for o in ORDQ1]
TBLQ0 = [o[0] | o[1] << 4 for o in ORDQ1]


def by_role(dst, role, consts):
    o = [salu("s_mov_b32", dst, "0x%x" % consts[0])]
    for r in range(1, 4):
        o += [[scmp("s_cmp_eq_u32", role, r), salu("s_cselect_b32", dst, "0x%x" % consts[r], dst)]]
    return o


TBL2 = [sum(x << (4 * n) for n, x in enumerate(o)) for o in ORD2]


def next_off(dst, tbl, base, stride):
    return [salu("s_and_b32", dst, f"s{tbl}", 15), salu("s_lshr_b64", f"s[{tbl}:{tbl + 1}]", f"s[{tbl}:{tbl + 1}]", 4),
            salu("s_mul_i32", dst, dst, stride), salu("s_add_u32", dst, dst, base)]


def set_pf_out():
    o = [salu("s_and_b32", "s68", "s4", 3), salu("s_mul_i32", "s68", "s68", 1310720), salu("s_mul_i32", "s69", "s5", WOT_BLK),
         salu("s_add_u32", "s68", "s68", "s69"), salu("s_add_u32", "s68", "s68", WS_WOT)]
    o += [[salu("s_add_u32", f"s{S_WQ}", "s90", "s68"), salu("s_addc_u32", "s69", "s91", 0)]]
    o += [salu("s_and_b32", f"s{S_WQ + 1}", "s69", "0xffff"), salu("s_mov_b32", f"s{S_WQ + 2}", 1310720),
          salu("s_mov_b32", f"s{S_X}", f"s{S_WQ}"), salu("s_mov_b32", f"s{S_X + 1}", f"s{S_WQ + 1}"), salu("s_mov_b32", f"s{S_X + 2}", 1310720)]
    o += [salu("s_lshr_b32", "s70", sWAVE, 1), salu("s_mul_i32", "s68", sWAVE, 16 * 20480), salu("s_lshl_b32", "s69", "s70", 14),
          salu("s_add_u32", "s68", "s68", "s69"), salu("s_lshl_b32", "s69", "s70", 13), salu("s_sub_u32", "s69", 4096, "s69")]
    o += [salu("s_add_u32", "s70", "s3", "s4"), salu("s_and_b32", "s70", "s70", 3),
          salu("s_mov_b32", "s34", "0x%x" % (TBL2[0] & 0xffffffff)), salu("s_mov_b32", "s35", "0x%x" % (TBL2[0] >> 32))]
    for r in range(1, 4):
        o += [[scmp("s_cmp_eq_u32", "s70", r), salu("s_cselect_b32", "s34", "0x%x" % (TBL2[r] & 0xffffffff), "s34"),
               salu("s_cselect_b32", "s35", "0x%x" % (TBL2[r] >> 32), "s35")]]
    o += [salu("s_and_b32", "s70", "s34", 15), salu("s_mul_i32", "s70", "s70", 20480), salu("s_add_u32", "s70", "s70", "s68"),
          salu("s_bfe_u32", "s71", "s34", "0x40004"), salu("s_mul_i32", "s71", "s71", 20480), salu("s_add_u32", "s71", "s71", "s68")]
    for r, (st, pi, off) in PF2.items():
        o += [salu("s_mul_i32", r, "s69", pi), salu("s_add_u32", r, r, "s71" if st else "s70")]
        if off:
            o += [salu("s_add_u32", r, r, off)]
    return o


def groups_at(iss):
    order = {"W": 0, "X": 1, "K": 2, "V": 2}
    keys = sorted([k for k, u in U.items() if u["iss"] is not None and u["iss"] % 27 == iss % 27 and "even" not in u],
                  key=lambda k: (U[k]["land"] - U[k]["iss"], order[k[0]], k))
    return [g for k in keys for g in unit_dmas(k)]


def place_dmas(S, groups, cand, lo):
    ci = 0
    for pre, ds in groups:
        g = cand[ci]
        for n, p in enumerate(pre[:-1]):
            S.put(max(lo, g - len(pre) + n), p)
        for d in ds:
            d.m0 = pre[-1]
            S.put(cand[ci], d)
            ci += 1


def fix_m0(S):
    cur, prev = None, -2
    for g in sorted(S.fixed):
        for d in [x for x in S.fixed[g] if x.kind == "dma"]:
            if d.m0.text != cur:
                m = Ins(d.m0.text, "salu", rd=d.m0.rd, wr=d.m0.wr)
                if g - 1 > prev and not any(x.kind in ("bar", "branch") for x in S.fixed.get(g - 1, [])):
                    S.put(g - 1, m)
                else:
                    S.fixed[g].insert(S.fixed[g].index(d), m)
                cur = d.m0.text
            prev = g
        if any(x.kind == "label" for x in S.fixed[g]):
            cur = None


def tags_for(n):
    t = [k for k, u in U.items() if (u["land"] - n) % 27 == 0]
    if n == OPT["flagbar"]:
        t += ["ost", "jst"]
    if n == 2:
        t += ["J"]
    return t


def atomic_add(vdata, soff):
    return Ins(f"buffer_atomic_add {vdata}, {vFLG}, s[{S_FLG}:{S_FLG + 3}], {soff} offen sc1", "atomic",
               rd=[vdata, vFLG, soff] + regs("s", S_FLG, 4), tag="flag")


def poll_load(vdst, soff):
    return Ins(f"buffer_load_dword {vdst}, off, s[{S_FLG}:{S_FLG + 3}], {soff} sc1", "vld", rd=[soff] + regs("s", S_FLG, 4), wr=[vdst])


class Win:
    def __init__(self, rs, init):
        self.rs = rs
        self.cur = init

    def move(self, new):
        d = (new - self.cur) & 0xffffffff
        self.cur = new
        return [valu("v_add_u32", r, "0x%x" % d, r) for r in self.rs] if d else []


def plan_windows(addrs, span):
    want = []
    i = 0
    while i < len(addrs):
        lo = hi = addrs[i]
        j = i + 1
        while j < len(addrs) and max(hi, addrs[j]) - min(lo, addrs[j]) + span < 65536:
            lo, hi = min(lo, addrs[j]), max(hi, addrs[j])
            j += 1
        want += [lo] * (j - i)
        i = j
    return want


KWANT = plan_windows([U[("K", t)]["addr"] for t in range(16)], 4096)
VWANT = plan_windows([U[("V", t)]["addr"] for t in range(16)], 4096)
check_units(False)
check_units(True)


def pstore(v0, idx):
    return Ins(f"buffer_store_dwordx2 v[{v0}:{v0 + 1}], off, s[{S_PROF}:{S_PROF + 3}], {sPROF} offset:{8 * idx}", "vst",
               rd=[f"v{v0}", f"v{v0 + 1}", sPROF] + regs("s", S_PROF, 4))


def prof_stamp(idx, v0=252):
    if not OPT["prof"]:
        return []
    return [raw("s_memtime s[76:77]", "other", wr=["s76", "s77"]),
            raw("s_memrealtime s[78:79]", "other", wr=["s78", "s79"]),
            raw("s_waitcnt lgkmcnt(0)", "drainlg"),
            valu("v_mov_b32", f"v{v0}", "s76"),
            valu("v_mov_b32", f"v{v0 + 1}", "s78"),
            pstore(v0, idx)]


def bar_seq(tags, idx):
    if OPT["prof"] < 2:
        return [needboth(tags), barrier()] + prof_stamp(idx)
    return [raw("s_memtime s[58:59]", "other", wr=["s58", "s59"]), raw("s_waitcnt lgkmcnt(0)", "drainlg"),
            needboth(tags), barrier(),
            raw("s_memtime s[76:77]", "other", wr=["s76", "s77"]),
            raw("s_memrealtime s[78:79]", "other", wr=["s78", "s79"]),
            raw("s_waitcnt lgkmcnt(0)", "drainlg"), salu("s_sub_u32", "s76", "s76", "s58"),
            valu("v_mov_b32", "v252", "s76"), valu("v_mov_b32", "v253", "s78"), pstore(252, idx)]


def a_read(i, dt, ks, t):
    p, xy = dt >> 1, dt & 1
    off = U[("W", i, p >> 1)]["addr"] + ks * 4096 + t * 512 + xy * 8
    return ds_read("ds_read_b64_tr_b16", ("a", ABUF[dt % 2] + 4 * ks + 2 * t), 2, wA[p & 1], off)


def first_reads(i):
    ax = U[("X", i)]["addr"] - XS[0]

    def A(ks, t):
        return a_read(i, 0, ks, t)

    def B(qt, ks):
        return ds_read("ds_read_b128", ("a", bx(qt, ks)), 4, xA[ks], ax + qt * 2048)
    return [A(0, 0), A(0, 1), B(0, 0), A(1, 0), A(1, 1), B(0, 1)] + [B(qt, ks) for qt in range(1, 6) for ks in range(2)]


def k_read(t, j):
    kt, ks = j >> 2, j & 3
    return ds_read("ds_read_b128", ("a", kf(kt, ks)), 4, kA[ks], U[("K", t)]["addr"] - KWANT[t] + kt * 4096)


def epilogue_groups(tmp, dst=None, vaddr=None):
    groups = []
    n = 0
    for T in range(3):
        for ph in range(2):
            for qs in range(2):
                for pl in range(2):
                    qt = 2 * T + qs
                    tb = tmp + 4 * (n % 3)
                    src = oacc(qt, 4 * ph + 2 * pl)
                    db = tb if dst is None or dst(n) is None else dst(n)
                    rd = [valu("v_accvgpr_read_b32", f"v{tb + i}", f"a{src + i}") for i in range(8)]
                    mu = [valu("v_mul_f32", f"v{tb + i}", vR[qt], f"v{tb + i}") for i in range(8)]
                    cv = [valu("v_cvt_pk_bf16_f32", f"v{db + i}", f"v{tb + 2 * i}", f"v{tb + 2 * i + 1}") for i in range(4)]
                    pre = [salu("s_add_u32", sE, sO, ph * 12288 + T * 4096)] if qs == 0 and pl == 0 else []
                    imm = qs * 2048 + pl * 1024
                    groups.append((rd + mu + cv, pre, vstore(("v", db), 4, vaddr or vL16, S_OST, sE, imm, tag="ost", flags=SC1), imm))
                    n += 1
    return groups


def conv_items(T, ps, packed=()):
    out = []
    for p in ps:
        for qs in range(2):
            R, Dd = qacc(p, 0, 2 * T + qs), qf(2 * T + qs, p)
            if OPT["tmax"]:
                pass
            elif p in packed:
                out += [(p, qs, valu("v_pk_mul_f32", f"v[{R + x}:{R + x + 1}]", f"v[{R + x}:{R + x + 1}]", "s[86:87]" if False else vC2)) for x in range(0, 8, 2)]
            else:
                out += [(p, qs, valu("v_mul_f32", f"v{R + x}", sC, f"v{R + x}")) for x in range(8)]
            out += [(p, qs, valu("v_cvt_pk_bf16_f32", f"v{Dd + x}", f"v{R + 2 * x}", f"v{R + 2 * x + 1}")) for x in range(4)]
    return out


def touch_code(S, g, base, st, va, vd):
    S.put(g, salu("s_add_u32", st, sCP, base))
    S.put(g + 1, salu("s_min_u32", st, st, "L_endcode-L_pc-256"))
    S.put(g + 2, valu("v_and_b32", va, 16, vL16), valu("v_lshlrev_b32", va, 3, va))
    S.put(g + 3, valu("v_add_u32", va, st, va))
    return Ins(f"global_load_dword {vd}, {va}, s[96:97]", "vld", rd=[va, "s96", "s97"], wr=[vd])


def q_phase(second):
    S = Sched()
    extra, mid = {}, {}
    if not second:
        jp = OPT["jpro"]
        if jp == 0:
            extra[0] = [g for jj in range(5) for g in unit_dmas(("J", jj), sE)]
            extra[1] = [g for jj in range(5, 10) for g in unit_dmas(("J", jj), sE)]
        elif jp < 10:
            extra[1] = [g for jj in range(jp, 10) for g in unit_dmas(("J", jj), sE)]
        kv = [unit_dmas(k, sE) for k in [("K", 0), ("V", 0), ("K", 1)]]
        if OPT["kplan"] == 0:
            extra[4], extra[5], extra[6] = kv
        elif OPT["kplan"] == 1:
            extra[7], mid[8] = kv[0], kv[1]
            extra[8] = kv[2]
        elif OPT["kplan"] == 2:
            extra[4], extra[7], mid[8] = kv
        elif OPT["kplan"] == 4:
            extra[5], extra[6], extra[7] = kv
        elif OPT["kplan"] == 5:
            extra[4], extra[6], extra[7] = kv
        elif OPT["kplan"] == 3:
            extra[5], extra[7], mid[8] = kv
    for i in range(10):
        q0 = S.n()
        for dt in range(8):
            for qt in range(6):
                for ks in range(2):
                    acc = ("v", qacc(dt >> 1, dt & 1, qt))
                    S.add(mfma(16, acc, ("a", ABUF[dt % 2] + 4 * ks), ("a", bx(qt, ks)), None if (i == 0 and ks == 0) else acc))
        for dt in range(1, 8):
            gaps = [4, 5, 6, 7] if dt == 1 else [0, 2, 3, 4]
            for n, (ks, t) in enumerate([(0, 0), (0, 1), (1, 0), (1, 1)]):
                S.put(q0 + 12 * (dt - 1) + gaps[n], a_read(i, dt, ks, t))
        S.put(q0 + 35, needboth(tags_for(i - 0.5)), barrier())
        S.put(q0 + 83, *bar_seq(tags_for(i), 2 + i))
        if i < 9:
            for n, r in enumerate(first_reads(i + 1)):
                S.put(q0 + 84 + n, r)
        else:
            kw = Win(kA, KWANT[15])
            mv = kw.move(KWANT[0])
            S.put(q0 + 80, *mv[:2])
            S.put(q0 + 82, *mv[2:])
            for j in range(8):
                S.put(q0 + 84 + j, k_read(0, j))
        if i <= 7:
            for n, x in enumerate([salu("s_bfe_u32", sXS, sQT, "0x%x" % (0x40000 + 4 * i)), salu("s_lshl_b32", sWS, sXS, 19),
                                   salu("s_add_u32", sWS, sWS, sWQ), salu("s_lshl_b32", sXS, sXS, 7), salu("s_add_u32", sXS, sXS, sX),
                                   salu("s_add_u32", sW1, sWS, 128)]):
                S.put(q0 + 26 + n, x)
        early = groups_at(i - 1)
        place_dmas(S, early + mid.get(i, []), [q0 + g for g in ((9, 17, 25, 33) if OPT["qsp"] and i == 9 else (9, 13, 17, 21, 25, 29, 31, 33))], q0)
        late = groups_at(i - 0.5) + extra.get(i, [])
        if i == 8 and 8 in extra:
            late = extra[8] + groups_at(i - 0.5)
        cand = [q0 + 37 + 4 * x for x in range(12)]
        nd = sum(len(g[1]) for g in late)
        if nd > 12:
            cand = sorted(cand + [q0 + 67, q0 + 71, q0 + 75, q0 + 79][:nd - 12])
        if OPT["qsp"] and i >= 8 and nd:
            allowed = [37, 41, 43, 45, 47, 49, 53, 55, 57, 59, 61, 65, 67, 69, 71, 73, 77, 79, 81]
            cand = [q0 + allowed[round(x * (len(allowed) - 1) / max(nd - 1, 1))] for x in range(nd)]
        place_dmas(S, late, cand, q0 + 35)
    if not second:
        for jj in range(10):
            q0 = 96 * 3
            if jj == 8:
                S.put(q0 + 65, valu("v_add_u32", vJ, D[9] - D[4] - 2 * 16384, vJ))
            for tt in range(2):
                g = q0 + [10, 11, 18, 19, 22, 23, 30, 31, 34, 42, 43, 46, 47, 54, 55, 58, 66, 67, 70, 71][2 * jj + tt]
                S.put(g, ds_read("ds_read_b64_tr_b16", ("a", 4 * jj + 2 * tt), 2, vJ, (jj >> 2) * 16384 + (jj & 3) * 1024 + tt * 8192))
            nq, pair = divmod(2 * jj, 5)
            g = 96 * (4 + jj // 3) + [19, 25, 31][jj % 3]
            if OPT["jlate"]:
                g = 96 * (3 + jj // 2) + ([79, 82] if (3 + jj // 2) in extra else [77, 81])[jj % 2]
            S.put(g - 1, salu("s_add_u32", sJ, sWOX if pair == 4 else sWOD, nq * 1310720 + pair * 4096))
            S.put(g, vstore(("a", 4 * jj), 4, vL16, S_WOT, sJ, 0, tag="jst", flags=SC1))
    if not second and OPT["ctq"]:
        q0 = 96 * OPT["ctq"]
        S.put(q0 + 33, touch_code(S, q0 + 18, "L_att-L_pc", sJ, vT[0], vT[1]))
    if second:
        eg = epilogue_groups(EPI)
        ep = []
        for i in range(8):
            for g in eg[3 * i:3 * i + 3]:
                ep += [(x, 96 * i, None) for x in g[0]]
            for g in eg[3 * i:3 * i + 3]:
                ep += [(x, 96 * i + OPT["stg"], None) for x in g[1] + [g[2]]]
        ep[-1] = (ep[-1][0], ep[-1][1], 96 * 9 - 1)
        S.stream(ep)
        S.put(96 * 9 + 2, salu("s_add_u32", sO, sO, 8 * 12288))
    q0 = 96 * 9
    g = q0 + 2
    for x in ([salu("s_add_u32", sWQ, sWQ, 512)] + set_pf_proj(True) + [salu("s_add_u32", "s68", "s3", "s4"), salu("s_and_b32", "s68", "s68", 3)] + by_role(sQT, "s68", TBLQ) if not second else set_pf_out()):
        S.put(g, *(x if isinstance(x, list) else [x]))
        g += 1 if g < q0 + 94 else 0
        while g in (q0 + 35, q0 + 83) or any(x.kind == "salu" for x in S.fixed.get(g, [])):
            g += 1
    if second:
        S.stream([(valu("v_mov_b32", r, vL16), q0 + 2, None) for r in vW + vX])
    if not OPT["tmax"]:
        S.put(q0 + 7, valu("v_mov_b32", "v242", sC), valu("v_mov_b32", "v243", sC))
    S.stream([(x, min(q0 + 12 * (2 * p + 1) + 2 * qs + 1 + 2, q0 + 95), None) for p, qs, x in conv_items(0, range(4))])
    if OPT["tmax"]:
        for T in (1, 2):
            S.stream([(x, q0 + 12 * (2 * p + 1) + 4 * T + 2 * qs + 1 + 2, None) for p, qs, x in conv_items(T, range(3))])
    S.put(-1, *prof_stamp(1))
    fix_m0(S)
    return S.finish(lead=first_reads(0), report=OPT["report"])


def lspread(qt, tmp):
    l = f"v{lacc(qt)}"
    return [valu("v_mov_b32", tmp, l), perm("v_permlane32_swap_b32", tmp, l), valu("v_add_f32", l, l, tmp),
            valu("v_mov_b32", tmp, l), perm("v_permlane16_swap_b32", tmp, l), valu("v_add_f32", l, l, tmp)]


def interleave(a, b):
    return [x for p in zip(a, b) for x in p]


def lcheck():
    l = [f"v{lacc(qt)}" for qt in range(6)]
    if OPT["tmax"] == 2:
        return [valu("v_add_f32", vT[0], l[0], l[1]), valu("v_add_f32", vT[1], l[2], l[3]), valu("v_add_f32", vT[0], vT[0], l[4]),
                valu("v_add_f32", vT[1], vT[1], l[5]), valu("v_add_f32", vT[0], vT[0], vT[1]), valu("v_cmp_ngt_f32", "vcc", sHI, vT[0])]
    if OPT["tmax"]:
        x = [f"v{mrun(qt)}" for qt in range(6)]
        return ([valu("v_fma_f32", x[q], x[q], sC, f"v{mneg(q)}") for q in range(6)] +
                [valu("v_add_f32", vT[0], l[0], l[1]), valu("v_max3_f32", vT[1], x[0], x[1], x[2]),
                 valu("v_add_f32", vT[0], vT[0], l[2]), valu("v_max3_f32", vT[1], vT[1], x[3], x[4]),
                 valu("v_add_f32", vT[0], vT[0], l[3]), valu("v_add_f32", vT[0], vT[0], l[4]),
                 valu("v_max_f32", vT[1], vT[1], x[5]), valu("v_add_f32", vT[0], vT[0], l[5]),
                 valu("v_cmp_ngt_f32", "s[56:57]", sLO, vT[1]),
                 valu("v_cmp_ngt_f32", "vcc", sHI, vT[0]),
                 salu("s_or_b64", "vcc", "vcc", "s[56:57]")])
    return [valu("v_add_f32", vT[0], l[0], l[1]), valu("v_min3_f32", vT[1], l[0], l[1], l[2]),
            valu("v_add_f32", vT[0], vT[0], l[2]), valu("v_min3_f32", vT[1], vT[1], l[3], l[4]),
            valu("v_add_f32", vT[0], vT[0], l[3]), valu("v_add_f32", vT[0], vT[0], l[4]),
            valu("v_min_f32", vT[1], vT[1], l[5]), valu("v_add_f32", vT[0], vT[0], l[5]),
            valu("v_cmp_nlt_f32", "s[56:57]", sLO, vT[1]),
            valu("v_cmp_ngt_f32", "vcc", sHI, vT[0]),
            salu("s_or_b64", "vcc", "vcc", "s[56:57]")]


def a_phase(last):
    S = Sched()
    qk = [[0] * 3 for _ in range(16)]
    pv = [[0] * 3 for _ in range(16)]

    def QK(t, T):
        qk[t][T] = S.n()
        for qs in range(2):
            for kt in range(2):
                s = ("v", sreg(2 * T + qs) + 4 * kt)
                for ks in range(4):
                    S.add(mfma(16, s, ("a", kf(kt, ks)), ("v", qf(2 * T + qs, ks)), None if ks == 0 else s))

    def PV(t, T):
        pv[t][T] = S.n()
        sums = []
        for qs in range(2):
            l = ("v", lacc(2 * T + qs))
            sums.append(mfma(16, l, ("v", ONES), ("v", sreg(2 * T + qs)), None if t == 0 else l))
        if t == 15:
            for m in sums:
                S.add(m)
        for dt in range(8):
            for qs in range(2):
                o = ("a", oacc(2 * T + qs, dt))
                S.add(mfma(16, o, ("a", vf(dt)), ("v", sreg(2 * T + qs)), None if t == 0 else o))
        if t < 15:
            for m in sums:
                S.add(m)

    for t in range(16):
        QK(t, 0)
        if t:
            PV(t - 1, 1)
        QK(t, 1)
        if t:
            PV(t - 1, 2)
        QK(t, 2)
        PV(t, 0)
    PV(15, 1)
    PV(15, 2)
    bar = {}
    kw, vw = Win(kA, KWANT[0]), Win(vA, VWANT[0])
    for t in range(16):
        g0 = pv[t - 1][2] if t else qk[0][1]
        bar[10 + t] = g0 - 1
        S.put(g0 - 1, *bar_seq(tags_for(10 + t), 12 + t))
        if t == 13:
            S.put(g0 - 1, scmp("s_cmp_eq_u32", sIT, 1), raw("s_cbranch_scc1 L_tail2", "branch", rd=["scc"]), label("L_CUT"))
        for n, m in enumerate(vw.move(VWANT[t])):
            S.put(g0 - 14 + 3 * (n // 2), m)
        for dt in range(8):
            for tt in range(2):
                S.put(g0 + 4 * dt + 1 + 2 * tt,
                      ds_read("ds_read_b64_tr_b16", ("a", vf(dt) + 2 * tt), 2, vA[dt], U[("V", t)]["addr"] - VWANT[t] + tt * 4096))
        if t < 15:
            for n, m in enumerate(kw.move(KWANT[t + 1])):
                S.put((qk[t][0] + 9 if t else qk[0][2] + 2) + (3 if t else 2) * (n // 2), m)
            for j in range(8):
                S.put(qk[t][2] + [8, 10, 12, 14, 17, 19, 21, 23][j], k_read(t + 1, j))
    if not last:
        S.stream([(m, pv[15][0], None) for m in vw.move(VWANT[0])])
    bar[26] = pv[15][1] - 1
    S.put(bar[26], *(prof_stamp(28) if last else bar_seq(tags_for(26), 28)))
    fr = [] if last else first_reads(0)
    for n, r in enumerate(fr[:10]):
        S.put(pv[15][1] + [1, 3, 5, 7, 9, 11, 13, 15, 16, 17][n], r)
    for n, r in enumerate(fr[10:]):
        S.put(pv[15][2] + 3 + 2 * n, r)
    stream = sorted([k for k, u in U.items() if "even" in u], key=lambda k: U[k]["even"])
    nk = len(stream)
    stream += [("P", 0), ("P", 1), ("P", 2)] if last else [("K", 0), ("V", 0), ("K", 1)]
    for e, key in enumerate(stream):
        cand = []
        for m in range(4):
            g = int(kpos(4 * e + m))
            while S.used(g, False) > 0 or g - 1 in bar.values():
                g += 1
            cand.append(g)
        lo = bar.get(U[key]["iss"] if e < nk else (23, 24, 24)[e - nk], -2) + 1
        assert cand[0] > lo + (3 if e >= nk else 0), (key, cand, lo)
        if e == nk:
            S.put(cand[0] - 5, salu("s_add_u32", sKV, sKV, 262144))
        place_dmas(S, unit_dmas(key, sE if e >= nk else None), cand, lo)
    for n in range(24, 27):
        groups = groups_at(n - 1)
        nd = sum(len(g[1]) for g in groups)
        a, b = bar[n - 1] + 5, bar[n] - 1
        cand = []
        for x in range(nd):
            g = a + (b - a) * x // nd
            while any(i.kind in MEMK for k in (g - 1, g, g + 1) for i in S.fixed.get(k, []) if k == g or i.kind == "dma") or g in cand:
                g += 1
            cand.append(g)
        assert cand[-1] < bar[n]
        place_dmas(S, groups, cand, bar[n - 1] + 1)
    if OPT["xpace"]:
        for t in range(1, 14):
            for T in range(3):
                S.put(pv[t][T] + 17, nop(OPT["xpace"]))
                S.put(qk[t][T] + 15, nop(OPT["xpace"]))
    g = bar[OPT["flagbar"]] + 2
    S.put(g - 1, scmp("s_cmp_eq_u32", sIT, 0), salu("s_cselect_b32", sE, sFB, sFG), salu("s_cselect_b32", sJ, "0x10000", 1))
    S.put(g + 1, valu("v_mov_b32", f"v{EPI}", sJ))
    S.put(g + 4, atomic_add(f"v{EPI}", sE))
    g = qk[12 - OPT['t23']][0]
    S.put(g + 1, scmp("s_cmp_eq_u32", sIT, 1), salu("s_cselect_b32", sE, sFB, "0x1000"))
    S.put(g + 3, poll_load(vPOLL[1], sE))
    g = qk[13 - OPT['t23']][0]
    S.put(g + 1, salu("s_lshl_b32", sWANT, sIT, 23), valu("v_readfirstlane_b32", sQ, vPOLL[1]))
    S.put(g + 4, scmp("s_cmp_lt_u32", sQ, sWANT), raw("s_cbranch_scc1 L_spin3", "branch", rd=["scc"]), label("L_spin3_back"))
    if last:
        g = bar[25] + 2
        S.put(g, poll_load(vPOLL[0], sFG))
        su = [salu("s_lshr_b32", "s84", "s4", 2), salu("s_mul_i32", "s7", "s3", O_GRP), salu("s_mul_i32", "s58", "s84", 786432),
              salu("s_add_u32", "s7", "s7", "s58"), [salu("s_add_u32", f"s{S2B}", "s90", "s7"), salu("s_addc_u32", "s59", "s91", 0)],
              salu("s_and_b32", f"s{S2B + 1}", "s59", "0xffff"), salu("s_mov_b32", f"s{S2B + 2}", 786432),
              salu("s_mul_i32", sBB, sWAVE, 16 * 12288), salu("s_mov_b64", f"s[{TB}:{TB + 1}]", "s[34:35]")] + next_off(sB2, TB, sBB, 12288)
        su += [salu("s_and_b32", "s58", sWAVE, 1), salu("s_mul_i32", "s58", "s58", 3 * 2048), salu("s_sub_u32", "s59", 3 * 2048, "s58"),
               salu("s_lshr_b32", "s86", sWAVE, 1), salu("s_lshl_b32", "s86", "s86", 12), salu("s_add_u32", "s58", "s58", "s86"),
               salu("s_add_u32", "s59", "s59", "s86"), salu("s_sub_u32", "s86", 2048, "s86")]
        g += 1
        for x in su:
            while any(i.kind == "salu" for i in S.fixed.get(g, [])):
                g += 1
            S.put(g, *(x if isinstance(x, list) else [x]))
            g += 1
        va = [valu("v_add_u32", V2B[0], "s58", vL16), valu("v_add_u32", V2B[3], "s59", vL16)]
        for q in (1, 2):
            va += [valu("v_add_u32", V2B[q], "s86", V2B[q - 1]), valu("v_add_u32", V2B[3 + q], "s86", V2B[2 + q])]
        S.stream([(x, g, pv[15][1] - 3) for x in va])
        g = pv[15][0] + 12
        S.put(g, valu("v_readfirstlane_b32", sQ, vPOLL[0]))
        S.put(g + 3, salu("s_and_b32", sQ, sQ, "0xff"), scmp("s_cmp_lt_u32", sQ, 8),
              raw("s_cbranch_scc1 L_spin1", "branch", rd=["scc"]), label("L_spin1_back"))
        for n, l in enumerate([l for qi in range(6) for l in k2_loads_B(0, qi)]):
            S.put(pv[15][1] + 1 + 2 * n if n < 8 else pv[15][2] + 3 + 3 * (n - 8), l)
    for n, t in enumerate([int(x) for x in OPT["cta"].split(",") if x]):
        g = pv[t][0]
        while any(S.fixed.get(k) for k in range(g, g + 6)):
            g += 1
        S.put(g + 5, touch_code(S, g, f"L_att-L_pc+{(n + 1) * 12288}", sJ, f"v{EPI + 4}", f"v{EPI + 5}"))
    if OPT["codepf2"]:
        g = qk[OPT["codepf2"]][0] - 6
        S.put(g - 2, salu("s_mul_i32", sJ, sIT, "L_tail2-L_tail1"))
        S.put(g - 1, salu("s_add_u32", sJ, sJ, "L_tail1-L_pc"))
        S.put(g, salu("s_add_u32", sJ, sJ, sCP))
        S.put(g + 1, salu("s_min_u32", sJ, sJ, "L_endcode-L_pc-256"))
        S.put(g + 2, valu("v_and_b32", f"v{EPI + 2}", 16, vL16), valu("v_lshlrev_b32", f"v{EPI + 2}", 3, f"v{EPI + 2}"))
        S.put(g + 3, valu("v_add_u32", f"v{EPI + 2}", sJ, f"v{EPI + 2}"))
        S.put(g + 5, Ins(f"global_load_dword v{EPI + 3}, v{EPI + 2}, s[96:97]", "vld", rd=[f"v{EPI + 2}", "s96", "s97"], wr=[f"v{EPI + 3}"]))
    for T in (1, 2):
        if OPT["pk"] and not OPT["tmax"]:
            nfree = OPT["nfree"] if T == 1 else 0
            S.stream([(x, -1, None) for p, qs, x in conv_items(T, range(nfree))] +
                     [(x, qk[0][T] - 1, qk[0][T] - 1) for p, qs, x in conv_items(T, range(nfree, 4), packed=range(4))])
        else:
            c = [(x, -1, None) for p, qs, x in conv_items(T, range(3 if OPT["tmax"] else 0, 4))]
            c[-1] = (c[-1][0], -1, qk[0][T] - 1)
            S.stream(c)
    fin = []
    if OPT["one1"]:
        for T in range(3):
            fin += [(x, [pv[15][1] + 12, pv[15][2], pv[15][2] + 4][T], None) for x in interleave(lspread(2 * T, f"v{lacc(2 * T) + 1}"), lspread(2 * T + 1, f"v{lacc(2 * T + 1) + 1}"))]
    S.stream(fin + [(x, pv[15][2] + 4, None) for x in lcheck()])
    units = []
    for t in range(16):
        for qt in range(6):
            s = sreg(qt)
            T, qs = qt >> 1, qt & 1
            dl = pv[t][T] + qs - 2
            units.append(dict(e=qk[t][T] + 8 * qs + 7 + 2,
                              exps=[valu("v_exp_f32", f"v{s + r}", f"v{s + r}") for r in range(8)],
                              cvts=[(valu("v_cvt_pk_bf16_f32", f"v{s + r}", f"v{s + 2 * r}", f"v{s + 2 * r + 1}"), 2 * r + 2, dl) for r in range(4)]))
    if OPT["tmax"]:
        for n, u in enumerate(units):
            t, qt = divmod(n, 6)
            s, m, mn = sreg(qt), f"v{mrun(qt)}", f"v{mneg(qt)}"
            fma = [valu("v_fma_f32", f"v{s + r}", f"v{s + r}", sC, mn) for r in range(8)]
            if t == 0:
                pre = [valu("v_max3_f32", m, f"v{s}", f"v{s + 1}", f"v{s + 2}"), valu("v_max3_f32", mn, f"v{s + 3}", f"v{s + 4}", f"v{s + 5}"),
                       valu("v_max3_f32", m, m, f"v{s + 6}", f"v{s + 7}"), valu("v_max_f32", m, m, mn)]
                for op in ("v_permlane32_swap_b32", "v_permlane16_swap_b32"):
                    pre += [valu("v_mov_b32", mn, m), perm(op, mn, m), valu("v_max_f32", m, m, mn)]
                pre += [valu("v_mul_f32", mn, sNC, m)] + fma
                need = [len(pre) - 7 + r for r in range(8)]
            else:
                pre, need = [], []
                for r in range(0, 8, 2):
                    if OPT["tmax"] == 1:
                        pre += [valu("v_max3_f32", m, m, f"v{s + r}", f"v{s + r + 1}")]
                    pre += [fma[r], fma[r + 1]]
                    need += [len(pre) - 1, len(pre)]
            u["pre"] = pre
            u["exps"] = list(zip(u["exps"], need))
        def xok(g):
            n = OPT["xhi"] if g < qk[2][0] or g >= qk[13][0] else OPT["xnum"]
            return (g * n) % 100 < n
        S.packers.append(SoftmaxPacker2(units,
                                        lambda g: 1 if S.used(g, False) < 2 and xok(g) else 0))
    else:
        S.packers.append(SoftmaxPacker(units))
    fix_m0(S)
    return S.finish(lead=[k_read(0, j) for j in range(8)], report=OPT["report"])


def slow_path():
    o = [label("L_slow"), drain(), nop(16)]
    KF = [EPI + 4 * k for k in range(4)]
    VFR = 56
    vM = [f"v{120 + q}" for q in range(6)]
    vKo, vVo, vt, vu = "v60", "v61", "v62", "v63"
    o += [valu("v_lshrrev_b32", vt, 4, vL16), valu("v_and_b32", vu, 15, vt), valu("v_lshrrev_b32", vt, 4, vt),
          valu("v_lshlrev_b32", vKo, 8, vu), valu("v_lshl_add_u32", vKo, vt, 4, vKo),
          valu("v_lshlrev_b32", vVo, 10, vt), valu("v_lshl_add_u32", vVo, vu, 1, vVo)]
    o += [salu("s_sub_u32", "s58", sKV, 262144)]
    o += [valu("v_mov_b32", m, "0xff800000") for m in vM]

    def scores():
        r = []
        for kt in range(2):
            r += [salu("s_add_u32", "s61", "s59", kt * 4096)]
            r += [vload(("v", KF[ks]), 4, vKo, S_K, "s61", 64 * ks) for ks in range(4)] + [drain()]
            for qt in range(6):
                s = ("v", sreg(qt) + 4 * kt)
                r += [mfma(16, s, ("v", KF[ks]), ("v", qf(qt, ks)), None if ks == 0 else s) for ks in range(4)]
            r += [nop(16)]
        return r
    o += [salu("s_mov_b32", "s59", "s58"), salu("s_mov_b32", "s60", 16), label("L_slow1")] + scores()
    for qt in range(6):
        o += [valu("v_max3_f32", vM[qt], vM[qt], f"v{sreg(qt) + r}", f"v{sreg(qt) + r + 1}") for r in range(0, 8, 2)]
    o += [salu("s_add_u32", "s59", "s59", 8192), salu("s_sub_u32", "s60", "s60", 1), scmp("s_cmp_lg_u32", "s60", 0),
          raw("s_cbranch_scc1 L_slow1", "branch", rd=["scc"])]
    for qt in range(6):
        for op in ("v_permlane32_swap_b32", "v_permlane16_swap_b32"):
            o += [valu("v_mov_b32", vt, vM[qt]), nop(2), perm(op, vt, vM[qt]), valu("v_max_f32", vM[qt], vM[qt], vt)]
        o += [valu("v_mov_b32", f"v{lacc(qt) + r}", 0) for r in range(4)]
    o += [valu("v_accvgpr_write_b32", f"a{r}", 0) for r in range(192)]
    o += [salu("s_mov_b32", "s59", "s58"), salu("s_mov_b32", "s60", 16), label("L_slow2")] + scores()
    for qt in range(6):
        s = sreg(qt)
        o += [valu("v_sub_f32", f"v{s + r}", f"v{s + r}", vM[qt]) for r in range(8)]
        if OPT["tmax"]:
            o += [valu("v_mul_f32", f"v{s + r}", sC, f"v{s + r}") for r in range(8)]
        o += [valu("v_exp_f32", f"v{s + r}", f"v{s + r}") for r in range(8)]
        o += [valu("v_cvt_pk_bf16_f32", f"v{s + r}", f"v{s + 2 * r}", f"v{s + 2 * r + 1}") for r in range(4)]
    o += [salu("s_add_u32", "s57", "s59", 4096)]
    for dt in range(8):
        for j in range(8):
            o += [vload(("v", 184 + j), 1, vVo, S_V, "s57" if j >= 4 else "s59", (j & 3) * 256 + 32 * dt, op="buffer_load_ushort")]
        o += [drain()]
        o += [valu("v_lshl_or_b32", f"v{VFR + r}", f"v{185 + 2 * r}", 16, f"v{184 + 2 * r}") for r in range(4)]
        o += [mfma(16, ("a", oacc(qt, dt)), ("v", VFR), ("v", sreg(qt)), ("a", oacc(qt, dt))) for qt in range(6)]
        o += [nop(8)]
    o += [mfma(16, ("v", lacc(qt)), ("v", ONES), ("v", sreg(qt)), ("v", lacc(qt))) for qt in range(6)] + [nop(16)]
    o += [salu("s_add_u32", "s59", "s59", 8192), salu("s_sub_u32", "s60", "s60", 1), scmp("s_cmp_lg_u32", "s60", 0),
          raw("s_cbranch_scc1 L_slow2", "branch", rd=["scc"])]
    o += [nop(16)]
    if OPT["one1"]:
        for qt in range(6):
            o += lspread(qt, vt)
    o += [drain(), scmp("s_cmp_eq_u32", sIT, 1), raw("s_cbranch_scc1 L_back2", "branch", rd=["scc"]), raw("s_branch L_back1", "branch")]
    return o


def srd(base, lo, hi, nbytes):
    return [salu("s_mov_b32", f"s{base}", lo), salu("s_and_b32", f"s{base + 1}", hi, "0xffff"),
            salu("s_mov_b32", f"s{base + 2}", nbytes), salu("s_mov_b32", f"s{base + 3}", "0x20000")]


def decode_wg():
    return [salu("s_and_b32", "s3", "s2", 7), salu("s_lshr_b32", "s4", "s2", 6), salu("s_lshl_b32", "s3", "s3", 2),
            salu("s_add_u32", "s3", "s3", "s4"), salu("s_lshr_b32", "s4", "s2", 3), salu("s_and_b32", "s4", "s4", 7),
            salu("s_lshr_b32", "s5", "s3", 4), salu("s_and_b32", "s6", "s3", 15)]


def code_touch():
    return [salu("s_lshr_b32", "s68", "s2", 3), salu("s_lshl_b32", "s68", "s68", 11),
            valu("v_lshrrev_b32", "v11", 6, "v0"), valu("v_and_b32", "v12", 3, "v0"), valu("v_lshlrev_b32", "v11", 9, "v11"),
            valu("v_lshl_add_u32", "v11", "v12", 7, "v11"), valu("v_add_u32", "v11", "s68", "v11")] + (
            [valu("v_min_u32", "v11", "L_att-L_pc", "v11")] if OPT["cplim"] else []) + [
            Ins("global_load_dword v253, v11, s[96:97]", "vld", rd=["v11", "s96", "s97"], wr=["v253"])]


def kv_patterns():
    i, a, b, c = "v1", "v2", "v3", "v4"
    o = [valu("v_lshrrev_b32", a, 4, i), valu("v_and_b32", b, 15, i),
         valu("v_xor_b32", c, a, b), valu("v_lshlrev_b32", c, 4, c), valu("v_lshl_add_u32", vK[0], a, 8, c)]
    o += [valu("v_xor_b32", vK[m], m << 6, vK[0]) for m in range(1, 4)]
    o += [valu("v_lshlrev_b32", "v5", 1, a), valu("v_xor_b32", "v5", "v5", b), valu("v_lshlrev_b32", "v5", 4, "v5"),
          valu("v_lshl_add_u32", vV[0], a, 8, "v5"), valu("v_xor_b32", vV[1], 128, vV[0])]
    return o


sT2 = "s101"


def prologue():
    o = [scmp("s_cmp_ge_u32", "s2", 256), raw("s_cbranch_scc1 L_end", "branch", rd=["scc"])]
    o += [raw("s_getpc_b64 s[96:97]", wr=["s96", "s97"]), label("L_pc")]
    if OPT["dbgt"]:
        o += [raw("s_memrealtime s[72:73]", wr=["s72", "s73"])]
    if OPT["codepf"] == 2:
        o += code_touch()
    o += decode_wg()
    o += [salu("s_mul_i32", "s7", "s5", 40), salu("s_add_u32", "s68", "s0", "s7"), salu("s_addc_u32", "s69", "s1", 0),
          raw("s_load_dwordx8 s[56:63], s[68:69], 0", wr=regs("s", 56, 8)),
          raw("s_load_dwordx2 s[94:95], s[68:69], 32", wr=["s94", "s95"]),
          raw("s_load_dwordx4 s[88:91], s[0:1], 88", wr=regs("s", 88, 4)),
          raw("s_load_dwordx2 s[92:93], s[0:1], 80", wr=["s92", "s93"])]
    i, a, b, c = "v1", "v2", "v3", "v4"
    o += [valu("v_lshrrev_b32", a, 6, "v0"), valu("v_and_b32", i, 63, "v0"),
          valu("v_readfirstlane_b32", sWAVE, a), valu("v_lshlrev_b32", vL16, 4, i)]
    o += [valu("v_lshrrev_b32", a, 4, i), valu("v_and_b32", b, 7, i), valu("v_lshrrev_b32", "v5", 3, i),
          valu("v_and_b32", c, 1, a), valu("v_lshlrev_b32", c, 1, c), valu("v_xor_b32", c, c, b), valu("v_lshlrev_b32", c, 4, c),
          valu("v_lshl_add_u32", vW[0], "v5", 13, c),
          valu("v_xor_b32", vW[1], 64, vW[0]), valu("v_add_u32", vW[1], 64512, vW[1]),
          valu("v_add_u32", vW[2], 2 * 64512, vW[0]), valu("v_add_u32", vW[3], 2 * 64512, vW[1])]
    o += [valu("v_xor_b32", c, a, b), valu("v_lshlrev_b32", c, 4, c), valu("v_mul_u32_u24", "v6", 1280, "v5"),
          valu("v_add_u32", vX[0], "v6", c),
          valu("v_xor_b32", vX[1], 64, vX[0]), valu("v_add_u32", vX[1], 9216, vX[1]),
          valu("v_add_u32", vX[2], 2 * 9216, vX[0]), valu("v_add_u32", vX[3], 2 * 9216, vX[1])]
    o += [salu("s_lshr_b32", "s70", sWAVE, 1), salu("s_and_b32", "s71", sWAVE, 1),
          salu("s_lshl_b32", sW4K, sWAVE, 12), salu("s_mul_i32", sW6K, sWAVE, 6144),
          salu("s_lshl_b32", "s7", "s4", 2), salu("s_add_u32", "s7", "s7", "s70"),
          salu("s_lshl_b32", sWQ, "s71", 18), salu("s_lshl_b32", sT0, "s7", 8), salu("s_add_u32", sWQ, sWQ, sT0),
          salu("s_mul_i32", sX, "s6", 245760), salu("s_mul_i32", sT0, sWAVE, 61440), salu("s_add_u32", sX, sX, sT0)]
    o += [raw("s_waitcnt lgkmcnt(0)", "drainlg")]
    o += srd(S_X, "s56", "s57", 3932160) + srd(S_WQ, "s62", "s63", 5242880)
    o += [salu("s_add_u32", "s68", "s3", "s4"), salu("s_and_b32", "s68", "s68", 3)]
    for x in by_role("s69", "s68", TBLQ0):
        o += x if isinstance(x, list) else [x]
    for st in range(2):
        o += [salu("s_bfe_u32", sT0, "s69", "0x%x" % (0x40000 + 4 * st)), salu("s_lshl_b32", sT1, sT0, 19), salu("s_lshl_b32", sT0, sT0, 7),
              salu("s_add_u32", sPF[("W", st, 0)][0], sT1, sWQ), salu("s_add_u32", sPF[("X", st)][0], sT0, sX),
              salu("s_add_u32", sT2 if st else sPF[("W", st, 1)][0], sPF[("W", st, 0)][0], 128), salu("s_add_u32", sPF[("X", st)][1], sPF[("X", st)][0], 40960)]
    for k in [("W", 0, 0), ("X", 0), ("W", 0, 1), ("W", 1, 0), ("X", 1)]:
        for pre, ds in unit_dmas(k):
            o += pre[::-1] + ds
    if OPT["warmw"]:
        o += [salu("s_mul_i32", "s68", "s6", 40 * 8192), salu("s_lshl_b32", "s69", "s4", 10), salu("s_add_u32", "s68", "s68", "s69"),
              salu("s_mul_i32", "s69", sWAVE, 10 * 8192), salu("s_add_u32", "s68", "s68", "s69"),
              valu("v_lshlrev_b32", b, 7, b), valu("v_lshl_add_u32", "v6", "v5", 13, b), valu("v_and_b32", c, 1, "v5"),
              valu("v_lshl_add_u32", c, c, 13, b), salu("s_add_u32", "s69", "s68", 8 * 8192)]
        o += [vload(("v", 254), 1, "v6", S_WQ, "s68", 0), vload(("v", 255), 1, c, S_WQ, "s69", 0)]
    o += [salu("s_lshr_b32", "s68", "s2", 3), salu("s_lshl_b32", "s68", "s68", 2), salu("s_add_u32", "s68", "s68", sWAVE), salu("s_lshl_b32", sCP, "s68", 8)]
    if OPT["codepf"] == 1:
        o += code_touch()
    o += srd(S_WO, "s94", "s95", 5242880)
    o += [salu("s_lshl_b32", "s68", "s6", 3), salu("s_add_u32", "s68", "s68", "s4"),
          salu("s_mul_i32", sWOS, "s68", 40960), salu("s_mul_i32", sT0, sWAVE, 10240), salu("s_add_u32", sWOS, sWOS, sT0)]
    for jj in range(OPT["jpro"]):
        for pre, ds in unit_dmas(("J", jj), sE):
            o += pre[::-1] + ds
    o += srd(S_K, "s58", "s59", 67108864) + srd(S_V, "s60", "s61", 67108864) + [salu("s_mov_b32", sW1, sT2)]
    o += srd(S_OST, "s90", "s91", WS_WOT) + srd(S_FLG, "s88", "s89", 256)
    o += [salu("s_add_u32", "s68", "s90", WS_WOT), salu("s_addc_u32", "s69", "s91", 0)] + srd(S_WOT, "s68", "s69", 2 * WOT_BLK)
    o += [salu("s_lshl_b32", sFG, "s3", 2), salu("s_lshl_b32", sFB, "s5", 6)]
    if OPT["dbgt"]:
        o += [salu("s_add_u32", sFG, sFG, 128), salu("s_add_u32", sFB, sFB, 128)]
    o += [
          valu("v_cmp_eq_u32", "vcc", 0, "v0"), valu("v_mov_b32", "v10", "0x1000"), valu("v_mov_b32", f"v{ONES}", "0x3f803f80"),
          valu("v_cndmask_b32", vFLG, "v10", 0, "vcc"),
          ]
    if OPT["one1"]:
        o += [valu("v_and_b32", "v10", 15, "v0"), valu("v_cmp_eq_u32", "vcc", 0, "v10"), valu("v_cndmask_b32", f"v{ONES}", 0, f"v{ONES}", "vcc")]
    o += [valu("v_mov_b32", f"v{ONES + r}", f"v{ONES}") for r in range(1, 4)]
    if OPT["prof"]:
        o += [salu("s_add_u32", "s68", "s90", WS_PROF), salu("s_addc_u32", "s69", "s91", 0)] + srd(S_PROF, "s68", "s69", 1 << 20)
        o += [salu("s_lshl_b32", sPROF, "s2", 2), salu("s_add_u32", sPROF, sPROF, sWAVE), salu("s_lshl_b32", sPROF, sPROF, 10)]
        o += prof_stamp(0, 8)
    o += [salu("s_lshl_b32", sKV, "s6", 5), salu("s_add_u32", sKV, sKV, "s7"), salu("s_lshl_b32", sKV, sKV, 17),
          salu("s_lshl_b32", sT0, "s71", 12),
          salu("s_lshr_b32", sROT, "s2", 3), salu("s_lshl_b32", sT1, "s2", 1), salu("s_add_u32", sROT, sROT, sT1),
          salu("s_and_b32", sROT, sROT, 0 if OPT["norot"] else 15), salu("s_lshl_b32", sROT, sROT, 13), salu("s_add_u32", sROT, sROT, sT0)]
    if OPT["tlbw"]:
        for n, (r, so) in enumerate(((S_K, sKV), (S_V, sKV), (S_WO, sWOS))):
            o += [Ins(f"buffer_load_dword v{244 + n}, off, s[{r}:{r + 3}], {so} nt", "vld", rd=[so] + regs("s", r, 4))]
    if OPT["kpro"]:
        o += kv_patterns()
        for k in [("K", 0), ("V", 0), ("K", 1)][:OPT["kpro"]]:
            for pre, ds in unit_dmas(k, sE):
                o += pre + [nop(1)] + ds
    o += [salu("s_mul_i32", sO, "s3", O_GRP), salu("s_mul_i32", sT0, "s71", 786432), salu("s_add_u32", sO, sO, sT0),
          salu("s_lshr_b32", sT0, "s4", 1), salu("s_mul_i32", sT0, sT0, 16 * 12288), salu("s_add_u32", sO, sO, sT0),
          salu("s_and_b32", sT0, "s4", 1), salu("s_mul_i32", sT0, sT0, 4 * 12288), salu("s_add_u32", sO, sO, sT0),
          salu("s_mul_i32", sT0, "s70", 2 * 12288), salu("s_add_u32", sO, sO, sT0)]
    o += [salu("s_lshl_b32", "s68", "s6", 3), salu("s_add_u32", "s68", "s68", "s4"),
          salu("s_lshr_b32", sT0, "s68", 1), salu("s_and_b32", sT1, sT0, "0x33"),
          salu("s_and_b32", "s69", sT0, 4), salu("s_lshl_b32", "s69", "s69", 1), salu("s_or_b32", sT1, sT1, "s69"),
          salu("s_and_b32", "s69", sT0, 8), salu("s_lshr_b32", "s69", "s69", 1), salu("s_or_b32", sT1, sT1, "s69"),
          salu("s_mul_i32", sWOD, sT1, 20480),
          salu("s_and_b32", sT0, "s68", 1), salu("s_lshl_b32", sT0, sT0, 11), salu("s_add_u32", sWOD, sWOD, sT0),
          salu("s_mul_i32", sT0, "s5", WOT_BLK), salu("s_add_u32", sWOD, sWOD, sT0),
          salu("s_lshl_b32", sT0, "s70", 12), salu("s_add_u32", sWOD, sWOD, sT0),
          salu("s_lshl_b32", sT0, "s71", 10), salu("s_add_u32", sWOD, sWOD, sT0),
          salu("s_mul_i32", sT0, "s70", 1310720 - 20480), salu("s_add_u32", sWOX, sWOD, sT0)]
    o += [salu("s_add_u32", "s68", "s3", "s4"), salu("s_and_b32", "s68", "s68", 3)]
    for x in by_role(sQT, "s68", TBLQ1):
        o += x if isinstance(x, list) else [x]
    cbits = struct.unpack("<I", struct.pack("<f", math.log2(math.e) / math.sqrt(128.0)))[0]
    o += [salu("s_mov_b32", sC, "0x%x" % cbits), salu("s_mov_b32", sHI, "0x5d800000" if OPT["tmax"] == 1 else "0x53800000" if OPT["tmax"] else "0x4e800000"),
          salu("s_mov_b32", sLO, "0x42200000" if OPT["tmax"] else "0x30800000"), salu("s_mov_b32", sNC, "0x%x" % (cbits | 0x80000000)),
          salu("s_mov_b32", sIT, 0)]
    if not OPT["kpro"]:
        o += kv_patterns()
    o += [salu("s_lshl_b32", "s69", "s70", 13), salu("s_mul_i32", "s68", "s71", 12288), salu("s_add_u32", "s68", "s68", XS[0]),
          valu("v_bfe_u32", "v8", i, 2, 2), valu("v_and_b32", "v9", 3, i)]
    o += [valu("v_lshl_add_u32", c, b, 8, c), valu("v_add_u32", c, KWANT[15], c), valu("v_add_u32", kA[0], "s69", c)]
    o += [valu("v_xor_b32", kA[j], j << 6, kA[0]) for j in range(1, 4)]
    o += [valu("v_lshl_add_u32", "v5", a, 2, "v8"), valu("v_lshlrev_b32", c, 8, "v5"), valu("v_and_b32", "v6", 7, "v5"),
          valu("v_lshl_add_u32", c, "v6", 5, c), valu("v_lshl_add_u32", c, "v9", 3, c),
          valu("v_add_u32", c, VWANT[0], c), valu("v_add_u32", vA[0], "s69", c)]
    o += [valu("v_xor_b32", vA[d], d << 5, vA[0]) for d in range(1, 8)]
    o += [valu("v_lshl_add_u32", c, a, 3, "v8"), valu("v_lshlrev_b32", c, 7, c),
          valu("v_and_b32", "v5", 2, "v8"), valu("v_and_b32", "v7", 1, a), valu("v_lshl_add_u32", "v5", "v7", 2, "v5"),
          valu("v_xor_b32", "v5", "v5", "v9"), valu("v_lshl_add_u32", c, "v5", 4, c), valu("v_add_u32", wA[0], "s69", c),
          valu("v_xor_b32", wA[1], 64, wA[0])]
    o += [valu("v_lshrrev_b32", "v5", 1, b), valu("v_xor_b32", "v5", "v5", a),
          valu("v_lshlrev_b32", "v5", 4, "v5"), valu("v_lshl_add_u32", c, b, 7, "v5"),
          valu("v_xor_b32", "v5", 64, c), valu("v_add_u32", xA[0], "s68", c), valu("v_add_u32", xA[1], "s68", "v5")]
    o += [salu("s_lshl_b32", "s68", "s70", 2), salu("s_lshl_b32", "s69", "s71", 3), salu("s_add_u32", "s69", "s69", WOJ_ADDR),
          valu("v_lshrrev_b32", c, 1, a), valu("v_lshlrev_b32", c, 12, c), valu("v_lshl_add_u32", c, "v6", 7, c),
          valu("v_add_u32", c, "s69", c), valu("v_add_u32", "v5", "s68", "v9"), valu("v_lshrrev_b32", "v6", 1, "v6"),
          valu("v_xor_b32", "v5", "v5", "v6"), valu("v_lshl_add_u32", vJ, "v5", 4, c)]
    o += [needvm([("W", 0, 0), ("X", 0)]), barrier()] + first_reads(0)
    return o


def acc2(pi, xy, qi):
    return ((pi * 6 + qi) * 2 + xy) * 4


def a2(st, pi, ks, xy):
    if st == 0:
        return (240 if pi == 0 else 48 + 16 * pi) + 8 * ks + 4 * xy
    return (48 if pi == 0 else 112 + 16 * pi) + 8 * ks + 4 * xy


def b2(st, qi, ks):
    return (192 if st == 0 else 0) + 8 * qi + 4 * ks


V2A = ["v%d" % i for i in range(240, 245)]


def k2_loads_A(st, pi, soff=None):
    return [vload(("a", a2(st, pi, ks, xy)), 4, V2A[pi], S2A, soff or sA2, ks * 2048 + xy * 1024, flags=SC1) for xy in range(2) for ks in range(2)]


def k2_loads_B(st, qi):
    return [vload(("a", b2(st, qi, ks)), 4, V2B[qi], S2B, sB2, ks * 1024, flags=SC1) for ks in range(2)]


def k2_lds_A(st, pi):
    out = []
    for xy in range(2):
        for ks in range(2):
            r = [r for r, (s_, p_, off) in PF2.items() if (s_, p_) == (st, pi) and (r not in ("s87", "s99") or off == 2048 * ks)][0]
            key = [k for k, rs in sPF.items() if r in rs][0]
            if key[0] == "W":
                out.append(ds_read("ds_read_b128", ("a", a2(st, pi, ks, xy)), 4, V2W, U[key]["addr"] + ks * 2048 + xy * 1024))
            elif key[0] == "P":
                out.append(ds_read("ds_read_b128", ("a", a2(st, pi, ks, xy)), 4, V2P,
                                   (0 if key[1] == 1 else PADDR[key] - D[4]) + ks * 2048 + xy * 1024))
            elif r == sPF[key][0]:
                out.append(ds_read("ds_read_b128", ("a", a2(st, pi, ks, xy)), 4, V2X, U[key]["addr"] - XS[0] + ks * 2048 + xy * 1024))
            else:
                out.append(ds_read("ds_read_b128", ("a", a2(st, pi, ks, xy)), 4, V2X, U[key]["addr"] - XS[0] + 4096 + xy * 1024))
    return out


def k2_steps(S, first, loadA, loadB, pend, check=False, late=(), final=None):
    for st in range(2):
        q0 = S.n()
        tiles = [(pi, xy, qi) for pi in range(5) for xy in range(2) for qi in range(6)]
        if final is not None and st == 1:
            tiles = [t for t in tiles if t[2] >= 3] + [t for t in tiles if t[2] < 3]
            for n, x in enumerate(final[0]):
                S.put(q0 + 2 + n, x)
            for n, x in enumerate(final[1]):
                S.put(q0 + 61 + 2 * n, x)
        for pi, xy, qi in tiles:
            for ks in range(2):
                acc = ("v", acc2(pi, xy, qi))
                S.add(mfma(16, acc, ("a", a2(st, pi, ks, xy)), ("a", b2(st, qi, ks)),
                           None if (first and st == 0 and ks == 0) else acc))
        pos = [int(0.5 + 3.75 * n) for n in range(32)]
        if pend[st]:
            ls = k2_loads_A(1 - st, 4)
            S.put(q0 + pos[0], ls[2])
            S.put(q0 + pos[1], ls[3])
            for n, x in enumerate(next_off(sA2, TA, sAB, 20480)):
                S.put(q0 + pos[1] + 1 + n, x)
        if first and st == 0:
            for n, (pre, l) in enumerate(late):
                S.put(q0 + 6 * n + 2, *pre)
                S.put(q0 + 6 * n + 3, l)
            for n, r in enumerate(k2_lds_A(1, 0) + k2_lds_A(1, 1) + k2_lds_A(1, 2)):
                S.put(q0 + 6 * n + 5 if n < 8 else q0 + 54 + 4 * (n - 8), r)
            S.put(q0 + 70, valu("v_add_u32", V2P, D[9] - D[5], V2P))
            for n, r in enumerate(k2_lds_A(1, 3)):
                S.put(q0 + 73 + 4 * n, r)
        elif loadB[st]:
            for n, l in enumerate([l for qi in range(6) for l in k2_loads_B(1 - st, qi)]):
                S.put(q0 + pos[2 + n], l)
            for n, x in enumerate(next_off(sB2, TB, sBB, 12288)):
                S.put(q0 + pos[13] + 1 + n, x)
        if loadA[st]:
            n = 14
            for pi in range(5):
                ls = k2_loads_A(st, pi)
                for x, l in enumerate(ls if pi < 4 else ls[:2]):
                    assert pos[n] >= 24 * pi + 11 + 12 * (x >> 1), (pi, x, pos[n])
                    S.put(q0 + pos[n], l)
                    n += 1
        if first and st == 1:
            S.put(q0 + 110, needvm(["ost"]), barrier())
            S.put(q0 + 111, valu("v_mov_b32", V2P, "0x100"))
            S.put(q0 + 114, atomic_add(V2P, sFG))
        if check and st == 1:
            S.put(q0 + 1, scmp("s_cmp_eq_u32", sCNT, 5), salu("s_cselect_b32", sWANT, 8, 0), salu("s_cselect_b32", sPL, sFG, "0x1000"))
            S.put(q0 + 2, poll_load(V2P, sPL))
        if check and st == 0:
            S.put(q0 + 1, valu("v_readfirstlane_b32", sQ, V2P))
            S.put(q0 + 6, salu("s_bfe_u32", sQ, sQ, "0x80008"), scmp("s_cmp_lt_u32", sQ, sWANT),
                  raw("s_cbranch_scc1 L_spin2", "branch", rd=["scc"]), label("L_spin2_back"))


def k2_first(S, late):
    seq = [(0, p) for p in range(4)] + [(1, p) for p in range(3)] + [(0, 4), (1, 3), (1, 4)]
    at = {}
    for st, pi in seq:
        at[(st, pi)] = S.n()
        for xy in range(2):
            for qi in range(6):
                for ks in range(2):
                    acc = ("v", acc2(pi, xy, qi))
                    S.add(mfma(16, acc, ("a", a2(st, pi, ks, xy)), ("a", b2(st, qi, ks)), None if (st == 0 and ks == 0) else acc))
    for n, (pre, l) in enumerate(late):
        S.put(13 * n + 2, *pre)
        S.put(13 * n + 3, l)
    assert 13 * len(late) < at[(0, 4)]
    g = 5
    for pi in range(4):
        for r in k2_lds_A(1, pi):
            while S.fixed.get(g):
                g += 1
            S.put(g, r)
            g += 4
    items = []
    for pi in range(5):
        for x, l in enumerate(k2_loads_A(0, pi, sSO)):
            items.append((l, at[(0, pi)] + 11 + 12 * (x >> 1), 240 + 24 * pi + 12 * (x >> 1)))
        for x, l in enumerate(k2_loads_A(1, pi)[:4 if pi < 4 else 2]):
            items.append((l, at[(1, pi)] + 11 + 12 * (x >> 1), 360 + 24 * pi + 12 * (x >> 1)))
    for qi in range(6):
        for ks, l in enumerate(k2_loads_B(0, qi)):
            items.append((l, at[(0, 4)] + 12 + 2 * qi + ks, 200 + 2 * qi + ks))
    items.sort(key=lambda i: i[2])
    g, lastB = 11, 0
    while items:
        c = [i for i in items if i[1] <= g]
        if c and not any(S.fixed.get(k) and any(j.kind in ("vld", "vst") for j in S.fixed[k]) for k in ((g - 2, g - 1, g + 1) if g < 180 else (g - 1, g + 1))) and not S.fixed.get(g):
            S.put(g, c[0][0])
            if sB2 in c[0][0].rd:
                lastB = g
            items.remove(c[0])
        g += 1
        assert g < 240, items
    for n, x in enumerate(next_off(sB2, TB, sBB, 12288)):
        S.put(lastB + 1 + n, x)
    if OPT["p2st"]:
        for n, g in enumerate((47, 95, 143, 167, 191, 215)):
            S.put(g, raw(f"s_memrealtime s[76:77]", wr=["s76", "s77"]), raw("s_waitcnt lgkmcnt(0)", "drainlg"), salu("s_mov_b32", f"s{101 - n}", "s76"))
    g = 226
    while S.fixed.get(g) or S.fixed.get(g + 1) or S.fixed.get(g + 3):
        g += 1
    S.put(g, needvm(["ost"]), barrier())
    S.put(g + 1, valu("v_mov_b32", V2P, "0x100"))
    S.put(g + 3, atomic_add(V2P, sFG))


def spin(name, back, dsts, soffs, conds):
    o = [label(name), salu("s_mov_b32", sSPIN, 0), label(name + "_loop"), raw("s_sleep 8")]
    o += [poll_load(d, so) for d, so in zip(dsts, soffs)]
    o += [drain(), salu("s_add_u32", sSPIN, sSPIN, 1), scmp("s_cmp_gt_u32", sSPIN, "0x20000"),
          raw(f"s_cbranch_scc1 {back}", "branch", rd=["scc"])]
    for d, (sh, msk, want) in zip(dsts, conds):
        o += [valu("v_readfirstlane_b32", sQ, d), nop(4)]
        if sh:
            o += [salu("s_lshr_b32", sQ, sQ, sh)]
        if msk:
            o += [salu("s_and_b32", sQ, sQ, msk)]
        o += [scmp("s_cmp_lt_u32", sQ, want), raw(f"s_cbranch_scc1 {name}_loop", "branch", rd=["scc"])]
    o += [raw(f"s_branch {back}", "branch")]
    return o


def phase2():
    o = [valu("v_mov_b32", V2L, vL16), salu("s_and_b32", "s85", "s4", 3), salu("s_and_b32", "s32", sWAVE, 1), salu("s_lshr_b32", "s33", sWAVE, 1),
         salu("s_mul_i32", sAB, sWAVE, 16 * 20480), salu("s_lshr_b64", f"s[{TA}:{TA + 1}]", "s[34:35]", 4)]
    o += next_off(sB2, TB, sBB, 12288)
    o += [valu("v_add_u32", V2W, sW4K, V2L), salu("s_add_u32", "s7", sW6K, XS[0]), valu("v_add_u32", V2X, "s7", V2L), valu("v_add_u32", V2P, D[4], V2W)]
    o += [scmp("s_cmp_eq_u32", "s33", 0)]
    o += [salu("s_cselect_b32", f"s{47 + q}", q, 2 - q) for q in range(3)]
    o += [salu("s_cselect_b32", f"s{36 + pi}", pi, 4 - pi) for pi in range(5)]
    o += [salu("s_mul_i32", "s34", "s32", 3)]
    o += [salu("s_add_u32", f"s{47 + q}", f"s{47 + q}", "s34") for q in range(3)]
    save = list(vR)
    vR[:] = [f"v{16 + q}" for q in range(6)]
    nl = 12 if OPT["pace"] else 8
    eg = epilogue_groups(0, lambda n: 240 - 4 * (24 - n) - (0 if OPT["pace"] else 16) if n >= 24 - nl else 32 + 4 * n, V2L)
    vR[:] = save
    b1 = [l for qi in range(6) for l in k2_loads_B(1, qi)]
    for n, (v, pre, st, imm) in enumerate(eg):
        m = b1[2 * (n - 8):2 * (n - 8) + 2] if 8 <= n < 14 else []
        o += v[:8] + m[:1] + v[8:16] + m[1:] + v[16:]
        if OPT["pace"]:
            if n % 2 == 0:
                o += eg[n // 2][1] + [eg[n // 2][2]]
        elif n < 16:
            o += pre + [st]
        if n == 15:
            o += [needvm(list(sPF))]
            for pi in range(5):
                o += [salu("s_lshl_b32", "s7", f"s{36 + pi}", 12), valu("v_add_u32", V2A[pi], "s7", V2L)]
            o += next_off(sPL, TA, sAB, 20480)
            if OPT["pace"]:
                o += next_off(sSO, TA, sAB, 20480)
            o += next_off(sA2, TA, sAB, 20480)
        if 16 <= n < 21:
            o += k2_lds_A(0, n - 16)
    late = []
    for n, g in enumerate(eg[24 - nl:]):
        st = vstore(("v", 240 - 4 * (nl - n) - (0 if OPT["pace"] else 16)), 4, V2L, S_OST, sE, g[3], tag="ost", flags=SC1)
        late.append((g[1], st))
    o += k2_loads_A(1, 4, sPL) + [valu("v_add_u32", V2P, D[9] - D[4], V2P)]
    o += next_off(sB2, TB, sBB, 12288) + [salu("s_mov_b32", sWANT, 0)]
    o += prof_stamp(1, 30)
    o += srd(S2OUT, "s92", "s93", 7864320)
    o += [salu("s_mul_i32", sOB, "s6", 192 * 2560), salu("s_mul_i32", "s7", "s84", 96 * 2560), salu("s_add_u32", sOB, sOB, "s7"),
          salu("s_mul_i32", "s7", "s5", 1280), salu("s_add_u32", sOB, sOB, "s7"),
          salu("s_mul_i32", "s7", "s85", 320), salu("s_add_u32", sOB, sOB, "s7"), salu("s_mov_b32", sCNT, 6)]
    S0 = Sched()
    if OPT["pace"]:
        k2_first(S0, late)
    else:
        k2_steps(S0, True, [True, True], [True, True], [False, True], late=late)
    S0.order_fixed()
    first = S0.build()
    S1 = Sched()
    k2_steps(S1, False, [True, True], [True, True], [True, True], check=True)
    if OPT["prof"] and not OPT["p2st"]:
        S1.put(3, raw("s_memrealtime s[76:77]", wr=["s76", "s77"]), raw("s_waitcnt lgkmcnt(0)", "drainlg"),
               salu("s_mov_b32", "s101", "s100"), salu("s_mov_b32", "s100", "s99"), salu("s_mov_b32", "s99", "s98"),
               salu("s_mov_b32", "s98", "s97"), salu("s_mov_b32", "s97", "s96"), salu("s_mov_b32", "s96", "s76"))
    S1.put(237, salu("s_sub_u32", sCNT, sCNT, 1))
    S1.order_fixed()
    loop = [label("L_k2")] + S1.build() + [scmp("s_cmp_lg_u32", sCNT, 0), raw("s_cbranch_scc1 L_k2", "branch", rd=["scc"])]
    R1, R2, i, a, V2O = V2A[0], V2A[1], V2A[2], V2A[3], V2A[4]
    setup = [salu("s_mul_i32", "s7", sWAVE, 30720), valu("v_add_u32", V2W, "s7", V2L), valu("v_lshrrev_b32", i, 4, V2L),
             valu("v_and_b32", a, 15, i), valu("v_mul_u32_u24", a, 2560, a), valu("v_lshrrev_b32", i, 4, i),
             valu("v_lshl_add_u32", V2O, i, 4, a),
             salu("s_xor_b32", sPL, sWAVE, 1), salu("s_sub_u32", sPL, sPL, sWAVE), salu("s_mul_i32", "s7", sPL, 30720),
             valu("v_add_u32", R1, "s7", V2W),
             salu("s_xor_b32", sPL, sWAVE, 3), salu("s_sub_u32", sPL, sPL, sWAVE), salu("s_mul_i32", "s7", sPL, 30720),
             valu("v_add_u32", R2, "s7", V2W)]
    sent = [(pi, xy, qi) for pi in range(5) for qi in range(3, 6) for xy in range(2)]
    wr = {t: ds_write("ds_write_b128", V2W, ("v", acc2(*t)), 4, n * 1024) for n, t in enumerate(sent)}
    S2 = Sched()
    e = []
    if OPT["redov"]:
        order = [wr[(pi, xy, qi)] for pi in range(5) for xy in range(2) for qi in range(3, 6)]
        k2_steps(S2, False, [False, False], [True, False], [True, False], final=(setup, order[:29]))
        e = order[29:]
    else:
        k2_steps(S2, False, [False, False], [True, False], [True, False])
        e = setup + list(wr.values())
    S2.order_fixed()
    last = S2.build()
    e += [needlgkm0(), barrier()] + prof_stamp(8, 234)
    for s in list(range(7, 15)) + list(range(7)):
        pi, q = divmod(s, 3)
        e += [ds_read("ds_read_b128", ("v", acc2(pi, xy, q + 3)), 4, R1, (2 * s + xy) * 1024) for xy in range(2)]
    for s in list(range(7, 15)) + list(range(7)):
        pi, q = divmod(s, 3)
        d, t = acc2(pi, 0, q), acc2(pi, 0, q + 3)
        e += [valu("v_add_f32", f"v{d + r}", f"v{d + r}", f"v{t + r}") for r in range(8)]
        if s >= 7:
            e += [ds_write("ds_write_b128", R1, ("v", acc2(pi, xy, q)), 4, (2 * s + xy) * 1024) for xy in range(2)]
    e += [needlgkm0(), barrier()]
    for s in range(8):
        pi, q = divmod(s, 3)
        for xy in range(2):
            e += [ds_read("ds_read_b128", ("v", acc2(pi, xy, q + 3)), 4, R2, (2 * (14 - s) + xy) * 1024)]
    for s in range(8):
        pi, q = divmod(s, 3)
        d0, t0 = acc2(pi, 0, q), acc2(pi, 0, q + 3)
        e += [valu("v_add_f32", f"v{d0 + r}", f"v{d0 + r}", f"v{t0 + r}") for r in range(8)]
        e += [valu("v_cvt_pk_bf16_f32", f"v{d0 + r}", f"v{d0 + 2 * r}", f"v{d0 + 2 * r + 1}") for r in range(4)]
        e += [salu("s_mul_i32", "s7", f"s{47 + q}", 40960), salu("s_lshl_b32", sPL, f"s{36 + pi}", 6),
              salu("s_add_u32", "s7", "s7", sPL), salu("s_add_u32", sSO, "s7", sOB),
              vstore(("v", d0), 4, V2O, S2OUT, sSO, 0, flags=OPT["outf"])]
    e += prof_stamp(9, 234)
    if OPT["prof"]:
        for n in range(6):
            e += [valu("v_mov_b32", "v234", 1), valu("v_mov_b32", "v235", f"s{101 - n}"), pstore(234, 2 + n), nop(4)]
    if OPT["dbgt"]:
        a, b = {1: ("s76", "s78"), 2: ("s74", "s76")}[OPT["dbgt"]]
        e += [drain(), raw("s_memrealtime s[78:79]", wr=["s78", "s79"]), raw("s_waitcnt lgkmcnt(0)", "drainlg"),
              salu("s_sub_u32", a, a, "s72"), salu("s_sub_u32", b, b, "s72"),
              scmp("s_cmp_lt_u32", "s2", 8), salu("s_cselect_b32", "s7", "s2", "0x1000"), salu("s_lshl_b32", "s7", "s7", 2),
              valu("v_mov_b32", "v0", a), valu("v_mov_b32", "v1", b),
              Ins(f"buffer_store_dword v0, {vFLG}, s[{S_FLG}:{S_FLG + 3}], s7 offen", "vst", rd=["v0", vFLG, "s7"]),
              Ins(f"buffer_store_dword v1, {vFLG}, s[{S_FLG}:{S_FLG + 3}], s7 offen offset:32", "vst", rd=["v1", vFLG, "s7"])]
    e += [label("L_end"), raw("s_endpgm")]
    sp1 = spin("L_spin1", "L_spin1_back", vPOLL[:1], [sFG], [(0, "0xff", 8)]) + spin("L_spin3", "L_spin3_back", vPOLL[1:], [sFB], [(16, 0, 128)])
    sp2 = spin("L_spin2", "L_spin2_back", [V2P], [sFG], [(8, "0xff", 8)])
    return o, first, loop, last, e, sp1, sp2


def check_pointers(pro):
    ptr = set(regs("s", 56, 8) + regs("s", 88, 8))
    dirty = set()
    for x in pro:
        if x.text.startswith("s_load"):
            continue
        if x.text.startswith(("s_mov_b32", "s_and_b32", "s_add_u32", "s_addc_u32")) and x.rd & dirty and "0xffff" in x.text:
            raise AssertionError(x.text)
        dirty |= x.wr & ptr


def kernel():
    pro = prologue()
    check_pointers(pro)
    q1 = q_phase(False)
    full = []
    for last in (False, True):
        _alt[0] = 0
        full.append(a_phase(last))
    cut = [[n for n, x in enumerate(f) if x.text == "L_CUT:"][0] for f in full]
    assert [x.text for x in full[0][:cut[0]]] == [x.text for x in full[1][:cut[1]]]
    att = [label("L_att")] + full[0][:cut[0]]
    tails = []
    for v in range(2):
        t = [label(f"L_tail{v + 1}")] + full[v][cut[v] + 1:]
        t += [raw("s_cbranch_vccnz L_slow", "branch", rd=["vcc"]), label(f"L_back{v + 1}")]
        t += [valu("v_rcp_f32", f"v{16 + qt}" if v else vR[qt], f"v{lacc(qt)}") for qt in range(6)]
        if OPT["dbgt"]:
            t += [raw(f"s_memrealtime s[{74 + 2 * v}:{75 + 2 * v}]", wr=[f"s{74 + 2 * v}", f"s{75 + 2 * v}"]), raw("s_waitcnt lgkmcnt(0)", "drainlg")]
        t += prof_stamp(29)
        if OPT["prof"]:
            t += [salu("s_add_u32", sPROF, sPROF, 240)]
        tails.append(t)
    q2 = [salu("s_mov_b32", sIT, 1), label("L_q2")] + q_phase(True) + [raw("s_branch L_att", "branch")]
    o, first, loop2, last, e, sp1, sp2 = phase2()
    slow = slow_path()
    parts = [pro, q1, att, tails[0], q2, tails[1], o, first, loop2, last, e, slow, sp1, sp2]
    waits = compute_waits([pro + q1 + att + tails[0] + q2 + att + tails[1] + o + first + loop2 + loop2 + loop2 + last + e, slow, sp1, sp2])
    done = {}
    P = [apply_waits(x, waits, done) for x in parts]
    pads = pad_hazards([P[0] + P[1] + P[2] + P[3] + P[4] + P[2] + P[5] + P[6] + P[7] + P[8] + P[8] + P[9] + P[10], P[11], P[12], P[13]])
    al = ".p2align 3\n"
    return (emit(P[0] + P[1], pads) + al + emit(P[2] + P[3] + P[4], pads) + al + emit(P[5] + P[6] + P[7], pads) + al +
            emit(P[8] + P[9] + P[10] + P[11] + P[12] + P[13], pads) + "L_endcode:\n")


def main():
    kn = NAME + "_kernel"
    s = open("cdna_kernels/" + NAME + ".s.ref").read().split("; Override launch")[0]
    s += "; @launch grid=(256,1,1) block=(256,1,1) lds=163840\n"
    s += '.amdgcn_target "amdgcn-amd-amdhsa--gfx950"\n.text\n'
    s += f".globl {kn}\n.p2align 8\n.type {kn},@function\n{kn}:\n" + kernel()
    s += f""".section .rodata,"a"
.p2align 6
.amdhsa_kernel {kn}
  .amdhsa_next_free_vgpr 512
  .amdhsa_next_free_sgpr 102
  .amdhsa_accum_offset 256
  .amdhsa_group_segment_fixed_size 0
  .amdhsa_kernarg_size 104
  .amdhsa_user_sgpr_count 2
  .amdhsa_user_sgpr_kernarg_segment_ptr 1
  .amdhsa_system_sgpr_workgroup_id_x 1
.end_amdhsa_kernel
"""
    open(sys.argv[1], "w").write(s)


main()
```

```python
import sys, math, struct
from fw3 import *
from orders import orders
import alloc3

NAME = "concat_heads__mha_block_cached__mha_block_cached__near_ridge"
OPT = dict(outf=' sc1', redov=1, one1=1, warmj=0, pk=1, pfq1=1, rot2=4, gate=0, pace=1, lead=3, xpace=0, kvf=' nt', norot=0, tlbw=0, kpro=0, kplan=0, jlate=1, dbgt=0, jpro=0, k1s=0, e10=1, t23=0, nfree=1, kstep10=134, ks1=0, kn1=0, kfirst=6, k2late=0, qsp=1, tmax=2, xnum=25, xhi=100, ctq=0, cplim=1, p2st=0, cta='', rotq1=2, gstep=2, rotq=3, early=1, uni=0, prof=0, report=False, stg=67, warmw=True, codepf=2, codepf2=12, pf='', pf0=1, pfn=3, pff='', flagbar=12, map=0)
for a in sys.argv[2:]:
    k, v = a.split("=")
    OPT[k] = type(OPT[k])(int(v)) if not isinstance(OPT[k], str) else v

KB = 1024
SC1 = " sc1"
O_GRP = 2 * 786432
WS_WOT = 50331648
WOT_BLK = 5242880
WS_PROF = 64 * 1024 * 1024

S_K, S_V, S_X, S_WQ, S_OST, S_WO, S_WOT = 8, 12, 16, 20, 24, 28, 32
sKV, sWQ, sX, sW4K, sW6K, sO, sIT, sT0, sT1, sC, sWAVE = ["s%d" % i for i in range(36, 47)]
sWOS, sWOD, sWOX, sW5K, sHI, sLO = ["s%d" % i for i in range(47, 53)]
sPROF, sE, sJ = "s53", "s54", "s55"
sQT, sWS, sXS, sW1, sNC = "s50", "s67", "s95", "s63", "s7"
sROT, sFG, sFB, sCP = "s62", "s65", "s66", "s64"
sA2, sB2, sPL, sOB, sCNT, sSO, sQ, sSH, sWANT, sSPIN = "s28", "s29", "s30", "s31", "s67", "s68", "s69", "s70", "s71", "s94"
S_PROF, S_FLG = 72, 80
sPF = {("W", 0, 0): ["s84"], ("W", 0, 1): ["s85"], ("X", 0): ["s86", "s87"], ("X", 1): ["s98", "s99"], ("W", 1, 0): ["s100"],
       ("P", 0): ["s60"], ("P", 1): ["s61"], ("P", 2): ["s101"]}
PF2 = {"s84": (0, 0, 0), "s86": (0, 1, 0), "s60": (0, 2, 0), "s101": (0, 3, 0), "s98": (0, 4, 0), "s61": (1, 0, 0),
       "s87": (1, 1, 0), "s99": (1, 1, 2048), "s85": (1, 2, 0), "s100": (1, 3, 0)}
vK = ["v%d" % i for i in range(192, 196)]
vV = ["v196", "v197"]
vW = ["v%d" % i for i in range(198, 202)]
vX = ["v%d" % i for i in range(202, 206)]
kA = ["v%d" % i for i in range(206, 210)]
vA = ["v%d" % i for i in range(210, 218)]
wA = ["v218", "v219"]
xA = ["v220", "v221"]
vJ, vL16 = "v222", "v223"
ONES = 224
EPI = 228
vR = ["v%d" % i for i in range(244, 250)]
vFLG = "v250"
vT = ["v252", "v253"]
vC2 = "v[242:243]"
vPOLL = ["v254", "v255"]

V2B = ["v245", "v246", "v247", "v248", "v249", "v251"]
V2L, V2W, V2P, V2X = "v252", "v254", "v255", "v253"
S2A, S2B, S2OUT = S_WQ, S_X, 8
TA, TB, sAB, sBB = 56, 62, "s43", "s44"

D = [i * 16 * KB for i in range(10)]
XS = [96 * KB, 120 * KB]
WOJ_ADDR = D[4]


def qacc(p, xy, qt):
    return 64 * (qt >> 1) + (2 * p + (qt & 1)) * 8 + 4 * xy


def qf(qt, p):
    return 64 * (qt >> 1) + (2 * p + (qt & 1)) * 4


def sreg(qt):
    return 64 * (qt >> 1) + 32 + 8 * (qt & 1)


def mrun(qt):
    return 64 * (qt >> 1) + 56 + (qt & 1)


def mneg(qt):
    return 64 * (qt >> 1) + 58 + (qt & 1)


def lacc(qt):
    return 64 * (qt >> 1) + 48 + 4 * (qt & 1)


ABUF = [192, 248]


def bx(qt, ks):
    return 200 + 8 * qt + 4 * ks


def kf(kt, ks):
    return 192 + 16 * kt + 4 * ks


def vf(dt):
    return 224 + 4 * dt


def oacc(qt, dt):
    return 32 * qt + 4 * dt


def kpos(k):
    n1 = OPT["kn1"]
    return 2 + OPT["ks1"] / 10.0 * min(k, n1) + OPT["kstep10"] / 10.0 * max(k - n1, 0)


def build_units():
    U = {}
    for i in range(10):
        U[("X", i)] = dict(addr=XS[i % 2], size=24 * KB, iss=i - 2.5, land=i - 1, rel=i - 0.5)
        U[("W", i, 0)] = dict(addr=D[2 * (i % 2)], size=16 * KB, iss=i - 2.5, land=i - 1, rel=i - 0.5)
        U[("W", i, 1)] = dict(addr=D[2 * (i % 2) + 1], size=16 * KB, iss=i - 2, land=i - 0.5, rel=i)
    for k, e in ((("X", 0), -4), (("W", 0, 0), -4), (("X", 1), -3), (("W", 0, 1), -2), (("W", 1, 0), -2)):
        U[k]["iss"] = e
    pages = [9, 5, 4, 6, 0, 7, 1, 8, 2, 3, 9, 4, 5, 6, 0, 1, 7, 2, 8, 3, 9, 4, 5, 6, 0, 7, 1, 8, 2, 9, 5, 4]
    if OPT["kstep10"]:
        (_, pages), kiss, leads = alloc3.plan(0, OPT["kfirst"], pos=kpos, head=[5, 9, 4, 6, 0, 7, 1, 8],
                                                 lastN={0: 23, 1: 25, 2: 25, 3: 26, 4: 24, 5: 23, 6: 23, 7: 23, 8: 24, 9: 24})
        if OPT["report"]:
            print("; leads", [round(x, 1) for x in leads])
    for u in range(32):
        key = ("K", u // 2) if u % 2 == 0 else ("V", u // 2)
        N = 10 + u // 2 + u % 2
        U[key] = dict(addr=D[pages[u]], size=16 * KB, iss=N - 5 + (u == 30), land=N - 1, rel=N)
        if OPT["kstep10"] and u >= OPT["kfirst"]:
            U[key].update(iss=kiss[u], even=u - OPT["kfirst"])
    U[("V", 1)]["iss"] = U[("K", 2)]["iss"] = 7.5
    if "even" not in U[("V", 2)]:
        U[("V", 2)]["iss"] = 8.5
    if OPT["k2late"]:
        U[("K", 2)]["iss"] = 8
    if OPT["kstep10"]:
        if OPT["kfirst"] == 8:
            U[("V", 3)]["iss"] = 8.5
        return U
    if OPT["e10"] < 2:
        U[("K", 4)]["iss"] = 10
    if OPT["e10"] < 1:
        U[("V", 3)]["iss"] = 10
    if OPT["t23"]:
        U[("W", 0, 0)]["iss"] = U[("W", 1, 1)]["iss"] = -5
    return U


def check_units(second):
    V = {k: dict(u) for k, u in U.items()}
    if second:
        V[("K", 0)]["iss"], V[("V", 0)]["iss"], V[("K", 1)]["iss"] = -4, -3, -3
    else:
        V[("J",)] = dict(addr=D[4], size=32 * KB, iss=-1, land=2, rel=3)
        V[("J", 2)] = dict(addr=D[9], size=16 * KB, iss=0, land=2, rel=3)
        V[("K", 0)]["iss"], V[("V", 0)]["iss"], V[("K", 1)]["iss"] = 3, 4, 5
    allu = [(k, u["addr"], u["addr"] + u["size"], u["iss"], u["rel"]) for k, u in V.items()]
    assert all(u["iss"] < u["land"] <= u["rel"] for u in V.values())
    if second:
        allu += [(k, u["addr"], u["addr"] + u["size"], u["iss"] - 27, u["rel"] - 27) for k, u in U.items() if k[0] in "KV" and k[1] > 2]
        allu += [(("P", n), D[p], D[p] + 16 * KB, (23, 24, 24)[n], 27) for n, p in enumerate((5, 9, 4))]
        allu += [(k, u["addr"], u["addr"] + u["size"], u["iss"] + 27, 40) for k, u in U.items() if k in sPF]
    for a in allu:
        for b in allu:
            if a is not b and a[1] < b[2] and b[1] < a[2]:
                assert a[4] <= b[3] or b[4] <= a[3], (a, b)


U = build_units()
U[("K", 0)]["iss"] = U[("V", 0)]["iss"] = U[("K", 1)]["iss"] = None
PADDR = {("P", 0): D[5], ("P", 1): D[9], ("P", 2): D[4]}
_alt = [0]


def next_st():
    _alt[0] ^= 1
    return [sT0, sT1][_alt[0]]


def unit_dmas(key, tmp=None):
    kind = key[0]
    if kind == "P":
        return [([salu("s_add_u32", "m0", sW4K, PADDR[key])], [dma(vW[m], S_WQ, sPF[key][0], 1024 * m, key, SC1) for m in range(4)])]
    if kind == "J":
        jj = key[1]
        sT = tmp
        pre = [salu("s_add_u32", sT, sWOS, jj * 128), salu("s_add_u32", "m0", sW4K, D[(4, 5, 9)[jj >> 2]] + (jj & 3) * 1024)]
        return [(pre, [dma(vX[0], S_WO, sT, 0, "J", " nt")])]
    u = U[key]
    if key in sPF:
        if kind == "W":
            return [([salu("s_add_u32", "m0", sW4K, u["addr"])], [dma(vW[m], S_WQ, sPF[key][0], 1024 * m, key, SC1) for m in range(4)])]
        return [([salu("s_add_u32", "m0", sW6K, u["addr"])], [dma(vX[m], S_X, sPF[key][0], 1024 * m, key, SC1) for m in range(4)]),
                ([salu("s_add_u32", "m0", sW6K, u["addr"] + 4096)], [dma(vX[m], S_X, sPF[key][1], 1024 * m, key, SC1) for m in range(2)])]
    sT = tmp or next_st()
    if kind in "KV":
        pre = [salu("s_add_u32", sT, sROT, key[1] * 8192), salu("s_and_b32", sT, sT, "0x1ffff"), salu("s_add_u32", sT, sT, sKV),
               salu("s_add_u32", "m0", sW4K, u["addr"])]
        if kind == "K":
            return [(pre, [dma(vK[m], S_K, sT, 1024 * m, key, OPT["kvf"]) for m in range(4)])]
        return [(pre, [dma(vV[m & 1], S_V, sT, 1024 * m, key, OPT["kvf"]) for m in range(4)])]
    if kind == "W":
        return [([salu("s_add_u32", "m0", sW4K, u["addr"])], [dma(vW[m], S_WQ, sW1 if key[2] else sWS, 1024 * m, key) for m in range(4)])]
    g0 = ([salu("s_add_u32", "m0", sW6K, u["addr"])], [dma(vX[m], S_X, sXS, 1024 * m, key) for m in range(4)])
    pre2 = [salu("s_add_u32", sT, sXS, 40960), salu("s_add_u32", "m0", sW6K, u["addr"] + 4096)]
    return [g0, (pre2, [dma(vX[m], S_X, sT, 1024 * m, key) for m in range(2)])]


def set_pf_proj(tail=False):
    o = [salu("s_add_u32", sW1, sWQ, 524288 + 128)]
    for key, rs in sPF.items():
        if key[0] == "P":
            continue
        if key[0] == "W":
            o += [salu("s_add_u32", rs[0], sWQ, key[1] * 524288 + key[2] * 128)]
        else:
            o += [salu("s_add_u32", rs[0], sX, key[1] * 128), salu("s_add_u32", rs[1], sX, key[1] * 128 + 40960)]
    return o


ORD2 = orders(16, 4, 8, 7, {1: [4], 2: [1, 1, 2, 2, 2, 0, 0], 3: [1, 2, 2, 2, 1, 0, 0], 4: [2, 1, 2, 2, 1, 0, 0]}[OPT["rot2"]])[0] if OPT["rot2"] else [list(range(16))] * 4
ORDQ = orders(10, 4, None, 0, {1: [1, 1, 2, 2, 2, 1, 1], 2: [1, 1, 4], 3: [1, 1, 2, 2, 1, 1, 1, 1]}[OPT["rotq"]])[0] if OPT["rotq"] else [list(range(10))] * 4
assert all(o[:2] == [0, 1] for o in ORDQ)
TBLQ = [sum(x << (4 * n) for n, x in enumerate(o[2:])) for o in ORDQ]
ORDQ1 = {0: ORDQ, 1: orders(10, 4, None, 0, [4])[0], 2: orders(10, 4, None, 0, [2, 2, 2, 1, 1, 1, 1])[0], 3: orders(10, 4, None, 0, [4, 0, 1, 1, 1, 1, 1, 1])[0]}[OPT["rotq1"]]
TBLQ1 = [sum(x << (4 * n) for n, x in enumerate(o[2:])) for o in ORDQ1]
TBLQ0 = [o[0] | o[1] << 4 for o in ORDQ1]


def by_role(dst, role, consts):
    o = [salu("s_mov_b32", dst, "0x%x" % consts[0])]
    for r in range(1, 4):
        o += [[scmp("s_cmp_eq_u32", role, r), salu("s_cselect_b32", dst, "0x%x" % consts[r], dst)]]
    return o


TBL2 = [sum(x << (4 * n) for n, x in enumerate(o)) for o in ORD2]


def next_off(dst, tbl, base, stride):
    return [salu("s_and_b32", dst, f"s{tbl}", 15), salu("s_lshr_b64", f"s[{tbl}:{tbl + 1}]", f"s[{tbl}:{tbl + 1}]", 4),
            salu("s_mul_i32", dst, dst, stride), salu("s_add_u32", dst, dst, base)]


def set_pf_out():
    o = [salu("s_and_b32", "s68", "s4", 3), salu("s_mul_i32", "s68", "s68", 1310720), salu("s_mul_i32", "s69", "s5", WOT_BLK),
         salu("s_add_u32", "s68", "s68", "s69"), salu("s_add_u32", "s68", "s68", WS_WOT)]
    o += [[salu("s_add_u32", f"s{S_WQ}", "s90", "s68"), salu("s_addc_u32", "s69", "s91", 0)]]
    o += [salu("s_and_b32", f"s{S_WQ + 1}", "s69", "0xffff"), salu("s_mov_b32", f"s{S_WQ + 2}", 1310720),
          salu("s_mov_b32", f"s{S_X}", f"s{S_WQ}"), salu("s_mov_b32", f"s{S_X + 1}", f"s{S_WQ + 1}"), salu("s_mov_b32", f"s{S_X + 2}", 1310720)]
    o += [salu("s_lshr_b32", "s70", sWAVE, 1), salu("s_mul_i32", "s68", sWAVE, 16 * 20480), salu("s_lshl_b32", "s69", "s70", 14),
          salu("s_add_u32", "s68", "s68", "s69"), salu("s_lshl_b32", "s69", "s70", 13), salu("s_sub_u32", "s69", 4096, "s69")]
    o += [salu("s_add_u32", "s70", "s3", "s4"), salu("s_and_b32", "s70", "s70", 3),
          salu("s_mov_b32", "s34", "0x%x" % (TBL2[0] & 0xffffffff)), salu("s_mov_b32", "s35", "0x%x" % (TBL2[0] >> 32))]
    for r in range(1, 4):
        o += [[scmp("s_cmp_eq_u32", "s70", r), salu("s_cselect_b32", "s34", "0x%x" % (TBL2[r] & 0xffffffff), "s34"),
               salu("s_cselect_b32", "s35", "0x%x" % (TBL2[r] >> 32), "s35")]]
    o += [salu("s_and_b32", "s70", "s34", 15), salu("s_mul_i32", "s70", "s70", 20480), salu("s_add_u32", "s70", "s70", "s68"),
          salu("s_bfe_u32", "s71", "s34", "0x40004"), salu("s_mul_i32", "s71", "s71", 20480), salu("s_add_u32", "s71", "s71", "s68")]
    for r, (st, pi, off) in PF2.items():
        o += [salu("s_mul_i32", r, "s69", pi), salu("s_add_u32", r, r, "s71" if st else "s70")]
        if off:
            o += [salu("s_add_u32", r, r, off)]
    return o


def groups_at(iss):
    order = {"W": 0, "X": 1, "K": 2, "V": 2}
    keys = sorted([k for k, u in U.items() if u["iss"] is not None and u["iss"] % 27 == iss % 27 and "even" not in u],
                  key=lambda k: (U[k]["land"] - U[k]["iss"], order[k[0]], k))
    return [g for k in keys for g in unit_dmas(k)]


def place_dmas(S, groups, cand, lo):
    ci = 0
    for pre, ds in groups:
        g = cand[ci]
        for n, p in enumerate(pre[:-1]):
            S.put(max(lo, g - len(pre) + n), p)
        for d in ds:
            d.m0 = pre[-1]
            S.put(cand[ci], d)
            ci += 1


def fix_m0(S):
    cur, prev = None, -2
    for g in sorted(S.fixed):
        for d in [x for x in S.fixed[g] if x.kind == "dma"]:
            if d.m0.text != cur:
                m = Ins(d.m0.text, "salu", rd=d.m0.rd, wr=d.m0.wr)
                if g - 1 > prev and not any(x.kind in ("bar", "branch") for x in S.fixed.get(g - 1, [])):
                    S.put(g - 1, m)
                else:
                    S.fixed[g].insert(S.fixed[g].index(d), m)
                cur = d.m0.text
            prev = g
        if any(x.kind == "label" for x in S.fixed[g]):
            cur = None


def tags_for(n):
    t = [k for k, u in U.items() if (u["land"] - n) % 27 == 0]
    if n == OPT["flagbar"]:
        t += ["ost", "jst"]
    if n == 2:
        t += ["J"]
    return t


def atomic_add(vdata, soff):
    return Ins(f"buffer_atomic_add {vdata}, {vFLG}, s[{S_FLG}:{S_FLG + 3}], {soff} offen sc1", "atomic",
               rd=[vdata, vFLG, soff] + regs("s", S_FLG, 4), tag="flag")


def poll_load(vdst, soff):
    return Ins(f"buffer_load_dword {vdst}, off, s[{S_FLG}:{S_FLG + 3}], {soff} sc1", "vld", rd=[soff] + regs("s", S_FLG, 4), wr=[vdst])


class Win:
    def __init__(self, rs, init):
        self.rs = rs
        self.cur = init

    def move(self, new):
        d = (new - self.cur) & 0xffffffff
        self.cur = new
        return [valu("v_add_u32", r, "0x%x" % d, r) for r in self.rs] if d else []


def plan_windows(addrs, span):
    want = []
    i = 0
    while i < len(addrs):
        lo = hi = addrs[i]
        j = i + 1
        while j < len(addrs) and max(hi, addrs[j]) - min(lo, addrs[j]) + span < 65536:
            lo, hi = min(lo, addrs[j]), max(hi, addrs[j])
            j += 1
        want += [lo] * (j - i)
        i = j
    return want


KWANT = plan_windows([U[("K", t)]["addr"] for t in range(16)], 4096)
VWANT = plan_windows([U[("V", t)]["addr"] for t in range(16)], 4096)
check_units(False)
check_units(True)


def pstore(v0, idx):
    return Ins(f"buffer_store_dwordx2 v[{v0}:{v0 + 1}], off, s[{S_PROF}:{S_PROF + 3}], {sPROF} offset:{8 * idx}", "vst",
               rd=[f"v{v0}", f"v{v0 + 1}", sPROF] + regs("s", S_PROF, 4))


def prof_stamp(idx, v0=252):
    if not OPT["prof"]:
        return []
    return [raw("s_memtime s[76:77]", "other", wr=["s76", "s77"]),
            raw("s_memrealtime s[78:79]", "other", wr=["s78", "s79"]),
            raw("s_waitcnt lgkmcnt(0)", "drainlg"),
            valu("v_mov_b32", f"v{v0}", "s76"),
            valu("v_mov_b32", f"v{v0 + 1}", "s78"),
            pstore(v0, idx)]


def bar_seq(tags, idx):
    if OPT["prof"] < 2:
        return [needboth(tags), barrier()] + prof_stamp(idx)
    return [raw("s_memtime s[58:59]", "other", wr=["s58", "s59"]), raw("s_waitcnt lgkmcnt(0)", "drainlg"),
            needboth(tags), barrier(),
            raw("s_memtime s[76:77]", "other", wr=["s76", "s77"]),
            raw("s_memrealtime s[78:79]", "other", wr=["s78", "s79"]),
            raw("s_waitcnt lgkmcnt(0)", "drainlg"), salu("s_sub_u32", "s76", "s76", "s58"),
            valu("v_mov_b32", "v252", "s76"), valu("v_mov_b32", "v253", "s78"), pstore(252, idx)]


def a_read(i, dt, ks, t):
    p, xy = dt >> 1, dt & 1
    off = U[("W", i, p >> 1)]["addr"] + ks * 4096 + t * 512 + xy * 8
    return ds_read("ds_read_b64_tr_b16", ("a", ABUF[dt % 2] + 4 * ks + 2 * t), 2, wA[p & 1], off)


def first_reads(i):
    ax = U[("X", i)]["addr"] - XS[0]

    def A(ks, t):
        return a_read(i, 0, ks, t)

    def B(qt, ks):
        return ds_read("ds_read_b128", ("a", bx(qt, ks)), 4, xA[ks], ax + qt * 2048)
    return [A(0, 0), A(0, 1), B(0, 0), A(1, 0), A(1, 1), B(0, 1)] + [B(qt, ks) for qt in range(1, 6) for ks in range(2)]


def k_read(t, j):
    kt, ks = j >> 2, j & 3
    return ds_read("ds_read_b128", ("a", kf(kt, ks)), 4, kA[ks], U[("K", t)]["addr"] - KWANT[t] + kt * 4096)


def epilogue_groups(tmp, dst=None, vaddr=None):
    groups = []
    n = 0
    for T in range(3):
        for ph in range(2):
            for qs in range(2):
                for pl in range(2):
                    qt = 2 * T + qs
                    tb = tmp + 4 * (n % 3)
                    src = oacc(qt, 4 * ph + 2 * pl)
                    db = tb if dst is None or dst(n) is None else dst(n)
                    rd = [valu("v_accvgpr_read_b32", f"v{tb + i}", f"a{src + i}") for i in range(8)]
                    mu = [valu("v_mul_f32", f"v{tb + i}", vR[qt], f"v{tb + i}") for i in range(8)]
                    cv = [valu("v_cvt_pk_bf16_f32", f"v{db + i}", f"v{tb + 2 * i}", f"v{tb + 2 * i + 1}") for i in range(4)]
                    pre = [salu("s_add_u32", sE, sO, ph * 12288 + T * 4096)] if qs == 0 and pl == 0 else []
                    imm = qs * 2048 + pl * 1024
                    groups.append((rd + mu + cv, pre, vstore(("v", db), 4, vaddr or vL16, S_OST, sE, imm, tag="ost", flags=SC1), imm))
                    n += 1
    return groups


def conv_items(T, ps, packed=()):
    out = []
    for p in ps:
        for qs in range(2):
            R, Dd = qacc(p, 0, 2 * T + qs), qf(2 * T + qs, p)
            if OPT["tmax"]:
                pass
            elif p in packed:
                out += [(p, qs, valu("v_pk_mul_f32", f"v[{R + x}:{R + x + 1}]", f"v[{R + x}:{R + x + 1}]", "s[86:87]" if False else vC2)) for x in range(0, 8, 2)]
            else:
                out += [(p, qs, valu("v_mul_f32", f"v{R + x}", sC, f"v{R + x}")) for x in range(8)]
            out += [(p, qs, valu("v_cvt_pk_bf16_f32", f"v{Dd + x}", f"v{R + 2 * x}", f"v{R + 2 * x + 1}")) for x in range(4)]
    return out


def touch_code(S, g, base, st, va, vd):
    S.put(g, salu("s_add_u32", st, sCP, base))
    S.put(g + 1, salu("s_min_u32", st, st, "L_endcode-L_pc-256"))
    S.put(g + 2, valu("v_and_b32", va, 16, vL16), valu("v_lshlrev_b32", va, 3, va))
    S.put(g + 3, valu("v_add_u32", va, st, va))
    return Ins(f"global_load_dword {vd}, {va}, s[96:97]", "vld", rd=[va, "s96", "s97"], wr=[vd])


def q_phase(second):
    S = Sched()
    extra, mid = {}, {}
    if not second:
        jp = OPT["jpro"]
        if jp == 0:
            extra[0] = [g for jj in range(5) for g in unit_dmas(("J", jj), sE)]
            extra[1] = [g for jj in range(5, 10) for g in unit_dmas(("J", jj), sE)]
        elif jp < 10:
            extra[1] = [g for jj in range(jp, 10) for g in unit_dmas(("J", jj), sE)]
        kv = [unit_dmas(k, sE) for k in [("K", 0), ("V", 0), ("K", 1)]]
        if OPT["kplan"] == 0:
            extra[4], extra[5], extra[6] = kv
        elif OPT["kplan"] == 1:
            extra[7], mid[8] = kv[0], kv[1]
            extra[8] = kv[2]
        elif OPT["kplan"] == 2:
            extra[4], extra[7], mid[8] = kv
        elif OPT["kplan"] == 4:
            extra[5], extra[6], extra[7] = kv
        elif OPT["kplan"] == 5:
            extra[4], extra[6], extra[7] = kv
        elif OPT["kplan"] == 3:
            extra[5], extra[7], mid[8] = kv
    for i in range(10):
        q0 = S.n()
        for dt in range(8):
            for qt in range(6):
                for ks in range(2):
                    acc = ("v", qacc(dt >> 1, dt & 1, qt))
                    S.add(mfma(16, acc, ("a", ABUF[dt % 2] + 4 * ks), ("a", bx(qt, ks)), None if (i == 0 and ks == 0) else acc))
        for dt in range(1, 8):
            gaps = [4, 5, 6, 7] if dt == 1 else [0, 2, 3, 4]
            for n, (ks, t) in enumerate([(0, 0), (0, 1), (1, 0), (1, 1)]):
                S.put(q0 + 12 * (dt - 1) + gaps[n], a_read(i, dt, ks, t))
        S.put(q0 + 35, needboth(tags_for(i - 0.5)), barrier())
        S.put(q0 + 83, *bar_seq(tags_for(i), 2 + i))
        if i < 9:
            for n, r in enumerate(first_reads(i + 1)):
                S.put(q0 + 84 + n, r)
        else:
            kw = Win(kA, KWANT[15])
            mv = kw.move(KWANT[0])
            S.put(q0 + 80, *mv[:2])
            S.put(q0 + 82, *mv[2:])
            for j in range(8):
                S.put(q0 + 84 + j, k_read(0, j))
        if i <= 7:
            for n, x in enumerate([salu("s_bfe_u32", sXS, sQT, "0x%x" % (0x40000 + 4 * i)), salu("s_lshl_b32", sWS, sXS, 19),
                                   salu("s_add_u32", sWS, sWS, sWQ), salu("s_lshl_b32", sXS, sXS, 7), salu("s_add_u32", sXS, sXS, sX),
                                   salu("s_add_u32", sW1, sWS, 128)]):
                S.put(q0 + 26 + n, x)
        early = groups_at(i - 1)
        place_dmas(S, early + mid.get(i, []), [q0 + g for g in ((9, 17, 25, 33) if OPT["qsp"] and i == 9 else (9, 13, 17, 21, 25, 29, 31, 33))], q0)
        late = groups_at(i - 0.5) + extra.get(i, [])
        if i == 8 and 8 in extra:
            late = extra[8] + groups_at(i - 0.5)
        cand = [q0 + 37 + 4 * x for x in range(12)]
        nd = sum(len(g[1]) for g in late)
        if nd > 12:
            cand = sorted(cand + [q0 + 67, q0 + 71, q0 + 75, q0 + 79][:nd - 12])
        if OPT["qsp"] and i >= 8 and nd:
            allowed = [37, 41, 43, 45, 47, 49, 53, 55, 57, 59, 61, 65, 67, 69, 71, 73, 77, 79, 81]
            cand = [q0 + allowed[round(x * (len(allowed) - 1) / max(nd - 1, 1))] for x in range(nd)]
        place_dmas(S, late, cand, q0 + 35)
    if not second:
        for jj in range(10):
            q0 = 96 * 3
            if jj == 8:
                S.put(q0 + 65, valu("v_add_u32", vJ, D[9] - D[4] - 2 * 16384, vJ))
            for tt in range(2):
                g = q0 + [10, 11, 18, 19, 22, 23, 30, 31, 34, 42, 43, 46, 47, 54, 55, 58, 66, 67, 70, 71][2 * jj + tt]
                S.put(g, ds_read("ds_read_b64_tr_b16", ("a", 4 * jj + 2 * tt), 2, vJ, (jj >> 2) * 16384 + (jj & 3) * 1024 + tt * 8192))
            nq, pair = divmod(2 * jj, 5)
            g = 96 * (4 + jj // 3) + [19, 25, 31][jj % 3]
            if OPT["jlate"]:
                g = 96 * (3 + jj // 2) + ([79, 82] if (3 + jj // 2) in extra else [77, 81])[jj % 2]
            S.put(g - 1, salu("s_add_u32", sJ, sWOX if pair == 4 else sWOD, nq * 1310720 + pair * 4096))
            S.put(g, vstore(("a", 4 * jj), 4, vL16, S_WOT, sJ, 0, tag="jst", flags=SC1))
    if not second and OPT["ctq"]:
        q0 = 96 * OPT["ctq"]
        S.put(q0 + 33, touch_code(S, q0 + 18, "L_att-L_pc", sJ, vT[0], vT[1]))
    if second:
        eg = epilogue_groups(EPI)
        ep = []
        for i in range(8):
            for g in eg[3 * i:3 * i + 3]:
                ep += [(x, 96 * i, None) for x in g[0]]
            for g in eg[3 * i:3 * i + 3]:
                ep += [(x, 96 * i + OPT["stg"], None) for x in g[1] + [g[2]]]
        ep[-1] = (ep[-1][0], ep[-1][1], 96 * 9 - 1)
        S.stream(ep)
        S.put(96 * 9 + 2, salu("s_add_u32", sO, sO, 8 * 12288))
    q0 = 96 * 9
    g = q0 + 2
    for x in ([salu("s_add_u32", sWQ, sWQ, 512)] + set_pf_proj(True) + [salu("s_add_u32", "s68", "s3", "s4"), salu("s_and_b32", "s68", "s68", 3)] + by_role(sQT, "s68", TBLQ) if not second else set_pf_out()):
        S.put(g, *(x if isinstance(x, list) else [x]))
        g += 1 if g < q0 + 94 else 0
        while g in (q0 + 35, q0 + 83) or any(x.kind == "salu" for x in S.fixed.get(g, [])):
            g += 1
    if second:
        S.stream([(valu("v_mov_b32", r, vL16), q0 + 2, None) for r in vW + vX])
    if not OPT["tmax"]:
        S.put(q0 + 7, valu("v_mov_b32", "v242", sC), valu("v_mov_b32", "v243", sC))
    S.stream([(x, min(q0 + 12 * (2 * p + 1) + 2 * qs + 1 + 2, q0 + 95), None) for p, qs, x in conv_items(0, range(4))])
    if OPT["tmax"]:
        for T in (1, 2):
            S.stream([(x, q0 + 12 * (2 * p + 1) + 4 * T + 2 * qs + 1 + 2, None) for p, qs, x in conv_items(T, range(3))])
    S.put(-1, *prof_stamp(1))
    fix_m0(S)
    return S.finish(lead=first_reads(0), report=OPT["report"])


def lspread(qt, tmp):
    l = f"v{lacc(qt)}"
    return [valu("v_mov_b32", tmp, l), perm("v_permlane32_swap_b32", tmp, l), valu("v_add_f32", l, l, tmp),
            valu("v_mov_b32", tmp, l), perm("v_permlane16_swap_b32", tmp, l), valu("v_add_f32", l, l, tmp)]


def interleave(a, b):
    return [x for p in zip(a, b) for x in p]


def lcheck():
    l = [f"v{lacc(qt)}" for qt in range(6)]
    if OPT["tmax"] == 2:
        return [valu("v_add_f32", vT[0], l[0], l[1]), valu("v_add_f32", vT[1], l[2], l[3]), valu("v_add_f32", vT[0], vT[0], l[4]),
                valu("v_add_f32", vT[1], vT[1], l[5]), valu("v_add_f32", vT[0], vT[0], vT[1]), valu("v_cmp_ngt_f32", "vcc", sHI, vT[0])]
    if OPT["tmax"]:
        x = [f"v{mrun(qt)}" for qt in range(6)]
        return ([valu("v_fma_f32", x[q], x[q], sC, f"v{mneg(q)}") for q in range(6)] +
                [valu("v_add_f32", vT[0], l[0], l[1]), valu("v_max3_f32", vT[1], x[0], x[1], x[2]),
                 valu("v_add_f32", vT[0], vT[0], l[2]), valu("v_max3_f32", vT[1], vT[1], x[3], x[4]),
                 valu("v_add_f32", vT[0], vT[0], l[3]), valu("v_add_f32", vT[0], vT[0], l[4]),
                 valu("v_max_f32", vT[1], vT[1], x[5]), valu("v_add_f32", vT[0], vT[0], l[5]),
                 valu("v_cmp_ngt_f32", "s[56:57]", sLO, vT[1]),
                 valu("v_cmp_ngt_f32", "vcc", sHI, vT[0]),
                 salu("s_or_b64", "vcc", "vcc", "s[56:57]")])
    return [valu("v_add_f32", vT[0], l[0], l[1]), valu("v_min3_f32", vT[1], l[0], l[1], l[2]),
            valu("v_add_f32", vT[0], vT[0], l[2]), valu("v_min3_f32", vT[1], vT[1], l[3], l[4]),
            valu("v_add_f32", vT[0], vT[0], l[3]), valu("v_add_f32", vT[0], vT[0], l[4]),
            valu("v_min_f32", vT[1], vT[1], l[5]), valu("v_add_f32", vT[0], vT[0], l[5]),
            valu("v_cmp_nlt_f32", "s[56:57]", sLO, vT[1]),
            valu("v_cmp_ngt_f32", "vcc", sHI, vT[0]),
            salu("s_or_b64", "vcc", "vcc", "s[56:57]")]


def a_phase(last):
    S = Sched()
    qk = [[0] * 3 for _ in range(16)]
    pv = [[0] * 3 for _ in range(16)]

    def QK(t, T):
        qk[t][T] = S.n()
        for qs in range(2):
            for kt in range(2):
                s = ("v", sreg(2 * T + qs) + 4 * kt)
                for ks in range(4):
                    S.add(mfma(16, s, ("a", kf(kt, ks)), ("v", qf(2 * T + qs, ks)), None if ks == 0 else s))

    def PV(t, T):
        pv[t][T] = S.n()
        sums = []
        for qs in range(2):
            l = ("v", lacc(2 * T + qs))
            sums.append(mfma(16, l, ("v", ONES), ("v", sreg(2 * T + qs)), None if t == 0 else l))
        if t == 15:
            for m in sums:
                S.add(m)
        for dt in range(8):
            for qs in range(2):
                o = ("a", oacc(2 * T + qs, dt))
                S.add(mfma(16, o, ("a", vf(dt)), ("v", sreg(2 * T + qs)), None if t == 0 else o))
        if t < 15:
            for m in sums:
                S.add(m)

    for t in range(16):
        QK(t, 0)
        if t:
            PV(t - 1, 1)
        QK(t, 1)
        if t:
            PV(t - 1, 2)
        QK(t, 2)
        PV(t, 0)
    PV(15, 1)
    PV(15, 2)
    bar = {}
    kw, vw = Win(kA, KWANT[0]), Win(vA, VWANT[0])
    for t in range(16):
        g0 = pv[t - 1][2] if t else qk[0][1]
        bar[10 + t] = g0 - 1
        S.put(g0 - 1, *bar_seq(tags_for(10 + t), 12 + t))
        if t == 13:
            S.put(g0 - 1, scmp("s_cmp_eq_u32", sIT, 1), raw("s_cbranch_scc1 L_tail2", "branch", rd=["scc"]), label("L_CUT"))
        for n, m in enumerate(vw.move(VWANT[t])):
            S.put(g0 - 14 + 3 * (n // 2), m)
        for dt in range(8):
            for tt in range(2):
                S.put(g0 + 4 * dt + 1 + 2 * tt,
                      ds_read("ds_read_b64_tr_b16", ("a", vf(dt) + 2 * tt), 2, vA[dt], U[("V", t)]["addr"] - VWANT[t] + tt * 4096))
        if t < 15:
            for n, m in enumerate(kw.move(KWANT[t + 1])):
                S.put((qk[t][0] + 9 if t else qk[0][2] + 2) + (3 if t else 2) * (n // 2), m)
            for j in range(8):
                S.put(qk[t][2] + [8, 10, 12, 14, 17, 19, 21, 23][j], k_read(t + 1, j))
    if not last:
        S.stream([(m, pv[15][0], None) for m in vw.move(VWANT[0])])
    bar[26] = pv[15][1] - 1
    S.put(bar[26], *(prof_stamp(28) if last else bar_seq(tags_for(26), 28)))
    fr = [] if last else first_reads(0)
    for n, r in enumerate(fr[:10]):
        S.put(pv[15][1] + [1, 3, 5, 7, 9, 11, 13, 15, 16, 17][n], r)
    for n, r in enumerate(fr[10:]):
        S.put(pv[15][2] + 3 + 2 * n, r)
    stream = sorted([k for k, u in U.items() if "even" in u], key=lambda k: U[k]["even"])
    nk = len(stream)
    stream += [("P", 0), ("P", 1), ("P", 2)] if last else [("K", 0), ("V", 0), ("K", 1)]
    for e, key in enumerate(stream):
        cand = []
        for m in range(4):
            g = int(kpos(4 * e + m))
            while S.used(g, False) > 0 or g - 1 in bar.values():
                g += 1
            cand.append(g)
        lo = bar.get(U[key]["iss"] if e < nk else (23, 24, 24)[e - nk], -2) + 1
        assert cand[0] > lo + (3 if e >= nk else 0), (key, cand, lo)
        if e == nk:
            S.put(cand[0] - 5, salu("s_add_u32", sKV, sKV, 262144))
        place_dmas(S, unit_dmas(key, sE if e >= nk else None), cand, lo)
    for n in range(24, 27):
        groups = groups_at(n - 1)
        nd = sum(len(g[1]) for g in groups)
        a, b = bar[n - 1] + 5, bar[n] - 1
        cand = []
        for x in range(nd):
            g = a + (b - a) * x // nd
            while any(i.kind in MEMK for k in (g - 1, g, g + 1) for i in S.fixed.get(k, []) if k == g or i.kind == "dma") or g in cand:
                g += 1
            cand.append(g)
        assert cand[-1] < bar[n]
        place_dmas(S, groups, cand, bar[n - 1] + 1)
    if OPT["xpace"]:
        for t in range(1, 14):
            for T in range(3):
                S.put(pv[t][T] + 17, nop(OPT["xpace"]))
                S.put(qk[t][T] + 15, nop(OPT["xpace"]))
    g = bar[OPT["flagbar"]] + 2
    S.put(g - 1, scmp("s_cmp_eq_u32", sIT, 0), salu("s_cselect_b32", sE, sFB, sFG), salu("s_cselect_b32", sJ, "0x10000", 1))
    S.put(g + 1, valu("v_mov_b32", f"v{EPI}", sJ))
    S.put(g + 4, atomic_add(f"v{EPI}", sE))
    g = qk[12 - OPT['t23']][0]
    S.put(g + 1, scmp("s_cmp_eq_u32", sIT, 1), salu("s_cselect_b32", sE, sFB, "0x1000"))
    S.put(g + 3, poll_load(vPOLL[1], sE))
    g = qk[13 - OPT['t23']][0]
    S.put(g + 1, salu("s_lshl_b32", sWANT, sIT, 23), valu("v_readfirstlane_b32", sQ, vPOLL[1]))
    S.put(g + 4, scmp("s_cmp_lt_u32", sQ, sWANT), raw("s_cbranch_scc1 L_spin3", "branch", rd=["scc"]), label("L_spin3_back"))
    if last:
        g = bar[25] + 2
        S.put(g, poll_load(vPOLL[0], sFG))
        su = [salu("s_lshr_b32", "s84", "s4", 2), salu("s_mul_i32", "s7", "s3", O_GRP), salu("s_mul_i32", "s58", "s84", 786432),
              salu("s_add_u32", "s7", "s7", "s58"), [salu("s_add_u32", f"s{S2B}", "s90", "s7"), salu("s_addc_u32", "s59", "s91", 0)],
              salu("s_and_b32", f"s{S2B + 1}", "s59", "0xffff"), salu("s_mov_b32", f"s{S2B + 2}", 786432),
              salu("s_mul_i32", sBB, sWAVE, 16 * 12288), salu("s_mov_b64", f"s[{TB}:{TB + 1}]", "s[34:35]")] + next_off(sB2, TB, sBB, 12288)
        su += [salu("s_and_b32", "s58", sWAVE, 1), salu("s_mul_i32", "s58", "s58", 3 * 2048), salu("s_sub_u32", "s59", 3 * 2048, "s58"),
               salu("s_lshr_b32", "s86", sWAVE, 1), salu("s_lshl_b32", "s86", "s86", 12), salu("s_add_u32", "s58", "s58", "s86"),
               salu("s_add_u32", "s59", "s59", "s86"), salu("s_sub_u32", "s86", 2048, "s86")]
        g += 1
        for x in su:
            while any(i.kind == "salu" for i in S.fixed.get(g, [])):
                g += 1
            S.put(g, *(x if isinstance(x, list) else [x]))
            g += 1
        va = [valu("v_add_u32", V2B[0], "s58", vL16), valu("v_add_u32", V2B[3], "s59", vL16)]
        for q in (1, 2):
            va += [valu("v_add_u32", V2B[q], "s86", V2B[q - 1]), valu("v_add_u32", V2B[3 + q], "s86", V2B[2 + q])]
        S.stream([(x, g, pv[15][1] - 3) for x in va])
        g = pv[15][0] + 12
        S.put(g, valu("v_readfirstlane_b32", sQ, vPOLL[0]))
        S.put(g + 3, salu("s_and_b32", sQ, sQ, "0xff"), scmp("s_cmp_lt_u32", sQ, 8),
              raw("s_cbranch_scc1 L_spin1", "branch", rd=["scc"]), label("L_spin1_back"))
        for n, l in enumerate([l for qi in range(6) for l in k2_loads_B(0, qi)]):
            S.put(pv[15][1] + 1 + 2 * n if n < 8 else pv[15][2] + 3 + 3 * (n - 8), l)
    for n, t in enumerate([int(x) for x in OPT["cta"].split(",") if x]):
        g = pv[t][0]
        while any(S.fixed.get(k) for k in range(g, g + 6)):
            g += 1
        S.put(g + 5, touch_code(S, g, f"L_att-L_pc+{(n + 1) * 12288}", sJ, f"v{EPI + 4}", f"v{EPI + 5}"))
    if OPT["codepf2"]:
        g = qk[OPT["codepf2"]][0] - 6
        S.put(g - 2, salu("s_mul_i32", sJ, sIT, "L_tail2-L_tail1"))
        S.put(g - 1, salu("s_add_u32", sJ, sJ, "L_tail1-L_pc"))
        S.put(g, salu("s_add_u32", sJ, sJ, sCP))
        S.put(g + 1, salu("s_min_u32", sJ, sJ, "L_endcode-L_pc-256"))
        S.put(g + 2, valu("v_and_b32", f"v{EPI + 2}", 16, vL16), valu("v_lshlrev_b32", f"v{EPI + 2}", 3, f"v{EPI + 2}"))
        S.put(g + 3, valu("v_add_u32", f"v{EPI + 2}", sJ, f"v{EPI + 2}"))
        S.put(g + 5, Ins(f"global_load_dword v{EPI + 3}, v{EPI + 2}, s[96:97]", "vld", rd=[f"v{EPI + 2}", "s96", "s97"], wr=[f"v{EPI + 3}"]))
    for T in (1, 2):
        if OPT["pk"] and not OPT["tmax"]:
            nfree = OPT["nfree"] if T == 1 else 0
            S.stream([(x, -1, None) for p, qs, x in conv_items(T, range(nfree))] +
                     [(x, qk[0][T] - 1, qk[0][T] - 1) for p, qs, x in conv_items(T, range(nfree, 4), packed=range(4))])
        else:
            c = [(x, -1, None) for p, qs, x in conv_items(T, range(3 if OPT["tmax"] else 0, 4))]
            c[-1] = (c[-1][0], -1, qk[0][T] - 1)
            S.stream(c)
    fin = []
    if OPT["one1"]:
        for T in range(3):
            fin += [(x, [pv[15][1] + 12, pv[15][2], pv[15][2] + 4][T], None) for x in interleave(lspread(2 * T, f"v{lacc(2 * T) + 1}"), lspread(2 * T + 1, f"v{lacc(2 * T + 1) + 1}"))]
    S.stream(fin + [(x, pv[15][2] + 4, None) for x in lcheck()])
    units = []
    for t in range(16):
        for qt in range(6):
            s = sreg(qt)
            T, qs = qt >> 1, qt & 1
            dl = pv[t][T] + qs - 2
            units.append(dict(e=qk[t][T] + 8 * qs + 7 + 2,
                              exps=[valu("v_exp_f32", f"v{s + r}", f"v{s + r}") for r in range(8)],
                              cvts=[(valu("v_cvt_pk_bf16_f32", f"v{s + r}", f"v{s + 2 * r}", f"v{s + 2 * r + 1}"), 2 * r + 2, dl) for r in range(4)]))
    if OPT["tmax"]:
        for n, u in enumerate(units):
            t, qt = divmod(n, 6)
            s, m, mn = sreg(qt), f"v{mrun(qt)}", f"v{mneg(qt)}"
            fma = [valu("v_fma_f32", f"v{s + r}", f"v{s + r}", sC, mn) for r in range(8)]
            if t == 0:
                pre = [valu("v_max3_f32", m, f"v{s}", f"v{s + 1}", f"v{s + 2}"), valu("v_max3_f32", mn, f"v{s + 3}", f"v{s + 4}", f"v{s + 5}"),
                       valu("v_max3_f32", m, m, f"v{s + 6}", f"v{s + 7}"), valu("v_max_f32", m, m, mn)]
                for op in ("v_permlane32_swap_b32", "v_permlane16_swap_b32"):
                    pre += [valu("v_mov_b32", mn, m), perm(op, mn, m), valu("v_max_f32", m, m, mn)]
                pre += [valu("v_mul_f32", mn, sNC, m)] + fma
                need = [len(pre) - 7 + r for r in range(8)]
            else:
                pre, need = [], []
                for r in range(0, 8, 2):
                    if OPT["tmax"] == 1:
                        pre += [valu("v_max3_f32", m, m, f"v{s + r}", f"v{s + r + 1}")]
                    pre += [fma[r], fma[r + 1]]
                    need += [len(pre) - 1, len(pre)]
            u["pre"] = pre
            u["exps"] = list(zip(u["exps"], need))
        def xok(g):
            n = OPT["xhi"] if g < qk[2][0] or g >= qk[13][0] else OPT["xnum"]
            return (g * n) % 100 < n
        S.packers.append(SoftmaxPacker2(units,
                                        lambda g: 1 if S.used(g, False) < 2 and xok(g) else 0))
    else:
        S.packers.append(SoftmaxPacker(units))
    fix_m0(S)
    return S.finish(lead=[k_read(0, j) for j in range(8)], report=OPT["report"])


def slow_path():
    o = [label("L_slow"), drain(), nop(16)]
    KF = [EPI + 4 * k for k in range(4)]
    VFR = 56
    vM = [f"v{120 + q}" for q in range(6)]
    vKo, vVo, vt, vu = "v60", "v61", "v62", "v63"
    o += [valu("v_lshrrev_b32", vt, 4, vL16), valu("v_and_b32", vu, 15, vt), valu("v_lshrrev_b32", vt, 4, vt),
          valu("v_lshlrev_b32", vKo, 8, vu), valu("v_lshl_add_u32", vKo, vt, 4, vKo),
          valu("v_lshlrev_b32", vVo, 10, vt), valu("v_lshl_add_u32", vVo, vu, 1, vVo)]
    o += [salu("s_sub_u32", "s58", sKV, 262144)]
    o += [valu("v_mov_b32", m, "0xff800000") for m in vM]

    def scores():
        r = []
        for kt in range(2):
            r += [salu("s_add_u32", "s61", "s59", kt * 4096)]
            r += [vload(("v", KF[ks]), 4, vKo, S_K, "s61", 64 * ks) for ks in range(4)] + [drain()]
            for qt in range(6):
                s = ("v", sreg(qt) + 4 * kt)
                r += [mfma(16, s, ("v", KF[ks]), ("v", qf(qt, ks)), None if ks == 0 else s) for ks in range(4)]
            r += [nop(16)]
        return r
    o += [salu("s_mov_b32", "s59", "s58"), salu("s_mov_b32", "s60", 16), label("L_slow1")] + scores()
    for qt in range(6):
        o += [valu("v_max3_f32", vM[qt], vM[qt], f"v{sreg(qt) + r}", f"v{sreg(qt) + r + 1}") for r in range(0, 8, 2)]
    o += [salu("s_add_u32", "s59", "s59", 8192), salu("s_sub_u32", "s60", "s60", 1), scmp("s_cmp_lg_u32", "s60", 0),
          raw("s_cbranch_scc1 L_slow1", "branch", rd=["scc"])]
    for qt in range(6):
        for op in ("v_permlane32_swap_b32", "v_permlane16_swap_b32"):
            o += [valu("v_mov_b32", vt, vM[qt]), nop(2), perm(op, vt, vM[qt]), valu("v_max_f32", vM[qt], vM[qt], vt)]
        o += [valu("v_mov_b32", f"v{lacc(qt) + r}", 0) for r in range(4)]
    o += [valu("v_accvgpr_write_b32", f"a{r}", 0) for r in range(192)]
    o += [salu("s_mov_b32", "s59", "s58"), salu("s_mov_b32", "s60", 16), label("L_slow2")] + scores()
    for qt in range(6):
        s = sreg(qt)
        o += [valu("v_sub_f32", f"v{s + r}", f"v{s + r}", vM[qt]) for r in range(8)]
        if OPT["tmax"]:
            o += [valu("v_mul_f32", f"v{s + r}", sC, f"v{s + r}") for r in range(8)]
        o += [valu("v_exp_f32", f"v{s + r}", f"v{s + r}") for r in range(8)]
        o += [valu("v_cvt_pk_bf16_f32", f"v{s + r}", f"v{s + 2 * r}", f"v{s + 2 * r + 1}") for r in range(4)]
    o += [salu("s_add_u32", "s57", "s59", 4096)]
    for dt in range(8):
        for j in range(8):
            o += [vload(("v", 184 + j), 1, vVo, S_V, "s57" if j >= 4 else "s59", (j & 3) * 256 + 32 * dt, op="buffer_load_ushort")]
        o += [drain()]
        o += [valu("v_lshl_or_b32", f"v{VFR + r}", f"v{185 + 2 * r}", 16, f"v{184 + 2 * r}") for r in range(4)]
        o += [mfma(16, ("a", oacc(qt, dt)), ("v", VFR), ("v", sreg(qt)), ("a", oacc(qt, dt))) for qt in range(6)]
        o += [nop(8)]
    o += [mfma(16, ("v", lacc(qt)), ("v", ONES), ("v", sreg(qt)), ("v", lacc(qt))) for qt in range(6)] + [nop(16)]
    o += [salu("s_add_u32", "s59", "s59", 8192), salu("s_sub_u32", "s60", "s60", 1), scmp("s_cmp_lg_u32", "s60", 0),
          raw("s_cbranch_scc1 L_slow2", "branch", rd=["scc"])]
    o += [nop(16)]
    if OPT["one1"]:
        for qt in range(6):
            o += lspread(qt, vt)
    o += [drain(), scmp("s_cmp_eq_u32", sIT, 1), raw("s_cbranch_scc1 L_back2", "branch", rd=["scc"]), raw("s_branch L_back1", "branch")]
    return o


def srd(base, lo, hi, nbytes):
    return [salu("s_mov_b32", f"s{base}", lo), salu("s_and_b32", f"s{base + 1}", hi, "0xffff"),
            salu("s_mov_b32", f"s{base + 2}", nbytes), salu("s_mov_b32", f"s{base + 3}", "0x20000")]


def decode_wg():
    return [salu("s_and_b32", "s3", "s2", 7), salu("s_lshr_b32", "s4", "s2", 6), salu("s_lshl_b32", "s3", "s3", 2),
            salu("s_add_u32", "s3", "s3", "s4"), salu("s_lshr_b32", "s4", "s2", 3), salu("s_and_b32", "s4", "s4", 7),
            salu("s_lshr_b32", "s5", "s3", 4), salu("s_and_b32", "s6", "s3", 15)]


def code_touch():
    return [salu("s_lshr_b32", "s68", "s2", 3), salu("s_lshl_b32", "s68", "s68", 11),
            valu("v_lshrrev_b32", "v11", 6, "v0"), valu("v_and_b32", "v12", 3, "v0"), valu("v_lshlrev_b32", "v11", 9, "v11"),
            valu("v_lshl_add_u32", "v11", "v12", 7, "v11"), valu("v_add_u32", "v11", "s68", "v11")] + (
            [valu("v_min_u32", "v11", "L_att-L_pc", "v11")] if OPT["cplim"] else []) + [
            Ins("global_load_dword v253, v11, s[96:97]", "vld", rd=["v11", "s96", "s97"], wr=["v253"])]


def kv_patterns():
    i, a, b, c = "v1", "v2", "v3", "v4"
    o = [valu("v_lshrrev_b32", a, 4, i), valu("v_and_b32", b, 15, i),
         valu("v_xor_b32", c, a, b), valu("v_lshlrev_b32", c, 4, c), valu("v_lshl_add_u32", vK[0], a, 8, c)]
    o += [valu("v_xor_b32", vK[m], m << 6, vK[0]) for m in range(1, 4)]
    o += [valu("v_lshlrev_b32", "v5", 1, a), valu("v_xor_b32", "v5", "v5", b), valu("v_lshlrev_b32", "v5", 4, "v5"),
          valu("v_lshl_add_u32", vV[0], a, 8, "v5"), valu("v_xor_b32", vV[1], 128, vV[0])]
    return o


sT2 = "s101"


def prologue():
    o = [scmp("s_cmp_ge_u32", "s2", 256), raw("s_cbranch_scc1 L_end", "branch", rd=["scc"])]
    o += [raw("s_getpc_b64 s[96:97]", wr=["s96", "s97"]), label("L_pc")]
    if OPT["dbgt"]:
        o += [raw("s_memrealtime s[72:73]", wr=["s72", "s73"])]
    if OPT["codepf"] == 2:
        o += code_touch()
    o += decode_wg()
    o += [salu("s_mul_i32", "s7", "s5", 40), salu("s_add_u32", "s68", "s0", "s7"), salu("s_addc_u32", "s69", "s1", 0),
          raw("s_load_dwordx8 s[56:63], s[68:69], 0", wr=regs("s", 56, 8)),
          raw("s_load_dwordx2 s[94:95], s[68:69], 32", wr=["s94", "s95"]),
          raw("s_load_dwordx4 s[88:91], s[0:1], 88", wr=regs("s", 88, 4)),
          raw("s_load_dwordx2 s[92:93], s[0:1], 80", wr=["s92", "s93"])]
    i, a, b, c = "v1", "v2", "v3", "v4"
    o += [valu("v_lshrrev_b32", a, 6, "v0"), valu("v_and_b32", i, 63, "v0"),
          valu("v_readfirstlane_b32", sWAVE, a), valu("v_lshlrev_b32", vL16, 4, i)]
    o += [valu("v_lshrrev_b32", a, 4, i), valu("v_and_b32", b, 7, i), valu("v_lshrrev_b32", "v5", 3, i),
          valu("v_and_b32", c, 1, a), valu("v_lshlrev_b32", c, 1, c), valu("v_xor_b32", c, c, b), valu("v_lshlrev_b32", c, 4, c),
          valu("v_lshl_add_u32", vW[0], "v5", 13, c),
          valu("v_xor_b32", vW[1], 64, vW[0]), valu("v_add_u32", vW[1], 64512, vW[1]),
          valu("v_add_u32", vW[2], 2 * 64512, vW[0]), valu("v_add_u32", vW[3], 2 * 64512, vW[1])]
    o += [valu("v_xor_b32", c, a, b), valu("v_lshlrev_b32", c, 4, c), valu("v_mul_u32_u24", "v6", 1280, "v5"),
          valu("v_add_u32", vX[0], "v6", c),
          valu("v_xor_b32", vX[1], 64, vX[0]), valu("v_add_u32", vX[1], 9216, vX[1]),
          valu("v_add_u32", vX[2], 2 * 9216, vX[0]), valu("v_add_u32", vX[3], 2 * 9216, vX[1])]
    o += [salu("s_lshr_b32", "s70", sWAVE, 1), salu("s_and_b32", "s71", sWAVE, 1),
          salu("s_lshl_b32", sW4K, sWAVE, 12), salu("s_mul_i32", sW6K, sWAVE, 6144),
          salu("s_lshl_b32", "s7", "s4", 2), salu("s_add_u32", "s7", "s7", "s70"),
          salu("s_lshl_b32", sWQ, "s71", 18), salu("s_lshl_b32", sT0, "s7", 8), salu("s_add_u32", sWQ, sWQ, sT0),
          salu("s_mul_i32", sX, "s6", 245760), salu("s_mul_i32", sT0, sWAVE, 61440), salu("s_add_u32", sX, sX, sT0)]
    o += [raw("s_waitcnt lgkmcnt(0)", "drainlg")]
    o += srd(S_X, "s56", "s57", 3932160) + srd(S_WQ, "s62", "s63", 5242880)
    o += [salu("s_add_u32", "s68", "s3", "s4"), salu("s_and_b32", "s68", "s68", 3)]
    for x in by_role("s69", "s68", TBLQ0):
        o += x if isinstance(x, list) else [x]
    for st in range(2):
        o += [salu("s_bfe_u32", sT0, "s69", "0x%x" % (0x40000 + 4 * st)), salu("s_lshl_b32", sT1, sT0, 19), salu("s_lshl_b32", sT0, sT0, 7),
              salu("s_add_u32", sPF[("W", st, 0)][0], sT1, sWQ), salu("s_add_u32", sPF[("X", st)][0], sT0, sX),
              salu("s_add_u32", sT2 if st else sPF[("W", st, 1)][0], sPF[("W", st, 0)][0], 128), salu("s_add_u32", sPF[("X", st)][1], sPF[("X", st)][0], 40960)]
    for k in [("W", 0, 0), ("X", 0), ("W", 0, 1), ("W", 1, 0), ("X", 1)]:
        for pre, ds in unit_dmas(k):
            o += pre[::-1] + ds
    if OPT["warmw"]:
        o += [salu("s_mul_i32", "s68", "s6", 40 * 8192), salu("s_lshl_b32", "s69", "s4", 10), salu("s_add_u32", "s68", "s68", "s69"),
              salu("s_mul_i32", "s69", sWAVE, 10 * 8192), salu("s_add_u32", "s68", "s68", "s69"),
              valu("v_lshlrev_b32", b, 7, b), valu("v_lshl_add_u32", "v6", "v5", 13, b), valu("v_and_b32", c, 1, "v5"),
              valu("v_lshl_add_u32", c, c, 13, b), salu("s_add_u32", "s69", "s68", 8 * 8192)]
        o += [vload(("v", 254), 1, "v6", S_WQ, "s68", 0), vload(("v", 255), 1, c, S_WQ, "s69", 0)]
    o += [salu("s_lshr_b32", "s68", "s2", 3), salu("s_lshl_b32", "s68", "s68", 2), salu("s_add_u32", "s68", "s68", sWAVE), salu("s_lshl_b32", sCP, "s68", 8)]
    if OPT["codepf"] == 1:
        o += code_touch()
    o += srd(S_WO, "s94", "s95", 5242880)
    o += [salu("s_lshl_b32", "s68", "s6", 3), salu("s_add_u32", "s68", "s68", "s4"),
          salu("s_mul_i32", sWOS, "s68", 40960), salu("s_mul_i32", sT0, sWAVE, 10240), salu("s_add_u32", sWOS, sWOS, sT0)]
    for jj in range(OPT["jpro"]):
        for pre, ds in unit_dmas(("J", jj), sE):
            o += pre[::-1] + ds
    o += srd(S_K, "s58", "s59", 67108864) + srd(S_V, "s60", "s61", 67108864) + [salu("s_mov_b32", sW1, sT2)]
    o += srd(S_OST, "s90", "s91", WS_WOT) + srd(S_FLG, "s88", "s89", 256)
    o += [salu("s_add_u32", "s68", "s90", WS_WOT), salu("s_addc_u32", "s69", "s91", 0)] + srd(S_WOT, "s68", "s69", 2 * WOT_BLK)
    o += [salu("s_lshl_b32", sFG, "s3", 2), salu("s_lshl_b32", sFB, "s5", 6)]
    if OPT["dbgt"]:
        o += [salu("s_add_u32", sFG, sFG, 128), salu("s_add_u32", sFB, sFB, 128)]
    o += [
          valu("v_cmp_eq_u32", "vcc", 0, "v0"), valu("v_mov_b32", "v10", "0x1000"), valu("v_mov_b32", f"v{ONES}", "0x3f803f80"),
          valu("v_cndmask_b32", vFLG, "v10", 0, "vcc"),
          ]
    if OPT["one1"]:
        o += [valu("v_and_b32", "v10", 15, "v0"), valu("v_cmp_eq_u32", "vcc", 0, "v10"), valu("v_cndmask_b32", f"v{ONES}", 0, f"v{ONES}", "vcc")]
    o += [valu("v_mov_b32", f"v{ONES + r}", f"v{ONES}") for r in range(1, 4)]
    if OPT["prof"]:
        o += [salu("s_add_u32", "s68", "s90", WS_PROF), salu("s_addc_u32", "s69", "s91", 0)] + srd(S_PROF, "s68", "s69", 1 << 20)
        o += [salu("s_lshl_b32", sPROF, "s2", 2), salu("s_add_u32", sPROF, sPROF, sWAVE), salu("s_lshl_b32", sPROF, sPROF, 10)]
        o += prof_stamp(0, 8)
    o += [salu("s_lshl_b32", sKV, "s6", 5), salu("s_add_u32", sKV, sKV, "s7"), salu("s_lshl_b32", sKV, sKV, 17),
          salu("s_lshl_b32", sT0, "s71", 12),
          salu("s_lshr_b32", sROT, "s2", 3), salu("s_lshl_b32", sT1, "s2", 1), salu("s_add_u32", sROT, sROT, sT1),
          salu("s_and_b32", sROT, sROT, 0 if OPT["norot"] else 15), salu("s_lshl_b32", sROT, sROT, 13), salu("s_add_u32", sROT, sROT, sT0)]
    if OPT["tlbw"]:
        for n, (r, so) in enumerate(((S_K, sKV), (S_V, sKV), (S_WO, sWOS))):
            o += [Ins(f"buffer_load_dword v{244 + n}, off, s[{r}:{r + 3}], {so} nt", "vld", rd=[so] + regs("s", r, 4))]
    if OPT["kpro"]:
        o += kv_patterns()
        for k in [("K", 0), ("V", 0), ("K", 1)][:OPT["kpro"]]:
            for pre, ds in unit_dmas(k, sE):
                o += pre + [nop(1)] + ds
    o += [salu("s_mul_i32", sO, "s3", O_GRP), salu("s_mul_i32", sT0, "s71", 786432), salu("s_add_u32", sO, sO, sT0),
          salu("s_lshr_b32", sT0, "s4", 1), salu("s_mul_i32", sT0, sT0, 16 * 12288), salu("s_add_u32", sO, sO, sT0),
          salu("s_and_b32", sT0, "s4", 1), salu("s_mul_i32", sT0, sT0, 4 * 12288), salu("s_add_u32", sO, sO, sT0),
          salu("s_mul_i32", sT0, "s70", 2 * 12288), salu("s_add_u32", sO, sO, sT0)]
    o += [salu("s_lshl_b32", "s68", "s6", 3), salu("s_add_u32", "s68", "s68", "s4"),
          salu("s_lshr_b32", sT0, "s68", 1), salu("s_and_b32", sT1, sT0, "0x33"),
          salu("s_and_b32", "s69", sT0, 4), salu("s_lshl_b32", "s69", "s69", 1), salu("s_or_b32", sT1, sT1, "s69"),
          salu("s_and_b32", "s69", sT0, 8), salu("s_lshr_b32", "s69", "s69", 1), salu("s_or_b32", sT1, sT1, "s69"),
          salu("s_mul_i32", sWOD, sT1, 20480),
          salu("s_and_b32", sT0, "s68", 1), salu("s_lshl_b32", sT0, sT0, 11), salu("s_add_u32", sWOD, sWOD, sT0),
          salu("s_mul_i32", sT0, "s5", WOT_BLK), salu("s_add_u32", sWOD, sWOD, sT0),
          salu("s_lshl_b32", sT0, "s70", 12), salu("s_add_u32", sWOD, sWOD, sT0),
          salu("s_lshl_b32", sT0, "s71", 10), salu("s_add_u32", sWOD, sWOD, sT0),
          salu("s_mul_i32", sT0, "s70", 1310720 - 20480), salu("s_add_u32", sWOX, sWOD, sT0)]
    o += [salu("s_add_u32", "s68", "s3", "s4"), salu("s_and_b32", "s68", "s68", 3)]
    for x in by_role(sQT, "s68", TBLQ1):
        o += x if isinstance(x, list) else [x]
    cbits = struct.unpack("<I", struct.pack("<f", math.log2(math.e) / math.sqrt(128.0)))[0]
    o += [salu("s_mov_b32", sC, "0x%x" % cbits), salu("s_mov_b32", sHI, "0x5d800000" if OPT["tmax"] == 1 else "0x53800000" if OPT["tmax"] else "0x4e800000"),
          salu("s_mov_b32", sLO, "0x42200000" if OPT["tmax"] else "0x30800000"), salu("s_mov_b32", sNC, "0x%x" % (cbits | 0x80000000)),
          salu("s_mov_b32", sIT, 0)]
    if not OPT["kpro"]:
        o += kv_patterns()
    o += [salu("s_lshl_b32", "s69", "s70", 13), salu("s_mul_i32", "s68", "s71", 12288), salu("s_add_u32", "s68", "s68", XS[0]),
          valu("v_bfe_u32", "v8", i, 2, 2), valu("v_and_b32", "v9", 3, i)]
    o += [valu("v_lshl_add_u32", c, b, 8, c), valu("v_add_u32", c, KWANT[15], c), valu("v_add_u32", kA[0], "s69", c)]
    o += [valu("v_xor_b32", kA[j], j << 6, kA[0]) for j in range(1, 4)]
    o += [valu("v_lshl_add_u32", "v5", a, 2, "v8"), valu("v_lshlrev_b32", c, 8, "v5"), valu("v_and_b32", "v6", 7, "v5"),
          valu("v_lshl_add_u32", c, "v6", 5, c), valu("v_lshl_add_u32", c, "v9", 3, c),
          valu("v_add_u32", c, VWANT[0], c), valu("v_add_u32", vA[0], "s69", c)]
    o += [valu("v_xor_b32", vA[d], d << 5, vA[0]) for d in range(1, 8)]
    o += [valu("v_lshl_add_u32", c, a, 3, "v8"), valu("v_lshlrev_b32", c, 7, c),
          valu("v_and_b32", "v5", 2, "v8"), valu("v_and_b32", "v7", 1, a), valu("v_lshl_add_u32", "v5", "v7", 2, "v5"),
          valu("v_xor_b32", "v5", "v5", "v9"), valu("v_lshl_add_u32", c, "v5", 4, c), valu("v_add_u32", wA[0], "s69", c),
          valu("v_xor_b32", wA[1], 64, wA[0])]
    o += [valu("v_lshrrev_b32", "v5", 1, b), valu("v_xor_b32", "v5", "v5", a),
          valu("v_lshlrev_b32", "v5", 4, "v5"), valu("v_lshl_add_u32", c, b, 7, "v5"),
          valu("v_xor_b32", "v5", 64, c), valu("v_add_u32", xA[0], "s68", c), valu("v_add_u32", xA[1], "s68", "v5")]
    o += [salu("s_lshl_b32", "s68", "s70", 2), salu("s_lshl_b32", "s69", "s71", 3), salu("s_add_u32", "s69", "s69", WOJ_ADDR),
          valu("v_lshrrev_b32", c, 1, a), valu("v_lshlrev_b32", c, 12, c), valu("v_lshl_add_u32", c, "v6", 7, c),
          valu("v_add_u32", c, "s69", c), valu("v_add_u32", "v5", "s68", "v9"), valu("v_lshrrev_b32", "v6", 1, "v6"),
          valu("v_xor_b32", "v5", "v5", "v6"), valu("v_lshl_add_u32", vJ, "v5", 4, c)]
    o += [needvm([("W", 0, 0), ("X", 0)]), barrier()] + first_reads(0)
    return o


def acc2(pi, xy, qi):
    return ((pi * 6 + qi) * 2 + xy) * 4


def a2(st, pi, ks, xy):
    if st == 0:
        return (240 if pi == 0 else 48 + 16 * pi) + 8 * ks + 4 * xy
    return (48 if pi == 0 else 112 + 16 * pi) + 8 * ks + 4 * xy


def b2(st, qi, ks):
    return (192 if st == 0 else 0) + 8 * qi + 4 * ks


V2A = ["v%d" % i for i in range(240, 245)]


def k2_loads_A(st, pi, soff=None):
    return [vload(("a", a2(st, pi, ks, xy)), 4, V2A[pi], S2A, soff or sA2, ks * 2048 + xy * 1024, flags=SC1) for xy in range(2) for ks in range(2)]


def k2_loads_B(st, qi):
    return [vload(("a", b2(st, qi, ks)), 4, V2B[qi], S2B, sB2, ks * 1024, flags=SC1) for ks in range(2)]


def k2_lds_A(st, pi):
    out = []
    for xy in range(2):
        for ks in range(2):
            r = [r for r, (s_, p_, off) in PF2.items() if (s_, p_) == (st, pi) and (r not in ("s87", "s99") or off == 2048 * ks)][0]
            key = [k for k, rs in sPF.items() if r in rs][0]
            if key[0] == "W":
                out.append(ds_read("ds_read_b128", ("a", a2(st, pi, ks, xy)), 4, V2W, U[key]["addr"] + ks * 2048 + xy * 1024))
            elif key[0] == "P":
                out.append(ds_read("ds_read_b128", ("a", a2(st, pi, ks, xy)), 4, V2P,
                                   (0 if key[1] == 1 else PADDR[key] - D[4]) + ks * 2048 + xy * 1024))
            elif r == sPF[key][0]:
                out.append(ds_read("ds_read_b128", ("a", a2(st, pi, ks, xy)), 4, V2X, U[key]["addr"] - XS[0] + ks * 2048 + xy * 1024))
            else:
                out.append(ds_read("ds_read_b128", ("a", a2(st, pi, ks, xy)), 4, V2X, U[key]["addr"] - XS[0] + 4096 + xy * 1024))
    return out


def k2_steps(S, first, loadA, loadB, pend, check=False, late=(), final=None):
    for st in range(2):
        q0 = S.n()
        tiles = [(pi, xy, qi) for pi in range(5) for xy in range(2) for qi in range(6)]
        if final is not None and st == 1:
            tiles = [t for t in tiles if t[2] >= 3] + [t for t in tiles if t[2] < 3]
            for n, x in enumerate(final[0]):
                S.put(q0 + 2 + n, x)
            for n, x in enumerate(final[1]):
                S.put(q0 + 61 + 2 * n, x)
        for pi, xy, qi in tiles:
            for ks in range(2):
                acc = ("v", acc2(pi, xy, qi))
                S.add(mfma(16, acc, ("a", a2(st, pi, ks, xy)), ("a", b2(st, qi, ks)),
                           None if (first and st == 0 and ks == 0) else acc))
        pos = [int(0.5 + 3.75 * n) for n in range(32)]
        if pend[st]:
            ls = k2_loads_A(1 - st, 4)
            S.put(q0 + pos[0], ls[2])
            S.put(q0 + pos[1], ls[3])
            for n, x in enumerate(next_off(sA2, TA, sAB, 20480)):
                S.put(q0 + pos[1] + 1 + n, x)
        if first and st == 0:
            for n, (pre, l) in enumerate(late):
                S.put(q0 + 6 * n + 2, *pre)
                S.put(q0 + 6 * n + 3, l)
            for n, r in enumerate(k2_lds_A(1, 0) + k2_lds_A(1, 1) + k2_lds_A(1, 2)):
                S.put(q0 + 6 * n + 5 if n < 8 else q0 + 54 + 4 * (n - 8), r)
            S.put(q0 + 70, valu("v_add_u32", V2P, D[9] - D[5], V2P))
            for n, r in enumerate(k2_lds_A(1, 3)):
                S.put(q0 + 73 + 4 * n, r)
        elif loadB[st]:
            for n, l in enumerate([l for qi in range(6) for l in k2_loads_B(1 - st, qi)]):
                S.put(q0 + pos[2 + n], l)
            for n, x in enumerate(next_off(sB2, TB, sBB, 12288)):
                S.put(q0 + pos[13] + 1 + n, x)
        if loadA[st]:
            n = 14
            for pi in range(5):
                ls = k2_loads_A(st, pi)
                for x, l in enumerate(ls if pi < 4 else ls[:2]):
                    assert pos[n] >= 24 * pi + 11 + 12 * (x >> 1), (pi, x, pos[n])
                    S.put(q0 + pos[n], l)
                    n += 1
        if first and st == 1:
            S.put(q0 + 110, needvm(["ost"]), barrier())
            S.put(q0 + 111, valu("v_mov_b32", V2P, "0x100"))
            S.put(q0 + 114, atomic_add(V2P, sFG))
        if check and st == 1:
            S.put(q0 + 1, scmp("s_cmp_eq_u32", sCNT, 5), salu("s_cselect_b32", sWANT, 8, 0), salu("s_cselect_b32", sPL, sFG, "0x1000"))
            S.put(q0 + 2, poll_load(V2P, sPL))
        if check and st == 0:
            S.put(q0 + 1, valu("v_readfirstlane_b32", sQ, V2P))
            S.put(q0 + 6, salu("s_bfe_u32", sQ, sQ, "0x80008"), scmp("s_cmp_lt_u32", sQ, sWANT),
                  raw("s_cbranch_scc1 L_spin2", "branch", rd=["scc"]), label("L_spin2_back"))


def k2_first(S, late):
    seq = [(0, p) for p in range(4)] + [(1, p) for p in range(3)] + [(0, 4), (1, 3), (1, 4)]
    at = {}
    for st, pi in seq:
        at[(st, pi)] = S.n()
        for xy in range(2):
            for qi in range(6):
                for ks in range(2):
                    acc = ("v", acc2(pi, xy, qi))
                    S.add(mfma(16, acc, ("a", a2(st, pi, ks, xy)), ("a", b2(st, qi, ks)), None if (st == 0 and ks == 0) else acc))
    for n, (pre, l) in enumerate(late):
        S.put(13 * n + 2, *pre)
        S.put(13 * n + 3, l)
    assert 13 * len(late) < at[(0, 4)]
    g = 5
    for pi in range(4):
        for r in k2_lds_A(1, pi):
            while S.fixed.get(g):
                g += 1
            S.put(g, r)
            g += 4
    items = []
    for pi in range(5):
        for x, l in enumerate(k2_loads_A(0, pi, sSO)):
            items.append((l, at[(0, pi)] + 11 + 12 * (x >> 1), 240 + 24 * pi + 12 * (x >> 1)))
        for x, l in enumerate(k2_loads_A(1, pi)[:4 if pi < 4 else 2]):
            items.append((l, at[(1, pi)] + 11 + 12 * (x >> 1), 360 + 24 * pi + 12 * (x >> 1)))
    for qi in range(6):
        for ks, l in enumerate(k2_loads_B(0, qi)):
            items.append((l, at[(0, 4)] + 12 + 2 * qi + ks, 200 + 2 * qi + ks))
    items.sort(key=lambda i: i[2])
    g, lastB = 11, 0
    while items:
        c = [i for i in items if i[1] <= g]
        if c and not any(S.fixed.get(k) and any(j.kind in ("vld", "vst") for j in S.fixed[k]) for k in ((g - 2, g - 1, g + 1) if g < 180 else (g - 1, g + 1))) and not S.fixed.get(g):
            S.put(g, c[0][0])
            if sB2 in c[0][0].rd:
                lastB = g
            items.remove(c[0])
        g += 1
        assert g < 240, items
    for n, x in enumerate(next_off(sB2, TB, sBB, 12288)):
        S.put(lastB + 1 + n, x)
    g = 226
    while S.fixed.get(g) or S.fixed.get(g + 1) or S.fixed.get(g + 3):
        g += 1
    S.put(g, needvm(["ost"]), barrier())
    S.put(g + 1, valu("v_mov_b32", V2P, "0x100"))
    S.put(g + 3, atomic_add(V2P, sFG))


def spin(name, back, dsts, soffs, conds):
    o = [label(name), salu("s_mov_b32", sSPIN, 0), label(name + "_loop"), raw("s_sleep 8")]
    o += [poll_load(d, so) for d, so in zip(dsts, soffs)]
    o += [drain(), salu("s_add_u32", sSPIN, sSPIN, 1), scmp("s_cmp_gt_u32", sSPIN, "0x20000"),
          raw(f"s_cbranch_scc1 {back}", "branch", rd=["scc"])]
    for d, (sh, msk, want) in zip(dsts, conds):
        o += [valu("v_readfirstlane_b32", sQ, d), nop(4)]
        if sh:
            o += [salu("s_lshr_b32", sQ, sQ, sh)]
        if msk:
            o += [salu("s_and_b32", sQ, sQ, msk)]
        o += [scmp("s_cmp_lt_u32", sQ, want), raw(f"s_cbranch_scc1 {name}_loop", "branch", rd=["scc"])]
    o += [raw(f"s_branch {back}", "branch")]
    return o


def phase2():
    o = [valu("v_mov_b32", V2L, vL16), salu("s_and_b32", "s85", "s4", 3), salu("s_and_b32", "s32", sWAVE, 1), salu("s_lshr_b32", "s33", sWAVE, 1),
         salu("s_mul_i32", sAB, sWAVE, 16 * 20480), salu("s_lshr_b64", f"s[{TA}:{TA + 1}]", "s[34:35]", 4)]
    o += next_off(sB2, TB, sBB, 12288)
    o += [valu("v_add_u32", V2W, sW4K, V2L), salu("s_add_u32", "s7", sW6K, XS[0]), valu("v_add_u32", V2X, "s7", V2L), valu("v_add_u32", V2P, D[4], V2W)]
    o += [scmp("s_cmp_eq_u32", "s33", 0)]
    o += [salu("s_cselect_b32", f"s{47 + q}", q, 2 - q) for q in range(3)]
    o += [salu("s_cselect_b32", f"s{36 + pi}", pi, 4 - pi) for pi in range(5)]
    o += [salu("s_mul_i32", "s34", "s32", 3)]
    o += [salu("s_add_u32", f"s{47 + q}", f"s{47 + q}", "s34") for q in range(3)]
    save = list(vR)
    vR[:] = [f"v{16 + q}" for q in range(6)]
    nl = 12 if OPT["pace"] else 8
    eg = epilogue_groups(0, lambda n: 240 - 4 * (24 - n) - (0 if OPT["pace"] else 16) if n >= 24 - nl else 32 + 4 * n, V2L)
    vR[:] = save
    b1 = [l for qi in range(6) for l in k2_loads_B(1, qi)]
    for n, (v, pre, st, imm) in enumerate(eg):
        m = b1[2 * (n - 8):2 * (n - 8) + 2] if 8 <= n < 14 else []
        o += v[:8] + m[:1] + v[8:16] + m[1:] + v[16:]
        if OPT["pace"]:
            if n % 2 == 0:
                o += eg[n // 2][1] + [eg[n // 2][2]]
        elif n < 16:
            o += pre + [st]
        if n == 15:
            o += [needvm(list(sPF))]
            for pi in range(5):
                o += [salu("s_lshl_b32", "s7", f"s{36 + pi}", 12), valu("v_add_u32", V2A[pi], "s7", V2L)]
            o += next_off(sPL, TA, sAB, 20480)
            if OPT["pace"]:
                o += next_off(sSO, TA, sAB, 20480)
            o += next_off(sA2, TA, sAB, 20480)
        if 16 <= n < 21:
            o += k2_lds_A(0, n - 16)
    late = []
    for n, g in enumerate(eg[24 - nl:]):
        st = vstore(("v", 240 - 4 * (nl - n) - (0 if OPT["pace"] else 16)), 4, V2L, S_OST, sE, g[3], tag="ost", flags=SC1)
        late.append((g[1], st))
    o += k2_loads_A(1, 4, sPL) + [valu("v_add_u32", V2P, D[9] - D[4], V2P)]
    o += next_off(sB2, TB, sBB, 12288) + [salu("s_mov_b32", sWANT, 0)]
    o += prof_stamp(1, 30)
    o += srd(S2OUT, "s92", "s93", 7864320)
    o += [salu("s_mul_i32", sOB, "s6", 192 * 2560), salu("s_mul_i32", "s7", "s84", 96 * 2560), salu("s_add_u32", sOB, sOB, "s7"),
          salu("s_mul_i32", "s7", "s5", 1280), salu("s_add_u32", sOB, sOB, "s7"),
          salu("s_mul_i32", "s7", "s85", 320), salu("s_add_u32", sOB, sOB, "s7"), salu("s_mov_b32", sCNT, 6)]
    S0 = Sched()
    if OPT["pace"]:
        k2_first(S0, late)
    else:
        k2_steps(S0, True, [True, True], [True, True], [False, True], late=late)
    S0.order_fixed()
    first = S0.build()
    S1 = Sched()
    k2_steps(S1, False, [True, True], [True, True], [True, True], check=True)
    if OPT["prof"]:
        S1.put(3, raw("s_memrealtime s[76:77]", wr=["s76", "s77"]), raw("s_waitcnt lgkmcnt(0)", "drainlg"),
               salu("s_mov_b32", "s101", "s100"), salu("s_mov_b32", "s100", "s99"), salu("s_mov_b32", "s99", "s98"),
               salu("s_mov_b32", "s98", "s97"), salu("s_mov_b32", "s97", "s96"), salu("s_mov_b32", "s96", "s76"))
    S1.put(237, salu("s_sub_u32", sCNT, sCNT, 1))
    S1.order_fixed()
    loop = [label("L_k2")] + S1.build() + [scmp("s_cmp_lg_u32", sCNT, 0), raw("s_cbranch_scc1 L_k2", "branch", rd=["scc"])]
    R1, R2, i, a, V2O = V2A[0], V2A[1], V2A[2], V2A[3], V2A[4]
    setup = [salu("s_mul_i32", "s7", sWAVE, 30720), valu("v_add_u32", V2W, "s7", V2L), valu("v_lshrrev_b32", i, 4, V2L),
             valu("v_and_b32", a, 15, i), valu("v_mul_u32_u24", a, 2560, a), valu("v_lshrrev_b32", i, 4, i),
             valu("v_lshl_add_u32", V2O, i, 4, a),
             salu("s_xor_b32", sPL, sWAVE, 1), salu("s_sub_u32", sPL, sPL, sWAVE), salu("s_mul_i32", "s7", sPL, 30720),
             valu("v_add_u32", R1, "s7", V2W),
             salu("s_xor_b32", sPL, sWAVE, 3), salu("s_sub_u32", sPL, sPL, sWAVE), salu("s_mul_i32", "s7", sPL, 30720),
             valu("v_add_u32", R2, "s7", V2W)]
    sent = [(pi, xy, qi) for pi in range(5) for qi in range(3, 6) for xy in range(2)]
    wr = {t: ds_write("ds_write_b128", V2W, ("v", acc2(*t)), 4, n * 1024) for n, t in enumerate(sent)}
    S2 = Sched()
    e = []
    if OPT["redov"]:
        order = [wr[(pi, xy, qi)] for pi in range(5) for xy in range(2) for qi in range(3, 6)]
        k2_steps(S2, False, [False, False], [True, False], [True, False], final=(setup, order[:29]))
        e = order[29:]
    else:
        k2_steps(S2, False, [False, False], [True, False], [True, False])
        e = setup + list(wr.values())
    S2.order_fixed()
    last = S2.build()
    e += [needlgkm0(), barrier()] + prof_stamp(8, 234)
    for s in list(range(7, 15)) + list(range(7)):
        pi, q = divmod(s, 3)
        e += [ds_read("ds_read_b128", ("v", acc2(pi, xy, q + 3)), 4, R1, (2 * s + xy) * 1024) for xy in range(2)]
    for s in list(range(7, 15)) + list(range(7)):
        pi, q = divmod(s, 3)
        d, t = acc2(pi, 0, q), acc2(pi, 0, q + 3)
        e += [valu("v_add_f32", f"v{d + r}", f"v{d + r}", f"v{t + r}") for r in range(8)]
        if s >= 7:
            e += [ds_write("ds_write_b128", R1, ("v", acc2(pi, xy, q)), 4, (2 * s + xy) * 1024) for xy in range(2)]
    e += [needlgkm0(), barrier()]
    for s in range(8):
        pi, q = divmod(s, 3)
        for xy in range(2):
            e += [ds_read("ds_read_b128", ("v", acc2(pi, xy, q + 3)), 4, R2, (2 * (14 - s) + xy) * 1024)]
    for s in range(8):
        pi, q = divmod(s, 3)
        d0, t0 = acc2(pi, 0, q), acc2(pi, 0, q + 3)
        e += [valu("v_add_f32", f"v{d0 + r}", f"v{d0 + r}", f"v{t0 + r}") for r in range(8)]
        e += [valu("v_cvt_pk_bf16_f32", f"v{d0 + r}", f"v{d0 + 2 * r}", f"v{d0 + 2 * r + 1}") for r in range(4)]
        e += [salu("s_mul_i32", "s7", f"s{47 + q}", 40960), salu("s_lshl_b32", sPL, f"s{36 + pi}", 6),
              salu("s_add_u32", "s7", "s7", sPL), salu("s_add_u32", sSO, "s7", sOB),
              vstore(("v", d0), 4, V2O, S2OUT, sSO, 0, flags=OPT["outf"])]
    e += prof_stamp(9, 234)
    if OPT["prof"]:
        for n in range(6):
            e += [valu("v_mov_b32", "v234", 1), valu("v_mov_b32", "v235", f"s{101 - n}"), pstore(234, 2 + n), nop(4)]
    if OPT["dbgt"]:
        a, b = {1: ("s76", "s78"), 2: ("s74", "s76")}[OPT["dbgt"]]
        e += [drain(), raw("s_memrealtime s[78:79]", wr=["s78", "s79"]), raw("s_waitcnt lgkmcnt(0)", "drainlg"),
              salu("s_sub_u32", a, a, "s72"), salu("s_sub_u32", b, b, "s72"),
              scmp("s_cmp_lt_u32", "s2", 8), salu("s_cselect_b32", "s7", "s2", "0x1000"), salu("s_lshl_b32", "s7", "s7", 2),
              valu("v_mov_b32", "v0", a), valu("v_mov_b32", "v1", b),
              Ins(f"buffer_store_dword v0, {vFLG}, s[{S_FLG}:{S_FLG + 3}], s7 offen", "vst", rd=["v0", vFLG, "s7"]),
              Ins(f"buffer_store_dword v1, {vFLG}, s[{S_FLG}:{S_FLG + 3}], s7 offen offset:32", "vst", rd=["v1", vFLG, "s7"])]
    e += [label("L_end"), raw("s_endpgm")]
    sp1 = spin("L_spin1", "L_spin1_back", vPOLL[:1], [sFG], [(0, "0xff", 8)]) + spin("L_spin3", "L_spin3_back", vPOLL[1:], [sFB], [(16, 0, 128)])
    sp2 = spin("L_spin2", "L_spin2_back", [V2P], [sFG], [(8, "0xff", 8)])
    return o, first, loop, last, e, sp1, sp2


def check_pointers(pro):
    ptr = set(regs("s", 56, 8) + regs("s", 88, 8))
    dirty = set()
    for x in pro:
        if x.text.startswith("s_load"):
            continue
        if x.text.startswith(("s_mov_b32", "s_and_b32", "s_add_u32", "s_addc_u32")) and x.rd & dirty and "0xffff" in x.text:
            raise AssertionError(x.text)
        dirty |= x.wr & ptr


def kernel():
    pro = prologue()
    check_pointers(pro)
    q1 = q_phase(False)
    full = []
    for last in (False, True):
        _alt[0] = 0
        full.append(a_phase(last))
    cut = [[n for n, x in enumerate(f) if x.text == "L_CUT:"][0] for f in full]
    assert [x.text for x in full[0][:cut[0]]] == [x.text for x in full[1][:cut[1]]]
    att = [label("L_att")] + full[0][:cut[0]]
    tails = []
    for v in range(2):
        t = [label(f"L_tail{v + 1}")] + full[v][cut[v] + 1:]
        t += [raw("s_cbranch_vccnz L_slow", "branch", rd=["vcc"]), label(f"L_back{v + 1}")]
        t += [valu("v_rcp_f32", f"v{16 + qt}" if v else vR[qt], f"v{lacc(qt)}") for qt in range(6)]
        if OPT["dbgt"]:
            t += [raw(f"s_memrealtime s[{74 + 2 * v}:{75 + 2 * v}]", wr=[f"s{74 + 2 * v}", f"s{75 + 2 * v}"]), raw("s_waitcnt lgkmcnt(0)", "drainlg")]
        t += prof_stamp(29)
        if OPT["prof"]:
            t += [salu("s_add_u32", sPROF, sPROF, 240)]
        tails.append(t)
    q2 = [salu("s_mov_b32", sIT, 1), label("L_q2")] + q_phase(True) + [raw("s_branch L_att", "branch")]
    o, first, loop2, last, e, sp1, sp2 = phase2()
    slow = slow_path()
    parts = [pro, q1, att, tails[0], q2, tails[1], o, first, loop2, last, e, slow, sp1, sp2]
    waits = compute_waits([pro + q1 + att + tails[0] + q2 + att + tails[1] + o + first + loop2 + loop2 + loop2 + last + e, slow, sp1, sp2])
    done = {}
    P = [apply_waits(x, waits, done) for x in parts]
    pads = pad_hazards([P[0] + P[1] + P[2] + P[3] + P[4] + P[2] + P[5] + P[6] + P[7] + P[8] + P[8] + P[9] + P[10], P[11], P[12], P[13]])
    al = ".p2align 3\n"
    return (emit(P[0] + P[1], pads) + al + emit(P[2] + P[3] + P[4], pads) + al + emit(P[5] + P[6] + P[7], pads) + al +
            emit(P[8] + P[9] + P[10] + P[11] + P[12] + P[13], pads) + "L_endcode:\n")


def main():
    kn = NAME + "_kernel"
    s = open("cdna_kernels/" + NAME + ".s.ref").read().split("; Override launch")[0]
    s += "; @launch grid=(256,1,1) block=(256,1,1) lds=163840\n"
    s += '.amdgcn_target "amdgcn-amd-amdhsa--gfx950"\n.text\n'
    s += f".globl {kn}\n.p2align 8\n.type {kn},@function\n{kn}:\n" + kernel()
    s += f""".section .rodata,"a"
.p2align 6
.amdhsa_kernel {kn}
  .amdhsa_next_free_vgpr 512
  .amdhsa_next_free_sgpr 102
  .amdhsa_accum_offset 256
  .amdhsa_group_segment_fixed_size 0
  .amdhsa_kernarg_size 104
  .amdhsa_user_sgpr_count 2
  .amdhsa_user_sgpr_kernarg_segment_ptr 1
  .amdhsa_system_sgpr_workgroup_id_x 1
.end_amdhsa_kernel
"""
    open(sys.argv[1], "w").write(s)


main()
```

```python
import sys, math, struct
from fw3 import *
from orders import orders
import alloc3

NAME = "concat_heads__mha_block_cached__mha_block_cached__near_ridge"
OPT = dict(outf=' sc1', redov=1, one1=1, warmj=0, pk=1, pfq1=1, rot2=4, gate=0, pace=1, lead=3, xpace=0, kvf=' nt', norot=0, tlbw=0, kpro=0, kplan=0, jlate=1, dbgt=0, jpro=0, k1s=0, e10=1, t23=0, nfree=1, kstep10=134, ks1=0, kn1=0, kfirst=6, k2late=0, qsp=1, tmax=2, xnum=25, xhi=100, ctq=0, cplim=1, p2st=0, kbar=0, cta='', rotq1=2, gstep=2, rotq=3, early=1, uni=0, prof=0, report=False, stg=67, warmw=True, codepf=2, codepf2=12, pf='', pf0=1, pfn=3, pff='', flagbar=12, map=0)
for a in sys.argv[2:]:
    k, v = a.split("=")
    OPT[k] = type(OPT[k])(int(v)) if not isinstance(OPT[k], str) else v

KB = 1024
SC1 = " sc1"
O_GRP = 2 * 786432
WS_WOT = 50331648
WOT_BLK = 5242880
WS_PROF = 64 * 1024 * 1024

S_K, S_V, S_X, S_WQ, S_OST, S_WO, S_WOT = 8, 12, 16, 20, 24, 28, 32
sKV, sWQ, sX, sW4K, sW6K, sO, sIT, sT0, sT1, sC, sWAVE = ["s%d" % i for i in range(36, 47)]
sWOS, sWOD, sWOX, sW5K, sHI, sLO = ["s%d" % i for i in range(47, 53)]
sPROF, sE, sJ = "s53", "s54", "s55"
sQT, sWS, sXS, sW1, sNC = "s50", "s67", "s95", "s63", "s7"
sROT, sFG, sFB, sCP = "s62", "s65", "s66", "s64"
sA2, sB2, sPL, sOB, sCNT, sSO, sQ, sSH, sWANT, sSPIN = "s28", "s29", "s30", "s31", "s67", "s68", "s69", "s70", "s71", "s94"
S_PROF, S_FLG = 72, 80
sPF = {("W", 0, 0): ["s84"], ("W", 0, 1): ["s85"], ("X", 0): ["s86", "s87"], ("X", 1): ["s98", "s99"], ("W", 1, 0): ["s100"],
       ("P", 0): ["s60"], ("P", 1): ["s61"], ("P", 2): ["s101"]}
PF2 = {"s84": (0, 0, 0), "s86": (0, 1, 0), "s60": (0, 2, 0), "s101": (0, 3, 0), "s98": (0, 4, 0), "s61": (1, 0, 0),
       "s87": (1, 1, 0), "s99": (1, 1, 2048), "s85": (1, 2, 0), "s100": (1, 3, 0)}
vK = ["v%d" % i for i in range(192, 196)]
vV = ["v196", "v197"]
vW = ["v%d" % i for i in range(198, 202)]
vX = ["v%d" % i for i in range(202, 206)]
kA = ["v%d" % i for i in range(206, 210)]
vA = ["v%d" % i for i in range(210, 218)]
wA = ["v218", "v219"]
xA = ["v220", "v221"]
vJ, vL16 = "v222", "v223"
ONES = 224
EPI = 228
vR = ["v%d" % i for i in range(244, 250)]
vFLG = "v250"
vT = ["v252", "v253"]
vC2 = "v[242:243]"
vPOLL = ["v254", "v255"]

V2B = ["v245", "v246", "v247", "v248", "v249", "v251"]
V2L, V2W, V2P, V2X = "v252", "v254", "v255", "v253"
S2A, S2B, S2OUT = S_WQ, S_X, 8
TA, TB, sAB, sBB = 56, 62, "s43", "s44"

D = [i * 16 * KB for i in range(10)]
XS = [96 * KB, 120 * KB]
WOJ_ADDR = D[4]


def qacc(p, xy, qt):
    return 64 * (qt >> 1) + (2 * p + (qt & 1)) * 8 + 4 * xy


def qf(qt, p):
    return 64 * (qt >> 1) + (2 * p + (qt & 1)) * 4


def sreg(qt):
    return 64 * (qt >> 1) + 32 + 8 * (qt & 1)


def mrun(qt):
    return 64 * (qt >> 1) + 56 + (qt & 1)


def mneg(qt):
    return 64 * (qt >> 1) + 58 + (qt & 1)


def lacc(qt):
    return 64 * (qt >> 1) + 48 + 4 * (qt & 1)


ABUF = [192, 248]


def bx(qt, ks):
    return 200 + 8 * qt + 4 * ks


def kf(kt, ks):
    return 192 + 16 * kt + 4 * ks


def vf(dt):
    return 224 + 4 * dt


def oacc(qt, dt):
    return 32 * qt + 4 * dt


def kpos(k):
    n1 = OPT["kn1"]
    return 2 + OPT["ks1"] / 10.0 * min(k, n1) + OPT["kstep10"] / 10.0 * max(k - n1, 0)


def build_units():
    U = {}
    for i in range(10):
        U[("X", i)] = dict(addr=XS[i % 2], size=24 * KB, iss=i - 2.5, land=i - 1, rel=i - 0.5)
        U[("W", i, 0)] = dict(addr=D[2 * (i % 2)], size=16 * KB, iss=i - 2.5, land=i - 1, rel=i - 0.5)
        U[("W", i, 1)] = dict(addr=D[2 * (i % 2) + 1], size=16 * KB, iss=i - 2, land=i - 0.5, rel=i)
    for k, e in ((("X", 0), -4), (("W", 0, 0), -4), (("X", 1), -3), (("W", 0, 1), -2), (("W", 1, 0), -2)):
        U[k]["iss"] = e
    pages = [9, 5, 4, 6, 0, 7, 1, 8, 2, 3, 9, 4, 5, 6, 0, 1, 7, 2, 8, 3, 9, 4, 5, 6, 0, 7, 1, 8, 2, 9, 5, 4]
    if OPT["kstep10"]:
        (_, pages), kiss, leads = alloc3.plan(0, OPT["kfirst"], pos=kpos, head=[5, 9, 4, 6, 1 if OPT["k2late"] else 0, 7, 1, 8],
                                                 lastN={0: 23, 1: 25, 2: 25, 3: 26, 4: 24, 5: 23, 6: 23, 7: 23, 8: 24, 9: 24})
        if OPT["report"]:
            print("; leads", [round(x, 1) for x in leads])
    for u in range(32):
        key = ("K", u // 2) if u % 2 == 0 else ("V", u // 2)
        N = 10 + u // 2 + u % 2
        U[key] = dict(addr=D[pages[u]], size=16 * KB, iss=N - 5 + (u == 30), land=N - 1, rel=N)
        if OPT["kstep10"] and u >= OPT["kfirst"]:
            U[key].update(iss=kiss[u], even=u - OPT["kfirst"])
    if OPT["kbar"]:
        for t in range(1, 16):
            U[("K", t)]["land"] += 0.5
    U[("V", 1)]["iss"] = U[("K", 2)]["iss"] = 7.5
    if "even" not in U[("V", 2)]:
        U[("V", 2)]["iss"] = 8.5
    if OPT["k2late"]:
        U[("K", 2)]["iss"] = 8
    if OPT["kstep10"]:
        if OPT["kfirst"] == 8:
            U[("V", 3)]["iss"] = 8.5
        return U
    if OPT["e10"] < 2:
        U[("K", 4)]["iss"] = 10
    if OPT["e10"] < 1:
        U[("V", 3)]["iss"] = 10
    if OPT["t23"]:
        U[("W", 0, 0)]["iss"] = U[("W", 1, 1)]["iss"] = -5
    return U


def check_units(second):
    V = {k: dict(u) for k, u in U.items()}
    if second:
        V[("K", 0)]["iss"], V[("V", 0)]["iss"], V[("K", 1)]["iss"] = -4, -3, -3
    else:
        V[("J",)] = dict(addr=D[4], size=32 * KB, iss=-1, land=2, rel=3)
        V[("J", 2)] = dict(addr=D[9], size=16 * KB, iss=0, land=2, rel=3)
        V[("K", 0)]["iss"], V[("V", 0)]["iss"], V[("K", 1)]["iss"] = 3, 4, 5
    allu = [(k, u["addr"], u["addr"] + u["size"], u["iss"], u["rel"]) for k, u in V.items()]
    assert all(u["iss"] < u["land"] <= u["rel"] for u in V.values())
    if second:
        allu += [(k, u["addr"], u["addr"] + u["size"], u["iss"] - 27, u["rel"] - 27) for k, u in U.items() if k[0] in "KV" and k[1] > 2]
        allu += [(("P", n), D[p], D[p] + 16 * KB, (23, 24, 24)[n], 27) for n, p in enumerate((5, 9, 4))]
        allu += [(k, u["addr"], u["addr"] + u["size"], u["iss"] + 27, 40) for k, u in U.items() if k in sPF]
    for a in allu:
        for b in allu:
            if a is not b and a[1] < b[2] and b[1] < a[2]:
                assert a[4] <= b[3] or b[4] <= a[3], (a, b)


U = build_units()
U[("K", 0)]["iss"] = U[("V", 0)]["iss"] = U[("K", 1)]["iss"] = None
PADDR = {("P", 0): D[5], ("P", 1): D[9], ("P", 2): D[4]}
_alt = [0]


def next_st():
    _alt[0] ^= 1
    return [sT0, sT1][_alt[0]]


def unit_dmas(key, tmp=None):
    kind = key[0]
    if kind == "P":
        return [([salu("s_add_u32", "m0", sW4K, PADDR[key])], [dma(vW[m], S_WQ, sPF[key][0], 1024 * m, key, SC1) for m in range(4)])]
    if kind == "J":
        jj = key[1]
        sT = tmp
        pre = [salu("s_add_u32", sT, sWOS, jj * 128), salu("s_add_u32", "m0", sW4K, D[(4, 5, 9)[jj >> 2]] + (jj & 3) * 1024)]
        return [(pre, [dma(vX[0], S_WO, sT, 0, "J", " nt")])]
    u = U[key]
    if key in sPF:
        if kind == "W":
            return [([salu("s_add_u32", "m0", sW4K, u["addr"])], [dma(vW[m], S_WQ, sPF[key][0], 1024 * m, key, SC1) for m in range(4)])]
        return [([salu("s_add_u32", "m0", sW6K, u["addr"])], [dma(vX[m], S_X, sPF[key][0], 1024 * m, key, SC1) for m in range(4)]),
                ([salu("s_add_u32", "m0", sW6K, u["addr"] + 4096)], [dma(vX[m], S_X, sPF[key][1], 1024 * m, key, SC1) for m in range(2)])]
    sT = tmp or next_st()
    if kind in "KV":
        pre = [salu("s_add_u32", sT, sROT, key[1] * 8192), salu("s_and_b32", sT, sT, "0x1ffff"), salu("s_add_u32", sT, sT, sKV),
               salu("s_add_u32", "m0", sW4K, u["addr"])]
        if kind == "K":
            return [(pre, [dma(vK[m], S_K, sT, 1024 * m, key, OPT["kvf"]) for m in range(4)])]
        return [(pre, [dma(vV[m & 1], S_V, sT, 1024 * m, key, OPT["kvf"]) for m in range(4)])]
    if kind == "W":
        return [([salu("s_add_u32", "m0", sW4K, u["addr"])], [dma(vW[m], S_WQ, sW1 if key[2] else sWS, 1024 * m, key) for m in range(4)])]
    g0 = ([salu("s_add_u32", "m0", sW6K, u["addr"])], [dma(vX[m], S_X, sXS, 1024 * m, key) for m in range(4)])
    pre2 = [salu("s_add_u32", sT, sXS, 40960), salu("s_add_u32", "m0", sW6K, u["addr"] + 4096)]
    return [g0, (pre2, [dma(vX[m], S_X, sT, 1024 * m, key) for m in range(2)])]


def set_pf_proj(tail=False):
    o = [salu("s_add_u32", sW1, sWQ, 524288 + 128)]
    for key, rs in sPF.items():
        if key[0] == "P":
            continue
        if key[0] == "W":
            o += [salu("s_add_u32", rs[0], sWQ, key[1] * 524288 + key[2] * 128)]
        else:
            o += [salu("s_add_u32", rs[0], sX, key[1] * 128), salu("s_add_u32", rs[1], sX, key[1] * 128 + 40960)]
    return o


ORD2 = orders(16, 4, 8, 7, {1: [4], 2: [1, 1, 2, 2, 2, 0, 0], 3: [1, 2, 2, 2, 1, 0, 0], 4: [2, 1, 2, 2, 1, 0, 0]}[OPT["rot2"]])[0] if OPT["rot2"] else [list(range(16))] * 4
ORDQ = orders(10, 4, None, 0, {1: [1, 1, 2, 2, 2, 1, 1], 2: [1, 1, 4], 3: [1, 1, 2, 2, 1, 1, 1, 1]}[OPT["rotq"]])[0] if OPT["rotq"] else [list(range(10))] * 4
assert all(o[:2] == [0, 1] for o in ORDQ)
TBLQ = [sum(x << (4 * n) for n, x in enumerate(o[2:])) for o in ORDQ]
ORDQ1 = {0: ORDQ, 1: orders(10, 4, None, 0, [4])[0], 2: orders(10, 4, None, 0, [2, 2, 2, 1, 1, 1, 1])[0], 3: orders(10, 4, None, 0, [4, 0, 1, 1, 1, 1, 1, 1])[0]}[OPT["rotq1"]]
TBLQ1 = [sum(x << (4 * n) for n, x in enumerate(o[2:])) for o in ORDQ1]
TBLQ0 = [o[0] | o[1] << 4 for o in ORDQ1]


def by_role(dst, role, consts):
    o = [salu("s_mov_b32", dst, "0x%x" % consts[0])]
    for r in range(1, 4):
        o += [[scmp("s_cmp_eq_u32", role, r), salu("s_cselect_b32", dst, "0x%x" % consts[r], dst)]]
    return o


TBL2 = [sum(x << (4 * n) for n, x in enumerate(o)) for o in ORD2]


def next_off(dst, tbl, base, stride):
    return [salu("s_and_b32", dst, f"s{tbl}", 15), salu("s_lshr_b64", f"s[{tbl}:{tbl + 1}]", f"s[{tbl}:{tbl + 1}]", 4),
            salu("s_mul_i32", dst, dst, stride), salu("s_add_u32", dst, dst, base)]


def set_pf_out():
    o = [salu("s_and_b32", "s68", "s4", 3), salu("s_mul_i32", "s68", "s68", 1310720), salu("s_mul_i32", "s69", "s5", WOT_BLK),
         salu("s_add_u32", "s68", "s68", "s69"), salu("s_add_u32", "s68", "s68", WS_WOT)]
    o += [[salu("s_add_u32", f"s{S_WQ}", "s90", "s68"), salu("s_addc_u32", "s69", "s91", 0)]]
    o += [salu("s_and_b32", f"s{S_WQ + 1}", "s69", "0xffff"), salu("s_mov_b32", f"s{S_WQ + 2}", 1310720),
          salu("s_mov_b32", f"s{S_X}", f"s{S_WQ}"), salu("s_mov_b32", f"s{S_X + 1}", f"s{S_WQ + 1}"), salu("s_mov_b32", f"s{S_X + 2}", 1310720)]
    o += [salu("s_lshr_b32", "s70", sWAVE, 1), salu("s_mul_i32", "s68", sWAVE, 16 * 20480), salu("s_lshl_b32", "s69", "s70", 14),
          salu("s_add_u32", "s68", "s68", "s69"), salu("s_lshl_b32", "s69", "s70", 13), salu("s_sub_u32", "s69", 4096, "s69")]
    o += [salu("s_add_u32", "s70", "s3", "s4"), salu("s_and_b32", "s70", "s70", 3),
          salu("s_mov_b32", "s34", "0x%x" % (TBL2[0] & 0xffffffff)), salu("s_mov_b32", "s35", "0x%x" % (TBL2[0] >> 32))]
    for r in range(1, 4):
        o += [[scmp("s_cmp_eq_u32", "s70", r), salu("s_cselect_b32", "s34", "0x%x" % (TBL2[r] & 0xffffffff), "s34"),
               salu("s_cselect_b32", "s35", "0x%x" % (TBL2[r] >> 32), "s35")]]
    o += [salu("s_and_b32", "s70", "s34", 15), salu("s_mul_i32", "s70", "s70", 20480), salu("s_add_u32", "s70", "s70", "s68"),
          salu("s_bfe_u32", "s71", "s34", "0x40004"), salu("s_mul_i32", "s71", "s71", 20480), salu("s_add_u32", "s71", "s71", "s68")]
    for r, (st, pi, off) in PF2.items():
        o += [salu("s_mul_i32", r, "s69", pi), salu("s_add_u32", r, r, "s71" if st else "s70")]
        if off:
            o += [salu("s_add_u32", r, r, off)]
    return o


def groups_at(iss):
    order = {"W": 0, "X": 1, "K": 2, "V": 2}
    keys = sorted([k for k, u in U.items() if u["iss"] is not None and u["iss"] % 27 == iss % 27 and "even" not in u],
                  key=lambda k: (U[k]["land"] - U[k]["iss"], order[k[0]], k))
    return [g for k in keys for g in unit_dmas(k)]


def place_dmas(S, groups, cand, lo):
    ci = 0
    for pre, ds in groups:
        g = cand[ci]
        for n, p in enumerate(pre[:-1]):
            S.put(max(lo, g - len(pre) + n), p)
        for d in ds:
            d.m0 = pre[-1]
            S.put(cand[ci], d)
            ci += 1


def fix_m0(S):
    cur, prev = None, -2
    for g in sorted(S.fixed):
        for d in [x for x in S.fixed[g] if x.kind == "dma"]:
            if d.m0.text != cur:
                m = Ins(d.m0.text, "salu", rd=d.m0.rd, wr=d.m0.wr)
                if g - 1 > prev and not any(x.kind in ("bar", "branch") for x in S.fixed.get(g - 1, [])):
                    S.put(g - 1, m)
                else:
                    S.fixed[g].insert(S.fixed[g].index(d), m)
                cur = d.m0.text
            prev = g
        if any(x.kind == "label" for x in S.fixed[g]):
            cur = None


def tags_for(n):
    t = [k for k, u in U.items() if (u["land"] - n) % 27 == 0]
    if n == OPT["flagbar"]:
        t += ["ost", "jst"]
    if n == 2:
        t += ["J"]
    return t


def atomic_add(vdata, soff):
    return Ins(f"buffer_atomic_add {vdata}, {vFLG}, s[{S_FLG}:{S_FLG + 3}], {soff} offen sc1", "atomic",
               rd=[vdata, vFLG, soff] + regs("s", S_FLG, 4), tag="flag")


def poll_load(vdst, soff):
    return Ins(f"buffer_load_dword {vdst}, off, s[{S_FLG}:{S_FLG + 3}], {soff} sc1", "vld", rd=[soff] + regs("s", S_FLG, 4), wr=[vdst])


class Win:
    def __init__(self, rs, init):
        self.rs = rs
        self.cur = init

    def move(self, new):
        d = (new - self.cur) & 0xffffffff
        self.cur = new
        return [valu("v_add_u32", r, "0x%x" % d, r) for r in self.rs] if d else []


def plan_windows(addrs, span):
    want = []
    i = 0
    while i < len(addrs):
        lo = hi = addrs[i]
        j = i + 1
        while j < len(addrs) and max(hi, addrs[j]) - min(lo, addrs[j]) + span < 65536:
            lo, hi = min(lo, addrs[j]), max(hi, addrs[j])
            j += 1
        want += [lo] * (j - i)
        i = j
    return want


KWANT = plan_windows([U[("K", t)]["addr"] for t in range(16)], 4096)
VWANT = plan_windows([U[("V", t)]["addr"] for t in range(16)], 4096)
check_units(False)
check_units(True)


def pstore(v0, idx):
    return Ins(f"buffer_store_dwordx2 v[{v0}:{v0 + 1}], off, s[{S_PROF}:{S_PROF + 3}], {sPROF} offset:{8 * idx}", "vst",
               rd=[f"v{v0}", f"v{v0 + 1}", sPROF] + regs("s", S_PROF, 4))


def prof_stamp(idx, v0=252):
    if not OPT["prof"]:
        return []
    return [raw("s_memtime s[76:77]", "other", wr=["s76", "s77"]),
            raw("s_memrealtime s[78:79]", "other", wr=["s78", "s79"]),
            raw("s_waitcnt lgkmcnt(0)", "drainlg"),
            valu("v_mov_b32", f"v{v0}", "s76"),
            valu("v_mov_b32", f"v{v0 + 1}", "s78"),
            pstore(v0, idx)]


def bar_seq(tags, idx):
    if OPT["prof"] < 2:
        return [needboth(tags), barrier()] + prof_stamp(idx)
    return [raw("s_memtime s[58:59]", "other", wr=["s58", "s59"]), raw("s_waitcnt lgkmcnt(0)", "drainlg"),
            needboth(tags), barrier(),
            raw("s_memtime s[76:77]", "other", wr=["s76", "s77"]),
            raw("s_memrealtime s[78:79]", "other", wr=["s78", "s79"]),
            raw("s_waitcnt lgkmcnt(0)", "drainlg"), salu("s_sub_u32", "s76", "s76", "s58"),
            valu("v_mov_b32", "v252", "s76"), valu("v_mov_b32", "v253", "s78"), pstore(252, idx)]


def a_read(i, dt, ks, t):
    p, xy = dt >> 1, dt & 1
    off = U[("W", i, p >> 1)]["addr"] + ks * 4096 + t * 512 + xy * 8
    return ds_read("ds_read_b64_tr_b16", ("a", ABUF[dt % 2] + 4 * ks + 2 * t), 2, wA[p & 1], off)


def first_reads(i):
    ax = U[("X", i)]["addr"] - XS[0]

    def A(ks, t):
        return a_read(i, 0, ks, t)

    def B(qt, ks):
        return ds_read("ds_read_b128", ("a", bx(qt, ks)), 4, xA[ks], ax + qt * 2048)
    return [A(0, 0), A(0, 1), B(0, 0), A(1, 0), A(1, 1), B(0, 1)] + [B(qt, ks) for qt in range(1, 6) for ks in range(2)]


def k_read(t, j):
    kt, ks = j >> 2, j & 3
    return ds_read("ds_read_b128", ("a", kf(kt, ks)), 4, kA[ks], U[("K", t)]["addr"] - KWANT[t] + kt * 4096)


def epilogue_groups(tmp, dst=None, vaddr=None):
    groups = []
    n = 0
    for T in range(3):
        for ph in range(2):
            for qs in range(2):
                for pl in range(2):
                    qt = 2 * T + qs
                    tb = tmp + 4 * (n % 3)
                    src = oacc(qt, 4 * ph + 2 * pl)
                    db = tb if dst is None or dst(n) is None else dst(n)
                    rd = [valu("v_accvgpr_read_b32", f"v{tb + i}", f"a{src + i}") for i in range(8)]
                    mu = [valu("v_mul_f32", f"v{tb + i}", vR[qt], f"v{tb + i}") for i in range(8)]
                    cv = [valu("v_cvt_pk_bf16_f32", f"v{db + i}", f"v{tb + 2 * i}", f"v{tb + 2 * i + 1}") for i in range(4)]
                    pre = [salu("s_add_u32", sE, sO, ph * 12288 + T * 4096)] if qs == 0 and pl == 0 else []
                    imm = qs * 2048 + pl * 1024
                    groups.append((rd + mu + cv, pre, vstore(("v", db), 4, vaddr or vL16, S_OST, sE, imm, tag="ost", flags=SC1), imm))
                    n += 1
    return groups


def conv_items(T, ps, packed=()):
    out = []
    for p in ps:
        for qs in range(2):
            R, Dd = qacc(p, 0, 2 * T + qs), qf(2 * T + qs, p)
            if OPT["tmax"]:
                pass
            elif p in packed:
                out += [(p, qs, valu("v_pk_mul_f32", f"v[{R + x}:{R + x + 1}]", f"v[{R + x}:{R + x + 1}]", "s[86:87]" if False else vC2)) for x in range(0, 8, 2)]
            else:
                out += [(p, qs, valu("v_mul_f32", f"v{R + x}", sC, f"v{R + x}")) for x in range(8)]
            out += [(p, qs, valu("v_cvt_pk_bf16_f32", f"v{Dd + x}", f"v{R + 2 * x}", f"v{R + 2 * x + 1}")) for x in range(4)]
    return out


def touch_code(S, g, base, st, va, vd):
    S.put(g, salu("s_add_u32", st, sCP, base))
    S.put(g + 1, salu("s_min_u32", st, st, "L_endcode-L_pc-256"))
    S.put(g + 2, valu("v_and_b32", va, 16, vL16), valu("v_lshlrev_b32", va, 3, va))
    S.put(g + 3, valu("v_add_u32", va, st, va))
    return Ins(f"global_load_dword {vd}, {va}, s[96:97]", "vld", rd=[va, "s96", "s97"], wr=[vd])


def q_phase(second):
    S = Sched()
    extra, mid = {}, {}
    if not second:
        jp = OPT["jpro"]
        if jp == 0:
            extra[0] = [g for jj in range(5) for g in unit_dmas(("J", jj), sE)]
            extra[1] = [g for jj in range(5, 10) for g in unit_dmas(("J", jj), sE)]
        elif jp < 10:
            extra[1] = [g for jj in range(jp, 10) for g in unit_dmas(("J", jj), sE)]
        kv = [unit_dmas(k, sE) for k in [("K", 0), ("V", 0), ("K", 1)]]
        if OPT["kplan"] == 0:
            extra[4], extra[5], extra[6] = kv
        elif OPT["kplan"] == 1:
            extra[7], mid[8] = kv[0], kv[1]
            extra[8] = kv[2]
        elif OPT["kplan"] == 2:
            extra[4], extra[7], mid[8] = kv
        elif OPT["kplan"] == 4:
            extra[5], extra[6], extra[7] = kv
        elif OPT["kplan"] == 5:
            extra[4], extra[6], extra[7] = kv
        elif OPT["kplan"] == 3:
            extra[5], extra[7], mid[8] = kv
    for i in range(10):
        q0 = S.n()
        for dt in range(8):
            for qt in range(6):
                for ks in range(2):
                    acc = ("v", qacc(dt >> 1, dt & 1, qt))
                    S.add(mfma(16, acc, ("a", ABUF[dt % 2] + 4 * ks), ("a", bx(qt, ks)), None if (i == 0 and ks == 0) else acc))
        for dt in range(1, 8):
            gaps = [4, 5, 6, 7] if dt == 1 else [0, 2, 3, 4]
            for n, (ks, t) in enumerate([(0, 0), (0, 1), (1, 0), (1, 1)]):
                S.put(q0 + 12 * (dt - 1) + gaps[n], a_read(i, dt, ks, t))
        S.put(q0 + 35, needboth(tags_for(i - 0.5)), barrier())
        S.put(q0 + 83, *bar_seq(tags_for(i), 2 + i))
        if i < 9:
            for n, r in enumerate(first_reads(i + 1)):
                S.put(q0 + 84 + n, r)
        else:
            kw = Win(kA, KWANT[15])
            mv = kw.move(KWANT[0])
            S.put(q0 + 80, *mv[:2])
            S.put(q0 + 82, *mv[2:])
            for j in range(8):
                S.put(q0 + 84 + j, k_read(0, j))
        if i <= 7:
            for n, x in enumerate([salu("s_bfe_u32", sXS, sQT, "0x%x" % (0x40000 + 4 * i)), salu("s_lshl_b32", sWS, sXS, 19),
                                   salu("s_add_u32", sWS, sWS, sWQ), salu("s_lshl_b32", sXS, sXS, 7), salu("s_add_u32", sXS, sXS, sX),
                                   salu("s_add_u32", sW1, sWS, 128)]):
                S.put(q0 + 26 + n, x)
        early = groups_at(i - 1)
        place_dmas(S, early + mid.get(i, []), [q0 + g for g in ((9, 17, 25, 33) if OPT["qsp"] and i == 9 else (9, 13, 17, 21, 25, 29, 31, 33))], q0)
        late = groups_at(i - 0.5) + extra.get(i, [])
        if i == 8 and 8 in extra:
            late = extra[8] + groups_at(i - 0.5)
        cand = [q0 + 37 + 4 * x for x in range(12)]
        nd = sum(len(g[1]) for g in late)
        if nd > 12:
            cand = sorted(cand + [q0 + 67, q0 + 71, q0 + 75, q0 + 79][:nd - 12])
        if OPT["qsp"] and i >= 8 and nd:
            allowed = [37, 41, 43, 45, 47, 49, 53, 55, 57, 59, 61, 65, 67, 69, 71, 73, 77, 79, 81]
            cand = [q0 + allowed[round(x * (len(allowed) - 1) / max(nd - 1, 1))] for x in range(nd)]
        place_dmas(S, late, cand, q0 + 35)
    if not second:
        for jj in range(10):
            q0 = 96 * 3
            if jj == 8:
                S.put(q0 + 65, valu("v_add_u32", vJ, D[9] - D[4] - 2 * 16384, vJ))
            for tt in range(2):
                g = q0 + [10, 11, 18, 19, 22, 23, 30, 31, 34, 42, 43, 46, 47, 54, 55, 58, 66, 67, 70, 71][2 * jj + tt]
                S.put(g, ds_read("ds_read_b64_tr_b16", ("a", 4 * jj + 2 * tt), 2, vJ, (jj >> 2) * 16384 + (jj & 3) * 1024 + tt * 8192))
            nq, pair = divmod(2 * jj, 5)
            g = 96 * (4 + jj // 3) + [19, 25, 31][jj % 3]
            if OPT["jlate"]:
                g = 96 * (3 + jj // 2) + ([79, 82] if (3 + jj // 2) in extra else [77, 81])[jj % 2]
            S.put(g - 1, salu("s_add_u32", sJ, sWOX if pair == 4 else sWOD, nq * 1310720 + pair * 4096))
            S.put(g, vstore(("a", 4 * jj), 4, vL16, S_WOT, sJ, 0, tag="jst", flags=SC1))
    if not second and OPT["ctq"]:
        q0 = 96 * OPT["ctq"]
        S.put(q0 + 33, touch_code(S, q0 + 18, "L_att-L_pc", sJ, vT[0], vT[1]))
    if second:
        eg = epilogue_groups(EPI)
        ep = []
        for i in range(8):
            for g in eg[3 * i:3 * i + 3]:
                ep += [(x, 96 * i, None) for x in g[0]]
            for g in eg[3 * i:3 * i + 3]:
                ep += [(x, 96 * i + OPT["stg"], None) for x in g[1] + [g[2]]]
        ep[-1] = (ep[-1][0], ep[-1][1], 96 * 9 - 1)
        S.stream(ep)
        S.put(96 * 9 + 2, salu("s_add_u32", sO, sO, 8 * 12288))
    q0 = 96 * 9
    g = q0 + 2
    for x in ([salu("s_add_u32", sWQ, sWQ, 512)] + set_pf_proj(True) + [salu("s_add_u32", "s68", "s3", "s4"), salu("s_and_b32", "s68", "s68", 3)] + by_role(sQT, "s68", TBLQ) if not second else set_pf_out()):
        S.put(g, *(x if isinstance(x, list) else [x]))
        g += 1 if g < q0 + 94 else 0
        while g in (q0 + 35, q0 + 83) or any(x.kind == "salu" for x in S.fixed.get(g, [])):
            g += 1
    if second:
        S.stream([(valu("v_mov_b32", r, vL16), q0 + 2, None) for r in vW + vX])
    if not OPT["tmax"]:
        S.put(q0 + 7, valu("v_mov_b32", "v242", sC), valu("v_mov_b32", "v243", sC))
    S.stream([(x, min(q0 + 12 * (2 * p + 1) + 2 * qs + 1 + 2, q0 + 95), None) for p, qs, x in conv_items(0, range(4))])
    if OPT["tmax"]:
        for T in (1, 2):
            S.stream([(x, q0 + 12 * (2 * p + 1) + 4 * T + 2 * qs + 1 + 2, None) for p, qs, x in conv_items(T, range(3))])
    S.put(-1, *prof_stamp(1))
    fix_m0(S)
    return S.finish(lead=first_reads(0), report=OPT["report"])


def lspread(qt, tmp):
    l = f"v{lacc(qt)}"
    return [valu("v_mov_b32", tmp, l), perm("v_permlane32_swap_b32", tmp, l), valu("v_add_f32", l, l, tmp),
            valu("v_mov_b32", tmp, l), perm("v_permlane16_swap_b32", tmp, l), valu("v_add_f32", l, l, tmp)]


def interleave(a, b):
    return [x for p in zip(a, b) for x in p]


def lcheck():
    l = [f"v{lacc(qt)}" for qt in range(6)]
    if OPT["tmax"] == 2:
        return [valu("v_add_f32", vT[0], l[0], l[1]), valu("v_add_f32", vT[1], l[2], l[3]), valu("v_add_f32", vT[0], vT[0], l[4]),
                valu("v_add_f32", vT[1], vT[1], l[5]), valu("v_add_f32", vT[0], vT[0], vT[1]), valu("v_cmp_ngt_f32", "vcc", sHI, vT[0])]
    if OPT["tmax"]:
        x = [f"v{mrun(qt)}" for qt in range(6)]
        return ([valu("v_fma_f32", x[q], x[q], sC, f"v{mneg(q)}") for q in range(6)] +
                [valu("v_add_f32", vT[0], l[0], l[1]), valu("v_max3_f32", vT[1], x[0], x[1], x[2]),
                 valu("v_add_f32", vT[0], vT[0], l[2]), valu("v_max3_f32", vT[1], vT[1], x[3], x[4]),
                 valu("v_add_f32", vT[0], vT[0], l[3]), valu("v_add_f32", vT[0], vT[0], l[4]),
                 valu("v_max_f32", vT[1], vT[1], x[5]), valu("v_add_f32", vT[0], vT[0], l[5]),
                 valu("v_cmp_ngt_f32", "s[56:57]", sLO, vT[1]),
                 valu("v_cmp_ngt_f32", "vcc", sHI, vT[0]),
                 salu("s_or_b64", "vcc", "vcc", "s[56:57]")])
    return [valu("v_add_f32", vT[0], l[0], l[1]), valu("v_min3_f32", vT[1], l[0], l[1], l[2]),
            valu("v_add_f32", vT[0], vT[0], l[2]), valu("v_min3_f32", vT[1], vT[1], l[3], l[4]),
            valu("v_add_f32", vT[0], vT[0], l[3]), valu("v_add_f32", vT[0], vT[0], l[4]),
            valu("v_min_f32", vT[1], vT[1], l[5]), valu("v_add_f32", vT[0], vT[0], l[5]),
            valu("v_cmp_nlt_f32", "s[56:57]", sLO, vT[1]),
            valu("v_cmp_ngt_f32", "vcc", sHI, vT[0]),
            salu("s_or_b64", "vcc", "vcc", "s[56:57]")]


def a_phase(last):
    S = Sched()
    qk = [[0] * 3 for _ in range(16)]
    pv = [[0] * 3 for _ in range(16)]

    def QK(t, T):
        qk[t][T] = S.n()
        for qs in range(2):
            for kt in range(2):
                s = ("v", sreg(2 * T + qs) + 4 * kt)
                for ks in range(4):
                    S.add(mfma(16, s, ("a", kf(kt, ks)), ("v", qf(2 * T + qs, ks)), None if ks == 0 else s))

    def PV(t, T):
        pv[t][T] = S.n()
        sums = []
        for qs in range(2):
            l = ("v", lacc(2 * T + qs))
            sums.append(mfma(16, l, ("v", ONES), ("v", sreg(2 * T + qs)), None if t == 0 else l))
        if t == 15:
            for m in sums:
                S.add(m)
        for dt in range(8):
            for qs in range(2):
                o = ("a", oacc(2 * T + qs, dt))
                S.add(mfma(16, o, ("a", vf(dt)), ("v", sreg(2 * T + qs)), None if t == 0 else o))
        if t < 15:
            for m in sums:
                S.add(m)

    for t in range(16):
        QK(t, 0)
        if t:
            PV(t - 1, 1)
        QK(t, 1)
        if t:
            PV(t - 1, 2)
        QK(t, 2)
        PV(t, 0)
    PV(15, 1)
    PV(15, 2)
    bar = {}
    kw, vw = Win(kA, KWANT[0]), Win(vA, VWANT[0])
    for t in range(16):
        g0 = pv[t - 1][2] if t else qk[0][1]
        bar[10 + t] = g0 - 1
        S.put(g0 - 1, *bar_seq(tags_for(10 + t), 12 + t))
        if t == 13:
            S.put(g0 - 1, scmp("s_cmp_eq_u32", sIT, 1), raw("s_cbranch_scc1 L_tail2", "branch", rd=["scc"]), label("L_CUT"))
        for n, m in enumerate(vw.move(VWANT[t])):
            S.put(g0 - 14 + 3 * (n // 2), m)
        for dt in range(8):
            for tt in range(2):
                S.put(g0 + 4 * dt + 1 + 2 * tt,
                      ds_read("ds_read_b64_tr_b16", ("a", vf(dt) + 2 * tt), 2, vA[dt], U[("V", t)]["addr"] - VWANT[t] + tt * 4096))
        if t < 15:
            for n, m in enumerate(kw.move(KWANT[t + 1])):
                S.put((qk[t][0] + 9 if t else qk[0][2] + 2) + (3 if t else 2) * (n // 2), m)
            for j in range(8):
                S.put(qk[t][2] + [8, 10, 12, 14, 17, 19, 21, 23][j], k_read(t + 1, j))
            if OPT["kbar"]:
                S.put(qk[t][2] + 6, needvm(tags_for(10.5 + t)), barrier())
            if OPT["kbar"] >= 2 and t:
                S.put(pv[t - 1][1] - 1, barrier())
            if OPT["kbar"] >= 3 and t:
                S.put(qk[t][0] - 1, barrier())
    if not last:
        S.stream([(m, pv[15][0], None) for m in vw.move(VWANT[0])])
    bar[26] = pv[15][1] - 1
    S.put(bar[26], *(prof_stamp(28) if last else bar_seq(tags_for(26), 28)))
    fr = [] if last else first_reads(0)
    for n, r in enumerate(fr[:10]):
        S.put(pv[15][1] + [1, 3, 5, 7, 9, 11, 13, 15, 16, 17][n], r)
    for n, r in enumerate(fr[10:]):
        S.put(pv[15][2] + 3 + 2 * n, r)
    stream = sorted([k for k, u in U.items() if "even" in u], key=lambda k: U[k]["even"])
    nk = len(stream)
    stream += [("P", 0), ("P", 1), ("P", 2)] if last else [("K", 0), ("V", 0), ("K", 1)]
    for e, key in enumerate(stream):
        cand = []
        for m in range(4):
            g = int(kpos(4 * e + m)) if e < nk else max(int(kpos(4 * e + m)), int(2 + 13.4 * (4 * (e - nk + 26) + m)))
            while S.used(g, False) > 0 or g - 1 in bar.values():
                g += 1
            cand.append(g)
        lo = bar.get(U[key]["iss"] if e < nk else (23, 24, 24)[e - nk], -2) + 1
        assert cand[0] > lo + (3 if e >= nk else 0), (key, cand, lo)
        if e == nk:
            S.put(cand[0] - 5, salu("s_add_u32", sKV, sKV, 262144))
        place_dmas(S, unit_dmas(key, sE if e >= nk else None), cand, lo)
    for n in range(24, 27):
        groups = groups_at(n - 1)
        nd = sum(len(g[1]) for g in groups)
        a, b = bar[n - 1] + 5, bar[n] - 1
        cand = []
        for x in range(nd):
            g = a + (b - a) * x // nd
            while any(i.kind in MEMK for k in (g - 1, g, g + 1) for i in S.fixed.get(k, []) if k == g or i.kind == "dma") or g in cand:
                g += 1
            cand.append(g)
        assert cand[-1] < bar[n]
        place_dmas(S, groups, cand, bar[n - 1] + 1)
    if OPT["xpace"]:
        for t in range(1, 14):
            for T in range(3):
                S.put(pv[t][T] + 17, nop(OPT["xpace"]))
                S.put(qk[t][T] + 15, nop(OPT["xpace"]))
    g = bar[OPT["flagbar"]] + 2
    S.put(g - 1, scmp("s_cmp_eq_u32", sIT, 0), salu("s_cselect_b32", sE, sFB, sFG), salu("s_cselect_b32", sJ, "0x10000", 1))
    S.put(g + 1, valu("v_mov_b32", f"v{EPI}", sJ))
    S.put(g + 4, atomic_add(f"v{EPI}", sE))
    g = qk[12 - OPT['t23']][0]
    S.put(g + 1, scmp("s_cmp_eq_u32", sIT, 1), salu("s_cselect_b32", sE, sFB, "0x1000"))
    S.put(g + 3, poll_load(vPOLL[1], sE))
    g = qk[13 - OPT['t23']][0]
    S.put(g + 1, salu("s_lshl_b32", sWANT, sIT, 23), valu("v_readfirstlane_b32", sQ, vPOLL[1]))
    S.put(g + 4, scmp("s_cmp_lt_u32", sQ, sWANT), raw("s_cbranch_scc1 L_spin3", "branch", rd=["scc"]), label("L_spin3_back"))
    if last:
        g = bar[25] + 2
        S.put(g, poll_load(vPOLL[0], sFG))
        su = [salu("s_lshr_b32", "s84", "s4", 2), salu("s_mul_i32", "s7", "s3", O_GRP), salu("s_mul_i32", "s58", "s84", 786432),
              salu("s_add_u32", "s7", "s7", "s58"), [salu("s_add_u32", f"s{S2B}", "s90", "s7"), salu("s_addc_u32", "s59", "s91", 0)],
              salu("s_and_b32", f"s{S2B + 1}", "s59", "0xffff"), salu("s_mov_b32", f"s{S2B + 2}", 786432),
              salu("s_mul_i32", sBB, sWAVE, 16 * 12288), salu("s_mov_b64", f"s[{TB}:{TB + 1}]", "s[34:35]")] + next_off(sB2, TB, sBB, 12288)
        su += [salu("s_and_b32", "s58", sWAVE, 1), salu("s_mul_i32", "s58", "s58", 3 * 2048), salu("s_sub_u32", "s59", 3 * 2048, "s58"),
               salu("s_lshr_b32", "s86", sWAVE, 1), salu("s_lshl_b32", "s86", "s86", 12), salu("s_add_u32", "s58", "s58", "s86"),
               salu("s_add_u32", "s59", "s59", "s86"), salu("s_sub_u32", "s86", 2048, "s86")]
        g += 1
        for x in su:
            while any(i.kind == "salu" for i in S.fixed.get(g, [])):
                g += 1
            S.put(g, *(x if isinstance(x, list) else [x]))
            g += 1
        va = [valu("v_add_u32", V2B[0], "s58", vL16), valu("v_add_u32", V2B[3], "s59", vL16)]
        for q in (1, 2):
            va += [valu("v_add_u32", V2B[q], "s86", V2B[q - 1]), valu("v_add_u32", V2B[3 + q], "s86", V2B[2 + q])]
        S.stream([(x, g, pv[15][1] - 3) for x in va])
        g = pv[15][0] + 12
        S.put(g, valu("v_readfirstlane_b32", sQ, vPOLL[0]))
        S.put(g + 3, salu("s_and_b32", sQ, sQ, "0xff"), scmp("s_cmp_lt_u32", sQ, 8),
              raw("s_cbranch_scc1 L_spin1", "branch", rd=["scc"]), label("L_spin1_back"))
        for n, l in enumerate([l for qi in range(6) for l in k2_loads_B(0, qi)]):
            S.put(pv[15][1] + 1 + 2 * n if n < 8 else pv[15][2] + 3 + 3 * (n - 8), l)
    for n, t in enumerate([int(x) for x in OPT["cta"].split(",") if x]):
        g = pv[t][0]
        while any(S.fixed.get(k) for k in range(g, g + 6)):
            g += 1
        S.put(g + 5, touch_code(S, g, f"L_att-L_pc+{(n + 1) * 12288}", sJ, f"v{EPI + 4}", f"v{EPI + 5}"))
    if OPT["codepf2"]:
        g = qk[OPT["codepf2"]][0] - 6
        S.put(g - 2, salu("s_mul_i32", sJ, sIT, "L_tail2-L_tail1"))
        S.put(g - 1, salu("s_add_u32", sJ, sJ, "L_tail1-L_pc"))
        S.put(g, salu("s_add_u32", sJ, sJ, sCP))
        S.put(g + 1, salu("s_min_u32", sJ, sJ, "L_endcode-L_pc-256"))
        S.put(g + 2, valu("v_and_b32", f"v{EPI + 2}", 16, vL16), valu("v_lshlrev_b32", f"v{EPI + 2}", 3, f"v{EPI + 2}"))
        S.put(g + 3, valu("v_add_u32", f"v{EPI + 2}", sJ, f"v{EPI + 2}"))
        S.put(g + 5, Ins(f"global_load_dword v{EPI + 3}, v{EPI + 2}, s[96:97]", "vld", rd=[f"v{EPI + 2}", "s96", "s97"], wr=[f"v{EPI + 3}"]))
    for T in (1, 2):
        if OPT["pk"] and not OPT["tmax"]:
            nfree = OPT["nfree"] if T == 1 else 0
            S.stream([(x, -1, None) for p, qs, x in conv_items(T, range(nfree))] +
                     [(x, qk[0][T] - 1, qk[0][T] - 1) for p, qs, x in conv_items(T, range(nfree, 4), packed=range(4))])
        else:
            c = [(x, -1, None) for p, qs, x in conv_items(T, range(3 if OPT["tmax"] else 0, 4))]
            c[-1] = (c[-1][0], -1, qk[0][T] - 1)
            S.stream(c)
    fin = []
    if OPT["one1"]:
        for T in range(3):
            fin += [(x, [pv[15][1] + 12, pv[15][2], pv[15][2] + 4][T], None) for x in interleave(lspread(2 * T, f"v{lacc(2 * T) + 1}"), lspread(2 * T + 1, f"v{lacc(2 * T + 1) + 1}"))]
    S.stream(fin + [(x, pv[15][2] + 4, None) for x in lcheck()])
    units = []
    for t in range(16):
        for qt in range(6):
            s = sreg(qt)
            T, qs = qt >> 1, qt & 1
            dl = pv[t][T] + qs - 2
            units.append(dict(e=qk[t][T] + 8 * qs + 7 + 2,
                              exps=[valu("v_exp_f32", f"v{s + r}", f"v{s + r}") for r in range(8)],
                              cvts=[(valu("v_cvt_pk_bf16_f32", f"v{s + r}", f"v{s + 2 * r}", f"v{s + 2 * r + 1}"), 2 * r + 2, dl) for r in range(4)]))
    if OPT["tmax"]:
        for n, u in enumerate(units):
            t, qt = divmod(n, 6)
            s, m, mn = sreg(qt), f"v{mrun(qt)}", f"v{mneg(qt)}"
            fma = [valu("v_fma_f32", f"v{s + r}", f"v{s + r}", sC, mn) for r in range(8)]
            if t == 0:
                pre = [valu("v_max3_f32", m, f"v{s}", f"v{s + 1}", f"v{s + 2}"), valu("v_max3_f32", mn, f"v{s + 3}", f"v{s + 4}", f"v{s + 5}"),
                       valu("v_max3_f32", m, m, f"v{s + 6}", f"v{s + 7}"), valu("v_max_f32", m, m, mn)]
                for op in ("v_permlane32_swap_b32", "v_permlane16_swap_b32"):
                    pre += [valu("v_mov_b32", mn, m), perm(op, mn, m), valu("v_max_f32", m, m, mn)]
                pre += [valu("v_mul_f32", mn, sNC, m)] + fma
                need = [len(pre) - 7 + r for r in range(8)]
            else:
                pre, need = [], []
                for r in range(0, 8, 2):
                    if OPT["tmax"] == 1:
                        pre += [valu("v_max3_f32", m, m, f"v{s + r}", f"v{s + r + 1}")]
                    pre += [fma[r], fma[r + 1]]
                    need += [len(pre) - 1, len(pre)]
            u["pre"] = pre
            u["exps"] = list(zip(u["exps"], need))
        def xok(g):
            n = OPT["xhi"] if g < qk[2][0] or g >= qk[13][0] else OPT["xnum"]
            return (g * n) % 100 < n
        S.packers.append(SoftmaxPacker2(units,
                                        lambda g: 1 if S.used(g, False) < 2 and xok(g) else 0))
    else:
        S.packers.append(SoftmaxPacker(units))
    fix_m0(S)
    return S.finish(lead=[k_read(0, j) for j in range(8)], report=OPT["report"])


def slow_path():
    o = [label("L_slow"), drain(), nop(16)]
    KF = [EPI + 4 * k for k in range(4)]
    VFR = 56
    vM = [f"v{120 + q}" for q in range(6)]
    vKo, vVo, vt, vu = "v60", "v61", "v62", "v63"
    o += [valu("v_lshrrev_b32", vt, 4, vL16), valu("v_and_b32", vu, 15, vt), valu("v_lshrrev_b32", vt, 4, vt),
          valu("v_lshlrev_b32", vKo, 8, vu), valu("v_lshl_add_u32", vKo, vt, 4, vKo),
          valu("v_lshlrev_b32", vVo, 10, vt), valu("v_lshl_add_u32", vVo, vu, 1, vVo)]
    o += [salu("s_sub_u32", "s58", sKV, 262144)]
    o += [valu("v_mov_b32", m, "0xff800000") for m in vM]

    def scores():
        r = []
        for kt in range(2):
            r += [salu("s_add_u32", "s61", "s59", kt * 4096)]
            r += [vload(("v", KF[ks]), 4, vKo, S_K, "s61", 64 * ks) for ks in range(4)] + [drain()]
            for qt in range(6):
                s = ("v", sreg(qt) + 4 * kt)
                r += [mfma(16, s, ("v", KF[ks]), ("v", qf(qt, ks)), None if ks == 0 else s) for ks in range(4)]
            r += [nop(16)]
        return r
    o += [salu("s_mov_b32", "s59", "s58"), salu("s_mov_b32", "s60", 16), label("L_slow1")] + scores()
    for qt in range(6):
        o += [valu("v_max3_f32", vM[qt], vM[qt], f"v{sreg(qt) + r}", f"v{sreg(qt) + r + 1}") for r in range(0, 8, 2)]
    o += [salu("s_add_u32", "s59", "s59", 8192), salu("s_sub_u32", "s60", "s60", 1), scmp("s_cmp_lg_u32", "s60", 0),
          raw("s_cbranch_scc1 L_slow1", "branch", rd=["scc"])]
    for qt in range(6):
        for op in ("v_permlane32_swap_b32", "v_permlane16_swap_b32"):
            o += [valu("v_mov_b32", vt, vM[qt]), nop(2), perm(op, vt, vM[qt]), valu("v_max_f32", vM[qt], vM[qt], vt)]
        o += [valu("v_mov_b32", f"v{lacc(qt) + r}", 0) for r in range(4)]
    o += [valu("v_accvgpr_write_b32", f"a{r}", 0) for r in range(192)]
    o += [salu("s_mov_b32", "s59", "s58"), salu("s_mov_b32", "s60", 16), label("L_slow2")] + scores()
    for qt in range(6):
        s = sreg(qt)
        o += [valu("v_sub_f32", f"v{s + r}", f"v{s + r}", vM[qt]) for r in range(8)]
        if OPT["tmax"]:
            o += [valu("v_mul_f32", f"v{s + r}", sC, f"v{s + r}") for r in range(8)]
        o += [valu("v_exp_f32", f"v{s + r}", f"v{s + r}") for r in range(8)]
        o += [valu("v_cvt_pk_bf16_f32", f"v{s + r}", f"v{s + 2 * r}", f"v{s + 2 * r + 1}") for r in range(4)]
    o += [salu("s_add_u32", "s57", "s59", 4096)]
    for dt in range(8):
        for j in range(8):
            o += [vload(("v", 184 + j), 1, vVo, S_V, "s57" if j >= 4 else "s59", (j & 3) * 256 + 32 * dt, op="buffer_load_ushort")]
        o += [drain()]
        o += [valu("v_lshl_or_b32", f"v{VFR + r}", f"v{185 + 2 * r}", 16, f"v{184 + 2 * r}") for r in range(4)]
        o += [mfma(16, ("a", oacc(qt, dt)), ("v", VFR), ("v", sreg(qt)), ("a", oacc(qt, dt))) for qt in range(6)]
        o += [nop(8)]
    o += [mfma(16, ("v", lacc(qt)), ("v", ONES), ("v", sreg(qt)), ("v", lacc(qt))) for qt in range(6)] + [nop(16)]
    o += [salu("s_add_u32", "s59", "s59", 8192), salu("s_sub_u32", "s60", "s60", 1), scmp("s_cmp_lg_u32", "s60", 0),
          raw("s_cbranch_scc1 L_slow2", "branch", rd=["scc"])]
    o += [nop(16)]
    if OPT["one1"]:
        for qt in range(6):
            o += lspread(qt, vt)
    o += [drain(), scmp("s_cmp_eq_u32", sIT, 1), raw("s_cbranch_scc1 L_back2", "branch", rd=["scc"]), raw("s_branch L_back1", "branch")]
    return o


def srd(base, lo, hi, nbytes):
    return [salu("s_mov_b32", f"s{base}", lo), salu("s_and_b32", f"s{base + 1}", hi, "0xffff"),
            salu("s_mov_b32", f"s{base + 2}", nbytes), salu("s_mov_b32", f"s{base + 3}", "0x20000")]


def decode_wg():
    return [salu("s_and_b32", "s3", "s2", 7), salu("s_lshr_b32", "s4", "s2", 6), salu("s_lshl_b32", "s3", "s3", 2),
            salu("s_add_u32", "s3", "s3", "s4"), salu("s_lshr_b32", "s4", "s2", 3), salu("s_and_b32", "s4", "s4", 7),
            salu("s_lshr_b32", "s5", "s3", 4), salu("s_and_b32", "s6", "s3", 15)]


def code_touch():
    return [salu("s_lshr_b32", "s68", "s2", 3), salu("s_lshl_b32", "s68", "s68", 11),
            valu("v_lshrrev_b32", "v11", 6, "v0"), valu("v_and_b32", "v12", 3, "v0"), valu("v_lshlrev_b32", "v11", 9, "v11"),
            valu("v_lshl_add_u32", "v11", "v12", 7, "v11"), valu("v_add_u32", "v11", "s68", "v11")] + (
            [valu("v_min_u32", "v11", "L_att-L_pc", "v11")] if OPT["cplim"] else []) + [
            Ins("global_load_dword v253, v11, s[96:97]", "vld", rd=["v11", "s96", "s97"], wr=["v253"])]


def kv_patterns():
    i, a, b, c = "v1", "v2", "v3", "v4"
    o = [valu("v_lshrrev_b32", a, 4, i), valu("v_and_b32", b, 15, i),
         valu("v_xor_b32", c, a, b), valu("v_lshlrev_b32", c, 4, c), valu("v_lshl_add_u32", vK[0], a, 8, c)]
    o += [valu("v_xor_b32", vK[m], m << 6, vK[0]) for m in range(1, 4)]
    o += [valu("v_lshlrev_b32", "v5", 1, a), valu("v_xor_b32", "v5", "v5", b), valu("v_lshlrev_b32", "v5", 4, "v5"),
          valu("v_lshl_add_u32", vV[0], a, 8, "v5"), valu("v_xor_b32", vV[1], 128, vV[0])]
    return o


sT2 = "s101"


def prologue():
    o = [scmp("s_cmp_ge_u32", "s2", 256), raw("s_cbranch_scc1 L_end", "branch", rd=["scc"])]
    o += [raw("s_getpc_b64 s[96:97]", wr=["s96", "s97"]), label("L_pc")]
    if OPT["dbgt"]:
        o += [raw("s_memrealtime s[72:73]", wr=["s72", "s73"])]
    if OPT["codepf"] == 2:
        o += code_touch()
    o += decode_wg()
    o += [salu("s_mul_i32", "s7", "s5", 40), salu("s_add_u32", "s68", "s0", "s7"), salu("s_addc_u32", "s69", "s1", 0),
          raw("s_load_dwordx8 s[56:63], s[68:69], 0", wr=regs("s", 56, 8)),
          raw("s_load_dwordx2 s[94:95], s[68:69], 32", wr=["s94", "s95"]),
          raw("s_load_dwordx4 s[88:91], s[0:1], 88", wr=regs("s", 88, 4)),
          raw("s_load_dwordx2 s[92:93], s[0:1], 80", wr=["s92", "s93"])]
    i, a, b, c = "v1", "v2", "v3", "v4"
    o += [valu("v_lshrrev_b32", a, 6, "v0"), valu("v_and_b32", i, 63, "v0"),
          valu("v_readfirstlane_b32", sWAVE, a), valu("v_lshlrev_b32", vL16, 4, i)]
    o += [valu("v_lshrrev_b32", a, 4, i), valu("v_and_b32", b, 7, i), valu("v_lshrrev_b32", "v5", 3, i),
          valu("v_and_b32", c, 1, a), valu("v_lshlrev_b32", c, 1, c), valu("v_xor_b32", c, c, b), valu("v_lshlrev_b32", c, 4, c),
          valu("v_lshl_add_u32", vW[0], "v5", 13, c),
          valu("v_xor_b32", vW[1], 64, vW[0]), valu("v_add_u32", vW[1], 64512, vW[1]),
          valu("v_add_u32", vW[2], 2 * 64512, vW[0]), valu("v_add_u32", vW[3], 2 * 64512, vW[1])]
    o += [valu("v_xor_b32", c, a, b), valu("v_lshlrev_b32", c, 4, c), valu("v_mul_u32_u24", "v6", 1280, "v5"),
          valu("v_add_u32", vX[0], "v6", c),
          valu("v_xor_b32", vX[1], 64, vX[0]), valu("v_add_u32", vX[1], 9216, vX[1]),
          valu("v_add_u32", vX[2], 2 * 9216, vX[0]), valu("v_add_u32", vX[3], 2 * 9216, vX[1])]
    o += [salu("s_lshr_b32", "s70", sWAVE, 1), salu("s_and_b32", "s71", sWAVE, 1),
          salu("s_lshl_b32", sW4K, sWAVE, 12), salu("s_mul_i32", sW6K, sWAVE, 6144),
          salu("s_lshl_b32", "s7", "s4", 2), salu("s_add_u32", "s7", "s7", "s70"),
          salu("s_lshl_b32", sWQ, "s71", 18), salu("s_lshl_b32", sT0, "s7", 8), salu("s_add_u32", sWQ, sWQ, sT0),
          salu("s_mul_i32", sX, "s6", 245760), salu("s_mul_i32", sT0, sWAVE, 61440), salu("s_add_u32", sX, sX, sT0)]
    o += [raw("s_waitcnt lgkmcnt(0)", "drainlg")]
    o += srd(S_X, "s56", "s57", 3932160) + srd(S_WQ, "s62", "s63", 5242880)
    o += [salu("s_add_u32", "s68", "s3", "s4"), salu("s_and_b32", "s68", "s68", 3)]
    for x in by_role("s69", "s68", TBLQ0):
        o += x if isinstance(x, list) else [x]
    for st in range(2):
        o += [salu("s_bfe_u32", sT0, "s69", "0x%x" % (0x40000 + 4 * st)), salu("s_lshl_b32", sT1, sT0, 19), salu("s_lshl_b32", sT0, sT0, 7),
              salu("s_add_u32", sPF[("W", st, 0)][0], sT1, sWQ), salu("s_add_u32", sPF[("X", st)][0], sT0, sX),
              salu("s_add_u32", sT2 if st else sPF[("W", st, 1)][0], sPF[("W", st, 0)][0], 128), salu("s_add_u32", sPF[("X", st)][1], sPF[("X", st)][0], 40960)]
    for k in [("W", 0, 0), ("X", 0), ("W", 0, 1), ("W", 1, 0), ("X", 1)]:
        for pre, ds in unit_dmas(k):
            o += pre[::-1] + ds
    if OPT["warmw"]:
        o += [salu("s_mul_i32", "s68", "s6", 40 * 8192), salu("s_lshl_b32", "s69", "s4", 10), salu("s_add_u32", "s68", "s68", "s69"),
              salu("s_mul_i32", "s69", sWAVE, 10 * 8192), salu("s_add_u32", "s68", "s68", "s69"),
              valu("v_lshlrev_b32", b, 7, b), valu("v_lshl_add_u32", "v6", "v5", 13, b), valu("v_and_b32", c, 1, "v5"),
              valu("v_lshl_add_u32", c, c, 13, b), salu("s_add_u32", "s69", "s68", 8 * 8192)]
        o += [vload(("v", 254), 1, "v6", S_WQ, "s68", 0), vload(("v", 255), 1, c, S_WQ, "s69", 0)]
    o += [salu("s_lshr_b32", "s68", "s2", 3), salu("s_lshl_b32", "s68", "s68", 2), salu("s_add_u32", "s68", "s68", sWAVE), salu("s_lshl_b32", sCP, "s68", 8)]
    if OPT["codepf"] == 1:
        o += code_touch()
    o += srd(S_WO, "s94", "s95", 5242880)
    o += [salu("s_lshl_b32", "s68", "s6", 3), salu("s_add_u32", "s68", "s68", "s4"),
          salu("s_mul_i32", sWOS, "s68", 40960), salu("s_mul_i32", sT0, sWAVE, 10240), salu("s_add_u32", sWOS, sWOS, sT0)]
    for jj in range(OPT["jpro"]):
        for pre, ds in unit_dmas(("J", jj), sE):
            o += pre[::-1] + ds
    o += srd(S_K, "s58", "s59", 67108864) + srd(S_V, "s60", "s61", 67108864) + [salu("s_mov_b32", sW1, sT2)]
    o += srd(S_OST, "s90", "s91", WS_WOT) + srd(S_FLG, "s88", "s89", 256)
    o += [salu("s_add_u32", "s68", "s90", WS_WOT), salu("s_addc_u32", "s69", "s91", 0)] + srd(S_WOT, "s68", "s69", 2 * WOT_BLK)
    o += [salu("s_lshl_b32", sFG, "s3", 2), salu("s_lshl_b32", sFB, "s5", 6)]
    if OPT["dbgt"]:
        o += [salu("s_add_u32", sFG, sFG, 128), salu("s_add_u32", sFB, sFB, 128)]
    o += [
          valu("v_cmp_eq_u32", "vcc", 0, "v0"), valu("v_mov_b32", "v10", "0x1000"), valu("v_mov_b32", f"v{ONES}", "0x3f803f80"),
          valu("v_cndmask_b32", vFLG, "v10", 0, "vcc"),
          ]
    if OPT["one1"]:
        o += [valu("v_and_b32", "v10", 15, "v0"), valu("v_cmp_eq_u32", "vcc", 0, "v10"), valu("v_cndmask_b32", f"v{ONES}", 0, f"v{ONES}", "vcc")]
    o += [valu("v_mov_b32", f"v{ONES + r}", f"v{ONES}") for r in range(1, 4)]
    if OPT["prof"]:
        o += [salu("s_add_u32", "s68", "s90", WS_PROF), salu("s_addc_u32", "s69", "s91", 0)] + srd(S_PROF, "s68", "s69", 1 << 20)
        o += [salu("s_lshl_b32", sPROF, "s2", 2), salu("s_add_u32", sPROF, sPROF, sWAVE), salu("s_lshl_b32", sPROF, sPROF, 10)]
        o += prof_stamp(0, 8)
    o += [salu("s_lshl_b32", sKV, "s6", 5), salu("s_add_u32", sKV, sKV, "s7"), salu("s_lshl_b32", sKV, sKV, 17),
          salu("s_lshl_b32", sT0, "s71", 12),
          salu("s_lshr_b32", sROT, "s2", 3), salu("s_lshl_b32", sT1, "s2", 1), salu("s_add_u32", sROT, sROT, sT1),
          salu("s_and_b32", sROT, sROT, 0 if OPT["norot"] else 15), salu("s_lshl_b32", sROT, sROT, 13), salu("s_add_u32", sROT, sROT, sT0)]
    if OPT["tlbw"]:
        for n, (r, so) in enumerate(((S_K, sKV), (S_V, sKV), (S_WO, sWOS))):
            o += [Ins(f"buffer_load_dword v{244 + n}, off, s[{r}:{r + 3}], {so} nt", "vld", rd=[so] + regs("s", r, 4))]
    if OPT["kpro"]:
        o += kv_patterns()
        for k in [("K", 0), ("V", 0), ("K", 1)][:OPT["kpro"]]:
            for pre, ds in unit_dmas(k, sE):
                o += pre + [nop(1)] + ds
    o += [salu("s_mul_i32", sO, "s3", O_GRP), salu("s_mul_i32", sT0, "s71", 786432), salu("s_add_u32", sO, sO, sT0),
          salu("s_lshr_b32", sT0, "s4", 1), salu("s_mul_i32", sT0, sT0, 16 * 12288), salu("s_add_u32", sO, sO, sT0),
          salu("s_and_b32", sT0, "s4", 1), salu("s_mul_i32", sT0, sT0, 4 * 12288), salu("s_add_u32", sO, sO, sT0),
          salu("s_mul_i32", sT0, "s70", 2 * 12288), salu("s_add_u32", sO, sO, sT0)]
    o += [salu("s_lshl_b32", "s68", "s6", 3), salu("s_add_u32", "s68", "s68", "s4"),
          salu("s_lshr_b32", sT0, "s68", 1), salu("s_and_b32", sT1, sT0, "0x33"),
          salu("s_and_b32", "s69", sT0, 4), salu("s_lshl_b32", "s69", "s69", 1), salu("s_or_b32", sT1, sT1, "s69"),
          salu("s_and_b32", "s69", sT0, 8), salu("s_lshr_b32", "s69", "s69", 1), salu("s_or_b32", sT1, sT1, "s69"),
          salu("s_mul_i32", sWOD, sT1, 20480),
          salu("s_and_b32", sT0, "s68", 1), salu("s_lshl_b32", sT0, sT0, 11), salu("s_add_u32", sWOD, sWOD, sT0),
          salu("s_mul_i32", sT0, "s5", WOT_BLK), salu("s_add_u32", sWOD, sWOD, sT0),
          salu("s_lshl_b32", sT0, "s70", 12), salu("s_add_u32", sWOD, sWOD, sT0),
          salu("s_lshl_b32", sT0, "s71", 10), salu("s_add_u32", sWOD, sWOD, sT0),
          salu("s_mul_i32", sT0, "s70", 1310720 - 20480), salu("s_add_u32", sWOX, sWOD, sT0)]
    o += [salu("s_add_u32", "s68", "s3", "s4"), salu("s_and_b32", "s68", "s68", 3)]
    for x in by_role(sQT, "s68", TBLQ1):
        o += x if isinstance(x, list) else [x]
    cbits = struct.unpack("<I", struct.pack("<f", math.log2(math.e) / math.sqrt(128.0)))[0]
    o += [salu("s_mov_b32", sC, "0x%x" % cbits), salu("s_mov_b32", sHI, "0x5d800000" if OPT["tmax"] == 1 else "0x53800000" if OPT["tmax"] else "0x4e800000"),
          salu("s_mov_b32", sLO, "0x42200000" if OPT["tmax"] else "0x30800000"), salu("s_mov_b32", sNC, "0x%x" % (cbits | 0x80000000)),
          salu("s_mov_b32", sIT, 0)]
    if not OPT["kpro"]:
        o += kv_patterns()
    o += [salu("s_lshl_b32", "s69", "s70", 13), salu("s_mul_i32", "s68", "s71", 12288), salu("s_add_u32", "s68", "s68", XS[0]),
          valu("v_bfe_u32", "v8", i, 2, 2), valu("v_and_b32", "v9", 3, i)]
    o += [valu("v_lshl_add_u32", c, b, 8, c), valu("v_add_u32", c, KWANT[15], c), valu("v_add_u32", kA[0], "s69", c)]
    o += [valu("v_xor_b32", kA[j], j << 6, kA[0]) for j in range(1, 4)]
    o += [valu("v_lshl_add_u32", "v5", a, 2, "v8"), valu("v_lshlrev_b32", c, 8, "v5"), valu("v_and_b32", "v6", 7, "v5"),
          valu("v_lshl_add_u32", c, "v6", 5, c), valu("v_lshl_add_u32", c, "v9", 3, c),
          valu("v_add_u32", c, VWANT[0], c), valu("v_add_u32", vA[0], "s69", c)]
    o += [valu("v_xor_b32", vA[d], d << 5, vA[0]) for d in range(1, 8)]
    o += [valu("v_lshl_add_u32", c, a, 3, "v8"), valu("v_lshlrev_b32", c, 7, c),
          valu("v_and_b32", "v5", 2, "v8"), valu("v_and_b32", "v7", 1, a), valu("v_lshl_add_u32", "v5", "v7", 2, "v5"),
          valu("v_xor_b32", "v5", "v5", "v9"), valu("v_lshl_add_u32", c, "v5", 4, c), valu("v_add_u32", wA[0], "s69", c),
          valu("v_xor_b32", wA[1], 64, wA[0])]
    o += [valu("v_lshrrev_b32", "v5", 1, b), valu("v_xor_b32", "v5", "v5", a),
          valu("v_lshlrev_b32", "v5", 4, "v5"), valu("v_lshl_add_u32", c, b, 7, "v5"),
          valu("v_xor_b32", "v5", 64, c), valu("v_add_u32", xA[0], "s68", c), valu("v_add_u32", xA[1], "s68", "v5")]
    o += [salu("s_lshl_b32", "s68", "s70", 2), salu("s_lshl_b32", "s69", "s71", 3), salu("s_add_u32", "s69", "s69", WOJ_ADDR),
          valu("v_lshrrev_b32", c, 1, a), valu("v_lshlrev_b32", c, 12, c), valu("v_lshl_add_u32", c, "v6", 7, c),
          valu("v_add_u32", c, "s69", c), valu("v_add_u32", "v5", "s68", "v9"), valu("v_lshrrev_b32", "v6", 1, "v6"),
          valu("v_xor_b32", "v5", "v5", "v6"), valu("v_lshl_add_u32", vJ, "v5", 4, c)]
    o += [needvm([("W", 0, 0), ("X", 0)]), barrier()] + first_reads(0)
    return o


def acc2(pi, xy, qi):
    return ((pi * 6 + qi) * 2 + xy) * 4


def a2(st, pi, ks, xy):
    if st == 0:
        return (240 if pi == 0 else 48 + 16 * pi) + 8 * ks + 4 * xy
    return (48 if pi == 0 else 112 + 16 * pi) + 8 * ks + 4 * xy


def b2(st, qi, ks):
    return (192 if st == 0 else 0) + 8 * qi + 4 * ks


V2A = ["v%d" % i for i in range(240, 245)]


def k2_loads_A(st, pi, soff=None):
    return [vload(("a", a2(st, pi, ks, xy)), 4, V2A[pi], S2A, soff or sA2, ks * 2048 + xy * 1024, flags=SC1) for xy in range(2) for ks in range(2)]


def k2_loads_B(st, qi):
    return [vload(("a", b2(st, qi, ks)), 4, V2B[qi], S2B, sB2, ks * 1024, flags=SC1) for ks in range(2)]


def k2_lds_A(st, pi):
    out = []
    for xy in range(2):
        for ks in range(2):
            r = [r for r, (s_, p_, off) in PF2.items() if (s_, p_) == (st, pi) and (r not in ("s87", "s99") or off == 2048 * ks)][0]
            key = [k for k, rs in sPF.items() if r in rs][0]
            if key[0] == "W":
                out.append(ds_read("ds_read_b128", ("a", a2(st, pi, ks, xy)), 4, V2W, U[key]["addr"] + ks * 2048 + xy * 1024))
            elif key[0] == "P":
                out.append(ds_read("ds_read_b128", ("a", a2(st, pi, ks, xy)), 4, V2P,
                                   (0 if key[1] == 1 else PADDR[key] - D[4]) + ks * 2048 + xy * 1024))
            elif r == sPF[key][0]:
                out.append(ds_read("ds_read_b128", ("a", a2(st, pi, ks, xy)), 4, V2X, U[key]["addr"] - XS[0] + ks * 2048 + xy * 1024))
            else:
                out.append(ds_read("ds_read_b128", ("a", a2(st, pi, ks, xy)), 4, V2X, U[key]["addr"] - XS[0] + 4096 + xy * 1024))
    return out


def k2_steps(S, first, loadA, loadB, pend, check=False, late=(), final=None):
    for st in range(2):
        q0 = S.n()
        tiles = [(pi, xy, qi) for pi in range(5) for xy in range(2) for qi in range(6)]
        if final is not None and st == 1:
            tiles = [t for t in tiles if t[2] >= 3] + [t for t in tiles if t[2] < 3]
            for n, x in enumerate(final[0]):
                S.put(q0 + 2 + n, x)
            for n, x in enumerate(final[1]):
                S.put(q0 + 61 + 2 * n, x)
        for pi, xy, qi in tiles:
            for ks in range(2):
                acc = ("v", acc2(pi, xy, qi))
                S.add(mfma(16, acc, ("a", a2(st, pi, ks, xy)), ("a", b2(st, qi, ks)),
                           None if (first and st == 0 and ks == 0) else acc))
        pos = [int(0.5 + 3.75 * n) for n in range(32)]
        if pend[st]:
            ls = k2_loads_A(1 - st, 4)
            S.put(q0 + pos[0], ls[2])
            S.put(q0 + pos[1], ls[3])
            for n, x in enumerate(next_off(sA2, TA, sAB, 20480)):
                S.put(q0 + pos[1] + 1 + n, x)
        if first and st == 0:
            for n, (pre, l) in enumerate(late):
                S.put(q0 + 6 * n + 2, *pre)
                S.put(q0 + 6 * n + 3, l)
            for n, r in enumerate(k2_lds_A(1, 0) + k2_lds_A(1, 1) + k2_lds_A(1, 2)):
                S.put(q0 + 6 * n + 5 if n < 8 else q0 + 54 + 4 * (n - 8), r)
            S.put(q0 + 70, valu("v_add_u32", V2P, D[9] - D[5], V2P))
            for n, r in enumerate(k2_lds_A(1, 3)):
                S.put(q0 + 73 + 4 * n, r)
        elif loadB[st]:
            for n, l in enumerate([l for qi in range(6) for l in k2_loads_B(1 - st, qi)]):
                S.put(q0 + pos[2 + n], l)
            for n, x in enumerate(next_off(sB2, TB, sBB, 12288)):
                S.put(q0 + pos[13] + 1 + n, x)
        if loadA[st]:
            n = 14
            for pi in range(5):
                ls = k2_loads_A(st, pi)
                for x, l in enumerate(ls if pi < 4 else ls[:2]):
                    assert pos[n] >= 24 * pi + 11 + 12 * (x >> 1), (pi, x, pos[n])
                    S.put(q0 + pos[n], l)
                    n += 1
        if first and st == 1:
            S.put(q0 + 110, needvm(["ost"]), barrier())
            S.put(q0 + 111, valu("v_mov_b32", V2P, "0x100"))
            S.put(q0 + 114, atomic_add(V2P, sFG))
        if check and st == 1:
            S.put(q0 + 1, scmp("s_cmp_eq_u32", sCNT, 5), salu("s_cselect_b32", sWANT, 8, 0), salu("s_cselect_b32", sPL, sFG, "0x1000"))
            S.put(q0 + 2, poll_load(V2P, sPL))
        if check and st == 0:
            S.put(q0 + 1, valu("v_readfirstlane_b32", sQ, V2P))
            S.put(q0 + 6, salu("s_bfe_u32", sQ, sQ, "0x80008"), scmp("s_cmp_lt_u32", sQ, sWANT),
                  raw("s_cbranch_scc1 L_spin2", "branch", rd=["scc"]), label("L_spin2_back"))


def k2_first(S, late):
    seq = [(0, p) for p in range(4)] + [(1, p) for p in range(3)] + [(0, 4), (1, 3), (1, 4)]
    at = {}
    for st, pi in seq:
        at[(st, pi)] = S.n()
        for xy in range(2):
            for qi in range(6):
                for ks in range(2):
                    acc = ("v", acc2(pi, xy, qi))
                    S.add(mfma(16, acc, ("a", a2(st, pi, ks, xy)), ("a", b2(st, qi, ks)), None if (st == 0 and ks == 0) else acc))
    for n, (pre, l) in enumerate(late):
        S.put(13 * n + 2, *pre)
        S.put(13 * n + 3, l)
    assert 13 * len(late) < at[(0, 4)]
    g = 5
    for pi in range(4):
        for r in k2_lds_A(1, pi):
            while S.fixed.get(g):
                g += 1
            S.put(g, r)
            g += 4
    items = []
    for pi in range(5):
        for x, l in enumerate(k2_loads_A(0, pi, sSO)):
            items.append((l, at[(0, pi)] + 11 + 12 * (x >> 1), 240 + 24 * pi + 12 * (x >> 1)))
        for x, l in enumerate(k2_loads_A(1, pi)[:4 if pi < 4 else 2]):
            items.append((l, at[(1, pi)] + 11 + 12 * (x >> 1), 360 + 24 * pi + 12 * (x >> 1)))
    for qi in range(6):
        for ks, l in enumerate(k2_loads_B(0, qi)):
            items.append((l, at[(0, 4)] + 12 + 2 * qi + ks, 200 + 2 * qi + ks))
    items.sort(key=lambda i: i[2])
    g, lastB = 11, 0
    while items:
        c = [i for i in items if i[1] <= g]
        if c and not any(S.fixed.get(k) and any(j.kind in ("vld", "vst") for j in S.fixed[k]) for k in ((g - 2, g - 1, g + 1) if g < 180 else (g - 1, g + 1))) and not S.fixed.get(g):
            S.put(g, c[0][0])
            if sB2 in c[0][0].rd:
                lastB = g
            items.remove(c[0])
        g += 1
        assert g < 240, items
    for n, x in enumerate(next_off(sB2, TB, sBB, 12288)):
        S.put(lastB + 1 + n, x)
    if OPT["p2st"]:
        for n, g in enumerate((47, 95, 143, 167, 191, 215)):
            S.put(g, raw(f"s_memrealtime s[76:77]", wr=["s76", "s77"]), raw("s_waitcnt lgkmcnt(0)", "drainlg"), salu("s_mov_b32", f"s{101 - n}", "s76"))
    g = 226
    while S.fixed.get(g) or S.fixed.get(g + 1) or S.fixed.get(g + 3):
        g += 1
    S.put(g, needvm(["ost"]), barrier())
    S.put(g + 1, valu("v_mov_b32", V2P, "0x100"))
    S.put(g + 3, atomic_add(V2P, sFG))


def spin(name, back, dsts, soffs, conds):
    o = [label(name), salu("s_mov_b32", sSPIN, 0), label(name + "_loop"), raw("s_sleep 8")]
    o += [poll_load(d, so) for d, so in zip(dsts, soffs)]
    o += [drain(), salu("s_add_u32", sSPIN, sSPIN, 1), scmp("s_cmp_gt_u32", sSPIN, "0x20000"),
          raw(f"s_cbranch_scc1 {back}", "branch", rd=["scc"])]
    for d, (sh, msk, want) in zip(dsts, conds):
        o += [valu("v_readfirstlane_b32", sQ, d), nop(4)]
        if sh:
            o += [salu("s_lshr_b32", sQ, sQ, sh)]
        if msk:
            o += [salu("s_and_b32", sQ, sQ, msk)]
        o += [scmp("s_cmp_lt_u32", sQ, want), raw(f"s_cbranch_scc1 {name}_loop", "branch", rd=["scc"])]
    o += [raw(f"s_branch {back}", "branch")]
    return o


def phase2():
    o = [valu("v_mov_b32", V2L, vL16), salu("s_and_b32", "s85", "s4", 3), salu("s_and_b32", "s32", sWAVE, 1), salu("s_lshr_b32", "s33", sWAVE, 1),
         salu("s_mul_i32", sAB, sWAVE, 16 * 20480), salu("s_lshr_b64", f"s[{TA}:{TA + 1}]", "s[34:35]", 4)]
    o += next_off(sB2, TB, sBB, 12288)
    o += [valu("v_add_u32", V2W, sW4K, V2L), salu("s_add_u32", "s7", sW6K, XS[0]), valu("v_add_u32", V2X, "s7", V2L), valu("v_add_u32", V2P, D[4], V2W)]
    o += [scmp("s_cmp_eq_u32", "s33", 0)]
    o += [salu("s_cselect_b32", f"s{47 + q}", q, 2 - q) for q in range(3)]
    o += [salu("s_cselect_b32", f"s{36 + pi}", pi, 4 - pi) for pi in range(5)]
    o += [salu("s_mul_i32", "s34", "s32", 3)]
    o += [salu("s_add_u32", f"s{47 + q}", f"s{47 + q}", "s34") for q in range(3)]
    save = list(vR)
    vR[:] = [f"v{16 + q}" for q in range(6)]
    nl = 12 if OPT["pace"] else 8
    eg = epilogue_groups(0, lambda n: 240 - 4 * (24 - n) - (0 if OPT["pace"] else 16) if n >= 24 - nl else 32 + 4 * n, V2L)
    vR[:] = save
    b1 = [l for qi in range(6) for l in k2_loads_B(1, qi)]
    for n, (v, pre, st, imm) in enumerate(eg):
        m = b1[2 * (n - 8):2 * (n - 8) + 2] if 8 <= n < 14 else []
        o += v[:8] + m[:1] + v[8:16] + m[1:] + v[16:]
        if OPT["pace"]:
            if n % 2 == 0:
                o += eg[n // 2][1] + [eg[n // 2][2]]
        elif n < 16:
            o += pre + [st]
        if n == 15:
            o += [needvm(list(sPF))]
            for pi in range(5):
                o += [salu("s_lshl_b32", "s7", f"s{36 + pi}", 12), valu("v_add_u32", V2A[pi], "s7", V2L)]
            o += next_off(sPL, TA, sAB, 20480)
            if OPT["pace"]:
                o += next_off(sSO, TA, sAB, 20480)
            o += next_off(sA2, TA, sAB, 20480)
        if 16 <= n < 21:
            o += k2_lds_A(0, n - 16)
    late = []
    for n, g in enumerate(eg[24 - nl:]):
        st = vstore(("v", 240 - 4 * (nl - n) - (0 if OPT["pace"] else 16)), 4, V2L, S_OST, sE, g[3], tag="ost", flags=SC1)
        late.append((g[1], st))
    o += k2_loads_A(1, 4, sPL) + [valu("v_add_u32", V2P, D[9] - D[4], V2P)]
    o += next_off(sB2, TB, sBB, 12288) + [salu("s_mov_b32", sWANT, 0)]
    o += prof_stamp(1, 30)
    o += srd(S2OUT, "s92", "s93", 7864320)
    o += [salu("s_mul_i32", sOB, "s6", 192 * 2560), salu("s_mul_i32", "s7", "s84", 96 * 2560), salu("s_add_u32", sOB, sOB, "s7"),
          salu("s_mul_i32", "s7", "s5", 1280), salu("s_add_u32", sOB, sOB, "s7"),
          salu("s_mul_i32", "s7", "s85", 320), salu("s_add_u32", sOB, sOB, "s7"), salu("s_mov_b32", sCNT, 6)]
    S0 = Sched()
    if OPT["pace"]:
        k2_first(S0, late)
    else:
        k2_steps(S0, True, [True, True], [True, True], [False, True], late=late)
    S0.order_fixed()
    first = S0.build()
    S1 = Sched()
    k2_steps(S1, False, [True, True], [True, True], [True, True], check=True)
    if OPT["prof"] and not OPT["p2st"]:
        S1.put(3, raw("s_memrealtime s[76:77]", wr=["s76", "s77"]), raw("s_waitcnt lgkmcnt(0)", "drainlg"),
               salu("s_mov_b32", "s101", "s100"), salu("s_mov_b32", "s100", "s99"), salu("s_mov_b32", "s99", "s98"),
               salu("s_mov_b32", "s98", "s97"), salu("s_mov_b32", "s97", "s96"), salu("s_mov_b32", "s96", "s76"))
    S1.put(237, salu("s_sub_u32", sCNT, sCNT, 1))
    S1.order_fixed()
    loop = [label("L_k2")] + S1.build() + [scmp("s_cmp_lg_u32", sCNT, 0), raw("s_cbranch_scc1 L_k2", "branch", rd=["scc"])]
    R1, R2, i, a, V2O = V2A[0], V2A[1], V2A[2], V2A[3], V2A[4]
    setup = [salu("s_mul_i32", "s7", sWAVE, 30720), valu("v_add_u32", V2W, "s7", V2L), valu("v_lshrrev_b32", i, 4, V2L),
             valu("v_and_b32", a, 15, i), valu("v_mul_u32_u24", a, 2560, a), valu("v_lshrrev_b32", i, 4, i),
             valu("v_lshl_add_u32", V2O, i, 4, a),
             salu("s_xor_b32", sPL, sWAVE, 1), salu("s_sub_u32", sPL, sPL, sWAVE), salu("s_mul_i32", "s7", sPL, 30720),
             valu("v_add_u32", R1, "s7", V2W),
             salu("s_xor_b32", sPL, sWAVE, 3), salu("s_sub_u32", sPL, sPL, sWAVE), salu("s_mul_i32", "s7", sPL, 30720),
             valu("v_add_u32", R2, "s7", V2W)]
    sent = [(pi, xy, qi) for pi in range(5) for qi in range(3, 6) for xy in range(2)]
    wr = {t: ds_write("ds_write_b128", V2W, ("v", acc2(*t)), 4, n * 1024) for n, t in enumerate(sent)}
    S2 = Sched()
    e = []
    if OPT["redov"]:
        order = [wr[(pi, xy, qi)] for pi in range(5) for xy in range(2) for qi in range(3, 6)]
        k2_steps(S2, False, [False, False], [True, False], [True, False], final=(setup, order[:29]))
        e = order[29:]
    else:
        k2_steps(S2, False, [False, False], [True, False], [True, False])
        e = setup + list(wr.values())
    S2.order_fixed()
    last = S2.build()
    e += [needlgkm0(), barrier()] + prof_stamp(8, 234)
    for s in list(range(7, 15)) + list(range(7)):
        pi, q = divmod(s, 3)
        e += [ds_read("ds_read_b128", ("v", acc2(pi, xy, q + 3)), 4, R1, (2 * s + xy) * 1024) for xy in range(2)]
    for s in list(range(7, 15)) + list(range(7)):
        pi, q = divmod(s, 3)
        d, t = acc2(pi, 0, q), acc2(pi, 0, q + 3)
        e += [valu("v_add_f32", f"v{d + r}", f"v{d + r}", f"v{t + r}") for r in range(8)]
        if s >= 7:
            e += [ds_write("ds_write_b128", R1, ("v", acc2(pi, xy, q)), 4, (2 * s + xy) * 1024) for xy in range(2)]
    e += [needlgkm0(), barrier()]
    for s in range(8):
        pi, q = divmod(s, 3)
        for xy in range(2):
            e += [ds_read("ds_read_b128", ("v", acc2(pi, xy, q + 3)), 4, R2, (2 * (14 - s) + xy) * 1024)]
    for s in range(8):
        pi, q = divmod(s, 3)
        d0, t0 = acc2(pi, 0, q), acc2(pi, 0, q + 3)
        e += [valu("v_add_f32", f"v{d0 + r}", f"v{d0 + r}", f"v{t0 + r}") for r in range(8)]
        e += [valu("v_cvt_pk_bf16_f32", f"v{d0 + r}", f"v{d0 + 2 * r}", f"v{d0 + 2 * r + 1}") for r in range(4)]
        e += [salu("s_mul_i32", "s7", f"s{47 + q}", 40960), salu("s_lshl_b32", sPL, f"s{36 + pi}", 6),
              salu("s_add_u32", "s7", "s7", sPL), salu("s_add_u32", sSO, "s7", sOB),
              vstore(("v", d0), 4, V2O, S2OUT, sSO, 0, flags=OPT["outf"])]
    e += prof_stamp(9, 234)
    if OPT["prof"]:
        for n in range(6):
            e += [valu("v_mov_b32", "v234", 1), valu("v_mov_b32", "v235", f"s{101 - n}"), pstore(234, 2 + n), nop(4)]
    if OPT["dbgt"]:
        a, b = {1: ("s76", "s78"), 2: ("s74", "s76")}[OPT["dbgt"]]
        e += [drain(), raw("s_memrealtime s[78:79]", wr=["s78", "s79"]), raw("s_waitcnt lgkmcnt(0)", "drainlg"),
              salu("s_sub_u32", a, a, "s72"), salu("s_sub_u32", b, b, "s72"),
              scmp("s_cmp_lt_u32", "s2", 8), salu("s_cselect_b32", "s7", "s2", "0x1000"), salu("s_lshl_b32", "s7", "s7", 2),
              valu("v_mov_b32", "v0", a), valu("v_mov_b32", "v1", b),
              Ins(f"buffer_store_dword v0, {vFLG}, s[{S_FLG}:{S_FLG + 3}], s7 offen", "vst", rd=["v0", vFLG, "s7"]),
              Ins(f"buffer_store_dword v1, {vFLG}, s[{S_FLG}:{S_FLG + 3}], s7 offen offset:32", "vst", rd=["v1", vFLG, "s7"])]
    e += [label("L_end"), raw("s_endpgm")]
    sp1 = spin("L_spin1", "L_spin1_back", vPOLL[:1], [sFG], [(0, "0xff", 8)]) + spin("L_spin3", "L_spin3_back", vPOLL[1:], [sFB], [(16, 0, 128)])
    sp2 = spin("L_spin2", "L_spin2_back", [V2P], [sFG], [(8, "0xff", 8)])
    return o, first, loop, last, e, sp1, sp2


def check_pointers(pro):
    ptr = set(regs("s", 56, 8) + regs("s", 88, 8))
    dirty = set()
    for x in pro:
        if x.text.startswith("s_load"):
            continue
        if x.text.startswith(("s_mov_b32", "s_and_b32", "s_add_u32", "s_addc_u32")) and x.rd & dirty and "0xffff" in x.text:
            raise AssertionError(x.text)
        dirty |= x.wr & ptr


def kernel():
    pro = prologue()
    check_pointers(pro)
    q1 = q_phase(False)
    full = []
    for last in (False, True):
        _alt[0] = 0
        full.append(a_phase(last))
    cut = [[n for n, x in enumerate(f) if x.text == "L_CUT:"][0] for f in full]
    assert [x.text for x in full[0][:cut[0]]] == [x.text for x in full[1][:cut[1]]]
    att = [label("L_att")] + full[0][:cut[0]]
    tails = []
    for v in range(2):
        t = [label(f"L_tail{v + 1}")] + full[v][cut[v] + 1:]
        t += [raw("s_cbranch_vccnz L_slow", "branch", rd=["vcc"]), label(f"L_back{v + 1}")]
        t += [valu("v_rcp_f32", f"v{16 + qt}" if v else vR[qt], f"v{lacc(qt)}") for qt in range(6)]
        if OPT["dbgt"]:
            t += [raw(f"s_memrealtime s[{74 + 2 * v}:{75 + 2 * v}]", wr=[f"s{74 + 2 * v}", f"s{75 + 2 * v}"]), raw("s_waitcnt lgkmcnt(0)", "drainlg")]
        t += prof_stamp(29)
        if OPT["prof"]:
            t += [salu("s_add_u32", sPROF, sPROF, 240)]
        tails.append(t)
    q2 = [salu("s_mov_b32", sIT, 1), label("L_q2")] + q_phase(True) + [raw("s_branch L_att", "branch")]
    o, first, loop2, last, e, sp1, sp2 = phase2()
    slow = slow_path()
    parts = [pro, q1, att, tails[0], q2, tails[1], o, first, loop2, last, e, slow, sp1, sp2]
    waits = compute_waits([pro + q1 + att + tails[0] + q2 + att + tails[1] + o + first + loop2 + loop2 + loop2 + last + e, slow, sp1, sp2])
    done = {}
    P = [apply_waits(x, waits, done) for x in parts]
    pads = pad_hazards([P[0] + P[1] + P[2] + P[3] + P[4] + P[2] + P[5] + P[6] + P[7] + P[8] + P[8] + P[9] + P[10], P[11], P[12], P[13]])
    al = ".p2align 3\n"
    return (emit(P[0] + P[1], pads) + al + emit(P[2] + P[3] + P[4], pads) + al + emit(P[5] + P[6] + P[7], pads) + al +
            emit(P[8] + P[9] + P[10] + P[11] + P[12] + P[13], pads) + "L_endcode:\n")


def main():
    kn = NAME + "_kernel"
    s = open("cdna_kernels/" + NAME + ".s.ref").read().split("; Override launch")[0]
    s += "; @launch grid=(256,1,1) block=(256,1,1) lds=163840\n"
    s += '.amdgcn_target "amdgcn-amd-amdhsa--gfx950"\n.text\n'
    s += f".globl {kn}\n.p2align 8\n.type {kn},@function\n{kn}:\n" + kernel()
    s += f""".section .rodata,"a"
.p2align 6
.amdhsa_kernel {kn}
  .amdhsa_next_free_vgpr 512
  .amdhsa_next_free_sgpr 102
  .amdhsa_accum_offset 256
  .amdhsa_group_segment_fixed_size 0
  .amdhsa_kernarg_size 104
  .amdhsa_user_sgpr_count 2
  .amdhsa_user_sgpr_kernarg_segment_ptr 1
  .amdhsa_system_sgpr_workgroup_id_x 1
.end_amdhsa_kernel
"""
    open(sys.argv[1], "w").write(s)


main()
```

```python
import sys, math, struct
from fw3 import *
from orders import orders
import alloc3

NAME = "concat_heads__mha_block_cached__mha_block_cached__near_ridge"
OPT = dict(outf=' sc1', redov=1, one1=1, warmj=0, pk=1, pfq1=1, rot2=4, gate=0, pace=1, lead=3, xpace=0, kvf=' nt', norot=0, tlbw=0, kpro=0, kplan=0, jlate=1, dbgt=0, jpro=0, k1s=0, e10=1, t23=0, nfree=1, kstep10=134, ks1=0, kn1=0, kfirst=6, k2late=0, qsp=1, tmax=2, xnum=25, xhi=100, ctq=0, cplim=1, p2st=0, kbar=0, kin=0, cta='', rotq1=2, gstep=2, rotq=3, early=1, uni=0, prof=0, report=False, stg=67, warmw=True, codepf=2, codepf2=12, pf='', pf0=1, pfn=3, pff='', flagbar=12, map=0)
for a in sys.argv[2:]:
    k, v = a.split("=")
    OPT[k] = type(OPT[k])(int(v)) if not isinstance(OPT[k], str) else v

KB = 1024
SC1 = " sc1"
O_GRP = 2 * 786432
WS_WOT = 50331648
WOT_BLK = 5242880
WS_PROF = 64 * 1024 * 1024

S_K, S_V, S_X, S_WQ, S_OST, S_WO, S_WOT = 8, 12, 16, 20, 24, 28, 32
sKV, sWQ, sX, sW4K, sW6K, sO, sIT, sT0, sT1, sC, sWAVE = ["s%d" % i for i in range(36, 47)]
sWOS, sWOD, sWOX, sW5K, sHI, sLO = ["s%d" % i for i in range(47, 53)]
sPROF, sE, sJ = "s53", "s54", "s55"
sQT, sWS, sXS, sW1, sNC = "s50", "s67", "s95", "s63", "s7"
sROT, sFG, sFB, sCP = "s62", "s65", "s66", "s64"
sA2, sB2, sPL, sOB, sCNT, sSO, sQ, sSH, sWANT, sSPIN = "s28", "s29", "s30", "s31", "s67", "s68", "s69", "s70", "s71", "s94"
S_PROF, S_FLG = 72, 80
sPF = {("W", 0, 0): ["s84"], ("W", 0, 1): ["s85"], ("X", 0): ["s86", "s87"], ("X", 1): ["s98", "s99"], ("W", 1, 0): ["s100"],
       ("P", 0): ["s60"], ("P", 1): ["s61"], ("P", 2): ["s101"]}
PF2 = {"s84": (0, 0, 0), "s86": (0, 1, 0), "s60": (0, 2, 0), "s101": (0, 3, 0), "s98": (0, 4, 0), "s61": (1, 0, 0),
       "s87": (1, 1, 0), "s99": (1, 1, 2048), "s85": (1, 2, 0), "s100": (1, 3, 0)}
vK = ["v%d" % i for i in range(192, 196)]
vV = ["v196", "v197"]
vW = ["v%d" % i for i in range(198, 202)]
vX = ["v%d" % i for i in range(202, 206)]
kA = ["v%d" % i for i in range(206, 210)]
vA = ["v%d" % i for i in range(210, 218)]
wA = ["v218", "v219"]
xA = ["v220", "v221"]
vJ, vL16 = "v222", "v223"
ONES = 224
EPI = 228
vR = ["v%d" % i for i in range(244, 250)]
vFLG = "v250"
vT = ["v252", "v253"]
vC2 = "v[242:243]"
vPOLL = ["v254", "v255"]

V2B = ["v245", "v246", "v247", "v248", "v249", "v251"]
V2L, V2W, V2P, V2X = "v252", "v254", "v255", "v253"
S2A, S2B, S2OUT = S_WQ, S_X, 8
TA, TB, sAB, sBB = 56, 62, "s43", "s44"

D = [i * 16 * KB for i in range(10)]
XS = [96 * KB, 120 * KB]
WOJ_ADDR = D[4]


def qacc(p, xy, qt):
    return 64 * (qt >> 1) + (2 * p + (qt & 1)) * 8 + 4 * xy


def qf(qt, p):
    return 64 * (qt >> 1) + (2 * p + (qt & 1)) * 4


def sreg(qt):
    return 64 * (qt >> 1) + 32 + 8 * (qt & 1)


def mrun(qt):
    return 64 * (qt >> 1) + 56 + (qt & 1)


def mneg(qt):
    return 64 * (qt >> 1) + 58 + (qt & 1)


def lacc(qt):
    return 64 * (qt >> 1) + 48 + 4 * (qt & 1)


ABUF = [192, 248]


def bx(qt, ks):
    return 200 + 8 * qt + 4 * ks


def kf(kt, ks):
    return 192 + 16 * kt + 4 * ks


def vf(dt):
    return 224 + 4 * dt


def oacc(qt, dt):
    return 32 * qt + 4 * dt


def kpos(k):
    n1 = OPT["kn1"]
    if OPT["kin"]:
        return 2 + OPT["kstep10"] / 10.0 * (4 * (k // 4) + 1) + OPT["kin"] * (k % 4)
    return 2 + OPT["ks1"] / 10.0 * min(k, n1) + OPT["kstep10"] / 10.0 * max(k - n1, 0)


def build_units():
    U = {}
    for i in range(10):
        U[("X", i)] = dict(addr=XS[i % 2], size=24 * KB, iss=i - 2.5, land=i - 1, rel=i - 0.5)
        U[("W", i, 0)] = dict(addr=D[2 * (i % 2)], size=16 * KB, iss=i - 2.5, land=i - 1, rel=i - 0.5)
        U[("W", i, 1)] = dict(addr=D[2 * (i % 2) + 1], size=16 * KB, iss=i - 2, land=i - 0.5, rel=i)
    for k, e in ((("X", 0), -4), (("W", 0, 0), -4), (("X", 1), -3), (("W", 0, 1), -2), (("W", 1, 0), -2)):
        U[k]["iss"] = e
    pages = [9, 5, 4, 6, 0, 7, 1, 8, 2, 3, 9, 4, 5, 6, 0, 1, 7, 2, 8, 3, 9, 4, 5, 6, 0, 7, 1, 8, 2, 9, 5, 4]
    if OPT["kstep10"]:
        (_, pages), kiss, leads = alloc3.plan(0, OPT["kfirst"], pos=kpos, head=[5, 9, 4, 6, 1 if OPT["k2late"] else 0, 7, 1, 8],
                                                 lastN={0: 23, 1: 25, 2: 25, 3: 26, 4: 24, 5: 23, 6: 23, 7: 23, 8: 24, 9: 24})
        if OPT["report"]:
            print("; leads", [round(x, 1) for x in leads])
    for u in range(32):
        key = ("K", u // 2) if u % 2 == 0 else ("V", u // 2)
        N = 10 + u // 2 + u % 2
        U[key] = dict(addr=D[pages[u]], size=16 * KB, iss=N - 5 + (u == 30), land=N - 1, rel=N)
        if OPT["kstep10"] and u >= OPT["kfirst"]:
            U[key].update(iss=kiss[u], even=u - OPT["kfirst"])
    if OPT["kbar"]:
        for t in range(1, 16):
            U[("K", t)]["land"] += 0.5
    U[("V", 1)]["iss"] = U[("K", 2)]["iss"] = 7.5
    if "even" not in U[("V", 2)]:
        U[("V", 2)]["iss"] = 8.5
    if OPT["k2late"]:
        U[("K", 2)]["iss"] = 8
    if OPT["kstep10"]:
        if OPT["kfirst"] == 8:
            U[("V", 3)]["iss"] = 8.5
        return U
    if OPT["e10"] < 2:
        U[("K", 4)]["iss"] = 10
    if OPT["e10"] < 1:
        U[("V", 3)]["iss"] = 10
    if OPT["t23"]:
        U[("W", 0, 0)]["iss"] = U[("W", 1, 1)]["iss"] = -5
    return U


def check_units(second):
    V = {k: dict(u) for k, u in U.items()}
    if second:
        V[("K", 0)]["iss"], V[("V", 0)]["iss"], V[("K", 1)]["iss"] = -4, -3, -3
    else:
        V[("J",)] = dict(addr=D[4], size=32 * KB, iss=-1, land=2, rel=3)
        V[("J", 2)] = dict(addr=D[9], size=16 * KB, iss=0, land=2, rel=3)
        V[("K", 0)]["iss"], V[("V", 0)]["iss"], V[("K", 1)]["iss"] = 3, 4, 5
    allu = [(k, u["addr"], u["addr"] + u["size"], u["iss"], u["rel"]) for k, u in V.items()]
    assert all(u["iss"] < u["land"] <= u["rel"] for u in V.values())
    if second:
        allu += [(k, u["addr"], u["addr"] + u["size"], u["iss"] - 27, u["rel"] - 27) for k, u in U.items() if k[0] in "KV" and k[1] > 2]
        allu += [(("P", n), D[p], D[p] + 16 * KB, (23, 24, 24)[n], 27) for n, p in enumerate((5, 9, 4))]
        allu += [(k, u["addr"], u["addr"] + u["size"], u["iss"] + 27, 40) for k, u in U.items() if k in sPF]
    for a in allu:
        for b in allu:
            if a is not b and a[1] < b[2] and b[1] < a[2]:
                assert a[4] <= b[3] or b[4] <= a[3], (a, b)


U = build_units()
U[("K", 0)]["iss"] = U[("V", 0)]["iss"] = U[("K", 1)]["iss"] = None
PADDR = {("P", 0): D[5], ("P", 1): D[9], ("P", 2): D[4]}
_alt = [0]


def next_st():
    _alt[0] ^= 1
    return [sT0, sT1][_alt[0]]


def unit_dmas(key, tmp=None):
    kind = key[0]
    if kind == "P":
        return [([salu("s_add_u32", "m0", sW4K, PADDR[key])], [dma(vW[m], S_WQ, sPF[key][0], 1024 * m, key, SC1) for m in range(4)])]
    if kind == "J":
        jj = key[1]
        sT = tmp
        pre = [salu("s_add_u32", sT, sWOS, jj * 128), salu("s_add_u32", "m0", sW4K, D[(4, 5, 9)[jj >> 2]] + (jj & 3) * 1024)]
        return [(pre, [dma(vX[0], S_WO, sT, 0, "J", " nt")])]
    u = U[key]
    if key in sPF:
        if kind == "W":
            return [([salu("s_add_u32", "m0", sW4K, u["addr"])], [dma(vW[m], S_WQ, sPF[key][0], 1024 * m, key, SC1) for m in range(4)])]
        return [([salu("s_add_u32", "m0", sW6K, u["addr"])], [dma(vX[m], S_X, sPF[key][0], 1024 * m, key, SC1) for m in range(4)]),
                ([salu("s_add_u32", "m0", sW6K, u["addr"] + 4096)], [dma(vX[m], S_X, sPF[key][1], 1024 * m, key, SC1) for m in range(2)])]
    sT = tmp or next_st()
    if kind in "KV":
        pre = [salu("s_add_u32", sT, sROT, key[1] * 8192), salu("s_and_b32", sT, sT, "0x1ffff"), salu("s_add_u32", sT, sT, sKV),
               salu("s_add_u32", "m0", sW4K, u["addr"])]
        if kind == "K":
            return [(pre, [dma(vK[m], S_K, sT, 1024 * m, key, OPT["kvf"]) for m in range(4)])]
        return [(pre, [dma(vV[m & 1], S_V, sT, 1024 * m, key, OPT["kvf"]) for m in range(4)])]
    if kind == "W":
        return [([salu("s_add_u32", "m0", sW4K, u["addr"])], [dma(vW[m], S_WQ, sW1 if key[2] else sWS, 1024 * m, key) for m in range(4)])]
    g0 = ([salu("s_add_u32", "m0", sW6K, u["addr"])], [dma(vX[m], S_X, sXS, 1024 * m, key) for m in range(4)])
    pre2 = [salu("s_add_u32", sT, sXS, 40960), salu("s_add_u32", "m0", sW6K, u["addr"] + 4096)]
    return [g0, (pre2, [dma(vX[m], S_X, sT, 1024 * m, key) for m in range(2)])]


def set_pf_proj(tail=False):
    o = [salu("s_add_u32", sW1, sWQ, 524288 + 128)]
    for key, rs in sPF.items():
        if key[0] == "P":
            continue
        if key[0] == "W":
            o += [salu("s_add_u32", rs[0], sWQ, key[1] * 524288 + key[2] * 128)]
        else:
            o += [salu("s_add_u32", rs[0], sX, key[1] * 128), salu("s_add_u32", rs[1], sX, key[1] * 128 + 40960)]
    return o


ORD2 = orders(16, 4, 8, 7, {1: [4], 2: [1, 1, 2, 2, 2, 0, 0], 3: [1, 2, 2, 2, 1, 0, 0], 4: [2, 1, 2, 2, 1, 0, 0]}[OPT["rot2"]])[0] if OPT["rot2"] else [list(range(16))] * 4
ORDQ = orders(10, 4, None, 0, {1: [1, 1, 2, 2, 2, 1, 1], 2: [1, 1, 4], 3: [1, 1, 2, 2, 1, 1, 1, 1]}[OPT["rotq"]])[0] if OPT["rotq"] else [list(range(10))] * 4
assert all(o[:2] == [0, 1] for o in ORDQ)
TBLQ = [sum(x << (4 * n) for n, x in enumerate(o[2:])) for o in ORDQ]
ORDQ1 = {0: ORDQ, 1: orders(10, 4, None, 0, [4])[0], 2: orders(10, 4, None, 0, [2, 2, 2, 1, 1, 1, 1])[0], 3: orders(10, 4, None, 0, [4, 0, 1, 1, 1, 1, 1, 1])[0]}[OPT["rotq1"]]
TBLQ1 = [sum(x << (4 * n) for n, x in enumerate(o[2:])) for o in ORDQ1]
TBLQ0 = [o[0] | o[1] << 4 for o in ORDQ1]


def by_role(dst, role, consts):
    o = [salu("s_mov_b32", dst, "0x%x" % consts[0])]
    for r in range(1, 4):
        o += [[scmp("s_cmp_eq_u32", role, r), salu("s_cselect_b32", dst, "0x%x" % consts[r], dst)]]
    return o


TBL2 = [sum(x << (4 * n) for n, x in enumerate(o)) for o in ORD2]


def next_off(dst, tbl, base, stride):
    return [salu("s_and_b32", dst, f"s{tbl}", 15), salu("s_lshr_b64", f"s[{tbl}:{tbl + 1}]", f"s[{tbl}:{tbl + 1}]", 4),
            salu("s_mul_i32", dst, dst, stride), salu("s_add_u32", dst, dst, base)]


def set_pf_out():
    o = [salu("s_and_b32", "s68", "s4", 3), salu("s_mul_i32", "s68", "s68", 1310720), salu("s_mul_i32", "s69", "s5", WOT_BLK),
         salu("s_add_u32", "s68", "s68", "s69"), salu("s_add_u32", "s68", "s68", WS_WOT)]
    o += [[salu("s_add_u32", f"s{S_WQ}", "s90", "s68"), salu("s_addc_u32", "s69", "s91", 0)]]
    o += [salu("s_and_b32", f"s{S_WQ + 1}", "s69", "0xffff"), salu("s_mov_b32", f"s{S_WQ + 2}", 1310720),
          salu("s_mov_b32", f"s{S_X}", f"s{S_WQ}"), salu("s_mov_b32", f"s{S_X + 1}", f"s{S_WQ + 1}"), salu("s_mov_b32", f"s{S_X + 2}", 1310720)]
    o += [salu("s_lshr_b32", "s70", sWAVE, 1), salu("s_mul_i32", "s68", sWAVE, 16 * 20480), salu("s_lshl_b32", "s69", "s70", 14),
          salu("s_add_u32", "s68", "s68", "s69"), salu("s_lshl_b32", "s69", "s70", 13), salu("s_sub_u32", "s69", 4096, "s69")]
    o += [salu("s_add_u32", "s70", "s3", "s4"), salu("s_and_b32", "s70", "s70", 3),
          salu("s_mov_b32", "s34", "0x%x" % (TBL2[0] & 0xffffffff)), salu("s_mov_b32", "s35", "0x%x" % (TBL2[0] >> 32))]
    for r in range(1, 4):
        o += [[scmp("s_cmp_eq_u32", "s70", r), salu("s_cselect_b32", "s34", "0x%x" % (TBL2[r] & 0xffffffff), "s34"),
               salu("s_cselect_b32", "s35", "0x%x" % (TBL2[r] >> 32), "s35")]]
    o += [salu("s_and_b32", "s70", "s34", 15), salu("s_mul_i32", "s70", "s70", 20480), salu("s_add_u32", "s70", "s70", "s68"),
          salu("s_bfe_u32", "s71", "s34", "0x40004"), salu("s_mul_i32", "s71", "s71", 20480), salu("s_add_u32", "s71", "s71", "s68")]
    for r, (st, pi, off) in PF2.items():
        o += [salu("s_mul_i32", r, "s69", pi), salu("s_add_u32", r, r, "s71" if st else "s70")]
        if off:
            o += [salu("s_add_u32", r, r, off)]
    return o


def groups_at(iss):
    order = {"W": 0, "X": 1, "K": 2, "V": 2}
    keys = sorted([k for k, u in U.items() if u["iss"] is not None and u["iss"] % 27 == iss % 27 and "even" not in u],
                  key=lambda k: (U[k]["land"] - U[k]["iss"], order[k[0]], k))
    return [g for k in keys for g in unit_dmas(k)]


def place_dmas(S, groups, cand, lo):
    ci = 0
    for pre, ds in groups:
        g = cand[ci]
        for n, p in enumerate(pre[:-1]):
            S.put(max(lo, g - len(pre) + n), p)
        for d in ds:
            d.m0 = pre[-1]
            S.put(cand[ci], d)
            ci += 1


def fix_m0(S):
    cur, prev = None, -2
    for g in sorted(S.fixed):
        for d in [x for x in S.fixed[g] if x.kind == "dma"]:
            if d.m0.text != cur:
                m = Ins(d.m0.text, "salu", rd=d.m0.rd, wr=d.m0.wr)
                if g - 1 > prev and not any(x.kind in ("bar", "branch") for x in S.fixed.get(g - 1, [])):
                    S.put(g - 1, m)
                else:
                    S.fixed[g].insert(S.fixed[g].index(d), m)
                cur = d.m0.text
            prev = g
        if any(x.kind == "label" for x in S.fixed[g]):
            cur = None


def tags_for(n):
    t = [k for k, u in U.items() if (u["land"] - n) % 27 == 0]
    if n == OPT["flagbar"]:
        t += ["ost", "jst"]
    if n == 2:
        t += ["J"]
    return t


def atomic_add(vdata, soff):
    return Ins(f"buffer_atomic_add {vdata}, {vFLG}, s[{S_FLG}:{S_FLG + 3}], {soff} offen sc1", "atomic",
               rd=[vdata, vFLG, soff] + regs("s", S_FLG, 4), tag="flag")


def poll_load(vdst, soff):
    return Ins(f"buffer_load_dword {vdst}, off, s[{S_FLG}:{S_FLG + 3}], {soff} sc1", "vld", rd=[soff] + regs("s", S_FLG, 4), wr=[vdst])


class Win:
    def __init__(self, rs, init):
        self.rs = rs
        self.cur = init

    def move(self, new):
        d = (new - self.cur) & 0xffffffff
        self.cur = new
        return [valu("v_add_u32", r, "0x%x" % d, r) for r in self.rs] if d else []


def plan_windows(addrs, span):
    want = []
    i = 0
    while i < len(addrs):
        lo = hi = addrs[i]
        j = i + 1
        while j < len(addrs) and max(hi, addrs[j]) - min(lo, addrs[j]) + span < 65536:
            lo, hi = min(lo, addrs[j]), max(hi, addrs[j])
            j += 1
        want += [lo] * (j - i)
        i = j
    return want


KWANT = plan_windows([U[("K", t)]["addr"] for t in range(16)], 4096)
VWANT = plan_windows([U[("V", t)]["addr"] for t in range(16)], 4096)
check_units(False)
check_units(True)


def pstore(v0, idx):
    return Ins(f"buffer_store_dwordx2 v[{v0}:{v0 + 1}], off, s[{S_PROF}:{S_PROF + 3}], {sPROF} offset:{8 * idx}", "vst",
               rd=[f"v{v0}", f"v{v0 + 1}", sPROF] + regs("s", S_PROF, 4))


def prof_stamp(idx, v0=252):
    if not OPT["prof"]:
        return []
    return [raw("s_memtime s[76:77]", "other", wr=["s76", "s77"]),
            raw("s_memrealtime s[78:79]", "other", wr=["s78", "s79"]),
            raw("s_waitcnt lgkmcnt(0)", "drainlg"),
            valu("v_mov_b32", f"v{v0}", "s76"),
            valu("v_mov_b32", f"v{v0 + 1}", "s78"),
            pstore(v0, idx)]


def bar_seq(tags, idx):
    if OPT["prof"] < 2:
        return [needboth(tags), barrier()] + prof_stamp(idx)
    return [raw("s_memtime s[58:59]", "other", wr=["s58", "s59"]), raw("s_waitcnt lgkmcnt(0)", "drainlg"),
            needboth(tags), barrier(),
            raw("s_memtime s[76:77]", "other", wr=["s76", "s77"]),
            raw("s_memrealtime s[78:79]", "other", wr=["s78", "s79"]),
            raw("s_waitcnt lgkmcnt(0)", "drainlg"), salu("s_sub_u32", "s76", "s76", "s58"),
            valu("v_mov_b32", "v252", "s76"), valu("v_mov_b32", "v253", "s78"), pstore(252, idx)]


def a_read(i, dt, ks, t):
    p, xy = dt >> 1, dt & 1
    off = U[("W", i, p >> 1)]["addr"] + ks * 4096 + t * 512 + xy * 8
    return ds_read("ds_read_b64_tr_b16", ("a", ABUF[dt % 2] + 4 * ks + 2 * t), 2, wA[p & 1], off)


def first_reads(i):
    ax = U[("X", i)]["addr"] - XS[0]

    def A(ks, t):
        return a_read(i, 0, ks, t)

    def B(qt, ks):
        return ds_read("ds_read_b128", ("a", bx(qt, ks)), 4, xA[ks], ax + qt * 2048)
    return [A(0, 0), A(0, 1), B(0, 0), A(1, 0), A(1, 1), B(0, 1)] + [B(qt, ks) for qt in range(1, 6) for ks in range(2)]


def k_read(t, j):
    kt, ks = j >> 2, j & 3
    return ds_read("ds_read_b128", ("a", kf(kt, ks)), 4, kA[ks], U[("K", t)]["addr"] - KWANT[t] + kt * 4096)


def epilogue_groups(tmp, dst=None, vaddr=None):
    groups = []
    n = 0
    for T in range(3):
        for ph in range(2):
            for qs in range(2):
                for pl in range(2):
                    qt = 2 * T + qs
                    tb = tmp + 4 * (n % 3)
                    src = oacc(qt, 4 * ph + 2 * pl)
                    db = tb if dst is None or dst(n) is None else dst(n)
                    rd = [valu("v_accvgpr_read_b32", f"v{tb + i}", f"a{src + i}") for i in range(8)]
                    mu = [valu("v_mul_f32", f"v{tb + i}", vR[qt], f"v{tb + i}") for i in range(8)]
                    cv = [valu("v_cvt_pk_bf16_f32", f"v{db + i}", f"v{tb + 2 * i}", f"v{tb + 2 * i + 1}") for i in range(4)]
                    pre = [salu("s_add_u32", sE, sO, ph * 12288 + T * 4096)] if qs == 0 and pl == 0 else []
                    imm = qs * 2048 + pl * 1024
                    groups.append((rd + mu + cv, pre, vstore(("v", db), 4, vaddr or vL16, S_OST, sE, imm, tag="ost", flags=SC1), imm))
                    n += 1
    return groups


def conv_items(T, ps, packed=()):
    out = []
    for p in ps:
        for qs in range(2):
            R, Dd = qacc(p, 0, 2 * T + qs), qf(2 * T + qs, p)
            if OPT["tmax"]:
                pass
            elif p in packed:
                out += [(p, qs, valu("v_pk_mul_f32", f"v[{R + x}:{R + x + 1}]", f"v[{R + x}:{R + x + 1}]", "s[86:87]" if False else vC2)) for x in range(0, 8, 2)]
            else:
                out += [(p, qs, valu("v_mul_f32", f"v{R + x}", sC, f"v{R + x}")) for x in range(8)]
            out += [(p, qs, valu("v_cvt_pk_bf16_f32", f"v{Dd + x}", f"v{R + 2 * x}", f"v{R + 2 * x + 1}")) for x in range(4)]
    return out


def touch_code(S, g, base, st, va, vd):
    S.put(g, salu("s_add_u32", st, sCP, base))
    S.put(g + 1, salu("s_min_u32", st, st, "L_endcode-L_pc-256"))
    S.put(g + 2, valu("v_and_b32", va, 16, vL16), valu("v_lshlrev_b32", va, 3, va))
    S.put(g + 3, valu("v_add_u32", va, st, va))
    return Ins(f"global_load_dword {vd}, {va}, s[96:97]", "vld", rd=[va, "s96", "s97"], wr=[vd])


def q_phase(second):
    S = Sched()
    extra, mid = {}, {}
    if not second:
        jp = OPT["jpro"]
        if jp == 0:
            extra[0] = [g for jj in range(5) for g in unit_dmas(("J", jj), sE)]
            extra[1] = [g for jj in range(5, 10) for g in unit_dmas(("J", jj), sE)]
        elif jp < 10:
            extra[1] = [g for jj in range(jp, 10) for g in unit_dmas(("J", jj), sE)]
        kv = [unit_dmas(k, sE) for k in [("K", 0), ("V", 0), ("K", 1)]]
        if OPT["kplan"] == 0:
            extra[4], extra[5], extra[6] = kv
        elif OPT["kplan"] == 1:
            extra[7], mid[8] = kv[0], kv[1]
            extra[8] = kv[2]
        elif OPT["kplan"] == 2:
            extra[4], extra[7], mid[8] = kv
        elif OPT["kplan"] == 4:
            extra[5], extra[6], extra[7] = kv
        elif OPT["kplan"] == 5:
            extra[4], extra[6], extra[7] = kv
        elif OPT["kplan"] == 3:
            extra[5], extra[7], mid[8] = kv
    for i in range(10):
        q0 = S.n()
        for dt in range(8):
            for qt in range(6):
                for ks in range(2):
                    acc = ("v", qacc(dt >> 1, dt & 1, qt))
                    S.add(mfma(16, acc, ("a", ABUF[dt % 2] + 4 * ks), ("a", bx(qt, ks)), None if (i == 0 and ks == 0) else acc))
        for dt in range(1, 8):
            gaps = [4, 5, 6, 7] if dt == 1 else [0, 2, 3, 4]
            for n, (ks, t) in enumerate([(0, 0), (0, 1), (1, 0), (1, 1)]):
                S.put(q0 + 12 * (dt - 1) + gaps[n], a_read(i, dt, ks, t))
        S.put(q0 + 35, needboth(tags_for(i - 0.5)), barrier())
        S.put(q0 + 83, *bar_seq(tags_for(i), 2 + i))
        if i < 9:
            for n, r in enumerate(first_reads(i + 1)):
                S.put(q0 + 84 + n, r)
        else:
            kw = Win(kA, KWANT[15])
            mv = kw.move(KWANT[0])
            S.put(q0 + 80, *mv[:2])
            S.put(q0 + 82, *mv[2:])
            for j in range(8):
                S.put(q0 + 84 + j, k_read(0, j))
        if i <= 7:
            for n, x in enumerate([salu("s_bfe_u32", sXS, sQT, "0x%x" % (0x40000 + 4 * i)), salu("s_lshl_b32", sWS, sXS, 19),
                                   salu("s_add_u32", sWS, sWS, sWQ), salu("s_lshl_b32", sXS, sXS, 7), salu("s_add_u32", sXS, sXS, sX),
                                   salu("s_add_u32", sW1, sWS, 128)]):
                S.put(q0 + 26 + n, x)
        early = groups_at(i - 1)
        place_dmas(S, early + mid.get(i, []), [q0 + g for g in ((9, 17, 25, 33) if OPT["qsp"] and i == 9 else (9, 13, 17, 21, 25, 29, 31, 33))], q0)
        late = groups_at(i - 0.5) + extra.get(i, [])
        if i == 8 and 8 in extra:
            late = extra[8] + groups_at(i - 0.5)
        cand = [q0 + 37 + 4 * x for x in range(12)]
        nd = sum(len(g[1]) for g in late)
        if nd > 12:
            cand = sorted(cand + [q0 + 67, q0 + 71, q0 + 75, q0 + 79][:nd - 12])
        if OPT["qsp"] and i >= 8 and nd:
            allowed = [37, 41, 43, 45, 47, 49, 53, 55, 57, 59, 61, 65, 67, 69, 71, 73, 77, 79, 81]
            cand = [q0 + allowed[round(x * (len(allowed) - 1) / max(nd - 1, 1))] for x in range(nd)]
        place_dmas(S, late, cand, q0 + 35)
    if not second:
        for jj in range(10):
            q0 = 96 * 3
            if jj == 8:
                S.put(q0 + 65, valu("v_add_u32", vJ, D[9] - D[4] - 2 * 16384, vJ))
            for tt in range(2):
                g = q0 + [10, 11, 18, 19, 22, 23, 30, 31, 34, 42, 43, 46, 47, 54, 55, 58, 66, 67, 70, 71][2 * jj + tt]
                S.put(g, ds_read("ds_read_b64_tr_b16", ("a", 4 * jj + 2 * tt), 2, vJ, (jj >> 2) * 16384 + (jj & 3) * 1024 + tt * 8192))
            nq, pair = divmod(2 * jj, 5)
            g = 96 * (4 + jj // 3) + [19, 25, 31][jj % 3]
            if OPT["jlate"]:
                g = 96 * (3 + jj // 2) + ([79, 82] if (3 + jj // 2) in extra else [77, 81])[jj % 2]
            S.put(g - 1, salu("s_add_u32", sJ, sWOX if pair == 4 else sWOD, nq * 1310720 + pair * 4096))
            S.put(g, vstore(("a", 4 * jj), 4, vL16, S_WOT, sJ, 0, tag="jst", flags=SC1))
    if not second and OPT["ctq"]:
        q0 = 96 * OPT["ctq"]
        S.put(q0 + 33, touch_code(S, q0 + 18, "L_att-L_pc", sJ, vT[0], vT[1]))
    if second:
        eg = epilogue_groups(EPI)
        ep = []
        for i in range(8):
            for g in eg[3 * i:3 * i + 3]:
                ep += [(x, 96 * i, None) for x in g[0]]
            for g in eg[3 * i:3 * i + 3]:
                ep += [(x, 96 * i + OPT["stg"], None) for x in g[1] + [g[2]]]
        ep[-1] = (ep[-1][0], ep[-1][1], 96 * 9 - 1)
        S.stream(ep)
        S.put(96 * 9 + 2, salu("s_add_u32", sO, sO, 8 * 12288))
    q0 = 96 * 9
    g = q0 + 2
    for x in ([salu("s_add_u32", sWQ, sWQ, 512)] + set_pf_proj(True) + [salu("s_add_u32", "s68", "s3", "s4"), salu("s_and_b32", "s68", "s68", 3)] + by_role(sQT, "s68", TBLQ) if not second else set_pf_out()):
        S.put(g, *(x if isinstance(x, list) else [x]))
        g += 1 if g < q0 + 94 else 0
        while g in (q0 + 35, q0 + 83) or any(x.kind == "salu" for x in S.fixed.get(g, [])):
            g += 1
    if second:
        S.stream([(valu("v_mov_b32", r, vL16), q0 + 2, None) for r in vW + vX])
    if not OPT["tmax"]:
        S.put(q0 + 7, valu("v_mov_b32", "v242", sC), valu("v_mov_b32", "v243", sC))
    S.stream([(x, min(q0 + 12 * (2 * p + 1) + 2 * qs + 1 + 2, q0 + 95), None) for p, qs, x in conv_items(0, range(4))])
    if OPT["tmax"]:
        for T in (1, 2):
            S.stream([(x, q0 + 12 * (2 * p + 1) + 4 * T + 2 * qs + 1 + 2, None) for p, qs, x in conv_items(T, range(3))])
    S.put(-1, *prof_stamp(1))
    fix_m0(S)
    return S.finish(lead=first_reads(0), report=OPT["report"])


def lspread(qt, tmp):
    l = f"v{lacc(qt)}"
    return [valu("v_mov_b32", tmp, l), perm("v_permlane32_swap_b32", tmp, l), valu("v_add_f32", l, l, tmp),
            valu("v_mov_b32", tmp, l), perm("v_permlane16_swap_b32", tmp, l), valu("v_add_f32", l, l, tmp)]


def interleave(a, b):
    return [x for p in zip(a, b) for x in p]


def lcheck():
    l = [f"v{lacc(qt)}" for qt in range(6)]
    if OPT["tmax"] == 2:
        return [valu("v_add_f32", vT[0], l[0], l[1]), valu("v_add_f32", vT[1], l[2], l[3]), valu("v_add_f32", vT[0], vT[0], l[4]),
                valu("v_add_f32", vT[1], vT[1], l[5]), valu("v_add_f32", vT[0], vT[0], vT[1]), valu("v_cmp_ngt_f32", "vcc", sHI, vT[0])]
    if OPT["tmax"]:
        x = [f"v{mrun(qt)}" for qt in range(6)]
        return ([valu("v_fma_f32", x[q], x[q], sC, f"v{mneg(q)}") for q in range(6)] +
                [valu("v_add_f32", vT[0], l[0], l[1]), valu("v_max3_f32", vT[1], x[0], x[1], x[2]),
                 valu("v_add_f32", vT[0], vT[0], l[2]), valu("v_max3_f32", vT[1], vT[1], x[3], x[4]),
                 valu("v_add_f32", vT[0], vT[0], l[3]), valu("v_add_f32", vT[0], vT[0], l[4]),
                 valu("v_max_f32", vT[1], vT[1], x[5]), valu("v_add_f32", vT[0], vT[0], l[5]),
                 valu("v_cmp_ngt_f32", "s[56:57]", sLO, vT[1]),
                 valu("v_cmp_ngt_f32", "vcc", sHI, vT[0]),
                 salu("s_or_b64", "vcc", "vcc", "s[56:57]")])
    return [valu("v_add_f32", vT[0], l[0], l[1]), valu("v_min3_f32", vT[1], l[0], l[1], l[2]),
            valu("v_add_f32", vT[0], vT[0], l[2]), valu("v_min3_f32", vT[1], vT[1], l[3], l[4]),
            valu("v_add_f32", vT[0], vT[0], l[3]), valu("v_add_f32", vT[0], vT[0], l[4]),
            valu("v_min_f32", vT[1], vT[1], l[5]), valu("v_add_f32", vT[0], vT[0], l[5]),
            valu("v_cmp_nlt_f32", "s[56:57]", sLO, vT[1]),
            valu("v_cmp_ngt_f32", "vcc", sHI, vT[0]),
            salu("s_or_b64", "vcc", "vcc", "s[56:57]")]


def a_phase(last):
    S = Sched()
    qk = [[0] * 3 for _ in range(16)]
    pv = [[0] * 3 for _ in range(16)]

    def QK(t, T):
        qk[t][T] = S.n()
        for qs in range(2):
            for kt in range(2):
                s = ("v", sreg(2 * T + qs) + 4 * kt)
                for ks in range(4):
                    S.add(mfma(16, s, ("a", kf(kt, ks)), ("v", qf(2 * T + qs, ks)), None if ks == 0 else s))

    def PV(t, T):
        pv[t][T] = S.n()
        sums = []
        for qs in range(2):
            l = ("v", lacc(2 * T + qs))
            sums.append(mfma(16, l, ("v", ONES), ("v", sreg(2 * T + qs)), None if t == 0 else l))
        if t == 15:
            for m in sums:
                S.add(m)
        for dt in range(8):
            for qs in range(2):
                o = ("a", oacc(2 * T + qs, dt))
                S.add(mfma(16, o, ("a", vf(dt)), ("v", sreg(2 * T + qs)), None if t == 0 else o))
        if t < 15:
            for m in sums:
                S.add(m)

    for t in range(16):
        QK(t, 0)
        if t:
            PV(t - 1, 1)
        QK(t, 1)
        if t:
            PV(t - 1, 2)
        QK(t, 2)
        PV(t, 0)
    PV(15, 1)
    PV(15, 2)
    bar = {}
    kw, vw = Win(kA, KWANT[0]), Win(vA, VWANT[0])
    for t in range(16):
        g0 = pv[t - 1][2] if t else qk[0][1]
        bar[10 + t] = g0 - 1
        S.put(g0 - 1, *bar_seq(tags_for(10 + t), 12 + t))
        if t == 13:
            S.put(g0 - 1, scmp("s_cmp_eq_u32", sIT, 1), raw("s_cbranch_scc1 L_tail2", "branch", rd=["scc"]), label("L_CUT"))
        for n, m in enumerate(vw.move(VWANT[t])):
            S.put(g0 - 14 + 3 * (n // 2), m)
        for dt in range(8):
            for tt in range(2):
                S.put(g0 + 4 * dt + 1 + 2 * tt,
                      ds_read("ds_read_b64_tr_b16", ("a", vf(dt) + 2 * tt), 2, vA[dt], U[("V", t)]["addr"] - VWANT[t] + tt * 4096))
        if t < 15:
            for n, m in enumerate(kw.move(KWANT[t + 1])):
                S.put((qk[t][0] + 9 if t else qk[0][2] + 2) + (3 if t else 2) * (n // 2), m)
            for j in range(8):
                S.put(qk[t][2] + [8, 10, 12, 14, 17, 19, 21, 23][j], k_read(t + 1, j))
            if OPT["kbar"]:
                S.put(qk[t][2] + 6, needvm(tags_for(10.5 + t)), barrier())
            if OPT["kbar"] >= 2 and t:
                S.put(pv[t - 1][1] - 1, barrier())
            if OPT["kbar"] >= 3 and t:
                S.put(qk[t][0] - 1, barrier())
    if not last:
        S.stream([(m, pv[15][0], None) for m in vw.move(VWANT[0])])
    bar[26] = pv[15][1] - 1
    S.put(bar[26], *(prof_stamp(28) if last else bar_seq(tags_for(26), 28)))
    fr = [] if last else first_reads(0)
    for n, r in enumerate(fr[:10]):
        S.put(pv[15][1] + [1, 3, 5, 7, 9, 11, 13, 15, 16, 17][n], r)
    for n, r in enumerate(fr[10:]):
        S.put(pv[15][2] + 3 + 2 * n, r)
    stream = sorted([k for k, u in U.items() if "even" in u], key=lambda k: U[k]["even"])
    nk = len(stream)
    stream += [("P", 0), ("P", 1), ("P", 2)] if last else [("K", 0), ("V", 0), ("K", 1)]
    for e, key in enumerate(stream):
        cand = []
        for m in range(4):
            g = int(kpos(4 * e + m)) if e < nk else max(int(kpos(4 * e + m)), int(2 + 13.4 * (4 * (e - nk + 26) + (0 if OPT["kin"] else m))))
            while S.used(g, False) > 0 or g - 1 in bar.values():
                g += 1
            cand.append(g)
        lo = bar.get(U[key]["iss"] if e < nk else (23, 24, 24)[e - nk], -2) + 1
        assert cand[0] > lo + (3 if e >= nk else 0), (key, cand, lo)
        if e == nk:
            S.put(cand[0] - 5, salu("s_add_u32", sKV, sKV, 262144))
        place_dmas(S, unit_dmas(key, sE if e >= nk else None), cand, lo)
    for n in range(24, 27):
        groups = groups_at(n - 1)
        nd = sum(len(g[1]) for g in groups)
        a, b = bar[n - 1] + 5, bar[n] - 1
        cand = []
        for x in range(nd):
            g = a + (b - a) * x // nd
            while any(i.kind in MEMK for k in (g - 1, g, g + 1) for i in S.fixed.get(k, []) if k == g or i.kind == "dma") or g in cand:
                g += 1
            cand.append(g)
        assert cand[-1] < bar[n]
        place_dmas(S, groups, cand, bar[n - 1] + 1)
    if OPT["xpace"]:
        for t in range(1, 14):
            for T in range(3):
                S.put(pv[t][T] + 17, nop(OPT["xpace"]))
                S.put(qk[t][T] + 15, nop(OPT["xpace"]))
    g = bar[OPT["flagbar"]] + 2
    S.put(g - 1, scmp("s_cmp_eq_u32", sIT, 0), salu("s_cselect_b32", sE, sFB, sFG), salu("s_cselect_b32", sJ, "0x10000", 1))
    S.put(g + 1, valu("v_mov_b32", f"v{EPI}", sJ))
    S.put(g + 4, atomic_add(f"v{EPI}", sE))
    g = qk[12 - OPT['t23']][0]
    S.put(g + 1, scmp("s_cmp_eq_u32", sIT, 1), salu("s_cselect_b32", sE, sFB, "0x1000"))
    S.put(g + 3, poll_load(vPOLL[1], sE))
    g = qk[13 - OPT['t23']][0]
    S.put(g + 1, salu("s_lshl_b32", sWANT, sIT, 23), valu("v_readfirstlane_b32", sQ, vPOLL[1]))
    S.put(g + 4, scmp("s_cmp_lt_u32", sQ, sWANT), raw("s_cbranch_scc1 L_spin3", "branch", rd=["scc"]), label("L_spin3_back"))
    if last:
        g = bar[25] + 2
        S.put(g, poll_load(vPOLL[0], sFG))
        su = [salu("s_lshr_b32", "s84", "s4", 2), salu("s_mul_i32", "s7", "s3", O_GRP), salu("s_mul_i32", "s58", "s84", 786432),
              salu("s_add_u32", "s7", "s7", "s58"), [salu("s_add_u32", f"s{S2B}", "s90", "s7"), salu("s_addc_u32", "s59", "s91", 0)],
              salu("s_and_b32", f"s{S2B + 1}", "s59", "0xffff"), salu("s_mov_b32", f"s{S2B + 2}", 786432),
              salu("s_mul_i32", sBB, sWAVE, 16 * 12288), salu("s_mov_b64", f"s[{TB}:{TB + 1}]", "s[34:35]")] + next_off(sB2, TB, sBB, 12288)
        su += [salu("s_and_b32", "s58", sWAVE, 1), salu("s_mul_i32", "s58", "s58", 3 * 2048), salu("s_sub_u32", "s59", 3 * 2048, "s58"),
               salu("s_lshr_b32", "s86", sWAVE, 1), salu("s_lshl_b32", "s86", "s86", 12), salu("s_add_u32", "s58", "s58", "s86"),
               salu("s_add_u32", "s59", "s59", "s86"), salu("s_sub_u32", "s86", 2048, "s86")]
        g += 1
        for x in su:
            while any(i.kind == "salu" for i in S.fixed.get(g, [])):
                g += 1
            S.put(g, *(x if isinstance(x, list) else [x]))
            g += 1
        va = [valu("v_add_u32", V2B[0], "s58", vL16), valu("v_add_u32", V2B[3], "s59", vL16)]
        for q in (1, 2):
            va += [valu("v_add_u32", V2B[q], "s86", V2B[q - 1]), valu("v_add_u32", V2B[3 + q], "s86", V2B[2 + q])]
        S.stream([(x, g, pv[15][1] - 3) for x in va])
        g = pv[15][0] + 12
        S.put(g, valu("v_readfirstlane_b32", sQ, vPOLL[0]))
        S.put(g + 3, salu("s_and_b32", sQ, sQ, "0xff"), scmp("s_cmp_lt_u32", sQ, 8),
              raw("s_cbranch_scc1 L_spin1", "branch", rd=["scc"]), label("L_spin1_back"))
        for n, l in enumerate([l for qi in range(6) for l in k2_loads_B(0, qi)]):
            S.put(pv[15][1] + 1 + 2 * n if n < 8 else pv[15][2] + 3 + 3 * (n - 8), l)
    for n, t in enumerate([int(x) for x in OPT["cta"].split(",") if x]):
        g = pv[t][0]
        while any(S.fixed.get(k) for k in range(g, g + 6)):
            g += 1
        S.put(g + 5, touch_code(S, g, f"L_att-L_pc+{(n + 1) * 12288}", sJ, f"v{EPI + 4}", f"v{EPI + 5}"))
    if OPT["codepf2"]:
        g = qk[OPT["codepf2"]][0] - 6
        S.put(g - 2, salu("s_mul_i32", sJ, sIT, "L_tail2-L_tail1"))
        S.put(g - 1, salu("s_add_u32", sJ, sJ, "L_tail1-L_pc"))
        S.put(g, salu("s_add_u32", sJ, sJ, sCP))
        S.put(g + 1, salu("s_min_u32", sJ, sJ, "L_endcode-L_pc-256"))
        S.put(g + 2, valu("v_and_b32", f"v{EPI + 2}", 16, vL16), valu("v_lshlrev_b32", f"v{EPI + 2}", 3, f"v{EPI + 2}"))
        S.put(g + 3, valu("v_add_u32", f"v{EPI + 2}", sJ, f"v{EPI + 2}"))
        S.put(g + 5, Ins(f"global_load_dword v{EPI + 3}, v{EPI + 2}, s[96:97]", "vld", rd=[f"v{EPI + 2}", "s96", "s97"], wr=[f"v{EPI + 3}"]))
    for T in (1, 2):
        if OPT["pk"] and not OPT["tmax"]:
            nfree = OPT["nfree"] if T == 1 else 0
            S.stream([(x, -1, None) for p, qs, x in conv_items(T, range(nfree))] +
                     [(x, qk[0][T] - 1, qk[0][T] - 1) for p, qs, x in conv_items(T, range(nfree, 4), packed=range(4))])
        else:
            c = [(x, -1, None) for p, qs, x in conv_items(T, range(3 if OPT["tmax"] else 0, 4))]
            c[-1] = (c[-1][0], -1, qk[0][T] - 1)
            S.stream(c)
    fin = []
    if OPT["one1"]:
        for T in range(3):
            fin += [(x, [pv[15][1] + 12, pv[15][2], pv[15][2] + 4][T], None) for x in interleave(lspread(2 * T, f"v{lacc(2 * T) + 1}"), lspread(2 * T + 1, f"v{lacc(2 * T + 1) + 1}"))]
    S.stream(fin + [(x, pv[15][2] + 4, None) for x in lcheck()])
    units = []
    for t in range(16):
        for qt in range(6):
            s = sreg(qt)
            T, qs = qt >> 1, qt & 1
            dl = pv[t][T] + qs - 2
            units.append(dict(e=qk[t][T] + 8 * qs + 7 + 2,
                              exps=[valu("v_exp_f32", f"v{s + r}", f"v{s + r}") for r in range(8)],
                              cvts=[(valu("v_cvt_pk_bf16_f32", f"v{s + r}", f"v{s + 2 * r}", f"v{s + 2 * r + 1}"), 2 * r + 2, dl) for r in range(4)]))
    if OPT["tmax"]:
        for n, u in enumerate(units):
            t, qt = divmod(n, 6)
            s, m, mn = sreg(qt), f"v{mrun(qt)}", f"v{mneg(qt)}"
            fma = [valu("v_fma_f32", f"v{s + r}", f"v{s + r}", sC, mn) for r in range(8)]
            if t == 0:
                pre = [valu("v_max3_f32", m, f"v{s}", f"v{s + 1}", f"v{s + 2}"), valu("v_max3_f32", mn, f"v{s + 3}", f"v{s + 4}", f"v{s + 5}"),
                       valu("v_max3_f32", m, m, f"v{s + 6}", f"v{s + 7}"), valu("v_max_f32", m, m, mn)]
                for op in ("v_permlane32_swap_b32", "v_permlane16_swap_b32"):
                    pre += [valu("v_mov_b32", mn, m), perm(op, mn, m), valu("v_max_f32", m, m, mn)]
                pre += [valu("v_mul_f32", mn, sNC, m)] + fma
                need = [len(pre) - 7 + r for r in range(8)]
            else:
                pre, need = [], []
                for r in range(0, 8, 2):
                    if OPT["tmax"] == 1:
                        pre += [valu("v_max3_f32", m, m, f"v{s + r}", f"v{s + r + 1}")]
                    pre += [fma[r], fma[r + 1]]
                    need += [len(pre) - 1, len(pre)]
            u["pre"] = pre
            u["exps"] = list(zip(u["exps"], need))
        def xok(g):
            n = OPT["xhi"] if g < qk[2][0] or g >= qk[13][0] else OPT["xnum"]
            return (g * n) % 100 < n
        S.packers.append(SoftmaxPacker2(units,
                                        lambda g: 1 if S.used(g, False) < 2 and xok(g) else 0))
    else:
        S.packers.append(SoftmaxPacker(units))
    fix_m0(S)
    return S.finish(lead=[k_read(0, j) for j in range(8)], report=OPT["report"])


def slow_path():
    o = [label("L_slow"), drain(), nop(16)]
    KF = [EPI + 4 * k for k in range(4)]
    VFR = 56
    vM = [f"v{120 + q}" for q in range(6)]
    vKo, vVo, vt, vu = "v60", "v61", "v62", "v63"
    o += [valu("v_lshrrev_b32", vt, 4, vL16), valu("v_and_b32", vu, 15, vt), valu("v_lshrrev_b32", vt, 4, vt),
          valu("v_lshlrev_b32", vKo, 8, vu), valu("v_lshl_add_u32", vKo, vt, 4, vKo),
          valu("v_lshlrev_b32", vVo, 10, vt), valu("v_lshl_add_u32", vVo, vu, 1, vVo)]
    o += [salu("s_sub_u32", "s58", sKV, 262144)]
    o += [valu("v_mov_b32", m, "0xff800000") for m in vM]

    def scores():
        r = []
        for kt in range(2):
            r += [salu("s_add_u32", "s61", "s59", kt * 4096)]
            r += [vload(("v", KF[ks]), 4, vKo, S_K, "s61", 64 * ks) for ks in range(4)] + [drain()]
            for qt in range(6):
                s = ("v", sreg(qt) + 4 * kt)
                r += [mfma(16, s, ("v", KF[ks]), ("v", qf(qt, ks)), None if ks == 0 else s) for ks in range(4)]
            r += [nop(16)]
        return r
    o += [salu("s_mov_b32", "s59", "s58"), salu("s_mov_b32", "s60", 16), label("L_slow1")] + scores()
    for qt in range(6):
        o += [valu("v_max3_f32", vM[qt], vM[qt], f"v{sreg(qt) + r}", f"v{sreg(qt) + r + 1}") for r in range(0, 8, 2)]
    o += [salu("s_add_u32", "s59", "s59", 8192), salu("s_sub_u32", "s60", "s60", 1), scmp("s_cmp_lg_u32", "s60", 0),
          raw("s_cbranch_scc1 L_slow1", "branch", rd=["scc"])]
    for qt in range(6):
        for op in ("v_permlane32_swap_b32", "v_permlane16_swap_b32"):
            o += [valu("v_mov_b32", vt, vM[qt]), nop(2), perm(op, vt, vM[qt]), valu("v_max_f32", vM[qt], vM[qt], vt)]
        o += [valu("v_mov_b32", f"v{lacc(qt) + r}", 0) for r in range(4)]
    o += [valu("v_accvgpr_write_b32", f"a{r}", 0) for r in range(192)]
    o += [salu("s_mov_b32", "s59", "s58"), salu("s_mov_b32", "s60", 16), label("L_slow2")] + scores()
    for qt in range(6):
        s = sreg(qt)
        o += [valu("v_sub_f32", f"v{s + r}", f"v{s + r}", vM[qt]) for r in range(8)]
        if OPT["tmax"]:
            o += [valu("v_mul_f32", f"v{s + r}", sC, f"v{s + r}") for r in range(8)]
        o += [valu("v_exp_f32", f"v{s + r}", f"v{s + r}") for r in range(8)]
        o += [valu("v_cvt_pk_bf16_f32", f"v{s + r}", f"v{s + 2 * r}", f"v{s + 2 * r + 1}") for r in range(4)]
    o += [salu("s_add_u32", "s57", "s59", 4096)]
    for dt in range(8):
        for j in range(8):
            o += [vload(("v", 184 + j), 1, vVo, S_V, "s57" if j >= 4 else "s59", (j & 3) * 256 + 32 * dt, op="buffer_load_ushort")]
        o += [drain()]
        o += [valu("v_lshl_or_b32", f"v{VFR + r}", f"v{185 + 2 * r}", 16, f"v{184 + 2 * r}") for r in range(4)]
        o += [mfma(16, ("a", oacc(qt, dt)), ("v", VFR), ("v", sreg(qt)), ("a", oacc(qt, dt))) for qt in range(6)]
        o += [nop(8)]
    o += [mfma(16, ("v", lacc(qt)), ("v", ONES), ("v", sreg(qt)), ("v", lacc(qt))) for qt in range(6)] + [nop(16)]
    o += [salu("s_add_u32", "s59", "s59", 8192), salu("s_sub_u32", "s60", "s60", 1), scmp("s_cmp_lg_u32", "s60", 0),
          raw("s_cbranch_scc1 L_slow2", "branch", rd=["scc"])]
    o += [nop(16)]
    if OPT["one1"]:
        for qt in range(6):
            o += lspread(qt, vt)
    o += [drain(), scmp("s_cmp_eq_u32", sIT, 1), raw("s_cbranch_scc1 L_back2", "branch", rd=["scc"]), raw("s_branch L_back1", "branch")]
    return o


def srd(base, lo, hi, nbytes):
    return [salu("s_mov_b32", f"s{base}", lo), salu("s_and_b32", f"s{base + 1}", hi, "0xffff"),
            salu("s_mov_b32", f"s{base + 2}", nbytes), salu("s_mov_b32", f"s{base + 3}", "0x20000")]


def decode_wg():
    return [salu("s_and_b32", "s3", "s2", 7), salu("s_lshr_b32", "s4", "s2", 6), salu("s_lshl_b32", "s3", "s3", 2),
            salu("s_add_u32", "s3", "s3", "s4"), salu("s_lshr_b32", "s4", "s2", 3), salu("s_and_b32", "s4", "s4", 7),
            salu("s_lshr_b32", "s5", "s3", 4), salu("s_and_b32", "s6", "s3", 15)]


def code_touch():
    return [salu("s_lshr_b32", "s68", "s2", 3), salu("s_lshl_b32", "s68", "s68", 11),
            valu("v_lshrrev_b32", "v11", 6, "v0"), valu("v_and_b32", "v12", 3, "v0"), valu("v_lshlrev_b32", "v11", 9, "v11"),
            valu("v_lshl_add_u32", "v11", "v12", 7, "v11"), valu("v_add_u32", "v11", "s68", "v11")] + (
            [valu("v_min_u32", "v11", "L_att-L_pc", "v11")] if OPT["cplim"] else []) + [
            Ins("global_load_dword v253, v11, s[96:97]", "vld", rd=["v11", "s96", "s97"], wr=["v253"])]


def kv_patterns():
    i, a, b, c = "v1", "v2", "v3", "v4"
    o = [valu("v_lshrrev_b32", a, 4, i), valu("v_and_b32", b, 15, i),
         valu("v_xor_b32", c, a, b), valu("v_lshlrev_b32", c, 4, c), valu("v_lshl_add_u32", vK[0], a, 8, c)]
    o += [valu("v_xor_b32", vK[m], m << 6, vK[0]) for m in range(1, 4)]
    o += [valu("v_lshlrev_b32", "v5", 1, a), valu("v_xor_b32", "v5", "v5", b), valu("v_lshlrev_b32", "v5", 4, "v5"),
          valu("v_lshl_add_u32", vV[0], a, 8, "v5"), valu("v_xor_b32", vV[1], 128, vV[0])]
    return o


sT2 = "s101"


def prologue():
    o = [scmp("s_cmp_ge_u32", "s2", 256), raw("s_cbranch_scc1 L_end", "branch", rd=["scc"])]
    o += [raw("s_getpc_b64 s[96:97]", wr=["s96", "s97"]), label("L_pc")]
    if OPT["dbgt"]:
        o += [raw("s_memrealtime s[72:73]", wr=["s72", "s73"])]
    if OPT["codepf"] == 2:
        o += code_touch()
    o += decode_wg()
    o += [salu("s_mul_i32", "s7", "s5", 40), salu("s_add_u32", "s68", "s0", "s7"), salu("s_addc_u32", "s69", "s1", 0),
          raw("s_load_dwordx8 s[56:63], s[68:69], 0", wr=regs("s", 56, 8)),
          raw("s_load_dwordx2 s[94:95], s[68:69], 32", wr=["s94", "s95"]),
          raw("s_load_dwordx4 s[88:91], s[0:1], 88", wr=regs("s", 88, 4)),
          raw("s_load_dwordx2 s[92:93], s[0:1], 80", wr=["s92", "s93"])]
    i, a, b, c = "v1", "v2", "v3", "v4"
    o += [valu("v_lshrrev_b32", a, 6, "v0"), valu("v_and_b32", i, 63, "v0"),
          valu("v_readfirstlane_b32", sWAVE, a), valu("v_lshlrev_b32", vL16, 4, i)]
    o += [valu("v_lshrrev_b32", a, 4, i), valu("v_and_b32", b, 7, i), valu("v_lshrrev_b32", "v5", 3, i),
          valu("v_and_b32", c, 1, a), valu("v_lshlrev_b32", c, 1, c), valu("v_xor_b32", c, c, b), valu("v_lshlrev_b32", c, 4, c),
          valu("v_lshl_add_u32", vW[0], "v5", 13, c),
          valu("v_xor_b32", vW[1], 64, vW[0]), valu("v_add_u32", vW[1], 64512, vW[1]),
          valu("v_add_u32", vW[2], 2 * 64512, vW[0]), valu("v_add_u32", vW[3], 2 * 64512, vW[1])]
    o += [valu("v_xor_b32", c, a, b), valu("v_lshlrev_b32", c, 4, c), valu("v_mul_u32_u24", "v6", 1280, "v5"),
          valu("v_add_u32", vX[0], "v6", c),
          valu("v_xor_b32", vX[1], 64, vX[0]), valu("v_add_u32", vX[1], 9216, vX[1]),
          valu("v_add_u32", vX[2], 2 * 9216, vX[0]), valu("v_add_u32", vX[3], 2 * 9216, vX[1])]
    o += [salu("s_lshr_b32", "s70", sWAVE, 1), salu("s_and_b32", "s71", sWAVE, 1),
          salu("s_lshl_b32", sW4K, sWAVE, 12), salu("s_mul_i32", sW6K, sWAVE, 6144),
          salu("s_lshl_b32", "s7", "s4", 2), salu("s_add_u32", "s7", "s7", "s70"),
          salu("s_lshl_b32", sWQ, "s71", 18), salu("s_lshl_b32", sT0, "s7", 8), salu("s_add_u32", sWQ, sWQ, sT0),
          salu("s_mul_i32", sX, "s6", 245760), salu("s_mul_i32", sT0, sWAVE, 61440), salu("s_add_u32", sX, sX, sT0)]
    o += [raw("s_waitcnt lgkmcnt(0)", "drainlg")]
    o += srd(S_X, "s56", "s57", 3932160) + srd(S_WQ, "s62", "s63", 5242880)
    o += [salu("s_add_u32", "s68", "s3", "s4"), salu("s_and_b32", "s68", "s68", 3)]
    for x in by_role("s69", "s68", TBLQ0):
        o += x if isinstance(x, list) else [x]
    for st in range(2):
        o += [salu("s_bfe_u32", sT0, "s69", "0x%x" % (0x40000 + 4 * st)), salu("s_lshl_b32", sT1, sT0, 19), salu("s_lshl_b32", sT0, sT0, 7),
              salu("s_add_u32", sPF[("W", st, 0)][0], sT1, sWQ), salu("s_add_u32", sPF[("X", st)][0], sT0, sX),
              salu("s_add_u32", sT2 if st else sPF[("W", st, 1)][0], sPF[("W", st, 0)][0], 128), salu("s_add_u32", sPF[("X", st)][1], sPF[("X", st)][0], 40960)]
    for k in [("W", 0, 0), ("X", 0), ("W", 0, 1), ("W", 1, 0), ("X", 1)]:
        for pre, ds in unit_dmas(k):
            o += pre[::-1] + ds
    if OPT["warmw"]:
        o += [salu("s_mul_i32", "s68", "s6", 40 * 8192), salu("s_lshl_b32", "s69", "s4", 10), salu("s_add_u32", "s68", "s68", "s69"),
              salu("s_mul_i32", "s69", sWAVE, 10 * 8192), salu("s_add_u32", "s68", "s68", "s69"),
              valu("v_lshlrev_b32", b, 7, b), valu("v_lshl_add_u32", "v6", "v5", 13, b), valu("v_and_b32", c, 1, "v5"),
              valu("v_lshl_add_u32", c, c, 13, b), salu("s_add_u32", "s69", "s68", 8 * 8192)]
        o += [vload(("v", 254), 1, "v6", S_WQ, "s68", 0), vload(("v", 255), 1, c, S_WQ, "s69", 0)]
    o += [salu("s_lshr_b32", "s68", "s2", 3), salu("s_lshl_b32", "s68", "s68", 2), salu("s_add_u32", "s68", "s68", sWAVE), salu("s_lshl_b32", sCP, "s68", 8)]
    if OPT["codepf"] == 1:
        o += code_touch()
    o += srd(S_WO, "s94", "s95", 5242880)
    o += [salu("s_lshl_b32", "s68", "s6", 3), salu("s_add_u32", "s68", "s68", "s4"),
          salu("s_mul_i32", sWOS, "s68", 40960), salu("s_mul_i32", sT0, sWAVE, 10240), salu("s_add_u32", sWOS, sWOS, sT0)]
    for jj in range(OPT["jpro"]):
        for pre, ds in unit_dmas(("J", jj), sE):
            o += pre[::-1] + ds
    o += srd(S_K, "s58", "s59", 67108864) + srd(S_V, "s60", "s61", 67108864) + [salu("s_mov_b32", sW1, sT2)]
    o += srd(S_OST, "s90", "s91", WS_WOT) + srd(S_FLG, "s88", "s89", 256)
    o += [salu("s_add_u32", "s68", "s90", WS_WOT), salu("s_addc_u32", "s69", "s91", 0)] + srd(S_WOT, "s68", "s69", 2 * WOT_BLK)
    o += [salu("s_lshl_b32", sFG, "s3", 2), salu("s_lshl_b32", sFB, "s5", 6)]
    if OPT["dbgt"]:
        o += [salu("s_add_u32", sFG, sFG, 128), salu("s_add_u32", sFB, sFB, 128)]
    o += [
          valu("v_cmp_eq_u32", "vcc", 0, "v0"), valu("v_mov_b32", "v10", "0x1000"), valu("v_mov_b32", f"v{ONES}", "0x3f803f80"),
          valu("v_cndmask_b32", vFLG, "v10", 0, "vcc"),
          ]
    if OPT["one1"]:
        o += [valu("v_and_b32", "v10", 15, "v0"), valu("v_cmp_eq_u32", "vcc", 0, "v10"), valu("v_cndmask_b32", f"v{ONES}", 0, f"v{ONES}", "vcc")]
    o += [valu("v_mov_b32", f"v{ONES + r}", f"v{ONES}") for r in range(1, 4)]
    if OPT["prof"]:
        o += [salu("s_add_u32", "s68", "s90", WS_PROF), salu("s_addc_u32", "s69", "s91", 0)] + srd(S_PROF, "s68", "s69", 1 << 20)
        o += [salu("s_lshl_b32", sPROF, "s2", 2), salu("s_add_u32", sPROF, sPROF, sWAVE), salu("s_lshl_b32", sPROF, sPROF, 10)]
        o += prof_stamp(0, 8)
    o += [salu("s_lshl_b32", sKV, "s6", 5), salu("s_add_u32", sKV, sKV, "s7"), salu("s_lshl_b32", sKV, sKV, 17),
          salu("s_lshl_b32", sT0, "s71", 12),
          salu("s_lshr_b32", sROT, "s2", 3), salu("s_lshl_b32", sT1, "s2", 1), salu("s_add_u32", sROT, sROT, sT1),
          salu("s_and_b32", sROT, sROT, 0 if OPT["norot"] else 15), salu("s_lshl_b32", sROT, sROT, 13), salu("s_add_u32", sROT, sROT, sT0)]
    if OPT["tlbw"]:
        for n, (r, so) in enumerate(((S_K, sKV), (S_V, sKV), (S_WO, sWOS))):
            o += [Ins(f"buffer_load_dword v{244 + n}, off, s[{r}:{r + 3}], {so} nt", "vld", rd=[so] + regs("s", r, 4))]
    if OPT["kpro"]:
        o += kv_patterns()
        for k in [("K", 0), ("V", 0), ("K", 1)][:OPT["kpro"]]:
            for pre, ds in unit_dmas(k, sE):
                o += pre + [nop(1)] + ds
    o += [salu("s_mul_i32", sO, "s3", O_GRP), salu("s_mul_i32", sT0, "s71", 786432), salu("s_add_u32", sO, sO, sT0),
          salu("s_lshr_b32", sT0, "s4", 1), salu("s_mul_i32", sT0, sT0, 16 * 12288), salu("s_add_u32", sO, sO, sT0),
          salu("s_and_b32", sT0, "s4", 1), salu("s_mul_i32", sT0, sT0, 4 * 12288), salu("s_add_u32", sO, sO, sT0),
          salu("s_mul_i32", sT0, "s70", 2 * 12288), salu("s_add_u32", sO, sO, sT0)]
    o += [salu("s_lshl_b32", "s68", "s6", 3), salu("s_add_u32", "s68", "s68", "s4"),
          salu("s_lshr_b32", sT0, "s68", 1), salu("s_and_b32", sT1, sT0, "0x33"),
          salu("s_and_b32", "s69", sT0, 4), salu("s_lshl_b32", "s69", "s69", 1), salu("s_or_b32", sT1, sT1, "s69"),
          salu("s_and_b32", "s69", sT0, 8), salu("s_lshr_b32", "s69", "s69", 1), salu("s_or_b32", sT1, sT1, "s69"),
          salu("s_mul_i32", sWOD, sT1, 20480),
          salu("s_and_b32", sT0, "s68", 1), salu("s_lshl_b32", sT0, sT0, 11), salu("s_add_u32", sWOD, sWOD, sT0),
          salu("s_mul_i32", sT0, "s5", WOT_BLK), salu("s_add_u32", sWOD, sWOD, sT0),
          salu("s_lshl_b32", sT0, "s70", 12), salu("s_add_u32", sWOD, sWOD, sT0),
          salu("s_lshl_b32", sT0, "s71", 10), salu("s_add_u32", sWOD, sWOD, sT0),
          salu("s_mul_i32", sT0, "s70", 1310720 - 20480), salu("s_add_u32", sWOX, sWOD, sT0)]
    o += [salu("s_add_u32", "s68", "s3", "s4"), salu("s_and_b32", "s68", "s68", 3)]
    for x in by_role(sQT, "s68", TBLQ1):
        o += x if isinstance(x, list) else [x]
    cbits = struct.unpack("<I", struct.pack("<f", math.log2(math.e) / math.sqrt(128.0)))[0]
    o += [salu("s_mov_b32", sC, "0x%x" % cbits), salu("s_mov_b32", sHI, "0x5d800000" if OPT["tmax"] == 1 else "0x53800000" if OPT["tmax"] else "0x4e800000"),
          salu("s_mov_b32", sLO, "0x42200000" if OPT["tmax"] else "0x30800000"), salu("s_mov_b32", sNC, "0x%x" % (cbits | 0x80000000)),
          salu("s_mov_b32", sIT, 0)]
    if not OPT["kpro"]:
        o += kv_patterns()
    o += [salu("s_lshl_b32", "s69", "s70", 13), salu("s_mul_i32", "s68", "s71", 12288), salu("s_add_u32", "s68", "s68", XS[0]),
          valu("v_bfe_u32", "v8", i, 2, 2), valu("v_and_b32", "v9", 3, i)]
    o += [valu("v_lshl_add_u32", c, b, 8, c), valu("v_add_u32", c, KWANT[15], c), valu("v_add_u32", kA[0], "s69", c)]
    o += [valu("v_xor_b32", kA[j], j << 6, kA[0]) for j in range(1, 4)]
    o += [valu("v_lshl_add_u32", "v5", a, 2, "v8"), valu("v_lshlrev_b32", c, 8, "v5"), valu("v_and_b32", "v6", 7, "v5"),
          valu("v_lshl_add_u32", c, "v6", 5, c), valu("v_lshl_add_u32", c, "v9", 3, c),
          valu("v_add_u32", c, VWANT[0], c), valu("v_add_u32", vA[0], "s69", c)]
    o += [valu("v_xor_b32", vA[d], d << 5, vA[0]) for d in range(1, 8)]
    o += [valu("v_lshl_add_u32", c, a, 3, "v8"), valu("v_lshlrev_b32", c, 7, c),
          valu("v_and_b32", "v5", 2, "v8"), valu("v_and_b32", "v7", 1, a), valu("v_lshl_add_u32", "v5", "v7", 2, "v5"),
          valu("v_xor_b32", "v5", "v5", "v9"), valu("v_lshl_add_u32", c, "v5", 4, c), valu("v_add_u32", wA[0], "s69", c),
          valu("v_xor_b32", wA[1], 64, wA[0])]
    o += [valu("v_lshrrev_b32", "v5", 1, b), valu("v_xor_b32", "v5", "v5", a),
          valu("v_lshlrev_b32", "v5", 4, "v5"), valu("v_lshl_add_u32", c, b, 7, "v5"),
          valu("v_xor_b32", "v5", 64, c), valu("v_add_u32", xA[0], "s68", c), valu("v_add_u32", xA[1], "s68", "v5")]
    o += [salu("s_lshl_b32", "s68", "s70", 2), salu("s_lshl_b32", "s69", "s71", 3), salu("s_add_u32", "s69", "s69", WOJ_ADDR),
          valu("v_lshrrev_b32", c, 1, a), valu("v_lshlrev_b32", c, 12, c), valu("v_lshl_add_u32", c, "v6", 7, c),
          valu("v_add_u32", c, "s69", c), valu("v_add_u32", "v5", "s68", "v9"), valu("v_lshrrev_b32", "v6", 1, "v6"),
          valu("v_xor_b32", "v5", "v5", "v6"), valu("v_lshl_add_u32", vJ, "v5", 4, c)]
    o += [needvm([("W", 0, 0), ("X", 0)]), barrier()] + first_reads(0)
    return o


def acc2(pi, xy, qi):
    return ((pi * 6 + qi) * 2 + xy) * 4


def a2(st, pi, ks, xy):
    if st == 0:
        return (240 if pi == 0 else 48 + 16 * pi) + 8 * ks + 4 * xy
    return (48 if pi == 0 else 112 + 16 * pi) + 8 * ks + 4 * xy


def b2(st, qi, ks):
    return (192 if st == 0 else 0) + 8 * qi + 4 * ks


V2A = ["v%d" % i for i in range(240, 245)]


def k2_loads_A(st, pi, soff=None):
    return [vload(("a", a2(st, pi, ks, xy)), 4, V2A[pi], S2A, soff or sA2, ks * 2048 + xy * 1024, flags=SC1) for xy in range(2) for ks in range(2)]


def k2_loads_B(st, qi):
    return [vload(("a", b2(st, qi, ks)), 4, V2B[qi], S2B, sB2, ks * 1024, flags=SC1) for ks in range(2)]


def k2_lds_A(st, pi):
    out = []
    for xy in range(2):
        for ks in range(2):
            r = [r for r, (s_, p_, off) in PF2.items() if (s_, p_) == (st, pi) and (r not in ("s87", "s99") or off == 2048 * ks)][0]
            key = [k for k, rs in sPF.items() if r in rs][0]
            if key[0] == "W":
                out.append(ds_read("ds_read_b128", ("a", a2(st, pi, ks, xy)), 4, V2W, U[key]["addr"] + ks * 2048 + xy * 1024))
            elif key[0] == "P":
                out.append(ds_read("ds_read_b128", ("a", a2(st, pi, ks, xy)), 4, V2P,
                                   (0 if key[1] == 1 else PADDR[key] - D[4]) + ks * 2048 + xy * 1024))
            elif r == sPF[key][0]:
                out.append(ds_read("ds_read_b128", ("a", a2(st, pi, ks, xy)), 4, V2X, U[key]["addr"] - XS[0] + ks * 2048 + xy * 1024))
            else:
                out.append(ds_read("ds_read_b128", ("a", a2(st, pi, ks, xy)), 4, V2X, U[key]["addr"] - XS[0] + 4096 + xy * 1024))
    return out


def k2_steps(S, first, loadA, loadB, pend, check=False, late=(), final=None):
    for st in range(2):
        q0 = S.n()
        tiles = [(pi, xy, qi) for pi in range(5) for xy in range(2) for qi in range(6)]
        if final is not None and st == 1:
            tiles = [t for t in tiles if t[2] >= 3] + [t for t in tiles if t[2] < 3]
            for n, x in enumerate(final[0]):
                S.put(q0 + 2 + n, x)
            for n, x in enumerate(final[1]):
                S.put(q0 + 61 + 2 * n, x)
        for pi, xy, qi in tiles:
            for ks in range(2):
                acc = ("v", acc2(pi, xy, qi))
                S.add(mfma(16, acc, ("a", a2(st, pi, ks, xy)), ("a", b2(st, qi, ks)),
                           None if (first and st == 0 and ks == 0) else acc))
        pos = [int(0.5 + 3.75 * n) for n in range(32)]
        if pend[st]:
            ls = k2_loads_A(1 - st, 4)
            S.put(q0 + pos[0], ls[2])
            S.put(q0 + pos[1], ls[3])
            for n, x in enumerate(next_off(sA2, TA, sAB, 20480)):
                S.put(q0 + pos[1] + 1 + n, x)
        if first and st == 0:
            for n, (pre, l) in enumerate(late):
                S.put(q0 + 6 * n + 2, *pre)
                S.put(q0 + 6 * n + 3, l)
            for n, r in enumerate(k2_lds_A(1, 0) + k2_lds_A(1, 1) + k2_lds_A(1, 2)):
                S.put(q0 + 6 * n + 5 if n < 8 else q0 + 54 + 4 * (n - 8), r)
            S.put(q0 + 70, valu("v_add_u32", V2P, D[9] - D[5], V2P))
            for n, r in enumerate(k2_lds_A(1, 3)):
                S.put(q0 + 73 + 4 * n, r)
        elif loadB[st]:
            for n, l in enumerate([l for qi in range(6) for l in k2_loads_B(1 - st, qi)]):
                S.put(q0 + pos[2 + n], l)
            for n, x in enumerate(next_off(sB2, TB, sBB, 12288)):
                S.put(q0 + pos[13] + 1 + n, x)
        if loadA[st]:
            n = 14
            for pi in range(5):
                ls = k2_loads_A(st, pi)
                for x, l in enumerate(ls if pi < 4 else ls[:2]):
                    assert pos[n] >= 24 * pi + 11 + 12 * (x >> 1), (pi, x, pos[n])
                    S.put(q0 + pos[n], l)
                    n += 1
        if first and st == 1:
            S.put(q0 + 110, needvm(["ost"]), barrier())
            S.put(q0 + 111, valu("v_mov_b32", V2P, "0x100"))
            S.put(q0 + 114, atomic_add(V2P, sFG))
        if check and st == 1:
            S.put(q0 + 1, scmp("s_cmp_eq_u32", sCNT, 5), salu("s_cselect_b32", sWANT, 8, 0), salu("s_cselect_b32", sPL, sFG, "0x1000"))
            S.put(q0 + 2, poll_load(V2P, sPL))
        if check and st == 0:
            S.put(q0 + 1, valu("v_readfirstlane_b32", sQ, V2P))
            S.put(q0 + 6, salu("s_bfe_u32", sQ, sQ, "0x80008"), scmp("s_cmp_lt_u32", sQ, sWANT),
                  raw("s_cbranch_scc1 L_spin2", "branch", rd=["scc"]), label("L_spin2_back"))


def k2_first(S, late):
    seq = [(0, p) for p in range(4)] + [(1, p) for p in range(3)] + [(0, 4), (1, 3), (1, 4)]
    at = {}
    for st, pi in seq:
        at[(st, pi)] = S.n()
        for xy in range(2):
            for qi in range(6):
                for ks in range(2):
                    acc = ("v", acc2(pi, xy, qi))
                    S.add(mfma(16, acc, ("a", a2(st, pi, ks, xy)), ("a", b2(st, qi, ks)), None if (st == 0 and ks == 0) else acc))
    for n, (pre, l) in enumerate(late):
        S.put(13 * n + 2, *pre)
        S.put(13 * n + 3, l)
    assert 13 * len(late) < at[(0, 4)]
    g = 5
    for pi in range(4):
        for r in k2_lds_A(1, pi):
            while S.fixed.get(g):
                g += 1
            S.put(g, r)
            g += 4
    items = []
    for pi in range(5):
        for x, l in enumerate(k2_loads_A(0, pi, sSO)):
            items.append((l, at[(0, pi)] + 11 + 12 * (x >> 1), 240 + 24 * pi + 12 * (x >> 1)))
        for x, l in enumerate(k2_loads_A(1, pi)[:4 if pi < 4 else 2]):
            items.append((l, at[(1, pi)] + 11 + 12 * (x >> 1), 360 + 24 * pi + 12 * (x >> 1)))
    for qi in range(6):
        for ks, l in enumerate(k2_loads_B(0, qi)):
            items.append((l, at[(0, 4)] + 12 + 2 * qi + ks, 200 + 2 * qi + ks))
    items.sort(key=lambda i: i[2])
    g, lastB = 11, 0
    while items:
        c = [i for i in items if i[1] <= g]
        if c and not any(S.fixed.get(k) and any(j.kind in ("vld", "vst") for j in S.fixed[k]) for k in ((g - 2, g - 1, g + 1) if g < 180 else (g - 1, g + 1))) and not S.fixed.get(g):
            S.put(g, c[0][0])
            if sB2 in c[0][0].rd:
                lastB = g
            items.remove(c[0])
        g += 1
        assert g < 240, items
    for n, x in enumerate(next_off(sB2, TB, sBB, 12288)):
        S.put(lastB + 1 + n, x)
    if OPT["p2st"]:
        for n, g in enumerate((47, 95, 143, 167, 191, 215)):
            S.put(g, raw(f"s_memrealtime s[76:77]", wr=["s76", "s77"]), raw("s_waitcnt lgkmcnt(0)", "drainlg"), salu("s_mov_b32", f"s{101 - n}", "s76"))
    g = 226
    while S.fixed.get(g) or S.fixed.get(g + 1) or S.fixed.get(g + 3):
        g += 1
    S.put(g, needvm(["ost"]), barrier())
    S.put(g + 1, valu("v_mov_b32", V2P, "0x100"))
    S.put(g + 3, atomic_add(V2P, sFG))


def spin(name, back, dsts, soffs, conds):
    o = [label(name), salu("s_mov_b32", sSPIN, 0), label(name + "_loop"), raw("s_sleep 8")]
    o += [poll_load(d, so) for d, so in zip(dsts, soffs)]
    o += [drain(), salu("s_add_u32", sSPIN, sSPIN, 1), scmp("s_cmp_gt_u32", sSPIN, "0x20000"),
          raw(f"s_cbranch_scc1 {back}", "branch", rd=["scc"])]
    for d, (sh, msk, want) in zip(dsts, conds):
        o += [valu("v_readfirstlane_b32", sQ, d), nop(4)]
        if sh:
            o += [salu("s_lshr_b32", sQ, sQ, sh)]
        if msk:
            o += [salu("s_and_b32", sQ, sQ, msk)]
        o += [scmp("s_cmp_lt_u32", sQ, want), raw(f"s_cbranch_scc1 {name}_loop", "branch", rd=["scc"])]
    o += [raw(f"s_branch {back}", "branch")]
    return o


def phase2():
    o = [valu("v_mov_b32", V2L, vL16), salu("s_and_b32", "s85", "s4", 3), salu("s_and_b32", "s32", sWAVE, 1), salu("s_lshr_b32", "s33", sWAVE, 1),
         salu("s_mul_i32", sAB, sWAVE, 16 * 20480), salu("s_lshr_b64", f"s[{TA}:{TA + 1}]", "s[34:35]", 4)]
    o += next_off(sB2, TB, sBB, 12288)
    o += [valu("v_add_u32", V2W, sW4K, V2L), salu("s_add_u32", "s7", sW6K, XS[0]), valu("v_add_u32", V2X, "s7", V2L), valu("v_add_u32", V2P, D[4], V2W)]
    o += [scmp("s_cmp_eq_u32", "s33", 0)]
    o += [salu("s_cselect_b32", f"s{47 + q}", q, 2 - q) for q in range(3)]
    o += [salu("s_cselect_b32", f"s{36 + pi}", pi, 4 - pi) for pi in range(5)]
    o += [salu("s_mul_i32", "s34", "s32", 3)]
    o += [salu("s_add_u32", f"s{47 + q}", f"s{47 + q}", "s34") for q in range(3)]
    save = list(vR)
    vR[:] = [f"v{16 + q}" for q in range(6)]
    nl = 12 if OPT["pace"] else 8
    eg = epilogue_groups(0, lambda n: 240 - 4 * (24 - n) - (0 if OPT["pace"] else 16) if n >= 24 - nl else 32 + 4 * n, V2L)
    vR[:] = save
    b1 = [l for qi in range(6) for l in k2_loads_B(1, qi)]
    for n, (v, pre, st, imm) in enumerate(eg):
        m = b1[2 * (n - 8):2 * (n - 8) + 2] if 8 <= n < 14 else []
        o += v[:8] + m[:1] + v[8:16] + m[1:] + v[16:]
        if OPT["pace"]:
            if n % 2 == 0:
                o += eg[n // 2][1] + [eg[n // 2][2]]
        elif n < 16:
            o += pre + [st]
        if n == 15:
            o += [needvm(list(sPF))]
            for pi in range(5):
                o += [salu("s_lshl_b32", "s7", f"s{36 + pi}", 12), valu("v_add_u32", V2A[pi], "s7", V2L)]
            o += next_off(sPL, TA, sAB, 20480)
            if OPT["pace"]:
                o += next_off(sSO, TA, sAB, 20480)
            o += next_off(sA2, TA, sAB, 20480)
        if 16 <= n < 21:
            o += k2_lds_A(0, n - 16)
    late = []
    for n, g in enumerate(eg[24 - nl:]):
        st = vstore(("v", 240 - 4 * (nl - n) - (0 if OPT["pace"] else 16)), 4, V2L, S_OST, sE, g[3], tag="ost", flags=SC1)
        late.append((g[1], st))
    o += k2_loads_A(1, 4, sPL) + [valu("v_add_u32", V2P, D[9] - D[4], V2P)]
    o += next_off(sB2, TB, sBB, 12288) + [salu("s_mov_b32", sWANT, 0)]
    o += prof_stamp(1, 30)
    o += srd(S2OUT, "s92", "s93", 7864320)
    o += [salu("s_mul_i32", sOB, "s6", 192 * 2560), salu("s_mul_i32", "s7", "s84", 96 * 2560), salu("s_add_u32", sOB, sOB, "s7"),
          salu("s_mul_i32", "s7", "s5", 1280), salu("s_add_u32", sOB, sOB, "s7"),
          salu("s_mul_i32", "s7", "s85", 320), salu("s_add_u32", sOB, sOB, "s7"), salu("s_mov_b32", sCNT, 6)]
    S0 = Sched()
    if OPT["pace"]:
        k2_first(S0, late)
    else:
        k2_steps(S0, True, [True, True], [True, True], [False, True], late=late)
    S0.order_fixed()
    first = S0.build()
    S1 = Sched()
    k2_steps(S1, False, [True, True], [True, True], [True, True], check=True)
    if OPT["prof"] and not OPT["p2st"]:
        S1.put(3, raw("s_memrealtime s[76:77]", wr=["s76", "s77"]), raw("s_waitcnt lgkmcnt(0)", "drainlg"),
               salu("s_mov_b32", "s101", "s100"), salu("s_mov_b32", "s100", "s99"), salu("s_mov_b32", "s99", "s98"),
               salu("s_mov_b32", "s98", "s97"), salu("s_mov_b32", "s97", "s96"), salu("s_mov_b32", "s96", "s76"))
    S1.put(237, salu("s_sub_u32", sCNT, sCNT, 1))
    S1.order_fixed()
    loop = [label("L_k2")] + S1.build() + [scmp("s_cmp_lg_u32", sCNT, 0), raw("s_cbranch_scc1 L_k2", "branch", rd=["scc"])]
    R1, R2, i, a, V2O = V2A[0], V2A[1], V2A[2], V2A[3], V2A[4]
    setup = [salu("s_mul_i32", "s7", sWAVE, 30720), valu("v_add_u32", V2W, "s7", V2L), valu("v_lshrrev_b32", i, 4, V2L),
             valu("v_and_b32", a, 15, i), valu("v_mul_u32_u24", a, 2560, a), valu("v_lshrrev_b32", i, 4, i),
             valu("v_lshl_add_u32", V2O, i, 4, a),
             salu("s_xor_b32", sPL, sWAVE, 1), salu("s_sub_u32", sPL, sPL, sWAVE), salu("s_mul_i32", "s7", sPL, 30720),
             valu("v_add_u32", R1, "s7", V2W),
             salu("s_xor_b32", sPL, sWAVE, 3), salu("s_sub_u32", sPL, sPL, sWAVE), salu("s_mul_i32", "s7", sPL, 30720),
             valu("v_add_u32", R2, "s7", V2W)]
    sent = [(pi, xy, qi) for pi in range(5) for qi in range(3, 6) for xy in range(2)]
    wr = {t: ds_write("ds_write_b128", V2W, ("v", acc2(*t)), 4, n * 1024) for n, t in enumerate(sent)}
    S2 = Sched()
    e = []
    if OPT["redov"]:
        order = [wr[(pi, xy, qi)] for pi in range(5) for xy in range(2) for qi in range(3, 6)]
        k2_steps(S2, False, [False, False], [True, False], [True, False], final=(setup, order[:29]))
        e = order[29:]
    else:
        k2_steps(S2, False, [False, False], [True, False], [True, False])
        e = setup + list(wr.values())
    S2.order_fixed()
    last = S2.build()
    e += [needlgkm0(), barrier()] + prof_stamp(8, 234)
    for s in list(range(7, 15)) + list(range(7)):
        pi, q = divmod(s, 3)
        e += [ds_read("ds_read_b128", ("v", acc2(pi, xy, q + 3)), 4, R1, (2 * s + xy) * 1024) for xy in range(2)]
    for s in list(range(7, 15)) + list(range(7)):
        pi, q = divmod(s, 3)
        d, t = acc2(pi, 0, q), acc2(pi, 0, q + 3)
        e += [valu("v_add_f32", f"v{d + r}", f"v{d + r}", f"v{t + r}") for r in range(8)]
        if s >= 7:
            e += [ds_write("ds_write_b128", R1, ("v", acc2(pi, xy, q)), 4, (2 * s + xy) * 1024) for xy in range(2)]
    e += [needlgkm0(), barrier()]
    for s in range(8):
        pi, q = divmod(s, 3)
        for xy in range(2):
            e += [ds_read("ds_read_b128", ("v", acc2(pi, xy, q + 3)), 4, R2, (2 * (14 - s) + xy) * 1024)]
    for s in range(8):
        pi, q = divmod(s, 3)
        d0, t0 = acc2(pi, 0, q), acc2(pi, 0, q + 3)
        e += [valu("v_add_f32", f"v{d0 + r}", f"v{d0 + r}", f"v{t0 + r}") for r in range(8)]
        e += [valu("v_cvt_pk_bf16_f32", f"v{d0 + r}", f"v{d0 + 2 * r}", f"v{d0 + 2 * r + 1}") for r in range(4)]
        e += [salu("s_mul_i32", "s7", f"s{47 + q}", 40960), salu("s_lshl_b32", sPL, f"s{36 + pi}", 6),
              salu("s_add_u32", "s7", "s7", sPL), salu("s_add_u32", sSO, "s7", sOB),
              vstore(("v", d0), 4, V2O, S2OUT, sSO, 0, flags=OPT["outf"])]
    e += prof_stamp(9, 234)
    if OPT["prof"]:
        for n in range(6):
            e += [valu("v_mov_b32", "v234", 1), valu("v_mov_b32", "v235", f"s{101 - n}"), pstore(234, 2 + n), nop(4)]
    if OPT["dbgt"]:
        a, b = {1: ("s76", "s78"), 2: ("s74", "s76")}[OPT["dbgt"]]
        e += [drain(), raw("s_memrealtime s[78:79]", wr=["s78", "s79"]), raw("s_waitcnt lgkmcnt(0)", "drainlg"),
              salu("s_sub_u32", a, a, "s72"), salu("s_sub_u32", b, b, "s72"),
              scmp("s_cmp_lt_u32", "s2", 8), salu("s_cselect_b32", "s7", "s2", "0x1000"), salu("s_lshl_b32", "s7", "s7", 2),
              valu("v_mov_b32", "v0", a), valu("v_mov_b32", "v1", b),
              Ins(f"buffer_store_dword v0, {vFLG}, s[{S_FLG}:{S_FLG + 3}], s7 offen", "vst", rd=["v0", vFLG, "s7"]),
              Ins(f"buffer_store_dword v1, {vFLG}, s[{S_FLG}:{S_FLG + 3}], s7 offen offset:32", "vst", rd=["v1", vFLG, "s7"])]
    e += [label("L_end"), raw("s_endpgm")]
    sp1 = spin("L_spin1", "L_spin1_back", vPOLL[:1], [sFG], [(0, "0xff", 8)]) + spin("L_spin3", "L_spin3_back", vPOLL[1:], [sFB], [(16, 0, 128)])
    sp2 = spin("L_spin2", "L_spin2_back", [V2P], [sFG], [(8, "0xff", 8)])
    return o, first, loop, last, e, sp1, sp2


def check_pointers(pro):
    ptr = set(regs("s", 56, 8) + regs("s", 88, 8))
    dirty = set()
    for x in pro:
        if x.text.startswith("s_load"):
            continue
        if x.text.startswith(("s_mov_b32", "s_and_b32", "s_add_u32", "s_addc_u32")) and x.rd & dirty and "0xffff" in x.text:
            raise AssertionError(x.text)
        dirty |= x.wr & ptr


def kernel():
    pro = prologue()
    check_pointers(pro)
    q1 = q_phase(False)
    full = []
    for last in (False, True):
        _alt[0] = 0
        full.append(a_phase(last))
    cut = [[n for n, x in enumerate(f) if x.text == "L_CUT:"][0] for f in full]
    assert [x.text for x in full[0][:cut[0]]] == [x.text for x in full[1][:cut[1]]]
    att = [label("L_att")] + full[0][:cut[0]]
    tails = []
    for v in range(2):
        t = [label(f"L_tail{v + 1}")] + full[v][cut[v] + 1:]
        t += [raw("s_cbranch_vccnz L_slow", "branch", rd=["vcc"]), label(f"L_back{v + 1}")]
        t += [valu("v_rcp_f32", f"v{16 + qt}" if v else vR[qt], f"v{lacc(qt)}") for qt in range(6)]
        if OPT["dbgt"]:
            t += [raw(f"s_memrealtime s[{74 + 2 * v}:{75 + 2 * v}]", wr=[f"s{74 + 2 * v}", f"s{75 + 2 * v}"]), raw("s_waitcnt lgkmcnt(0)", "drainlg")]
        t += prof_stamp(29)
        if OPT["prof"]:
            t += [salu("s_add_u32", sPROF, sPROF, 240)]
        tails.append(t)
    q2 = [salu("s_mov_b32", sIT, 1), label("L_q2")] + q_phase(True) + [raw("s_branch L_att", "branch")]
    o, first, loop2, last, e, sp1, sp2 = phase2()
    slow = slow_path()
    parts = [pro, q1, att, tails[0], q2, tails[1], o, first, loop2, last, e, slow, sp1, sp2]
    waits = compute_waits([pro + q1 + att + tails[0] + q2 + att + tails[1] + o + first + loop2 + loop2 + loop2 + last + e, slow, sp1, sp2])
    done = {}
    P = [apply_waits(x, waits, done) for x in parts]
    pads = pad_hazards([P[0] + P[1] + P[2] + P[3] + P[4] + P[2] + P[5] + P[6] + P[7] + P[8] + P[8] + P[9] + P[10], P[11], P[12], P[13]])
    al = ".p2align 3\n"
    return (emit(P[0] + P[1], pads) + al + emit(P[2] + P[3] + P[4], pads) + al + emit(P[5] + P[6] + P[7], pads) + al +
            emit(P[8] + P[9] + P[10] + P[11] + P[12] + P[13], pads) + "L_endcode:\n")


def main():
    kn = NAME + "_kernel"
    s = open("cdna_kernels/" + NAME + ".s.ref").read().split("; Override launch")[0]
    s += "; @launch grid=(256,1,1) block=(256,1,1) lds=163840\n"
    s += '.amdgcn_target "amdgcn-amd-amdhsa--gfx950"\n.text\n'
    s += f".globl {kn}\n.p2align 8\n.type {kn},@function\n{kn}:\n" + kernel()
    s += f""".section .rodata,"a"
.p2align 6
.amdhsa_kernel {kn}
  .amdhsa_next_free_vgpr 512
  .amdhsa_next_free_sgpr 102
  .amdhsa_accum_offset 256
  .amdhsa_group_segment_fixed_size 0
  .amdhsa_kernarg_size 104
  .amdhsa_user_sgpr_count 2
  .amdhsa_user_sgpr_kernarg_segment_ptr 1
  .amdhsa_system_sgpr_workgroup_id_x 1
.end_amdhsa_kernel
"""
    open(sys.argv[1], "w").write(s)


main()
```

```python
import sys, math, struct
from fw3 import *
from orders import orders
import alloc3

NAME = "concat_heads__mha_block_cached__mha_block_cached__near_ridge"
OPT = dict(outf=' sc1', redov=1, one1=1, warmj=0, pk=1, pfq1=1, rot2=4, gate=0, pace=1, lead=3, xpace=0, kvf=' nt', norot=0, tlbw=0, kpro=0, kplan=0, jlate=1, dbgt=0, jpro=0, k1s=0, e10=1, t23=0, nfree=1, kstep10=136, ks1=0, kn1=0, kfirst=6, k2late=0, qsp=1, tmax=2, xnum=25, xhi=100, ctq=0, cplim=1, p2st=0, kbar=0, kin=2, cta='', rotq1=2, gstep=2, rotq=3, early=1, uni=0, prof=0, report=False, stg=67, warmw=True, codepf=2, codepf2=12, pf='', pf0=1, pfn=3, pff='', flagbar=12, map=0)
for a in sys.argv[2:]:
    k, v = a.split("=")
    OPT[k] = type(OPT[k])(int(v)) if not isinstance(OPT[k], str) else v

KB = 1024
SC1 = " sc1"
O_GRP = 2 * 786432
WS_WOT = 50331648
WOT_BLK = 5242880
WS_PROF = 64 * 1024 * 1024

S_K, S_V, S_X, S_WQ, S_OST, S_WO, S_WOT = 8, 12, 16, 20, 24, 28, 32
sKV, sWQ, sX, sW4K, sW6K, sO, sIT, sT0, sT1, sC, sWAVE = ["s%d" % i for i in range(36, 47)]
sWOS, sWOD, sWOX, sW5K, sHI, sLO = ["s%d" % i for i in range(47, 53)]
sPROF, sE, sJ = "s53", "s54", "s55"
sQT, sWS, sXS, sW1, sNC = "s50", "s67", "s95", "s63", "s7"
sROT, sFG, sFB, sCP = "s62", "s65", "s66", "s64"
sA2, sB2, sPL, sOB, sCNT, sSO, sQ, sSH, sWANT, sSPIN = "s28", "s29", "s30", "s31", "s67", "s68", "s69", "s70", "s71", "s94"
S_PROF, S_FLG = 72, 80
sPF = {("W", 0, 0): ["s84"], ("W", 0, 1): ["s85"], ("X", 0): ["s86", "s87"], ("X", 1): ["s98", "s99"], ("W", 1, 0): ["s100"],
       ("P", 0): ["s60"], ("P", 1): ["s61"], ("P", 2): ["s101"]}
PF2 = {"s84": (0, 0, 0), "s86": (0, 1, 0), "s60": (0, 2, 0), "s101": (0, 3, 0), "s98": (0, 4, 0), "s61": (1, 0, 0),
       "s87": (1, 1, 0), "s99": (1, 1, 2048), "s85": (1, 2, 0), "s100": (1, 3, 0)}
vK = ["v%d" % i for i in range(192, 196)]
vV = ["v196", "v197"]
vW = ["v%d" % i for i in range(198, 202)]
vX = ["v%d" % i for i in range(202, 206)]
kA = ["v%d" % i for i in range(206, 210)]
vA = ["v%d" % i for i in range(210, 218)]
wA = ["v218", "v219"]
xA = ["v220", "v221"]
vJ, vL16 = "v222", "v223"
ONES = 224
EPI = 228
vR = ["v%d" % i for i in range(244, 250)]
vFLG = "v250"
vT = ["v252", "v253"]
vC2 = "v[242:243]"
vPOLL = ["v254", "v255"]

V2B = ["v245", "v246", "v247", "v248", "v249", "v251"]
V2L, V2W, V2P, V2X = "v252", "v254", "v255", "v253"
S2A, S2B, S2OUT = S_WQ, S_X, 8
TA, TB, sAB, sBB = 56, 62, "s43", "s44"

D = [i * 16 * KB for i in range(10)]
XS = [96 * KB, 120 * KB]
WOJ_ADDR = D[4]


def qacc(p, xy, qt):
    return 64 * (qt >> 1) + (2 * p + (qt & 1)) * 8 + 4 * xy


def qf(qt, p):
    return 64 * (qt >> 1) + (2 * p + (qt & 1)) * 4


def sreg(qt):
    return 64 * (qt >> 1) + 32 + 8 * (qt & 1)


def mrun(qt):
    return 64 * (qt >> 1) + 56 + (qt & 1)


def mneg(qt):
    return 64 * (qt >> 1) + 58 + (qt & 1)


def lacc(qt):
    return 64 * (qt >> 1) + 48 + 4 * (qt & 1)


ABUF = [192, 248]


def bx(qt, ks):
    return 200 + 8 * qt + 4 * ks


def kf(kt, ks):
    return 192 + 16 * kt + 4 * ks


def vf(dt):
    return 224 + 4 * dt


def oacc(qt, dt):
    return 32 * qt + 4 * dt


def kpos(k):
    n1 = OPT["kn1"]
    if OPT["kin"]:
        return 2 + OPT["kstep10"] / 10.0 * (4 * (k // 4) + 1) + OPT["kin"] * (k % 4)
    return 2 + OPT["ks1"] / 10.0 * min(k, n1) + OPT["kstep10"] / 10.0 * max(k - n1, 0)


def build_units():
    U = {}
    for i in range(10):
        U[("X", i)] = dict(addr=XS[i % 2], size=24 * KB, iss=i - 2.5, land=i - 1, rel=i - 0.5)
        U[("W", i, 0)] = dict(addr=D[2 * (i % 2)], size=16 * KB, iss=i - 2.5, land=i - 1, rel=i - 0.5)
        U[("W", i, 1)] = dict(addr=D[2 * (i % 2) + 1], size=16 * KB, iss=i - 2, land=i - 0.5, rel=i)
    for k, e in ((("X", 0), -4), (("W", 0, 0), -4), (("X", 1), -3), (("W", 0, 1), -2), (("W", 1, 0), -2)):
        U[k]["iss"] = e
    pages = [9, 5, 4, 6, 0, 7, 1, 8, 2, 3, 9, 4, 5, 6, 0, 1, 7, 2, 8, 3, 9, 4, 5, 6, 0, 7, 1, 8, 2, 9, 5, 4]
    if OPT["kstep10"]:
        (_, pages), kiss, leads = alloc3.plan(0, OPT["kfirst"], pos=kpos, head=[5, 9, 4, 6, 1 if OPT["k2late"] else 0, 7, 1, 8],
                                                 lastN={0: 23, 1: 25, 2: 25, 3: 26, 4: 24, 5: 23, 6: 23, 7: 23, 8: 24, 9: 24})
        if OPT["report"]:
            print("; leads", [round(x, 1) for x in leads])
    for u in range(32):
        key = ("K", u // 2) if u % 2 == 0 else ("V", u // 2)
        N = 10 + u // 2 + u % 2
        U[key] = dict(addr=D[pages[u]], size=16 * KB, iss=N - 5 + (u == 30), land=N - 1, rel=N)
        if OPT["kstep10"] and u >= OPT["kfirst"]:
            U[key].update(iss=kiss[u], even=u - OPT["kfirst"])
    if OPT["kbar"]:
        for t in range(1, 16):
            U[("K", t)]["land"] += 0.5
    U[("V", 1)]["iss"] = U[("K", 2)]["iss"] = 7.5
    if "even" not in U[("V", 2)]:
        U[("V", 2)]["iss"] = 8.5
    if OPT["k2late"]:
        U[("K", 2)]["iss"] = 8
    if OPT["kstep10"]:
        if OPT["kfirst"] == 8:
            U[("V", 3)]["iss"] = 8.5
        return U
    if OPT["e10"] < 2:
        U[("K", 4)]["iss"] = 10
    if OPT["e10"] < 1:
        U[("V", 3)]["iss"] = 10
    if OPT["t23"]:
        U[("W", 0, 0)]["iss"] = U[("W", 1, 1)]["iss"] = -5
    return U


def check_units(second):
    V = {k: dict(u) for k, u in U.items()}
    if second:
        V[("K", 0)]["iss"], V[("V", 0)]["iss"], V[("K", 1)]["iss"] = -4, -3, -3
    else:
        V[("J",)] = dict(addr=D[4], size=32 * KB, iss=-1, land=2, rel=3)
        V[("J", 2)] = dict(addr=D[9], size=16 * KB, iss=0, land=2, rel=3)
        V[("K", 0)]["iss"], V[("V", 0)]["iss"], V[("K", 1)]["iss"] = 3, 4, 5
    allu = [(k, u["addr"], u["addr"] + u["size"], u["iss"], u["rel"]) for k, u in V.items()]
    assert all(u["iss"] < u["land"] <= u["rel"] for u in V.values())
    if second:
        allu += [(k, u["addr"], u["addr"] + u["size"], u["iss"] - 27, u["rel"] - 27) for k, u in U.items() if k[0] in "KV" and k[1] > 2]
        allu += [(("P", n), D[p], D[p] + 16 * KB, (23, 24, 24)[n], 27) for n, p in enumerate((5, 9, 4))]
        allu += [(k, u["addr"], u["addr"] + u["size"], u["iss"] + 27, 40) for k, u in U.items() if k in sPF]
    for a in allu:
        for b in allu:
            if a is not b and a[1] < b[2] and b[1] < a[2]:
                assert a[4] <= b[3] or b[4] <= a[3], (a, b)


U = build_units()
U[("K", 0)]["iss"] = U[("V", 0)]["iss"] = U[("K", 1)]["iss"] = None
PADDR = {("P", 0): D[5], ("P", 1): D[9], ("P", 2): D[4]}
_alt = [0]


def next_st():
    _alt[0] ^= 1
    return [sT0, sT1][_alt[0]]


def unit_dmas(key, tmp=None):
    kind = key[0]
    if kind == "P":
        return [([salu("s_add_u32", "m0", sW4K, PADDR[key])], [dma(vW[m], S_WQ, sPF[key][0], 1024 * m, key, SC1) for m in range(4)])]
    if kind == "J":
        jj = key[1]
        sT = tmp
        pre = [salu("s_add_u32", sT, sWOS, jj * 128), salu("s_add_u32", "m0", sW4K, D[(4, 5, 9)[jj >> 2]] + (jj & 3) * 1024)]
        return [(pre, [dma(vX[0], S_WO, sT, 0, "J", " nt")])]
    u = U[key]
    if key in sPF:
        if kind == "W":
            return [([salu("s_add_u32", "m0", sW4K, u["addr"])], [dma(vW[m], S_WQ, sPF[key][0], 1024 * m, key, SC1) for m in range(4)])]
        return [([salu("s_add_u32", "m0", sW6K, u["addr"])], [dma(vX[m], S_X, sPF[key][0], 1024 * m, key, SC1) for m in range(4)]),
                ([salu("s_add_u32", "m0", sW6K, u["addr"] + 4096)], [dma(vX[m], S_X, sPF[key][1], 1024 * m, key, SC1) for m in range(2)])]
    sT = tmp or next_st()
    if kind in "KV":
        pre = [salu("s_add_u32", sT, sROT, key[1] * 8192), salu("s_and_b32", sT, sT, "0x1ffff"), salu("s_add_u32", sT, sT, sKV),
               salu("s_add_u32", "m0", sW4K, u["addr"])]
        if kind == "K":
            return [(pre, [dma(vK[m], S_K, sT, 1024 * m, key, OPT["kvf"]) for m in range(4)])]
        return [(pre, [dma(vV[m & 1], S_V, sT, 1024 * m, key, OPT["kvf"]) for m in range(4)])]
    if kind == "W":
        return [([salu("s_add_u32", "m0", sW4K, u["addr"])], [dma(vW[m], S_WQ, sW1 if key[2] else sWS, 1024 * m, key) for m in range(4)])]
    g0 = ([salu("s_add_u32", "m0", sW6K, u["addr"])], [dma(vX[m], S_X, sXS, 1024 * m, key) for m in range(4)])
    pre2 = [salu("s_add_u32", sT, sXS, 40960), salu("s_add_u32", "m0", sW6K, u["addr"] + 4096)]
    return [g0, (pre2, [dma(vX[m], S_X, sT, 1024 * m, key) for m in range(2)])]


def set_pf_proj(tail=False):
    o = [salu("s_add_u32", sW1, sWQ, 524288 + 128)]
    for key, rs in sPF.items():
        if key[0] == "P":
            continue
        if key[0] == "W":
            o += [salu("s_add_u32", rs[0], sWQ, key[1] * 524288 + key[2] * 128)]
        else:
            o += [salu("s_add_u32", rs[0], sX, key[1] * 128), salu("s_add_u32", rs[1], sX, key[1] * 128 + 40960)]
    return o


ORD2 = orders(16, 4, 8, 7, {1: [4], 2: [1, 1, 2, 2, 2, 0, 0], 3: [1, 2, 2, 2, 1, 0, 0], 4: [2, 1, 2, 2, 1, 0, 0]}[OPT["rot2"]])[0] if OPT["rot2"] else [list(range(16))] * 4
ORDQ = orders(10, 4, None, 0, {1: [1, 1, 2, 2, 2, 1, 1], 2: [1, 1, 4], 3: [1, 1, 2, 2, 1, 1, 1, 1]}[OPT["rotq"]])[0] if OPT["rotq"] else [list(range(10))] * 4
assert all(o[:2] == [0, 1] for o in ORDQ)
TBLQ = [sum(x << (4 * n) for n, x in enumerate(o[2:])) for o in ORDQ]
ORDQ1 = {0: ORDQ, 1: orders(10, 4, None, 0, [4])[0], 2: orders(10, 4, None, 0, [2, 2, 2, 1, 1, 1, 1])[0], 3: orders(10, 4, None, 0, [4, 0, 1, 1, 1, 1, 1, 1])[0]}[OPT["rotq1"]]
TBLQ1 = [sum(x << (4 * n) for n, x in enumerate(o[2:])) for o in ORDQ1]
TBLQ0 = [o[0] | o[1] << 4 for o in ORDQ1]


def by_role(dst, role, consts):
    o = [salu("s_mov_b32", dst, "0x%x" % consts[0])]
    for r in range(1, 4):
        o += [[scmp("s_cmp_eq_u32", role, r), salu("s_cselect_b32", dst, "0x%x" % consts[r], dst)]]
    return o


TBL2 = [sum(x << (4 * n) for n, x in enumerate(o)) for o in ORD2]


def next_off(dst, tbl, base, stride):
    return [salu("s_and_b32", dst, f"s{tbl}", 15), salu("s_lshr_b64", f"s[{tbl}:{tbl + 1}]", f"s[{tbl}:{tbl + 1}]", 4),
            salu("s_mul_i32", dst, dst, stride), salu("s_add_u32", dst, dst, base)]


def set_pf_out():
    o = [salu("s_and_b32", "s68", "s4", 3), salu("s_mul_i32", "s68", "s68", 1310720), salu("s_mul_i32", "s69", "s5", WOT_BLK),
         salu("s_add_u32", "s68", "s68", "s69"), salu("s_add_u32", "s68", "s68", WS_WOT)]
    o += [[salu("s_add_u32", f"s{S_WQ}", "s90", "s68"), salu("s_addc_u32", "s69", "s91", 0)]]
    o += [salu("s_and_b32", f"s{S_WQ + 1}", "s69", "0xffff"), salu("s_mov_b32", f"s{S_WQ + 2}", 1310720),
          salu("s_mov_b32", f"s{S_X}", f"s{S_WQ}"), salu("s_mov_b32", f"s{S_X + 1}", f"s{S_WQ + 1}"), salu("s_mov_b32", f"s{S_X + 2}", 1310720)]
    o += [salu("s_lshr_b32", "s70", sWAVE, 1), salu("s_mul_i32", "s68", sWAVE, 16 * 20480), salu("s_lshl_b32", "s69", "s70", 14),
          salu("s_add_u32", "s68", "s68", "s69"), salu("s_lshl_b32", "s69", "s70", 13), salu("s_sub_u32", "s69", 4096, "s69")]
    o += [salu("s_add_u32", "s70", "s3", "s4"), salu("s_and_b32", "s70", "s70", 3),
          salu("s_mov_b32", "s34", "0x%x" % (TBL2[0] & 0xffffffff)), salu("s_mov_b32", "s35", "0x%x" % (TBL2[0] >> 32))]
    for r in range(1, 4):
        o += [[scmp("s_cmp_eq_u32", "s70", r), salu("s_cselect_b32", "s34", "0x%x" % (TBL2[r] & 0xffffffff), "s34"),
               salu("s_cselect_b32", "s35", "0x%x" % (TBL2[r] >> 32), "s35")]]
    o += [salu("s_and_b32", "s70", "s34", 15), salu("s_mul_i32", "s70", "s70", 20480), salu("s_add_u32", "s70", "s70", "s68"),
          salu("s_bfe_u32", "s71", "s34", "0x40004"), salu("s_mul_i32", "s71", "s71", 20480), salu("s_add_u32", "s71", "s71", "s68")]
    for r, (st, pi, off) in PF2.items():
        o += [salu("s_mul_i32", r, "s69", pi), salu("s_add_u32", r, r, "s71" if st else "s70")]
        if off:
            o += [salu("s_add_u32", r, r, off)]
    return o


def groups_at(iss):
    order = {"W": 0, "X": 1, "K": 2, "V": 2}
    keys = sorted([k for k, u in U.items() if u["iss"] is not None and u["iss"] % 27 == iss % 27 and "even" not in u],
                  key=lambda k: (U[k]["land"] - U[k]["iss"], order[k[0]], k))
    return [g for k in keys for g in unit_dmas(k)]


def place_dmas(S, groups, cand, lo):
    ci = 0
    for pre, ds in groups:
        g = cand[ci]
        for n, p in enumerate(pre[:-1]):
            S.put(max(lo, g - len(pre) + n), p)
        for d in ds:
            d.m0 = pre[-1]
            S.put(cand[ci], d)
            ci += 1


def fix_m0(S):
    cur, prev = None, -2
    for g in sorted(S.fixed):
        for d in [x for x in S.fixed[g] if x.kind == "dma"]:
            if d.m0.text != cur:
                m = Ins(d.m0.text, "salu", rd=d.m0.rd, wr=d.m0.wr)
                if g - 1 > prev and not any(x.kind in ("bar", "branch") for x in S.fixed.get(g - 1, [])):
                    S.put(g - 1, m)
                else:
                    S.fixed[g].insert(S.fixed[g].index(d), m)
                cur = d.m0.text
            prev = g
        if any(x.kind == "label" for x in S.fixed[g]):
            cur = None


def tags_for(n):
    t = [k for k, u in U.items() if (u["land"] - n) % 27 == 0]
    if n == OPT["flagbar"]:
        t += ["ost", "jst"]
    if n == 2:
        t += ["J"]
    return t


def atomic_add(vdata, soff):
    return Ins(f"buffer_atomic_add {vdata}, {vFLG}, s[{S_FLG}:{S_FLG + 3}], {soff} offen sc1", "atomic",
               rd=[vdata, vFLG, soff] + regs("s", S_FLG, 4), tag="flag")


def poll_load(vdst, soff):
    return Ins(f"buffer_load_dword {vdst}, off, s[{S_FLG}:{S_FLG + 3}], {soff} sc1", "vld", rd=[soff] + regs("s", S_FLG, 4), wr=[vdst])


class Win:
    def __init__(self, rs, init):
        self.rs = rs
        self.cur = init

    def move(self, new):
        d = (new - self.cur) & 0xffffffff
        self.cur = new
        return [valu("v_add_u32", r, "0x%x" % d, r) for r in self.rs] if d else []


def plan_windows(addrs, span):
    want = []
    i = 0
    while i < len(addrs):
        lo = hi = addrs[i]
        j = i + 1
        while j < len(addrs) and max(hi, addrs[j]) - min(lo, addrs[j]) + span < 65536:
            lo, hi = min(lo, addrs[j]), max(hi, addrs[j])
            j += 1
        want += [lo] * (j - i)
        i = j
    return want


KWANT = plan_windows([U[("K", t)]["addr"] for t in range(16)], 4096)
VWANT = plan_windows([U[("V", t)]["addr"] for t in range(16)], 4096)
check_units(False)
check_units(True)


def pstore(v0, idx):
    return Ins(f"buffer_store_dwordx2 v[{v0}:{v0 + 1}], off, s[{S_PROF}:{S_PROF + 3}], {sPROF} offset:{8 * idx}", "vst",
               rd=[f"v{v0}", f"v{v0 + 1}", sPROF] + regs("s", S_PROF, 4))


def prof_stamp(idx, v0=252):
    if not OPT["prof"]:
        return []
    return [raw("s_memtime s[76:77]", "other", wr=["s76", "s77"]),
            raw("s_memrealtime s[78:79]", "other", wr=["s78", "s79"]),
            raw("s_waitcnt lgkmcnt(0)", "drainlg"),
            valu("v_mov_b32", f"v{v0}", "s76"),
            valu("v_mov_b32", f"v{v0 + 1}", "s78"),
            pstore(v0, idx)]


def bar_seq(tags, idx):
    if OPT["prof"] < 2:
        return [needboth(tags), barrier()] + prof_stamp(idx)
    return [raw("s_memtime s[58:59]", "other", wr=["s58", "s59"]), raw("s_waitcnt lgkmcnt(0)", "drainlg"),
            needboth(tags), barrier(),
            raw("s_memtime s[76:77]", "other", wr=["s76", "s77"]),
            raw("s_memrealtime s[78:79]", "other", wr=["s78", "s79"]),
            raw("s_waitcnt lgkmcnt(0)", "drainlg"), salu("s_sub_u32", "s76", "s76", "s58"),
            valu("v_mov_b32", "v252", "s76"), valu("v_mov_b32", "v253", "s78"), pstore(252, idx)]


def a_read(i, dt, ks, t):
    p, xy = dt >> 1, dt & 1
    off = U[("W", i, p >> 1)]["addr"] + ks * 4096 + t * 512 + xy * 8
    return ds_read("ds_read_b64_tr_b16", ("a", ABUF[dt % 2] + 4 * ks + 2 * t), 2, wA[p & 1], off)


def first_reads(i):
    ax = U[("X", i)]["addr"] - XS[0]

    def A(ks, t):
        return a_read(i, 0, ks, t)

    def B(qt, ks):
        return ds_read("ds_read_b128", ("a", bx(qt, ks)), 4, xA[ks], ax + qt * 2048)
    return [A(0, 0), A(0, 1), B(0, 0), A(1, 0), A(1, 1), B(0, 1)] + [B(qt, ks) for qt in range(1, 6) for ks in range(2)]


def k_read(t, j):
    kt, ks = j >> 2, j & 3
    return ds_read("ds_read_b128", ("a", kf(kt, ks)), 4, kA[ks], U[("K", t)]["addr"] - KWANT[t] + kt * 4096)


def epilogue_groups(tmp, dst=None, vaddr=None):
    groups = []
    n = 0
    for T in range(3):
        for ph in range(2):
            for qs in range(2):
                for pl in range(2):
                    qt = 2 * T + qs
                    tb = tmp + 4 * (n % 3)
                    src = oacc(qt, 4 * ph + 2 * pl)
                    db = tb if dst is None or dst(n) is None else dst(n)
                    rd = [valu("v_accvgpr_read_b32", f"v{tb + i}", f"a{src + i}") for i in range(8)]
                    mu = [valu("v_mul_f32", f"v{tb + i}", vR[qt], f"v{tb + i}") for i in range(8)]
                    cv = [valu("v_cvt_pk_bf16_f32", f"v{db + i}", f"v{tb + 2 * i}", f"v{tb + 2 * i + 1}") for i in range(4)]
                    pre = [salu("s_add_u32", sE, sO, ph * 12288 + T * 4096)] if qs == 0 and pl == 0 else []
                    imm = qs * 2048 + pl * 1024
                    groups.append((rd + mu + cv, pre, vstore(("v", db), 4, vaddr or vL16, S_OST, sE, imm, tag="ost", flags=SC1), imm))
                    n += 1
    return groups


def conv_items(T, ps, packed=()):
    out = []
    for p in ps:
        for qs in range(2):
            R, Dd = qacc(p, 0, 2 * T + qs), qf(2 * T + qs, p)
            if OPT["tmax"]:
                pass
            elif p in packed:
                out += [(p, qs, valu("v_pk_mul_f32", f"v[{R + x}:{R + x + 1}]", f"v[{R + x}:{R + x + 1}]", "s[86:87]" if False else vC2)) for x in range(0, 8, 2)]
            else:
                out += [(p, qs, valu("v_mul_f32", f"v{R + x}", sC, f"v{R + x}")) for x in range(8)]
            out += [(p, qs, valu("v_cvt_pk_bf16_f32", f"v{Dd + x}", f"v{R + 2 * x}", f"v{R + 2 * x + 1}")) for x in range(4)]
    return out


def touch_code(S, g, base, st, va, vd):
    S.put(g, salu("s_add_u32", st, sCP, base))
    S.put(g + 1, salu("s_min_u32", st, st, "L_endcode-L_pc-256"))
    S.put(g + 2, valu("v_and_b32", va, 16, vL16), valu("v_lshlrev_b32", va, 3, va))
    S.put(g + 3, valu("v_add_u32", va, st, va))
    return Ins(f"global_load_dword {vd}, {va}, s[96:97]", "vld", rd=[va, "s96", "s97"], wr=[vd])


def q_phase(second):
    S = Sched()
    extra, mid = {}, {}
    if not second:
        jp = OPT["jpro"]
        if jp == 0:
            extra[0] = [g for jj in range(5) for g in unit_dmas(("J", jj), sE)]
            extra[1] = [g for jj in range(5, 10) for g in unit_dmas(("J", jj), sE)]
        elif jp < 10:
            extra[1] = [g for jj in range(jp, 10) for g in unit_dmas(("J", jj), sE)]
        kv = [unit_dmas(k, sE) for k in [("K", 0), ("V", 0), ("K", 1)]]
        if OPT["kplan"] == 0:
            extra[4], extra[5], extra[6] = kv
        elif OPT["kplan"] == 1:
            extra[7], mid[8] = kv[0], kv[1]
            extra[8] = kv[2]
        elif OPT["kplan"] == 2:
            extra[4], extra[7], mid[8] = kv
        elif OPT["kplan"] == 4:
            extra[5], extra[6], extra[7] = kv
        elif OPT["kplan"] == 5:
            extra[4], extra[6], extra[7] = kv
        elif OPT["kplan"] == 3:
            extra[5], extra[7], mid[8] = kv
    for i in range(10):
        q0 = S.n()
        for dt in range(8):
            for qt in range(6):
                for ks in range(2):
                    acc = ("v", qacc(dt >> 1, dt & 1, qt))
                    S.add(mfma(16, acc, ("a", ABUF[dt % 2] + 4 * ks), ("a", bx(qt, ks)), None if (i == 0 and ks == 0) else acc))
        for dt in range(1, 8):
            gaps = [4, 5, 6, 7] if dt == 1 else [0, 2, 3, 4]
            for n, (ks, t) in enumerate([(0, 0), (0, 1), (1, 0), (1, 1)]):
                S.put(q0 + 12 * (dt - 1) + gaps[n], a_read(i, dt, ks, t))
        S.put(q0 + 35, needboth(tags_for(i - 0.5)), barrier())
        S.put(q0 + 83, *bar_seq(tags_for(i), 2 + i))
        if i < 9:
            for n, r in enumerate(first_reads(i + 1)):
                S.put(q0 + 84 + n, r)
        else:
            kw = Win(kA, KWANT[15])
            mv = kw.move(KWANT[0])
            S.put(q0 + 80, *mv[:2])
            S.put(q0 + 82, *mv[2:])
            for j in range(8):
                S.put(q0 + 84 + j, k_read(0, j))
        if i <= 7:
            for n, x in enumerate([salu("s_bfe_u32", sXS, sQT, "0x%x" % (0x40000 + 4 * i)), salu("s_lshl_b32", sWS, sXS, 19),
                                   salu("s_add_u32", sWS, sWS, sWQ), salu("s_lshl_b32", sXS, sXS, 7), salu("s_add_u32", sXS, sXS, sX),
                                   salu("s_add_u32", sW1, sWS, 128)]):
                S.put(q0 + 26 + n, x)
        early = groups_at(i - 1)
        place_dmas(S, early + mid.get(i, []), [q0 + g for g in ((9, 17, 25, 33) if OPT["qsp"] and i == 9 else (9, 13, 17, 21, 25, 29, 31, 33))], q0)
        late = groups_at(i - 0.5) + extra.get(i, [])
        if i == 8 and 8 in extra:
            late = extra[8] + groups_at(i - 0.5)
        cand = [q0 + 37 + 4 * x for x in range(12)]
        nd = sum(len(g[1]) for g in late)
        if nd > 12:
            cand = sorted(cand + [q0 + 67, q0 + 71, q0 + 75, q0 + 79][:nd - 12])
        if OPT["qsp"] and i >= 8 and nd:
            allowed = [37, 41, 43, 45, 47, 49, 53, 55, 57, 59, 61, 65, 67, 69, 71, 73, 77, 79, 81]
            cand = [q0 + allowed[round(x * (len(allowed) - 1) / max(nd - 1, 1))] for x in range(nd)]
        place_dmas(S, late, cand, q0 + 35)
    if not second:
        for jj in range(10):
            q0 = 96 * 3
            if jj == 8:
                S.put(q0 + 65, valu("v_add_u32", vJ, D[9] - D[4] - 2 * 16384, vJ))
            for tt in range(2):
                g = q0 + [10, 11, 18, 19, 22, 23, 30, 31, 34, 42, 43, 46, 47, 54, 55, 58, 66, 67, 70, 71][2 * jj + tt]
                S.put(g, ds_read("ds_read_b64_tr_b16", ("a", 4 * jj + 2 * tt), 2, vJ, (jj >> 2) * 16384 + (jj & 3) * 1024 + tt * 8192))
            nq, pair = divmod(2 * jj, 5)
            g = 96 * (4 + jj // 3) + [19, 25, 31][jj % 3]
            if OPT["jlate"]:
                g = 96 * (3 + jj // 2) + ([79, 82] if (3 + jj // 2) in extra else [77, 81])[jj % 2]
            S.put(g - 1, salu("s_add_u32", sJ, sWOX if pair == 4 else sWOD, nq * 1310720 + pair * 4096))
            S.put(g, vstore(("a", 4 * jj), 4, vL16, S_WOT, sJ, 0, tag="jst", flags=SC1))
    if not second and OPT["ctq"]:
        q0 = 96 * OPT["ctq"]
        S.put(q0 + 33, touch_code(S, q0 + 18, "L_att-L_pc", sJ, vT[0], vT[1]))
    if second:
        eg = epilogue_groups(EPI)
        ep = []
        for i in range(8):
            for g in eg[3 * i:3 * i + 3]:
                ep += [(x, 96 * i, None) for x in g[0]]
            for g in eg[3 * i:3 * i + 3]:
                ep += [(x, 96 * i + OPT["stg"], None) for x in g[1] + [g[2]]]
        ep[-1] = (ep[-1][0], ep[-1][1], 96 * 9 - 1)
        S.stream(ep)
        S.put(96 * 9 + 2, salu("s_add_u32", sO, sO, 8 * 12288))
    q0 = 96 * 9
    g = q0 + 2
    for x in ([salu("s_add_u32", sWQ, sWQ, 512)] + set_pf_proj(True) + [salu("s_add_u32", "s68", "s3", "s4"), salu("s_and_b32", "s68", "s68", 3)] + by_role(sQT, "s68", TBLQ) if not second else set_pf_out()):
        S.put(g, *(x if isinstance(x, list) else [x]))
        g += 1 if g < q0 + 94 else 0
        while g in (q0 + 35, q0 + 83) or any(x.kind == "salu" for x in S.fixed.get(g, [])):
            g += 1
    if second:
        S.stream([(valu("v_mov_b32", r, vL16), q0 + 2, None) for r in vW + vX])
    if not OPT["tmax"]:
        S.put(q0 + 7, valu("v_mov_b32", "v242", sC), valu("v_mov_b32", "v243", sC))
    S.stream([(x, min(q0 + 12 * (2 * p + 1) + 2 * qs + 1 + 2, q0 + 95), None) for p, qs, x in conv_items(0, range(4))])
    if OPT["tmax"]:
        for T in (1, 2):
            S.stream([(x, q0 + 12 * (2 * p + 1) + 4 * T + 2 * qs + 1 + 2, None) for p, qs, x in conv_items(T, range(3))])
    S.put(-1, *prof_stamp(1))
    fix_m0(S)
    return S.finish(lead=first_reads(0), report=OPT["report"])


def lspread(qt, tmp):
    l = f"v{lacc(qt)}"
    return [valu("v_mov_b32", tmp, l), perm("v_permlane32_swap_b32", tmp, l), valu("v_add_f32", l, l, tmp),
            valu("v_mov_b32", tmp, l), perm("v_permlane16_swap_b32", tmp, l), valu("v_add_f32", l, l, tmp)]


def interleave(a, b):
    return [x for p in zip(a, b) for x in p]


def lcheck():
    l = [f"v{lacc(qt)}" for qt in range(6)]
    if OPT["tmax"] == 2:
        return [valu("v_add_f32", vT[0], l[0], l[1]), valu("v_add_f32", vT[1], l[2], l[3]), valu("v_add_f32", vT[0], vT[0], l[4]),
                valu("v_add_f32", vT[1], vT[1], l[5]), valu("v_add_f32", vT[0], vT[0], vT[1]), valu("v_cmp_ngt_f32", "vcc", sHI, vT[0])]
    if OPT["tmax"]:
        x = [f"v{mrun(qt)}" for qt in range(6)]
        return ([valu("v_fma_f32", x[q], x[q], sC, f"v{mneg(q)}") for q in range(6)] +
                [valu("v_add_f32", vT[0], l[0], l[1]), valu("v_max3_f32", vT[1], x[0], x[1], x[2]),
                 valu("v_add_f32", vT[0], vT[0], l[2]), valu("v_max3_f32", vT[1], vT[1], x[3], x[4]),
                 valu("v_add_f32", vT[0], vT[0], l[3]), valu("v_add_f32", vT[0], vT[0], l[4]),
                 valu("v_max_f32", vT[1], vT[1], x[5]), valu("v_add_f32", vT[0], vT[0], l[5]),
                 valu("v_cmp_ngt_f32", "s[56:57]", sLO, vT[1]),
                 valu("v_cmp_ngt_f32", "vcc", sHI, vT[0]),
                 salu("s_or_b64", "vcc", "vcc", "s[56:57]")])
    return [valu("v_add_f32", vT[0], l[0], l[1]), valu("v_min3_f32", vT[1], l[0], l[1], l[2]),
            valu("v_add_f32", vT[0], vT[0], l[2]), valu("v_min3_f32", vT[1], vT[1], l[3], l[4]),
            valu("v_add_f32", vT[0], vT[0], l[3]), valu("v_add_f32", vT[0], vT[0], l[4]),
            valu("v_min_f32", vT[1], vT[1], l[5]), valu("v_add_f32", vT[0], vT[0], l[5]),
            valu("v_cmp_nlt_f32", "s[56:57]", sLO, vT[1]),
            valu("v_cmp_ngt_f32", "vcc", sHI, vT[0]),
            salu("s_or_b64", "vcc", "vcc", "s[56:57]")]


def a_phase(last):
    S = Sched()
    qk = [[0] * 3 for _ in range(16)]
    pv = [[0] * 3 for _ in range(16)]

    def QK(t, T):
        qk[t][T] = S.n()
        for qs in range(2):
            for kt in range(2):
                s = ("v", sreg(2 * T + qs) + 4 * kt)
                for ks in range(4):
                    S.add(mfma(16, s, ("a", kf(kt, ks)), ("v", qf(2 * T + qs, ks)), None if ks == 0 else s))

    def PV(t, T):
        pv[t][T] = S.n()
        sums = []
        for qs in range(2):
            l = ("v", lacc(2 * T + qs))
            sums.append(mfma(16, l, ("v", ONES), ("v", sreg(2 * T + qs)), None if t == 0 else l))
        if t == 15:
            for m in sums:
                S.add(m)
        for dt in range(8):
            for qs in range(2):
                o = ("a", oacc(2 * T + qs, dt))
                S.add(mfma(16, o, ("a", vf(dt)), ("v", sreg(2 * T + qs)), None if t == 0 else o))
        if t < 15:
            for m in sums:
                S.add(m)

    for t in range(16):
        QK(t, 0)
        if t:
            PV(t - 1, 1)
        QK(t, 1)
        if t:
            PV(t - 1, 2)
        QK(t, 2)
        PV(t, 0)
    PV(15, 1)
    PV(15, 2)
    bar = {}
    kw, vw = Win(kA, KWANT[0]), Win(vA, VWANT[0])
    for t in range(16):
        g0 = pv[t - 1][2] if t else qk[0][1]
        bar[10 + t] = g0 - 1
        S.put(g0 - 1, *bar_seq(tags_for(10 + t), 12 + t))
        if t == 13:
            S.put(g0 - 1, scmp("s_cmp_eq_u32", sIT, 1), raw("s_cbranch_scc1 L_tail2", "branch", rd=["scc"]), label("L_CUT"))
        for n, m in enumerate(vw.move(VWANT[t])):
            S.put(g0 - 14 + 3 * (n // 2), m)
        for dt in range(8):
            for tt in range(2):
                S.put(g0 + 4 * dt + 1 + 2 * tt,
                      ds_read("ds_read_b64_tr_b16", ("a", vf(dt) + 2 * tt), 2, vA[dt], U[("V", t)]["addr"] - VWANT[t] + tt * 4096))
        if t < 15:
            for n, m in enumerate(kw.move(KWANT[t + 1])):
                S.put((qk[t][0] + 9 if t else qk[0][2] + 2) + (3 if t else 2) * (n // 2), m)
            for j in range(8):
                S.put(qk[t][2] + [8, 10, 12, 14, 17, 19, 21, 23][j], k_read(t + 1, j))
            if OPT["kbar"]:
                S.put(qk[t][2] + 6, needvm(tags_for(10.5 + t)), barrier())
            if OPT["kbar"] >= 2 and t:
                S.put(pv[t - 1][1] - 1, barrier())
            if OPT["kbar"] >= 3 and t:
                S.put(qk[t][0] - 1, barrier())
    if not last:
        S.stream([(m, pv[15][0], None) for m in vw.move(VWANT[0])])
    bar[26] = pv[15][1] - 1
    S.put(bar[26], *(prof_stamp(28) if last else bar_seq(tags_for(26), 28)))
    fr = [] if last else first_reads(0)
    for n, r in enumerate(fr[:10]):
        S.put(pv[15][1] + [1, 3, 5, 7, 9, 11, 13, 15, 16, 17][n], r)
    for n, r in enumerate(fr[10:]):
        S.put(pv[15][2] + 3 + 2 * n, r)
    stream = sorted([k for k, u in U.items() if "even" in u], key=lambda k: U[k]["even"])
    nk = len(stream)
    stream += [("P", 0), ("P", 1), ("P", 2)] if last else [("K", 0), ("V", 0), ("K", 1)]
    for e, key in enumerate(stream):
        cand = []
        for m in range(4):
            g = int(kpos(4 * e + m)) if e < nk else max(int(kpos(4 * e + m)), int(2 + 13.4 * (4 * (e - nk + 26) + (0 if OPT["kin"] else m))))
            while S.used(g, False) > 0 or g - 1 in bar.values():
                g += 1
            cand.append(g)
        lo = bar.get(U[key]["iss"] if e < nk else (23, 24, 24)[e - nk], -2) + 1
        assert cand[0] > lo + (3 if e >= nk else 0), (key, cand, lo)
        if e == nk:
            S.put(cand[0] - 5, salu("s_add_u32", sKV, sKV, 262144))
        place_dmas(S, unit_dmas(key, sE if e >= nk else None), cand, lo)
    for n in range(24, 27):
        groups = groups_at(n - 1)
        nd = sum(len(g[1]) for g in groups)
        a, b = bar[n - 1] + 5, bar[n] - 1
        cand = []
        for x in range(nd):
            g = a + (b - a) * x // nd
            while any(i.kind in MEMK for k in (g - 1, g, g + 1) for i in S.fixed.get(k, []) if k == g or i.kind == "dma") or g in cand:
                g += 1
            cand.append(g)
        assert cand[-1] < bar[n]
        place_dmas(S, groups, cand, bar[n - 1] + 1)
    if OPT["xpace"]:
        for t in range(1, 14):
            for T in range(3):
                S.put(pv[t][T] + 17, nop(OPT["xpace"]))
                S.put(qk[t][T] + 15, nop(OPT["xpace"]))
    g = bar[OPT["flagbar"]] + 2
    S.put(g - 1, scmp("s_cmp_eq_u32", sIT, 0), salu("s_cselect_b32", sE, sFB, sFG), salu("s_cselect_b32", sJ, "0x10000", 1))
    S.put(g + 1, valu("v_mov_b32", f"v{EPI}", sJ))
    S.put(g + 4, atomic_add(f"v{EPI}", sE))
    g = qk[12 - OPT['t23']][0]
    S.put(g + 1, scmp("s_cmp_eq_u32", sIT, 1), salu("s_cselect_b32", sE, sFB, "0x1000"))
    S.put(g + 3, poll_load(vPOLL[1], sE))
    g = qk[13 - OPT['t23']][0]
    S.put(g + 1, salu("s_lshl_b32", sWANT, sIT, 23), valu("v_readfirstlane_b32", sQ, vPOLL[1]))
    S.put(g + 4, scmp("s_cmp_lt_u32", sQ, sWANT), raw("s_cbranch_scc1 L_spin3", "branch", rd=["scc"]), label("L_spin3_back"))
    if last:
        g = bar[25] + 2
        S.put(g, poll_load(vPOLL[0], sFG))
        su = [salu("s_lshr_b32", "s84", "s4", 2), salu("s_mul_i32", "s7", "s3", O_GRP), salu("s_mul_i32", "s58", "s84", 786432),
              salu("s_add_u32", "s7", "s7", "s58"), [salu("s_add_u32", f"s{S2B}", "s90", "s7"), salu("s_addc_u32", "s59", "s91", 0)],
              salu("s_and_b32", f"s{S2B + 1}", "s59", "0xffff"), salu("s_mov_b32", f"s{S2B + 2}", 786432),
              salu("s_mul_i32", sBB, sWAVE, 16 * 12288), salu("s_mov_b64", f"s[{TB}:{TB + 1}]", "s[34:35]")] + next_off(sB2, TB, sBB, 12288)
        su += [salu("s_and_b32", "s58", sWAVE, 1), salu("s_mul_i32", "s58", "s58", 3 * 2048), salu("s_sub_u32", "s59", 3 * 2048, "s58"),
               salu("s_lshr_b32", "s86", sWAVE, 1), salu("s_lshl_b32", "s86", "s86", 12), salu("s_add_u32", "s58", "s58", "s86"),
               salu("s_add_u32", "s59", "s59", "s86"), salu("s_sub_u32", "s86", 2048, "s86")]
        g += 1
        for x in su:
            while any(i.kind == "salu" for i in S.fixed.get(g, [])):
                g += 1
            S.put(g, *(x if isinstance(x, list) else [x]))
            g += 1
        va = [valu("v_add_u32", V2B[0], "s58", vL16), valu("v_add_u32", V2B[3], "s59", vL16)]
        for q in (1, 2):
            va += [valu("v_add_u32", V2B[q], "s86", V2B[q - 1]), valu("v_add_u32", V2B[3 + q], "s86", V2B[2 + q])]
        S.stream([(x, g, pv[15][1] - 3) for x in va])
        g = pv[15][0] + 12
        S.put(g, valu("v_readfirstlane_b32", sQ, vPOLL[0]))
        S.put(g + 3, salu("s_and_b32", sQ, sQ, "0xff"), scmp("s_cmp_lt_u32", sQ, 8),
              raw("s_cbranch_scc1 L_spin1", "branch", rd=["scc"]), label("L_spin1_back"))
        for n, l in enumerate([l for qi in range(6) for l in k2_loads_B(0, qi)]):
            S.put(pv[15][1] + 1 + 2 * n if n < 8 else pv[15][2] + 3 + 3 * (n - 8), l)
    for n, t in enumerate([int(x) for x in OPT["cta"].split(",") if x]):
        g = pv[t][0]
        while any(S.fixed.get(k) for k in range(g, g + 6)):
            g += 1
        S.put(g + 5, touch_code(S, g, f"L_att-L_pc+{(n + 1) * 12288}", sJ, f"v{EPI + 4}", f"v{EPI + 5}"))
    if OPT["codepf2"]:
        g = qk[OPT["codepf2"]][0] - 6
        S.put(g - 2, salu("s_mul_i32", sJ, sIT, "L_tail2-L_tail1"))
        S.put(g - 1, salu("s_add_u32", sJ, sJ, "L_tail1-L_pc"))
        S.put(g, salu("s_add_u32", sJ, sJ, sCP))
        S.put(g + 1, salu("s_min_u32", sJ, sJ, "L_endcode-L_pc-256"))
        S.put(g + 2, valu("v_and_b32", f"v{EPI + 2}", 16, vL16), valu("v_lshlrev_b32", f"v{EPI + 2}", 3, f"v{EPI + 2}"))
        S.put(g + 3, valu("v_add_u32", f"v{EPI + 2}", sJ, f"v{EPI + 2}"))
        S.put(g + 5, Ins(f"global_load_dword v{EPI + 3}, v{EPI + 2}, s[96:97]", "vld", rd=[f"v{EPI + 2}", "s96", "s97"], wr=[f"v{EPI + 3}"]))
    for T in (1, 2):
        if OPT["pk"] and not OPT["tmax"]:
            nfree = OPT["nfree"] if T == 1 else 0
            S.stream([(x, -1, None) for p, qs, x in conv_items(T, range(nfree))] +
                     [(x, qk[0][T] - 1, qk[0][T] - 1) for p, qs, x in conv_items(T, range(nfree, 4), packed=range(4))])
        else:
            c = [(x, -1, None) for p, qs, x in conv_items(T, range(3 if OPT["tmax"] else 0, 4))]
            c[-1] = (c[-1][0], -1, qk[0][T] - 1)
            S.stream(c)
    fin = []
    if OPT["one1"]:
        for T in range(3):
            fin += [(x, [pv[15][1] + 12, pv[15][2], pv[15][2] + 4][T], None) for x in interleave(lspread(2 * T, f"v{lacc(2 * T) + 1}"), lspread(2 * T + 1, f"v{lacc(2 * T + 1) + 1}"))]
    S.stream(fin + [(x, pv[15][2] + 4, None) for x in lcheck()])
    units = []
    for t in range(16):
        for qt in range(6):
            s = sreg(qt)
            T, qs = qt >> 1, qt & 1
            dl = pv[t][T] + qs - 2
            units.append(dict(e=qk[t][T] + 8 * qs + 7 + 2,
                              exps=[valu("v_exp_f32", f"v{s + r}", f"v{s + r}") for r in range(8)],
                              cvts=[(valu("v_cvt_pk_bf16_f32", f"v{s + r}", f"v{s + 2 * r}", f"v{s + 2 * r + 1}"), 2 * r + 2, dl) for r in range(4)]))
    if OPT["tmax"]:
        for n, u in enumerate(units):
            t, qt = divmod(n, 6)
            s, m, mn = sreg(qt), f"v{mrun(qt)}", f"v{mneg(qt)}"
            fma = [valu("v_fma_f32", f"v{s + r}", f"v{s + r}", sC, mn) for r in range(8)]
            if t == 0:
                pre = [valu("v_max3_f32", m, f"v{s}", f"v{s + 1}", f"v{s + 2}"), valu("v_max3_f32", mn, f"v{s + 3}", f"v{s + 4}", f"v{s + 5}"),
                       valu("v_max3_f32", m, m, f"v{s + 6}", f"v{s + 7}"), valu("v_max_f32", m, m, mn)]
                for op in ("v_permlane32_swap_b32", "v_permlane16_swap_b32"):
                    pre += [valu("v_mov_b32", mn, m), perm(op, mn, m), valu("v_max_f32", m, m, mn)]
                pre += [valu("v_mul_f32", mn, sNC, m)] + fma
                need = [len(pre) - 7 + r for r in range(8)]
            else:
                pre, need = [], []
                for r in range(0, 8, 2):
                    if OPT["tmax"] == 1:
                        pre += [valu("v_max3_f32", m, m, f"v{s + r}", f"v{s + r + 1}")]
                    pre += [fma[r], fma[r + 1]]
                    need += [len(pre) - 1, len(pre)]
            u["pre"] = pre
            u["exps"] = list(zip(u["exps"], need))
        def xok(g):
            n = OPT["xhi"] if g < qk[2][0] or g >= qk[13][0] else OPT["xnum"]
            return (g * n) % 100 < n
        S.packers.append(SoftmaxPacker2(units,
                                        lambda g: 1 if S.used(g, False) < 2 and xok(g) else 0))
    else:
        S.packers.append(SoftmaxPacker(units))
    fix_m0(S)
    return S.finish(lead=[k_read(0, j) for j in range(8)], report=OPT["report"])


def slow_path():
    o = [label("L_slow"), drain(), nop(16)]
    KF = [EPI + 4 * k for k in range(4)]
    VFR = 56
    vM = [f"v{120 + q}" for q in range(6)]
    vKo, vVo, vt, vu = "v60", "v61", "v62", "v63"
    o += [valu("v_lshrrev_b32", vt, 4, vL16), valu("v_and_b32", vu, 15, vt), valu("v_lshrrev_b32", vt, 4, vt),
          valu("v_lshlrev_b32", vKo, 8, vu), valu("v_lshl_add_u32", vKo, vt, 4, vKo),
          valu("v_lshlrev_b32", vVo, 10, vt), valu("v_lshl_add_u32", vVo, vu, 1, vVo)]
    o += [salu("s_sub_u32", "s58", sKV, 262144)]
    o += [valu("v_mov_b32", m, "0xff800000") for m in vM]

    def scores():
        r = []
        for kt in range(2):
            r += [salu("s_add_u32", "s61", "s59", kt * 4096)]
            r += [vload(("v", KF[ks]), 4, vKo, S_K, "s61", 64 * ks) for ks in range(4)] + [drain()]
            for qt in range(6):
                s = ("v", sreg(qt) + 4 * kt)
                r += [mfma(16, s, ("v", KF[ks]), ("v", qf(qt, ks)), None if ks == 0 else s) for ks in range(4)]
            r += [nop(16)]
        return r
    o += [salu("s_mov_b32", "s59", "s58"), salu("s_mov_b32", "s60", 16), label("L_slow1")] + scores()
    for qt in range(6):
        o += [valu("v_max3_f32", vM[qt], vM[qt], f"v{sreg(qt) + r}", f"v{sreg(qt) + r + 1}") for r in range(0, 8, 2)]
    o += [salu("s_add_u32", "s59", "s59", 8192), salu("s_sub_u32", "s60", "s60", 1), scmp("s_cmp_lg_u32", "s60", 0),
          raw("s_cbranch_scc1 L_slow1", "branch", rd=["scc"])]
    for qt in range(6):
        for op in ("v_permlane32_swap_b32", "v_permlane16_swap_b32"):
            o += [valu("v_mov_b32", vt, vM[qt]), nop(2), perm(op, vt, vM[qt]), valu("v_max_f32", vM[qt], vM[qt], vt)]
        o += [valu("v_mov_b32", f"v{lacc(qt) + r}", 0) for r in range(4)]
    o += [valu("v_accvgpr_write_b32", f"a{r}", 0) for r in range(192)]
    o += [salu("s_mov_b32", "s59", "s58"), salu("s_mov_b32", "s60", 16), label("L_slow2")] + scores()
    for qt in range(6):
        s = sreg(qt)
        o += [valu("v_sub_f32", f"v{s + r}", f"v{s + r}", vM[qt]) for r in range(8)]
        if OPT["tmax"]:
            o += [valu("v_mul_f32", f"v{s + r}", sC, f"v{s + r}") for r in range(8)]
        o += [valu("v_exp_f32", f"v{s + r}", f"v{s + r}") for r in range(8)]
        o += [valu("v_cvt_pk_bf16_f32", f"v{s + r}", f"v{s + 2 * r}", f"v{s + 2 * r + 1}") for r in range(4)]
    o += [salu("s_add_u32", "s57", "s59", 4096)]
    for dt in range(8):
        for j in range(8):
            o += [vload(("v", 184 + j), 1, vVo, S_V, "s57" if j >= 4 else "s59", (j & 3) * 256 + 32 * dt, op="buffer_load_ushort")]
        o += [drain()]
        o += [valu("v_lshl_or_b32", f"v{VFR + r}", f"v{185 + 2 * r}", 16, f"v{184 + 2 * r}") for r in range(4)]
        o += [mfma(16, ("a", oacc(qt, dt)), ("v", VFR), ("v", sreg(qt)), ("a", oacc(qt, dt))) for qt in range(6)]
        o += [nop(8)]
    o += [mfma(16, ("v", lacc(qt)), ("v", ONES), ("v", sreg(qt)), ("v", lacc(qt))) for qt in range(6)] + [nop(16)]
    o += [salu("s_add_u32", "s59", "s59", 8192), salu("s_sub_u32", "s60", "s60", 1), scmp("s_cmp_lg_u32", "s60", 0),
          raw("s_cbranch_scc1 L_slow2", "branch", rd=["scc"])]
    o += [nop(16)]
    if OPT["one1"]:
        for qt in range(6):
            o += lspread(qt, vt)
    o += [drain(), scmp("s_cmp_eq_u32", sIT, 1), raw("s_cbranch_scc1 L_back2", "branch", rd=["scc"]), raw("s_branch L_back1", "branch")]
    return o


def srd(base, lo, hi, nbytes):
    return [salu("s_mov_b32", f"s{base}", lo), salu("s_and_b32", f"s{base + 1}", hi, "0xffff"),
            salu("s_mov_b32", f"s{base + 2}", nbytes), salu("s_mov_b32", f"s{base + 3}", "0x20000")]


def decode_wg():
    return [salu("s_and_b32", "s3", "s2", 7), salu("s_lshr_b32", "s4", "s2", 6), salu("s_lshl_b32", "s3", "s3", 2),
            salu("s_add_u32", "s3", "s3", "s4"), salu("s_lshr_b32", "s4", "s2", 3), salu("s_and_b32", "s4", "s4", 7),
            salu("s_lshr_b32", "s5", "s3", 4), salu("s_and_b32", "s6", "s3", 15)]


def code_touch():
    return [salu("s_lshr_b32", "s68", "s2", 3), salu("s_lshl_b32", "s68", "s68", 11),
            valu("v_lshrrev_b32", "v11", 6, "v0"), valu("v_and_b32", "v12", 3, "v0"), valu("v_lshlrev_b32", "v11", 9, "v11"),
            valu("v_lshl_add_u32", "v11", "v12", 7, "v11"), valu("v_add_u32", "v11", "s68", "v11")] + (
            [valu("v_min_u32", "v11", "L_att-L_pc", "v11")] if OPT["cplim"] else []) + [
            Ins("global_load_dword v253, v11, s[96:97]", "vld", rd=["v11", "s96", "s97"], wr=["v253"])]


def kv_patterns():
    i, a, b, c = "v1", "v2", "v3", "v4"
    o = [valu("v_lshrrev_b32", a, 4, i), valu("v_and_b32", b, 15, i),
         valu("v_xor_b32", c, a, b), valu("v_lshlrev_b32", c, 4, c), valu("v_lshl_add_u32", vK[0], a, 8, c)]
    o += [valu("v_xor_b32", vK[m], m << 6, vK[0]) for m in range(1, 4)]
    o += [valu("v_lshlrev_b32", "v5", 1, a), valu("v_xor_b32", "v5", "v5", b), valu("v_lshlrev_b32", "v5", 4, "v5"),
          valu("v_lshl_add_u32", vV[0], a, 8, "v5"), valu("v_xor_b32", vV[1], 128, vV[0])]
    return o


sT2 = "s101"


def prologue():
    o = [scmp("s_cmp_ge_u32", "s2", 256), raw("s_cbranch_scc1 L_end", "branch", rd=["scc"])]
    o += [raw("s_getpc_b64 s[96:97]", wr=["s96", "s97"]), label("L_pc")]
    if OPT["dbgt"]:
        o += [raw("s_memrealtime s[72:73]", wr=["s72", "s73"])]
    if OPT["codepf"] == 2:
        o += code_touch()
    o += decode_wg()
    o += [salu("s_mul_i32", "s7", "s5", 40), salu("s_add_u32", "s68", "s0", "s7"), salu("s_addc_u32", "s69", "s1", 0),
          raw("s_load_dwordx8 s[56:63], s[68:69], 0", wr=regs("s", 56, 8)),
          raw("s_load_dwordx2 s[94:95], s[68:69], 32", wr=["s94", "s95"]),
          raw("s_load_dwordx4 s[88:91], s[0:1], 88", wr=regs("s", 88, 4)),
          raw("s_load_dwordx2 s[92:93], s[0:1], 80", wr=["s92", "s93"])]
    i, a, b, c = "v1", "v2", "v3", "v4"
    o += [valu("v_lshrrev_b32", a, 6, "v0"), valu("v_and_b32", i, 63, "v0"),
          valu("v_readfirstlane_b32", sWAVE, a), valu("v_lshlrev_b32", vL16, 4, i)]
    o += [valu("v_lshrrev_b32", a, 4, i), valu("v_and_b32", b, 7, i), valu("v_lshrrev_b32", "v5", 3, i),
          valu("v_and_b32", c, 1, a), valu("v_lshlrev_b32", c, 1, c), valu("v_xor_b32", c, c, b), valu("v_lshlrev_b32", c, 4, c),
          valu("v_lshl_add_u32", vW[0], "v5", 13, c),
          valu("v_xor_b32", vW[1], 64, vW[0]), valu("v_add_u32", vW[1], 64512, vW[1]),
          valu("v_add_u32", vW[2], 2 * 64512, vW[0]), valu("v_add_u32", vW[3], 2 * 64512, vW[1])]
    o += [valu("v_xor_b32", c, a, b), valu("v_lshlrev_b32", c, 4, c), valu("v_mul_u32_u24", "v6", 1280, "v5"),
          valu("v_add_u32", vX[0], "v6", c),
          valu("v_xor_b32", vX[1], 64, vX[0]), valu("v_add_u32", vX[1], 9216, vX[1]),
          valu("v_add_u32", vX[2], 2 * 9216, vX[0]), valu("v_add_u32", vX[3], 2 * 9216, vX[1])]
    o += [salu("s_lshr_b32", "s70", sWAVE, 1), salu("s_and_b32", "s71", sWAVE, 1),
          salu("s_lshl_b32", sW4K, sWAVE, 12), salu("s_mul_i32", sW6K, sWAVE, 6144),
          salu("s_lshl_b32", "s7", "s4", 2), salu("s_add_u32", "s7", "s7", "s70"),
          salu("s_lshl_b32", sWQ, "s71", 18), salu("s_lshl_b32", sT0, "s7", 8), salu("s_add_u32", sWQ, sWQ, sT0),
          salu("s_mul_i32", sX, "s6", 245760), salu("s_mul_i32", sT0, sWAVE, 61440), salu("s_add_u32", sX, sX, sT0)]
    o += [raw("s_waitcnt lgkmcnt(0)", "drainlg")]
    o += srd(S_X, "s56", "s57", 3932160) + srd(S_WQ, "s62", "s63", 5242880)
    o += [salu("s_add_u32", "s68", "s3", "s4"), salu("s_and_b32", "s68", "s68", 3)]
    for x in by_role("s69", "s68", TBLQ0):
        o += x if isinstance(x, list) else [x]
    for st in range(2):
        o += [salu("s_bfe_u32", sT0, "s69", "0x%x" % (0x40000 + 4 * st)), salu("s_lshl_b32", sT1, sT0, 19), salu("s_lshl_b32", sT0, sT0, 7),
              salu("s_add_u32", sPF[("W", st, 0)][0], sT1, sWQ), salu("s_add_u32", sPF[("X", st)][0], sT0, sX),
              salu("s_add_u32", sT2 if st else sPF[("W", st, 1)][0], sPF[("W", st, 0)][0], 128), salu("s_add_u32", sPF[("X", st)][1], sPF[("X", st)][0], 40960)]
    for k in [("W", 0, 0), ("X", 0), ("W", 0, 1), ("W", 1, 0), ("X", 1)]:
        for pre, ds in unit_dmas(k):
            o += pre[::-1] + ds
    if OPT["warmw"]:
        o += [salu("s_mul_i32", "s68", "s6", 40 * 8192), salu("s_lshl_b32", "s69", "s4", 10), salu("s_add_u32", "s68", "s68", "s69"),
              salu("s_mul_i32", "s69", sWAVE, 10 * 8192), salu("s_add_u32", "s68", "s68", "s69"),
              valu("v_lshlrev_b32", b, 7, b), valu("v_lshl_add_u32", "v6", "v5", 13, b), valu("v_and_b32", c, 1, "v5"),
              valu("v_lshl_add_u32", c, c, 13, b), salu("s_add_u32", "s69", "s68", 8 * 8192)]
        o += [vload(("v", 254), 1, "v6", S_WQ, "s68", 0), vload(("v", 255), 1, c, S_WQ, "s69", 0)]
    o += [salu("s_lshr_b32", "s68", "s2", 3), salu("s_lshl_b32", "s68", "s68", 2), salu("s_add_u32", "s68", "s68", sWAVE), salu("s_lshl_b32", sCP, "s68", 8)]
    if OPT["codepf"] == 1:
        o += code_touch()
    o += srd(S_WO, "s94", "s95", 5242880)
    o += [salu("s_lshl_b32", "s68", "s6", 3), salu("s_add_u32", "s68", "s68", "s4"),
          salu("s_mul_i32", sWOS, "s68", 40960), salu("s_mul_i32", sT0, sWAVE, 10240), salu("s_add_u32", sWOS, sWOS, sT0)]
    for jj in range(OPT["jpro"]):
        for pre, ds in unit_dmas(("J", jj), sE):
            o += pre[::-1] + ds
    o += srd(S_K, "s58", "s59", 67108864) + srd(S_V, "s60", "s61", 67108864) + [salu("s_mov_b32", sW1, sT2)]
    o += srd(S_OST, "s90", "s91", WS_WOT) + srd(S_FLG, "s88", "s89", 256)
    o += [salu("s_add_u32", "s68", "s90", WS_WOT), salu("s_addc_u32", "s69", "s91", 0)] + srd(S_WOT, "s68", "s69", 2 * WOT_BLK)
    o += [salu("s_lshl_b32", sFG, "s3", 2), salu("s_lshl_b32", sFB, "s5", 6)]
    if OPT["dbgt"]:
        o += [salu("s_add_u32", sFG, sFG, 128), salu("s_add_u32", sFB, sFB, 128)]
    o += [
          valu("v_cmp_eq_u32", "vcc", 0, "v0"), valu("v_mov_b32", "v10", "0x1000"), valu("v_mov_b32", f"v{ONES}", "0x3f803f80"),
          valu("v_cndmask_b32", vFLG, "v10", 0, "vcc"),
          ]
    if OPT["one1"]:
        o += [valu("v_and_b32", "v10", 15, "v0"), valu("v_cmp_eq_u32", "vcc", 0, "v10"), valu("v_cndmask_b32", f"v{ONES}", 0, f"v{ONES}", "vcc")]
    o += [valu("v_mov_b32", f"v{ONES + r}", f"v{ONES}") for r in range(1, 4)]
    if OPT["prof"]:
        o += [salu("s_add_u32", "s68", "s90", WS_PROF), salu("s_addc_u32", "s69", "s91", 0)] + srd(S_PROF, "s68", "s69", 1 << 20)
        o += [salu("s_lshl_b32", sPROF, "s2", 2), salu("s_add_u32", sPROF, sPROF, sWAVE), salu("s_lshl_b32", sPROF, sPROF, 10)]
        o += prof_stamp(0, 8)
    o += [salu("s_lshl_b32", sKV, "s6", 5), salu("s_add_u32", sKV, sKV, "s7"), salu("s_lshl_b32", sKV, sKV, 17),
          salu("s_lshl_b32", sT0, "s71", 12),
          salu("s_lshr_b32", sROT, "s2", 3), salu("s_lshl_b32", sT1, "s2", 1), salu("s_add_u32", sROT, sROT, sT1),
          salu("s_and_b32", sROT, sROT, 0 if OPT["norot"] else 15), salu("s_lshl_b32", sROT, sROT, 13), salu("s_add_u32", sROT, sROT, sT0)]
    if OPT["tlbw"]:
        for n, (r, so) in enumerate(((S_K, sKV), (S_V, sKV), (S_WO, sWOS))):
            o += [Ins(f"buffer_load_dword v{244 + n}, off, s[{r}:{r + 3}], {so} nt", "vld", rd=[so] + regs("s", r, 4))]
    if OPT["kpro"]:
        o += kv_patterns()
        for k in [("K", 0), ("V", 0), ("K", 1)][:OPT["kpro"]]:
            for pre, ds in unit_dmas(k, sE):
                o += pre + [nop(1)] + ds
    o += [salu("s_mul_i32", sO, "s3", O_GRP), salu("s_mul_i32", sT0, "s71", 786432), salu("s_add_u32", sO, sO, sT0),
          salu("s_lshr_b32", sT0, "s4", 1), salu("s_mul_i32", sT0, sT0, 16 * 12288), salu("s_add_u32", sO, sO, sT0),
          salu("s_and_b32", sT0, "s4", 1), salu("s_mul_i32", sT0, sT0, 4 * 12288), salu("s_add_u32", sO, sO, sT0),
          salu("s_mul_i32", sT0, "s70", 2 * 12288), salu("s_add_u32", sO, sO, sT0)]
    o += [salu("s_lshl_b32", "s68", "s6", 3), salu("s_add_u32", "s68", "s68", "s4"),
          salu("s_lshr_b32", sT0, "s68", 1), salu("s_and_b32", sT1, sT0, "0x33"),
          salu("s_and_b32", "s69", sT0, 4), salu("s_lshl_b32", "s69", "s69", 1), salu("s_or_b32", sT1, sT1, "s69"),
          salu("s_and_b32", "s69", sT0, 8), salu("s_lshr_b32", "s69", "s69", 1), salu("s_or_b32", sT1, sT1, "s69"),
          salu("s_mul_i32", sWOD, sT1, 20480),
          salu("s_and_b32", sT0, "s68", 1), salu("s_lshl_b32", sT0, sT0, 11), salu("s_add_u32", sWOD, sWOD, sT0),
          salu("s_mul_i32", sT0, "s5", WOT_BLK), salu("s_add_u32", sWOD, sWOD, sT0),
          salu("s_lshl_b32", sT0, "s70", 12), salu("s_add_u32", sWOD, sWOD, sT0),
          salu("s_lshl_b32", sT0, "s71", 10), salu("s_add_u32", sWOD, sWOD, sT0),
          salu("s_mul_i32", sT0, "s70", 1310720 - 20480), salu("s_add_u32", sWOX, sWOD, sT0)]
    o += [salu("s_add_u32", "s68", "s3", "s4"), salu("s_and_b32", "s68", "s68", 3)]
    for x in by_role(sQT, "s68", TBLQ1):
        o += x if isinstance(x, list) else [x]
    cbits = struct.unpack("<I", struct.pack("<f", math.log2(math.e) / math.sqrt(128.0)))[0]
    o += [salu("s_mov_b32", sC, "0x%x" % cbits), salu("s_mov_b32", sHI, "0x5d800000" if OPT["tmax"] == 1 else "0x53800000" if OPT["tmax"] else "0x4e800000"),
          salu("s_mov_b32", sLO, "0x42200000" if OPT["tmax"] else "0x30800000"), salu("s_mov_b32", sNC, "0x%x" % (cbits | 0x80000000)),
          salu("s_mov_b32", sIT, 0)]
    if not OPT["kpro"]:
        o += kv_patterns()
    o += [salu("s_lshl_b32", "s69", "s70", 13), salu("s_mul_i32", "s68", "s71", 12288), salu("s_add_u32", "s68", "s68", XS[0]),
          valu("v_bfe_u32", "v8", i, 2, 2), valu("v_and_b32", "v9", 3, i)]
    o += [valu("v_lshl_add_u32", c, b, 8, c), valu("v_add_u32", c, KWANT[15], c), valu("v_add_u32", kA[0], "s69", c)]
    o += [valu("v_xor_b32", kA[j], j << 6, kA[0]) for j in range(1, 4)]
    o += [valu("v_lshl_add_u32", "v5", a, 2, "v8"), valu("v_lshlrev_b32", c, 8, "v5"), valu("v_and_b32", "v6", 7, "v5"),
          valu("v_lshl_add_u32", c, "v6", 5, c), valu("v_lshl_add_u32", c, "v9", 3, c),
          valu("v_add_u32", c, VWANT[0], c), valu("v_add_u32", vA[0], "s69", c)]
    o += [valu("v_xor_b32", vA[d], d << 5, vA[0]) for d in range(1, 8)]
    o += [valu("v_lshl_add_u32", c, a, 3, "v8"), valu("v_lshlrev_b32", c, 7, c),
          valu("v_and_b32", "v5", 2, "v8"), valu("v_and_b32", "v7", 1, a), valu("v_lshl_add_u32", "v5", "v7", 2, "v5"),
          valu("v_xor_b32", "v5", "v5", "v9"), valu("v_lshl_add_u32", c, "v5", 4, c), valu("v_add_u32", wA[0], "s69", c),
          valu("v_xor_b32", wA[1], 64, wA[0])]
    o += [valu("v_lshrrev_b32", "v5", 1, b), valu("v_xor_b32", "v5", "v5", a),
          valu("v_lshlrev_b32", "v5", 4, "v5"), valu("v_lshl_add_u32", c, b, 7, "v5"),
          valu("v_xor_b32", "v5", 64, c), valu("v_add_u32", xA[0], "s68", c), valu("v_add_u32", xA[1], "s68", "v5")]
    o += [salu("s_lshl_b32", "s68", "s70", 2), salu("s_lshl_b32", "s69", "s71", 3), salu("s_add_u32", "s69", "s69", WOJ_ADDR),
          valu("v_lshrrev_b32", c, 1, a), valu("v_lshlrev_b32", c, 12, c), valu("v_lshl_add_u32", c, "v6", 7, c),
          valu("v_add_u32", c, "s69", c), valu("v_add_u32", "v5", "s68", "v9"), valu("v_lshrrev_b32", "v6", 1, "v6"),
          valu("v_xor_b32", "v5", "v5", "v6"), valu("v_lshl_add_u32", vJ, "v5", 4, c)]
    o += [needvm([("W", 0, 0), ("X", 0)]), barrier()] + first_reads(0)
    return o


def acc2(pi, xy, qi):
    return ((pi * 6 + qi) * 2 + xy) * 4


def a2(st, pi, ks, xy):
    if st == 0:
        return (240 if pi == 0 else 48 + 16 * pi) + 8 * ks + 4 * xy
    return (48 if pi == 0 else 112 + 16 * pi) + 8 * ks + 4 * xy


def b2(st, qi, ks):
    return (192 if st == 0 else 0) + 8 * qi + 4 * ks


V2A = ["v%d" % i for i in range(240, 245)]


def k2_loads_A(st, pi, soff=None):
    return [vload(("a", a2(st, pi, ks, xy)), 4, V2A[pi], S2A, soff or sA2, ks * 2048 + xy * 1024, flags=SC1) for xy in range(2) for ks in range(2)]


def k2_loads_B(st, qi):
    return [vload(("a", b2(st, qi, ks)), 4, V2B[qi], S2B, sB2, ks * 1024, flags=SC1) for ks in range(2)]


def k2_lds_A(st, pi):
    out = []
    for xy in range(2):
        for ks in range(2):
            r = [r for r, (s_, p_, off) in PF2.items() if (s_, p_) == (st, pi) and (r not in ("s87", "s99") or off == 2048 * ks)][0]
            key = [k for k, rs in sPF.items() if r in rs][0]
            if key[0] == "W":
                out.append(ds_read("ds_read_b128", ("a", a2(st, pi, ks, xy)), 4, V2W, U[key]["addr"] + ks * 2048 + xy * 1024))
            elif key[0] == "P":
                out.append(ds_read("ds_read_b128", ("a", a2(st, pi, ks, xy)), 4, V2P,
                                   (0 if key[1] == 1 else PADDR[key] - D[4]) + ks * 2048 + xy * 1024))
            elif r == sPF[key][0]:
                out.append(ds_read("ds_read_b128", ("a", a2(st, pi, ks, xy)), 4, V2X, U[key]["addr"] - XS[0] + ks * 2048 + xy * 1024))
            else:
                out.append(ds_read("ds_read_b128", ("a", a2(st, pi, ks, xy)), 4, V2X, U[key]["addr"] - XS[0] + 4096 + xy * 1024))
    return out


def k2_steps(S, first, loadA, loadB, pend, check=False, late=(), final=None):
    for st in range(2):
        q0 = S.n()
        tiles = [(pi, xy, qi) for pi in range(5) for xy in range(2) for qi in range(6)]
        if final is not None and st == 1:
            tiles = [t for t in tiles if t[2] >= 3] + [t for t in tiles if t[2] < 3]
            for n, x in enumerate(final[0]):
                S.put(q0 + 2 + n, x)
            for n, x in enumerate(final[1]):
                S.put(q0 + 61 + 2 * n, x)
        for pi, xy, qi in tiles:
            for ks in range(2):
                acc = ("v", acc2(pi, xy, qi))
                S.add(mfma(16, acc, ("a", a2(st, pi, ks, xy)), ("a", b2(st, qi, ks)),
                           None if (first and st == 0 and ks == 0) else acc))
        pos = [int(0.5 + 3.75 * n) for n in range(32)]
        if pend[st]:
            ls = k2_loads_A(1 - st, 4)
            S.put(q0 + pos[0], ls[2])
            S.put(q0 + pos[1], ls[3])
            for n, x in enumerate(next_off(sA2, TA, sAB, 20480)):
                S.put(q0 + pos[1] + 1 + n, x)
        if first and st == 0:
            for n, (pre, l) in enumerate(late):
                S.put(q0 + 6 * n + 2, *pre)
                S.put(q0 + 6 * n + 3, l)
            for n, r in enumerate(k2_lds_A(1, 0) + k2_lds_A(1, 1) + k2_lds_A(1, 2)):
                S.put(q0 + 6 * n + 5 if n < 8 else q0 + 54 + 4 * (n - 8), r)
            S.put(q0 + 70, valu("v_add_u32", V2P, D[9] - D[5], V2P))
            for n, r in enumerate(k2_lds_A(1, 3)):
                S.put(q0 + 73 + 4 * n, r)
        elif loadB[st]:
            for n, l in enumerate([l for qi in range(6) for l in k2_loads_B(1 - st, qi)]):
                S.put(q0 + pos[2 + n], l)
            for n, x in enumerate(next_off(sB2, TB, sBB, 12288)):
                S.put(q0 + pos[13] + 1 + n, x)
        if loadA[st]:
            n = 14
            for pi in range(5):
                ls = k2_loads_A(st, pi)
                for x, l in enumerate(ls if pi < 4 else ls[:2]):
                    assert pos[n] >= 24 * pi + 11 + 12 * (x >> 1), (pi, x, pos[n])
                    S.put(q0 + pos[n], l)
                    n += 1
        if first and st == 1:
            S.put(q0 + 110, needvm(["ost"]), barrier())
            S.put(q0 + 111, valu("v_mov_b32", V2P, "0x100"))
            S.put(q0 + 114, atomic_add(V2P, sFG))
        if check and st == 1:
            S.put(q0 + 1, scmp("s_cmp_eq_u32", sCNT, 5), salu("s_cselect_b32", sWANT, 8, 0), salu("s_cselect_b32", sPL, sFG, "0x1000"))
            S.put(q0 + 2, poll_load(V2P, sPL))
        if check and st == 0:
            S.put(q0 + 1, valu("v_readfirstlane_b32", sQ, V2P))
            S.put(q0 + 6, salu("s_bfe_u32", sQ, sQ, "0x80008"), scmp("s_cmp_lt_u32", sQ, sWANT),
                  raw("s_cbranch_scc1 L_spin2", "branch", rd=["scc"]), label("L_spin2_back"))


def k2_first(S, late):
    seq = [(0, p) for p in range(4)] + [(1, p) for p in range(3)] + [(0, 4), (1, 3), (1, 4)]
    at = {}
    for st, pi in seq:
        at[(st, pi)] = S.n()
        for xy in range(2):
            for qi in range(6):
                for ks in range(2):
                    acc = ("v", acc2(pi, xy, qi))
                    S.add(mfma(16, acc, ("a", a2(st, pi, ks, xy)), ("a", b2(st, qi, ks)), None if (st == 0 and ks == 0) else acc))
    for n, (pre, l) in enumerate(late):
        S.put(13 * n + 2, *pre)
        S.put(13 * n + 3, l)
    assert 13 * len(late) < at[(0, 4)]
    g = 5
    for pi in range(4):
        for r in k2_lds_A(1, pi):
            while S.fixed.get(g):
                g += 1
            S.put(g, r)
            g += 4
    items = []
    for pi in range(5):
        for x, l in enumerate(k2_loads_A(0, pi, sSO)):
            items.append((l, at[(0, pi)] + 11 + 12 * (x >> 1), 240 + 24 * pi + 12 * (x >> 1)))
        for x, l in enumerate(k2_loads_A(1, pi)[:4 if pi < 4 else 2]):
            items.append((l, at[(1, pi)] + 11 + 12 * (x >> 1), 360 + 24 * pi + 12 * (x >> 1)))
    for qi in range(6):
        for ks, l in enumerate(k2_loads_B(0, qi)):
            items.append((l, at[(0, 4)] + 12 + 2 * qi + ks, 200 + 2 * qi + ks))
    items.sort(key=lambda i: i[2])
    g, lastB = 11, 0
    while items:
        c = [i for i in items if i[1] <= g]
        if c and not any(S.fixed.get(k) and any(j.kind in ("vld", "vst") for j in S.fixed[k]) for k in ((g - 2, g - 1, g + 1) if g < 180 else (g - 1, g + 1))) and not S.fixed.get(g):
            S.put(g, c[0][0])
            if sB2 in c[0][0].rd:
                lastB = g
            items.remove(c[0])
        g += 1
        assert g < 240, items
    for n, x in enumerate(next_off(sB2, TB, sBB, 12288)):
        S.put(lastB + 1 + n, x)
    if OPT["p2st"]:
        for n, g in enumerate((47, 95, 143, 167, 191, 215)):
            S.put(g, raw(f"s_memrealtime s[76:77]", wr=["s76", "s77"]), raw("s_waitcnt lgkmcnt(0)", "drainlg"), salu("s_mov_b32", f"s{101 - n}", "s76"))
    g = 226
    while S.fixed.get(g) or S.fixed.get(g + 1) or S.fixed.get(g + 3):
        g += 1
    S.put(g, needvm(["ost"]), barrier())
    S.put(g + 1, valu("v_mov_b32", V2P, "0x100"))
    S.put(g + 3, atomic_add(V2P, sFG))


def spin(name, back, dsts, soffs, conds):
    o = [label(name), salu("s_mov_b32", sSPIN, 0), label(name + "_loop"), raw("s_sleep 8")]
    o += [poll_load(d, so) for d, so in zip(dsts, soffs)]
    o += [drain(), salu("s_add_u32", sSPIN, sSPIN, 1), scmp("s_cmp_gt_u32", sSPIN, "0x20000"),
          raw(f"s_cbranch_scc1 {back}", "branch", rd=["scc"])]
    for d, (sh, msk, want) in zip(dsts, conds):
        o += [valu("v_readfirstlane_b32", sQ, d), nop(4)]
        if sh:
            o += [salu("s_lshr_b32", sQ, sQ, sh)]
        if msk:
            o += [salu("s_and_b32", sQ, sQ, msk)]
        o += [scmp("s_cmp_lt_u32", sQ, want), raw(f"s_cbranch_scc1 {name}_loop", "branch", rd=["scc"])]
    o += [raw(f"s_branch {back}", "branch")]
    return o


def phase2():
    o = [valu("v_mov_b32", V2L, vL16), salu("s_and_b32", "s85", "s4", 3), salu("s_and_b32", "s32", sWAVE, 1), salu("s_lshr_b32", "s33", sWAVE, 1),
         salu("s_mul_i32", sAB, sWAVE, 16 * 20480), salu("s_lshr_b64", f"s[{TA}:{TA + 1}]", "s[34:35]", 4)]
    o += next_off(sB2, TB, sBB, 12288)
    o += [valu("v_add_u32", V2W, sW4K, V2L), salu("s_add_u32", "s7", sW6K, XS[0]), valu("v_add_u32", V2X, "s7", V2L), valu("v_add_u32", V2P, D[4], V2W)]
    o += [scmp("s_cmp_eq_u32", "s33", 0)]
    o += [salu("s_cselect_b32", f"s{47 + q}", q, 2 - q) for q in range(3)]
    o += [salu("s_cselect_b32", f"s{36 + pi}", pi, 4 - pi) for pi in range(5)]
    o += [salu("s_mul_i32", "s34", "s32", 3)]
    o += [salu("s_add_u32", f"s{47 + q}", f"s{47 + q}", "s34") for q in range(3)]
    save = list(vR)
    vR[:] = [f"v{16 + q}" for q in range(6)]
    nl = 12 if OPT["pace"] else 8
    eg = epilogue_groups(0, lambda n: 240 - 4 * (24 - n) - (0 if OPT["pace"] else 16) if n >= 24 - nl else 32 + 4 * n, V2L)
    vR[:] = save
    b1 = [l for qi in range(6) for l in k2_loads_B(1, qi)]
    for n, (v, pre, st, imm) in enumerate(eg):
        m = b1[2 * (n - 8):2 * (n - 8) + 2] if 8 <= n < 14 else []
        o += v[:8] + m[:1] + v[8:16] + m[1:] + v[16:]
        if OPT["pace"]:
            if n % 2 == 0:
                o += eg[n // 2][1] + [eg[n // 2][2]]
        elif n < 16:
            o += pre + [st]
        if n == 15:
            o += [needvm(list(sPF))]
            for pi in range(5):
                o += [salu("s_lshl_b32", "s7", f"s{36 + pi}", 12), valu("v_add_u32", V2A[pi], "s7", V2L)]
            o += next_off(sPL, TA, sAB, 20480)
            if OPT["pace"]:
                o += next_off(sSO, TA, sAB, 20480)
            o += next_off(sA2, TA, sAB, 20480)
        if 16 <= n < 21:
            o += k2_lds_A(0, n - 16)
    late = []
    for n, g in enumerate(eg[24 - nl:]):
        st = vstore(("v", 240 - 4 * (nl - n) - (0 if OPT["pace"] else 16)), 4, V2L, S_OST, sE, g[3], tag="ost", flags=SC1)
        late.append((g[1], st))
    o += k2_loads_A(1, 4, sPL) + [valu("v_add_u32", V2P, D[9] - D[4], V2P)]
    o += next_off(sB2, TB, sBB, 12288) + [salu("s_mov_b32", sWANT, 0)]
    o += prof_stamp(1, 30)
    o += srd(S2OUT, "s92", "s93", 7864320)
    o += [salu("s_mul_i32", sOB, "s6", 192 * 2560), salu("s_mul_i32", "s7", "s84", 96 * 2560), salu("s_add_u32", sOB, sOB, "s7"),
          salu("s_mul_i32", "s7", "s5", 1280), salu("s_add_u32", sOB, sOB, "s7"),
          salu("s_mul_i32", "s7", "s85", 320), salu("s_add_u32", sOB, sOB, "s7"), salu("s_mov_b32", sCNT, 6)]
    S0 = Sched()
    if OPT["pace"]:
        k2_first(S0, late)
    else:
        k2_steps(S0, True, [True, True], [True, True], [False, True], late=late)
    S0.order_fixed()
    first = S0.build()
    S1 = Sched()
    k2_steps(S1, False, [True, True], [True, True], [True, True], check=True)
    if OPT["prof"] and not OPT["p2st"]:
        S1.put(3, raw("s_memrealtime s[76:77]", wr=["s76", "s77"]), raw("s_waitcnt lgkmcnt(0)", "drainlg"),
               salu("s_mov_b32", "s101", "s100"), salu("s_mov_b32", "s100", "s99"), salu("s_mov_b32", "s99", "s98"),
               salu("s_mov_b32", "s98", "s97"), salu("s_mov_b32", "s97", "s96"), salu("s_mov_b32", "s96", "s76"))
    S1.put(237, salu("s_sub_u32", sCNT, sCNT, 1))
    S1.order_fixed()
    loop = [label("L_k2")] + S1.build() + [scmp("s_cmp_lg_u32", sCNT, 0), raw("s_cbranch_scc1 L_k2", "branch", rd=["scc"])]
    R1, R2, i, a, V2O = V2A[0], V2A[1], V2A[2], V2A[3], V2A[4]
    setup = [salu("s_mul_i32", "s7", sWAVE, 30720), valu("v_add_u32", V2W, "s7", V2L), valu("v_lshrrev_b32", i, 4, V2L),
             valu("v_and_b32", a, 15, i), valu("v_mul_u32_u24", a, 2560, a), valu("v_lshrrev_b32", i, 4, i),
             valu("v_lshl_add_u32", V2O, i, 4, a),
             salu("s_xor_b32", sPL, sWAVE, 1), salu("s_sub_u32", sPL, sPL, sWAVE), salu("s_mul_i32", "s7", sPL, 30720),
             valu("v_add_u32", R1, "s7", V2W),
             salu("s_xor_b32", sPL, sWAVE, 3), salu("s_sub_u32", sPL, sPL, sWAVE), salu("s_mul_i32", "s7", sPL, 30720),
             valu("v_add_u32", R2, "s7", V2W)]
    sent = [(pi, xy, qi) for pi in range(5) for qi in range(3, 6) for xy in range(2)]
    wr = {t: ds_write("ds_write_b128", V2W, ("v", acc2(*t)), 4, n * 1024) for n, t in enumerate(sent)}
    S2 = Sched()
    e = []
    if OPT["redov"]:
        order = [wr[(pi, xy, qi)] for pi in range(5) for xy in range(2) for qi in range(3, 6)]
        k2_steps(S2, False, [False, False], [True, False], [True, False], final=(setup, order[:29]))
        e = order[29:]
    else:
        k2_steps(S2, False, [False, False], [True, False], [True, False])
        e = setup + list(wr.values())
    S2.order_fixed()
    last = S2.build()
    e += [needlgkm0(), barrier()] + prof_stamp(8, 234)
    for s in list(range(7, 15)) + list(range(7)):
        pi, q = divmod(s, 3)
        e += [ds_read("ds_read_b128", ("v", acc2(pi, xy, q + 3)), 4, R1, (2 * s + xy) * 1024) for xy in range(2)]
    for s in list(range(7, 15)) + list(range(7)):
        pi, q = divmod(s, 3)
        d, t = acc2(pi, 0, q), acc2(pi, 0, q + 3)
        e += [valu("v_add_f32", f"v{d + r}", f"v{d + r}", f"v{t + r}") for r in range(8)]
        if s >= 7:
            e += [ds_write("ds_write_b128", R1, ("v", acc2(pi, xy, q)), 4, (2 * s + xy) * 1024) for xy in range(2)]
    e += [needlgkm0(), barrier()]
    for s in range(8):
        pi, q = divmod(s, 3)
        for xy in range(2):
            e += [ds_read("ds_read_b128", ("v", acc2(pi, xy, q + 3)), 4, R2, (2 * (14 - s) + xy) * 1024)]
    for s in range(8):
        pi, q = divmod(s, 3)
        d0, t0 = acc2(pi, 0, q), acc2(pi, 0, q + 3)
        e += [valu("v_add_f32", f"v{d0 + r}", f"v{d0 + r}", f"v{t0 + r}") for r in range(8)]
        e += [valu("v_cvt_pk_bf16_f32", f"v{d0 + r}", f"v{d0 + 2 * r}", f"v{d0 + 2 * r + 1}") for r in range(4)]
        e += [salu("s_mul_i32", "s7", f"s{47 + q}", 40960), salu("s_lshl_b32", sPL, f"s{36 + pi}", 6),
              salu("s_add_u32", "s7", "s7", sPL), salu("s_add_u32", sSO, "s7", sOB),
              vstore(("v", d0), 4, V2O, S2OUT, sSO, 0, flags=OPT["outf"])]
    e += prof_stamp(9, 234)
    if OPT["prof"]:
        for n in range(6):
            e += [valu("v_mov_b32", "v234", 1), valu("v_mov_b32", "v235", f"s{101 - n}"), pstore(234, 2 + n), nop(4)]
    if OPT["dbgt"]:
        a, b = {1: ("s76", "s78"), 2: ("s74", "s76"), 3: ("s76", "s74"), 4: ("s76", "s74")}[OPT["dbgt"]]
        e += [drain(), raw("s_memrealtime s[78:79]", wr=["s78", "s79"]), raw("s_waitcnt lgkmcnt(0)", "drainlg"),
              salu("s_sub_u32", a, a, "s72"), salu("s_sub_u32", b, b, "s72"),
              scmp("s_cmp_lt_u32", "s2", 8), salu("s_cselect_b32", "s7", "s2", "0x1000"), salu("s_lshl_b32", "s7", "s7", 2),
              valu("v_mov_b32", "v0", a), valu("v_mov_b32", "v1", b),
              Ins(f"buffer_store_dword v0, {vFLG}, s[{S_FLG}:{S_FLG + 3}], s7 offen", "vst", rd=["v0", vFLG, "s7"]),
              Ins(f"buffer_store_dword v1, {vFLG}, s[{S_FLG}:{S_FLG + 3}], s7 offen offset:32", "vst", rd=["v1", vFLG, "s7"])]
    e += [label("L_end"), raw("s_endpgm")]
    sp1 = spin("L_spin1", "L_spin1_back", vPOLL[:1], [sFG], [(0, "0xff", 8)]) + spin("L_spin3", "L_spin3_back", vPOLL[1:], [sFB], [(16, 0, 128)])
    sp2 = spin("L_spin2", "L_spin2_back", [V2P], [sFG], [(8, "0xff", 8)])
    return o, first, loop, last, e, sp1, sp2


def check_pointers(pro):
    ptr = set(regs("s", 56, 8) + regs("s", 88, 8))
    dirty = set()
    for x in pro:
        if x.text.startswith("s_load"):
            continue
        if x.text.startswith(("s_mov_b32", "s_and_b32", "s_add_u32", "s_addc_u32")) and x.rd & dirty and "0xffff" in x.text:
            raise AssertionError(x.text)
        dirty |= x.wr & ptr


def kernel():
    pro = prologue()
    check_pointers(pro)
    q1 = q_phase(False)
    if OPT["dbgt"] >= 3:
        st = [raw("s_memrealtime s[76:77]", wr=["s76", "s77"]), raw("s_waitcnt lgkmcnt(0)", "drainlg")]
        if OPT["dbgt"] == 3:
            q1 = q1 + st
        else:
            q1 = st + q1
    full = []
    for last in (False, True):
        _alt[0] = 0
        full.append(a_phase(last))
    cut = [[n for n, x in enumerate(f) if x.text == "L_CUT:"][0] for f in full]
    assert [x.text for x in full[0][:cut[0]]] == [x.text for x in full[1][:cut[1]]]
    att = [label("L_att")] + full[0][:cut[0]]
    tails = []
    for v in range(2):
        t = [label(f"L_tail{v + 1}")] + full[v][cut[v] + 1:]
        t += [raw("s_cbranch_vccnz L_slow", "branch", rd=["vcc"]), label(f"L_back{v + 1}")]
        t += [valu("v_rcp_f32", f"v{16 + qt}" if v else vR[qt], f"v{lacc(qt)}") for qt in range(6)]
        if OPT["dbgt"] and not (v and OPT["dbgt"] >= 3):
            t += [raw(f"s_memrealtime s[{74 + 2 * v}:{75 + 2 * v}]", wr=[f"s{74 + 2 * v}", f"s{75 + 2 * v}"]), raw("s_waitcnt lgkmcnt(0)", "drainlg")]
        t += prof_stamp(29)
        if OPT["prof"]:
            t += [salu("s_add_u32", sPROF, sPROF, 240)]
        tails.append(t)
    q2 = [salu("s_mov_b32", sIT, 1), label("L_q2")] + q_phase(True) + [raw("s_branch L_att", "branch")]
    o, first, loop2, last, e, sp1, sp2 = phase2()
    slow = slow_path()
    parts = [pro, q1, att, tails[0], q2, tails[1], o, first, loop2, last, e, slow, sp1, sp2]
    waits = compute_waits([pro + q1 + att + tails[0] + q2 + att + tails[1] + o + first + loop2 + loop2 + loop2 + last + e, slow, sp1, sp2])
    done = {}
    P = [apply_waits(x, waits, done) for x in parts]
    pads = pad_hazards([P[0] + P[1] + P[2] + P[3] + P[4] + P[2] + P[5] + P[6] + P[7] + P[8] + P[8] + P[9] + P[10], P[11], P[12], P[13]])
    al = ".p2align 3\n"
    return (emit(P[0] + P[1], pads) + al + emit(P[2] + P[3] + P[4], pads) + al + emit(P[5] + P[6] + P[7], pads) + al +
            emit(P[8] + P[9] + P[10] + P[11] + P[12] + P[13], pads) + "L_endcode:\n")


def main():
    kn = NAME + "_kernel"
    s = open("cdna_kernels/" + NAME + ".s.ref").read().split("; Override launch")[0]
    s += "; @launch grid=(256,1,1) block=(256,1,1) lds=163840\n"
    s += '.amdgcn_target "amdgcn-amd-amdhsa--gfx950"\n.text\n'
    s += f".globl {kn}\n.p2align 8\n.type {kn},@function\n{kn}:\n" + kernel()
    s += f""".section .rodata,"a"
.p2align 6
.amdhsa_kernel {kn}
  .amdhsa_next_free_vgpr 512
  .amdhsa_next_free_sgpr 102
  .amdhsa_accum_offset 256
  .amdhsa_group_segment_fixed_size 0
  .amdhsa_kernarg_size 104
  .amdhsa_user_sgpr_count 2
  .amdhsa_user_sgpr_kernarg_segment_ptr 1
  .amdhsa_system_sgpr_workgroup_id_x 1
.end_amdhsa_kernel
"""
    open(sys.argv[1], "w").write(s)


main()
```

```python
import sys, math, struct
from fw3 import *
from orders import orders
import alloc3

NAME = "concat_heads__mha_block_cached__mha_block_cached__near_ridge"
OPT = dict(outf=' sc1', redov=1, one1=1, warmj=0, pk=1, pfq1=1, rot2=4, gate=0, pace=1, lead=3, xpace=0, kvf=' nt', norot=0, tlbw=0, kpro=0, kplan=0, jlate=1, dbgt=0, jpro=0, k1s=0, e10=1, t23=0, nfree=1, kstep10=136, ks1=0, kn1=0, kfirst=6, k2late=0, qsp=1, tmax=2, xnum=25, xhi=100, ctq=0, cplim=1, p2st=0, kbar=0, kin=2, cta='', rotq1=2, gstep=2, rotq=3, early=1, uni=0, prof=0, report=False, stg=67, warmw=True, codepf=2, codepf2=12, pf='', pf0=1, pfn=3, pff='', flagbar=12, map=0)
for a in sys.argv[2:]:
    k, v = a.split("=")
    OPT[k] = type(OPT[k])(int(v)) if not isinstance(OPT[k], str) else v

KB = 1024
SC1 = " sc1"
O_GRP = 2 * 786432
WS_WOT = 50331648
WOT_BLK = 5242880
WS_PROF = 64 * 1024 * 1024

S_K, S_V, S_X, S_WQ, S_OST, S_WO, S_WOT = 8, 12, 16, 20, 24, 28, 32
sKV, sWQ, sX, sW4K, sW6K, sO, sIT, sT0, sT1, sC, sWAVE = ["s%d" % i for i in range(36, 47)]
sWOS, sWOD, sWOX, sW5K, sHI, sLO = ["s%d" % i for i in range(47, 53)]
sPROF, sE, sJ = "s53", "s54", "s55"
sQT, sWS, sXS, sW1, sNC = "s50", "s67", "s95", "s63", "s7"
sROT, sFG, sFB, sCP = "s62", "s65", "s66", "s64"
sA2, sB2, sPL, sOB, sCNT, sSO, sQ, sSH, sWANT, sSPIN = "s28", "s29", "s30", "s31", "s67", "s68", "s69", "s70", "s71", "s94"
S_PROF, S_FLG = 72, 80
sPF = {("W", 0, 0): ["s84"], ("W", 0, 1): ["s85"], ("X", 0): ["s86", "s87"], ("X", 1): ["s98", "s99"], ("W", 1, 0): ["s100"],
       ("P", 0): ["s60"], ("P", 1): ["s61"], ("P", 2): ["s101"]}
PF2 = {"s84": (0, 0, 0), "s86": (0, 1, 0), "s60": (0, 2, 0), "s101": (0, 3, 0), "s98": (0, 4, 0), "s61": (1, 0, 0),
       "s87": (1, 1, 0), "s99": (1, 1, 2048), "s85": (1, 2, 0), "s100": (1, 3, 0)}
vK = ["v%d" % i for i in range(192, 196)]
vV = ["v196", "v197"]
vW = ["v%d" % i for i in range(198, 202)]
vX = ["v%d" % i for i in range(202, 206)]
kA = ["v%d" % i for i in range(206, 210)]
vA = ["v%d" % i for i in range(210, 218)]
wA = ["v218", "v219"]
xA = ["v220", "v221"]
vJ, vL16 = "v222", "v223"
ONES = 224
EPI = 228
vR = ["v%d" % i for i in range(244, 250)]
vFLG = "v250"
vT = ["v252", "v253"]
vC2 = "v[242:243]"
vPOLL = ["v254", "v255"]

V2B = ["v245", "v246", "v247", "v248", "v249", "v251"]
V2L, V2W, V2P, V2X = "v252", "v254", "v255", "v253"
S2A, S2B, S2OUT = S_WQ, S_X, 8
TA, TB, sAB, sBB = 56, 62, "s43", "s44"

D = [i * 16 * KB for i in range(10)]
XS = [96 * KB, 120 * KB]
WOJ_ADDR = D[4]


def qacc(p, xy, qt):
    return 64 * (qt >> 1) + (2 * p + (qt & 1)) * 8 + 4 * xy


def qf(qt, p):
    return 64 * (qt >> 1) + (2 * p + (qt & 1)) * 4


def sreg(qt):
    return 64 * (qt >> 1) + 32 + 8 * (qt & 1)


def mrun(qt):
    return 64 * (qt >> 1) + 56 + (qt & 1)


def mneg(qt):
    return 64 * (qt >> 1) + 58 + (qt & 1)


def lacc(qt):
    return 64 * (qt >> 1) + 48 + 4 * (qt & 1)


ABUF = [192, 248]


def bx(qt, ks):
    return 200 + 8 * qt + 4 * ks


def kf(kt, ks):
    return 192 + 16 * kt + 4 * ks


def vf(dt):
    return 224 + 4 * dt


def oacc(qt, dt):
    return 32 * qt + 4 * dt


def kpos(k):
    n1 = OPT["kn1"]
    if OPT["kin"]:
        return 2 + OPT["kstep10"] / 10.0 * (4 * (k // 4) + 1) + OPT["kin"] * (k % 4)
    return 2 + OPT["ks1"] / 10.0 * min(k, n1) + OPT["kstep10"] / 10.0 * max(k - n1, 0)


def build_units():
    U = {}
    for i in range(10):
        U[("X", i)] = dict(addr=XS[i % 2], size=24 * KB, iss=i - 2.5, land=i - 1, rel=i - 0.5)
        U[("W", i, 0)] = dict(addr=D[2 * (i % 2)], size=16 * KB, iss=i - 2.5, land=i - 1, rel=i - 0.5)
        U[("W", i, 1)] = dict(addr=D[2 * (i % 2) + 1], size=16 * KB, iss=i - 2, land=i - 0.5, rel=i)
    for k, e in ((("X", 0), -4), (("W", 0, 0), -4), (("X", 1), -3), (("W", 0, 1), -2), (("W", 1, 0), -2)):
        U[k]["iss"] = e
    pages = [9, 5, 4, 6, 0, 7, 1, 8, 2, 3, 9, 4, 5, 6, 0, 1, 7, 2, 8, 3, 9, 4, 5, 6, 0, 7, 1, 8, 2, 9, 5, 4]
    if OPT["kstep10"]:
        (_, pages), kiss, leads = alloc3.plan(0, OPT["kfirst"], pos=kpos, head=[5, 9, 4, 6, 1 if OPT["k2late"] else 0, 7, 1, 8],
                                                 lastN={0: 23, 1: 25, 2: 25, 3: 26, 4: 24, 5: 23, 6: 23, 7: 23, 8: 24, 9: 24})
        if OPT["report"]:
            print("; leads", [round(x, 1) for x in leads])
    for u in range(32):
        key = ("K", u // 2) if u % 2 == 0 else ("V", u // 2)
        N = 10 + u // 2 + u % 2
        U[key] = dict(addr=D[pages[u]], size=16 * KB, iss=N - 5 + (u == 30), land=N - 1, rel=N)
        if OPT["kstep10"] and u >= OPT["kfirst"]:
            U[key].update(iss=kiss[u], even=u - OPT["kfirst"])
    if OPT["kbar"]:
        for t in range(1, 16):
            U[("K", t)]["land"] += 0.5
    U[("V", 1)]["iss"] = U[("K", 2)]["iss"] = 7.5
    if "even" not in U[("V", 2)]:
        U[("V", 2)]["iss"] = 8.5
    if OPT["k2late"]:
        U[("K", 2)]["iss"] = 8
    if OPT["kstep10"]:
        if OPT["kfirst"] == 8:
            U[("V", 3)]["iss"] = 8.5
        return U
    if OPT["e10"] < 2:
        U[("K", 4)]["iss"] = 10
    if OPT["e10"] < 1:
        U[("V", 3)]["iss"] = 10
    if OPT["t23"]:
        U[("W", 0, 0)]["iss"] = U[("W", 1, 1)]["iss"] = -5
    return U


def check_units(second):
    V = {k: dict(u) for k, u in U.items()}
    if second:
        V[("K", 0)]["iss"], V[("V", 0)]["iss"], V[("K", 1)]["iss"] = -4, -3, -3
    else:
        V[("J",)] = dict(addr=D[4], size=32 * KB, iss=-1, land=2, rel=3)
        V[("J", 2)] = dict(addr=D[9], size=16 * KB, iss=0, land=2, rel=3)
        V[("K", 0)]["iss"], V[("V", 0)]["iss"], V[("K", 1)]["iss"] = 3, 4, 5
    allu = [(k, u["addr"], u["addr"] + u["size"], u["iss"], u["rel"]) for k, u in V.items()]
    assert all(u["iss"] < u["land"] <= u["rel"] for u in V.values())
    if second:
        allu += [(k, u["addr"], u["addr"] + u["size"], u["iss"] - 27, u["rel"] - 27) for k, u in U.items() if k[0] in "KV" and k[1] > 2]
        allu += [(("P", n), D[p], D[p] + 16 * KB, (23, 24, 24)[n], 27) for n, p in enumerate((5, 9, 4))]
        allu += [(k, u["addr"], u["addr"] + u["size"], u["iss"] + 27, 40) for k, u in U.items() if k in sPF]
    for a in allu:
        for b in allu:
            if a is not b and a[1] < b[2] and b[1] < a[2]:
                assert a[4] <= b[3] or b[4] <= a[3], (a, b)


U = build_units()
U[("K", 0)]["iss"] = U[("V", 0)]["iss"] = U[("K", 1)]["iss"] = None
PADDR = {("P", 0): D[5], ("P", 1): D[9], ("P", 2): D[4]}
_alt = [0]


def next_st():
    _alt[0] ^= 1
    return [sT0, sT1][_alt[0]]


def unit_dmas(key, tmp=None):
    kind = key[0]
    if kind == "P":
        return [([salu("s_add_u32", "m0", sW4K, PADDR[key])], [dma(vW[m], S_WQ, sPF[key][0], 1024 * m, key, SC1) for m in range(4)])]
    if kind == "J":
        jj = key[1]
        sT = tmp
        pre = [salu("s_add_u32", sT, sWOS, jj * 128), salu("s_add_u32", "m0", sW4K, D[(4, 5, 9)[jj >> 2]] + (jj & 3) * 1024)]
        return [(pre, [dma(vX[0], S_WO, sT, 0, "J", " nt")])]
    u = U[key]
    if key in sPF:
        if kind == "W":
            return [([salu("s_add_u32", "m0", sW4K, u["addr"])], [dma(vW[m], S_WQ, sPF[key][0], 1024 * m, key, SC1) for m in range(4)])]
        return [([salu("s_add_u32", "m0", sW6K, u["addr"])], [dma(vX[m], S_X, sPF[key][0], 1024 * m, key, SC1) for m in range(4)]),
                ([salu("s_add_u32", "m0", sW6K, u["addr"] + 4096)], [dma(vX[m], S_X, sPF[key][1], 1024 * m, key, SC1) for m in range(2)])]
    sT = tmp or next_st()
    if kind in "KV":
        pre = [salu("s_add_u32", sT, sROT, key[1] * 8192), salu("s_and_b32", sT, sT, "0x1ffff"), salu("s_add_u32", sT, sT, sKV),
               salu("s_add_u32", "m0", sW4K, u["addr"])]
        if kind == "K":
            return [(pre, [dma(vK[m], S_K, sT, 1024 * m, key, OPT["kvf"]) for m in range(4)])]
        return [(pre, [dma(vV[m & 1], S_V, sT, 1024 * m, key, OPT["kvf"]) for m in range(4)])]
    if kind == "W":
        return [([salu("s_add_u32", "m0", sW4K, u["addr"])], [dma(vW[m], S_WQ, sW1 if key[2] else sWS, 1024 * m, key) for m in range(4)])]
    g0 = ([salu("s_add_u32", "m0", sW6K, u["addr"])], [dma(vX[m], S_X, sXS, 1024 * m, key) for m in range(4)])
    pre2 = [salu("s_add_u32", sT, sXS, 40960), salu("s_add_u32", "m0", sW6K, u["addr"] + 4096)]
    return [g0, (pre2, [dma(vX[m], S_X, sT, 1024 * m, key) for m in range(2)])]


def set_pf_proj(tail=False):
    o = [salu("s_add_u32", sW1, sWQ, 524288 + 128)]
    for key, rs in sPF.items():
        if key[0] == "P":
            continue
        if key[0] == "W":
            o += [salu("s_add_u32", rs[0], sWQ, key[1] * 524288 + key[2] * 128)]
        else:
            o += [salu("s_add_u32", rs[0], sX, key[1] * 128), salu("s_add_u32", rs[1], sX, key[1] * 128 + 40960)]
    return o


ORD2 = orders(16, 4, 8, 7, {1: [4], 2: [1, 1, 2, 2, 2, 0, 0], 3: [1, 2, 2, 2, 1, 0, 0], 4: [2, 1, 2, 2, 1, 0, 0]}[OPT["rot2"]])[0] if OPT["rot2"] else [list(range(16))] * 4
ORDQ = orders(10, 4, None, 0, {1: [1, 1, 2, 2, 2, 1, 1], 2: [1, 1, 4], 3: [1, 1, 2, 2, 1, 1, 1, 1]}[OPT["rotq"]])[0] if OPT["rotq"] else [list(range(10))] * 4
assert all(o[:2] == [0, 1] for o in ORDQ)
TBLQ = [sum(x << (4 * n) for n, x in enumerate(o[2:])) for o in ORDQ]
ORDQ1 = {0: ORDQ, 1: orders(10, 4, None, 0, [4])[0], 2: orders(10, 4, None, 0, [2, 2, 2, 1, 1, 1, 1])[0], 3: orders(10, 4, None, 0, [4, 0, 1, 1, 1, 1, 1, 1])[0]}[OPT["rotq1"]]
TBLQ1 = [sum(x << (4 * n) for n, x in enumerate(o[2:])) for o in ORDQ1]
TBLQ0 = [o[0] | o[1] << 4 for o in ORDQ1]


def by_role(dst, role, consts):
    o = [salu("s_mov_b32", dst, "0x%x" % consts[0])]
    for r in range(1, 4):
        o += [[scmp("s_cmp_eq_u32", role, r), salu("s_cselect_b32", dst, "0x%x" % consts[r], dst)]]
    return o


TBL2 = [sum(x << (4 * n) for n, x in enumerate(o)) for o in ORD2]


def next_off(dst, tbl, base, stride):
    return [salu("s_and_b32", dst, f"s{tbl}", 15), salu("s_lshr_b64", f"s[{tbl}:{tbl + 1}]", f"s[{tbl}:{tbl + 1}]", 4),
            salu("s_mul_i32", dst, dst, stride), salu("s_add_u32", dst, dst, base)]


def set_pf_out():
    o = [salu("s_and_b32", "s68", "s4", 3), salu("s_mul_i32", "s68", "s68", 1310720), salu("s_mul_i32", "s69", "s5", WOT_BLK),
         salu("s_add_u32", "s68", "s68", "s69"), salu("s_add_u32", "s68", "s68", WS_WOT)]
    o += [[salu("s_add_u32", f"s{S_WQ}", "s90", "s68"), salu("s_addc_u32", "s69", "s91", 0)]]
    o += [salu("s_and_b32", f"s{S_WQ + 1}", "s69", "0xffff"), salu("s_mov_b32", f"s{S_WQ + 2}", 1310720),
          salu("s_mov_b32", f"s{S_X}", f"s{S_WQ}"), salu("s_mov_b32", f"s{S_X + 1}", f"s{S_WQ + 1}"), salu("s_mov_b32", f"s{S_X + 2}", 1310720)]
    o += [salu("s_lshr_b32", "s70", sWAVE, 1), salu("s_mul_i32", "s68", sWAVE, 16 * 20480), salu("s_lshl_b32", "s69", "s70", 14),
          salu("s_add_u32", "s68", "s68", "s69"), salu("s_lshl_b32", "s69", "s70", 13), salu("s_sub_u32", "s69", 4096, "s69")]
    o += [salu("s_add_u32", "s70", "s3", "s4"), salu("s_and_b32", "s70", "s70", 3),
          salu("s_mov_b32", "s34", "0x%x" % (TBL2[0] & 0xffffffff)), salu("s_mov_b32", "s35", "0x%x" % (TBL2[0] >> 32))]
    for r in range(1, 4):
        o += [[scmp("s_cmp_eq_u32", "s70", r), salu("s_cselect_b32", "s34", "0x%x" % (TBL2[r] & 0xffffffff), "s34"),
               salu("s_cselect_b32", "s35", "0x%x" % (TBL2[r] >> 32), "s35")]]
    o += [salu("s_and_b32", "s70", "s34", 15), salu("s_mul_i32", "s70", "s70", 20480), salu("s_add_u32", "s70", "s70", "s68"),
          salu("s_bfe_u32", "s71", "s34", "0x40004"), salu("s_mul_i32", "s71", "s71", 20480), salu("s_add_u32", "s71", "s71", "s68")]
    for r, (st, pi, off) in PF2.items():
        o += [salu("s_mul_i32", r, "s69", pi), salu("s_add_u32", r, r, "s71" if st else "s70")]
        if off:
            o += [salu("s_add_u32", r, r, off)]
    return o


def groups_at(iss):
    order = {"W": 0, "X": 1, "K": 2, "V": 2}
    keys = sorted([k for k, u in U.items() if u["iss"] is not None and u["iss"] % 27 == iss % 27 and "even" not in u],
                  key=lambda k: (U[k]["land"] - U[k]["iss"], order[k[0]], k))
    return [g for k in keys for g in unit_dmas(k)]


def place_dmas(S, groups, cand, lo):
    ci = 0
    for pre, ds in groups:
        g = cand[ci]
        for n, p in enumerate(pre[:-1]):
            S.put(max(lo, g - len(pre) + n), p)
        for d in ds:
            d.m0 = pre[-1]
            S.put(cand[ci], d)
            ci += 1


def fix_m0(S):
    cur, prev = None, -2
    for g in sorted(S.fixed):
        for d in [x for x in S.fixed[g] if x.kind == "dma"]:
            if d.m0.text != cur:
                m = Ins(d.m0.text, "salu", rd=d.m0.rd, wr=d.m0.wr)
                if g - 1 > prev and not any(x.kind in ("bar", "branch") for x in S.fixed.get(g - 1, [])):
                    S.put(g - 1, m)
                else:
                    S.fixed[g].insert(S.fixed[g].index(d), m)
                cur = d.m0.text
            prev = g
        if any(x.kind == "label" for x in S.fixed[g]):
            cur = None


def tags_for(n):
    t = [k for k, u in U.items() if (u["land"] - n) % 27 == 0]
    if n == OPT["flagbar"]:
        t += ["ost", "jst"]
    if n == 2:
        t += ["J"]
    return t


def atomic_add(vdata, soff):
    return Ins(f"buffer_atomic_add {vdata}, {vFLG}, s[{S_FLG}:{S_FLG + 3}], {soff} offen sc1", "atomic",
               rd=[vdata, vFLG, soff] + regs("s", S_FLG, 4), tag="flag")


def poll_load(vdst, soff):
    return Ins(f"buffer_load_dword {vdst}, off, s[{S_FLG}:{S_FLG + 3}], {soff} sc1", "vld", rd=[soff] + regs("s", S_FLG, 4), wr=[vdst])


class Win:
    def __init__(self, rs, init):
        self.rs = rs
        self.cur = init

    def move(self, new):
        d = (new - self.cur) & 0xffffffff
        self.cur = new
        return [valu("v_add_u32", r, "0x%x" % d, r) for r in self.rs] if d else []


def plan_windows(addrs, span):
    want = []
    i = 0
    while i < len(addrs):
        lo = hi = addrs[i]
        j = i + 1
        while j < len(addrs) and max(hi, addrs[j]) - min(lo, addrs[j]) + span < 65536:
            lo, hi = min(lo, addrs[j]), max(hi, addrs[j])
            j += 1
        want += [lo] * (j - i)
        i = j
    return want


KWANT = plan_windows([U[("K", t)]["addr"] for t in range(16)], 4096)
VWANT = plan_windows([U[("V", t)]["addr"] for t in range(16)], 4096)
check_units(False)
check_units(True)


def pstore(v0, idx):
    return Ins(f"buffer_store_dwordx2 v[{v0}:{v0 + 1}], off, s[{S_PROF}:{S_PROF + 3}], {sPROF} offset:{8 * idx}", "vst",
               rd=[f"v{v0}", f"v{v0 + 1}", sPROF] + regs("s", S_PROF, 4))


def prof_stamp(idx, v0=252):
    if not OPT["prof"]:
        return []
    return [raw("s_memtime s[76:77]", "other", wr=["s76", "s77"]),
            raw("s_memrealtime s[78:79]", "other", wr=["s78", "s79"]),
            raw("s_waitcnt lgkmcnt(0)", "drainlg"),
            valu("v_mov_b32", f"v{v0}", "s76"),
            valu("v_mov_b32", f"v{v0 + 1}", "s78"),
            pstore(v0, idx)]


def bar_seq(tags, idx):
    if OPT["prof"] < 2:
        return [needboth(tags), barrier()] + prof_stamp(idx)
    return [raw("s_memtime s[58:59]", "other", wr=["s58", "s59"]), raw("s_waitcnt lgkmcnt(0)", "drainlg"),
            needboth(tags), barrier(),
            raw("s_memtime s[76:77]", "other", wr=["s76", "s77"]),
            raw("s_memrealtime s[78:79]", "other", wr=["s78", "s79"]),
            raw("s_waitcnt lgkmcnt(0)", "drainlg"), salu("s_sub_u32", "s76", "s76", "s58"),
            valu("v_mov_b32", "v252", "s76"), valu("v_mov_b32", "v253", "s78"), pstore(252, idx)]


def a_read(i, dt, ks, t):
    p, xy = dt >> 1, dt & 1
    off = U[("W", i, p >> 1)]["addr"] + ks * 4096 + t * 512 + xy * 8
    return ds_read("ds_read_b64_tr_b16", ("a", ABUF[dt % 2] + 4 * ks + 2 * t), 2, wA[p & 1], off)


def first_reads(i):
    ax = U[("X", i)]["addr"] - XS[0]

    def A(ks, t):
        return a_read(i, 0, ks, t)

    def B(qt, ks):
        return ds_read("ds_read_b128", ("a", bx(qt, ks)), 4, xA[ks], ax + qt * 2048)
    return [A(0, 0), A(0, 1), B(0, 0), A(1, 0), A(1, 1), B(0, 1)] + [B(qt, ks) for qt in range(1, 6) for ks in range(2)]


def k_read(t, j):
    kt, ks = j >> 2, j & 3
    return ds_read("ds_read_b128", ("a", kf(kt, ks)), 4, kA[ks], U[("K", t)]["addr"] - KWANT[t] + kt * 4096)


def epilogue_groups(tmp, dst=None, vaddr=None):
    groups = []
    n = 0
    for T in range(3):
        for ph in range(2):
            for qs in range(2):
                for pl in range(2):
                    qt = 2 * T + qs
                    tb = tmp + 4 * (n % 3)
                    src = oacc(qt, 4 * ph + 2 * pl)
                    db = tb if dst is None or dst(n) is None else dst(n)
                    rd = [valu("v_accvgpr_read_b32", f"v{tb + i}", f"a{src + i}") for i in range(8)]
                    mu = [valu("v_mul_f32", f"v{tb + i}", vR[qt], f"v{tb + i}") for i in range(8)]
                    cv = [valu("v_cvt_pk_bf16_f32", f"v{db + i}", f"v{tb + 2 * i}", f"v{tb + 2 * i + 1}") for i in range(4)]
                    pre = [salu("s_add_u32", sE, sO, ph * 12288 + T * 4096)] if qs == 0 and pl == 0 else []
                    imm = qs * 2048 + pl * 1024
                    groups.append((rd + mu + cv, pre, vstore(("v", db), 4, vaddr or vL16, S_OST, sE, imm, tag="ost", flags=SC1), imm))
                    n += 1
    return groups


def conv_items(T, ps, packed=()):
    out = []
    for p in ps:
        for qs in range(2):
            R, Dd = qacc(p, 0, 2 * T + qs), qf(2 * T + qs, p)
            if OPT["tmax"]:
                pass
            elif p in packed:
                out += [(p, qs, valu("v_pk_mul_f32", f"v[{R + x}:{R + x + 1}]", f"v[{R + x}:{R + x + 1}]", "s[86:87]" if False else vC2)) for x in range(0, 8, 2)]
            else:
                out += [(p, qs, valu("v_mul_f32", f"v{R + x}", sC, f"v{R + x}")) for x in range(8)]
            out += [(p, qs, valu("v_cvt_pk_bf16_f32", f"v{Dd + x}", f"v{R + 2 * x}", f"v{R + 2 * x + 1}")) for x in range(4)]
    return out


def touch_code(S, g, base, st, va, vd):
    S.put(g, salu("s_add_u32", st, sCP, base))
    S.put(g + 1, salu("s_min_u32", st, st, "L_endcode-L_pc-256"))
    S.put(g + 2, valu("v_and_b32", va, 16, vL16), valu("v_lshlrev_b32", va, 3, va))
    S.put(g + 3, valu("v_add_u32", va, st, va))
    return Ins(f"global_load_dword {vd}, {va}, s[96:97]", "vld", rd=[va, "s96", "s97"], wr=[vd])


def q_phase(second):
    S = Sched()
    extra, mid = {}, {}
    if not second:
        jp = OPT["jpro"]
        if jp == 0:
            extra[0] = [g for jj in range(5) for g in unit_dmas(("J", jj), sE)]
            extra[1] = [g for jj in range(5, 10) for g in unit_dmas(("J", jj), sE)]
        elif jp < 10:
            extra[1] = [g for jj in range(jp, 10) for g in unit_dmas(("J", jj), sE)]
        kv = [unit_dmas(k, sE) for k in [("K", 0), ("V", 0), ("K", 1)]]
        if OPT["kplan"] == 0:
            extra[4], extra[5], extra[6] = kv
        elif OPT["kplan"] == 1:
            extra[7], mid[8] = kv[0], kv[1]
            extra[8] = kv[2]
        elif OPT["kplan"] == 2:
            extra[4], extra[7], mid[8] = kv
        elif OPT["kplan"] == 4:
            extra[5], extra[6], extra[7] = kv
        elif OPT["kplan"] == 5:
            extra[4], extra[6], extra[7] = kv
        elif OPT["kplan"] == 3:
            extra[5], extra[7], mid[8] = kv
    for i in range(10):
        q0 = S.n()
        for dt in range(8):
            for qt in range(6):
                for ks in range(2):
                    acc = ("v", qacc(dt >> 1, dt & 1, qt))
                    S.add(mfma(16, acc, ("a", ABUF[dt % 2] + 4 * ks), ("a", bx(qt, ks)), None if (i == 0 and ks == 0) else acc))
        for dt in range(1, 8):
            gaps = [4, 5, 6, 7] if dt == 1 else [0, 2, 3, 4]
            for n, (ks, t) in enumerate([(0, 0), (0, 1), (1, 0), (1, 1)]):
                S.put(q0 + 12 * (dt - 1) + gaps[n], a_read(i, dt, ks, t))
        S.put(q0 + 35, needboth(tags_for(i - 0.5)), barrier())
        S.put(q0 + 83, *bar_seq(tags_for(i), 2 + i))
        if i < 9:
            for n, r in enumerate(first_reads(i + 1)):
                S.put(q0 + 84 + n, r)
        else:
            kw = Win(kA, KWANT[15])
            mv = kw.move(KWANT[0])
            S.put(q0 + 80, *mv[:2])
            S.put(q0 + 82, *mv[2:])
            for j in range(8):
                S.put(q0 + 84 + j, k_read(0, j))
        if i <= 7:
            for n, x in enumerate([salu("s_bfe_u32", sXS, sQT, "0x%x" % (0x40000 + 4 * i)), salu("s_lshl_b32", sWS, sXS, 19),
                                   salu("s_add_u32", sWS, sWS, sWQ), salu("s_lshl_b32", sXS, sXS, 7), salu("s_add_u32", sXS, sXS, sX),
                                   salu("s_add_u32", sW1, sWS, 128)]):
                S.put(q0 + 26 + n, x)
        early = groups_at(i - 1)
        place_dmas(S, early + mid.get(i, []), [q0 + g for g in ((9, 17, 25, 33) if OPT["qsp"] and i == 9 else (9, 13, 17, 21, 25, 29, 31, 33))], q0)
        late = groups_at(i - 0.5) + extra.get(i, [])
        if i == 8 and 8 in extra:
            late = extra[8] + groups_at(i - 0.5)
        cand = [q0 + 37 + 4 * x for x in range(12)]
        nd = sum(len(g[1]) for g in late)
        if nd > 12:
            cand = sorted(cand + [q0 + 67, q0 + 71, q0 + 75, q0 + 79][:nd - 12])
        if OPT["qsp"] and i >= 8 and nd:
            allowed = [37, 41, 43, 45, 47, 49, 53, 55, 57, 59, 61, 65, 67, 69, 71, 73, 77, 79, 81]
            cand = [q0 + allowed[round(x * (len(allowed) - 1) / max(nd - 1, 1))] for x in range(nd)]
        place_dmas(S, late, cand, q0 + 35)
    if not second:
        for jj in range(10):
            q0 = 96 * 3
            if jj == 8:
                S.put(q0 + 65, valu("v_add_u32", vJ, D[9] - D[4] - 2 * 16384, vJ))
            for tt in range(2):
                g = q0 + [10, 11, 18, 19, 22, 23, 30, 31, 34, 42, 43, 46, 47, 54, 55, 58, 66, 67, 70, 71][2 * jj + tt]
                S.put(g, ds_read("ds_read_b64_tr_b16", ("a", 4 * jj + 2 * tt), 2, vJ, (jj >> 2) * 16384 + (jj & 3) * 1024 + tt * 8192))
            nq, pair = divmod(2 * jj, 5)
            g = 96 * (4 + jj // 3) + [19, 25, 31][jj % 3]
            if OPT["jlate"]:
                g = 96 * (3 + jj // 2) + ([79, 82] if (3 + jj // 2) in extra else [77, 81])[jj % 2]
            S.put(g - 1, salu("s_add_u32", sJ, sWOX if pair == 4 else sWOD, nq * 1310720 + pair * 4096))
            S.put(g, vstore(("a", 4 * jj), 4, vL16, S_WOT, sJ, 0, tag="jst", flags=SC1))
    if not second and OPT["ctq"]:
        q0 = 96 * OPT["ctq"]
        S.put(q0 + 33, touch_code(S, q0 + 18, "L_att-L_pc", sJ, vT[0], vT[1]))
    if second:
        eg = epilogue_groups(EPI)
        ep = []
        for i in range(8):
            for g in eg[3 * i:3 * i + 3]:
                ep += [(x, 96 * i, None) for x in g[0]]
            for g in eg[3 * i:3 * i + 3]:
                ep += [(x, 96 * i + OPT["stg"], None) for x in g[1] + [g[2]]]
        ep[-1] = (ep[-1][0], ep[-1][1], 96 * 9 - 1)
        S.stream(ep)
        S.put(96 * 9 + 2, salu("s_add_u32", sO, sO, 8 * 12288))
    q0 = 96 * 9
    g = q0 + 2
    for x in ([salu("s_add_u32", sWQ, sWQ, 512)] + set_pf_proj(True) + [salu("s_add_u32", "s68", "s3", "s4"), salu("s_and_b32", "s68", "s68", 3)] + by_role(sQT, "s68", TBLQ) if not second else set_pf_out()):
        S.put(g, *(x if isinstance(x, list) else [x]))
        g += 1 if g < q0 + 94 else 0
        while g in (q0 + 35, q0 + 83) or any(x.kind == "salu" for x in S.fixed.get(g, [])):
            g += 1
    if second:
        S.stream([(valu("v_mov_b32", r, vL16), q0 + 2, None) for r in vW + vX])
    if not OPT["tmax"]:
        S.put(q0 + 7, valu("v_mov_b32", "v242", sC), valu("v_mov_b32", "v243", sC))
    S.stream([(x, min(q0 + 12 * (2 * p + 1) + 2 * qs + 1 + 2, q0 + 95), None) for p, qs, x in conv_items(0, range(4))])
    if OPT["tmax"]:
        for T in (1, 2):
            S.stream([(x, q0 + 12 * (2 * p + 1) + 4 * T + 2 * qs + 1 + 2, None) for p, qs, x in conv_items(T, range(3))])
    S.put(-1, *prof_stamp(1))
    fix_m0(S)
    return S.finish(lead=first_reads(0), report=OPT["report"])


def lspread(qt, tmp):
    l = f"v{lacc(qt)}"
    return [valu("v_mov_b32", tmp, l), perm("v_permlane32_swap_b32", tmp, l), valu("v_add_f32", l, l, tmp),
            valu("v_mov_b32", tmp, l), perm("v_permlane16_swap_b32", tmp, l), valu("v_add_f32", l, l, tmp)]


def interleave(a, b):
    return [x for p in zip(a, b) for x in p]


def lcheck():
    l = [f"v{lacc(qt)}" for qt in range(6)]
    if OPT["tmax"] == 2:
        return [valu("v_add_f32", vT[0], l[0], l[1]), valu("v_add_f32", vT[1], l[2], l[3]), valu("v_add_f32", vT[0], vT[0], l[4]),
                valu("v_add_f32", vT[1], vT[1], l[5]), valu("v_add_f32", vT[0], vT[0], vT[1]), valu("v_cmp_ngt_f32", "vcc", sHI, vT[0])]
    if OPT["tmax"]:
        x = [f"v{mrun(qt)}" for qt in range(6)]
        return ([valu("v_fma_f32", x[q], x[q], sC, f"v{mneg(q)}") for q in range(6)] +
                [valu("v_add_f32", vT[0], l[0], l[1]), valu("v_max3_f32", vT[1], x[0], x[1], x[2]),
                 valu("v_add_f32", vT[0], vT[0], l[2]), valu("v_max3_f32", vT[1], vT[1], x[3], x[4]),
                 valu("v_add_f32", vT[0], vT[0], l[3]), valu("v_add_f32", vT[0], vT[0], l[4]),
                 valu("v_max_f32", vT[1], vT[1], x[5]), valu("v_add_f32", vT[0], vT[0], l[5]),
                 valu("v_cmp_ngt_f32", "s[56:57]", sLO, vT[1]),
                 valu("v_cmp_ngt_f32", "vcc", sHI, vT[0]),
                 salu("s_or_b64", "vcc", "vcc", "s[56:57]")])
    return [valu("v_add_f32", vT[0], l[0], l[1]), valu("v_min3_f32", vT[1], l[0], l[1], l[2]),
            valu("v_add_f32", vT[0], vT[0], l[2]), valu("v_min3_f32", vT[1], vT[1], l[3], l[4]),
            valu("v_add_f32", vT[0], vT[0], l[3]), valu("v_add_f32", vT[0], vT[0], l[4]),
            valu("v_min_f32", vT[1], vT[1], l[5]), valu("v_add_f32", vT[0], vT[0], l[5]),
            valu("v_cmp_nlt_f32", "s[56:57]", sLO, vT[1]),
            valu("v_cmp_ngt_f32", "vcc", sHI, vT[0]),
            salu("s_or_b64", "vcc", "vcc", "s[56:57]")]


def a_phase(last):
    S = Sched()
    qk = [[0] * 3 for _ in range(16)]
    pv = [[0] * 3 for _ in range(16)]

    def QK(t, T):
        qk[t][T] = S.n()
        for qs in range(2):
            for kt in range(2):
                s = ("v", sreg(2 * T + qs) + 4 * kt)
                for ks in range(4):
                    S.add(mfma(16, s, ("a", kf(kt, ks)), ("v", qf(2 * T + qs, ks)), None if ks == 0 else s))

    def PV(t, T):
        pv[t][T] = S.n()
        sums = []
        for qs in range(2):
            l = ("v", lacc(2 * T + qs))
            sums.append(mfma(16, l, ("v", ONES), ("v", sreg(2 * T + qs)), None if t == 0 else l))
        if t == 15:
            for m in sums:
                S.add(m)
        for dt in range(8):
            for qs in range(2):
                o = ("a", oacc(2 * T + qs, dt))
                S.add(mfma(16, o, ("a", vf(dt)), ("v", sreg(2 * T + qs)), None if t == 0 else o))
        if t < 15:
            for m in sums:
                S.add(m)

    for t in range(16):
        QK(t, 0)
        if t:
            PV(t - 1, 1)
        QK(t, 1)
        if t:
            PV(t - 1, 2)
        QK(t, 2)
        PV(t, 0)
    PV(15, 1)
    PV(15, 2)
    bar = {}
    kw, vw = Win(kA, KWANT[0]), Win(vA, VWANT[0])
    for t in range(16):
        g0 = pv[t - 1][2] if t else qk[0][1]
        bar[10 + t] = g0 - 1
        S.put(g0 - 1, *bar_seq(tags_for(10 + t), 12 + t))
        if t == 13:
            S.put(g0 - 1, scmp("s_cmp_eq_u32", sIT, 1), raw("s_cbranch_scc1 L_tail2", "branch", rd=["scc"]), label("L_CUT"))
        for n, m in enumerate(vw.move(VWANT[t])):
            S.put(g0 - 14 + 3 * (n // 2), m)
        for dt in range(8):
            for tt in range(2):
                S.put(g0 + 4 * dt + 1 + 2 * tt,
                      ds_read("ds_read_b64_tr_b16", ("a", vf(dt) + 2 * tt), 2, vA[dt], U[("V", t)]["addr"] - VWANT[t] + tt * 4096))
        if t < 15:
            for n, m in enumerate(kw.move(KWANT[t + 1])):
                S.put((qk[t][0] + 9 if t else qk[0][2] + 2) + (3 if t else 2) * (n // 2), m)
            for j in range(8):
                S.put(qk[t][2] + [8, 10, 12, 14, 17, 19, 21, 23][j], k_read(t + 1, j))
            if OPT["kbar"]:
                S.put(qk[t][2] + 6, needvm(tags_for(10.5 + t)), barrier())
            if OPT["kbar"] >= 2 and t:
                S.put(pv[t - 1][1] - 1, barrier())
            if OPT["kbar"] >= 3 and t:
                S.put(qk[t][0] - 1, barrier())
    if not last:
        S.stream([(m, pv[15][0], None) for m in vw.move(VWANT[0])])
    bar[26] = pv[15][1] - 1
    S.put(bar[26], *(prof_stamp(28) if last else bar_seq(tags_for(26), 28)))
    fr = [] if last else first_reads(0)
    for n, r in enumerate(fr[:10]):
        S.put(pv[15][1] + [1, 3, 5, 7, 9, 11, 13, 15, 16, 17][n], r)
    for n, r in enumerate(fr[10:]):
        S.put(pv[15][2] + 3 + 2 * n, r)
    stream = sorted([k for k, u in U.items() if "even" in u], key=lambda k: U[k]["even"])
    nk = len(stream)
    stream += [("P", 0), ("P", 1), ("P", 2)] if last else [("K", 0), ("V", 0), ("K", 1)]
    for e, key in enumerate(stream):
        cand = []
        for m in range(4):
            g = int(kpos(4 * e + m)) if e < nk else max(int(kpos(4 * e + m)), int(2 + 13.4 * (4 * (e - nk + 26) + (0 if OPT["kin"] else m))))
            while S.used(g, False) > 0 or g - 1 in bar.values():
                g += 1
            cand.append(g)
        lo = bar.get(U[key]["iss"] if e < nk else (23, 24, 24)[e - nk], -2) + 1
        assert cand[0] > lo + (3 if e >= nk else 0), (key, cand, lo)
        if e == nk:
            S.put(cand[0] - 5, salu("s_add_u32", sKV, sKV, 262144))
        place_dmas(S, unit_dmas(key, sE if e >= nk else None), cand, lo)
    for n in range(24, 27):
        groups = groups_at(n - 1)
        nd = sum(len(g[1]) for g in groups)
        a, b = bar[n - 1] + 5, bar[n] - 1
        cand = []
        for x in range(nd):
            g = a + (b - a) * x // nd
            while any(i.kind in MEMK for k in (g - 1, g, g + 1) for i in S.fixed.get(k, []) if k == g or i.kind == "dma") or g in cand:
                g += 1
            cand.append(g)
        assert cand[-1] < bar[n]
        place_dmas(S, groups, cand, bar[n - 1] + 1)
    if OPT["xpace"]:
        for t in range(1, 14):
            for T in range(3):
                S.put(pv[t][T] + 17, nop(OPT["xpace"]))
                S.put(qk[t][T] + 15, nop(OPT["xpace"]))
    g = bar[OPT["flagbar"]] + 2
    S.put(g - 1, scmp("s_cmp_eq_u32", sIT, 0), salu("s_cselect_b32", sE, sFB, sFG), salu("s_cselect_b32", sJ, "0x10000", 1))
    S.put(g + 1, valu("v_mov_b32", f"v{EPI}", sJ))
    S.put(g + 4, atomic_add(f"v{EPI}", sE))
    g = qk[12 - OPT['t23']][0]
    S.put(g + 1, scmp("s_cmp_eq_u32", sIT, 1), salu("s_cselect_b32", sE, sFB, "0x1000"))
    S.put(g + 3, poll_load(vPOLL[1], sE))
    g = qk[13 - OPT['t23']][0]
    S.put(g + 1, salu("s_lshl_b32", sWANT, sIT, 23), valu("v_readfirstlane_b32", sQ, vPOLL[1]))
    S.put(g + 4, scmp("s_cmp_lt_u32", sQ, sWANT), raw("s_cbranch_scc1 L_spin3", "branch", rd=["scc"]), label("L_spin3_back"))
    if last:
        g = bar[25] + 2
        S.put(g, poll_load(vPOLL[0], sFG))
        su = [salu("s_lshr_b32", "s84", "s4", 2), salu("s_mul_i32", "s7", "s3", O_GRP), salu("s_mul_i32", "s58", "s84", 786432),
              salu("s_add_u32", "s7", "s7", "s58"), [salu("s_add_u32", f"s{S2B}", "s90", "s7"), salu("s_addc_u32", "s59", "s91", 0)],
              salu("s_and_b32", f"s{S2B + 1}", "s59", "0xffff"), salu("s_mov_b32", f"s{S2B + 2}", 786432),
              salu("s_mul_i32", sBB, sWAVE, 16 * 12288), salu("s_mov_b64", f"s[{TB}:{TB + 1}]", "s[34:35]")] + next_off(sB2, TB, sBB, 12288)
        su += [salu("s_and_b32", "s58", sWAVE, 1), salu("s_mul_i32", "s58", "s58", 3 * 2048), salu("s_sub_u32", "s59", 3 * 2048, "s58"),
               salu("s_lshr_b32", "s86", sWAVE, 1), salu("s_lshl_b32", "s86", "s86", 12), salu("s_add_u32", "s58", "s58", "s86"),
               salu("s_add_u32", "s59", "s59", "s86"), salu("s_sub_u32", "s86", 2048, "s86")]
        g += 1
        for x in su:
            while any(i.kind == "salu" for i in S.fixed.get(g, [])):
                g += 1
            S.put(g, *(x if isinstance(x, list) else [x]))
            g += 1
        va = [valu("v_add_u32", V2B[0], "s58", vL16), valu("v_add_u32", V2B[3], "s59", vL16)]
        for q in (1, 2):
            va += [valu("v_add_u32", V2B[q], "s86", V2B[q - 1]), valu("v_add_u32", V2B[3 + q], "s86", V2B[2 + q])]
        S.stream([(x, g, pv[15][1] - 3) for x in va])
        g = pv[15][0] + 12
        S.put(g, valu("v_readfirstlane_b32", sQ, vPOLL[0]))
        S.put(g + 3, salu("s_and_b32", sQ, sQ, "0xff"), scmp("s_cmp_lt_u32", sQ, 8),
              raw("s_cbranch_scc1 L_spin1", "branch", rd=["scc"]), label("L_spin1_back"))
        for n, l in enumerate([l for qi in range(6) for l in k2_loads_B(0, qi)]):
            S.put(pv[15][1] + 1 + 2 * n if n < 8 else pv[15][2] + 3 + 3 * (n - 8), l)
    for n, t in enumerate([int(x) for x in OPT["cta"].split(",") if x]):
        g = pv[t][0]
        while any(S.fixed.get(k) for k in range(g, g + 6)):
            g += 1
        S.put(g + 5, touch_code(S, g, f"L_att-L_pc+{(n + 1) * 12288}", sJ, f"v{EPI + 4}", f"v{EPI + 5}"))
    if OPT["codepf2"]:
        g = qk[OPT["codepf2"]][0] - 6
        S.put(g - 2, salu("s_mul_i32", sJ, sIT, "L_tail2-L_tail1"))
        S.put(g - 1, salu("s_add_u32", sJ, sJ, "L_tail1-L_pc"))
        S.put(g, salu("s_add_u32", sJ, sJ, sCP))
        S.put(g + 1, salu("s_min_u32", sJ, sJ, "L_endcode-L_pc-256"))
        S.put(g + 2, valu("v_and_b32", f"v{EPI + 2}", 16, vL16), valu("v_lshlrev_b32", f"v{EPI + 2}", 3, f"v{EPI + 2}"))
        S.put(g + 3, valu("v_add_u32", f"v{EPI + 2}", sJ, f"v{EPI + 2}"))
        S.put(g + 5, Ins(f"global_load_dword v{EPI + 3}, v{EPI + 2}, s[96:97]", "vld", rd=[f"v{EPI + 2}", "s96", "s97"], wr=[f"v{EPI + 3}"]))
    for T in (1, 2):
        if OPT["pk"] and not OPT["tmax"]:
            nfree = OPT["nfree"] if T == 1 else 0
            S.stream([(x, -1, None) for p, qs, x in conv_items(T, range(nfree))] +
                     [(x, qk[0][T] - 1, qk[0][T] - 1) for p, qs, x in conv_items(T, range(nfree, 4), packed=range(4))])
        else:
            c = [(x, -1, None) for p, qs, x in conv_items(T, range(3 if OPT["tmax"] else 0, 4))]
            c[-1] = (c[-1][0], -1, qk[0][T] - 1)
            S.stream(c)
    fin = []
    if OPT["one1"]:
        for T in range(3):
            fin += [(x, [pv[15][1] + 12, pv[15][2], pv[15][2] + 4][T], None) for x in interleave(lspread(2 * T, f"v{lacc(2 * T) + 1}"), lspread(2 * T + 1, f"v{lacc(2 * T + 1) + 1}"))]
    S.stream(fin + [(x, pv[15][2] + 4, None) for x in lcheck()])
    units = []
    for t in range(16):
        for qt in range(6):
            s = sreg(qt)
            T, qs = qt >> 1, qt & 1
            dl = pv[t][T] + qs - 2
            units.append(dict(e=qk[t][T] + 8 * qs + 7 + 2,
                              exps=[valu("v_exp_f32", f"v{s + r}", f"v{s + r}") for r in range(8)],
                              cvts=[(valu("v_cvt_pk_bf16_f32", f"v{s + r}", f"v{s + 2 * r}", f"v{s + 2 * r + 1}"), 2 * r + 2, dl) for r in range(4)]))
    if OPT["tmax"]:
        for n, u in enumerate(units):
            t, qt = divmod(n, 6)
            s, m, mn = sreg(qt), f"v{mrun(qt)}", f"v{mneg(qt)}"
            fma = [valu("v_fma_f32", f"v{s + r}", f"v{s + r}", sC, mn) for r in range(8)]
            if t == 0:
                pre = [valu("v_max3_f32", m, f"v{s}", f"v{s + 1}", f"v{s + 2}"), valu("v_max3_f32", mn, f"v{s + 3}", f"v{s + 4}", f"v{s + 5}"),
                       valu("v_max3_f32", m, m, f"v{s + 6}", f"v{s + 7}"), valu("v_max_f32", m, m, mn)]
                for op in ("v_permlane32_swap_b32", "v_permlane16_swap_b32"):
                    pre += [valu("v_mov_b32", mn, m), perm(op, mn, m), valu("v_max_f32", m, m, mn)]
                pre += [valu("v_mul_f32", mn, sNC, m)] + fma
                need = [len(pre) - 7 + r for r in range(8)]
            else:
                pre, need = [], []
                for r in range(0, 8, 2):
                    if OPT["tmax"] == 1:
                        pre += [valu("v_max3_f32", m, m, f"v{s + r}", f"v{s + r + 1}")]
                    pre += [fma[r], fma[r + 1]]
                    need += [len(pre) - 1, len(pre)]
            u["pre"] = pre
            u["exps"] = list(zip(u["exps"], need))
        def xok(g):
            n = OPT["xhi"] if g < qk[2][0] or g >= qk[13][0] else OPT["xnum"]
            return (g * n) % 100 < n
        S.packers.append(SoftmaxPacker2(units,
                                        lambda g: 1 if S.used(g, False) < 2 and xok(g) else 0))
    else:
        S.packers.append(SoftmaxPacker(units))
    fix_m0(S)
    return S.finish(lead=[k_read(0, j) for j in range(8)], report=OPT["report"])


def slow_path():
    o = [label("L_slow"), drain(), nop(16)]
    KF = [EPI + 4 * k for k in range(4)]
    VFR = 56
    vM = [f"v{120 + q}" for q in range(6)]
    vKo, vVo, vt, vu = "v60", "v61", "v62", "v63"
    o += [valu("v_lshrrev_b32", vt, 4, vL16), valu("v_and_b32", vu, 15, vt), valu("v_lshrrev_b32", vt, 4, vt),
          valu("v_lshlrev_b32", vKo, 8, vu), valu("v_lshl_add_u32", vKo, vt, 4, vKo),
          valu("v_lshlrev_b32", vVo, 10, vt), valu("v_lshl_add_u32", vVo, vu, 1, vVo)]
    o += [salu("s_sub_u32", "s58", sKV, 262144)]
    o += [valu("v_mov_b32", m, "0xff800000") for m in vM]

    def scores():
        r = []
        for kt in range(2):
            r += [salu("s_add_u32", "s61", "s59", kt * 4096)]
            r += [vload(("v", KF[ks]), 4, vKo, S_K, "s61", 64 * ks) for ks in range(4)] + [drain()]
            for qt in range(6):
                s = ("v", sreg(qt) + 4 * kt)
                r += [mfma(16, s, ("v", KF[ks]), ("v", qf(qt, ks)), None if ks == 0 else s) for ks in range(4)]
            r += [nop(16)]
        return r
    o += [salu("s_mov_b32", "s59", "s58"), salu("s_mov_b32", "s60", 16), label("L_slow1")] + scores()
    for qt in range(6):
        o += [valu("v_max3_f32", vM[qt], vM[qt], f"v{sreg(qt) + r}", f"v{sreg(qt) + r + 1}") for r in range(0, 8, 2)]
    o += [salu("s_add_u32", "s59", "s59", 8192), salu("s_sub_u32", "s60", "s60", 1), scmp("s_cmp_lg_u32", "s60", 0),
          raw("s_cbranch_scc1 L_slow1", "branch", rd=["scc"])]
    for qt in range(6):
        for op in ("v_permlane32_swap_b32", "v_permlane16_swap_b32"):
            o += [valu("v_mov_b32", vt, vM[qt]), nop(2), perm(op, vt, vM[qt]), valu("v_max_f32", vM[qt], vM[qt], vt)]
        o += [valu("v_mov_b32", f"v{lacc(qt) + r}", 0) for r in range(4)]
    o += [valu("v_accvgpr_write_b32", f"a{r}", 0) for r in range(192)]
    o += [salu("s_mov_b32", "s59", "s58"), salu("s_mov_b32", "s60", 16), label("L_slow2")] + scores()
    for qt in range(6):
        s = sreg(qt)
        o += [valu("v_sub_f32", f"v{s + r}", f"v{s + r}", vM[qt]) for r in range(8)]
        if OPT["tmax"]:
            o += [valu("v_mul_f32", f"v{s + r}", sC, f"v{s + r}") for r in range(8)]
        o += [valu("v_exp_f32", f"v{s + r}", f"v{s + r}") for r in range(8)]
        o += [valu("v_cvt_pk_bf16_f32", f"v{s + r}", f"v{s + 2 * r}", f"v{s + 2 * r + 1}") for r in range(4)]
    o += [salu("s_add_u32", "s57", "s59", 4096)]
    for dt in range(8):
        for j in range(8):
            o += [vload(("v", 184 + j), 1, vVo, S_V, "s57" if j >= 4 else "s59", (j & 3) * 256 + 32 * dt, op="buffer_load_ushort")]
        o += [drain()]
        o += [valu("v_lshl_or_b32", f"v{VFR + r}", f"v{185 + 2 * r}", 16, f"v{184 + 2 * r}") for r in range(4)]
        o += [mfma(16, ("a", oacc(qt, dt)), ("v", VFR), ("v", sreg(qt)), ("a", oacc(qt, dt))) for qt in range(6)]
        o += [nop(8)]
    o += [mfma(16, ("v", lacc(qt)), ("v", ONES), ("v", sreg(qt)), ("v", lacc(qt))) for qt in range(6)] + [nop(16)]
    o += [salu("s_add_u32", "s59", "s59", 8192), salu("s_sub_u32", "s60", "s60", 1), scmp("s_cmp_lg_u32", "s60", 0),
          raw("s_cbranch_scc1 L_slow2", "branch", rd=["scc"])]
    o += [nop(16)]
    if OPT["one1"]:
        for qt in range(6):
            o += lspread(qt, vt)
    o += [drain(), scmp("s_cmp_eq_u32", sIT, 1), raw("s_cbranch_scc1 L_back2", "branch", rd=["scc"]), raw("s_branch L_back1", "branch")]
    return o


def srd(base, lo, hi, nbytes):
    return [salu("s_mov_b32", f"s{base}", lo), salu("s_and_b32", f"s{base + 1}", hi, "0xffff"),
            salu("s_mov_b32", f"s{base + 2}", nbytes), salu("s_mov_b32", f"s{base + 3}", "0x20000")]


def decode_wg():
    return [salu("s_and_b32", "s3", "s2", 7), salu("s_lshr_b32", "s4", "s2", 6), salu("s_lshl_b32", "s3", "s3", 2),
            salu("s_add_u32", "s3", "s3", "s4"), salu("s_lshr_b32", "s4", "s2", 3), salu("s_and_b32", "s4", "s4", 7),
            salu("s_lshr_b32", "s5", "s3", 4), salu("s_and_b32", "s6", "s3", 15)]


def code_touch():
    return [salu("s_lshr_b32", "s68", "s2", 3), salu("s_lshl_b32", "s68", "s68", 11),
            valu("v_lshrrev_b32", "v11", 6, "v0"), valu("v_and_b32", "v12", 3, "v0"), valu("v_lshlrev_b32", "v11", 9, "v11"),
            valu("v_lshl_add_u32", "v11", "v12", 7, "v11"), valu("v_add_u32", "v11", "s68", "v11")] + (
            [valu("v_min_u32", "v11", "L_att-L_pc", "v11")] if OPT["cplim"] else []) + [
            Ins("global_load_dword v253, v11, s[96:97]", "vld", rd=["v11", "s96", "s97"], wr=["v253"])]


def kv_patterns():
    i, a, b, c = "v1", "v2", "v3", "v4"
    o = [valu("v_lshrrev_b32", a, 4, i), valu("v_and_b32", b, 15, i),
         valu("v_xor_b32", c, a, b), valu("v_lshlrev_b32", c, 4, c), valu("v_lshl_add_u32", vK[0], a, 8, c)]
    o += [valu("v_xor_b32", vK[m], m << 6, vK[0]) for m in range(1, 4)]
    o += [valu("v_lshlrev_b32", "v5", 1, a), valu("v_xor_b32", "v5", "v5", b), valu("v_lshlrev_b32", "v5", 4, "v5"),
          valu("v_lshl_add_u32", vV[0], a, 8, "v5"), valu("v_xor_b32", vV[1], 128, vV[0])]
    return o


sT2 = "s101"


def prologue():
    o = [scmp("s_cmp_ge_u32", "s2", 256), raw("s_cbranch_scc1 L_end", "branch", rd=["scc"])]
    if OPT["dbgt"]:
        o += [raw("s_memrealtime s[72:73]", wr=["s72", "s73"])]
    o += [salu("s_bfe_u32", "s5", "s2", "0x10002"), salu("s_mul_i32", "s7", "s5", 40), salu("s_add_u32", "s78", "s0", "s7"), salu("s_addc_u32", "s79", "s1", 0),
          raw("s_load_dwordx8 s[56:63], s[78:79], 0", wr=regs("s", 56, 8)),
          raw("s_load_dwordx2 s[94:95], s[78:79], 32", wr=["s94", "s95"]),
          raw("s_load_dwordx4 s[88:91], s[0:1], 88", wr=regs("s", 88, 4)),
          raw("s_load_dwordx2 s[92:93], s[0:1], 80", wr=["s92", "s93"])]
    o += [raw("s_getpc_b64 s[96:97]", wr=["s96", "s97"]), label("L_pc")]
    if OPT["codepf"] == 2:
        o += code_touch()
    o += decode_wg()
    i, a, b, c = "v1", "v2", "v3", "v4"
    o += [valu("v_lshrrev_b32", a, 6, "v0"), valu("v_and_b32", i, 63, "v0"),
          valu("v_readfirstlane_b32", sWAVE, a), valu("v_lshlrev_b32", vL16, 4, i)]
    o += [valu("v_lshrrev_b32", a, 4, i), valu("v_and_b32", b, 7, i), valu("v_lshrrev_b32", "v5", 3, i),
          valu("v_and_b32", c, 1, a), valu("v_lshlrev_b32", c, 1, c), valu("v_xor_b32", c, c, b), valu("v_lshlrev_b32", c, 4, c),
          valu("v_lshl_add_u32", vW[0], "v5", 13, c),
          valu("v_xor_b32", vW[1], 64, vW[0]), valu("v_add_u32", vW[1], 64512, vW[1]),
          valu("v_add_u32", vW[2], 2 * 64512, vW[0]), valu("v_add_u32", vW[3], 2 * 64512, vW[1])]
    o += [valu("v_xor_b32", c, a, b), valu("v_lshlrev_b32", c, 4, c), valu("v_mul_u32_u24", "v6", 1280, "v5"),
          valu("v_add_u32", vX[0], "v6", c),
          valu("v_xor_b32", vX[1], 64, vX[0]), valu("v_add_u32", vX[1], 9216, vX[1]),
          valu("v_add_u32", vX[2], 2 * 9216, vX[0]), valu("v_add_u32", vX[3], 2 * 9216, vX[1])]
    o += [salu("s_lshr_b32", "s70", sWAVE, 1), salu("s_and_b32", "s71", sWAVE, 1),
          salu("s_lshl_b32", sW4K, sWAVE, 12), salu("s_mul_i32", sW6K, sWAVE, 6144),
          salu("s_lshl_b32", "s7", "s4", 2), salu("s_add_u32", "s7", "s7", "s70"),
          salu("s_lshl_b32", sWQ, "s71", 18), salu("s_lshl_b32", sT0, "s7", 8), salu("s_add_u32", sWQ, sWQ, sT0),
          salu("s_mul_i32", sX, "s6", 245760), salu("s_mul_i32", sT0, sWAVE, 61440), salu("s_add_u32", sX, sX, sT0)]
    o += [salu("s_add_u32", "s68", "s3", "s4"), salu("s_and_b32", "s68", "s68", 3)]
    for x in by_role("s69", "s68", TBLQ0):
        o += x if isinstance(x, list) else [x]
    for st in range(2):
        o += [salu("s_bfe_u32", sT0, "s69", "0x%x" % (0x40000 + 4 * st)), salu("s_lshl_b32", sT1, sT0, 19), salu("s_lshl_b32", sT0, sT0, 7),
              salu("s_add_u32", sPF[("W", st, 0)][0], sT1, sWQ), salu("s_add_u32", sPF[("X", st)][0], sT0, sX),
              salu("s_add_u32", sT2 if st else sPF[("W", st, 1)][0], sPF[("W", st, 0)][0], 128), salu("s_add_u32", sPF[("X", st)][1], sPF[("X", st)][0], 40960)]
    o += [raw("s_waitcnt lgkmcnt(0)", "drainlg")]
    o += srd(S_WQ, "s62", "s63", 5242880) + srd(S_X, "s56", "s57", 3932160)
    for k in [("W", 0, 0), ("X", 0), ("W", 0, 1), ("W", 1, 0), ("X", 1)]:
        for pre, ds in unit_dmas(k):
            o += pre[::-1] + ds
    if OPT["warmw"]:
        o += [salu("s_mul_i32", "s68", "s6", 40 * 8192), salu("s_lshl_b32", "s69", "s4", 10), salu("s_add_u32", "s68", "s68", "s69"),
              salu("s_mul_i32", "s69", sWAVE, 10 * 8192), salu("s_add_u32", "s68", "s68", "s69"),
              valu("v_lshlrev_b32", b, 7, b), valu("v_lshl_add_u32", "v6", "v5", 13, b), valu("v_and_b32", c, 1, "v5"),
              valu("v_lshl_add_u32", c, c, 13, b), salu("s_add_u32", "s69", "s68", 8 * 8192)]
        o += [vload(("v", 254), 1, "v6", S_WQ, "s68", 0), vload(("v", 255), 1, c, S_WQ, "s69", 0)]
    o += [salu("s_lshr_b32", "s68", "s2", 3), salu("s_lshl_b32", "s68", "s68", 2), salu("s_add_u32", "s68", "s68", sWAVE), salu("s_lshl_b32", sCP, "s68", 8)]
    if OPT["codepf"] == 1:
        o += code_touch()
    o += srd(S_WO, "s94", "s95", 5242880)
    o += [salu("s_lshl_b32", "s68", "s6", 3), salu("s_add_u32", "s68", "s68", "s4"),
          salu("s_mul_i32", sWOS, "s68", 40960), salu("s_mul_i32", sT0, sWAVE, 10240), salu("s_add_u32", sWOS, sWOS, sT0)]
    for jj in range(OPT["jpro"]):
        for pre, ds in unit_dmas(("J", jj), sE):
            o += pre[::-1] + ds
    o += srd(S_K, "s58", "s59", 67108864) + srd(S_V, "s60", "s61", 67108864) + [salu("s_mov_b32", sW1, sT2)]
    o += srd(S_OST, "s90", "s91", WS_WOT) + srd(S_FLG, "s88", "s89", 256)
    o += [salu("s_add_u32", "s68", "s90", WS_WOT), salu("s_addc_u32", "s69", "s91", 0)] + srd(S_WOT, "s68", "s69", 2 * WOT_BLK)
    o += [salu("s_lshl_b32", sFG, "s3", 2), salu("s_lshl_b32", sFB, "s5", 6)]
    if OPT["dbgt"]:
        o += [salu("s_add_u32", sFG, sFG, 128), salu("s_add_u32", sFB, sFB, 128)]
    o += [
          valu("v_cmp_eq_u32", "vcc", 0, "v0"), valu("v_mov_b32", "v10", "0x1000"), valu("v_mov_b32", f"v{ONES}", "0x3f803f80"),
          valu("v_cndmask_b32", vFLG, "v10", 0, "vcc"),
          ]
    if OPT["one1"]:
        o += [valu("v_and_b32", "v10", 15, "v0"), valu("v_cmp_eq_u32", "vcc", 0, "v10"), valu("v_cndmask_b32", f"v{ONES}", 0, f"v{ONES}", "vcc")]
    o += [valu("v_mov_b32", f"v{ONES + r}", f"v{ONES}") for r in range(1, 4)]
    if OPT["prof"]:
        o += [salu("s_add_u32", "s68", "s90", WS_PROF), salu("s_addc_u32", "s69", "s91", 0)] + srd(S_PROF, "s68", "s69", 1 << 20)
        o += [salu("s_lshl_b32", sPROF, "s2", 2), salu("s_add_u32", sPROF, sPROF, sWAVE), salu("s_lshl_b32", sPROF, sPROF, 10)]
        o += prof_stamp(0, 8)
    o += [salu("s_lshl_b32", sKV, "s6", 5), salu("s_add_u32", sKV, sKV, "s7"), salu("s_lshl_b32", sKV, sKV, 17),
          salu("s_lshl_b32", sT0, "s71", 12),
          salu("s_lshr_b32", sROT, "s2", 3), salu("s_lshl_b32", sT1, "s2", 1), salu("s_add_u32", sROT, sROT, sT1),
          salu("s_and_b32", sROT, sROT, 0 if OPT["norot"] else 15), salu("s_lshl_b32", sROT, sROT, 13), salu("s_add_u32", sROT, sROT, sT0)]
    if OPT["tlbw"]:
        for n, (r, so) in enumerate(((S_K, sKV), (S_V, sKV), (S_WO, sWOS))):
            o += [Ins(f"buffer_load_dword v{244 + n}, off, s[{r}:{r + 3}], {so} nt", "vld", rd=[so] + regs("s", r, 4))]
    if OPT["kpro"]:
        o += kv_patterns()
        for k in [("K", 0), ("V", 0), ("K", 1)][:OPT["kpro"]]:
            for pre, ds in unit_dmas(k, sE):
                o += pre + [nop(1)] + ds
    o += [salu("s_mul_i32", sO, "s3", O_GRP), salu("s_mul_i32", sT0, "s71", 786432), salu("s_add_u32", sO, sO, sT0),
          salu("s_lshr_b32", sT0, "s4", 1), salu("s_mul_i32", sT0, sT0, 16 * 12288), salu("s_add_u32", sO, sO, sT0),
          salu("s_and_b32", sT0, "s4", 1), salu("s_mul_i32", sT0, sT0, 4 * 12288), salu("s_add_u32", sO, sO, sT0),
          salu("s_mul_i32", sT0, "s70", 2 * 12288), salu("s_add_u32", sO, sO, sT0)]
    o += [salu("s_lshl_b32", "s68", "s6", 3), salu("s_add_u32", "s68", "s68", "s4"),
          salu("s_lshr_b32", sT0, "s68", 1), salu("s_and_b32", sT1, sT0, "0x33"),
          salu("s_and_b32", "s69", sT0, 4), salu("s_lshl_b32", "s69", "s69", 1), salu("s_or_b32", sT1, sT1, "s69"),
          salu("s_and_b32", "s69", sT0, 8), salu("s_lshr_b32", "s69", "s69", 1), salu("s_or_b32", sT1, sT1, "s69"),
          salu("s_mul_i32", sWOD, sT1, 20480),
          salu("s_and_b32", sT0, "s68", 1), salu("s_lshl_b32", sT0, sT0, 11), salu("s_add_u32", sWOD, sWOD, sT0),
          salu("s_mul_i32", sT0, "s5", WOT_BLK), salu("s_add_u32", sWOD, sWOD, sT0),
          salu("s_lshl_b32", sT0, "s70", 12), salu("s_add_u32", sWOD, sWOD, sT0),
          salu("s_lshl_b32", sT0, "s71", 10), salu("s_add_u32", sWOD, sWOD, sT0),
          salu("s_mul_i32", sT0, "s70", 1310720 - 20480), salu("s_add_u32", sWOX, sWOD, sT0)]
    o += [salu("s_add_u32", "s68", "s3", "s4"), salu("s_and_b32", "s68", "s68", 3)]
    for x in by_role(sQT, "s68", TBLQ1):
        o += x if isinstance(x, list) else [x]
    cbits = struct.unpack("<I", struct.pack("<f", math.log2(math.e) / math.sqrt(128.0)))[0]
    o += [salu("s_mov_b32", sC, "0x%x" % cbits), salu("s_mov_b32", sHI, "0x5d800000" if OPT["tmax"] == 1 else "0x53800000" if OPT["tmax"] else "0x4e800000"),
          salu("s_mov_b32", sLO, "0x42200000" if OPT["tmax"] else "0x30800000"), salu("s_mov_b32", sNC, "0x%x" % (cbits | 0x80000000)),
          salu("s_mov_b32", sIT, 0)]
    if not OPT["kpro"]:
        o += kv_patterns()
    o += [salu("s_lshl_b32", "s69", "s70", 13), salu("s_mul_i32", "s68", "s71", 12288), salu("s_add_u32", "s68", "s68", XS[0]),
          valu("v_bfe_u32", "v8", i, 2, 2), valu("v_and_b32", "v9", 3, i)]
    o += [valu("v_lshl_add_u32", c, b, 8, c), valu("v_add_u32", c, KWANT[15], c), valu("v_add_u32", kA[0], "s69", c)]
    o += [valu("v_xor_b32", kA[j], j << 6, kA[0]) for j in range(1, 4)]
    o += [valu("v_lshl_add_u32", "v5", a, 2, "v8"), valu("v_lshlrev_b32", c, 8, "v5"), valu("v_and_b32", "v6", 7, "v5"),
          valu("v_lshl_add_u32", c, "v6", 5, c), valu("v_lshl_add_u32", c, "v9", 3, c),
          valu("v_add_u32", c, VWANT[0], c), valu("v_add_u32", vA[0], "s69", c)]
    o += [valu("v_xor_b32", vA[d], d << 5, vA[0]) for d in range(1, 8)]
    o += [valu("v_lshl_add_u32", c, a, 3, "v8"), valu("v_lshlrev_b32", c, 7, c),
          valu("v_and_b32", "v5", 2, "v8"), valu("v_and_b32", "v7", 1, a), valu("v_lshl_add_u32", "v5", "v7", 2, "v5"),
          valu("v_xor_b32", "v5", "v5", "v9"), valu("v_lshl_add_u32", c, "v5", 4, c), valu("v_add_u32", wA[0], "s69", c),
          valu("v_xor_b32", wA[1], 64, wA[0])]
    o += [valu("v_lshrrev_b32", "v5", 1, b), valu("v_xor_b32", "v5", "v5", a),
          valu("v_lshlrev_b32", "v5", 4, "v5"), valu("v_lshl_add_u32", c, b, 7, "v5"),
          valu("v_xor_b32", "v5", 64, c), valu("v_add_u32", xA[0], "s68", c), valu("v_add_u32", xA[1], "s68", "v5")]
    o += [salu("s_lshl_b32", "s68", "s70", 2), salu("s_lshl_b32", "s69", "s71", 3), salu("s_add_u32", "s69", "s69", WOJ_ADDR),
          valu("v_lshrrev_b32", c, 1, a), valu("v_lshlrev_b32", c, 12, c), valu("v_lshl_add_u32", c, "v6", 7, c),
          valu("v_add_u32", c, "s69", c), valu("v_add_u32", "v5", "s68", "v9"), valu("v_lshrrev_b32", "v6", 1, "v6"),
          valu("v_xor_b32", "v5", "v5", "v6"), valu("v_lshl_add_u32", vJ, "v5", 4, c)]
    o += [needvm([("W", 0, 0), ("X", 0)]), barrier()] + first_reads(0)
    return o


def acc2(pi, xy, qi):
    return ((pi * 6 + qi) * 2 + xy) * 4


def a2(st, pi, ks, xy):
    if st == 0:
        return (240 if pi == 0 else 48 + 16 * pi) + 8 * ks + 4 * xy
    return (48 if pi == 0 else 112 + 16 * pi) + 8 * ks + 4 * xy


def b2(st, qi, ks):
    return (192 if st == 0 else 0) + 8 * qi + 4 * ks


V2A = ["v%d" % i for i in range(240, 245)]


def k2_loads_A(st, pi, soff=None):
    return [vload(("a", a2(st, pi, ks, xy)), 4, V2A[pi], S2A, soff or sA2, ks * 2048 + xy * 1024, flags=SC1) for xy in range(2) for ks in range(2)]


def k2_loads_B(st, qi):
    return [vload(("a", b2(st, qi, ks)), 4, V2B[qi], S2B, sB2, ks * 1024, flags=SC1) for ks in range(2)]


def k2_lds_A(st, pi):
    out = []
    for xy in range(2):
        for ks in range(2):
            r = [r for r, (s_, p_, off) in PF2.items() if (s_, p_) == (st, pi) and (r not in ("s87", "s99") or off == 2048 * ks)][0]
            key = [k for k, rs in sPF.items() if r in rs][0]
            if key[0] == "W":
                out.append(ds_read("ds_read_b128", ("a", a2(st, pi, ks, xy)), 4, V2W, U[key]["addr"] + ks * 2048 + xy * 1024))
            elif key[0] == "P":
                out.append(ds_read("ds_read_b128", ("a", a2(st, pi, ks, xy)), 4, V2P,
                                   (0 if key[1] == 1 else PADDR[key] - D[4]) + ks * 2048 + xy * 1024))
            elif r == sPF[key][0]:
                out.append(ds_read("ds_read_b128", ("a", a2(st, pi, ks, xy)), 4, V2X, U[key]["addr"] - XS[0] + ks * 2048 + xy * 1024))
            else:
                out.append(ds_read("ds_read_b128", ("a", a2(st, pi, ks, xy)), 4, V2X, U[key]["addr"] - XS[0] + 4096 + xy * 1024))
    return out


def k2_steps(S, first, loadA, loadB, pend, check=False, late=(), final=None):
    for st in range(2):
        q0 = S.n()
        tiles = [(pi, xy, qi) for pi in range(5) for xy in range(2) for qi in range(6)]
        if final is not None and st == 1:
            tiles = [t for t in tiles if t[2] >= 3] + [t for t in tiles if t[2] < 3]
            for n, x in enumerate(final[0]):
                S.put(q0 + 2 + n, x)
            for n, x in enumerate(final[1]):
                S.put(q0 + 61 + 2 * n, x)
        for pi, xy, qi in tiles:
            for ks in range(2):
                acc = ("v", acc2(pi, xy, qi))
                S.add(mfma(16, acc, ("a", a2(st, pi, ks, xy)), ("a", b2(st, qi, ks)),
                           None if (first and st == 0 and ks == 0) else acc))
        pos = [int(0.5 + 3.75 * n) for n in range(32)]
        if pend[st]:
            ls = k2_loads_A(1 - st, 4)
            S.put(q0 + pos[0], ls[2])
            S.put(q0 + pos[1], ls[3])
            for n, x in enumerate(next_off(sA2, TA, sAB, 20480)):
                S.put(q0 + pos[1] + 1 + n, x)
        if first and st == 0:
            for n, (pre, l) in enumerate(late):
                S.put(q0 + 6 * n + 2, *pre)
                S.put(q0 + 6 * n + 3, l)
            for n, r in enumerate(k2_lds_A(1, 0) + k2_lds_A(1, 1) + k2_lds_A(1, 2)):
                S.put(q0 + 6 * n + 5 if n < 8 else q0 + 54 + 4 * (n - 8), r)
            S.put(q0 + 70, valu("v_add_u32", V2P, D[9] - D[5], V2P))
            for n, r in enumerate(k2_lds_A(1, 3)):
                S.put(q0 + 73 + 4 * n, r)
        elif loadB[st]:
            for n, l in enumerate([l for qi in range(6) for l in k2_loads_B(1 - st, qi)]):
                S.put(q0 + pos[2 + n], l)
            for n, x in enumerate(next_off(sB2, TB, sBB, 12288)):
                S.put(q0 + pos[13] + 1 + n, x)
        if loadA[st]:
            n = 14
            for pi in range(5):
                ls = k2_loads_A(st, pi)
                for x, l in enumerate(ls if pi < 4 else ls[:2]):
                    assert pos[n] >= 24 * pi + 11 + 12 * (x >> 1), (pi, x, pos[n])
                    S.put(q0 + pos[n], l)
                    n += 1
        if first and st == 1:
            S.put(q0 + 110, needvm(["ost"]), barrier())
            S.put(q0 + 111, valu("v_mov_b32", V2P, "0x100"))
            S.put(q0 + 114, atomic_add(V2P, sFG))
        if check and st == 1:
            S.put(q0 + 1, scmp("s_cmp_eq_u32", sCNT, 5), salu("s_cselect_b32", sWANT, 8, 0), salu("s_cselect_b32", sPL, sFG, "0x1000"))
            S.put(q0 + 2, poll_load(V2P, sPL))
        if check and st == 0:
            S.put(q0 + 1, valu("v_readfirstlane_b32", sQ, V2P))
            S.put(q0 + 6, salu("s_bfe_u32", sQ, sQ, "0x80008"), scmp("s_cmp_lt_u32", sQ, sWANT),
                  raw("s_cbranch_scc1 L_spin2", "branch", rd=["scc"]), label("L_spin2_back"))


def k2_first(S, late):
    seq = [(0, p) for p in range(4)] + [(1, p) for p in range(3)] + [(0, 4), (1, 3), (1, 4)]
    at = {}
    for st, pi in seq:
        at[(st, pi)] = S.n()
        for xy in range(2):
            for qi in range(6):
                for ks in range(2):
                    acc = ("v", acc2(pi, xy, qi))
                    S.add(mfma(16, acc, ("a", a2(st, pi, ks, xy)), ("a", b2(st, qi, ks)), None if (st == 0 and ks == 0) else acc))
    for n, (pre, l) in enumerate(late):
        S.put(13 * n + 2, *pre)
        S.put(13 * n + 3, l)
    assert 13 * len(late) < at[(0, 4)]
    g = 5
    for pi in range(4):
        for r in k2_lds_A(1, pi):
            while S.fixed.get(g):
                g += 1
            S.put(g, r)
            g += 4
    items = []
    for pi in range(5):
        for x, l in enumerate(k2_loads_A(0, pi, sSO)):
            items.append((l, at[(0, pi)] + 11 + 12 * (x >> 1), 240 + 24 * pi + 12 * (x >> 1)))
        for x, l in enumerate(k2_loads_A(1, pi)[:4 if pi < 4 else 2]):
            items.append((l, at[(1, pi)] + 11 + 12 * (x >> 1), 360 + 24 * pi + 12 * (x >> 1)))
    for qi in range(6):
        for ks, l in enumerate(k2_loads_B(0, qi)):
            items.append((l, at[(0, 4)] + 12 + 2 * qi + ks, 200 + 2 * qi + ks))
    items.sort(key=lambda i: i[2])
    g, lastB = 11, 0
    while items:
        c = [i for i in items if i[1] <= g]
        if c and not any(S.fixed.get(k) and any(j.kind in ("vld", "vst") for j in S.fixed[k]) for k in ((g - 2, g - 1, g + 1) if g < 180 else (g - 1, g + 1))) and not S.fixed.get(g):
            S.put(g, c[0][0])
            if sB2 in c[0][0].rd:
                lastB = g
            items.remove(c[0])
        g += 1
        assert g < 240, items
    for n, x in enumerate(next_off(sB2, TB, sBB, 12288)):
        S.put(lastB + 1 + n, x)
    if OPT["p2st"]:
        for n, g in enumerate((47, 95, 143, 167, 191, 215)):
            S.put(g, raw(f"s_memrealtime s[76:77]", wr=["s76", "s77"]), raw("s_waitcnt lgkmcnt(0)", "drainlg"), salu("s_mov_b32", f"s{101 - n}", "s76"))
    g = 226
    while S.fixed.get(g) or S.fixed.get(g + 1) or S.fixed.get(g + 3):
        g += 1
    S.put(g, needvm(["ost"]), barrier())
    S.put(g + 1, valu("v_mov_b32", V2P, "0x100"))
    S.put(g + 3, atomic_add(V2P, sFG))


def spin(name, back, dsts, soffs, conds):
    o = [label(name), salu("s_mov_b32", sSPIN, 0), label(name + "_loop"), raw("s_sleep 8")]
    o += [poll_load(d, so) for d, so in zip(dsts, soffs)]
    o += [drain(), salu("s_add_u32", sSPIN, sSPIN, 1), scmp("s_cmp_gt_u32", sSPIN, "0x20000"),
          raw(f"s_cbranch_scc1 {back}", "branch", rd=["scc"])]
    for d, (sh, msk, want) in zip(dsts, conds):
        o += [valu("v_readfirstlane_b32", sQ, d), nop(4)]
        if sh:
            o += [salu("s_lshr_b32", sQ, sQ, sh)]
        if msk:
            o += [salu("s_and_b32", sQ, sQ, msk)]
        o += [scmp("s_cmp_lt_u32", sQ, want), raw(f"s_cbranch_scc1 {name}_loop", "branch", rd=["scc"])]
    o += [raw(f"s_branch {back}", "branch")]
    return o


def phase2():
    o = [valu("v_mov_b32", V2L, vL16), salu("s_and_b32", "s85", "s4", 3), salu("s_and_b32", "s32", sWAVE, 1), salu("s_lshr_b32", "s33", sWAVE, 1),
         salu("s_mul_i32", sAB, sWAVE, 16 * 20480), salu("s_lshr_b64", f"s[{TA}:{TA + 1}]", "s[34:35]", 4)]
    o += next_off(sB2, TB, sBB, 12288)
    o += [valu("v_add_u32", V2W, sW4K, V2L), salu("s_add_u32", "s7", sW6K, XS[0]), valu("v_add_u32", V2X, "s7", V2L), valu("v_add_u32", V2P, D[4], V2W)]
    o += [scmp("s_cmp_eq_u32", "s33", 0)]
    o += [salu("s_cselect_b32", f"s{47 + q}", q, 2 - q) for q in range(3)]
    o += [salu("s_cselect_b32", f"s{36 + pi}", pi, 4 - pi) for pi in range(5)]
    o += [salu("s_mul_i32", "s34", "s32", 3)]
    o += [salu("s_add_u32", f"s{47 + q}", f"s{47 + q}", "s34") for q in range(3)]
    save = list(vR)
    vR[:] = [f"v{16 + q}" for q in range(6)]
    nl = 12 if OPT["pace"] else 8
    eg = epilogue_groups(0, lambda n: 240 - 4 * (24 - n) - (0 if OPT["pace"] else 16) if n >= 24 - nl else 32 + 4 * n, V2L)
    vR[:] = save
    b1 = [l for qi in range(6) for l in k2_loads_B(1, qi)]
    for n, (v, pre, st, imm) in enumerate(eg):
        m = b1[2 * (n - 8):2 * (n - 8) + 2] if 8 <= n < 14 else []
        o += v[:8] + m[:1] + v[8:16] + m[1:] + v[16:]
        if OPT["pace"]:
            if n % 2 == 0:
                o += eg[n // 2][1] + [eg[n // 2][2]]
        elif n < 16:
            o += pre + [st]
        if n == 15:
            o += [needvm(list(sPF))]
            for pi in range(5):
                o += [salu("s_lshl_b32", "s7", f"s{36 + pi}", 12), valu("v_add_u32", V2A[pi], "s7", V2L)]
            o += next_off(sPL, TA, sAB, 20480)
            if OPT["pace"]:
                o += next_off(sSO, TA, sAB, 20480)
            o += next_off(sA2, TA, sAB, 20480)
        if 16 <= n < 21:
            o += k2_lds_A(0, n - 16)
    late = []
    for n, g in enumerate(eg[24 - nl:]):
        st = vstore(("v", 240 - 4 * (nl - n) - (0 if OPT["pace"] else 16)), 4, V2L, S_OST, sE, g[3], tag="ost", flags=SC1)
        late.append((g[1], st))
    o += k2_loads_A(1, 4, sPL) + [valu("v_add_u32", V2P, D[9] - D[4], V2P)]
    o += next_off(sB2, TB, sBB, 12288) + [salu("s_mov_b32", sWANT, 0)]
    o += prof_stamp(1, 30)
    o += srd(S2OUT, "s92", "s93", 7864320)
    o += [salu("s_mul_i32", sOB, "s6", 192 * 2560), salu("s_mul_i32", "s7", "s84", 96 * 2560), salu("s_add_u32", sOB, sOB, "s7"),
          salu("s_mul_i32", "s7", "s5", 1280), salu("s_add_u32", sOB, sOB, "s7"),
          salu("s_mul_i32", "s7", "s85", 320), salu("s_add_u32", sOB, sOB, "s7"), salu("s_mov_b32", sCNT, 6)]
    S0 = Sched()
    if OPT["pace"]:
        k2_first(S0, late)
    else:
        k2_steps(S0, True, [True, True], [True, True], [False, True], late=late)
    S0.order_fixed()
    first = S0.build()
    S1 = Sched()
    k2_steps(S1, False, [True, True], [True, True], [True, True], check=True)
    if OPT["prof"] and not OPT["p2st"]:
        S1.put(3, raw("s_memrealtime s[76:77]", wr=["s76", "s77"]), raw("s_waitcnt lgkmcnt(0)", "drainlg"),
               salu("s_mov_b32", "s101", "s100"), salu("s_mov_b32", "s100", "s99"), salu("s_mov_b32", "s99", "s98"),
               salu("s_mov_b32", "s98", "s97"), salu("s_mov_b32", "s97", "s96"), salu("s_mov_b32", "s96", "s76"))
    S1.put(237, salu("s_sub_u32", sCNT, sCNT, 1))
    S1.order_fixed()
    loop = [label("L_k2")] + S1.build() + [scmp("s_cmp_lg_u32", sCNT, 0), raw("s_cbranch_scc1 L_k2", "branch", rd=["scc"])]
    R1, R2, i, a, V2O = V2A[0], V2A[1], V2A[2], V2A[3], V2A[4]
    setup = [salu("s_mul_i32", "s7", sWAVE, 30720), valu("v_add_u32", V2W, "s7", V2L), valu("v_lshrrev_b32", i, 4, V2L),
             valu("v_and_b32", a, 15, i), valu("v_mul_u32_u24", a, 2560, a), valu("v_lshrrev_b32", i, 4, i),
             valu("v_lshl_add_u32", V2O, i, 4, a),
             salu("s_xor_b32", sPL, sWAVE, 1), salu("s_sub_u32", sPL, sPL, sWAVE), salu("s_mul_i32", "s7", sPL, 30720),
             valu("v_add_u32", R1, "s7", V2W),
             salu("s_xor_b32", sPL, sWAVE, 3), salu("s_sub_u32", sPL, sPL, sWAVE), salu("s_mul_i32", "s7", sPL, 30720),
             valu("v_add_u32", R2, "s7", V2W)]
    sent = [(pi, xy, qi) for pi in range(5) for qi in range(3, 6) for xy in range(2)]
    wr = {t: ds_write("ds_write_b128", V2W, ("v", acc2(*t)), 4, n * 1024) for n, t in enumerate(sent)}
    S2 = Sched()
    e = []
    if OPT["redov"]:
        order = [wr[(pi, xy, qi)] for pi in range(5) for xy in range(2) for qi in range(3, 6)]
        k2_steps(S2, False, [False, False], [True, False], [True, False], final=(setup, order[:29]))
        e = order[29:]
    else:
        k2_steps(S2, False, [False, False], [True, False], [True, False])
        e = setup + list(wr.values())
    S2.order_fixed()
    last = S2.build()
    e += [needlgkm0(), barrier()] + prof_stamp(8, 234)
    for s in list(range(7, 15)) + list(range(7)):
        pi, q = divmod(s, 3)
        e += [ds_read("ds_read_b128", ("v", acc2(pi, xy, q + 3)), 4, R1, (2 * s + xy) * 1024) for xy in range(2)]
    for s in list(range(7, 15)) + list(range(7)):
        pi, q = divmod(s, 3)
        d, t = acc2(pi, 0, q), acc2(pi, 0, q + 3)
        e += [valu("v_add_f32", f"v{d + r}", f"v{d + r}", f"v{t + r}") for r in range(8)]
        if s >= 7:
            e += [ds_write("ds_write_b128", R1, ("v", acc2(pi, xy, q)), 4, (2 * s + xy) * 1024) for xy in range(2)]
    e += [needlgkm0(), barrier()]
    for s in range(8):
        pi, q = divmod(s, 3)
        for xy in range(2):
            e += [ds_read("ds_read_b128", ("v", acc2(pi, xy, q + 3)), 4, R2, (2 * (14 - s) + xy) * 1024)]
    for s in range(8):
        pi, q = divmod(s, 3)
        d0, t0 = acc2(pi, 0, q), acc2(pi, 0, q + 3)
        e += [valu("v_add_f32", f"v{d0 + r}", f"v{d0 + r}", f"v{t0 + r}") for r in range(8)]
        e += [valu("v_cvt_pk_bf16_f32", f"v{d0 + r}", f"v{d0 + 2 * r}", f"v{d0 + 2 * r + 1}") for r in range(4)]
        e += [salu("s_mul_i32", "s7", f"s{47 + q}", 40960), salu("s_lshl_b32", sPL, f"s{36 + pi}", 6),
              salu("s_add_u32", "s7", "s7", sPL), salu("s_add_u32", sSO, "s7", sOB),
              vstore(("v", d0), 4, V2O, S2OUT, sSO, 0, flags=OPT["outf"])]
    e += prof_stamp(9, 234)
    if OPT["prof"]:
        for n in range(6):
            e += [valu("v_mov_b32", "v234", 1), valu("v_mov_b32", "v235", f"s{101 - n}"), pstore(234, 2 + n), nop(4)]
    if OPT["dbgt"]:
        a, b = {1: ("s76", "s78"), 2: ("s74", "s76"), 3: ("s76", "s74"), 4: ("s76", "s74")}[OPT["dbgt"]]
        e += [drain(), raw("s_memrealtime s[78:79]", wr=["s78", "s79"]), raw("s_waitcnt lgkmcnt(0)", "drainlg"),
              salu("s_sub_u32", a, a, "s72"), salu("s_sub_u32", b, b, "s72"),
              scmp("s_cmp_lt_u32", "s2", 8), salu("s_cselect_b32", "s7", "s2", "0x1000"), salu("s_lshl_b32", "s7", "s7", 2),
              valu("v_mov_b32", "v0", a), valu("v_mov_b32", "v1", b),
              Ins(f"buffer_store_dword v0, {vFLG}, s[{S_FLG}:{S_FLG + 3}], s7 offen", "vst", rd=["v0", vFLG, "s7"]),
              Ins(f"buffer_store_dword v1, {vFLG}, s[{S_FLG}:{S_FLG + 3}], s7 offen offset:32", "vst", rd=["v1", vFLG, "s7"])]
    e += [label("L_end"), raw("s_endpgm")]
    sp1 = spin("L_spin1", "L_spin1_back", vPOLL[:1], [sFG], [(0, "0xff", 8)]) + spin("L_spin3", "L_spin3_back", vPOLL[1:], [sFB], [(16, 0, 128)])
    sp2 = spin("L_spin2", "L_spin2_back", [V2P], [sFG], [(8, "0xff", 8)])
    return o, first, loop, last, e, sp1, sp2


def check_pointers(pro):
    ptr = set(regs("s", 56, 8) + regs("s", 88, 8))
    dirty = set()
    for x in pro:
        if x.text.startswith("s_load"):
            continue
        if x.text.startswith(("s_mov_b32", "s_and_b32", "s_add_u32", "s_addc_u32")) and x.rd & dirty and "0xffff" in x.text:
            raise AssertionError(x.text)
        dirty |= x.wr & ptr


def kernel():
    pro = prologue()
    check_pointers(pro)
    q1 = q_phase(False)
    if OPT["dbgt"] >= 3:
        st = [raw("s_memrealtime s[76:77]", wr=["s76", "s77"]), raw("s_waitcnt lgkmcnt(0)", "drainlg")]
        if OPT["dbgt"] == 3:
            q1 = q1 + st
        else:
            q1 = st + q1
    full = []
    for last in (False, True):
        _alt[0] = 0
        full.append(a_phase(last))
    cut = [[n for n, x in enumerate(f) if x.text == "L_CUT:"][0] for f in full]
    assert [x.text for x in full[0][:cut[0]]] == [x.text for x in full[1][:cut[1]]]
    att = [label("L_att")] + full[0][:cut[0]]
    tails = []
    for v in range(2):
        t = [label(f"L_tail{v + 1}")] + full[v][cut[v] + 1:]
        t += [raw("s_cbranch_vccnz L_slow", "branch", rd=["vcc"]), label(f"L_back{v + 1}")]
        t += [valu("v_rcp_f32", f"v{16 + qt}" if v else vR[qt], f"v{lacc(qt)}") for qt in range(6)]
        if OPT["dbgt"] and not (v and OPT["dbgt"] >= 3):
            t += [raw(f"s_memrealtime s[{74 + 2 * v}:{75 + 2 * v}]", wr=[f"s{74 + 2 * v}", f"s{75 + 2 * v}"]), raw("s_waitcnt lgkmcnt(0)", "drainlg")]
        t += prof_stamp(29)
        if OPT["prof"]:
            t += [salu("s_add_u32", sPROF, sPROF, 240)]
        tails.append(t)
    q2 = [salu("s_mov_b32", sIT, 1), label("L_q2")] + q_phase(True) + [raw("s_branch L_att", "branch")]
    o, first, loop2, last, e, sp1, sp2 = phase2()
    slow = slow_path()
    parts = [pro, q1, att, tails[0], q2, tails[1], o, first, loop2, last, e, slow, sp1, sp2]
    waits = compute_waits([pro + q1 + att + tails[0] + q2 + att + tails[1] + o + first + loop2 + loop2 + loop2 + last + e, slow, sp1, sp2])
    done = {}
    P = [apply_waits(x, waits, done) for x in parts]
    pads = pad_hazards([P[0] + P[1] + P[2] + P[3] + P[4] + P[2] + P[5] + P[6] + P[7] + P[8] + P[8] + P[9] + P[10], P[11], P[12], P[13]])
    al = ".p2align 3\n"
    return (emit(P[0] + P[1], pads) + al + emit(P[2] + P[3] + P[4], pads) + al + emit(P[5] + P[6] + P[7], pads) + al +
            emit(P[8] + P[9] + P[10] + P[11] + P[12] + P[13], pads) + "L_endcode:\n")


def main():
    kn = NAME + "_kernel"
    s = open("cdna_kernels/" + NAME + ".s.ref").read().split("; Override launch")[0]
    s += "; @launch grid=(256,1,1) block=(256,1,1) lds=163840\n"
    s += '.amdgcn_target "amdgcn-amd-amdhsa--gfx950"\n.text\n'
    s += f".globl {kn}\n.p2align 8\n.type {kn},@function\n{kn}:\n" + kernel()
    s += f""".section .rodata,"a"
.p2align 6
.amdhsa_kernel {kn}
  .amdhsa_next_free_vgpr 512
  .amdhsa_next_free_sgpr 102
  .amdhsa_accum_offset 256
  .amdhsa_group_segment_fixed_size 0
  .amdhsa_kernarg_size 104
  .amdhsa_user_sgpr_count 2
  .amdhsa_user_sgpr_kernarg_segment_ptr 1
  .amdhsa_system_sgpr_workgroup_id_x 1
.end_amdhsa_kernel
"""
    open(sys.argv[1], "w").write(s)


main()
```

```python
import sys, math, struct
from fw3 import *
from orders import orders
import alloc3

NAME = "concat_heads__mha_block_cached__mha_block_cached__near_ridge"
OPT = dict(outf=' sc1', redov=1, one1=1, warmj=0, pk=1, pfq1=1, rot2=4, gate=0, pace=1, lead=3, xpace=0, kvf=' nt', norot=0, tlbw=0, kpro=0, kplan=0, jlate=1, dbgt=0, jpro=0, k1s=0, e10=1, t23=0, nfree=1, kstep10=136, ks1=0, kn1=0, kfirst=6, k2late=0, qsp=1, tmax=2, xnum=25, xhi=100, ctq=0, cplim=1, p2st=0, kbar=0, kin=2, early2=0, cta='', rotq1=2, gstep=2, rotq=3, early=1, uni=0, prof=0, report=False, stg=67, warmw=True, codepf=2, codepf2=12, pf='', pf0=1, pfn=3, pff='', flagbar=12, map=0)
for a in sys.argv[2:]:
    k, v = a.split("=")
    OPT[k] = type(OPT[k])(int(v)) if not isinstance(OPT[k], str) else v

KB = 1024
SC1 = " sc1"
O_GRP = 2 * 786432
WS_WOT = 50331648
WOT_BLK = 5242880
WS_PROF = 64 * 1024 * 1024

S_K, S_V, S_X, S_WQ, S_OST, S_WO, S_WOT = 8, 12, 16, 20, 24, 28, 32
sKV, sWQ, sX, sW4K, sW6K, sO, sIT, sT0, sT1, sC, sWAVE = ["s%d" % i for i in range(36, 47)]
sWOS, sWOD, sWOX, sW5K, sHI, sLO = ["s%d" % i for i in range(47, 53)]
sPROF, sE, sJ = "s53", "s54", "s55"
sQT, sWS, sXS, sW1, sNC = "s50", "s67", "s95", "s63", "s7"
sROT, sFG, sFB, sCP = "s62", "s65", "s66", "s64"
sA2, sB2, sPL, sOB, sCNT, sSO, sQ, sSH, sWANT, sSPIN = "s28", "s29", "s30", "s31", "s67", "s68", "s69", "s70", "s71", "s94"
S_PROF, S_FLG = 72, 80
sPF = {("W", 0, 0): ["s84"], ("W", 0, 1): ["s85"], ("X", 0): ["s86", "s87"], ("X", 1): ["s98", "s99"], ("W", 1, 0): ["s100"],
       ("P", 0): ["s60"], ("P", 1): ["s61"], ("P", 2): ["s101"]}
PF2 = {"s84": (0, 0, 0), "s86": (0, 1, 0), "s60": (0, 2, 0), "s101": (0, 3, 0), "s98": (0, 4, 0), "s61": (1, 0, 0),
       "s87": (1, 1, 0), "s99": (1, 1, 2048), "s85": (1, 2, 0), "s100": (1, 3, 0)}
vK = ["v%d" % i for i in range(192, 196)]
vV = ["v196", "v197"]
vW = ["v%d" % i for i in range(198, 202)]
vX = ["v%d" % i for i in range(202, 206)]
kA = ["v%d" % i for i in range(206, 210)]
vA = ["v%d" % i for i in range(210, 218)]
wA = ["v218", "v219"]
xA = ["v220", "v221"]
vJ, vL16 = "v222", "v223"
ONES = 224
EPI = 228
vR = ["v%d" % i for i in range(244, 250)]
vFLG = "v250"
vT = ["v252", "v253"]
vC2 = "v[242:243]"
vPOLL = ["v254", "v255"]

V2B = ["v245", "v246", "v247", "v248", "v249", "v251"]
V2L, V2W, V2P, V2X = "v252", "v254", "v255", "v253"
S2A, S2B, S2OUT = S_WQ, S_X, 8
TA, TB, sAB, sBB = 56, 62, "s43", "s44"

D = [i * 16 * KB for i in range(10)]
XS = [96 * KB, 120 * KB]
WOJ_ADDR = D[4]


def qacc(p, xy, qt):
    return 64 * (qt >> 1) + (2 * p + (qt & 1)) * 8 + 4 * xy


def qf(qt, p):
    return 64 * (qt >> 1) + (2 * p + (qt & 1)) * 4


def sreg(qt):
    return 64 * (qt >> 1) + 32 + 8 * (qt & 1)


def mrun(qt):
    return 64 * (qt >> 1) + 56 + (qt & 1)


def mneg(qt):
    return 64 * (qt >> 1) + 58 + (qt & 1)


def lacc(qt):
    return 64 * (qt >> 1) + 48 + 4 * (qt & 1)


ABUF = [192, 248]


def bx(qt, ks):
    return 200 + 8 * qt + 4 * ks


def kf(kt, ks):
    return 192 + 16 * kt + 4 * ks


def vf(dt):
    return 224 + 4 * dt


def oacc(qt, dt):
    return 32 * qt + 4 * dt


def kpos(k):
    n1 = OPT["kn1"]
    if OPT["kin"]:
        return 2 + OPT["kstep10"] / 10.0 * (4 * (k // 4) + 1) + OPT["kin"] * (k % 4)
    return 2 + OPT["ks1"] / 10.0 * min(k, n1) + OPT["kstep10"] / 10.0 * max(k - n1, 0)


def build_units():
    U = {}
    for i in range(10):
        U[("X", i)] = dict(addr=XS[i % 2], size=24 * KB, iss=i - 2.5, land=i - 1, rel=i - 0.5)
        U[("W", i, 0)] = dict(addr=D[2 * (i % 2)], size=16 * KB, iss=i - 2.5, land=i - 1, rel=i - 0.5)
        U[("W", i, 1)] = dict(addr=D[2 * (i % 2) + 1], size=16 * KB, iss=i - 2, land=i - 0.5, rel=i)
    for k, e in ((("X", 0), -4), (("W", 0, 0), -4), (("X", 1), -3), (("W", 0, 1), -2), (("W", 1, 0), -2)):
        U[k]["iss"] = e
    pages = [9, 5, 4, 6, 0, 7, 1, 8, 2, 3, 9, 4, 5, 6, 0, 1, 7, 2, 8, 3, 9, 4, 5, 6, 0, 7, 1, 8, 2, 9, 5, 4]
    if OPT["kstep10"]:
        (_, pages), kiss, leads = alloc3.plan(0, OPT["kfirst"], pos=kpos, head=[5, 9, 4, 6, 1 if OPT["k2late"] else 0, 7, 1, 8],
                                                 lastN={0: 23, 1: 25, 2: 25, 3: 26, 4: 24, 5: 23, 6: 23, 7: 23, 8: 24, 9: 24})
        if OPT["report"]:
            print("; leads", [round(x, 1) for x in leads])
    for u in range(32):
        key = ("K", u // 2) if u % 2 == 0 else ("V", u // 2)
        N = 10 + u // 2 + u % 2
        U[key] = dict(addr=D[pages[u]], size=16 * KB, iss=N - 5 + (u == 30), land=N - 1, rel=N)
        if OPT["kstep10"] and u >= OPT["kfirst"]:
            U[key].update(iss=kiss[u], even=u - OPT["kfirst"])
    if OPT["kbar"]:
        for t in range(1, 16):
            U[("K", t)]["land"] += 0.5
    U[("V", 1)]["iss"] = U[("K", 2)]["iss"] = 7.5
    if "even" not in U[("V", 2)]:
        U[("V", 2)]["iss"] = 8.5
    if OPT["k2late"]:
        U[("K", 2)]["iss"] = 8
    if OPT["kstep10"]:
        if OPT["kfirst"] == 8:
            U[("V", 3)]["iss"] = 8.5
        return U
    if OPT["e10"] < 2:
        U[("K", 4)]["iss"] = 10
    if OPT["e10"] < 1:
        U[("V", 3)]["iss"] = 10
    if OPT["t23"]:
        U[("W", 0, 0)]["iss"] = U[("W", 1, 1)]["iss"] = -5
    return U


def check_units(second):
    V = {k: dict(u) for k, u in U.items()}
    if second:
        V[("K", 0)]["iss"], V[("V", 0)]["iss"], V[("K", 1)]["iss"] = -4, -3, -3
    else:
        V[("J",)] = dict(addr=D[4], size=32 * KB, iss=-1, land=2, rel=3)
        V[("J", 2)] = dict(addr=D[9], size=16 * KB, iss=0, land=2, rel=3)
        V[("K", 0)]["iss"], V[("V", 0)]["iss"], V[("K", 1)]["iss"] = 3, 4, 5
    allu = [(k, u["addr"], u["addr"] + u["size"], u["iss"], u["rel"]) for k, u in V.items()]
    assert all(u["iss"] < u["land"] <= u["rel"] for u in V.values())
    if second:
        allu += [(k, u["addr"], u["addr"] + u["size"], u["iss"] - 27, u["rel"] - 27) for k, u in U.items() if k[0] in "KV" and k[1] > 2]
        allu += [(("P", n), D[p], D[p] + 16 * KB, (23, 24, 24)[n], 27) for n, p in enumerate((5, 9, 4))]
        allu += [(k, u["addr"], u["addr"] + u["size"], u["iss"] + 27, 40) for k, u in U.items() if k in sPF]
    for a in allu:
        for b in allu:
            if a is not b and a[1] < b[2] and b[1] < a[2]:
                assert a[4] <= b[3] or b[4] <= a[3], (a, b)


U = build_units()
U[("K", 0)]["iss"] = U[("V", 0)]["iss"] = U[("K", 1)]["iss"] = None
PADDR = {("P", 0): D[5], ("P", 1): D[9], ("P", 2): D[4]}
_alt = [0]


def next_st():
    _alt[0] ^= 1
    return [sT0, sT1][_alt[0]]


def unit_dmas(key, tmp=None):
    kind = key[0]
    if kind == "P":
        return [([salu("s_add_u32", "m0", sW4K, PADDR[key])], [dma(vW[m], S_WQ, sPF[key][0], 1024 * m, key, SC1) for m in range(4)])]
    if kind == "J":
        jj = key[1]
        sT = tmp
        pre = [salu("s_add_u32", sT, sWOS, jj * 128), salu("s_add_u32", "m0", sW4K, D[(4, 5, 9)[jj >> 2]] + (jj & 3) * 1024)]
        return [(pre, [dma(vX[0], S_WO, sT, 0, "J", " nt")])]
    u = U[key]
    if key in sPF:
        if kind == "W":
            return [([salu("s_add_u32", "m0", sW4K, u["addr"])], [dma(vW[m], S_WQ, sPF[key][0], 1024 * m, key, SC1) for m in range(4)])]
        return [([salu("s_add_u32", "m0", sW6K, u["addr"])], [dma(vX[m], S_X, sPF[key][0], 1024 * m, key, SC1) for m in range(4)]),
                ([salu("s_add_u32", "m0", sW6K, u["addr"] + 4096)], [dma(vX[m], S_X, sPF[key][1], 1024 * m, key, SC1) for m in range(2)])]
    sT = tmp or next_st()
    if kind in "KV":
        pre = [salu("s_add_u32", sT, sROT, key[1] * 8192), salu("s_and_b32", sT, sT, "0x1ffff"), salu("s_add_u32", sT, sT, sKV),
               salu("s_add_u32", "m0", sW4K, u["addr"])]
        if kind == "K":
            return [(pre, [dma(vK[m], S_K, sT, 1024 * m, key, OPT["kvf"]) for m in range(4)])]
        return [(pre, [dma(vV[m & 1], S_V, sT, 1024 * m, key, OPT["kvf"]) for m in range(4)])]
    if kind == "W":
        return [([salu("s_add_u32", "m0", sW4K, u["addr"])], [dma(vW[m], S_WQ, sW1 if key[2] else sWS, 1024 * m, key) for m in range(4)])]
    g0 = ([salu("s_add_u32", "m0", sW6K, u["addr"])], [dma(vX[m], S_X, sXS, 1024 * m, key) for m in range(4)])
    pre2 = [salu("s_add_u32", sT, sXS, 40960), salu("s_add_u32", "m0", sW6K, u["addr"] + 4096)]
    return [g0, (pre2, [dma(vX[m], S_X, sT, 1024 * m, key) for m in range(2)])]


def set_pf_proj(tail=False):
    o = [salu("s_add_u32", sW1, sWQ, 524288 + 128)]
    for key, rs in sPF.items():
        if key[0] == "P":
            continue
        if key[0] == "W":
            o += [salu("s_add_u32", rs[0], sWQ, key[1] * 524288 + key[2] * 128)]
        else:
            o += [salu("s_add_u32", rs[0], sX, key[1] * 128), salu("s_add_u32", rs[1], sX, key[1] * 128 + 40960)]
    return o


ORD2 = orders(16, 4, 8, 7, {1: [4], 2: [1, 1, 2, 2, 2, 0, 0], 3: [1, 2, 2, 2, 1, 0, 0], 4: [2, 1, 2, 2, 1, 0, 0]}[OPT["rot2"]])[0] if OPT["rot2"] else [list(range(16))] * 4
ORDQ = orders(10, 4, None, 0, {1: [1, 1, 2, 2, 2, 1, 1], 2: [1, 1, 4], 3: [1, 1, 2, 2, 1, 1, 1, 1]}[OPT["rotq"]])[0] if OPT["rotq"] else [list(range(10))] * 4
assert all(o[:2] == [0, 1] for o in ORDQ)
TBLQ = [sum(x << (4 * n) for n, x in enumerate(o[2:])) for o in ORDQ]
ORDQ1 = {0: ORDQ, 1: orders(10, 4, None, 0, [4])[0], 2: orders(10, 4, None, 0, [2, 2, 2, 1, 1, 1, 1])[0], 3: orders(10, 4, None, 0, [4, 0, 1, 1, 1, 1, 1, 1])[0]}[OPT["rotq1"]]
TBLQ1 = [sum(x << (4 * n) for n, x in enumerate(o[2:])) for o in ORDQ1]
TBLQ0 = [o[0] | o[1] << 4 for o in ORDQ1]


def by_role(dst, role, consts):
    o = [salu("s_mov_b32", dst, "0x%x" % consts[0])]
    for r in range(1, 4):
        o += [[scmp("s_cmp_eq_u32", role, r), salu("s_cselect_b32", dst, "0x%x" % consts[r], dst)]]
    return o


TBL2 = [sum(x << (4 * n) for n, x in enumerate(o)) for o in ORD2]


def next_off(dst, tbl, base, stride):
    return [salu("s_and_b32", dst, f"s{tbl}", 15), salu("s_lshr_b64", f"s[{tbl}:{tbl + 1}]", f"s[{tbl}:{tbl + 1}]", 4),
            salu("s_mul_i32", dst, dst, stride), salu("s_add_u32", dst, dst, base)]


def set_pf_out():
    o = [salu("s_and_b32", "s68", "s4", 3), salu("s_mul_i32", "s68", "s68", 1310720), salu("s_mul_i32", "s69", "s5", WOT_BLK),
         salu("s_add_u32", "s68", "s68", "s69"), salu("s_add_u32", "s68", "s68", WS_WOT)]
    o += [[salu("s_add_u32", f"s{S_WQ}", "s90", "s68"), salu("s_addc_u32", "s69", "s91", 0)]]
    o += [salu("s_and_b32", f"s{S_WQ + 1}", "s69", "0xffff"), salu("s_mov_b32", f"s{S_WQ + 2}", 1310720),
          salu("s_mov_b32", f"s{S_X}", f"s{S_WQ}"), salu("s_mov_b32", f"s{S_X + 1}", f"s{S_WQ + 1}"), salu("s_mov_b32", f"s{S_X + 2}", 1310720)]
    o += [salu("s_lshr_b32", "s70", sWAVE, 1), salu("s_mul_i32", "s68", sWAVE, 16 * 20480), salu("s_lshl_b32", "s69", "s70", 14),
          salu("s_add_u32", "s68", "s68", "s69"), salu("s_lshl_b32", "s69", "s70", 13), salu("s_sub_u32", "s69", 4096, "s69")]
    o += [salu("s_add_u32", "s70", "s3", "s4"), salu("s_and_b32", "s70", "s70", 3),
          salu("s_mov_b32", "s34", "0x%x" % (TBL2[0] & 0xffffffff)), salu("s_mov_b32", "s35", "0x%x" % (TBL2[0] >> 32))]
    for r in range(1, 4):
        o += [[scmp("s_cmp_eq_u32", "s70", r), salu("s_cselect_b32", "s34", "0x%x" % (TBL2[r] & 0xffffffff), "s34"),
               salu("s_cselect_b32", "s35", "0x%x" % (TBL2[r] >> 32), "s35")]]
    o += [salu("s_and_b32", "s70", "s34", 15), salu("s_mul_i32", "s70", "s70", 20480), salu("s_add_u32", "s70", "s70", "s68"),
          salu("s_bfe_u32", "s71", "s34", "0x40004"), salu("s_mul_i32", "s71", "s71", 20480), salu("s_add_u32", "s71", "s71", "s68")]
    for r, (st, pi, off) in PF2.items():
        o += [salu("s_mul_i32", r, "s69", pi), salu("s_add_u32", r, r, "s71" if st else "s70")]
        if off:
            o += [salu("s_add_u32", r, r, off)]
    return o


def groups_at(iss):
    order = {"W": 0, "X": 1, "K": 2, "V": 2}
    keys = sorted([k for k, u in U.items() if u["iss"] is not None and u["iss"] % 27 == iss % 27 and "even" not in u],
                  key=lambda k: (U[k]["land"] - U[k]["iss"], order[k[0]], k))
    return [g for k in keys for g in unit_dmas(k)]


def place_dmas(S, groups, cand, lo):
    ci = 0
    for pre, ds in groups:
        g = cand[ci]
        for n, p in enumerate(pre[:-1]):
            S.put(max(lo, g - len(pre) + n), p)
        for d in ds:
            d.m0 = pre[-1]
            S.put(cand[ci], d)
            ci += 1


def fix_m0(S):
    cur, prev = None, -2
    for g in sorted(S.fixed):
        for d in [x for x in S.fixed[g] if x.kind == "dma"]:
            if d.m0.text != cur:
                m = Ins(d.m0.text, "salu", rd=d.m0.rd, wr=d.m0.wr)
                if g - 1 > prev and not any(x.kind in ("bar", "branch") for x in S.fixed.get(g - 1, [])):
                    S.put(g - 1, m)
                else:
                    S.fixed[g].insert(S.fixed[g].index(d), m)
                cur = d.m0.text
            prev = g
        if any(x.kind == "label" for x in S.fixed[g]):
            cur = None


def tags_for(n):
    t = [k for k, u in U.items() if (u["land"] - n) % 27 == 0]
    if n == OPT["flagbar"]:
        t += ["ost", "jst"]
    if n == 2:
        t += ["J"]
    return t


def atomic_add(vdata, soff):
    return Ins(f"buffer_atomic_add {vdata}, {vFLG}, s[{S_FLG}:{S_FLG + 3}], {soff} offen sc1", "atomic",
               rd=[vdata, vFLG, soff] + regs("s", S_FLG, 4), tag="flag")


def poll_load(vdst, soff):
    return Ins(f"buffer_load_dword {vdst}, off, s[{S_FLG}:{S_FLG + 3}], {soff} sc1", "vld", rd=[soff] + regs("s", S_FLG, 4), wr=[vdst])


class Win:
    def __init__(self, rs, init):
        self.rs = rs
        self.cur = init

    def move(self, new):
        d = (new - self.cur) & 0xffffffff
        self.cur = new
        return [valu("v_add_u32", r, "0x%x" % d, r) for r in self.rs] if d else []


def plan_windows(addrs, span):
    want = []
    i = 0
    while i < len(addrs):
        lo = hi = addrs[i]
        j = i + 1
        while j < len(addrs) and max(hi, addrs[j]) - min(lo, addrs[j]) + span < 65536:
            lo, hi = min(lo, addrs[j]), max(hi, addrs[j])
            j += 1
        want += [lo] * (j - i)
        i = j
    return want


KWANT = plan_windows([U[("K", t)]["addr"] for t in range(16)], 4096)
VWANT = plan_windows([U[("V", t)]["addr"] for t in range(16)], 4096)
check_units(False)
check_units(True)


def pstore(v0, idx):
    return Ins(f"buffer_store_dwordx2 v[{v0}:{v0 + 1}], off, s[{S_PROF}:{S_PROF + 3}], {sPROF} offset:{8 * idx}", "vst",
               rd=[f"v{v0}", f"v{v0 + 1}", sPROF] + regs("s", S_PROF, 4))


def prof_stamp(idx, v0=252):
    if not OPT["prof"]:
        return []
    return [raw("s_memtime s[76:77]", "other", wr=["s76", "s77"]),
            raw("s_memrealtime s[78:79]", "other", wr=["s78", "s79"]),
            raw("s_waitcnt lgkmcnt(0)", "drainlg"),
            valu("v_mov_b32", f"v{v0}", "s76"),
            valu("v_mov_b32", f"v{v0 + 1}", "s78"),
            pstore(v0, idx)]


def bar_seq(tags, idx):
    if OPT["prof"] < 2:
        return [needboth(tags), barrier()] + prof_stamp(idx)
    return [raw("s_memtime s[58:59]", "other", wr=["s58", "s59"]), raw("s_waitcnt lgkmcnt(0)", "drainlg"),
            needboth(tags), barrier(),
            raw("s_memtime s[76:77]", "other", wr=["s76", "s77"]),
            raw("s_memrealtime s[78:79]", "other", wr=["s78", "s79"]),
            raw("s_waitcnt lgkmcnt(0)", "drainlg"), salu("s_sub_u32", "s76", "s76", "s58"),
            valu("v_mov_b32", "v252", "s76"), valu("v_mov_b32", "v253", "s78"), pstore(252, idx)]


def a_read(i, dt, ks, t):
    p, xy = dt >> 1, dt & 1
    off = U[("W", i, p >> 1)]["addr"] + ks * 4096 + t * 512 + xy * 8
    return ds_read("ds_read_b64_tr_b16", ("a", ABUF[dt % 2] + 4 * ks + 2 * t), 2, wA[p & 1], off)


def first_reads(i):
    ax = U[("X", i)]["addr"] - XS[0]

    def A(ks, t):
        return a_read(i, 0, ks, t)

    def B(qt, ks):
        return ds_read("ds_read_b128", ("a", bx(qt, ks)), 4, xA[ks], ax + qt * 2048)
    return [A(0, 0), A(0, 1), B(0, 0), A(1, 0), A(1, 1), B(0, 1)] + [B(qt, ks) for qt in range(1, 6) for ks in range(2)]


def k_read(t, j):
    kt, ks = j >> 2, j & 3
    return ds_read("ds_read_b128", ("a", kf(kt, ks)), 4, kA[ks], U[("K", t)]["addr"] - KWANT[t] + kt * 4096)


def epilogue_groups(tmp, dst=None, vaddr=None):
    groups = []
    n = 0
    for T in range(3):
        for ph in range(2):
            for qs in range(2):
                for pl in range(2):
                    qt = 2 * T + qs
                    tb = tmp + 4 * (n % 3)
                    src = oacc(qt, 4 * ph + 2 * pl)
                    db = tb if dst is None or dst(n) is None else dst(n)
                    rd = [valu("v_accvgpr_read_b32", f"v{tb + i}", f"a{src + i}") for i in range(8)]
                    mu = [valu("v_mul_f32", f"v{tb + i}", vR[qt], f"v{tb + i}") for i in range(8)]
                    cv = [valu("v_cvt_pk_bf16_f32", f"v{db + i}", f"v{tb + 2 * i}", f"v{tb + 2 * i + 1}") for i in range(4)]
                    pre = [salu("s_add_u32", sE, sO, ph * 12288 + T * 4096)] if qs == 0 and pl == 0 else []
                    imm = qs * 2048 + pl * 1024
                    groups.append((rd + mu + cv, pre, vstore(("v", db), 4, vaddr or vL16, S_OST, sE, imm, tag="ost", flags=SC1), imm))
                    n += 1
    return groups


def conv_items(T, ps, packed=()):
    out = []
    for p in ps:
        for qs in range(2):
            R, Dd = qacc(p, 0, 2 * T + qs), qf(2 * T + qs, p)
            if OPT["tmax"]:
                pass
            elif p in packed:
                out += [(p, qs, valu("v_pk_mul_f32", f"v[{R + x}:{R + x + 1}]", f"v[{R + x}:{R + x + 1}]", "s[86:87]" if False else vC2)) for x in range(0, 8, 2)]
            else:
                out += [(p, qs, valu("v_mul_f32", f"v{R + x}", sC, f"v{R + x}")) for x in range(8)]
            out += [(p, qs, valu("v_cvt_pk_bf16_f32", f"v{Dd + x}", f"v{R + 2 * x}", f"v{R + 2 * x + 1}")) for x in range(4)]
    return out


def touch_code(S, g, base, st, va, vd):
    S.put(g, salu("s_add_u32", st, sCP, base))
    S.put(g + 1, salu("s_min_u32", st, st, "L_endcode-L_pc-256"))
    S.put(g + 2, valu("v_and_b32", va, 16, vL16), valu("v_lshlrev_b32", va, 3, va))
    S.put(g + 3, valu("v_add_u32", va, st, va))
    return Ins(f"global_load_dword {vd}, {va}, s[96:97]", "vld", rd=[va, "s96", "s97"], wr=[vd])


def q_phase(second):
    S = Sched()
    extra, mid = {}, {}
    if not second:
        jp = OPT["jpro"]
        if jp == 0:
            extra[0] = [g for jj in range(5) for g in unit_dmas(("J", jj), sE)]
            extra[1] = [g for jj in range(5, 10) for g in unit_dmas(("J", jj), sE)]
        elif jp < 10:
            extra[1] = [g for jj in range(jp, 10) for g in unit_dmas(("J", jj), sE)]
        kv = [unit_dmas(k, sE) for k in [("K", 0), ("V", 0), ("K", 1)]]
        if OPT["kplan"] == 0:
            extra[4], extra[5], extra[6] = kv
        elif OPT["kplan"] == 1:
            extra[7], mid[8] = kv[0], kv[1]
            extra[8] = kv[2]
        elif OPT["kplan"] == 2:
            extra[4], extra[7], mid[8] = kv
        elif OPT["kplan"] == 4:
            extra[5], extra[6], extra[7] = kv
        elif OPT["kplan"] == 5:
            extra[4], extra[6], extra[7] = kv
        elif OPT["kplan"] == 3:
            extra[5], extra[7], mid[8] = kv
    for i in range(10):
        q0 = S.n()
        for dt in range(8):
            for qt in range(6):
                for ks in range(2):
                    acc = ("v", qacc(dt >> 1, dt & 1, qt))
                    S.add(mfma(16, acc, ("a", ABUF[dt % 2] + 4 * ks), ("a", bx(qt, ks)), None if (i == 0 and ks == 0) else acc))
        for dt in range(1, 8):
            gaps = [4, 5, 6, 7] if dt == 1 else [0, 2, 3, 4]
            for n, (ks, t) in enumerate([(0, 0), (0, 1), (1, 0), (1, 1)]):
                S.put(q0 + 12 * (dt - 1) + gaps[n], a_read(i, dt, ks, t))
        S.put(q0 + 35, needboth(tags_for(i - 0.5)), barrier())
        S.put(q0 + 83, *bar_seq(tags_for(i), 2 + i))
        if i < 9:
            for n, r in enumerate(first_reads(i + 1)):
                S.put(q0 + 84 + n, r)
        else:
            kw = Win(kA, KWANT[15])
            mv = kw.move(KWANT[0])
            S.put(q0 + 80, *mv[:2])
            S.put(q0 + 82, *mv[2:])
            for j in range(8):
                S.put(q0 + 84 + j, k_read(0, j))
        if i <= 7:
            for n, x in enumerate([salu("s_bfe_u32", sXS, sQT, "0x%x" % (0x40000 + 4 * i)), salu("s_lshl_b32", sWS, sXS, 19),
                                   salu("s_add_u32", sWS, sWS, sWQ), salu("s_lshl_b32", sXS, sXS, 7), salu("s_add_u32", sXS, sXS, sX),
                                   salu("s_add_u32", sW1, sWS, 128)]):
                S.put(q0 + 26 + n, x)
        early = groups_at(i - 1)
        if i == 0 and not second and OPT["early2"]:
            first = [g for k in [("W", 0, 1), ("W", 1, 0), ("X", 1)] for g in unit_dmas(k)]
            place_dmas(S, first + early, [0, 1, 2, 3, 8, 9, 10, 11, 13, 17, 18, 19, 20, 21, 22, 23, 25, 29], -1)
            early = []
            if OPT["warmw"]:
                S.put(31, vload(("v", 252), 1, "v254", S_WQ, 0, 0))
                S.put(33, vload(("v", 253), 1, "v255", S_WQ, 0, 0))
        place_dmas(S, early + mid.get(i, []), [q0 + g for g in ((9, 17, 25, 33) if OPT["qsp"] and i == 9 else (9, 13, 17, 21, 25, 29, 31, 33))], q0)
        late = groups_at(i - 0.5) + extra.get(i, [])
        if i == 8 and 8 in extra:
            late = extra[8] + groups_at(i - 0.5)
        cand = [q0 + 37 + 4 * x for x in range(12)]
        nd = sum(len(g[1]) for g in late)
        if nd > 12:
            cand = sorted(cand + [q0 + 67, q0 + 71, q0 + 75, q0 + 79][:nd - 12])
        if OPT["qsp"] and i >= 8 and nd:
            allowed = [37, 41, 43, 45, 47, 49, 53, 55, 57, 59, 61, 65, 67, 69, 71, 73, 77, 79, 81]
            cand = [q0 + allowed[round(x * (len(allowed) - 1) / max(nd - 1, 1))] for x in range(nd)]
        place_dmas(S, late, cand, q0 + 35)
    if not second:
        for jj in range(10):
            q0 = 96 * 3
            if jj == 8:
                S.put(q0 + 65, valu("v_add_u32", vJ, D[9] - D[4] - 2 * 16384, vJ))
            for tt in range(2):
                g = q0 + [10, 11, 18, 19, 22, 23, 30, 31, 34, 42, 43, 46, 47, 54, 55, 58, 66, 67, 70, 71][2 * jj + tt]
                S.put(g, ds_read("ds_read_b64_tr_b16", ("a", 4 * jj + 2 * tt), 2, vJ, (jj >> 2) * 16384 + (jj & 3) * 1024 + tt * 8192))
            nq, pair = divmod(2 * jj, 5)
            g = 96 * (4 + jj // 3) + [19, 25, 31][jj % 3]
            if OPT["jlate"]:
                g = 96 * (3 + jj // 2) + ([79, 82] if (3 + jj // 2) in extra else [77, 81])[jj % 2]
            S.put(g - 1, salu("s_add_u32", sJ, sWOX if pair == 4 else sWOD, nq * 1310720 + pair * 4096))
            S.put(g, vstore(("a", 4 * jj), 4, vL16, S_WOT, sJ, 0, tag="jst", flags=SC1))
    if not second and OPT["ctq"]:
        q0 = 96 * OPT["ctq"]
        S.put(q0 + 33, touch_code(S, q0 + 18, "L_att-L_pc", sJ, vT[0], vT[1]))
    if second:
        eg = epilogue_groups(EPI)
        ep = []
        for i in range(8):
            for g in eg[3 * i:3 * i + 3]:
                ep += [(x, 96 * i, None) for x in g[0]]
            for g in eg[3 * i:3 * i + 3]:
                ep += [(x, 96 * i + OPT["stg"], None) for x in g[1] + [g[2]]]
        ep[-1] = (ep[-1][0], ep[-1][1], 96 * 9 - 1)
        S.stream(ep)
        S.put(96 * 9 + 2, salu("s_add_u32", sO, sO, 8 * 12288))
    q0 = 96 * 9
    g = q0 + 2
    for x in ([salu("s_add_u32", sWQ, sWQ, 512)] + set_pf_proj(True) + [salu("s_add_u32", "s68", "s3", "s4"), salu("s_and_b32", "s68", "s68", 3)] + by_role(sQT, "s68", TBLQ) if not second else set_pf_out()):
        S.put(g, *(x if isinstance(x, list) else [x]))
        g += 1 if g < q0 + 94 else 0
        while g in (q0 + 35, q0 + 83) or any(x.kind == "salu" for x in S.fixed.get(g, [])):
            g += 1
    if second:
        S.stream([(valu("v_mov_b32", r, vL16), q0 + 2, None) for r in vW + vX])
    if not OPT["tmax"]:
        S.put(q0 + 7, valu("v_mov_b32", "v242", sC), valu("v_mov_b32", "v243", sC))
    S.stream([(x, min(q0 + 12 * (2 * p + 1) + 2 * qs + 1 + 2, q0 + 95), None) for p, qs, x in conv_items(0, range(4))])
    if OPT["tmax"]:
        for T in (1, 2):
            S.stream([(x, q0 + 12 * (2 * p + 1) + 4 * T + 2 * qs + 1 + 2, None) for p, qs, x in conv_items(T, range(3))])
    S.put(-1, *prof_stamp(1))
    fix_m0(S)
    return S.finish(lead=first_reads(0), report=OPT["report"])


def lspread(qt, tmp):
    l = f"v{lacc(qt)}"
    return [valu("v_mov_b32", tmp, l), perm("v_permlane32_swap_b32", tmp, l), valu("v_add_f32", l, l, tmp),
            valu("v_mov_b32", tmp, l), perm("v_permlane16_swap_b32", tmp, l), valu("v_add_f32", l, l, tmp)]


def interleave(a, b):
    return [x for p in zip(a, b) for x in p]


def lcheck():
    l = [f"v{lacc(qt)}" for qt in range(6)]
    if OPT["tmax"] == 2:
        return [valu("v_add_f32", vT[0], l[0], l[1]), valu("v_add_f32", vT[1], l[2], l[3]), valu("v_add_f32", vT[0], vT[0], l[4]),
                valu("v_add_f32", vT[1], vT[1], l[5]), valu("v_add_f32", vT[0], vT[0], vT[1]), valu("v_cmp_ngt_f32", "vcc", sHI, vT[0])]
    if OPT["tmax"]:
        x = [f"v{mrun(qt)}" for qt in range(6)]
        return ([valu("v_fma_f32", x[q], x[q], sC, f"v{mneg(q)}") for q in range(6)] +
                [valu("v_add_f32", vT[0], l[0], l[1]), valu("v_max3_f32", vT[1], x[0], x[1], x[2]),
                 valu("v_add_f32", vT[0], vT[0], l[2]), valu("v_max3_f32", vT[1], vT[1], x[3], x[4]),
                 valu("v_add_f32", vT[0], vT[0], l[3]), valu("v_add_f32", vT[0], vT[0], l[4]),
                 valu("v_max_f32", vT[1], vT[1], x[5]), valu("v_add_f32", vT[0], vT[0], l[5]),
                 valu("v_cmp_ngt_f32", "s[56:57]", sLO, vT[1]),
                 valu("v_cmp_ngt_f32", "vcc", sHI, vT[0]),
                 salu("s_or_b64", "vcc", "vcc", "s[56:57]")])
    return [valu("v_add_f32", vT[0], l[0], l[1]), valu("v_min3_f32", vT[1], l[0], l[1], l[2]),
            valu("v_add_f32", vT[0], vT[0], l[2]), valu("v_min3_f32", vT[1], vT[1], l[3], l[4]),
            valu("v_add_f32", vT[0], vT[0], l[3]), valu("v_add_f32", vT[0], vT[0], l[4]),
            valu("v_min_f32", vT[1], vT[1], l[5]), valu("v_add_f32", vT[0], vT[0], l[5]),
            valu("v_cmp_nlt_f32", "s[56:57]", sLO, vT[1]),
            valu("v_cmp_ngt_f32", "vcc", sHI, vT[0]),
            salu("s_or_b64", "vcc", "vcc", "s[56:57]")]


def a_phase(last):
    S = Sched()
    qk = [[0] * 3 for _ in range(16)]
    pv = [[0] * 3 for _ in range(16)]

    def QK(t, T):
        qk[t][T] = S.n()
        for qs in range(2):
            for kt in range(2):
                s = ("v", sreg(2 * T + qs) + 4 * kt)
                for ks in range(4):
                    S.add(mfma(16, s, ("a", kf(kt, ks)), ("v", qf(2 * T + qs, ks)), None if ks == 0 else s))

    def PV(t, T):
        pv[t][T] = S.n()
        sums = []
        for qs in range(2):
            l = ("v", lacc(2 * T + qs))
            sums.append(mfma(16, l, ("v", ONES), ("v", sreg(2 * T + qs)), None if t == 0 else l))
        if t == 15:
            for m in sums:
                S.add(m)
        for dt in range(8):
            for qs in range(2):
                o = ("a", oacc(2 * T + qs, dt))
                S.add(mfma(16, o, ("a", vf(dt)), ("v", sreg(2 * T + qs)), None if t == 0 else o))
        if t < 15:
            for m in sums:
                S.add(m)

    for t in range(16):
        QK(t, 0)
        if t:
            PV(t - 1, 1)
        QK(t, 1)
        if t:
            PV(t - 1, 2)
        QK(t, 2)
        PV(t, 0)
    PV(15, 1)
    PV(15, 2)
    bar = {}
    kw, vw = Win(kA, KWANT[0]), Win(vA, VWANT[0])
    for t in range(16):
        g0 = pv[t - 1][2] if t else qk[0][1]
        bar[10 + t] = g0 - 1
        S.put(g0 - 1, *bar_seq(tags_for(10 + t), 12 + t))
        if t == 13:
            S.put(g0 - 1, scmp("s_cmp_eq_u32", sIT, 1), raw("s_cbranch_scc1 L_tail2", "branch", rd=["scc"]), label("L_CUT"))
        for n, m in enumerate(vw.move(VWANT[t])):
            S.put(g0 - 14 + 3 * (n // 2), m)
        for dt in range(8):
            for tt in range(2):
                S.put(g0 + 4 * dt + 1 + 2 * tt,
                      ds_read("ds_read_b64_tr_b16", ("a", vf(dt) + 2 * tt), 2, vA[dt], U[("V", t)]["addr"] - VWANT[t] + tt * 4096))
        if t < 15:
            for n, m in enumerate(kw.move(KWANT[t + 1])):
                S.put((qk[t][0] + 9 if t else qk[0][2] + 2) + (3 if t else 2) * (n // 2), m)
            for j in range(8):
                S.put(qk[t][2] + [8, 10, 12, 14, 17, 19, 21, 23][j], k_read(t + 1, j))
            if OPT["kbar"]:
                S.put(qk[t][2] + 6, needvm(tags_for(10.5 + t)), barrier())
            if OPT["kbar"] >= 2 and t:
                S.put(pv[t - 1][1] - 1, barrier())
            if OPT["kbar"] >= 3 and t:
                S.put(qk[t][0] - 1, barrier())
    if not last:
        S.stream([(m, pv[15][0], None) for m in vw.move(VWANT[0])])
    bar[26] = pv[15][1] - 1
    S.put(bar[26], *(prof_stamp(28) if last else bar_seq(tags_for(26), 28)))
    fr = [] if last else first_reads(0)
    for n, r in enumerate(fr[:10]):
        S.put(pv[15][1] + [1, 3, 5, 7, 9, 11, 13, 15, 16, 17][n], r)
    for n, r in enumerate(fr[10:]):
        S.put(pv[15][2] + 3 + 2 * n, r)
    stream = sorted([k for k, u in U.items() if "even" in u], key=lambda k: U[k]["even"])
    nk = len(stream)
    stream += [("P", 0), ("P", 1), ("P", 2)] if last else [("K", 0), ("V", 0), ("K", 1)]
    for e, key in enumerate(stream):
        cand = []
        for m in range(4):
            g = int(kpos(4 * e + m)) if e < nk else max(int(kpos(4 * e + m)), int(2 + 13.4 * (4 * (e - nk + 26) + (0 if OPT["kin"] else m))))
            while S.used(g, False) > 0 or g - 1 in bar.values():
                g += 1
            cand.append(g)
        lo = bar.get(U[key]["iss"] if e < nk else (23, 24, 24)[e - nk], -2) + 1
        assert cand[0] > lo + (3 if e >= nk else 0), (key, cand, lo)
        if e == nk:
            S.put(cand[0] - 5, salu("s_add_u32", sKV, sKV, 262144))
        place_dmas(S, unit_dmas(key, sE if e >= nk else None), cand, lo)
    for n in range(24, 27):
        groups = groups_at(n - 1)
        nd = sum(len(g[1]) for g in groups)
        a, b = bar[n - 1] + 5, bar[n] - 1
        cand = []
        for x in range(nd):
            g = a + (b - a) * x // nd
            while any(i.kind in MEMK for k in (g - 1, g, g + 1) for i in S.fixed.get(k, []) if k == g or i.kind == "dma") or g in cand:
                g += 1
            cand.append(g)
        assert cand[-1] < bar[n]
        place_dmas(S, groups, cand, bar[n - 1] + 1)
    if OPT["xpace"]:
        for t in range(1, 14):
            for T in range(3):
                S.put(pv[t][T] + 17, nop(OPT["xpace"]))
                S.put(qk[t][T] + 15, nop(OPT["xpace"]))
    g = bar[OPT["flagbar"]] + 2
    S.put(g - 1, scmp("s_cmp_eq_u32", sIT, 0), salu("s_cselect_b32", sE, sFB, sFG), salu("s_cselect_b32", sJ, "0x10000", 1))
    S.put(g + 1, valu("v_mov_b32", f"v{EPI}", sJ))
    S.put(g + 4, atomic_add(f"v{EPI}", sE))
    g = qk[12 - OPT['t23']][0]
    S.put(g + 1, scmp("s_cmp_eq_u32", sIT, 1), salu("s_cselect_b32", sE, sFB, "0x1000"))
    S.put(g + 3, poll_load(vPOLL[1], sE))
    g = qk[13 - OPT['t23']][0]
    S.put(g + 1, salu("s_lshl_b32", sWANT, sIT, 23), valu("v_readfirstlane_b32", sQ, vPOLL[1]))
    S.put(g + 4, scmp("s_cmp_lt_u32", sQ, sWANT), raw("s_cbranch_scc1 L_spin3", "branch", rd=["scc"]), label("L_spin3_back"))
    if last:
        g = bar[25] + 2
        S.put(g, poll_load(vPOLL[0], sFG))
        su = [salu("s_lshr_b32", "s84", "s4", 2), salu("s_mul_i32", "s7", "s3", O_GRP), salu("s_mul_i32", "s58", "s84", 786432),
              salu("s_add_u32", "s7", "s7", "s58"), [salu("s_add_u32", f"s{S2B}", "s90", "s7"), salu("s_addc_u32", "s59", "s91", 0)],
              salu("s_and_b32", f"s{S2B + 1}", "s59", "0xffff"), salu("s_mov_b32", f"s{S2B + 2}", 786432),
              salu("s_mul_i32", sBB, sWAVE, 16 * 12288), salu("s_mov_b64", f"s[{TB}:{TB + 1}]", "s[34:35]")] + next_off(sB2, TB, sBB, 12288)
        su += [salu("s_and_b32", "s58", sWAVE, 1), salu("s_mul_i32", "s58", "s58", 3 * 2048), salu("s_sub_u32", "s59", 3 * 2048, "s58"),
               salu("s_lshr_b32", "s86", sWAVE, 1), salu("s_lshl_b32", "s86", "s86", 12), salu("s_add_u32", "s58", "s58", "s86"),
               salu("s_add_u32", "s59", "s59", "s86"), salu("s_sub_u32", "s86", 2048, "s86")]
        g += 1
        for x in su:
            while any(i.kind == "salu" for i in S.fixed.get(g, [])):
                g += 1
            S.put(g, *(x if isinstance(x, list) else [x]))
            g += 1
        va = [valu("v_add_u32", V2B[0], "s58", vL16), valu("v_add_u32", V2B[3], "s59", vL16)]
        for q in (1, 2):
            va += [valu("v_add_u32", V2B[q], "s86", V2B[q - 1]), valu("v_add_u32", V2B[3 + q], "s86", V2B[2 + q])]
        S.stream([(x, g, pv[15][1] - 3) for x in va])
        g = pv[15][0] + 12
        S.put(g, valu("v_readfirstlane_b32", sQ, vPOLL[0]))
        S.put(g + 3, salu("s_and_b32", sQ, sQ, "0xff"), scmp("s_cmp_lt_u32", sQ, 8),
              raw("s_cbranch_scc1 L_spin1", "branch", rd=["scc"]), label("L_spin1_back"))
        for n, l in enumerate([l for qi in range(6) for l in k2_loads_B(0, qi)]):
            S.put(pv[15][1] + 1 + 2 * n if n < 8 else pv[15][2] + 3 + 3 * (n - 8), l)
    for n, t in enumerate([int(x) for x in OPT["cta"].split(",") if x]):
        g = pv[t][0]
        while any(S.fixed.get(k) for k in range(g, g + 6)):
            g += 1
        S.put(g + 5, touch_code(S, g, f"L_att-L_pc+{(n + 1) * 12288}", sJ, f"v{EPI + 4}", f"v{EPI + 5}"))
    if OPT["codepf2"]:
        g = qk[OPT["codepf2"]][0] - 6
        S.put(g - 2, salu("s_mul_i32", sJ, sIT, "L_tail2-L_tail1"))
        S.put(g - 1, salu("s_add_u32", sJ, sJ, "L_tail1-L_pc"))
        S.put(g, salu("s_add_u32", sJ, sJ, sCP))
        S.put(g + 1, salu("s_min_u32", sJ, sJ, "L_endcode-L_pc-256"))
        lo, hi = f"v{EPI + 2}", f"v{EPI + 3}"
        S.put(g + 2, valu("v_and_b32", lo, 16, vL16), valu("v_lshlrev_b32", lo, 3, lo))
        S.put(g + 3, valu("v_add_u32", lo, sJ, lo), valu("v_mov_b32", hi, "s97"))
        S.put(g + 4, valu("v_add_co_u32", lo, "vcc", "s96", lo, extra_wr=["vcc"]))
        S.put(g + 5, valu("v_addc_co_u32", hi, "vcc", 0, hi, "vcc", extra_wr=["vcc"]))
        g += 7
        while S.fixed.get(g):
            g += 1
        S.put(g, Ins(f"global_load_dword v{EPI + 4}, v[{EPI + 2}:{EPI + 3}], off", "vld", rd=[lo, hi], wr=[f"v{EPI + 4}"]))
    for T in (1, 2):
        if OPT["pk"] and not OPT["tmax"]:
            nfree = OPT["nfree"] if T == 1 else 0
            S.stream([(x, -1, None) for p, qs, x in conv_items(T, range(nfree))] +
                     [(x, qk[0][T] - 1, qk[0][T] - 1) for p, qs, x in conv_items(T, range(nfree, 4), packed=range(4))])
        else:
            c = [(x, -1, None) for p, qs, x in conv_items(T, range(3 if OPT["tmax"] else 0, 4))]
            c[-1] = (c[-1][0], -1, qk[0][T] - 1)
            S.stream(c)
    fin = []
    if OPT["one1"]:
        for T in range(3):
            fin += [(x, [pv[15][1] + 12, pv[15][2], pv[15][2] + 4][T], None) for x in interleave(lspread(2 * T, f"v{lacc(2 * T) + 1}"), lspread(2 * T + 1, f"v{lacc(2 * T + 1) + 1}"))]
    S.stream(fin + [(x, pv[15][2] + 4, None) for x in lcheck()])
    units = []
    for t in range(16):
        for qt in range(6):
            s = sreg(qt)
            T, qs = qt >> 1, qt & 1
            dl = pv[t][T] + qs - 2
            units.append(dict(e=qk[t][T] + 8 * qs + 7 + 2,
                              exps=[valu("v_exp_f32", f"v{s + r}", f"v{s + r}") for r in range(8)],
                              cvts=[(valu("v_cvt_pk_bf16_f32", f"v{s + r}", f"v{s + 2 * r}", f"v{s + 2 * r + 1}"), 2 * r + 2, dl) for r in range(4)]))
    if OPT["tmax"]:
        for n, u in enumerate(units):
            t, qt = divmod(n, 6)
            s, m, mn = sreg(qt), f"v{mrun(qt)}", f"v{mneg(qt)}"
            fma = [valu("v_fma_f32", f"v{s + r}", f"v{s + r}", sC, mn) for r in range(8)]
            if t == 0:
                pre = [valu("v_max3_f32", m, f"v{s}", f"v{s + 1}", f"v{s + 2}"), valu("v_max3_f32", mn, f"v{s + 3}", f"v{s + 4}", f"v{s + 5}"),
                       valu("v_max3_f32", m, m, f"v{s + 6}", f"v{s + 7}"), valu("v_max_f32", m, m, mn)]
                for op in ("v_permlane32_swap_b32", "v_permlane16_swap_b32"):
                    pre += [valu("v_mov_b32", mn, m), perm(op, mn, m), valu("v_max_f32", m, m, mn)]
                pre += [valu("v_mul_f32", mn, sNC, m)] + fma
                need = [len(pre) - 7 + r for r in range(8)]
            else:
                pre, need = [], []
                for r in range(0, 8, 2):
                    if OPT["tmax"] == 1:
                        pre += [valu("v_max3_f32", m, m, f"v{s + r}", f"v{s + r + 1}")]
                    pre += [fma[r], fma[r + 1]]
                    need += [len(pre) - 1, len(pre)]
            u["pre"] = pre
            u["exps"] = list(zip(u["exps"], need))
        def xok(g):
            n = OPT["xhi"] if g < qk[2][0] or g >= qk[13][0] else OPT["xnum"]
            return (g * n) % 100 < n
        S.packers.append(SoftmaxPacker2(units,
                                        lambda g: 1 if S.used(g, False) < 2 and xok(g) else 0))
    else:
        S.packers.append(SoftmaxPacker(units))
    fix_m0(S)
    return S.finish(lead=[k_read(0, j) for j in range(8)], report=OPT["report"])


def slow_path():
    o = [label("L_slow"), drain(), nop(16)]
    KF = [EPI + 4 * k for k in range(4)]
    VFR = 56
    vM = [f"v{120 + q}" for q in range(6)]
    vKo, vVo, vt, vu = "v60", "v61", "v62", "v63"
    o += [valu("v_lshrrev_b32", vt, 4, vL16), valu("v_and_b32", vu, 15, vt), valu("v_lshrrev_b32", vt, 4, vt),
          valu("v_lshlrev_b32", vKo, 8, vu), valu("v_lshl_add_u32", vKo, vt, 4, vKo),
          valu("v_lshlrev_b32", vVo, 10, vt), valu("v_lshl_add_u32", vVo, vu, 1, vVo)]
    o += [salu("s_sub_u32", "s58", sKV, 262144)]
    o += [valu("v_mov_b32", m, "0xff800000") for m in vM]

    def scores():
        r = []
        for kt in range(2):
            r += [salu("s_add_u32", "s61", "s59", kt * 4096)]
            r += [vload(("v", KF[ks]), 4, vKo, S_K, "s61", 64 * ks) for ks in range(4)] + [drain()]
            for qt in range(6):
                s = ("v", sreg(qt) + 4 * kt)
                r += [mfma(16, s, ("v", KF[ks]), ("v", qf(qt, ks)), None if ks == 0 else s) for ks in range(4)]
            r += [nop(16)]
        return r
    o += [salu("s_mov_b32", "s59", "s58"), salu("s_mov_b32", "s60", 16), label("L_slow1")] + scores()
    for qt in range(6):
        o += [valu("v_max3_f32", vM[qt], vM[qt], f"v{sreg(qt) + r}", f"v{sreg(qt) + r + 1}") for r in range(0, 8, 2)]
    o += [salu("s_add_u32", "s59", "s59", 8192), salu("s_sub_u32", "s60", "s60", 1), scmp("s_cmp_lg_u32", "s60", 0),
          raw("s_cbranch_scc1 L_slow1", "branch", rd=["scc"])]
    for qt in range(6):
        for op in ("v_permlane32_swap_b32", "v_permlane16_swap_b32"):
            o += [valu("v_mov_b32", vt, vM[qt]), nop(2), perm(op, vt, vM[qt]), valu("v_max_f32", vM[qt], vM[qt], vt)]
        o += [valu("v_mov_b32", f"v{lacc(qt) + r}", 0) for r in range(4)]
    o += [valu("v_accvgpr_write_b32", f"a{r}", 0) for r in range(192)]
    o += [salu("s_mov_b32", "s59", "s58"), salu("s_mov_b32", "s60", 16), label("L_slow2")] + scores()
    for qt in range(6):
        s = sreg(qt)
        o += [valu("v_sub_f32", f"v{s + r}", f"v{s + r}", vM[qt]) for r in range(8)]
        if OPT["tmax"]:
            o += [valu("v_mul_f32", f"v{s + r}", sC, f"v{s + r}") for r in range(8)]
        o += [valu("v_exp_f32", f"v{s + r}", f"v{s + r}") for r in range(8)]
        o += [valu("v_cvt_pk_bf16_f32", f"v{s + r}", f"v{s + 2 * r}", f"v{s + 2 * r + 1}") for r in range(4)]
    o += [salu("s_add_u32", "s57", "s59", 4096)]
    for dt in range(8):
        for j in range(8):
            o += [vload(("v", 184 + j), 1, vVo, S_V, "s57" if j >= 4 else "s59", (j & 3) * 256 + 32 * dt, op="buffer_load_ushort")]
        o += [drain()]
        o += [valu("v_lshl_or_b32", f"v{VFR + r}", f"v{185 + 2 * r}", 16, f"v{184 + 2 * r}") for r in range(4)]
        o += [mfma(16, ("a", oacc(qt, dt)), ("v", VFR), ("v", sreg(qt)), ("a", oacc(qt, dt))) for qt in range(6)]
        o += [nop(8)]
    o += [mfma(16, ("v", lacc(qt)), ("v", ONES), ("v", sreg(qt)), ("v", lacc(qt))) for qt in range(6)] + [nop(16)]
    o += [salu("s_add_u32", "s59", "s59", 8192), salu("s_sub_u32", "s60", "s60", 1), scmp("s_cmp_lg_u32", "s60", 0),
          raw("s_cbranch_scc1 L_slow2", "branch", rd=["scc"])]
    o += [nop(16)]
    if OPT["one1"]:
        for qt in range(6):
            o += lspread(qt, vt)
    o += [drain(), scmp("s_cmp_eq_u32", sIT, 1), raw("s_cbranch_scc1 L_back2", "branch", rd=["scc"]), raw("s_branch L_back1", "branch")]
    return o


def srd(base, lo, hi, nbytes):
    return [salu("s_mov_b32", f"s{base}", lo), salu("s_and_b32", f"s{base + 1}", hi, "0xffff"),
            salu("s_mov_b32", f"s{base + 2}", nbytes), salu("s_mov_b32", f"s{base + 3}", "0x20000")]


def decode_wg():
    return [salu("s_and_b32", "s3", "s2", 7), salu("s_lshr_b32", "s4", "s2", 6), salu("s_lshl_b32", "s3", "s3", 2),
            salu("s_add_u32", "s3", "s3", "s4"), salu("s_lshr_b32", "s4", "s2", 3), salu("s_and_b32", "s4", "s4", 7),
            salu("s_lshr_b32", "s5", "s3", 4), salu("s_and_b32", "s6", "s3", 15)]


def code_touch():
    return [salu("s_lshr_b32", "s68", "s2", 3), salu("s_lshl_b32", "s68", "s68", 11),
            valu("v_lshrrev_b32", "v11", 6, "v0"), valu("v_and_b32", "v12", 3, "v0"), valu("v_lshlrev_b32", "v11", 9, "v11"),
            valu("v_lshl_add_u32", "v11", "v12", 7, "v11"), valu("v_add_u32", "v11", "s68", "v11")] + (
            [valu("v_min_u32", "v11", "L_att-L_pc", "v11")] if OPT["cplim"] else []) + [
            valu("v_mov_b32", "v13", "s97"), valu("v_add_co_u32", "v12", "vcc", "s96", "v11", extra_wr=["vcc"]),
            valu("v_addc_co_u32", "v13", "vcc", 0, "v13", "vcc", extra_wr=["vcc"]),
            Ins("global_load_dword v253, v[12:13], off", "vld", rd=["v12", "v13"], wr=["v253"])]


def kv_patterns():
    i, a, b, c = "v1", "v2", "v3", "v4"
    o = [valu("v_lshrrev_b32", a, 4, i), valu("v_and_b32", b, 15, i),
         valu("v_xor_b32", c, a, b), valu("v_lshlrev_b32", c, 4, c), valu("v_lshl_add_u32", vK[0], a, 8, c)]
    o += [valu("v_xor_b32", vK[m], m << 6, vK[0]) for m in range(1, 4)]
    o += [valu("v_lshlrev_b32", "v5", 1, a), valu("v_xor_b32", "v5", "v5", b), valu("v_lshlrev_b32", "v5", 4, "v5"),
          valu("v_lshl_add_u32", vV[0], a, 8, "v5"), valu("v_xor_b32", vV[1], 128, vV[0])]
    return o


sT2 = "s101"


def prologue():
    o = [scmp("s_cmp_ge_u32", "s2", 256), raw("s_cbranch_scc1 L_end", "branch", rd=["scc"])]
    if OPT["dbgt"]:
        o += [raw("s_memrealtime s[72:73]", wr=["s72", "s73"])]
    o += [salu("s_bfe_u32", "s5", "s2", "0x10002"), salu("s_mul_i32", "s7", "s5", 40), salu("s_add_u32", "s78", "s0", "s7"), salu("s_addc_u32", "s79", "s1", 0),
          raw("s_load_dwordx8 s[56:63], s[78:79], 0", wr=regs("s", 56, 8)),
          raw("s_load_dwordx2 s[94:95], s[78:79], 32", wr=["s94", "s95"]),
          raw("s_load_dwordx4 s[88:91], s[0:1], 88", wr=regs("s", 88, 4)),
          raw("s_load_dwordx2 s[92:93], s[0:1], 80", wr=["s92", "s93"])]
    o += [raw("s_getpc_b64 s[96:97]", wr=["s96", "s97"]), label("L_pc")]
    if OPT["codepf"] == 2:
        o += code_touch()
    o += decode_wg()
    i, a, b, c = "v1", "v2", "v3", "v4"
    o += [valu("v_lshrrev_b32", a, 6, "v0"), valu("v_and_b32", i, 63, "v0"),
          valu("v_readfirstlane_b32", sWAVE, a), valu("v_lshlrev_b32", vL16, 4, i)]
    o += [valu("v_lshrrev_b32", a, 4, i), valu("v_and_b32", b, 7, i), valu("v_lshrrev_b32", "v5", 3, i),
          valu("v_and_b32", c, 1, a), valu("v_lshlrev_b32", c, 1, c), valu("v_xor_b32", c, c, b), valu("v_lshlrev_b32", c, 4, c),
          valu("v_lshl_add_u32", vW[0], "v5", 13, c),
          valu("v_xor_b32", vW[1], 64, vW[0]), valu("v_add_u32", vW[1], 64512, vW[1]),
          valu("v_add_u32", vW[2], 2 * 64512, vW[0]), valu("v_add_u32", vW[3], 2 * 64512, vW[1])]
    o += [valu("v_xor_b32", c, a, b), valu("v_lshlrev_b32", c, 4, c), valu("v_mul_u32_u24", "v6", 1280, "v5"),
          valu("v_add_u32", vX[0], "v6", c),
          valu("v_xor_b32", vX[1], 64, vX[0]), valu("v_add_u32", vX[1], 9216, vX[1]),
          valu("v_add_u32", vX[2], 2 * 9216, vX[0]), valu("v_add_u32", vX[3], 2 * 9216, vX[1])]
    o += [salu("s_lshr_b32", "s70", sWAVE, 1), salu("s_and_b32", "s71", sWAVE, 1),
          salu("s_lshl_b32", sW4K, sWAVE, 12), salu("s_mul_i32", sW6K, sWAVE, 6144),
          salu("s_lshl_b32", "s7", "s4", 2), salu("s_add_u32", "s7", "s7", "s70"),
          salu("s_lshl_b32", sWQ, "s71", 18), salu("s_lshl_b32", sT0, "s7", 8), salu("s_add_u32", sWQ, sWQ, sT0),
          salu("s_mul_i32", sX, "s6", 245760), salu("s_mul_i32", sT0, sWAVE, 61440), salu("s_add_u32", sX, sX, sT0)]
    o += [salu("s_add_u32", "s68", "s3", "s4"), salu("s_and_b32", "s68", "s68", 3)]
    for x in by_role("s69", "s68", TBLQ0):
        o += x if isinstance(x, list) else [x]
    for st in range(2):
        o += [salu("s_bfe_u32", sT0, "s69", "0x%x" % (0x40000 + 4 * st)), salu("s_lshl_b32", sT1, sT0, 19), salu("s_lshl_b32", sT0, sT0, 7),
              salu("s_add_u32", sPF[("W", st, 0)][0], sT1, sWQ), salu("s_add_u32", sPF[("X", st)][0], sT0, sX),
              salu("s_add_u32", sT2 if st else sPF[("W", st, 1)][0], sPF[("W", st, 0)][0], 128), salu("s_add_u32", sPF[("X", st)][1], sPF[("X", st)][0], 40960)]
    o += [raw("s_waitcnt lgkmcnt(0)", "drainlg")]
    o += srd(S_WQ, "s62", "s63", 5242880) + srd(S_X, "s56", "s57", 3932160)
    for k in [("W", 0, 0), ("X", 0), ("W", 0, 1), ("W", 1, 0), ("X", 1)][:2 if OPT["early2"] else 5]:
        for pre, ds in unit_dmas(k):
            o += pre[::-1] + ds
    if OPT["warmw"]:
        o += [salu("s_mul_i32", "s68", "s6", 40 * 8192), salu("s_lshl_b32", "s69", "s4", 10), salu("s_add_u32", "s68", "s68", "s69"),
              salu("s_mul_i32", "s69", sWAVE, 10 * 8192), salu("s_add_u32", "s68", "s68", "s69"),
              valu("v_lshlrev_b32", b, 7, b), valu("v_lshl_add_u32", "v6", "v5", 13, b), valu("v_and_b32", c, 1, "v5"),
              valu("v_lshl_add_u32", c, c, 13, b), salu("s_add_u32", "s69", "s68", 8 * 8192)]
        if OPT["early2"]:
            o += [valu("v_add_u32", "v254", "s68", "v6"), valu("v_add_u32", "v255", "s69", c)]
        else:
            o += [vload(("v", 254), 1, "v6", S_WQ, "s68", 0), vload(("v", 255), 1, c, S_WQ, "s69", 0)]
    o += [salu("s_lshr_b32", "s68", "s2", 3), salu("s_lshl_b32", "s68", "s68", 2), salu("s_add_u32", "s68", "s68", sWAVE), salu("s_lshl_b32", sCP, "s68", 8)]
    if OPT["codepf"] == 1:
        o += code_touch()
    o += srd(S_WO, "s94", "s95", 5242880)
    o += [salu("s_lshl_b32", "s68", "s6", 3), salu("s_add_u32", "s68", "s68", "s4"),
          salu("s_mul_i32", sWOS, "s68", 40960), salu("s_mul_i32", sT0, sWAVE, 10240), salu("s_add_u32", sWOS, sWOS, sT0)]
    for jj in range(OPT["jpro"]):
        for pre, ds in unit_dmas(("J", jj), sE):
            o += pre[::-1] + ds
    o += srd(S_K, "s58", "s59", 67108864) + srd(S_V, "s60", "s61", 67108864) + [salu("s_mov_b32", sW1, sT2)]
    o += srd(S_OST, "s90", "s91", WS_WOT) + srd(S_FLG, "s88", "s89", 256)
    o += [salu("s_add_u32", "s68", "s90", WS_WOT), salu("s_addc_u32", "s69", "s91", 0)] + srd(S_WOT, "s68", "s69", 2 * WOT_BLK)
    o += [salu("s_lshl_b32", sFG, "s3", 2), salu("s_lshl_b32", sFB, "s5", 6)]
    if OPT["dbgt"]:
        o += [salu("s_add_u32", sFG, sFG, 128), salu("s_add_u32", sFB, sFB, 128)]
    o += [
          valu("v_cmp_eq_u32", "vcc", 0, "v0"), valu("v_mov_b32", "v10", "0x1000"), valu("v_mov_b32", f"v{ONES}", "0x3f803f80"),
          valu("v_cndmask_b32", vFLG, "v10", 0, "vcc"),
          ]
    if OPT["one1"]:
        o += [valu("v_and_b32", "v10", 15, "v0"), valu("v_cmp_eq_u32", "vcc", 0, "v10"), valu("v_cndmask_b32", f"v{ONES}", 0, f"v{ONES}", "vcc")]
    o += [valu("v_mov_b32", f"v{ONES + r}", f"v{ONES}") for r in range(1, 4)]
    if OPT["prof"]:
        o += [salu("s_add_u32", "s68", "s90", WS_PROF), salu("s_addc_u32", "s69", "s91", 0)] + srd(S_PROF, "s68", "s69", 1 << 20)
        o += [salu("s_lshl_b32", sPROF, "s2", 2), salu("s_add_u32", sPROF, sPROF, sWAVE), salu("s_lshl_b32", sPROF, sPROF, 10)]
        o += prof_stamp(0, 8)
    o += [salu("s_lshl_b32", sKV, "s6", 5), salu("s_add_u32", sKV, sKV, "s7"), salu("s_lshl_b32", sKV, sKV, 17),
          salu("s_lshl_b32", sT0, "s71", 12),
          salu("s_lshr_b32", sROT, "s2", 3), salu("s_lshl_b32", sT1, "s2", 1), salu("s_add_u32", sROT, sROT, sT1),
          salu("s_and_b32", sROT, sROT, 0 if OPT["norot"] else 15), salu("s_lshl_b32", sROT, sROT, 13), salu("s_add_u32", sROT, sROT, sT0)]
    if OPT["tlbw"]:
        for n, (r, so) in enumerate(((S_K, sKV), (S_V, sKV), (S_WO, sWOS))):
            o += [Ins(f"buffer_load_dword v{244 + n}, off, s[{r}:{r + 3}], {so} nt", "vld", rd=[so] + regs("s", r, 4))]
    if OPT["kpro"]:
        o += kv_patterns()
        for k in [("K", 0), ("V", 0), ("K", 1)][:OPT["kpro"]]:
            for pre, ds in unit_dmas(k, sE):
                o += pre + [nop(1)] + ds
    o += [salu("s_mul_i32", sO, "s3", O_GRP), salu("s_mul_i32", sT0, "s71", 786432), salu("s_add_u32", sO, sO, sT0),
          salu("s_lshr_b32", sT0, "s4", 1), salu("s_mul_i32", sT0, sT0, 16 * 12288), salu("s_add_u32", sO, sO, sT0),
          salu("s_and_b32", sT0, "s4", 1), salu("s_mul_i32", sT0, sT0, 4 * 12288), salu("s_add_u32", sO, sO, sT0),
          salu("s_mul_i32", sT0, "s70", 2 * 12288), salu("s_add_u32", sO, sO, sT0)]
    o += [salu("s_lshl_b32", "s68", "s6", 3), salu("s_add_u32", "s68", "s68", "s4"),
          salu("s_lshr_b32", sT0, "s68", 1), salu("s_and_b32", sT1, sT0, "0x33"),
          salu("s_and_b32", "s69", sT0, 4), salu("s_lshl_b32", "s69", "s69", 1), salu("s_or_b32", sT1, sT1, "s69"),
          salu("s_and_b32", "s69", sT0, 8), salu("s_lshr_b32", "s69", "s69", 1), salu("s_or_b32", sT1, sT1, "s69"),
          salu("s_mul_i32", sWOD, sT1, 20480),
          salu("s_and_b32", sT0, "s68", 1), salu("s_lshl_b32", sT0, sT0, 11), salu("s_add_u32", sWOD, sWOD, sT0),
          salu("s_mul_i32", sT0, "s5", WOT_BLK), salu("s_add_u32", sWOD, sWOD, sT0),
          salu("s_lshl_b32", sT0, "s70", 12), salu("s_add_u32", sWOD, sWOD, sT0),
          salu("s_lshl_b32", sT0, "s71", 10), salu("s_add_u32", sWOD, sWOD, sT0),
          salu("s_mul_i32", sT0, "s70", 1310720 - 20480), salu("s_add_u32", sWOX, sWOD, sT0)]
    o += [salu("s_add_u32", "s68", "s3", "s4"), salu("s_and_b32", "s68", "s68", 3)]
    for x in by_role(sQT, "s68", TBLQ1):
        o += x if isinstance(x, list) else [x]
    cbits = struct.unpack("<I", struct.pack("<f", math.log2(math.e) / math.sqrt(128.0)))[0]
    o += [salu("s_mov_b32", sC, "0x%x" % cbits), salu("s_mov_b32", sHI, "0x5d800000" if OPT["tmax"] == 1 else "0x53800000" if OPT["tmax"] else "0x4e800000"),
          salu("s_mov_b32", sLO, "0x42200000" if OPT["tmax"] else "0x30800000"), salu("s_mov_b32", sNC, "0x%x" % (cbits | 0x80000000)),
          salu("s_mov_b32", sIT, 0)]
    if not OPT["kpro"]:
        o += kv_patterns()
    o += [salu("s_lshl_b32", "s69", "s70", 13), salu("s_mul_i32", "s68", "s71", 12288), salu("s_add_u32", "s68", "s68", XS[0]),
          valu("v_bfe_u32", "v8", i, 2, 2), valu("v_and_b32", "v9", 3, i)]
    o += [valu("v_lshl_add_u32", c, b, 8, c), valu("v_add_u32", c, KWANT[15], c), valu("v_add_u32", kA[0], "s69", c)]
    o += [valu("v_xor_b32", kA[j], j << 6, kA[0]) for j in range(1, 4)]
    o += [valu("v_lshl_add_u32", "v5", a, 2, "v8"), valu("v_lshlrev_b32", c, 8, "v5"), valu("v_and_b32", "v6", 7, "v5"),
          valu("v_lshl_add_u32", c, "v6", 5, c), valu("v_lshl_add_u32", c, "v9", 3, c),
          valu("v_add_u32", c, VWANT[0], c), valu("v_add_u32", vA[0], "s69", c)]
    o += [valu("v_xor_b32", vA[d], d << 5, vA[0]) for d in range(1, 8)]
    o += [valu("v_lshl_add_u32", c, a, 3, "v8"), valu("v_lshlrev_b32", c, 7, c),
          valu("v_and_b32", "v5", 2, "v8"), valu("v_and_b32", "v7", 1, a), valu("v_lshl_add_u32", "v5", "v7", 2, "v5"),
          valu("v_xor_b32", "v5", "v5", "v9"), valu("v_lshl_add_u32", c, "v5", 4, c), valu("v_add_u32", wA[0], "s69", c),
          valu("v_xor_b32", wA[1], 64, wA[0])]
    o += [valu("v_lshrrev_b32", "v5", 1, b), valu("v_xor_b32", "v5", "v5", a),
          valu("v_lshlrev_b32", "v5", 4, "v5"), valu("v_lshl_add_u32", c, b, 7, "v5"),
          valu("v_xor_b32", "v5", 64, c), valu("v_add_u32", xA[0], "s68", c), valu("v_add_u32", xA[1], "s68", "v5")]
    o += [salu("s_lshl_b32", "s68", "s70", 2), salu("s_lshl_b32", "s69", "s71", 3), salu("s_add_u32", "s69", "s69", WOJ_ADDR),
          valu("v_lshrrev_b32", c, 1, a), valu("v_lshlrev_b32", c, 12, c), valu("v_lshl_add_u32", c, "v6", 7, c),
          valu("v_add_u32", c, "s69", c), valu("v_add_u32", "v5", "s68", "v9"), valu("v_lshrrev_b32", "v6", 1, "v6"),
          valu("v_xor_b32", "v5", "v5", "v6"), valu("v_lshl_add_u32", vJ, "v5", 4, c)]
    o += [needvm([("W", 0, 0), ("X", 0)]), barrier()] + first_reads(0)
    return o


def acc2(pi, xy, qi):
    return ((pi * 6 + qi) * 2 + xy) * 4


def a2(st, pi, ks, xy):
    if st == 0:
        return (240 if pi == 0 else 48 + 16 * pi) + 8 * ks + 4 * xy
    return (48 if pi == 0 else 112 + 16 * pi) + 8 * ks + 4 * xy


def b2(st, qi, ks):
    return (192 if st == 0 else 0) + 8 * qi + 4 * ks


V2A = ["v%d" % i for i in range(240, 245)]


def k2_loads_A(st, pi, soff=None):
    return [vload(("a", a2(st, pi, ks, xy)), 4, V2A[pi], S2A, soff or sA2, ks * 2048 + xy * 1024, flags=SC1) for xy in range(2) for ks in range(2)]


def k2_loads_B(st, qi):
    return [vload(("a", b2(st, qi, ks)), 4, V2B[qi], S2B, sB2, ks * 1024, flags=SC1) for ks in range(2)]


def k2_lds_A(st, pi):
    out = []
    for xy in range(2):
        for ks in range(2):
            r = [r for r, (s_, p_, off) in PF2.items() if (s_, p_) == (st, pi) and (r not in ("s87", "s99") or off == 2048 * ks)][0]
            key = [k for k, rs in sPF.items() if r in rs][0]
            if key[0] == "W":
                out.append(ds_read("ds_read_b128", ("a", a2(st, pi, ks, xy)), 4, V2W, U[key]["addr"] + ks * 2048 + xy * 1024))
            elif key[0] == "P":
                out.append(ds_read("ds_read_b128", ("a", a2(st, pi, ks, xy)), 4, V2P,
                                   (0 if key[1] == 1 else PADDR[key] - D[4]) + ks * 2048 + xy * 1024))
            elif r == sPF[key][0]:
                out.append(ds_read("ds_read_b128", ("a", a2(st, pi, ks, xy)), 4, V2X, U[key]["addr"] - XS[0] + ks * 2048 + xy * 1024))
            else:
                out.append(ds_read("ds_read_b128", ("a", a2(st, pi, ks, xy)), 4, V2X, U[key]["addr"] - XS[0] + 4096 + xy * 1024))
    return out


def k2_steps(S, first, loadA, loadB, pend, check=False, late=(), final=None):
    for st in range(2):
        q0 = S.n()
        tiles = [(pi, xy, qi) for pi in range(5) for xy in range(2) for qi in range(6)]
        if final is not None and st == 1:
            tiles = [t for t in tiles if t[2] >= 3] + [t for t in tiles if t[2] < 3]
            for n, x in enumerate(final[0]):
                S.put(q0 + 2 + n, x)
            for n, x in enumerate(final[1]):
                S.put(q0 + 61 + 2 * n, x)
        for pi, xy, qi in tiles:
            for ks in range(2):
                acc = ("v", acc2(pi, xy, qi))
                S.add(mfma(16, acc, ("a", a2(st, pi, ks, xy)), ("a", b2(st, qi, ks)),
                           None if (first and st == 0 and ks == 0) else acc))
        pos = [int(0.5 + 3.75 * n) for n in range(32)]
        if pend[st]:
            ls = k2_loads_A(1 - st, 4)
            S.put(q0 + pos[0], ls[2])
            S.put(q0 + pos[1], ls[3])
            for n, x in enumerate(next_off(sA2, TA, sAB, 20480)):
                S.put(q0 + pos[1] + 1 + n, x)
        if first and st == 0:
            for n, (pre, l) in enumerate(late):
                S.put(q0 + 6 * n + 2, *pre)
                S.put(q0 + 6 * n + 3, l)
            for n, r in enumerate(k2_lds_A(1, 0) + k2_lds_A(1, 1) + k2_lds_A(1, 2)):
                S.put(q0 + 6 * n + 5 if n < 8 else q0 + 54 + 4 * (n - 8), r)
            S.put(q0 + 70, valu("v_add_u32", V2P, D[9] - D[5], V2P))
            for n, r in enumerate(k2_lds_A(1, 3)):
                S.put(q0 + 73 + 4 * n, r)
        elif loadB[st]:
            for n, l in enumerate([l for qi in range(6) for l in k2_loads_B(1 - st, qi)]):
                S.put(q0 + pos[2 + n], l)
            for n, x in enumerate(next_off(sB2, TB, sBB, 12288)):
                S.put(q0 + pos[13] + 1 + n, x)
        if loadA[st]:
            n = 14
            for pi in range(5):
                ls = k2_loads_A(st, pi)
                for x, l in enumerate(ls if pi < 4 else ls[:2]):
                    assert pos[n] >= 24 * pi + 11 + 12 * (x >> 1), (pi, x, pos[n])
                    S.put(q0 + pos[n], l)
                    n += 1
        if first and st == 1:
            S.put(q0 + 110, needvm(["ost"]), barrier())
            S.put(q0 + 111, valu("v_mov_b32", V2P, "0x100"))
            S.put(q0 + 114, atomic_add(V2P, sFG))
        if check and st == 1:
            S.put(q0 + 1, scmp("s_cmp_eq_u32", sCNT, 5), salu("s_cselect_b32", sWANT, 8, 0), salu("s_cselect_b32", sPL, sFG, "0x1000"))
            S.put(q0 + 2, poll_load(V2P, sPL))
        if check and st == 0:
            S.put(q0 + 1, valu("v_readfirstlane_b32", sQ, V2P))
            S.put(q0 + 6, salu("s_bfe_u32", sQ, sQ, "0x80008"), scmp("s_cmp_lt_u32", sQ, sWANT),
                  raw("s_cbranch_scc1 L_spin2", "branch", rd=["scc"]), label("L_spin2_back"))


def k2_first(S, late):
    seq = [(0, p) for p in range(4)] + [(1, p) for p in range(3)] + [(0, 4), (1, 3), (1, 4)]
    at = {}
    for st, pi in seq:
        at[(st, pi)] = S.n()
        for xy in range(2):
            for qi in range(6):
                for ks in range(2):
                    acc = ("v", acc2(pi, xy, qi))
                    S.add(mfma(16, acc, ("a", a2(st, pi, ks, xy)), ("a", b2(st, qi, ks)), None if (st == 0 and ks == 0) else acc))
    for n, (pre, l) in enumerate(late):
        S.put(13 * n + 2, *pre)
        S.put(13 * n + 3, l)
    assert 13 * len(late) < at[(0, 4)]
    g = 5
    for pi in range(4):
        for r in k2_lds_A(1, pi):
            while S.fixed.get(g):
                g += 1
            S.put(g, r)
            g += 4
    items = []
    for pi in range(5):
        for x, l in enumerate(k2_loads_A(0, pi, sSO)):
            items.append((l, at[(0, pi)] + 11 + 12 * (x >> 1), 240 + 24 * pi + 12 * (x >> 1)))
        for x, l in enumerate(k2_loads_A(1, pi)[:4 if pi < 4 else 2]):
            items.append((l, at[(1, pi)] + 11 + 12 * (x >> 1), 360 + 24 * pi + 12 * (x >> 1)))
    for qi in range(6):
        for ks, l in enumerate(k2_loads_B(0, qi)):
            items.append((l, at[(0, 4)] + 12 + 2 * qi + ks, 200 + 2 * qi + ks))
    items.sort(key=lambda i: i[2])
    g, lastB = 11, 0
    while items:
        c = [i for i in items if i[1] <= g]
        if c and not any(S.fixed.get(k) and any(j.kind in ("vld", "vst") for j in S.fixed[k]) for k in ((g - 2, g - 1, g + 1) if g < 180 else (g - 1, g + 1))) and not S.fixed.get(g):
            S.put(g, c[0][0])
            if sB2 in c[0][0].rd:
                lastB = g
            items.remove(c[0])
        g += 1
        assert g < 240, items
    for n, x in enumerate(next_off(sB2, TB, sBB, 12288)):
        S.put(lastB + 1 + n, x)
    if OPT["p2st"]:
        for n, g in enumerate((47, 95, 143, 167, 191, 215)):
            S.put(g, raw(f"s_memrealtime s[76:77]", wr=["s76", "s77"]), raw("s_waitcnt lgkmcnt(0)", "drainlg"), salu("s_mov_b32", f"s{101 - n}", "s76"))
    g = 226
    while S.fixed.get(g) or S.fixed.get(g + 1) or S.fixed.get(g + 3):
        g += 1
    S.put(g, needvm(["ost"]), barrier())
    S.put(g + 1, valu("v_mov_b32", V2P, "0x100"))
    S.put(g + 3, atomic_add(V2P, sFG))


def spin(name, back, dsts, soffs, conds):
    o = [label(name), salu("s_mov_b32", sSPIN, 0), label(name + "_loop"), raw("s_sleep 8")]
    o += [poll_load(d, so) for d, so in zip(dsts, soffs)]
    o += [drain(), salu("s_add_u32", sSPIN, sSPIN, 1), scmp("s_cmp_gt_u32", sSPIN, "0x20000"),
          raw(f"s_cbranch_scc1 {back}", "branch", rd=["scc"])]
    for d, (sh, msk, want) in zip(dsts, conds):
        o += [valu("v_readfirstlane_b32", sQ, d), nop(4)]
        if sh:
            o += [salu("s_lshr_b32", sQ, sQ, sh)]
        if msk:
            o += [salu("s_and_b32", sQ, sQ, msk)]
        o += [scmp("s_cmp_lt_u32", sQ, want), raw(f"s_cbranch_scc1 {name}_loop", "branch", rd=["scc"])]
    o += [raw(f"s_branch {back}", "branch")]
    return o


def phase2():
    o = [valu("v_mov_b32", V2L, vL16), salu("s_and_b32", "s85", "s4", 3), salu("s_and_b32", "s32", sWAVE, 1), salu("s_lshr_b32", "s33", sWAVE, 1),
         salu("s_mul_i32", sAB, sWAVE, 16 * 20480), salu("s_lshr_b64", f"s[{TA}:{TA + 1}]", "s[34:35]", 4)]
    o += next_off(sB2, TB, sBB, 12288)
    o += [valu("v_add_u32", V2W, sW4K, V2L), salu("s_add_u32", "s7", sW6K, XS[0]), valu("v_add_u32", V2X, "s7", V2L), valu("v_add_u32", V2P, D[4], V2W)]
    o += [scmp("s_cmp_eq_u32", "s33", 0)]
    o += [salu("s_cselect_b32", f"s{47 + q}", q, 2 - q) for q in range(3)]
    o += [salu("s_cselect_b32", f"s{36 + pi}", pi, 4 - pi) for pi in range(5)]
    o += [salu("s_mul_i32", "s34", "s32", 3)]
    o += [salu("s_add_u32", f"s{47 + q}", f"s{47 + q}", "s34") for q in range(3)]
    save = list(vR)
    vR[:] = [f"v{16 + q}" for q in range(6)]
    nl = 12 if OPT["pace"] else 8
    eg = epilogue_groups(0, lambda n: 240 - 4 * (24 - n) - (0 if OPT["pace"] else 16) if n >= 24 - nl else 32 + 4 * n, V2L)
    vR[:] = save
    b1 = [l for qi in range(6) for l in k2_loads_B(1, qi)]
    for n, (v, pre, st, imm) in enumerate(eg):
        m = b1[2 * (n - 8):2 * (n - 8) + 2] if 8 <= n < 14 else []
        o += v[:8] + m[:1] + v[8:16] + m[1:] + v[16:]
        if OPT["pace"]:
            if n % 2 == 0:
                o += eg[n // 2][1] + [eg[n // 2][2]]
        elif n < 16:
            o += pre + [st]
        if n == 15:
            o += [needvm(list(sPF))]
            for pi in range(5):
                o += [salu("s_lshl_b32", "s7", f"s{36 + pi}", 12), valu("v_add_u32", V2A[pi], "s7", V2L)]
            o += next_off(sPL, TA, sAB, 20480)
            if OPT["pace"]:
                o += next_off(sSO, TA, sAB, 20480)
            o += next_off(sA2, TA, sAB, 20480)
        if 16 <= n < 21:
            o += k2_lds_A(0, n - 16)
    late = []
    for n, g in enumerate(eg[24 - nl:]):
        st = vstore(("v", 240 - 4 * (nl - n) - (0 if OPT["pace"] else 16)), 4, V2L, S_OST, sE, g[3], tag="ost", flags=SC1)
        late.append((g[1], st))
    o += k2_loads_A(1, 4, sPL) + [valu("v_add_u32", V2P, D[9] - D[4], V2P)]
    o += next_off(sB2, TB, sBB, 12288) + [salu("s_mov_b32", sWANT, 0)]
    o += prof_stamp(1, 30)
    o += srd(S2OUT, "s92", "s93", 7864320)
    o += [salu("s_mul_i32", sOB, "s6", 192 * 2560), salu("s_mul_i32", "s7", "s84", 96 * 2560), salu("s_add_u32", sOB, sOB, "s7"),
          salu("s_mul_i32", "s7", "s5", 1280), salu("s_add_u32", sOB, sOB, "s7"),
          salu("s_mul_i32", "s7", "s85", 320), salu("s_add_u32", sOB, sOB, "s7"), salu("s_mov_b32", sCNT, 6)]
    S0 = Sched()
    if OPT["pace"]:
        k2_first(S0, late)
    else:
        k2_steps(S0, True, [True, True], [True, True], [False, True], late=late)
    S0.order_fixed()
    first = S0.build()
    S1 = Sched()
    k2_steps(S1, False, [True, True], [True, True], [True, True], check=True)
    if OPT["prof"] and not OPT["p2st"]:
        S1.put(3, raw("s_memrealtime s[76:77]", wr=["s76", "s77"]), raw("s_waitcnt lgkmcnt(0)", "drainlg"),
               salu("s_mov_b32", "s101", "s100"), salu("s_mov_b32", "s100", "s99"), salu("s_mov_b32", "s99", "s98"),
               salu("s_mov_b32", "s98", "s97"), salu("s_mov_b32", "s97", "s96"), salu("s_mov_b32", "s96", "s76"))
    S1.put(237, salu("s_sub_u32", sCNT, sCNT, 1))
    S1.order_fixed()
    loop = [label("L_k2")] + S1.build() + [scmp("s_cmp_lg_u32", sCNT, 0), raw("s_cbranch_scc1 L_k2", "branch", rd=["scc"])]
    R1, R2, i, a, V2O = V2A[0], V2A[1], V2A[2], V2A[3], V2A[4]
    setup = [salu("s_mul_i32", "s7", sWAVE, 30720), valu("v_add_u32", V2W, "s7", V2L), valu("v_lshrrev_b32", i, 4, V2L),
             valu("v_and_b32", a, 15, i), valu("v_mul_u32_u24", a, 2560, a), valu("v_lshrrev_b32", i, 4, i),
             valu("v_lshl_add_u32", V2O, i, 4, a),
             salu("s_xor_b32", sPL, sWAVE, 1), salu("s_sub_u32", sPL, sPL, sWAVE), salu("s_mul_i32", "s7", sPL, 30720),
             valu("v_add_u32", R1, "s7", V2W),
             salu("s_xor_b32", sPL, sWAVE, 3), salu("s_sub_u32", sPL, sPL, sWAVE), salu("s_mul_i32", "s7", sPL, 30720),
             valu("v_add_u32", R2, "s7", V2W)]
    sent = [(pi, xy, qi) for pi in range(5) for qi in range(3, 6) for xy in range(2)]
    wr = {t: ds_write("ds_write_b128", V2W, ("v", acc2(*t)), 4, n * 1024) for n, t in enumerate(sent)}
    S2 = Sched()
    e = []
    if OPT["redov"]:
        order = [wr[(pi, xy, qi)] for pi in range(5) for xy in range(2) for qi in range(3, 6)]
        k2_steps(S2, False, [False, False], [True, False], [True, False], final=(setup, order[:29]))
        e = order[29:]
    else:
        k2_steps(S2, False, [False, False], [True, False], [True, False])
        e = setup + list(wr.values())
    S2.order_fixed()
    last = S2.build()
    e += [needlgkm0(), barrier()] + prof_stamp(8, 234)
    for s in list(range(7, 15)) + list(range(7)):
        pi, q = divmod(s, 3)
        e += [ds_read("ds_read_b128", ("v", acc2(pi, xy, q + 3)), 4, R1, (2 * s + xy) * 1024) for xy in range(2)]
    for s in list(range(7, 15)) + list(range(7)):
        pi, q = divmod(s, 3)
        d, t = acc2(pi, 0, q), acc2(pi, 0, q + 3)
        e += [valu("v_add_f32", f"v{d + r}", f"v{d + r}", f"v{t + r}") for r in range(8)]
        if s >= 7:
            e += [ds_write("ds_write_b128", R1, ("v", acc2(pi, xy, q)), 4, (2 * s + xy) * 1024) for xy in range(2)]
    e += [needlgkm0(), barrier()]
    for s in range(8):
        pi, q = divmod(s, 3)
        for xy in range(2):
            e += [ds_read("ds_read_b128", ("v", acc2(pi, xy, q + 3)), 4, R2, (2 * (14 - s) + xy) * 1024)]
    for s in range(8):
        pi, q = divmod(s, 3)
        d0, t0 = acc2(pi, 0, q), acc2(pi, 0, q + 3)
        e += [valu("v_add_f32", f"v{d0 + r}", f"v{d0 + r}", f"v{t0 + r}") for r in range(8)]
        e += [valu("v_cvt_pk_bf16_f32", f"v{d0 + r}", f"v{d0 + 2 * r}", f"v{d0 + 2 * r + 1}") for r in range(4)]
        e += [salu("s_mul_i32", "s7", f"s{47 + q}", 40960), salu("s_lshl_b32", sPL, f"s{36 + pi}", 6),
              salu("s_add_u32", "s7", "s7", sPL), salu("s_add_u32", sSO, "s7", sOB),
              vstore(("v", d0), 4, V2O, S2OUT, sSO, 0, flags=OPT["outf"])]
    e += prof_stamp(9, 234)
    if OPT["prof"]:
        for n in range(6):
            e += [valu("v_mov_b32", "v234", 1), valu("v_mov_b32", "v235", f"s{101 - n}"), pstore(234, 2 + n), nop(4)]
    if OPT["dbgt"]:
        a, b = {1: ("s76", "s78"), 2: ("s74", "s76"), 3: ("s76", "s74"), 4: ("s76", "s74")}[OPT["dbgt"]]
        e += [drain(), raw("s_memrealtime s[78:79]", wr=["s78", "s79"]), raw("s_waitcnt lgkmcnt(0)", "drainlg"),
              salu("s_sub_u32", a, a, "s72"), salu("s_sub_u32", b, b, "s72"),
              scmp("s_cmp_lt_u32", "s2", 8), salu("s_cselect_b32", "s7", "s2", "0x1000"), salu("s_lshl_b32", "s7", "s7", 2),
              valu("v_mov_b32", "v0", a), valu("v_mov_b32", "v1", b),
              Ins(f"buffer_store_dword v0, {vFLG}, s[{S_FLG}:{S_FLG + 3}], s7 offen", "vst", rd=["v0", vFLG, "s7"]),
              Ins(f"buffer_store_dword v1, {vFLG}, s[{S_FLG}:{S_FLG + 3}], s7 offen offset:32", "vst", rd=["v1", vFLG, "s7"])]
    e += [label("L_end"), raw("s_endpgm")]
    sp1 = spin("L_spin1", "L_spin1_back", vPOLL[:1], [sFG], [(0, "0xff", 8)]) + spin("L_spin3", "L_spin3_back", vPOLL[1:], [sFB], [(16, 0, 128)])
    sp2 = spin("L_spin2", "L_spin2_back", [V2P], [sFG], [(8, "0xff", 8)])
    return o, first, loop, last, e, sp1, sp2


def check_pointers(pro):
    ptr = set(regs("s", 56, 8) + regs("s", 88, 8))
    dirty = set()
    for x in pro:
        if x.text.startswith("s_load"):
            continue
        if x.text.startswith(("s_mov_b32", "s_and_b32", "s_add_u32", "s_addc_u32")) and x.rd & dirty and "0xffff" in x.text:
            raise AssertionError(x.text)
        dirty |= x.wr & ptr


def kernel():
    pro = prologue()
    check_pointers(pro)
    q1 = q_phase(False)
    if OPT["dbgt"] >= 3:
        st = [raw("s_memrealtime s[76:77]", wr=["s76", "s77"]), raw("s_waitcnt lgkmcnt(0)", "drainlg")]
        if OPT["dbgt"] == 3:
            q1 = q1 + st
        else:
            q1 = st + q1
    full = []
    for last in (False, True):
        _alt[0] = 0
        full.append(a_phase(last))
    cut = [[n for n, x in enumerate(f) if x.text == "L_CUT:"][0] for f in full]
    assert [x.text for x in full[0][:cut[0]]] == [x.text for x in full[1][:cut[1]]]
    att = [label("L_att")] + full[0][:cut[0]]
    tails = []
    for v in range(2):
        t = [label(f"L_tail{v + 1}")] + full[v][cut[v] + 1:]
        t += [raw("s_cbranch_vccnz L_slow", "branch", rd=["vcc"]), label(f"L_back{v + 1}")]
        t += [valu("v_rcp_f32", f"v{16 + qt}" if v else vR[qt], f"v{lacc(qt)}") for qt in range(6)]
        if OPT["dbgt"] and not (v and OPT["dbgt"] >= 3):
            t += [raw(f"s_memrealtime s[{74 + 2 * v}:{75 + 2 * v}]", wr=[f"s{74 + 2 * v}", f"s{75 + 2 * v}"]), raw("s_waitcnt lgkmcnt(0)", "drainlg")]
        t += prof_stamp(29)
        if OPT["prof"]:
            t += [salu("s_add_u32", sPROF, sPROF, 240)]
        tails.append(t)
    q2 = [salu("s_mov_b32", sIT, 1), label("L_q2")] + q_phase(True) + [raw("s_branch L_att", "branch")]
    o, first, loop2, last, e, sp1, sp2 = phase2()
    slow = slow_path()
    parts = [pro, q1, att, tails[0], q2, tails[1], o, first, loop2, last, e, slow, sp1, sp2]
    waits = compute_waits([pro + q1 + att + tails[0] + q2 + att + tails[1] + o + first + loop2 + loop2 + loop2 + last + e, slow, sp1, sp2])
    done = {}
    P = [apply_waits(x, waits, done) for x in parts]
    pads = pad_hazards([P[0] + P[1] + P[2] + P[3] + P[4] + P[2] + P[5] + P[6] + P[7] + P[8] + P[8] + P[9] + P[10], P[11], P[12], P[13]])
    al = ".p2align 3\n"
    return (emit(P[0] + P[1], pads) + al + emit(P[2] + P[3] + P[4], pads) + al + emit(P[5] + P[6] + P[7], pads) + al +
            emit(P[8] + P[9] + P[10] + P[11] + P[12] + P[13], pads) + "L_endcode:\n")


def main():
    kn = NAME + "_kernel"
    s = open("cdna_kernels/" + NAME + ".s.ref").read().split("; Override launch")[0]
    s += "; @launch grid=(256,1,1) block=(256,1,1) lds=163840\n"
    s += """; One persistent workgroup per CU (4 waves, one per SIMD, 512 registers each); all MFMAs are 16x16x32 bf16.
;               row maximum (L_slow). K/V tiles stream through a ring of LDS pages at an even rate.
"""
    s += '.amdgcn_target "amdgcn-amd-amdhsa--gfx950"\n.text\n'
    s += f".globl {kn}\n.p2align 8\n.type {kn},@function\n{kn}:\n" + kernel()
    s += f""".section .rodata,"a"
.p2align 6
.amdhsa_kernel {kn}
  .amdhsa_next_free_vgpr 512
  .amdhsa_next_free_sgpr 102
  .amdhsa_accum_offset 256
  .amdhsa_group_segment_fixed_size 0
  .amdhsa_kernarg_size 104
  .amdhsa_user_sgpr_count 2
  .amdhsa_user_sgpr_kernarg_segment_ptr 1
  .amdhsa_system_sgpr_workgroup_id_x 1
.end_amdhsa_kernel
"""
    open(sys.argv[1], "w").write(s)


main()
```

```python
import sys, math, struct
from fw3 import *
from orders import orders
import alloc3

NAME = "concat_heads__mha_block_cached__mha_block_cached__near_ridge"
OPT = dict(outf=' sc1', redov=1, one1=1, warmj=0, pk=1, pfq1=1, rot2=4, gate=0, pace=1, lead=3, xpace=0, kvf=' nt', norot=0, tlbw=0, kpro=0, kplan=0, jlate=1, dbgt=0, jpro=0, k1s=0, e10=1, t23=0, nfree=1, kstep10=136, ks1=0, kn1=0, kfirst=6, k2late=0, qsp=1, tmax=2, xnum=25, xhi=100, ctq=0, cplim=1, p2st=0, kbar=0, kin=2, early2=0, cta='', rotq1=2, gstep=2, rotq=3, early=1, uni=0, prof=0, report=False, stg=67, warmw=True, codepf=2, codepf2=12, pf='', pf0=1, pfn=3, pff='', flagbar=12, map=0)
for a in sys.argv[2:]:
    k, v = a.split("=")
    OPT[k] = type(OPT[k])(int(v)) if not isinstance(OPT[k], str) else v

KB = 1024
SC1 = " sc1"
O_GRP = 2 * 786432
WS_WOT = 50331648
WOT_BLK = 5242880
WS_PROF = 64 * 1024 * 1024

S_K, S_V, S_X, S_WQ, S_OST, S_WO, S_WOT = 8, 12, 16, 20, 24, 28, 32
sKV, sWQ, sX, sW4K, sW6K, sO, sIT, sT0, sT1, sC, sWAVE = ["s%d" % i for i in range(36, 47)]
sWOS, sWOD, sWOX, sW5K, sHI, sLO = ["s%d" % i for i in range(47, 53)]
sPROF, sE, sJ = "s53", "s54", "s55"
sQT, sWS, sXS, sW1, sNC = "s50", "s67", "s95", "s63", "s7"
sROT, sFG, sFB, sCP = "s62", "s65", "s66", "s64"
sA2, sB2, sPL, sOB, sCNT, sSO, sQ, sSH, sWANT, sSPIN = "s28", "s29", "s30", "s31", "s67", "s68", "s69", "s70", "s71", "s94"
S_PROF, S_FLG = 72, 80
sPF = {("W", 0, 0): ["s84"], ("W", 0, 1): ["s85"], ("X", 0): ["s86", "s87"], ("X", 1): ["s98", "s99"], ("W", 1, 0): ["s100"],
       ("P", 0): ["s60"], ("P", 1): ["s61"], ("P", 2): ["s101"]}
PF2 = {"s84": (0, 0, 0), "s86": (0, 1, 0), "s60": (0, 2, 0), "s101": (0, 3, 0), "s98": (0, 4, 0), "s61": (1, 0, 0),
       "s87": (1, 1, 0), "s99": (1, 1, 2048), "s85": (1, 2, 0), "s100": (1, 3, 0)}
vK = ["v%d" % i for i in range(192, 196)]
vV = ["v196", "v197"]
vW = ["v%d" % i for i in range(198, 202)]
vX = ["v%d" % i for i in range(202, 206)]
kA = ["v%d" % i for i in range(206, 210)]
vA = ["v%d" % i for i in range(210, 218)]
wA = ["v218", "v219"]
xA = ["v220", "v221"]
vJ, vL16 = "v222", "v223"
ONES = 224
EPI = 228
vR = ["v%d" % i for i in range(244, 250)]
vFLG = "v250"
vT = ["v252", "v253"]
vC2 = "v[242:243]"
vPOLL = ["v254", "v255"]

V2B = ["v245", "v246", "v247", "v248", "v249", "v251"]
V2L, V2W, V2P, V2X = "v252", "v254", "v255", "v253"
S2A, S2B, S2OUT = S_WQ, S_X, 8
TA, TB, sAB, sBB = 56, 62, "s43", "s44"

D = [i * 16 * KB for i in range(10)]
XS = [96 * KB, 120 * KB]
WOJ_ADDR = D[4]


def qacc(p, xy, qt):
    return 64 * (qt >> 1) + (2 * p + (qt & 1)) * 8 + 4 * xy


def qf(qt, p):
    return 64 * (qt >> 1) + (2 * p + (qt & 1)) * 4


def sreg(qt):
    return 64 * (qt >> 1) + 32 + 8 * (qt & 1)


def mrun(qt):
    return 64 * (qt >> 1) + 56 + (qt & 1)


def mneg(qt):
    return 64 * (qt >> 1) + 58 + (qt & 1)


def lacc(qt):
    return 64 * (qt >> 1) + 48 + 4 * (qt & 1)


ABUF = [192, 248]


def bx(qt, ks):
    return 200 + 8 * qt + 4 * ks


def kf(kt, ks):
    return 192 + 16 * kt + 4 * ks


def vf(dt):
    return 224 + 4 * dt


def oacc(qt, dt):
    return 32 * qt + 4 * dt


def kpos(k):
    n1 = OPT["kn1"]
    if OPT["kin"]:
        return 2 + OPT["kstep10"] / 10.0 * (4 * (k // 4) + 1) + OPT["kin"] * (k % 4)
    return 2 + OPT["ks1"] / 10.0 * min(k, n1) + OPT["kstep10"] / 10.0 * max(k - n1, 0)


def build_units():
    U = {}
    for i in range(10):
        U[("X", i)] = dict(addr=XS[i % 2], size=24 * KB, iss=i - 2.5, land=i - 1, rel=i - 0.5)
        U[("W", i, 0)] = dict(addr=D[2 * (i % 2)], size=16 * KB, iss=i - 2.5, land=i - 1, rel=i - 0.5)
        U[("W", i, 1)] = dict(addr=D[2 * (i % 2) + 1], size=16 * KB, iss=i - 2, land=i - 0.5, rel=i)
    for k, e in ((("X", 0), -4), (("W", 0, 0), -4), (("X", 1), -3), (("W", 0, 1), -2), (("W", 1, 0), -2)):
        U[k]["iss"] = e
    pages = [9, 5, 4, 6, 0, 7, 1, 8, 2, 3, 9, 4, 5, 6, 0, 1, 7, 2, 8, 3, 9, 4, 5, 6, 0, 7, 1, 8, 2, 9, 5, 4]
    if OPT["kstep10"]:
        (_, pages), kiss, leads = alloc3.plan(0, OPT["kfirst"], pos=kpos, head=[5, 9, 4, 6, 1 if OPT["k2late"] else 0, 7, 1, 8],
                                                 lastN={0: 23, 1: 25, 2: 25, 3: 26, 4: 24, 5: 23, 6: 23, 7: 23, 8: 24, 9: 24})
        if OPT["report"]:
            print("; leads", [round(x, 1) for x in leads])
    for u in range(32):
        key = ("K", u // 2) if u % 2 == 0 else ("V", u // 2)
        N = 10 + u // 2 + u % 2
        U[key] = dict(addr=D[pages[u]], size=16 * KB, iss=N - 5 + (u == 30), land=N - 1, rel=N)
        if OPT["kstep10"] and u >= OPT["kfirst"]:
            U[key].update(iss=kiss[u], even=u - OPT["kfirst"])
    if OPT["kbar"]:
        for t in range(1, 16):
            U[("K", t)]["land"] += 0.5
    U[("V", 1)]["iss"] = U[("K", 2)]["iss"] = 7.5
    if "even" not in U[("V", 2)]:
        U[("V", 2)]["iss"] = 8.5
    if OPT["k2late"]:
        U[("K", 2)]["iss"] = 8
    if OPT["kstep10"]:
        if OPT["kfirst"] == 8:
            U[("V", 3)]["iss"] = 8.5
        return U
    if OPT["e10"] < 2:
        U[("K", 4)]["iss"] = 10
    if OPT["e10"] < 1:
        U[("V", 3)]["iss"] = 10
    if OPT["t23"]:
        U[("W", 0, 0)]["iss"] = U[("W", 1, 1)]["iss"] = -5
    return U


def check_units(second):
    V = {k: dict(u) for k, u in U.items()}
    if second:
        V[("K", 0)]["iss"], V[("V", 0)]["iss"], V[("K", 1)]["iss"] = -4, -3, -3
    else:
        V[("J",)] = dict(addr=D[4], size=32 * KB, iss=-1, land=2, rel=3)
        V[("J", 2)] = dict(addr=D[9], size=16 * KB, iss=0, land=2, rel=3)
        V[("K", 0)]["iss"], V[("V", 0)]["iss"], V[("K", 1)]["iss"] = 3, 4, 5
    allu = [(k, u["addr"], u["addr"] + u["size"], u["iss"], u["rel"]) for k, u in V.items()]
    assert all(u["iss"] < u["land"] <= u["rel"] for u in V.values())
    if second:
        allu += [(k, u["addr"], u["addr"] + u["size"], u["iss"] - 27, u["rel"] - 27) for k, u in U.items() if k[0] in "KV" and k[1] > 2]
        allu += [(("P", n), D[p], D[p] + 16 * KB, (23, 24, 24)[n], 27) for n, p in enumerate((5, 9, 4))]
        allu += [(k, u["addr"], u["addr"] + u["size"], u["iss"] + 27, 40) for k, u in U.items() if k in sPF]
    for a in allu:
        for b in allu:
            if a is not b and a[1] < b[2] and b[1] < a[2]:
                assert a[4] <= b[3] or b[4] <= a[3], (a, b)


U = build_units()
U[("K", 0)]["iss"] = U[("V", 0)]["iss"] = U[("K", 1)]["iss"] = None
PADDR = {("P", 0): D[5], ("P", 1): D[9], ("P", 2): D[4]}
_alt = [0]


def next_st():
    _alt[0] ^= 1
    return [sT0, sT1][_alt[0]]


def unit_dmas(key, tmp=None):
    kind = key[0]
    if kind == "P":
        return [([salu("s_add_u32", "m0", sW4K, PADDR[key])], [dma(vW[m], S_WQ, sPF[key][0], 1024 * m, key, SC1) for m in range(4)])]
    if kind == "J":
        jj = key[1]
        sT = tmp
        pre = [salu("s_add_u32", sT, sWOS, jj * 128), salu("s_add_u32", "m0", sW4K, D[(4, 5, 9)[jj >> 2]] + (jj & 3) * 1024)]
        return [(pre, [dma(vX[0], S_WO, sT, 0, "J", " nt")])]
    u = U[key]
    if key in sPF:
        if kind == "W":
            return [([salu("s_add_u32", "m0", sW4K, u["addr"])], [dma(vW[m], S_WQ, sPF[key][0], 1024 * m, key, SC1) for m in range(4)])]
        return [([salu("s_add_u32", "m0", sW6K, u["addr"])], [dma(vX[m], S_X, sPF[key][0], 1024 * m, key, SC1) for m in range(4)]),
                ([salu("s_add_u32", "m0", sW6K, u["addr"] + 4096)], [dma(vX[m], S_X, sPF[key][1], 1024 * m, key, SC1) for m in range(2)])]
    sT = tmp or next_st()
    if kind in "KV":
        pre = [salu("s_add_u32", sT, sROT, key[1] * 8192), salu("s_and_b32", sT, sT, "0x1ffff"), salu("s_add_u32", sT, sT, sKV),
               salu("s_add_u32", "m0", sW4K, u["addr"])]
        if kind == "K":
            return [(pre, [dma(vK[m], S_K, sT, 1024 * m, key, OPT["kvf"]) for m in range(4)])]
        return [(pre, [dma(vV[m & 1], S_V, sT, 1024 * m, key, OPT["kvf"]) for m in range(4)])]
    if kind == "W":
        return [([salu("s_add_u32", "m0", sW4K, u["addr"])], [dma(vW[m], S_WQ, sW1 if key[2] else sWS, 1024 * m, key) for m in range(4)])]
    g0 = ([salu("s_add_u32", "m0", sW6K, u["addr"])], [dma(vX[m], S_X, sXS, 1024 * m, key) for m in range(4)])
    pre2 = [salu("s_add_u32", sT, sXS, 40960), salu("s_add_u32", "m0", sW6K, u["addr"] + 4096)]
    return [g0, (pre2, [dma(vX[m], S_X, sT, 1024 * m, key) for m in range(2)])]


def set_pf_proj(tail=False):
    o = [salu("s_add_u32", sW1, sWQ, 524288 + 128)]
    for key, rs in sPF.items():
        if key[0] == "P":
            continue
        if key[0] == "W":
            o += [salu("s_add_u32", rs[0], sWQ, key[1] * 524288 + key[2] * 128)]
        else:
            o += [salu("s_add_u32", rs[0], sX, key[1] * 128), salu("s_add_u32", rs[1], sX, key[1] * 128 + 40960)]
    return o


ORD2 = orders(16, 4, 8, 7, {1: [4], 2: [1, 1, 2, 2, 2, 0, 0], 3: [1, 2, 2, 2, 1, 0, 0], 4: [2, 1, 2, 2, 1, 0, 0]}[OPT["rot2"]])[0] if OPT["rot2"] else [list(range(16))] * 4
ORDQ = orders(10, 4, None, 0, {1: [1, 1, 2, 2, 2, 1, 1], 2: [1, 1, 4], 3: [1, 1, 2, 2, 1, 1, 1, 1]}[OPT["rotq"]])[0] if OPT["rotq"] else [list(range(10))] * 4
assert all(o[:2] == [0, 1] for o in ORDQ)
TBLQ = [sum(x << (4 * n) for n, x in enumerate(o[2:])) for o in ORDQ]
ORDQ1 = {0: ORDQ, 1: orders(10, 4, None, 0, [4])[0], 2: orders(10, 4, None, 0, [2, 2, 2, 1, 1, 1, 1])[0], 3: orders(10, 4, None, 0, [4, 0, 1, 1, 1, 1, 1, 1])[0]}[OPT["rotq1"]]
TBLQ1 = [sum(x << (4 * n) for n, x in enumerate(o[2:])) for o in ORDQ1]
TBLQ0 = [o[0] | o[1] << 4 for o in ORDQ1]


def by_role(dst, role, consts):
    o = [salu("s_mov_b32", dst, "0x%x" % consts[0])]
    for r in range(1, 4):
        o += [[scmp("s_cmp_eq_u32", role, r), salu("s_cselect_b32", dst, "0x%x" % consts[r], dst)]]
    return o


TBL2 = [sum(x << (4 * n) for n, x in enumerate(o)) for o in ORD2]


def next_off(dst, tbl, base, stride):
    return [salu("s_and_b32", dst, f"s{tbl}", 15), salu("s_lshr_b64", f"s[{tbl}:{tbl + 1}]", f"s[{tbl}:{tbl + 1}]", 4),
            salu("s_mul_i32", dst, dst, stride), salu("s_add_u32", dst, dst, base)]


def set_pf_out():
    o = [salu("s_and_b32", "s68", "s4", 3), salu("s_mul_i32", "s68", "s68", 1310720), salu("s_mul_i32", "s69", "s5", WOT_BLK),
         salu("s_add_u32", "s68", "s68", "s69"), salu("s_add_u32", "s68", "s68", WS_WOT)]
    o += [[salu("s_add_u32", f"s{S_WQ}", "s90", "s68"), salu("s_addc_u32", "s69", "s91", 0)]]
    o += [salu("s_and_b32", f"s{S_WQ + 1}", "s69", "0xffff"), salu("s_mov_b32", f"s{S_WQ + 2}", 1310720),
          salu("s_mov_b32", f"s{S_X}", f"s{S_WQ}"), salu("s_mov_b32", f"s{S_X + 1}", f"s{S_WQ + 1}"), salu("s_mov_b32", f"s{S_X + 2}", 1310720)]
    o += [salu("s_lshr_b32", "s70", sWAVE, 1), salu("s_mul_i32", "s68", sWAVE, 16 * 20480), salu("s_lshl_b32", "s69", "s70", 14),
          salu("s_add_u32", "s68", "s68", "s69"), salu("s_lshl_b32", "s69", "s70", 13), salu("s_sub_u32", "s69", 4096, "s69")]
    o += [salu("s_add_u32", "s70", "s3", "s4"), salu("s_and_b32", "s70", "s70", 3),
          salu("s_mov_b32", "s34", "0x%x" % (TBL2[0] & 0xffffffff)), salu("s_mov_b32", "s35", "0x%x" % (TBL2[0] >> 32))]
    for r in range(1, 4):
        o += [[scmp("s_cmp_eq_u32", "s70", r), salu("s_cselect_b32", "s34", "0x%x" % (TBL2[r] & 0xffffffff), "s34"),
               salu("s_cselect_b32", "s35", "0x%x" % (TBL2[r] >> 32), "s35")]]
    o += [salu("s_and_b32", "s70", "s34", 15), salu("s_mul_i32", "s70", "s70", 20480), salu("s_add_u32", "s70", "s70", "s68"),
          salu("s_bfe_u32", "s71", "s34", "0x40004"), salu("s_mul_i32", "s71", "s71", 20480), salu("s_add_u32", "s71", "s71", "s68")]
    for r, (st, pi, off) in PF2.items():
        o += [salu("s_mul_i32", r, "s69", pi), salu("s_add_u32", r, r, "s71" if st else "s70")]
        if off:
            o += [salu("s_add_u32", r, r, off)]
    return o


def groups_at(iss):
    order = {"W": 0, "X": 1, "K": 2, "V": 2}
    keys = sorted([k for k, u in U.items() if u["iss"] is not None and u["iss"] % 27 == iss % 27 and "even" not in u],
                  key=lambda k: (U[k]["land"] - U[k]["iss"], order[k[0]], k))
    return [g for k in keys for g in unit_dmas(k)]


def place_dmas(S, groups, cand, lo):
    ci = 0
    for pre, ds in groups:
        g = cand[ci]
        for n, p in enumerate(pre[:-1]):
            S.put(max(lo, g - len(pre) + n), p)
        for d in ds:
            d.m0 = pre[-1]
            S.put(cand[ci], d)
            ci += 1


def fix_m0(S):
    cur, prev = None, -2
    for g in sorted(S.fixed):
        for d in [x for x in S.fixed[g] if x.kind == "dma"]:
            if d.m0.text != cur:
                m = Ins(d.m0.text, "salu", rd=d.m0.rd, wr=d.m0.wr)
                if g - 1 > prev and not any(x.kind in ("bar", "branch") for x in S.fixed.get(g - 1, [])):
                    S.put(g - 1, m)
                else:
                    S.fixed[g].insert(S.fixed[g].index(d), m)
                cur = d.m0.text
            prev = g
        if any(x.kind == "label" for x in S.fixed[g]):
            cur = None


def tags_for(n):
    t = [k for k, u in U.items() if (u["land"] - n) % 27 == 0]
    if n == OPT["flagbar"]:
        t += ["ost", "jst"]
    if n == 2:
        t += ["J"]
    return t


def atomic_add(vdata, soff):
    return Ins(f"buffer_atomic_add {vdata}, {vFLG}, s[{S_FLG}:{S_FLG + 3}], {soff} offen sc1", "atomic",
               rd=[vdata, vFLG, soff] + regs("s", S_FLG, 4), tag="flag")


def poll_load(vdst, soff):
    return Ins(f"buffer_load_dword {vdst}, off, s[{S_FLG}:{S_FLG + 3}], {soff} sc1", "vld", rd=[soff] + regs("s", S_FLG, 4), wr=[vdst])


class Win:
    def __init__(self, rs, init):
        self.rs = rs
        self.cur = init

    def move(self, new):
        d = (new - self.cur) & 0xffffffff
        self.cur = new
        return [valu("v_add_u32", r, "0x%x" % d, r) for r in self.rs] if d else []


def plan_windows(addrs, span):
    want = []
    i = 0
    while i < len(addrs):
        lo = hi = addrs[i]
        j = i + 1
        while j < len(addrs) and max(hi, addrs[j]) - min(lo, addrs[j]) + span < 65536:
            lo, hi = min(lo, addrs[j]), max(hi, addrs[j])
            j += 1
        want += [lo] * (j - i)
        i = j
    return want


KWANT = plan_windows([U[("K", t)]["addr"] for t in range(16)], 4096)
VWANT = plan_windows([U[("V", t)]["addr"] for t in range(16)], 4096)
check_units(False)
check_units(True)


def pstore(v0, idx):
    return Ins(f"buffer_store_dwordx2 v[{v0}:{v0 + 1}], off, s[{S_PROF}:{S_PROF + 3}], {sPROF} offset:{8 * idx}", "vst",
               rd=[f"v{v0}", f"v{v0 + 1}", sPROF] + regs("s", S_PROF, 4))


def prof_stamp(idx, v0=252):
    if not OPT["prof"]:
        return []
    return [raw("s_memtime s[76:77]", "other", wr=["s76", "s77"]),
            raw("s_memrealtime s[78:79]", "other", wr=["s78", "s79"]),
            raw("s_waitcnt lgkmcnt(0)", "drainlg"),
            valu("v_mov_b32", f"v{v0}", "s76"),
            valu("v_mov_b32", f"v{v0 + 1}", "s78"),
            pstore(v0, idx)]


def bar_seq(tags, idx):
    if OPT["prof"] < 2:
        return [needboth(tags), barrier()] + prof_stamp(idx)
    return [raw("s_memtime s[58:59]", "other", wr=["s58", "s59"]), raw("s_waitcnt lgkmcnt(0)", "drainlg"),
            needboth(tags), barrier(),
            raw("s_memtime s[76:77]", "other", wr=["s76", "s77"]),
            raw("s_memrealtime s[78:79]", "other", wr=["s78", "s79"]),
            raw("s_waitcnt lgkmcnt(0)", "drainlg"), salu("s_sub_u32", "s76", "s76", "s58"),
            valu("v_mov_b32", "v252", "s76"), valu("v_mov_b32", "v253", "s78"), pstore(252, idx)]


def a_read(i, dt, ks, t):
    p, xy = dt >> 1, dt & 1
    off = U[("W", i, p >> 1)]["addr"] + ks * 4096 + t * 512 + xy * 8
    return ds_read("ds_read_b64_tr_b16", ("a", ABUF[dt % 2] + 4 * ks + 2 * t), 2, wA[p & 1], off)


def first_reads(i):
    ax = U[("X", i)]["addr"] - XS[0]

    def A(ks, t):
        return a_read(i, 0, ks, t)

    def B(qt, ks):
        return ds_read("ds_read_b128", ("a", bx(qt, ks)), 4, xA[ks], ax + qt * 2048)
    return [A(0, 0), A(0, 1), B(0, 0), A(1, 0), A(1, 1), B(0, 1)] + [B(qt, ks) for qt in range(1, 6) for ks in range(2)]


def k_read(t, j):
    kt, ks = j >> 2, j & 3
    return ds_read("ds_read_b128", ("a", kf(kt, ks)), 4, kA[ks], U[("K", t)]["addr"] - KWANT[t] + kt * 4096)


def epilogue_groups(tmp, dst=None, vaddr=None):
    groups = []
    n = 0
    for T in range(3):
        for ph in range(2):
            for qs in range(2):
                for pl in range(2):
                    qt = 2 * T + qs
                    tb = tmp + 4 * (n % 3)
                    src = oacc(qt, 4 * ph + 2 * pl)
                    db = tb if dst is None or dst(n) is None else dst(n)
                    rd = [valu("v_accvgpr_read_b32", f"v{tb + i}", f"a{src + i}") for i in range(8)]
                    mu = [valu("v_mul_f32", f"v{tb + i}", vR[qt], f"v{tb + i}") for i in range(8)]
                    cv = [valu("v_cvt_pk_bf16_f32", f"v{db + i}", f"v{tb + 2 * i}", f"v{tb + 2 * i + 1}") for i in range(4)]
                    pre = [salu("s_add_u32", sE, sO, ph * 12288 + T * 4096)] if qs == 0 and pl == 0 else []
                    imm = qs * 2048 + pl * 1024
                    groups.append((rd + mu + cv, pre, vstore(("v", db), 4, vaddr or vL16, S_OST, sE, imm, tag="ost", flags=SC1), imm))
                    n += 1
    return groups


def conv_items(T, ps, packed=()):
    out = []
    for p in ps:
        for qs in range(2):
            R, Dd = qacc(p, 0, 2 * T + qs), qf(2 * T + qs, p)
            if OPT["tmax"]:
                pass
            elif p in packed:
                out += [(p, qs, valu("v_pk_mul_f32", f"v[{R + x}:{R + x + 1}]", f"v[{R + x}:{R + x + 1}]", "s[86:87]" if False else vC2)) for x in range(0, 8, 2)]
            else:
                out += [(p, qs, valu("v_mul_f32", f"v{R + x}", sC, f"v{R + x}")) for x in range(8)]
            out += [(p, qs, valu("v_cvt_pk_bf16_f32", f"v{Dd + x}", f"v{R + 2 * x}", f"v{R + 2 * x + 1}")) for x in range(4)]
    return out


def touch_code(S, g, base, st, va, vd):
    S.put(g, salu("s_add_u32", st, sCP, base))
    S.put(g + 1, salu("s_min_u32", st, st, "L_endcode-L_pc-256"))
    S.put(g + 2, valu("v_and_b32", va, 16, vL16), valu("v_lshlrev_b32", va, 3, va))
    S.put(g + 3, valu("v_add_u32", va, st, va))
    return Ins(f"global_load_dword {vd}, {va}, s[96:97]", "vld", rd=[va, "s96", "s97"], wr=[vd])


def q_phase(second):
    S = Sched()
    extra, mid = {}, {}
    if not second:
        jp = OPT["jpro"]
        if jp == 0:
            extra[0] = [g for jj in range(5) for g in unit_dmas(("J", jj), sE)]
            extra[1] = [g for jj in range(5, 10) for g in unit_dmas(("J", jj), sE)]
        elif jp < 10:
            extra[1] = [g for jj in range(jp, 10) for g in unit_dmas(("J", jj), sE)]
        kv = [unit_dmas(k, sE) for k in [("K", 0), ("V", 0), ("K", 1)]]
        if OPT["kplan"] == 0:
            extra[4], extra[5], extra[6] = kv
        elif OPT["kplan"] == 1:
            extra[7], mid[8] = kv[0], kv[1]
            extra[8] = kv[2]
        elif OPT["kplan"] == 2:
            extra[4], extra[7], mid[8] = kv
        elif OPT["kplan"] == 4:
            extra[5], extra[6], extra[7] = kv
        elif OPT["kplan"] == 5:
            extra[4], extra[6], extra[7] = kv
        elif OPT["kplan"] == 3:
            extra[5], extra[7], mid[8] = kv
    for i in range(10):
        q0 = S.n()
        for dt in range(8):
            for qt in range(6):
                for ks in range(2):
                    acc = ("v", qacc(dt >> 1, dt & 1, qt))
                    S.add(mfma(16, acc, ("a", ABUF[dt % 2] + 4 * ks), ("a", bx(qt, ks)), None if (i == 0 and ks == 0) else acc))
        for dt in range(1, 8):
            gaps = [4, 5, 6, 7] if dt == 1 else [0, 2, 3, 4]
            for n, (ks, t) in enumerate([(0, 0), (0, 1), (1, 0), (1, 1)]):
                S.put(q0 + 12 * (dt - 1) + gaps[n], a_read(i, dt, ks, t))
        S.put(q0 + 35, needboth(tags_for(i - 0.5)), barrier())
        S.put(q0 + 83, *bar_seq(tags_for(i), 2 + i))
        if i < 9:
            for n, r in enumerate(first_reads(i + 1)):
                S.put(q0 + 84 + n, r)
        else:
            kw = Win(kA, KWANT[15])
            mv = kw.move(KWANT[0])
            S.put(q0 + 80, *mv[:2])
            S.put(q0 + 82, *mv[2:])
            for j in range(8):
                S.put(q0 + 84 + j, k_read(0, j))
        if i <= 7:
            for n, x in enumerate([salu("s_bfe_u32", sXS, sQT, "0x%x" % (0x40000 + 4 * i)), salu("s_lshl_b32", sWS, sXS, 19),
                                   salu("s_add_u32", sWS, sWS, sWQ), salu("s_lshl_b32", sXS, sXS, 7), salu("s_add_u32", sXS, sXS, sX),
                                   salu("s_add_u32", sW1, sWS, 128)]):
                S.put(q0 + 26 + n, x)
        early = groups_at(i - 1)
        if i == 0 and not second and OPT["early2"]:
            first = [g for k in [("W", 0, 1), ("W", 1, 0), ("X", 1)] for g in unit_dmas(k)]
            place_dmas(S, first + early, [0, 1, 2, 3, 8, 9, 10, 11, 13, 17, 18, 19, 20, 21, 22, 23, 25, 29], -1)
            early = []
            if OPT["warmw"]:
                S.put(31, vload(("v", 252), 1, "v254", S_WQ, 0, 0))
                S.put(33, vload(("v", 253), 1, "v255", S_WQ, 0, 0))
        place_dmas(S, early + mid.get(i, []), [q0 + g for g in ((9, 17, 25, 33) if OPT["qsp"] and i == 9 else (9, 13, 17, 21, 25, 29, 31, 33))], q0)
        late = groups_at(i - 0.5) + extra.get(i, [])
        if i == 8 and 8 in extra:
            late = extra[8] + groups_at(i - 0.5)
        cand = [q0 + 37 + 4 * x for x in range(12)]
        nd = sum(len(g[1]) for g in late)
        if nd > 12:
            cand = sorted(cand + [q0 + 67, q0 + 71, q0 + 75, q0 + 79][:nd - 12])
        if OPT["qsp"] and i >= 8 and nd:
            allowed = [37, 41, 43, 45, 47, 49, 53, 55, 57, 59, 61, 65, 67, 69, 71, 73, 77, 79, 81]
            cand = [q0 + allowed[round(x * (len(allowed) - 1) / max(nd - 1, 1))] for x in range(nd)]
        place_dmas(S, late, cand, q0 + 35)
    if not second:
        for jj in range(10):
            q0 = 96 * 3
            if jj == 8:
                S.put(q0 + 65, valu("v_add_u32", vJ, D[9] - D[4] - 2 * 16384, vJ))
            for tt in range(2):
                g = q0 + [10, 11, 18, 19, 22, 23, 30, 31, 34, 42, 43, 46, 47, 54, 55, 58, 66, 67, 70, 71][2 * jj + tt]
                S.put(g, ds_read("ds_read_b64_tr_b16", ("a", 4 * jj + 2 * tt), 2, vJ, (jj >> 2) * 16384 + (jj & 3) * 1024 + tt * 8192))
            nq, pair = divmod(2 * jj, 5)
            g = 96 * (4 + jj // 3) + [19, 25, 31][jj % 3]
            if OPT["jlate"] == 2:
                g = 96 * 8 + [-17, 25, 45, 65, 79, 96 + 11, 96 + 29, 96 + 45, 96 + 61, 96 + 77][jj]
            elif OPT["jlate"]:
                g = 96 * (3 + jj // 2) + ([79, 82] if (3 + jj // 2) in extra else [77, 81])[jj % 2]
            S.put(g - 1, salu("s_add_u32", sJ, sWOX if pair == 4 else sWOD, nq * 1310720 + pair * 4096))
            S.put(g, vstore(("a", 4 * jj), 4, vL16, S_WOT, sJ, 0, tag="jst", flags=SC1))
    if not second and OPT["ctq"]:
        q0 = 96 * OPT["ctq"]
        S.put(q0 + 33, touch_code(S, q0 + 18, "L_att-L_pc", sJ, vT[0], vT[1]))
    if second:
        eg = epilogue_groups(EPI)
        ep = []
        for i in range(8):
            for g in eg[3 * i:3 * i + 3]:
                ep += [(x, 96 * i, None) for x in g[0]]
            for g in eg[3 * i:3 * i + 3]:
                ep += [(x, 96 * i + OPT["stg"], None) for x in g[1] + [g[2]]]
        ep[-1] = (ep[-1][0], ep[-1][1], 96 * 9 - 1)
        S.stream(ep)
        S.put(96 * 9 + 2, salu("s_add_u32", sO, sO, 8 * 12288))
    q0 = 96 * 9
    g = q0 + 2
    for x in ([salu("s_add_u32", sWQ, sWQ, 512)] + set_pf_proj(True) + [salu("s_add_u32", "s68", "s3", "s4"), salu("s_and_b32", "s68", "s68", 3)] + by_role(sQT, "s68", TBLQ) if not second else set_pf_out()):
        S.put(g, *(x if isinstance(x, list) else [x]))
        g += 1 if g < q0 + 94 else 0
        while g in (q0 + 35, q0 + 83) or any(x.kind == "salu" for x in S.fixed.get(g, [])):
            g += 1
    if second:
        S.stream([(valu("v_mov_b32", r, vL16), q0 + 2, None) for r in vW + vX])
    if not OPT["tmax"]:
        S.put(q0 + 7, valu("v_mov_b32", "v242", sC), valu("v_mov_b32", "v243", sC))
    S.stream([(x, min(q0 + 12 * (2 * p + 1) + 2 * qs + 1 + 2, q0 + 95), None) for p, qs, x in conv_items(0, range(4))])
    if OPT["tmax"]:
        for T in (1, 2):
            S.stream([(x, q0 + 12 * (2 * p + 1) + 4 * T + 2 * qs + 1 + 2, None) for p, qs, x in conv_items(T, range(3))])
    S.put(-1, *prof_stamp(1))
    fix_m0(S)
    return S.finish(lead=first_reads(0), report=OPT["report"])


def lspread(qt, tmp):
    l = f"v{lacc(qt)}"
    return [valu("v_mov_b32", tmp, l), perm("v_permlane32_swap_b32", tmp, l), valu("v_add_f32", l, l, tmp),
            valu("v_mov_b32", tmp, l), perm("v_permlane16_swap_b32", tmp, l), valu("v_add_f32", l, l, tmp)]


def interleave(a, b):
    return [x for p in zip(a, b) for x in p]


def lcheck():
    l = [f"v{lacc(qt)}" for qt in range(6)]
    if OPT["tmax"] == 2:
        return [valu("v_add_f32", vT[0], l[0], l[1]), valu("v_add_f32", vT[1], l[2], l[3]), valu("v_add_f32", vT[0], vT[0], l[4]),
                valu("v_add_f32", vT[1], vT[1], l[5]), valu("v_add_f32", vT[0], vT[0], vT[1]), valu("v_cmp_ngt_f32", "vcc", sHI, vT[0])]
    if OPT["tmax"]:
        x = [f"v{mrun(qt)}" for qt in range(6)]
        return ([valu("v_fma_f32", x[q], x[q], sC, f"v{mneg(q)}") for q in range(6)] +
                [valu("v_add_f32", vT[0], l[0], l[1]), valu("v_max3_f32", vT[1], x[0], x[1], x[2]),
                 valu("v_add_f32", vT[0], vT[0], l[2]), valu("v_max3_f32", vT[1], vT[1], x[3], x[4]),
                 valu("v_add_f32", vT[0], vT[0], l[3]), valu("v_add_f32", vT[0], vT[0], l[4]),
                 valu("v_max_f32", vT[1], vT[1], x[5]), valu("v_add_f32", vT[0], vT[0], l[5]),
                 valu("v_cmp_ngt_f32", "s[56:57]", sLO, vT[1]),
                 valu("v_cmp_ngt_f32", "vcc", sHI, vT[0]),
                 salu("s_or_b64", "vcc", "vcc", "s[56:57]")])
    return [valu("v_add_f32", vT[0], l[0], l[1]), valu("v_min3_f32", vT[1], l[0], l[1], l[2]),
            valu("v_add_f32", vT[0], vT[0], l[2]), valu("v_min3_f32", vT[1], vT[1], l[3], l[4]),
            valu("v_add_f32", vT[0], vT[0], l[3]), valu("v_add_f32", vT[0], vT[0], l[4]),
            valu("v_min_f32", vT[1], vT[1], l[5]), valu("v_add_f32", vT[0], vT[0], l[5]),
            valu("v_cmp_nlt_f32", "s[56:57]", sLO, vT[1]),
            valu("v_cmp_ngt_f32", "vcc", sHI, vT[0]),
            salu("s_or_b64", "vcc", "vcc", "s[56:57]")]


def a_phase(last):
    S = Sched()
    qk = [[0] * 3 for _ in range(16)]
    pv = [[0] * 3 for _ in range(16)]

    def QK(t, T):
        qk[t][T] = S.n()
        for qs in range(2):
            for kt in range(2):
                s = ("v", sreg(2 * T + qs) + 4 * kt)
                for ks in range(4):
                    S.add(mfma(16, s, ("a", kf(kt, ks)), ("v", qf(2 * T + qs, ks)), None if ks == 0 else s))

    def PV(t, T):
        pv[t][T] = S.n()
        sums = []
        for qs in range(2):
            l = ("v", lacc(2 * T + qs))
            sums.append(mfma(16, l, ("v", ONES), ("v", sreg(2 * T + qs)), None if t == 0 else l))
        if t == 15:
            for m in sums:
                S.add(m)
        for dt in range(8):
            for qs in range(2):
                o = ("a", oacc(2 * T + qs, dt))
                S.add(mfma(16, o, ("a", vf(dt)), ("v", sreg(2 * T + qs)), None if t == 0 else o))
        if t < 15:
            for m in sums:
                S.add(m)

    for t in range(16):
        QK(t, 0)
        if t:
            PV(t - 1, 1)
        QK(t, 1)
        if t:
            PV(t - 1, 2)
        QK(t, 2)
        PV(t, 0)
    PV(15, 1)
    PV(15, 2)
    bar = {}
    kw, vw = Win(kA, KWANT[0]), Win(vA, VWANT[0])
    for t in range(16):
        g0 = pv[t - 1][2] if t else qk[0][1]
        bar[10 + t] = g0 - 1
        S.put(g0 - 1, *bar_seq(tags_for(10 + t), 12 + t))
        if t == 13:
            S.put(g0 - 1, scmp("s_cmp_eq_u32", sIT, 1), raw("s_cbranch_scc1 L_tail2", "branch", rd=["scc"]), label("L_CUT"))
        for n, m in enumerate(vw.move(VWANT[t])):
            S.put(g0 - 14 + 3 * (n // 2), m)
        for dt in range(8):
            for tt in range(2):
                S.put(g0 + 4 * dt + 1 + 2 * tt,
                      ds_read("ds_read_b64_tr_b16", ("a", vf(dt) + 2 * tt), 2, vA[dt], U[("V", t)]["addr"] - VWANT[t] + tt * 4096))
        if t < 15:
            for n, m in enumerate(kw.move(KWANT[t + 1])):
                S.put((qk[t][0] + 9 if t else qk[0][2] + 2) + (3 if t else 2) * (n // 2), m)
            for j in range(8):
                S.put(qk[t][2] + [8, 10, 12, 14, 17, 19, 21, 23][j], k_read(t + 1, j))
            if OPT["kbar"]:
                S.put(qk[t][2] + 6, needvm(tags_for(10.5 + t)), barrier())
            if OPT["kbar"] >= 2 and t:
                S.put(pv[t - 1][1] - 1, barrier())
            if OPT["kbar"] >= 3 and t:
                S.put(qk[t][0] - 1, barrier())
    if not last:
        S.stream([(m, pv[15][0], None) for m in vw.move(VWANT[0])])
    bar[26] = pv[15][1] - 1
    S.put(bar[26], *(prof_stamp(28) if last else bar_seq(tags_for(26), 28)))
    fr = [] if last else first_reads(0)
    for n, r in enumerate(fr[:10]):
        S.put(pv[15][1] + [1, 3, 5, 7, 9, 11, 13, 15, 16, 17][n], r)
    for n, r in enumerate(fr[10:]):
        S.put(pv[15][2] + 3 + 2 * n, r)
    stream = sorted([k for k, u in U.items() if "even" in u], key=lambda k: U[k]["even"])
    nk = len(stream)
    stream += [("P", 0), ("P", 1), ("P", 2)] if last else [("K", 0), ("V", 0), ("K", 1)]
    for e, key in enumerate(stream):
        cand = []
        for m in range(4):
            g = int(kpos(4 * e + m)) if e < nk else max(int(kpos(4 * e + m)), int(2 + 13.4 * (4 * (e - nk + 26) + (0 if OPT["kin"] else m))))
            while S.used(g, False) > 0 or g - 1 in bar.values():
                g += 1
            cand.append(g)
        lo = bar.get(U[key]["iss"] if e < nk else (23, 24, 24)[e - nk], -2) + 1
        assert cand[0] > lo + (3 if e >= nk else 0), (key, cand, lo)
        if e == nk:
            S.put(cand[0] - 5, salu("s_add_u32", sKV, sKV, 262144))
        place_dmas(S, unit_dmas(key, sE if e >= nk else None), cand, lo)
    for n in range(24, 27):
        groups = groups_at(n - 1)
        nd = sum(len(g[1]) for g in groups)
        a, b = bar[n - 1] + 5, bar[n] - 1
        cand = []
        for x in range(nd):
            g = a + (b - a) * x // nd
            while any(i.kind in MEMK for k in (g - 1, g, g + 1) for i in S.fixed.get(k, []) if k == g or i.kind == "dma") or g in cand:
                g += 1
            cand.append(g)
        assert cand[-1] < bar[n]
        place_dmas(S, groups, cand, bar[n - 1] + 1)
    if OPT["xpace"]:
        for t in range(1, 14):
            for T in range(3):
                S.put(pv[t][T] + 17, nop(OPT["xpace"]))
                S.put(qk[t][T] + 15, nop(OPT["xpace"]))
    g = bar[OPT["flagbar"]] + 2
    S.put(g - 1, scmp("s_cmp_eq_u32", sIT, 0), salu("s_cselect_b32", sE, sFB, sFG), salu("s_cselect_b32", sJ, "0x10000", 1))
    S.put(g + 1, valu("v_mov_b32", f"v{EPI}", sJ))
    S.put(g + 4, atomic_add(f"v{EPI}", sE))
    g = qk[12 - OPT['t23']][0]
    S.put(g + 1, scmp("s_cmp_eq_u32", sIT, 1), salu("s_cselect_b32", sE, sFB, "0x1000"))
    S.put(g + 3, poll_load(vPOLL[1], sE))
    g = qk[13 - OPT['t23']][0]
    S.put(g + 1, salu("s_lshl_b32", sWANT, sIT, 23), valu("v_readfirstlane_b32", sQ, vPOLL[1]))
    S.put(g + 4, scmp("s_cmp_lt_u32", sQ, sWANT), raw("s_cbranch_scc1 L_spin3", "branch", rd=["scc"]), label("L_spin3_back"))
    if last:
        g = bar[25] + 2
        S.put(g, poll_load(vPOLL[0], sFG))
        su = [salu("s_lshr_b32", "s84", "s4", 2), salu("s_mul_i32", "s7", "s3", O_GRP), salu("s_mul_i32", "s58", "s84", 786432),
              salu("s_add_u32", "s7", "s7", "s58"), [salu("s_add_u32", f"s{S2B}", "s90", "s7"), salu("s_addc_u32", "s59", "s91", 0)],
              salu("s_and_b32", f"s{S2B + 1}", "s59", "0xffff"), salu("s_mov_b32", f"s{S2B + 2}", 786432),
              salu("s_mul_i32", sBB, sWAVE, 16 * 12288), salu("s_mov_b64", f"s[{TB}:{TB + 1}]", "s[34:35]")] + next_off(sB2, TB, sBB, 12288)
        su += [salu("s_and_b32", "s58", sWAVE, 1), salu("s_mul_i32", "s58", "s58", 3 * 2048), salu("s_sub_u32", "s59", 3 * 2048, "s58"),
               salu("s_lshr_b32", "s86", sWAVE, 1), salu("s_lshl_b32", "s86", "s86", 12), salu("s_add_u32", "s58", "s58", "s86"),
               salu("s_add_u32", "s59", "s59", "s86"), salu("s_sub_u32", "s86", 2048, "s86")]
        g += 1
        for x in su:
            while any(i.kind == "salu" for i in S.fixed.get(g, [])):
                g += 1
            S.put(g, *(x if isinstance(x, list) else [x]))
            g += 1
        va = [valu("v_add_u32", V2B[0], "s58", vL16), valu("v_add_u32", V2B[3], "s59", vL16)]
        for q in (1, 2):
            va += [valu("v_add_u32", V2B[q], "s86", V2B[q - 1]), valu("v_add_u32", V2B[3 + q], "s86", V2B[2 + q])]
        S.stream([(x, g, pv[15][1] - 3) for x in va])
        g = pv[15][0] + 12
        S.put(g, valu("v_readfirstlane_b32", sQ, vPOLL[0]))
        S.put(g + 3, salu("s_and_b32", sQ, sQ, "0xff"), scmp("s_cmp_lt_u32", sQ, 8),
              raw("s_cbranch_scc1 L_spin1", "branch", rd=["scc"]), label("L_spin1_back"))
        for n, l in enumerate([l for qi in range(6) for l in k2_loads_B(0, qi)]):
            S.put(pv[15][1] + 1 + 2 * n if n < 8 else pv[15][2] + 3 + 3 * (n - 8), l)
    for n, t in enumerate([int(x) for x in OPT["cta"].split(",") if x]):
        g = pv[t][0]
        while any(S.fixed.get(k) for k in range(g, g + 6)):
            g += 1
        S.put(g + 5, touch_code(S, g, f"L_att-L_pc+{(n + 1) * 12288}", sJ, f"v{EPI + 4}", f"v{EPI + 5}"))
    if OPT["codepf2"]:
        g = qk[OPT["codepf2"]][0] - 6
        S.put(g - 2, salu("s_mul_i32", sJ, sIT, "L_tail2-L_tail1"))
        S.put(g - 1, salu("s_add_u32", sJ, sJ, "L_tail1-L_pc"))
        S.put(g, salu("s_add_u32", sJ, sJ, sCP))
        S.put(g + 1, salu("s_min_u32", sJ, sJ, "L_endcode-L_pc-256"))
        lo, hi = f"v{EPI + 2}", f"v{EPI + 3}"
        S.put(g + 2, valu("v_and_b32", lo, 16, vL16), valu("v_lshlrev_b32", lo, 3, lo))
        S.put(g + 3, valu("v_add_u32", lo, sJ, lo), valu("v_mov_b32", hi, "s97"))
        S.put(g + 4, valu("v_add_co_u32", lo, "vcc", "s96", lo, extra_wr=["vcc"]))
        S.put(g + 5, valu("v_addc_co_u32", hi, "vcc", 0, hi, "vcc", extra_wr=["vcc"]))
        g += 7
        while S.fixed.get(g):
            g += 1
        S.put(g, Ins(f"global_load_dword v{EPI + 4}, v[{EPI + 2}:{EPI + 3}], off", "vld", rd=[lo, hi], wr=[f"v{EPI + 4}"]))
    for T in (1, 2):
        if OPT["pk"] and not OPT["tmax"]:
            nfree = OPT["nfree"] if T == 1 else 0
            S.stream([(x, -1, None) for p, qs, x in conv_items(T, range(nfree))] +
                     [(x, qk[0][T] - 1, qk[0][T] - 1) for p, qs, x in conv_items(T, range(nfree, 4), packed=range(4))])
        else:
            c = [(x, -1, None) for p, qs, x in conv_items(T, range(3 if OPT["tmax"] else 0, 4))]
            c[-1] = (c[-1][0], -1, qk[0][T] - 1)
            S.stream(c)
    fin = []
    if OPT["one1"]:
        for T in range(3):
            fin += [(x, [pv[15][1] + 12, pv[15][2], pv[15][2] + 4][T], None) for x in interleave(lspread(2 * T, f"v{lacc(2 * T) + 1}"), lspread(2 * T + 1, f"v{lacc(2 * T + 1) + 1}"))]
    S.stream(fin + [(x, pv[15][2] + 4, None) for x in lcheck()])
    units = []
    for t in range(16):
        for qt in range(6):
            s = sreg(qt)
            T, qs = qt >> 1, qt & 1
            dl = pv[t][T] + qs - 2
            units.append(dict(e=qk[t][T] + 8 * qs + 7 + 2,
                              exps=[valu("v_exp_f32", f"v{s + r}", f"v{s + r}") for r in range(8)],
                              cvts=[(valu("v_cvt_pk_bf16_f32", f"v{s + r}", f"v{s + 2 * r}", f"v{s + 2 * r + 1}"), 2 * r + 2, dl) for r in range(4)]))
    if OPT["tmax"]:
        for n, u in enumerate(units):
            t, qt = divmod(n, 6)
            s, m, mn = sreg(qt), f"v{mrun(qt)}", f"v{mneg(qt)}"
            fma = [valu("v_fma_f32", f"v{s + r}", f"v{s + r}", sC, mn) for r in range(8)]
            if t == 0:
                pre = [valu("v_max3_f32", m, f"v{s}", f"v{s + 1}", f"v{s + 2}"), valu("v_max3_f32", mn, f"v{s + 3}", f"v{s + 4}", f"v{s + 5}"),
                       valu("v_max3_f32", m, m, f"v{s + 6}", f"v{s + 7}"), valu("v_max_f32", m, m, mn)]
                for op in ("v_permlane32_swap_b32", "v_permlane16_swap_b32"):
                    pre += [valu("v_mov_b32", mn, m), perm(op, mn, m), valu("v_max_f32", m, m, mn)]
                pre += [valu("v_mul_f32", mn, sNC, m)] + fma
                need = [len(pre) - 7 + r for r in range(8)]
            else:
                pre, need = [], []
                for r in range(0, 8, 2):
                    if OPT["tmax"] == 1:
                        pre += [valu("v_max3_f32", m, m, f"v{s + r}", f"v{s + r + 1}")]
                    pre += [fma[r], fma[r + 1]]
                    need += [len(pre) - 1, len(pre)]
            u["pre"] = pre
            u["exps"] = list(zip(u["exps"], need))
        def xok(g):
            n = OPT["xhi"] if g < qk[2][0] or g >= qk[13][0] else OPT["xnum"]
            return (g * n) % 100 < n
        S.packers.append(SoftmaxPacker2(units,
                                        lambda g: 1 if S.used(g, False) < 2 and xok(g) else 0))
    else:
        S.packers.append(SoftmaxPacker(units))
    fix_m0(S)
    return S.finish(lead=[k_read(0, j) for j in range(8)], report=OPT["report"])


def slow_path():
    o = [label("L_slow"), drain(), nop(16)]
    KF = [EPI + 4 * k for k in range(4)]
    VFR = 56
    vM = [f"v{120 + q}" for q in range(6)]
    vKo, vVo, vt, vu = "v60", "v61", "v62", "v63"
    o += [valu("v_lshrrev_b32", vt, 4, vL16), valu("v_and_b32", vu, 15, vt), valu("v_lshrrev_b32", vt, 4, vt),
          valu("v_lshlrev_b32", vKo, 8, vu), valu("v_lshl_add_u32", vKo, vt, 4, vKo),
          valu("v_lshlrev_b32", vVo, 10, vt), valu("v_lshl_add_u32", vVo, vu, 1, vVo)]
    o += [salu("s_sub_u32", "s58", sKV, 262144)]
    o += [valu("v_mov_b32", m, "0xff800000") for m in vM]

    def scores():
        r = []
        for kt in range(2):
            r += [salu("s_add_u32", "s61", "s59", kt * 4096)]
            r += [vload(("v", KF[ks]), 4, vKo, S_K, "s61", 64 * ks) for ks in range(4)] + [drain()]
            for qt in range(6):
                s = ("v", sreg(qt) + 4 * kt)
                r += [mfma(16, s, ("v", KF[ks]), ("v", qf(qt, ks)), None if ks == 0 else s) for ks in range(4)]
            r += [nop(16)]
        return r
    o += [salu("s_mov_b32", "s59", "s58"), salu("s_mov_b32", "s60", 16), label("L_slow1")] + scores()
    for qt in range(6):
        o += [valu("v_max3_f32", vM[qt], vM[qt], f"v{sreg(qt) + r}", f"v{sreg(qt) + r + 1}") for r in range(0, 8, 2)]
    o += [salu("s_add_u32", "s59", "s59", 8192), salu("s_sub_u32", "s60", "s60", 1), scmp("s_cmp_lg_u32", "s60", 0),
          raw("s_cbranch_scc1 L_slow1", "branch", rd=["scc"])]
    for qt in range(6):
        for op in ("v_permlane32_swap_b32", "v_permlane16_swap_b32"):
            o += [valu("v_mov_b32", vt, vM[qt]), nop(2), perm(op, vt, vM[qt]), valu("v_max_f32", vM[qt], vM[qt], vt)]
        o += [valu("v_mov_b32", f"v{lacc(qt) + r}", 0) for r in range(4)]
    o += [valu("v_accvgpr_write_b32", f"a{r}", 0) for r in range(192)]
    o += [salu("s_mov_b32", "s59", "s58"), salu("s_mov_b32", "s60", 16), label("L_slow2")] + scores()
    for qt in range(6):
        s = sreg(qt)
        o += [valu("v_sub_f32", f"v{s + r}", f"v{s + r}", vM[qt]) for r in range(8)]
        if OPT["tmax"]:
            o += [valu("v_mul_f32", f"v{s + r}", sC, f"v{s + r}") for r in range(8)]
        o += [valu("v_exp_f32", f"v{s + r}", f"v{s + r}") for r in range(8)]
        o += [valu("v_cvt_pk_bf16_f32", f"v{s + r}", f"v{s + 2 * r}", f"v{s + 2 * r + 1}") for r in range(4)]
    o += [salu("s_add_u32", "s57", "s59", 4096)]
    for dt in range(8):
        for j in range(8):
            o += [vload(("v", 184 + j), 1, vVo, S_V, "s57" if j >= 4 else "s59", (j & 3) * 256 + 32 * dt, op="buffer_load_ushort")]
        o += [drain()]
        o += [valu("v_lshl_or_b32", f"v{VFR + r}", f"v{185 + 2 * r}", 16, f"v{184 + 2 * r}") for r in range(4)]
        o += [mfma(16, ("a", oacc(qt, dt)), ("v", VFR), ("v", sreg(qt)), ("a", oacc(qt, dt))) for qt in range(6)]
        o += [nop(8)]
    o += [mfma(16, ("v", lacc(qt)), ("v", ONES), ("v", sreg(qt)), ("v", lacc(qt))) for qt in range(6)] + [nop(16)]
    o += [salu("s_add_u32", "s59", "s59", 8192), salu("s_sub_u32", "s60", "s60", 1), scmp("s_cmp_lg_u32", "s60", 0),
          raw("s_cbranch_scc1 L_slow2", "branch", rd=["scc"])]
    o += [nop(16)]
    if OPT["one1"]:
        for qt in range(6):
            o += lspread(qt, vt)
    o += [drain(), scmp("s_cmp_eq_u32", sIT, 1), raw("s_cbranch_scc1 L_back2", "branch", rd=["scc"]), raw("s_branch L_back1", "branch")]
    return o


def srd(base, lo, hi, nbytes):
    return [salu("s_mov_b32", f"s{base}", lo), salu("s_and_b32", f"s{base + 1}", hi, "0xffff"),
            salu("s_mov_b32", f"s{base + 2}", nbytes), salu("s_mov_b32", f"s{base + 3}", "0x20000")]


def decode_wg():
    return [salu("s_and_b32", "s3", "s2", 7), salu("s_lshr_b32", "s4", "s2", 6), salu("s_lshl_b32", "s3", "s3", 2),
            salu("s_add_u32", "s3", "s3", "s4"), salu("s_lshr_b32", "s4", "s2", 3), salu("s_and_b32", "s4", "s4", 7),
            salu("s_lshr_b32", "s5", "s3", 4), salu("s_and_b32", "s6", "s3", 15)]


def code_touch():
    return [salu("s_lshr_b32", "s68", "s2", 3), salu("s_lshl_b32", "s68", "s68", 11),
            valu("v_lshrrev_b32", "v11", 6, "v0"), valu("v_and_b32", "v12", 3, "v0"), valu("v_lshlrev_b32", "v11", 9, "v11"),
            valu("v_lshl_add_u32", "v11", "v12", 7, "v11"), valu("v_add_u32", "v11", "s68", "v11")] + (
            [valu("v_min_u32", "v11", "L_att-L_pc", "v11")] if OPT["cplim"] else []) + [
            valu("v_mov_b32", "v13", "s97"), valu("v_add_co_u32", "v12", "vcc", "s96", "v11", extra_wr=["vcc"]),
            valu("v_addc_co_u32", "v13", "vcc", 0, "v13", "vcc", extra_wr=["vcc"]),
            Ins("global_load_dword v253, v[12:13], off", "vld", rd=["v12", "v13"], wr=["v253"])]


def kv_patterns():
    i, a, b, c = "v1", "v2", "v3", "v4"
    o = [valu("v_lshrrev_b32", a, 4, i), valu("v_and_b32", b, 15, i),
         valu("v_xor_b32", c, a, b), valu("v_lshlrev_b32", c, 4, c), valu("v_lshl_add_u32", vK[0], a, 8, c)]
    o += [valu("v_xor_b32", vK[m], m << 6, vK[0]) for m in range(1, 4)]
    o += [valu("v_lshlrev_b32", "v5", 1, a), valu("v_xor_b32", "v5", "v5", b), valu("v_lshlrev_b32", "v5", 4, "v5"),
          valu("v_lshl_add_u32", vV[0], a, 8, "v5"), valu("v_xor_b32", vV[1], 128, vV[0])]
    return o


sT2 = "s101"


def prologue():
    o = [scmp("s_cmp_ge_u32", "s2", 256), raw("s_cbranch_scc1 L_end", "branch", rd=["scc"])]
    if OPT["dbgt"]:
        o += [raw("s_memrealtime s[72:73]", wr=["s72", "s73"])]
    o += [salu("s_bfe_u32", "s5", "s2", "0x10002"), salu("s_mul_i32", "s7", "s5", 40), salu("s_add_u32", "s78", "s0", "s7"), salu("s_addc_u32", "s79", "s1", 0),
          raw("s_load_dwordx8 s[56:63], s[78:79], 0", wr=regs("s", 56, 8)),
          raw("s_load_dwordx2 s[94:95], s[78:79], 32", wr=["s94", "s95"]),
          raw("s_load_dwordx4 s[88:91], s[0:1], 88", wr=regs("s", 88, 4)),
          raw("s_load_dwordx2 s[92:93], s[0:1], 80", wr=["s92", "s93"])]
    o += [raw("s_getpc_b64 s[96:97]", wr=["s96", "s97"]), label("L_pc")]
    if OPT["codepf"] == 2:
        o += code_touch()
    o += decode_wg()
    i, a, b, c = "v1", "v2", "v3", "v4"
    o += [valu("v_lshrrev_b32", a, 6, "v0"), valu("v_and_b32", i, 63, "v0"),
          valu("v_readfirstlane_b32", sWAVE, a), valu("v_lshlrev_b32", vL16, 4, i)]
    o += [valu("v_lshrrev_b32", a, 4, i), valu("v_and_b32", b, 7, i), valu("v_lshrrev_b32", "v5", 3, i),
          valu("v_and_b32", c, 1, a), valu("v_lshlrev_b32", c, 1, c), valu("v_xor_b32", c, c, b), valu("v_lshlrev_b32", c, 4, c),
          valu("v_lshl_add_u32", vW[0], "v5", 13, c),
          valu("v_xor_b32", vW[1], 64, vW[0]), valu("v_add_u32", vW[1], 64512, vW[1]),
          valu("v_add_u32", vW[2], 2 * 64512, vW[0]), valu("v_add_u32", vW[3], 2 * 64512, vW[1])]
    o += [valu("v_xor_b32", c, a, b), valu("v_lshlrev_b32", c, 4, c), valu("v_mul_u32_u24", "v6", 1280, "v5"),
          valu("v_add_u32", vX[0], "v6", c),
          valu("v_xor_b32", vX[1], 64, vX[0]), valu("v_add_u32", vX[1], 9216, vX[1]),
          valu("v_add_u32", vX[2], 2 * 9216, vX[0]), valu("v_add_u32", vX[3], 2 * 9216, vX[1])]
    o += [salu("s_lshr_b32", "s70", sWAVE, 1), salu("s_and_b32", "s71", sWAVE, 1),
          salu("s_lshl_b32", sW4K, sWAVE, 12), salu("s_mul_i32", sW6K, sWAVE, 6144),
          salu("s_lshl_b32", "s7", "s4", 2), salu("s_add_u32", "s7", "s7", "s70"),
          salu("s_lshl_b32", sWQ, "s71", 18), salu("s_lshl_b32", sT0, "s7", 8), salu("s_add_u32", sWQ, sWQ, sT0),
          salu("s_mul_i32", sX, "s6", 245760), salu("s_mul_i32", sT0, sWAVE, 61440), salu("s_add_u32", sX, sX, sT0)]
    o += [salu("s_add_u32", "s68", "s3", "s4"), salu("s_and_b32", "s68", "s68", 3)]
    for x in by_role("s69", "s68", TBLQ0):
        o += x if isinstance(x, list) else [x]
    for st in range(2):
        o += [salu("s_bfe_u32", sT0, "s69", "0x%x" % (0x40000 + 4 * st)), salu("s_lshl_b32", sT1, sT0, 19), salu("s_lshl_b32", sT0, sT0, 7),
              salu("s_add_u32", sPF[("W", st, 0)][0], sT1, sWQ), salu("s_add_u32", sPF[("X", st)][0], sT0, sX),
              salu("s_add_u32", sT2 if st else sPF[("W", st, 1)][0], sPF[("W", st, 0)][0], 128), salu("s_add_u32", sPF[("X", st)][1], sPF[("X", st)][0], 40960)]
    o += [raw("s_waitcnt lgkmcnt(0)", "drainlg")]
    o += srd(S_WQ, "s62", "s63", 5242880) + srd(S_X, "s56", "s57", 3932160)
    for k in [("W", 0, 0), ("X", 0), ("W", 0, 1), ("W", 1, 0), ("X", 1)][:2 if OPT["early2"] else 5]:
        for pre, ds in unit_dmas(k):
            o += pre[::-1] + ds
    if OPT["warmw"]:
        o += [salu("s_mul_i32", "s68", "s6", 40 * 8192), salu("s_lshl_b32", "s69", "s4", 10), salu("s_add_u32", "s68", "s68", "s69"),
              salu("s_mul_i32", "s69", sWAVE, 10 * 8192), salu("s_add_u32", "s68", "s68", "s69"),
              valu("v_lshlrev_b32", b, 7, b), valu("v_lshl_add_u32", "v6", "v5", 13, b), valu("v_and_b32", c, 1, "v5"),
              valu("v_lshl_add_u32", c, c, 13, b), salu("s_add_u32", "s69", "s68", 8 * 8192)]
        if OPT["early2"]:
            o += [valu("v_add_u32", "v254", "s68", "v6"), valu("v_add_u32", "v255", "s69", c)]
        else:
            o += [vload(("v", 254), 1, "v6", S_WQ, "s68", 0), vload(("v", 255), 1, c, S_WQ, "s69", 0)]
    o += [salu("s_lshr_b32", "s68", "s2", 3), salu("s_lshl_b32", "s68", "s68", 2), salu("s_add_u32", "s68", "s68", sWAVE), salu("s_lshl_b32", sCP, "s68", 8)]
    if OPT["codepf"] == 1:
        o += code_touch()
    o += srd(S_WO, "s94", "s95", 5242880)
    o += [salu("s_lshl_b32", "s68", "s6", 3), salu("s_add_u32", "s68", "s68", "s4"),
          salu("s_mul_i32", sWOS, "s68", 40960), salu("s_mul_i32", sT0, sWAVE, 10240), salu("s_add_u32", sWOS, sWOS, sT0)]
    for jj in range(OPT["jpro"]):
        for pre, ds in unit_dmas(("J", jj), sE):
            o += pre[::-1] + ds
    o += srd(S_K, "s58", "s59", 67108864) + srd(S_V, "s60", "s61", 67108864) + [salu("s_mov_b32", sW1, sT2)]
    o += srd(S_OST, "s90", "s91", WS_WOT) + srd(S_FLG, "s88", "s89", 256)
    o += [salu("s_add_u32", "s68", "s90", WS_WOT), salu("s_addc_u32", "s69", "s91", 0)] + srd(S_WOT, "s68", "s69", 2 * WOT_BLK)
    o += [salu("s_lshl_b32", sFG, "s3", 2), salu("s_lshl_b32", sFB, "s5", 6)]
    if OPT["dbgt"]:
        o += [salu("s_add_u32", sFG, sFG, 128), salu("s_add_u32", sFB, sFB, 128)]
    o += [
          valu("v_cmp_eq_u32", "vcc", 0, "v0"), valu("v_mov_b32", "v10", "0x1000"), valu("v_mov_b32", f"v{ONES}", "0x3f803f80"),
          valu("v_cndmask_b32", vFLG, "v10", 0, "vcc"),
          ]
    if OPT["one1"]:
        o += [valu("v_and_b32", "v10", 15, "v0"), valu("v_cmp_eq_u32", "vcc", 0, "v10"), valu("v_cndmask_b32", f"v{ONES}", 0, f"v{ONES}", "vcc")]
    o += [valu("v_mov_b32", f"v{ONES + r}", f"v{ONES}") for r in range(1, 4)]
    if OPT["prof"]:
        o += [salu("s_add_u32", "s68", "s90", WS_PROF), salu("s_addc_u32", "s69", "s91", 0)] + srd(S_PROF, "s68", "s69", 1 << 20)
        o += [salu("s_lshl_b32", sPROF, "s2", 2), salu("s_add_u32", sPROF, sPROF, sWAVE), salu("s_lshl_b32", sPROF, sPROF, 10)]
        o += prof_stamp(0, 8)
    o += [salu("s_lshl_b32", sKV, "s6", 5), salu("s_add_u32", sKV, sKV, "s7"), salu("s_lshl_b32", sKV, sKV, 17),
          salu("s_lshl_b32", sT0, "s71", 12),
          salu("s_lshr_b32", sROT, "s2", 3), salu("s_lshl_b32", sT1, "s2", 1), salu("s_add_u32", sROT, sROT, sT1),
          salu("s_and_b32", sROT, sROT, 0 if OPT["norot"] else 15), salu("s_lshl_b32", sROT, sROT, 13), salu("s_add_u32", sROT, sROT, sT0)]
    if OPT["tlbw"]:
        for n, (r, so) in enumerate(((S_K, sKV), (S_V, sKV), (S_WO, sWOS))):
            o += [Ins(f"buffer_load_dword v{244 + n}, off, s[{r}:{r + 3}], {so} nt", "vld", rd=[so] + regs("s", r, 4))]
    if OPT["kpro"]:
        o += kv_patterns()
        for k in [("K", 0), ("V", 0), ("K", 1)][:OPT["kpro"]]:
            for pre, ds in unit_dmas(k, sE):
                o += pre + [nop(1)] + ds
    o += [salu("s_mul_i32", sO, "s3", O_GRP), salu("s_mul_i32", sT0, "s71", 786432), salu("s_add_u32", sO, sO, sT0),
          salu("s_lshr_b32", sT0, "s4", 1), salu("s_mul_i32", sT0, sT0, 16 * 12288), salu("s_add_u32", sO, sO, sT0),
          salu("s_and_b32", sT0, "s4", 1), salu("s_mul_i32", sT0, sT0, 4 * 12288), salu("s_add_u32", sO, sO, sT0),
          salu("s_mul_i32", sT0, "s70", 2 * 12288), salu("s_add_u32", sO, sO, sT0)]
    o += [salu("s_lshl_b32", "s68", "s6", 3), salu("s_add_u32", "s68", "s68", "s4"),
          salu("s_lshr_b32", sT0, "s68", 1), salu("s_and_b32", sT1, sT0, "0x33"),
          salu("s_and_b32", "s69", sT0, 4), salu("s_lshl_b32", "s69", "s69", 1), salu("s_or_b32", sT1, sT1, "s69"),
          salu("s_and_b32", "s69", sT0, 8), salu("s_lshr_b32", "s69", "s69", 1), salu("s_or_b32", sT1, sT1, "s69"),
          salu("s_mul_i32", sWOD, sT1, 20480),
          salu("s_and_b32", sT0, "s68", 1), salu("s_lshl_b32", sT0, sT0, 11), salu("s_add_u32", sWOD, sWOD, sT0),
          salu("s_mul_i32", sT0, "s5", WOT_BLK), salu("s_add_u32", sWOD, sWOD, sT0),
          salu("s_lshl_b32", sT0, "s70", 12), salu("s_add_u32", sWOD, sWOD, sT0),
          salu("s_lshl_b32", sT0, "s71", 10), salu("s_add_u32", sWOD, sWOD, sT0),
          salu("s_mul_i32", sT0, "s70", 1310720 - 20480), salu("s_add_u32", sWOX, sWOD, sT0)]
    o += [salu("s_add_u32", "s68", "s3", "s4"), salu("s_and_b32", "s68", "s68", 3)]
    for x in by_role(sQT, "s68", TBLQ1):
        o += x if isinstance(x, list) else [x]
    cbits = struct.unpack("<I", struct.pack("<f", math.log2(math.e) / math.sqrt(128.0)))[0]
    o += [salu("s_mov_b32", sC, "0x%x" % cbits), salu("s_mov_b32", sHI, "0x5d800000" if OPT["tmax"] == 1 else "0x53800000" if OPT["tmax"] else "0x4e800000"),
          salu("s_mov_b32", sLO, "0x42200000" if OPT["tmax"] else "0x30800000"), salu("s_mov_b32", sNC, "0x%x" % (cbits | 0x80000000)),
          salu("s_mov_b32", sIT, 0)]
    if not OPT["kpro"]:
        o += kv_patterns()
    o += [salu("s_lshl_b32", "s69", "s70", 13), salu("s_mul_i32", "s68", "s71", 12288), salu("s_add_u32", "s68", "s68", XS[0]),
          valu("v_bfe_u32", "v8", i, 2, 2), valu("v_and_b32", "v9", 3, i)]
    o += [valu("v_lshl_add_u32", c, b, 8, c), valu("v_add_u32", c, KWANT[15], c), valu("v_add_u32", kA[0], "s69", c)]
    o += [valu("v_xor_b32", kA[j], j << 6, kA[0]) for j in range(1, 4)]
    o += [valu("v_lshl_add_u32", "v5", a, 2, "v8"), valu("v_lshlrev_b32", c, 8, "v5"), valu("v_and_b32", "v6", 7, "v5"),
          valu("v_lshl_add_u32", c, "v6", 5, c), valu("v_lshl_add_u32", c, "v9", 3, c),
          valu("v_add_u32", c, VWANT[0], c), valu("v_add_u32", vA[0], "s69", c)]
    o += [valu("v_xor_b32", vA[d], d << 5, vA[0]) for d in range(1, 8)]
    o += [valu("v_lshl_add_u32", c, a, 3, "v8"), valu("v_lshlrev_b32", c, 7, c),
          valu("v_and_b32", "v5", 2, "v8"), valu("v_and_b32", "v7", 1, a), valu("v_lshl_add_u32", "v5", "v7", 2, "v5"),
          valu("v_xor_b32", "v5", "v5", "v9"), valu("v_lshl_add_u32", c, "v5", 4, c), valu("v_add_u32", wA[0], "s69", c),
          valu("v_xor_b32", wA[1], 64, wA[0])]
    o += [valu("v_lshrrev_b32", "v5", 1, b), valu("v_xor_b32", "v5", "v5", a),
          valu("v_lshlrev_b32", "v5", 4, "v5"), valu("v_lshl_add_u32", c, b, 7, "v5"),
          valu("v_xor_b32", "v5", 64, c), valu("v_add_u32", xA[0], "s68", c), valu("v_add_u32", xA[1], "s68", "v5")]
    o += [salu("s_lshl_b32", "s68", "s70", 2), salu("s_lshl_b32", "s69", "s71", 3), salu("s_add_u32", "s69", "s69", WOJ_ADDR),
          valu("v_lshrrev_b32", c, 1, a), valu("v_lshlrev_b32", c, 12, c), valu("v_lshl_add_u32", c, "v6", 7, c),
          valu("v_add_u32", c, "s69", c), valu("v_add_u32", "v5", "s68", "v9"), valu("v_lshrrev_b32", "v6", 1, "v6"),
          valu("v_xor_b32", "v5", "v5", "v6"), valu("v_lshl_add_u32", vJ, "v5", 4, c)]
    o += [needvm([("W", 0, 0), ("X", 0)]), barrier()] + first_reads(0)
    return o


def acc2(pi, xy, qi):
    return ((pi * 6 + qi) * 2 + xy) * 4


def a2(st, pi, ks, xy):
    if st == 0:
        return (240 if pi == 0 else 48 + 16 * pi) + 8 * ks + 4 * xy
    return (48 if pi == 0 else 112 + 16 * pi) + 8 * ks + 4 * xy


def b2(st, qi, ks):
    return (192 if st == 0 else 0) + 8 * qi + 4 * ks


V2A = ["v%d" % i for i in range(240, 245)]


def k2_loads_A(st, pi, soff=None):
    return [vload(("a", a2(st, pi, ks, xy)), 4, V2A[pi], S2A, soff or sA2, ks * 2048 + xy * 1024, flags=SC1) for xy in range(2) for ks in range(2)]


def k2_loads_B(st, qi):
    return [vload(("a", b2(st, qi, ks)), 4, V2B[qi], S2B, sB2, ks * 1024, flags=SC1) for ks in range(2)]


def k2_lds_A(st, pi):
    out = []
    for xy in range(2):
        for ks in range(2):
            r = [r for r, (s_, p_, off) in PF2.items() if (s_, p_) == (st, pi) and (r not in ("s87", "s99") or off == 2048 * ks)][0]
            key = [k for k, rs in sPF.items() if r in rs][0]
            if key[0] == "W":
                out.append(ds_read("ds_read_b128", ("a", a2(st, pi, ks, xy)), 4, V2W, U[key]["addr"] + ks * 2048 + xy * 1024))
            elif key[0] == "P":
                out.append(ds_read("ds_read_b128", ("a", a2(st, pi, ks, xy)), 4, V2P,
                                   (0 if key[1] == 1 else PADDR[key] - D[4]) + ks * 2048 + xy * 1024))
            elif r == sPF[key][0]:
                out.append(ds_read("ds_read_b128", ("a", a2(st, pi, ks, xy)), 4, V2X, U[key]["addr"] - XS[0] + ks * 2048 + xy * 1024))
            else:
                out.append(ds_read("ds_read_b128", ("a", a2(st, pi, ks, xy)), 4, V2X, U[key]["addr"] - XS[0] + 4096 + xy * 1024))
    return out


def k2_steps(S, first, loadA, loadB, pend, check=False, late=(), final=None):
    for st in range(2):
        q0 = S.n()
        tiles = [(pi, xy, qi) for pi in range(5) for xy in range(2) for qi in range(6)]
        if final is not None and st == 1:
            tiles = [t for t in tiles if t[2] >= 3] + [t for t in tiles if t[2] < 3]
            for n, x in enumerate(final[0]):
                S.put(q0 + 2 + n, x)
            for n, x in enumerate(final[1]):
                S.put(q0 + 61 + 2 * n, x)
        for pi, xy, qi in tiles:
            for ks in range(2):
                acc = ("v", acc2(pi, xy, qi))
                S.add(mfma(16, acc, ("a", a2(st, pi, ks, xy)), ("a", b2(st, qi, ks)),
                           None if (first and st == 0 and ks == 0) else acc))
        pos = [int(0.5 + 3.75 * n) for n in range(32)]
        if pend[st]:
            ls = k2_loads_A(1 - st, 4)
            S.put(q0 + pos[0], ls[2])
            S.put(q0 + pos[1], ls[3])
            for n, x in enumerate(next_off(sA2, TA, sAB, 20480)):
                S.put(q0 + pos[1] + 1 + n, x)
        if first and st == 0:
            for n, (pre, l) in enumerate(late):
                S.put(q0 + 6 * n + 2, *pre)
                S.put(q0 + 6 * n + 3, l)
            for n, r in enumerate(k2_lds_A(1, 0) + k2_lds_A(1, 1) + k2_lds_A(1, 2)):
                S.put(q0 + 6 * n + 5 if n < 8 else q0 + 54 + 4 * (n - 8), r)
            S.put(q0 + 70, valu("v_add_u32", V2P, D[9] - D[5], V2P))
            for n, r in enumerate(k2_lds_A(1, 3)):
                S.put(q0 + 73 + 4 * n, r)
        elif loadB[st]:
            for n, l in enumerate([l for qi in range(6) for l in k2_loads_B(1 - st, qi)]):
                S.put(q0 + pos[2 + n], l)
            for n, x in enumerate(next_off(sB2, TB, sBB, 12288)):
                S.put(q0 + pos[13] + 1 + n, x)
        if loadA[st]:
            n = 14
            for pi in range(5):
                ls = k2_loads_A(st, pi)
                for x, l in enumerate(ls if pi < 4 else ls[:2]):
                    assert pos[n] >= 24 * pi + 11 + 12 * (x >> 1), (pi, x, pos[n])
                    S.put(q0 + pos[n], l)
                    n += 1
        if first and st == 1:
            S.put(q0 + 110, needvm(["ost"]), barrier())
            S.put(q0 + 111, valu("v_mov_b32", V2P, "0x100"))
            S.put(q0 + 114, atomic_add(V2P, sFG))
        if check and st == 1:
            S.put(q0 + 1, scmp("s_cmp_eq_u32", sCNT, 5), salu("s_cselect_b32", sWANT, 8, 0), salu("s_cselect_b32", sPL, sFG, "0x1000"))
            S.put(q0 + 2, poll_load(V2P, sPL))
        if check and st == 0:
            S.put(q0 + 1, valu("v_readfirstlane_b32", sQ, V2P))
            S.put(q0 + 6, salu("s_bfe_u32", sQ, sQ, "0x80008"), scmp("s_cmp_lt_u32", sQ, sWANT),
                  raw("s_cbranch_scc1 L_spin2", "branch", rd=["scc"]), label("L_spin2_back"))


def k2_first(S, late):
    seq = [(0, p) for p in range(4)] + [(1, p) for p in range(3)] + [(0, 4), (1, 3), (1, 4)]
    at = {}
    for st, pi in seq:
        at[(st, pi)] = S.n()
        for xy in range(2):
            for qi in range(6):
                for ks in range(2):
                    acc = ("v", acc2(pi, xy, qi))
                    S.add(mfma(16, acc, ("a", a2(st, pi, ks, xy)), ("a", b2(st, qi, ks)), None if (st == 0 and ks == 0) else acc))
    for n, (pre, l) in enumerate(late):
        S.put(13 * n + 2, *pre)
        S.put(13 * n + 3, l)
    assert 13 * len(late) < at[(0, 4)]
    g = 5
    for pi in range(4):
        for r in k2_lds_A(1, pi):
            while S.fixed.get(g):
                g += 1
            S.put(g, r)
            g += 4
    items = []
    for pi in range(5):
        for x, l in enumerate(k2_loads_A(0, pi, sSO)):
            items.append((l, at[(0, pi)] + 11 + 12 * (x >> 1), 240 + 24 * pi + 12 * (x >> 1)))
        for x, l in enumerate(k2_loads_A(1, pi)[:4 if pi < 4 else 2]):
            items.append((l, at[(1, pi)] + 11 + 12 * (x >> 1), 360 + 24 * pi + 12 * (x >> 1)))
    for qi in range(6):
        for ks, l in enumerate(k2_loads_B(0, qi)):
            items.append((l, at[(0, 4)] + 12 + 2 * qi + ks, 200 + 2 * qi + ks))
    items.sort(key=lambda i: i[2])
    g, lastB = 11, 0
    while items:
        c = [i for i in items if i[1] <= g]
        if c and not any(S.fixed.get(k) and any(j.kind in ("vld", "vst") for j in S.fixed[k]) for k in ((g - 2, g - 1, g + 1) if g < 180 else (g - 1, g + 1))) and not S.fixed.get(g):
            S.put(g, c[0][0])
            if sB2 in c[0][0].rd:
                lastB = g
            items.remove(c[0])
        g += 1
        assert g < 240, items
    for n, x in enumerate(next_off(sB2, TB, sBB, 12288)):
        S.put(lastB + 1 + n, x)
    if OPT["p2st"]:
        for n, g in enumerate((47, 95, 143, 167, 191, 215)):
            S.put(g, raw(f"s_memrealtime s[76:77]", wr=["s76", "s77"]), raw("s_waitcnt lgkmcnt(0)", "drainlg"), salu("s_mov_b32", f"s{101 - n}", "s76"))
    g = 226
    while S.fixed.get(g) or S.fixed.get(g + 1) or S.fixed.get(g + 3):
        g += 1
    S.put(g, needvm(["ost"]), barrier())
    S.put(g + 1, valu("v_mov_b32", V2P, "0x100"))
    S.put(g + 3, atomic_add(V2P, sFG))


def spin(name, back, dsts, soffs, conds):
    o = [label(name), salu("s_mov_b32", sSPIN, 0), label(name + "_loop"), raw("s_sleep 8")]
    o += [poll_load(d, so) for d, so in zip(dsts, soffs)]
    o += [drain(), salu("s_add_u32", sSPIN, sSPIN, 1), scmp("s_cmp_gt_u32", sSPIN, "0x20000"),
          raw(f"s_cbranch_scc1 {back}", "branch", rd=["scc"])]
    for d, (sh, msk, want) in zip(dsts, conds):
        o += [valu("v_readfirstlane_b32", sQ, d), nop(4)]
        if sh:
            o += [salu("s_lshr_b32", sQ, sQ, sh)]
        if msk:
            o += [salu("s_and_b32", sQ, sQ, msk)]
        o += [scmp("s_cmp_lt_u32", sQ, want), raw(f"s_cbranch_scc1 {name}_loop", "branch", rd=["scc"])]
    o += [raw(f"s_branch {back}", "branch")]
    return o


def phase2():
    o = [valu("v_mov_b32", V2L, vL16), salu("s_and_b32", "s85", "s4", 3), salu("s_and_b32", "s32", sWAVE, 1), salu("s_lshr_b32", "s33", sWAVE, 1),
         salu("s_mul_i32", sAB, sWAVE, 16 * 20480), salu("s_lshr_b64", f"s[{TA}:{TA + 1}]", "s[34:35]", 4)]
    o += next_off(sB2, TB, sBB, 12288)
    o += [valu("v_add_u32", V2W, sW4K, V2L), salu("s_add_u32", "s7", sW6K, XS[0]), valu("v_add_u32", V2X, "s7", V2L), valu("v_add_u32", V2P, D[4], V2W)]
    o += [scmp("s_cmp_eq_u32", "s33", 0)]
    o += [salu("s_cselect_b32", f"s{47 + q}", q, 2 - q) for q in range(3)]
    o += [salu("s_cselect_b32", f"s{36 + pi}", pi, 4 - pi) for pi in range(5)]
    o += [salu("s_mul_i32", "s34", "s32", 3)]
    o += [salu("s_add_u32", f"s{47 + q}", f"s{47 + q}", "s34") for q in range(3)]
    save = list(vR)
    vR[:] = [f"v{16 + q}" for q in range(6)]
    nl = 12 if OPT["pace"] else 8
    eg = epilogue_groups(0, lambda n: 240 - 4 * (24 - n) - (0 if OPT["pace"] else 16) if n >= 24 - nl else 32 + 4 * n, V2L)
    vR[:] = save
    b1 = [l for qi in range(6) for l in k2_loads_B(1, qi)]
    for n, (v, pre, st, imm) in enumerate(eg):
        m = b1[2 * (n - 8):2 * (n - 8) + 2] if 8 <= n < 14 else []
        o += v[:8] + m[:1] + v[8:16] + m[1:] + v[16:]
        if OPT["pace"]:
            if n % 2 == 0:
                o += eg[n // 2][1] + [eg[n // 2][2]]
        elif n < 16:
            o += pre + [st]
        if n == 15:
            o += [needvm(list(sPF))]
            for pi in range(5):
                o += [salu("s_lshl_b32", "s7", f"s{36 + pi}", 12), valu("v_add_u32", V2A[pi], "s7", V2L)]
            o += next_off(sPL, TA, sAB, 20480)
            if OPT["pace"]:
                o += next_off(sSO, TA, sAB, 20480)
            o += next_off(sA2, TA, sAB, 20480)
        if 16 <= n < 21:
            o += k2_lds_A(0, n - 16)
    late = []
    for n, g in enumerate(eg[24 - nl:]):
        st = vstore(("v", 240 - 4 * (nl - n) - (0 if OPT["pace"] else 16)), 4, V2L, S_OST, sE, g[3], tag="ost", flags=SC1)
        late.append((g[1], st))
    o += k2_loads_A(1, 4, sPL) + [valu("v_add_u32", V2P, D[9] - D[4], V2P)]
    o += next_off(sB2, TB, sBB, 12288) + [salu("s_mov_b32", sWANT, 0)]
    o += prof_stamp(1, 30)
    o += srd(S2OUT, "s92", "s93", 7864320)
    o += [salu("s_mul_i32", sOB, "s6", 192 * 2560), salu("s_mul_i32", "s7", "s84", 96 * 2560), salu("s_add_u32", sOB, sOB, "s7"),
          salu("s_mul_i32", "s7", "s5", 1280), salu("s_add_u32", sOB, sOB, "s7"),
          salu("s_mul_i32", "s7", "s85", 320), salu("s_add_u32", sOB, sOB, "s7"), salu("s_mov_b32", sCNT, 6)]
    S0 = Sched()
    if OPT["pace"]:
        k2_first(S0, late)
    else:
        k2_steps(S0, True, [True, True], [True, True], [False, True], late=late)
    S0.order_fixed()
    first = S0.build()
    S1 = Sched()
    k2_steps(S1, False, [True, True], [True, True], [True, True], check=True)
    if OPT["prof"] and not OPT["p2st"]:
        S1.put(3, raw("s_memrealtime s[76:77]", wr=["s76", "s77"]), raw("s_waitcnt lgkmcnt(0)", "drainlg"),
               salu("s_mov_b32", "s101", "s100"), salu("s_mov_b32", "s100", "s99"), salu("s_mov_b32", "s99", "s98"),
               salu("s_mov_b32", "s98", "s97"), salu("s_mov_b32", "s97", "s96"), salu("s_mov_b32", "s96", "s76"))
    S1.put(237, salu("s_sub_u32", sCNT, sCNT, 1))
    S1.order_fixed()
    loop = [label("L_k2")] + S1.build() + [scmp("s_cmp_lg_u32", sCNT, 0), raw("s_cbranch_scc1 L_k2", "branch", rd=["scc"])]
    R1, R2, i, a, V2O = V2A[0], V2A[1], V2A[2], V2A[3], V2A[4]
    setup = [salu("s_mul_i32", "s7", sWAVE, 30720), valu("v_add_u32", V2W, "s7", V2L), valu("v_lshrrev_b32", i, 4, V2L),
             valu("v_and_b32", a, 15, i), valu("v_mul_u32_u24", a, 2560, a), valu("v_lshrrev_b32", i, 4, i),
             valu("v_lshl_add_u32", V2O, i, 4, a),
             salu("s_xor_b32", sPL, sWAVE, 1), salu("s_sub_u32", sPL, sPL, sWAVE), salu("s_mul_i32", "s7", sPL, 30720),
             valu("v_add_u32", R1, "s7", V2W),
             salu("s_xor_b32", sPL, sWAVE, 3), salu("s_sub_u32", sPL, sPL, sWAVE), salu("s_mul_i32", "s7", sPL, 30720),
             valu("v_add_u32", R2, "s7", V2W)]
    for sl in range(8):
        pi, q = divmod(sl, 3)
        setup += [salu("s_mul_i32", "s7", f"s{47 + q}", 40960), salu("s_lshl_b32", sPL, f"s{36 + pi}", 6),
                  salu("s_add_u32", "s7", "s7", sPL), salu("s_add_u32", f"s{84 + sl}", "s7", sOB)]
    sent = [(pi, xy, qi) for pi in range(5) for qi in range(3, 6) for xy in range(2)]
    wr = {t: ds_write("ds_write_b128", V2W, ("v", acc2(*t)), 4, n * 1024) for n, t in enumerate(sent)}
    S2 = Sched()
    e = []
    if OPT["redov"]:
        order = [wr[(pi, xy, qi)] for pi in range(5) for xy in range(2) for qi in range(3, 6)]
        k2_steps(S2, False, [False, False], [True, False], [True, False], final=(setup, order[:29]))
        e = order[29:]
    else:
        k2_steps(S2, False, [False, False], [True, False], [True, False])
        e = setup + list(wr.values())
    S2.order_fixed()
    last = S2.build()
    e += [needlgkm0(), barrier()] + prof_stamp(8, 234)
    for s in list(range(7, 15)) + list(range(7)):
        pi, q = divmod(s, 3)
        e += [ds_read("ds_read_b128", ("v", acc2(pi, xy, q + 3)), 4, R1, (2 * s + xy) * 1024) for xy in range(2)]
    for s in list(range(7, 15)) + list(range(7)):
        pi, q = divmod(s, 3)
        d, t = acc2(pi, 0, q), acc2(pi, 0, q + 3)
        e += [valu("v_pk_add_f32", f"v[{d + r}:{d + r + 1}]", f"v[{d + r}:{d + r + 1}]", f"v[{t + r}:{t + r + 1}]") for r in range(0, 8, 2)]
        if s >= 7:
            e += [ds_write("ds_write_b128", R1, ("v", acc2(pi, xy, q)), 4, (2 * s + xy) * 1024) for xy in range(2)]
    e += [needlgkm0(), barrier()]
    for s in range(8):
        pi, q = divmod(s, 3)
        for xy in range(2):
            e += [ds_read("ds_read_b128", ("v", acc2(pi, xy, q + 3)), 4, R2, (2 * (14 - s) + xy) * 1024)]
    for s in range(8):
        pi, q = divmod(s, 3)
        d0, t0 = acc2(pi, 0, q), acc2(pi, 0, q + 3)
        e += [valu("v_pk_add_f32", f"v[{d0 + r}:{d0 + r + 1}]", f"v[{d0 + r}:{d0 + r + 1}]", f"v[{t0 + r}:{t0 + r + 1}]") for r in range(0, 8, 2)]
        e += [valu("v_cvt_pk_bf16_f32", f"v{d0 + r}", f"v{d0 + 2 * r}", f"v{d0 + 2 * r + 1}") for r in range(4)]
        e += [vstore(("v", d0), 4, V2O, S2OUT, f"s{84 + s}", 0, flags=OPT["outf"])]
    e += prof_stamp(9, 234)
    if OPT["prof"]:
        for n in range(6):
            e += [valu("v_mov_b32", "v234", 1), valu("v_mov_b32", "v235", f"s{101 - n}"), pstore(234, 2 + n), nop(4)]
    if OPT["dbgt"]:
        a, b = {1: ("s76", "s78"), 2: ("s74", "s76"), 3: ("s76", "s74"), 4: ("s76", "s74")}[OPT["dbgt"]]
        e += [drain(), raw("s_memrealtime s[78:79]", wr=["s78", "s79"]), raw("s_waitcnt lgkmcnt(0)", "drainlg"),
              salu("s_sub_u32", a, a, "s72"), salu("s_sub_u32", b, b, "s72"),
              scmp("s_cmp_lt_u32", "s2", 8), salu("s_cselect_b32", "s7", "s2", "0x1000"), salu("s_lshl_b32", "s7", "s7", 2),
              valu("v_mov_b32", "v0", a), valu("v_mov_b32", "v1", b),
              Ins(f"buffer_store_dword v0, {vFLG}, s[{S_FLG}:{S_FLG + 3}], s7 offen", "vst", rd=["v0", vFLG, "s7"]),
              Ins(f"buffer_store_dword v1, {vFLG}, s[{S_FLG}:{S_FLG + 3}], s7 offen offset:32", "vst", rd=["v1", vFLG, "s7"])]
    e += [label("L_end"), raw("s_endpgm")]
    sp1 = spin("L_spin1", "L_spin1_back", vPOLL[:1], [sFG], [(0, "0xff", 8)]) + spin("L_spin3", "L_spin3_back", vPOLL[1:], [sFB], [(16, 0, 128)])
    sp2 = spin("L_spin2", "L_spin2_back", [V2P], [sFG], [(8, "0xff", 8)])
    return o, first, loop, last, e, sp1, sp2


def check_pointers(pro):
    ptr = set(regs("s", 56, 8) + regs("s", 88, 8))
    dirty = set()
    for x in pro:
        if x.text.startswith("s_load"):
            continue
        if x.text.startswith(("s_mov_b32", "s_and_b32", "s_add_u32", "s_addc_u32")) and x.rd & dirty and "0xffff" in x.text:
            raise AssertionError(x.text)
        dirty |= x.wr & ptr


def kernel():
    pro = prologue()
    check_pointers(pro)
    q1 = q_phase(False)
    if OPT["dbgt"] >= 3:
        st = [raw("s_memrealtime s[76:77]", wr=["s76", "s77"]), raw("s_waitcnt lgkmcnt(0)", "drainlg")]
        if OPT["dbgt"] == 3:
            q1 = q1 + st
        else:
            q1 = st + q1
    full = []
    for last in (False, True):
        _alt[0] = 0
        full.append(a_phase(last))
    cut = [[n for n, x in enumerate(f) if x.text == "L_CUT:"][0] for f in full]
    assert [x.text for x in full[0][:cut[0]]] == [x.text for x in full[1][:cut[1]]]
    att = [label("L_att")] + full[0][:cut[0]]
    tails = []
    for v in range(2):
        t = [label(f"L_tail{v + 1}")] + full[v][cut[v] + 1:]
        t += [raw("s_cbranch_vccnz L_slow", "branch", rd=["vcc"]), label(f"L_back{v + 1}")]
        t += [valu("v_rcp_f32", f"v{16 + qt}" if v else vR[qt], f"v{lacc(qt)}") for qt in range(6)]
        if OPT["dbgt"] and not (v and OPT["dbgt"] >= 3):
            t += [raw(f"s_memrealtime s[{74 + 2 * v}:{75 + 2 * v}]", wr=[f"s{74 + 2 * v}", f"s{75 + 2 * v}"]), raw("s_waitcnt lgkmcnt(0)", "drainlg")]
        t += prof_stamp(29)
        if OPT["prof"]:
            t += [salu("s_add_u32", sPROF, sPROF, 240)]
        tails.append(t)
    q2 = [salu("s_mov_b32", sIT, 1), label("L_q2")] + q_phase(True) + [raw("s_branch L_att", "branch")]
    o, first, loop2, last, e, sp1, sp2 = phase2()
    slow = slow_path()
    parts = [pro, q1, att, tails[0], q2, tails[1], o, first, loop2, last, e, slow, sp1, sp2]
    waits = compute_waits([pro + q1 + att + tails[0] + q2 + att + tails[1] + o + first + loop2 + loop2 + loop2 + last + e, slow, sp1, sp2])
    done = {}
    P = [apply_waits(x, waits, done) for x in parts]
    pads = pad_hazards([P[0] + P[1] + P[2] + P[3] + P[4] + P[2] + P[5] + P[6] + P[7] + P[8] + P[8] + P[9] + P[10], P[11], P[12], P[13]])
    al = ".p2align 3\n"
    return (emit(P[0] + P[1], pads) + al + emit(P[2] + P[3] + P[4], pads) + al + emit(P[5] + P[6] + P[7], pads) + al +
            emit(P[8] + P[9] + P[10] + P[11] + P[12] + P[13], pads) + "L_endcode:\n")


def main():
    kn = NAME + "_kernel"
    s = open("cdna_kernels/" + NAME + ".s.ref").read().split("; Override launch")[0]
    s += "; @launch grid=(256,1,1) block=(256,1,1) lds=163840\n"
    s += """; One persistent workgroup per CU (4 waves, one per SIMD, 512 registers each); all MFMAs are 16x16x32 bf16.
;               row maximum (L_slow). K/V tiles stream through a ring of LDS pages at an even rate.
"""
    s += '.amdgcn_target "amdgcn-amd-amdhsa--gfx950"\n.text\n'
    s += f".globl {kn}\n.p2align 8\n.type {kn},@function\n{kn}:\n" + kernel()
    s += f""".section .rodata,"a"
.p2align 6
.amdhsa_kernel {kn}
  .amdhsa_next_free_vgpr 512
  .amdhsa_next_free_sgpr 102
  .amdhsa_accum_offset 256
  .amdhsa_group_segment_fixed_size 0
  .amdhsa_kernarg_size 104
  .amdhsa_user_sgpr_count 2
  .amdhsa_user_sgpr_kernarg_segment_ptr 1
  .amdhsa_system_sgpr_workgroup_id_x 1
.end_amdhsa_kernel
"""
    open(sys.argv[1], "w").write(s)


main()
```

```python
import sys, math, struct
from fw3 import *
from orders import orders
import alloc3

NAME = "concat_heads__mha_block_cached__mha_block_cached__near_ridge"
OPT = dict(outf=' sc1', redov=1, one1=1, warmj=0, pk=1, pfq1=1, rot2=4, gate=0, pace=1, lead=3, xpace=0, kvf=' nt', norot=0, tlbw=0, kpro=0, kplan=0, jlate=1, dbgt=0, jpro=0, k1s=0, e10=1, t23=0, nfree=1, kstep10=136, ks1=0, kn1=0, kfirst=6, k2late=0, qsp=1, tmax=2, xnum=25, xhi=100, ctq=0, cplim=1, p2st=0, kbar=0, kin=2, early2=0, tsp=0, wtouch=0, jsh=0, ctoff=0, cta='', rotq1=2, gstep=2, rotq=3, early=1, uni=0, prof=0, report=False, stg=67, warmw=True, codepf=2, codepf2=12, pf='', pf0=1, pfn=3, pff='', flagbar=12, map=0)
for a in sys.argv[2:]:
    k, v = a.split("=")
    OPT[k] = type(OPT[k])(int(v)) if not isinstance(OPT[k], str) else v

KB = 1024
SC1 = " sc1"
O_GRP = 2 * 786432
WS_WOT = 50331648
WOT_BLK = 5242880
WS_PROF = 64 * 1024 * 1024

S_K, S_V, S_X, S_WQ, S_OST, S_WO, S_WOT = 8, 12, 16, 20, 24, 28, 32
sKV, sWQ, sX, sW4K, sW6K, sO, sIT, sT0, sT1, sC, sWAVE = ["s%d" % i for i in range(36, 47)]
sWOS, sWOD, sWOX, sW5K, sHI, sLO = ["s%d" % i for i in range(47, 53)]
sPROF, sE, sJ = "s53", "s54", "s55"
sQT, sWS, sXS, sW1, sNC = "s50", "s67", "s95", "s63", "s7"
sROT, sFG, sFB, sCP = "s62", "s65", "s66", "s64"
sA2, sB2, sPL, sOB, sCNT, sSO, sQ, sSH, sWANT, sSPIN = "s28", "s29", "s30", "s31", "s67", "s68", "s69", "s70", "s71", "s94"
S_PROF, S_FLG = 72, 80
sPF = {("W", 0, 0): ["s84"], ("W", 0, 1): ["s85"], ("X", 0): ["s86", "s87"], ("X", 1): ["s98", "s99"], ("W", 1, 0): ["s100"],
       ("P", 0): ["s60"], ("P", 1): ["s61"], ("P", 2): ["s101"]}
PF2 = {"s84": (0, 0, 0), "s86": (0, 1, 0), "s60": (0, 2, 0), "s101": (0, 3, 0), "s98": (0, 4, 0), "s61": (1, 0, 0),
       "s87": (1, 1, 0), "s99": (1, 1, 2048), "s85": (1, 2, 0), "s100": (1, 3, 0)}
vK = ["v%d" % i for i in range(192, 196)]
vV = ["v196", "v197"]
vW = ["v%d" % i for i in range(198, 202)]
vX = ["v%d" % i for i in range(202, 206)]
kA = ["v%d" % i for i in range(206, 210)]
vA = ["v%d" % i for i in range(210, 218)]
wA = ["v218", "v219"]
xA = ["v220", "v221"]
vJ, vL16 = "v222", "v223"
ONES = 224
EPI = 228
vR = ["v%d" % i for i in range(244, 250)]
vFLG = "v250"
vT = ["v252", "v253"]
vC2 = "v[242:243]"
vPOLL = ["v254", "v255"]

V2B = ["v245", "v246", "v247", "v248", "v249", "v251"]
V2L, V2W, V2P, V2X = "v252", "v254", "v255", "v253"
S2A, S2B, S2OUT = S_WQ, S_X, 8
TA, TB, sAB, sBB = 56, 62, "s43", "s44"

D = [i * 16 * KB for i in range(10)]
XS = [96 * KB, 120 * KB]
WOJ_ADDR = D[4]


def qacc(p, xy, qt):
    return 64 * (qt >> 1) + (2 * p + (qt & 1)) * 8 + 4 * xy


def qf(qt, p):
    return 64 * (qt >> 1) + (2 * p + (qt & 1)) * 4


def sreg(qt):
    return 64 * (qt >> 1) + 32 + 8 * (qt & 1)


def mrun(qt):
    return 64 * (qt >> 1) + 56 + (qt & 1)


def mneg(qt):
    return 64 * (qt >> 1) + 58 + (qt & 1)


def lacc(qt):
    return 64 * (qt >> 1) + 48 + 4 * (qt & 1)


ABUF = [192, 248]


def bx(qt, ks):
    return 200 + 8 * qt + 4 * ks


def kf(kt, ks):
    return 192 + 16 * kt + 4 * ks


def vf(dt):
    return 224 + 4 * dt


def oacc(qt, dt):
    return 32 * qt + 4 * dt


def kpos(k):
    n1 = OPT["kn1"]
    if OPT["kin"]:
        return 2 + OPT["kstep10"] / 10.0 * (4 * (k // 4) + 1) + OPT["kin"] * (k % 4)
    return 2 + OPT["ks1"] / 10.0 * min(k, n1) + OPT["kstep10"] / 10.0 * max(k - n1, 0)


def build_units():
    U = {}
    for i in range(10):
        U[("X", i)] = dict(addr=XS[i % 2], size=24 * KB, iss=i - 2.5, land=i - 1, rel=i - 0.5)
        U[("W", i, 0)] = dict(addr=D[2 * (i % 2)], size=16 * KB, iss=i - 2.5, land=i - 1, rel=i - 0.5)
        U[("W", i, 1)] = dict(addr=D[2 * (i % 2) + 1], size=16 * KB, iss=i - 2, land=i - 0.5, rel=i)
    t0 = (-6, -7, -5) if OPT["tsp"] else (-4, -4, -3)
    for k, e in ((("X", 0), t0[0]), (("W", 0, 0), t0[1]), (("X", 1), t0[2]), (("W", 0, 1), -2), (("W", 1, 0), -2)):
        U[k]["iss"] = e
    pages = [9, 5, 4, 6, 0, 7, 1, 8, 2, 3, 9, 4, 5, 6, 0, 1, 7, 2, 8, 3, 9, 4, 5, 6, 0, 7, 1, 8, 2, 9, 5, 4]
    if OPT["kstep10"]:
        (_, pages), kiss, leads = alloc3.plan(0, OPT["kfirst"], pos=kpos, head=[5, 9, 4, 6, 1 if OPT["k2late"] else 0, 7, 1, 8],
                                                 lastN={0: 27 + t0[1], 1: 25, 2: 25, 3: 26, 4: 24, 5: 23, 6: 27 + t0[0], 7: 27 + t0[0], 8: 27 + t0[2], 9: 24})
        if OPT["report"]:
            print("; leads", [round(x, 1) for x in leads])
    for u in range(32):
        key = ("K", u // 2) if u % 2 == 0 else ("V", u // 2)
        N = 10 + u // 2 + u % 2
        U[key] = dict(addr=D[pages[u]], size=16 * KB, iss=N - 5 + (u == 30), land=N - 1, rel=N)
        if OPT["kstep10"] and u >= OPT["kfirst"]:
            U[key].update(iss=kiss[u], even=u - OPT["kfirst"])
    if OPT["kbar"]:
        for t in range(1, 16):
            U[("K", t)]["land"] += 0.5
    U[("V", 1)]["iss"] = U[("K", 2)]["iss"] = 7.5
    if "even" not in U[("V", 2)]:
        U[("V", 2)]["iss"] = 8.5
    if OPT["k2late"]:
        U[("K", 2)]["iss"] = 8
    if OPT["kstep10"]:
        if OPT["kfirst"] == 8:
            U[("V", 3)]["iss"] = 8.5
        return U
    if OPT["e10"] < 2:
        U[("K", 4)]["iss"] = 10
    if OPT["e10"] < 1:
        U[("V", 3)]["iss"] = 10
    if OPT["t23"]:
        U[("W", 0, 0)]["iss"] = U[("W", 1, 1)]["iss"] = -5
    return U


def check_units(second):
    V = {k: dict(u) for k, u in U.items()}
    if second:
        V[("K", 0)]["iss"], V[("V", 0)]["iss"], V[("K", 1)]["iss"] = -4, -3, -3
    else:
        j = OPT["jsh"]
        V[("J",)] = dict(addr=D[4], size=32 * KB, iss=-1 + j, land=2 + j, rel=3 + j)
        V[("J", 2)] = dict(addr=D[9], size=16 * KB, iss=j, land=2 + j, rel=3 + j)
        V[("K", 0)]["iss"], V[("V", 0)]["iss"], V[("K", 1)]["iss"] = 3 + j, 4 + j, 5 + j
    allu = [(k, u["addr"], u["addr"] + u["size"], u["iss"], u["rel"]) for k, u in V.items()]
    assert all(u["iss"] < u["land"] <= u["rel"] for u in V.values())
    if second:
        allu += [(k, u["addr"], u["addr"] + u["size"], u["iss"] - 27, u["rel"] - 27) for k, u in U.items() if k[0] in "KV" and k[1] > 2]
        allu += [(("P", n), D[p], D[p] + 16 * KB, (23, 24, 24)[n], 27) for n, p in enumerate((5, 9, 4))]
        allu += [(k, u["addr"], u["addr"] + u["size"], u["iss"] + 27, 40) for k, u in U.items() if k in sPF]
    for a in allu:
        for b in allu:
            if a is not b and a[1] < b[2] and b[1] < a[2]:
                assert a[4] <= b[3] or b[4] <= a[3], (a, b)


U = build_units()
U[("K", 0)]["iss"] = U[("V", 0)]["iss"] = U[("K", 1)]["iss"] = None
PADDR = {("P", 0): D[5], ("P", 1): D[9], ("P", 2): D[4]}
_alt = [0]


def next_st():
    _alt[0] ^= 1
    return [sT0, sT1][_alt[0]]


def unit_dmas(key, tmp=None):
    kind = key[0]
    if kind == "P":
        return [([salu("s_add_u32", "m0", sW4K, PADDR[key])], [dma(vW[m], S_WQ, sPF[key][0], 1024 * m, key, SC1) for m in range(4)])]
    if kind == "J":
        jj = key[1]
        sT = tmp
        pre = [salu("s_add_u32", sT, sWOS, jj * 128), salu("s_add_u32", "m0", sW4K, D[(4, 5, 9)[jj >> 2]] + (jj & 3) * 1024)]
        return [(pre, [dma(vX[0], S_WO, sT, 0, "J", " nt")])]
    u = U[key]
    if key in sPF:
        if kind == "W":
            return [([salu("s_add_u32", "m0", sW4K, u["addr"])], [dma(vW[m], S_WQ, sPF[key][0], 1024 * m, key, SC1) for m in range(4)])]
        return [([salu("s_add_u32", "m0", sW6K, u["addr"])], [dma(vX[m], S_X, sPF[key][0], 1024 * m, key, SC1) for m in range(4)]),
                ([salu("s_add_u32", "m0", sW6K, u["addr"] + 4096)], [dma(vX[m], S_X, sPF[key][1], 1024 * m, key, SC1) for m in range(2)])]
    sT = tmp or next_st()
    if kind in "KV":
        pre = [salu("s_add_u32", sT, sROT, key[1] * 8192), salu("s_and_b32", sT, sT, "0x1ffff"), salu("s_add_u32", sT, sT, sKV),
               salu("s_add_u32", "m0", sW4K, u["addr"])]
        if kind == "K":
            return [(pre, [dma(vK[m], S_K, sT, 1024 * m, key, OPT["kvf"]) for m in range(4)])]
        return [(pre, [dma(vV[m & 1], S_V, sT, 1024 * m, key, OPT["kvf"]) for m in range(4)])]
    if kind == "W":
        return [([salu("s_add_u32", "m0", sW4K, u["addr"])], [dma(vW[m], S_WQ, sW1 if key[2] else sWS, 1024 * m, key) for m in range(4)])]
    g0 = ([salu("s_add_u32", "m0", sW6K, u["addr"])], [dma(vX[m], S_X, sXS, 1024 * m, key) for m in range(4)])
    pre2 = [salu("s_add_u32", sT, sXS, 40960), salu("s_add_u32", "m0", sW6K, u["addr"] + 4096)]
    return [g0, (pre2, [dma(vX[m], S_X, sT, 1024 * m, key) for m in range(2)])]


def set_pf_proj(tail=False):
    o = [salu("s_add_u32", sW1, sWQ, 524288 + 128)]
    for key, rs in sPF.items():
        if key[0] == "P":
            continue
        if key[0] == "W":
            o += [salu("s_add_u32", rs[0], sWQ, key[1] * 524288 + key[2] * 128)]
        else:
            o += [salu("s_add_u32", rs[0], sX, key[1] * 128), salu("s_add_u32", rs[1], sX, key[1] * 128 + 40960)]
    return o


ORD2 = orders(16, 4, 8, 7, {1: [4], 2: [1, 1, 2, 2, 2, 0, 0], 3: [1, 2, 2, 2, 1, 0, 0], 4: [2, 1, 2, 2, 1, 0, 0]}[OPT["rot2"]])[0] if OPT["rot2"] else [list(range(16))] * 4
ORDQ = orders(10, 4, None, 0, {1: [1, 1, 2, 2, 2, 1, 1], 2: [1, 1, 4], 3: [1, 1, 2, 2, 1, 1, 1, 1]}[OPT["rotq"]])[0] if OPT["rotq"] else [list(range(10))] * 4
assert all(o[:2] == [0, 1] for o in ORDQ)
TBLQ = [sum(x << (4 * n) for n, x in enumerate(o[2:])) for o in ORDQ]
ORDQ1 = {0: ORDQ, 1: orders(10, 4, None, 0, [4])[0], 2: orders(10, 4, None, 0, [2, 2, 2, 1, 1, 1, 1])[0], 3: orders(10, 4, None, 0, [4, 0, 1, 1, 1, 1, 1, 1])[0]}[OPT["rotq1"]]
TBLQ1 = [sum(x << (4 * n) for n, x in enumerate(o[2:])) for o in ORDQ1]
TBLQ0 = [o[0] | o[1] << 4 for o in ORDQ1]


def by_role(dst, role, consts):
    o = [salu("s_mov_b32", dst, "0x%x" % consts[0])]
    for r in range(1, 4):
        o += [[scmp("s_cmp_eq_u32", role, r), salu("s_cselect_b32", dst, "0x%x" % consts[r], dst)]]
    return o


TBL2 = [sum(x << (4 * n) for n, x in enumerate(o)) for o in ORD2]


def next_off(dst, tbl, base, stride):
    return [salu("s_and_b32", dst, f"s{tbl}", 15), salu("s_lshr_b64", f"s[{tbl}:{tbl + 1}]", f"s[{tbl}:{tbl + 1}]", 4),
            salu("s_mul_i32", dst, dst, stride), salu("s_add_u32", dst, dst, base)]


def set_pf_out():
    o = [salu("s_and_b32", "s68", "s4", 3), salu("s_mul_i32", "s68", "s68", 1310720), salu("s_mul_i32", "s69", "s5", WOT_BLK),
         salu("s_add_u32", "s68", "s68", "s69"), salu("s_add_u32", "s68", "s68", WS_WOT)]
    o += [[salu("s_add_u32", f"s{S_WQ}", "s90", "s68"), salu("s_addc_u32", "s69", "s91", 0)]]
    o += [salu("s_and_b32", f"s{S_WQ + 1}", "s69", "0xffff"), salu("s_mov_b32", f"s{S_WQ + 2}", 1310720),
          salu("s_mov_b32", f"s{S_X}", f"s{S_WQ}"), salu("s_mov_b32", f"s{S_X + 1}", f"s{S_WQ + 1}"), salu("s_mov_b32", f"s{S_X + 2}", 1310720)]
    o += [salu("s_lshr_b32", "s70", sWAVE, 1), salu("s_mul_i32", "s68", sWAVE, 16 * 20480), salu("s_lshl_b32", "s69", "s70", 14),
          salu("s_add_u32", "s68", "s68", "s69"), salu("s_lshl_b32", "s69", "s70", 13), salu("s_sub_u32", "s69", 4096, "s69")]
    o += [salu("s_add_u32", "s70", "s3", "s4"), salu("s_and_b32", "s70", "s70", 3),
          salu("s_mov_b32", "s34", "0x%x" % (TBL2[0] & 0xffffffff)), salu("s_mov_b32", "s35", "0x%x" % (TBL2[0] >> 32))]
    for r in range(1, 4):
        o += [[scmp("s_cmp_eq_u32", "s70", r), salu("s_cselect_b32", "s34", "0x%x" % (TBL2[r] & 0xffffffff), "s34"),
               salu("s_cselect_b32", "s35", "0x%x" % (TBL2[r] >> 32), "s35")]]
    o += [salu("s_and_b32", "s70", "s34", 15), salu("s_mul_i32", "s70", "s70", 20480), salu("s_add_u32", "s70", "s70", "s68"),
          salu("s_bfe_u32", "s71", "s34", "0x40004"), salu("s_mul_i32", "s71", "s71", 20480), salu("s_add_u32", "s71", "s71", "s68")]
    for r, (st, pi, off) in PF2.items():
        o += [salu("s_mul_i32", r, "s69", pi), salu("s_add_u32", r, r, "s71" if st else "s70")]
        if off:
            o += [salu("s_add_u32", r, r, off)]
    return o


def groups_at(iss):
    order = {"W": 0, "X": 1, "K": 2, "V": 2}
    keys = sorted([k for k, u in U.items() if u["iss"] is not None and u["iss"] % 27 == iss % 27 and "even" not in u],
                  key=lambda k: (U[k]["land"] - U[k]["iss"], order[k[0]], k))
    return [g for k in keys for g in unit_dmas(k)]


def place_dmas(S, groups, cand, lo):
    ci = 0
    for pre, ds in groups:
        g = cand[ci]
        for n, p in enumerate(pre[:-1]):
            S.put(max(lo, g - len(pre) + n), p)
        for d in ds:
            d.m0 = pre[-1]
            S.put(cand[ci], d)
            ci += 1


def fix_m0(S):
    cur, prev = None, -2
    for g in sorted(S.fixed):
        for d in [x for x in S.fixed[g] if x.kind == "dma"]:
            if d.m0.text != cur:
                m = Ins(d.m0.text, "salu", rd=d.m0.rd, wr=d.m0.wr)
                if g - 1 > prev and not any(x.kind in ("bar", "branch") for x in S.fixed.get(g - 1, [])):
                    S.put(g - 1, m)
                else:
                    S.fixed[g].insert(S.fixed[g].index(d), m)
                cur = d.m0.text
            prev = g
        if any(x.kind == "label" for x in S.fixed[g]):
            cur = None


def tags_for(n):
    t = [k for k, u in U.items() if (u["land"] - n) % 27 == 0]
    if n == OPT["flagbar"]:
        t += ["ost", "jst"]
    if n == 2 + OPT["jsh"]:
        t += ["J"]
    return t


def atomic_add(vdata, soff):
    return Ins(f"buffer_atomic_add {vdata}, {vFLG}, s[{S_FLG}:{S_FLG + 3}], {soff} offen sc1", "atomic",
               rd=[vdata, vFLG, soff] + regs("s", S_FLG, 4), tag="flag")


def poll_load(vdst, soff):
    return Ins(f"buffer_load_dword {vdst}, off, s[{S_FLG}:{S_FLG + 3}], {soff} sc1", "vld", rd=[soff] + regs("s", S_FLG, 4), wr=[vdst])


class Win:
    def __init__(self, rs, init):
        self.rs = rs
        self.cur = init

    def move(self, new):
        d = (new - self.cur) & 0xffffffff
        self.cur = new
        return [valu("v_add_u32", r, "0x%x" % d, r) for r in self.rs] if d else []


def plan_windows(addrs, span):
    want = []
    i = 0
    while i < len(addrs):
        lo = hi = addrs[i]
        j = i + 1
        while j < len(addrs) and max(hi, addrs[j]) - min(lo, addrs[j]) + span < 65536:
            lo, hi = min(lo, addrs[j]), max(hi, addrs[j])
            j += 1
        want += [lo] * (j - i)
        i = j
    return want


KWANT = plan_windows([U[("K", t)]["addr"] for t in range(16)], 4096)
VWANT = plan_windows([U[("V", t)]["addr"] for t in range(16)], 4096)
check_units(False)
check_units(True)


def pstore(v0, idx):
    return Ins(f"buffer_store_dwordx2 v[{v0}:{v0 + 1}], off, s[{S_PROF}:{S_PROF + 3}], {sPROF} offset:{8 * idx}", "vst",
               rd=[f"v{v0}", f"v{v0 + 1}", sPROF] + regs("s", S_PROF, 4))


def prof_stamp(idx, v0=252):
    if not OPT["prof"]:
        return []
    return [raw("s_memtime s[76:77]", "other", wr=["s76", "s77"]),
            raw("s_memrealtime s[78:79]", "other", wr=["s78", "s79"]),
            raw("s_waitcnt lgkmcnt(0)", "drainlg"),
            valu("v_mov_b32", f"v{v0}", "s76"),
            valu("v_mov_b32", f"v{v0 + 1}", "s78"),
            pstore(v0, idx)]


def bar_seq(tags, idx):
    if OPT["prof"] < 2:
        return [needboth(tags), barrier()] + prof_stamp(idx)
    return [raw("s_memtime s[58:59]", "other", wr=["s58", "s59"]), raw("s_waitcnt lgkmcnt(0)", "drainlg"),
            needboth(tags), barrier(),
            raw("s_memtime s[76:77]", "other", wr=["s76", "s77"]),
            raw("s_memrealtime s[78:79]", "other", wr=["s78", "s79"]),
            raw("s_waitcnt lgkmcnt(0)", "drainlg"), salu("s_sub_u32", "s76", "s76", "s58"),
            valu("v_mov_b32", "v252", "s76"), valu("v_mov_b32", "v253", "s78"), pstore(252, idx)]


def a_read(i, dt, ks, t):
    p, xy = dt >> 1, dt & 1
    off = U[("W", i, p >> 1)]["addr"] + ks * 4096 + t * 512 + xy * 8
    return ds_read("ds_read_b64_tr_b16", ("a", ABUF[dt % 2] + 4 * ks + 2 * t), 2, wA[p & 1], off)


def first_reads(i):
    ax = U[("X", i)]["addr"] - XS[0]

    def A(ks, t):
        return a_read(i, 0, ks, t)

    def B(qt, ks):
        return ds_read("ds_read_b128", ("a", bx(qt, ks)), 4, xA[ks], ax + qt * 2048)
    return [A(0, 0), A(0, 1), B(0, 0), A(1, 0), A(1, 1), B(0, 1)] + [B(qt, ks) for qt in range(1, 6) for ks in range(2)]


def k_read(t, j):
    kt, ks = j >> 2, j & 3
    return ds_read("ds_read_b128", ("a", kf(kt, ks)), 4, kA[ks], U[("K", t)]["addr"] - KWANT[t] + kt * 4096)


def epilogue_groups(tmp, dst=None, vaddr=None):
    groups = []
    n = 0
    for T in range(3):
        for ph in range(2):
            for qs in range(2):
                for pl in range(2):
                    qt = 2 * T + qs
                    tb = tmp + 4 * (n % 3)
                    src = oacc(qt, 4 * ph + 2 * pl)
                    db = tb if dst is None or dst(n) is None else dst(n)
                    rd = [valu("v_accvgpr_read_b32", f"v{tb + i}", f"a{src + i}") for i in range(8)]
                    mu = [valu("v_mul_f32", f"v{tb + i}", vR[qt], f"v{tb + i}") for i in range(8)]
                    cv = [valu("v_cvt_pk_bf16_f32", f"v{db + i}", f"v{tb + 2 * i}", f"v{tb + 2 * i + 1}") for i in range(4)]
                    pre = [salu("s_add_u32", sE, sO, ph * 12288 + T * 4096)] if qs == 0 and pl == 0 else []
                    imm = qs * 2048 + pl * 1024
                    groups.append((rd + mu + cv, pre, vstore(("v", db), 4, vaddr or vL16, S_OST, sE, imm, tag="ost", flags=SC1), imm))
                    n += 1
    return groups


def conv_items(T, ps, packed=()):
    out = []
    for p in ps:
        for qs in range(2):
            R, Dd = qacc(p, 0, 2 * T + qs), qf(2 * T + qs, p)
            if OPT["tmax"]:
                pass
            elif p in packed:
                out += [(p, qs, valu("v_pk_mul_f32", f"v[{R + x}:{R + x + 1}]", f"v[{R + x}:{R + x + 1}]", "s[86:87]" if False else vC2)) for x in range(0, 8, 2)]
            else:
                out += [(p, qs, valu("v_mul_f32", f"v{R + x}", sC, f"v{R + x}")) for x in range(8)]
            out += [(p, qs, valu("v_cvt_pk_bf16_f32", f"v{Dd + x}", f"v{R + 2 * x}", f"v{R + 2 * x + 1}")) for x in range(4)]
    return out


def touch_code(S, g, base, st, v0):
    lo, hi = f"v{v0}", f"v{v0 + 1}"
    S.put(g, salu("s_add_u32", st, sCP, base))
    S.put(g + 1, salu("s_min_u32", st, st, "L_endcode-L_pc-256"), valu("v_and_b32", lo, 16, vL16), valu("v_lshlrev_b32", lo, 3, lo))
    S.put(g + 2, valu("v_add_u32", lo, st, lo), valu("v_mov_b32", hi, "s97"))
    S.put(g + 3, valu("v_add_co_u32", lo, "vcc", "s96", lo, extra_wr=["vcc"]))
    S.put(g + 4, valu("v_addc_co_u32", hi, "vcc", 0, hi, "vcc", extra_wr=["vcc"]))
    return Ins(f"global_load_dword {lo}, v[{v0}:{v0 + 1}], off", "vld", rd=[lo, hi], wr=[lo])


def q_phase(second):
    S = Sched()
    extra, mid = {}, {}
    if not second:
        jp = OPT["jpro"]
        if jp == 0:
            extra[OPT["jsh"]] = [g for jj in range(5) for g in unit_dmas(("J", jj), sE)]
            extra[1 + OPT["jsh"]] = [g for jj in range(5, 10) for g in unit_dmas(("J", jj), sE)]
        elif jp < 10:
            extra[1] = [g for jj in range(jp, 10) for g in unit_dmas(("J", jj), sE)]
        kv = [unit_dmas(k, sE) for k in [("K", 0), ("V", 0), ("K", 1)]]
        if OPT["kplan"] == 0:
            extra[4 + OPT["jsh"]], extra[5 + OPT["jsh"]], extra[6 + OPT["jsh"]] = kv
        elif OPT["kplan"] == 1:
            extra[7], mid[8] = kv[0], kv[1]
            extra[8] = kv[2]
        elif OPT["kplan"] == 2:
            extra[4], extra[7], mid[8] = kv
        elif OPT["kplan"] == 4:
            extra[5], extra[6], extra[7] = kv
        elif OPT["kplan"] == 5:
            extra[4], extra[6], extra[7] = kv
        elif OPT["kplan"] == 3:
            extra[5], extra[7], mid[8] = kv
    for i in range(10):
        q0 = S.n()
        for dt in range(8):
            for qt in range(6):
                for ks in range(2):
                    acc = ("v", qacc(dt >> 1, dt & 1, qt))
                    S.add(mfma(16, acc, ("a", ABUF[dt % 2] + 4 * ks), ("a", bx(qt, ks)), None if (i == 0 and ks == 0) else acc))
        for dt in range(1, 8):
            gaps = [4, 5, 6, 7] if dt == 1 else [0, 2, 3, 4]
            for n, (ks, t) in enumerate([(0, 0), (0, 1), (1, 0), (1, 1)]):
                S.put(q0 + 12 * (dt - 1) + gaps[n], a_read(i, dt, ks, t))
        S.put(q0 + 35, needboth(tags_for(i - 0.5)), barrier())
        S.put(q0 + 83, *bar_seq(tags_for(i), 2 + i))
        if i < 9:
            for n, r in enumerate(first_reads(i + 1)):
                S.put(q0 + 84 + n, r)
        else:
            kw = Win(kA, KWANT[15])
            mv = kw.move(KWANT[0])
            S.put(q0 + 80, *mv[:2])
            S.put(q0 + 82, *mv[2:])
            for j in range(8):
                S.put(q0 + 84 + j, k_read(0, j))
        if i <= 7:
            for n, x in enumerate([salu("s_bfe_u32", sXS, sQT, "0x%x" % (0x40000 + 4 * i)), salu("s_lshl_b32", sWS, sXS, 19),
                                   salu("s_add_u32", sWS, sWS, sWQ), salu("s_lshl_b32", sXS, sXS, 7), salu("s_add_u32", sXS, sXS, sX),
                                   salu("s_add_u32", sW1, sWS, 128)]):
                S.put(q0 + 26 + n, x)
        early = groups_at(i - 1)
        if i == 0 and not second and OPT["early2"]:
            first = [g for k in [("W", 0, 1), ("W", 1, 0), ("X", 1)] for g in unit_dmas(k)]
            place_dmas(S, first + early, [0, 1, 2, 3, 8, 9, 10, 11, 13, 17, 18, 19, 20, 21, 22, 23, 25, 29], -1)
            early = []
            if OPT["warmw"]:
                S.put(31, vload(("v", 252), 1, "v254", S_WQ, 0, 0))
                S.put(33, vload(("v", 253), 1, "v255", S_WQ, 0, 0))
        place_dmas(S, early + mid.get(i, []), [q0 + g for g in ((9, 17, 25, 33) if OPT["qsp"] and i == 9 else (9, 13, 17, 21, 25, 29, 31, 33))], q0)
        late = groups_at(i - 0.5) + extra.get(i, [])
        if i == 8 and 8 in extra:
            late = extra[8] + groups_at(i - 0.5)
        cand = [q0 + 37 + 4 * x for x in range(12)]
        nd = sum(len(g[1]) for g in late)
        if nd > 12:
            cand = sorted(cand + [q0 + 67, q0 + 71, q0 + 75, q0 + 79][:nd - 12])
        if OPT["qsp"] and i >= 8 and nd:
            allowed = [37, 41, 43, 45, 47, 49, 53, 55, 57, 59, 61, 65, 67, 69, 71, 73, 77, 79, 81]
            cand = [q0 + allowed[round(x * (len(allowed) - 1) / max(nd - 1, 1))] for x in range(nd)]
        place_dmas(S, late, cand, q0 + 35)
    if not second:
        for jj in range(10):
            q0 = 96 * (3 + OPT["jsh"])
            if jj == 8:
                S.put(q0 + 65, valu("v_add_u32", vJ, D[9] - D[4] - 2 * 16384, vJ))
            for tt in range(2):
                g = q0 + [10, 11, 18, 19, 22, 23, 30, 31, 34, 42, 43, 46, 47, 54, 55, 58, 66, 67, 70, 71][2 * jj + tt]
                S.put(g, ds_read("ds_read_b64_tr_b16", ("a", 4 * jj + 2 * tt), 2, vJ, (jj >> 2) * 16384 + (jj & 3) * 1024 + tt * 8192))
            nq, pair = divmod(2 * jj, 5)
            g = 96 * (4 + jj // 3) + [19, 25, 31][jj % 3]
            if OPT["jlate"] == 2:
                g = 96 * 8 + [-17, 25, 45, 65, 79, 96 + 11, 96 + 29, 96 + 45, 96 + 61, 96 + 77][jj]
            elif OPT["jlate"]:
                st = 3 + OPT["jsh"] + jj // 2
                g = 96 * st + ([79, 82] if st in extra or st >= 8 else [77, 81])[jj % 2]
            S.put(g - 1, salu("s_add_u32", sJ, sWOX if pair == 4 else sWOD, nq * 1310720 + pair * 4096))
            S.put(g, vstore(("a", 4 * jj), 4, vL16, S_WOT, sJ, 0, tag="jst", flags=SC1))
    if not second and OPT["ctq"]:
        q0 = 96 * OPT["ctq"]
        S.put(q0 + 33, touch_code(S, q0 + 18, f"L_att-L_pc+{OPT['ctoff'] * 1024}", sJ, 252))
    if second:
        eg = epilogue_groups(EPI)
        ep = []
        for i in range(8):
            for g in eg[3 * i:3 * i + 3]:
                ep += [(x, 96 * i, None) for x in g[0]]
            for g in eg[3 * i:3 * i + 3]:
                ep += [(x, 96 * i + OPT["stg"], None) for x in g[1] + [g[2]]]
        ep[-1] = (ep[-1][0], ep[-1][1], 96 * 9 - 1)
        S.stream(ep)
        S.put(96 * 9 + 2, salu("s_add_u32", sO, sO, 8 * 12288))
    q0 = 96 * 9
    g = q0 + 2
    for x in ([salu("s_add_u32", sWQ, sWQ, 512)] + set_pf_proj(True) + [salu("s_add_u32", "s68", "s3", "s4"), salu("s_and_b32", "s68", "s68", 3)] + by_role(sQT, "s68", TBLQ) if not second else set_pf_out()):
        S.put(g, *(x if isinstance(x, list) else [x]))
        g += 1 if g < q0 + 94 else 0
        while g in (q0 + 35, q0 + 83) or any(x.kind == "salu" for x in S.fixed.get(g, [])):
            g += 1
    if second:
        S.stream([(valu("v_mov_b32", r, vL16), q0 + 2, None) for r in vW + vX])
    if not OPT["tmax"]:
        S.put(q0 + 7, valu("v_mov_b32", "v242", sC), valu("v_mov_b32", "v243", sC))
    S.stream([(x, min(q0 + 12 * (2 * p + 1) + 2 * qs + 1 + 2, q0 + 95), None) for p, qs, x in conv_items(0, range(4))])
    if OPT["tmax"]:
        for T in (1, 2):
            S.stream([(x, q0 + 12 * (2 * p + 1) + 4 * T + 2 * qs + 1 + 2, None) for p, qs, x in conv_items(T, range(3))])
    S.put(-1, *prof_stamp(1))
    fix_m0(S)
    return S.finish(lead=first_reads(0), report=OPT["report"])


def lspread(qt, tmp):
    l = f"v{lacc(qt)}"
    return [valu("v_mov_b32", tmp, l), perm("v_permlane32_swap_b32", tmp, l), valu("v_add_f32", l, l, tmp),
            valu("v_mov_b32", tmp, l), perm("v_permlane16_swap_b32", tmp, l), valu("v_add_f32", l, l, tmp)]


def interleave(a, b):
    return [x for p in zip(a, b) for x in p]


def lcheck():
    l = [f"v{lacc(qt)}" for qt in range(6)]
    if OPT["tmax"] == 2:
        return [valu("v_add_f32", vT[0], l[0], l[1]), valu("v_add_f32", vT[1], l[2], l[3]), valu("v_add_f32", vT[0], vT[0], l[4]),
                valu("v_add_f32", vT[1], vT[1], l[5]), valu("v_add_f32", vT[0], vT[0], vT[1]), valu("v_cmp_ngt_f32", "vcc", sHI, vT[0])]
    if OPT["tmax"]:
        x = [f"v{mrun(qt)}" for qt in range(6)]
        return ([valu("v_fma_f32", x[q], x[q], sC, f"v{mneg(q)}") for q in range(6)] +
                [valu("v_add_f32", vT[0], l[0], l[1]), valu("v_max3_f32", vT[1], x[0], x[1], x[2]),
                 valu("v_add_f32", vT[0], vT[0], l[2]), valu("v_max3_f32", vT[1], vT[1], x[3], x[4]),
                 valu("v_add_f32", vT[0], vT[0], l[3]), valu("v_add_f32", vT[0], vT[0], l[4]),
                 valu("v_max_f32", vT[1], vT[1], x[5]), valu("v_add_f32", vT[0], vT[0], l[5]),
                 valu("v_cmp_ngt_f32", "s[56:57]", sLO, vT[1]),
                 valu("v_cmp_ngt_f32", "vcc", sHI, vT[0]),
                 salu("s_or_b64", "vcc", "vcc", "s[56:57]")])
    return [valu("v_add_f32", vT[0], l[0], l[1]), valu("v_min3_f32", vT[1], l[0], l[1], l[2]),
            valu("v_add_f32", vT[0], vT[0], l[2]), valu("v_min3_f32", vT[1], vT[1], l[3], l[4]),
            valu("v_add_f32", vT[0], vT[0], l[3]), valu("v_add_f32", vT[0], vT[0], l[4]),
            valu("v_min_f32", vT[1], vT[1], l[5]), valu("v_add_f32", vT[0], vT[0], l[5]),
            valu("v_cmp_nlt_f32", "s[56:57]", sLO, vT[1]),
            valu("v_cmp_ngt_f32", "vcc", sHI, vT[0]),
            salu("s_or_b64", "vcc", "vcc", "s[56:57]")]


def a_phase(last):
    S = Sched()
    qk = [[0] * 3 for _ in range(16)]
    pv = [[0] * 3 for _ in range(16)]

    def QK(t, T):
        qk[t][T] = S.n()
        for qs in range(2):
            for kt in range(2):
                s = ("v", sreg(2 * T + qs) + 4 * kt)
                for ks in range(4):
                    S.add(mfma(16, s, ("a", kf(kt, ks)), ("v", qf(2 * T + qs, ks)), None if ks == 0 else s))

    def PV(t, T):
        pv[t][T] = S.n()
        sums = []
        for qs in range(2):
            l = ("v", lacc(2 * T + qs))
            sums.append(mfma(16, l, ("v", ONES), ("v", sreg(2 * T + qs)), None if t == 0 else l))
        if t == 15:
            for m in sums:
                S.add(m)
        for dt in range(8):
            for qs in range(2):
                o = ("a", oacc(2 * T + qs, dt))
                S.add(mfma(16, o, ("a", vf(dt)), ("v", sreg(2 * T + qs)), None if t == 0 else o))
        if t < 15:
            for m in sums:
                S.add(m)

    for t in range(16):
        QK(t, 0)
        if t:
            PV(t - 1, 1)
        QK(t, 1)
        if t:
            PV(t - 1, 2)
        QK(t, 2)
        PV(t, 0)
    PV(15, 1)
    PV(15, 2)
    bar = {}
    kw, vw = Win(kA, KWANT[0]), Win(vA, VWANT[0])
    for t in range(16):
        g0 = pv[t - 1][2] if t else qk[0][1]
        bar[10 + t] = g0 - 1
        S.put(g0 - 1, *bar_seq(tags_for(10 + t), 12 + t))
        if t == 13:
            S.put(g0 - 1, scmp("s_cmp_eq_u32", sIT, 1), raw("s_cbranch_scc1 L_tail2", "branch", rd=["scc"]), label("L_CUT"))
        for n, m in enumerate(vw.move(VWANT[t])):
            S.put(g0 - 14 + 3 * (n // 2), m)
        for dt in range(8):
            for tt in range(2):
                S.put(g0 + 4 * dt + 1 + 2 * tt,
                      ds_read("ds_read_b64_tr_b16", ("a", vf(dt) + 2 * tt), 2, vA[dt], U[("V", t)]["addr"] - VWANT[t] + tt * 4096))
        if t < 15:
            for n, m in enumerate(kw.move(KWANT[t + 1])):
                S.put((qk[t][0] + 9 if t else qk[0][2] + 2) + (3 if t else 2) * (n // 2), m)
            for j in range(8):
                S.put(qk[t][2] + [8, 10, 12, 14, 17, 19, 21, 23][j], k_read(t + 1, j))
            if OPT["kbar"]:
                S.put(qk[t][2] + 6, needvm(tags_for(10.5 + t)), barrier())
            if OPT["kbar"] >= 2 and t:
                S.put(pv[t - 1][1] - 1, barrier())
            if OPT["kbar"] >= 3 and t:
                S.put(qk[t][0] - 1, barrier())
    if not last:
        S.stream([(m, pv[15][0], None) for m in vw.move(VWANT[0])])
    bar[26] = pv[15][1] - 1
    S.put(bar[26], *(prof_stamp(28) if last else bar_seq(tags_for(26), 28)))
    fr = [] if last else first_reads(0)
    for n, r in enumerate(fr[:10]):
        S.put(pv[15][1] + [1, 3, 5, 7, 9, 11, 13, 15, 16, 17][n], r)
    for n, r in enumerate(fr[10:]):
        S.put(pv[15][2] + 3 + 2 * n, r)
    stream = sorted([k for k, u in U.items() if "even" in u], key=lambda k: U[k]["even"])
    nk = len(stream)
    stream += [("P", 0), ("P", 1), ("P", 2)] if last else [("K", 0), ("V", 0), ("K", 1)]
    for e, key in enumerate(stream):
        cand = []
        for m in range(4):
            g = int(kpos(4 * e + m)) if e < nk else max(int(kpos(4 * e + m)), int(2 + 13.4 * (4 * (e - nk + 26) + (0 if OPT["kin"] else m))))
            while S.used(g, False) > 0 or g - 1 in bar.values():
                g += 1
            cand.append(g)
        lo = bar.get(U[key]["iss"] if e < nk else (23, 24, 24)[e - nk], -2) + 1
        assert cand[0] > lo + (3 if e >= nk else 0), (key, cand, lo)
        if e == nk:
            S.put(cand[0] - 5, salu("s_add_u32", sKV, sKV, 262144))
        place_dmas(S, unit_dmas(key, sE if e >= nk else None), cand, lo)
    for n in range(20, 27):
        groups = groups_at(n - 1)
        nd = sum(len(g[1]) for g in groups)
        if not nd:
            continue
        a, b = bar[n - 1] + 5, bar[n] - 1
        cand = []
        for x in range(nd):
            g = a + (b - a) * x // nd
            while any(i.kind in MEMK for k in (g - 1, g, g + 1) for i in S.fixed.get(k, []) if k == g or i.kind == "dma") or g in cand:
                g += 1
            cand.append(g)
        assert cand[-1] < bar[n]
        place_dmas(S, groups, cand, bar[n - 1] + 1)
    if OPT["xpace"]:
        for t in range(1, 14):
            for T in range(3):
                S.put(pv[t][T] + 17, nop(OPT["xpace"]))
                S.put(qk[t][T] + 15, nop(OPT["xpace"]))
    g = bar[OPT["flagbar"]] + 2
    S.put(g - 1, scmp("s_cmp_eq_u32", sIT, 0), salu("s_cselect_b32", sE, sFB, sFG), salu("s_cselect_b32", sJ, "0x10000", 1))
    S.put(g + 1, valu("v_mov_b32", f"v{EPI}", sJ))
    S.put(g + 4, atomic_add(f"v{EPI}", sE))
    g = qk[12 - 3 * (OPT['tsp'] | OPT['wtouch'])][0]
    S.put(g + 1, scmp("s_cmp_eq_u32", sIT, 1), salu("s_cselect_b32", sE, sFB, "0x1000"))
    S.put(g + 3, poll_load(vPOLL[1], sE))
    g = qk[13 - 3 * (OPT['tsp'] | OPT['wtouch'])][0]
    S.put(g + 1, salu("s_lshl_b32", sWANT, sIT, 23), valu("v_readfirstlane_b32", sQ, vPOLL[1]))
    S.put(g + 4, scmp("s_cmp_lt_u32", sQ, sWANT), raw("s_cbranch_scc1 L_spin3", "branch", rd=["scc"]), label("L_spin3_back"))
    if OPT["wtouch"]:
        g += 8
        while S.fixed.get(g):
            g += 1
        S.put(g, Ins(f"buffer_load_dword v{EPI + 6}, off, s[{S_WQ}:{S_WQ + 3}], s84 sc1", "vld", rd=["s84"] + regs("s", S_WQ, 4), wr=[f"v{EPI + 6}"]))
    if last:
        g = bar[25] + 2
        S.put(g, poll_load(vPOLL[0], sFG))
        su = [salu("s_lshr_b32", "s84", "s4", 2), salu("s_mul_i32", "s7", "s3", O_GRP), salu("s_mul_i32", "s58", "s84", 786432),
              salu("s_add_u32", "s7", "s7", "s58"), [salu("s_add_u32", f"s{S2B}", "s90", "s7"), salu("s_addc_u32", "s59", "s91", 0)],
              salu("s_and_b32", f"s{S2B + 1}", "s59", "0xffff"), salu("s_mov_b32", f"s{S2B + 2}", 786432),
              salu("s_mul_i32", sBB, sWAVE, 16 * 12288), salu("s_mov_b64", f"s[{TB}:{TB + 1}]", "s[34:35]")] + next_off(sB2, TB, sBB, 12288)
        su += [salu("s_and_b32", "s58", sWAVE, 1), salu("s_mul_i32", "s58", "s58", 3 * 2048), salu("s_sub_u32", "s59", 3 * 2048, "s58"),
               salu("s_lshr_b32", "s86", sWAVE, 1), salu("s_lshl_b32", "s86", "s86", 12), salu("s_add_u32", "s58", "s58", "s86"),
               salu("s_add_u32", "s59", "s59", "s86"), salu("s_sub_u32", "s86", 2048, "s86")]
        g += 1
        for x in su:
            while any(i.kind == "salu" for i in S.fixed.get(g, [])):
                g += 1
            S.put(g, *(x if isinstance(x, list) else [x]))
            g += 1
        va = [valu("v_add_u32", V2B[0], "s58", vL16), valu("v_add_u32", V2B[3], "s59", vL16)]
        for q in (1, 2):
            va += [valu("v_add_u32", V2B[q], "s86", V2B[q - 1]), valu("v_add_u32", V2B[3 + q], "s86", V2B[2 + q])]
        S.stream([(x, g, pv[15][1] - 3) for x in va])
        g = pv[15][0] + 12
        S.put(g, valu("v_readfirstlane_b32", sQ, vPOLL[0]))
        S.put(g + 3, salu("s_and_b32", sQ, sQ, "0xff"), scmp("s_cmp_lt_u32", sQ, 8),
              raw("s_cbranch_scc1 L_spin1", "branch", rd=["scc"]), label("L_spin1_back"))
        for n, l in enumerate([l for qi in range(6) for l in k2_loads_B(0, qi)]):
            S.put(pv[15][1] + 1 + 2 * n if n < 8 else pv[15][2] + 3 + 3 * (n - 8), l)
    for n, t in enumerate([int(x) for x in OPT["cta"].split(",") if x]):
        g = pv[t][0]
        while any(S.fixed.get(k) for k in range(g, g + 6)):
            g += 1
        S.put(g + 5, touch_code(S, g, f"L_att-L_pc+{OPT['ctoff'] * 1024}", sJ, EPI + 8))
    if OPT["codepf2"]:
        g = qk[OPT["codepf2"]][0] - 6
        S.put(g - 2, salu("s_mul_i32", sJ, sIT, "L_tail2-L_tail1"))
        S.put(g - 1, salu("s_add_u32", sJ, sJ, "L_tail1-L_pc"))
        S.put(g, salu("s_add_u32", sJ, sJ, sCP))
        S.put(g + 1, salu("s_min_u32", sJ, sJ, "L_endcode-L_pc-256"))
        lo, hi = f"v{EPI + 2}", f"v{EPI + 3}"
        S.put(g + 2, valu("v_and_b32", lo, 16, vL16), valu("v_lshlrev_b32", lo, 3, lo))
        S.put(g + 3, valu("v_add_u32", lo, sJ, lo), valu("v_mov_b32", hi, "s97"))
        S.put(g + 4, valu("v_add_co_u32", lo, "vcc", "s96", lo, extra_wr=["vcc"]))
        S.put(g + 5, valu("v_addc_co_u32", hi, "vcc", 0, hi, "vcc", extra_wr=["vcc"]))
        g += 7
        while S.fixed.get(g):
            g += 1
        S.put(g, Ins(f"global_load_dword v{EPI + 4}, v[{EPI + 2}:{EPI + 3}], off", "vld", rd=[lo, hi], wr=[f"v{EPI + 4}"]))
    for T in (1, 2):
        if OPT["pk"] and not OPT["tmax"]:
            nfree = OPT["nfree"] if T == 1 else 0
            S.stream([(x, -1, None) for p, qs, x in conv_items(T, range(nfree))] +
                     [(x, qk[0][T] - 1, qk[0][T] - 1) for p, qs, x in conv_items(T, range(nfree, 4), packed=range(4))])
        else:
            c = [(x, -1, None) for p, qs, x in conv_items(T, range(3 if OPT["tmax"] else 0, 4))]
            c[-1] = (c[-1][0], -1, qk[0][T] - 1)
            S.stream(c)
    fin = []
    if OPT["one1"]:
        for T in range(3):
            fin += [(x, [pv[15][1] + 12, pv[15][2], pv[15][2] + 4][T], None) for x in interleave(lspread(2 * T, f"v{lacc(2 * T) + 1}"), lspread(2 * T + 1, f"v{lacc(2 * T + 1) + 1}"))]
    S.stream(fin + [(x, pv[15][2] + 4, None) for x in lcheck()])
    units = []
    for t in range(16):
        for qt in range(6):
            s = sreg(qt)
            T, qs = qt >> 1, qt & 1
            dl = pv[t][T] + qs - 2
            units.append(dict(e=qk[t][T] + 8 * qs + 7 + 2,
                              exps=[valu("v_exp_f32", f"v{s + r}", f"v{s + r}") for r in range(8)],
                              cvts=[(valu("v_cvt_pk_bf16_f32", f"v{s + r}", f"v{s + 2 * r}", f"v{s + 2 * r + 1}"), 2 * r + 2, dl) for r in range(4)]))
    if OPT["tmax"]:
        for n, u in enumerate(units):
            t, qt = divmod(n, 6)
            s, m, mn = sreg(qt), f"v{mrun(qt)}", f"v{mneg(qt)}"
            fma = [valu("v_fma_f32", f"v{s + r}", f"v{s + r}", sC, mn) for r in range(8)]
            if t == 0:
                pre = [valu("v_max3_f32", m, f"v{s}", f"v{s + 1}", f"v{s + 2}"), valu("v_max3_f32", mn, f"v{s + 3}", f"v{s + 4}", f"v{s + 5}"),
                       valu("v_max3_f32", m, m, f"v{s + 6}", f"v{s + 7}"), valu("v_max_f32", m, m, mn)]
                for op in ("v_permlane32_swap_b32", "v_permlane16_swap_b32"):
                    pre += [valu("v_mov_b32", mn, m), perm(op, mn, m), valu("v_max_f32", m, m, mn)]
                pre += [valu("v_mul_f32", mn, sNC, m)] + fma
                need = [len(pre) - 7 + r for r in range(8)]
            else:
                pre, need = [], []
                for r in range(0, 8, 2):
                    if OPT["tmax"] == 1:
                        pre += [valu("v_max3_f32", m, m, f"v{s + r}", f"v{s + r + 1}")]
                    pre += [fma[r], fma[r + 1]]
                    need += [len(pre) - 1, len(pre)]
            u["pre"] = pre
            u["exps"] = list(zip(u["exps"], need))
        def xok(g):
            n = OPT["xhi"] if g < qk[2][0] or g >= qk[13][0] else OPT["xnum"]
            return (g * n) % 100 < n
        S.packers.append(SoftmaxPacker2(units,
                                        lambda g: 1 if S.used(g, False) < 2 and xok(g) else 0))
    else:
        S.packers.append(SoftmaxPacker(units))
    fix_m0(S)
    return S.finish(lead=[k_read(0, j) for j in range(8)], report=OPT["report"])


def slow_path():
    o = [label("L_slow"), drain(), nop(16)]
    KF = [EPI + 4 * k for k in range(4)]
    VFR = 56
    vM = [f"v{120 + q}" for q in range(6)]
    vKo, vVo, vt, vu = "v60", "v61", "v62", "v63"
    o += [valu("v_lshrrev_b32", vt, 4, vL16), valu("v_and_b32", vu, 15, vt), valu("v_lshrrev_b32", vt, 4, vt),
          valu("v_lshlrev_b32", vKo, 8, vu), valu("v_lshl_add_u32", vKo, vt, 4, vKo),
          valu("v_lshlrev_b32", vVo, 10, vt), valu("v_lshl_add_u32", vVo, vu, 1, vVo)]
    o += [salu("s_sub_u32", "s58", sKV, 262144)]
    o += [valu("v_mov_b32", m, "0xff800000") for m in vM]

    def scores():
        r = []
        for kt in range(2):
            r += [salu("s_add_u32", "s61", "s59", kt * 4096)]
            r += [vload(("v", KF[ks]), 4, vKo, S_K, "s61", 64 * ks) for ks in range(4)] + [drain()]
            for qt in range(6):
                s = ("v", sreg(qt) + 4 * kt)
                r += [mfma(16, s, ("v", KF[ks]), ("v", qf(qt, ks)), None if ks == 0 else s) for ks in range(4)]
            r += [nop(16)]
        return r
    o += [salu("s_mov_b32", "s59", "s58"), salu("s_mov_b32", "s60", 16), label("L_slow1")] + scores()
    for qt in range(6):
        o += [valu("v_max3_f32", vM[qt], vM[qt], f"v{sreg(qt) + r}", f"v{sreg(qt) + r + 1}") for r in range(0, 8, 2)]
    o += [salu("s_add_u32", "s59", "s59", 8192), salu("s_sub_u32", "s60", "s60", 1), scmp("s_cmp_lg_u32", "s60", 0),
          raw("s_cbranch_scc1 L_slow1", "branch", rd=["scc"])]
    for qt in range(6):
        for op in ("v_permlane32_swap_b32", "v_permlane16_swap_b32"):
            o += [valu("v_mov_b32", vt, vM[qt]), nop(2), perm(op, vt, vM[qt]), valu("v_max_f32", vM[qt], vM[qt], vt)]
        o += [valu("v_mov_b32", f"v{lacc(qt) + r}", 0) for r in range(4)]
    o += [valu("v_accvgpr_write_b32", f"a{r}", 0) for r in range(192)]
    o += [salu("s_mov_b32", "s59", "s58"), salu("s_mov_b32", "s60", 16), label("L_slow2")] + scores()
    for qt in range(6):
        s = sreg(qt)
        o += [valu("v_sub_f32", f"v{s + r}", f"v{s + r}", vM[qt]) for r in range(8)]
        if OPT["tmax"]:
            o += [valu("v_mul_f32", f"v{s + r}", sC, f"v{s + r}") for r in range(8)]
        o += [valu("v_exp_f32", f"v{s + r}", f"v{s + r}") for r in range(8)]
        o += [valu("v_cvt_pk_bf16_f32", f"v{s + r}", f"v{s + 2 * r}", f"v{s + 2 * r + 1}") for r in range(4)]
    o += [salu("s_add_u32", "s57", "s59", 4096)]
    for dt in range(8):
        for j in range(8):
            o += [vload(("v", 184 + j), 1, vVo, S_V, "s57" if j >= 4 else "s59", (j & 3) * 256 + 32 * dt, op="buffer_load_ushort")]
        o += [drain()]
        o += [valu("v_lshl_or_b32", f"v{VFR + r}", f"v{185 + 2 * r}", 16, f"v{184 + 2 * r}") for r in range(4)]
        o += [mfma(16, ("a", oacc(qt, dt)), ("v", VFR), ("v", sreg(qt)), ("a", oacc(qt, dt))) for qt in range(6)]
        o += [nop(8)]
    o += [mfma(16, ("v", lacc(qt)), ("v", ONES), ("v", sreg(qt)), ("v", lacc(qt))) for qt in range(6)] + [nop(16)]
    o += [salu("s_add_u32", "s59", "s59", 8192), salu("s_sub_u32", "s60", "s60", 1), scmp("s_cmp_lg_u32", "s60", 0),
          raw("s_cbranch_scc1 L_slow2", "branch", rd=["scc"])]
    o += [nop(16)]
    if OPT["one1"]:
        for qt in range(6):
            o += lspread(qt, vt)
    o += [drain(), scmp("s_cmp_eq_u32", sIT, 1), raw("s_cbranch_scc1 L_back2", "branch", rd=["scc"]), raw("s_branch L_back1", "branch")]
    return o


def srd(base, lo, hi, nbytes):
    return [salu("s_mov_b32", f"s{base}", lo), salu("s_and_b32", f"s{base + 1}", hi, "0xffff"),
            salu("s_mov_b32", f"s{base + 2}", nbytes), salu("s_mov_b32", f"s{base + 3}", "0x20000")]


def decode_wg():
    return [salu("s_and_b32", "s3", "s2", 7), salu("s_lshr_b32", "s4", "s2", 6), salu("s_lshl_b32", "s3", "s3", 2),
            salu("s_add_u32", "s3", "s3", "s4"), salu("s_lshr_b32", "s4", "s2", 3), salu("s_and_b32", "s4", "s4", 7),
            salu("s_lshr_b32", "s5", "s3", 4), salu("s_and_b32", "s6", "s3", 15)]


def code_touch():
    return [salu("s_lshr_b32", "s68", "s2", 3), salu("s_lshl_b32", "s68", "s68", 11),
            valu("v_lshrrev_b32", "v11", 6, "v0"), valu("v_and_b32", "v12", 3, "v0"), valu("v_lshlrev_b32", "v11", 9, "v11"),
            valu("v_lshl_add_u32", "v11", "v12", 7, "v11"), valu("v_add_u32", "v11", "s68", "v11")] + (
            [valu("v_min_u32", "v11", "L_att-L_pc", "v11")] if OPT["cplim"] else []) + [
            valu("v_mov_b32", "v13", "s97"), valu("v_add_co_u32", "v12", "vcc", "s96", "v11", extra_wr=["vcc"]),
            valu("v_addc_co_u32", "v13", "vcc", 0, "v13", "vcc", extra_wr=["vcc"]),
            Ins("global_load_dword v253, v[12:13], off", "vld", rd=["v12", "v13"], wr=["v253"])]


def kv_patterns():
    i, a, b, c = "v1", "v2", "v3", "v4"
    o = [valu("v_lshrrev_b32", a, 4, i), valu("v_and_b32", b, 15, i),
         valu("v_xor_b32", c, a, b), valu("v_lshlrev_b32", c, 4, c), valu("v_lshl_add_u32", vK[0], a, 8, c)]
    o += [valu("v_xor_b32", vK[m], m << 6, vK[0]) for m in range(1, 4)]
    o += [valu("v_lshlrev_b32", "v5", 1, a), valu("v_xor_b32", "v5", "v5", b), valu("v_lshlrev_b32", "v5", 4, "v5"),
          valu("v_lshl_add_u32", vV[0], a, 8, "v5"), valu("v_xor_b32", vV[1], 128, vV[0])]
    return o


sT2 = "s101"


def prologue():
    o = [scmp("s_cmp_ge_u32", "s2", 256), raw("s_cbranch_scc1 L_end", "branch", rd=["scc"])]
    if OPT["dbgt"]:
        o += [raw("s_memrealtime s[72:73]", wr=["s72", "s73"])]
    o += [salu("s_bfe_u32", "s5", "s2", "0x10002"), salu("s_mul_i32", "s7", "s5", 40), salu("s_add_u32", "s78", "s0", "s7"), salu("s_addc_u32", "s79", "s1", 0),
          raw("s_load_dwordx8 s[56:63], s[78:79], 0", wr=regs("s", 56, 8)),
          raw("s_load_dwordx2 s[94:95], s[78:79], 32", wr=["s94", "s95"]),
          raw("s_load_dwordx4 s[88:91], s[0:1], 88", wr=regs("s", 88, 4)),
          raw("s_load_dwordx2 s[92:93], s[0:1], 80", wr=["s92", "s93"])]
    o += [raw("s_getpc_b64 s[96:97]", wr=["s96", "s97"]), label("L_pc")]
    if OPT["codepf"] == 2:
        o += code_touch()
    o += decode_wg()
    i, a, b, c = "v1", "v2", "v3", "v4"
    o += [valu("v_lshrrev_b32", a, 6, "v0"), valu("v_and_b32", i, 63, "v0"),
          valu("v_readfirstlane_b32", sWAVE, a), valu("v_lshlrev_b32", vL16, 4, i)]
    o += [valu("v_lshrrev_b32", a, 4, i), valu("v_and_b32", b, 7, i), valu("v_lshrrev_b32", "v5", 3, i),
          valu("v_and_b32", c, 1, a), valu("v_lshlrev_b32", c, 1, c), valu("v_xor_b32", c, c, b), valu("v_lshlrev_b32", c, 4, c),
          valu("v_lshl_add_u32", vW[0], "v5", 13, c),
          valu("v_xor_b32", vW[1], 64, vW[0]), valu("v_add_u32", vW[1], 64512, vW[1]),
          valu("v_add_u32", vW[2], 2 * 64512, vW[0]), valu("v_add_u32", vW[3], 2 * 64512, vW[1])]
    o += [valu("v_xor_b32", c, a, b), valu("v_lshlrev_b32", c, 4, c), valu("v_mul_u32_u24", "v6", 1280, "v5"),
          valu("v_add_u32", vX[0], "v6", c),
          valu("v_xor_b32", vX[1], 64, vX[0]), valu("v_add_u32", vX[1], 9216, vX[1]),
          valu("v_add_u32", vX[2], 2 * 9216, vX[0]), valu("v_add_u32", vX[3], 2 * 9216, vX[1])]
    o += [salu("s_lshr_b32", "s70", sWAVE, 1), salu("s_and_b32", "s71", sWAVE, 1),
          salu("s_lshl_b32", sW4K, sWAVE, 12), salu("s_mul_i32", sW6K, sWAVE, 6144),
          salu("s_lshl_b32", "s7", "s4", 2), salu("s_add_u32", "s7", "s7", "s70"),
          salu("s_lshl_b32", sWQ, "s71", 18), salu("s_lshl_b32", sT0, "s7", 8), salu("s_add_u32", sWQ, sWQ, sT0),
          salu("s_mul_i32", sX, "s6", 245760), salu("s_mul_i32", sT0, sWAVE, 61440), salu("s_add_u32", sX, sX, sT0)]
    o += [salu("s_add_u32", "s68", "s3", "s4"), salu("s_and_b32", "s68", "s68", 3)]
    for x in by_role("s69", "s68", TBLQ0):
        o += x if isinstance(x, list) else [x]
    for st in range(2):
        o += [salu("s_bfe_u32", sT0, "s69", "0x%x" % (0x40000 + 4 * st)), salu("s_lshl_b32", sT1, sT0, 19), salu("s_lshl_b32", sT0, sT0, 7),
              salu("s_add_u32", sPF[("W", st, 0)][0], sT1, sWQ), salu("s_add_u32", sPF[("X", st)][0], sT0, sX),
              salu("s_add_u32", sT2 if st else sPF[("W", st, 1)][0], sPF[("W", st, 0)][0], 128), salu("s_add_u32", sPF[("X", st)][1], sPF[("X", st)][0], 40960)]
    o += [raw("s_waitcnt lgkmcnt(0)", "drainlg")]
    o += srd(S_WQ, "s62", "s63", 5242880) + srd(S_X, "s56", "s57", 3932160)
    for k in [("W", 0, 0), ("X", 0), ("W", 0, 1), ("W", 1, 0), ("X", 1)][:2 if OPT["early2"] else 5]:
        for pre, ds in unit_dmas(k):
            o += pre[::-1] + ds
    if OPT["warmw"]:
        o += [salu("s_mul_i32", "s68", "s6", 40 * 8192), salu("s_lshl_b32", "s69", "s4", 10), salu("s_add_u32", "s68", "s68", "s69"),
              salu("s_mul_i32", "s69", sWAVE, 10 * 8192), salu("s_add_u32", "s68", "s68", "s69"),
              valu("v_lshlrev_b32", b, 7, b), valu("v_lshl_add_u32", "v6", "v5", 13, b), valu("v_and_b32", c, 1, "v5"),
              valu("v_lshl_add_u32", c, c, 13, b), salu("s_add_u32", "s69", "s68", 8 * 8192)]
        if OPT["early2"]:
            o += [valu("v_add_u32", "v254", "s68", "v6"), valu("v_add_u32", "v255", "s69", c)]
        else:
            o += [vload(("v", 254), 1, "v6", S_WQ, "s68", 0), vload(("v", 255), 1, c, S_WQ, "s69", 0)]
    o += [salu("s_lshr_b32", "s68", "s2", 3), salu("s_lshl_b32", "s68", "s68", 2), salu("s_add_u32", "s68", "s68", sWAVE), salu("s_lshl_b32", sCP, "s68", 8)]
    if OPT["codepf"] == 1:
        o += code_touch()
    o += srd(S_WO, "s94", "s95", 5242880)
    o += [salu("s_lshl_b32", "s68", "s6", 3), salu("s_add_u32", "s68", "s68", "s4"),
          salu("s_mul_i32", sWOS, "s68", 40960), salu("s_mul_i32", sT0, sWAVE, 10240), salu("s_add_u32", sWOS, sWOS, sT0)]
    for jj in range(OPT["jpro"]):
        for pre, ds in unit_dmas(("J", jj), sE):
            o += pre[::-1] + ds
    o += srd(S_K, "s58", "s59", 67108864) + srd(S_V, "s60", "s61", 67108864) + [salu("s_mov_b32", sW1, sT2)]
    o += srd(S_OST, "s90", "s91", WS_WOT) + srd(S_FLG, "s88", "s89", 256)
    o += [salu("s_add_u32", "s68", "s90", WS_WOT), salu("s_addc_u32", "s69", "s91", 0)] + srd(S_WOT, "s68", "s69", 2 * WOT_BLK)
    o += [salu("s_lshl_b32", sFG, "s3", 2), salu("s_lshl_b32", sFB, "s5", 6)]
    if OPT["dbgt"]:
        o += [salu("s_add_u32", sFG, sFG, 128), salu("s_add_u32", sFB, sFB, 128)]
    o += [
          valu("v_cmp_eq_u32", "vcc", 0, "v0"), valu("v_mov_b32", "v10", "0x1000"), valu("v_mov_b32", f"v{ONES}", "0x3f803f80"),
          valu("v_cndmask_b32", vFLG, "v10", 0, "vcc"),
          ]
    if OPT["one1"]:
        o += [valu("v_and_b32", "v10", 15, "v0"), valu("v_cmp_eq_u32", "vcc", 0, "v10"), valu("v_cndmask_b32", f"v{ONES}", 0, f"v{ONES}", "vcc")]
    o += [valu("v_mov_b32", f"v{ONES + r}", f"v{ONES}") for r in range(1, 4)]
    if OPT["prof"]:
        o += [salu("s_add_u32", "s68", "s90", WS_PROF), salu("s_addc_u32", "s69", "s91", 0)] + srd(S_PROF, "s68", "s69", 1 << 20)
        o += [salu("s_lshl_b32", sPROF, "s2", 2), salu("s_add_u32", sPROF, sPROF, sWAVE), salu("s_lshl_b32", sPROF, sPROF, 10)]
        o += prof_stamp(0, 8)
    o += [salu("s_lshl_b32", sKV, "s6", 5), salu("s_add_u32", sKV, sKV, "s7"), salu("s_lshl_b32", sKV, sKV, 17),
          salu("s_lshl_b32", sT0, "s71", 12),
          salu("s_lshr_b32", sROT, "s2", 3), salu("s_lshl_b32", sT1, "s2", 1), salu("s_add_u32", sROT, sROT, sT1),
          salu("s_and_b32", sROT, sROT, 0 if OPT["norot"] else 15), salu("s_lshl_b32", sROT, sROT, 13), salu("s_add_u32", sROT, sROT, sT0)]
    if OPT["tlbw"]:
        for n, (r, so) in enumerate(((S_K, sKV), (S_V, sKV), (S_WO, sWOS))):
            o += [Ins(f"buffer_load_dword v{244 + n}, off, s[{r}:{r + 3}], {so} nt", "vld", rd=[so] + regs("s", r, 4))]
    if OPT["kpro"]:
        o += kv_patterns()
        for k in [("K", 0), ("V", 0), ("K", 1)][:OPT["kpro"]]:
            for pre, ds in unit_dmas(k, sE):
                o += pre + [nop(1)] + ds
    o += [salu("s_mul_i32", sO, "s3", O_GRP), salu("s_mul_i32", sT0, "s71", 786432), salu("s_add_u32", sO, sO, sT0),
          salu("s_lshr_b32", sT0, "s4", 1), salu("s_mul_i32", sT0, sT0, 16 * 12288), salu("s_add_u32", sO, sO, sT0),
          salu("s_and_b32", sT0, "s4", 1), salu("s_mul_i32", sT0, sT0, 4 * 12288), salu("s_add_u32", sO, sO, sT0),
          salu("s_mul_i32", sT0, "s70", 2 * 12288), salu("s_add_u32", sO, sO, sT0)]
    o += [salu("s_lshl_b32", "s68", "s6", 3), salu("s_add_u32", "s68", "s68", "s4"),
          salu("s_lshr_b32", sT0, "s68", 1), salu("s_and_b32", sT1, sT0, "0x33"),
          salu("s_and_b32", "s69", sT0, 4), salu("s_lshl_b32", "s69", "s69", 1), salu("s_or_b32", sT1, sT1, "s69"),
          salu("s_and_b32", "s69", sT0, 8), salu("s_lshr_b32", "s69", "s69", 1), salu("s_or_b32", sT1, sT1, "s69"),
          salu("s_mul_i32", sWOD, sT1, 20480),
          salu("s_and_b32", sT0, "s68", 1), salu("s_lshl_b32", sT0, sT0, 11), salu("s_add_u32", sWOD, sWOD, sT0),
          salu("s_mul_i32", sT0, "s5", WOT_BLK), salu("s_add_u32", sWOD, sWOD, sT0),
          salu("s_lshl_b32", sT0, "s70", 12), salu("s_add_u32", sWOD, sWOD, sT0),
          salu("s_lshl_b32", sT0, "s71", 10), salu("s_add_u32", sWOD, sWOD, sT0),
          salu("s_mul_i32", sT0, "s70", 1310720 - 20480), salu("s_add_u32", sWOX, sWOD, sT0)]
    o += [salu("s_add_u32", "s68", "s3", "s4"), salu("s_and_b32", "s68", "s68", 3)]
    for x in by_role(sQT, "s68", TBLQ1):
        o += x if isinstance(x, list) else [x]
    cbits = struct.unpack("<I", struct.pack("<f", math.log2(math.e) / math.sqrt(128.0)))[0]
    o += [salu("s_mov_b32", sC, "0x%x" % cbits), salu("s_mov_b32", sHI, "0x5d800000" if OPT["tmax"] == 1 else "0x53800000" if OPT["tmax"] else "0x4e800000"),
          salu("s_mov_b32", sLO, "0x42200000" if OPT["tmax"] else "0x30800000"), salu("s_mov_b32", sNC, "0x%x" % (cbits | 0x80000000)),
          salu("s_mov_b32", sIT, 0)]
    if not OPT["kpro"]:
        o += kv_patterns()
    o += [salu("s_lshl_b32", "s69", "s70", 13), salu("s_mul_i32", "s68", "s71", 12288), salu("s_add_u32", "s68", "s68", XS[0]),
          valu("v_bfe_u32", "v8", i, 2, 2), valu("v_and_b32", "v9", 3, i)]
    o += [valu("v_lshl_add_u32", c, b, 8, c), valu("v_add_u32", c, KWANT[15], c), valu("v_add_u32", kA[0], "s69", c)]
    o += [valu("v_xor_b32", kA[j], j << 6, kA[0]) for j in range(1, 4)]
    o += [valu("v_lshl_add_u32", "v5", a, 2, "v8"), valu("v_lshlrev_b32", c, 8, "v5"), valu("v_and_b32", "v6", 7, "v5"),
          valu("v_lshl_add_u32", c, "v6", 5, c), valu("v_lshl_add_u32", c, "v9", 3, c),
          valu("v_add_u32", c, VWANT[0], c), valu("v_add_u32", vA[0], "s69", c)]
    o += [valu("v_xor_b32", vA[d], d << 5, vA[0]) for d in range(1, 8)]
    o += [valu("v_lshl_add_u32", c, a, 3, "v8"), valu("v_lshlrev_b32", c, 7, c),
          valu("v_and_b32", "v5", 2, "v8"), valu("v_and_b32", "v7", 1, a), valu("v_lshl_add_u32", "v5", "v7", 2, "v5"),
          valu("v_xor_b32", "v5", "v5", "v9"), valu("v_lshl_add_u32", c, "v5", 4, c), valu("v_add_u32", wA[0], "s69", c),
          valu("v_xor_b32", wA[1], 64, wA[0])]
    o += [valu("v_lshrrev_b32", "v5", 1, b), valu("v_xor_b32", "v5", "v5", a),
          valu("v_lshlrev_b32", "v5", 4, "v5"), valu("v_lshl_add_u32", c, b, 7, "v5"),
          valu("v_xor_b32", "v5", 64, c), valu("v_add_u32", xA[0], "s68", c), valu("v_add_u32", xA[1], "s68", "v5")]
    o += [salu("s_lshl_b32", "s68", "s70", 2), salu("s_lshl_b32", "s69", "s71", 3), salu("s_add_u32", "s69", "s69", WOJ_ADDR),
          valu("v_lshrrev_b32", c, 1, a), valu("v_lshlrev_b32", c, 12, c), valu("v_lshl_add_u32", c, "v6", 7, c),
          valu("v_add_u32", c, "s69", c), valu("v_add_u32", "v5", "s68", "v9"), valu("v_lshrrev_b32", "v6", 1, "v6"),
          valu("v_xor_b32", "v5", "v5", "v6"), valu("v_lshl_add_u32", vJ, "v5", 4, c)]
    o += [needvm([("W", 0, 0), ("X", 0)]), barrier()] + first_reads(0)
    return o


def acc2(pi, xy, qi):
    return ((pi * 6 + qi) * 2 + xy) * 4


def a2(st, pi, ks, xy):
    if st == 0:
        return (240 if pi == 0 else 48 + 16 * pi) + 8 * ks + 4 * xy
    return (48 if pi == 0 else 112 + 16 * pi) + 8 * ks + 4 * xy


def b2(st, qi, ks):
    return (192 if st == 0 else 0) + 8 * qi + 4 * ks


V2A = ["v%d" % i for i in range(240, 245)]


def k2_loads_A(st, pi, soff=None):
    return [vload(("a", a2(st, pi, ks, xy)), 4, V2A[pi], S2A, soff or sA2, ks * 2048 + xy * 1024, flags=SC1) for xy in range(2) for ks in range(2)]


def k2_loads_B(st, qi):
    return [vload(("a", b2(st, qi, ks)), 4, V2B[qi], S2B, sB2, ks * 1024, flags=SC1) for ks in range(2)]


def k2_lds_A(st, pi):
    out = []
    for xy in range(2):
        for ks in range(2):
            r = [r for r, (s_, p_, off) in PF2.items() if (s_, p_) == (st, pi) and (r not in ("s87", "s99") or off == 2048 * ks)][0]
            key = [k for k, rs in sPF.items() if r in rs][0]
            if key[0] == "W":
                out.append(ds_read("ds_read_b128", ("a", a2(st, pi, ks, xy)), 4, V2W, U[key]["addr"] + ks * 2048 + xy * 1024))
            elif key[0] == "P":
                out.append(ds_read("ds_read_b128", ("a", a2(st, pi, ks, xy)), 4, V2P,
                                   (0 if key[1] == 1 else PADDR[key] - D[4]) + ks * 2048 + xy * 1024))
            elif r == sPF[key][0]:
                out.append(ds_read("ds_read_b128", ("a", a2(st, pi, ks, xy)), 4, V2X, U[key]["addr"] - XS[0] + ks * 2048 + xy * 1024))
            else:
                out.append(ds_read("ds_read_b128", ("a", a2(st, pi, ks, xy)), 4, V2X, U[key]["addr"] - XS[0] + 4096 + xy * 1024))
    return out


def k2_steps(S, first, loadA, loadB, pend, check=False, late=(), final=None):
    for st in range(2):
        q0 = S.n()
        tiles = [(pi, xy, qi) for pi in range(5) for xy in range(2) for qi in range(6)]
        if final is not None and st == 1:
            tiles = [t for t in tiles if t[2] >= 3] + [t for t in tiles if t[2] < 3]
            for n, x in enumerate(final[0]):
                S.put(q0 + 2 + n, x)
            for n, x in enumerate(final[1]):
                S.put(q0 + 61 + 2 * n, x)
        for pi, xy, qi in tiles:
            for ks in range(2):
                acc = ("v", acc2(pi, xy, qi))
                S.add(mfma(16, acc, ("a", a2(st, pi, ks, xy)), ("a", b2(st, qi, ks)),
                           None if (first and st == 0 and ks == 0) else acc))
        pos = [int(0.5 + 3.75 * n) for n in range(32)]
        if pend[st]:
            ls = k2_loads_A(1 - st, 4)
            S.put(q0 + pos[0], ls[2])
            S.put(q0 + pos[1], ls[3])
            for n, x in enumerate(next_off(sA2, TA, sAB, 20480)):
                S.put(q0 + pos[1] + 1 + n, x)
        if first and st == 0:
            for n, (pre, l) in enumerate(late):
                S.put(q0 + 6 * n + 2, *pre)
                S.put(q0 + 6 * n + 3, l)
            for n, r in enumerate(k2_lds_A(1, 0) + k2_lds_A(1, 1) + k2_lds_A(1, 2)):
                S.put(q0 + 6 * n + 5 if n < 8 else q0 + 54 + 4 * (n - 8), r)
            S.put(q0 + 70, valu("v_add_u32", V2P, D[9] - D[5], V2P))
            for n, r in enumerate(k2_lds_A(1, 3)):
                S.put(q0 + 73 + 4 * n, r)
        elif loadB[st]:
            for n, l in enumerate([l for qi in range(6) for l in k2_loads_B(1 - st, qi)]):
                S.put(q0 + pos[2 + n], l)
            for n, x in enumerate(next_off(sB2, TB, sBB, 12288)):
                S.put(q0 + pos[13] + 1 + n, x)
        if loadA[st]:
            n = 14
            for pi in range(5):
                ls = k2_loads_A(st, pi)
                for x, l in enumerate(ls if pi < 4 else ls[:2]):
                    assert pos[n] >= 24 * pi + 11 + 12 * (x >> 1), (pi, x, pos[n])
                    S.put(q0 + pos[n], l)
                    n += 1
        if first and st == 1:
            S.put(q0 + 110, needvm(["ost"]), barrier())
            S.put(q0 + 111, valu("v_mov_b32", V2P, "0x100"))
            S.put(q0 + 114, atomic_add(V2P, sFG))
        if check and st == 1:
            S.put(q0 + 1, scmp("s_cmp_eq_u32", sCNT, 5), salu("s_cselect_b32", sWANT, 8, 0), salu("s_cselect_b32", sPL, sFG, "0x1000"))
            S.put(q0 + 2, poll_load(V2P, sPL))
        if check and st == 0:
            S.put(q0 + 1, valu("v_readfirstlane_b32", sQ, V2P))
            S.put(q0 + 6, salu("s_bfe_u32", sQ, sQ, "0x80008"), scmp("s_cmp_lt_u32", sQ, sWANT),
                  raw("s_cbranch_scc1 L_spin2", "branch", rd=["scc"]), label("L_spin2_back"))


def k2_first(S, late):
    seq = [(0, p) for p in range(4)] + [(1, p) for p in range(3)] + [(0, 4), (1, 3), (1, 4)]
    at = {}
    for st, pi in seq:
        at[(st, pi)] = S.n()
        for xy in range(2):
            for qi in range(6):
                for ks in range(2):
                    acc = ("v", acc2(pi, xy, qi))
                    S.add(mfma(16, acc, ("a", a2(st, pi, ks, xy)), ("a", b2(st, qi, ks)), None if (st == 0 and ks == 0) else acc))
    for n, (pre, l) in enumerate(late):
        S.put(13 * n + 2, *pre)
        S.put(13 * n + 3, l)
    assert 13 * len(late) < at[(0, 4)]
    g = 5
    for pi in range(4):
        for r in k2_lds_A(1, pi):
            while S.fixed.get(g):
                g += 1
            S.put(g, r)
            g += 4
    items = []
    for pi in range(5):
        for x, l in enumerate(k2_loads_A(0, pi, sSO)):
            items.append((l, at[(0, pi)] + 11 + 12 * (x >> 1), 240 + 24 * pi + 12 * (x >> 1)))
        for x, l in enumerate(k2_loads_A(1, pi)[:4 if pi < 4 else 2]):
            items.append((l, at[(1, pi)] + 11 + 12 * (x >> 1), 360 + 24 * pi + 12 * (x >> 1)))
    for qi in range(6):
        for ks, l in enumerate(k2_loads_B(0, qi)):
            items.append((l, at[(0, 4)] + 12 + 2 * qi + ks, 200 + 2 * qi + ks))
    items.sort(key=lambda i: i[2])
    g, lastB = 11, 0
    while items:
        c = [i for i in items if i[1] <= g]
        if c and not any(S.fixed.get(k) and any(j.kind in ("vld", "vst") for j in S.fixed[k]) for k in ((g - 2, g - 1, g + 1) if g < 180 else (g - 1, g + 1))) and not S.fixed.get(g):
            S.put(g, c[0][0])
            if sB2 in c[0][0].rd:
                lastB = g
            items.remove(c[0])
        g += 1
        assert g < 240, items
    for n, x in enumerate(next_off(sB2, TB, sBB, 12288)):
        S.put(lastB + 1 + n, x)
    if OPT["p2st"]:
        for n, g in enumerate((47, 95, 143, 167, 191, 215)):
            S.put(g, raw(f"s_memrealtime s[76:77]", wr=["s76", "s77"]), raw("s_waitcnt lgkmcnt(0)", "drainlg"), salu("s_mov_b32", f"s{101 - n}", "s76"))
    g = 226
    while S.fixed.get(g) or S.fixed.get(g + 1) or S.fixed.get(g + 3):
        g += 1
    S.put(g, needvm(["ost"]), barrier())
    S.put(g + 1, valu("v_mov_b32", V2P, "0x100"))
    S.put(g + 3, atomic_add(V2P, sFG))


def spin(name, back, dsts, soffs, conds):
    o = [label(name), salu("s_mov_b32", sSPIN, 0), label(name + "_loop"), raw("s_sleep 8")]
    o += [poll_load(d, so) for d, so in zip(dsts, soffs)]
    o += [drain(), salu("s_add_u32", sSPIN, sSPIN, 1), scmp("s_cmp_gt_u32", sSPIN, "0x20000"),
          raw(f"s_cbranch_scc1 {back}", "branch", rd=["scc"])]
    for d, (sh, msk, want) in zip(dsts, conds):
        o += [valu("v_readfirstlane_b32", sQ, d), nop(4)]
        if sh:
            o += [salu("s_lshr_b32", sQ, sQ, sh)]
        if msk:
            o += [salu("s_and_b32", sQ, sQ, msk)]
        o += [scmp("s_cmp_lt_u32", sQ, want), raw(f"s_cbranch_scc1 {name}_loop", "branch", rd=["scc"])]
    o += [raw(f"s_branch {back}", "branch")]
    return o


def phase2():
    o = [valu("v_mov_b32", V2L, vL16), salu("s_and_b32", "s85", "s4", 3), salu("s_and_b32", "s32", sWAVE, 1), salu("s_lshr_b32", "s33", sWAVE, 1),
         salu("s_mul_i32", sAB, sWAVE, 16 * 20480), salu("s_lshr_b64", f"s[{TA}:{TA + 1}]", "s[34:35]", 4)]
    o += next_off(sB2, TB, sBB, 12288)
    o += [valu("v_add_u32", V2W, sW4K, V2L), salu("s_add_u32", "s7", sW6K, XS[0]), valu("v_add_u32", V2X, "s7", V2L), valu("v_add_u32", V2P, D[4], V2W)]
    o += [scmp("s_cmp_eq_u32", "s33", 0)]
    o += [salu("s_cselect_b32", f"s{47 + q}", q, 2 - q) for q in range(3)]
    o += [salu("s_cselect_b32", f"s{36 + pi}", pi, 4 - pi) for pi in range(5)]
    o += [salu("s_mul_i32", "s34", "s32", 3)]
    o += [salu("s_add_u32", f"s{47 + q}", f"s{47 + q}", "s34") for q in range(3)]
    save = list(vR)
    vR[:] = [f"v{16 + q}" for q in range(6)]
    nl = 12 if OPT["pace"] else 8
    eg = epilogue_groups(0, lambda n: 240 - 4 * (24 - n) - (0 if OPT["pace"] else 16) if n >= 24 - nl else 32 + 4 * n, V2L)
    vR[:] = save
    b1 = [l for qi in range(6) for l in k2_loads_B(1, qi)]
    for n, (v, pre, st, imm) in enumerate(eg):
        m = b1[2 * (n - 8):2 * (n - 8) + 2] if 8 <= n < 14 else []
        o += v[:8] + m[:1] + v[8:16] + m[1:] + v[16:]
        if OPT["pace"]:
            if n % 2 == 0:
                o += eg[n // 2][1] + [eg[n // 2][2]]
        elif n < 16:
            o += pre + [st]
        if n == 15:
            o += [needvm(list(sPF))]
            for pi in range(5):
                o += [salu("s_lshl_b32", "s7", f"s{36 + pi}", 12), valu("v_add_u32", V2A[pi], "s7", V2L)]
            o += next_off(sPL, TA, sAB, 20480)
            if OPT["pace"]:
                o += next_off(sSO, TA, sAB, 20480)
            o += next_off(sA2, TA, sAB, 20480)
        if 16 <= n < 21:
            o += k2_lds_A(0, n - 16)
    late = []
    for n, g in enumerate(eg[24 - nl:]):
        st = vstore(("v", 240 - 4 * (nl - n) - (0 if OPT["pace"] else 16)), 4, V2L, S_OST, sE, g[3], tag="ost", flags=SC1)
        late.append((g[1], st))
    o += k2_loads_A(1, 4, sPL) + [valu("v_add_u32", V2P, D[9] - D[4], V2P)]
    o += next_off(sB2, TB, sBB, 12288) + [salu("s_mov_b32", sWANT, 0)]
    o += prof_stamp(1, 30)
    o += srd(S2OUT, "s92", "s93", 7864320)
    o += [salu("s_mul_i32", sOB, "s6", 192 * 2560), salu("s_mul_i32", "s7", "s84", 96 * 2560), salu("s_add_u32", sOB, sOB, "s7"),
          salu("s_mul_i32", "s7", "s5", 1280), salu("s_add_u32", sOB, sOB, "s7"),
          salu("s_mul_i32", "s7", "s85", 320), salu("s_add_u32", sOB, sOB, "s7"), salu("s_mov_b32", sCNT, 6)]
    S0 = Sched()
    if OPT["pace"]:
        k2_first(S0, late)
    else:
        k2_steps(S0, True, [True, True], [True, True], [False, True], late=late)
    S0.order_fixed()
    first = S0.build()
    S1 = Sched()
    k2_steps(S1, False, [True, True], [True, True], [True, True], check=True)
    if OPT["prof"] and not OPT["p2st"]:
        S1.put(3, raw("s_memrealtime s[76:77]", wr=["s76", "s77"]), raw("s_waitcnt lgkmcnt(0)", "drainlg"),
               salu("s_mov_b32", "s101", "s100"), salu("s_mov_b32", "s100", "s99"), salu("s_mov_b32", "s99", "s98"),
               salu("s_mov_b32", "s98", "s97"), salu("s_mov_b32", "s97", "s96"), salu("s_mov_b32", "s96", "s76"))
    S1.put(237, salu("s_sub_u32", sCNT, sCNT, 1))
    S1.order_fixed()
    loop = [label("L_k2")] + S1.build() + [scmp("s_cmp_lg_u32", sCNT, 0), raw("s_cbranch_scc1 L_k2", "branch", rd=["scc"])]
    R1, R2, i, a, V2O = V2A[0], V2A[1], V2A[2], V2A[3], V2A[4]
    setup = [salu("s_mul_i32", "s7", sWAVE, 30720), valu("v_add_u32", V2W, "s7", V2L), valu("v_lshrrev_b32", i, 4, V2L),
             valu("v_and_b32", a, 15, i), valu("v_mul_u32_u24", a, 2560, a), valu("v_lshrrev_b32", i, 4, i),
             valu("v_lshl_add_u32", V2O, i, 4, a),
             salu("s_xor_b32", sPL, sWAVE, 1), salu("s_sub_u32", sPL, sPL, sWAVE), salu("s_mul_i32", "s7", sPL, 30720),
             valu("v_add_u32", R1, "s7", V2W),
             salu("s_xor_b32", sPL, sWAVE, 3), salu("s_sub_u32", sPL, sPL, sWAVE), salu("s_mul_i32", "s7", sPL, 30720),
             valu("v_add_u32", R2, "s7", V2W)]
    for sl in range(8):
        pi, q = divmod(sl, 3)
        setup += [salu("s_mul_i32", "s7", f"s{47 + q}", 40960), salu("s_lshl_b32", sPL, f"s{36 + pi}", 6),
                  salu("s_add_u32", "s7", "s7", sPL), salu("s_add_u32", f"s{84 + sl}", "s7", sOB)]
    sent = [(pi, xy, qi) for pi in range(5) for qi in range(3, 6) for xy in range(2)]
    wr = {t: ds_write("ds_write_b128", V2W, ("v", acc2(*t)), 4, n * 1024) for n, t in enumerate(sent)}
    S2 = Sched()
    e = []
    if OPT["redov"]:
        order = [wr[(pi, xy, qi)] for pi in range(5) for xy in range(2) for qi in range(3, 6)]
        k2_steps(S2, False, [False, False], [True, False], [True, False], final=(setup, order[:29]))
        e = order[29:]
    else:
        k2_steps(S2, False, [False, False], [True, False], [True, False])
        e = setup + list(wr.values())
    S2.order_fixed()
    last = S2.build()
    e += [needlgkm0(), barrier()] + prof_stamp(8, 234)
    for s in list(range(7, 15)) + list(range(7)):
        pi, q = divmod(s, 3)
        e += [ds_read("ds_read_b128", ("v", acc2(pi, xy, q + 3)), 4, R1, (2 * s + xy) * 1024) for xy in range(2)]
    for s in list(range(7, 15)) + list(range(7)):
        pi, q = divmod(s, 3)
        d, t = acc2(pi, 0, q), acc2(pi, 0, q + 3)
        e += [valu("v_pk_add_f32", f"v[{d + r}:{d + r + 1}]", f"v[{d + r}:{d + r + 1}]", f"v[{t + r}:{t + r + 1}]") for r in range(0, 8, 2)]
        if s >= 7:
            e += [ds_write("ds_write_b128", R1, ("v", acc2(pi, xy, q)), 4, (2 * s + xy) * 1024) for xy in range(2)]
    e += [needlgkm0(), barrier()]
    for s in range(8):
        pi, q = divmod(s, 3)
        for xy in range(2):
            e += [ds_read("ds_read_b128", ("v", acc2(pi, xy, q + 3)), 4, R2, (2 * (14 - s) + xy) * 1024)]
    for s in range(8):
        pi, q = divmod(s, 3)
        d0, t0 = acc2(pi, 0, q), acc2(pi, 0, q + 3)
        e += [valu("v_pk_add_f32", f"v[{d0 + r}:{d0 + r + 1}]", f"v[{d0 + r}:{d0 + r + 1}]", f"v[{t0 + r}:{t0 + r + 1}]") for r in range(0, 8, 2)]
        e += [valu("v_cvt_pk_bf16_f32", f"v{d0 + r}", f"v{d0 + 2 * r}", f"v{d0 + 2 * r + 1}") for r in range(4)]
        e += [vstore(("v", d0), 4, V2O, S2OUT, f"s{84 + s}", 0, flags=OPT["outf"])]
    e += prof_stamp(9, 234)
    if OPT["prof"]:
        for n in range(6):
            e += [valu("v_mov_b32", "v234", 1), valu("v_mov_b32", "v235", f"s{101 - n}"), pstore(234, 2 + n), nop(4)]
    if OPT["dbgt"]:
        a, b = {1: ("s76", "s78"), 2: ("s74", "s76"), 3: ("s76", "s74"), 4: ("s76", "s74")}[OPT["dbgt"]]
        e += [drain(), raw("s_memrealtime s[78:79]", wr=["s78", "s79"]), raw("s_waitcnt lgkmcnt(0)", "drainlg"),
              salu("s_sub_u32", a, a, "s72"), salu("s_sub_u32", b, b, "s72"),
              scmp("s_cmp_lt_u32", "s2", 8), salu("s_cselect_b32", "s7", "s2", "0x1000"), salu("s_lshl_b32", "s7", "s7", 2),
              valu("v_mov_b32", "v0", a), valu("v_mov_b32", "v1", b),
              Ins(f"buffer_store_dword v0, {vFLG}, s[{S_FLG}:{S_FLG + 3}], s7 offen", "vst", rd=["v0", vFLG, "s7"]),
              Ins(f"buffer_store_dword v1, {vFLG}, s[{S_FLG}:{S_FLG + 3}], s7 offen offset:32", "vst", rd=["v1", vFLG, "s7"])]
    e += [label("L_end"), raw("s_endpgm")]
    sp1 = spin("L_spin1", "L_spin1_back", vPOLL[:1], [sFG], [(0, "0xff", 8)]) + spin("L_spin3", "L_spin3_back", vPOLL[1:], [sFB], [(16, 0, 128)])
    sp2 = spin("L_spin2", "L_spin2_back", [V2P], [sFG], [(8, "0xff", 8)])
    return o, first, loop, last, e, sp1, sp2


def check_pointers(pro):
    ptr = set(regs("s", 56, 8) + regs("s", 88, 8))
    dirty = set()
    for x in pro:
        if x.text.startswith("s_load"):
            continue
        if x.text.startswith(("s_mov_b32", "s_and_b32", "s_add_u32", "s_addc_u32")) and x.rd & dirty and "0xffff" in x.text:
            raise AssertionError(x.text)
        dirty |= x.wr & ptr


def kernel():
    pro = prologue()
    check_pointers(pro)
    q1 = q_phase(False)
    if OPT["dbgt"] >= 3:
        st = [raw("s_memrealtime s[76:77]", wr=["s76", "s77"]), raw("s_waitcnt lgkmcnt(0)", "drainlg")]
        if OPT["dbgt"] == 3:
            q1 = q1 + st
        else:
            q1 = st + q1
    full = []
    for last in (False, True):
        _alt[0] = 0
        full.append(a_phase(last))
    cut = [[n for n, x in enumerate(f) if x.text == "L_CUT:"][0] for f in full]
    assert [x.text for x in full[0][:cut[0]]] == [x.text for x in full[1][:cut[1]]]
    att = [label("L_att")] + full[0][:cut[0]]
    tails = []
    for v in range(2):
        t = [label(f"L_tail{v + 1}")] + full[v][cut[v] + 1:]
        t += [raw("s_cbranch_vccnz L_slow", "branch", rd=["vcc"]), label(f"L_back{v + 1}")]
        t += [valu("v_rcp_f32", f"v{16 + qt}" if v else vR[qt], f"v{lacc(qt)}") for qt in range(6)]
        if OPT["dbgt"] and not (v and OPT["dbgt"] >= 3):
            t += [raw(f"s_memrealtime s[{74 + 2 * v}:{75 + 2 * v}]", wr=[f"s{74 + 2 * v}", f"s{75 + 2 * v}"]), raw("s_waitcnt lgkmcnt(0)", "drainlg")]
        t += prof_stamp(29)
        if OPT["prof"]:
            t += [salu("s_add_u32", sPROF, sPROF, 240)]
        tails.append(t)
    q2 = [salu("s_mov_b32", sIT, 1), label("L_q2")] + q_phase(True) + [raw("s_branch L_att", "branch")]
    o, first, loop2, last, e, sp1, sp2 = phase2()
    slow = slow_path()
    parts = [pro, q1, att, tails[0], q2, tails[1], o, first, loop2, last, e, slow, sp1, sp2]
    waits = compute_waits([pro + q1 + att + tails[0] + q2 + att + tails[1] + o + first + loop2 + loop2 + loop2 + last + e, slow, sp1, sp2])
    done = {}
    P = [apply_waits(x, waits, done) for x in parts]
    pads = pad_hazards([P[0] + P[1] + P[2] + P[3] + P[4] + P[2] + P[5] + P[6] + P[7] + P[8] + P[8] + P[9] + P[10], P[11], P[12], P[13]])
    al = ".p2align 3\n"
    return (emit(P[0] + P[1], pads) + al + emit(P[2] + P[3] + P[4], pads) + al + emit(P[5] + P[6] + P[7], pads) + al +
            emit(P[8] + P[9] + P[10] + P[11] + P[12] + P[13], pads) + "L_endcode:\n")


def main():
    kn = NAME + "_kernel"
    s = open("cdna_kernels/" + NAME + ".s.ref").read().split("; Override launch")[0]
    s += "; @launch grid=(256,1,1) block=(256,1,1) lds=163840\n"
    s += """; One persistent workgroup per CU (4 waves, one per SIMD, 512 registers each); all MFMAs are 16x16x32 bf16.
;               row maximum (L_slow). K/V tiles stream through a ring of LDS pages at an even rate.
"""
    s += '.amdgcn_target "amdgcn-amd-amdhsa--gfx950"\n.text\n'
    s += f".globl {kn}\n.p2align 8\n.type {kn},@function\n{kn}:\n" + kernel()
    s += f""".section .rodata,"a"
.p2align 6
.amdhsa_kernel {kn}
  .amdhsa_next_free_vgpr 512
  .amdhsa_next_free_sgpr 102
  .amdhsa_accum_offset 256
  .amdhsa_group_segment_fixed_size 0
  .amdhsa_kernarg_size 104
  .amdhsa_user_sgpr_count 2
  .amdhsa_user_sgpr_kernarg_segment_ptr 1
  .amdhsa_system_sgpr_workgroup_id_x 1
.end_amdhsa_kernel
"""
    open(sys.argv[1], "w").write(s)


main()
```
